```python
import torch

def _softmax(x, axis=-1):
    return torch.softmax(x, dim=axis)
def _gelu(x):
    return torch.nn.functional.gelu(x, approximate="tanh")
def _silu(x):
    return torch.nn.functional.silu(x)
def _sigmoid(x):
    return torch.sigmoid(x)
def _layernorm(x, axis=-1, eps=1e-5):
    m = x.mean(dim=axis, keepdim=True)
    v = x.var(dim=axis, keepdim=True, unbiased=False)
    return (x - m) / torch.sqrt(v + eps)
def _scatter_add(tgt, idx, src, axis=0):
    return tgt.clone().index_add_(axis, idx, src)
def _segment_sum(src, seg, n):
    out = torch.zeros((n,) + src.shape[1:], dtype=src.dtype)
    return out.index_add_(0, seg, src)
def _pad(x, pw):
    flat = tuple(v for pair in reversed(pw) for v in pair)
    return torch.nn.functional.pad(x, flat)

kernel_name = 'gated_mix__softmax_full_mha__geglu_ffn__prompt'

def setup_inputs():

    _w = (lambda a: (lambda t: t.to(torch.bfloat16) if t.is_floating_point() else t)(torch.as_tensor(a)))
    def _A_setup():
        B, S, D = 1, 2048, 512
        return {
            "x": _w((lambda *s: torch.randn(*s, dtype=torch.bfloat16) * 0.05)(B, S, D)),
            "wqkv": _w((lambda *s: torch.randn(*s, dtype=torch.bfloat16) * 0.8)(D, 3 * D)),
            "wo": _w((lambda *s: torch.randn(*s, dtype=torch.bfloat16) * 0.05)(D, D)),
        }
    _A_in = _A_setup()

    def _B_setup():
        B, S, D, F = 1, 2048, 512, 1792
        return {
            "x": _w((lambda *s: torch.randn(*s, dtype=torch.bfloat16) * 0.05)(B, S, D)),
            "w_gate": _w((lambda *s: torch.randn(*s, dtype=torch.bfloat16) * 0.1)(D, F)),
            "w_up": _w((lambda *s: torch.randn(*s, dtype=torch.bfloat16) * 0.1)(D, F)),
            "w_down": _w((lambda *s: torch.randn(*s, dtype=torch.bfloat16) * 0.1)(F, D)),
        }
    _B_in = _B_setup()

    return {
        "A_x": _A_in["x"],
        "A_wqkv": _A_in["wqkv"],
        "A_wo": _A_in["wo"],
        "B_x": _B_in["x"],
        "B_w_gate": _B_in["w_gate"],
        "B_w_up": _B_in["w_up"],
        "B_w_down": _B_in["w_down"],
        "gate_w": _w((lambda *s: torch.randn(*s, dtype=torch.bfloat16) * 0.05)(512) * 16.0),
    }

def reference(A_x, A_wqkv, A_wo, B_x, B_w_gate, B_w_up, B_w_down, gate_w):
    def _A_ref(x, wqkv, wo):
        B, S, D = x.shape
        H = 32; Dh = D // H
        qkv = (lambda x, *d: x.permute(*d))((x @ wqkv).reshape(B, S, 3, H, Dh), 2, 0, 3, 1, 4)
        q, k, v = qkv[0], qkv[1], qkv[2]
        scale = Dh ** -0.5
        scores = torch.einsum("bhqd,bhkd->bhqk", q, k) * scale
        p = _softmax(scores, axis=-1)
        o = torch.einsum("bhqk,bhkd->bhqd", p, v)
        return (lambda x, *d: x.permute(*d))(o, 0, 2, 1, 3).reshape(B, S, D) @ wo

    def _B_ref(x, w_gate, w_up, w_down):
        return (_gelu(x @ w_gate) * (x @ w_up)) @ w_down

    x = A_x
    g = _sigmoid((x * gate_w).sum(-1, keepdims=True))
    a = _A_ref(x, A_wqkv, A_wo)
    b = _B_ref(x, B_w_gate, B_w_up, B_w_down)
    return g * a + (1 - g) * b
```

```python
class Asm:
    def __init__(self):
        self.lines = []
        self._lab = 0
    def __call__(self, s):
        for l in s.split("\n"):
            l = l.strip()
            if l:
                self.lines.append("  " + l if not l.endswith(":") else l)
    def label(self, name):
        self.lines.append(name + ":")
    def raw(self, s):
        self.lines.append(s)
    def newlabel(self, base="L"):
        self._lab += 1
        return f"{base}_{self._lab}"
    def text(self):
        return "\n".join(self.lines) + "\n"

def v(a, n=1):
    return f"v{a}" if n == 1 else f"v[{a}:{a+n-1}]"
def s(a, n=1):
    return f"s{a}" if n == 1 else f"s[{a}:{a+n-1}]"

import struct
def f2u(x):
    return struct.unpack("<I", struct.pack("<f", x))[0]
def fh(x):
    return "0x%08x" % f2u(x)

def interleave(main, fill, per_gap):
    out = []
    fi = 0
    for i, m in enumerate(main):
        out.append(m)
        n = per_gap[i] if isinstance(per_gap, (list, tuple)) else per_gap
        for _ in range(n):
            if fi < len(fill):
                out.append(fill[fi]); fi += 1
    out.extend(fill[fi:])
    return out

def kernel_header(a, name):
    a.raw(f".globl {name}")
    a.raw(".p2align 8")
    a.raw(f".type {name},@function")
    a.label(name)

def kernel_desc(name, vgpr, sgpr=102, accum=None):
    if accum is None:
        accum = (vgpr + 3) // 4 * 4
    return f""".p2align 6
.amdhsa_kernel {name}
  .amdhsa_next_free_vgpr {vgpr}
  .amdhsa_next_free_sgpr {sgpr}
  .amdhsa_accum_offset {accum}
  .amdhsa_group_segment_fixed_size 0
  .amdhsa_kernarg_size 88
  .amdhsa_user_sgpr_count 2
  .amdhsa_user_sgpr_kernarg_segment_ptr 1
  .amdhsa_system_sgpr_workgroup_id_x 1
.end_amdhsa_kernel
"""
```

```python
import sys, math
from asmlib import *

NAME = "gated_mix__softmax_full_mha__geglu_ffn__prompt"
LOG2E = 1.4426950408889634

WS_Q = 0x0
WS_K = 0x200000
WS_V = 0x400000
WS_ACT = 0x600000
WS_WF = 0xF00000
WS_G = 0x1140000
WS_SIZE = 0x2000000

SL_G, SL_U, SL_Q, SL_X = 0, 7296, 14464, 20608
SLOT = 28800
NSLOT = 5
LDS_OG = SLOT * NSLOT
LDS_WT = LDS_OG + 512
K1_LDS = LDS_WT + 12 * 1024

def srd(a, d, base, nbytes):
    a(f"s_mov_b32 s{d}, s{base}")
    a(f"s_mov_b32 s{d+1}, s{base+1}")
    a(f"s_mov_b32 s{d+2}, {nbytes:#x}")
    a(f"s_mov_b32 s{d+3}, 0x20000")

def gen_k1(a):
    kernel_header(a, "k1_kernel")
    a("s_cmp_ge_u32 s2, 256")
    a("s_cbranch_scc1 K1_EXIT")
    a("s_load_dwordx4 s[4:7], s[0:1], 0       ; x, wqkv")
    a("s_load_dwordx2 s[8:9], s[0:1], 16      ; wo")
    a("s_load_dwordx2 s[10:11], s[0:1], 80    ; ws")
    a("s_load_dwordx4 s[12:15], s[0:1], 32")
    a("s_load_dwordx4 s[16:19], s[0:1], 48")
    a("v_lshrrev_b32 v1, 6, v0")
    a("v_and_b32 v2, 63, v0                   ; lane")
    a("v_readfirstlane_b32 s20, v1")
    a("s_and_b32 s21, s2, 1")
    a("s_lshl_b32 s21, s21, 3")
    a("s_bfe_u32 s23, s2, 0x30003             ; (wg>>3)&7")
    a("s_add_u32 s21, s21, s23                ; rb")
    a("s_bfe_u32 s22, s2, 0x20001             ; (wg>>1)&3")
    a("s_lshl_b32 s22, s22, 2")
    a("s_lshr_b32 s23, s2, 6")
    a("s_add_u32 s22, s22, s23                ; cb")
    a("s_cmp_ge_u32 s20, 4")
    a("s_cbranch_scc1 K1_LOADER")

    ACC = 96
    BUF = [16, 44]
    VAF, VAQ, VAX0, VAX1 = 4, 5, 6, 7
    a("v_bfe_u32 v8, v2, 4, 1                 ; gsel")
    a("v_lshrrev_b32 v9, 5, v2                ; h")
    a("v_bfe_u32 v10, v2, 2, 2                ; r")
    a("v_and_b32 v11, 3, v2                   ; c")
    a("v_lshl_add_u32 v12, v9, 3, v10         ; 8h+r")
    a(f"v_mul_u32_u24 v13, {SL_U}, v8")
    a("v_mul_u32_u24 v14, 224, v12")
    a("v_lshl_add_u32 v14, v11, 3, v14")
    a(f"v_add_u32 v{VAF}, v13, v14")
    a("v_mul_u32_u24 v14, 192, v12")
    a("v_lshl_add_u32 v14, v11, 3, v14")
    a("v_lshl_add_u32 v14, v8, 5, v14")
    a(f"v_add_u32 v{VAQ}, {SL_Q}, v14")
    a("s_and_b32 s23, s20, 1                  ; tp")
    a("s_lshl_b32 s24, s23, 12")
    a(f"s_add_u32 s24, s24, {SL_X}")
    a("v_and_b32 v13, 31, v2")
    a("v_lshlrev_b32 v13, 6, v13")
    a("v_xor_b32 v14, v9, v10                 ; h ^ ((row>>2)&3)")
    a("v_lshl_add_u32 v15, v14, 4, v13")
    a(f"v_add_u32 v{VAX0}, s24, v15")
    a("v_xor_b32 v15, 32, v15")
    a(f"v_add_u32 v{VAX1}, s24, v15")
    for i in range(160):
        a(f"v_mov_b32 v{ACC+i}, 0")
    a("s_mov_b32 s25, 0")
    a("s_mov_b32 s26, 16")
    a("s_waitcnt lgkmcnt(0)")
    srd(a, 28, 10, WS_SIZE)
    a("s_cmp_ge_u32 s20, 2")
    a("s_cbranch_scc1 K1_GRP1")

    def reads(grp, s_, buf):
        L = []
        vx = VAX0 if s_ == 0 else VAX1
        tiles = ([("F", 0), ("F", 1), ("F", 2), ("F", 3), ("Q", 0)] if grp == 0 else
                 [("F", 4), ("F", 5), ("F", 6), ("Q", 1), ("Q", 2)])
        L.append(f"ds_read_b128 {v(buf, 4)}, v{vx}")
        for ti, (kind, t) in enumerate(tiles):
            for u in range(2):
                row = 16 * s_ + 4 * u
                if kind == "F":
                    off, ar = row * 224 + t * 32, VAF
                else:
                    off, ar = row * 192 + t * 64, VAQ
                L.append(f"ds_read_b64_tr_b16 {v(buf + 8 + 4 * ti + 2 * u, 2)}, v{ar} offset:{off}")
            if ti == 0:
                L.append(f"ds_read_b128 {v(buf + 4, 4)}, v{vx} offset:2048")
        return L

    def mfmas(grp, buf):
        L = []
        for ti in range(5):
            for i in range(2):
                acc = ACC + (i * 5 + ti) * 16
                X, W = v(buf + 4 * i, 4), v(buf + 8 + 4 * ti, 4)
                if grp == 1 and ti == 4:
                    L.append(f"v_mfma_f32_32x32x16_bf16 {v(acc,16)}, {X}, {W}, {v(acc,16)}")
                else:
                    L.append(f"v_mfma_f32_32x32x16_bf16 {v(acc,16)}, {W}, {X}, {v(acc,16)}")
        return L

    for grp in range(2):
        if grp == 1:
            a.label("K1_GRP1")
        a("s_barrier")
        for l in reads(grp, 0, BUF[0]):
            a(l)
        a.raw(".p2align 6")
        a.label(f"K1_LOOP{grp}")
        a("s_waitcnt lgkmcnt(0)")
        upd = [f"s_add_u32 s25, s25, {SLOT}",
               f"s_cmp_eq_u32 s25, {SLOT*NSLOT}",
               f"s_cselect_b32 s27, {(-(NSLOT-1)*SLOT) & 0xffffffff:#x}, s24",
               f"s_cselect_b32 s25, 0, s25",
               f"v_add_u32 v{VAF}, s27, v{VAF}", f"v_add_u32 v{VAQ}, s27, v{VAQ}",
               f"v_add_u32 v{VAX0}, s27, v{VAX0}", f"v_add_u32 v{VAX1}, s27, v{VAX1}"]
        fill = [f"s_mov_b32 s24, {SLOT}"] + reads(grp, 1, BUF[1]) + upd
        for l in interleave(mfmas(grp, BUF[0]), fill, [3, 2, 2, 2, 2, 2, 4, 2, 2, 0]):
            a(l)
        a("s_waitcnt lgkmcnt(0)")
        fill = ["s_barrier"] + reads(grp, 0, BUF[0]) + ["s_sub_u32 s26, s26, 1", "s_cmp_lg_u32 s26, 0"]
        for l in interleave(mfmas(grp, BUF[1]), fill, [1, 2, 2, 2, 2, 2, 2, 2, 0, 0]):
            a(l)
        a(f"s_cbranch_scc1 K1_LOOP{grp}")
        a("s_lshl_b32 s32, s21, 2")
        a("s_lshl_b32 s33, s23, 1")
        a("s_add_u32 s32, s32, s33            ; tt0")
        a("v_lshlrev_b32 v3, 4, v2            ; lane*16")
        a("v_and_b32 v13, 31, v2")
        a("v_lshlrev_b32 v13, 2, v13")
        a("s_lshl_b32 s33, s23, 8")
        a(f"s_add_u32 s33, s33, {LDS_OG}")
        a("v_add_u32 v13, s33, v13")
        a("s_waitcnt lgkmcnt(0)")
        a("ds_read_b32 v8, v13")
        a("ds_read_b32 v10, v13 offset:128")
        T = 16
        def cvt_tile(acc, dst, lo=0, hi=16):
            for i in range(lo, hi, 2):
                a(f"v_cvt_pk_bf16_f32 v{dst + (i - lo)//2}, v{acc+i}, v{acc+i+1}")
        a("s_nop 7")
        a("s_nop 7")
        if grp == 0:
            a(f"s_mov_b32 s34, {fh(LOG2E*0.25)}")
            a("s_mov_b32 s35, s34")
            a("s_lshl_b32 s36, s22, 7             ; cb*2*64")
            a("s_add_u32 s36, s36, s32")
            a("s_lshl_b32 s36, s36, 10")
            for i in range(2):
                acc = ACC + (i * 5 + 4) * 16
                for j in range(0, 16, 2):
                    a(f"v_pk_mul_f32 {v(acc+j,2)}, {v(acc+j,2)}, s[34:35]")
                cvt_tile(acc, T + 8 * i)
                a(f"s_add_u32 s37, s36, {WS_Q + i * 1024}")
                a(f"s_add_u32 s38, s36, {WS_Q + i * 1024 + 65536}")
                a(f"buffer_store_dwordx4 {v(T+8*i,4)}, v3, s[28:31], s37 offen")
                a(f"buffer_store_dwordx4 {v(T+8*i+4,4)}, v3, s[28:31], s38 offen")
            ftiles = [0, 1, 2, 3]
        else:
            a("v_and_b32 v12, 0x33, v2")
            a("v_bfe_u32 v13, v2, 2, 1")
            a("v_lshl_or_b32 v12, v13, 3, v12")
            a("v_bfe_u32 v13, v2, 3, 1")
            a("v_lshl_or_b32 v12, v13, 2, v12")
            a("v_lshlrev_b32 v12, 4, v12          ; K voffset")
            a("v_bfe_u32 v13, v2, 4, 1")
            a("v_lshlrev_b32 v13, 16, v13")
            a("v_lshrrev_b32 v14, 5, v2")
            a("v_lshl_or_b32 v13, v14, 8, v13")
            a("v_and_b32 v14, 15, v2")
            a("v_lshl_or_b32 v13, v14, 4, v13     ; V voffset")
            a("s_lshl_b32 s36, s22, 7")
            a("s_add_u32 s36, s36, s32")
            a("s_lshl_b32 s36, s36, 10")
            for i in range(2):
                acc = ACC + (i * 5 + 3) * 16
                cvt_tile(acc, T + 8 * i)
                a(f"s_add_u32 s37, s36, {WS_K + i * 1024}")
                a(f"s_add_u32 s38, s36, {WS_K + i * 1024 + 65536}")
                a(f"buffer_store_dwordx4 {v(T+8*i,4)}, v12, s[28:31], s37 offen")
                a(f"buffer_store_dwordx4 {v(T+8*i+4,4)}, v12, s[28:31], s38 offen")
            for i in range(2):
                acc = ACC + (i * 5 + 4) * 16
                cvt_tile(acc, T + 16 + 8 * i)
                a(f"s_add_u32 s37, s36, {WS_V + i * 1024}")
                a(f"buffer_store_dwordx4 {v(T+16+8*i,4)}, v13, s[28:31], s37 offen")
                a(f"buffer_store_dwordx4 {v(T+16+8*i+4,4)}, v13, s[28:31], s37 offen offset:512")
            ftiles = [4, 5, 6]
        c0 = -2.0 * 0.7978845608028654 * LOG2E
        c1 = c0 * 0.044715
        a(f"s_mov_b32 s34, {fh(c1)}")
        a("s_mov_b32 s35, s34")
        a(f"v_mov_b32 v4, {fh(c0)}")
        a("v_mov_b32 v5, v4")
        a("v_mov_b32 v6, 1.0")
        a("v_mov_b32 v7, 1.0")
        a("s_mul_i32 s36, s22, 7")
        a("s_mul_i32 s37, s32, 144")
        a("s_add_u32 s36, s36, s37")
        a("s_lshl_b32 s36, s36, 10")
        a("s_waitcnt lgkmcnt(0)")
        TB = 48
        k = 0
        for i in range(2):
            og = 8 if i == 0 else 10
            for ti, t in enumerate(ftiles):
                acc = ACC + (i * 5 + ti) * 16
                out = 56 + 4 * (k % 8)
                k += 1
                for j in range(0, 8, 2):
                    a(f"v_pk_mul_f32 {v(TB+j,2)}, {v(acc+j,2)}, {v(acc+j,2)}")
                for j in range(0, 8, 2):
                    a(f"v_pk_fma_f32 {v(TB+j,2)}, {v(TB+j,2)}, s[34:35], v[4:5]")
                for j in range(0, 8, 2):
                    a(f"v_pk_mul_f32 {v(TB+j,2)}, {v(TB+j,2)}, {v(acc+j,2)}")
                for j in range(8):
                    a(f"v_exp_f32 v{TB+j}, v{TB+j}")
                for j in range(0, 8, 2):
                    a(f"v_pk_mul_f32 {v(acc+8+j,2)}, {v(acc+8+j,2)}, {v(og,2)} op_sel_hi:[1,0]")
                for j in range(0, 8, 2):
                    a(f"v_pk_add_f32 {v(TB+j,2)}, {v(TB+j,2)}, v[6:7]")
                for j in range(8):
                    a(f"v_rcp_f32 v{TB+j}, v{TB+j}")
                for j in range(0, 8, 2):
                    a(f"v_pk_mul_f32 {v(acc+8+j,2)}, {v(acc+8+j,2)}, {v(acc+j,2)}")
                for j in range(0, 8, 2):
                    a(f"v_pk_mul_f32 {v(acc+8+j,2)}, {v(acc+8+j,2)}, {v(TB+j,2)}")
                cvt_tile(acc, out, 8, 16)
                a(f"s_add_u32 s37, s36, {WS_ACT + (i * 144 + t) * 1024}")
                a(f"buffer_store_dwordx4 {v(out,4)}, v3, s[28:31], s37 offen")
        a("s_endpgm")

    a.label("K1_LOADER")
    a("s_sub_u32 s20, s20, 4                  ; L")
    VO = 10
    a("s_waitcnt lgkmcnt(0)")
    a("s_mov_b32 s27, 0x20000")
    a("s_mov_b32 s31, 0x20000")
    def xoff(dst, i):
        a("v_lshrrev_b32 v3, 2, v2")
        a(f"v_add_u32 v3, {16*i}, v3           ; row")
        a("v_bfe_u32 v4, v3, 2, 2")
        a("v_and_b32 v5, 3, v2")
        a("v_xor_b32 v4, v4, v5")
        a("v_lshlrev_b32 v3, 10, v3")
        a(f"v_lshl_add_u32 v{dst}, v4, 4, v3")
    a("s_cmp_ge_u32 s20, 2")
    a("s_cbranch_scc1 K1_L23")
    a("s_cmp_eq_u32 s20, 0")
    a("s_cselect_b64 s[24:25], s[12:13], s[14:15]")
    a(f"s_cselect_b32 s36, {SL_G}, {SL_U}".replace(f"{SL_G}, {SL_U}", f"0, {SL_U}"))
    a("s_mov_b32 s26, 0x1c0000")
    a("s_mov_b64 s[28:29], s[24:25]")
    a("s_mov_b32 s30, s26")
    a("s_add_u32 s37, s36, 6144")
    a("s_mul_i32 s32, s22, 224")
    a("s_mov_b32 s33, s32")
    a("s_mov_b32 s34, 114688")
    a("s_mov_b32 s35, 114688")
    for i in range(7):
        a(f"v_add_u32 v3, {64*i}, v2")
        a("v_mul_u32_u24 v4, 4682, v3")
        a("v_lshrrev_b32 v4, 16, v4           ; row")
        a("v_mul_u32_u24 v5, 14, v4")
        a("v_sub_u32 v5, v3, v5               ; piece")
        a("v_mul_u32_u24 v4, 3584, v4")
        a(f"v_lshl_add_u32 v{VO+i}, v5, 4, v4")
    a("s_branch K1_LGO")
    a.label("K1_L23")
    a("s_mov_b64 s[28:29], s[4:5]")
    a("s_mov_b32 s30, 0x200000")
    a("s_lshl_b32 s33, s21, 17                ; rb*128*1024")
    a("s_mov_b32 s35, 64")
    a("s_cmp_eq_u32 s20, 3")
    a("s_cbranch_scc1 K1_L3")
    a("s_mov_b64 s[24:25], s[6:7]")
    a("s_mov_b32 s26, 0x180000")
    a(f"s_mov_b32 s36, {SL_Q}")
    a(f"s_mov_b32 s37, {SL_X + 7*1024}")
    a("s_lshl_b32 s32, s22, 6")
    a("s_mov_b32 s34, 98304")
    for i in range(6):
        a(f"v_add_u32 v3, {64*i}, v2")
        a("v_mul_u32_u24 v4, 5462, v3")
        a("v_lshrrev_b32 v4, 16, v4")
        a("v_mul_u32_u24 v5, 12, v4")
        a("v_sub_u32 v5, v3, v5               ; p")
        a("v_mul_u32_u24 v4, 3072, v4")
        a("v_lshrrev_b32 v6, 2, v5")
        a("v_lshl_add_u32 v4, v6, 10, v4")
        a("v_and_b32 v5, 3, v5")
        a(f"v_lshl_add_u32 v{VO+i}, v5, 4, v4")
    xoff(VO + 6, 7)
    a("s_branch K1_LGO")
    a.label("K1_L3")
    a("s_mov_b64 s[24:25], s[4:5]")
    a("s_mov_b32 s26, 0x200000")
    a(f"s_mov_b32 s36, {SL_X}")
    a(f"s_mov_b32 s37, {SL_X + 6*1024}")
    a("s_mov_b32 s32, s33")
    a("s_mov_b32 s34, 64")
    for i in range(7):
        xoff(VO + i, i)
    a.label("K1_LGO")
    a("s_mov_b32 s38, 0")
    def issue():
        a("s_add_u32 s39, s38, s36")
        for i in range(6):
            a(f"s_add_u32 m0, s39, {i*1024}")
            a("s_nop 0")
            a(f"buffer_load_dwordx4 v{VO+i}, s[24:27], s32 offen lds")
        a("s_add_u32 m0, s38, s37")
        a("s_add_u32 s32, s32, s34")
        a(f"buffer_load_dwordx4 v{VO+6}, s[28:31], s33 offen lds")
        a("s_add_u32 s33, s33, s35")
        a(f"s_add_u32 s38, s38, {SLOT}")
        a(f"s_cmp_eq_u32 s38, {SLOT*NSLOT}")
        a("s_cselect_b32 s38, 0, s38")
    a("s_mov_b32 s41, 4")
    a.label("K1_LPRO")
    issue()
    a("s_sub_u32 s41, s41, 1")
    a("s_cmp_lg_u32 s41, 0")
    a("s_cbranch_scc1 K1_LPRO")
    a("s_and_b32 s42, s20, 1")
    a("s_lshl_b32 s42, s42, 6")
    a("v_add_u32 v3, s42, v2")
    a("v_bfe_u32 v4, v3, 2, 2")
    a("v_lshlrev_b32 v5, 6, v3")
    a("v_lshl_add_u32 v5, v4, 4, v5")
    a(f"v_add_u32 v20, {SL_X}, v5")
    a("v_xor_b32 v6, 16, v5")
    a(f"v_add_u32 v21, {SL_X}, v6")
    a("v_xor_b32 v6, 32, v5")
    a(f"v_add_u32 v22, {SL_X}, v6")
    a("v_xor_b32 v6, 48, v5")
    a(f"v_add_u32 v23, {SL_X}, v6")
    a("v_mov_b32 v24, 0")
    a("v_mov_b32 v25, 0")
    a("s_mov_b32 s40, 0")
    a("s_mov_b32 s43, 0")
    a("s_load_dwordx16 s[48:63], s[18:19], s43")
    def gpart(last=False):
        lab = a.newlabel("K1_GSKIP")
        a("s_cmp_ge_u32 s20, 2")
        a(f"s_cbranch_scc1 {lab}")
        for q in range(4):
            a(f"v_add_u32 v{26+q}, s40, v{20+q}")
        for q in range(4):
            a(f"ds_read_b128 {v(32+4*q,4)}, v{26+q}")
        a(f"s_add_u32 s40, s40, {SLOT}")
        a(f"s_cmp_eq_u32 s40, {SLOT*NSLOT}")
        a("s_cselect_b32 s40, 0, s40")
        a("s_add_u32 s43, s43, 64")
        a("s_waitcnt lgkmcnt(0)")
        for q in range(16):
            a(f"v_dot2_f32_bf16 v{24 + (q&1)}, v{32+q}, s{48+q}, v{24 + (q&1)}")
        if not last:
            a("s_load_dwordx16 s[48:63], s[18:19], s43")
        a.label(lab)
    a("s_mov_b32 s41, 12")
    a.label("K1_LLOOP")
    a("s_waitcnt vmcnt(21)")
    a("s_barrier")
    issue()
    gpart()
    a("s_sub_u32 s41, s41, 1")
    a("s_cmp_lg_u32 s41, 0")
    a("s_cbranch_scc1 K1_LLOOP")
    a("s_waitcnt vmcnt(21)")
    a("s_barrier")
    a("v_lshrrev_b32 v3, 2, v2")
    a("v_lshlrev_b32 v3, 10, v3")
    a("v_and_b32 v4, 3, v2")
    a("v_lshl_add_u32 v17, v4, 4, v3")
    a("s_mul_i32 s44, s21, 9")
    a("s_add_u32 s44, s44, s20                ; kstep 0")
    a("s_add_u32 s45, s44, 4")
    a("s_add_u32 s46, s44, 8")
    a("s_cmp_eq_u32 s20, 0")
    a("s_cselect_b32 s46, s46, s45")
    a("s_mul_i32 s47, s20, 3072")
    a(f"s_add_u32 s47, s47, {LDS_WT}")
    for q in range(3):
        ks = 44 + q
        a(f"s_cmp_lt_u32 s{ks}, 112")
        a("s_cselect_b64 s[24:25], s[16:17], s[8:9]")
        a("s_cselect_b32 s26, 0x1c0000, 0x80000".replace("0x1c0000, 0x80000", "s64, s65") if False else "s_mov_b32 s26, 0x80000")
        a("s_cselect_b32 s26, 0x1c0000, s26")
        a("s_cselect_b32 s32, 0, 112")
        a(f"s_sub_u32 s32, s{ks}, s32")
        a("s_lshl_b32 s32, s32, 14")
        a("s_lshl_b32 s33, s22, 6")
        a("s_add_u32 s32, s32, s33")
        a(f"s_add_u32 m0, s47, {q*1024}")
        a("s_nop 0")
        a("buffer_load_dwordx4 v17, s[24:27], s32 offen lds")
    gpart()
    for c, n in ((13, 17), (14, 10), (15, 3)):
        a(f"s_waitcnt vmcnt({n})")
        a("s_barrier")
        gpart(last=(c == 15))
    srd(a, 28, 10, WS_SIZE)
    a("s_cmp_ge_u32 s20, 2")
    a("s_cbranch_scc1 K1_GDONE")
    a("s_nop 2")
    a("v_add_f32 v24, v24, v25")
    a(f"v_mul_f32 v24, {fh(-LOG2E)}, v24")
    a("v_exp_f32 v24, v24")
    a("s_nop 0")
    a("v_add_f32 v24, 1.0, v24")
    a("v_rcp_f32 v24, v24                     ; g")
    a("v_add_u32 v3, s42, v2")
    a("v_lshlrev_b32 v3, 2, v3")
    a("v_sub_f32 v25, 1.0, v24")
    a(f"ds_write_b32 v3, v25 offset:0".replace("v3, v25 offset:0", "v4, v25") if False else f"v_add_u32 v4, {LDS_OG}, v3")
    a("ds_write_b32 v4, v25")
    a("s_lshl_b32 s33, s21, 9")
    a(f"s_add_u32 s33, s33, {WS_G}")
    a("s_cmp_eq_u32 s22, 0")
    a("s_cbranch_scc0 K1_GDONE")
    a("buffer_store_dword v24, v3, s[28:31], s33 offen")
    a.label("K1_GDONE")
    a("s_waitcnt lgkmcnt(0)")
    a("s_barrier")
    a("v_bfe_u32 v3, v2, 4, 1                 ; gsel")
    a("v_lshrrev_b32 v4, 5, v2                ; h")
    a("v_bfe_u32 v5, v2, 2, 2                 ; r")
    a("v_lshl_add_u32 v5, v4, 2, v5           ; 4h+r")
    a("v_lshlrev_b32 v5, 6, v5")
    a("v_lshl_add_u32 v5, v3, 5, v5")
    a("v_and_b32 v6, 3, v2")
    a("v_lshl_add_u32 v5, v6, 3, v5")
    a("v_add_u32 v5, s47, v5")
    a("v_lshlrev_b32 v3, 4, v2")
    a("s_waitcnt vmcnt(0)")
    for q in range(3):
        a(f"ds_read_b64_tr_b16 {v(32+4*q,2)}, v5 offset:{q*1024}")
        a(f"ds_read_b64_tr_b16 {v(34+4*q,2)}, v5 offset:{q*1024+512}")
    a("s_mul_i32 s33, s22, 144")
    a("s_waitcnt lgkmcnt(0)")
    for q in range(3):
        a(f"s_add_u32 s32, s33, s{44+q}")
        a("s_lshl_b32 s32, s32, 10")
        a(f"s_add_u32 s32, s32, {WS_WF}")
        a(f"buffer_store_dwordx4 {v(32+4*q,4)}, v3, s[28:31], s32 offen")
    a.label("K1_EXIT")
    a("s_endpgm")

LDS_K = 0
LDS_V = 65536
VP = 1040
K2_LDS = LDS_V + 70 * VP + 64

def gen_k2(a):
    kernel_header(a, "k2_kernel")
    a("s_cmp_ge_u32 s2, 256")
    a("s_cbranch_scc1 K2_EXIT")
    a("s_load_dwordx2 s[10:11], s[0:1], 80    ; ws")
    a("v_lshrrev_b32 v1, 6, v0")
    a("v_and_b32 v2, 63, v0                   ; lane")
    a("v_readfirstlane_b32 s20, v1")
    a("s_and_b32 s21, s2, 7")
    a("s_lshl_b32 s21, s21, 2")
    a("s_bfe_u32 s23, s2, 0x20003")
    a("s_add_u32 s21, s21, s23                ; head")
    a("s_lshr_b32 s22, s2, 5                  ; qb")
    a("v_lshlrev_b32 v3, 4, v2                ; lane*16")
    a("s_waitcnt lgkmcnt(0)")
    srd(a, 28, 10, WS_SIZE)
    a("s_cmp_ge_u32 s20, 4")
    a("s_cbranch_scc1 K2_LOADER")
    Q = [8, 12]
    G = [4, 5]
    KB = [16, 20]
    VB = [[24, 28], [32, 36]]
    IDX = 6
    VK, VV0, VV1 = 40, 41, 42
    C = [48, 64]
    S = [80, 96]
    P = [112, 128]
    O = [144, 160]
    a("s_lshl_b32 s24, s22, 3")
    a("s_lshl_b32 s25, s20, 1")
    a("s_add_u32 s24, s24, s25                ; tt0")
    a("s_lshl_b32 s25, s21, 6")
    a("s_add_u32 s25, s25, s24")
    a("s_lshl_b32 s25, s25, 10")
    a(f"buffer_load_dwordx4 {v(Q[0],4)}, v3, s[28:31], s25 offen")
    a(f"buffer_load_dwordx4 {v(Q[1],4)}, v3, s[28:31], s25 offen offset:1024")
    a("v_and_b32 v7, 31, v2")
    a("v_lshlrev_b32 v7, 2, v7")
    a("s_lshl_b32 s25, s24, 7")
    a(f"s_add_u32 s25, s25, {WS_G}")
    a(f"buffer_load_dword v{G[0]}, v7, s[28:31], s25 offen")
    a(f"buffer_load_dword v{G[1]}, v7, s[28:31], s25 offen offset:128")
    a(f"v_mov_b32 v{IDX}, 0xdddd")
    a(f"v_mul_u32_u24 v112, {VP}, v2")
    a(f"v_add_u32 v112, {LDS_V + 1024}, v112")
    for i in range(4):
        a(f"v_mov_b32 v{116+i}, 0x3f803f80")
    a("ds_write_b128 v112, v[116:119]")
    a(f"ds_write_b128 v112, v[116:119] offset:{5*VP}")
    def vaddr_init():
        a(f"v_mov_b32 v{VK}, v3")
        a("v_lshrrev_b32 v43, 5, v2")
        a("v_and_b32 v44, 15, v2")
        a("v_lshlrev_b32 v44, 4, v44")
        a("v_lshl_or_b32 v44, v43, 8, v44")
        a(f"v_add_u32 v44, {LDS_V}, v44")
        a("v_add_u32 v45, 512, v44")
        a("v_and_b32 v43, 31, v2")
        a("v_subrev_u32 v43, 20, v43")
        a(f"v_mov_b32 v46, {LDS_V + 1024}")
        a(f"v_mov_b32 v47, {LDS_V + 1024 + 4*VP}")
        a("v_cmp_gt_u32 vcc, 8, v43")
        a("s_nop 1")
        a("v_cndmask_b32 v46, v46, v47, vcc")
        a("v_and_b32 v43, 16, v2")
        a("v_cmp_eq_u32 vcc, 0, v43")
        a("s_nop 1")
        a(f"v_cndmask_b32 v{VV0}, v46, v44, vcc")
        a(f"v_cndmask_b32 v{VV1}, v46, v45, vcc")
    vaddr_init()
    a("s_mov_b32 s26, 0")
    a("s_waitcnt vmcnt(0) lgkmcnt(0)")
    a("s_barrier")
    a(f"ds_read_b128 {v(KB[0],4)}, v{VK}")
    a("s_waitcnt lgkmcnt(0)")
    for q in range(2):
        a(f"v_mfma_f32_32x32x16_bf16 {v(S[q],16)}, {v(KB[0],4)}, {v(Q[q],4)}, 0")
    a("s_nop 7")
    a("s_nop 7")
    def maxtree(src, dst, acc=False):
        if acc:
            for i in range(0, 16, 2):
                a(f"v_max3_f32 v{dst}, v{src+i}, v{src+i+1}, v{dst}")
        else:
            a(f"v_max_f32 v{dst}, v{src}, v{src+1}")
            for i in range(2, 16, 2):
                a(f"v_max3_f32 v{dst}, v{src+i}, v{src+i+1}, v{dst}")
    for q in range(2):
        maxtree(S[q], 44 + q)
    a.label("K2_SETMAX")
    for q in range(2):
        a(f"v_mov_b32 v{46+q}, v{44+q}")
    a("s_nop 1")
    for q in range(2):
        a(f"v_permlane32_swap_b32 v{44+q}, v{46+q}")
    for q in range(2):
        a(f"v_max_f32 v{44+q}, v{44+q}, v{46+q}")
    for q in range(2):
        for i in range(16):
            a(f"v_sub_f32 v{C[q]+i}, 0, v{44+q}")
    for q in range(2):
        for i in range(16):
            a(f"v_mov_b32 v{O[q]+i}, 0")
    for i in range(8):
        a(f"v_mov_b32 v{P[1]+8+i}, 0")
    for i in range(4):
        a(f"v_mov_b32 v{VB[1][1]+i}, 0")
    a(f"ds_read_b128 {v(KB[0],4)}, v{VK}")
    a(f"ds_read_b128 {v(VB[0][0],4)}, v{VV0}")
    a(f"ds_read_b128 {v(VB[0][1],4)}, v{VV1}")
    a(f"ds_read_b128 {v(KB[1],4)}, v{VK} offset:1024")
    a("s_waitcnt lgkmcnt(3)")
    a(f"v_mfma_f32_32x32x16_bf16 {v(S[0],16)}, {v(KB[0],4)}, {v(Q[0],4)}, {v(C[0],16)}")
    a("s_mov_b32 s27, 8")
    a("s_nop 7")
    a("s_nop 7")
    U = 8
    a.raw(".p2align 6")
    a.label("K2_LOOP")
    def exps(q, lo, hi):
        for i in range(lo, hi):
            a(f"v_exp_f32 v{P[q]+i}, v{S[q]+i}")
    def smf(q, vb, half):
        a(f"v_smfmac_f32_32x32x32_bf16 {v(O[q],16)}, {v(vb,4)}, {v(P[q]+8*half,8)}, v{IDX}")
    for u in range(U):
        b = u & 1
        a("s_waitcnt lgkmcnt(1)")
        a(f"v_mfma_f32_32x32x16_bf16 {v(S[1],16)}, {v(KB[b],4)}, {v(Q[1],4)}, {v(C[1],16)}")
        exps(0, 0, 5)
        smf(1, VB[b ^ 1][1], 1)
        exps(0, 5, 6)
        a(f"ds_read_b128 {v(VB[b^1][0],4)}, v{VV0} offset:{(u+1)*VP}")
        exps(0, 6, 7)
        a(f"ds_read_b128 {v(VB[b^1][1],4)}, v{VV1} offset:{(u+1)*VP}")
        exps(0, 7, 11)
        smf(0, VB[b][0], 0)
        exps(0, 11, 16)
        a("s_waitcnt lgkmcnt(2)")
        a(f"v_mfma_f32_32x32x16_bf16 {v(S[0],16)}, {v(KB[b^1],4)}, {v(Q[0],4)}, {v(C[0],16)}")
        exps(1, 0, 1)
        a(f"ds_read_b128 {v(KB[b],4)}, v{VK} offset:{(u+2)*1024}")
        exps(1, 1, 5)
        smf(0, VB[b][1], 1)
        exps(1, 5, 11)
        smf(1, VB[b][0], 0)
        if u == U - 1:
            exps(1, 11, 12)
            a("s_sub_u32 s27, s27, 1")
            exps(1, 12, 13)
            a(f"v_add_u32 v{VK}, {U*1024}, v{VK}")
            a(f"v_add_u32 v{VV0}, {U*VP}, v{VV0}")
            a(f"v_add_u32 v{VV1}, {U*VP}, v{VV1}")
            exps(1, 13, 16)
        else:
            exps(1, 11, 16)
    a("s_add_u32 s32, s27, s26")
    a("s_cmp_lg_u32 s32, 7")
    a("s_cbranch_scc1 K2_NOBAR")
    a("s_barrier")
    a.label("K2_NOBAR")
    a("s_cmp_lg_u32 s27, 0")
    a("s_cbranch_scc1 K2_LOOP")
    a("s_nop 1")
    smf(1, VB[(U - 1) & 1][1], 1)
    a("s_waitcnt lgkmcnt(0)")
    a("s_nop 7")
    a("s_nop 7")
    a("v_mov_b32 v44, 0")
    for q in range(2):
        for i in range(9):
            a(f"v_fma_f32 v44, v{O[q]+i}, 0, v44")
    a("v_cmp_u_f32 vcc, v44, v44")
    a("s_cmp_lg_u32 s26, 0")
    a("s_cbranch_scc1 K2_FIN")
    a("s_nop 3")
    a("s_cbranch_vccz K2_FIN")
    a("s_mov_b32 s26, 100")
    vaddr_init()
    a("v_mov_b32 v44, 0xff800000")
    a("v_mov_b32 v45, 0xff800000")
    a("v_mov_b32 v43, v3")
    a("s_mov_b32 s27, 64")
    a.label("K2_MAXLOOP")
    a(f"ds_read_b128 {v(KB[0],4)}, v43")
    a("v_add_u32 v43, 1024, v43")
    a("s_waitcnt lgkmcnt(0)")
    for q in range(2):
        a(f"v_mfma_f32_32x32x16_bf16 {v(S[q],16)}, {v(KB[0],4)}, {v(Q[q],4)}, 0")
    a("s_nop 7")
    a("s_nop 7")
    for q in range(2):
        maxtree(S[q], 44 + q, acc=True)
    a("s_sub_u32 s27, s27, 1")
    a("s_cmp_lg_u32 s27, 0")
    a("s_cbranch_scc1 K2_MAXLOOP")
    a("s_branch K2_SETMAX")
    a.label("K2_FIN")
    a("s_mul_i32 s25, s24, 144")
    a("s_add_u32 s25, s25, s21")
    a("s_lshl_b32 s25, s25, 10")
    for q in range(2):
        a(f"v_rcp_f32 v{44+q}, v{O[q]+8}")
    a("s_nop 0")
    for q in range(2):
        a(f"v_mul_f32 v{44+q}, v{44+q}, v{G[q]}")
    for q in range(2):
        for i in range(8):
            a(f"v_mul_f32 v{O[q]+i}, v{O[q]+i}, v{44+q}")
        for i in range(0, 8, 2):
            a(f"v_cvt_pk_bf16_f32 v{S[q]+i//2}, v{O[q]+i}, v{O[q]+i+1}")
        a(f"s_add_u32 s32, s25, {WS_ACT + (q*144 + 112) * 1024}")
        a(f"buffer_store_dwordx4 {v(S[q],4)}, v3, s[28:31], s32 offen")
    a("s_endpgm")
    a.label("K2_LOADER")
    a("s_sub_u32 s20, s20, 4")
    a("s_lshl_b32 s24, s21, 16")
    a("s_lshl_b32 s25, s20, 10")
    a("s_add_u32 s24, s24, s25                ; head*64K + L*1K")
    a(f"s_add_u32 s26, s24, {WS_V}")
    a(f"s_add_u32 s24, s24, {WS_K}")
    a(f"s_mul_i32 s27, s20, {VP}")
    a(f"s_add_u32 s27, s27, {LDS_V}")
    for i in range(16):
        a(f"s_add_u32 m0, s25, {i*4096}")
        a("s_nop 0")
        a("buffer_load_dwordx4 v3, s[28:31], s24 offen lds")
        a(f"s_add_u32 m0, s27, {i*4*VP}")
        a("s_add_u32 s24, s24, 4096")
        a("buffer_load_dwordx4 v3, s[28:31], s26 offen lds")
        a("s_add_u32 s26, s26, 4096")
    a("s_waitcnt vmcnt(26)")
    a("s_barrier")
    a("s_waitcnt vmcnt(0)")
    a("s_barrier")
    a.label("K2_EXIT")
    a("s_endpgm")

RP = 272
K3_LDS = 8 * 64 * RP

def gen_k3(a):
    kernel_header(a, "k3_kernel")
    a("s_cmp_ge_u32 s2, 256")
    a("s_cbranch_scc1 K3_EXIT")
    a("s_load_dwordx2 s[10:11], s[0:1], 80    ; ws")
    a("s_load_dwordx2 s[8:9], s[0:1], 64      ; out")
    a("v_lshrrev_b32 v1, 6, v0")
    a("v_and_b32 v2, 63, v0")
    a("v_readfirstlane_b32 s20, v1")
    a("s_bfe_u32 s21, s2, 0x20001")
    a("s_lshl_b32 s21, s21, 3")
    a("s_bfe_u32 s23, s2, 0x30003")
    a("s_add_u32 s21, s21, s23                ; rb64")
    a("s_and_b32 s22, s2, 1")
    a("s_lshl_b32 s22, s22, 2")
    a("s_lshr_b32 s23, s2, 6")
    a("s_add_u32 s22, s22, s23                ; cb64")
    a("v_lshlrev_b32 v3, 4, v2")
    a("s_waitcnt lgkmcnt(0)")
    srd(a, 28, 10, WS_SIZE)
    srd(a, 24, 8, 0x200000)
    NK = 18
    a(f"s_mul_i32 s32, s20, {NK*1024}")
    a(f"s_mul_i32 s33, s21, {2*144*1024}")
    a("s_add_u32 s33, s33, s32")
    a(f"s_add_u32 s33, s33, {WS_ACT}")
    a(f"s_add_u32 s34, s33, {144*1024}")
    a(f"s_mul_i32 s35, s22, {2*144*1024}")
    a("s_add_u32 s35, s35, s32")
    a(f"s_add_u32 s35, s35, {WS_WF}")
    a(f"s_add_u32 s36, s35, {144*1024}")
    ACC = 16
    FR = 80
    D = 9
    def loads(k):
        b = FR + (k % D) * 16
        for j, sr in enumerate((35, 33, 36, 34)):
            a(f"buffer_load_dwordx4 {v(b+4*j,4)}, v3, s[28:31], s{sr} offen offset:{(k%4)*1024}")
        if k % 4 == 3:
            for sr in (33, 34, 35, 36):
                a(f"s_add_u32 s{sr}, s{sr}, 4096")
    for k in range(D):
        loads(k)
    for k in range(NK):
        issued = min(NK, k + D)
        a(f"s_waitcnt vmcnt({4*(issued-k-1)})")
        b = FR + (k % D) * 16
        for n in range(2):
            for t in range(2):
                acc = ACC + (n * 2 + t) * 16
                cin = "0" if k == 0 else v(acc, 16)
                a(f"v_mfma_f32_32x32x16_bf16 {v(acc,16)}, {v(b+8*n,4)}, {v(b+4+8*t,4)}, {cin}")
        if k + D < NK:
            a("s_nop 7")
            loads(k + D)
    a("v_and_b32 v4, 31, v2")
    a(f"v_mul_u32_u24 v4, {RP}, v4")
    a("v_lshrrev_b32 v5, 5, v2")
    a("v_lshl_add_u32 v4, v5, 4, v4")
    a(f"s_mul_i32 s32, s20, {64*RP}")
    a("v_add_u32 v4, s32, v4")
    a("s_nop 7")
    a("s_nop 7")
    for n in range(2):
        for t in range(2):
            acc = ACC + (n * 2 + t) * 16
            for g in range(4):
                a(f"ds_write_b128 v4, {v(acc+4*g,4)} offset:{t*32*RP + n*128 + g*32}")
    a("v_lshrrev_b32 v4, 3, v0                ; token")
    a("v_and_b32 v5, 7, v0")
    a(f"v_mul_u32_u24 v6, {RP}, v4")
    a("v_lshl_add_u32 v6, v5, 5, v6")
    a(f"v_add_u32 v7, {4*64*RP}, v6")
    a("s_waitcnt lgkmcnt(0)")
    a("s_barrier")
    for w in range(8):
        ar = 6 if w < 4 else 7
        a(f"ds_read_b128 {v(80+8*w,4)}, v{ar} offset:{(w%4)*64*RP}")
        a(f"ds_read_b128 {v(84+8*w,4)}, v{ar} offset:{(w%4)*64*RP+16}")
    a("v_lshlrev_b32 v4, 10, v4")
    a("v_lshl_add_u32 v4, v5, 4, v4")
    a("s_lshl_b32 s32, s21, 16")
    a("s_lshl_b32 s33, s22, 7")
    a("s_add_u32 s32, s32, s33")
    for w in range(1, 8):
        a(f"s_waitcnt lgkmcnt({min(15, 2*(7-w))})")
        for j in range(0, 8, 2):
            a(f"v_pk_add_f32 {v(80+j,2)}, {v(80+j,2)}, {v(80+8*w+j,2)}")
    for j in range(0, 8, 2):
        a(f"v_cvt_pk_bf16_f32 v{16+j//2}, v{80+j}, v{80+j+1}")
    a("buffer_store_dwordx4 v[16:19], v4, s[24:27], s32 offen")
    a.label("K3_EXIT")
    a("s_endpgm")

def main():
    hdr = open("cdna_kernels/" + NAME + ".s.ref").read().split("\n")
    top = [l for l in hdr if l.startswith(";") and "@launch" not in l and "Override launch" not in l and "grid=ceil" not in l]
    out = "\n".join(top) + "\n"
    out += f"; @launch kernel=k1_kernel grid=(256,1,1) block=(512,1,1) lds={K1_LDS}\n"
    out += f"; @launch kernel=k2_kernel grid=(256,1,1) block=(512,1,1) lds={K2_LDS}\n"
    out += f"; @launch kernel=k3_kernel grid=(256,1,1) block=(512,1,1) lds={K3_LDS}\n"
    out += '.amdgcn_target "amdgcn-amd-amdhsa--gfx950"\n.text\n'
    a = Asm()
    gen_k1(a); gen_k2(a); gen_k3(a)
    out += a.text()
    out += '.section .rodata,"a"\n'
    out += kernel_desc("k1_kernel", 256, 80) + kernel_desc("k2_kernel", 176, 48) + kernel_desc("k3_kernel", 224, 48)
    path = sys.argv[1] if len(sys.argv) > 1 else "cdna_kernels/" + NAME + ".s"
    open(path, "w").write(out)

main()
```

```python
import sys
def kernel(desc, bodies, grid, block, iters, lds=0, init="", vgpr=128, rep=1):
    s = []
    s.append(f"; @launch grid=({grid},1,1) block=({block},1,1) lds={lds}")
    s.append('.amdgcn_target "amdgcn-amd-amdhsa--gfx950"')
    s.append(".text\n.globl mb_kernel\n.p2align 8\n.type mb_kernel,@function\nmb_kernel:")
    s.append("  s_load_dwordx2 s[4:5], s[0:1], 0")
    s.append("  s_load_dwordx2 s[6:7], s[0:1], 8")
    s.append("  v_lshrrev_b32 v1, 6, v0")
    s.append("  s_nop 0")
    s.append("  v_readfirstlane_b32 s20, v1")
    s.append("  v_and_b32 v2, 63, v0")
    s.append("  v_cvt_f32_u32 v3, v2")
    s.append("  v_mul_f32 v3, 0xbc23d70a, v3")
    for i in range(8, vgpr):
        s.append(f"  v_mov_b32 v{i}, v3")
    s.append(init)
    s.append("  s_waitcnt lgkmcnt(0)")
    s.append("  s_barrier")
    s.append("  s_memtime s[8:9]")
    s.append("  s_memrealtime s[14:15]")
    s.append("  s_waitcnt lgkmcnt(0)")
    s.append(f"  s_mov_b32 s12, {iters}")
    for idx, (lo, hi, text) in enumerate(bodies):
        if idx < len(bodies) - 1:
            s.append(f"  s_cmp_ge_u32 s20, {hi}")
            s.append(f"  s_cbranch_scc1 L_role{idx+1}")
        s.append(".p2align 6")
        s.append(f"L_loop{idx}:")
        for r in range(rep):
            s.append(text)
        s.append("  s_sub_u32 s12, s12, 1")
        s.append("  s_cmp_lg_u32 s12, 0")
        s.append(f"  s_cbranch_scc1 L_loop{idx}")
        s.append("  s_branch L_end")
        if idx < len(bodies) - 1:
            s.append(f"L_role{idx+1}:")
    s.append("L_end:")
    s.append("  s_nop 15\n  s_nop 15")
    s.append("  s_memtime s[10:11]")
    s.append("  s_memrealtime s[16:17]")
    s.append("  s_waitcnt lgkmcnt(0)")
    s.append("  s_sub_u32 s10, s10, s8")
    s.append("  s_sub_u32 s16, s16, s14")
    s.append(f"  s_mul_i32 s21, s2, {block//64}")
    s.append("  s_add_u32 s21, s21, s20")
    s.append("  s_lshl_b32 s21, s21, 4")
    s.append("  v_mov_b32 v4, s21")
    s.append("  v_mov_b32 v6, s10")
    s.append("  v_mov_b32 v7, s16")
    s.append("  v_cmp_eq_u32 vcc, 0, v2")
    s.append("  s_and_saveexec_b64 s[18:19], vcc")
    s.append("  global_store_dwordx2 v4, v[6:7], s[4:5]")
    s.append("  s_waitcnt vmcnt(0)")
    s.append("  s_endpgm")
    s.append('.section .rodata,"a"\n.p2align 6\n.amdhsa_kernel mb_kernel')
    s.append(f"  .amdhsa_next_free_vgpr {vgpr}\n  .amdhsa_next_free_sgpr 40\n  .amdhsa_accum_offset {vgpr}")
    s.append("  .amdhsa_group_segment_fixed_size 0\n  .amdhsa_kernarg_size 24\n  .amdhsa_user_sgpr_count 2")
    s.append("  .amdhsa_user_sgpr_kernarg_segment_ptr 1\n  .amdhsa_system_sgpr_workgroup_id_x 1\n.end_amdhsa_kernel")
    return "\n".join(s) + "\n"

def exp16(dst=32, src=16, n=16):
    return "\n".join(f"  v_exp_f32 v{dst+i}, v{src+i}" for i in range(n))
def fma16(dst=32, src=16, n=16):
    return "\n".join(f"  v_fma_f32 v{dst+i}, v{src+i}, v8, v9" for i in range(n))
def add16(dst=32, src=16, n=16):
    return "\n".join(f"  v_add_f32 v{dst+i}, v{src+i}, v8" for i in range(n))
def pkfma8(dst=32, src=16, n=8):
    return "\n".join(f"  v_pk_fma_f32 v[{dst+2*i}:{dst+2*i+1}], v[{src+2*i}:{src+2*i+1}], v[8:9], v[10:11]" for i in range(n))
def cvt16(dst=32, src=16, n=16):
    return "\n".join(f"  v_cvt_pk_bf16_f32 v{dst+i}, v{src+(2*i)%16}, v{src+(2*i+1)%16}" for i in range(n))
def mfma(n=4):
    return "\n".join(f"  v_mfma_f32_32x32x16_bf16 v[{64+16*(i%4)}:{64+16*(i%4)+15}], v[8:11], v[12:15], v[{64+16*(i%4)}:{64+16*(i%4)+15}]" for i in range(n))

if __name__ == "__main__":
    files = []
    def w(name, txt):
        open(name, "w").write(txt); files.append(name)
    for grid in (1, 256):
        for blk in (256, 512, 1024):
            for nm, body in (("exp", exp16()), ("fma", fma16()), ("add", add16()), ("pkfma", pkfma8()+"\n"+pkfma8(48)), ("cvt", cvt16())):
                w(f"t_{nm}_{blk}_g{grid}.s", kernel(f"16x {nm}, blk {blk} grid {grid}", [(0, 99, body)], grid, blk, 2000, rep=4))
    w("t_exp_fma_roles.s", kernel("waves0-3 16exp, waves4-7 16fma", [(0,4,exp16()), (4,8,fma16())], 1, 512, 2000, rep=4))
    w("t_exp_fma32_roles.s", kernel("waves0-3 16exp, waves4-7 32fma", [(0,4,exp16()), (4,8,fma16()+"\n"+fma16(48))], 1, 512, 2000, rep=4))
    inter = "\n".join(f"  v_exp_f32 v{32+i}, v{16+i}\n  v_fma_f32 v{48+i}, v{16+i}, v8, v9" for i in range(16))
    for blk in (256, 512, 1024):
        w(f"t_expfma_inter_{blk}.s", kernel(f"16x(exp,fma) interleaved blk {blk}", [(0,99,inter)], 1, blk, 2000, rep=4))
    inter2 = "\n".join(f"  v_exp_f32 v{32+i}, v{16+i}\n  v_fma_f32 v{48+i}, v{16+i}, v8, v9\n  v_fma_f32 v{96+i}, v{16+i}, v8, v9" for i in range(16))
    for blk in (256, 512, 1024):
        w(f"t_expfma2_inter_{blk}.s", kernel(f"16x(exp,fma,fma) interleaved blk {blk}", [(0,99,inter2)], 1, blk, 2000, rep=4))
    print(" ".join(files))
```

```python
from gen_mb import kernel
files = []
def w(name, txt):
    open(name, "w").write(txt); files.append(name)
common = """  v_bfe_u32 v16, v2, 4, 1
  v_lshrrev_b32 v17, 5, v2
  v_bfe_u32 v18, v2, 2, 2
  v_and_b32 v19, 3, v2
  v_lshl_add_u32 v20, v17, 3, v18
"""
p1w = common + """  v_lshrrev_b32 v21, 1, v18
  v_lshlrev_b32 v21, 6, v21
  v_lshl_add_u32 v21, v20, 7, v21
  v_lshl_add_u32 v21, v16, 5, v21
  v_lshl_add_u32 v8, v19, 3, v21
"""
p2w = common + """  v_lshlrev_b32 v14, 14, v16
  v_lshl_add_u32 v14, v20, 8, v14
  v_lshl_add_u32 v14, v19, 3, v14
  v_lshl_add_u32 v15, v18, 1, v16
  v_xor_b32 v16, 3, v15
  v_lshl_add_u32 v8, v16, 5, v14
"""
lin8 = "  v_lshlrev_b32 v8, 3, v2\n"
lin16 = "  v_lshlrev_b32 v8, 4, v2\n"
xsw = common + """  v_and_b32 v21, 31, v2
  v_lshlrev_b32 v21, 7, v21
  v_bfe_u32 v22, v2, 1, 3
  v_xor_b32 v22, v22, v17
  v_lshl_add_u32 v8, v22, 4, v21
"""
def tr(n, step): return "\n".join(f"  ds_read_b64_tr_b16 v[{32+2*(i%16)}:{33+2*(i%16)}], v8 offset:{(i%16)*step}" for i in range(n)) + "\n  s_waitcnt lgkmcnt(8)"
def b64(n, step): return "\n".join(f"  ds_read_b64 v[{32+2*(i%16)}:{33+2*(i%16)}], v8 offset:{(i%16)*step}" for i in range(n)) + "\n  s_waitcnt lgkmcnt(8)"
def b128(n, step): return "\n".join(f"  ds_read_b128 v[{32+4*(i%16)}:{35+4*(i%16)}], v8 offset:{(i%8)*step}" for i in range(n)) + "\n  s_waitcnt lgkmcnt(8)"
for blk in (256, 512):
    w(f"l_tr_p1_{blk}.s", kernel(f"32 tr reads pass1 pattern blk{blk}", [(0,99,tr(32,512))], 1, blk, 500, lds=65536, init=p1w))
    w(f"l_tr_p2_{blk}.s", kernel(f"32 tr reads pass2 pattern blk{blk}", [(0,99,tr(32,1024))], 1, blk, 500, lds=65536, init=p2w))
    w(f"l_tr_lin_{blk}.s", kernel(f"32 tr reads linear blk{blk}", [(0,99,tr(32,512))], 1, blk, 500, lds=65536, init=lin8))
    w(f"l_b64_lin_{blk}.s", kernel(f"32 b64 reads linear blk{blk}", [(0,99,b64(32,512))], 1, blk, 500, lds=65536, init=lin8))
    w(f"l_b128_lin_{blk}.s", kernel(f"32 b128 reads linear blk{blk}", [(0,99,b128(32,1024))], 1, blk, 500, lds=65536, init=lin16))
    w(f"l_b128_x_{blk}.s", kernel(f"32 b128 reads x swizzle blk{blk}", [(0,99,b128(32,4096))], 1, blk, 500, lds=65536, init=xsw))
print(" ".join(files))
```

```python
import sys, math, os
from asmlib import *

NAME = "gated_mix__softmax_full_mha__geglu_ffn__prompt"
KNAME = NAME + "_kernel"
LOG2E = 1.4426950408889634
def env(n, d): return int(os.environ.get(n, str(d)))
PROF = env("PROF", 0)
ROT = env("ROT", 1)
PFW = env("PFW", 0)
PFI = env("PFI", 1)
PFX = env("PFX", 0)
KVROT = env("KVROT", 1)
WARMW = env("WARMW", 1)
ATPOLL = env("ATPOLL", 1)
HINTW = env("HINTW", 0)
TSLP = env("TSLP", 4)
SPF = env("SPF", 0)
CODEPF = env("CODEPF", 1)
SLP = env("SLP", 4)

WS_Q = 0x0
WS_K = 0x200000
WS_V = 0x400000
WS_ACT = 0x600000
WS_O = 0xF00000
WS_G = 0x1240000
WS_FL = 0x1280000
FL_A = WS_FL
FL_B1 = WS_FL + 0x8000
FL_B2 = WS_FL + 0x10000
FL_C = WS_FL + 0x20000
WS_STAMP = 0x1800000
WS_SIZE = 0x2000000

S1, S2 = 32768, 49152
LDS_GW = 162176
LDS_TAG = 163328
LDS_SYNC = LDS_TAG + 8
LDS_TOTAL = 163840
LDS_V = 65536
VP = 1056
LDS_Q = 147456
LDS_GQ = LDS_GW
LDS_WS = 137344 + 128
RP = 272

SC = " sc1"
SPIN = 200000
MF = "v_mfma_f32_32x32x16_bf16"

def srd(a, d, base, nbytes):
    a(f"s_mov_b32 s{d}, s{base}")
    a(f"s_mov_b32 s{d+1}, s{base+1}")
    a(f"s_mov_b32 s{d+2}, {nbytes:#x}")
    a(f"s_mov_b32 s{d+3}, 0x20000")

def stamp(a, i, lvl=1):
    if PROF and (PROF == lvl or i in (0, 7)):
        a("s_memrealtime s[96:97]")
        a("s_memtime s[98:99]")
        a("s_waitcnt lgkmcnt(0)")
        a(f"s_mov_b32 s{80+i}, s96")
        a(f"s_mov_b32 s{88+i}, s98")

def stamp_flush(a, n):
    if PROF:
        a("s_waitcnt vmcnt(0)")
        stamp(a, n - 1)
        a("s_lshl_b32 s78, s2, 4")
        a("s_add_u32 s78, s78, s20")
        a("s_lshl_b32 s78, s78, 6")
        a(f"s_add_u32 s78, s78, {WS_STAMP}")
        a("v_mov_b32 v1, 0")
        for i in range(n):
            a(f"v_mov_b32 v0, s{80+i}")
            a(f"buffer_store_dword v0, v1, s[28:31], s78 offen offset:{4*i}")
            a("s_nop 1")
            a(f"v_mov_b32 v0, s{88+i}")
            a(f"buffer_store_dword v0, v1, s[28:31], s78 offen offset:{32+4*i}")
            a("s_nop 1")
        a("s_waitcnt vmcnt(0)")

def flag_store(a, soff, vtmp):
    a(f"v_mov_b32 v{vtmp}, s68")
    a(f"v_mov_b32 v{vtmp+1}, s69")
    a(f"v_mov_b32 v{vtmp+2}, 0")
    a("s_mov_b64 exec, 1")
    a(f"buffer_store_dwordx2 {v(vtmp,2)}, v{vtmp+2}, s[28:31], {soff} offen sc1")
    a("s_mov_b64 exec, -1")

def poll(a, soff, voff, vtmp, slp=None):
    lab = a.newlabel("POLL")
    done = a.newlabel("POLLD")
    a(f"s_mov_b32 s74, {SPIN}")
    a.label(lab)
    a(f"buffer_load_dwordx2 {v(vtmp,2)}, v{voff}, s[28:31], {soff} offen sc1")
    a("s_waitcnt vmcnt(0)")
    a(f"v_xor_b32 v{vtmp}, s68, v{vtmp}")
    a(f"v_xor_b32 v{vtmp+1}, s69, v{vtmp+1}")
    a(f"v_or_b32 v{vtmp}, v{vtmp}, v{vtmp+1}")
    a(f"v_cmp_ne_u32 vcc, 0, v{vtmp}")
    a("s_sub_u32 s74, s74, 1")
    a("s_cmp_eq_u32 s74, 0")
    a(f"s_cbranch_scc1 {done}")
    a("s_cmp_eq_u64 vcc, 0")
    a(f"s_cbranch_scc1 {done}")
    a(f"s_sleep {SLP if slp is None else slp}")
    a(f"s_branch {lab}")
    a.label(done)

def poll_shared(a, stage, polls, vtmp, lslp=1, extra=None):
    other = a.newlabel("PSO")
    done = a.newlabel("PSD")
    a(f"v_mov_b32 v{vtmp+3}, {LDS_SYNC}")
    a("s_cmp_lg_u32 s23, 0")
    a(f"s_cbranch_scc1 {other}")
    for p in polls:
        poll(a, *p)
    if extra:
        extra()
    a(f"v_mov_b32 v{vtmp}, {stage}")
    a(f"ds_write_b32 v{vtmp+3}, v{vtmp}")
    a(f"s_branch {done}")
    a.label(other)
    a(f"s_mov_b32 s74, {SPIN*8}")
    lab = a.newlabel("PSL")
    a.label(lab)
    a(f"ds_read_b32 v{vtmp}, v{vtmp+3}")
    a("s_waitcnt lgkmcnt(0)")
    a(f"v_readfirstlane_b32 s75, v{vtmp}")
    a("s_sub_u32 s74, s74, 1")
    a("s_cmp_eq_u32 s74, 0")
    a(f"s_cbranch_scc1 {done}")
    a(f"s_cmp_ge_u32 s75, {stage}")
    a(f"s_cbranch_scc1 {done}")
    a(f"s_sleep {lslp}")
    a(f"s_branch {lab}")
    a.label(done)

def cvt_tile(a, acc, dst, lo=0, hi=16):
    for i in range(lo, hi, 2):
        a(f"v_cvt_pk_bf16_f32 v{dst + (i - lo)//2}, v{acc+i}, v{acc+i+1}")

def gen(a):
    kernel_header(a, KNAME)
    a("s_cmp_ge_u32 s2, 256")
    a("s_cbranch_scc1 K_EXIT")
    a("s_load_dwordx4 s[4:7], s[0:1], 0       ; x, wqkv")
    a("s_load_dwordx2 s[8:9], s[0:1], 16      ; wo")
    a("s_load_dwordx2 s[10:11], s[0:1], 80    ; ws")
    a("s_load_dwordx4 s[12:15], s[0:1], 32")
    a("s_load_dwordx4 s[16:19], s[0:1], 48")
    a("s_load_dwordx4 s[64:67], s[0:1], 64")
    a("v_lshrrev_b32 v1, 6, v0")
    a("v_and_b32 v2, 63, v0                   ; lane")
    a("v_readfirstlane_b32 s20, v1")
    a("v_lshlrev_b32 v3, 4, v2                ; lane*16")
    stamp(a, 0)
    a("s_and_b32 s24, s2, 1                   ; xh")
    a("s_bfe_u32 s25, s2, 0x20001             ; xq")
    a("s_lshr_b32 s26, s2, 3                  ; j")
    a("s_lshl_b32 s60, s24, 4")
    a("s_and_b32 s27, s26, 15")
    a("s_add_u32 s60, s60, s27                ; tb")
    a("s_lshr_b32 s27, s26, 4")
    a("s_lshl_b32 s61, s25, 1")
    a("s_add_u32 s61, s61, s27                ; hg")
    a("s_lshl_b32 s27, s27, 2")
    a("s_add_u32 s62, s26, s27")
    a(f"s_and_b32 s62, s62, {7 if ROT else 0}  ; rot1")
    a("s_and_b32 s63, s26, 7")
    a("s_lshl_b32 s21, s24, 3")
    a("s_add_u32 s21, s21, s63                ; rb")
    a("s_lshr_b32 s27, s26, 3")
    a("s_lshl_b32 s22, s25, 2")
    a("s_add_u32 s22, s22, s27                ; cb2")
    a("s_lshl_b32 s72, s25, 3")
    a("s_add_u32 s72, s72, s63                ; rb64")
    a("s_lshl_b32 s73, s24, 2")
    a("s_add_u32 s73, s73, s27                ; cb64")
    if not ROT:
        a("s_mov_b32 s63, 0")
    a("s_and_b32 s70, s2, 7")
    a("s_lshl_b32 s70, s70, 2")
    a("s_and_b32 s27, s26, 3")
    a("s_add_u32 s70, s70, s27                ; head")
    a("s_lshr_b32 s71, s26, 2                 ; qb")
    a("s_cmp_ge_u32 s20, 4")
    a("s_cbranch_scc1 K1_LOADER")

    ACC = 128
    XA = [4, 5, 6, 7]
    WA = [8, 9, 10, 11]
    GWA = 12
    a("s_and_b32 s23, s20, 1                  ; tp")
    a("s_lshr_b32 s24, s20, 1")
    a("v_bfe_u32 v16, v2, 4, 1                ; gsel")
    a("v_lshrrev_b32 v17, 5, v2               ; h")
    a("v_bfe_u32 v18, v2, 2, 2                ; r")
    a("v_and_b32 v19, 3, v2                   ; c")
    a("v_lshl_add_u32 v20, v17, 3, v18        ; 8h+r")
    a("v_and_b32 v21, 31, v2")
    a("v_lshlrev_b32 v21, 7, v21")
    a("v_bfe_u32 v22, v2, 1, 3")
    a("v_xor_b32 v22, v22, v17")
    a("v_lshl_add_u32 v13, v22, 4, v21")
    a("s_lshl_b32 s25, s23, 12")
    a(f"s_add_u32 s25, s25, {S1}")
    for s_ in range(4):
        a(f"v_xor_b32 v{XA[s_]}, {32*s_}, v13")
        a(f"v_add_u32 v{XA[s_]}, s25, v{XA[s_]}")
    a("v_lshrrev_b32 v21, 1, v18")
    a("v_xor_b32 v21, s24, v21")
    a("v_lshlrev_b32 v21, 6, v21")
    a("v_lshl_add_u32 v21, v20, 7, v21")
    a("v_lshl_add_u32 v21, v16, 5, v21")
    a("v_lshl_add_u32 v21, v19, 3, v21")
    a(f"v_add_u32 v{WA[0]}, {8192 + S1}, v21")
    a("s_lshl_b32 s26, s62, 7")
    a(f"s_add_u32 s26, s26, {LDS_GW}")
    a("v_lshlrev_b32 v21, 4, v17")
    a(f"v_add_u32 v{GWA}, s26, v21")
    a("v_lshlrev_b32 v14, 14, v16")
    a("v_lshl_add_u32 v14, v20, 8, v14")
    a("v_lshl_add_u32 v14, v19, 3, v14")
    a("v_add_u32 v14, 16384, v14")
    a("v_lshl_add_u32 v15, v18, 1, v16")
    for i in range(64):
        a(f"v_mov_b32 v{ACC+i}, 0")
    a("s_waitcnt lgkmcnt(0)")
    srd(a, 28, 10, WS_SIZE)
    a(f"s_mov_b32 s25, {S1}")
    a("s_mov_b32 s26, 8")
    a("s_mov_b32 s33, s62                     ; kc")
    if PFW:
        a("s_cmp_eq_u32 s24, 0")
        a("s_cselect_b64 s[44:45], s[12:13], s[14:15]")
        a("s_mov_b32 s46, 0x1c0000")
        a("s_mov_b32 s47, 0x20000")
        a("v_lshrrev_b32 v21, 1, v2")
        a("v_mul_u32_u24 v21, 3584, v21")
        a("v_and_b32 v22, 1, v2")
        a("v_lshl_add_u32 v23, v22, 7, v21")
        a("s_lshl_b32 s48, s63, 1")
        a("s_add_u32 s48, s48, s23")
        a("s_mul_i32 s48, s48, 114688")
        a("s_lshl_b32 s49, s22, 8")
        a("s_add_u32 s48, s48, s49")
    if PFX:
        srd(a, 52, 4, 0x200000)
        a("s_add_u32 s56, s62, s20")
        a("s_and_b32 s56, s56, 7")
        a("s_lshl_b32 s56, s56, 7")
        a("s_lshl_b32 s57, s60, 16")
        a("s_add_u32 s56, s56, s57")
        a("v_lshlrev_b32 v21, 10, v2")
        a("s_cmp_eq_u32 s20, 0")
        a("s_cbranch_scc1 P1_NOPFX")
        a("buffer_load_dword v22, v21, s[52:55], s56 offen")
        a.label("P1_NOPFX")
    if PFW == 1:
        a("buffer_load_dword v22, v23, s[44:47], s48 offen")
    if PFI:
        a("s_cmp_lt_u32 s22, 14")
        a("s_cbranch_scc1 P1_NOPFI")
        a("s_and_b32 s40, s2, 1")
        a("s_lshl_b32 s40, s40, 4")
        a("s_lshr_b32 s41, s2, 3")
        a("s_add_u32 s40, s40, s41")
        a("s_sub_u32 s40, s40, 16")
        a("s_lshl_b32 s40, s40, 1")
        a("s_add_u32 s40, s40, s23")
        a("s_mul_i32 s41, s40, 28672")
        a("s_cmp_eq_u32 s24, 0")
        a("s_cselect_b64 s[44:45], s[12:13], s[14:15]")
        a("s_mov_b32 s46, 0x1c0000")
        a("s_mov_b32 s47, 0x20000")
        a("v_lshlrev_b32 v23, 7, v2")
        for i in range(4):
            a("buffer_load_dword v22, v23, s[44:47], s41 offen")
            a("s_add_u32 s41, s41, 8192")
        if PFI > 1:
            a("s_cselect_b64 s[44:45], s[16:17], s[8:9]".replace("s_cselect_b64", "s_cmp_eq_u32 s24, 0\ns_cselect_b64"))
            a("s_mov_b32 s46, 0x80000")
            a("s_cselect_b32 s46, 0x1c0000, s46")
            a("s_mul_i32 s41, s40, 28672")
            a("s_lshl_b32 s42, s40, 13")
            a("s_cselect_b32 s41, s41, s42".replace("s_cselect_b32", "s_cmp_eq_u32 s24, 0\ns_cselect_b32"))
            for i in range(4):
                a("buffer_load_dword v22, v23, s[44:47], s41 offen")
                a("s_add_u32 s41, s41, 8192")
        a.label("P1_NOPFI")
    if CODEPF:
        a("s_getpc_b64 s[50:51]")
        a.label("PC_HERE")
        a(f"s_sub_u32 s50, s50, PC_HERE-{KNAME}")
        a("s_subb_u32 s51, s51, 0")
        a("s_lshr_b32 s49, s2, 3")
        a("s_lshl_b32 s49, s49, 2")
        a("s_add_u32 s49, s49, s20")
        a("s_lshl_b32 s49, s49, 8")
        a("v_lshlrev_b32 v21, 2, v2")
        a("v_add_u32 v21, s49, v21")
        a(f"v_min_u32 v21, K_END-{KNAME}-4, v21")
        a("global_load_dword v21, v21, s[50:51]")
    B1 = [24, 44, 64, 84]
    def reads1(s_, buf, wg):
        L = [f"ds_read_b128 {v(buf,4)}, v{XA[s_]}"]
        for ty in range(3):
            for u in range(2):
                L.append(f"ds_read_b64_tr_b16 {v(buf+4+4*ty+2*u,2)}, v{WA[0]} offset:{ty*8192 + (16*s_+4*u)*128}")
        if wg:
            L.append(f"ds_read_b128 {v(buf+16,4)}, v{GWA} offset:{32*s_}")
        return L
    def mf1(buf, wg):
        X = v(buf, 4)
        L = [f"{MF} {v(ACC,16)}, {v(buf+4,4)}, {X}, {v(ACC,16)}",
             f"{MF} {v(ACC+16,16)}, {v(buf+8,4)}, {X}, {v(ACC+16,16)}",
             f"{MF} {v(ACC+32,16)}, {X}, {v(buf+12,4)}, {v(ACC+32,16)}"]
        if wg:
            L.append(f"{MF} {v(ACC+48,16)}, {v(buf+16,4)}, {X}, {v(ACC+48,16)}")
        return L
    a("s_cmp_ge_u32 s22, 14")
    a("s_cselect_b32 s59, s24, 1")
    a("s_cmp_eq_u32 s59, 0")
    a("s_cbranch_scc0 P1_V1")
    for var in range(2):
        wg = var == 0
        if var == 1:
            a.label("P1_V1")
        a("s_barrier")
        stamp(a, 1)
        if PFW == 2:
            a("buffer_load_dword v22, v23, s[44:47], s48 offen")
        for l in reads1(0, B1[0], wg) + reads1(1, B1[1], wg):
            a(l)
        a.raw(".p2align 6")
        a.label(f"P1_LOOP{var}")
        nr = 8 if wg else 7
        for s_ in range(4):
            a(f"s_waitcnt lgkmcnt({0 if s_ == 2 else nr})")
            if s_ < 2:
                fill = reads1(s_ + 2, B1[s_ + 2], wg)
                if s_ == 1:
                    fill += [f"s_add_u32 s25, s25, {S1}", f"s_cmp_eq_u32 s25, {4*S1}",
                             f"s_mov_b32 s27, {S1}", f"s_cselect_b32 s27, {(-3*S1) & 0xffffffff:#x}, s27", "s_cselect_b32 s25, 0, s25"]
                    fill += [f"v_add_u32 v{r}, s27, v{r}" for r in XA + [WA[0]]]
                    if wg:
                        fill += ["s_add_u32 s33, s33, 1", "s_cmp_eq_u32 s33, 8", "s_movk_i32 s27, 128",
                                 f"s_cselect_b32 s27, {(-7*128) & 0xffffffff:#x}, s27", "s_cselect_b32 s33, 0, s33",
                                 f"v_add_u32 v{GWA}, s27, v{GWA}"]
            elif s_ == 2:
                fill = ["s_barrier"] + reads1(0, B1[0], wg)
            else:
                fill = reads1(1, B1[1], wg)
                if PFW >= 3:
                    fill += [f"s_cmp_lg_u32 s26, {11 - PFW}", f"s_cbranch_scc1 P1_NT{var}", "buffer_load_dword v22, v23, s[44:47], s48 offen", f"P1_NT{var}:"]
                fill += ["s_sub_u32 s26, s26, 1", "s_cmp_lg_u32 s26, 0"]
            for l in interleave(mf1(B1[s_], wg), fill, [2, 3, 3, 20] if wg else [3, 2, 20]):
                a(l)
        a(f"s_cbranch_scc1 P1_LOOP{var}")
        if var == 0:
            a("s_branch P1_EPI")
    a.label("P1_EPI")
    stamp(a, 2)
    a("s_lshl_b32 s32, s60, 1")
    a("s_add_u32 s32, s32, s23")
    a("s_lshl_b32 s36, s61, 2")
    a("s_lshl_b32 s37, s24, 1")
    a("s_add_u32 s36, s36, s37")
    a("s_lshl_b32 s36, s36, 6")
    a("s_add_u32 s36, s36, s32")
    a("s_lshl_b32 s36, s36, 10")
    a("v_and_b32 v16, 0x33, v2")
    a("v_bfe_u32 v17, v2, 2, 1")
    a("v_lshl_or_b32 v16, v17, 3, v16")
    a("v_bfe_u32 v17, v2, 3, 1")
    a("v_lshl_or_b32 v16, v17, 2, v16")
    a("v_lshlrev_b32 v16, 4, v16              ; K voffset")
    a("v_bfe_u32 v17, v2, 4, 1")
    a("v_lshlrev_b32 v17, 16, v17")
    a("v_lshrrev_b32 v18, 5, v2")
    a("v_lshl_or_b32 v17, v18, 8, v17")
    a("v_and_b32 v18, 15, v2")
    a("v_lshl_or_b32 v17, v18, 4, v17         ; V voffset")
    a(f"s_mov_b32 s34, {fh(LOG2E*0.25)}")
    a("s_mov_b32 s35, s34")
    T = 104
    cvt_tile(a, ACC + 16, T + 8)
    a(f"s_add_u32 s37, s36, {WS_K}")
    a(f"s_add_u32 s38, s36, {WS_K + 65536}")
    a(f"buffer_store_dwordx4 {v(T+8,4)}, v16, s[28:31], s37 offen{SC}")
    a(f"buffer_store_dwordx4 {v(T+12,4)}, v16, s[28:31], s38 offen{SC}")
    cvt_tile(a, ACC + 32, T + 16)
    a(f"s_add_u32 s37, s36, {WS_V}")
    a(f"buffer_store_dwordx4 {v(T+16,4)}, v17, s[28:31], s37 offen{SC}")
    a(f"buffer_store_dwordx4 {v(T+20,4)}, v17, s[28:31], s37 offen offset:512{SC}")
    for j in range(0, 16, 2):
        a(f"v_pk_mul_f32 {v(ACC+j,2)}, {v(ACC+j,2)}, s[34:35]")
    cvt_tile(a, ACC, T)
    a(f"s_add_u32 s38, s36, {WS_Q + 65536}")
    a(f"buffer_store_dwordx4 {v(T,4)}, v3, s[28:31], s36 offen{SC}")
    a(f"buffer_store_dwordx4 {v(T+4,4)}, v3, s[28:31], s38 offen{SC}")
    a("s_cmp_eq_u32 s59, 0")
    a("s_cbranch_scc0 P1_NOG")
    a(f"v_mul_f32 v19, {fh(-LOG2E)}, v{ACC+48}")
    a("v_exp_f32 v19, v19")
    a("v_and_b32 v18, 31, v2")
    a("v_add_f32 v19, 1.0, v19")
    a("v_rcp_f32 v19, v19                   ; g")
    a("v_lshlrev_b32 v18, 2, v18")
    a("s_lshl_b32 s37, s32, 7")
    a(f"s_add_u32 s37, s37, {WS_G}")
    a(f"buffer_store_dword v19, v18, s[28:31], s37 offen{SC}")
    a.label("P1_NOG")
    a("s_cmp_ge_u32 s22, 14")
    a("s_cbranch_scc1 IDLE_C")

    a("s_lshl_b32 s25, s23, 13")
    a(f"s_add_u32 s25, s25, {S2}")
    a(f"v_add_u32 v14, {S2}, v14")
    for s_ in range(4):
        a(f"v_xor_b32 v{XA[s_]}, {32*s_}, v13")
        a(f"v_add_u32 v{XA[s_]}, s25, v{XA[s_]}")
    a("s_lshl_b32 s25, s24, 2")
    for t in range(4):
        a(f"s_add_u32 s27, s25, {t}")
        a("v_xor_b32 v16, s27, v15")
        a(f"v_lshl_add_u32 v{WA[t]}, v16, 5, v14")
    for i in range(128):
        a(f"v_mov_b32 v{ACC+i}, 0")
    a(f"s_mov_b32 s25, {S2}")
    a("s_mov_b32 s26, 8")
    B2 = [24, 48]
    def reads2(s_, buf):
        L = [f"ds_read_b128 {v(buf,4)}, v{XA[s_]}"]
        for t in range(4):
            for u in range(2):
                L.append(f"ds_read_b64_tr_b16 {v(buf+8+4*t+2*u,2)}, v{WA[t]} offset:{(16*s_+4*u)*256}")
            if t == 0:
                L.append(f"ds_read_b128 {v(buf+4,4)}, v{XA[s_]} offset:4096")
        return L
    def mf2(buf):
        L = []
        for t in range(4):
            for i in range(2):
                acc = ACC + (i * 4 + t) * 16
                L.append(f"{MF} {v(acc,16)}, {v(buf+8+4*t,4)}, {v(buf+4*i,4)}, {v(acc,16)}")
        return L
    a("s_waitcnt lgkmcnt(0)")
    a("s_barrier                              ; b(0)")
    for l in reads2(0, B2[0]):
        a(l)
    a.raw(".p2align 6")
    a.label("P2_LOOP")
    for s_ in range(4):
        a("s_waitcnt lgkmcnt(0)")
        if s_ < 3:
            fill = reads2(s_ + 1, B2[(s_ + 1) & 1])
            gaps = [3, 3, 2, 2, 0, 0, 0, 0]
            if s_ == 1:
                fill += ["s_cmp_lg_u32 s26, 7", "s_cbranch_scc1 P2_ND", "s_waitcnt vmcnt(0)", "P2_ND:"]
                gaps = [3, 3, 2, 2, 0, 4, 0, 0]
            if s_ == 2:
                fill += [f"s_add_u32 s25, s25, {S2}", f"s_cmp_eq_u32 s25, {3*S2}",
                         f"s_mov_b32 s27, {S2}", f"s_cselect_b32 s27, {(-2*S2) & 0xffffffff:#x}, s27", "s_cselect_b32 s25, 0, s25"]
                fill += [f"v_add_u32 v{r}, s27, v{r}" for r in XA + WA]
                gaps = [3, 3, 2, 2, 5, 3, 3, 2]
        else:
            fill = ["s_barrier"] + reads2(0, B2[0]) + ["s_sub_u32 s26, s26, 1", "s_cmp_lg_u32 s26, 0"]
            gaps = [1, 3, 3, 2, 2, 2, 0, 0]
        for l in interleave(mf2(B2[s_ & 1]), fill, gaps):
            a(l)
    a("s_cbranch_scc1 P2_LOOP")
    stamp(a, 3)
    c0 = -2.0 * 0.7978845608028654 * LOG2E
    c1 = c0 * 0.044715
    a(f"s_mov_b32 s34, {fh(c1)}")
    a("s_mov_b32 s35, s34")
    a(f"v_mov_b32 v4, {fh(c0)}")
    a("v_mov_b32 v5, v4")
    a("v_mov_b32 v6, 1.0")
    a("v_mov_b32 v7, 1.0")
    a("s_lshl_b32 s32, s21, 2")
    a("s_lshl_b32 s33, s23, 1")
    a("s_add_u32 s32, s32, s33                ; tt0")
    a("s_mul_i32 s36, s32, 144")
    a("s_lshl_b32 s37, s22, 3")
    a("s_add_u32 s36, s36, s37")
    a("s_lshl_b32 s37, s24, 2")
    a("s_add_u32 s36, s36, s37")
    a("s_lshl_b32 s36, s36, 10")
    a(f"s_add_u32 s36, s36, {WS_ACT}")
    a(f"s_add_u32 s37, s36, {144*1024}")
    a("s_waitcnt lgkmcnt(0)")
    TB = 16
    for i in range(2):
        for t in range(4):
            acc = ACC + (i * 4 + t) * 16
            out = 56 + 4 * (i * 4 + t)
            for j in range(0, 8, 2):
                a(f"v_pk_mul_f32 {v(TB+j,2)}, {v(acc+j,2)}, {v(acc+j,2)}")
            for j in range(0, 8, 2):
                a(f"v_pk_fma_f32 {v(TB+j,2)}, {v(TB+j,2)}, s[34:35], v[4:5]")
            for j in range(0, 8, 2):
                a(f"v_pk_mul_f32 {v(TB+j,2)}, {v(TB+j,2)}, {v(acc+j,2)}")
            for j in range(8):
                a(f"v_exp_f32 v{TB+j}, v{TB+j}")
            for j in range(0, 4, 2):
                a(f"v_pk_mul_f32 {v(acc+8+j,2)}, {v(acc+8+j,2)}, {v(acc+j,2)}")
            for j in range(0, 8, 2):
                a(f"v_pk_add_f32 {v(TB+j,2)}, {v(TB+j,2)}, v[6:7]")
            for j in range(8):
                a(f"v_rcp_f32 v{TB+j}, v{TB+j}")
            for j in range(4, 8, 2):
                a(f"v_pk_mul_f32 {v(acc+8+j,2)}, {v(acc+8+j,2)}, {v(acc+j,2)}")
            for j in range(0, 8, 2):
                a(f"v_pk_mul_f32 {v(acc+8+j,2)}, {v(acc+8+j,2)}, {v(TB+j,2)}")
            cvt_tile(a, acc, out, 8, 16)
            a(f"buffer_store_dwordx4 {v(out,4)}, v3, s[28:31], s{36+i} offen offset:{t*1024}{SC}")
    a("s_branch K2_ATTN")
    a.label("IDLE_C")
    a("s_waitcnt vmcnt(0) lgkmcnt(0)")
    a("s_barrier")
    stamp(a, 3)

    a.label("K2_ATTN")
    Q = [8, 12]
    G = [4, 5]
    KB = [16, 20]
    VB = [[24, 28], [32, 36]]
    IDX = 6
    VK, VV0, VV1 = 40, 41, 42
    C = [96, 112]
    S = [128, 144]
    P = [160, 176]
    O = [192, 208]
    a(f"v_mov_b32 v{IDX}, 0xdddd")
    def vaddr_init():
        a(f"v_mov_b32 v{VK}, v3")
        a("v_lshrrev_b32 v43, 5, v2")
        a("v_and_b32 v44, 15, v2")
        a("v_lshlrev_b32 v44, 4, v44")
        a("v_lshl_or_b32 v44, v43, 8, v44")
        a(f"v_add_u32 v44, {LDS_V}, v44")
        a("v_add_u32 v45, 512, v44")
        a("v_and_b32 v43, 31, v2")
        a("v_subrev_u32 v47, 20, v43")
        a("v_cmp_gt_u32 vcc, 8, v47")
        a(f"v_mov_b32 v46, {LDS_V + 1040}")
        a(f"v_mov_b32 v47, {LDS_V + 1040 + 2*VP}")
        a("v_cndmask_b32 v46, v46, v47, vcc")
        a("v_and_b32 v47, 27, v43")
        a("v_cmp_eq_u32 vcc, 16, v47")
        a("v_subrev_u32 v47, 16, v46")
        a("s_nop 0")
        a("v_cndmask_b32 v46, v46, v47, vcc")
        a("v_cmp_gt_u32 vcc, 16, v43")
        a("s_nop 1")
        a(f"v_cndmask_b32 v{VV0}, v46, v44, vcc")
        a(f"v_cndmask_b32 v{VV1}, v46, v45, vcc")
    vaddr_init()
    a("s_lshl_b32 s24, s20, 11")
    a(f"s_add_u32 s24, s24, {LDS_Q}")
    a("v_add_u32 v43, s24, v3")
    a("s_lshl_b32 s24, s20, 8")
    a(f"s_add_u32 s24, s24, {LDS_GQ}")
    a("v_and_b32 v7, 31, v2")
    a("v_lshlrev_b32 v7, 2, v7")
    a("v_add_u32 v7, s24, v7                  ; g address")
    a(f"v_mov_b32 v45, {LDS_TAG}")
    for q in range(2):
        for i in range(16):
            a(f"v_mov_b32 v{O[q]+i}, 0")
    a("s_mov_b32 s26, 0")
    a("s_barrier                              ; X1")
    a("s_setprio 2")
    stamp(a, 4)
    a(f"ds_read_b128 {v(Q[0],4)}, v43")
    a(f"ds_read_b128 {v(KB[0],4)}, v{VK}")
    a(f"ds_read_b128 {v(Q[1],4)}, v43 offset:1024")
    a("ds_read_b64 v[46:47], v45")
    a("s_waitcnt lgkmcnt(0)")
    for q in range(2):
        a(f"{MF} {v(S[q],16)}, {v(KB[0],4)}, {v(Q[q],4)}, 0")
    a("v_readfirstlane_b32 s68, v46")
    a("v_readfirstlane_b32 s69, v47")
    a("s_nop 7")
    a("s_nop 1")
    def maxtree(src, dst, acc=False):
        if acc:
            for i in range(0, 16, 2):
                a(f"v_max3_f32 v{dst}, v{src+i}, v{src+i+1}, v{dst}")
        else:
            a(f"v_max_f32 v{dst}, v{src}, v{src+1}")
            for i in range(2, 16, 2):
                a(f"v_max3_f32 v{dst}, v{src+i}, v{src+i+1}, v{dst}")
    for q in range(2):
        maxtree(S[q], 44 + q)
    a.label("K2_SETMAX")
    a(f"ds_read_b128 {v(KB[0],4)}, v{VK}")
    a(f"ds_read_b128 {v(VB[0][0],4)}, v{VV0}")
    a(f"ds_read_b128 {v(VB[0][1],4)}, v{VV1}")
    a(f"ds_read_b128 {v(KB[1],4)}, v{VK} offset:1024")
    for q in range(2):
        a(f"v_mov_b32 v{46+q}, v{44+q}")
    a("s_nop 1")
    for q in range(2):
        a(f"v_permlane32_swap_b32 v{44+q}, v{46+q}")
    for q in range(2):
        a(f"v_max_f32 v{44+q}, v{44+q}, v{46+q}")
    for i in range(16):
        a(f"v_sub_f32 v{C[0]+i}, 0, v44")
    a("s_waitcnt lgkmcnt(0)")
    a("s_nop 0")
    a(f"{MF} {v(S[0],16)}, {v(KB[0],4)}, {v(Q[0],4)}, {v(C[0],16)}")
    for i in range(16):
        a(f"v_sub_f32 v{C[1]+i}, 0, v45")
    for i in range(8):
        a(f"v_mov_b32 v{P[1]+8+i}, 0")
    for i in range(4):
        a(f"v_mov_b32 v{VB[1][1]+i}, 0")
    a("s_cmp_lg_u32 s26, 0")
    a("s_cbranch_scc1 K2_NOBAR")
    a("s_waitcnt vmcnt(0)")
    a("s_barrier")
    a.label("K2_NOBAR")
    a("s_mov_b32 s27, 7")
    U = 8
    a.raw(".p2align 6")
    a.label("K2_LOOP")
    def exps(q, lo, hi):
        for i in range(lo, hi):
            a(f"v_exp_f32 v{P[q]+i}, v{S[q]+i}")
    def smf(q, vb, half):
        a(f"v_smfmac_f32_32x32x32_bf16 {v(O[q],16)}, {v(vb,4)}, {v(P[q]+8*half,8)}, v{IDX}")
    for u in range(U):
        b = u & 1
        a(f"{MF} {v(S[1],16)}, {v(KB[b],4)}, {v(Q[1],4)}, {v(C[1],16)}")
        exps(0, 0, 5)
        smf(1, VB[b ^ 1][1], 1)
        a(f"ds_read_b128 {v(VB[b^1][0],4)}, v{VV0} offset:{(u+1)*VP}")
        exps(0, 5, 11)
        smf(0, VB[b][0], 0)
        a(f"ds_read_b128 {v(VB[b^1][1],4)}, v{VV1} offset:{(u+1)*VP}")
        exps(0, 11, 16)
        a(f"{MF} {v(S[0],16)}, {v(KB[b^1],4)}, {v(Q[0],4)}, {v(C[0],16)}")
        a(f"ds_read_b128 {v(KB[b],4)}, v{VK} offset:{(u+2)*1024}")
        exps(1, 0, 5)
        smf(0, VB[b][1], 1)
        if u == U - 1:
            a("s_sub_u32 s27, s27, 1")
        exps(1, 5, 11)
        smf(1, VB[b][0], 0)
        a("s_waitcnt lgkmcnt(0)")
        if u == U - 1:
            a(f"v_add_u32 v{VK}, {U*1024}, v{VK}")
            a(f"v_add_u32 v{VV0}, {U*VP}, v{VV0}")
            a(f"v_add_u32 v{VV1}, {U*VP}, v{VV1}")
        exps(1, 11, 16)
    a("s_cbranch_scc0 K2_LOOP")
    a("s_nop 1")
    smf(1, VB[(U - 1) & 1][1], 1)
    stamp(a, 5)
    stamp(a, 1, 8)
    a(f"v_mov_b32 v46, {LDS_SYNC}")
    a("ds_read_b32 v47, v46")
    a(f"ds_read_b32 v{G[0]}, v7")
    a(f"ds_read_b32 v{G[1]}, v7 offset:128")
    a("s_lshl_b32 s24, s71, 2")
    a("s_add_u32 s24, s24, s20")
    a("s_lshl_b32 s24, s24, 5")
    a("s_add_u32 s24, s24, s70")
    a("s_mul_i32 s25, s24, 3072")
    a(f"s_add_u32 s25, s25, {WS_O}")
    a("v_mov_b32 v44, 0")
    for i in range(9):
        a(f"v_fma_f32 v44, v{O[0]+i}, 0, v44")
    a("s_nop 1")
    for i in range(9):
        a(f"v_fma_f32 v44, v{O[1]+i}, 0, v44")
    a("v_cmp_u_f32 vcc, v44, v44")
    a("s_cmp_lg_u32 s26, 0")
    a("s_cbranch_scc1 K2_FIN")
    a("s_nop 1")
    a("s_cmp_eq_u64 vcc, 0")
    a("s_cbranch_scc1 K2_FIN")
    a("s_waitcnt lgkmcnt(0)")
    a("s_mov_b32 s26, 100")
    vaddr_init()
    for q in range(2):
        for i in range(16):
            a(f"v_mov_b32 v{O[q]+i}, 0")
    a("v_mov_b32 v44, 0xff800000")
    a("v_mov_b32 v45, 0xff800000")
    a("v_mov_b32 v43, v3")
    a("s_mov_b32 s27, 64")
    a.label("K2_MAXLOOP")
    a(f"ds_read_b128 {v(KB[0],4)}, v43")
    a("v_add_u32 v43, 1024, v43")
    a("s_waitcnt lgkmcnt(0)")
    for q in range(2):
        a(f"{MF} {v(S[q],16)}, {v(KB[0],4)}, {v(Q[q],4)}, 0")
    a("s_nop 7")
    a("s_nop 7")
    for q in range(2):
        maxtree(S[q], 44 + q, acc=True)
    a("s_sub_u32 s27, s27, 1")
    a("s_cmp_lg_u32 s27, 0")
    a("s_cbranch_scc1 K2_MAXLOOP")
    a("s_branch K2_SETMAX")
    a.label("K2_FIN")
    for q in range(2):
        a(f"v_rcp_f32 v{48+q}, v{O[q]+8}")
    a(f"s_mov_b32 s74, {SPIN*8}")
    a.label("K2_GW")
    a("s_waitcnt lgkmcnt(0)")
    a("v_readfirstlane_b32 s75, v47")
    a("s_sub_u32 s74, s74, 1")
    a("s_cmp_eq_u32 s74, 0")
    a("s_cbranch_scc1 K2_GOK")
    a("s_cmp_ge_u32 s75, 2")
    a("s_cbranch_scc1 K2_GOK")
    a("s_sleep 1")
    a("ds_read_b32 v47, v46")
    a(f"ds_read_b32 v{G[0]}, v7")
    a(f"ds_read_b32 v{G[1]}, v7 offset:128")
    a("s_branch K2_GW")
    a.label("K2_GOK")
    for q in range(2):
        a(f"v_mul_f32 v{44+2*q}, v{48+q}, v{G[q]}")
    GR = S[0]
    for r in (3, 7, 10, 11):
        a(f"v_mov_b32 v{GR+r}, s68")
    for q in range(2):
        for i in range(0, 8, 2):
            a(f"v_pk_mul_f32 {v(O[q]+i,2)}, {v(O[q]+i,2)}, {v(44+2*q,2)} op_sel_hi:[1,0]")
        for i in range(0, 8, 2):
            dst = GR + 4 * q + i // 2 if i < 6 else GR + 8 + q
            a(f"v_cvt_pk_bf16_f32 v{dst}, v{O[q]+i}, v{O[q]+i+1}")
        a(f"buffer_store_dwordx4 {v(GR+4*q,4)}, v3, s[28:31], s25 offen offset:{q*1024}{SC}")
    a(f"buffer_store_dwordx4 {v(GR+8,4)}, v3, s[28:31], s25 offen offset:2048{SC}")
    a("s_lshl_b32 s24, s24, 7")
    a(f"s_add_u32 s24, s24, {FL_C}")
    if HINTW:
        a(f"s_waitcnt vmcnt(0)")
    a("s_mov_b64 exec, 1")
    a(f"buffer_store_dword v{GR+3}, v3, s[28:31], s24 offen sc1")
    a("s_mov_b64 exec, -1")
    a("s_setprio 0")
    stamp(a, 6)
    for i in range(2, 6):
        stamp(a, i, 8)
    a("s_barrier                              ; Y0")
    a("s_branch K3_REDUCE")

    a.label("K1_LOADER")
    a("s_sub_u32 s23, s20, 4                  ; L")
    VX0, VX1, VW, VG, VU = 10, 11, 12, 13, 14
    a("v_lshrrev_b32 v4, 3, v2")
    a("v_and_b32 v5, 7, v2")
    a("v_lshrrev_b32 v6, 4, v2")
    a("v_xor_b32 v7, v5, v6")
    a("v_lshlrev_b32 v7, 4, v7")
    a(f"v_lshl_add_u32 v{VX0}, v4, 10, v7")
    a(f"v_xor_b32 v{VX1}, 64, v{VX0}")
    a("v_and_b32 v7, 1, v6")
    a("v_lshlrev_b32 v7, 2, v7")
    a("v_xor_b32 v7, v7, v5")
    a("v_mul_u32_u24 v8, 3072, v4")
    a(f"v_lshl_add_u32 v{VW}, v7, 4, v8")
    a("s_waitcnt lgkmcnt(0)")
    stamp(a, 1, 7)
    srd(a, 24, 4, 0x200000)
    srd(a, 44, 6, 0x180000)
    a("s_lshl_b32 s32, s60, 16")
    a("s_lshl_b32 s33, s23, 14")
    a("s_add_u32 s32, s32, s33")
    a("s_mul_i32 s33, s23, 49152")
    a("s_lshl_b32 s34, s61, 7")
    a("s_add_u32 s33, s33, s34")
    a("s_lshl_b32 s35, s23, 11")
    a("s_mov_b32 s36, s62                     ; kc")
    queue = []
    def issue1(c):
        slot = ((c + 1) % 4) * S1
        a("s_lshl_b32 s37, s36, 7")
        a("s_add_u32 s37, s37, s32")
        a("s_mul_i32 s38, s36, 196608")
        a("s_add_u32 s38, s38, s33")
        a(f"s_add_u32 m0, s35, {slot}")
        a("s_add_u32 s39, s37, 8192")
        a(f"buffer_load_dwordx4 v{VX0}, s[24:27], s37 offen lds")
        a(f"s_add_u32 m0, s35, {slot + 1024}")
        a("s_add_u32 s36, s36, 1")
        a(f"buffer_load_dwordx4 v{VX1}, s[24:27], s39 offen lds")
        for ty in range(3):
            for i in range(2):
                a(f"s_add_u32 m0, s35, {slot + 8192 + ty*8192 + i*1024}")
                a(f"s_add_u32 s39, s38, {ty*1024 + i*24576}")
                a(f"buffer_load_dwordx4 v{VW}, s[44:47], s39 offen lds")
        a("s_and_b32 s36, s36, 7")
        queue.extend([("a", c)] * 8)
    def waitq(tag):
        n = len(queue) - 1 - max(i for i, t in enumerate(queue) if t == tag)
        a(f"s_waitcnt vmcnt({n})")
    stamp(a, 2, 7)
    issue1(0)
    stamp(a, 3, 7)
    srd(a, 48, 18, 1024)
    a(f"s_mov_b32 m0, {LDS_GW}")
    a("s_nop 0")
    a("buffer_load_dwordx4 v3, s[48:51], 0 offen lds")
    queue.append(("a", 0))
    issue1(1)
    stamp(a, 4, 7)
    a("v_mov_b32 v9, 0")
    a("s_add_u32 s37, s2, s20")
    a("s_cmp_eq_u32 s37, 4")
    a("s_cbranch_scc0 K1_NOTAG")
    a("s_memrealtime s[56:57]")
    a("s_waitcnt lgkmcnt(0)")
    a("s_or_b32 s56, s56, 1")
    a("s_or_b32 s57, s57, 0x80000000")
    a("v_mov_b32 v4, s56")
    a("v_mov_b32 v5, s57")
    a("s_mov_b64 exec, 1")
    a("global_store_dwordx2 v9, v[4:5], s[66:67] sc1")
    a("s_mov_b64 exec, -1")
    a.label("K1_NOTAG")
    stamp(a, 1)
    a("v_and_b32 v5, 15, v2")
    a("v_lshlrev_b32 v7, 2, v6")
    a("v_xor_b32 v7, v7, v5")
    a("v_mul_u32_u24 v8, 3584, v6")
    a(f"v_lshl_add_u32 v{VG}, v7, 4, v8")
    a(f"v_xor_b32 v{VU}, 32, v{VG}")
    srd(a, 48, 12, 0x1c0000)
    srd(a, 52, 14, 0x1c0000)
    srd(a, 28, 10, WS_SIZE)
    a("s_lshl_b32 s40, s21, 17")
    a("s_lshl_b32 s41, s23, 15")
    a("s_add_u32 s40, s40, s41")
    a("s_mul_i32 s41, s23, 57344")
    a("s_lshl_b32 s42, s22, 8")
    a("s_add_u32 s41, s41, s42")
    a("s_lshl_b32 s42, s23, 12")
    a("s_mov_b32 s43, s63                     ; kc")
    if SPF:
        a("s_bitcmp1_b32 s23, 0")
        a("s_cselect_b64 s[56:57], s[14:15], s[12:13]")
        a("s_mov_b32 s58, 0x1c0000")
        a("s_mov_b32 s59, 0x20000")
        a("s_and_b32 s76, s2, 1")
        a("s_lshl_b32 s76, s76, 5")
        a("s_lshr_b32 s77, s2, 3")
        a("s_add_u32 s76, s76, s77                ; u")
        a("s_lshl_b32 s76, s76, 1")
        a("s_lshr_b32 s77, s23, 1")
        a("s_add_u32 s76, s76, s77")
        a("s_mul_i32 s76, s76, 14336              ; 4 rows")
        a("s_bfe_u32 s77, s2, 0x20001")
        a("s_lshl_b32 s77, s77, 10")
        a("s_add_u32 s76, s76, s77")
    def issue2(c, parts="xgu"):
        slot = ((c + 1) % 3) * S2
        a("s_lshl_b32 s37, s43, 7")
        a("s_add_u32 s37, s37, s40")
        a("s_mul_i32 s38, s43, 229376")
        a("s_add_u32 s38, s38, s41")
        for i in range(4):
            if "x" in parts:
                a(f"s_add_u32 m0, s42, {slot + i*1024}")
                a(f"s_add_u32 s39, s37, {i*8192}")
                a(f"buffer_load_dwordx4 v{VX1 if i & 1 else VX0}, s[24:27], s39 offen lds")
            if "g" in parts:
                a(f"s_add_u32 m0, s42, {slot + 16384 + i*1024}")
                a(f"s_add_u32 s39, s38, {i*14336}")
                a(f"buffer_load_dwordx4 v{VG}, s[48:51], s39 offen lds")
            if "u" in parts:
                a(f"s_add_u32 m0, s42, {slot + 32768 + i*1024}")
                a(f"s_add_u32 s39, s38, {i*14336}")
                a(f"buffer_load_dwordx4 v{VU}, s[52:55], s39 offen lds")
        if "u" in parts:
            a("s_add_u32 s43, s43, 1")
            a("s_and_b32 s43, s43, 7")
        queue.extend([("b", c)] * (4 * len(parts)))
    for c in range(6):
        waitq(("a", c))
        stamp(a, c + 1, 2)
        if c < 2:
            stamp(a, 5 + c, 7)
        a("s_barrier")
        stamp(a, c + 1, 4)
        if SPF and 1 <= c <= 4:
            for q in range(8):
                a(f"s_add_u32 s77, s76, {q*128}")
                a("s_buffer_load_dword s79, s[56:59], s77")
            a("s_add_u32 s76, s76, 3584")
        if c == 0:
            issue1(2)
            issue1(3)
        if 1 <= c <= 4:
            issue1(c + 3)
    a("global_load_dwordx2 v[60:61], v9, s[66:67] sc1")
    qsave = list(queue)
    a("s_cmp_ge_u32 s22, 14")
    a("s_cbranch_scc1 IDLE_L")
    issue2(0, "x")
    waitq(("a", 6))
    a("s_barrier")
    issue2(0, "gu")
    waitq(("a", 7))
    a("s_barrier")
    issue2(1, "xg")
    a("s_barrier                              ; barrier(8)")
    issue2(1, "u")
    stamp(a, 2)
    def get_tag():
        lab, done = a.newlabel("TAG"), a.newlabel("TAGD")
        a(f"s_mov_b32 s74, {SPIN}")
        a.label(lab)
        a("v_readfirstlane_b32 s68, v60")
        a("v_readfirstlane_b32 s69, v61")
        a("s_sub_u32 s74, s74, 1")
        a("s_cmp_eq_u32 s74, 0")
        a(f"s_cbranch_scc1 {done}")
        a("s_min_u32 s75, s68, s69")
        a("s_cmp_lg_u32 s75, 0")
        a(f"s_cbranch_scc1 {done}")
        a("s_sleep 2")
        a("global_load_dwordx2 v[60:61], v9, s[66:67] sc1")
        a("s_waitcnt vmcnt(0)")
        a(f"s_branch {lab}")
        a.label(done)
        a(f"v_mov_b32 v4, {LDS_TAG}")
        a("ds_write_b64 v4, v[60:61]")
        a("ds_write_b32 v4, v9 offset:8")
    def flag_a():
        lab = a.newlabel("FA")
        a("s_cmp_lg_u32 s23, 1")
        a(f"s_cbranch_scc1 {lab}")
        a("s_lshl_b32 s37, s61, 5")
        a("s_add_u32 s37, s37, s60")
        a("s_lshl_b32 s37, s37, 7")
        a(f"s_add_u32 s37, s37, {FL_A}")
        flag_store(a, "s37", 16)
        a.label(lab)
    def kv_setup():
        a("v_and_b32 v5, 31, v2")
        a("v_lshlrev_b32 v5, 7, v5                ; (lane&31)*128")
        a("s_and_b32 s56, s2, 7")
        a("s_lshl_b32 s56, s56, 12")
        a(f"s_add_u32 s56, s56, {FL_A}")
        a("s_lshl_b32 s57, s70, 16")
        a("s_lshl_b32 s58, s23, 10")
        a("s_add_u32 s57, s57, s58                ; head*64K + L*1K")
        a(f"s_mul_i32 s59, s23, {VP}")
        a(f"s_add_u32 s59, s59, {LDS_V}")
    def kv_loads(lo, hi, ldsreg, ldsstride, wsoff):
        n = hi - lo
        a(f"s_mul_i32 s44, s71, {n}")
        a("s_lshr_b32 s44, s44, 3")
        if not KVROT:
            a("s_mov_b32 s44, 0")
        for i in range(n):
            a(f"s_mul_i32 s45, s44, {ldsstride}")
            a(f"s_add_u32 s45, s45, {lo*ldsstride}")
            a(f"s_add_u32 m0, s45, s{ldsreg}")
            a("s_lshl_b32 s37, s44, 12")
            a("s_add_u32 s37, s37, s57")
            a(f"s_add_u32 s37, s37, {wsoff + lo*4096}")
            a(f"buffer_load_dwordx4 v3, s[28:31], s37 offen{SC} lds")
            if i < n - 1:
                a("s_add_u32 s44, s44, 1")
                a(f"s_cmp_eq_u32 s44, {n}")
                a("s_cselect_b32 s44, 0, s44")
    def k_loads(lo, hi):
        kv_loads(lo, hi, 58, 4096, WS_K)
    def v_loads(lo, hi):
        kv_loads(lo, hi, 59, 4 * VP, WS_V)
    def qg_loads():
        a("s_lshl_b32 s32, s70, 6")
        a("s_lshl_b32 s33, s71, 3")
        a("s_add_u32 s32, s32, s33")
        a("s_lshl_b32 s33, s23, 1")
        a("s_add_u32 s32, s32, s33")
        a("s_lshl_b32 s32, s32, 10")
        a("s_lshl_b32 s33, s23, 11")
        a(f"s_add_u32 m0, s33, {LDS_Q}")
        a("s_nop 0")
        a(f"buffer_load_dwordx4 v3, s[28:31], s32 offen{SC} lds")
        a(f"buffer_load_dwordx4 v3, s[28:31], s32 offen offset:1024{SC} lds")
    a("s_waitcnt lgkmcnt(0)")
    kv_setup()
    for c in range(8):
        if c == 7:
            a(f"s_waitcnt vmcnt({2 + 12})")
        else:
            waitq(("b", c))
        if c == 0:
            get_tag()
        if c == 6:
            a("s_waitcnt vmcnt(12)")
            a("v_xor_b32 v20, s68, v20")
            a("v_xor_b32 v21, s69, v21")
            a("v_or_b32 v20, v20, v21")
            a("v_cmp_ne_u32 vcc, 0, v20")
            a("s_nop 1")
            a("s_cmp_eq_u64 vcc, 0")
            a("s_cbranch_scc1 P2_AOK")
            poll(a, "s56", 5, 8)
            a.label("P2_AOK")
        if c < 6:
            stamp(a, c + 1, 3)
        a(f"s_barrier                              ; b({c})")
        if c < 6:
            stamp(a, c + 1, 5)
        if c == 2:
            flag_a()
        if c == 5:
            a("buffer_load_dwordx2 v[20:21], v5, s[28:31], s56 offen sc1")
        if 0 <= c <= 5:
            issue2(c + 2)
        if c == 6:
            qg_loads()
            k_loads(0, 12)
        if c == 7:
            k_loads(12, 16)
            v_loads(0, 7)
    a("s_waitcnt lgkmcnt(0)")
    a("s_barrier")
    v_loads(7, 16)
    a("s_branch K2_GEMM")
    a.label("IDLE_L")
    a("s_waitcnt vmcnt(0) lgkmcnt(0)")
    get_tag()
    a("s_barrier                              ; barrier(6)")
    a("s_barrier                              ; barrier(7)")
    a("s_barrier                              ; barrier(8)")
    stamp(a, 2)
    a("s_barrier                              ; I0")
    flag_a()
    kv_setup()
    poll(a, "s56", 5, 8)
    qg_loads()
    k_loads(0, 16)
    v_loads(0, 16)

    a.label("K2_GEMM")
    a(f"v_mul_u32_u24 v4, {VP}, v2")
    a(f"v_add_u32 v4, {LDS_V + 1024}, v4")
    for i in range(4):
        a(f"v_mov_b32 v{20+i}, 0x3f803f80")
        a(f"v_mov_b32 v{24+i}, 0")
    a("ds_write_b128 v4, v[20:23]")
    a("ds_write_b128 v4, v[24:27] offset:16")
    a(f"ds_write_b128 v4, v[20:23] offset:{4*VP}")
    a(f"ds_write_b128 v4, v[24:27] offset:{4*VP+16}")
    ND, NW = 28, 8
    NS = 3
    srd(a, 44, 16, 0x1c0000)
    srd(a, 48, 8, 0x80000)
    a("s_lshr_b32 s42, s2, 3")
    a("s_and_b32 s43, s42, 7")
    a("s_lshr_b32 s42, s42, 3")
    a("s_lshl_b32 s42, s42, 1")
    a("s_add_u32 s42, s42, s43")
    a("s_cmp_ge_u32 s42, 7")
    a("s_cselect_b32 s43, 7, 0")
    a("s_sub_u32 s42, s42, s43                ; 0..6")
    if not ROT:
        a("s_mov_b32 s42, 0")
    a("s_mov_b32 s52, s42")
    a(f"s_mul_i32 s32, s23, {ND}")
    a("s_lshl_b32 s43, s42, 2")
    a("s_add_u32 s32, s32, s43")
    a(f"s_mul_i32 s33, s72, {2*144*1024}")
    a(f"s_add_u32 s33, s33, {WS_ACT}")
    a("s_lshl_b32 s43, s32, 10")
    a("s_add_u32 s33, s33, s43")
    a(f"s_add_u32 s34, s33, {144*1024}")
    a("s_lshl_b32 s43, s73, 7")
    a("s_lshl_b32 s35, s32, 14")
    a("s_add_u32 s35, s35, s43")
    a("s_lshl_b32 s39, s23, 17")
    a("s_add_u32 s39, s39, s43")
    a(f"s_mul_i32 s53, s23, {NS*2048}")
    a(f"s_add_u32 s53, s53, {LDS_WS}")
    a("v_lshrrev_b32 v4, 3, v2")
    a("v_and_b32 v5, 7, v2")
    a("v_bfe_u32 v7, v2, 4, 1")
    a("v_lshlrev_b32 v7, 2, v7")
    a("v_xor_b32 v5, v5, v7")
    a("v_lshlrev_b32 v5, 4, v5")
    a("v_lshl_add_u32 v10, v4, 10, v5")
    a("v_add_u32 v11, 7168, v10")
    a("v_bfe_u32 v4, v2, 2, 2")
    a("v_lshrrev_b32 v5, 5, v2")
    a("v_lshl_add_u32 v5, v5, 2, v4")
    a("v_lshlrev_b32 v5, 7, v5")
    a("v_lshrrev_b32 v4, 1, v4")
    a("v_lshl_add_u32 v5, v4, 6, v5")
    a("v_bfe_u32 v4, v2, 4, 1")
    a("v_lshl_add_u32 v5, v4, 5, v5")
    a("v_and_b32 v4, 3, v2")
    a("v_lshl_add_u32 v5, v4, 3, v5")
    a("v_xor_b32 v13, 64, v5")
    a("v_add_u32 v12, s53, v5")
    a("v_add_u32 v13, s53, v13")
    GA = 16
    FR = 80
    D = 8
    queue = []
    def ld(dst, sr, k, tag):
        a(f"buffer_load_dwordx4 {v(dst,4)}, v3, s[28:31], s{sr} offen offset:{(k%4)*1024}{SC}")
        queue.append(tag)
    def aloads(k):
        b = FR + (k % D) * 16
        ld(b + 4, 33, k, ("a", k)); ld(b + 12, 34, k, ("a", k))
        if k % 4 == 3:
            a("s_add_u32 s42, s42, 1")
            a("s_cmp_eq_u32 s42, 7")
            a("s_movk_i32 s43, 4096")
            a(f"s_cselect_b32 s43, {(-6*4096) & 0xffffffff:#x}, s43")
            a("s_cselect_b32 s42, 0, s42")
            for sr in (33, 34):
                a(f"s_add_u32 s{sr}, s{sr}, s43")
    def wloads(k):
        a(f"s_add_u32 m0, s53, {(k % NS) * 2048}")
        sr, rs = (35, 44) if k < ND else (39, 48)
        a("s_nop 0")
        a(f"buffer_load_dwordx4 v10, s[{rs}:{rs+3}], s{sr} offen lds")
        a(f"buffer_load_dwordx4 v11, s[{rs}:{rs+3}], s{sr} offen offset:1024 lds")
        queue.extend([("w", k)] * 2)
        a(f"s_add_u32 s{sr}, s{sr}, 16384")
        if k < ND and k % 4 == 3:
            a("s_add_u32 s52, s52, 1")
            a("s_cmp_eq_u32 s52, 7")
            a(f"s_cselect_b32 s43, {(-28*16384) & 0xffffffff:#x}, 0")
            a("s_cselect_b32 s52, 0, s52")
            a("s_add_u32 s35, s35, s43")
    def waitfor(*tags):
        n = len(queue) - 1 - max(i for i, t in enumerate(queue) if t in tags)
        a(f"s_waitcnt vmcnt({n})")
    def wreads(k):
        b = FR + (k % D) * 16
        for n in range(2):
            for u in range(2):
                a(f"ds_read_b64_tr_b16 {v(b+8*n+2*u,2)}, v{12+n} offset:{(k % NS) * 2048 + u*1024}")
    def mm(k):
        b = FR + (k % D) * 16
        for n in range(2):
            for t in range(2):
                acc = GA + (n * 2 + t) * 16
                cin = "0" if k == 0 else v(acc, 16)
                a(f"{MF} {v(acc,16)}, {v(b+8*n,4)}, {v(b+4+8*t,4)}, {cin}")
    stamp(a, 3)
    a("s_waitcnt vmcnt(0) lgkmcnt(0)")
    a("s_barrier                              ; X1")
    a("s_setprio 3")
    a("s_barrier                              ; X2")
    a("s_cmp_lg_u32 s23, 1")
    a("s_cbranch_scc1 K2_NOB1")
    a("s_lshl_b32 s37, s21, 4")
    a("s_add_u32 s37, s37, s22")
    a("s_lshl_b32 s37, s37, 7")
    a(f"s_add_u32 s37, s37, {FL_B1}")
    flag_store(a, "s37", 16)
    a.label("K2_NOB1")
    if WARMW:
        a("s_lshr_b32 s54, s2, 3")
        a("s_and_b32 s54, s54, 7")
        a("s_lshl_b32 s55, s54, 2")
        a("s_add_u32 s55, s55, s23")
        a("s_mul_i32 s55, s55, 57344")
        a("s_add_u32 s55, s55, s43")
        a("v_min_u32 v14, 55, v2")
        a("v_lshlrev_b32 v14, 10, v14")
        a("buffer_load_dword v15, v14, s[44:47], s55 offen")
        a("s_lshl_b32 s55, s54, 2")
        a("s_add_u32 s55, s55, s23")
        a("s_lshl_b32 s55, s55, 14")
        a("s_add_u32 s55, s55, s43")
        a("v_and_b32 v14, 15, v2")
        a("v_lshlrev_b32 v14, 10, v14")
        a("buffer_load_dword v15, v14, s[48:51], s55 offen")
    for k in range(NS):
        wloads(k)
    a("s_setprio 3")
    a("v_min_u32 v6, 45, v2")
    a("v_lshlrev_b32 v6, 7, v6")
    a("s_lshr_b32 s24, s72, 1")
    a("s_lshl_b32 s24, s24, 11")
    a(f"s_add_u32 s24, s24, {FL_B1 - FL_A}")
    a(f"s_mov_b32 s25, {7*4096 - 14*128}")
    a("v_mov_b32 v7, s24")
    a("v_mov_b32 v8, s25")
    a("v_cmp_gt_u32 vcc, 14, v2")
    a("s_nop 1")
    a("v_cndmask_b32 v7, v8, v7, vcc")
    a("v_add_u32 v6, v6, v7")
    a(f"s_mov_b32 s24, {FL_A}")
    def g_to_lds():
        a("s_lshl_b32 s55, s71, 10")
        a(f"s_mov_b32 m0, {LDS_GQ}")
        a(f"s_add_u32 s55, s55, {WS_G}")
        a(f"buffer_load_dwordx4 v3, s[28:31], s55 offen{SC} lds")
        a("s_waitcnt vmcnt(0)")
    poll_shared(a, 2, [("s24", 6, 8, 4)], 20, lslp=4, extra=g_to_lds)
    a("v_and_b32 v6, 31, v2")
    a("v_lshlrev_b32 v6, 2, v6")
    a("s_lshl_b32 s55, s72, 8")
    a(f"s_add_u32 s55, s55, {WS_G}")
    a(f"buffer_load_dword v240, v6, s[28:31], s55 offen{SC}")
    a(f"buffer_load_dword v242, v6, s[28:31], s55 offen offset:128{SC}")
    stamp(a, 4)
    DA = 4
    a("s_setprio 0")
    for k in range(DA):
        aloads(k)
    for k in range(ND + NW):
        waitfor(("w", k), ("a", k))
        wreads(k)
        a("s_waitcnt lgkmcnt(0)")
        if k + NS < ND + NW:
            wloads(k + NS)
        if k + DA < ND:
            aloads(k + DA)
        if k < ND:
            mm(k)
    a("s_setprio 3")
    a("s_nop 7")
    a("v_sub_f32 v12, 1.0, v240")
    a("v_sub_f32 v14, 1.0, v242")
    a("s_nop 7")
    for n in range(2):
        for t in range(2):
            acc = GA + (n * 2 + t) * 16
            for j in range(0, 16, 2):
                a(f"v_pk_mul_f32 {v(acc+j,2)}, {v(acc+j,2)}, {v(12+2*t,2)} op_sel_hi:[1,0]")
    a("v_and_b32 v4, 31, v2")
    a(f"v_mul_u32_u24 v4, {RP}, v4")
    a("v_lshrrev_b32 v6, 5, v2")
    a("v_lshl_add_u32 v4, v6, 4, v4")
    a(f"s_mul_i32 s32, s23, {64*RP}")
    a("v_add_u32 v4, s32, v4")
    a("s_lshl_b32 s24, s72, 2")
    a("s_add_u32 s24, s24, s23")
    a(f"s_mul_i32 s24, s24, {8*3072}")
    a(f"s_add_u32 s24, s24, {WS_O}")
    a("v_and_b32 v6, 7, v2")
    a("v_lshlrev_b32 v6, 7, v6")
    a("s_lshl_b32 s26, s72, 12")
    a("s_lshl_b32 s25, s23, 10")
    a("s_add_u32 s26, s26, s25")
    a(f"s_add_u32 s26, s26, {FL_C}")
    a("s_mov_b32 s54, 0")
    a(f"s_mov_b32 s74, {SPIN}")
    stamp(a, 5)
    stamp(a, 1, 8)
    XR = 208
    a.label("K3_ROUND")
    a("v_mov_b32 v8, 0")
    a("s_mov_b64 exec, 0xff")
    if ATPOLL:
        a("buffer_atomic_or v8, v6, s[28:31], s26 offen sc0 sc1")
    else:
        a("buffer_load_dword v8, v6, s[28:31], s26 offen sc1")
    a("s_waitcnt vmcnt(0)")
    a("v_cmp_eq_u32 vcc, s68, v8")
    a("s_mov_b64 exec, -1")
    a("s_cmp_eq_u32 s74, 0")
    a("s_cselect_b32 s55, 0xff, vcc_lo")
    a("s_andn2_b32 s55, s55, s54")
    a("s_cbranch_scc1 K3_SOME")
    a("s_sub_u32 s74, s74, 1")
    a(f"s_sleep {TSLP}")
    a("s_branch K3_ROUND")
    a.label("K3_SOME")
    for kk in range(NW):
        b = FR + ((ND + kk) % D) * 16
        a(f"s_bitcmp1_b32 s55, {kk}")
        a(f"s_cbranch_scc0 K3_L{kk}")
        a(f"s_add_u32 s25, s24, {kk*3072}")
        a(f"buffer_load_dwordx4 {v(b+4,4)}, v3, s[28:31], s25 offen{SC}")
        a(f"buffer_load_dwordx4 {v(b+12,4)}, v3, s[28:31], s25 offen offset:1024{SC}")
        a(f"buffer_load_dwordx4 {v(XR+4*kk,4)}, v3, s[28:31], s25 offen offset:2048{SC}")
        a.label(f"K3_L{kk}")
    a("s_sub_u32 s74, s74, 1")
    a("s_cselect_b32 s75, 0, -1")
    a("s_waitcnt vmcnt(0)")
    for kk in range(NW):
        b = FR + ((ND + kk) % D) * 16
        a(f"s_bitcmp1_b32 s55, {kk}")
        a(f"s_cbranch_scc0 K3_C{kk}")
        a(f"v_xor_b32 v8, s68, v{b+7}")
        a(f"v_xor_b32 v9, s68, v{b+15}")
        a(f"v_xor_b32 v10, s68, v{XR+4*kk+3}")
        a("v_or3_b32 v8, v8, v9, v10")
        a("v_and_b32 v8, s75, v8")
        a("v_cmp_ne_u32 vcc, 0, v8")
        a(f"v_mov_b32 v{b+7}, v{XR+4*kk}")
        a(f"v_mov_b32 v{b+15}, v{XR+4*kk+1}")
        a("s_cmp_eq_u64 vcc, 0")
        a(f"s_cbranch_scc0 K3_C{kk}")
        mm(ND + kk)
        a(f"s_bitset1_b32 s54, {kk}")
        a.label(f"K3_C{kk}")
    a("s_cmp_lg_u32 s54, 0xff")
    a("s_cbranch_scc1 K3_ROUND")
    stamp(a, 6)
    stamp(a, 2, 8)
    a("s_barrier                              ; Y0")
    for i in range(3, 6):
        stamp(a, i, 8)
    a("s_nop 7")
    a("s_nop 7")
    for n in range(2):
        for t in range(2):
            acc = GA + (n * 2 + t) * 16
            for g in range(4):
                a(f"ds_write_b128 v4, {v(acc+4*g,4)} offset:{t*32*RP + n*128 + g*32}")
    a.label("K3_REDUCE")
    srd(a, 24, 64, 0x200000)
    a("s_lshl_b32 s32, s20, 6")
    a("v_add_u32 v0, s32, v2                  ; tid")
    a("v_lshrrev_b32 v7, 3, v0                ; token")
    a("v_and_b32 v5, 7, v0")
    a(f"v_mul_u32_u24 v6, {RP}, v7")
    a("v_lshl_add_u32 v6, v5, 5, v6")
    a("v_lshlrev_b32 v7, 10, v7")
    a("v_lshl_add_u32 v7, v5, 4, v7")
    a("s_lshl_b32 s32, s72, 16")
    a("s_lshl_b32 s33, s73, 7")
    a("s_add_u32 s32, s32, s33")
    a("s_waitcnt lgkmcnt(0)")
    a("s_barrier                              ; Y1")
    stamp(a, 6, 8)
    for w in range(4):
        a(f"ds_read_b128 {v(208+8*w,4)}, v6 offset:{w*64*RP}")
        a(f"ds_read_b128 {v(212+8*w,4)}, v6 offset:{w*64*RP+16}")
    for w in range(1, 4):
        a(f"s_waitcnt lgkmcnt({2*(3-w)})")
        for j in range(0, 8, 2):
            a(f"v_pk_add_f32 {v(208+j,2)}, {v(208+j,2)}, {v(208+8*w+j,2)}")
    for j in range(0, 8, 2):
        a(f"v_cvt_pk_bf16_f32 v{16+j//2}, v{208+j}, v{208+j+1}")
    a("buffer_store_dwordx4 v[16:19], v7, s[24:27], s32 offen")
    stamp_flush(a, 8)
    a.label("K_EXIT")
    a("s_endpgm")
    a.label("K_END")

def main():
    hdr = open("cdna_kernels/" + NAME + ".s.ref").read().split("\n")
    top = [l for l in hdr if l.startswith(";") and "@launch" not in l]
    out = "\n".join(top) + "\n"
    out += f"; @launch grid=(256,1,1) block=(512,1,1) lds={LDS_TOTAL}\n"
    out += '.amdgcn_target "amdgcn-amd-amdhsa--gfx950"\n.text\n'
    a = Asm()
    gen(a)
    out += a.text()
    out += '.section .rodata,"a"\n'
    out += kernel_desc(KNAME, 256, 102)
    path = sys.argv[1] if len(sys.argv) > 1 else "cdna_kernels/" + NAME + ".s"
    open(path, "w").write(out)

main()
```

```python
import sys, math, os
from asmlib import *

NAME = "gated_mix__softmax_full_mha__geglu_ffn__prompt"
KNAME = NAME + "_kernel"
LOG2E = 1.4426950408889634
def env(n, d): return int(os.environ.get(n, str(d)))
PROF = env("PROF", 0)
ROT = env("ROT", 1)
DBGWG = env("DBGWG", -1)
TLBW = env("TLBW", 0)
PFW = env("PFW", 0)
PFI = env("PFI", 1)
PFX = env("PFX", 0)
KVROT = env("KVROT", 1)
WARMW = env("WARMW", 1)
ATPOLL = env("ATPOLL", 1)
HINTW = env("HINTW", 0)
TSLP = env("TSLP", 4)
SPF = env("SPF", 0)
CODEPF = env("CODEPF", 1)
SLP = env("SLP", 4)

WS_Q = 0x0
WS_K = 0x200000
WS_V = 0x400000
WS_ACT = 0x600000
WS_O = 0xF00000
WS_G = 0x1240000
WS_FL = 0x1280000
FL_A = WS_FL
FL_B1 = WS_FL + 0x8000
FL_B2 = WS_FL + 0x10000
FL_C = WS_FL + 0x20000
WS_STAMP = 0x1800000
WS_SIZE = 0x2000000

S1, S2 = 32768, 49152
LDS_GW = 162176
LDS_TAG = 163328
LDS_SYNC = LDS_TAG + 8
LDS_TOTAL = 163840
LDS_V = 65536
VP = 1056
LDS_Q = 147456
LDS_GQ = LDS_GW
LDS_WS = 137344 + 128
RP = 272

SC = " sc1"
SPIN = 200000
MF = "v_mfma_f32_32x32x16_bf16"

def srd(a, d, base, nbytes):
    a(f"s_mov_b32 s{d}, s{base}")
    a(f"s_mov_b32 s{d+1}, s{base+1}")
    a(f"s_mov_b32 s{d+2}, {nbytes:#x}")
    a(f"s_mov_b32 s{d+3}, 0x20000")

def stamp(a, i, lvl=1):
    if PROF and (PROF == lvl or i in (0, 7)):
        a("s_memrealtime s[96:97]")
        a("s_memtime s[98:99]")
        a("s_waitcnt lgkmcnt(0)")
        a(f"s_mov_b32 s{80+i}, s96")
        a(f"s_mov_b32 s{88+i}, s98")

def stamp_flush(a, n):
    if PROF:
        a("s_waitcnt vmcnt(0)")
        stamp(a, n - 1)
        a("s_lshl_b32 s78, s2, 4")
        a("s_add_u32 s78, s78, s20")
        a("s_lshl_b32 s78, s78, 6")
        a(f"s_add_u32 s78, s78, {WS_STAMP}")
        a("v_mov_b32 v1, 0")
        for i in range(n):
            a(f"v_mov_b32 v0, s{80+i}")
            a(f"buffer_store_dword v0, v1, s[28:31], s78 offen offset:{4*i}")
            a("s_nop 1")
            a(f"v_mov_b32 v0, s{88+i}")
            a(f"buffer_store_dword v0, v1, s[28:31], s78 offen offset:{32+4*i}")
            a("s_nop 1")
        a("s_waitcnt vmcnt(0)")
        if DBGWG >= 0:
            a(f"s_cmp_lg_u32 s2, {DBGWG}")
            a("s_cbranch_scc1 DBG_SKIP")
            a("s_and_b32 s78, s20, 3")
            a("s_cmp_lg_u32 s78, 0")
            a("s_cbranch_scc1 DBG_SKIP")
            a("s_mul_i32 s78, s20, 7")
            a("v_mov_b32 v1, s78")
            for i in range(1, n):
                a(f"s_sub_u32 s79, s{80+i}, s80")
                a("v_mov_b32 v0, s79")
                a(f"global_store_dword v1, v0, s[66:67] offset:{4+4*i}")
                a("s_nop 1")
            a("s_waitcnt vmcnt(0)")
            a.label("DBG_SKIP")

def flag_store(a, soff, vtmp):
    a(f"v_mov_b32 v{vtmp}, s68")
    a(f"v_mov_b32 v{vtmp+1}, s69")
    a(f"v_mov_b32 v{vtmp+2}, 0")
    a("s_mov_b64 exec, 1")
    a(f"buffer_store_dwordx2 {v(vtmp,2)}, v{vtmp+2}, s[28:31], {soff} offen sc1")
    a("s_mov_b64 exec, -1")

def poll(a, soff, voff, vtmp, slp=None):
    lab = a.newlabel("POLL")
    done = a.newlabel("POLLD")
    a(f"s_mov_b32 s74, {SPIN}")
    a.label(lab)
    a(f"buffer_load_dwordx2 {v(vtmp,2)}, v{voff}, s[28:31], {soff} offen sc1")
    a("s_waitcnt vmcnt(0)")
    a(f"v_xor_b32 v{vtmp}, s68, v{vtmp}")
    a(f"v_xor_b32 v{vtmp+1}, s69, v{vtmp+1}")
    a(f"v_or_b32 v{vtmp}, v{vtmp}, v{vtmp+1}")
    a(f"v_cmp_ne_u32 vcc, 0, v{vtmp}")
    a("s_sub_u32 s74, s74, 1")
    a("s_cmp_eq_u32 s74, 0")
    a(f"s_cbranch_scc1 {done}")
    a("s_cmp_eq_u64 vcc, 0")
    a(f"s_cbranch_scc1 {done}")
    a(f"s_sleep {SLP if slp is None else slp}")
    a(f"s_branch {lab}")
    a.label(done)

def poll_shared(a, stage, polls, vtmp, lslp=1, extra=None):
    other = a.newlabel("PSO")
    done = a.newlabel("PSD")
    a(f"v_mov_b32 v{vtmp+3}, {LDS_SYNC}")
    a("s_cmp_lg_u32 s23, 0")
    a(f"s_cbranch_scc1 {other}")
    for p in polls:
        poll(a, *p)
    if extra:
        extra()
    a(f"v_mov_b32 v{vtmp}, {stage}")
    a(f"ds_write_b32 v{vtmp+3}, v{vtmp}")
    a(f"s_branch {done}")
    a.label(other)
    a(f"s_mov_b32 s74, {SPIN*8}")
    lab = a.newlabel("PSL")
    a.label(lab)
    a(f"ds_read_b32 v{vtmp}, v{vtmp+3}")
    a("s_waitcnt lgkmcnt(0)")
    a(f"v_readfirstlane_b32 s75, v{vtmp}")
    a("s_sub_u32 s74, s74, 1")
    a("s_cmp_eq_u32 s74, 0")
    a(f"s_cbranch_scc1 {done}")
    a(f"s_cmp_ge_u32 s75, {stage}")
    a(f"s_cbranch_scc1 {done}")
    a(f"s_sleep {lslp}")
    a(f"s_branch {lab}")
    a.label(done)

def cvt_tile(a, acc, dst, lo=0, hi=16):
    for i in range(lo, hi, 2):
        a(f"v_cvt_pk_bf16_f32 v{dst + (i - lo)//2}, v{acc+i}, v{acc+i+1}")

def gen(a):
    kernel_header(a, KNAME)
    a("s_cmp_ge_u32 s2, 256")
    a("s_cbranch_scc1 K_EXIT")
    a("s_load_dwordx4 s[4:7], s[0:1], 0       ; x, wqkv")
    a("s_load_dwordx2 s[8:9], s[0:1], 16      ; wo")
    a("s_load_dwordx2 s[10:11], s[0:1], 80    ; ws")
    a("s_load_dwordx4 s[12:15], s[0:1], 32")
    a("s_load_dwordx4 s[16:19], s[0:1], 48")
    a("s_load_dwordx4 s[64:67], s[0:1], 64")
    a("v_lshrrev_b32 v1, 6, v0")
    a("v_and_b32 v2, 63, v0                   ; lane")
    a("v_readfirstlane_b32 s20, v1")
    a("v_lshlrev_b32 v3, 4, v2                ; lane*16")
    stamp(a, 0)
    a("s_and_b32 s24, s2, 1                   ; xh")
    a("s_bfe_u32 s25, s2, 0x20001             ; xq")
    a("s_lshr_b32 s26, s2, 3                  ; j")
    a("s_lshl_b32 s60, s24, 4")
    a("s_and_b32 s27, s26, 15")
    a("s_add_u32 s60, s60, s27                ; tb")
    a("s_lshr_b32 s27, s26, 4")
    a("s_lshl_b32 s61, s25, 1")
    a("s_add_u32 s61, s61, s27                ; hg")
    a("s_lshl_b32 s27, s27, 2")
    a("s_add_u32 s62, s26, s27")
    a(f"s_and_b32 s62, s62, {7 if ROT else 0}  ; rot1")
    a("s_and_b32 s63, s26, 7")
    a("s_lshl_b32 s21, s24, 3")
    a("s_add_u32 s21, s21, s63                ; rb")
    a("s_lshr_b32 s27, s26, 3")
    a("s_lshl_b32 s22, s25, 2")
    a("s_add_u32 s22, s22, s27                ; cb2")
    a("s_lshl_b32 s72, s25, 3")
    a("s_add_u32 s72, s72, s63                ; rb64")
    a("s_lshl_b32 s73, s24, 2")
    a("s_add_u32 s73, s73, s27                ; cb64")
    if not ROT:
        a("s_mov_b32 s63, 0")
    a("s_and_b32 s70, s2, 7")
    a("s_lshl_b32 s70, s70, 2")
    a("s_and_b32 s27, s26, 3")
    a("s_add_u32 s70, s70, s27                ; head")
    a("s_lshr_b32 s71, s26, 2                 ; qb")
    a("s_cmp_ge_u32 s20, 4")
    a("s_cbranch_scc1 K1_LOADER")

    ACC = 128
    XA = [4, 5, 6, 7]
    WA = [8, 9, 10, 11]
    GWA = 12
    a("s_and_b32 s23, s20, 1                  ; tp")
    a("s_lshr_b32 s24, s20, 1")
    a("v_bfe_u32 v16, v2, 4, 1                ; gsel")
    a("v_lshrrev_b32 v17, 5, v2               ; h")
    a("v_bfe_u32 v18, v2, 2, 2                ; r")
    a("v_and_b32 v19, 3, v2                   ; c")
    a("v_lshl_add_u32 v20, v17, 3, v18        ; 8h+r")
    a("v_and_b32 v21, 31, v2")
    a("v_lshlrev_b32 v21, 7, v21")
    a("v_bfe_u32 v22, v2, 1, 3")
    a("v_xor_b32 v22, v22, v17")
    a("v_lshl_add_u32 v13, v22, 4, v21")
    a("s_lshl_b32 s25, s23, 12")
    a(f"s_add_u32 s25, s25, {S1}")
    for s_ in range(4):
        a(f"v_xor_b32 v{XA[s_]}, {32*s_}, v13")
        a(f"v_add_u32 v{XA[s_]}, s25, v{XA[s_]}")
    a("v_lshrrev_b32 v21, 1, v18")
    a("v_xor_b32 v21, s24, v21")
    a("v_lshlrev_b32 v21, 6, v21")
    a("v_lshl_add_u32 v21, v20, 7, v21")
    a("v_lshl_add_u32 v21, v16, 5, v21")
    a("v_lshl_add_u32 v21, v19, 3, v21")
    a(f"v_add_u32 v{WA[0]}, {8192 + S1}, v21")
    a("s_lshl_b32 s26, s62, 7")
    a(f"s_add_u32 s26, s26, {LDS_GW}")
    a("v_lshlrev_b32 v21, 4, v17")
    a(f"v_add_u32 v{GWA}, s26, v21")
    a("v_lshlrev_b32 v14, 14, v16")
    a("v_lshl_add_u32 v14, v20, 8, v14")
    a("v_lshl_add_u32 v14, v19, 3, v14")
    a("v_add_u32 v14, 16384, v14")
    a("v_lshl_add_u32 v15, v18, 1, v16")
    for i in range(64):
        a(f"v_mov_b32 v{ACC+i}, 0")
    a("s_waitcnt lgkmcnt(0)")
    srd(a, 28, 10, WS_SIZE)
    a(f"s_mov_b32 s25, {S1}")
    a("s_mov_b32 s26, 8")
    a("s_mov_b32 s33, s62                     ; kc")
    if PFW:
        a("s_cmp_eq_u32 s24, 0")
        a("s_cselect_b64 s[44:45], s[12:13], s[14:15]")
        a("s_mov_b32 s46, 0x1c0000")
        a("s_mov_b32 s47, 0x20000")
        a("v_lshrrev_b32 v21, 1, v2")
        a("v_mul_u32_u24 v21, 3584, v21")
        a("v_and_b32 v22, 1, v2")
        a("v_lshl_add_u32 v23, v22, 7, v21")
        a("s_lshl_b32 s48, s63, 1")
        a("s_add_u32 s48, s48, s23")
        a("s_mul_i32 s48, s48, 114688")
        a("s_lshl_b32 s49, s22, 8")
        a("s_add_u32 s48, s48, s49")
    if PFX:
        srd(a, 52, 4, 0x200000)
        a("s_add_u32 s56, s62, s20")
        a("s_and_b32 s56, s56, 7")
        a("s_lshl_b32 s56, s56, 7")
        a("s_lshl_b32 s57, s60, 16")
        a("s_add_u32 s56, s56, s57")
        a("v_lshlrev_b32 v21, 10, v2")
        a("s_cmp_eq_u32 s20, 0")
        a("s_cbranch_scc1 P1_NOPFX")
        a("buffer_load_dword v22, v21, s[52:55], s56 offen")
        a.label("P1_NOPFX")
    if PFW == 1:
        a("buffer_load_dword v22, v23, s[44:47], s48 offen")
    if TLBW:
        a("v_min_u32 v21, 9, v2")
        a("v_lshlrev_b32 v21, 21, v21")
        a("buffer_load_dword v22, v21, s[28:31], 0 offen sc1")
        a("v_mov_b32 v21, 0")
        a("global_load_dword v22, v21, s[64:65]")
        a("global_load_dword v22, v21, s[16:17]")
        a("global_load_dword v22, v21, s[8:9]")
        a("global_load_dword v22, v21, s[12:13]")
        a("global_load_dword v22, v21, s[14:15]")
    if PFI:
        a("s_cmp_lt_u32 s22, 14")
        a("s_cbranch_scc1 P1_NOPFI")
        a("s_and_b32 s40, s2, 1")
        a("s_lshl_b32 s40, s40, 4")
        a("s_lshr_b32 s41, s2, 3")
        a("s_add_u32 s40, s40, s41")
        a("s_sub_u32 s40, s40, 16")
        a("s_lshl_b32 s40, s40, 1")
        a("s_add_u32 s40, s40, s23")
        a("s_mul_i32 s41, s40, 28672")
        a("s_cmp_eq_u32 s24, 0")
        a("s_cselect_b64 s[44:45], s[12:13], s[14:15]")
        a("s_mov_b32 s46, 0x1c0000")
        a("s_mov_b32 s47, 0x20000")
        a("v_lshlrev_b32 v23, 7, v2")
        for i in range(4):
            a("buffer_load_dword v22, v23, s[44:47], s41 offen")
            a("s_add_u32 s41, s41, 8192")
        if PFI > 1:
            a("s_cselect_b64 s[44:45], s[16:17], s[8:9]".replace("s_cselect_b64", "s_cmp_eq_u32 s24, 0\ns_cselect_b64"))
            a("s_mov_b32 s46, 0x80000")
            a("s_cselect_b32 s46, 0x1c0000, s46")
            a("s_mul_i32 s41, s40, 28672")
            a("s_lshl_b32 s42, s40, 13")
            a("s_cselect_b32 s41, s41, s42".replace("s_cselect_b32", "s_cmp_eq_u32 s24, 0\ns_cselect_b32"))
            for i in range(4):
                a("buffer_load_dword v22, v23, s[44:47], s41 offen")
                a("s_add_u32 s41, s41, 8192")
        a.label("P1_NOPFI")
    if CODEPF:
        a("s_getpc_b64 s[50:51]")
        a.label("PC_HERE")
        a(f"s_sub_u32 s50, s50, PC_HERE-{KNAME}")
        a("s_subb_u32 s51, s51, 0")
        a("s_lshr_b32 s49, s2, 3")
        a("s_lshl_b32 s49, s49, 2")
        a("s_add_u32 s49, s49, s20")
        a("s_lshl_b32 s49, s49, 8")
        a("v_lshlrev_b32 v21, 2, v2")
        a("v_add_u32 v21, s49, v21")
        a(f"v_min_u32 v21, K_END-{KNAME}-4, v21")
        a("global_load_dword v21, v21, s[50:51]")
    B1 = [24, 44, 64, 84]
    def reads1(s_, buf, wg):
        L = [f"ds_read_b128 {v(buf,4)}, v{XA[s_]}"]
        for ty in range(3):
            for u in range(2):
                L.append(f"ds_read_b64_tr_b16 {v(buf+4+4*ty+2*u,2)}, v{WA[0]} offset:{ty*8192 + (16*s_+4*u)*128}")
        if wg:
            L.append(f"ds_read_b128 {v(buf+16,4)}, v{GWA} offset:{32*s_}")
        return L
    def mf1(buf, wg):
        X = v(buf, 4)
        L = [f"{MF} {v(ACC,16)}, {v(buf+4,4)}, {X}, {v(ACC,16)}",
             f"{MF} {v(ACC+16,16)}, {v(buf+8,4)}, {X}, {v(ACC+16,16)}",
             f"{MF} {v(ACC+32,16)}, {X}, {v(buf+12,4)}, {v(ACC+32,16)}"]
        if wg:
            L.append(f"{MF} {v(ACC+48,16)}, {v(buf+16,4)}, {X}, {v(ACC+48,16)}")
        return L
    a("s_cmp_ge_u32 s22, 14")
    a("s_cselect_b32 s59, s24, 1")
    a("s_cmp_eq_u32 s59, 0")
    a("s_cbranch_scc0 P1_V1")
    for var in range(2):
        wg = var == 0
        if var == 1:
            a.label("P1_V1")
        a("s_barrier")
        stamp(a, 1)
        if PFW == 2:
            a("buffer_load_dword v22, v23, s[44:47], s48 offen")
        for l in reads1(0, B1[0], wg) + reads1(1, B1[1], wg):
            a(l)
        a.raw(".p2align 6")
        a.label(f"P1_LOOP{var}")
        nr = 8 if wg else 7
        for s_ in range(4):
            a(f"s_waitcnt lgkmcnt({0 if s_ == 2 else nr})")
            if s_ < 2:
                fill = reads1(s_ + 2, B1[s_ + 2], wg)
                if s_ == 1:
                    fill += [f"s_add_u32 s25, s25, {S1}", f"s_cmp_eq_u32 s25, {4*S1}",
                             f"s_mov_b32 s27, {S1}", f"s_cselect_b32 s27, {(-3*S1) & 0xffffffff:#x}, s27", "s_cselect_b32 s25, 0, s25"]
                    fill += [f"v_add_u32 v{r}, s27, v{r}" for r in XA + [WA[0]]]
                    if wg:
                        fill += ["s_add_u32 s33, s33, 1", "s_cmp_eq_u32 s33, 8", "s_movk_i32 s27, 128",
                                 f"s_cselect_b32 s27, {(-7*128) & 0xffffffff:#x}, s27", "s_cselect_b32 s33, 0, s33",
                                 f"v_add_u32 v{GWA}, s27, v{GWA}"]
            elif s_ == 2:
                fill = ["s_barrier"] + reads1(0, B1[0], wg)
            else:
                fill = reads1(1, B1[1], wg)
                if PFW >= 3:
                    fill += [f"s_cmp_lg_u32 s26, {11 - PFW}", f"s_cbranch_scc1 P1_NT{var}", "buffer_load_dword v22, v23, s[44:47], s48 offen", f"P1_NT{var}:"]
                fill += ["s_sub_u32 s26, s26, 1", "s_cmp_lg_u32 s26, 0"]
            for l in interleave(mf1(B1[s_], wg), fill, [2, 3, 3, 20] if wg else [3, 2, 20]):
                a(l)
        a(f"s_cbranch_scc1 P1_LOOP{var}")
        if var == 0:
            a("s_branch P1_EPI")
    a.label("P1_EPI")
    stamp(a, 2)
    a("s_lshl_b32 s32, s60, 1")
    a("s_add_u32 s32, s32, s23")
    a("s_lshl_b32 s36, s61, 2")
    a("s_lshl_b32 s37, s24, 1")
    a("s_add_u32 s36, s36, s37")
    a("s_lshl_b32 s36, s36, 6")
    a("s_add_u32 s36, s36, s32")
    a("s_lshl_b32 s36, s36, 10")
    a("v_and_b32 v16, 0x33, v2")
    a("v_bfe_u32 v17, v2, 2, 1")
    a("v_lshl_or_b32 v16, v17, 3, v16")
    a("v_bfe_u32 v17, v2, 3, 1")
    a("v_lshl_or_b32 v16, v17, 2, v16")
    a("v_lshlrev_b32 v16, 4, v16              ; K voffset")
    a("v_bfe_u32 v17, v2, 4, 1")
    a("v_lshlrev_b32 v17, 16, v17")
    a("v_lshrrev_b32 v18, 5, v2")
    a("v_lshl_or_b32 v17, v18, 8, v17")
    a("v_and_b32 v18, 15, v2")
    a("v_lshl_or_b32 v17, v18, 4, v17         ; V voffset")
    a(f"s_mov_b32 s34, {fh(LOG2E*0.25)}")
    a("s_mov_b32 s35, s34")
    T = 104
    cvt_tile(a, ACC + 16, T + 8)
    a(f"s_add_u32 s37, s36, {WS_K}")
    a(f"s_add_u32 s38, s36, {WS_K + 65536}")
    a(f"buffer_store_dwordx4 {v(T+8,4)}, v16, s[28:31], s37 offen{SC}")
    a(f"buffer_store_dwordx4 {v(T+12,4)}, v16, s[28:31], s38 offen{SC}")
    cvt_tile(a, ACC + 32, T + 16)
    a(f"s_add_u32 s37, s36, {WS_V}")
    a(f"buffer_store_dwordx4 {v(T+16,4)}, v17, s[28:31], s37 offen{SC}")
    a(f"buffer_store_dwordx4 {v(T+20,4)}, v17, s[28:31], s37 offen offset:512{SC}")
    for j in range(0, 16, 2):
        a(f"v_pk_mul_f32 {v(ACC+j,2)}, {v(ACC+j,2)}, s[34:35]")
    cvt_tile(a, ACC, T)
    a(f"s_add_u32 s38, s36, {WS_Q + 65536}")
    a(f"buffer_store_dwordx4 {v(T,4)}, v3, s[28:31], s36 offen{SC}")
    a(f"buffer_store_dwordx4 {v(T+4,4)}, v3, s[28:31], s38 offen{SC}")
    a("s_cmp_eq_u32 s59, 0")
    a("s_cbranch_scc0 P1_NOG")
    a(f"v_mul_f32 v19, {fh(-LOG2E)}, v{ACC+48}")
    a("v_exp_f32 v19, v19")
    a("v_and_b32 v18, 31, v2")
    a("v_add_f32 v19, 1.0, v19")
    a("v_rcp_f32 v19, v19                   ; g")
    a("v_lshlrev_b32 v18, 2, v18")
    a("s_lshl_b32 s37, s32, 7")
    a(f"s_add_u32 s37, s37, {WS_G}")
    a(f"buffer_store_dword v19, v18, s[28:31], s37 offen{SC}")
    a.label("P1_NOG")
    a("s_cmp_ge_u32 s22, 14")
    a("s_cbranch_scc1 IDLE_C")

    a("s_lshl_b32 s25, s23, 13")
    a(f"s_add_u32 s25, s25, {S2}")
    a(f"v_add_u32 v14, {S2}, v14")
    for s_ in range(4):
        a(f"v_xor_b32 v{XA[s_]}, {32*s_}, v13")
        a(f"v_add_u32 v{XA[s_]}, s25, v{XA[s_]}")
    a("s_lshl_b32 s25, s24, 2")
    for t in range(4):
        a(f"s_add_u32 s27, s25, {t}")
        a("v_xor_b32 v16, s27, v15")
        a(f"v_lshl_add_u32 v{WA[t]}, v16, 5, v14")
    for i in range(128):
        a(f"v_mov_b32 v{ACC+i}, 0")
    a(f"s_mov_b32 s25, {S2}")
    a("s_mov_b32 s26, 8")
    B2 = [24, 48]
    def reads2(s_, buf):
        L = [f"ds_read_b128 {v(buf,4)}, v{XA[s_]}"]
        for t in range(4):
            for u in range(2):
                L.append(f"ds_read_b64_tr_b16 {v(buf+8+4*t+2*u,2)}, v{WA[t]} offset:{(16*s_+4*u)*256}")
            if t == 0:
                L.append(f"ds_read_b128 {v(buf+4,4)}, v{XA[s_]} offset:4096")
        return L
    def mf2(buf):
        L = []
        for t in range(4):
            for i in range(2):
                acc = ACC + (i * 4 + t) * 16
                L.append(f"{MF} {v(acc,16)}, {v(buf+8+4*t,4)}, {v(buf+4*i,4)}, {v(acc,16)}")
        return L
    a("s_waitcnt lgkmcnt(0)")
    a("s_barrier                              ; b(0)")
    for l in reads2(0, B2[0]):
        a(l)
    a.raw(".p2align 6")
    a.label("P2_LOOP")
    for s_ in range(4):
        a("s_waitcnt lgkmcnt(0)")
        if s_ < 3:
            fill = reads2(s_ + 1, B2[(s_ + 1) & 1])
            gaps = [3, 3, 2, 2, 0, 0, 0, 0]
            if s_ == 1:
                fill += ["s_cmp_lg_u32 s26, 7", "s_cbranch_scc1 P2_ND", "s_waitcnt vmcnt(0)", "P2_ND:"]
                gaps = [3, 3, 2, 2, 0, 4, 0, 0]
            if s_ == 2:
                fill += [f"s_add_u32 s25, s25, {S2}", f"s_cmp_eq_u32 s25, {3*S2}",
                         f"s_mov_b32 s27, {S2}", f"s_cselect_b32 s27, {(-2*S2) & 0xffffffff:#x}, s27", "s_cselect_b32 s25, 0, s25"]
                fill += [f"v_add_u32 v{r}, s27, v{r}" for r in XA + WA]
                gaps = [3, 3, 2, 2, 5, 3, 3, 2]
        else:
            fill = ["s_barrier"] + reads2(0, B2[0]) + ["s_sub_u32 s26, s26, 1", "s_cmp_lg_u32 s26, 0"]
            gaps = [1, 3, 3, 2, 2, 2, 0, 0]
        for l in interleave(mf2(B2[s_ & 1]), fill, gaps):
            a(l)
    a("s_cbranch_scc1 P2_LOOP")
    stamp(a, 3)
    c0 = -2.0 * 0.7978845608028654 * LOG2E
    c1 = c0 * 0.044715
    a(f"s_mov_b32 s34, {fh(c1)}")
    a("s_mov_b32 s35, s34")
    a(f"v_mov_b32 v4, {fh(c0)}")
    a("v_mov_b32 v5, v4")
    a("v_mov_b32 v6, 1.0")
    a("v_mov_b32 v7, 1.0")
    a("s_lshl_b32 s32, s21, 2")
    a("s_lshl_b32 s33, s23, 1")
    a("s_add_u32 s32, s32, s33                ; tt0")
    a("s_mul_i32 s36, s32, 144")
    a("s_lshl_b32 s37, s22, 3")
    a("s_add_u32 s36, s36, s37")
    a("s_lshl_b32 s37, s24, 2")
    a("s_add_u32 s36, s36, s37")
    a("s_lshl_b32 s36, s36, 10")
    a(f"s_add_u32 s36, s36, {WS_ACT}")
    a(f"s_add_u32 s37, s36, {144*1024}")
    a("s_waitcnt lgkmcnt(0)")
    TB = 16
    for i in range(2):
        for t in range(4):
            acc = ACC + (i * 4 + t) * 16
            out = 56 + 4 * (i * 4 + t)
            for j in range(0, 8, 2):
                a(f"v_pk_mul_f32 {v(TB+j,2)}, {v(acc+j,2)}, {v(acc+j,2)}")
            for j in range(0, 8, 2):
                a(f"v_pk_fma_f32 {v(TB+j,2)}, {v(TB+j,2)}, s[34:35], v[4:5]")
            for j in range(0, 8, 2):
                a(f"v_pk_mul_f32 {v(TB+j,2)}, {v(TB+j,2)}, {v(acc+j,2)}")
            for j in range(8):
                a(f"v_exp_f32 v{TB+j}, v{TB+j}")
            for j in range(0, 4, 2):
                a(f"v_pk_mul_f32 {v(acc+8+j,2)}, {v(acc+8+j,2)}, {v(acc+j,2)}")
            for j in range(0, 8, 2):
                a(f"v_pk_add_f32 {v(TB+j,2)}, {v(TB+j,2)}, v[6:7]")
            for j in range(8):
                a(f"v_rcp_f32 v{TB+j}, v{TB+j}")
            for j in range(4, 8, 2):
                a(f"v_pk_mul_f32 {v(acc+8+j,2)}, {v(acc+8+j,2)}, {v(acc+j,2)}")
            for j in range(0, 8, 2):
                a(f"v_pk_mul_f32 {v(acc+8+j,2)}, {v(acc+8+j,2)}, {v(TB+j,2)}")
            cvt_tile(a, acc, out, 8, 16)
            a(f"buffer_store_dwordx4 {v(out,4)}, v3, s[28:31], s{36+i} offen offset:{t*1024}{SC}")
    a("s_branch K2_ATTN")
    a.label("IDLE_C")
    a("s_waitcnt vmcnt(0) lgkmcnt(0)")
    a("s_barrier")
    stamp(a, 3)

    a.label("K2_ATTN")
    Q = [8, 12]
    G = [4, 5]
    KB = [16, 20]
    VB = [[24, 28], [32, 36]]
    IDX = 6
    VK, VV0, VV1 = 40, 41, 42
    C = [96, 112]
    S = [128, 144]
    P = [160, 176]
    O = [192, 208]
    a(f"v_mov_b32 v{IDX}, 0xdddd")
    def vaddr_init():
        a(f"v_mov_b32 v{VK}, v3")
        a("v_lshrrev_b32 v43, 5, v2")
        a("v_and_b32 v44, 15, v2")
        a("v_lshlrev_b32 v44, 4, v44")
        a("v_lshl_or_b32 v44, v43, 8, v44")
        a(f"v_add_u32 v44, {LDS_V}, v44")
        a("v_add_u32 v45, 512, v44")
        a("v_and_b32 v43, 31, v2")
        a("v_subrev_u32 v47, 20, v43")
        a("v_cmp_gt_u32 vcc, 8, v47")
        a(f"v_mov_b32 v46, {LDS_V + 1040}")
        a(f"v_mov_b32 v47, {LDS_V + 1040 + 2*VP}")
        a("v_cndmask_b32 v46, v46, v47, vcc")
        a("v_and_b32 v47, 27, v43")
        a("v_cmp_eq_u32 vcc, 16, v47")
        a("v_subrev_u32 v47, 16, v46")
        a("s_nop 0")
        a("v_cndmask_b32 v46, v46, v47, vcc")
        a("v_cmp_gt_u32 vcc, 16, v43")
        a("s_nop 1")
        a(f"v_cndmask_b32 v{VV0}, v46, v44, vcc")
        a(f"v_cndmask_b32 v{VV1}, v46, v45, vcc")
    vaddr_init()
    a("s_lshl_b32 s24, s20, 11")
    a(f"s_add_u32 s24, s24, {LDS_Q}")
    a("v_add_u32 v43, s24, v3")
    a("s_lshl_b32 s24, s20, 8")
    a(f"s_add_u32 s24, s24, {LDS_GQ}")
    a("v_and_b32 v7, 31, v2")
    a("v_lshlrev_b32 v7, 2, v7")
    a("v_add_u32 v7, s24, v7                  ; g address")
    a(f"v_mov_b32 v45, {LDS_TAG}")
    for q in range(2):
        for i in range(16):
            a(f"v_mov_b32 v{O[q]+i}, 0")
    a("s_mov_b32 s26, 0")
    a("s_barrier                              ; X1")
    a("s_setprio 2")
    stamp(a, 4)
    a(f"ds_read_b128 {v(Q[0],4)}, v43")
    a(f"ds_read_b128 {v(KB[0],4)}, v{VK}")
    a(f"ds_read_b128 {v(Q[1],4)}, v43 offset:1024")
    a("ds_read_b64 v[46:47], v45")
    a("s_waitcnt lgkmcnt(0)")
    for q in range(2):
        a(f"{MF} {v(S[q],16)}, {v(KB[0],4)}, {v(Q[q],4)}, 0")
    a("v_readfirstlane_b32 s68, v46")
    a("v_readfirstlane_b32 s69, v47")
    a("s_nop 7")
    a("s_nop 1")
    def maxtree(src, dst, acc=False):
        if acc:
            for i in range(0, 16, 2):
                a(f"v_max3_f32 v{dst}, v{src+i}, v{src+i+1}, v{dst}")
        else:
            a(f"v_max_f32 v{dst}, v{src}, v{src+1}")
            for i in range(2, 16, 2):
                a(f"v_max3_f32 v{dst}, v{src+i}, v{src+i+1}, v{dst}")
    for q in range(2):
        maxtree(S[q], 44 + q)
    a.label("K2_SETMAX")
    a(f"ds_read_b128 {v(KB[0],4)}, v{VK}")
    a(f"ds_read_b128 {v(VB[0][0],4)}, v{VV0}")
    a(f"ds_read_b128 {v(VB[0][1],4)}, v{VV1}")
    a(f"ds_read_b128 {v(KB[1],4)}, v{VK} offset:1024")
    for q in range(2):
        a(f"v_mov_b32 v{46+q}, v{44+q}")
    a("s_nop 1")
    for q in range(2):
        a(f"v_permlane32_swap_b32 v{44+q}, v{46+q}")
    for q in range(2):
        a(f"v_max_f32 v{44+q}, v{44+q}, v{46+q}")
    for i in range(16):
        a(f"v_sub_f32 v{C[0]+i}, 0, v44")
    a("s_waitcnt lgkmcnt(0)")
    a("s_nop 0")
    a(f"{MF} {v(S[0],16)}, {v(KB[0],4)}, {v(Q[0],4)}, {v(C[0],16)}")
    for i in range(16):
        a(f"v_sub_f32 v{C[1]+i}, 0, v45")
    for i in range(8):
        a(f"v_mov_b32 v{P[1]+8+i}, 0")
    for i in range(4):
        a(f"v_mov_b32 v{VB[1][1]+i}, 0")
    a("s_cmp_lg_u32 s26, 0")
    a("s_cbranch_scc1 K2_NOBAR")
    a("s_waitcnt vmcnt(0)")
    a("s_barrier")
    a.label("K2_NOBAR")
    a("s_mov_b32 s27, 7")
    U = 8
    a.raw(".p2align 6")
    a.label("K2_LOOP")
    def exps(q, lo, hi):
        for i in range(lo, hi):
            a(f"v_exp_f32 v{P[q]+i}, v{S[q]+i}")
    def smf(q, vb, half):
        a(f"v_smfmac_f32_32x32x32_bf16 {v(O[q],16)}, {v(vb,4)}, {v(P[q]+8*half,8)}, v{IDX}")
    for u in range(U):
        b = u & 1
        a(f"{MF} {v(S[1],16)}, {v(KB[b],4)}, {v(Q[1],4)}, {v(C[1],16)}")
        exps(0, 0, 5)
        smf(1, VB[b ^ 1][1], 1)
        a(f"ds_read_b128 {v(VB[b^1][0],4)}, v{VV0} offset:{(u+1)*VP}")
        exps(0, 5, 11)
        smf(0, VB[b][0], 0)
        a(f"ds_read_b128 {v(VB[b^1][1],4)}, v{VV1} offset:{(u+1)*VP}")
        exps(0, 11, 16)
        a(f"{MF} {v(S[0],16)}, {v(KB[b^1],4)}, {v(Q[0],4)}, {v(C[0],16)}")
        a(f"ds_read_b128 {v(KB[b],4)}, v{VK} offset:{(u+2)*1024}")
        exps(1, 0, 5)
        smf(0, VB[b][1], 1)
        if u == U - 1:
            a("s_sub_u32 s27, s27, 1")
        exps(1, 5, 11)
        smf(1, VB[b][0], 0)
        a("s_waitcnt lgkmcnt(0)")
        if u == U - 1:
            a(f"v_add_u32 v{VK}, {U*1024}, v{VK}")
            a(f"v_add_u32 v{VV0}, {U*VP}, v{VV0}")
            a(f"v_add_u32 v{VV1}, {U*VP}, v{VV1}")
        exps(1, 11, 16)
    a("s_cbranch_scc0 K2_LOOP")
    a("s_nop 1")
    smf(1, VB[(U - 1) & 1][1], 1)
    stamp(a, 5)
    stamp(a, 1, 8)
    a(f"v_mov_b32 v46, {LDS_SYNC}")
    a("ds_read_b32 v47, v46")
    a(f"ds_read_b32 v{G[0]}, v7")
    a(f"ds_read_b32 v{G[1]}, v7 offset:128")
    a("s_lshl_b32 s24, s71, 2")
    a("s_add_u32 s24, s24, s20")
    a("s_lshl_b32 s24, s24, 5")
    a("s_add_u32 s24, s24, s70")
    a("s_mul_i32 s25, s24, 3072")
    a(f"s_add_u32 s25, s25, {WS_O}")
    a("v_mov_b32 v44, 0")
    for i in range(9):
        a(f"v_fma_f32 v44, v{O[0]+i}, 0, v44")
    a("s_nop 1")
    for i in range(9):
        a(f"v_fma_f32 v44, v{O[1]+i}, 0, v44")
    a("v_cmp_u_f32 vcc, v44, v44")
    a("s_cmp_lg_u32 s26, 0")
    a("s_cbranch_scc1 K2_FIN")
    a("s_nop 1")
    a("s_cmp_eq_u64 vcc, 0")
    a("s_cbranch_scc1 K2_FIN")
    a("s_waitcnt lgkmcnt(0)")
    a("s_mov_b32 s26, 100")
    vaddr_init()
    for q in range(2):
        for i in range(16):
            a(f"v_mov_b32 v{O[q]+i}, 0")
    a("v_mov_b32 v44, 0xff800000")
    a("v_mov_b32 v45, 0xff800000")
    a("v_mov_b32 v43, v3")
    a("s_mov_b32 s27, 64")
    a.label("K2_MAXLOOP")
    a(f"ds_read_b128 {v(KB[0],4)}, v43")
    a("v_add_u32 v43, 1024, v43")
    a("s_waitcnt lgkmcnt(0)")
    for q in range(2):
        a(f"{MF} {v(S[q],16)}, {v(KB[0],4)}, {v(Q[q],4)}, 0")
    a("s_nop 7")
    a("s_nop 7")
    for q in range(2):
        maxtree(S[q], 44 + q, acc=True)
    a("s_sub_u32 s27, s27, 1")
    a("s_cmp_lg_u32 s27, 0")
    a("s_cbranch_scc1 K2_MAXLOOP")
    a("s_branch K2_SETMAX")
    a.label("K2_FIN")
    for q in range(2):
        a(f"v_rcp_f32 v{48+q}, v{O[q]+8}")
    a(f"s_mov_b32 s74, {SPIN*8}")
    a.label("K2_GW")
    a("s_waitcnt lgkmcnt(0)")
    a("v_readfirstlane_b32 s75, v47")
    a("s_sub_u32 s74, s74, 1")
    a("s_cmp_eq_u32 s74, 0")
    a("s_cbranch_scc1 K2_GOK")
    a("s_cmp_ge_u32 s75, 2")
    a("s_cbranch_scc1 K2_GOK")
    a("s_sleep 1")
    a("ds_read_b32 v47, v46")
    a(f"ds_read_b32 v{G[0]}, v7")
    a(f"ds_read_b32 v{G[1]}, v7 offset:128")
    a("s_branch K2_GW")
    a.label("K2_GOK")
    for q in range(2):
        a(f"v_mul_f32 v{44+2*q}, v{48+q}, v{G[q]}")
    GR = S[0]
    for r in (3, 7, 10, 11):
        a(f"v_mov_b32 v{GR+r}, s68")
    for q in range(2):
        for i in range(0, 8, 2):
            a(f"v_pk_mul_f32 {v(O[q]+i,2)}, {v(O[q]+i,2)}, {v(44+2*q,2)} op_sel_hi:[1,0]")
        for i in range(0, 8, 2):
            dst = GR + 4 * q + i // 2 if i < 6 else GR + 8 + q
            a(f"v_cvt_pk_bf16_f32 v{dst}, v{O[q]+i}, v{O[q]+i+1}")
        a(f"buffer_store_dwordx4 {v(GR+4*q,4)}, v3, s[28:31], s25 offen offset:{q*1024}{SC}")
    a(f"buffer_store_dwordx4 {v(GR+8,4)}, v3, s[28:31], s25 offen offset:2048{SC}")
    a("s_lshl_b32 s24, s24, 7")
    a(f"s_add_u32 s24, s24, {FL_C}")
    if HINTW:
        a(f"s_waitcnt vmcnt(0)")
    a("s_mov_b64 exec, 1")
    a(f"buffer_store_dword v{GR+3}, v3, s[28:31], s24 offen sc1")
    a("s_mov_b64 exec, -1")
    a("s_setprio 0")
    stamp(a, 6)
    for i in range(2, 6):
        stamp(a, i, 8)
    a("s_barrier                              ; Y0")
    a("s_branch K3_REDUCE")

    a.label("K1_LOADER")
    a("s_sub_u32 s23, s20, 4                  ; L")
    VX0, VX1, VW, VG, VU = 10, 11, 12, 13, 14
    a("v_lshrrev_b32 v4, 3, v2")
    a("v_and_b32 v5, 7, v2")
    a("v_lshrrev_b32 v6, 4, v2")
    a("v_xor_b32 v7, v5, v6")
    a("v_lshlrev_b32 v7, 4, v7")
    a(f"v_lshl_add_u32 v{VX0}, v4, 10, v7")
    a(f"v_xor_b32 v{VX1}, 64, v{VX0}")
    a("v_and_b32 v7, 1, v6")
    a("v_lshlrev_b32 v7, 2, v7")
    a("v_xor_b32 v7, v7, v5")
    a("v_mul_u32_u24 v8, 3072, v4")
    a(f"v_lshl_add_u32 v{VW}, v7, 4, v8")
    a("s_waitcnt lgkmcnt(0)")
    stamp(a, 1, 7)
    srd(a, 24, 4, 0x200000)
    srd(a, 44, 6, 0x180000)
    a("s_lshl_b32 s32, s60, 16")
    a("s_lshl_b32 s33, s23, 14")
    a("s_add_u32 s32, s32, s33")
    a("s_mul_i32 s33, s23, 49152")
    a("s_lshl_b32 s34, s61, 7")
    a("s_add_u32 s33, s33, s34")
    a("s_lshl_b32 s35, s23, 11")
    a("s_mov_b32 s36, s62                     ; kc")
    queue = []
    def issue1(c):
        slot = ((c + 1) % 4) * S1
        a("s_lshl_b32 s37, s36, 7")
        a("s_add_u32 s37, s37, s32")
        a("s_mul_i32 s38, s36, 196608")
        a("s_add_u32 s38, s38, s33")
        a(f"s_add_u32 m0, s35, {slot}")
        a("s_add_u32 s39, s37, 8192")
        a(f"buffer_load_dwordx4 v{VX0}, s[24:27], s37 offen lds")
        a(f"s_add_u32 m0, s35, {slot + 1024}")
        a("s_add_u32 s36, s36, 1")
        a(f"buffer_load_dwordx4 v{VX1}, s[24:27], s39 offen lds")
        for ty in range(3):
            for i in range(2):
                a(f"s_add_u32 m0, s35, {slot + 8192 + ty*8192 + i*1024}")
                a(f"s_add_u32 s39, s38, {ty*1024 + i*24576}")
                a(f"buffer_load_dwordx4 v{VW}, s[44:47], s39 offen lds")
        a("s_and_b32 s36, s36, 7")
        queue.extend([("a", c)] * 8)
    def waitq(tag):
        n = len(queue) - 1 - max(i for i, t in enumerate(queue) if t == tag)
        a(f"s_waitcnt vmcnt({n})")
    stamp(a, 2, 7)
    issue1(0)
    stamp(a, 3, 7)
    srd(a, 48, 18, 1024)
    a(f"s_mov_b32 m0, {LDS_GW}")
    a("s_nop 0")
    a("buffer_load_dwordx4 v3, s[48:51], 0 offen lds")
    queue.append(("a", 0))
    issue1(1)
    stamp(a, 4, 7)
    a("v_mov_b32 v9, 0")
    a("s_add_u32 s37, s2, s20")
    a("s_cmp_eq_u32 s37, 4")
    a("s_cbranch_scc0 K1_NOTAG")
    a("s_memrealtime s[56:57]")
    a("s_waitcnt lgkmcnt(0)")
    a("s_or_b32 s56, s56, 1")
    a("s_or_b32 s57, s57, 0x80000000")
    a("v_mov_b32 v4, s56")
    a("v_mov_b32 v5, s57")
    a("s_mov_b64 exec, 1")
    a("global_store_dwordx2 v9, v[4:5], s[66:67] sc1")
    a("s_mov_b64 exec, -1")
    a.label("K1_NOTAG")
    stamp(a, 1)
    a("v_and_b32 v5, 15, v2")
    a("v_lshlrev_b32 v7, 2, v6")
    a("v_xor_b32 v7, v7, v5")
    a("v_mul_u32_u24 v8, 3584, v6")
    a(f"v_lshl_add_u32 v{VG}, v7, 4, v8")
    a(f"v_xor_b32 v{VU}, 32, v{VG}")
    srd(a, 48, 12, 0x1c0000)
    srd(a, 52, 14, 0x1c0000)
    srd(a, 28, 10, WS_SIZE)
    a("s_lshl_b32 s40, s21, 17")
    a("s_lshl_b32 s41, s23, 15")
    a("s_add_u32 s40, s40, s41")
    a("s_mul_i32 s41, s23, 57344")
    a("s_lshl_b32 s42, s22, 8")
    a("s_add_u32 s41, s41, s42")
    a("s_lshl_b32 s42, s23, 12")
    a("s_mov_b32 s43, s63                     ; kc")
    if SPF:
        a("s_bitcmp1_b32 s23, 0")
        a("s_cselect_b64 s[56:57], s[14:15], s[12:13]")
        a("s_mov_b32 s58, 0x1c0000")
        a("s_mov_b32 s59, 0x20000")
        a("s_and_b32 s76, s2, 1")
        a("s_lshl_b32 s76, s76, 5")
        a("s_lshr_b32 s77, s2, 3")
        a("s_add_u32 s76, s76, s77                ; u")
        a("s_lshl_b32 s76, s76, 1")
        a("s_lshr_b32 s77, s23, 1")
        a("s_add_u32 s76, s76, s77")
        a("s_mul_i32 s76, s76, 14336              ; 4 rows")
        a("s_bfe_u32 s77, s2, 0x20001")
        a("s_lshl_b32 s77, s77, 10")
        a("s_add_u32 s76, s76, s77")
    def issue2(c, parts="xgu"):
        slot = ((c + 1) % 3) * S2
        a("s_lshl_b32 s37, s43, 7")
        a("s_add_u32 s37, s37, s40")
        a("s_mul_i32 s38, s43, 229376")
        a("s_add_u32 s38, s38, s41")
        for i in range(4):
            if "x" in parts:
                a(f"s_add_u32 m0, s42, {slot + i*1024}")
                a(f"s_add_u32 s39, s37, {i*8192}")
                a(f"buffer_load_dwordx4 v{VX1 if i & 1 else VX0}, s[24:27], s39 offen lds")
            if "g" in parts:
                a(f"s_add_u32 m0, s42, {slot + 16384 + i*1024}")
                a(f"s_add_u32 s39, s38, {i*14336}")
                a(f"buffer_load_dwordx4 v{VG}, s[48:51], s39 offen lds")
            if "u" in parts:
                a(f"s_add_u32 m0, s42, {slot + 32768 + i*1024}")
                a(f"s_add_u32 s39, s38, {i*14336}")
                a(f"buffer_load_dwordx4 v{VU}, s[52:55], s39 offen lds")
        if "u" in parts:
            a("s_add_u32 s43, s43, 1")
            a("s_and_b32 s43, s43, 7")
        queue.extend([("b", c)] * (4 * len(parts)))
    for c in range(6):
        waitq(("a", c))
        stamp(a, c + 1, 2)
        if c < 2:
            stamp(a, 5 + c, 7)
        a("s_barrier")
        stamp(a, c + 1, 4)
        if SPF and 1 <= c <= 4:
            for q in range(8):
                a(f"s_add_u32 s77, s76, {q*128}")
                a("s_buffer_load_dword s79, s[56:59], s77")
            a("s_add_u32 s76, s76, 3584")
        if c == 0:
            issue1(2)
            issue1(3)
        if 1 <= c <= 4:
            issue1(c + 3)
    a("global_load_dwordx2 v[60:61], v9, s[66:67] sc1")
    qsave = list(queue)
    a("s_cmp_ge_u32 s22, 14")
    a("s_cbranch_scc1 IDLE_L")
    issue2(0, "x")
    waitq(("a", 6))
    a("s_barrier")
    issue2(0, "gu")
    waitq(("a", 7))
    a("s_barrier")
    issue2(1, "xg")
    a("s_barrier                              ; barrier(8)")
    issue2(1, "u")
    stamp(a, 2)
    def get_tag():
        lab, done = a.newlabel("TAG"), a.newlabel("TAGD")
        a(f"s_mov_b32 s74, {SPIN}")
        a.label(lab)
        a("v_readfirstlane_b32 s68, v60")
        a("v_readfirstlane_b32 s69, v61")
        a("s_sub_u32 s74, s74, 1")
        a("s_cmp_eq_u32 s74, 0")
        a(f"s_cbranch_scc1 {done}")
        a("s_min_u32 s75, s68, s69")
        a("s_cmp_lg_u32 s75, 0")
        a(f"s_cbranch_scc1 {done}")
        a("s_sleep 2")
        a("global_load_dwordx2 v[60:61], v9, s[66:67] sc1")
        a("s_waitcnt vmcnt(0)")
        a(f"s_branch {lab}")
        a.label(done)
        a(f"v_mov_b32 v4, {LDS_TAG}")
        a("ds_write_b64 v4, v[60:61]")
        a("ds_write_b32 v4, v9 offset:8")
    def flag_a():
        lab = a.newlabel("FA")
        a("s_cmp_lg_u32 s23, 1")
        a(f"s_cbranch_scc1 {lab}")
        a("s_lshl_b32 s37, s61, 5")
        a("s_add_u32 s37, s37, s60")
        a("s_lshl_b32 s37, s37, 7")
        a(f"s_add_u32 s37, s37, {FL_A}")
        flag_store(a, "s37", 16)
        a.label(lab)
    def kv_setup():
        a("v_and_b32 v5, 31, v2")
        a("v_lshlrev_b32 v5, 7, v5                ; (lane&31)*128")
        a("s_and_b32 s56, s2, 7")
        a("s_lshl_b32 s56, s56, 12")
        a(f"s_add_u32 s56, s56, {FL_A}")
        a("s_lshl_b32 s57, s70, 16")
        a("s_lshl_b32 s58, s23, 10")
        a("s_add_u32 s57, s57, s58                ; head*64K + L*1K")
        a(f"s_mul_i32 s59, s23, {VP}")
        a(f"s_add_u32 s59, s59, {LDS_V}")
    def kv_loads(lo, hi, ldsreg, ldsstride, wsoff):
        n = hi - lo
        a(f"s_mul_i32 s44, s71, {n}")
        a("s_lshr_b32 s44, s44, 3")
        if not KVROT:
            a("s_mov_b32 s44, 0")
        for i in range(n):
            a(f"s_mul_i32 s45, s44, {ldsstride}")
            a(f"s_add_u32 s45, s45, {lo*ldsstride}")
            a(f"s_add_u32 m0, s45, s{ldsreg}")
            a("s_lshl_b32 s37, s44, 12")
            a("s_add_u32 s37, s37, s57")
            a(f"s_add_u32 s37, s37, {wsoff + lo*4096}")
            a(f"buffer_load_dwordx4 v3, s[28:31], s37 offen{SC} lds")
            if i < n - 1:
                a("s_add_u32 s44, s44, 1")
                a(f"s_cmp_eq_u32 s44, {n}")
                a("s_cselect_b32 s44, 0, s44")
    def k_loads(lo, hi):
        kv_loads(lo, hi, 58, 4096, WS_K)
    def v_loads(lo, hi):
        kv_loads(lo, hi, 59, 4 * VP, WS_V)
    def qg_loads():
        a("s_lshl_b32 s32, s70, 6")
        a("s_lshl_b32 s33, s71, 3")
        a("s_add_u32 s32, s32, s33")
        a("s_lshl_b32 s33, s23, 1")
        a("s_add_u32 s32, s32, s33")
        a("s_lshl_b32 s32, s32, 10")
        a("s_lshl_b32 s33, s23, 11")
        a(f"s_add_u32 m0, s33, {LDS_Q}")
        a("s_nop 0")
        a(f"buffer_load_dwordx4 v3, s[28:31], s32 offen{SC} lds")
        a(f"buffer_load_dwordx4 v3, s[28:31], s32 offen offset:1024{SC} lds")
    a("s_waitcnt lgkmcnt(0)")
    kv_setup()
    for c in range(8):
        if c == 7:
            a(f"s_waitcnt vmcnt({2 + 12})")
        else:
            waitq(("b", c))
        if c == 0:
            get_tag()
        if c == 6:
            a("s_waitcnt vmcnt(12)")
            a("v_xor_b32 v20, s68, v20")
            a("v_xor_b32 v21, s69, v21")
            a("v_or_b32 v20, v20, v21")
            a("v_cmp_ne_u32 vcc, 0, v20")
            a("s_nop 1")
            a("s_cmp_eq_u64 vcc, 0")
            a("s_cbranch_scc1 P2_AOK")
            poll(a, "s56", 5, 8)
            a.label("P2_AOK")
        if c < 6:
            stamp(a, c + 1, 3)
        a(f"s_barrier                              ; b({c})")
        if c < 6:
            stamp(a, c + 1, 5)
        if c == 2:
            flag_a()
        if c == 5:
            a("buffer_load_dwordx2 v[20:21], v5, s[28:31], s56 offen sc1")
        if 0 <= c <= 5:
            issue2(c + 2)
        if c == 6:
            qg_loads()
            k_loads(0, 12)
        if c == 7:
            k_loads(12, 16)
            v_loads(0, 7)
    a("s_waitcnt lgkmcnt(0)")
    a("s_barrier")
    v_loads(7, 16)
    a("s_branch K2_GEMM")
    a.label("IDLE_L")
    a("s_waitcnt vmcnt(0) lgkmcnt(0)")
    get_tag()
    a("s_barrier                              ; barrier(6)")
    a("s_barrier                              ; barrier(7)")
    a("s_barrier                              ; barrier(8)")
    stamp(a, 2)
    a("s_barrier                              ; I0")
    flag_a()
    kv_setup()
    poll(a, "s56", 5, 8)
    qg_loads()
    k_loads(0, 16)
    v_loads(0, 16)

    a.label("K2_GEMM")
    a(f"v_mul_u32_u24 v4, {VP}, v2")
    a(f"v_add_u32 v4, {LDS_V + 1024}, v4")
    for i in range(4):
        a(f"v_mov_b32 v{20+i}, 0x3f803f80")
        a(f"v_mov_b32 v{24+i}, 0")
    a("ds_write_b128 v4, v[20:23]")
    a("ds_write_b128 v4, v[24:27] offset:16")
    a(f"ds_write_b128 v4, v[20:23] offset:{4*VP}")
    a(f"ds_write_b128 v4, v[24:27] offset:{4*VP+16}")
    ND, NW = 28, 8
    NS = 3
    srd(a, 44, 16, 0x1c0000)
    srd(a, 48, 8, 0x80000)
    a("s_lshr_b32 s42, s2, 3")
    a("s_and_b32 s43, s42, 7")
    a("s_lshr_b32 s42, s42, 3")
    a("s_lshl_b32 s42, s42, 1")
    a("s_add_u32 s42, s42, s43")
    a("s_cmp_ge_u32 s42, 7")
    a("s_cselect_b32 s43, 7, 0")
    a("s_sub_u32 s42, s42, s43                ; 0..6")
    if not ROT:
        a("s_mov_b32 s42, 0")
    a("s_mov_b32 s52, s42")
    a(f"s_mul_i32 s32, s23, {ND}")
    a("s_lshl_b32 s43, s42, 2")
    a("s_add_u32 s32, s32, s43")
    a(f"s_mul_i32 s33, s72, {2*144*1024}")
    a(f"s_add_u32 s33, s33, {WS_ACT}")
    a("s_lshl_b32 s43, s32, 10")
    a("s_add_u32 s33, s33, s43")
    a(f"s_add_u32 s34, s33, {144*1024}")
    a("s_lshl_b32 s43, s73, 7")
    a("s_lshl_b32 s35, s32, 14")
    a("s_add_u32 s35, s35, s43")
    a("s_lshl_b32 s39, s23, 17")
    a("s_add_u32 s39, s39, s43")
    a(f"s_mul_i32 s53, s23, {NS*2048}")
    a(f"s_add_u32 s53, s53, {LDS_WS}")
    a("v_lshrrev_b32 v4, 3, v2")
    a("v_and_b32 v5, 7, v2")
    a("v_bfe_u32 v7, v2, 4, 1")
    a("v_lshlrev_b32 v7, 2, v7")
    a("v_xor_b32 v5, v5, v7")
    a("v_lshlrev_b32 v5, 4, v5")
    a("v_lshl_add_u32 v10, v4, 10, v5")
    a("v_add_u32 v11, 7168, v10")
    a("v_bfe_u32 v4, v2, 2, 2")
    a("v_lshrrev_b32 v5, 5, v2")
    a("v_lshl_add_u32 v5, v5, 2, v4")
    a("v_lshlrev_b32 v5, 7, v5")
    a("v_lshrrev_b32 v4, 1, v4")
    a("v_lshl_add_u32 v5, v4, 6, v5")
    a("v_bfe_u32 v4, v2, 4, 1")
    a("v_lshl_add_u32 v5, v4, 5, v5")
    a("v_and_b32 v4, 3, v2")
    a("v_lshl_add_u32 v5, v4, 3, v5")
    a("v_xor_b32 v13, 64, v5")
    a("v_add_u32 v12, s53, v5")
    a("v_add_u32 v13, s53, v13")
    GA = 16
    FR = 80
    D = 8
    queue = []
    def ld(dst, sr, k, tag):
        a(f"buffer_load_dwordx4 {v(dst,4)}, v3, s[28:31], s{sr} offen offset:{(k%4)*1024}{SC}")
        queue.append(tag)
    def aloads(k):
        b = FR + (k % D) * 16
        ld(b + 4, 33, k, ("a", k)); ld(b + 12, 34, k, ("a", k))
        if k % 4 == 3:
            a("s_add_u32 s42, s42, 1")
            a("s_cmp_eq_u32 s42, 7")
            a("s_movk_i32 s43, 4096")
            a(f"s_cselect_b32 s43, {(-6*4096) & 0xffffffff:#x}, s43")
            a("s_cselect_b32 s42, 0, s42")
            for sr in (33, 34):
                a(f"s_add_u32 s{sr}, s{sr}, s43")
    def wloads(k):
        a(f"s_add_u32 m0, s53, {(k % NS) * 2048}")
        sr, rs = (35, 44) if k < ND else (39, 48)
        a("s_nop 0")
        a(f"buffer_load_dwordx4 v10, s[{rs}:{rs+3}], s{sr} offen lds")
        a(f"buffer_load_dwordx4 v11, s[{rs}:{rs+3}], s{sr} offen offset:1024 lds")
        queue.extend([("w", k)] * 2)
        a(f"s_add_u32 s{sr}, s{sr}, 16384")
        if k < ND and k % 4 == 3:
            a("s_add_u32 s52, s52, 1")
            a("s_cmp_eq_u32 s52, 7")
            a(f"s_cselect_b32 s43, {(-28*16384) & 0xffffffff:#x}, 0")
            a("s_cselect_b32 s52, 0, s52")
            a("s_add_u32 s35, s35, s43")
    def waitfor(*tags):
        n = len(queue) - 1 - max(i for i, t in enumerate(queue) if t in tags)
        a(f"s_waitcnt vmcnt({n})")
    def wreads(k):
        b = FR + (k % D) * 16
        for n in range(2):
            for u in range(2):
                a(f"ds_read_b64_tr_b16 {v(b+8*n+2*u,2)}, v{12+n} offset:{(k % NS) * 2048 + u*1024}")
    def mm(k):
        b = FR + (k % D) * 16
        for n in range(2):
            for t in range(2):
                acc = GA + (n * 2 + t) * 16
                cin = "0" if k == 0 else v(acc, 16)
                a(f"{MF} {v(acc,16)}, {v(b+8*n,4)}, {v(b+4+8*t,4)}, {cin}")
    stamp(a, 3)
    a("s_waitcnt vmcnt(0) lgkmcnt(0)")
    a("s_barrier                              ; X1")
    a("s_setprio 3")
    a("s_barrier                              ; X2")
    a("s_cmp_lg_u32 s23, 1")
    a("s_cbranch_scc1 K2_NOB1")
    a("s_lshl_b32 s37, s21, 4")
    a("s_add_u32 s37, s37, s22")
    a("s_lshl_b32 s37, s37, 7")
    a(f"s_add_u32 s37, s37, {FL_B1}")
    flag_store(a, "s37", 16)
    a.label("K2_NOB1")
    if WARMW:
        a("s_lshr_b32 s54, s2, 3")
        a("s_and_b32 s54, s54, 7")
        a("s_lshl_b32 s55, s54, 2")
        a("s_add_u32 s55, s55, s23")
        a("s_mul_i32 s55, s55, 57344")
        a("s_add_u32 s55, s55, s43")
        a("v_min_u32 v14, 55, v2")
        a("v_lshlrev_b32 v14, 10, v14")
        a("buffer_load_dword v15, v14, s[44:47], s55 offen")
        a("s_lshl_b32 s55, s54, 2")
        a("s_add_u32 s55, s55, s23")
        a("s_lshl_b32 s55, s55, 14")
        a("s_add_u32 s55, s55, s43")
        a("v_and_b32 v14, 15, v2")
        a("v_lshlrev_b32 v14, 10, v14")
        a("buffer_load_dword v15, v14, s[48:51], s55 offen")
    for k in range(NS):
        wloads(k)
    a("s_setprio 3")
    a("v_min_u32 v6, 45, v2")
    a("v_lshlrev_b32 v6, 7, v6")
    a("s_lshr_b32 s24, s72, 1")
    a("s_lshl_b32 s24, s24, 11")
    a(f"s_add_u32 s24, s24, {FL_B1 - FL_A}")
    a(f"s_mov_b32 s25, {7*4096 - 14*128}")
    a("v_mov_b32 v7, s24")
    a("v_mov_b32 v8, s25")
    a("v_cmp_gt_u32 vcc, 14, v2")
    a("s_nop 1")
    a("v_cndmask_b32 v7, v8, v7, vcc")
    a("v_add_u32 v6, v6, v7")
    a(f"s_mov_b32 s24, {FL_A}")
    def g_to_lds():
        a("s_lshl_b32 s55, s71, 10")
        a(f"s_mov_b32 m0, {LDS_GQ}")
        a(f"s_add_u32 s55, s55, {WS_G}")
        a(f"buffer_load_dwordx4 v3, s[28:31], s55 offen{SC} lds")
        a("s_waitcnt vmcnt(0)")
    poll_shared(a, 2, [("s24", 6, 8, 4)], 20, lslp=4, extra=g_to_lds)
    a("v_and_b32 v6, 31, v2")
    a("v_lshlrev_b32 v6, 2, v6")
    a("s_lshl_b32 s55, s72, 8")
    a(f"s_add_u32 s55, s55, {WS_G}")
    a(f"buffer_load_dword v240, v6, s[28:31], s55 offen{SC}")
    a(f"buffer_load_dword v242, v6, s[28:31], s55 offen offset:128{SC}")
    stamp(a, 4)
    DA = 4
    a("s_setprio 0")
    for k in range(DA):
        aloads(k)
    for k in range(ND + NW):
        waitfor(("w", k), ("a", k))
        wreads(k)
        a("s_waitcnt lgkmcnt(0)")
        if k + NS < ND + NW:
            wloads(k + NS)
        if k + DA < ND:
            aloads(k + DA)
        if k < ND:
            mm(k)
    a("s_setprio 3")
    a("s_nop 7")
    a("v_sub_f32 v12, 1.0, v240")
    a("v_sub_f32 v14, 1.0, v242")
    a("s_nop 7")
    for n in range(2):
        for t in range(2):
            acc = GA + (n * 2 + t) * 16
            for j in range(0, 16, 2):
                a(f"v_pk_mul_f32 {v(acc+j,2)}, {v(acc+j,2)}, {v(12+2*t,2)} op_sel_hi:[1,0]")
    a("v_and_b32 v4, 31, v2")
    a(f"v_mul_u32_u24 v4, {RP}, v4")
    a("v_lshrrev_b32 v6, 5, v2")
    a("v_lshl_add_u32 v4, v6, 4, v4")
    a(f"s_mul_i32 s32, s23, {64*RP}")
    a("v_add_u32 v4, s32, v4")
    a("s_lshl_b32 s24, s72, 2")
    a("s_add_u32 s24, s24, s23")
    a(f"s_mul_i32 s24, s24, {8*3072}")
    a(f"s_add_u32 s24, s24, {WS_O}")
    a("v_and_b32 v6, 7, v2")
    a("v_lshlrev_b32 v6, 7, v6")
    a("s_lshl_b32 s26, s72, 12")
    a("s_lshl_b32 s25, s23, 10")
    a("s_add_u32 s26, s26, s25")
    a(f"s_add_u32 s26, s26, {FL_C}")
    a("s_mov_b32 s54, 0")
    a(f"s_mov_b32 s74, {SPIN}")
    stamp(a, 5)
    stamp(a, 1, 8)
    XR = 208
    a.label("K3_ROUND")
    a("v_mov_b32 v8, 0")
    a("s_mov_b64 exec, 0xff")
    if ATPOLL:
        a("buffer_atomic_or v8, v6, s[28:31], s26 offen sc0 sc1")
    else:
        a("buffer_load_dword v8, v6, s[28:31], s26 offen sc1")
    a("s_waitcnt vmcnt(0)")
    a("v_cmp_eq_u32 vcc, s68, v8")
    a("s_mov_b64 exec, -1")
    a("s_cmp_eq_u32 s74, 0")
    a("s_cselect_b32 s55, 0xff, vcc_lo")
    a("s_andn2_b32 s55, s55, s54")
    a("s_cbranch_scc1 K3_SOME")
    a("s_sub_u32 s74, s74, 1")
    a(f"s_sleep {TSLP}")
    a("s_branch K3_ROUND")
    a.label("K3_SOME")
    for kk in range(NW):
        b = FR + ((ND + kk) % D) * 16
        a(f"s_bitcmp1_b32 s55, {kk}")
        a(f"s_cbranch_scc0 K3_L{kk}")
        a(f"s_add_u32 s25, s24, {kk*3072}")
        a(f"buffer_load_dwordx4 {v(b+4,4)}, v3, s[28:31], s25 offen{SC}")
        a(f"buffer_load_dwordx4 {v(b+12,4)}, v3, s[28:31], s25 offen offset:1024{SC}")
        a(f"buffer_load_dwordx4 {v(XR+4*kk,4)}, v3, s[28:31], s25 offen offset:2048{SC}")
        a.label(f"K3_L{kk}")
    a("s_sub_u32 s74, s74, 1")
    a("s_cselect_b32 s75, 0, -1")
    a("s_waitcnt vmcnt(0)")
    for kk in range(NW):
        b = FR + ((ND + kk) % D) * 16
        a(f"s_bitcmp1_b32 s55, {kk}")
        a(f"s_cbranch_scc0 K3_C{kk}")
        a(f"v_xor_b32 v8, s68, v{b+7}")
        a(f"v_xor_b32 v9, s68, v{b+15}")
        a(f"v_xor_b32 v10, s68, v{XR+4*kk+3}")
        a("v_or3_b32 v8, v8, v9, v10")
        a("v_and_b32 v8, s75, v8")
        a("v_cmp_ne_u32 vcc, 0, v8")
        a(f"v_mov_b32 v{b+7}, v{XR+4*kk}")
        a(f"v_mov_b32 v{b+15}, v{XR+4*kk+1}")
        a("s_cmp_eq_u64 vcc, 0")
        a(f"s_cbranch_scc0 K3_C{kk}")
        mm(ND + kk)
        a(f"s_bitset1_b32 s54, {kk}")
        a.label(f"K3_C{kk}")
    a("s_cmp_lg_u32 s54, 0xff")
    a("s_cbranch_scc1 K3_ROUND")
    stamp(a, 6)
    stamp(a, 2, 8)
    a("s_barrier                              ; Y0")
    for i in range(3, 6):
        stamp(a, i, 8)
    a("s_nop 7")
    a("s_nop 7")
    for n in range(2):
        for t in range(2):
            acc = GA + (n * 2 + t) * 16
            for g in range(4):
                a(f"ds_write_b128 v4, {v(acc+4*g,4)} offset:{t*32*RP + n*128 + g*32}")
    a.label("K3_REDUCE")
    srd(a, 24, 64, 0x200000)
    a("s_lshl_b32 s32, s20, 6")
    a("v_add_u32 v0, s32, v2                  ; tid")
    a("v_lshrrev_b32 v7, 3, v0                ; token")
    a("v_and_b32 v5, 7, v0")
    a(f"v_mul_u32_u24 v6, {RP}, v7")
    a("v_lshl_add_u32 v6, v5, 5, v6")
    a("v_lshlrev_b32 v7, 10, v7")
    a("v_lshl_add_u32 v7, v5, 4, v7")
    a("s_lshl_b32 s32, s72, 16")
    a("s_lshl_b32 s33, s73, 7")
    a("s_add_u32 s32, s32, s33")
    a("s_waitcnt lgkmcnt(0)")
    a("s_barrier                              ; Y1")
    stamp(a, 6, 8)
    for w in range(4):
        a(f"ds_read_b128 {v(208+8*w,4)}, v6 offset:{w*64*RP}")
        a(f"ds_read_b128 {v(212+8*w,4)}, v6 offset:{w*64*RP+16}")
    for w in range(1, 4):
        a(f"s_waitcnt lgkmcnt({2*(3-w)})")
        for j in range(0, 8, 2):
            a(f"v_pk_add_f32 {v(208+j,2)}, {v(208+j,2)}, {v(208+8*w+j,2)}")
    for j in range(0, 8, 2):
        a(f"v_cvt_pk_bf16_f32 v{16+j//2}, v{208+j}, v{208+j+1}")
    a("buffer_store_dwordx4 v[16:19], v7, s[24:27], s32 offen")
    stamp_flush(a, 8)
    a.label("K_EXIT")
    a("s_endpgm")
    a.label("K_END")

def main():
    hdr = open("cdna_kernels/" + NAME + ".s.ref").read().split("\n")
    top = [l for l in hdr if l.startswith(";") and "@launch" not in l]
    out = "\n".join(top) + "\n"
    out += f"; @launch grid=(256,1,1) block=(512,1,1) lds={LDS_TOTAL}\n"
    out += '.amdgcn_target "amdgcn-amd-amdhsa--gfx950"\n.text\n'
    a = Asm()
    gen(a)
    out += a.text()
    out += '.section .rodata,"a"\n'
    out += kernel_desc(KNAME, 256, 102)
    path = sys.argv[1] if len(sys.argv) > 1 else "cdna_kernels/" + NAME + ".s"
    open(path, "w").write(out)

main()
```

```python
import sys, math, os
from asmlib import *

NAME = "gated_mix__softmax_full_mha__geglu_ffn__prompt"
KNAME = NAME + "_kernel"
LOG2E = 1.4426950408889634
def env(n, d): return int(os.environ.get(n, str(d)))
PROF = env("PROF", 0)
ROT = env("ROT", 1)
PADEND = env("PADEND", 0)
PADATT = env("PADATT", 0)
DBGWG = env("DBGWG", -1)
TLBW = env("TLBW", 0)
PFW = env("PFW", 0)
PFI = env("PFI", 1)
PFX = env("PFX", 0)
KVROT = env("KVROT", 1)
WARMW = env("WARMW", 1)
ATPOLL = env("ATPOLL", 1)
HINTW = env("HINTW", 0)
TSLP = env("TSLP", 4)
SPF = env("SPF", 0)
CODEPF = env("CODEPF", 1)
SLP = env("SLP", 4)

WS_Q = 0x0
WS_K = 0x200000
WS_V = 0x400000
WS_ACT = 0x600000
WS_O = 0xF00000
WS_G = 0x1240000
WS_FL = 0x1280000
FL_A = WS_FL
FL_B1 = WS_FL + 0x8000
FL_B2 = WS_FL + 0x10000
FL_C = WS_FL + 0x20000
WS_STAMP = 0x1800000
WS_SIZE = 0x2000000

S1, S2 = 32768, 49152
LDS_GW = 162176
LDS_TAG = 163328
LDS_SYNC = LDS_TAG + 8
LDS_TOTAL = 163840
LDS_V = 65536
VP = 1056
LDS_Q = 147456
LDS_GQ = LDS_GW
LDS_WS = 137344 + 128
RP = 272

SC = " sc1"
SPIN = 200000
MF = "v_mfma_f32_32x32x16_bf16"

def srd(a, d, base, nbytes):
    a(f"s_mov_b32 s{d}, s{base}")
    a(f"s_mov_b32 s{d+1}, s{base+1}")
    a(f"s_mov_b32 s{d+2}, {nbytes:#x}")
    a(f"s_mov_b32 s{d+3}, 0x20000")

def stamp(a, i, lvl=1):
    if PROF and (PROF == lvl or i in (0, 7)):
        a("s_memrealtime s[96:97]")
        a("s_memtime s[98:99]")
        a("s_waitcnt lgkmcnt(0)")
        a(f"s_mov_b32 s{80+i}, s96")
        a(f"s_mov_b32 s{88+i}, s98")

def stamp_flush(a, n):
    if PROF:
        a("s_waitcnt vmcnt(0)")
        stamp(a, n - 1)
        a("s_lshl_b32 s78, s2, 4")
        a("s_add_u32 s78, s78, s20")
        a("s_lshl_b32 s78, s78, 6")
        a(f"s_add_u32 s78, s78, {WS_STAMP}")
        a("v_mov_b32 v1, 0")
        for i in range(n):
            a(f"v_mov_b32 v0, s{80+i}")
            a(f"buffer_store_dword v0, v1, s[28:31], s78 offen offset:{4*i}")
            a("s_nop 1")
            a(f"v_mov_b32 v0, s{88+i}")
            a(f"buffer_store_dword v0, v1, s[28:31], s78 offen offset:{32+4*i}")
            a("s_nop 1")
        a("s_waitcnt vmcnt(0)")
        if DBGWG >= 0:
            a(f"s_cmp_lg_u32 s2, {DBGWG}")
            a("s_cbranch_scc1 DBG_SKIP")
            a("s_and_b32 s78, s20, 3")
            a("s_cmp_lg_u32 s78, 0")
            a("s_cbranch_scc1 DBG_SKIP")
            a("s_mul_i32 s78, s20, 7")
            a("v_mov_b32 v1, s78")
            for i in range(1, n):
                a(f"s_sub_u32 s79, s{80+i}, s80")
                a("v_mov_b32 v0, s79")
                a(f"global_store_dword v1, v0, s[66:67] offset:{4+4*i}")
                a("s_nop 1")
            a("s_waitcnt vmcnt(0)")
            a.label("DBG_SKIP")

def pad_until(a, ticks):
    lab = a.newlabel("PAD")
    a.label(lab)
    a("s_memrealtime s[96:97]")
    a("s_waitcnt lgkmcnt(0)")
    a("s_sub_u32 s96, s96, s68")
    a(f"s_cmp_lt_u32 s96, {ticks}")
    a(f"s_cbranch_scc1 {lab}")

def flag_store(a, soff, vtmp):
    a(f"v_mov_b32 v{vtmp}, s68")
    a(f"v_mov_b32 v{vtmp+1}, s69")
    a(f"v_mov_b32 v{vtmp+2}, 0")
    a("s_mov_b64 exec, 1")
    a(f"buffer_store_dwordx2 {v(vtmp,2)}, v{vtmp+2}, s[28:31], {soff} offen sc1")
    a("s_mov_b64 exec, -1")

def poll(a, soff, voff, vtmp, slp=None):
    lab = a.newlabel("POLL")
    done = a.newlabel("POLLD")
    a(f"s_mov_b32 s74, {SPIN}")
    a.label(lab)
    a(f"buffer_load_dwordx2 {v(vtmp,2)}, v{voff}, s[28:31], {soff} offen sc1")
    a("s_waitcnt vmcnt(0)")
    a(f"v_xor_b32 v{vtmp}, s68, v{vtmp}")
    a(f"v_xor_b32 v{vtmp+1}, s69, v{vtmp+1}")
    a(f"v_or_b32 v{vtmp}, v{vtmp}, v{vtmp+1}")
    a(f"v_cmp_ne_u32 vcc, 0, v{vtmp}")
    a("s_sub_u32 s74, s74, 1")
    a("s_cmp_eq_u32 s74, 0")
    a(f"s_cbranch_scc1 {done}")
    a("s_cmp_eq_u64 vcc, 0")
    a(f"s_cbranch_scc1 {done}")
    a(f"s_sleep {SLP if slp is None else slp}")
    a(f"s_branch {lab}")
    a.label(done)

def poll_shared(a, stage, polls, vtmp, lslp=1, extra=None):
    other = a.newlabel("PSO")
    done = a.newlabel("PSD")
    a(f"v_mov_b32 v{vtmp+3}, {LDS_SYNC}")
    a("s_cmp_lg_u32 s23, 0")
    a(f"s_cbranch_scc1 {other}")
    for p in polls:
        poll(a, *p)
    if extra:
        extra()
    a(f"v_mov_b32 v{vtmp}, {stage}")
    a(f"ds_write_b32 v{vtmp+3}, v{vtmp}")
    a(f"s_branch {done}")
    a.label(other)
    a(f"s_mov_b32 s74, {SPIN*8}")
    lab = a.newlabel("PSL")
    a.label(lab)
    a(f"ds_read_b32 v{vtmp}, v{vtmp+3}")
    a("s_waitcnt lgkmcnt(0)")
    a(f"v_readfirstlane_b32 s75, v{vtmp}")
    a("s_sub_u32 s74, s74, 1")
    a("s_cmp_eq_u32 s74, 0")
    a(f"s_cbranch_scc1 {done}")
    a(f"s_cmp_ge_u32 s75, {stage}")
    a(f"s_cbranch_scc1 {done}")
    a(f"s_sleep {lslp}")
    a(f"s_branch {lab}")
    a.label(done)

def cvt_tile(a, acc, dst, lo=0, hi=16):
    for i in range(lo, hi, 2):
        a(f"v_cvt_pk_bf16_f32 v{dst + (i - lo)//2}, v{acc+i}, v{acc+i+1}")

def gen(a):
    kernel_header(a, KNAME)
    a("s_cmp_ge_u32 s2, 256")
    a("s_cbranch_scc1 K_EXIT")
    a("s_load_dwordx4 s[4:7], s[0:1], 0       ; x, wqkv")
    a("s_load_dwordx2 s[8:9], s[0:1], 16      ; wo")
    a("s_load_dwordx2 s[10:11], s[0:1], 80    ; ws")
    a("s_load_dwordx4 s[12:15], s[0:1], 32")
    a("s_load_dwordx4 s[16:19], s[0:1], 48")
    a("s_load_dwordx4 s[64:67], s[0:1], 64")
    a("v_lshrrev_b32 v1, 6, v0")
    a("v_and_b32 v2, 63, v0                   ; lane")
    a("v_readfirstlane_b32 s20, v1")
    a("v_lshlrev_b32 v3, 4, v2                ; lane*16")
    stamp(a, 0)
    a("s_and_b32 s24, s2, 1                   ; xh")
    a("s_bfe_u32 s25, s2, 0x20001             ; xq")
    a("s_lshr_b32 s26, s2, 3                  ; j")
    a("s_lshl_b32 s60, s24, 4")
    a("s_and_b32 s27, s26, 15")
    a("s_add_u32 s60, s60, s27                ; tb")
    a("s_lshr_b32 s27, s26, 4")
    a("s_lshl_b32 s61, s25, 1")
    a("s_add_u32 s61, s61, s27                ; hg")
    a("s_lshl_b32 s27, s27, 2")
    a("s_add_u32 s62, s26, s27")
    a(f"s_and_b32 s62, s62, {7 if ROT else 0}  ; rot1")
    a("s_and_b32 s63, s26, 7")
    a("s_lshl_b32 s21, s24, 3")
    a("s_add_u32 s21, s21, s63                ; rb")
    a("s_lshr_b32 s27, s26, 3")
    a("s_lshl_b32 s22, s25, 2")
    a("s_add_u32 s22, s22, s27                ; cb2")
    a("s_lshl_b32 s72, s25, 3")
    a("s_add_u32 s72, s72, s63                ; rb64")
    a("s_lshl_b32 s73, s24, 2")
    a("s_add_u32 s73, s73, s27                ; cb64")
    if not ROT:
        a("s_mov_b32 s63, 0")
    a("s_and_b32 s70, s2, 7")
    a("s_lshl_b32 s70, s70, 2")
    a("s_and_b32 s27, s26, 3")
    a("s_add_u32 s70, s70, s27                ; head")
    a("s_lshr_b32 s71, s26, 2                 ; qb")
    a("s_cmp_ge_u32 s20, 4")
    a("s_cbranch_scc1 K1_LOADER")

    ACC = 128
    XA = [4, 5, 6, 7]
    WA = [8, 9, 10, 11]
    GWA = 12
    a("s_and_b32 s23, s20, 1                  ; tp")
    a("s_lshr_b32 s24, s20, 1")
    a("v_bfe_u32 v16, v2, 4, 1                ; gsel")
    a("v_lshrrev_b32 v17, 5, v2               ; h")
    a("v_bfe_u32 v18, v2, 2, 2                ; r")
    a("v_and_b32 v19, 3, v2                   ; c")
    a("v_lshl_add_u32 v20, v17, 3, v18        ; 8h+r")
    a("v_and_b32 v21, 31, v2")
    a("v_lshlrev_b32 v21, 7, v21")
    a("v_bfe_u32 v22, v2, 1, 3")
    a("v_xor_b32 v22, v22, v17")
    a("v_lshl_add_u32 v13, v22, 4, v21")
    a("s_lshl_b32 s25, s23, 12")
    a(f"s_add_u32 s25, s25, {S1}")
    for s_ in range(4):
        a(f"v_xor_b32 v{XA[s_]}, {32*s_}, v13")
        a(f"v_add_u32 v{XA[s_]}, s25, v{XA[s_]}")
    a("v_lshrrev_b32 v21, 1, v18")
    a("v_xor_b32 v21, s24, v21")
    a("v_lshlrev_b32 v21, 6, v21")
    a("v_lshl_add_u32 v21, v20, 7, v21")
    a("v_lshl_add_u32 v21, v16, 5, v21")
    a("v_lshl_add_u32 v21, v19, 3, v21")
    a(f"v_add_u32 v{WA[0]}, {8192 + S1}, v21")
    a("s_lshl_b32 s26, s62, 7")
    a(f"s_add_u32 s26, s26, {LDS_GW}")
    a("v_lshlrev_b32 v21, 4, v17")
    a(f"v_add_u32 v{GWA}, s26, v21")
    a("v_lshlrev_b32 v14, 14, v16")
    a("v_lshl_add_u32 v14, v20, 8, v14")
    a("v_lshl_add_u32 v14, v19, 3, v14")
    a("v_add_u32 v14, 16384, v14")
    a("v_lshl_add_u32 v15, v18, 1, v16")
    for i in range(64):
        a(f"v_mov_b32 v{ACC+i}, 0")
    a("s_waitcnt lgkmcnt(0)")
    srd(a, 28, 10, WS_SIZE)
    a(f"s_mov_b32 s25, {S1}")
    a("s_mov_b32 s26, 8")
    a("s_mov_b32 s33, s62                     ; kc")
    if PFW:
        a("s_cmp_eq_u32 s24, 0")
        a("s_cselect_b64 s[44:45], s[12:13], s[14:15]")
        a("s_mov_b32 s46, 0x1c0000")
        a("s_mov_b32 s47, 0x20000")
        a("v_lshrrev_b32 v21, 1, v2")
        a("v_mul_u32_u24 v21, 3584, v21")
        a("v_and_b32 v22, 1, v2")
        a("v_lshl_add_u32 v23, v22, 7, v21")
        a("s_lshl_b32 s48, s63, 1")
        a("s_add_u32 s48, s48, s23")
        a("s_mul_i32 s48, s48, 114688")
        a("s_lshl_b32 s49, s22, 8")
        a("s_add_u32 s48, s48, s49")
    if PFX:
        srd(a, 52, 4, 0x200000)
        a("s_add_u32 s56, s62, s20")
        a("s_and_b32 s56, s56, 7")
        a("s_lshl_b32 s56, s56, 7")
        a("s_lshl_b32 s57, s60, 16")
        a("s_add_u32 s56, s56, s57")
        a("v_lshlrev_b32 v21, 10, v2")
        a("s_cmp_eq_u32 s20, 0")
        a("s_cbranch_scc1 P1_NOPFX")
        a("buffer_load_dword v22, v21, s[52:55], s56 offen")
        a.label("P1_NOPFX")
    if PFW == 1:
        a("buffer_load_dword v22, v23, s[44:47], s48 offen")
    if TLBW:
        a("v_min_u32 v21, 9, v2")
        a("v_lshlrev_b32 v21, 21, v21")
        a("buffer_load_dword v22, v21, s[28:31], 0 offen sc1")
        a("v_mov_b32 v21, 0")
        a("global_load_dword v22, v21, s[64:65]")
        a("global_load_dword v22, v21, s[16:17]")
        a("global_load_dword v22, v21, s[8:9]")
        a("global_load_dword v22, v21, s[12:13]")
        a("global_load_dword v22, v21, s[14:15]")
    if PFI:
        a("s_cmp_lt_u32 s22, 14")
        a("s_cbranch_scc1 P1_NOPFI")
        a("s_and_b32 s40, s2, 1")
        a("s_lshl_b32 s40, s40, 4")
        a("s_lshr_b32 s41, s2, 3")
        a("s_add_u32 s40, s40, s41")
        a("s_sub_u32 s40, s40, 16")
        a("s_lshl_b32 s40, s40, 1")
        a("s_add_u32 s40, s40, s23")
        a("s_mul_i32 s41, s40, 28672")
        a("s_cmp_eq_u32 s24, 0")
        a("s_cselect_b64 s[44:45], s[12:13], s[14:15]")
        a("s_mov_b32 s46, 0x1c0000")
        a("s_mov_b32 s47, 0x20000")
        a("v_lshlrev_b32 v23, 7, v2")
        for i in range(4):
            a("buffer_load_dword v22, v23, s[44:47], s41 offen")
            a("s_add_u32 s41, s41, 8192")
        if PFI > 1:
            a("s_cselect_b64 s[44:45], s[16:17], s[8:9]".replace("s_cselect_b64", "s_cmp_eq_u32 s24, 0\ns_cselect_b64"))
            a("s_mov_b32 s46, 0x80000")
            a("s_cselect_b32 s46, 0x1c0000, s46")
            a("s_mul_i32 s41, s40, 28672")
            a("s_lshl_b32 s42, s40, 13")
            a("s_cselect_b32 s41, s41, s42".replace("s_cselect_b32", "s_cmp_eq_u32 s24, 0\ns_cselect_b32"))
            for i in range(4):
                a("buffer_load_dword v22, v23, s[44:47], s41 offen")
                a("s_add_u32 s41, s41, 8192")
        a.label("P1_NOPFI")
    if CODEPF:
        a("s_getpc_b64 s[50:51]")
        a.label("PC_HERE")
        a(f"s_sub_u32 s50, s50, PC_HERE-{KNAME}")
        a("s_subb_u32 s51, s51, 0")
        a("s_lshr_b32 s49, s2, 3")
        a("s_lshl_b32 s49, s49, 2")
        a("s_add_u32 s49, s49, s20")
        a("s_lshl_b32 s49, s49, 8")
        a("v_lshlrev_b32 v21, 2, v2")
        a("v_add_u32 v21, s49, v21")
        a(f"v_min_u32 v21, K_END-{KNAME}-4, v21")
        a("global_load_dword v21, v21, s[50:51]")
    B1 = [24, 44, 64, 84]
    def reads1(s_, buf, wg):
        L = [f"ds_read_b128 {v(buf,4)}, v{XA[s_]}"]
        for ty in range(3):
            for u in range(2):
                L.append(f"ds_read_b64_tr_b16 {v(buf+4+4*ty+2*u,2)}, v{WA[0]} offset:{ty*8192 + (16*s_+4*u)*128}")
        if wg:
            L.append(f"ds_read_b128 {v(buf+16,4)}, v{GWA} offset:{32*s_}")
        return L
    def mf1(buf, wg):
        X = v(buf, 4)
        L = [f"{MF} {v(ACC,16)}, {v(buf+4,4)}, {X}, {v(ACC,16)}",
             f"{MF} {v(ACC+16,16)}, {v(buf+8,4)}, {X}, {v(ACC+16,16)}",
             f"{MF} {v(ACC+32,16)}, {X}, {v(buf+12,4)}, {v(ACC+32,16)}"]
        if wg:
            L.append(f"{MF} {v(ACC+48,16)}, {v(buf+16,4)}, {X}, {v(ACC+48,16)}")
        return L
    a("s_cmp_ge_u32 s22, 14")
    a("s_cselect_b32 s59, s24, 1")
    a("s_cmp_eq_u32 s59, 0")
    a("s_cbranch_scc0 P1_V1")
    for var in range(2):
        wg = var == 0
        if var == 1:
            a.label("P1_V1")
        a("s_barrier")
        stamp(a, 1)
        if PFW == 2:
            a("buffer_load_dword v22, v23, s[44:47], s48 offen")
        for l in reads1(0, B1[0], wg) + reads1(1, B1[1], wg):
            a(l)
        a.raw(".p2align 6")
        a.label(f"P1_LOOP{var}")
        nr = 8 if wg else 7
        for s_ in range(4):
            a(f"s_waitcnt lgkmcnt({0 if s_ == 2 else nr})")
            if s_ < 2:
                fill = reads1(s_ + 2, B1[s_ + 2], wg)
                if s_ == 1:
                    fill += [f"s_add_u32 s25, s25, {S1}", f"s_cmp_eq_u32 s25, {4*S1}",
                             f"s_mov_b32 s27, {S1}", f"s_cselect_b32 s27, {(-3*S1) & 0xffffffff:#x}, s27", "s_cselect_b32 s25, 0, s25"]
                    fill += [f"v_add_u32 v{r}, s27, v{r}" for r in XA + [WA[0]]]
                    if wg:
                        fill += ["s_add_u32 s33, s33, 1", "s_cmp_eq_u32 s33, 8", "s_movk_i32 s27, 128",
                                 f"s_cselect_b32 s27, {(-7*128) & 0xffffffff:#x}, s27", "s_cselect_b32 s33, 0, s33",
                                 f"v_add_u32 v{GWA}, s27, v{GWA}"]
            elif s_ == 2:
                fill = ["s_barrier"] + reads1(0, B1[0], wg)
            else:
                fill = reads1(1, B1[1], wg)
                if PFW >= 3:
                    fill += [f"s_cmp_lg_u32 s26, {11 - PFW}", f"s_cbranch_scc1 P1_NT{var}", "buffer_load_dword v22, v23, s[44:47], s48 offen", f"P1_NT{var}:"]
                fill += ["s_sub_u32 s26, s26, 1", "s_cmp_lg_u32 s26, 0"]
            for l in interleave(mf1(B1[s_], wg), fill, [2, 3, 3, 20] if wg else [3, 2, 20]):
                a(l)
        a(f"s_cbranch_scc1 P1_LOOP{var}")
        if var == 0:
            a("s_branch P1_EPI")
    a.label("P1_EPI")
    stamp(a, 2)
    a("s_lshl_b32 s32, s60, 1")
    a("s_add_u32 s32, s32, s23")
    a("s_lshl_b32 s36, s61, 2")
    a("s_lshl_b32 s37, s24, 1")
    a("s_add_u32 s36, s36, s37")
    a("s_lshl_b32 s36, s36, 6")
    a("s_add_u32 s36, s36, s32")
    a("s_lshl_b32 s36, s36, 10")
    a("v_and_b32 v16, 0x33, v2")
    a("v_bfe_u32 v17, v2, 2, 1")
    a("v_lshl_or_b32 v16, v17, 3, v16")
    a("v_bfe_u32 v17, v2, 3, 1")
    a("v_lshl_or_b32 v16, v17, 2, v16")
    a("v_lshlrev_b32 v16, 4, v16              ; K voffset")
    a("v_bfe_u32 v17, v2, 4, 1")
    a("v_lshlrev_b32 v17, 16, v17")
    a("v_lshrrev_b32 v18, 5, v2")
    a("v_lshl_or_b32 v17, v18, 8, v17")
    a("v_and_b32 v18, 15, v2")
    a("v_lshl_or_b32 v17, v18, 4, v17         ; V voffset")
    a(f"s_mov_b32 s34, {fh(LOG2E*0.25)}")
    a("s_mov_b32 s35, s34")
    T = 104
    cvt_tile(a, ACC + 16, T + 8)
    a(f"s_add_u32 s37, s36, {WS_K}")
    a(f"s_add_u32 s38, s36, {WS_K + 65536}")
    a(f"buffer_store_dwordx4 {v(T+8,4)}, v16, s[28:31], s37 offen{SC}")
    a(f"buffer_store_dwordx4 {v(T+12,4)}, v16, s[28:31], s38 offen{SC}")
    cvt_tile(a, ACC + 32, T + 16)
    a(f"s_add_u32 s37, s36, {WS_V}")
    a(f"buffer_store_dwordx4 {v(T+16,4)}, v17, s[28:31], s37 offen{SC}")
    a(f"buffer_store_dwordx4 {v(T+20,4)}, v17, s[28:31], s37 offen offset:512{SC}")
    for j in range(0, 16, 2):
        a(f"v_pk_mul_f32 {v(ACC+j,2)}, {v(ACC+j,2)}, s[34:35]")
    cvt_tile(a, ACC, T)
    a(f"s_add_u32 s38, s36, {WS_Q + 65536}")
    a(f"buffer_store_dwordx4 {v(T,4)}, v3, s[28:31], s36 offen{SC}")
    a(f"buffer_store_dwordx4 {v(T+4,4)}, v3, s[28:31], s38 offen{SC}")
    a("s_cmp_eq_u32 s59, 0")
    a("s_cbranch_scc0 P1_NOG")
    a(f"v_mul_f32 v19, {fh(-LOG2E)}, v{ACC+48}")
    a("v_exp_f32 v19, v19")
    a("v_and_b32 v18, 31, v2")
    a("v_add_f32 v19, 1.0, v19")
    a("v_rcp_f32 v19, v19                   ; g")
    a("v_lshlrev_b32 v18, 2, v18")
    a("s_lshl_b32 s37, s32, 7")
    a(f"s_add_u32 s37, s37, {WS_G}")
    a(f"buffer_store_dword v19, v18, s[28:31], s37 offen{SC}")
    a.label("P1_NOG")
    a("s_cmp_ge_u32 s22, 14")
    a("s_cbranch_scc1 IDLE_C")

    a("s_lshl_b32 s25, s23, 13")
    a(f"s_add_u32 s25, s25, {S2}")
    a(f"v_add_u32 v14, {S2}, v14")
    for s_ in range(4):
        a(f"v_xor_b32 v{XA[s_]}, {32*s_}, v13")
        a(f"v_add_u32 v{XA[s_]}, s25, v{XA[s_]}")
    a("s_lshl_b32 s25, s24, 2")
    for t in range(4):
        a(f"s_add_u32 s27, s25, {t}")
        a("v_xor_b32 v16, s27, v15")
        a(f"v_lshl_add_u32 v{WA[t]}, v16, 5, v14")
    for i in range(128):
        a(f"v_mov_b32 v{ACC+i}, 0")
    a(f"s_mov_b32 s25, {S2}")
    a("s_mov_b32 s26, 8")
    B2 = [24, 48]
    def reads2(s_, buf):
        L = [f"ds_read_b128 {v(buf,4)}, v{XA[s_]}"]
        for t in range(4):
            for u in range(2):
                L.append(f"ds_read_b64_tr_b16 {v(buf+8+4*t+2*u,2)}, v{WA[t]} offset:{(16*s_+4*u)*256}")
            if t == 0:
                L.append(f"ds_read_b128 {v(buf+4,4)}, v{XA[s_]} offset:4096")
        return L
    def mf2(buf):
        L = []
        for t in range(4):
            for i in range(2):
                acc = ACC + (i * 4 + t) * 16
                L.append(f"{MF} {v(acc,16)}, {v(buf+8+4*t,4)}, {v(buf+4*i,4)}, {v(acc,16)}")
        return L
    a("s_waitcnt lgkmcnt(0)")
    a("s_barrier                              ; b(0)")
    for l in reads2(0, B2[0]):
        a(l)
    a.raw(".p2align 6")
    a.label("P2_LOOP")
    for s_ in range(4):
        a("s_waitcnt lgkmcnt(0)")
        if s_ < 3:
            fill = reads2(s_ + 1, B2[(s_ + 1) & 1])
            gaps = [3, 3, 2, 2, 0, 0, 0, 0]
            if s_ == 1:
                fill += ["s_cmp_lg_u32 s26, 7", "s_cbranch_scc1 P2_ND", "s_waitcnt vmcnt(0)", "P2_ND:"]
                gaps = [3, 3, 2, 2, 0, 4, 0, 0]
            if s_ == 2:
                fill += [f"s_add_u32 s25, s25, {S2}", f"s_cmp_eq_u32 s25, {3*S2}",
                         f"s_mov_b32 s27, {S2}", f"s_cselect_b32 s27, {(-2*S2) & 0xffffffff:#x}, s27", "s_cselect_b32 s25, 0, s25"]
                fill += [f"v_add_u32 v{r}, s27, v{r}" for r in XA + WA]
                gaps = [3, 3, 2, 2, 5, 3, 3, 2]
        else:
            fill = ["s_barrier"] + reads2(0, B2[0]) + ["s_sub_u32 s26, s26, 1", "s_cmp_lg_u32 s26, 0"]
            gaps = [1, 3, 3, 2, 2, 2, 0, 0]
        for l in interleave(mf2(B2[s_ & 1]), fill, gaps):
            a(l)
    a("s_cbranch_scc1 P2_LOOP")
    stamp(a, 3)
    c0 = -2.0 * 0.7978845608028654 * LOG2E
    c1 = c0 * 0.044715
    a(f"s_mov_b32 s34, {fh(c1)}")
    a("s_mov_b32 s35, s34")
    a(f"v_mov_b32 v4, {fh(c0)}")
    a("v_mov_b32 v5, v4")
    a("v_mov_b32 v6, 1.0")
    a("v_mov_b32 v7, 1.0")
    a("s_lshl_b32 s32, s21, 2")
    a("s_lshl_b32 s33, s23, 1")
    a("s_add_u32 s32, s32, s33                ; tt0")
    a("s_mul_i32 s36, s32, 144")
    a("s_lshl_b32 s37, s22, 3")
    a("s_add_u32 s36, s36, s37")
    a("s_lshl_b32 s37, s24, 2")
    a("s_add_u32 s36, s36, s37")
    a("s_lshl_b32 s36, s36, 10")
    a(f"s_add_u32 s36, s36, {WS_ACT}")
    a(f"s_add_u32 s37, s36, {144*1024}")
    a("s_waitcnt lgkmcnt(0)")
    TB = 16
    for i in range(2):
        for t in range(4):
            acc = ACC + (i * 4 + t) * 16
            out = 56 + 4 * (i * 4 + t)
            for j in range(0, 8, 2):
                a(f"v_pk_mul_f32 {v(TB+j,2)}, {v(acc+j,2)}, {v(acc+j,2)}")
            for j in range(0, 8, 2):
                a(f"v_pk_fma_f32 {v(TB+j,2)}, {v(TB+j,2)}, s[34:35], v[4:5]")
            for j in range(0, 8, 2):
                a(f"v_pk_mul_f32 {v(TB+j,2)}, {v(TB+j,2)}, {v(acc+j,2)}")
            for j in range(8):
                a(f"v_exp_f32 v{TB+j}, v{TB+j}")
            for j in range(0, 4, 2):
                a(f"v_pk_mul_f32 {v(acc+8+j,2)}, {v(acc+8+j,2)}, {v(acc+j,2)}")
            for j in range(0, 8, 2):
                a(f"v_pk_add_f32 {v(TB+j,2)}, {v(TB+j,2)}, v[6:7]")
            for j in range(8):
                a(f"v_rcp_f32 v{TB+j}, v{TB+j}")
            for j in range(4, 8, 2):
                a(f"v_pk_mul_f32 {v(acc+8+j,2)}, {v(acc+8+j,2)}, {v(acc+j,2)}")
            for j in range(0, 8, 2):
                a(f"v_pk_mul_f32 {v(acc+8+j,2)}, {v(acc+8+j,2)}, {v(TB+j,2)}")
            cvt_tile(a, acc, out, 8, 16)
            a(f"buffer_store_dwordx4 {v(out,4)}, v3, s[28:31], s{36+i} offen offset:{t*1024}{SC}")
    a("s_branch K2_ATTN")
    a.label("IDLE_C")
    a("s_waitcnt vmcnt(0) lgkmcnt(0)")
    a("s_barrier")
    stamp(a, 3)

    a.label("K2_ATTN")
    Q = [8, 12]
    G = [4, 5]
    KB = [16, 20]
    VB = [[24, 28], [32, 36]]
    IDX = 6
    VK, VV0, VV1 = 40, 41, 42
    C = [96, 112]
    S = [128, 144]
    P = [160, 176]
    O = [192, 208]
    a(f"v_mov_b32 v{IDX}, 0xdddd")
    def vaddr_init():
        a(f"v_mov_b32 v{VK}, v3")
        a("v_lshrrev_b32 v43, 5, v2")
        a("v_and_b32 v44, 15, v2")
        a("v_lshlrev_b32 v44, 4, v44")
        a("v_lshl_or_b32 v44, v43, 8, v44")
        a(f"v_add_u32 v44, {LDS_V}, v44")
        a("v_add_u32 v45, 512, v44")
        a("v_and_b32 v43, 31, v2")
        a("v_subrev_u32 v47, 20, v43")
        a("v_cmp_gt_u32 vcc, 8, v47")
        a(f"v_mov_b32 v46, {LDS_V + 1040}")
        a(f"v_mov_b32 v47, {LDS_V + 1040 + 2*VP}")
        a("v_cndmask_b32 v46, v46, v47, vcc")
        a("v_and_b32 v47, 27, v43")
        a("v_cmp_eq_u32 vcc, 16, v47")
        a("v_subrev_u32 v47, 16, v46")
        a("s_nop 0")
        a("v_cndmask_b32 v46, v46, v47, vcc")
        a("v_cmp_gt_u32 vcc, 16, v43")
        a("s_nop 1")
        a(f"v_cndmask_b32 v{VV0}, v46, v44, vcc")
        a(f"v_cndmask_b32 v{VV1}, v46, v45, vcc")
    vaddr_init()
    a("s_lshl_b32 s24, s20, 11")
    a(f"s_add_u32 s24, s24, {LDS_Q}")
    a("v_add_u32 v43, s24, v3")
    a("s_lshl_b32 s24, s20, 8")
    a(f"s_add_u32 s24, s24, {LDS_GQ}")
    a("v_and_b32 v7, 31, v2")
    a("v_lshlrev_b32 v7, 2, v7")
    a("v_add_u32 v7, s24, v7                  ; g address")
    a(f"v_mov_b32 v45, {LDS_TAG}")
    for q in range(2):
        for i in range(16):
            a(f"v_mov_b32 v{O[q]+i}, 0")
    a("s_mov_b32 s26, 0")
    a("s_barrier                              ; X1")
    a("s_setprio 2")
    stamp(a, 4)
    a(f"ds_read_b128 {v(Q[0],4)}, v43")
    a(f"ds_read_b128 {v(KB[0],4)}, v{VK}")
    a(f"ds_read_b128 {v(Q[1],4)}, v43 offset:1024")
    a("ds_read_b64 v[46:47], v45")
    a("s_waitcnt lgkmcnt(0)")
    for q in range(2):
        a(f"{MF} {v(S[q],16)}, {v(KB[0],4)}, {v(Q[q],4)}, 0")
    a("v_readfirstlane_b32 s68, v46")
    a("v_readfirstlane_b32 s69, v47")
    a("s_nop 7")
    a("s_nop 1")
    def maxtree(src, dst, acc=False):
        if acc:
            for i in range(0, 16, 2):
                a(f"v_max3_f32 v{dst}, v{src+i}, v{src+i+1}, v{dst}")
        else:
            a(f"v_max_f32 v{dst}, v{src}, v{src+1}")
            for i in range(2, 16, 2):
                a(f"v_max3_f32 v{dst}, v{src+i}, v{src+i+1}, v{dst}")
    for q in range(2):
        maxtree(S[q], 44 + q)
    a.label("K2_SETMAX")
    a(f"ds_read_b128 {v(KB[0],4)}, v{VK}")
    a(f"ds_read_b128 {v(VB[0][0],4)}, v{VV0}")
    a(f"ds_read_b128 {v(VB[0][1],4)}, v{VV1}")
    a(f"ds_read_b128 {v(KB[1],4)}, v{VK} offset:1024")
    for q in range(2):
        a(f"v_mov_b32 v{46+q}, v{44+q}")
    a("s_nop 1")
    for q in range(2):
        a(f"v_permlane32_swap_b32 v{44+q}, v{46+q}")
    for q in range(2):
        a(f"v_max_f32 v{44+q}, v{44+q}, v{46+q}")
    for i in range(16):
        a(f"v_sub_f32 v{C[0]+i}, 0, v44")
    a("s_waitcnt lgkmcnt(0)")
    a("s_nop 0")
    a(f"{MF} {v(S[0],16)}, {v(KB[0],4)}, {v(Q[0],4)}, {v(C[0],16)}")
    for i in range(16):
        a(f"v_sub_f32 v{C[1]+i}, 0, v45")
    for i in range(8):
        a(f"v_mov_b32 v{P[1]+8+i}, 0")
    for i in range(4):
        a(f"v_mov_b32 v{VB[1][1]+i}, 0")
    a("s_cmp_lg_u32 s26, 0")
    a("s_cbranch_scc1 K2_NOBAR")
    a("s_waitcnt vmcnt(0)")
    a("s_barrier")
    a.label("K2_NOBAR")
    if PADATT:
        pad_until(a, PADATT)
    a("s_mov_b32 s27, 7")
    U = 8
    a.raw(".p2align 6")
    a.label("K2_LOOP")
    def exps(q, lo, hi):
        for i in range(lo, hi):
            a(f"v_exp_f32 v{P[q]+i}, v{S[q]+i}")
    def smf(q, vb, half):
        a(f"v_smfmac_f32_32x32x32_bf16 {v(O[q],16)}, {v(vb,4)}, {v(P[q]+8*half,8)}, v{IDX}")
    for u in range(U):
        b = u & 1
        a(f"{MF} {v(S[1],16)}, {v(KB[b],4)}, {v(Q[1],4)}, {v(C[1],16)}")
        exps(0, 0, 5)
        smf(1, VB[b ^ 1][1], 1)
        a(f"ds_read_b128 {v(VB[b^1][0],4)}, v{VV0} offset:{(u+1)*VP}")
        exps(0, 5, 11)
        smf(0, VB[b][0], 0)
        a(f"ds_read_b128 {v(VB[b^1][1],4)}, v{VV1} offset:{(u+1)*VP}")
        exps(0, 11, 16)
        a(f"{MF} {v(S[0],16)}, {v(KB[b^1],4)}, {v(Q[0],4)}, {v(C[0],16)}")
        a(f"ds_read_b128 {v(KB[b],4)}, v{VK} offset:{(u+2)*1024}")
        exps(1, 0, 5)
        smf(0, VB[b][1], 1)
        if u == U - 1:
            a("s_sub_u32 s27, s27, 1")
        exps(1, 5, 11)
        smf(1, VB[b][0], 0)
        a("s_waitcnt lgkmcnt(0)")
        if u == U - 1:
            a(f"v_add_u32 v{VK}, {U*1024}, v{VK}")
            a(f"v_add_u32 v{VV0}, {U*VP}, v{VV0}")
            a(f"v_add_u32 v{VV1}, {U*VP}, v{VV1}")
        exps(1, 11, 16)
    a("s_cbranch_scc0 K2_LOOP")
    a("s_nop 1")
    smf(1, VB[(U - 1) & 1][1], 1)
    stamp(a, 5)
    stamp(a, 1, 8)
    a(f"v_mov_b32 v46, {LDS_SYNC}")
    a("ds_read_b32 v47, v46")
    a(f"ds_read_b32 v{G[0]}, v7")
    a(f"ds_read_b32 v{G[1]}, v7 offset:128")
    a("s_lshl_b32 s24, s71, 2")
    a("s_add_u32 s24, s24, s20")
    a("s_lshl_b32 s24, s24, 5")
    a("s_add_u32 s24, s24, s70")
    a("s_mul_i32 s25, s24, 3072")
    a(f"s_add_u32 s25, s25, {WS_O}")
    a("v_mov_b32 v44, 0")
    for i in range(9):
        a(f"v_fma_f32 v44, v{O[0]+i}, 0, v44")
    a("s_nop 1")
    for i in range(9):
        a(f"v_fma_f32 v44, v{O[1]+i}, 0, v44")
    a("v_cmp_u_f32 vcc, v44, v44")
    a("s_cmp_lg_u32 s26, 0")
    a("s_cbranch_scc1 K2_FIN")
    a("s_nop 1")
    a("s_cmp_eq_u64 vcc, 0")
    a("s_cbranch_scc1 K2_FIN")
    a("s_waitcnt lgkmcnt(0)")
    a("s_mov_b32 s26, 100")
    vaddr_init()
    for q in range(2):
        for i in range(16):
            a(f"v_mov_b32 v{O[q]+i}, 0")
    a("v_mov_b32 v44, 0xff800000")
    a("v_mov_b32 v45, 0xff800000")
    a("v_mov_b32 v43, v3")
    a("s_mov_b32 s27, 64")
    a.label("K2_MAXLOOP")
    a(f"ds_read_b128 {v(KB[0],4)}, v43")
    a("v_add_u32 v43, 1024, v43")
    a("s_waitcnt lgkmcnt(0)")
    for q in range(2):
        a(f"{MF} {v(S[q],16)}, {v(KB[0],4)}, {v(Q[q],4)}, 0")
    a("s_nop 7")
    a("s_nop 7")
    for q in range(2):
        maxtree(S[q], 44 + q, acc=True)
    a("s_sub_u32 s27, s27, 1")
    a("s_cmp_lg_u32 s27, 0")
    a("s_cbranch_scc1 K2_MAXLOOP")
    a("s_branch K2_SETMAX")
    a.label("K2_FIN")
    for q in range(2):
        a(f"v_rcp_f32 v{48+q}, v{O[q]+8}")
    a(f"s_mov_b32 s74, {SPIN*8}")
    a.label("K2_GW")
    a("s_waitcnt lgkmcnt(0)")
    a("v_readfirstlane_b32 s75, v47")
    a("s_sub_u32 s74, s74, 1")
    a("s_cmp_eq_u32 s74, 0")
    a("s_cbranch_scc1 K2_GOK")
    a("s_cmp_ge_u32 s75, 2")
    a("s_cbranch_scc1 K2_GOK")
    a("s_sleep 1")
    a("ds_read_b32 v47, v46")
    a(f"ds_read_b32 v{G[0]}, v7")
    a(f"ds_read_b32 v{G[1]}, v7 offset:128")
    a("s_branch K2_GW")
    a.label("K2_GOK")
    for q in range(2):
        a(f"v_mul_f32 v{44+2*q}, v{48+q}, v{G[q]}")
    GR = S[0]
    for r in (3, 7, 10, 11):
        a(f"v_mov_b32 v{GR+r}, s68")
    for q in range(2):
        for i in range(0, 8, 2):
            a(f"v_pk_mul_f32 {v(O[q]+i,2)}, {v(O[q]+i,2)}, {v(44+2*q,2)} op_sel_hi:[1,0]")
        for i in range(0, 8, 2):
            dst = GR + 4 * q + i // 2 if i < 6 else GR + 8 + q
            a(f"v_cvt_pk_bf16_f32 v{dst}, v{O[q]+i}, v{O[q]+i+1}")
        a(f"buffer_store_dwordx4 {v(GR+4*q,4)}, v3, s[28:31], s25 offen offset:{q*1024}{SC}")
    a(f"buffer_store_dwordx4 {v(GR+8,4)}, v3, s[28:31], s25 offen offset:2048{SC}")
    a("s_lshl_b32 s24, s24, 7")
    a(f"s_add_u32 s24, s24, {FL_C}")
    if HINTW:
        a(f"s_waitcnt vmcnt(0)")
    a("s_mov_b64 exec, 1")
    a(f"buffer_store_dword v{GR+3}, v3, s[28:31], s24 offen sc1")
    a("s_mov_b64 exec, -1")
    a("s_setprio 0")
    stamp(a, 6)
    for i in range(2, 6):
        stamp(a, i, 8)
    a("s_barrier                              ; Y0")
    a("s_branch K3_REDUCE")

    a.label("K1_LOADER")
    a("s_sub_u32 s23, s20, 4                  ; L")
    VX0, VX1, VW, VG, VU = 10, 11, 12, 13, 14
    a("v_lshrrev_b32 v4, 3, v2")
    a("v_and_b32 v5, 7, v2")
    a("v_lshrrev_b32 v6, 4, v2")
    a("v_xor_b32 v7, v5, v6")
    a("v_lshlrev_b32 v7, 4, v7")
    a(f"v_lshl_add_u32 v{VX0}, v4, 10, v7")
    a(f"v_xor_b32 v{VX1}, 64, v{VX0}")
    a("v_and_b32 v7, 1, v6")
    a("v_lshlrev_b32 v7, 2, v7")
    a("v_xor_b32 v7, v7, v5")
    a("v_mul_u32_u24 v8, 3072, v4")
    a(f"v_lshl_add_u32 v{VW}, v7, 4, v8")
    a("s_waitcnt lgkmcnt(0)")
    stamp(a, 1, 7)
    srd(a, 24, 4, 0x200000)
    srd(a, 44, 6, 0x180000)
    a("s_lshl_b32 s32, s60, 16")
    a("s_lshl_b32 s33, s23, 14")
    a("s_add_u32 s32, s32, s33")
    a("s_mul_i32 s33, s23, 49152")
    a("s_lshl_b32 s34, s61, 7")
    a("s_add_u32 s33, s33, s34")
    a("s_lshl_b32 s35, s23, 11")
    a("s_mov_b32 s36, s62                     ; kc")
    queue = []
    def issue1(c):
        slot = ((c + 1) % 4) * S1
        a("s_lshl_b32 s37, s36, 7")
        a("s_add_u32 s37, s37, s32")
        a("s_mul_i32 s38, s36, 196608")
        a("s_add_u32 s38, s38, s33")
        a(f"s_add_u32 m0, s35, {slot}")
        a("s_add_u32 s39, s37, 8192")
        a(f"buffer_load_dwordx4 v{VX0}, s[24:27], s37 offen lds")
        a(f"s_add_u32 m0, s35, {slot + 1024}")
        a("s_add_u32 s36, s36, 1")
        a(f"buffer_load_dwordx4 v{VX1}, s[24:27], s39 offen lds")
        for ty in range(3):
            for i in range(2):
                a(f"s_add_u32 m0, s35, {slot + 8192 + ty*8192 + i*1024}")
                a(f"s_add_u32 s39, s38, {ty*1024 + i*24576}")
                a(f"buffer_load_dwordx4 v{VW}, s[44:47], s39 offen lds")
        a("s_and_b32 s36, s36, 7")
        queue.extend([("a", c)] * 8)
    def waitq(tag):
        n = len(queue) - 1 - max(i for i, t in enumerate(queue) if t == tag)
        a(f"s_waitcnt vmcnt({n})")
    stamp(a, 2, 7)
    issue1(0)
    stamp(a, 3, 7)
    srd(a, 48, 18, 1024)
    a(f"s_mov_b32 m0, {LDS_GW}")
    a("s_nop 0")
    a("buffer_load_dwordx4 v3, s[48:51], 0 offen lds")
    queue.append(("a", 0))
    issue1(1)
    stamp(a, 4, 7)
    a("v_mov_b32 v9, 0")
    a("s_add_u32 s37, s2, s20")
    a("s_cmp_eq_u32 s37, 4")
    a("s_cbranch_scc0 K1_NOTAG")
    a("s_memrealtime s[56:57]")
    a("s_waitcnt lgkmcnt(0)")
    a("s_or_b32 s56, s56, 1")
    a("s_or_b32 s57, s57, 0x80000000")
    a("v_mov_b32 v4, s56")
    a("v_mov_b32 v5, s57")
    a("s_mov_b64 exec, 1")
    a("global_store_dwordx2 v9, v[4:5], s[66:67] sc1")
    a("s_mov_b64 exec, -1")
    a.label("K1_NOTAG")
    stamp(a, 1)
    a("v_and_b32 v5, 15, v2")
    a("v_lshlrev_b32 v7, 2, v6")
    a("v_xor_b32 v7, v7, v5")
    a("v_mul_u32_u24 v8, 3584, v6")
    a(f"v_lshl_add_u32 v{VG}, v7, 4, v8")
    a(f"v_xor_b32 v{VU}, 32, v{VG}")
    srd(a, 48, 12, 0x1c0000)
    srd(a, 52, 14, 0x1c0000)
    srd(a, 28, 10, WS_SIZE)
    a("s_lshl_b32 s40, s21, 17")
    a("s_lshl_b32 s41, s23, 15")
    a("s_add_u32 s40, s40, s41")
    a("s_mul_i32 s41, s23, 57344")
    a("s_lshl_b32 s42, s22, 8")
    a("s_add_u32 s41, s41, s42")
    a("s_lshl_b32 s42, s23, 12")
    a("s_mov_b32 s43, s63                     ; kc")
    if SPF:
        a("s_bitcmp1_b32 s23, 0")
        a("s_cselect_b64 s[56:57], s[14:15], s[12:13]")
        a("s_mov_b32 s58, 0x1c0000")
        a("s_mov_b32 s59, 0x20000")
        a("s_and_b32 s76, s2, 1")
        a("s_lshl_b32 s76, s76, 5")
        a("s_lshr_b32 s77, s2, 3")
        a("s_add_u32 s76, s76, s77                ; u")
        a("s_lshl_b32 s76, s76, 1")
        a("s_lshr_b32 s77, s23, 1")
        a("s_add_u32 s76, s76, s77")
        a("s_mul_i32 s76, s76, 14336              ; 4 rows")
        a("s_bfe_u32 s77, s2, 0x20001")
        a("s_lshl_b32 s77, s77, 10")
        a("s_add_u32 s76, s76, s77")
    def issue2(c, parts="xgu"):
        slot = ((c + 1) % 3) * S2
        a("s_lshl_b32 s37, s43, 7")
        a("s_add_u32 s37, s37, s40")
        a("s_mul_i32 s38, s43, 229376")
        a("s_add_u32 s38, s38, s41")
        for i in range(4):
            if "x" in parts:
                a(f"s_add_u32 m0, s42, {slot + i*1024}")
                a(f"s_add_u32 s39, s37, {i*8192}")
                a(f"buffer_load_dwordx4 v{VX1 if i & 1 else VX0}, s[24:27], s39 offen lds")
            if "g" in parts:
                a(f"s_add_u32 m0, s42, {slot + 16384 + i*1024}")
                a(f"s_add_u32 s39, s38, {i*14336}")
                a(f"buffer_load_dwordx4 v{VG}, s[48:51], s39 offen lds")
            if "u" in parts:
                a(f"s_add_u32 m0, s42, {slot + 32768 + i*1024}")
                a(f"s_add_u32 s39, s38, {i*14336}")
                a(f"buffer_load_dwordx4 v{VU}, s[52:55], s39 offen lds")
        if "u" in parts:
            a("s_add_u32 s43, s43, 1")
            a("s_and_b32 s43, s43, 7")
        queue.extend([("b", c)] * (4 * len(parts)))
    for c in range(6):
        waitq(("a", c))
        stamp(a, c + 1, 2)
        if c < 2:
            stamp(a, 5 + c, 7)
        a("s_barrier")
        stamp(a, c + 1, 4)
        if SPF and 1 <= c <= 4:
            for q in range(8):
                a(f"s_add_u32 s77, s76, {q*128}")
                a("s_buffer_load_dword s79, s[56:59], s77")
            a("s_add_u32 s76, s76, 3584")
        if c == 0:
            issue1(2)
            issue1(3)
        if 1 <= c <= 4:
            issue1(c + 3)
    a("global_load_dwordx2 v[60:61], v9, s[66:67] sc1")
    qsave = list(queue)
    a("s_cmp_ge_u32 s22, 14")
    a("s_cbranch_scc1 IDLE_L")
    issue2(0, "x")
    waitq(("a", 6))
    a("s_barrier")
    issue2(0, "gu")
    waitq(("a", 7))
    a("s_barrier")
    issue2(1, "xg")
    a("s_barrier                              ; barrier(8)")
    issue2(1, "u")
    stamp(a, 2)
    def get_tag():
        lab, done = a.newlabel("TAG"), a.newlabel("TAGD")
        a(f"s_mov_b32 s74, {SPIN}")
        a.label(lab)
        a("v_readfirstlane_b32 s68, v60")
        a("v_readfirstlane_b32 s69, v61")
        a("s_sub_u32 s74, s74, 1")
        a("s_cmp_eq_u32 s74, 0")
        a(f"s_cbranch_scc1 {done}")
        a("s_min_u32 s75, s68, s69")
        a("s_cmp_lg_u32 s75, 0")
        a(f"s_cbranch_scc1 {done}")
        a("s_sleep 2")
        a("global_load_dwordx2 v[60:61], v9, s[66:67] sc1")
        a("s_waitcnt vmcnt(0)")
        a(f"s_branch {lab}")
        a.label(done)
        a(f"v_mov_b32 v4, {LDS_TAG}")
        a("ds_write_b64 v4, v[60:61]")
        a("ds_write_b32 v4, v9 offset:8")
    def flag_a():
        lab = a.newlabel("FA")
        a("s_cmp_lg_u32 s23, 1")
        a(f"s_cbranch_scc1 {lab}")
        a("s_lshl_b32 s37, s61, 5")
        a("s_add_u32 s37, s37, s60")
        a("s_lshl_b32 s37, s37, 7")
        a(f"s_add_u32 s37, s37, {FL_A}")
        flag_store(a, "s37", 16)
        a.label(lab)
    def kv_setup():
        a("v_and_b32 v5, 31, v2")
        a("v_lshlrev_b32 v5, 7, v5                ; (lane&31)*128")
        a("s_and_b32 s56, s2, 7")
        a("s_lshl_b32 s56, s56, 12")
        a(f"s_add_u32 s56, s56, {FL_A}")
        a("s_lshl_b32 s57, s70, 16")
        a("s_lshl_b32 s58, s23, 10")
        a("s_add_u32 s57, s57, s58                ; head*64K + L*1K")
        a(f"s_mul_i32 s59, s23, {VP}")
        a(f"s_add_u32 s59, s59, {LDS_V}")
    def kv_loads(lo, hi, ldsreg, ldsstride, wsoff):
        n = hi - lo
        a(f"s_mul_i32 s44, s71, {n}")
        a("s_lshr_b32 s44, s44, 3")
        if not KVROT:
            a("s_mov_b32 s44, 0")
        for i in range(n):
            a(f"s_mul_i32 s45, s44, {ldsstride}")
            a(f"s_add_u32 s45, s45, {lo*ldsstride}")
            a(f"s_add_u32 m0, s45, s{ldsreg}")
            a("s_lshl_b32 s37, s44, 12")
            a("s_add_u32 s37, s37, s57")
            a(f"s_add_u32 s37, s37, {wsoff + lo*4096}")
            a(f"buffer_load_dwordx4 v3, s[28:31], s37 offen{SC} lds")
            if i < n - 1:
                a("s_add_u32 s44, s44, 1")
                a(f"s_cmp_eq_u32 s44, {n}")
                a("s_cselect_b32 s44, 0, s44")
    def k_loads(lo, hi):
        kv_loads(lo, hi, 58, 4096, WS_K)
    def v_loads(lo, hi):
        kv_loads(lo, hi, 59, 4 * VP, WS_V)
    def qg_loads():
        a("s_lshl_b32 s32, s70, 6")
        a("s_lshl_b32 s33, s71, 3")
        a("s_add_u32 s32, s32, s33")
        a("s_lshl_b32 s33, s23, 1")
        a("s_add_u32 s32, s32, s33")
        a("s_lshl_b32 s32, s32, 10")
        a("s_lshl_b32 s33, s23, 11")
        a(f"s_add_u32 m0, s33, {LDS_Q}")
        a("s_nop 0")
        a(f"buffer_load_dwordx4 v3, s[28:31], s32 offen{SC} lds")
        a(f"buffer_load_dwordx4 v3, s[28:31], s32 offen offset:1024{SC} lds")
    a("s_waitcnt lgkmcnt(0)")
    kv_setup()
    for c in range(8):
        if c == 7:
            a(f"s_waitcnt vmcnt({2 + 12})")
        else:
            waitq(("b", c))
        if c == 0:
            get_tag()
        if c == 6:
            a("s_waitcnt vmcnt(12)")
            a("v_xor_b32 v20, s68, v20")
            a("v_xor_b32 v21, s69, v21")
            a("v_or_b32 v20, v20, v21")
            a("v_cmp_ne_u32 vcc, 0, v20")
            a("s_nop 1")
            a("s_cmp_eq_u64 vcc, 0")
            a("s_cbranch_scc1 P2_AOK")
            poll(a, "s56", 5, 8)
            a.label("P2_AOK")
        if c < 6:
            stamp(a, c + 1, 3)
        a(f"s_barrier                              ; b({c})")
        if c < 6:
            stamp(a, c + 1, 5)
        if c == 2:
            flag_a()
        if c == 5:
            a("buffer_load_dwordx2 v[20:21], v5, s[28:31], s56 offen sc1")
        if 0 <= c <= 5:
            issue2(c + 2)
        if c == 6:
            qg_loads()
            k_loads(0, 12)
        if c == 7:
            k_loads(12, 16)
            v_loads(0, 7)
    a("s_waitcnt lgkmcnt(0)")
    a("s_barrier")
    v_loads(7, 16)
    a("s_branch K2_GEMM")
    a.label("IDLE_L")
    a("s_waitcnt vmcnt(0) lgkmcnt(0)")
    get_tag()
    a("s_barrier                              ; barrier(6)")
    a("s_barrier                              ; barrier(7)")
    a("s_barrier                              ; barrier(8)")
    stamp(a, 2)
    a("s_barrier                              ; I0")
    flag_a()
    kv_setup()
    poll(a, "s56", 5, 8)
    qg_loads()
    k_loads(0, 16)
    v_loads(0, 16)

    a.label("K2_GEMM")
    a(f"v_mul_u32_u24 v4, {VP}, v2")
    a(f"v_add_u32 v4, {LDS_V + 1024}, v4")
    for i in range(4):
        a(f"v_mov_b32 v{20+i}, 0x3f803f80")
        a(f"v_mov_b32 v{24+i}, 0")
    a("ds_write_b128 v4, v[20:23]")
    a("ds_write_b128 v4, v[24:27] offset:16")
    a(f"ds_write_b128 v4, v[20:23] offset:{4*VP}")
    a(f"ds_write_b128 v4, v[24:27] offset:{4*VP+16}")
    ND, NW = 28, 8
    NS = 3
    srd(a, 44, 16, 0x1c0000)
    srd(a, 48, 8, 0x80000)
    a("s_lshr_b32 s42, s2, 3")
    a("s_and_b32 s43, s42, 7")
    a("s_lshr_b32 s42, s42, 3")
    a("s_lshl_b32 s42, s42, 1")
    a("s_add_u32 s42, s42, s43")
    a("s_cmp_ge_u32 s42, 7")
    a("s_cselect_b32 s43, 7, 0")
    a("s_sub_u32 s42, s42, s43                ; 0..6")
    if not ROT:
        a("s_mov_b32 s42, 0")
    a("s_mov_b32 s52, s42")
    a(f"s_mul_i32 s32, s23, {ND}")
    a("s_lshl_b32 s43, s42, 2")
    a("s_add_u32 s32, s32, s43")
    a(f"s_mul_i32 s33, s72, {2*144*1024}")
    a(f"s_add_u32 s33, s33, {WS_ACT}")
    a("s_lshl_b32 s43, s32, 10")
    a("s_add_u32 s33, s33, s43")
    a(f"s_add_u32 s34, s33, {144*1024}")
    a("s_lshl_b32 s43, s73, 7")
    a("s_lshl_b32 s35, s32, 14")
    a("s_add_u32 s35, s35, s43")
    a("s_lshl_b32 s39, s23, 17")
    a("s_add_u32 s39, s39, s43")
    a(f"s_mul_i32 s53, s23, {NS*2048}")
    a(f"s_add_u32 s53, s53, {LDS_WS}")
    a("v_lshrrev_b32 v4, 3, v2")
    a("v_and_b32 v5, 7, v2")
    a("v_bfe_u32 v7, v2, 4, 1")
    a("v_lshlrev_b32 v7, 2, v7")
    a("v_xor_b32 v5, v5, v7")
    a("v_lshlrev_b32 v5, 4, v5")
    a("v_lshl_add_u32 v10, v4, 10, v5")
    a("v_add_u32 v11, 7168, v10")
    a("v_bfe_u32 v4, v2, 2, 2")
    a("v_lshrrev_b32 v5, 5, v2")
    a("v_lshl_add_u32 v5, v5, 2, v4")
    a("v_lshlrev_b32 v5, 7, v5")
    a("v_lshrrev_b32 v4, 1, v4")
    a("v_lshl_add_u32 v5, v4, 6, v5")
    a("v_bfe_u32 v4, v2, 4, 1")
    a("v_lshl_add_u32 v5, v4, 5, v5")
    a("v_and_b32 v4, 3, v2")
    a("v_lshl_add_u32 v5, v4, 3, v5")
    a("v_xor_b32 v13, 64, v5")
    a("v_add_u32 v12, s53, v5")
    a("v_add_u32 v13, s53, v13")
    GA = 16
    FR = 80
    D = 8
    queue = []
    def ld(dst, sr, k, tag):
        a(f"buffer_load_dwordx4 {v(dst,4)}, v3, s[28:31], s{sr} offen offset:{(k%4)*1024}{SC}")
        queue.append(tag)
    def aloads(k):
        b = FR + (k % D) * 16
        ld(b + 4, 33, k, ("a", k)); ld(b + 12, 34, k, ("a", k))
        if k % 4 == 3:
            a("s_add_u32 s42, s42, 1")
            a("s_cmp_eq_u32 s42, 7")
            a("s_movk_i32 s43, 4096")
            a(f"s_cselect_b32 s43, {(-6*4096) & 0xffffffff:#x}, s43")
            a("s_cselect_b32 s42, 0, s42")
            for sr in (33, 34):
                a(f"s_add_u32 s{sr}, s{sr}, s43")
    def wloads(k):
        a(f"s_add_u32 m0, s53, {(k % NS) * 2048}")
        sr, rs = (35, 44) if k < ND else (39, 48)
        a("s_nop 0")
        a(f"buffer_load_dwordx4 v10, s[{rs}:{rs+3}], s{sr} offen lds")
        a(f"buffer_load_dwordx4 v11, s[{rs}:{rs+3}], s{sr} offen offset:1024 lds")
        queue.extend([("w", k)] * 2)
        a(f"s_add_u32 s{sr}, s{sr}, 16384")
        if k < ND and k % 4 == 3:
            a("s_add_u32 s52, s52, 1")
            a("s_cmp_eq_u32 s52, 7")
            a(f"s_cselect_b32 s43, {(-28*16384) & 0xffffffff:#x}, 0")
            a("s_cselect_b32 s52, 0, s52")
            a("s_add_u32 s35, s35, s43")
    def waitfor(*tags):
        n = len(queue) - 1 - max(i for i, t in enumerate(queue) if t in tags)
        a(f"s_waitcnt vmcnt({n})")
    def wreads(k):
        b = FR + (k % D) * 16
        for n in range(2):
            for u in range(2):
                a(f"ds_read_b64_tr_b16 {v(b+8*n+2*u,2)}, v{12+n} offset:{(k % NS) * 2048 + u*1024}")
    def mm(k):
        b = FR + (k % D) * 16
        for n in range(2):
            for t in range(2):
                acc = GA + (n * 2 + t) * 16
                cin = "0" if k == 0 else v(acc, 16)
                a(f"{MF} {v(acc,16)}, {v(b+8*n,4)}, {v(b+4+8*t,4)}, {cin}")
    stamp(a, 3)
    a("s_waitcnt vmcnt(0) lgkmcnt(0)")
    a("s_barrier                              ; X1")
    a("s_setprio 3")
    a("s_barrier                              ; X2")
    a("s_cmp_lg_u32 s23, 1")
    a("s_cbranch_scc1 K2_NOB1")
    a("s_lshl_b32 s37, s21, 4")
    a("s_add_u32 s37, s37, s22")
    a("s_lshl_b32 s37, s37, 7")
    a(f"s_add_u32 s37, s37, {FL_B1}")
    flag_store(a, "s37", 16)
    a.label("K2_NOB1")
    if WARMW:
        a("s_lshr_b32 s54, s2, 3")
        a("s_and_b32 s54, s54, 7")
        a("s_lshl_b32 s55, s54, 2")
        a("s_add_u32 s55, s55, s23")
        a("s_mul_i32 s55, s55, 57344")
        a("s_add_u32 s55, s55, s43")
        a("v_min_u32 v14, 55, v2")
        a("v_lshlrev_b32 v14, 10, v14")
        a("buffer_load_dword v15, v14, s[44:47], s55 offen")
        a("s_lshl_b32 s55, s54, 2")
        a("s_add_u32 s55, s55, s23")
        a("s_lshl_b32 s55, s55, 14")
        a("s_add_u32 s55, s55, s43")
        a("v_and_b32 v14, 15, v2")
        a("v_lshlrev_b32 v14, 10, v14")
        a("buffer_load_dword v15, v14, s[48:51], s55 offen")
    for k in range(NS):
        wloads(k)
    a("s_setprio 3")
    a("v_min_u32 v6, 45, v2")
    a("v_lshlrev_b32 v6, 7, v6")
    a("s_lshr_b32 s24, s72, 1")
    a("s_lshl_b32 s24, s24, 11")
    a(f"s_add_u32 s24, s24, {FL_B1 - FL_A}")
    a(f"s_mov_b32 s25, {7*4096 - 14*128}")
    a("v_mov_b32 v7, s24")
    a("v_mov_b32 v8, s25")
    a("v_cmp_gt_u32 vcc, 14, v2")
    a("s_nop 1")
    a("v_cndmask_b32 v7, v8, v7, vcc")
    a("v_add_u32 v6, v6, v7")
    a(f"s_mov_b32 s24, {FL_A}")
    def g_to_lds():
        a("s_lshl_b32 s55, s71, 10")
        a(f"s_mov_b32 m0, {LDS_GQ}")
        a(f"s_add_u32 s55, s55, {WS_G}")
        a(f"buffer_load_dwordx4 v3, s[28:31], s55 offen{SC} lds")
        a("s_waitcnt vmcnt(0)")
    poll_shared(a, 2, [("s24", 6, 8, 4)], 20, lslp=4, extra=g_to_lds)
    a("v_and_b32 v6, 31, v2")
    a("v_lshlrev_b32 v6, 2, v6")
    a("s_lshl_b32 s55, s72, 8")
    a(f"s_add_u32 s55, s55, {WS_G}")
    a(f"buffer_load_dword v240, v6, s[28:31], s55 offen{SC}")
    a(f"buffer_load_dword v242, v6, s[28:31], s55 offen offset:128{SC}")
    stamp(a, 4)
    DA = 4
    a("s_setprio 0")
    for k in range(DA):
        aloads(k)
    for k in range(ND + NW):
        waitfor(("w", k), ("a", k))
        wreads(k)
        a("s_waitcnt lgkmcnt(0)")
        if k + NS < ND + NW:
            wloads(k + NS)
        if k + DA < ND:
            aloads(k + DA)
        if k < ND:
            mm(k)
    a("s_setprio 3")
    a("s_nop 7")
    a("v_sub_f32 v12, 1.0, v240")
    a("v_sub_f32 v14, 1.0, v242")
    a("s_nop 7")
    for n in range(2):
        for t in range(2):
            acc = GA + (n * 2 + t) * 16
            for j in range(0, 16, 2):
                a(f"v_pk_mul_f32 {v(acc+j,2)}, {v(acc+j,2)}, {v(12+2*t,2)} op_sel_hi:[1,0]")
    a("v_and_b32 v4, 31, v2")
    a(f"v_mul_u32_u24 v4, {RP}, v4")
    a("v_lshrrev_b32 v6, 5, v2")
    a("v_lshl_add_u32 v4, v6, 4, v4")
    a(f"s_mul_i32 s32, s23, {64*RP}")
    a("v_add_u32 v4, s32, v4")
    a("s_lshl_b32 s24, s72, 2")
    a("s_add_u32 s24, s24, s23")
    a(f"s_mul_i32 s24, s24, {8*3072}")
    a(f"s_add_u32 s24, s24, {WS_O}")
    a("v_and_b32 v6, 7, v2")
    a("v_lshlrev_b32 v6, 7, v6")
    a("s_lshl_b32 s26, s72, 12")
    a("s_lshl_b32 s25, s23, 10")
    a("s_add_u32 s26, s26, s25")
    a(f"s_add_u32 s26, s26, {FL_C}")
    a("s_mov_b32 s54, 0")
    a(f"s_mov_b32 s74, {SPIN}")
    stamp(a, 5)
    stamp(a, 1, 8)
    XR = 208
    a.label("K3_ROUND")
    a("v_mov_b32 v8, 0")
    a("s_mov_b64 exec, 0xff")
    if ATPOLL:
        a("buffer_atomic_or v8, v6, s[28:31], s26 offen sc0 sc1")
    else:
        a("buffer_load_dword v8, v6, s[28:31], s26 offen sc1")
    a("s_waitcnt vmcnt(0)")
    a("v_cmp_eq_u32 vcc, s68, v8")
    a("s_mov_b64 exec, -1")
    a("s_cmp_eq_u32 s74, 0")
    a("s_cselect_b32 s55, 0xff, vcc_lo")
    a("s_andn2_b32 s55, s55, s54")
    a("s_cbranch_scc1 K3_SOME")
    a("s_sub_u32 s74, s74, 1")
    a(f"s_sleep {TSLP}")
    a("s_branch K3_ROUND")
    a.label("K3_SOME")
    for kk in range(NW):
        b = FR + ((ND + kk) % D) * 16
        a(f"s_bitcmp1_b32 s55, {kk}")
        a(f"s_cbranch_scc0 K3_L{kk}")
        a(f"s_add_u32 s25, s24, {kk*3072}")
        a(f"buffer_load_dwordx4 {v(b+4,4)}, v3, s[28:31], s25 offen{SC}")
        a(f"buffer_load_dwordx4 {v(b+12,4)}, v3, s[28:31], s25 offen offset:1024{SC}")
        a(f"buffer_load_dwordx4 {v(XR+4*kk,4)}, v3, s[28:31], s25 offen offset:2048{SC}")
        a.label(f"K3_L{kk}")
    a("s_sub_u32 s74, s74, 1")
    a("s_cselect_b32 s75, 0, -1")
    a("s_waitcnt vmcnt(0)")
    for kk in range(NW):
        b = FR + ((ND + kk) % D) * 16
        a(f"s_bitcmp1_b32 s55, {kk}")
        a(f"s_cbranch_scc0 K3_C{kk}")
        a(f"v_xor_b32 v8, s68, v{b+7}")
        a(f"v_xor_b32 v9, s68, v{b+15}")
        a(f"v_xor_b32 v10, s68, v{XR+4*kk+3}")
        a("v_or3_b32 v8, v8, v9, v10")
        a("v_and_b32 v8, s75, v8")
        a("v_cmp_ne_u32 vcc, 0, v8")
        a(f"v_mov_b32 v{b+7}, v{XR+4*kk}")
        a(f"v_mov_b32 v{b+15}, v{XR+4*kk+1}")
        a("s_cmp_eq_u64 vcc, 0")
        a(f"s_cbranch_scc0 K3_C{kk}")
        mm(ND + kk)
        a(f"s_bitset1_b32 s54, {kk}")
        a.label(f"K3_C{kk}")
    a("s_cmp_lg_u32 s54, 0xff")
    a("s_cbranch_scc1 K3_ROUND")
    stamp(a, 6)
    stamp(a, 2, 8)
    a("s_barrier                              ; Y0")
    for i in range(3, 6):
        stamp(a, i, 8)
    a("s_nop 7")
    a("s_nop 7")
    for n in range(2):
        for t in range(2):
            acc = GA + (n * 2 + t) * 16
            for g in range(4):
                a(f"ds_write_b128 v4, {v(acc+4*g,4)} offset:{t*32*RP + n*128 + g*32}")
    a.label("K3_REDUCE")
    srd(a, 24, 64, 0x200000)
    a("s_lshl_b32 s32, s20, 6")
    a("v_add_u32 v0, s32, v2                  ; tid")
    a("v_lshrrev_b32 v7, 3, v0                ; token")
    a("v_and_b32 v5, 7, v0")
    a(f"v_mul_u32_u24 v6, {RP}, v7")
    a("v_lshl_add_u32 v6, v5, 5, v6")
    a("v_lshlrev_b32 v7, 10, v7")
    a("v_lshl_add_u32 v7, v5, 4, v7")
    a("s_lshl_b32 s32, s72, 16")
    a("s_lshl_b32 s33, s73, 7")
    a("s_add_u32 s32, s32, s33")
    a("s_waitcnt lgkmcnt(0)")
    a("s_barrier                              ; Y1")
    stamp(a, 6, 8)
    for w in range(4):
        a(f"ds_read_b128 {v(208+8*w,4)}, v6 offset:{w*64*RP}")
        a(f"ds_read_b128 {v(212+8*w,4)}, v6 offset:{w*64*RP+16}")
    for w in range(1, 4):
        a(f"s_waitcnt lgkmcnt({2*(3-w)})")
        for j in range(0, 8, 2):
            a(f"v_pk_add_f32 {v(208+j,2)}, {v(208+j,2)}, {v(208+8*w+j,2)}")
    for j in range(0, 8, 2):
        a(f"v_cvt_pk_bf16_f32 v{16+j//2}, v{208+j}, v{208+j+1}")
    a("buffer_store_dwordx4 v[16:19], v7, s[24:27], s32 offen")
    if PADEND:
        pad_until(a, PADEND)
    stamp_flush(a, 8)
    a.label("K_EXIT")
    a("s_endpgm")
    a.label("K_END")

def main():
    hdr = open("cdna_kernels/" + NAME + ".s.ref").read().split("\n")
    top = [l for l in hdr if l.startswith(";") and "@launch" not in l]
    out = "\n".join(top) + "\n"
    out += f"; @launch grid=(256,1,1) block=(512,1,1) lds={LDS_TOTAL}\n"
    out += '.amdgcn_target "amdgcn-amd-amdhsa--gfx950"\n.text\n'
    a = Asm()
    gen(a)
    out += a.text()
    out += '.section .rodata,"a"\n'
    out += kernel_desc(KNAME, 256, 102)
    path = sys.argv[1] if len(sys.argv) > 1 else "cdna_kernels/" + NAME + ".s"
    open(path, "w").write(out)

main()
```

```python
import sys, math, os
from asmlib import *

NAME = "gated_mix__softmax_full_mha__geglu_ffn__prompt"
KNAME = NAME + "_kernel"
LOG2E = 1.4426950408889634
def env(n, d): return int(os.environ.get(n, str(d)))
PROF = env("PROF", 0)
ROT = env("ROT", 1)
TAGPOS = env("TAGPOS", 0)
PADEND = env("PADEND", 0)
PADATT = env("PADATT", 0)
DBGWG = env("DBGWG", -1)
TLBW = env("TLBW", 0)
PFW = env("PFW", 0)
PFI = env("PFI", 1)
PFX = env("PFX", 0)
KVROT = env("KVROT", 1)
WARMW = env("WARMW", 1)
ATPOLL = env("ATPOLL", 1)
HINTW = env("HINTW", 0)
TSLP = env("TSLP", 4)
SPF = env("SPF", 0)
CODEPF = env("CODEPF", 1)
SLP = env("SLP", 4)

WS_Q = 0x0
WS_K = 0x200000
WS_V = 0x400000
WS_ACT = 0x600000
WS_O = 0xF00000
WS_G = 0x1240000
WS_FL = 0x1280000
FL_A = WS_FL
FL_B1 = WS_FL + 0x8000
FL_B2 = WS_FL + 0x10000
FL_C = WS_FL + 0x20000
WS_STAMP = 0x1800000
WS_SIZE = 0x2000000

S1, S2 = 32768, 49152
LDS_GW = 162176
LDS_TAG = 163328
LDS_SYNC = LDS_TAG + 8
LDS_TOTAL = 163840
LDS_V = 65536
VP = 1056
LDS_Q = 147456
LDS_GQ = LDS_GW
LDS_WS = 137344 + 128
RP = 272

SC = " sc1"
SPIN = 200000
MF = "v_mfma_f32_32x32x16_bf16"

def srd(a, d, base, nbytes):
    a(f"s_mov_b32 s{d}, s{base}")
    a(f"s_mov_b32 s{d+1}, s{base+1}")
    a(f"s_mov_b32 s{d+2}, {nbytes:#x}")
    a(f"s_mov_b32 s{d+3}, 0x20000")

def stamp(a, i, lvl=1):
    if PROF and (PROF == lvl or i in (0, 7)):
        a("s_memrealtime s[96:97]")
        a("s_memtime s[98:99]")
        a("s_waitcnt lgkmcnt(0)")
        a(f"s_mov_b32 s{80+i}, s96")
        a(f"s_mov_b32 s{88+i}, s98")

def stamp_flush(a, n):
    if PROF:
        a("s_waitcnt vmcnt(0)")
        stamp(a, n - 1)
        a("s_lshl_b32 s78, s2, 4")
        a("s_add_u32 s78, s78, s20")
        a("s_lshl_b32 s78, s78, 6")
        a(f"s_add_u32 s78, s78, {WS_STAMP}")
        a("v_mov_b32 v1, 0")
        for i in range(n):
            a(f"v_mov_b32 v0, s{80+i}")
            a(f"buffer_store_dword v0, v1, s[28:31], s78 offen offset:{4*i}")
            a("s_nop 1")
            a(f"v_mov_b32 v0, s{88+i}")
            a(f"buffer_store_dword v0, v1, s[28:31], s78 offen offset:{32+4*i}")
            a("s_nop 1")
        a("s_waitcnt vmcnt(0)")
        if DBGWG >= 0:
            a(f"s_cmp_lg_u32 s2, {DBGWG}")
            a("s_cbranch_scc1 DBG_SKIP")
            a("s_and_b32 s78, s20, 3")
            a("s_cmp_lg_u32 s78, 0")
            a("s_cbranch_scc1 DBG_SKIP")
            a("s_mul_i32 s78, s20, 7")
            a("v_mov_b32 v1, s78")
            for i in range(1, n):
                a(f"s_sub_u32 s79, s{80+i}, s80")
                a("v_mov_b32 v0, s79")
                a(f"global_store_dword v1, v0, s[66:67] offset:{4+4*i}")
                a("s_nop 1")
            a("s_waitcnt vmcnt(0)")
            a.label("DBG_SKIP")

def pad_until(a, ticks):
    lab = a.newlabel("PAD")
    a.label(lab)
    a("s_memrealtime s[96:97]")
    a("s_waitcnt lgkmcnt(0)")
    a("s_sub_u32 s96, s96, s68")
    a(f"s_cmp_lt_u32 s96, {ticks}")
    a(f"s_cbranch_scc1 {lab}")

def flag_store(a, soff, vtmp):
    a(f"v_mov_b32 v{vtmp}, s68")
    a(f"v_mov_b32 v{vtmp+1}, s69")
    a(f"v_mov_b32 v{vtmp+2}, 0")
    a("s_mov_b64 exec, 1")
    a(f"buffer_store_dwordx2 {v(vtmp,2)}, v{vtmp+2}, s[28:31], {soff} offen sc1")
    a("s_mov_b64 exec, -1")

def poll(a, soff, voff, vtmp, slp=None):
    lab = a.newlabel("POLL")
    done = a.newlabel("POLLD")
    a(f"s_mov_b32 s74, {SPIN}")
    a.label(lab)
    a(f"buffer_load_dwordx2 {v(vtmp,2)}, v{voff}, s[28:31], {soff} offen sc1")
    a("s_waitcnt vmcnt(0)")
    a(f"v_xor_b32 v{vtmp}, s68, v{vtmp}")
    a(f"v_xor_b32 v{vtmp+1}, s69, v{vtmp+1}")
    a(f"v_or_b32 v{vtmp}, v{vtmp}, v{vtmp+1}")
    a(f"v_cmp_ne_u32 vcc, 0, v{vtmp}")
    a("s_sub_u32 s74, s74, 1")
    a("s_cmp_eq_u32 s74, 0")
    a(f"s_cbranch_scc1 {done}")
    a("s_cmp_eq_u64 vcc, 0")
    a(f"s_cbranch_scc1 {done}")
    a(f"s_sleep {SLP if slp is None else slp}")
    a(f"s_branch {lab}")
    a.label(done)

def poll_shared(a, stage, polls, vtmp, lslp=1, extra=None):
    other = a.newlabel("PSO")
    done = a.newlabel("PSD")
    a(f"v_mov_b32 v{vtmp+3}, {LDS_SYNC}")
    a("s_cmp_lg_u32 s23, 0")
    a(f"s_cbranch_scc1 {other}")
    for p in polls:
        poll(a, *p)
    if extra:
        extra()
    a(f"v_mov_b32 v{vtmp}, {stage}")
    a(f"ds_write_b32 v{vtmp+3}, v{vtmp}")
    a(f"s_branch {done}")
    a.label(other)
    a(f"s_mov_b32 s74, {SPIN*8}")
    lab = a.newlabel("PSL")
    a.label(lab)
    a(f"ds_read_b32 v{vtmp}, v{vtmp+3}")
    a("s_waitcnt lgkmcnt(0)")
    a(f"v_readfirstlane_b32 s75, v{vtmp}")
    a("s_sub_u32 s74, s74, 1")
    a("s_cmp_eq_u32 s74, 0")
    a(f"s_cbranch_scc1 {done}")
    a(f"s_cmp_ge_u32 s75, {stage}")
    a(f"s_cbranch_scc1 {done}")
    a(f"s_sleep {lslp}")
    a(f"s_branch {lab}")
    a.label(done)

def cvt_tile(a, acc, dst, lo=0, hi=16):
    for i in range(lo, hi, 2):
        a(f"v_cvt_pk_bf16_f32 v{dst + (i - lo)//2}, v{acc+i}, v{acc+i+1}")

def gen(a):
    kernel_header(a, KNAME)
    if TAGPOS == 1:
        a("s_memrealtime s[56:57]")
    a("s_cmp_ge_u32 s2, 256")
    a("s_cbranch_scc1 K_EXIT")
    a("s_load_dwordx4 s[4:7], s[0:1], 0       ; x, wqkv")
    a("s_load_dwordx2 s[8:9], s[0:1], 16      ; wo")
    a("s_load_dwordx2 s[10:11], s[0:1], 80    ; ws")
    a("s_load_dwordx4 s[12:15], s[0:1], 32")
    a("s_load_dwordx4 s[16:19], s[0:1], 48")
    a("s_load_dwordx4 s[64:67], s[0:1], 64")
    a("v_lshrrev_b32 v1, 6, v0")
    a("v_and_b32 v2, 63, v0                   ; lane")
    a("v_readfirstlane_b32 s20, v1")
    a("v_lshlrev_b32 v3, 4, v2                ; lane*16")
    stamp(a, 0)
    a("s_and_b32 s24, s2, 1                   ; xh")
    a("s_bfe_u32 s25, s2, 0x20001             ; xq")
    a("s_lshr_b32 s26, s2, 3                  ; j")
    a("s_lshl_b32 s60, s24, 4")
    a("s_and_b32 s27, s26, 15")
    a("s_add_u32 s60, s60, s27                ; tb")
    a("s_lshr_b32 s27, s26, 4")
    a("s_lshl_b32 s61, s25, 1")
    a("s_add_u32 s61, s61, s27                ; hg")
    a("s_lshl_b32 s27, s27, 2")
    a("s_add_u32 s62, s26, s27")
    a(f"s_and_b32 s62, s62, {7 if ROT else 0}  ; rot1")
    a("s_and_b32 s63, s26, 7")
    a("s_lshl_b32 s21, s24, 3")
    a("s_add_u32 s21, s21, s63                ; rb")
    a("s_lshr_b32 s27, s26, 3")
    a("s_lshl_b32 s22, s25, 2")
    a("s_add_u32 s22, s22, s27                ; cb2")
    a("s_lshl_b32 s72, s25, 3")
    a("s_add_u32 s72, s72, s63                ; rb64")
    a("s_lshl_b32 s73, s24, 2")
    a("s_add_u32 s73, s73, s27                ; cb64")
    if not ROT:
        a("s_mov_b32 s63, 0")
    a("s_and_b32 s70, s2, 7")
    a("s_lshl_b32 s70, s70, 2")
    a("s_and_b32 s27, s26, 3")
    a("s_add_u32 s70, s70, s27                ; head")
    a("s_lshr_b32 s71, s26, 2                 ; qb")
    a("s_cmp_ge_u32 s20, 4")
    a("s_cbranch_scc1 K1_LOADER")

    ACC = 128
    XA = [4, 5, 6, 7]
    WA = [8, 9, 10, 11]
    GWA = 12
    a("s_and_b32 s23, s20, 1                  ; tp")
    a("s_lshr_b32 s24, s20, 1")
    a("v_bfe_u32 v16, v2, 4, 1                ; gsel")
    a("v_lshrrev_b32 v17, 5, v2               ; h")
    a("v_bfe_u32 v18, v2, 2, 2                ; r")
    a("v_and_b32 v19, 3, v2                   ; c")
    a("v_lshl_add_u32 v20, v17, 3, v18        ; 8h+r")
    a("v_and_b32 v21, 31, v2")
    a("v_lshlrev_b32 v21, 7, v21")
    a("v_bfe_u32 v22, v2, 1, 3")
    a("v_xor_b32 v22, v22, v17")
    a("v_lshl_add_u32 v13, v22, 4, v21")
    a("s_lshl_b32 s25, s23, 12")
    a(f"s_add_u32 s25, s25, {S1}")
    for s_ in range(4):
        a(f"v_xor_b32 v{XA[s_]}, {32*s_}, v13")
        a(f"v_add_u32 v{XA[s_]}, s25, v{XA[s_]}")
    a("v_lshrrev_b32 v21, 1, v18")
    a("v_xor_b32 v21, s24, v21")
    a("v_lshlrev_b32 v21, 6, v21")
    a("v_lshl_add_u32 v21, v20, 7, v21")
    a("v_lshl_add_u32 v21, v16, 5, v21")
    a("v_lshl_add_u32 v21, v19, 3, v21")
    a(f"v_add_u32 v{WA[0]}, {8192 + S1}, v21")
    a("s_lshl_b32 s26, s62, 7")
    a(f"s_add_u32 s26, s26, {LDS_GW}")
    a("v_lshlrev_b32 v21, 4, v17")
    a(f"v_add_u32 v{GWA}, s26, v21")
    a("v_lshlrev_b32 v14, 14, v16")
    a("v_lshl_add_u32 v14, v20, 8, v14")
    a("v_lshl_add_u32 v14, v19, 3, v14")
    a("v_add_u32 v14, 16384, v14")
    a("v_lshl_add_u32 v15, v18, 1, v16")
    for i in range(64):
        a(f"v_mov_b32 v{ACC+i}, 0")
    a("s_waitcnt lgkmcnt(0)")
    srd(a, 28, 10, WS_SIZE)
    a(f"s_mov_b32 s25, {S1}")
    a("s_mov_b32 s26, 8")
    a("s_mov_b32 s33, s62                     ; kc")
    if PFW:
        a("s_cmp_eq_u32 s24, 0")
        a("s_cselect_b64 s[44:45], s[12:13], s[14:15]")
        a("s_mov_b32 s46, 0x1c0000")
        a("s_mov_b32 s47, 0x20000")
        a("v_lshrrev_b32 v21, 1, v2")
        a("v_mul_u32_u24 v21, 3584, v21")
        a("v_and_b32 v22, 1, v2")
        a("v_lshl_add_u32 v23, v22, 7, v21")
        a("s_lshl_b32 s48, s63, 1")
        a("s_add_u32 s48, s48, s23")
        a("s_mul_i32 s48, s48, 114688")
        a("s_lshl_b32 s49, s22, 8")
        a("s_add_u32 s48, s48, s49")
    if PFX:
        srd(a, 52, 4, 0x200000)
        a("s_add_u32 s56, s62, s20")
        a("s_and_b32 s56, s56, 7")
        a("s_lshl_b32 s56, s56, 7")
        a("s_lshl_b32 s57, s60, 16")
        a("s_add_u32 s56, s56, s57")
        a("v_lshlrev_b32 v21, 10, v2")
        a("s_cmp_eq_u32 s20, 0")
        a("s_cbranch_scc1 P1_NOPFX")
        a("buffer_load_dword v22, v21, s[52:55], s56 offen")
        a.label("P1_NOPFX")
    if PFW == 1:
        a("buffer_load_dword v22, v23, s[44:47], s48 offen")
    if TLBW:
        a("v_min_u32 v21, 9, v2")
        a("v_lshlrev_b32 v21, 21, v21")
        a("buffer_load_dword v22, v21, s[28:31], 0 offen sc1")
        a("v_mov_b32 v21, 0")
        a("global_load_dword v22, v21, s[64:65]")
        a("global_load_dword v22, v21, s[16:17]")
        a("global_load_dword v22, v21, s[8:9]")
        a("global_load_dword v22, v21, s[12:13]")
        a("global_load_dword v22, v21, s[14:15]")
    if PFI:
        a("s_cmp_lt_u32 s22, 14")
        a("s_cbranch_scc1 P1_NOPFI")
        a("s_and_b32 s40, s2, 1")
        a("s_lshl_b32 s40, s40, 4")
        a("s_lshr_b32 s41, s2, 3")
        a("s_add_u32 s40, s40, s41")
        a("s_sub_u32 s40, s40, 16")
        a("s_lshl_b32 s40, s40, 1")
        a("s_add_u32 s40, s40, s23")
        a("s_mul_i32 s41, s40, 28672")
        a("s_cmp_eq_u32 s24, 0")
        a("s_cselect_b64 s[44:45], s[12:13], s[14:15]")
        a("s_mov_b32 s46, 0x1c0000")
        a("s_mov_b32 s47, 0x20000")
        a("v_lshlrev_b32 v23, 7, v2")
        for i in range(4):
            a("buffer_load_dword v22, v23, s[44:47], s41 offen")
            a("s_add_u32 s41, s41, 8192")
        if PFI > 1:
            a("s_cselect_b64 s[44:45], s[16:17], s[8:9]".replace("s_cselect_b64", "s_cmp_eq_u32 s24, 0\ns_cselect_b64"))
            a("s_mov_b32 s46, 0x80000")
            a("s_cselect_b32 s46, 0x1c0000, s46")
            a("s_mul_i32 s41, s40, 28672")
            a("s_lshl_b32 s42, s40, 13")
            a("s_cselect_b32 s41, s41, s42".replace("s_cselect_b32", "s_cmp_eq_u32 s24, 0\ns_cselect_b32"))
            for i in range(4):
                a("buffer_load_dword v22, v23, s[44:47], s41 offen")
                a("s_add_u32 s41, s41, 8192")
        a.label("P1_NOPFI")
    if CODEPF:
        a("s_getpc_b64 s[50:51]")
        a.label("PC_HERE")
        a(f"s_sub_u32 s50, s50, PC_HERE-{KNAME}")
        a("s_subb_u32 s51, s51, 0")
        a("s_lshr_b32 s49, s2, 3")
        a("s_lshl_b32 s49, s49, 2")
        a("s_add_u32 s49, s49, s20")
        a("s_lshl_b32 s49, s49, 8")
        a("v_lshlrev_b32 v21, 2, v2")
        a("v_add_u32 v21, s49, v21")
        a(f"v_min_u32 v21, K_END-{KNAME}-4, v21")
        a("global_load_dword v21, v21, s[50:51]")
    B1 = [24, 44, 64, 84]
    def reads1(s_, buf, wg):
        L = [f"ds_read_b128 {v(buf,4)}, v{XA[s_]}"]
        for ty in range(3):
            for u in range(2):
                L.append(f"ds_read_b64_tr_b16 {v(buf+4+4*ty+2*u,2)}, v{WA[0]} offset:{ty*8192 + (16*s_+4*u)*128}")
        if wg:
            L.append(f"ds_read_b128 {v(buf+16,4)}, v{GWA} offset:{32*s_}")
        return L
    def mf1(buf, wg):
        X = v(buf, 4)
        L = [f"{MF} {v(ACC,16)}, {v(buf+4,4)}, {X}, {v(ACC,16)}",
             f"{MF} {v(ACC+16,16)}, {v(buf+8,4)}, {X}, {v(ACC+16,16)}",
             f"{MF} {v(ACC+32,16)}, {X}, {v(buf+12,4)}, {v(ACC+32,16)}"]
        if wg:
            L.append(f"{MF} {v(ACC+48,16)}, {v(buf+16,4)}, {X}, {v(ACC+48,16)}")
        return L
    a("s_cmp_ge_u32 s22, 14")
    a("s_cselect_b32 s59, s24, 1")
    a("s_cmp_eq_u32 s59, 0")
    a("s_cbranch_scc0 P1_V1")
    for var in range(2):
        wg = var == 0
        if var == 1:
            a.label("P1_V1")
        a("s_barrier")
        stamp(a, 1)
        if PFW == 2:
            a("buffer_load_dword v22, v23, s[44:47], s48 offen")
        for l in reads1(0, B1[0], wg) + reads1(1, B1[1], wg):
            a(l)
        a.raw(".p2align 6")
        a.label(f"P1_LOOP{var}")
        nr = 8 if wg else 7
        for s_ in range(4):
            a(f"s_waitcnt lgkmcnt({0 if s_ == 2 else nr})")
            if s_ < 2:
                fill = reads1(s_ + 2, B1[s_ + 2], wg)
                if s_ == 1:
                    fill += [f"s_add_u32 s25, s25, {S1}", f"s_cmp_eq_u32 s25, {4*S1}",
                             f"s_mov_b32 s27, {S1}", f"s_cselect_b32 s27, {(-3*S1) & 0xffffffff:#x}, s27", "s_cselect_b32 s25, 0, s25"]
                    fill += [f"v_add_u32 v{r}, s27, v{r}" for r in XA + [WA[0]]]
                    if wg:
                        fill += ["s_add_u32 s33, s33, 1", "s_cmp_eq_u32 s33, 8", "s_movk_i32 s27, 128",
                                 f"s_cselect_b32 s27, {(-7*128) & 0xffffffff:#x}, s27", "s_cselect_b32 s33, 0, s33",
                                 f"v_add_u32 v{GWA}, s27, v{GWA}"]
            elif s_ == 2:
                fill = ["s_barrier"] + reads1(0, B1[0], wg)
            else:
                fill = reads1(1, B1[1], wg)
                if PFW >= 3:
                    fill += [f"s_cmp_lg_u32 s26, {11 - PFW}", f"s_cbranch_scc1 P1_NT{var}", "buffer_load_dword v22, v23, s[44:47], s48 offen", f"P1_NT{var}:"]
                fill += ["s_sub_u32 s26, s26, 1", "s_cmp_lg_u32 s26, 0"]
            for l in interleave(mf1(B1[s_], wg), fill, [2, 3, 3, 20] if wg else [3, 2, 20]):
                a(l)
        a(f"s_cbranch_scc1 P1_LOOP{var}")
        if var == 0:
            a("s_branch P1_EPI")
    a.label("P1_EPI")
    stamp(a, 2)
    a("s_lshl_b32 s32, s60, 1")
    a("s_add_u32 s32, s32, s23")
    a("s_lshl_b32 s36, s61, 2")
    a("s_lshl_b32 s37, s24, 1")
    a("s_add_u32 s36, s36, s37")
    a("s_lshl_b32 s36, s36, 6")
    a("s_add_u32 s36, s36, s32")
    a("s_lshl_b32 s36, s36, 10")
    a("v_and_b32 v16, 0x33, v2")
    a("v_bfe_u32 v17, v2, 2, 1")
    a("v_lshl_or_b32 v16, v17, 3, v16")
    a("v_bfe_u32 v17, v2, 3, 1")
    a("v_lshl_or_b32 v16, v17, 2, v16")
    a("v_lshlrev_b32 v16, 4, v16              ; K voffset")
    a("v_bfe_u32 v17, v2, 4, 1")
    a("v_lshlrev_b32 v17, 16, v17")
    a("v_lshrrev_b32 v18, 5, v2")
    a("v_lshl_or_b32 v17, v18, 8, v17")
    a("v_and_b32 v18, 15, v2")
    a("v_lshl_or_b32 v17, v18, 4, v17         ; V voffset")
    a(f"s_mov_b32 s34, {fh(LOG2E*0.25)}")
    a("s_mov_b32 s35, s34")
    T = 104
    cvt_tile(a, ACC + 16, T + 8)
    a(f"s_add_u32 s37, s36, {WS_K}")
    a(f"s_add_u32 s38, s36, {WS_K + 65536}")
    a(f"buffer_store_dwordx4 {v(T+8,4)}, v16, s[28:31], s37 offen{SC}")
    a(f"buffer_store_dwordx4 {v(T+12,4)}, v16, s[28:31], s38 offen{SC}")
    cvt_tile(a, ACC + 32, T + 16)
    a(f"s_add_u32 s37, s36, {WS_V}")
    a(f"buffer_store_dwordx4 {v(T+16,4)}, v17, s[28:31], s37 offen{SC}")
    a(f"buffer_store_dwordx4 {v(T+20,4)}, v17, s[28:31], s37 offen offset:512{SC}")
    for j in range(0, 16, 2):
        a(f"v_pk_mul_f32 {v(ACC+j,2)}, {v(ACC+j,2)}, s[34:35]")
    cvt_tile(a, ACC, T)
    a(f"s_add_u32 s38, s36, {WS_Q + 65536}")
    a(f"buffer_store_dwordx4 {v(T,4)}, v3, s[28:31], s36 offen{SC}")
    a(f"buffer_store_dwordx4 {v(T+4,4)}, v3, s[28:31], s38 offen{SC}")
    a("s_cmp_eq_u32 s59, 0")
    a("s_cbranch_scc0 P1_NOG")
    a(f"v_mul_f32 v19, {fh(-LOG2E)}, v{ACC+48}")
    a("v_exp_f32 v19, v19")
    a("v_and_b32 v18, 31, v2")
    a("v_add_f32 v19, 1.0, v19")
    a("v_rcp_f32 v19, v19                   ; g")
    a("v_lshlrev_b32 v18, 2, v18")
    a("s_lshl_b32 s37, s32, 7")
    a(f"s_add_u32 s37, s37, {WS_G}")
    a(f"buffer_store_dword v19, v18, s[28:31], s37 offen{SC}")
    a.label("P1_NOG")
    a("s_cmp_ge_u32 s22, 14")
    a("s_cbranch_scc1 IDLE_C")

    a("s_lshl_b32 s25, s23, 13")
    a(f"s_add_u32 s25, s25, {S2}")
    a(f"v_add_u32 v14, {S2}, v14")
    for s_ in range(4):
        a(f"v_xor_b32 v{XA[s_]}, {32*s_}, v13")
        a(f"v_add_u32 v{XA[s_]}, s25, v{XA[s_]}")
    a("s_lshl_b32 s25, s24, 2")
    for t in range(4):
        a(f"s_add_u32 s27, s25, {t}")
        a("v_xor_b32 v16, s27, v15")
        a(f"v_lshl_add_u32 v{WA[t]}, v16, 5, v14")
    for i in range(128):
        a(f"v_mov_b32 v{ACC+i}, 0")
    a(f"s_mov_b32 s25, {S2}")
    a("s_mov_b32 s26, 8")
    B2 = [24, 48]
    def reads2(s_, buf):
        L = [f"ds_read_b128 {v(buf,4)}, v{XA[s_]}"]
        for t in range(4):
            for u in range(2):
                L.append(f"ds_read_b64_tr_b16 {v(buf+8+4*t+2*u,2)}, v{WA[t]} offset:{(16*s_+4*u)*256}")
            if t == 0:
                L.append(f"ds_read_b128 {v(buf+4,4)}, v{XA[s_]} offset:4096")
        return L
    def mf2(buf):
        L = []
        for t in range(4):
            for i in range(2):
                acc = ACC + (i * 4 + t) * 16
                L.append(f"{MF} {v(acc,16)}, {v(buf+8+4*t,4)}, {v(buf+4*i,4)}, {v(acc,16)}")
        return L
    a("s_waitcnt lgkmcnt(0)")
    a("s_barrier                              ; b(0)")
    for l in reads2(0, B2[0]):
        a(l)
    a.raw(".p2align 6")
    a.label("P2_LOOP")
    for s_ in range(4):
        a("s_waitcnt lgkmcnt(0)")
        if s_ < 3:
            fill = reads2(s_ + 1, B2[(s_ + 1) & 1])
            gaps = [3, 3, 2, 2, 0, 0, 0, 0]
            if s_ == 1:
                fill += ["s_cmp_lg_u32 s26, 7", "s_cbranch_scc1 P2_ND", "s_waitcnt vmcnt(0)", "P2_ND:"]
                gaps = [3, 3, 2, 2, 0, 4, 0, 0]
            if s_ == 2:
                fill += [f"s_add_u32 s25, s25, {S2}", f"s_cmp_eq_u32 s25, {3*S2}",
                         f"s_mov_b32 s27, {S2}", f"s_cselect_b32 s27, {(-2*S2) & 0xffffffff:#x}, s27", "s_cselect_b32 s25, 0, s25"]
                fill += [f"v_add_u32 v{r}, s27, v{r}" for r in XA + WA]
                gaps = [3, 3, 2, 2, 5, 3, 3, 2]
        else:
            fill = ["s_barrier"] + reads2(0, B2[0]) + ["s_sub_u32 s26, s26, 1", "s_cmp_lg_u32 s26, 0"]
            gaps = [1, 3, 3, 2, 2, 2, 0, 0]
        for l in interleave(mf2(B2[s_ & 1]), fill, gaps):
            a(l)
    a("s_cbranch_scc1 P2_LOOP")
    stamp(a, 3)
    c0 = -2.0 * 0.7978845608028654 * LOG2E
    c1 = c0 * 0.044715
    a(f"s_mov_b32 s34, {fh(c1)}")
    a("s_mov_b32 s35, s34")
    a(f"v_mov_b32 v4, {fh(c0)}")
    a("v_mov_b32 v5, v4")
    a("v_mov_b32 v6, 1.0")
    a("v_mov_b32 v7, 1.0")
    a("s_lshl_b32 s32, s21, 2")
    a("s_lshl_b32 s33, s23, 1")
    a("s_add_u32 s32, s32, s33                ; tt0")
    a("s_mul_i32 s36, s32, 144")
    a("s_lshl_b32 s37, s22, 3")
    a("s_add_u32 s36, s36, s37")
    a("s_lshl_b32 s37, s24, 2")
    a("s_add_u32 s36, s36, s37")
    a("s_lshl_b32 s36, s36, 10")
    a(f"s_add_u32 s36, s36, {WS_ACT}")
    a(f"s_add_u32 s37, s36, {144*1024}")
    a("s_waitcnt lgkmcnt(0)")
    TB = 16
    for i in range(2):
        for t in range(4):
            acc = ACC + (i * 4 + t) * 16
            out = 56 + 4 * (i * 4 + t)
            for j in range(0, 8, 2):
                a(f"v_pk_mul_f32 {v(TB+j,2)}, {v(acc+j,2)}, {v(acc+j,2)}")
            for j in range(0, 8, 2):
                a(f"v_pk_fma_f32 {v(TB+j,2)}, {v(TB+j,2)}, s[34:35], v[4:5]")
            for j in range(0, 8, 2):
                a(f"v_pk_mul_f32 {v(TB+j,2)}, {v(TB+j,2)}, {v(acc+j,2)}")
            for j in range(8):
                a(f"v_exp_f32 v{TB+j}, v{TB+j}")
            for j in range(0, 4, 2):
                a(f"v_pk_mul_f32 {v(acc+8+j,2)}, {v(acc+8+j,2)}, {v(acc+j,2)}")
            for j in range(0, 8, 2):
                a(f"v_pk_add_f32 {v(TB+j,2)}, {v(TB+j,2)}, v[6:7]")
            for j in range(8):
                a(f"v_rcp_f32 v{TB+j}, v{TB+j}")
            for j in range(4, 8, 2):
                a(f"v_pk_mul_f32 {v(acc+8+j,2)}, {v(acc+8+j,2)}, {v(acc+j,2)}")
            for j in range(0, 8, 2):
                a(f"v_pk_mul_f32 {v(acc+8+j,2)}, {v(acc+8+j,2)}, {v(TB+j,2)}")
            cvt_tile(a, acc, out, 8, 16)
            a(f"buffer_store_dwordx4 {v(out,4)}, v3, s[28:31], s{36+i} offen offset:{t*1024}{SC}")
    a("s_branch K2_ATTN")
    a.label("IDLE_C")
    a("s_waitcnt vmcnt(0) lgkmcnt(0)")
    a("s_barrier")
    stamp(a, 3)

    a.label("K2_ATTN")
    Q = [8, 12]
    G = [4, 5]
    KB = [16, 20]
    VB = [[24, 28], [32, 36]]
    IDX = 6
    VK, VV0, VV1 = 40, 41, 42
    C = [96, 112]
    S = [128, 144]
    P = [160, 176]
    O = [192, 208]
    a(f"v_mov_b32 v{IDX}, 0xdddd")
    def vaddr_init():
        a(f"v_mov_b32 v{VK}, v3")
        a("v_lshrrev_b32 v43, 5, v2")
        a("v_and_b32 v44, 15, v2")
        a("v_lshlrev_b32 v44, 4, v44")
        a("v_lshl_or_b32 v44, v43, 8, v44")
        a(f"v_add_u32 v44, {LDS_V}, v44")
        a("v_add_u32 v45, 512, v44")
        a("v_and_b32 v43, 31, v2")
        a("v_subrev_u32 v47, 20, v43")
        a("v_cmp_gt_u32 vcc, 8, v47")
        a(f"v_mov_b32 v46, {LDS_V + 1040}")
        a(f"v_mov_b32 v47, {LDS_V + 1040 + 2*VP}")
        a("v_cndmask_b32 v46, v46, v47, vcc")
        a("v_and_b32 v47, 27, v43")
        a("v_cmp_eq_u32 vcc, 16, v47")
        a("v_subrev_u32 v47, 16, v46")
        a("s_nop 0")
        a("v_cndmask_b32 v46, v46, v47, vcc")
        a("v_cmp_gt_u32 vcc, 16, v43")
        a("s_nop 1")
        a(f"v_cndmask_b32 v{VV0}, v46, v44, vcc")
        a(f"v_cndmask_b32 v{VV1}, v46, v45, vcc")
    vaddr_init()
    a("s_lshl_b32 s24, s20, 11")
    a(f"s_add_u32 s24, s24, {LDS_Q}")
    a("v_add_u32 v43, s24, v3")
    a("s_lshl_b32 s24, s20, 8")
    a(f"s_add_u32 s24, s24, {LDS_GQ}")
    a("v_and_b32 v7, 31, v2")
    a("v_lshlrev_b32 v7, 2, v7")
    a("v_add_u32 v7, s24, v7                  ; g address")
    a(f"v_mov_b32 v45, {LDS_TAG}")
    for q in range(2):
        for i in range(16):
            a(f"v_mov_b32 v{O[q]+i}, 0")
    a("s_mov_b32 s26, 0")
    a("s_barrier                              ; X1")
    a("s_setprio 2")
    stamp(a, 4)
    a(f"ds_read_b128 {v(Q[0],4)}, v43")
    a(f"ds_read_b128 {v(KB[0],4)}, v{VK}")
    a(f"ds_read_b128 {v(Q[1],4)}, v43 offset:1024")
    a("ds_read_b64 v[46:47], v45")
    a("s_waitcnt lgkmcnt(0)")
    for q in range(2):
        a(f"{MF} {v(S[q],16)}, {v(KB[0],4)}, {v(Q[q],4)}, 0")
    a("v_readfirstlane_b32 s68, v46")
    a("v_readfirstlane_b32 s69, v47")
    a("s_nop 7")
    a("s_nop 1")
    def maxtree(src, dst, acc=False):
        if acc:
            for i in range(0, 16, 2):
                a(f"v_max3_f32 v{dst}, v{src+i}, v{src+i+1}, v{dst}")
        else:
            a(f"v_max_f32 v{dst}, v{src}, v{src+1}")
            for i in range(2, 16, 2):
                a(f"v_max3_f32 v{dst}, v{src+i}, v{src+i+1}, v{dst}")
    for q in range(2):
        maxtree(S[q], 44 + q)
    a.label("K2_SETMAX")
    a(f"ds_read_b128 {v(KB[0],4)}, v{VK}")
    a(f"ds_read_b128 {v(VB[0][0],4)}, v{VV0}")
    a(f"ds_read_b128 {v(VB[0][1],4)}, v{VV1}")
    a(f"ds_read_b128 {v(KB[1],4)}, v{VK} offset:1024")
    for q in range(2):
        a(f"v_mov_b32 v{46+q}, v{44+q}")
    a("s_nop 1")
    for q in range(2):
        a(f"v_permlane32_swap_b32 v{44+q}, v{46+q}")
    for q in range(2):
        a(f"v_max_f32 v{44+q}, v{44+q}, v{46+q}")
    for i in range(16):
        a(f"v_sub_f32 v{C[0]+i}, 0, v44")
    a("s_waitcnt lgkmcnt(0)")
    a("s_nop 0")
    a(f"{MF} {v(S[0],16)}, {v(KB[0],4)}, {v(Q[0],4)}, {v(C[0],16)}")
    for i in range(16):
        a(f"v_sub_f32 v{C[1]+i}, 0, v45")
    for i in range(8):
        a(f"v_mov_b32 v{P[1]+8+i}, 0")
    for i in range(4):
        a(f"v_mov_b32 v{VB[1][1]+i}, 0")
    a("s_cmp_lg_u32 s26, 0")
    a("s_cbranch_scc1 K2_NOBAR")
    a("s_waitcnt vmcnt(0)")
    a("s_barrier")
    a.label("K2_NOBAR")
    if PADATT:
        pad_until(a, PADATT)
    a("s_mov_b32 s27, 7")
    U = 8
    a.raw(".p2align 6")
    a.label("K2_LOOP")
    def exps(q, lo, hi):
        for i in range(lo, hi):
            a(f"v_exp_f32 v{P[q]+i}, v{S[q]+i}")
    def smf(q, vb, half):
        a(f"v_smfmac_f32_32x32x32_bf16 {v(O[q],16)}, {v(vb,4)}, {v(P[q]+8*half,8)}, v{IDX}")
    for u in range(U):
        b = u & 1
        a(f"{MF} {v(S[1],16)}, {v(KB[b],4)}, {v(Q[1],4)}, {v(C[1],16)}")
        exps(0, 0, 5)
        smf(1, VB[b ^ 1][1], 1)
        a(f"ds_read_b128 {v(VB[b^1][0],4)}, v{VV0} offset:{(u+1)*VP}")
        exps(0, 5, 11)
        smf(0, VB[b][0], 0)
        a(f"ds_read_b128 {v(VB[b^1][1],4)}, v{VV1} offset:{(u+1)*VP}")
        exps(0, 11, 16)
        a(f"{MF} {v(S[0],16)}, {v(KB[b^1],4)}, {v(Q[0],4)}, {v(C[0],16)}")
        a(f"ds_read_b128 {v(KB[b],4)}, v{VK} offset:{(u+2)*1024}")
        exps(1, 0, 5)
        smf(0, VB[b][1], 1)
        if u == U - 1:
            a("s_sub_u32 s27, s27, 1")
        exps(1, 5, 11)
        smf(1, VB[b][0], 0)
        a("s_waitcnt lgkmcnt(0)")
        if u == U - 1:
            a(f"v_add_u32 v{VK}, {U*1024}, v{VK}")
            a(f"v_add_u32 v{VV0}, {U*VP}, v{VV0}")
            a(f"v_add_u32 v{VV1}, {U*VP}, v{VV1}")
        exps(1, 11, 16)
    a("s_cbranch_scc0 K2_LOOP")
    a("s_nop 1")
    smf(1, VB[(U - 1) & 1][1], 1)
    stamp(a, 5)
    stamp(a, 1, 8)
    a(f"v_mov_b32 v46, {LDS_SYNC}")
    a("ds_read_b32 v47, v46")
    a(f"ds_read_b32 v{G[0]}, v7")
    a(f"ds_read_b32 v{G[1]}, v7 offset:128")
    a("s_lshl_b32 s24, s71, 2")
    a("s_add_u32 s24, s24, s20")
    a("s_lshl_b32 s24, s24, 5")
    a("s_add_u32 s24, s24, s70")
    a("s_mul_i32 s25, s24, 3072")
    a(f"s_add_u32 s25, s25, {WS_O}")
    a("v_mov_b32 v44, 0")
    for i in range(9):
        a(f"v_fma_f32 v44, v{O[0]+i}, 0, v44")
    a("s_nop 1")
    for i in range(9):
        a(f"v_fma_f32 v44, v{O[1]+i}, 0, v44")
    a("v_cmp_u_f32 vcc, v44, v44")
    a("s_cmp_lg_u32 s26, 0")
    a("s_cbranch_scc1 K2_FIN")
    a("s_nop 1")
    a("s_cmp_eq_u64 vcc, 0")
    a("s_cbranch_scc1 K2_FIN")
    a("s_waitcnt lgkmcnt(0)")
    a("s_mov_b32 s26, 100")
    vaddr_init()
    for q in range(2):
        for i in range(16):
            a(f"v_mov_b32 v{O[q]+i}, 0")
    a("v_mov_b32 v44, 0xff800000")
    a("v_mov_b32 v45, 0xff800000")
    a("v_mov_b32 v43, v3")
    a("s_mov_b32 s27, 64")
    a.label("K2_MAXLOOP")
    a(f"ds_read_b128 {v(KB[0],4)}, v43")
    a("v_add_u32 v43, 1024, v43")
    a("s_waitcnt lgkmcnt(0)")
    for q in range(2):
        a(f"{MF} {v(S[q],16)}, {v(KB[0],4)}, {v(Q[q],4)}, 0")
    a("s_nop 7")
    a("s_nop 7")
    for q in range(2):
        maxtree(S[q], 44 + q, acc=True)
    a("s_sub_u32 s27, s27, 1")
    a("s_cmp_lg_u32 s27, 0")
    a("s_cbranch_scc1 K2_MAXLOOP")
    a("s_branch K2_SETMAX")
    a.label("K2_FIN")
    for q in range(2):
        a(f"v_rcp_f32 v{48+q}, v{O[q]+8}")
    a(f"s_mov_b32 s74, {SPIN*8}")
    a.label("K2_GW")
    a("s_waitcnt lgkmcnt(0)")
    a("v_readfirstlane_b32 s75, v47")
    a("s_sub_u32 s74, s74, 1")
    a("s_cmp_eq_u32 s74, 0")
    a("s_cbranch_scc1 K2_GOK")
    a("s_cmp_ge_u32 s75, 2")
    a("s_cbranch_scc1 K2_GOK")
    a("s_sleep 1")
    a("ds_read_b32 v47, v46")
    a(f"ds_read_b32 v{G[0]}, v7")
    a(f"ds_read_b32 v{G[1]}, v7 offset:128")
    a("s_branch K2_GW")
    a.label("K2_GOK")
    for q in range(2):
        a(f"v_mul_f32 v{44+2*q}, v{48+q}, v{G[q]}")
    GR = S[0]
    for r in (3, 7, 10, 11):
        a(f"v_mov_b32 v{GR+r}, s68")
    for q in range(2):
        for i in range(0, 8, 2):
            a(f"v_pk_mul_f32 {v(O[q]+i,2)}, {v(O[q]+i,2)}, {v(44+2*q,2)} op_sel_hi:[1,0]")
        for i in range(0, 8, 2):
            dst = GR + 4 * q + i // 2 if i < 6 else GR + 8 + q
            a(f"v_cvt_pk_bf16_f32 v{dst}, v{O[q]+i}, v{O[q]+i+1}")
        a(f"buffer_store_dwordx4 {v(GR+4*q,4)}, v3, s[28:31], s25 offen offset:{q*1024}{SC}")
    a(f"buffer_store_dwordx4 {v(GR+8,4)}, v3, s[28:31], s25 offen offset:2048{SC}")
    a("s_lshl_b32 s24, s24, 7")
    a(f"s_add_u32 s24, s24, {FL_C}")
    if HINTW:
        a(f"s_waitcnt vmcnt(0)")
    a("s_mov_b64 exec, 1")
    a(f"buffer_store_dword v{GR+3}, v3, s[28:31], s24 offen sc1")
    a("s_mov_b64 exec, -1")
    a("s_setprio 0")
    stamp(a, 6)
    for i in range(2, 6):
        stamp(a, i, 8)
    a("s_barrier                              ; Y0")
    a("s_branch K3_REDUCE")

    a.label("K1_LOADER")
    a("s_sub_u32 s23, s20, 4                  ; L")
    VX0, VX1, VW, VG, VU = 10, 11, 12, 13, 14
    a("v_lshrrev_b32 v4, 3, v2")
    a("v_and_b32 v5, 7, v2")
    a("v_lshrrev_b32 v6, 4, v2")
    a("v_xor_b32 v7, v5, v6")
    a("v_lshlrev_b32 v7, 4, v7")
    a(f"v_lshl_add_u32 v{VX0}, v4, 10, v7")
    a(f"v_xor_b32 v{VX1}, 64, v{VX0}")
    a("v_and_b32 v7, 1, v6")
    a("v_lshlrev_b32 v7, 2, v7")
    a("v_xor_b32 v7, v7, v5")
    a("v_mul_u32_u24 v8, 3072, v4")
    a(f"v_lshl_add_u32 v{VW}, v7, 4, v8")
    a("s_waitcnt lgkmcnt(0)")
    stamp(a, 1, 7)
    srd(a, 24, 4, 0x200000)
    srd(a, 44, 6, 0x180000)
    a("s_lshl_b32 s32, s60, 16")
    a("s_lshl_b32 s33, s23, 14")
    a("s_add_u32 s32, s32, s33")
    a("s_mul_i32 s33, s23, 49152")
    a("s_lshl_b32 s34, s61, 7")
    a("s_add_u32 s33, s33, s34")
    a("s_lshl_b32 s35, s23, 11")
    a("s_mov_b32 s36, s62                     ; kc")
    queue = []
    def issue1(c):
        slot = ((c + 1) % 4) * S1
        a("s_lshl_b32 s37, s36, 7")
        a("s_add_u32 s37, s37, s32")
        a("s_mul_i32 s38, s36, 196608")
        a("s_add_u32 s38, s38, s33")
        a(f"s_add_u32 m0, s35, {slot}")
        a("s_add_u32 s39, s37, 8192")
        a(f"buffer_load_dwordx4 v{VX0}, s[24:27], s37 offen lds")
        a(f"s_add_u32 m0, s35, {slot + 1024}")
        a("s_add_u32 s36, s36, 1")
        a(f"buffer_load_dwordx4 v{VX1}, s[24:27], s39 offen lds")
        for ty in range(3):
            for i in range(2):
                a(f"s_add_u32 m0, s35, {slot + 8192 + ty*8192 + i*1024}")
                a(f"s_add_u32 s39, s38, {ty*1024 + i*24576}")
                a(f"buffer_load_dwordx4 v{VW}, s[44:47], s39 offen lds")
        a("s_and_b32 s36, s36, 7")
        queue.extend([("a", c)] * 8)
    def waitq(tag):
        n = len(queue) - 1 - max(i for i, t in enumerate(queue) if t == tag)
        a(f"s_waitcnt vmcnt({n})")
    if TAGPOS == 2:
        a("s_memrealtime s[56:57]")
    stamp(a, 2, 7)
    issue1(0)
    stamp(a, 3, 7)
    srd(a, 48, 18, 1024)
    a(f"s_mov_b32 m0, {LDS_GW}")
    a("s_nop 0")
    a("buffer_load_dwordx4 v3, s[48:51], 0 offen lds")
    queue.append(("a", 0))
    issue1(1)
    stamp(a, 4, 7)
    a("v_mov_b32 v9, 0")
    a("s_add_u32 s37, s2, s20")
    a("s_cmp_eq_u32 s37, 4")
    a("s_cbranch_scc0 K1_NOTAG")
    if TAGPOS == 0:
        a("s_memrealtime s[56:57]")
    a("s_waitcnt lgkmcnt(0)")
    a("s_or_b32 s56, s56, 1")
    a("s_or_b32 s57, s57, 0x80000000")
    a("v_mov_b32 v4, s56")
    a("v_mov_b32 v5, s57")
    a("s_mov_b64 exec, 1")
    a("global_store_dwordx2 v9, v[4:5], s[66:67] sc1")
    a("s_mov_b64 exec, -1")
    a.label("K1_NOTAG")
    stamp(a, 1)
    a("v_and_b32 v5, 15, v2")
    a("v_lshlrev_b32 v7, 2, v6")
    a("v_xor_b32 v7, v7, v5")
    a("v_mul_u32_u24 v8, 3584, v6")
    a(f"v_lshl_add_u32 v{VG}, v7, 4, v8")
    a(f"v_xor_b32 v{VU}, 32, v{VG}")
    srd(a, 48, 12, 0x1c0000)
    srd(a, 52, 14, 0x1c0000)
    srd(a, 28, 10, WS_SIZE)
    a("s_lshl_b32 s40, s21, 17")
    a("s_lshl_b32 s41, s23, 15")
    a("s_add_u32 s40, s40, s41")
    a("s_mul_i32 s41, s23, 57344")
    a("s_lshl_b32 s42, s22, 8")
    a("s_add_u32 s41, s41, s42")
    a("s_lshl_b32 s42, s23, 12")
    a("s_mov_b32 s43, s63                     ; kc")
    if SPF:
        a("s_bitcmp1_b32 s23, 0")
        a("s_cselect_b64 s[56:57], s[14:15], s[12:13]")
        a("s_mov_b32 s58, 0x1c0000")
        a("s_mov_b32 s59, 0x20000")
        a("s_and_b32 s76, s2, 1")
        a("s_lshl_b32 s76, s76, 5")
        a("s_lshr_b32 s77, s2, 3")
        a("s_add_u32 s76, s76, s77                ; u")
        a("s_lshl_b32 s76, s76, 1")
        a("s_lshr_b32 s77, s23, 1")
        a("s_add_u32 s76, s76, s77")
        a("s_mul_i32 s76, s76, 14336              ; 4 rows")
        a("s_bfe_u32 s77, s2, 0x20001")
        a("s_lshl_b32 s77, s77, 10")
        a("s_add_u32 s76, s76, s77")
    def issue2(c, parts="xgu"):
        slot = ((c + 1) % 3) * S2
        a("s_lshl_b32 s37, s43, 7")
        a("s_add_u32 s37, s37, s40")
        a("s_mul_i32 s38, s43, 229376")
        a("s_add_u32 s38, s38, s41")
        for i in range(4):
            if "x" in parts:
                a(f"s_add_u32 m0, s42, {slot + i*1024}")
                a(f"s_add_u32 s39, s37, {i*8192}")
                a(f"buffer_load_dwordx4 v{VX1 if i & 1 else VX0}, s[24:27], s39 offen lds")
            if "g" in parts:
                a(f"s_add_u32 m0, s42, {slot + 16384 + i*1024}")
                a(f"s_add_u32 s39, s38, {i*14336}")
                a(f"buffer_load_dwordx4 v{VG}, s[48:51], s39 offen lds")
            if "u" in parts:
                a(f"s_add_u32 m0, s42, {slot + 32768 + i*1024}")
                a(f"s_add_u32 s39, s38, {i*14336}")
                a(f"buffer_load_dwordx4 v{VU}, s[52:55], s39 offen lds")
        if "u" in parts:
            a("s_add_u32 s43, s43, 1")
            a("s_and_b32 s43, s43, 7")
        queue.extend([("b", c)] * (4 * len(parts)))
    for c in range(6):
        waitq(("a", c))
        stamp(a, c + 1, 2)
        if c < 2:
            stamp(a, 5 + c, 7)
        a("s_barrier")
        stamp(a, c + 1, 4)
        if SPF and 1 <= c <= 4:
            for q in range(8):
                a(f"s_add_u32 s77, s76, {q*128}")
                a("s_buffer_load_dword s79, s[56:59], s77")
            a("s_add_u32 s76, s76, 3584")
        if c == 0:
            issue1(2)
            issue1(3)
        if 1 <= c <= 4:
            issue1(c + 3)
    a("global_load_dwordx2 v[60:61], v9, s[66:67] sc1")
    qsave = list(queue)
    a("s_cmp_ge_u32 s22, 14")
    a("s_cbranch_scc1 IDLE_L")
    issue2(0, "x")
    waitq(("a", 6))
    a("s_barrier")
    issue2(0, "gu")
    waitq(("a", 7))
    a("s_barrier")
    issue2(1, "xg")
    a("s_barrier                              ; barrier(8)")
    issue2(1, "u")
    stamp(a, 2)
    def get_tag():
        lab, done = a.newlabel("TAG"), a.newlabel("TAGD")
        a(f"s_mov_b32 s74, {SPIN}")
        a.label(lab)
        a("v_readfirstlane_b32 s68, v60")
        a("v_readfirstlane_b32 s69, v61")
        a("s_sub_u32 s74, s74, 1")
        a("s_cmp_eq_u32 s74, 0")
        a(f"s_cbranch_scc1 {done}")
        a("s_min_u32 s75, s68, s69")
        a("s_cmp_lg_u32 s75, 0")
        a(f"s_cbranch_scc1 {done}")
        a("s_sleep 2")
        a("global_load_dwordx2 v[60:61], v9, s[66:67] sc1")
        a("s_waitcnt vmcnt(0)")
        a(f"s_branch {lab}")
        a.label(done)
        a(f"v_mov_b32 v4, {LDS_TAG}")
        a("ds_write_b64 v4, v[60:61]")
        a("ds_write_b32 v4, v9 offset:8")
    def flag_a():
        lab = a.newlabel("FA")
        a("s_cmp_lg_u32 s23, 1")
        a(f"s_cbranch_scc1 {lab}")
        a("s_lshl_b32 s37, s61, 5")
        a("s_add_u32 s37, s37, s60")
        a("s_lshl_b32 s37, s37, 7")
        a(f"s_add_u32 s37, s37, {FL_A}")
        flag_store(a, "s37", 16)
        a.label(lab)
    def kv_setup():
        a("v_and_b32 v5, 31, v2")
        a("v_lshlrev_b32 v5, 7, v5                ; (lane&31)*128")
        a("s_and_b32 s56, s2, 7")
        a("s_lshl_b32 s56, s56, 12")
        a(f"s_add_u32 s56, s56, {FL_A}")
        a("s_lshl_b32 s57, s70, 16")
        a("s_lshl_b32 s58, s23, 10")
        a("s_add_u32 s57, s57, s58                ; head*64K + L*1K")
        a(f"s_mul_i32 s59, s23, {VP}")
        a(f"s_add_u32 s59, s59, {LDS_V}")
    def kv_loads(lo, hi, ldsreg, ldsstride, wsoff):
        n = hi - lo
        a(f"s_mul_i32 s44, s71, {n}")
        a("s_lshr_b32 s44, s44, 3")
        if not KVROT:
            a("s_mov_b32 s44, 0")
        for i in range(n):
            a(f"s_mul_i32 s45, s44, {ldsstride}")
            a(f"s_add_u32 s45, s45, {lo*ldsstride}")
            a(f"s_add_u32 m0, s45, s{ldsreg}")
            a("s_lshl_b32 s37, s44, 12")
            a("s_add_u32 s37, s37, s57")
            a(f"s_add_u32 s37, s37, {wsoff + lo*4096}")
            a(f"buffer_load_dwordx4 v3, s[28:31], s37 offen{SC} lds")
            if i < n - 1:
                a("s_add_u32 s44, s44, 1")
                a(f"s_cmp_eq_u32 s44, {n}")
                a("s_cselect_b32 s44, 0, s44")
    def k_loads(lo, hi):
        kv_loads(lo, hi, 58, 4096, WS_K)
    def v_loads(lo, hi):
        kv_loads(lo, hi, 59, 4 * VP, WS_V)
    def qg_loads():
        a("s_lshl_b32 s32, s70, 6")
        a("s_lshl_b32 s33, s71, 3")
        a("s_add_u32 s32, s32, s33")
        a("s_lshl_b32 s33, s23, 1")
        a("s_add_u32 s32, s32, s33")
        a("s_lshl_b32 s32, s32, 10")
        a("s_lshl_b32 s33, s23, 11")
        a(f"s_add_u32 m0, s33, {LDS_Q}")
        a("s_nop 0")
        a(f"buffer_load_dwordx4 v3, s[28:31], s32 offen{SC} lds")
        a(f"buffer_load_dwordx4 v3, s[28:31], s32 offen offset:1024{SC} lds")
    a("s_waitcnt lgkmcnt(0)")
    kv_setup()
    for c in range(8):
        if c == 7:
            a(f"s_waitcnt vmcnt({2 + 12})")
        else:
            waitq(("b", c))
        if c == 0:
            get_tag()
        if c == 6:
            a("s_waitcnt vmcnt(12)")
            a("v_xor_b32 v20, s68, v20")
            a("v_xor_b32 v21, s69, v21")
            a("v_or_b32 v20, v20, v21")
            a("v_cmp_ne_u32 vcc, 0, v20")
            a("s_nop 1")
            a("s_cmp_eq_u64 vcc, 0")
            a("s_cbranch_scc1 P2_AOK")
            poll(a, "s56", 5, 8)
            a.label("P2_AOK")
        if c < 6:
            stamp(a, c + 1, 3)
        a(f"s_barrier                              ; b({c})")
        if c < 6:
            stamp(a, c + 1, 5)
        if c == 2:
            flag_a()
        if c == 5:
            a("buffer_load_dwordx2 v[20:21], v5, s[28:31], s56 offen sc1")
        if 0 <= c <= 5:
            issue2(c + 2)
        if c == 6:
            qg_loads()
            k_loads(0, 12)
        if c == 7:
            k_loads(12, 16)
            v_loads(0, 7)
    a("s_waitcnt lgkmcnt(0)")
    a("s_barrier")
    v_loads(7, 16)
    a("s_branch K2_GEMM")
    a.label("IDLE_L")
    a("s_waitcnt vmcnt(0) lgkmcnt(0)")
    get_tag()
    a("s_barrier                              ; barrier(6)")
    a("s_barrier                              ; barrier(7)")
    a("s_barrier                              ; barrier(8)")
    stamp(a, 2)
    a("s_barrier                              ; I0")
    flag_a()
    kv_setup()
    poll(a, "s56", 5, 8)
    qg_loads()
    k_loads(0, 16)
    v_loads(0, 16)

    a.label("K2_GEMM")
    a(f"v_mul_u32_u24 v4, {VP}, v2")
    a(f"v_add_u32 v4, {LDS_V + 1024}, v4")
    for i in range(4):
        a(f"v_mov_b32 v{20+i}, 0x3f803f80")
        a(f"v_mov_b32 v{24+i}, 0")
    a("ds_write_b128 v4, v[20:23]")
    a("ds_write_b128 v4, v[24:27] offset:16")
    a(f"ds_write_b128 v4, v[20:23] offset:{4*VP}")
    a(f"ds_write_b128 v4, v[24:27] offset:{4*VP+16}")
    ND, NW = 28, 8
    NS = 3
    srd(a, 44, 16, 0x1c0000)
    srd(a, 48, 8, 0x80000)
    a("s_lshr_b32 s42, s2, 3")
    a("s_and_b32 s43, s42, 7")
    a("s_lshr_b32 s42, s42, 3")
    a("s_lshl_b32 s42, s42, 1")
    a("s_add_u32 s42, s42, s43")
    a("s_cmp_ge_u32 s42, 7")
    a("s_cselect_b32 s43, 7, 0")
    a("s_sub_u32 s42, s42, s43                ; 0..6")
    if not ROT:
        a("s_mov_b32 s42, 0")
    a("s_mov_b32 s52, s42")
    a(f"s_mul_i32 s32, s23, {ND}")
    a("s_lshl_b32 s43, s42, 2")
    a("s_add_u32 s32, s32, s43")
    a(f"s_mul_i32 s33, s72, {2*144*1024}")
    a(f"s_add_u32 s33, s33, {WS_ACT}")
    a("s_lshl_b32 s43, s32, 10")
    a("s_add_u32 s33, s33, s43")
    a(f"s_add_u32 s34, s33, {144*1024}")
    a("s_lshl_b32 s43, s73, 7")
    a("s_lshl_b32 s35, s32, 14")
    a("s_add_u32 s35, s35, s43")
    a("s_lshl_b32 s39, s23, 17")
    a("s_add_u32 s39, s39, s43")
    a(f"s_mul_i32 s53, s23, {NS*2048}")
    a(f"s_add_u32 s53, s53, {LDS_WS}")
    a("v_lshrrev_b32 v4, 3, v2")
    a("v_and_b32 v5, 7, v2")
    a("v_bfe_u32 v7, v2, 4, 1")
    a("v_lshlrev_b32 v7, 2, v7")
    a("v_xor_b32 v5, v5, v7")
    a("v_lshlrev_b32 v5, 4, v5")
    a("v_lshl_add_u32 v10, v4, 10, v5")
    a("v_add_u32 v11, 7168, v10")
    a("v_bfe_u32 v4, v2, 2, 2")
    a("v_lshrrev_b32 v5, 5, v2")
    a("v_lshl_add_u32 v5, v5, 2, v4")
    a("v_lshlrev_b32 v5, 7, v5")
    a("v_lshrrev_b32 v4, 1, v4")
    a("v_lshl_add_u32 v5, v4, 6, v5")
    a("v_bfe_u32 v4, v2, 4, 1")
    a("v_lshl_add_u32 v5, v4, 5, v5")
    a("v_and_b32 v4, 3, v2")
    a("v_lshl_add_u32 v5, v4, 3, v5")
    a("v_xor_b32 v13, 64, v5")
    a("v_add_u32 v12, s53, v5")
    a("v_add_u32 v13, s53, v13")
    GA = 16
    FR = 80
    D = 8
    queue = []
    def ld(dst, sr, k, tag):
        a(f"buffer_load_dwordx4 {v(dst,4)}, v3, s[28:31], s{sr} offen offset:{(k%4)*1024}{SC}")
        queue.append(tag)
    def aloads(k):
        b = FR + (k % D) * 16
        ld(b + 4, 33, k, ("a", k)); ld(b + 12, 34, k, ("a", k))
        if k % 4 == 3:
            a("s_add_u32 s42, s42, 1")
            a("s_cmp_eq_u32 s42, 7")
            a("s_movk_i32 s43, 4096")
            a(f"s_cselect_b32 s43, {(-6*4096) & 0xffffffff:#x}, s43")
            a("s_cselect_b32 s42, 0, s42")
            for sr in (33, 34):
                a(f"s_add_u32 s{sr}, s{sr}, s43")
    def wloads(k):
        a(f"s_add_u32 m0, s53, {(k % NS) * 2048}")
        sr, rs = (35, 44) if k < ND else (39, 48)
        a("s_nop 0")
        a(f"buffer_load_dwordx4 v10, s[{rs}:{rs+3}], s{sr} offen lds")
        a(f"buffer_load_dwordx4 v11, s[{rs}:{rs+3}], s{sr} offen offset:1024 lds")
        queue.extend([("w", k)] * 2)
        a(f"s_add_u32 s{sr}, s{sr}, 16384")
        if k < ND and k % 4 == 3:
            a("s_add_u32 s52, s52, 1")
            a("s_cmp_eq_u32 s52, 7")
            a(f"s_cselect_b32 s43, {(-28*16384) & 0xffffffff:#x}, 0")
            a("s_cselect_b32 s52, 0, s52")
            a("s_add_u32 s35, s35, s43")
    def waitfor(*tags):
        n = len(queue) - 1 - max(i for i, t in enumerate(queue) if t in tags)
        a(f"s_waitcnt vmcnt({n})")
    def wreads(k):
        b = FR + (k % D) * 16
        for n in range(2):
            for u in range(2):
                a(f"ds_read_b64_tr_b16 {v(b+8*n+2*u,2)}, v{12+n} offset:{(k % NS) * 2048 + u*1024}")
    def mm(k):
        b = FR + (k % D) * 16
        for n in range(2):
            for t in range(2):
                acc = GA + (n * 2 + t) * 16
                cin = "0" if k == 0 else v(acc, 16)
                a(f"{MF} {v(acc,16)}, {v(b+8*n,4)}, {v(b+4+8*t,4)}, {cin}")
    stamp(a, 3)
    a("s_waitcnt vmcnt(0) lgkmcnt(0)")
    a("s_barrier                              ; X1")
    a("s_setprio 3")
    a("s_barrier                              ; X2")
    a("s_cmp_lg_u32 s23, 1")
    a("s_cbranch_scc1 K2_NOB1")
    a("s_lshl_b32 s37, s21, 4")
    a("s_add_u32 s37, s37, s22")
    a("s_lshl_b32 s37, s37, 7")
    a(f"s_add_u32 s37, s37, {FL_B1}")
    flag_store(a, "s37", 16)
    a.label("K2_NOB1")
    if WARMW:
        a("s_lshr_b32 s54, s2, 3")
        a("s_and_b32 s54, s54, 7")
        a("s_lshl_b32 s55, s54, 2")
        a("s_add_u32 s55, s55, s23")
        a("s_mul_i32 s55, s55, 57344")
        a("s_add_u32 s55, s55, s43")
        a("v_min_u32 v14, 55, v2")
        a("v_lshlrev_b32 v14, 10, v14")
        a("buffer_load_dword v15, v14, s[44:47], s55 offen")
        a("s_lshl_b32 s55, s54, 2")
        a("s_add_u32 s55, s55, s23")
        a("s_lshl_b32 s55, s55, 14")
        a("s_add_u32 s55, s55, s43")
        a("v_and_b32 v14, 15, v2")
        a("v_lshlrev_b32 v14, 10, v14")
        a("buffer_load_dword v15, v14, s[48:51], s55 offen")
    for k in range(NS):
        wloads(k)
    a("s_setprio 3")
    a("v_min_u32 v6, 45, v2")
    a("v_lshlrev_b32 v6, 7, v6")
    a("s_lshr_b32 s24, s72, 1")
    a("s_lshl_b32 s24, s24, 11")
    a(f"s_add_u32 s24, s24, {FL_B1 - FL_A}")
    a(f"s_mov_b32 s25, {7*4096 - 14*128}")
    a("v_mov_b32 v7, s24")
    a("v_mov_b32 v8, s25")
    a("v_cmp_gt_u32 vcc, 14, v2")
    a("s_nop 1")
    a("v_cndmask_b32 v7, v8, v7, vcc")
    a("v_add_u32 v6, v6, v7")
    a(f"s_mov_b32 s24, {FL_A}")
    def g_to_lds():
        a("s_lshl_b32 s55, s71, 10")
        a(f"s_mov_b32 m0, {LDS_GQ}")
        a(f"s_add_u32 s55, s55, {WS_G}")
        a(f"buffer_load_dwordx4 v3, s[28:31], s55 offen{SC} lds")
        a("s_waitcnt vmcnt(0)")
    poll_shared(a, 2, [("s24", 6, 8, 4)], 20, lslp=4, extra=g_to_lds)
    a("v_and_b32 v6, 31, v2")
    a("v_lshlrev_b32 v6, 2, v6")
    a("s_lshl_b32 s55, s72, 8")
    a(f"s_add_u32 s55, s55, {WS_G}")
    a(f"buffer_load_dword v240, v6, s[28:31], s55 offen{SC}")
    a(f"buffer_load_dword v242, v6, s[28:31], s55 offen offset:128{SC}")
    stamp(a, 4)
    DA = 4
    a("s_setprio 0")
    for k in range(DA):
        aloads(k)
    for k in range(ND + NW):
        waitfor(("w", k), ("a", k))
        wreads(k)
        a("s_waitcnt lgkmcnt(0)")
        if k + NS < ND + NW:
            wloads(k + NS)
        if k + DA < ND:
            aloads(k + DA)
        if k < ND:
            mm(k)
    a("s_setprio 3")
    a("s_nop 7")
    a("v_sub_f32 v12, 1.0, v240")
    a("v_sub_f32 v14, 1.0, v242")
    a("s_nop 7")
    for n in range(2):
        for t in range(2):
            acc = GA + (n * 2 + t) * 16
            for j in range(0, 16, 2):
                a(f"v_pk_mul_f32 {v(acc+j,2)}, {v(acc+j,2)}, {v(12+2*t,2)} op_sel_hi:[1,0]")
    a("v_and_b32 v4, 31, v2")
    a(f"v_mul_u32_u24 v4, {RP}, v4")
    a("v_lshrrev_b32 v6, 5, v2")
    a("v_lshl_add_u32 v4, v6, 4, v4")
    a(f"s_mul_i32 s32, s23, {64*RP}")
    a("v_add_u32 v4, s32, v4")
    a("s_lshl_b32 s24, s72, 2")
    a("s_add_u32 s24, s24, s23")
    a(f"s_mul_i32 s24, s24, {8*3072}")
    a(f"s_add_u32 s24, s24, {WS_O}")
    a("v_and_b32 v6, 7, v2")
    a("v_lshlrev_b32 v6, 7, v6")
    a("s_lshl_b32 s26, s72, 12")
    a("s_lshl_b32 s25, s23, 10")
    a("s_add_u32 s26, s26, s25")
    a(f"s_add_u32 s26, s26, {FL_C}")
    a("s_mov_b32 s54, 0")
    a(f"s_mov_b32 s74, {SPIN}")
    stamp(a, 5)
    stamp(a, 1, 8)
    XR = 208
    a.label("K3_ROUND")
    a("v_mov_b32 v8, 0")
    a("s_mov_b64 exec, 0xff")
    if ATPOLL:
        a("buffer_atomic_or v8, v6, s[28:31], s26 offen sc0 sc1")
    else:
        a("buffer_load_dword v8, v6, s[28:31], s26 offen sc1")
    a("s_waitcnt vmcnt(0)")
    a("v_cmp_eq_u32 vcc, s68, v8")
    a("s_mov_b64 exec, -1")
    a("s_cmp_eq_u32 s74, 0")
    a("s_cselect_b32 s55, 0xff, vcc_lo")
    a("s_andn2_b32 s55, s55, s54")
    a("s_cbranch_scc1 K3_SOME")
    a("s_sub_u32 s74, s74, 1")
    a(f"s_sleep {TSLP}")
    a("s_branch K3_ROUND")
    a.label("K3_SOME")
    for kk in range(NW):
        b = FR + ((ND + kk) % D) * 16
        a(f"s_bitcmp1_b32 s55, {kk}")
        a(f"s_cbranch_scc0 K3_L{kk}")
        a(f"s_add_u32 s25, s24, {kk*3072}")
        a(f"buffer_load_dwordx4 {v(b+4,4)}, v3, s[28:31], s25 offen{SC}")
        a(f"buffer_load_dwordx4 {v(b+12,4)}, v3, s[28:31], s25 offen offset:1024{SC}")
        a(f"buffer_load_dwordx4 {v(XR+4*kk,4)}, v3, s[28:31], s25 offen offset:2048{SC}")
        a.label(f"K3_L{kk}")
    a("s_sub_u32 s74, s74, 1")
    a("s_cselect_b32 s75, 0, -1")
    a("s_waitcnt vmcnt(0)")
    for kk in range(NW):
        b = FR + ((ND + kk) % D) * 16
        a(f"s_bitcmp1_b32 s55, {kk}")
        a(f"s_cbranch_scc0 K3_C{kk}")
        a(f"v_xor_b32 v8, s68, v{b+7}")
        a(f"v_xor_b32 v9, s68, v{b+15}")
        a(f"v_xor_b32 v10, s68, v{XR+4*kk+3}")
        a("v_or3_b32 v8, v8, v9, v10")
        a("v_and_b32 v8, s75, v8")
        a("v_cmp_ne_u32 vcc, 0, v8")
        a(f"v_mov_b32 v{b+7}, v{XR+4*kk}")
        a(f"v_mov_b32 v{b+15}, v{XR+4*kk+1}")
        a("s_cmp_eq_u64 vcc, 0")
        a(f"s_cbranch_scc0 K3_C{kk}")
        mm(ND + kk)
        a(f"s_bitset1_b32 s54, {kk}")
        a.label(f"K3_C{kk}")
    a("s_cmp_lg_u32 s54, 0xff")
    a("s_cbranch_scc1 K3_ROUND")
    stamp(a, 6)
    stamp(a, 2, 8)
    a("s_barrier                              ; Y0")
    for i in range(3, 6):
        stamp(a, i, 8)
    a("s_nop 7")
    a("s_nop 7")
    for n in range(2):
        for t in range(2):
            acc = GA + (n * 2 + t) * 16
            for g in range(4):
                a(f"ds_write_b128 v4, {v(acc+4*g,4)} offset:{t*32*RP + n*128 + g*32}")
    a.label("K3_REDUCE")
    srd(a, 24, 64, 0x200000)
    a("s_lshl_b32 s32, s20, 6")
    a("v_add_u32 v0, s32, v2                  ; tid")
    a("v_lshrrev_b32 v7, 3, v0                ; token")
    a("v_and_b32 v5, 7, v0")
    a(f"v_mul_u32_u24 v6, {RP}, v7")
    a("v_lshl_add_u32 v6, v5, 5, v6")
    a("v_lshlrev_b32 v7, 10, v7")
    a("v_lshl_add_u32 v7, v5, 4, v7")
    a("s_lshl_b32 s32, s72, 16")
    a("s_lshl_b32 s33, s73, 7")
    a("s_add_u32 s32, s32, s33")
    a("s_waitcnt lgkmcnt(0)")
    a("s_barrier                              ; Y1")
    stamp(a, 6, 8)
    for w in range(4):
        a(f"ds_read_b128 {v(208+8*w,4)}, v6 offset:{w*64*RP}")
        a(f"ds_read_b128 {v(212+8*w,4)}, v6 offset:{w*64*RP+16}")
    for w in range(1, 4):
        a(f"s_waitcnt lgkmcnt({2*(3-w)})")
        for j in range(0, 8, 2):
            a(f"v_pk_add_f32 {v(208+j,2)}, {v(208+j,2)}, {v(208+8*w+j,2)}")
    for j in range(0, 8, 2):
        a(f"v_cvt_pk_bf16_f32 v{16+j//2}, v{208+j}, v{208+j+1}")
    a("buffer_store_dwordx4 v[16:19], v7, s[24:27], s32 offen")
    if PADEND:
        pad_until(a, PADEND)
    stamp_flush(a, 8)
    a.label("K_EXIT")
    a("s_endpgm")
    a.label("K_END")

def main():
    hdr = open("cdna_kernels/" + NAME + ".s.ref").read().split("\n")
    top = [l for l in hdr if l.startswith(";") and "@launch" not in l]
    out = "\n".join(top) + "\n"
    out += f"; @launch grid=(256,1,1) block=(512,1,1) lds={LDS_TOTAL}\n"
    out += '.amdgcn_target "amdgcn-amd-amdhsa--gfx950"\n.text\n'
    a = Asm()
    gen(a)
    out += a.text()
    out += '.section .rodata,"a"\n'
    out += kernel_desc(KNAME, 256, 102)
    path = sys.argv[1] if len(sys.argv) > 1 else "cdna_kernels/" + NAME + ".s"
    open(path, "w").write(out)

main()
```

```python
import sys, math, os
from asmlib import *

NAME = "gated_mix__softmax_full_mha__geglu_ffn__prompt"
KNAME = NAME + "_kernel"
LOG2E = 1.4426950408889634
def env(n, d): return int(os.environ.get(n, str(d)))
PROF = env("PROF", 0)
ROT = env("ROT", 1)
TAGPOS = env("TAGPOS", 0)
PADEND = env("PADEND", 0)
PADATT = env("PADATT", 0)
DBGWG = env("DBGWG", -1)
TLBW = env("TLBW", 0)
PFW = env("PFW", 0)
PFI = env("PFI", 1)
PFX = env("PFX", 0)
KVROT = env("KVROT", 1)
AFLAG = env("AFLAG", 11)
ROT1 = env("ROT1", 2)
OUTSC = os.environ.get("OUTSC", "")
PRE = env("PRE", 2)
QLD = env("QLD", 4)
WARMW = env("WARMW", 1)
ATPOLL = env("ATPOLL", 1)
HINTW = env("HINTW", 0)
TSLP = env("TSLP", 4)
SPF = env("SPF", 0)
CODEPF = env("CODEPF", 1)
SLP = env("SLP", 4)

WS_Q = 0x0
WS_K = 0x200000
WS_V = 0x400000
WS_ACT = 0x600000
WS_O = 0xF00000
WS_G = 0x1240000
WS_FL = 0x1280000
FL_A = WS_FL
FL_B1 = WS_FL + 0x8000
FL_B2 = WS_FL + 0x10000
FL_C = WS_FL + 0x20000
WS_STAMP = 0x1800000
WS_SIZE = 0x2000000

SL = 40960
RING = 38912
LDS_GQ = 162176
LDS_TAG = 163328
LDS_SYNC = LDS_TAG + 8
LDS_TOTAL = 163840
LDS_V = 65536
VP = 1056
LDS_WS = 137344 + 128
RP = 272
LDS_Q = RING + 2 * SL + 32768
def slot_of(c):
    return RING + ((c + 2) % 3) * SL

SC = " sc1"
SPIN = 200000
MF = "v_mfma_f32_32x32x16_bf16"

def srd(a, d, base, nbytes):
    a(f"s_mov_b32 s{d}, s{base}")
    a(f"s_mov_b32 s{d+1}, s{base+1}")
    a(f"s_mov_b32 s{d+2}, {nbytes:#x}")
    a(f"s_mov_b32 s{d+3}, 0x20000")

def stamp(a, i, lvl=1):
    if PROF and (PROF == lvl or i in (0, 7)):
        a("s_memrealtime s[96:97]")
        a("s_memtime s[98:99]")
        a("s_waitcnt lgkmcnt(0)")
        a(f"s_mov_b32 s{80+i}, s96")
        a(f"s_mov_b32 s{88+i}, s98")

def stamp_flush(a, n):
    if PROF:
        a("s_waitcnt vmcnt(0)")
        stamp(a, n - 1)
        a("s_lshl_b32 s78, s2, 4")
        a("s_add_u32 s78, s78, s20")
        a("s_lshl_b32 s78, s78, 6")
        a(f"s_add_u32 s78, s78, {WS_STAMP}")
        a("v_mov_b32 v1, 0")
        for i in range(n):
            a(f"v_mov_b32 v0, s{80+i}")
            a(f"buffer_store_dword v0, v1, s[28:31], s78 offen offset:{4*i}")
            a("s_nop 1")
            a(f"v_mov_b32 v0, s{88+i}")
            a(f"buffer_store_dword v0, v1, s[28:31], s78 offen offset:{32+4*i}")
            a("s_nop 1")
        a("s_waitcnt vmcnt(0)")
        if DBGWG >= 0:
            a(f"s_cmp_lg_u32 s2, {DBGWG}")
            a("s_cbranch_scc1 DBG_SKIP")
            a("s_and_b32 s78, s20, 3")
            a("s_cmp_lg_u32 s78, 0")
            a("s_cbranch_scc1 DBG_SKIP")
            a("s_mul_i32 s78, s20, 7")
            a("v_mov_b32 v1, s78")
            for i in range(1, n):
                a(f"s_sub_u32 s79, s{80+i}, s80")
                a("v_mov_b32 v0, s79")
                a(f"global_store_dword v1, v0, s[66:67] offset:{4+4*i}")
                a("s_nop 1")
            a("s_waitcnt vmcnt(0)")
            a.label("DBG_SKIP")

def pad_until(a, ticks):
    lab = a.newlabel("PAD")
    a.label(lab)
    a("s_memrealtime s[96:97]")
    a("s_waitcnt lgkmcnt(0)")
    a("s_sub_u32 s96, s96, s68")
    a(f"s_cmp_lt_u32 s96, {ticks}")
    a(f"s_cbranch_scc1 {lab}")

def flag_store(a, soff, vtmp):
    a(f"v_mov_b32 v{vtmp}, s68")
    a(f"v_mov_b32 v{vtmp+1}, s69")
    a(f"v_mov_b32 v{vtmp+2}, 0")
    a("s_mov_b64 exec, 1")
    a(f"buffer_store_dwordx2 {v(vtmp,2)}, v{vtmp+2}, s[28:31], {soff} offen sc1")
    a("s_mov_b64 exec, -1")

def poll(a, soff, voff, vtmp, slp=None):
    lab = a.newlabel("POLL")
    done = a.newlabel("POLLD")
    a(f"s_mov_b32 s74, {SPIN}")
    a.label(lab)
    a(f"buffer_load_dwordx2 {v(vtmp,2)}, v{voff}, s[28:31], {soff} offen sc1")
    a("s_waitcnt vmcnt(0)")
    a(f"v_xor_b32 v{vtmp}, s68, v{vtmp}")
    a(f"v_xor_b32 v{vtmp+1}, s69, v{vtmp+1}")
    a(f"v_or_b32 v{vtmp}, v{vtmp}, v{vtmp+1}")
    a(f"v_cmp_ne_u32 vcc, 0, v{vtmp}")
    a("s_sub_u32 s74, s74, 1")
    a("s_cmp_eq_u32 s74, 0")
    a(f"s_cbranch_scc1 {done}")
    a("s_cmp_eq_u64 vcc, 0")
    a(f"s_cbranch_scc1 {done}")
    a(f"s_sleep {SLP if slp is None else slp}")
    a(f"s_branch {lab}")
    a.label(done)

def poll_shared(a, stage, polls, vtmp, lslp=1, extra=None):
    other = a.newlabel("PSO")
    done = a.newlabel("PSD")
    a(f"v_mov_b32 v{vtmp+3}, {LDS_SYNC}")
    a("s_cmp_lg_u32 s23, 0")
    a(f"s_cbranch_scc1 {other}")
    for p in polls:
        poll(a, *p)
    if extra:
        extra()
    a(f"v_mov_b32 v{vtmp}, {stage}")
    a(f"ds_write_b32 v{vtmp+3}, v{vtmp}")
    a(f"s_branch {done}")
    a.label(other)
    a(f"s_mov_b32 s74, {SPIN*8}")
    lab = a.newlabel("PSL")
    a.label(lab)
    a(f"ds_read_b32 v{vtmp}, v{vtmp+3}")
    a("s_waitcnt lgkmcnt(0)")
    a(f"v_readfirstlane_b32 s75, v{vtmp}")
    a("s_sub_u32 s74, s74, 1")
    a("s_cmp_eq_u32 s74, 0")
    a(f"s_cbranch_scc1 {done}")
    a(f"s_cmp_ge_u32 s75, {stage}")
    a(f"s_cbranch_scc1 {done}")
    a(f"s_sleep {lslp}")
    a(f"s_branch {lab}")
    a.label(done)

def cvt_tile(a, acc, dst, lo=0, hi=16):
    for i in range(lo, hi, 2):
        a(f"v_cvt_pk_bf16_f32 v{dst + (i - lo)//2}, v{acc+i}, v{acc+i+1}")

def gen(a):
    kernel_header(a, KNAME)
    a("s_cmp_ge_u32 s2, 256")
    a("s_cbranch_scc1 K_EXIT")
    a("s_load_dwordx4 s[4:7], s[0:1], 0       ; x, wqkv")
    a("s_load_dwordx4 s[12:15], s[0:1], 32")
    a("s_load_dwordx2 s[8:9], s[0:1], 16      ; wo")
    a("s_load_dwordx2 s[10:11], s[0:1], 80    ; ws")
    a("s_load_dwordx4 s[16:19], s[0:1], 48")
    a("s_load_dwordx4 s[64:67], s[0:1], 64")
    a("v_lshrrev_b32 v1, 6, v0")
    a("v_and_b32 v2, 63, v0                   ; lane")
    a("v_readfirstlane_b32 s20, v1")
    a("v_lshlrev_b32 v3, 4, v2                ; lane*16")
    stamp(a, 0)
    a("s_and_b32 s24, s2, 1                   ; xh")
    a("s_bfe_u32 s25, s2, 0x20001             ; xq")
    a("s_lshr_b32 s26, s2, 3                  ; j")
    a("s_and_b32 s63, s26, 7")
    a("s_lshl_b32 s21, s24, 3")
    a("s_add_u32 s21, s21, s63                ; rb")
    a("s_lshr_b32 s27, s26, 3")
    a("s_mul_i32 s22, s25, 3")
    a("s_add_u32 s22, s22, s27")
    a("s_add_u32 s23, s25, 12")
    a("s_cmp_eq_u32 s27, 3")
    a("s_cselect_b32 s22, s23, s22            ; cb2")
    a("s_lshl_b32 s72, s25, 3")
    a("s_add_u32 s72, s72, s63                ; rb64")
    a("s_lshl_b32 s73, s24, 2")
    a("s_add_u32 s73, s73, s27                ; cb64")
    if ROT1 == 1:
        a("s_lshl_b32 s27, s27, 1")
        a("s_add_u32 s63, s63, s27")
    elif ROT1 == 2:
        a("s_add_u32 s63, s63, s27")
        a("s_lshl_b32 s63, s63, 1")
    elif ROT1 == 3:
        a("s_add_u32 s63, s63, s27")
        a("s_lshl_b32 s63, s63, 2")
    a(f"s_and_b32 s63, s63, {7 if ROT1 else 0}")
    a("s_and_b32 s70, s2, 7")
    a("s_lshl_b32 s70, s70, 2")
    a("s_and_b32 s27, s26, 3")
    a("s_add_u32 s70, s70, s27                ; head")
    a("s_lshr_b32 s71, s26, 2                 ; qb")
    a("s_cmp_lt_u32 s20, 4")
    a("s_cbranch_scc1 K1_COMPUTE")

    a("s_sub_u32 s23, s20, 4                  ; L")
    VX0, VX1, VR0, VR1, VKV = 10, 11, 12, 13, 14
    a("v_lshrrev_b32 v4, 3, v2")
    a("v_and_b32 v5, 7, v2")
    a("v_lshrrev_b32 v6, 4, v2")
    a("v_xor_b32 v7, v5, v6")
    a("v_lshlrev_b32 v7, 4, v7")
    a(f"v_lshl_add_u32 v{VX0}, v4, 10, v7")
    a(f"v_xor_b32 v{VX1}, 64, v{VX0}")
    a("v_and_b32 v7, 1, v6")
    a("v_lshlrev_b32 v7, 2, v7")
    a("v_xor_b32 v7, v7, v5")
    a("v_lshlrev_b32 v7, 4, v7")
    a("v_mul_u32_u24 v8, 3072, v4")
    a(f"v_add_u32 v{VKV}, v8, v7")
    a("v_mul_u32_u24 v8, 3584, v4")
    a("v_add_u32 v15, v8, v7")
    a("s_cmp_lt_u32 s22, 12")
    a("s_cselect_b64 vcc, -1, 0")
    a("s_movk_i32 s60, 3072")
    a("s_cselect_b32 s60, 3584, s60")
    a(f"v_cndmask_b32 v{VR0}, v{VKV}, v15, vcc")
    a(f"v_xor_b32 v{VR1}, 32, v{VR0}")
    a("s_cselect_b32 s32, 0, 12")
    a("s_sub_u32 s32, s22, s32")
    a("s_lshl_b32 s32, s32, 8")
    a("s_lshl_b32 s61, s22, 1")
    a("s_add_u32 s61, s61, 1")
    a("s_add_u32 s34, s22, 12")
    a("s_cmp_lt_u32 s22, 12")
    a("s_cselect_b32 s33, 0, 128              ; R1 - R0")
    a("s_cselect_b32 s61, s61, s34")
    a("s_lshl_b32 s61, s61, 7")
    a("s_mul_i32 s34, s23, 57344")
    a("s_add_u32 s61, s61, s34")
    a("s_lshl_b32 s34, s23, 4")
    a("s_mul_i32 s34, s34, s60")
    a("s_add_u32 s32, s32, s34")
    a("s_lshl_b32 s62, s60, 6")
    a("s_lshl_b32 s36, s60, 3                 ; 8 rows")
    a("s_mul_i32 s34, s23, 49152")
    a("s_lshl_b32 s35, s22, 7")
    a("s_add_u32 s34, s34, s35")
    a("s_add_u32 s34, s34, 1024")
    a("s_lshl_b32 s40, s21, 17")
    a("s_lshl_b32 s41, s23, 15")
    a("s_add_u32 s40, s40, s41                ; x base")
    a("s_lshl_b32 s42, s23, 12")
    a("s_lshl_b32 s35, s23, 11")
    a("s_mov_b32 s43, s63                     ; kc")
    a("s_waitcnt lgkmcnt(0)")
    srd(a, 24, 4, 0x200000)
    srd(a, 44, 6, 0x180000)
    a("s_cmp_lt_u32 s22, 12")
    a("s_cselect_b64 s[48:49], s[12:13], s[6:7]")
    a("s_cselect_b64 s[52:53], s[14:15], s[6:7]")
    a("s_cselect_b32 s50, 0x1c0000, s46")
    a("s_mov_b32 s54, s50")
    a("s_mov_b32 s51, 0x20000")
    a("s_mov_b32 s55, 0x20000")
    queue = []
    def issue(c):
        slot = slot_of(c)
        a("s_lshl_b32 s37, s43, 7")
        a("s_add_u32 s37, s37, s40")
        a("s_mul_i32 s38, s43, s62")
        a("s_add_u32 s38, s38, s32")
        for i in range(2):
            a(f"s_add_u32 m0, s35, {slot + 16384 + i*1024}")
            a("s_add_u32 s39, s38, s33")
            a(f"buffer_load_dwordx4 v{VR0}, s[48:51], s38 offen lds")
            a(f"s_add_u32 m0, s35, {slot + 24576 + i*1024}")
            a("s_add_u32 s38, s38, s36")
            a(f"buffer_load_dwordx4 v{VR1}, s[52:55], s39 offen lds")
        if c < 8:
            a("s_mul_i32 s38, s43, 196608")
            a("s_add_u32 s38, s38, s34")
            for i in range(2):
                a(f"s_add_u32 m0, s35, {slot + 32768 + i*1024}")
                a(f"s_add_u32 s39, s38, {i*24576}")
                a(f"buffer_load_dwordx4 v{VKV}, s[44:47], s39 offen lds")
        for i in range(4):
            a(f"s_add_u32 m0, s42, {slot + i*1024}")
            a(f"s_add_u32 s39, s37, {i*8192}")
            a(f"buffer_load_dwordx4 v{VX1 if i & 1 else VX0}, s[24:27], s39 offen lds")
        a("s_add_u32 s43, s43, 1")
        a("s_and_b32 s43, s43, 7")
        if c == 7:
            a("s_mov_b32 s32, s61")
            a("s_mov_b32 s33, 0")
            a("s_mov_b32 s62, 229376")
            a("s_mov_b32 s36, 28672")
            a("s_mov_b64 s[48:49], s[12:13]")
            a("s_mov_b64 s[52:53], s[14:15]")
            a("s_mov_b32 s50, 0x1c0000")
            a("s_mov_b32 s54, 0x1c0000")
            a(f"v_mov_b32 v{VR0}, v15")
            a(f"v_xor_b32 v{VR1}, 32, v15")
        queue.extend([c] * (10 if c < 8 else 8))
    def waitq(tag):
        n = len(queue) - 1 - max(i for i, t in enumerate(queue) if t == tag)
        a(f"s_waitcnt vmcnt({n})")
    issue(0)
    if PRE == 2:
        issue(1)
    stamp(a, 1)
    srd(a, 28, 10, WS_SIZE)
    a("v_mov_b32 v9, 0")
    a("s_add_u32 s37, s2, s20")
    a("s_cmp_eq_u32 s37, 4")
    a("s_cbranch_scc0 K1_NOTAG")
    a("s_memrealtime s[56:57]")
    a("s_waitcnt lgkmcnt(0)")
    a("s_or_b32 s56, s56, 1")
    a("s_or_b32 s57, s57, 0x80000000")
    a("v_mov_b32 v4, s56")
    a("v_mov_b32 v5, s57")
    a("s_mov_b64 exec, 1")
    a("global_store_dwordx2 v9, v[4:5], s[66:67] sc1")
    a("s_mov_b64 exec, -1")
    a.label("K1_NOTAG")
    def get_tag():
        lab, done = a.newlabel("TAG"), a.newlabel("TAGD")
        a(f"s_mov_b32 s74, {SPIN}")
        a("v_readfirstlane_b32 s68, v60")
        a("v_readfirstlane_b32 s69, v61")
        a.label(lab)
        a("s_sub_u32 s74, s74, 1")
        a(f"s_cbranch_scc1 {done}")
        a("s_min_u32 s75, s68, s69")
        a("s_cmp_lg_u32 s75, 0")
        a(f"s_cbranch_scc1 {done}")
        a("global_load_dwordx2 v[60:61], v9, s[66:67] sc1")
        a("s_waitcnt vmcnt(0)")
        a("v_readfirstlane_b32 s68, v60")
        a("v_readfirstlane_b32 s69, v61")
        a("s_sleep 2")
        a(f"s_branch {lab}")
        a.label(done)
        a(f"v_mov_b32 v4, {LDS_TAG}")
        a("v_mov_b32 v60, s68")
        a("v_mov_b32 v61, s69")
        a("ds_write_b64 v4, v[60:61]")
        a("ds_write_b32 v4, v9 offset:8")
        a("ds_write_b32 v4, v9 offset:12")
        a("s_waitcnt lgkmcnt(0)")
    def flag_a():
        lab = a.newlabel("FA")
        a("s_cmp_lg_u32 s23, 1")
        a(f"s_cbranch_scc1 {lab}")
        a("s_lshl_b32 s37, s22, 4")
        a("s_add_u32 s37, s37, s21")
        a("s_lshl_b32 s37, s37, 7")
        a(f"s_add_u32 s37, s37, {FL_A}")
        flag_store(a, "s37", 16)
        a.label(lab)
    def kv_setup():
        a("v_and_b32 v5, 15, v2")
        a("v_lshlrev_b32 v5, 7, v5")
        a("v_bfe_u32 v6, v2, 4, 1")
        a("v_lshl_add_u32 v5, v6, 14, v5")
        a("s_and_b32 s56, s2, 7")
        a("s_lshr_b32 s57, s56, 1")
        a("s_add_u32 s57, s57, 12")
        a("s_sub_u32 s57, s57, s56")
        a("s_lshl_b32 s57, s57, 11")
        a("s_lshl_b32 s58, s71, 8")
        a("s_add_u32 s57, s57, s58")
        a("v_and_b32 v6, 1, v2")
        a("v_lshlrev_b32 v6, 7, v6")
        a("v_add_u32 v6, s57, v6")
        a("v_cmp_gt_u32 vcc, 32, v2")
        a("s_lshl_b32 s56, s56, 11")
        a(f"s_add_u32 s56, s56, {FL_A}")
        a("v_cndmask_b32 v5, v6, v5, vcc")
        a("s_lshl_b32 s57, s70, 16")
        a("s_lshl_b32 s58, s23, 10")
        a("s_add_u32 s57, s57, s58                ; head*64K + L*1K")
        a(f"s_mul_i32 s59, s23, {VP}")
        a(f"s_add_u32 s59, s59, {LDS_V}")
    def kv_loads(lo, hi, ldsreg, ldsstride, wsoff):
        n = hi - lo
        a(f"s_mul_i32 s44, s71, {n}")
        a("s_lshr_b32 s44, s44, 3")
        for i in range(n):
            a(f"s_mul_i32 s45, s44, {ldsstride}")
            a(f"s_add_u32 s45, s45, {lo*ldsstride}")
            a(f"s_add_u32 m0, s45, s{ldsreg}")
            a("s_lshl_b32 s37, s44, 12")
            a("s_add_u32 s37, s37, s57")
            a(f"s_add_u32 s37, s37, {wsoff + lo*4096}")
            a(f"buffer_load_dwordx4 v3, s[28:31], s37 offen{SC} lds")
            if i < n - 1:
                a("s_add_u32 s44, s44, 1")
                a(f"s_cmp_eq_u32 s44, {n}")
                a("s_cselect_b32 s44, 0, s44")
        queue.extend(["kv"] * n)
    def k_loads(lo, hi):
        kv_loads(lo, hi, 58, 4096, WS_K)
    def v_loads(lo, hi):
        kv_loads(lo, hi, 59, 4 * VP, WS_V)
    def q_loads():
        a("s_lshl_b32 s37, s70, 6")
        a("s_lshl_b32 s38, s71, 3")
        a("s_add_u32 s37, s37, s38")
        a("s_lshl_b32 s38, s23, 1")
        a("s_add_u32 s37, s37, s38")
        a("s_lshl_b32 s37, s37, 10")
        a("s_lshl_b32 s38, s23, 11")
        a(f"s_add_u32 m0, s38, {LDS_Q}")
        a("s_nop 0")
        a(f"buffer_load_dwordx4 v3, s[28:31], s37 offen{SC} lds")
        a(f"buffer_load_dwordx4 v3, s[28:31], s37 offen offset:1024{SC} lds")
    def fa_load():
        a("buffer_load_dwordx2 v[20:21], v5, s[28:31], s56 offen sc1")
    def fa_test():
        a("v_xor_b32 v20, s68, v20")
        a("v_xor_b32 v21, s69, v21")
        a("v_or_b32 v20, v20, v21")
        a("v_cmp_ne_u32 vcc, 0, v20")
        a("s_nop 1")
        a("s_cmp_eq_u64 vcc, 0")
    for c in range(15):
        waitq(c)
        if c == 6:
            get_tag()
        if c < 6:
            stamp(a, c + 1, 2)
        if 6 <= c < 12:
            stamp(a, c - 5, 3)
        if c >= 10:
            stamp(a, c - 9, 4)
        a(f"s_barrier                              ; b({c})")
        if c == 8:
            stamp(a, 2)
        if c == 4:
            a("global_load_dwordx2 v[60:61], v9, s[66:67] sc1")
        if c == AFLAG:
            flag_a()
        if c == 12:
            kv_setup()
        if c == 0 and PRE == 1:
            issue(1)
        if c + 2 < 16:
            issue(c + 2)
    fa_load()
    a("s_waitcnt vmcnt(1)")
    a("s_barrier                              ; b(15)")
    a("s_waitcnt vmcnt(0)")
    fa_test()
    a("s_cbranch_scc0 KV_LATE")
    q_loads()
    k_loads(0, 4)
    v_loads(0, 4)
    a("s_barrier")
    a("s_branch KV_REST")
    a.label("KV_LATE")
    a("s_barrier                              ; b(16)")
    poll(a, "s56", 5, 8, 1)
    q_loads()
    k_loads(0, 4)
    v_loads(0, 4)
    a.label("KV_REST")
    k_loads(4, 8)
    v_loads(4, 8)
    a("s_branch K2_GEMM")

    a.label("K1_COMPUTE")
    AF = 96
    AK = 224
    def accF(sw, i, t):
        return AF + ((sw * 2 + i) * 2 + t) * 16
    XA = [4, 5, 6, 7]
    WA = [8, 9]
    KA = 10
    a("s_and_b32 s23, s20, 1                  ; tp")
    a("s_lshr_b32 s24, s20, 1                 ; grp")
    a("v_bfe_u32 v16, v2, 4, 1                ; gsel")
    a("v_lshrrev_b32 v17, 5, v2               ; h")
    a("v_bfe_u32 v18, v2, 2, 2                ; r")
    a("v_and_b32 v19, 3, v2                   ; c")
    a("v_lshl_add_u32 v20, v17, 3, v18        ; 8h+r")
    a("v_and_b32 v21, 31, v2")
    a("v_lshlrev_b32 v21, 7, v21")
    a("v_bfe_u32 v22, v2, 1, 3")
    a("v_xor_b32 v22, v22, v17")
    a("v_lshl_add_u32 v21, v22, 4, v21")
    a("s_lshl_b32 s25, s23, 13")
    a(f"s_add_u32 s25, s25, {slot_of(0)}")
    for s_ in range(4):
        a(f"v_xor_b32 v{XA[s_]}, {32*s_}, v21")
        a(f"v_add_u32 v{XA[s_]}, s25, v{XA[s_]}")
    a("v_lshlrev_b32 v20, 7, v20")
    a("v_lshl_add_u32 v20, v19, 3, v20        ; row*128 + c*8")
    a("v_lshrrev_b32 v21, 1, v18")
    a("v_xor_b32 v21, s24, v21                ; grp ^ (r>>1)")
    a("v_lshl_add_u32 v20, v21, 6, v20")
    a("v_lshl_add_u32 v20, v16, 5, v20")
    a(f"v_add_u32 v{KA}, {slot_of(0) + 32768}, v20")
    a("v_lshl_add_u32 v20, v16, 13, v20")
    a("v_xor_b32 v21, 32, v20")
    a(f"v_add_u32 v{WA[0]}, {slot_of(0) + 16384}, v20")
    a(f"v_add_u32 v{WA[1]}, {slot_of(0) + 16384}, v21")
    a("v_and_b32 v11, 0x33, v2")
    a("v_bfe_u32 v17, v2, 2, 1")
    a("v_lshl_or_b32 v11, v17, 3, v11")
    a("v_bfe_u32 v17, v2, 3, 1")
    a("v_lshl_or_b32 v11, v17, 2, v11")
    a("v_lshlrev_b32 v11, 4, v11              ; K voffset")
    a("s_cmp_lt_u32 s22, 8")
    a("s_cbranch_scc1 K1_KOFF")
    a("v_lshlrev_b32 v11, 16, v16")
    a("v_lshrrev_b32 v18, 5, v2")
    a("v_lshl_or_b32 v11, v18, 8, v11")
    a("v_and_b32 v18, 15, v2")
    a("v_lshl_or_b32 v11, v18, 4, v11         ; V voffset")
    a.label("K1_KOFF")
    for i in range(160):
        a(f"v_mov_b32 v{AF+i}, 0")
    a("s_waitcnt lgkmcnt(0)")
    srd(a, 28, 10, WS_SIZE)
    if CODEPF:
        a("s_getpc_b64 s[50:51]")
        a.label("PC_HERE")
        a(f"s_sub_u32 s50, s50, PC_HERE-{KNAME}")
        a("s_subb_u32 s51, s51, 0")
        a("s_lshr_b32 s49, s2, 3")
        a("s_lshl_b32 s49, s49, 2")
        a("s_add_u32 s49, s49, s20")
        a("s_lshl_b32 s49, s49, 8")
        a("v_lshlrev_b32 v21, 2, v2")
        a("v_add_u32 v21, s49, v21")
        a(f"v_min_u32 v21, K_END-{KNAME}-4, v21")
        a("global_load_dword v21, v21, s[50:51]")
    a("s_lshl_b32 s32, s21, 2")
    a("s_lshl_b32 s33, s23, 1")
    a("s_add_u32 s32, s32, s33                ; tt0")
    a("s_and_b32 s36, s22, 7")
    a("s_lshl_b32 s36, s36, 2")
    a("s_lshl_b32 s37, s24, 1")
    a("s_add_u32 s36, s36, s37")
    a("s_lshl_b32 s36, s36, 6")
    a("s_add_u32 s36, s36, s32")
    a("s_lshl_b32 s36, s36, 10")
    a("s_cmp_lt_u32 s22, 8")
    a(f"s_mov_b32 s38, {WS_V}")
    a(f"s_cselect_b32 s38, {WS_K}, s38")
    a("s_movk_i32 s37, 512")
    a("s_cselect_b32 s37, 0x10000, s37")
    a("s_add_u32 s36, s36, s38")
    a("s_add_u32 s37, s37, s36")
    a("s_mov_b32 s25, 2")
    a("s_mov_b32 s26, 8")
    BB = [24, 44]
    def reads(s_, buf, kv):
        L = [f"ds_read_b128 {v(buf,4)}, v{XA[s_]}"]
        for t in range(2):
            for u in range(2):
                L.append(f"ds_read_b64_tr_b16 {v(buf+8+4*t+2*u,2)}, v{WA[t]} offset:{(16*s_+4*u)*128}")
            if t == 0:
                L.append(f"ds_read_b128 {v(buf+4,4)}, v{XA[s_]} offset:4096")
        if kv:
            for u in range(2):
                L.append(f"ds_read_b64_tr_b16 {v(buf+16+2*u,2)}, v{KA} offset:{(16*s_+4*u)*128}")
        return L
    def mfs(buf, sw, vtype):
        L = []
        for t in range(2):
            for i in range(2):
                acc = accF(sw, i, t)
                L.append(f"{MF} {v(acc,16)}, {v(buf+8+4*t,4)}, {v(buf+4*i,4)}, {v(acc,16)}")
        if sw == 0:
            for i in range(2):
                acc = AK + 16 * i
                A_, B_ = v(buf + 16, 4), v(buf + 4 * i, 4)
                if vtype:
                    A_, B_ = B_, A_
                L.append(f"{MF} {v(acc,16)}, {A_}, {B_}, {v(acc,16)}")
        return L
    def sweep(name, sw, vtype):
        a.raw(".p2align 6")
        a.label(name)
        kv = sw == 0
        nr = 8 if kv else 6
        for s_ in range(4):
            upd = []
            if s_ == 2:
                upd = ["s_add_u32 s25, s25, 1", "s_cmp_eq_u32 s25, 3", f"s_mov_b32 s27, {SL}",
                       f"s_cselect_b32 s27, {(-2*SL) & 0xffffffff:#x}, s27", "s_cselect_b32 s25, 0, s25"]
                upd += [f"v_add_u32 v{r}, s27, v{r}" for r in XA + WA + ([KA] if kv else [])]
            if s_ == 1 and sw == 1:
                upd = [f"s_cmp_lg_u32 s26, {17 - AFLAG}", f"s_cbranch_scc1 {name}_ND", "s_waitcnt vmcnt(0)", f"{name}_ND:"]
            M = mfs(BB[s_ & 1], sw, vtype)
            if s_ < 3:
                R = reads(s_ + 1, BB[(s_ + 1) & 1], kv)
                seq = [f"s_waitcnt lgkmcnt({nr-4})", M[0], R[0], R[1], M[1], R[2], R[3], "s_waitcnt lgkmcnt(4)", M[2], R[4], R[5]]
                if kv:
                    seq += [M[3], R[6], R[7], M[4]] + upd[:7] + [M[5]] + upd[7:]
                elif s_ == 1:
                    seq += [M[3]] + upd
                else:
                    seq += upd[:5] + [M[3]] + upd[5:]
            else:
                R = reads(0, BB[0], kv)
                tail = ["s_sub_u32 s26, s26, 1", "s_cmp_lg_u32 s26, 0"]
                seq = [f"s_waitcnt lgkmcnt({nr-4})", M[0], "s_waitcnt lgkmcnt(0)", "s_barrier", R[0], M[1], R[1], R[2], R[3], M[2], R[4], R[5]]
                if kv:
                    seq += [M[3], R[6], R[7], M[4]] + tail + [M[5]]
                else:
                    seq += tail + [M[3]]
            for l in seq:
                a(l)
        a(f"s_cbranch_scc1 {name}")
    a("s_barrier                              ; b(0)")
    stamp(a, 1)
    for l in reads(0, BB[0], True):
        a(l)
    a("s_cmp_lt_u32 s22, 8")
    a("s_cbranch_scc0 SW1V")
    sweep("SW1K", 0, False)
    a("s_branch K1_KVEPI")
    sweep("SW1V", 0, True)
    a.label("K1_KVEPI")
    stamp(a, 2)
    a(f"v_mov_b32 v16, {LDS_TAG}")
    a("ds_read_b64 v[12:13], v16")
    a("s_mov_b32 s26, 8")
    a("s_nop 7")
    T = 64
    for i in range(2):
        cvt_tile(a, AK + 16 * i, T + 8 * i)
        a(f"buffer_store_dwordx4 {v(T+8*i,4)}, v11, s[28:31], s36 offen offset:{i*1024}{SC}")
        a(f"buffer_store_dwordx4 {v(T+8*i+4,4)}, v11, s[28:31], s37 offen offset:{i*1024}{SC}")
    a("s_waitcnt lgkmcnt(0)")
    a("v_readfirstlane_b32 s68, v12")
    a("v_readfirstlane_b32 s69, v13")
    def q_epilogue(R):
        a(f"s_mov_b32 s34, {fh(LOG2E*0.25)}")
        a("s_mov_b32 s35, s34")
        a("s_sub_u32 s38, s22, 12")
        a("s_lshl_b32 s38, s38, 3")
        a("s_lshl_b32 s39, s24, 1")
        a("s_add_u32 s38, s38, s39")
        a("s_lshl_b32 s38, s38, 6")
        a("s_add_u32 s38, s38, s32")
        a("s_lshl_b32 s38, s38, 10")
        for t in range(2):
            for i in range(2):
                acc = accF(0, i, t)
                GR = R + 8 * (t * 2 + i)
                for j in range(0, 16, 2):
                    a(f"v_pk_mul_f32 {v(acc+j,2)}, {v(acc+j,2)}, s[34:35]")
                cvt_tile(a, acc, GR)
                for hf in range(2):
                    a(f"s_add_u32 s39, s38, {WS_Q + (t + 4*hf) * 65536}")
                    a(f"buffer_store_dwordx4 {v(GR+4*hf,4)}, v3, s[28:31], s39 offen offset:{i*1024}{SC}")
    a("s_cmp_lt_u32 s22, 12")
    a("s_cbranch_scc1 SW2")
    q_epilogue(AK)
    sweep("SW2", 1, False)
    stamp(a, 3)
    a("s_waitcnt lgkmcnt(0)")
    c0 = -2.0 * 0.7978845608028654 * LOG2E
    c1 = c0 * 0.044715
    a(f"s_mov_b32 s34, {fh(c1)}")
    a("s_mov_b32 s35, s34")
    a(f"v_mov_b32 v4, {fh(c0)}")
    a("v_mov_b32 v5, v4")
    a("v_mov_b32 v6, 1.0")
    a("v_mov_b32 v7, 1.0")
    a("s_mul_i32 s36, s32, 144")
    a("s_lshl_b32 s37, s22, 3")
    a("s_lshl_b32 s38, s22, 2")
    a("s_add_u32 s38, s38, 44")
    a("s_cmp_lt_u32 s22, 12")
    a("s_cselect_b32 s37, s37, s38")
    a("s_add_u32 s36, s36, s37")
    a("s_lshl_b32 s37, s24, 1")
    a("s_add_u32 s36, s36, s37")
    a("s_lshl_b32 s36, s36, 10")
    a(f"s_add_u32 s36, s36, {WS_ACT}")
    a("s_cmp_lt_u32 s22, 12")
    a("s_cbranch_scc0 K1_GE2")
    TB = 16
    k = 0
    for sw in range(2):
        if sw == 1:
            a.label("K1_GE2")
        for i in range(2):
            for t in range(2):
                acc = accF(sw, i, t)
                out = 56 + 4 * k
                k += 1
                for j in range(0, 8, 2):
                    a(f"v_pk_mul_f32 {v(TB+j,2)}, {v(acc+j,2)}, {v(acc+j,2)}")
                for j in range(0, 8, 2):
                    a(f"v_pk_fma_f32 {v(TB+j,2)}, {v(TB+j,2)}, s[34:35], v[4:5]")
                for j in range(0, 8, 2):
                    a(f"v_pk_mul_f32 {v(TB+j,2)}, {v(TB+j,2)}, {v(acc+j,2)}")
                for j in range(8):
                    a(f"v_exp_f32 v{TB+j}, v{TB+j}")
                for j in range(0, 4, 2):
                    a(f"v_pk_mul_f32 {v(acc+8+j,2)}, {v(acc+8+j,2)}, {v(acc+j,2)}")
                for j in range(0, 8, 2):
                    a(f"v_pk_add_f32 {v(TB+j,2)}, {v(TB+j,2)}, v[6:7]")
                for j in range(8):
                    a(f"v_rcp_f32 v{TB+j}, v{TB+j}")
                for j in range(4, 8, 2):
                    a(f"v_pk_mul_f32 {v(acc+8+j,2)}, {v(acc+8+j,2)}, {v(acc+j,2)}")
                for j in range(0, 8, 2):
                    a(f"v_pk_mul_f32 {v(acc+8+j,2)}, {v(acc+8+j,2)}, {v(TB+j,2)}")
                cvt_tile(a, acc, out, 8, 16)
                a(f"s_add_u32 s37, s36, {(i*144 + sw*4 + t) * 1024}")
                a(f"buffer_store_dwordx4 {v(out,4)}, v3, s[28:31], s37 offen{SC}")

    a.label("K2_ATTN")
    Q = [8, 12]
    G = [4, 5]
    KB = [16, 20]
    VB = [[24, 28], [32, 36]]
    IDX = 6
    VK, VV0, VV1 = 40, 41, 42
    C = [96, 112]
    S = [128, 144]
    P = [160, 176]
    O = [192, 208]
    a(f"v_mov_b32 v{IDX}, 0xdddd")
    def vaddr_init():
        a(f"v_mov_b32 v{VK}, v3")
        a("v_lshrrev_b32 v43, 5, v2")
        a("v_and_b32 v44, 15, v2")
        a("v_lshlrev_b32 v44, 4, v44")
        a("v_lshl_or_b32 v44, v43, 8, v44")
        a(f"v_add_u32 v44, {LDS_V}, v44")
        a("v_add_u32 v45, 512, v44")
        a("v_and_b32 v43, 31, v2")
        a("v_subrev_u32 v47, 20, v43")
        a("v_cmp_gt_u32 vcc, 8, v47")
        a(f"v_mov_b32 v46, {LDS_V + 1040}")
        a(f"v_mov_b32 v47, {LDS_V + 1040 + 2*VP}")
        a("v_cndmask_b32 v46, v46, v47, vcc")
        a("v_and_b32 v47, 27, v43")
        a("v_cmp_eq_u32 vcc, 16, v47")
        a("v_subrev_u32 v47, 16, v46")
        a("s_nop 0")
        a("v_cndmask_b32 v46, v46, v47, vcc")
        a("v_cmp_gt_u32 vcc, 16, v43")
        a("s_nop 1")
        a(f"v_cndmask_b32 v{VV0}, v46, v44, vcc")
        a(f"v_cndmask_b32 v{VV1}, v46, v45, vcc")
    vaddr_init()
    a("s_lshl_b32 s24, s20, 8")
    a(f"s_add_u32 s24, s24, {LDS_GQ}")
    a("v_and_b32 v7, 31, v2")
    a("v_lshlrev_b32 v7, 2, v7")
    a("v_add_u32 v7, s24, v7                  ; g address")
    for q in range(2):
        for i in range(16):
            a(f"v_mov_b32 v{O[q]+i}, 0")
    a("s_mov_b32 s26, 0")
    a("s_lshl_b32 s24, s20, 11")
    a(f"s_add_u32 s24, s24, {LDS_Q}")
    a("v_add_u32 v43, s24, v3")
    a("s_barrier                              ; X1")
    a("s_setprio 2")
    stamp(a, 4)
    a(f"ds_read_b128 {v(Q[0],4)}, v43")
    a(f"ds_read_b128 {v(KB[0],4)}, v{VK}")
    a(f"ds_read_b128 {v(Q[1],4)}, v43 offset:1024")
    a("s_waitcnt lgkmcnt(0)")
    for q in range(2):
        a(f"{MF} {v(S[q],16)}, {v(KB[0],4)}, {v(Q[q],4)}, 0")
    a("s_nop 7")
    a("s_nop 3")
    def maxtree(src, dst, acc=False):
        if acc:
            for i in range(0, 16, 2):
                a(f"v_max3_f32 v{dst}, v{src+i}, v{src+i+1}, v{dst}")
        else:
            a(f"v_max_f32 v{dst}, v{src}, v{src+1}")
            for i in range(2, 16, 2):
                a(f"v_max3_f32 v{dst}, v{src+i}, v{src+i+1}, v{dst}")
    for q in range(2):
        maxtree(S[q], 44 + q)
    a.label("K2_SETMAX")
    a(f"ds_read_b128 {v(KB[0],4)}, v{VK}")
    a(f"ds_read_b128 {v(VB[0][0],4)}, v{VV0}")
    a(f"ds_read_b128 {v(VB[0][1],4)}, v{VV1}")
    a(f"ds_read_b128 {v(KB[1],4)}, v{VK} offset:1024")
    for q in range(2):
        a(f"v_mov_b32 v{46+q}, v{44+q}")
    a("s_nop 1")
    for q in range(2):
        a(f"v_permlane32_swap_b32 v{44+q}, v{46+q}")
    for q in range(2):
        a(f"v_max_f32 v{44+q}, v{44+q}, v{46+q}")
    for i in range(16):
        a(f"v_sub_f32 v{C[0]+i}, 0, v44")
    a("s_waitcnt lgkmcnt(0)")
    a("s_nop 0")
    a(f"{MF} {v(S[0],16)}, {v(KB[0],4)}, {v(Q[0],4)}, {v(C[0],16)}")
    for i in range(16):
        a(f"v_sub_f32 v{C[1]+i}, 0, v45")
    for i in range(8):
        a(f"v_mov_b32 v{P[1]+8+i}, 0")
    for i in range(4):
        a(f"v_mov_b32 v{VB[1][1]+i}, 0")
    a("s_cmp_lg_u32 s26, 0")
    a("s_cbranch_scc1 K2_NOBAR")
    a("s_waitcnt vmcnt(0)")
    a("s_barrier")
    a.label("K2_NOBAR")
    if PADATT:
        pad_until(a, PADATT)
    a("s_mov_b32 s27, 7")
    U = 8
    a.raw(".p2align 6")
    a.label("K2_LOOP")
    def exps(q, lo, hi):
        for i in range(lo, hi):
            a(f"v_exp_f32 v{P[q]+i}, v{S[q]+i}")
    def smf(q, vb, half):
        a(f"v_smfmac_f32_32x32x32_bf16 {v(O[q],16)}, {v(vb,4)}, {v(P[q]+8*half,8)}, v{IDX}")
    for u in range(U):
        b = u & 1
        a(f"{MF} {v(S[1],16)}, {v(KB[b],4)}, {v(Q[1],4)}, {v(C[1],16)}")
        exps(0, 0, 5)
        smf(1, VB[b ^ 1][1], 1)
        a(f"ds_read_b128 {v(VB[b^1][0],4)}, v{VV0} offset:{(u+1)*VP}")
        exps(0, 5, 11)
        smf(0, VB[b][0], 0)
        a(f"ds_read_b128 {v(VB[b^1][1],4)}, v{VV1} offset:{(u+1)*VP}")
        exps(0, 11, 16)
        a(f"{MF} {v(S[0],16)}, {v(KB[b^1],4)}, {v(Q[0],4)}, {v(C[0],16)}")
        a(f"ds_read_b128 {v(KB[b],4)}, v{VK} offset:{(u+2)*1024}")
        exps(1, 0, 5)
        smf(0, VB[b][1], 1)
        if u == U - 1:
            a("s_sub_u32 s27, s27, 1")
        exps(1, 5, 11)
        smf(1, VB[b][0], 0)
        a("s_waitcnt lgkmcnt(0)")
        if u == U - 1:
            a(f"v_add_u32 v{VK}, {U*1024}, v{VK}")
            a(f"v_add_u32 v{VV0}, {U*VP}, v{VV0}")
            a(f"v_add_u32 v{VV1}, {U*VP}, v{VV1}")
        exps(1, 11, 16)
    a("s_cbranch_scc1 K2_LEND")
    a("s_cmp_lg_u32 s27, 4")
    a("s_cbranch_scc1 K2_LOOP")
    a(f"v_mov_b32 v46, {LDS_SYNC + 4}")
    a(f"s_mov_b32 s74, {SPIN*8}")
    a.label("K2_KVW")
    a("ds_read_b32 v47, v46")
    a("s_waitcnt lgkmcnt(0)")
    a("v_readfirstlane_b32 s75, v47")
    a("s_sub_u32 s74, s74, 1")
    a("s_cbranch_scc1 K2_LOOP")
    a("s_and_b32 s75, s75, 15")
    a("s_cmp_ge_u32 s75, 4")
    a("s_cbranch_scc1 K2_LOOP")
    a("s_sleep 1")
    a("s_branch K2_KVW")
    a.label("K2_LEND")
    a("s_nop 1")
    smf(1, VB[(U - 1) & 1][1], 1)
    stamp(a, 5)
    stamp(a, 1, 8)
    a(f"v_mov_b32 v46, {LDS_SYNC + 4}")
    a("ds_read_b32 v47, v46")
    a(f"ds_read_b32 v{G[0]}, v7")
    a(f"ds_read_b32 v{G[1]}, v7 offset:128")
    a("s_lshl_b32 s24, s71, 2")
    a("s_add_u32 s24, s24, s20")
    a("s_lshl_b32 s24, s24, 5")
    a("s_add_u32 s24, s24, s70")
    a("s_mul_i32 s25, s24, 3072")
    a(f"s_add_u32 s25, s25, {WS_O}")
    a("v_mov_b32 v44, 0")
    for i in range(9):
        a(f"v_fma_f32 v44, v{O[0]+i}, 0, v44")
    a("s_nop 1")
    for i in range(9):
        a(f"v_fma_f32 v44, v{O[1]+i}, 0, v44")
    a("v_cmp_u_f32 vcc, v44, v44")
    a("s_cmp_lg_u32 s26, 0")
    a("s_cbranch_scc1 K2_FIN")
    a("s_nop 1")
    a("s_cmp_eq_u64 vcc, 0")
    a("s_cbranch_scc1 K2_FIN")
    a("s_waitcnt lgkmcnt(0)")
    a("s_mov_b32 s26, 100")
    vaddr_init()
    for q in range(2):
        for i in range(16):
            a(f"v_mov_b32 v{O[q]+i}, 0")
    a("v_mov_b32 v44, 0xff800000")
    a("v_mov_b32 v45, 0xff800000")
    a("v_mov_b32 v43, v3")
    a("s_mov_b32 s27, 64")
    a.label("K2_MAXLOOP")
    a(f"ds_read_b128 {v(KB[0],4)}, v43")
    a("v_add_u32 v43, 1024, v43")
    a("s_waitcnt lgkmcnt(0)")
    for q in range(2):
        a(f"{MF} {v(S[q],16)}, {v(KB[0],4)}, {v(Q[q],4)}, 0")
    a("s_nop 7")
    a("s_nop 7")
    for q in range(2):
        maxtree(S[q], 44 + q, acc=True)
    a("s_sub_u32 s27, s27, 1")
    a("s_cmp_lg_u32 s27, 0")
    a("s_cbranch_scc1 K2_MAXLOOP")
    a("s_branch K2_SETMAX")
    a.label("K2_FIN")
    for q in range(2):
        a(f"v_rcp_f32 v{48+q}, v{O[q]+8}")
    a(f"s_mov_b32 s74, {SPIN*8}")
    a.label("K2_GW")
    a("s_waitcnt lgkmcnt(0)")
    a("v_readfirstlane_b32 s75, v47")
    a("s_sub_u32 s74, s74, 1")
    a("s_cmp_eq_u32 s74, 0")
    a("s_cbranch_scc1 K2_GOK")
    a("s_cmp_ge_u32 s75, 64")
    a("s_cbranch_scc1 K2_GOK")
    a("s_sleep 1")
    a("ds_read_b32 v47, v46")
    a(f"ds_read_b32 v{G[0]}, v7")
    a(f"ds_read_b32 v{G[1]}, v7 offset:128")
    a("s_branch K2_GW")
    a.label("K2_GOK")
    for q in range(2):
        a(f"v_mul_f32 v{44+2*q}, v{48+q}, v{G[q]}")
    GR = S[0]
    for r in (3, 7, 10, 11):
        a(f"v_mov_b32 v{GR+r}, s68")
    for q in range(2):
        for i in range(0, 8, 2):
            a(f"v_pk_mul_f32 {v(O[q]+i,2)}, {v(O[q]+i,2)}, {v(44+2*q,2)} op_sel_hi:[1,0]")
        for i in range(0, 8, 2):
            dst = GR + 4 * q + i // 2 if i < 6 else GR + 8 + q
            a(f"v_cvt_pk_bf16_f32 v{dst}, v{O[q]+i}, v{O[q]+i+1}")
        a(f"buffer_store_dwordx4 {v(GR+4*q,4)}, v3, s[28:31], s25 offen offset:{q*1024}{SC}")
    a(f"buffer_store_dwordx4 {v(GR+8,4)}, v3, s[28:31], s25 offen offset:2048{SC}")
    a("s_lshl_b32 s24, s24, 7")
    a(f"s_add_u32 s24, s24, {FL_C}")
    if HINTW:
        a(f"s_waitcnt vmcnt(0)")
    a("s_mov_b64 exec, 1")
    a(f"buffer_store_dword v{GR+3}, v3, s[28:31], s24 offen sc1")
    a("s_mov_b64 exec, -1")
    a("s_setprio 0")
    stamp(a, 6)
    for i in range(2, 6):
        stamp(a, i, 8)
    a("s_barrier                              ; Y0")
    a("s_branch K3_REDUCE")

    a.label("K2_GEMM")
    a(f"v_mul_u32_u24 v4, {VP}, v2")
    a(f"v_add_u32 v4, {LDS_V + 1024}, v4")
    for i in range(4):
        a(f"v_mov_b32 v{20+i}, 0x3f803f80")
        a(f"v_mov_b32 v{24+i}, 0")
    a("ds_write_b128 v4, v[20:23]")
    a("ds_write_b128 v4, v[24:27] offset:16")
    a(f"ds_write_b128 v4, v[20:23] offset:{4*VP}")
    a(f"ds_write_b128 v4, v[24:27] offset:{4*VP+16}")
    ND, NW = 28, 8
    NS = 3
    srd(a, 44, 16, 0x1c0000)
    srd(a, 48, 8, 0x80000)
    a("s_lshr_b32 s42, s2, 3")
    a("s_and_b32 s43, s42, 7")
    a("s_lshr_b32 s42, s42, 3")
    a("s_lshl_b32 s42, s42, 1")
    a("s_add_u32 s42, s42, s43")
    a("s_cmp_ge_u32 s42, 7")
    a("s_cselect_b32 s43, 7, 0")
    a("s_sub_u32 s42, s42, s43                ; 0..6")
    if not ROT:
        a("s_mov_b32 s42, 0")
    a("s_mov_b32 s52, s42")
    a(f"s_mul_i32 s32, s23, {ND}")
    a("s_lshl_b32 s43, s42, 2")
    a("s_add_u32 s32, s32, s43")
    a(f"s_mul_i32 s33, s72, {2*144*1024}")
    a(f"s_add_u32 s33, s33, {WS_ACT}")
    a("s_lshl_b32 s43, s32, 10")
    a("s_add_u32 s33, s33, s43")
    a(f"s_add_u32 s34, s33, {144*1024}")
    a("s_lshl_b32 s43, s73, 7")
    a("s_lshl_b32 s35, s32, 14")
    a("s_add_u32 s35, s35, s43")
    a("s_lshl_b32 s39, s23, 17")
    a("s_add_u32 s39, s39, s43")
    a(f"s_mul_i32 s53, s23, {NS*2048}")
    a(f"s_add_u32 s53, s53, {LDS_WS}")
    a("v_lshrrev_b32 v4, 3, v2")
    a("v_and_b32 v5, 7, v2")
    a("v_bfe_u32 v7, v2, 4, 1")
    a("v_lshlrev_b32 v7, 2, v7")
    a("v_xor_b32 v5, v5, v7")
    a("v_lshlrev_b32 v5, 4, v5")
    a("v_lshl_add_u32 v10, v4, 10, v5")
    a("v_add_u32 v11, 7168, v10")
    a("v_bfe_u32 v4, v2, 2, 2")
    a("v_lshrrev_b32 v5, 5, v2")
    a("v_lshl_add_u32 v5, v5, 2, v4")
    a("v_lshlrev_b32 v5, 7, v5")
    a("v_lshrrev_b32 v4, 1, v4")
    a("v_lshl_add_u32 v5, v4, 6, v5")
    a("v_bfe_u32 v4, v2, 4, 1")
    a("v_lshl_add_u32 v5, v4, 5, v5")
    a("v_and_b32 v4, 3, v2")
    a("v_lshl_add_u32 v5, v4, 3, v5")
    a("v_xor_b32 v13, 64, v5")
    a("v_add_u32 v12, s53, v5")
    a("v_add_u32 v13, s53, v13")
    GA = 16
    FR = 80
    D = 8
    queue = []
    def ld(dst, sr, k, tag):
        a(f"buffer_load_dwordx4 {v(dst,4)}, v3, s[28:31], s{sr} offen offset:{(k%4)*1024}{SC}")
        queue.append(tag)
    def aloads(k):
        b = FR + (k % D) * 16
        ld(b + 4, 33, k, ("a", k)); ld(b + 12, 34, k, ("a", k))
        if k % 4 == 3:
            a("s_add_u32 s42, s42, 1")
            a("s_cmp_eq_u32 s42, 7")
            a("s_movk_i32 s43, 4096")
            a(f"s_cselect_b32 s43, {(-6*4096) & 0xffffffff:#x}, s43")
            a("s_cselect_b32 s42, 0, s42")
            for sr in (33, 34):
                a(f"s_add_u32 s{sr}, s{sr}, s43")
    def wloads(k):
        a(f"s_add_u32 m0, s53, {(k % NS) * 2048}")
        sr, rs = (35, 44) if k < ND else (39, 48)
        a("s_nop 0")
        a(f"buffer_load_dwordx4 v10, s[{rs}:{rs+3}], s{sr} offen lds")
        a(f"buffer_load_dwordx4 v11, s[{rs}:{rs+3}], s{sr} offen offset:1024 lds")
        queue.extend([("w", k)] * 2)
        a(f"s_add_u32 s{sr}, s{sr}, 16384")
        if k < ND and k % 4 == 3:
            a("s_add_u32 s52, s52, 1")
            a("s_cmp_eq_u32 s52, 7")
            a(f"s_cselect_b32 s43, {(-28*16384) & 0xffffffff:#x}, 0")
            a("s_cselect_b32 s52, 0, s52")
            a("s_add_u32 s35, s35, s43")
    def waitfor(*tags):
        n = len(queue) - 1 - max(i for i, t in enumerate(queue) if t in tags)
        a(f"s_waitcnt vmcnt({n})")
    def wreads(k):
        b = FR + (k % D) * 16
        for n in range(2):
            for u in range(2):
                a(f"ds_read_b64_tr_b16 {v(b+8*n+2*u,2)}, v{12+n} offset:{(k % NS) * 2048 + u*1024}")
    def mm(k):
        b = FR + (k % D) * 16
        for n in range(2):
            for t in range(2):
                acc = GA + (n * 2 + t) * 16
                cin = "0" if k == 0 else v(acc, 16)
                a(f"{MF} {v(acc,16)}, {v(b+8*n,4)}, {v(b+4+8*t,4)}, {cin}")
    stamp(a, 3)
    a("s_waitcnt vmcnt(0) lgkmcnt(0)")
    a("s_barrier                              ; X1")
    a("s_setprio 3")
    a("s_barrier                              ; X2")
    a("s_cmp_lg_u32 s23, 1")
    a("s_cbranch_scc1 K2_NOB1")
    a("s_lshl_b32 s37, s21, 4")
    a("s_add_u32 s37, s37, s22")
    a("s_lshl_b32 s37, s37, 7")
    a(f"s_add_u32 s37, s37, {FL_B1}")
    flag_store(a, "s37", 16)
    a.label("K2_NOB1")
    k_loads(8, 16)
    v_loads(8, 16)
    srd(a, 44, 16, 0x1c0000)
    srd(a, 24, 4, 0x200000)
    srd(a, 56, 18, 1024)
    a("s_lshl_b32 s54, s2, 2")
    a("s_add_u32 s54, s54, s23")
    a("s_lshl_b32 s55, s54, 11")
    a("buffer_load_dwordx4 v[20:23], v3, s[56:59], 0 offen")
    a("buffer_load_dwordx4 v[24:27], v3, s[24:27], s55 offen")
    a("buffer_load_dwordx4 v[28:31], v3, s[24:27], s55 offen offset:1024")
    a("v_mov_b32 v32, 0")
    a("v_mov_b32 v33, 0")
    a(f"v_mov_b32 v34, {LDS_SYNC + 4}")
    a("v_mov_b32 v35, 1")
    a("s_waitcnt vmcnt(0)")
    a("s_mov_b64 exec, 1")
    a("ds_add_u32 v34, v35")
    a("s_mov_b64 exec, -1")
    for q in range(4):
        a(f"v_dot2_f32_bf16 v32, v{24+q}, v{20+q}, v32")
        a(f"v_dot2_f32_bf16 v33, v{28+q}, v{20+q}, v33")
    a("s_nop 2")
    a("v_permlane32_swap_b32 v32, v33")
    a("s_nop 1")
    a("v_add_f32 v32, v32, v33")
    for ctl in ("quad_perm:[1,0,3,2]", "quad_perm:[2,3,0,1]", "row_half_mirror", "row_mirror"):
        a("s_nop 1")
        a(f"v_add_f32_dpp v32, v32, v32 {ctl} row_mask:0xf bank_mask:0xf")
    a("v_mov_b32 v33, v32")
    a("s_nop 1")
    a("v_permlane16_swap_b32 v32, v33")
    a("s_nop 1")
    a("v_add_f32 v32, v32, v33")
    a(f"v_mul_f32 v32, {fh(-LOG2E)}, v32")
    a("v_exp_f32 v32, v32")
    a("v_lshrrev_b32 v34, 5, v2")
    a("v_add_f32 v32, 1.0, v32")
    a("v_rcp_f32 v32, v32")
    a("v_lshlrev_b32 v34, 3, v34")
    a("v_mov_b32 v33, s68")
    a("s_lshl_b32 s55, s54, 4")
    a(f"s_add_u32 s55, s55, {WS_G}")
    a("s_mov_b64 exec, 0x100000001".replace("s_mov_b64 exec, 0x100000001", "s_mov_b32 exec_lo, 1\ns_mov_b32 exec_hi, 1"))
    a(f"buffer_store_dwordx2 v[32:33], v34, s[28:31], s55 offen{SC}")
    a("s_mov_b64 exec, -1")
    if WARMW:
        a("s_lshr_b32 s54, s2, 3")
        a("s_and_b32 s54, s54, 7")
        a("s_lshl_b32 s55, s54, 2")
        a("s_add_u32 s55, s55, s23")
        a("s_mul_i32 s55, s55, 57344")
        a("s_add_u32 s55, s55, s43")
        a("v_min_u32 v14, 55, v2")
        a("v_lshlrev_b32 v14, 10, v14")
        a("buffer_load_dword v15, v14, s[44:47], s55 offen")
        a("s_lshl_b32 s55, s54, 2")
        a("s_add_u32 s55, s55, s23")
        a("s_lshl_b32 s55, s55, 14")
        a("s_add_u32 s55, s55, s43")
        a("v_and_b32 v14, 15, v2")
        a("v_lshlrev_b32 v14, 10, v14")
        a("buffer_load_dword v15, v14, s[48:51], s55 offen")
    for k in range(NS):
        wloads(k)
    a("s_setprio 3")
    a("v_and_b32 v6, 15, v2")
    a("v_lshlrev_b32 v6, 7, v6")
    a("s_lshr_b32 s24, s72, 1")
    a("s_lshl_b32 s24, s24, 11")
    a(f"s_add_u32 s24, s24, {FL_B1}")
    poll_shared(a, 1, [("s24", 6, 8, 4)], 20, lslp=4)
    stamp(a, 4)
    DA = 4
    a("s_setprio 0")
    for k in range(DA):
        aloads(k)
    for k in range(ND + NW):
        waitfor(("w", k), ("a", k))
        wreads(k)
        a("s_waitcnt lgkmcnt(0)")
        if k + NS < ND + NW:
            wloads(k + NS)
        if k + DA < ND:
            aloads(k + DA)
        if k < ND:
            mm(k)
    a("s_setprio 3")
    a("v_and_b32 v6, 31, v2")
    a("v_lshlrev_b32 v6, 3, v6")
    a("v_lshlrev_b32 v7, 3, v2")
    a("s_lshl_b32 s54, s72, 9")
    a(f"s_add_u32 s54, s54, {WS_G}")
    a("s_lshl_b32 s55, s71, 2")
    a("s_add_u32 s55, s55, s23")
    a("s_lshl_b32 s55, s55, 9")
    a(f"s_add_u32 s55, s55, {WS_G}")
    a(f"s_mov_b32 s74, {SPIN}")
    a.label("K2_GL")
    a(f"buffer_load_dwordx2 v[240:241], v6, s[28:31], s54 offen{SC}")
    a(f"buffer_load_dwordx2 v[242:243], v6, s[28:31], s54 offen offset:256{SC}")
    a(f"buffer_load_dwordx2 v[244:245], v7, s[28:31], s55 offen{SC}")
    a("s_waitcnt vmcnt(0)")
    a("v_xor_b32 v8, s68, v241")
    a("v_xor_b32 v9, s68, v243")
    a("v_xor_b32 v10, s68, v245")
    a("v_or3_b32 v8, v8, v9, v10")
    a("v_cmp_ne_u32 vcc, 0, v8")
    a("s_sub_u32 s74, s74, 1")
    a("s_cbranch_scc1 K2_GD")
    a("s_cmp_eq_u64 vcc, 0")
    a("s_cbranch_scc1 K2_GD")
    a("s_sleep 4")
    a("s_branch K2_GL")
    a.label("K2_GD")
    a("s_lshl_b32 s55, s23, 8")
    a(f"s_add_u32 s55, s55, {LDS_GQ}")
    a("v_lshrrev_b32 v7, 1, v7")
    a("v_add_u32 v7, s55, v7")
    a("ds_write_b32 v7, v244")
    a(f"v_mov_b32 v8, {LDS_SYNC + 4}")
    a("v_mov_b32 v9, 16")
    a("s_waitcnt lgkmcnt(0)")
    a("s_mov_b64 exec, 1")
    a("ds_add_u32 v8, v9")
    a("s_mov_b64 exec, -1")
    a("v_sub_f32 v12, 1.0, v240")
    a("v_sub_f32 v14, 1.0, v242")
    a("s_nop 7")
    for n in range(2):
        for t in range(2):
            acc = GA + (n * 2 + t) * 16
            for j in range(0, 16, 2):
                a(f"v_pk_mul_f32 {v(acc+j,2)}, {v(acc+j,2)}, {v(12+2*t,2)} op_sel_hi:[1,0]")
    a("v_and_b32 v4, 31, v2")
    a(f"v_mul_u32_u24 v4, {RP}, v4")
    a("v_lshrrev_b32 v6, 5, v2")
    a("v_lshl_add_u32 v4, v6, 4, v4")
    a(f"s_mul_i32 s32, s23, {64*RP}")
    a("v_add_u32 v4, s32, v4")
    a("s_lshl_b32 s24, s72, 2")
    a("s_add_u32 s24, s24, s23")
    a(f"s_mul_i32 s24, s24, {8*3072}")
    a(f"s_add_u32 s24, s24, {WS_O}")
    a("v_and_b32 v6, 7, v2")
    a("v_lshlrev_b32 v6, 7, v6")
    a("s_lshl_b32 s26, s72, 12")
    a("s_lshl_b32 s25, s23, 10")
    a("s_add_u32 s26, s26, s25")
    a(f"s_add_u32 s26, s26, {FL_C}")
    a("s_mov_b32 s54, 0")
    a(f"s_mov_b32 s74, {SPIN}")
    stamp(a, 5)
    stamp(a, 1, 8)
    XR = 208
    a.label("K3_ROUND")
    a("v_mov_b32 v8, 0")
    a("s_mov_b64 exec, 0xff")
    if ATPOLL:
        a("buffer_atomic_or v8, v6, s[28:31], s26 offen sc0 sc1")
    else:
        a("buffer_load_dword v8, v6, s[28:31], s26 offen sc1")
    a("s_waitcnt vmcnt(0)")
    a("v_cmp_eq_u32 vcc, s68, v8")
    a("s_mov_b64 exec, -1")
    a("s_cmp_eq_u32 s74, 0")
    a("s_cselect_b32 s55, 0xff, vcc_lo")
    a("s_andn2_b32 s55, s55, s54")
    a("s_cbranch_scc1 K3_SOME")
    a("s_sub_u32 s74, s74, 1")
    a(f"s_sleep {TSLP}")
    a("s_branch K3_ROUND")
    a.label("K3_SOME")
    for kk in range(NW):
        b = FR + ((ND + kk) % D) * 16
        a(f"s_bitcmp1_b32 s55, {kk}")
        a(f"s_cbranch_scc0 K3_L{kk}")
        a(f"s_add_u32 s25, s24, {kk*3072}")
        a(f"buffer_load_dwordx4 {v(b+4,4)}, v3, s[28:31], s25 offen{SC}")
        a(f"buffer_load_dwordx4 {v(b+12,4)}, v3, s[28:31], s25 offen offset:1024{SC}")
        a(f"buffer_load_dwordx4 {v(XR+4*kk,4)}, v3, s[28:31], s25 offen offset:2048{SC}")
        a.label(f"K3_L{kk}")
    a("s_sub_u32 s74, s74, 1")
    a("s_cselect_b32 s75, 0, -1")
    a("s_waitcnt vmcnt(0)")
    for kk in range(NW):
        b = FR + ((ND + kk) % D) * 16
        a(f"s_bitcmp1_b32 s55, {kk}")
        a(f"s_cbranch_scc0 K3_C{kk}")
        a(f"v_xor_b32 v8, s68, v{b+7}")
        a(f"v_xor_b32 v9, s68, v{b+15}")
        a(f"v_xor_b32 v10, s68, v{XR+4*kk+3}")
        a("v_or3_b32 v8, v8, v9, v10")
        a("v_and_b32 v8, s75, v8")
        a("v_cmp_ne_u32 vcc, 0, v8")
        a(f"v_mov_b32 v{b+7}, v{XR+4*kk}")
        a(f"v_mov_b32 v{b+15}, v{XR+4*kk+1}")
        a("s_cmp_eq_u64 vcc, 0")
        a(f"s_cbranch_scc0 K3_C{kk}")
        mm(ND + kk)
        a(f"s_bitset1_b32 s54, {kk}")
        a.label(f"K3_C{kk}")
    a("s_cmp_lg_u32 s54, 0xff")
    a("s_cbranch_scc1 K3_ROUND")
    stamp(a, 6)
    stamp(a, 2, 8)
    a("s_barrier                              ; Y0")
    for i in range(3, 6):
        stamp(a, i, 8)
    a("s_nop 7")
    a("s_nop 7")
    for n in range(2):
        for t in range(2):
            acc = GA + (n * 2 + t) * 16
            for g in range(4):
                a(f"ds_write_b128 v4, {v(acc+4*g,4)} offset:{t*32*RP + n*128 + g*32}")
    a.label("K3_REDUCE")
    srd(a, 24, 64, 0x200000)
    a("s_lshl_b32 s32, s20, 6")
    a("v_add_u32 v0, s32, v2                  ; tid")
    a("v_lshrrev_b32 v7, 3, v0                ; token")
    a("v_and_b32 v5, 7, v0")
    a(f"v_mul_u32_u24 v6, {RP}, v7")
    a("v_lshl_add_u32 v6, v5, 5, v6")
    a("v_lshlrev_b32 v7, 10, v7")
    a("v_lshl_add_u32 v7, v5, 4, v7")
    a("s_lshl_b32 s32, s72, 16")
    a("s_lshl_b32 s33, s73, 7")
    a("s_add_u32 s32, s32, s33")
    a("s_waitcnt lgkmcnt(0)")
    a("s_barrier                              ; Y1")
    stamp(a, 6, 8)
    for w in range(4):
        a(f"ds_read_b128 {v(208+8*w,4)}, v6 offset:{w*64*RP}")
        a(f"ds_read_b128 {v(212+8*w,4)}, v6 offset:{w*64*RP+16}")
    for w in range(1, 4):
        a(f"s_waitcnt lgkmcnt({2*(3-w)})")
        for j in range(0, 8, 2):
            a(f"v_pk_add_f32 {v(208+j,2)}, {v(208+j,2)}, {v(208+8*w+j,2)}")
    for j in range(0, 8, 2):
        a(f"v_cvt_pk_bf16_f32 v{16+j//2}, v{208+j}, v{208+j+1}")
    a("buffer_store_dwordx4 v[16:19], v7, s[24:27], s32 offen" + (" " + OUTSC if OUTSC else ""))
    if PADEND:
        pad_until(a, PADEND)
    stamp_flush(a, 8)
    a.label("K_EXIT")
    a("s_endpgm")
    a.label("K_END")

def main():
    hdr = open("cdna_kernels/" + NAME + ".s.ref").read().split("\n")
    top = [l for l in hdr if l.startswith(";") and "@launch" not in l]
    out = "\n".join(top) + "\n"
    out += f"; @launch grid=(256,1,1) block=(512,1,1) lds={LDS_TOTAL}\n"
    out += '.amdgcn_target "amdgcn-amd-amdhsa--gfx950"\n.text\n'
    a = Asm()
    gen(a)
    out += a.text()
    out += '.section .rodata,"a"\n'
    out += kernel_desc(KNAME, 256, 102)
    path = sys.argv[1] if len(sys.argv) > 1 else "cdna_kernels/" + NAME + ".s"
    open(path, "w").write(out)

main()
```

```python
import sys, math, os
from asmlib import *

NAME = "gated_mix__softmax_full_mha__geglu_ffn__prompt"
KNAME = NAME + "_kernel"
LOG2E = 1.4426950408889634
def env(n, d): return int(os.environ.get(n, str(d)))
PROF = env("PROF", 0)
ROT = env("ROT", 1)
TAGPOS = env("TAGPOS", 0)
PADEND = env("PADEND", 0)
PADATT = env("PADATT", 0)
DBGWG = env("DBGWG", -1)
TLBW = env("TLBW", 0)
PFW = env("PFW", 0)
PFI = env("PFI", 1)
PFX = env("PFX", 0)
KVROT = env("KVROT", 1)
AFLAG = env("AFLAG", 10)
PFC = env("PFC", -1)
ONEP = env("ONEP", 0)
FMAP = env("FMAP", 1)
NOTAG = env("NOTAG", 0)
ROT1 = env("ROT1", 2)
OUTSC = os.environ.get("OUTSC", "sc1")
GPK = env("GPK", 0)
UA = env("UA", 16)
PRE = env("PRE", 2)
QLD = env("QLD", 4)
WARMW = env("WARMW", 0)
ROT2 = env("ROT2", 1)
ATPOLL = env("ATPOLL", 1)
HINTW = env("HINTW", 0)
TSLP = env("TSLP", 2)
SPF = env("SPF", 0)
CODEPF = env("CODEPF", 1)
SLP = env("SLP", 4)

WS_Q = 0x0
WS_K = 0x200000
WS_V = 0x400000
WS_ACT = 0x600000
WS_O = 0xF00000
WS_G = 0x1240000
WS_FL = 0x1280000
FL_A = WS_FL
FL_B1 = WS_FL + 0x8000
FL_B2 = WS_FL + 0x10000
FL_C = WS_FL + 0x20000
WS_STAMP = 0x1800000
WS_SIZE = 0x2000000

SL = 40960
RING = 38912
LDS_GQ = 162176
LDS_TAG = 163328
LDS_SYNC = LDS_TAG + 8
LDS_TOTAL = 163840
TP = 2080
LDS_V = 1024
VP = TP
LDS_WS = 137472
RP = 272
LDS_Q = RING + 2 * SL + 32768
def slot_of(c):
    return RING + ((c + 2) % 3) * SL

SC = " sc1"
SPIN = 200000
MF = "v_mfma_f32_32x32x16_bf16"

def srd(a, d, base, nbytes):
    a(f"s_mov_b32 s{d}, s{base}")
    a(f"s_mov_b32 s{d+1}, s{base+1}")
    a(f"s_mov_b32 s{d+2}, {nbytes:#x}")
    a(f"s_mov_b32 s{d+3}, 0x20000")

def stamp(a, i, lvl=1):
    if PROF and (PROF == lvl or i in (0, 7)):
        a("s_memrealtime s[96:97]")
        a("s_memtime s[98:99]")
        a("s_waitcnt lgkmcnt(0)")
        a(f"s_mov_b32 s{80+i}, s96")
        a(f"s_mov_b32 s{88+i}, s98")

def stamp_flush(a, n):
    if PROF:
        a("s_waitcnt vmcnt(0)")
        stamp(a, n - 1)
        a("s_lshl_b32 s78, s2, 4")
        a("s_add_u32 s78, s78, s20")
        a("s_lshl_b32 s78, s78, 6")
        a(f"s_add_u32 s78, s78, {WS_STAMP}")
        a("v_mov_b32 v1, 0")
        for i in range(n):
            a(f"v_mov_b32 v0, s{80+i}")
            a(f"buffer_store_dword v0, v1, s[28:31], s78 offen offset:{4*i}")
            a("s_nop 1")
            a(f"v_mov_b32 v0, s{88+i}")
            a(f"buffer_store_dword v0, v1, s[28:31], s78 offen offset:{32+4*i}")
            a("s_nop 1")
        a("s_waitcnt vmcnt(0)")
        if DBGWG >= 0:
            a(f"s_cmp_lg_u32 s2, {DBGWG}")
            a("s_cbranch_scc1 DBG_SKIP")
            a("s_and_b32 s78, s20, 3")
            a("s_cmp_lg_u32 s78, 0")
            a("s_cbranch_scc1 DBG_SKIP")
            a("s_mul_i32 s78, s20, 7")
            a("v_mov_b32 v1, s78")
            for i in range(1, n):
                a(f"s_sub_u32 s79, s{80+i}, s80")
                a("v_mov_b32 v0, s79")
                a(f"global_store_dword v1, v0, s[66:67] offset:{4+4*i}")
                a("s_nop 1")
            a("s_waitcnt vmcnt(0)")
            a.label("DBG_SKIP")

def pad_until(a, ticks):
    lab = a.newlabel("PAD")
    a.label(lab)
    a("s_memrealtime s[96:97]")
    a("s_waitcnt lgkmcnt(0)")
    a("s_sub_u32 s96, s96, s68")
    a(f"s_cmp_lt_u32 s96, {ticks}")
    a(f"s_cbranch_scc1 {lab}")

def flag_store(a, soff, vtmp):
    a(f"v_mov_b32 v{vtmp}, s68")
    a(f"v_mov_b32 v{vtmp+1}, s69")
    a(f"v_mov_b32 v{vtmp+2}, 0")
    a("s_mov_b64 exec, 1")
    a(f"buffer_store_dwordx2 {v(vtmp,2)}, v{vtmp+2}, s[28:31], {soff} offen sc1")
    a("s_mov_b64 exec, -1")

def poll(a, soff, voff, vtmp, slp=None):
    lab = a.newlabel("POLL")
    done = a.newlabel("POLLD")
    a(f"s_mov_b32 s74, {SPIN}")
    a.label(lab)
    a(f"buffer_load_dwordx2 {v(vtmp,2)}, v{voff}, s[28:31], {soff} offen sc1")
    a("s_waitcnt vmcnt(0)")
    a(f"v_xor_b32 v{vtmp}, s68, v{vtmp}")
    a(f"v_xor_b32 v{vtmp+1}, s69, v{vtmp+1}")
    a(f"v_or_b32 v{vtmp}, v{vtmp}, v{vtmp+1}")
    a(f"v_cmp_ne_u32 vcc, 0, v{vtmp}")
    a("s_sub_u32 s74, s74, 1")
    a("s_cmp_eq_u32 s74, 0")
    a(f"s_cbranch_scc1 {done}")
    a("s_cmp_eq_u64 vcc, 0")
    a(f"s_cbranch_scc1 {done}")
    a(f"s_sleep {SLP if slp is None else slp}")
    a(f"s_branch {lab}")
    a.label(done)

def poll_shared(a, stage, polls, vtmp, lslp=1, extra=None):
    other = a.newlabel("PSO")
    done = a.newlabel("PSD")
    a(f"v_mov_b32 v{vtmp+3}, {LDS_SYNC}")
    a("s_cmp_lg_u32 s23, 0")
    a(f"s_cbranch_scc1 {other}")
    for p in polls:
        poll(a, *p)
    if extra:
        extra()
    a(f"v_mov_b32 v{vtmp}, {stage}")
    a(f"ds_write_b32 v{vtmp+3}, v{vtmp}")
    a(f"s_branch {done}")
    a.label(other)
    a(f"s_mov_b32 s74, {SPIN*8}")
    lab = a.newlabel("PSL")
    a.label(lab)
    a(f"ds_read_b32 v{vtmp}, v{vtmp+3}")
    a("s_waitcnt lgkmcnt(0)")
    a(f"v_readfirstlane_b32 s75, v{vtmp}")
    a("s_sub_u32 s74, s74, 1")
    a("s_cmp_eq_u32 s74, 0")
    a(f"s_cbranch_scc1 {done}")
    a(f"s_cmp_ge_u32 s75, {stage}")
    a(f"s_cbranch_scc1 {done}")
    a(f"s_sleep {lslp}")
    a(f"s_branch {lab}")
    a.label(done)

def cvt_tile(a, acc, dst, lo=0, hi=16):
    for i in range(lo, hi, 2):
        a(f"v_cvt_pk_bf16_f32 v{dst + (i - lo)//2}, v{acc+i}, v{acc+i+1}")

def gen(a):
    kernel_header(a, KNAME)
    a("s_cmp_ge_u32 s2, 256")
    a("s_cbranch_scc1 K_EXIT")
    a("s_load_dwordx4 s[4:7], s[0:1], 0       ; x, wqkv")
    a("s_load_dwordx4 s[12:15], s[0:1], 32")
    a("s_load_dwordx2 s[8:9], s[0:1], 16      ; wo")
    a("s_load_dwordx2 s[10:11], s[0:1], 80    ; ws")
    a("s_load_dwordx4 s[16:19], s[0:1], 48")
    a("s_load_dwordx4 s[64:67], s[0:1], 64")
    a("v_lshrrev_b32 v1, 6, v0")
    a("v_and_b32 v2, 63, v0                   ; lane")
    a("v_readfirstlane_b32 s20, v1")
    a("v_lshlrev_b32 v3, 4, v2                ; lane*16")
    stamp(a, 0)
    a("s_and_b32 s24, s2, 1                   ; xh")
    a("s_bfe_u32 s25, s2, 0x20001             ; xq")
    a("s_lshr_b32 s26, s2, 3                  ; j")
    a("s_and_b32 s63, s26, 7")
    a("s_lshl_b32 s21, s24, 3")
    a("s_add_u32 s21, s21, s63                ; rb")
    a("s_lshr_b32 s27, s26, 3")
    a("s_mul_i32 s22, s25, 3")
    a("s_add_u32 s22, s22, s27")
    a("s_add_u32 s23, s25, 12")
    a("s_cmp_eq_u32 s27, 3")
    a("s_cselect_b32 s22, s23, s22            ; cb2")
    if FMAP:
        a("s_and_b32 s72, s2, 7")
        a("s_lshl_b32 s72, s72, 2")
        a("s_and_b32 s73, s26, 3")
        a("s_add_u32 s72, s72, s73                ; rb64")
        a("s_lshr_b32 s73, s26, 2                 ; cb64")
    else:
        a("s_lshl_b32 s72, s25, 3")
        a("s_add_u32 s72, s72, s63                ; rb64")
        a("s_lshl_b32 s73, s24, 2")
        a("s_add_u32 s73, s73, s27                ; cb64")
    if ROT1 == 1:
        a("s_lshl_b32 s27, s27, 1")
        a("s_add_u32 s63, s63, s27")
    elif ROT1 == 2:
        a("s_add_u32 s63, s63, s27")
        a("s_lshl_b32 s63, s63, 1")
    elif ROT1 == 3:
        a("s_add_u32 s63, s63, s27")
        a("s_lshl_b32 s63, s63, 2")
    a(f"s_and_b32 s63, s63, {7 if ROT1 else 0}")
    a("s_and_b32 s70, s2, 7")
    a("s_lshl_b32 s70, s70, 2")
    a("s_and_b32 s27, s26, 3")
    a("s_add_u32 s70, s70, s27                ; head")
    a("s_lshr_b32 s71, s26, 2                 ; qb")
    a("s_cmp_lt_u32 s20, 4")
    a("s_cbranch_scc1 K1_COMPUTE")

    a("s_sub_u32 s23, s20, 4                  ; L")
    VX0, VX1, VR0, VR1, VKV = 10, 11, 12, 13, 14
    a("v_lshrrev_b32 v4, 3, v2")
    a("v_and_b32 v5, 7, v2")
    a("v_lshrrev_b32 v6, 4, v2")
    a("v_xor_b32 v7, v5, v6")
    a("v_lshlrev_b32 v7, 4, v7")
    a(f"v_lshl_add_u32 v{VX0}, v4, 10, v7")
    a(f"v_xor_b32 v{VX1}, 64, v{VX0}")
    a("v_and_b32 v7, 1, v6")
    a("v_lshlrev_b32 v7, 2, v7")
    a("v_xor_b32 v7, v7, v5")
    a("v_lshlrev_b32 v7, 4, v7")
    a("v_mul_u32_u24 v8, 3072, v4")
    a(f"v_add_u32 v{VKV}, v8, v7")
    a("v_mul_u32_u24 v8, 3584, v4")
    a("v_add_u32 v15, v8, v7")
    a("s_cmp_lt_u32 s22, 12")
    a("s_cselect_b64 vcc, -1, 0")
    a("s_movk_i32 s60, 3072")
    a("s_cselect_b32 s60, 3584, s60")
    a(f"v_cndmask_b32 v{VR0}, v{VKV}, v15, vcc")
    a(f"v_xor_b32 v{VR1}, 32, v{VR0}")
    a("s_cselect_b32 s32, 0, 12")
    a("s_sub_u32 s32, s22, s32")
    a("s_lshl_b32 s32, s32, 8")
    a("s_lshl_b32 s61, s22, 1")
    a("s_add_u32 s61, s61, 1")
    a("s_add_u32 s34, s22, 12")
    a("s_cmp_lt_u32 s22, 12")
    a("s_cselect_b32 s33, 0, 128              ; R1 - R0")
    a("s_cselect_b32 s61, s61, s34")
    a("s_lshl_b32 s61, s61, 7")
    a("s_mul_i32 s34, s23, 57344")
    a("s_add_u32 s61, s61, s34")
    a("s_lshl_b32 s34, s23, 4")
    a("s_mul_i32 s34, s34, s60")
    a("s_add_u32 s32, s32, s34")
    a("s_lshl_b32 s62, s60, 6")
    a("s_lshl_b32 s36, s60, 3                 ; 8 rows")
    a("s_mul_i32 s34, s23, 49152")
    a("s_lshl_b32 s35, s22, 7")
    a("s_add_u32 s34, s34, s35")
    a("s_add_u32 s34, s34, 1024")
    a("s_lshl_b32 s40, s21, 17")
    a("s_lshl_b32 s41, s23, 15")
    a("s_add_u32 s40, s40, s41                ; x base")
    a("s_lshl_b32 s42, s23, 12")
    a("s_lshl_b32 s35, s23, 11")
    a("s_mov_b32 s43, s63                     ; kc")
    a("s_waitcnt lgkmcnt(0)")
    srd(a, 24, 4, 0x200000)
    srd(a, 44, 6, 0x180000)
    a("s_cmp_lt_u32 s22, 12")
    a("s_cselect_b64 s[48:49], s[12:13], s[6:7]")
    a("s_cselect_b64 s[52:53], s[14:15], s[6:7]")
    a("s_cselect_b32 s50, 0x1c0000, s46")
    a("s_mov_b32 s54, s50")
    a("s_mov_b32 s51, 0x20000")
    a("s_mov_b32 s55, 0x20000")
    queue = []
    def issue(c):
        slot = slot_of(c)
        a("s_lshl_b32 s37, s43, 7")
        a("s_add_u32 s37, s37, s40")
        a("s_mul_i32 s38, s43, s62")
        a("s_add_u32 s38, s38, s32")
        for i in range(2):
            a(f"s_add_u32 m0, s35, {slot + 16384 + i*1024}")
            a("s_add_u32 s39, s38, s33")
            a(f"buffer_load_dwordx4 v{VR0}, s[48:51], s38 offen lds")
            a(f"s_add_u32 m0, s35, {slot + 24576 + i*1024}")
            a("s_add_u32 s38, s38, s36")
            a(f"buffer_load_dwordx4 v{VR1}, s[52:55], s39 offen lds")
        if c < 8:
            a("s_mul_i32 s38, s43, 196608")
            a("s_add_u32 s38, s38, s34")
            for i in range(2):
                a(f"s_add_u32 m0, s35, {slot + 32768 + i*1024}")
                a(f"s_add_u32 s39, s38, {i*24576}")
                a(f"buffer_load_dwordx4 v{VKV}, s[44:47], s39 offen lds")
        for i in range(4):
            a(f"s_add_u32 m0, s42, {slot + i*1024}")
            a(f"s_add_u32 s39, s37, {i*8192}")
            a(f"buffer_load_dwordx4 v{VX1 if i & 1 else VX0}, s[24:27], s39 offen lds")
        a("s_add_u32 s43, s43, 1")
        a("s_and_b32 s43, s43, 7")
        if c == 7:
            if ROT2:
                a("s_and_b32 s43, s21, 7")
            a("s_mov_b32 s32, s61")
            a("s_mov_b32 s33, 0")
            a("s_mov_b32 s62, 229376")
            a("s_mov_b32 s36, 28672")
            a("s_mov_b64 s[48:49], s[12:13]")
            a("s_mov_b64 s[52:53], s[14:15]")
            a("s_mov_b32 s50, 0x1c0000")
            a("s_mov_b32 s54, 0x1c0000")
            a(f"v_mov_b32 v{VR0}, v15")
            a(f"v_xor_b32 v{VR1}, 32, v15")
        queue.extend([c] * (10 if c < 8 else 8))
    def waitq(tag):
        n = len(queue) - 1 - max(i for i, t in enumerate(queue) if t == tag)
        a(f"s_waitcnt vmcnt({n})")
    issue(0)
    if PRE == 2:
        issue(1)
    stamp(a, 1)
    srd(a, 28, 10, WS_SIZE)
    a("v_mov_b32 v9, 0")
    a("s_add_u32 s37, s2, s20")
    a("s_cmp_eq_u32 s37, 4")
    a("s_cbranch_scc0 K1_NOTAG")
    a("s_memrealtime s[56:57]")
    a("s_waitcnt lgkmcnt(0)")
    a("s_or_b32 s56, s56, 1")
    a("s_or_b32 s57, s57, 0x80000000")
    a("v_mov_b32 v4, s56")
    a("v_mov_b32 v5, s57")
    a("s_mov_b64 exec, 1")
    a("global_store_dwordx2 v9, v[4:5], s[66:67] sc1")
    a("s_mov_b64 exec, -1")
    a.label("K1_NOTAG")
    def get_tag():
        lab, done = a.newlabel("TAG"), a.newlabel("TAGD")
        a(f"s_mov_b32 s74, {SPIN}")
        a("v_readfirstlane_b32 s68, v60")
        a("v_readfirstlane_b32 s69, v61")
        a.label(lab)
        a("s_sub_u32 s74, s74, 1")
        a(f"s_cbranch_scc1 {done}")
        a("s_min_u32 s75, s68, s69")
        a("s_cmp_lg_u32 s75, 0")
        a(f"s_cbranch_scc1 {done}")
        a("global_load_dwordx2 v[60:61], v9, s[66:67] sc1")
        a("s_waitcnt vmcnt(0)")
        a("v_readfirstlane_b32 s68, v60")
        a("v_readfirstlane_b32 s69, v61")
        a("s_sleep 2")
        a(f"s_branch {lab}")
        a.label(done)
        a(f"v_mov_b32 v4, {LDS_TAG}")
        a("v_mov_b32 v60, s68")
        a("v_mov_b32 v61, s69")
        a("ds_write_b64 v4, v[60:61]")
        a("ds_write_b32 v4, v9 offset:8")
        a("ds_write_b32 v4, v9 offset:12")
        a("ds_write_b32 v4, v9 offset:16")
        a("s_waitcnt lgkmcnt(0)")
    def flag_a():
        lab = a.newlabel("FA")
        a("s_cmp_lg_u32 s23, 1")
        a(f"s_cbranch_scc1 {lab}")
        a("s_lshl_b32 s37, s22, 4")
        a("s_add_u32 s37, s37, s21")
        a("s_lshl_b32 s37, s37, 7")
        a(f"s_add_u32 s37, s37, {FL_A}")
        flag_store(a, "s37", 16)
        a.label(lab)
    def kv_setup():
        a("v_and_b32 v5, 15, v2")
        a("v_lshlrev_b32 v5, 7, v5")
        a("v_bfe_u32 v6, v2, 4, 1")
        a("v_lshl_add_u32 v5, v6, 14, v5")
        a("s_and_b32 s56, s2, 7")
        a("s_lshr_b32 s57, s56, 1")
        a("s_add_u32 s57, s57, 12")
        a("s_sub_u32 s57, s57, s56")
        a("s_lshl_b32 s57, s57, 11")
        a("s_lshl_b32 s58, s71, 8")
        a("s_add_u32 s57, s57, s58")
        a("v_and_b32 v6, 1, v2")
        a("v_lshlrev_b32 v6, 7, v6")
        a("v_add_u32 v6, s57, v6")
        a("v_cmp_gt_u32 vcc, 32, v2")
        a("s_lshl_b32 s56, s56, 11")
        a(f"s_add_u32 s56, s56, {FL_A}")
        a("v_cndmask_b32 v5, v6, v5, vcc")
        a("s_lshl_b32 s57, s70, 16")
        a("s_lshl_b32 s58, s23, 10")
        a("s_add_u32 s57, s57, s58                ; head*64K + L*1K")
        a(f"s_add_u32 s57, s57, {WS_K}")
        a(f"s_mul_i32 s58, s23, {TP}")
    def kv_loads(lo, hi):
        n = hi - lo
        a(f"s_mul_i32 s44, s71, {n}")
        a("s_lshr_b32 s44, s44, 3")
        for i in range(n):
            a(f"s_mul_i32 s45, s44, {4*TP}")
            a("s_add_u32 s45, s45, s58")
            a(f"s_add_u32 m0, s45, {lo*4*TP}")
            a("s_lshl_b32 s37, s44, 12")
            a("s_add_u32 s37, s37, s57")
            a(f"s_add_u32 s38, s37, {lo*4096}")
            a(f"buffer_load_dwordx4 v3, s[28:31], s38 offen{SC} lds")
            a(f"s_add_u32 m0, s45, {lo*4*TP + 1024}")
            a(f"s_add_u32 s38, s37, {lo*4096 + WS_V - WS_K}")
            a(f"buffer_load_dwordx4 v3, s[28:31], s38 offen{SC} lds")
            if i < n - 1:
                a("s_add_u32 s44, s44, 1")
                a(f"s_cmp_eq_u32 s44, {n}")
                a("s_cselect_b32 s44, 0, s44")
        queue.extend(["kv"] * (2 * n))
    def q_loads():
        a("s_lshl_b32 s37, s70, 6")
        a("s_lshl_b32 s38, s71, 3")
        a("s_add_u32 s37, s37, s38")
        a("s_lshl_b32 s38, s23, 1")
        a("s_add_u32 s37, s37, s38")
        a("s_lshl_b32 s37, s37, 10")
        a("s_lshl_b32 s38, s23, 11")
        a(f"s_add_u32 m0, s38, {LDS_Q}")
        a("s_nop 0")
        a(f"buffer_load_dwordx4 v3, s[28:31], s37 offen{SC} lds")
        a(f"buffer_load_dwordx4 v3, s[28:31], s37 offen offset:1024{SC} lds")
    def fa_load():
        a("buffer_load_dwordx2 v[20:21], v5, s[28:31], s56 offen sc1")
    def fa_test():
        a("v_xor_b32 v20, s68, v20")
        a("v_xor_b32 v21, s69, v21")
        a("v_or_b32 v20, v20, v21")
        a("v_cmp_ne_u32 vcc, 0, v20")
        a("s_nop 1")
        a("s_cmp_eq_u64 vcc, 0")
    for c in range(14):
        waitq(c)
        if c == 6:
            get_tag()
        if c < 6:
            stamp(a, c + 1, 2)
        if 6 <= c < 12:
            stamp(a, c - 5, 3)
        if c >= 10:
            stamp(a, c - 9, 4)
        a(f"s_barrier                              ; b({c})")
        if c == 8:
            stamp(a, 2)
        if c == 4:
            a("global_load_dwordx2 v[60:61], v9, s[66:67] sc1")
        if c == AFLAG:
            flag_a()
        if c == 12:
            kv_setup()
        if c == 0 and PRE == 1:
            issue(1)
        if c + 2 < 16:
            issue(c + 2)
        if c == PFC:
            a("s_cmp_ge_u32 s23, 2")
            a("s_cbranch_scc1 K1_NOPF2")
            a("s_cmp_eq_u32 s23, 0")
            a("s_cselect_b64 s[56:57], s[12:13], s[14:15]")
            a("s_mov_b32 s58, 0x1c0000")
            a("s_mov_b32 s59, 0x20000")
            a("v_mul_u32_u24 v16, 3584, v2")
            a("s_mul_i32 s37, s23, 57344")
            a("s_sub_u32 s37, s61, s37")
            a("s_and_b32 s38, s21, 7")
            a("s_mul_i32 s38, s38, 229376")
            a("s_add_u32 s37, s37, s38")
            a("buffer_load_dword v17, v16, s[56:59], s37 offen")
            a.label("K1_NOPF2")
    fa_load()
    a("s_waitcnt vmcnt(9)")
    a("s_barrier                              ; b(14)")
    a("s_waitcnt vmcnt(0)")
    fa_test()
    a("s_cbranch_scc0 KV_LATE1")
    q_loads()
    kv_loads(0, 5)
    a("s_barrier                              ; b(15)")
    kv_loads(5, 9)
    a("s_barrier")
    a("s_branch K2_GEMM")
    a.label("KV_LATE1")
    fa_load()
    a("s_barrier                              ; b(15)")
    a("s_waitcnt vmcnt(0)")
    fa_test()
    a("s_cbranch_scc0 KV_LATE2")
    q_loads()
    kv_loads(0, 5)
    a("s_barrier                              ; b(16)")
    a("s_branch KV_REST")
    a.label("KV_LATE2")
    a("s_barrier                              ; b(16)")
    poll(a, "s56", 5, 8, 1)
    q_loads()
    kv_loads(0, 5)
    a.label("KV_REST")
    kv_loads(5, 9)
    a("s_branch K2_GEMM")

    a.label("K1_COMPUTE")
    AF = 96
    AK = 224
    def accF(sw, i, t):
        return AF + ((sw * 2 + i) * 2 + t) * 16
    XA = [4, 5, 6, 7]
    WA = [8, 9]
    KA = 10
    a("s_and_b32 s23, s20, 1                  ; tp")
    a("s_lshr_b32 s24, s20, 1                 ; grp")
    a("v_bfe_u32 v16, v2, 4, 1                ; gsel")
    a("v_lshrrev_b32 v17, 5, v2               ; h")
    a("v_bfe_u32 v18, v2, 2, 2                ; r")
    a("v_and_b32 v19, 3, v2                   ; c")
    a("v_lshl_add_u32 v20, v17, 3, v18        ; 8h+r")
    a("v_and_b32 v21, 31, v2")
    a("v_lshlrev_b32 v21, 7, v21")
    a("v_bfe_u32 v22, v2, 1, 3")
    a("v_xor_b32 v22, v22, v17")
    a("v_lshl_add_u32 v21, v22, 4, v21")
    a("s_lshl_b32 s25, s23, 13")
    a(f"s_add_u32 s25, s25, {slot_of(0)}")
    for s_ in range(4):
        a(f"v_xor_b32 v{XA[s_]}, {32*s_}, v21")
        a(f"v_add_u32 v{XA[s_]}, s25, v{XA[s_]}")
    a("v_lshlrev_b32 v20, 7, v20")
    a("v_lshl_add_u32 v20, v19, 3, v20        ; row*128 + c*8")
    a("v_lshrrev_b32 v21, 1, v18")
    a("v_xor_b32 v21, s24, v21                ; grp ^ (r>>1)")
    a("v_lshl_add_u32 v20, v21, 6, v20")
    a("v_lshl_add_u32 v20, v16, 5, v20")
    a(f"v_add_u32 v{KA}, {slot_of(0) + 32768}, v20")
    a("v_lshl_add_u32 v20, v16, 13, v20")
    a("v_xor_b32 v21, 32, v20")
    a(f"v_add_u32 v{WA[0]}, {slot_of(0) + 16384}, v20")
    a(f"v_add_u32 v{WA[1]}, {slot_of(0) + 16384}, v21")
    a("v_and_b32 v11, 0x33, v2")
    a("v_bfe_u32 v17, v2, 2, 1")
    a("v_lshl_or_b32 v11, v17, 3, v11")
    a("v_bfe_u32 v17, v2, 3, 1")
    a("v_lshl_or_b32 v11, v17, 2, v11")
    a("v_lshlrev_b32 v11, 4, v11              ; K voffset")
    a("s_cmp_lt_u32 s22, 8")
    a("s_cbranch_scc1 K1_KOFF")
    a("v_lshlrev_b32 v11, 16, v16")
    a("v_lshrrev_b32 v18, 5, v2")
    a("v_lshl_or_b32 v11, v18, 8, v11")
    a("v_and_b32 v18, 15, v2")
    a("v_lshl_or_b32 v11, v18, 4, v11         ; V voffset")
    a.label("K1_KOFF")
    for i in range(160):
        a(f"v_mov_b32 v{AF+i}, 0")
    a("s_waitcnt lgkmcnt(0)")
    srd(a, 28, 10, WS_SIZE)
    if CODEPF:
        a("s_getpc_b64 s[50:51]")
        a.label("PC_HERE")
        a(f"s_sub_u32 s50, s50, PC_HERE-{KNAME}")
        a("s_subb_u32 s51, s51, 0")
        a("s_lshr_b32 s49, s2, 3")
        a("s_lshl_b32 s49, s49, 2")
        a("s_add_u32 s49, s49, s20")
        a("s_lshl_b32 s49, s49, 9")
        a("v_lshlrev_b32 v21, 3, v2")
        a("v_add_u32 v21, s49, v21")
        a(f"v_min_u32 v21, K_END-{KNAME}-4, v21")
        a("global_load_dword v21, v21, s[50:51]")
    a("s_lshl_b32 s32, s21, 2")
    a("s_lshl_b32 s33, s23, 1")
    a("s_add_u32 s32, s32, s33                ; tt0")
    a("s_and_b32 s36, s22, 7")
    a("s_lshl_b32 s36, s36, 2")
    a("s_lshl_b32 s37, s24, 1")
    a("s_add_u32 s36, s36, s37")
    a("s_lshl_b32 s36, s36, 6")
    a("s_add_u32 s36, s36, s32")
    a("s_lshl_b32 s36, s36, 10")
    a("s_cmp_lt_u32 s22, 8")
    a(f"s_mov_b32 s38, {WS_V}")
    a(f"s_cselect_b32 s38, {WS_K}, s38")
    a("s_movk_i32 s37, 512")
    a("s_cselect_b32 s37, 0x10000, s37")
    a("s_add_u32 s36, s36, s38")
    a("s_add_u32 s37, s37, s36")
    a("s_mov_b32 s25, 2")
    a("s_mov_b32 s26, 8")
    BB = [24, 44]
    def reads(s_, buf, kv):
        L = [f"ds_read_b128 {v(buf,4)}, v{XA[s_]}"]
        for t in range(2):
            for u in range(2):
                L.append(f"ds_read_b64_tr_b16 {v(buf+8+4*t+2*u,2)}, v{WA[t]} offset:{(16*s_+4*u)*128}")
            if t == 0:
                L.append(f"ds_read_b128 {v(buf+4,4)}, v{XA[s_]} offset:4096")
        if kv:
            for u in range(2):
                L.append(f"ds_read_b64_tr_b16 {v(buf+16+2*u,2)}, v{KA} offset:{(16*s_+4*u)*128}")
        return L
    def mfs(buf, sw, vtype):
        L = []
        for t in range(2):
            for i in range(2):
                acc = accF(sw, i, t)
                L.append(f"{MF} {v(acc,16)}, {v(buf+8+4*t,4)}, {v(buf+4*i,4)}, {v(acc,16)}")
        if sw == 0:
            for i in range(2):
                acc = AK + 16 * i
                A_, B_ = v(buf + 16, 4), v(buf + 4 * i, 4)
                if vtype:
                    A_, B_ = B_, A_
                L.append(f"{MF} {v(acc,16)}, {A_}, {B_}, {v(acc,16)}")
        return L
    def sweep(name, sw, vtype):
        a.raw(".p2align 6")
        a.label(name)
        kv = sw == 0
        nr = 8 if kv else 6
        for s_ in range(4):
            upd = []
            if s_ == 2:
                upd = ["s_add_u32 s25, s25, 1", "s_cmp_eq_u32 s25, 3", f"s_mov_b32 s27, {SL}",
                       f"s_cselect_b32 s27, {(-2*SL) & 0xffffffff:#x}, s27", "s_cselect_b32 s25, 0, s25"]
                upd += [f"v_add_u32 v{r}, s27, v{r}" for r in XA + WA + ([KA] if kv else [])]
            if s_ == 1 and sw == 1:
                upd = [f"s_cmp_lg_u32 s26, {17 - AFLAG}", f"s_cbranch_scc1 {name}_ND", "s_waitcnt vmcnt(0)", f"{name}_ND:"]
            M = mfs(BB[s_ & 1], sw, vtype)
            if s_ < 3:
                R = reads(s_ + 1, BB[(s_ + 1) & 1], kv)
                seq = [f"s_waitcnt lgkmcnt({nr-4})", M[0], R[0], R[1], M[1], R[2], R[3], "s_waitcnt lgkmcnt(4)", M[2], R[4], R[5]]
                if kv:
                    seq += [M[3], R[6], R[7], M[4]] + upd[:7] + [M[5]] + upd[7:]
                elif s_ == 1:
                    seq += [M[3]] + upd
                else:
                    seq += upd[:5] + [M[3]] + upd[5:]
            else:
                R = reads(0, BB[0], kv)
                tail = ["s_sub_u32 s26, s26, 1", "s_cmp_lg_u32 s26, 0"]
                seq = [f"s_waitcnt lgkmcnt({nr-4})", M[0], "s_waitcnt lgkmcnt(0)", "s_barrier", R[0], M[1], R[1], R[2], R[3], M[2], R[4], R[5]]
                if kv:
                    seq += [M[3], R[6], R[7], M[4]] + tail + [M[5]]
                else:
                    seq += tail + [M[3]]
            for l in seq:
                a(l)
        a(f"s_cbranch_scc1 {name}")
    a("s_barrier                              ; b(0)")
    stamp(a, 1)
    for l in reads(0, BB[0], True):
        a(l)
    a("s_cmp_lt_u32 s22, 8")
    a("s_cbranch_scc0 SW1V")
    sweep("SW1K", 0, False)
    a("s_branch K1_KVEPI")
    sweep("SW1V", 0, True)
    a.label("K1_KVEPI")
    stamp(a, 2)
    c0 = -2.0 * 0.7978845608028654 * LOG2E
    c1 = c0 * 0.044715
    T = 64
    TB = 16
    def gelu_tile(acc, out, pk):
        L = []
        if pk:
            for j in range(0, 8, 2):
                L.append(f"v_pk_mul_f32 {v(TB+j,2)}, {v(acc+j,2)}, {v(acc+j,2)}")
            for j in range(0, 8, 2):
                L.append(f"v_pk_fma_f32 {v(TB+j,2)}, {v(TB+j,2)}, s[34:35], v[12:13]")
            for j in range(0, 8, 2):
                L.append(f"v_pk_mul_f32 {v(TB+j,2)}, {v(TB+j,2)}, {v(acc+j,2)}")
            for j in range(8):
                L.append(f"v_exp_f32 v{TB+j}, v{TB+j}")
            for j in range(0, 4, 2):
                L.append(f"v_pk_mul_f32 {v(acc+8+j,2)}, {v(acc+8+j,2)}, {v(acc+j,2)}")
            for j in range(0, 8, 2):
                L.append(f"v_pk_add_f32 {v(TB+j,2)}, {v(TB+j,2)}, v[14:15]")
            for j in range(8):
                L.append(f"v_rcp_f32 v{TB+j}, v{TB+j}")
            for j in range(4, 8, 2):
                L.append(f"v_pk_mul_f32 {v(acc+8+j,2)}, {v(acc+8+j,2)}, {v(acc+j,2)}")
            for j in range(0, 8, 2):
                L.append(f"v_pk_mul_f32 {v(acc+8+j,2)}, {v(acc+8+j,2)}, {v(TB+j,2)}")
        else:
            for j in range(8):
                L.append(f"v_mul_f32 v{TB+j}, v{acc+j}, v{acc+j}")
            for j in range(8):
                L.append(f"v_fma_f32 v{TB+j}, v{TB+j}, s34, v12")
            for j in range(8):
                L.append(f"v_mul_f32 v{TB+j}, v{TB+j}, v{acc+j}")
            for j in range(8):
                L.append(f"v_exp_f32 v{TB+j}, v{TB+j}")
                L.append(f"v_mul_f32 v{acc+8+j}, v{acc+8+j}, v{acc+j}")
            for j in range(8):
                L.append(f"v_add_f32 v{TB+j}, 1.0, v{TB+j}")
            for j in range(8):
                L.append(f"v_rcp_f32 v{TB+j}, v{TB+j}")
                if j >= 2:
                    L.append(f"v_mul_f32 v{acc+8+j-2}, v{acc+8+j-2}, v{TB+j-2}")
            L.append(f"v_mul_f32 v{acc+14}, v{acc+14}, v{TB+6}")
            L.append(f"v_mul_f32 v{acc+15}, v{acc+15}, v{TB+7}")
        for j in range(0, 8, 2):
            L.append(f"v_cvt_pk_bf16_f32 v{out + j//2}, v{acc+8+j}, v{acc+8+j+1}")
        return L
    def kv_fill():
        L = []
        for i in range(2):
            for j in range(0, 16, 2):
                L.append(f"v_cvt_pk_bf16_f32 v{T + 8*i + j//2}, v{AK+16*i+j}, v{AK+16*i+j+1}")
                if j == 6:
                    L.append(f"buffer_store_dwordx4 {v(T+8*i,4)}, v11, s[28:31], s36 offen offset:{i*1024}{SC}")
            L.append(f"buffer_store_dwordx4 {v(T+8*i+4,4)}, v11, s[28:31], s37 offen offset:{i*1024}{SC}")
        return L
    def q_fill():
        L = []
        for t in range(2):
            for i in range(2):
                acc = accF(0, i, t)
                for hf in range(2):
                    for j in range(8):
                        L.append(f"v_mul_f32 v{acc+8*hf+j}, s34, v{acc+8*hf+j}")
                    for j in range(0, 8, 2):
                        L.append(f"v_cvt_pk_bf16_f32 v{acc+8*hf+j//2}, v{acc+8*hf+j}, v{acc+8*hf+j+1}")
                    L.append(f"s_add_u32 s39, s38, {WS_Q + (t + 4*hf) * 65536}\nbuffer_store_dwordx4 {v(acc+8*hf,4)}, v3, s[28:31], s39 offen offset:{i*1024}{SC}")
        return L
    def cost(l):
        return 8 if l.startswith(("v_exp", "v_rcp")) else 4
    def sweep2(fill, early):
        nsteps = 32
        esteps = 4 * (AFLAG - 9) - 1
        parts = [[] for _ in range(nsteps)]
        E, Rr = fill[:early], fill[early:]
        def spread(L, lo, hi):
            tot = sum(cost(l) for l in L)
            acc_ = 0
            for l in L:
                st = lo + min(hi - lo - 1, int(acc_ * (hi - lo) / max(tot, 1)))
                parts[st].append(l)
                acc_ += cost(l)
        ecost = sum(cost(l) for l in E)
        ehi = min(esteps + 1, 1 + max(1, -(-ecost // 48)))
        spread(E, 1, ehi)
        spread(Rr, ehi, nsteps)
        for c in range(8, 16):
            for s_ in range(4):
                st = (c - 8) * 4 + s_
                F = list(parts[st])
                M = mfs(BB[s_ & 1], 1, False)
                d = slot_of(c + 1) - slot_of(c)
                upd = [f"v_add_u32 v{r}, {d & 0xffffffff:#x}, v{r}" for r in XA + WA] if (s_ == 2 and c < 15) else []
                q = [F[0::3], F[1::3], F[2::3]]
                n1 = (len(F) + 2) // 3
                q = [F[:n1 // 2], F[n1 // 2:n1], F[n1:n1 + (len(F) - n1) // 3], F[n1 + (len(F) - n1) // 3:]]
                if s_ < 3:
                    R = reads(s_ + 1, BB[(s_ + 1) & 1], False)
                    seq = ["s_waitcnt lgkmcnt(2)", M[0], R[0], R[1]] + q[0] + [M[1], R[2], R[3]] + q[1] + ["s_waitcnt lgkmcnt(4)", M[2], R[4], R[5]] + q[2] + [M[3]] + q[3] + upd
                else:
                    R = reads(0, BB[0], False) if c < 15 else []
                    dr = ["s_waitcnt vmcnt(0)"] if c + 1 == AFLAG else []
                    seq = ["s_waitcnt lgkmcnt(2)", M[0]] + q[0] + dr + ["s_waitcnt lgkmcnt(0)", "s_barrier"] + R[:1] + [M[1]] + R[1:4] + q[1] + [M[2]] + R[4:] + q[2] + [M[3]] + q[3]
                for l in seq:
                    a(l)
    a(f"v_mov_b32 v16, {LDS_TAG}")
    a("ds_read_b64 v[18:19], v16")
    a(f"v_mov_b32 v12, {fh(c0)}")
    a("v_mov_b32 v13, v12")
    a("v_mov_b32 v14, 1.0")
    a("v_mov_b32 v15, 1.0")
    a("s_waitcnt lgkmcnt(0)")
    a("v_readfirstlane_b32 s68, v18")
    a("v_readfirstlane_b32 s69, v19")
    a("s_cmp_lt_u32 s22, 12")
    a("s_cbranch_scc1 SW2R")
    a(f"s_mov_b32 s34, {fh(LOG2E*0.25)}")
    a("s_sub_u32 s38, s22, 12")
    a("s_lshl_b32 s38, s38, 3")
    a("s_lshl_b32 s39, s24, 1")
    a("s_add_u32 s38, s38, s39")
    a("s_lshl_b32 s38, s38, 6")
    a("s_add_u32 s38, s38, s32")
    a("s_lshl_b32 s38, s38, 10")
    F = kv_fill() + q_fill()
    sweep2(F, len(F))
    a("s_branch K1_GE2")
    a.label("SW2R")
    a(f"s_mov_b32 s34, {fh(c1)}")
    a("s_mov_b32 s35, s34")
    F = kv_fill()
    ne = len(F)
    for i in range(2):
        for t in range(2):
            F += gelu_tile(accF(0, i, t), 80 + 4 * (i * 2 + t), GPK)
    sweep2(F, ne)
    a.label("K1_GE2")
    stamp(a, 3)
    a(f"s_mov_b32 s34, {fh(c1)}")
    a("s_mov_b32 s35, s34")
    a("s_mul_i32 s36, s32, 144")
    a("s_lshl_b32 s37, s22, 3")
    a("s_lshl_b32 s38, s22, 2")
    a("s_add_u32 s38, s38, 44")
    a("s_cmp_lt_u32 s22, 12")
    a("s_cselect_b32 s37, s37, s38")
    a("s_add_u32 s36, s36, s37")
    a("s_lshl_b32 s37, s24, 1")
    a("s_add_u32 s36, s36, s37")
    a("s_lshl_b32 s36, s36, 10")
    a(f"s_add_u32 s36, s36, {WS_ACT}")
    a(f"s_add_u32 s37, s36, {144*1024}")
    a("s_add_u32 s38, s36, 4096")
    a("s_add_u32 s39, s37, 4096")
    a("s_cmp_lt_u32 s22, 12")
    a("s_cbranch_scc0 K1_GE3")
    for i in range(2):
        for t in range(2):
            a(f"buffer_store_dwordx4 {v(80 + 4*(i*2+t),4)}, v3, s[28:31], s{36+i} offen offset:{t*1024}{SC}")
    a.label("K1_GE3")
    for t in range(2):
        for i in range(2):
            out = 64 + 4 * (i * 2 + t)
            for l in gelu_tile(accF(1, i, t), out, True):
                a(l)
            a(f"buffer_store_dwordx4 {v(out,4)}, v3, s[28:31], s{38+i} offen offset:{t*1024}{SC}")

    a.label("K2_ATTN")
    Q = [8, 12]
    G = [4, 5]
    KB = [16, 20]
    VB = [[24, 28], [32, 36]]
    IDX = 6
    VK, VV0, VV1 = 40, 41, 42
    C = [96, 112]
    S = [128, 144]
    P = [160, 176]
    O = [192, 208]
    a(f"v_mov_b32 v{IDX}, 0xdddd")
    def vaddr_init():
        a(f"v_mov_b32 v{VK}, v3")
        a("v_lshrrev_b32 v43, 5, v2")
        a("v_and_b32 v44, 15, v2")
        a("v_lshlrev_b32 v44, 4, v44")
        a("v_lshl_or_b32 v44, v43, 8, v44")
        a(f"v_add_u32 v44, {LDS_V}, v44")
        a("v_add_u32 v45, 512, v44")
        a("v_and_b32 v43, 31, v2")
        a("v_subrev_u32 v47, 20, v43")
        a("v_cmp_gt_u32 vcc, 8, v47")
        a(f"v_mov_b32 v46, {LDS_V + 1040}")
        a(f"v_mov_b32 v47, {LDS_V + 1040 + 2*VP}")
        a("v_cndmask_b32 v46, v46, v47, vcc")
        a("v_and_b32 v47, 27, v43")
        a("v_cmp_eq_u32 vcc, 16, v47")
        a("v_subrev_u32 v47, 16, v46")
        a("s_nop 0")
        a("v_cndmask_b32 v46, v46, v47, vcc")
        a("v_cmp_gt_u32 vcc, 16, v43")
        a("s_nop 1")
        a(f"v_cndmask_b32 v{VV0}, v46, v44, vcc")
        a(f"v_cndmask_b32 v{VV1}, v46, v45, vcc")
    vaddr_init()
    a("s_lshl_b32 s24, s20, 8")
    a(f"s_add_u32 s24, s24, {LDS_GQ}")
    a("v_and_b32 v7, 31, v2")
    a("v_lshlrev_b32 v7, 2, v7")
    a("v_add_u32 v7, s24, v7                  ; g address")
    for q in range(2):
        for i in range(16):
            a(f"v_mov_b32 v{O[q]+i}, 0")
    a("s_mov_b32 s26, 0")
    a("s_lshl_b32 s24, s20, 11")
    a(f"s_add_u32 s24, s24, {LDS_Q}")
    a("v_add_u32 v43, s24, v3")
    a("s_barrier                              ; X1")
    a("s_setprio 2")
    stamp(a, 4)
    a(f"ds_read_b128 {v(Q[0],4)}, v43")
    a(f"ds_read_b128 {v(KB[0],4)}, v{VK}")
    a(f"ds_read_b128 {v(Q[1],4)}, v43 offset:1024")
    a("s_waitcnt lgkmcnt(0)")
    for q in range(2):
        a(f"{MF} {v(S[q],16)}, {v(KB[0],4)}, {v(Q[q],4)}, 0")
    a("s_nop 7")
    a("s_nop 3")
    def maxtree(src, dst, acc=False):
        if acc:
            for i in range(0, 16, 2):
                a(f"v_max3_f32 v{dst}, v{src+i}, v{src+i+1}, v{dst}")
        else:
            a(f"v_max_f32 v{dst}, v{src}, v{src+1}")
            for i in range(2, 16, 2):
                a(f"v_max3_f32 v{dst}, v{src+i}, v{src+i+1}, v{dst}")
    for q in range(2):
        maxtree(S[q], 44 + q)
    a.label("K2_SETMAX")
    a(f"ds_read_b128 {v(KB[0],4)}, v{VK}")
    a(f"ds_read_b128 {v(VB[0][0],4)}, v{VV0}")
    a(f"ds_read_b128 {v(VB[0][1],4)}, v{VV1}")
    a(f"ds_read_b128 {v(KB[1],4)}, v{VK} offset:{TP}")
    for q in range(2):
        a(f"v_mov_b32 v{46+q}, v{44+q}")
    a("s_nop 1")
    for q in range(2):
        a(f"v_permlane32_swap_b32 v{44+q}, v{46+q}")
    for q in range(2):
        a(f"v_max_f32 v{44+q}, v{44+q}, v{46+q}")
    for i in range(16):
        a(f"v_sub_f32 v{C[0]+i}, 0, v44")
    a("s_waitcnt lgkmcnt(0)")
    a("s_nop 0")
    a(f"{MF} {v(S[0],16)}, {v(KB[0],4)}, {v(Q[0],4)}, {v(C[0],16)}")
    for i in range(16):
        a(f"v_sub_f32 v{C[1]+i}, 0, v45")
    for i in range(8):
        a(f"v_mov_b32 v{P[1]+8+i}, 0")
    for i in range(4):
        a(f"v_mov_b32 v{VB[1][1]+i}, 0")
    a("s_cmp_lg_u32 s26, 0")
    a("s_cbranch_scc1 K2_NOBAR")
    a("s_waitcnt vmcnt(0)")
    a("s_barrier")
    a.label("K2_NOBAR")
    if PADATT:
        pad_until(a, PADATT)
    U = UA
    a(f"s_mov_b32 s27, {64 // U - 1}")
    a(f"v_mov_b32 v46, {LDS_SYNC + 4}")
    a.raw(".p2align 6")
    a.label("K2_LOOP")
    def exps(q, lo, hi):
        for i in range(lo, hi):
            a(f"v_exp_f32 v{P[q]+i}, v{S[q]+i}")
    def smf(q, vb, half):
        a(f"v_smfmac_f32_32x32x32_bf16 {v(O[q],16)}, {v(vb,4)}, {v(P[q]+8*half,8)}, v{IDX}")
    for u in range(U):
        b = u & 1
        a(f"{MF} {v(S[1],16)}, {v(KB[b],4)}, {v(Q[1],4)}, {v(C[1],16)}")
        exps(0, 0, 5)
        smf(1, VB[b ^ 1][1], 1)
        a(f"ds_read_b128 {v(VB[b^1][0],4)}, v{VV0} offset:{(u+1)*VP}")
        exps(0, 5, 11)
        smf(0, VB[b][0], 0)
        a(f"ds_read_b128 {v(VB[b^1][1],4)}, v{VV1} offset:{(u+1)*VP}")
        exps(0, 11, 16)
        a(f"{MF} {v(S[0],16)}, {v(KB[b^1],4)}, {v(Q[0],4)}, {v(C[0],16)}")
        a(f"ds_read_b128 {v(KB[b],4)}, v{VK} offset:{(u+2)*TP}")
        exps(1, 0, 5)
        smf(0, VB[b][1], 1)
        if u == U - 1:
            a("ds_read_b32 v47, v46")
        exps(1, 5, 11)
        smf(1, VB[b][0], 0)
        a("s_waitcnt lgkmcnt(0)")
        if u == U - 1:
            a(f"v_add_u32 v{VK}, {U*TP}, v{VK}")
            a(f"v_add_u32 v{VV0}, {U*VP}, v{VV0}")
            a(f"v_add_u32 v{VV1}, {U*VP}, v{VV1}")
            a("v_readfirstlane_b32 s75, v47")
        exps(1, 11, 16)
    a("s_bitcmp1_b32 s75, 2")
    a("s_cbranch_scc0 K2_KVW")
    a.label("K2_NEXT")
    a("s_sub_u32 s27, s27, 1")
    a("s_cbranch_scc0 K2_LOOP")
    a("s_nop 1")
    smf(1, VB[(U - 1) & 1][1], 1)
    stamp(a, 5)
    stamp(a, 1, 8)
    a(f"v_mov_b32 v46, {LDS_SYNC + 4}")
    a("ds_read_b32 v47, v46")
    a(f"ds_read_b32 v{G[0]}, v7")
    a(f"ds_read_b32 v{G[1]}, v7 offset:128")
    a("s_lshl_b32 s24, s71, 2")
    a("s_add_u32 s24, s24, s20")
    a("s_lshl_b32 s24, s24, 5")
    a("s_add_u32 s24, s24, s70")
    a("s_lshl_b32 s25, s24, 11")
    a(f"s_add_u32 s25, s25, {WS_O}")
    a("v_mov_b32 v44, 0")
    for i in range(9):
        a(f"v_fma_f32 v44, v{O[0]+i}, 0, v44")
    a("s_nop 1")
    for i in range(9):
        a(f"v_fma_f32 v44, v{O[1]+i}, 0, v44")
    a("v_cmp_u_f32 vcc, v44, v44")
    a("s_nop 1")
    a("s_cmp_eq_u64 vcc, 0")
    a("s_cbranch_scc0 K2_FB")
    a.label("K2_FIN")
    for q in range(2):
        a(f"v_rcp_f32 v{48+q}, v{O[q]+8}")
    a(f"s_mov_b32 s74, {SPIN*8}")
    a.label("K2_GW")
    a("s_waitcnt lgkmcnt(0)")
    a("v_readfirstlane_b32 s75, v47")
    a("s_sub_u32 s74, s74, 1")
    a("s_cmp_eq_u32 s74, 0")
    a("s_cbranch_scc1 K2_GOK")
    a("s_cmp_ge_u32 s75, 64")
    a("s_cbranch_scc1 K2_GOK")
    a("s_sleep 1")
    a("ds_read_b32 v47, v46")
    a(f"ds_read_b32 v{G[0]}, v7")
    a(f"ds_read_b32 v{G[1]}, v7 offset:128")
    a("s_branch K2_GW")
    a.label("K2_GOK")
    for q in range(2):
        a(f"v_mul_f32 v{44+2*q}, v{48+q}, v{G[q]}")
    GR = S[0]
    a(f"v_mov_b32 v{GR+8}, s68")
    a(f"v_mov_b32 v{GR+9}, s69")
    for q in range(2):
        for i in range(0, 8, 2):
            a(f"v_pk_mul_f32 {v(O[q]+i,2)}, {v(O[q]+i,2)}, {v(44+2*q,2)} op_sel_hi:[1,0]")
        for i in range(0, 8, 2):
            a(f"v_cvt_pk_bf16_f32 v{GR + 4*q + i//2}, v{O[q]+i}, v{O[q]+i+1}")
        a(f"buffer_store_dwordx4 {v(GR+4*q,4)}, v3, s[28:31], s25 offen offset:{q*1024}{SC}")
    a("s_lshl_b32 s24, s24, 7")
    a(f"s_add_u32 s24, s24, {FL_C}")
    a(f"v_mov_b32 v46, {LDS_SYNC + 8}")
    a("v_mov_b32 v47, 1")
    a("s_mov_b64 exec, 1")
    a("ds_add_u32 v46, v47")
    a("s_waitcnt vmcnt(0)")
    a(f"buffer_store_dwordx2 {v(GR+8,2)}, v3, s[28:31], s24 offen sc1")
    a("s_mov_b64 exec, -1")
    a("s_setprio 0")
    stamp(a, 6)
    for i in range(2, 6):
        stamp(a, i, 8)
    a("s_branch K3_REDUCE")
    a.label("K2_FB")
    a("s_cmp_lg_u32 s26, 0")
    a("s_cbranch_scc1 K2_FIN")
    a("s_waitcnt lgkmcnt(0)")
    a("s_mov_b32 s26, 100")
    vaddr_init()
    for q in range(2):
        for i in range(16):
            a(f"v_mov_b32 v{O[q]+i}, 0")
    a("v_mov_b32 v44, 0xff800000")
    a("v_mov_b32 v45, 0xff800000")
    a("v_mov_b32 v43, v3")
    a("s_mov_b32 s27, 64")
    a.label("K2_MAXLOOP")
    a(f"ds_read_b128 {v(KB[0],4)}, v43")
    a(f"v_add_u32 v43, {TP}, v43")
    a("s_waitcnt lgkmcnt(0)")
    for q in range(2):
        a(f"{MF} {v(S[q],16)}, {v(KB[0],4)}, {v(Q[q],4)}, 0")
    a("s_nop 7")
    a("s_nop 7")
    for q in range(2):
        maxtree(S[q], 44 + q, acc=True)
    a("s_sub_u32 s27, s27, 1")
    a("s_cmp_lg_u32 s27, 0")
    a("s_cbranch_scc1 K2_MAXLOOP")
    a("s_branch K2_SETMAX")
    a.label("K2_KVW")
    a(f"s_mov_b32 s74, {SPIN*8}")
    a.label("K2_KVW1")
    a("ds_read_b32 v47, v46")
    a("s_waitcnt lgkmcnt(0)")
    a("v_readfirstlane_b32 s75, v47")
    a("s_sub_u32 s74, s74, 1")
    a("s_cbranch_scc1 K2_NEXT")
    a("s_bitcmp1_b32 s75, 2")
    a("s_cbranch_scc1 K2_NEXT")
    a("s_sleep 1")
    a("s_branch K2_KVW1")

    a.label("K2_GEMM")
    a(f"v_mul_u32_u24 v4, {VP}, v2")
    a(f"v_add_u32 v4, {LDS_V + 1024}, v4")
    for i in range(4):
        a(f"v_mov_b32 v{20+i}, 0x3f803f80")
        a(f"v_mov_b32 v{24+i}, 0")
    a("ds_write_b128 v4, v[20:23]")
    a("ds_write_b128 v4, v[24:27] offset:16")
    a(f"ds_write_b128 v4, v[20:23] offset:{2*VP}")
    a(f"ds_write_b128 v4, v[24:27] offset:{2*VP+16}")
    ND, NW = 28, 8
    NS = 3
    srd(a, 44, 16, 0x1c0000)
    srd(a, 48, 8, 0x80000)
    if FMAP:
        a("s_and_b32 s42, s72, 3")
        a("s_lshl_b32 s42, s42, 1")
        a("s_add_u32 s42, s42, s73")
    else:
        a("s_lshr_b32 s42, s2, 3")
        a("s_and_b32 s43, s42, 7")
        a("s_lshr_b32 s42, s42, 3")
        a("s_lshl_b32 s42, s42, 1")
        a("s_add_u32 s42, s42, s43")
    a("s_cmp_ge_u32 s42, 7")
    a("s_cselect_b32 s43, 7, 0")
    a("s_sub_u32 s42, s42, s43                ; 0..6")
    if not ROT:
        a("s_mov_b32 s42, 0")
    a("s_mov_b32 s52, s42")
    a(f"s_mul_i32 s32, s23, {ND}")
    a("s_lshl_b32 s43, s42, 2")
    a("s_add_u32 s32, s32, s43")
    a(f"s_mul_i32 s33, s72, {2*144*1024}")
    a(f"s_add_u32 s33, s33, {WS_ACT}")
    a("s_lshl_b32 s43, s32, 10")
    a("s_add_u32 s33, s33, s43")
    a(f"s_add_u32 s34, s33, {144*1024}")
    a("s_lshl_b32 s43, s73, 7")
    a("s_lshl_b32 s35, s32, 14")
    a("s_add_u32 s35, s35, s43")
    a("s_lshl_b32 s39, s23, 17")
    a("s_add_u32 s39, s39, s43")
    a(f"s_mul_i32 s53, s23, {NS*2048}")
    a(f"s_add_u32 s53, s53, {LDS_WS}")
    a("v_lshrrev_b32 v4, 3, v2")
    a("v_and_b32 v5, 7, v2")
    a("v_bfe_u32 v7, v2, 4, 1")
    a("v_lshlrev_b32 v7, 2, v7")
    a("v_xor_b32 v5, v5, v7")
    a("v_lshlrev_b32 v5, 4, v5")
    a("v_lshl_add_u32 v10, v4, 10, v5")
    a("v_add_u32 v11, 7168, v10")
    a("v_bfe_u32 v4, v2, 2, 2")
    a("v_lshrrev_b32 v5, 5, v2")
    a("v_lshl_add_u32 v5, v5, 2, v4")
    a("v_lshlrev_b32 v5, 7, v5")
    a("v_lshrrev_b32 v4, 1, v4")
    a("v_lshl_add_u32 v5, v4, 6, v5")
    a("v_bfe_u32 v4, v2, 4, 1")
    a("v_lshl_add_u32 v5, v4, 5, v5")
    a("v_and_b32 v4, 3, v2")
    a("v_lshl_add_u32 v5, v4, 3, v5")
    a("v_xor_b32 v13, 64, v5")
    a("v_add_u32 v12, s53, v5")
    a("v_add_u32 v13, s53, v13")
    GA = 16
    FR = 80
    D = 8
    queue = []
    def ld(dst, sr, k, tag):
        a(f"buffer_load_dwordx4 {v(dst,4)}, v3, s[28:31], s{sr} offen offset:{(k%4)*1024}{SC}")
        queue.append(tag)
    def aloads(k):
        b = FR + (k % D) * 16
        ld(b + 4, 33, k, ("a", k)); ld(b + 12, 34, k, ("a", k))
        if k % 4 == 3:
            a("s_add_u32 s42, s42, 1")
            a("s_cmp_eq_u32 s42, 7")
            a("s_movk_i32 s43, 4096")
            a(f"s_cselect_b32 s43, {(-6*4096) & 0xffffffff:#x}, s43")
            a("s_cselect_b32 s42, 0, s42")
            for sr in (33, 34):
                a(f"s_add_u32 s{sr}, s{sr}, s43")
    def wloads(k):
        a(f"s_add_u32 m0, s53, {(k % NS) * 2048}")
        sr, rs = (35, 44) if k < ND else (39, 48)
        a("s_nop 0")
        a(f"buffer_load_dwordx4 v10, s[{rs}:{rs+3}], s{sr} offen lds")
        a(f"buffer_load_dwordx4 v11, s[{rs}:{rs+3}], s{sr} offen offset:1024 lds")
        queue.extend([("w", k)] * 2)
        a(f"s_add_u32 s{sr}, s{sr}, 16384")
        if k < ND and k % 4 == 3:
            a("s_add_u32 s52, s52, 1")
            a("s_cmp_eq_u32 s52, 7")
            a(f"s_cselect_b32 s43, {(-28*16384) & 0xffffffff:#x}, 0")
            a("s_cselect_b32 s52, 0, s52")
            a("s_add_u32 s35, s35, s43")
    def waitfor(*tags):
        n = len(queue) - 1 - max(i for i, t in enumerate(queue) if t in tags)
        a(f"s_waitcnt vmcnt({n})")
    def wreads(k):
        b = FR + (k % D) * 16
        for n in range(2):
            for u in range(2):
                a(f"ds_read_b64_tr_b16 {v(b+8*n+2*u,2)}, v{12+n} offset:{(k % NS) * 2048 + u*1024}")
    def mm(k):
        b = FR + (k % D) * 16
        for n in range(2):
            for t in range(2):
                acc = GA + (n * 2 + t) * 16
                cin = "0" if k == 0 else v(acc, 16)
                a(f"{MF} {v(acc,16)}, {v(b+8*n,4)}, {v(b+4+8*t,4)}, {cin}")
    stamp(a, 3)
    a("s_waitcnt vmcnt(8) lgkmcnt(0)")
    a("s_barrier                              ; X1")
    a("s_setprio 3")
    a("s_barrier                              ; X2")
    a("s_cmp_lg_u32 s23, 1")
    a("s_cbranch_scc1 K2_NOB1")
    a("s_lshl_b32 s37, s21, 4")
    a("s_add_u32 s37, s37, s22")
    a("s_lshl_b32 s37, s37, 7")
    a(f"s_add_u32 s37, s37, {FL_B1}")
    flag_store(a, "s37", 16)
    a.label("K2_NOB1")
    kv_loads(9, 16)
    srd(a, 44, 16, 0x1c0000)
    srd(a, 24, 4, 0x200000)
    srd(a, 56, 18, 1024)
    a("s_lshl_b32 s54, s2, 2")
    a("s_add_u32 s54, s54, s23")
    a("s_lshl_b32 s55, s54, 11")
    a("buffer_load_dwordx4 v[20:23], v3, s[56:59], 0 offen")
    a("buffer_load_dwordx4 v[24:27], v3, s[24:27], s55 offen")
    a("buffer_load_dwordx4 v[28:31], v3, s[24:27], s55 offen offset:1024")
    a("v_mov_b32 v32, 0")
    a("v_mov_b32 v33, 0")
    a(f"v_mov_b32 v34, {LDS_SYNC + 4}")
    a("v_mov_b32 v35, 1")
    a("s_waitcnt vmcnt(0)")
    a("s_mov_b64 exec, 1")
    a("ds_add_u32 v34, v35")
    a("s_mov_b64 exec, -1")
    for q in range(4):
        a(f"v_dot2_f32_bf16 v32, v{24+q}, v{20+q}, v32")
        a(f"v_dot2_f32_bf16 v33, v{28+q}, v{20+q}, v33")
    a("s_nop 2")
    a("v_permlane32_swap_b32 v32, v33")
    a("s_nop 1")
    a("v_add_f32 v32, v32, v33")
    for ctl in ("quad_perm:[1,0,3,2]", "quad_perm:[2,3,0,1]", "row_half_mirror", "row_mirror"):
        a("s_nop 1")
        a(f"v_add_f32_dpp v32, v32, v32 {ctl} row_mask:0xf bank_mask:0xf")
    a("v_mov_b32 v33, v32")
    a("s_nop 1")
    a("v_permlane16_swap_b32 v32, v33")
    a("s_nop 1")
    a("v_add_f32 v32, v32, v33")
    a(f"v_mul_f32 v32, {fh(-LOG2E)}, v32")
    a("v_exp_f32 v32, v32")
    a("v_lshrrev_b32 v34, 5, v2")
    a("v_add_f32 v32, 1.0, v32")
    a("v_rcp_f32 v32, v32")
    a("v_lshlrev_b32 v34, 3, v34")
    a("v_mov_b32 v33, s68")
    a("s_lshl_b32 s55, s54, 4")
    a(f"s_add_u32 s55, s55, {WS_G}")
    a("s_mov_b64 exec, 0x100000001".replace("s_mov_b64 exec, 0x100000001", "s_mov_b32 exec_lo, 1\ns_mov_b32 exec_hi, 1"))
    a(f"buffer_store_dwordx2 v[32:33], v34, s[28:31], s55 offen{SC}")
    a("s_mov_b64 exec, -1")
    if WARMW and FMAP:
        a("s_lshr_b32 s54, s2, 3")
        a("s_lshl_b32 s54, s54, 2")
        a("s_add_u32 s54, s54, s23")
        a("s_mul_i32 s55, s54, 14336")
        a("v_min_u32 v14, 55, v2")
        a("v_lshlrev_b32 v14, 7, v14")
        a("buffer_load_dword v15, v14, s[44:47], s55 offen")
        a("s_add_u32 s55, s55, 7168")
        a("buffer_load_dword v15, v14, s[44:47], s55 offen")
        a("s_lshl_b32 s55, s54, 12")
        a("v_and_b32 v14, 31, v2")
        a("v_lshlrev_b32 v14, 7, v14")
        a("buffer_load_dword v15, v14, s[48:51], s55 offen")
    elif WARMW:
        a("s_lshr_b32 s54, s2, 3")
        a("s_and_b32 s54, s54, 7")
        a("s_lshl_b32 s55, s54, 2")
        a("s_add_u32 s55, s55, s23")
        a("s_mul_i32 s55, s55, 57344")
        a("s_add_u32 s55, s55, s43")
        a("v_min_u32 v14, 55, v2")
        a("v_lshlrev_b32 v14, 10, v14")
        a("buffer_load_dword v15, v14, s[44:47], s55 offen")
        a("s_lshl_b32 s55, s54, 2")
        a("s_add_u32 s55, s55, s23")
        a("s_lshl_b32 s55, s55, 14")
        a("s_add_u32 s55, s55, s43")
        a("v_and_b32 v14, 15, v2")
        a("v_lshlrev_b32 v14, 10, v14")
        a("buffer_load_dword v15, v14, s[48:51], s55 offen")
    for k in range(NS):
        wloads(k)
    a("s_setprio 3")
    a("v_and_b32 v6, 15, v2")
    a("v_lshlrev_b32 v6, 7, v6")
    a("s_lshr_b32 s24, s72, 1")
    a("s_lshl_b32 s24, s24, 11")
    a(f"s_add_u32 s24, s24, {FL_B1}")
    poll_shared(a, 1, [("s24", 6, 8, 4)], 20, lslp=4)
    a("v_and_b32 v6, 31, v2")
    a("v_lshlrev_b32 v6, 3, v6")
    a("v_lshlrev_b32 v7, 3, v2")
    a("s_lshl_b32 s54, s72, 9")
    a(f"s_add_u32 s54, s54, {WS_G}")
    a("s_lshl_b32 s55, s71, 2")
    a("s_add_u32 s55, s55, s23")
    a("s_lshl_b32 s55, s55, 9")
    a(f"s_add_u32 s55, s55, {WS_G}")
    a(f"s_mov_b32 s74, {SPIN}")
    a.label("K2_GL")
    a(f"buffer_load_dwordx2 v[240:241], v6, s[28:31], s54 offen{SC}")
    a(f"buffer_load_dwordx2 v[242:243], v6, s[28:31], s54 offen offset:256{SC}")
    a(f"buffer_load_dwordx2 v[244:245], v7, s[28:31], s55 offen{SC}")
    a("s_waitcnt vmcnt(0)")
    a("v_xor_b32 v8, s68, v241")
    a("v_xor_b32 v9, s68, v243")
    a("v_xor_b32 v14, s68, v245")
    a("v_or3_b32 v8, v8, v9, v14")
    a("v_cmp_ne_u32 vcc, 0, v8")
    a("s_sub_u32 s74, s74, 1")
    a("s_cbranch_scc1 K2_GD")
    a("s_cmp_eq_u64 vcc, 0")
    a("s_cbranch_scc1 K2_GD")
    a("s_sleep 4")
    a("s_branch K2_GL")
    a.label("K2_GD")
    a("s_lshl_b32 s55, s23, 8")
    a(f"s_add_u32 s55, s55, {LDS_GQ}")
    a("v_lshrrev_b32 v7, 1, v7")
    a("v_add_u32 v7, s55, v7")
    a("ds_write_b32 v7, v244")
    a(f"v_mov_b32 v8, {LDS_SYNC + 4}")
    a("v_mov_b32 v9, 16")
    a("s_waitcnt lgkmcnt(0)")
    a("s_mov_b64 exec, 1")
    a("ds_add_u32 v8, v9")
    a("s_mov_b64 exec, -1")
    stamp(a, 4)
    DA = 4
    a("s_setprio 0")
    for k in range(DA):
        aloads(k)
    for k in range(ND + NW):
        waitfor(("w", k), ("a", k))
        wreads(k)
        a("s_waitcnt lgkmcnt(0)")
        if k + NS < ND + NW:
            wloads(k + NS)
        if k + DA < ND:
            aloads(k + DA)
        if k < ND:
            mm(k)
    a("s_setprio 3")
    a("s_nop 7")
    a("v_sub_f32 v12, 1.0, v240")
    a("v_sub_f32 v14, 1.0, v242")
    a("s_nop 7")
    for n in range(2):
        for t in range(2):
            acc = GA + (n * 2 + t) * 16
            for j in range(0, 16, 2):
                a(f"v_pk_mul_f32 {v(acc+j,2)}, {v(acc+j,2)}, {v(12+2*t,2)} op_sel_hi:[1,0]")
    a("v_and_b32 v4, 31, v2")
    a(f"v_mul_u32_u24 v4, {RP}, v4")
    a("v_lshrrev_b32 v6, 5, v2")
    a("v_lshl_add_u32 v4, v6, 4, v4")
    a(f"s_mul_i32 s32, s23, {64*RP}")
    a("v_add_u32 v4, s32, v4")
    a("s_lshl_b32 s24, s72, 2")
    a("s_add_u32 s24, s24, s23")
    a("s_lshl_b32 s24, s24, 14")
    a(f"s_add_u32 s24, s24, {WS_O}")
    a("v_and_b32 v6, 7, v2")
    a("v_lshlrev_b32 v6, 7, v6")
    a("s_lshl_b32 s26, s72, 12")
    a("s_lshl_b32 s25, s23, 10")
    a("s_add_u32 s26, s26, s25")
    a(f"s_add_u32 s26, s26, {FL_C}")
    a(f"v_mov_b32 v11, {LDS_SYNC + 8}")
    a("s_mov_b32 s54, 0")
    a(f"s_mov_b32 s74, {SPIN}")
    stamp(a, 5)
    stamp(a, 1, 8)
    def c_poll():
        a("v_mov_b32 v8, 0")
        a("v_mov_b32 v9, 0")
        a("s_mov_b64 exec, 0xff")
        a("buffer_atomic_or_x2 v[8:9], v6, s[28:31], s26 offen sc0 sc1")
        a("s_mov_b64 exec, -1")
    a.label("K3_POLL")
    c_poll()
    a.label("K3_ROUND")
    a("s_waitcnt vmcnt(0)")
    a("v_cmp_eq_u64 vcc, s[68:69], v[8:9]")
    a("s_sub_u32 s74, s74, 1")
    a("s_cselect_b32 s55, 0xff, vcc_lo")
    a("s_andn2_b32 s55, s55, s54")
    a("s_cbranch_scc1 K3_SOME")
    a(f"s_sleep {TSLP}")
    a("s_branch K3_POLL")
    a.label("K3_SOME")
    a("s_or_b32 s54, s54, s55")
    for kk in range(NW):
        b = FR + ((ND + kk) % D) * 16
        a(f"s_bitcmp1_b32 s55, {kk}")
        a(f"s_cbranch_scc0 K3_L{kk}")
        a(f"s_add_u32 s25, s24, {kk*2048}")
        a(f"buffer_load_dwordx4 {v(b+4,4)}, v3, s[28:31], s25 offen{SC}")
        a(f"buffer_load_dwordx4 {v(b+12,4)}, v3, s[28:31], s25 offen offset:1024{SC}")
        a.label(f"K3_L{kk}")
    a("s_cmp_eq_u32 s54, 0xff")
    a("s_cbranch_scc1 K3_LAST")
    c_poll()
    a.label("K3_LAST")
    a("ds_read_b32 v10, v11")
    a("s_waitcnt vmcnt(0)")
    for kk in range(NW):
        a(f"s_bitcmp1_b32 s55, {kk}")
        a(f"s_cbranch_scc0 K3_C{kk}")
        mm(ND + kk)
        a.label(f"K3_C{kk}")
    a("s_cmp_lg_u32 s54, 0xff")
    a("s_cbranch_scc1 K3_ROUND")
    stamp(a, 6)
    stamp(a, 2, 8)
    a(f"s_mov_b32 s74, {SPIN*8}")
    a.label("K3_AW")
    a("s_waitcnt lgkmcnt(0)")
    a("v_readfirstlane_b32 s75, v10")
    a("s_sub_u32 s74, s74, 1")
    a("s_cbranch_scc1 K3_AOK")
    a("s_cmp_ge_u32 s75, 4")
    a("s_cbranch_scc1 K3_AOK")
    a("s_sleep 2")
    a("ds_read_b32 v10, v11")
    a("s_branch K3_AW")
    a.label("K3_AOK")
    for i in range(3, 6):
        stamp(a, i, 8)
    a("s_nop 7")
    for n in range(2):
        for t in range(2):
            acc = GA + (n * 2 + t) * 16
            for g in range(4):
                a(f"ds_write_b128 v4, {v(acc+4*g,4)} offset:{t*32*RP + n*128 + g*32}")
    a.label("K3_REDUCE")
    srd(a, 24, 64, 0x200000)
    a("s_lshl_b32 s32, s20, 6")
    a("v_add_u32 v0, s32, v2                  ; tid")
    a("v_lshrrev_b32 v7, 3, v0                ; token")
    a("v_and_b32 v5, 7, v0")
    a(f"v_mul_u32_u24 v6, {RP}, v7")
    a("v_lshl_add_u32 v6, v5, 5, v6")
    a("v_lshlrev_b32 v7, 10, v7")
    a("v_lshl_add_u32 v7, v5, 4, v7")
    a("s_lshl_b32 s32, s72, 16")
    a("s_lshl_b32 s33, s73, 7")
    a("s_add_u32 s32, s32, s33")
    a("s_waitcnt lgkmcnt(0)")
    a("s_barrier                              ; Y1")
    stamp(a, 6, 8)
    for w in range(4):
        a(f"ds_read_b128 {v(208+8*w,4)}, v6 offset:{w*64*RP}")
        a(f"ds_read_b128 {v(212+8*w,4)}, v6 offset:{w*64*RP+16}")
    for w in range(1, 4):
        a(f"s_waitcnt lgkmcnt({2*(3-w)})")
        for j in range(0, 8, 2):
            a(f"v_pk_add_f32 {v(208+j,2)}, {v(208+j,2)}, {v(208+8*w+j,2)}")
    for j in range(0, 8, 2):
        a(f"v_cvt_pk_bf16_f32 v{16+j//2}, v{208+j}, v{208+j+1}")
    a("buffer_store_dwordx4 v[16:19], v7, s[24:27], s32 offen" + (" " + OUTSC if OUTSC else ""))
    if PADEND:
        pad_until(a, PADEND)
    stamp_flush(a, 8)
    a.label("K_EXIT")
    a("s_endpgm")
    a.label("K_END")

def main():
    hdr = open("cdna_kernels/" + NAME + ".s.ref").read().split("\n")
    top = [l for l in hdr if l.startswith(";") and "@launch" not in l]
    out = "\n".join(top) + "\n"
    out += f"; @launch grid=(256,1,1) block=(512,1,1) lds={LDS_TOTAL}\n"
    out += '.amdgcn_target "amdgcn-amd-amdhsa--gfx950"\n.text\n'
    a = Asm()
    gen(a)
    out += a.text()
    out += '.section .rodata,"a"\n'
    out += kernel_desc(KNAME, 256, 102)
    path = sys.argv[1] if len(sys.argv) > 1 else "cdna_kernels/" + NAME + ".s"
    open(path, "w").write(out)

main()
```

```python
import sys, math, os
from asmlib import *

NAME = "gated_mix__softmax_full_mha__geglu_ffn__prompt"
KNAME = NAME + "_kernel"
LOG2E = 1.4426950408889634
def env(n, d): return int(os.environ.get(n, str(d)))
PROF = env("PROF", 0)
ROT = env("ROT", 1)
TAGPOS = env("TAGPOS", 0)
PADEND = env("PADEND", 0)
PADATT = env("PADATT", 0)
DBGWG = env("DBGWG", -1)
TLBW = env("TLBW", 0)
PFW = env("PFW", 0)
PFI = env("PFI", 1)
PFX = env("PFX", 0)
KVROT = env("KVROT", 1)
AFLAG = env("AFLAG", 10)
PFC = env("PFC", -1)
ONEP = env("ONEP", 0)
FMAP = env("FMAP", 1)
NOTAG = env("NOTAG", 0)
ROT1 = env("ROT1", 2)
OUTSC = os.environ.get("OUTSC", "sc1")
GPK = env("GPK", 0)
UA = env("UA", 16)
PRE = env("PRE", 2)
QLD = env("QLD", 4)
WARMW = env("WARMW", 0)
ROT2 = env("ROT2", 1)
NDEF = env("NDEF", 0)
WARMD = env("WARMD", 1)
PSLOW = env("PSLOW", 16)
PAUSE = env("PAUSE", 1)
NFILL = env("NFILL", 4)
AHD = env("AHD", 6)
ATPOLL = env("ATPOLL", 1)
HINTW = env("HINTW", 0)
TSLP = env("TSLP", 2)
SPF = env("SPF", 0)
CODEPF = env("CODEPF", 1)
SLP = env("SLP", 4)

WS_Q = 0x0
WS_K = 0x200000
WS_V = 0x400000
WS_ACT = 0x600000
WS_O = 0xF00000
WS_G = 0x1240000
WS_FL = 0x1280000
FL_A = WS_FL
FL_B1 = WS_FL + 0x8000
FL_B2 = WS_FL + 0x10000
FL_C = WS_FL + 0x20000
WS_STAMP = 0x1800000
WS_SIZE = 0x2000000

SL = 40960
RING = 38912
LDS_GQ = 162176
LDS_OG = 163200
LDS_TAG = 163584
LDS_SYNC = LDS_TAG + 8
LDS_TOTAL = 163840
TP = 2080
LDS_V = 1024
VP = TP
LDS_WS = 137472
DSTG = 22528
LDS_Q = RING + 2 * SL + 32768
def slot_of(c):
    return RING + ((c + 2) % 3) * SL

SC = " sc1"
SPIN = 200000
MF = "v_mfma_f32_32x32x16_bf16"

def srd(a, d, base, nbytes):
    a(f"s_mov_b32 s{d}, s{base}")
    a(f"s_mov_b32 s{d+1}, s{base+1}")
    a(f"s_mov_b32 s{d+2}, {nbytes:#x}")
    a(f"s_mov_b32 s{d+3}, 0x20000")

def stamp(a, i, lvl=1):
    if PROF and (PROF == lvl or i in (0, 7)):
        a("s_memrealtime s[96:97]")
        a("s_memtime s[98:99]")
        a("s_waitcnt lgkmcnt(0)")
        a(f"s_mov_b32 s{80+i}, s96")
        a(f"s_mov_b32 s{88+i}, s98")

def stamp_flush(a, n):
    if PROF:
        a("s_waitcnt vmcnt(0)")
        stamp(a, n - 1)
        a("s_lshl_b32 s78, s2, 4")
        a("s_add_u32 s78, s78, s20")
        a("s_lshl_b32 s78, s78, 6")
        a(f"s_add_u32 s78, s78, {WS_STAMP}")
        a("v_mov_b32 v1, 0")
        for i in range(n):
            a(f"v_mov_b32 v0, s{80+i}")
            a(f"buffer_store_dword v0, v1, s[28:31], s78 offen offset:{4*i}")
            a("s_nop 1")
            a(f"v_mov_b32 v0, s{88+i}")
            a(f"buffer_store_dword v0, v1, s[28:31], s78 offen offset:{32+4*i}")
            a("s_nop 1")
        a("s_waitcnt vmcnt(0)")
        if DBGWG >= 0:
            a(f"s_cmp_lg_u32 s2, {DBGWG}")
            a("s_cbranch_scc1 DBG_SKIP")
            a("s_and_b32 s78, s20, 3")
            a("s_cmp_lg_u32 s78, 0")
            a("s_cbranch_scc1 DBG_SKIP")
            a("s_mul_i32 s78, s20, 7")
            a("v_mov_b32 v1, s78")
            for i in range(1, n):
                a(f"s_sub_u32 s79, s{80+i}, s80")
                a("v_mov_b32 v0, s79")
                a(f"global_store_dword v1, v0, s[66:67] offset:{4+4*i}")
                a("s_nop 1")
            a("s_waitcnt vmcnt(0)")
            a.label("DBG_SKIP")

def pad_until(a, ticks):
    lab = a.newlabel("PAD")
    a.label(lab)
    a("s_memrealtime s[96:97]")
    a("s_waitcnt lgkmcnt(0)")
    a("s_sub_u32 s96, s96, s68")
    a(f"s_cmp_lt_u32 s96, {ticks}")
    a(f"s_cbranch_scc1 {lab}")

def flag_store(a, soff, vtmp):
    a(f"v_mov_b32 v{vtmp}, s68")
    a(f"v_mov_b32 v{vtmp+1}, s69")
    a(f"v_mov_b32 v{vtmp+2}, 0")
    a("s_mov_b64 exec, 1")
    a(f"buffer_store_dwordx2 {v(vtmp,2)}, v{vtmp+2}, s[28:31], {soff} offen sc1")
    a("s_mov_b64 exec, -1")

def poll(a, soff, voff, vtmp, slp=None):
    lab = a.newlabel("POLL")
    done = a.newlabel("POLLD")
    a(f"s_mov_b32 s74, {SPIN}")
    a.label(lab)
    a(f"buffer_load_dwordx2 {v(vtmp,2)}, v{voff}, s[28:31], {soff} offen sc1")
    a("s_waitcnt vmcnt(0)")
    a(f"v_xor_b32 v{vtmp}, s68, v{vtmp}")
    a(f"v_xor_b32 v{vtmp+1}, s69, v{vtmp+1}")
    a(f"v_or_b32 v{vtmp}, v{vtmp}, v{vtmp+1}")
    a(f"v_cmp_ne_u32 vcc, 0, v{vtmp}")
    a("s_sub_u32 s74, s74, 1")
    a("s_cmp_eq_u32 s74, 0")
    a(f"s_cbranch_scc1 {done}")
    a("s_cmp_eq_u64 vcc, 0")
    a(f"s_cbranch_scc1 {done}")
    a(f"s_sleep {SLP if slp is None else slp}")
    a(f"s_branch {lab}")
    a.label(done)

def poll_shared(a, stage, polls, vtmp, lslp=1, extra=None):
    other = a.newlabel("PSO")
    done = a.newlabel("PSD")
    a(f"v_mov_b32 v{vtmp+3}, {LDS_SYNC}")
    a("s_cmp_lg_u32 s23, 0")
    a(f"s_cbranch_scc1 {other}")
    for p in polls:
        poll(a, *p)
    if extra:
        extra()
    a(f"v_mov_b32 v{vtmp}, {stage}")
    a(f"ds_write_b32 v{vtmp+3}, v{vtmp}")
    a(f"s_branch {done}")
    a.label(other)
    a(f"s_mov_b32 s74, {SPIN*8}")
    lab = a.newlabel("PSL")
    a.label(lab)
    a(f"ds_read_b32 v{vtmp}, v{vtmp+3}")
    a("s_waitcnt lgkmcnt(0)")
    a(f"v_readfirstlane_b32 s75, v{vtmp}")
    a("s_sub_u32 s74, s74, 1")
    a("s_cmp_eq_u32 s74, 0")
    a(f"s_cbranch_scc1 {done}")
    a(f"s_cmp_ge_u32 s75, {stage}")
    a(f"s_cbranch_scc1 {done}")
    a(f"s_sleep {lslp}")
    a(f"s_branch {lab}")
    a.label(done)

def cvt_tile(a, acc, dst, lo=0, hi=16):
    for i in range(lo, hi, 2):
        a(f"v_cvt_pk_bf16_f32 v{dst + (i - lo)//2}, v{acc+i}, v{acc+i+1}")

def frag_addrs(a, sbase):
    a("v_lshrrev_b32 v4, 3, v2")
    a("v_and_b32 v5, 7, v2")
    a("v_bfe_u32 v7, v2, 4, 1")
    a("v_lshlrev_b32 v7, 2, v7")
    a("v_xor_b32 v5, v5, v7")
    a("v_lshlrev_b32 v5, 4, v5")
    a("v_lshl_add_u32 v10, v4, 10, v5")
    a("v_add_u32 v11, 7168, v10")
    a("v_bfe_u32 v4, v2, 2, 2")
    a("v_lshrrev_b32 v5, 5, v2")
    a("v_lshl_add_u32 v5, v5, 2, v4")
    a("v_lshlrev_b32 v5, 7, v5")
    a("v_lshrrev_b32 v4, 1, v4")
    a("v_lshl_add_u32 v5, v4, 6, v5")
    a("v_bfe_u32 v4, v2, 4, 1")
    a("v_lshl_add_u32 v5, v4, 5, v5")
    a("v_and_b32 v4, 3, v2")
    a("v_lshl_add_u32 v5, v4, 3, v5")
    a("v_xor_b32 v13, 64, v5")
    a(f"v_add_u32 v12, {sbase}, v5")
    a(f"v_add_u32 v13, {sbase}, v13")

def part_addrs(a, sbase, r):
    a(f"v_lshrrev_b32 v{r}, 5, v2")
    a(f"v_and_b32 v{r+1}, 7, v2")
    a(f"v_xor_b32 v{r}, v{r}, v{r+1}")
    a(f"v_and_b32 v{r+1}, 31, v2")
    a(f"v_lshlrev_b32 v{r+1}, 8, v{r+1}")
    a(f"v_lshl_add_u32 v{r}, v{r}, 4, v{r+1}")
    for g in range(1, 4):
        a(f"v_xor_b32 v{r+g}, {32*g}, v{r}")
    for g in range(4):
        a(f"v_add_u32 v{r+g}, {sbase}, v{r+g}")

def part_write(a, GA, r):
    for n in range(2):
        for t in range(2):
            acc = GA + (n * 2 + t) * 16
            for g in range(4):
                a(f"ds_write_b128 v{r+g}, {v(acc+4*g,4)} offset:{t*8192 + n*128}")

def lds_wait(a, vaddr, vdst, cmp_lines, first_read=True):
    lab, done = a.newlabel("LW"), a.newlabel("LWD")
    a(f"s_mov_b32 s74, {SPIN*8}")
    if first_read:
        a(f"ds_read_b32 v{vdst}, v{vaddr}")
    a.label(lab)
    a("s_waitcnt lgkmcnt(0)")
    a(f"v_readfirstlane_b32 s75, v{vdst}")
    a("s_sub_u32 s74, s74, 1")
    a(f"s_cbranch_scc1 {done}")
    for l in cmp_lines:
        a(l)
    a(f"s_cbranch_scc1 {done}")
    a("s_sleep 1")
    a(f"ds_read_b32 v{vdst}, v{vaddr}")
    a(f"s_branch {lab}")
    a.label(done)

def gen(a):
    kernel_header(a, KNAME)
    a("s_cmp_ge_u32 s2, 256")
    a("s_cbranch_scc1 K_EXIT")
    a("s_load_dwordx4 s[4:7], s[0:1], 0       ; x, wqkv")
    a("s_load_dwordx4 s[12:15], s[0:1], 32")
    a("s_load_dwordx2 s[8:9], s[0:1], 16      ; wo")
    a("s_load_dwordx2 s[10:11], s[0:1], 80    ; ws")
    a("s_load_dwordx4 s[16:19], s[0:1], 48")
    a("s_load_dwordx4 s[64:67], s[0:1], 64")
    a("v_lshrrev_b32 v1, 6, v0")
    a("v_and_b32 v2, 63, v0                   ; lane")
    a("v_readfirstlane_b32 s20, v1")
    a("v_lshlrev_b32 v3, 4, v2                ; lane*16")
    stamp(a, 0)
    a("s_and_b32 s24, s2, 1                   ; xh")
    a("s_bfe_u32 s25, s2, 0x20001             ; xq")
    a("s_lshr_b32 s26, s2, 3                  ; j")
    a("s_and_b32 s63, s26, 7")
    a("s_lshl_b32 s21, s24, 3")
    a("s_add_u32 s21, s21, s63                ; rb")
    a("s_lshr_b32 s27, s26, 3")
    a("s_mul_i32 s22, s25, 3")
    a("s_add_u32 s22, s22, s27")
    a("s_add_u32 s23, s25, 12")
    a("s_cmp_eq_u32 s27, 3")
    a("s_cselect_b32 s22, s23, s22            ; cb2")
    if FMAP:
        a("s_and_b32 s72, s2, 7")
        a("s_lshl_b32 s72, s72, 2")
        a("s_and_b32 s73, s26, 3")
        a("s_add_u32 s72, s72, s73                ; rb64")
        a("s_lshr_b32 s73, s26, 2                 ; cb64")
    else:
        a("s_lshl_b32 s72, s25, 3")
        a("s_add_u32 s72, s72, s63                ; rb64")
        a("s_lshl_b32 s73, s24, 2")
        a("s_add_u32 s73, s73, s27                ; cb64")
    if ROT1 == 1:
        a("s_lshl_b32 s27, s27, 1")
        a("s_add_u32 s63, s63, s27")
    elif ROT1 == 2:
        a("s_add_u32 s63, s63, s27")
        a("s_lshl_b32 s63, s63, 1")
    elif ROT1 == 3:
        a("s_add_u32 s63, s63, s27")
        a("s_lshl_b32 s63, s63, 2")
    a(f"s_and_b32 s63, s63, {7 if ROT1 else 0}")
    a("s_and_b32 s70, s2, 7")
    a("s_lshl_b32 s70, s70, 2")
    a("s_and_b32 s27, s26, 3")
    a("s_add_u32 s70, s70, s27                ; head")
    a("s_lshr_b32 s71, s26, 2                 ; qb")
    a("s_cmp_lt_u32 s20, 4")
    a("s_cbranch_scc1 K1_COMPUTE")

    a("s_sub_u32 s23, s20, 4                  ; L")
    VX0, VX1, VR0, VR1, VKV = 10, 11, 12, 13, 14
    a("v_lshrrev_b32 v4, 3, v2")
    a("v_and_b32 v5, 7, v2")
    a("v_lshrrev_b32 v6, 4, v2")
    a("v_xor_b32 v7, v5, v6")
    a("v_lshlrev_b32 v7, 4, v7")
    a(f"v_lshl_add_u32 v{VX0}, v4, 10, v7")
    a(f"v_xor_b32 v{VX1}, 64, v{VX0}")
    a("v_and_b32 v7, 1, v6")
    a("v_lshlrev_b32 v7, 2, v7")
    a("v_xor_b32 v7, v7, v5")
    a("v_lshlrev_b32 v7, 4, v7")
    a("v_mul_u32_u24 v8, 3072, v4")
    a(f"v_add_u32 v{VKV}, v8, v7")
    a("v_mul_u32_u24 v8, 3584, v4")
    a("v_add_u32 v15, v8, v7")
    a("s_cmp_lt_u32 s22, 12")
    a("s_cselect_b64 vcc, -1, 0")
    a("s_movk_i32 s60, 3072")
    a("s_cselect_b32 s60, 3584, s60")
    a(f"v_cndmask_b32 v{VR0}, v{VKV}, v15, vcc")
    a(f"v_xor_b32 v{VR1}, 32, v{VR0}")
    a("s_cselect_b32 s32, 0, 12")
    a("s_sub_u32 s32, s22, s32")
    a("s_lshl_b32 s32, s32, 8")
    a("s_lshl_b32 s61, s22, 1")
    a("s_add_u32 s61, s61, 1")
    a("s_add_u32 s34, s22, 12")
    a("s_cmp_lt_u32 s22, 12")
    a("s_cselect_b32 s33, 0, 128              ; R1 - R0")
    a("s_cselect_b32 s61, s61, s34")
    a("s_lshl_b32 s61, s61, 7")
    a("s_mul_i32 s34, s23, 57344")
    a("s_add_u32 s61, s61, s34")
    a("s_lshl_b32 s34, s23, 4")
    a("s_mul_i32 s34, s34, s60")
    a("s_add_u32 s32, s32, s34")
    a("s_lshl_b32 s62, s60, 6")
    a("s_lshl_b32 s36, s60, 3                 ; 8 rows")
    a("s_mul_i32 s34, s23, 49152")
    a("s_lshl_b32 s35, s22, 7")
    a("s_add_u32 s34, s34, s35")
    a("s_add_u32 s34, s34, 1024")
    a("s_lshl_b32 s40, s21, 17")
    a("s_lshl_b32 s41, s23, 15")
    a("s_add_u32 s40, s40, s41                ; x base")
    a("s_lshl_b32 s42, s23, 12")
    a("s_lshl_b32 s35, s23, 11")
    a("s_mov_b32 s43, s63                     ; kc")
    a("s_waitcnt lgkmcnt(0)")
    srd(a, 24, 4, 0x200000)
    srd(a, 44, 6, 0x180000)
    a("s_cmp_lt_u32 s22, 12")
    a("s_cselect_b64 s[48:49], s[12:13], s[6:7]")
    a("s_cselect_b64 s[52:53], s[14:15], s[6:7]")
    a("s_cselect_b32 s50, 0x1c0000, s46")
    a("s_mov_b32 s54, s50")
    a("s_mov_b32 s51, 0x20000")
    a("s_mov_b32 s55, 0x20000")
    queue = []
    def issue(c):
        slot = slot_of(c)
        a("s_lshl_b32 s37, s43, 7")
        a("s_add_u32 s37, s37, s40")
        a("s_mul_i32 s38, s43, s62")
        a("s_add_u32 s38, s38, s32")
        for i in range(2):
            a(f"s_add_u32 m0, s35, {slot + 16384 + i*1024}")
            a("s_add_u32 s39, s38, s33")
            a(f"buffer_load_dwordx4 v{VR0}, s[48:51], s38 offen lds")
            a(f"s_add_u32 m0, s35, {slot + 24576 + i*1024}")
            a("s_add_u32 s38, s38, s36")
            a(f"buffer_load_dwordx4 v{VR1}, s[52:55], s39 offen lds")
        if c < 8:
            a("s_mul_i32 s38, s43, 196608")
            a("s_add_u32 s38, s38, s34")
            for i in range(2):
                a(f"s_add_u32 m0, s35, {slot + 32768 + i*1024}")
                a(f"s_add_u32 s39, s38, {i*24576}")
                a(f"buffer_load_dwordx4 v{VKV}, s[44:47], s39 offen lds")
        for i in range(4):
            a(f"s_add_u32 m0, s42, {slot + i*1024}")
            a(f"s_add_u32 s39, s37, {i*8192}")
            a(f"buffer_load_dwordx4 v{VX1 if i & 1 else VX0}, s[24:27], s39 offen lds")
        a("s_add_u32 s43, s43, 1")
        a("s_and_b32 s43, s43, 7")
        if c == 7:
            if ROT2:
                a("s_and_b32 s43, s21, 7")
            a("s_mov_b32 s32, s61")
            a("s_mov_b32 s33, 0")
            a("s_mov_b32 s62, 229376")
            a("s_mov_b32 s36, 28672")
            a("s_mov_b64 s[48:49], s[12:13]")
            a("s_mov_b64 s[52:53], s[14:15]")
            a("s_mov_b32 s50, 0x1c0000")
            a("s_mov_b32 s54, 0x1c0000")
            a(f"v_mov_b32 v{VR0}, v15")
            a(f"v_xor_b32 v{VR1}, 32, v15")
        queue.extend([c] * (10 if c < 8 else 8))
    def waitq(tag):
        n = len(queue) - 1 - max(i for i, t in enumerate(queue) if t == tag)
        a(f"s_waitcnt vmcnt({n})")
    issue(0)
    if PRE == 2:
        issue(1)
    stamp(a, 1)
    srd(a, 28, 10, WS_SIZE)
    a("v_mov_b32 v9, 0")
    a("s_add_u32 s37, s2, s20")
    a("s_cmp_eq_u32 s37, 4")
    a("s_cbranch_scc0 K1_NOTAG")
    a("s_memrealtime s[56:57]")
    a("s_waitcnt lgkmcnt(0)")
    a("s_or_b32 s56, s56, 1")
    a("s_or_b32 s57, s57, 0x80000000")
    a("v_mov_b32 v4, s56")
    a("v_mov_b32 v5, s57")
    a("s_mov_b64 exec, 1")
    a("global_store_dwordx2 v9, v[4:5], s[66:67] sc1")
    a("s_mov_b64 exec, -1")
    a.label("K1_NOTAG")
    def get_tag():
        lab, done = a.newlabel("TAG"), a.newlabel("TAGD")
        a(f"s_mov_b32 s74, {SPIN}")
        a("v_readfirstlane_b32 s68, v60")
        a("v_readfirstlane_b32 s69, v61")
        a.label(lab)
        a("s_sub_u32 s74, s74, 1")
        a(f"s_cbranch_scc1 {done}")
        a("s_min_u32 s75, s68, s69")
        a("s_cmp_lg_u32 s75, 0")
        a(f"s_cbranch_scc1 {done}")
        a("global_load_dwordx2 v[60:61], v9, s[66:67] sc1")
        a("s_waitcnt vmcnt(0)")
        a("v_readfirstlane_b32 s68, v60")
        a("v_readfirstlane_b32 s69, v61")
        a("s_sleep 2")
        a(f"s_branch {lab}")
        a.label(done)
        a(f"v_mov_b32 v4, {LDS_TAG}")
        a("v_mov_b32 v60, s68")
        a("v_mov_b32 v61, s69")
        a("ds_write_b64 v4, v[60:61]")
        a("ds_write_b32 v4, v9 offset:8")
        a("ds_write_b32 v4, v9 offset:12")
        a("ds_write_b32 v4, v9 offset:16")
        a("ds_write_b32 v4, v9 offset:20")
        a("s_waitcnt lgkmcnt(0)")
    def flag_a():
        lab = a.newlabel("FA")
        a("s_cmp_lg_u32 s23, 1")
        a(f"s_cbranch_scc1 {lab}")
        a("s_lshl_b32 s37, s22, 4")
        a("s_add_u32 s37, s37, s21")
        a("s_lshl_b32 s37, s37, 7")
        a(f"s_add_u32 s37, s37, {FL_A}")
        flag_store(a, "s37", 16)
        a.label(lab)
    def kv_setup():
        a("v_and_b32 v5, 15, v2")
        a("v_lshlrev_b32 v5, 7, v5")
        a("v_bfe_u32 v6, v2, 4, 1")
        a("v_lshl_add_u32 v5, v6, 14, v5")
        a("s_and_b32 s56, s2, 7")
        a("s_lshr_b32 s57, s56, 1")
        a("s_add_u32 s57, s57, 12")
        a("s_sub_u32 s57, s57, s56")
        a("s_lshl_b32 s57, s57, 11")
        a("s_lshl_b32 s58, s71, 8")
        a("s_add_u32 s57, s57, s58")
        a("v_and_b32 v6, 1, v2")
        a("v_lshlrev_b32 v6, 7, v6")
        a("v_add_u32 v6, s57, v6")
        a("v_cmp_gt_u32 vcc, 32, v2")
        a("s_lshl_b32 s56, s56, 11")
        a(f"s_add_u32 s56, s56, {FL_A}")
        a("v_cndmask_b32 v5, v6, v5, vcc")
        a("s_lshl_b32 s57, s70, 16")
        a("s_lshl_b32 s58, s23, 10")
        a("s_add_u32 s57, s57, s58                ; head*64K + L*1K")
        a(f"s_add_u32 s57, s57, {WS_K}")
        a(f"s_mul_i32 s58, s23, {TP}")
    def kv_loads(lo, hi):
        n = hi - lo
        a(f"s_mul_i32 s44, s71, {n}")
        a("s_lshr_b32 s44, s44, 3")
        for i in range(n):
            a(f"s_mul_i32 s45, s44, {4*TP}")
            a("s_add_u32 s45, s45, s58")
            a(f"s_add_u32 m0, s45, {lo*4*TP}")
            a("s_lshl_b32 s37, s44, 12")
            a("s_add_u32 s37, s37, s57")
            a(f"s_add_u32 s38, s37, {lo*4096}")
            a(f"buffer_load_dwordx4 v3, s[28:31], s38 offen{SC} lds")
            a(f"s_add_u32 m0, s45, {lo*4*TP + 1024}")
            a(f"s_add_u32 s38, s37, {lo*4096 + WS_V - WS_K}")
            a(f"buffer_load_dwordx4 v3, s[28:31], s38 offen{SC} lds")
            if i < n - 1:
                a("s_add_u32 s44, s44, 1")
                a(f"s_cmp_eq_u32 s44, {n}")
                a("s_cselect_b32 s44, 0, s44")
        queue.extend(["kv"] * (2 * n))
    def q_loads():
        a("s_lshl_b32 s37, s70, 6")
        a("s_lshl_b32 s38, s71, 3")
        a("s_add_u32 s37, s37, s38")
        a("s_lshl_b32 s38, s23, 1")
        a("s_add_u32 s37, s37, s38")
        a("s_lshl_b32 s37, s37, 10")
        a("s_lshl_b32 s38, s23, 11")
        a(f"s_add_u32 m0, s38, {LDS_Q}")
        a("s_nop 0")
        a(f"buffer_load_dwordx4 v3, s[28:31], s37 offen{SC} lds")
        a(f"buffer_load_dwordx4 v3, s[28:31], s37 offen offset:1024{SC} lds")
    def fa_load():
        a("buffer_load_dwordx2 v[20:21], v5, s[28:31], s56 offen sc1")
    def fa_test():
        a("v_xor_b32 v20, s68, v20")
        a("v_xor_b32 v21, s69, v21")
        a("v_or_b32 v20, v20, v21")
        a("v_cmp_ne_u32 vcc, 0, v20")
        a("s_nop 1")
        a("s_cmp_eq_u64 vcc, 0")
    for c in range(14):
        waitq(c)
        if c == 6:
            get_tag()
        if c < 6:
            stamp(a, c + 1, 2)
        if 6 <= c < 12:
            stamp(a, c - 5, 3)
        if c >= 10:
            stamp(a, c - 9, 4)
        a(f"s_barrier                              ; b({c})")
        if c == 8:
            stamp(a, 2)
        if c == 4:
            a("global_load_dwordx2 v[60:61], v9, s[66:67] sc1")
        if c == AFLAG:
            flag_a()
        if c == 12:
            kv_setup()
        if c == 0 and PRE == 1:
            issue(1)
        if c + 2 < 16:
            issue(c + 2)
        if c == PFC:
            a("s_cmp_ge_u32 s23, 2")
            a("s_cbranch_scc1 K1_NOPF2")
            a("s_cmp_eq_u32 s23, 0")
            a("s_cselect_b64 s[56:57], s[12:13], s[14:15]")
            a("s_mov_b32 s58, 0x1c0000")
            a("s_mov_b32 s59, 0x20000")
            a("v_mul_u32_u24 v16, 3584, v2")
            a("s_mul_i32 s37, s23, 57344")
            a("s_sub_u32 s37, s61, s37")
            a("s_and_b32 s38, s21, 7")
            a("s_mul_i32 s38, s38, 229376")
            a("s_add_u32 s37, s37, s38")
            a("buffer_load_dword v17, v16, s[56:59], s37 offen")
            a.label("K1_NOPF2")
    fa_load()
    a("s_waitcnt vmcnt(1)")
    a("s_barrier                              ; b(14)")
    a("s_waitcnt vmcnt(0)")
    fa_test()
    a("s_cbranch_scc1 KV_GO")
    poll(a, "s56", 5, 8, 1)
    a.label("KV_GO")
    q_loads()
    kv_loads(0, 3)
    a("s_branch K2_GEMM")

    a.label("K1_COMPUTE")
    AF = 96
    AK = 224
    def accF(sw, i, t):
        return AF + ((sw * 2 + i) * 2 + t) * 16
    XA = [4, 5, 6, 7]
    WA = [8, 9]
    KA = 10
    a("s_and_b32 s23, s20, 1                  ; tp")
    a("s_lshr_b32 s24, s20, 1                 ; grp")
    a("v_bfe_u32 v16, v2, 4, 1                ; gsel")
    a("v_lshrrev_b32 v17, 5, v2               ; h")
    a("v_bfe_u32 v18, v2, 2, 2                ; r")
    a("v_and_b32 v19, 3, v2                   ; c")
    a("v_lshl_add_u32 v20, v17, 3, v18        ; 8h+r")
    a("v_and_b32 v21, 31, v2")
    a("v_lshlrev_b32 v21, 7, v21")
    a("v_bfe_u32 v22, v2, 1, 3")
    a("v_xor_b32 v22, v22, v17")
    a("v_lshl_add_u32 v21, v22, 4, v21")
    a("s_lshl_b32 s25, s23, 13")
    a(f"s_add_u32 s25, s25, {slot_of(0)}")
    for s_ in range(4):
        a(f"v_xor_b32 v{XA[s_]}, {32*s_}, v21")
        a(f"v_add_u32 v{XA[s_]}, s25, v{XA[s_]}")
    a("v_lshlrev_b32 v20, 7, v20")
    a("v_lshl_add_u32 v20, v19, 3, v20        ; row*128 + c*8")
    a("v_lshrrev_b32 v21, 1, v18")
    a("v_xor_b32 v21, s24, v21                ; grp ^ (r>>1)")
    a("v_lshl_add_u32 v20, v21, 6, v20")
    a("v_lshl_add_u32 v20, v16, 5, v20")
    a(f"v_add_u32 v{KA}, {slot_of(0) + 32768}, v20")
    a("v_lshl_add_u32 v20, v16, 13, v20")
    a("v_xor_b32 v21, 32, v20")
    a(f"v_add_u32 v{WA[0]}, {slot_of(0) + 16384}, v20")
    a(f"v_add_u32 v{WA[1]}, {slot_of(0) + 16384}, v21")
    a("v_and_b32 v11, 0x33, v2")
    a("v_bfe_u32 v17, v2, 2, 1")
    a("v_lshl_or_b32 v11, v17, 3, v11")
    a("v_bfe_u32 v17, v2, 3, 1")
    a("v_lshl_or_b32 v11, v17, 2, v11")
    a("v_lshlrev_b32 v11, 4, v11              ; K voffset")
    a("s_cmp_lt_u32 s22, 8")
    a("s_cbranch_scc1 K1_KOFF")
    a("v_lshlrev_b32 v11, 16, v16")
    a("v_lshrrev_b32 v18, 5, v2")
    a("v_lshl_or_b32 v11, v18, 8, v11")
    a("v_and_b32 v18, 15, v2")
    a("v_lshl_or_b32 v11, v18, 4, v11         ; V voffset")
    a.label("K1_KOFF")
    for i in range(160):
        a(f"v_mov_b32 v{AF+i}, 0")
    a("s_waitcnt lgkmcnt(0)")
    srd(a, 28, 10, WS_SIZE)
    if CODEPF:
        a("s_getpc_b64 s[50:51]")
        a.label("PC_HERE")
        a(f"s_sub_u32 s50, s50, PC_HERE-{KNAME}")
        a("s_subb_u32 s51, s51, 0")
        a("s_lshr_b32 s49, s2, 3")
        a("s_lshl_b32 s49, s49, 2")
        a("s_add_u32 s49, s49, s20")
        a("s_lshl_b32 s49, s49, 9")
        a("v_lshlrev_b32 v21, 3, v2")
        a("v_add_u32 v21, s49, v21")
        a(f"v_min_u32 v21, K_END-{KNAME}-4, v21")
        a("global_load_dword v21, v21, s[50:51]")
    a("s_lshl_b32 s32, s21, 2")
    a("s_lshl_b32 s33, s23, 1")
    a("s_add_u32 s32, s32, s33                ; tt0")
    a("s_and_b32 s36, s22, 7")
    a("s_lshl_b32 s36, s36, 2")
    a("s_lshl_b32 s37, s24, 1")
    a("s_add_u32 s36, s36, s37")
    a("s_lshl_b32 s36, s36, 6")
    a("s_add_u32 s36, s36, s32")
    a("s_lshl_b32 s36, s36, 10")
    a("s_cmp_lt_u32 s22, 8")
    a(f"s_mov_b32 s38, {WS_V}")
    a(f"s_cselect_b32 s38, {WS_K}, s38")
    a("s_movk_i32 s37, 512")
    a("s_cselect_b32 s37, 0x10000, s37")
    a("s_add_u32 s36, s36, s38")
    a("s_add_u32 s37, s37, s36")
    a("s_mov_b32 s25, 2")
    a("s_mov_b32 s26, 8")
    BB = [24, 44]
    def reads(s_, buf, kv):
        L = [f"ds_read_b128 {v(buf,4)}, v{XA[s_]}"]
        for t in range(2):
            for u in range(2):
                L.append(f"ds_read_b64_tr_b16 {v(buf+8+4*t+2*u,2)}, v{WA[t]} offset:{(16*s_+4*u)*128}")
            if t == 0:
                L.append(f"ds_read_b128 {v(buf+4,4)}, v{XA[s_]} offset:4096")
        if kv:
            for u in range(2):
                L.append(f"ds_read_b64_tr_b16 {v(buf+16+2*u,2)}, v{KA} offset:{(16*s_+4*u)*128}")
        return L
    def mfs(buf, sw, vtype):
        L = []
        for t in range(2):
            for i in range(2):
                acc = accF(sw, i, t)
                L.append(f"{MF} {v(acc,16)}, {v(buf+8+4*t,4)}, {v(buf+4*i,4)}, {v(acc,16)}")
        if sw == 0:
            for i in range(2):
                acc = AK + 16 * i
                A_, B_ = v(buf + 16, 4), v(buf + 4 * i, 4)
                if vtype:
                    A_, B_ = B_, A_
                L.append(f"{MF} {v(acc,16)}, {A_}, {B_}, {v(acc,16)}")
        return L
    def sweep(name, sw, vtype):
        a.raw(".p2align 6")
        a.label(name)
        kv = sw == 0
        nr = 8 if kv else 6
        for s_ in range(4):
            upd = []
            if s_ == 2:
                upd = ["s_add_u32 s25, s25, 1", "s_cmp_eq_u32 s25, 3", f"s_mov_b32 s27, {SL}",
                       f"s_cselect_b32 s27, {(-2*SL) & 0xffffffff:#x}, s27", "s_cselect_b32 s25, 0, s25"]
                upd += [f"v_add_u32 v{r}, s27, v{r}" for r in XA + WA + ([KA] if kv else [])]
            if s_ == 1 and sw == 1:
                upd = [f"s_cmp_lg_u32 s26, {17 - AFLAG}", f"s_cbranch_scc1 {name}_ND", "s_waitcnt vmcnt(0)", f"{name}_ND:"]
            M = mfs(BB[s_ & 1], sw, vtype)
            if s_ < 3:
                R = reads(s_ + 1, BB[(s_ + 1) & 1], kv)
                seq = [f"s_waitcnt lgkmcnt({nr-4})", M[0], R[0], R[1], M[1], R[2], R[3], "s_waitcnt lgkmcnt(4)", M[2], R[4], R[5]]
                if kv:
                    seq += [M[3], R[6], R[7], M[4]] + upd[:7] + [M[5]] + upd[7:]
                elif s_ == 1:
                    seq += [M[3]] + upd
                else:
                    seq += upd[:5] + [M[3]] + upd[5:]
            else:
                R = reads(0, BB[0], kv)
                tail = ["s_sub_u32 s26, s26, 1", "s_cmp_lg_u32 s26, 0"]
                seq = [f"s_waitcnt lgkmcnt({nr-4})", M[0], "s_waitcnt lgkmcnt(0)", "s_barrier", R[0], M[1], R[1], R[2], R[3], M[2], R[4], R[5]]
                if kv:
                    seq += [M[3], R[6], R[7], M[4]] + tail + [M[5]]
                else:
                    seq += tail + [M[3]]
            for l in seq:
                a(l)
        a(f"s_cbranch_scc1 {name}")
    a("s_barrier                              ; b(0)")
    stamp(a, 1)
    for l in reads(0, BB[0], True):
        a(l)
    a("s_cmp_lt_u32 s22, 8")
    a("s_cbranch_scc0 SW1V")
    sweep("SW1K", 0, False)
    a("s_branch K1_KVEPI")
    sweep("SW1V", 0, True)
    a.label("K1_KVEPI")
    stamp(a, 2)
    c0 = -2.0 * 0.7978845608028654 * LOG2E
    c1 = c0 * 0.044715
    T = 64
    TB = 16
    def gelu_tile(acc, out, pk):
        L = []
        if pk:
            for j in range(0, 8, 2):
                L.append(f"v_pk_mul_f32 {v(TB+j,2)}, {v(acc+j,2)}, {v(acc+j,2)}")
            for j in range(0, 8, 2):
                L.append(f"v_pk_fma_f32 {v(TB+j,2)}, {v(TB+j,2)}, s[34:35], v[12:13]")
            for j in range(0, 8, 2):
                L.append(f"v_pk_mul_f32 {v(TB+j,2)}, {v(TB+j,2)}, {v(acc+j,2)}")
            for j in range(8):
                L.append(f"v_exp_f32 v{TB+j}, v{TB+j}")
            for j in range(0, 4, 2):
                L.append(f"v_pk_mul_f32 {v(acc+8+j,2)}, {v(acc+8+j,2)}, {v(acc+j,2)}")
            for j in range(0, 8, 2):
                L.append(f"v_pk_add_f32 {v(TB+j,2)}, {v(TB+j,2)}, v[14:15]")
            for j in range(8):
                L.append(f"v_rcp_f32 v{TB+j}, v{TB+j}")
            for j in range(4, 8, 2):
                L.append(f"v_pk_mul_f32 {v(acc+8+j,2)}, {v(acc+8+j,2)}, {v(acc+j,2)}")
            for j in range(0, 8, 2):
                L.append(f"v_pk_mul_f32 {v(acc+8+j,2)}, {v(acc+8+j,2)}, {v(TB+j,2)}")
        else:
            for j in range(8):
                L.append(f"v_mul_f32 v{TB+j}, v{acc+j}, v{acc+j}")
            for j in range(8):
                L.append(f"v_fma_f32 v{TB+j}, v{TB+j}, s34, v12")
            for j in range(8):
                L.append(f"v_mul_f32 v{TB+j}, v{TB+j}, v{acc+j}")
            for j in range(8):
                L.append(f"v_exp_f32 v{TB+j}, v{TB+j}")
                L.append(f"v_mul_f32 v{acc+8+j}, v{acc+8+j}, v{acc+j}")
            for j in range(8):
                L.append(f"v_add_f32 v{TB+j}, 1.0, v{TB+j}")
            for j in range(8):
                L.append(f"v_rcp_f32 v{TB+j}, v{TB+j}")
                if j >= 2:
                    L.append(f"v_mul_f32 v{acc+8+j-2}, v{acc+8+j-2}, v{TB+j-2}")
            L.append(f"v_mul_f32 v{acc+14}, v{acc+14}, v{TB+6}")
            L.append(f"v_mul_f32 v{acc+15}, v{acc+15}, v{TB+7}")
        for j in range(0, 8, 2):
            L.append(f"v_cvt_pk_bf16_f32 v{out + j//2}, v{acc+8+j}, v{acc+8+j+1}")
        return L
    def kv_fill():
        L = []
        for i in range(2):
            for j in range(0, 16, 2):
                L.append(f"v_cvt_pk_bf16_f32 v{T + 8*i + j//2}, v{AK+16*i+j}, v{AK+16*i+j+1}")
                if j == 6:
                    L.append(f"buffer_store_dwordx4 {v(T+8*i,4)}, v11, s[28:31], s36 offen offset:{i*1024}{SC}")
            L.append(f"buffer_store_dwordx4 {v(T+8*i+4,4)}, v11, s[28:31], s37 offen offset:{i*1024}{SC}")
        return L
    def q_fill():
        L = []
        for t in range(2):
            for i in range(2):
                acc = accF(0, i, t)
                for hf in range(2):
                    for j in range(8):
                        L.append(f"v_mul_f32 v{acc+8*hf+j}, s34, v{acc+8*hf+j}")
                    for j in range(0, 8, 2):
                        L.append(f"v_cvt_pk_bf16_f32 v{acc+8*hf+j//2}, v{acc+8*hf+j}, v{acc+8*hf+j+1}")
                    L.append(f"s_add_u32 s39, s38, {WS_Q + (t + 4*hf) * 65536}\nbuffer_store_dwordx4 {v(acc+8*hf,4)}, v3, s[28:31], s39 offen offset:{i*1024}{SC}")
        return L
    def cost(l):
        return 8 if l.startswith(("v_exp", "v_rcp")) else 4
    def sweep2(fill, early):
        nsteps = 32
        esteps = 4 * (AFLAG - 9) - 1
        parts = [[] for _ in range(nsteps)]
        E, Rr = fill[:early], fill[early:]
        def spread(L, lo, hi):
            tot = sum(cost(l) for l in L)
            acc_ = 0
            for l in L:
                st = lo + min(hi - lo - 1, int(acc_ * (hi - lo) / max(tot, 1)))
                parts[st].append(l)
                acc_ += cost(l)
        ecost = sum(cost(l) for l in E)
        ehi = min(esteps + 1, 1 + max(1, -(-ecost // 48)))
        spread(E, 1, ehi)
        spread(Rr, ehi, nsteps)
        for c in range(8, 16):
            for s_ in range(4):
                st = (c - 8) * 4 + s_
                F = list(parts[st])
                M = mfs(BB[s_ & 1], 1, False)
                d = slot_of(c + 1) - slot_of(c)
                upd = [f"v_add_u32 v{r}, {d & 0xffffffff:#x}, v{r}" for r in XA + WA] if (s_ == 2 and c < 15) else []
                q = [F[0::3], F[1::3], F[2::3]]
                n1 = (len(F) + 2) // 3
                q = [F[:n1 // 2], F[n1 // 2:n1], F[n1:n1 + (len(F) - n1) // 3], F[n1 + (len(F) - n1) // 3:]]
                if s_ < 3:
                    R = reads(s_ + 1, BB[(s_ + 1) & 1], False)
                    seq = ["s_waitcnt lgkmcnt(2)", M[0], R[0], R[1]] + q[0] + [M[1], R[2], R[3]] + q[1] + ["s_waitcnt lgkmcnt(4)", M[2], R[4], R[5]] + q[2] + [M[3]] + q[3] + upd
                else:
                    R = reads(0, BB[0], False) if c < 15 else []
                    dr = ["s_waitcnt vmcnt(0)"] if c + 1 == AFLAG else []
                    seq = ["s_waitcnt lgkmcnt(2)", M[0]] + q[0] + dr + ["s_waitcnt lgkmcnt(0)"] + (["s_barrier"] if c < 14 else []) + R[:1] + [M[1]] + R[1:4] + q[1] + [M[2]] + R[4:] + q[2] + [M[3]] + q[3]
                for l in seq:
                    if l == "s_barrier" and PROF in (10, 11, 12) and 0 <= c - (8 if PROF != 11 else 10) < 6:
                        if PROF == 12:
                            stamp(a, c - 8 + 1, 12)
                        a(l)
                        stamp(a, c - 8 + 1, 10)
                        stamp(a, c - 10 + 1, 11) if c >= 10 else None
                    else:
                        a(l)
    a(f"v_mov_b32 v16, {LDS_TAG}")
    a("ds_read_b64 v[18:19], v16")
    a(f"v_mov_b32 v12, {fh(c0)}")
    a("v_mov_b32 v13, v12")
    a("v_mov_b32 v14, 1.0")
    a("v_mov_b32 v15, 1.0")
    a("s_waitcnt lgkmcnt(0)")
    a("v_readfirstlane_b32 s68, v18")
    a("v_readfirstlane_b32 s69, v19")
    a("s_cmp_lt_u32 s22, 12")
    a("s_cbranch_scc1 SW2R")
    a(f"s_mov_b32 s34, {fh(LOG2E*0.25)}")
    a("s_sub_u32 s38, s22, 12")
    a("s_lshl_b32 s38, s38, 3")
    a("s_lshl_b32 s39, s24, 1")
    a("s_add_u32 s38, s38, s39")
    a("s_lshl_b32 s38, s38, 6")
    a("s_add_u32 s38, s38, s32")
    a("s_lshl_b32 s38, s38, 10")
    F = kv_fill() + q_fill()
    sweep2(F, len(F))
    a("s_branch K1_GE2")
    a.label("SW2R")
    a(f"s_mov_b32 s34, {fh(c1)}")
    a("s_mov_b32 s35, s34")
    F = kv_fill()
    ne = len(F)
    F2 = []
    for i in range(2):
        for t in range(2):
            if i * 2 + t < NFILL:
                F += gelu_tile(accF(0, i, t), 80 + 4 * (i * 2 + t), GPK)
            else:
                F2 += gelu_tile(accF(0, i, t), 80 + 4 * (i * 2 + t), True)
    sweep2(F, ne)
    for l in F2:
        a(l)
    a.label("K1_GE2")
    stamp(a, 3)
    a(f"s_mov_b32 s34, {fh(c1)}")
    a("s_mov_b32 s35, s34")
    a("s_mul_i32 s36, s32, 144")
    a("s_lshl_b32 s37, s22, 3")
    a("s_lshl_b32 s38, s22, 2")
    a("s_add_u32 s38, s38, 44")
    a("s_cmp_lt_u32 s22, 12")
    a("s_cselect_b32 s37, s37, s38")
    a("s_add_u32 s36, s36, s37")
    a("s_lshl_b32 s37, s24, 1")
    a("s_add_u32 s36, s36, s37")
    a("s_lshl_b32 s36, s36, 10")
    a(f"s_add_u32 s36, s36, {WS_ACT}")
    a(f"s_add_u32 s37, s36, {144*1024}")
    a("s_add_u32 s38, s36, 4096")
    a("s_add_u32 s39, s37, 4096")
    a("s_cmp_lt_u32 s22, 12")
    a("s_cbranch_scc0 K1_GE3")
    for i in range(2):
        for t in range(2):
            a(f"buffer_store_dwordx4 {v(80 + 4*(i*2+t),4)}, v3, s[28:31], s{36+i} offen offset:{t*1024}{SC}")
    a.label("K1_GE3")
    for t in range(2):
        for i in range(2):
            out = 64 + 4 * (i * 2 + t)
            for l in gelu_tile(accF(1, i, t), out, True):
                a(l)
            a(f"buffer_store_dwordx4 {v(out,4)}, v3, s[28:31], s{38+i} offen offset:{t*1024}{SC}")

    a.label("K2_ATTN")
    Q = [8, 12]
    G = [4, 5]
    KB = [16, 20]
    VB = [[24, 28], [32, 36]]
    IDX = 6
    VK, VV0, VV1 = 40, 41, 42
    C = [96, 112]
    S = [128, 144]
    P = [160, 176]
    O = [192, 208]
    a(f"v_mov_b32 v{IDX}, 0xdddd")
    def vaddr_init():
        a(f"v_mov_b32 v{VK}, v3")
        a("v_lshrrev_b32 v43, 5, v2")
        a("v_and_b32 v44, 15, v2")
        a("v_lshlrev_b32 v44, 4, v44")
        a("v_lshl_or_b32 v44, v43, 8, v44")
        a(f"v_add_u32 v44, {LDS_V}, v44")
        a("v_add_u32 v45, 512, v44")
        a("v_and_b32 v43, 31, v2")
        a("v_subrev_u32 v47, 20, v43")
        a("v_cmp_gt_u32 vcc, 8, v47")
        a(f"v_mov_b32 v46, {LDS_V + 1040}")
        a(f"v_mov_b32 v47, {LDS_V + 1040 + 2*VP}")
        a("v_cndmask_b32 v46, v46, v47, vcc")
        a("v_and_b32 v47, 27, v43")
        a("v_cmp_eq_u32 vcc, 16, v47")
        a("v_subrev_u32 v47, 16, v46")
        a("s_nop 0")
        a("v_cndmask_b32 v46, v46, v47, vcc")
        a("v_cmp_gt_u32 vcc, 16, v43")
        a("s_nop 1")
        a(f"v_cndmask_b32 v{VV0}, v46, v44, vcc")
        a(f"v_cndmask_b32 v{VV1}, v46, v45, vcc")
    vaddr_init()
    a("s_lshl_b32 s24, s20, 8")
    a(f"s_add_u32 s24, s24, {LDS_GQ}")
    a("v_and_b32 v7, 31, v2")
    a("v_lshlrev_b32 v7, 2, v7")
    a("v_add_u32 v7, s24, v7                  ; g address")
    for q in range(2):
        for i in range(16):
            a(f"v_mov_b32 v{O[q]+i}, 0")
    a("s_mov_b32 s26, 0")
    a("s_lshl_b32 s24, s20, 11")
    a(f"s_add_u32 s24, s24, {LDS_Q}")
    a("v_add_u32 v43, s24, v3")
    a("s_barrier                              ; X1")
    a("s_setprio 2")
    stamp(a, 4)
    stamp(a, 1, 9)
    a(f"ds_read_b128 {v(Q[0],4)}, v43")
    a(f"ds_read_b128 {v(KB[0],4)}, v{VK}")
    a(f"ds_read_b128 {v(Q[1],4)}, v43 offset:1024")
    a("s_waitcnt lgkmcnt(0)")
    for q in range(2):
        a(f"{MF} {v(S[q],16)}, {v(KB[0],4)}, {v(Q[q],4)}, 0")
    a("s_nop 7")
    a("s_nop 3")
    def maxtree(src, dst, acc=False):
        if acc:
            for i in range(0, 16, 2):
                a(f"v_max3_f32 v{dst}, v{src+i}, v{src+i+1}, v{dst}")
        else:
            a(f"v_max_f32 v{dst}, v{src}, v{src+1}")
            for i in range(2, 16, 2):
                a(f"v_max3_f32 v{dst}, v{src+i}, v{src+i+1}, v{dst}")
    for q in range(2):
        maxtree(S[q], 44 + q)
    a.label("K2_SETMAX")
    a(f"ds_read_b128 {v(KB[0],4)}, v{VK}")
    a(f"ds_read_b128 {v(VB[0][0],4)}, v{VV0}")
    a(f"ds_read_b128 {v(VB[0][1],4)}, v{VV1}")
    a(f"ds_read_b128 {v(KB[1],4)}, v{VK} offset:{TP}")
    for q in range(2):
        a(f"v_mov_b32 v{46+q}, v{44+q}")
    a("s_nop 1")
    for q in range(2):
        a(f"v_permlane32_swap_b32 v{44+q}, v{46+q}")
    for q in range(2):
        a(f"v_max_f32 v{44+q}, v{44+q}, v{46+q}")
    for i in range(16):
        a(f"v_sub_f32 v{C[0]+i}, 0, v44")
    a("s_waitcnt lgkmcnt(0)")
    a("s_nop 0")
    a(f"{MF} {v(S[0],16)}, {v(KB[0],4)}, {v(Q[0],4)}, {v(C[0],16)}")
    for i in range(16):
        a(f"v_sub_f32 v{C[1]+i}, 0, v45")
    for i in range(8):
        a(f"v_mov_b32 v{P[1]+8+i}, 0")
    for i in range(4):
        a(f"v_mov_b32 v{VB[1][1]+i}, 0")
    stamp(a, 2, 9)
    a("s_cmp_lg_u32 s26, 0")
    a("s_cbranch_scc1 K2_NOBAR")
    a("s_waitcnt vmcnt(0)")
    a("s_barrier")
    a.label("K2_NOBAR")
    stamp(a, 3, 9)
    if PADATT:
        pad_until(a, PADATT)
    U = UA
    assert U == 16
    a(f"s_mov_b32 s27, {64 // U - 1}")
    a("s_mov_b32 s77, 2")
    a(f"v_mov_b32 v46, {LDS_SYNC + 12}")
    a.raw(".p2align 6")
    a.label("K2_LOOP")
    def exps(q, lo, hi):
        for i in range(lo, hi):
            a(f"v_exp_f32 v{P[q]+i}, v{S[q]+i}")
    def smf(q, vb, half):
        a(f"v_smfmac_f32_32x32x32_bf16 {v(O[q],16)}, {v(vb,4)}, {v(P[q]+8*half,8)}, v{IDX}")
    for u in range(U):
        b = u & 1
        a(f"{MF} {v(S[1],16)}, {v(KB[b],4)}, {v(Q[1],4)}, {v(C[1],16)}")
        if u == 8:
            a("s_bitcmp1_b32 s75, s77")
            a("s_cbranch_scc0 K2_KVM")
            a.label("K2_MID")
        exps(0, 0, 5)
        smf(1, VB[b ^ 1][1], 1)
        if u == 8:
            a("s_add_u32 s77, s77, 4")
            a("s_min_u32 s77, s77, 14")
        a(f"ds_read_b128 {v(VB[b^1][0],4)}, v{VV0} offset:{(u+1)*VP}")
        exps(0, 5, 11)
        smf(0, VB[b][0], 0)
        a(f"ds_read_b128 {v(VB[b^1][1],4)}, v{VV1} offset:{(u+1)*VP}")
        exps(0, 11, 16)
        a(f"{MF} {v(S[0],16)}, {v(KB[b^1],4)}, {v(Q[0],4)}, {v(C[0],16)}")
        a(f"ds_read_b128 {v(KB[b],4)}, v{VK} offset:{(u+2)*TP}")
        exps(1, 0, 5)
        smf(0, VB[b][1], 1)
        if u % 8 == 7:
            a("ds_read_b32 v47, v46")
        exps(1, 5, 11)
        smf(1, VB[b][0], 0)
        a("s_waitcnt lgkmcnt(0)")
        if u == U - 1:
            a(f"v_add_u32 v{VK}, {U*TP}, v{VK}")
            a(f"v_add_u32 v{VV0}, {U*VP}, v{VV0}")
            a(f"v_add_u32 v{VV1}, {U*VP}, v{VV1}")
        if u % 8 == 7:
            a("v_readfirstlane_b32 s75, v47")
        exps(1, 11, 16)
        if u == 7:
            mid_check = True
    a("s_bitcmp1_b32 s75, s77")
    a("s_cbranch_scc0 K2_KVW")
    a.label("K2_NEXT")
    a("s_add_u32 s77, s77, 4")
    a("s_min_u32 s77, s77, 14")
    if PROF == 9:
        a("s_memrealtime s[96:97]")
        a("s_memtime s[98:99]")
        a("s_waitcnt lgkmcnt(0)")
        for it, sl in ((3, 4), (2, 5), (1, 6)):
            a(f"s_cmp_eq_u32 s27, {it}")
            a(f"s_cselect_b32 s{80+sl}, s96, s{80+sl}")
            a(f"s_cselect_b32 s{88+sl}, s98, s{88+sl}")
    a("s_sub_u32 s27, s27, 1")
    a("s_cbranch_scc0 K2_LOOP")
    a("s_nop 1")
    smf(1, VB[(U - 1) & 1][1], 1)
    stamp(a, 5)
    stamp(a, 1, 8)
    a(f"v_mov_b32 v46, {LDS_SYNC + 4}")
    a("ds_read_b32 v47, v46")
    a(f"ds_read_b32 v{G[0]}, v7")
    a(f"ds_read_b32 v{G[1]}, v7 offset:128")
    a("s_lshl_b32 s24, s71, 2")
    a("s_add_u32 s24, s24, s20")
    a("s_lshl_b32 s24, s24, 5")
    a("s_add_u32 s24, s24, s70")
    a("s_lshl_b32 s25, s24, 11")
    a(f"s_add_u32 s25, s25, {WS_O}")
    a("v_mov_b32 v44, 0")
    for i in range(9):
        a(f"v_fma_f32 v44, v{O[0]+i}, 0, v44")
    a("s_nop 1")
    for i in range(9):
        a(f"v_fma_f32 v44, v{O[1]+i}, 0, v44")
    a("v_cmp_u_f32 vcc, v44, v44")
    a("s_nop 1")
    a("s_cmp_eq_u64 vcc, 0")
    a("s_cbranch_scc0 K2_FB")
    a.label("K2_FIN")
    for q in range(2):
        a(f"v_rcp_f32 v{48+q}, v{O[q]+8}")
    a(f"s_mov_b32 s74, {SPIN*8}")
    a.label("K2_GW")
    a("s_waitcnt lgkmcnt(0)")
    a("v_readfirstlane_b32 s75, v47")
    a("s_sub_u32 s74, s74, 1")
    a("s_cmp_eq_u32 s74, 0")
    a("s_cbranch_scc1 K2_GOK")
    a("s_cmp_ge_u32 s75, 64")
    a("s_cbranch_scc1 K2_GOK")
    a("s_sleep 1")
    a("ds_read_b32 v47, v46")
    a(f"ds_read_b32 v{G[0]}, v7")
    a(f"ds_read_b32 v{G[1]}, v7 offset:128")
    a("s_branch K2_GW")
    a.label("K2_GOK")
    for q in range(2):
        a(f"v_mul_f32 v{44+2*q}, v{48+q}, v{G[q]}")
    GR = S[0]
    a(f"v_mov_b32 v{GR+8}, s68")
    a(f"v_mov_b32 v{GR+9}, s69")
    for q in range(2):
        for i in range(0, 8, 2):
            a(f"v_pk_mul_f32 {v(O[q]+i,2)}, {v(O[q]+i,2)}, {v(44+2*q,2)} op_sel_hi:[1,0]")
        for i in range(0, 8, 2):
            a(f"v_cvt_pk_bf16_f32 v{GR + 4*q + i//2}, v{O[q]+i}, v{O[q]+i+1}")
        a(f"buffer_store_dwordx4 {v(GR+4*q,4)}, v3, s[28:31], s25 offen offset:{q*1024}{SC}")
    a("s_lshl_b32 s24, s24, 7")
    a(f"s_add_u32 s24, s24, {FL_C}")
    a(f"v_mov_b32 v46, {LDS_SYNC + 8}")
    a("v_mov_b32 v47, 1")
    a("s_mov_b64 exec, 1")
    a("ds_add_u32 v46, v47")
    a("s_mov_b64 exec, -1")
    NSD = min(NDEF, 11)
    if NDEF:
        srd(a, 44, 16, 0x1c0000)
        a(f"s_mul_i32 s53, s20, {DSTG}")
        a("s_add_u32 s53, s53, 0x10000")
        frag_addrs(a, "s53")
        part_addrs(a, "s53", 240)
        a(f"s_mul_i32 s32, s20, {NDEF}")
        a(f"s_add_u32 s32, s32, {4*(28-NDEF)}")
        a(f"s_mul_i32 s33, s72, {2*144*1024}")
        a("s_lshl_b32 s34, s32, 10")
        a("s_add_u32 s33, s33, s34")
        a(f"s_add_u32 s33, s33, {WS_ACT}")
        a(f"s_add_u32 s34, s33, {144*1024}")
        a("s_lshl_b32 s35, s32, 14")
        a("s_lshl_b32 s36, s73, 7")
        a("s_add_u32 s35, s35, s36")
        a("v_and_b32 v4, 31, v2")
        a("v_lshlrev_b32 v4, 2, v4")
        a(f"v_add_u32 v4, {LDS_OG}, v4")
        a("ds_read_b32 v244, v4")
        a("ds_read_b32 v246, v4 offset:128")
        a("ds_read_b32 v47, v46")
    a("s_waitcnt vmcnt(0)")
    a("s_mov_b64 exec, 1")
    a(f"buffer_store_dwordx2 {v(GR+8,2)}, v3, s[28:31], s24 offen sc1")
    a("s_mov_b64 exec, -1")
    a("s_setprio 0")
    stamp(a, 6)
    stamp(a, 2, 8)
    if NDEF:
        lds_wait(a, 46, 47, ["s_and_b32 s75, s75, 255", "s_cmp_ge_u32 s75, 68"], first_read=False)
        a("v_mov_b32 v248, v46")
        a("v_mov_b32 v249, 256")
        DA_, DW_, DC_ = 144, 80, 16
        dq = []
        def dw(k):
            a(f"s_add_u32 m0, s53, {(k % NSD) * 2048}")
            a("s_nop 0")
            a("buffer_load_dwordx4 v10, s[44:47], s35 offen lds")
            a("buffer_load_dwordx4 v11, s[44:47], s35 offen offset:1024 lds")
            a("s_add_u32 s35, s35, 16384")
            dq.extend([k] * 2)
        def da(k):
            for t in range(2):
                a(f"buffer_load_dwordx4 {v(DA_+8*k+4*t,4)}, v3, s[28:31], s{33+t} offen offset:{(k%4)*1024}{SC}")
            if k % 4 == 3:
                a("s_add_u32 s33, s33, 4096")
                a("s_add_u32 s34, s34, 4096")
            dq.extend([k] * 2)
        def dwait(k):
            a(f"s_waitcnt vmcnt({len(dq) - 1 - max(i for i, t in enumerate(dq) if t == k)})")
        def drd(k):
            b = DW_ + 8 * (k & 1)
            for n in range(2):
                for u in range(2):
                    a(f"ds_read_b64_tr_b16 {v(b+4*n+2*u,2)}, v{12+n} offset:{(k % NSD) * 2048 + u*1024}")
        AH = min(AHD, NDEF)
        for k in range(AH):
            dw(k); da(k)
        dwait(0)
        stamp(a, 3, 8)
        drd(0)
        for k in range(NDEF):
            if k + AH < NDEF:
                dw(k + AH); da(k + AH)
            if k + 1 < NDEF:
                dwait(k + 1)
                if k + 3 == NDEF:
                    a("s_mov_b64 exec, 1")
                    a("ds_add_u32 v248, v249")
                    a("s_mov_b64 exec, -1")
                drd(k + 1)
                a("s_waitcnt lgkmcnt(4)")
            else:
                a("s_waitcnt lgkmcnt(0)")
            b = DW_ + 8 * (k & 1)
            for n in range(2):
                for t in range(2):
                    acc = DC_ + (n * 2 + t) * 16
                    cin = "0" if k == 0 else v(acc, 16)
                    a(f"{MF} {v(acc,16)}, {v(b+4*n,4)}, {v(DA_+8*k+4*t,4)}, {cin}")
        stamp(a, 4, 8)
        a("s_nop 7")
        for n in range(2):
            for t in range(2):
                acc = DC_ + (n * 2 + t) * 16
                if n + t == 0:
                    a("s_nop 1")
                for j in range(0, 16, 2):
                    a(f"v_pk_mul_f32 {v(acc+j,2)}, {v(acc+j,2)}, {v(244+2*t,2)} op_sel_hi:[1,0]")
                for g in range(4):
                    a(f"ds_write_b128 v{240+g}, {v(acc+4*g,4)} offset:{t*8192 + n*128}")
        stamp(a, 5, 8)
    a("s_branch K3_REDUCE")
    a.label("K2_FB")
    a("s_cmp_lg_u32 s26, 0")
    a("s_cbranch_scc1 K2_FIN")
    a("s_waitcnt lgkmcnt(0)")
    a("s_mov_b32 s26, 100")
    vaddr_init()
    for q in range(2):
        for i in range(16):
            a(f"v_mov_b32 v{O[q]+i}, 0")
    a("v_mov_b32 v44, 0xff800000")
    a("v_mov_b32 v45, 0xff800000")
    a("v_mov_b32 v43, v3")
    a("s_mov_b32 s27, 64")
    a.label("K2_MAXLOOP")
    a(f"ds_read_b128 {v(KB[0],4)}, v43")
    a(f"v_add_u32 v43, {TP}, v43")
    a("s_waitcnt lgkmcnt(0)")
    for q in range(2):
        a(f"{MF} {v(S[q],16)}, {v(KB[0],4)}, {v(Q[q],4)}, 0")
    a("s_nop 7")
    a("s_nop 7")
    for q in range(2):
        maxtree(S[q], 44 + q, acc=True)
    a("s_sub_u32 s27, s27, 1")
    a("s_cmp_lg_u32 s27, 0")
    a("s_cbranch_scc1 K2_MAXLOOP")
    a("s_branch K2_SETMAX")
    for lab, back in (("K2_KVW", "K2_NEXT"), ("K2_KVM", "K2_MID")):
        a.label(lab)
        lds_wait(a, 46, 47, ["s_bitcmp1_b32 s75, s77"])
        a(f"s_branch {back}")

    a.label("K2_GEMM")
    a("v_min_u32 v4, 37, v2")
    a(f"v_mul_u32_u24 v4, {VP}, v4")
    a(f"v_add_u32 v4, {LDS_V + 1024}, v4")
    a("v_min_u32 v36, 27, v2")
    a(f"v_mul_u32_u24 v36, {VP}, v36")
    a(f"v_add_u32 v36, {LDS_V + 1024 + 38*VP}, v36")
    for i in range(4):
        a(f"v_mov_b32 v{40+i}, 0x3f803f80")
        a(f"v_mov_b32 v{44+i}, 0")
    a("ds_write_b128 v4, v[40:43]")
    a("ds_write_b128 v4, v[44:47] offset:16")
    ND, NW = 28 - NDEF, 8
    NG = ND // 4
    NS = 3
    srd(a, 44, 16, 0x1c0000)
    srd(a, 48, 8, 0x80000)
    if FMAP:
        a("s_and_b32 s42, s72, 3")
        a("s_lshl_b32 s42, s42, 1")
        a("s_add_u32 s42, s42, s73")
    else:
        a("s_lshr_b32 s42, s2, 3")
        a("s_and_b32 s43, s42, 7")
        a("s_lshr_b32 s42, s42, 3")
        a("s_lshl_b32 s42, s42, 1")
        a("s_add_u32 s42, s42, s43")
    for _ in range(-(-14 // NG) - 1):
        a(f"s_cmp_ge_u32 s42, {NG}")
        a(f"s_cselect_b32 s43, {NG}, 0")
        a("s_sub_u32 s42, s42, s43")
    if not ROT:
        a("s_mov_b32 s42, 0")
    a("s_mov_b32 s52, s42")
    a(f"s_mul_i32 s32, s23, {ND}")
    a("s_lshl_b32 s43, s42, 2")
    a("s_add_u32 s32, s32, s43")
    a(f"s_mul_i32 s33, s72, {2*144*1024}")
    a(f"s_add_u32 s33, s33, {WS_ACT}")
    a("s_lshl_b32 s43, s32, 10")
    a("s_add_u32 s33, s33, s43")
    a(f"s_add_u32 s34, s33, {144*1024}")
    a("s_lshl_b32 s43, s73, 7")
    a("s_lshl_b32 s35, s32, 14")
    a("s_add_u32 s35, s35, s43")
    a("s_lshl_b32 s39, s23, 17")
    a("s_add_u32 s39, s39, s43")
    a(f"s_mul_i32 s53, s23, {NS*2048}")
    a(f"s_add_u32 s53, s53, {LDS_WS}")
    frag_addrs(a, "s53")
    GA = 16
    FR = 80
    D = 8
    queue = []
    def ld(dst, sr, k, tag):
        a(f"buffer_load_dwordx4 {v(dst,4)}, v3, s[28:31], s{sr} offen offset:{(k%4)*1024}{SC}")
        queue.append(tag)
    def aloads(k):
        b = FR + (k % D) * 16
        ld(b + 4, 33, k, ("a", k)); ld(b + 12, 34, k, ("a", k))
        if k % 4 == 3:
            a("s_add_u32 s42, s42, 1")
            a(f"s_cmp_eq_u32 s42, {NG}")
            a("s_movk_i32 s43, 4096")
            a(f"s_cselect_b32 s43, {(-(NG-1)*4096) & 0xffffffff:#x}, s43")
            a("s_cselect_b32 s42, 0, s42")
            for sr in (33, 34):
                a(f"s_add_u32 s{sr}, s{sr}, s43")
    def wloads(k):
        a(f"s_add_u32 m0, s53, {(k % NS) * 2048}")
        sr, rs = (35, 44) if k < ND else (39, 48)
        a("s_nop 0")
        a(f"buffer_load_dwordx4 v10, s[{rs}:{rs+3}], s{sr} offen lds")
        a(f"buffer_load_dwordx4 v11, s[{rs}:{rs+3}], s{sr} offen offset:1024 lds")
        queue.extend([("w", k)] * 2)
        a(f"s_add_u32 s{sr}, s{sr}, 16384")
        if k < ND and k % 4 == 3:
            a("s_add_u32 s52, s52, 1")
            a(f"s_cmp_eq_u32 s52, {NG}")
            a(f"s_cselect_b32 s43, {(-ND*16384) & 0xffffffff:#x}, 0")
            a("s_cselect_b32 s52, 0, s52")
            a("s_add_u32 s35, s35, s43")
    def waitfor(*tags):
        n = len(queue) - 1 - max(i for i, t in enumerate(queue) if t in tags)
        a(f"s_waitcnt vmcnt({n})")
    def wreads(k):
        b = FR + (k % D) * 16
        for n in range(2):
            for u in range(2):
                a(f"ds_read_b64_tr_b16 {v(b+8*n+2*u,2)}, v{12+n} offset:{(k % NS) * 2048 + u*1024}")
    def mm(k):
        b = FR + (k % D) * 16
        for n in range(2):
            for t in range(2):
                acc = GA + (n * 2 + t) * 16
                cin = "0" if k == 0 else v(acc, 16)
                a(f"{MF} {v(acc,16)}, {v(b+8*n,4)}, {v(b+4+8*t,4)}, {cin}")
    stamp(a, 3)
    a("s_waitcnt vmcnt(0) lgkmcnt(0)")
    kv_loads(3, 5)
    kv_loads(5, 7)
    a("s_barrier                              ; X1")
    a("s_setprio 3")
    a("s_barrier                              ; X2")
    a("s_cmp_lg_u32 s23, 1")
    a("s_cbranch_scc1 K2_NOB1")
    a("s_lshl_b32 s37, s21, 4")
    a("s_add_u32 s37, s37, s22")
    a("s_lshl_b32 s37, s37, 7")
    a(f"s_add_u32 s37, s37, {FL_B1}")
    flag_store(a, "s37", 16)
    a.label("K2_NOB1")
    a("ds_write_b128 v36, v[40:43]")
    a("ds_write_b128 v36, v[44:47] offset:16")
    a(f"v_mov_b32 v34, {LDS_SYNC + 12}")
    def arrived(stage, n):
        a(f"v_mov_b32 v35, {1 << (4 * stage)}")
        a(f"s_waitcnt vmcnt({n})")
        a("s_mov_b64 exec, 1")
        a("ds_add_u32 v34, v35")
        a("s_mov_b64 exec, -1")
    arrived(0, 4)
    kv_loads(7, 9)
    arrived(1, 4)
    kv_loads(9, 13)
    arrived(2, 8)
    kv_loads(13, 16)
    srd(a, 44, 16, 0x1c0000)
    srd(a, 24, 4, 0x200000)
    srd(a, 56, 18, 1024)
    a("s_lshl_b32 s54, s2, 2")
    a("s_add_u32 s54, s54, s23")
    a("s_lshl_b32 s55, s54, 11")
    a("buffer_load_dwordx4 v[20:23], v3, s[56:59], 0 offen")
    a("buffer_load_dwordx4 v[24:27], v3, s[24:27], s55 offen")
    a("buffer_load_dwordx4 v[28:31], v3, s[24:27], s55 offen offset:1024")
    a("v_mov_b32 v32, 0")
    a("v_mov_b32 v33, 0")
    arrived(3, 0)
    for q in range(4):
        a(f"v_dot2_f32_bf16 v32, v{24+q}, v{20+q}, v32")
        a(f"v_dot2_f32_bf16 v33, v{28+q}, v{20+q}, v33")
    a("s_nop 2")
    a("v_permlane32_swap_b32 v32, v33")
    a("s_nop 1")
    a("v_add_f32 v32, v32, v33")
    for ctl in ("quad_perm:[1,0,3,2]", "quad_perm:[2,3,0,1]", "row_half_mirror", "row_mirror"):
        a("s_nop 1")
        a(f"v_add_f32_dpp v32, v32, v32 {ctl} row_mask:0xf bank_mask:0xf")
    a("v_mov_b32 v33, v32")
    a("s_nop 1")
    a("v_permlane16_swap_b32 v32, v33")
    a("s_nop 1")
    a("v_add_f32 v32, v32, v33")
    a(f"v_mul_f32 v32, {fh(-LOG2E)}, v32")
    a("v_exp_f32 v32, v32")
    a("v_lshrrev_b32 v34, 5, v2")
    a("v_add_f32 v32, 1.0, v32")
    a("v_rcp_f32 v32, v32")
    a("v_lshlrev_b32 v34, 3, v34")
    a("v_mov_b32 v33, s68")
    a("s_lshl_b32 s55, s54, 4")
    a(f"s_add_u32 s55, s55, {WS_G}")
    a("s_mov_b64 exec, 0x100000001".replace("s_mov_b64 exec, 0x100000001", "s_mov_b32 exec_lo, 1\ns_mov_b32 exec_hi, 1"))
    a(f"buffer_store_dwordx2 v[32:33], v34, s[28:31], s55 offen{SC}")
    a("s_mov_b64 exec, -1")
    if WARMW and FMAP:
        a("s_lshr_b32 s54, s2, 3")
        a("s_lshl_b32 s54, s54, 2")
        a("s_add_u32 s54, s54, s23")
        a("s_mul_i32 s55, s54, 14336")
        a("v_min_u32 v14, 55, v2")
        a("v_lshlrev_b32 v14, 7, v14")
        a("buffer_load_dword v15, v14, s[44:47], s55 offen")
        a("s_add_u32 s55, s55, 7168")
        a("buffer_load_dword v15, v14, s[44:47], s55 offen")
        a("s_lshl_b32 s55, s54, 12")
        a("v_and_b32 v14, 31, v2")
        a("v_lshlrev_b32 v14, 7, v14")
        a("buffer_load_dword v15, v14, s[48:51], s55 offen")
    elif WARMW:
        a("s_lshr_b32 s54, s2, 3")
        a("s_and_b32 s54, s54, 7")
        a("s_lshl_b32 s55, s54, 2")
        a("s_add_u32 s55, s55, s23")
        a("s_mul_i32 s55, s55, 57344")
        a("s_add_u32 s55, s55, s43")
        a("v_min_u32 v14, 55, v2")
        a("v_lshlrev_b32 v14, 10, v14")
        a("buffer_load_dword v15, v14, s[44:47], s55 offen")
        a("s_lshl_b32 s55, s54, 2")
        a("s_add_u32 s55, s55, s23")
        a("s_lshl_b32 s55, s55, 14")
        a("s_add_u32 s55, s55, s43")
        a("v_and_b32 v14, 15, v2")
        a("v_lshlrev_b32 v14, 10, v14")
        a("buffer_load_dword v15, v14, s[48:51], s55 offen")
    for k in range(NS):
        wloads(k)
    a("s_setprio 3")
    a("v_and_b32 v6, 15, v2")
    a("v_lshlrev_b32 v6, 7, v6")
    a("s_lshr_b32 s24, s72, 1")
    a("s_lshl_b32 s24, s24, 11")
    a(f"s_add_u32 s24, s24, {FL_B1}")
    poll_shared(a, 1, [("s24", 6, 8, 4)], 20, lslp=4)
    a("v_and_b32 v6, 31, v2")
    a("v_lshlrev_b32 v6, 3, v6")
    a("v_lshlrev_b32 v7, 3, v2")
    a("s_lshl_b32 s54, s72, 9")
    a(f"s_add_u32 s54, s54, {WS_G}")
    a("s_lshl_b32 s55, s71, 2")
    a("s_add_u32 s55, s55, s23")
    a("s_lshl_b32 s55, s55, 9")
    a(f"s_add_u32 s55, s55, {WS_G}")
    a(f"s_mov_b32 s74, {SPIN}")
    a.label("K2_GL")
    a(f"buffer_load_dwordx2 v[240:241], v6, s[28:31], s54 offen{SC}")
    a(f"buffer_load_dwordx2 v[242:243], v6, s[28:31], s54 offen offset:256{SC}")
    a(f"buffer_load_dwordx2 v[244:245], v7, s[28:31], s55 offen{SC}")
    a("s_waitcnt vmcnt(0)")
    a("v_xor_b32 v8, s68, v241")
    a("v_xor_b32 v9, s68, v243")
    a("v_xor_b32 v14, s68, v245")
    a("v_or3_b32 v8, v8, v9, v14")
    a("v_cmp_ne_u32 vcc, 0, v8")
    a("s_sub_u32 s74, s74, 1")
    a("s_cbranch_scc1 K2_GD")
    a("s_cmp_eq_u64 vcc, 0")
    a("s_cbranch_scc1 K2_GD")
    a("s_sleep 4")
    a("s_branch K2_GL")
    a.label("K2_GD")
    a("s_lshl_b32 s55, s23, 8")
    a(f"s_add_u32 s55, s55, {LDS_GQ}")
    a("v_lshrrev_b32 v7, 1, v7")
    a("v_add_u32 v7, s55, v7")
    a("ds_write_b32 v7, v244")
    a("v_sub_f32 v240, 1.0, v240")
    a("v_sub_f32 v242, 1.0, v242")
    a("v_lshrrev_b32 v6, 1, v6")
    a(f"v_add_u32 v6, {LDS_OG}, v6")
    a("ds_write_b32 v6, v240")
    a("ds_write_b32 v6, v242 offset:128")
    a(f"v_mov_b32 v8, {LDS_SYNC + 4}")
    a("v_mov_b32 v9, 16")
    a("s_waitcnt lgkmcnt(0)")
    a("s_mov_b64 exec, 1")
    a("ds_add_u32 v8, v9")
    a("s_mov_b64 exec, -1")
    stamp(a, 4)
    DA = 4
    a("s_setprio 0")
    for k in range(DA):
        aloads(k)
    for k in range(ND + NW):
        waitfor(("w", k), ("a", k))
        wreads(k)
        a("s_waitcnt lgkmcnt(0)")
        if k + NS < ND + NW:
            wloads(k + NS)
        if k + DA < ND:
            aloads(k + DA)
        if k < ND:
            mm(k)
    a("s_setprio 3")
    if NDEF and WARMD:
        assert FMAP
        a(f"s_mul_i32 s33, s72, {2*144*1024}")
        a("s_lshr_b32 s34, s23, 1")
        a(f"s_mul_i32 s34, s34, {144*1024}")
        a("s_add_u32 s33, s33, s34")
        a("s_lshl_b32 s34, s73, 1")
        a("s_and_b32 s35, s23, 1")
        a("s_add_u32 s34, s34, s35")
        a(f"s_mul_i32 s34, s34, {NDEF*256}")
        a("s_add_u32 s33, s33, s34")
        a(f"s_add_u32 s33, s33, {WS_ACT + 4*ND*1024}")
        a(f"v_min_u32 v14, {2*NDEF-1}, v2")
        a("v_lshlrev_b32 v14, 7, v14")
        a(f"buffer_load_dword v15, v14, s[28:31], s33 offen{SC}")
        a("s_and_b32 s34, s72, 3")
        a("s_lshl_b32 s34, s34, 2")
        a("s_add_u32 s34, s34, s23")
        a(f"s_mul_i32 s34, s34, {NDEF*4096}")
        a("s_lshl_b32 s35, s73, 7")
        a("s_add_u32 s34, s34, s35")
        a(f"s_add_u32 s34, s34, {4*ND*16384}")
        a(f"v_min_u32 v14, {4*NDEF-1}, v2")
        a("v_lshlrev_b32 v14, 10, v14")
        a("buffer_load_dword v15, v14, s[44:47], s34 offen")
    a("s_nop 7")
    a("s_nop 7")
    for n in range(2):
        for t in range(2):
            acc = GA + (n * 2 + t) * 16
            for j in range(0, 16, 2):
                a(f"v_pk_mul_f32 {v(acc+j,2)}, {v(acc+j,2)}, {v(240+2*t,2)} op_sel_hi:[1,0]")
    a("s_lshl_b32 s32, s23, 14")
    part_addrs(a, "s32", 212)
    a("s_lshl_b32 s24, s72, 2")
    a("s_add_u32 s24, s24, s23")
    a("s_lshl_b32 s24, s24, 14")
    a(f"s_add_u32 s24, s24, {WS_O}")
    a("v_and_b32 v6, 7, v2")
    a("v_lshlrev_b32 v6, 7, v6")
    a("s_lshl_b32 s26, s72, 12")
    a("s_lshl_b32 s25, s23, 10")
    a("s_add_u32 s26, s26, s25")
    a(f"s_add_u32 s26, s26, {FL_C}")
    a(f"v_mov_b32 v11, {LDS_SYNC + 8}")
    a("v_mov_b32 v10, 16")
    a("s_mov_b64 exec, 1")
    a("ds_add_u32 v11, v10")
    a("s_mov_b64 exec, -1")
    a("s_mov_b32 s54, 0")
    a(f"s_mov_b32 s74, {SPIN}")
    stamp(a, 5)
    stamp(a, 1, 8)
    def c_poll():
        a("v_mov_b32 v8, 0")
        a("v_mov_b32 v9, 0")
        a("s_mov_b64 exec, 0xff")
        a("buffer_atomic_or_x2 v[8:9], v6, s[28:31], s26 offen sc0 sc1")
        a("s_mov_b64 exec, -1")
    def pause():
        if NDEF and PAUSE:
            lab, done = a.newlabel("PZ"), a.newlabel("PZD")
            a(f"s_mov_b32 s76, {SPIN}")
            a.label(lab)
            a("ds_read_b32 v10, v11")
            a("s_waitcnt lgkmcnt(0)")
            a("v_readfirstlane_b32 s75, v10")
            a("s_sub_u32 s76, s76, 1")
            a(f"s_cbranch_scc1 {done}")
            a("s_cmp_ge_u32 s75, 1024")
            a(f"s_cbranch_scc1 {done}")
            a("s_and_b32 s75, s75, 15")
            a(f"s_cbranch_scc0 {done}")
            a("s_sleep 1")
            a(f"s_branch {lab}")
            a.label(done)
    a.label("K3_POLL")
    pause()
    c_poll()
    a.label("K3_ROUND")
    a("s_waitcnt vmcnt(0)")
    a("v_cmp_eq_u64 vcc, s[68:69], v[8:9]")
    a("s_sub_u32 s74, s74, 1")
    a("s_cselect_b32 s55, 0xff, vcc_lo")
    a("s_andn2_b32 s55, s55, s54")
    a("s_cbranch_scc1 K3_SOME")
    a("ds_read_b32 v10, v11")
    a(f"s_sleep {TSLP}")
    a("s_waitcnt lgkmcnt(0)")
    a("v_readfirstlane_b32 s75, v10")
    a("s_and_b32 s75, s75, 15")
    a("s_cbranch_scc1 K3_POLL")
    a(f"s_sleep {PSLOW}")
    a("s_branch K3_POLL")
    a.label("K3_SOME")
    pause()
    a("s_or_b32 s54, s54, s55")
    for kk in range(NW):
        b = FR + ((ND + kk) % D) * 16
        a(f"s_bitcmp1_b32 s55, {kk}")
        a(f"s_cbranch_scc0 K3_L{kk}")
        a(f"s_add_u32 s25, s24, {kk*2048}")
        a(f"buffer_load_dwordx4 {v(b+4,4)}, v3, s[28:31], s25 offen{SC}")
        a(f"buffer_load_dwordx4 {v(b+12,4)}, v3, s[28:31], s25 offen offset:1024{SC}")
        a.label(f"K3_L{kk}")
    a("s_cmp_eq_u32 s54, 0xff")
    a("s_cbranch_scc1 K3_LAST")
    c_poll()
    a.label("K3_LAST")
    a("ds_read_b32 v10, v11")
    a("s_waitcnt vmcnt(0)")
    for kk in range(NW):
        a(f"s_bitcmp1_b32 s55, {kk}")
        a(f"s_cbranch_scc0 K3_C{kk}")
        mm(ND + kk)
        a.label(f"K3_C{kk}")
    a("s_cmp_lg_u32 s54, 0xff")
    a("s_cbranch_scc1 K3_ROUND")
    stamp(a, 6)
    stamp(a, 2, 8)
    lds_wait(a, 11, 10, ["s_bitcmp1_b32 s75, 2"], first_read=False)
    for i in range(3, 6):
        stamp(a, i, 8)
    a("s_nop 7")
    part_write(a, GA, 212)
    a.label("K3_REDUCE")
    srd(a, 24, 64, 0x200000)
    a("s_lshl_b32 s32, s20, 6")
    a("v_add_u32 v0, s32, v2                  ; tid")
    a("v_lshrrev_b32 v7, 3, v0                ; token")
    a("v_and_b32 v5, 7, v0")
    a("v_lshlrev_b32 v6, 1, v5")
    a("v_and_b32 v8, 7, v7")
    a("v_xor_b32 v6, v6, v8")
    a("v_lshlrev_b32 v6, 4, v6")
    a("v_lshl_add_u32 v6, v7, 8, v6")
    a("v_xor_b32 v8, 16, v6")
    a("v_add_u32 v9, 0x10000, v6")
    a("v_add_u32 v10, 0x10000, v8")
    a("v_lshlrev_b32 v7, 10, v7")
    a("v_lshl_add_u32 v7, v5, 4, v7")
    a("s_lshl_b32 s32, s72, 16")
    a("s_lshl_b32 s33, s73, 7")
    a("s_add_u32 s32, s32, s33")
    a("s_waitcnt lgkmcnt(0)")
    a("s_barrier                              ; Y1")
    stamp(a, 6, 8)
    NP = 8 if NDEF else 4
    RB = 96
    for w in range(NP):
        off = w * 16384 if w < 4 else (w - 4) * DSTG
        r0, r1 = (6, 8) if w < 4 else (9, 10)
        if off > 65535:
            a("v_add_u32 v9, 0x8000, v9")
            a("v_add_u32 v10, 0x8000, v10")
            off -= 0x8000
        a(f"ds_read_b128 {v(RB+8*w,4)}, v{r0} offset:{off}")
        a(f"ds_read_b128 {v(RB+4+8*w,4)}, v{r1} offset:{off}")
    for w in range(1, NP):
        a(f"s_waitcnt lgkmcnt({2*(NP-1-w)})")
        for j in range(0, 8, 2):
            a(f"v_pk_add_f32 {v(RB+j,2)}, {v(RB+j,2)}, {v(RB+8*w+j,2)}")
    for j in range(0, 8, 2):
        a(f"v_cvt_pk_bf16_f32 v{16+j//2}, v{RB+j}, v{RB+j+1}")
    a("buffer_store_dwordx4 v[16:19], v7, s[24:27], s32 offen" + (" " + OUTSC if OUTSC else ""))
    if PADEND:
        pad_until(a, PADEND)
    stamp_flush(a, 8)
    a.label("K_EXIT")
    a("s_endpgm")
    a.label("K_END")

def main():
    hdr = open("cdna_kernels/" + NAME + ".s.ref").read().split("\n")
    top = [l for l in hdr if l.startswith(";") and "@launch" not in l]
    out = "\n".join(top) + "\n"
    out += f"; @launch grid=(256,1,1) block=(512,1,1) lds={LDS_TOTAL}\n"
    out += '.amdgcn_target "amdgcn-amd-amdhsa--gfx950"\n.text\n'
    a = Asm()
    gen(a)
    out += a.text()
    out += '.section .rodata,"a"\n'
    out += kernel_desc(KNAME, 256, 102)
    path = sys.argv[1] if len(sys.argv) > 1 else "cdna_kernels/" + NAME + ".s"
    open(path, "w").write(out)

main()
```

```python
import sys, math, os
from asmlib import *

NAME = "gated_mix__softmax_full_mha__geglu_ffn__prompt"
KNAME = NAME + "_kernel"
LOG2E = 1.4426950408889634
def env(n, d): return int(os.environ.get(n, str(d)))
PROF = env("PROF", 0)
ROT = env("ROT", 1)
TAGPOS = env("TAGPOS", 0)
PADEND = env("PADEND", 0)
PADATT = env("PADATT", 0)
DBGWG = env("DBGWG", -1)
TLBW = env("TLBW", 0)
PFW = env("PFW", 0)
PFI = env("PFI", 1)
PFX = env("PFX", 0)
KVROT = env("KVROT", 1)
AFLAG = env("AFLAG", 10)
NTW = env("NTW", 0)
NTX = env("NTX", 0)
PFC = env("PFC", -1)
ONEP = env("ONEP", 0)
FMAP = env("FMAP", 1)
NOTAG = env("NOTAG", 0)
ROT1 = env("ROT1", 2)
OUTSC = os.environ.get("OUTSC", "sc1")
GPK = env("GPK", 0)
UA = env("UA", 16)
PRE = env("PRE", 2)
QLD = env("QLD", 4)
WARMW = env("WARMW", 0)
ROT2 = env("ROT2", 1)
NDEF = env("NDEF", 0)
WARMD = env("WARMD", 1)
PSLOW = env("PSLOW", 16)
PAUSE = env("PAUSE", 1)
NFILL = env("NFILL", 4)
AHD = env("AHD", 6)
ATPOLL = env("ATPOLL", 1)
HINTW = env("HINTW", 0)
TSLP = env("TSLP", 2)
SPF = env("SPF", 0)
CODEPF = env("CODEPF", 1)
SLP = env("SLP", 4)

WS_Q = 0x0
WS_K = 0x200000
WS_V = 0x400000
WS_ACT = 0x600000
WS_O = 0xF00000
WS_G = 0x1240000
WS_FL = 0x1280000
FL_A = WS_FL
FL_B1 = WS_FL + 0x8000
FL_B2 = WS_FL + 0x10000
FL_C = WS_FL + 0x20000
WS_STAMP = 0x1800000
WS_SIZE = 0x2000000

SL = 40960
RING = 38912
LDS_GQ = 162176
LDS_OG = 163200
LDS_TAG = 163584
LDS_SYNC = LDS_TAG + 8
LDS_TOTAL = 163840
TP = 2080
LDS_V = 1024
VP = TP
LDS_WS = 137472
DSTG = 22528
LDS_Q = RING + 2 * SL + 32768
def slot_of(c):
    return RING + ((c + 2) % 3) * SL

SC = " sc1"
SPIN = 200000
MF = "v_mfma_f32_32x32x16_bf16"

def srd(a, d, base, nbytes):
    a(f"s_mov_b32 s{d}, s{base}")
    a(f"s_mov_b32 s{d+1}, s{base+1}")
    a(f"s_mov_b32 s{d+2}, {nbytes:#x}")
    a(f"s_mov_b32 s{d+3}, 0x20000")

def stamp(a, i, lvl=1):
    if PROF and (PROF == lvl or i in (0, 7)):
        a("s_memrealtime s[96:97]")
        a("s_memtime s[98:99]")
        a("s_waitcnt lgkmcnt(0)")
        a(f"s_mov_b32 s{80+i}, s96")
        a(f"s_mov_b32 s{88+i}, s98")

def stamp_flush(a, n):
    if PROF:
        a("s_waitcnt vmcnt(0)")
        stamp(a, n - 1)
        a("s_lshl_b32 s78, s2, 4")
        a("s_add_u32 s78, s78, s20")
        a("s_lshl_b32 s78, s78, 6")
        a(f"s_add_u32 s78, s78, {WS_STAMP}")
        a("v_mov_b32 v1, 0")
        for i in range(n):
            a(f"v_mov_b32 v0, s{80+i}")
            a(f"buffer_store_dword v0, v1, s[28:31], s78 offen offset:{4*i}")
            a("s_nop 1")
            a(f"v_mov_b32 v0, s{88+i}")
            a(f"buffer_store_dword v0, v1, s[28:31], s78 offen offset:{32+4*i}")
            a("s_nop 1")
        a("s_waitcnt vmcnt(0)")
        if DBGWG >= 0:
            a(f"s_cmp_lg_u32 s2, {DBGWG}")
            a("s_cbranch_scc1 DBG_SKIP")
            a("s_and_b32 s78, s20, 3")
            a("s_cmp_lg_u32 s78, 0")
            a("s_cbranch_scc1 DBG_SKIP")
            a("s_mul_i32 s78, s20, 7")
            a("v_mov_b32 v1, s78")
            for i in range(1, n):
                a(f"s_sub_u32 s79, s{80+i}, s80")
                a("v_mov_b32 v0, s79")
                a(f"global_store_dword v1, v0, s[66:67] offset:{4+4*i}")
                a("s_nop 1")
            a("s_waitcnt vmcnt(0)")
            a.label("DBG_SKIP")

def pad_until(a, ticks):
    lab = a.newlabel("PAD")
    a.label(lab)
    a("s_memrealtime s[96:97]")
    a("s_waitcnt lgkmcnt(0)")
    a("s_sub_u32 s96, s96, s68")
    a(f"s_cmp_lt_u32 s96, {ticks}")
    a(f"s_cbranch_scc1 {lab}")

def flag_store(a, soff, vtmp):
    a(f"v_mov_b32 v{vtmp}, s68")
    a(f"v_mov_b32 v{vtmp+1}, s69")
    a(f"v_mov_b32 v{vtmp+2}, 0")
    a("s_mov_b64 exec, 1")
    a(f"buffer_store_dwordx2 {v(vtmp,2)}, v{vtmp+2}, s[28:31], {soff} offen sc1")
    a("s_mov_b64 exec, -1")

def poll(a, soff, voff, vtmp, slp=None):
    lab = a.newlabel("POLL")
    done = a.newlabel("POLLD")
    a(f"s_mov_b32 s74, {SPIN}")
    a.label(lab)
    a(f"buffer_load_dwordx2 {v(vtmp,2)}, v{voff}, s[28:31], {soff} offen sc1")
    a("s_waitcnt vmcnt(0)")
    a(f"v_xor_b32 v{vtmp}, s68, v{vtmp}")
    a(f"v_xor_b32 v{vtmp+1}, s69, v{vtmp+1}")
    a(f"v_or_b32 v{vtmp}, v{vtmp}, v{vtmp+1}")
    a(f"v_cmp_ne_u32 vcc, 0, v{vtmp}")
    a("s_sub_u32 s74, s74, 1")
    a("s_cmp_eq_u32 s74, 0")
    a(f"s_cbranch_scc1 {done}")
    a("s_cmp_eq_u64 vcc, 0")
    a(f"s_cbranch_scc1 {done}")
    a(f"s_sleep {SLP if slp is None else slp}")
    a(f"s_branch {lab}")
    a.label(done)

def poll_shared(a, stage, polls, vtmp, lslp=1, extra=None):
    other = a.newlabel("PSO")
    done = a.newlabel("PSD")
    a(f"v_mov_b32 v{vtmp+3}, {LDS_SYNC}")
    a("s_cmp_lg_u32 s23, 0")
    a(f"s_cbranch_scc1 {other}")
    for p in polls:
        poll(a, *p)
    if extra:
        extra()
    a(f"v_mov_b32 v{vtmp}, {stage}")
    a(f"ds_write_b32 v{vtmp+3}, v{vtmp}")
    a(f"s_branch {done}")
    a.label(other)
    a(f"s_mov_b32 s74, {SPIN*8}")
    lab = a.newlabel("PSL")
    a.label(lab)
    a(f"ds_read_b32 v{vtmp}, v{vtmp+3}")
    a("s_waitcnt lgkmcnt(0)")
    a(f"v_readfirstlane_b32 s75, v{vtmp}")
    a("s_sub_u32 s74, s74, 1")
    a("s_cmp_eq_u32 s74, 0")
    a(f"s_cbranch_scc1 {done}")
    a(f"s_cmp_ge_u32 s75, {stage}")
    a(f"s_cbranch_scc1 {done}")
    a(f"s_sleep {lslp}")
    a(f"s_branch {lab}")
    a.label(done)

def cvt_tile(a, acc, dst, lo=0, hi=16):
    for i in range(lo, hi, 2):
        a(f"v_cvt_pk_bf16_f32 v{dst + (i - lo)//2}, v{acc+i}, v{acc+i+1}")

def frag_addrs(a, sbase):
    a("v_lshrrev_b32 v4, 3, v2")
    a("v_and_b32 v5, 7, v2")
    a("v_bfe_u32 v7, v2, 4, 1")
    a("v_lshlrev_b32 v7, 2, v7")
    a("v_xor_b32 v5, v5, v7")
    a("v_lshlrev_b32 v5, 4, v5")
    a("v_lshl_add_u32 v10, v4, 10, v5")
    a("v_add_u32 v11, 7168, v10")
    a("v_bfe_u32 v4, v2, 2, 2")
    a("v_lshrrev_b32 v5, 5, v2")
    a("v_lshl_add_u32 v5, v5, 2, v4")
    a("v_lshlrev_b32 v5, 7, v5")
    a("v_lshrrev_b32 v4, 1, v4")
    a("v_lshl_add_u32 v5, v4, 6, v5")
    a("v_bfe_u32 v4, v2, 4, 1")
    a("v_lshl_add_u32 v5, v4, 5, v5")
    a("v_and_b32 v4, 3, v2")
    a("v_lshl_add_u32 v5, v4, 3, v5")
    a("v_xor_b32 v13, 64, v5")
    a(f"v_add_u32 v12, {sbase}, v5")
    a(f"v_add_u32 v13, {sbase}, v13")

def part_addrs(a, sbase, r):
    a(f"v_lshrrev_b32 v{r}, 5, v2")
    a(f"v_and_b32 v{r+1}, 7, v2")
    a(f"v_xor_b32 v{r}, v{r}, v{r+1}")
    a(f"v_and_b32 v{r+1}, 31, v2")
    a(f"v_lshlrev_b32 v{r+1}, 8, v{r+1}")
    a(f"v_lshl_add_u32 v{r}, v{r}, 4, v{r+1}")
    for g in range(1, 4):
        a(f"v_xor_b32 v{r+g}, {32*g}, v{r}")
    for g in range(4):
        a(f"v_add_u32 v{r+g}, {sbase}, v{r+g}")

def part_write(a, GA, r):
    for n in range(2):
        for t in range(2):
            acc = GA + (n * 2 + t) * 16
            for g in range(4):
                a(f"ds_write_b128 v{r+g}, {v(acc+4*g,4)} offset:{t*8192 + n*128}")

def lds_wait(a, vaddr, vdst, cmp_lines, first_read=True):
    lab, done = a.newlabel("LW"), a.newlabel("LWD")
    a(f"s_mov_b32 s74, {SPIN*8}")
    if first_read:
        a(f"ds_read_b32 v{vdst}, v{vaddr}")
    a.label(lab)
    a("s_waitcnt lgkmcnt(0)")
    a(f"v_readfirstlane_b32 s75, v{vdst}")
    a("s_sub_u32 s74, s74, 1")
    a(f"s_cbranch_scc1 {done}")
    for l in cmp_lines:
        a(l)
    a(f"s_cbranch_scc1 {done}")
    a("s_sleep 1")
    a(f"ds_read_b32 v{vdst}, v{vaddr}")
    a(f"s_branch {lab}")
    a.label(done)

def gen(a):
    kernel_header(a, KNAME)
    a("s_cmp_ge_u32 s2, 256")
    a("s_cbranch_scc1 K_EXIT")
    a("s_load_dwordx4 s[4:7], s[0:1], 0       ; x, wqkv")
    a("s_load_dwordx4 s[12:15], s[0:1], 32")
    a("s_load_dwordx2 s[8:9], s[0:1], 16      ; wo")
    a("s_load_dwordx2 s[10:11], s[0:1], 80    ; ws")
    a("s_load_dwordx4 s[16:19], s[0:1], 48")
    a("s_load_dwordx4 s[64:67], s[0:1], 64")
    a("v_lshrrev_b32 v1, 6, v0")
    a("v_and_b32 v2, 63, v0                   ; lane")
    a("v_readfirstlane_b32 s20, v1")
    a("v_lshlrev_b32 v3, 4, v2                ; lane*16")
    stamp(a, 0)
    a("s_and_b32 s24, s2, 1                   ; xh")
    a("s_bfe_u32 s25, s2, 0x20001             ; xq")
    a("s_lshr_b32 s26, s2, 3                  ; j")
    a("s_and_b32 s63, s26, 7")
    a("s_lshl_b32 s21, s24, 3")
    a("s_add_u32 s21, s21, s63                ; rb")
    a("s_lshr_b32 s27, s26, 3")
    a("s_mul_i32 s22, s25, 3")
    a("s_add_u32 s22, s22, s27")
    a("s_add_u32 s23, s25, 12")
    a("s_cmp_eq_u32 s27, 3")
    a("s_cselect_b32 s22, s23, s22            ; cb2")
    if FMAP:
        a("s_and_b32 s72, s2, 7")
        a("s_lshl_b32 s72, s72, 2")
        a("s_and_b32 s73, s26, 3")
        a("s_add_u32 s72, s72, s73                ; rb64")
        a("s_lshr_b32 s73, s26, 2                 ; cb64")
    else:
        a("s_lshl_b32 s72, s25, 3")
        a("s_add_u32 s72, s72, s63                ; rb64")
        a("s_lshl_b32 s73, s24, 2")
        a("s_add_u32 s73, s73, s27                ; cb64")
    if ROT1 == 1:
        a("s_lshl_b32 s27, s27, 1")
        a("s_add_u32 s63, s63, s27")
    elif ROT1 == 2:
        a("s_add_u32 s63, s63, s27")
        a("s_lshl_b32 s63, s63, 1")
    elif ROT1 == 3:
        a("s_add_u32 s63, s63, s27")
        a("s_lshl_b32 s63, s63, 2")
    a(f"s_and_b32 s63, s63, {7 if ROT1 else 0}")
    a("s_and_b32 s70, s2, 7")
    a("s_lshl_b32 s70, s70, 2")
    a("s_and_b32 s27, s26, 3")
    a("s_add_u32 s70, s70, s27                ; head")
    a("s_lshr_b32 s71, s26, 2                 ; qb")
    a("s_cmp_lt_u32 s20, 4")
    a("s_cbranch_scc1 K1_COMPUTE")

    a("s_sub_u32 s23, s20, 4                  ; L")
    VX0, VX1, VR0, VR1, VKV = 10, 11, 12, 13, 14
    a("v_lshrrev_b32 v4, 3, v2")
    a("v_and_b32 v5, 7, v2")
    a("v_lshrrev_b32 v6, 4, v2")
    a("v_xor_b32 v7, v5, v6")
    a("v_lshlrev_b32 v7, 4, v7")
    a(f"v_lshl_add_u32 v{VX0}, v4, 10, v7")
    a(f"v_xor_b32 v{VX1}, 64, v{VX0}")
    a("v_and_b32 v7, 1, v6")
    a("v_lshlrev_b32 v7, 2, v7")
    a("v_xor_b32 v7, v7, v5")
    a("v_lshlrev_b32 v7, 4, v7")
    a("v_mul_u32_u24 v8, 3072, v4")
    a(f"v_add_u32 v{VKV}, v8, v7")
    a("v_mul_u32_u24 v8, 3584, v4")
    a("v_add_u32 v15, v8, v7")
    a("s_cmp_lt_u32 s22, 12")
    a("s_cselect_b64 vcc, -1, 0")
    a("s_movk_i32 s60, 3072")
    a("s_cselect_b32 s60, 3584, s60")
    a(f"v_cndmask_b32 v{VR0}, v{VKV}, v15, vcc")
    a(f"v_xor_b32 v{VR1}, 32, v{VR0}")
    a("s_cselect_b32 s32, 0, 12")
    a("s_sub_u32 s32, s22, s32")
    a("s_lshl_b32 s32, s32, 8")
    a("s_lshl_b32 s61, s22, 1")
    a("s_add_u32 s61, s61, 1")
    a("s_add_u32 s34, s22, 12")
    a("s_cmp_lt_u32 s22, 12")
    a("s_cselect_b32 s33, 0, 128              ; R1 - R0")
    a("s_cselect_b32 s61, s61, s34")
    a("s_lshl_b32 s61, s61, 7")
    a("s_mul_i32 s34, s23, 57344")
    a("s_add_u32 s61, s61, s34")
    a("s_lshl_b32 s34, s23, 4")
    a("s_mul_i32 s34, s34, s60")
    a("s_add_u32 s32, s32, s34")
    a("s_lshl_b32 s62, s60, 6")
    a("s_lshl_b32 s36, s60, 3                 ; 8 rows")
    a("s_mul_i32 s34, s23, 49152")
    a("s_lshl_b32 s35, s22, 7")
    a("s_add_u32 s34, s34, s35")
    a("s_add_u32 s34, s34, 1024")
    a("s_lshl_b32 s40, s21, 17")
    a("s_lshl_b32 s41, s23, 15")
    a("s_add_u32 s40, s40, s41                ; x base")
    a("s_lshl_b32 s42, s23, 12")
    a("s_lshl_b32 s35, s23, 11")
    a("s_mov_b32 s43, s63                     ; kc")
    a("s_waitcnt lgkmcnt(0)")
    srd(a, 24, 4, 0x200000)
    srd(a, 44, 6, 0x180000)
    a("s_cmp_lt_u32 s22, 12")
    a("s_cselect_b64 s[48:49], s[12:13], s[6:7]")
    a("s_cselect_b64 s[52:53], s[14:15], s[6:7]")
    a("s_cselect_b32 s50, 0x1c0000, s46")
    a("s_mov_b32 s54, s50")
    a("s_mov_b32 s51, 0x20000")
    a("s_mov_b32 s55, 0x20000")
    queue = []
    def issue(c):
        slot = slot_of(c)
        nw = " nt" if (c % 8) < NTW else ""
        nx = " nt" if c < NTX else ""
        a("s_lshl_b32 s37, s43, 7")
        a("s_add_u32 s37, s37, s40")
        a("s_mul_i32 s38, s43, s62")
        a("s_add_u32 s38, s38, s32")
        for i in range(2):
            a(f"s_add_u32 m0, s35, {slot + 16384 + i*1024}")
            a("s_add_u32 s39, s38, s33")
            a(f"buffer_load_dwordx4 v{VR0}, s[48:51], s38 offen{nw} lds")
            a(f"s_add_u32 m0, s35, {slot + 24576 + i*1024}")
            a("s_add_u32 s38, s38, s36")
            a(f"buffer_load_dwordx4 v{VR1}, s[52:55], s39 offen{nw} lds")
        if c < 8:
            a("s_mul_i32 s38, s43, 196608")
            a("s_add_u32 s38, s38, s34")
            for i in range(2):
                a(f"s_add_u32 m0, s35, {slot + 32768 + i*1024}")
                a(f"s_add_u32 s39, s38, {i*24576}")
                a(f"buffer_load_dwordx4 v{VKV}, s[44:47], s39 offen{nw} lds")
        for i in range(4):
            a(f"s_add_u32 m0, s42, {slot + i*1024}")
            a(f"s_add_u32 s39, s37, {i*8192}")
            a(f"buffer_load_dwordx4 v{VX1 if i & 1 else VX0}, s[24:27], s39 offen{nx} lds")
        a("s_add_u32 s43, s43, 1")
        a("s_and_b32 s43, s43, 7")
        if c == 7:
            if ROT2:
                a("s_and_b32 s43, s21, 7")
            a("s_mov_b32 s32, s61")
            a("s_mov_b32 s33, 0")
            a("s_mov_b32 s62, 229376")
            a("s_mov_b32 s36, 28672")
            a("s_mov_b64 s[48:49], s[12:13]")
            a("s_mov_b64 s[52:53], s[14:15]")
            a("s_mov_b32 s50, 0x1c0000")
            a("s_mov_b32 s54, 0x1c0000")
            a(f"v_mov_b32 v{VR0}, v15")
            a(f"v_xor_b32 v{VR1}, 32, v15")
        queue.extend([c] * (10 if c < 8 else 8))
    def waitq(tag):
        n = len(queue) - 1 - max(i for i, t in enumerate(queue) if t == tag)
        a(f"s_waitcnt vmcnt({n})")
    issue(0)
    if PRE == 2:
        issue(1)
    stamp(a, 1)
    srd(a, 28, 10, WS_SIZE)
    a("v_mov_b32 v9, 0")
    a("s_add_u32 s37, s2, s20")
    a("s_cmp_eq_u32 s37, 4")
    a("s_cbranch_scc0 K1_NOTAG")
    a("s_memrealtime s[56:57]")
    a("s_waitcnt lgkmcnt(0)")
    a("s_or_b32 s56, s56, 1")
    a("s_or_b32 s57, s57, 0x80000000")
    a("v_mov_b32 v4, s56")
    a("v_mov_b32 v5, s57")
    a("s_mov_b64 exec, 1")
    a("global_store_dwordx2 v9, v[4:5], s[66:67] sc1")
    a("s_mov_b64 exec, -1")
    a.label("K1_NOTAG")
    def get_tag():
        lab, done = a.newlabel("TAG"), a.newlabel("TAGD")
        a(f"s_mov_b32 s74, {SPIN}")
        a("v_readfirstlane_b32 s68, v60")
        a("v_readfirstlane_b32 s69, v61")
        a.label(lab)
        a("s_sub_u32 s74, s74, 1")
        a(f"s_cbranch_scc1 {done}")
        a("s_min_u32 s75, s68, s69")
        a("s_cmp_lg_u32 s75, 0")
        a(f"s_cbranch_scc1 {done}")
        a("global_load_dwordx2 v[60:61], v9, s[66:67] sc1")
        a("s_waitcnt vmcnt(0)")
        a("v_readfirstlane_b32 s68, v60")
        a("v_readfirstlane_b32 s69, v61")
        a("s_sleep 2")
        a(f"s_branch {lab}")
        a.label(done)
        a(f"v_mov_b32 v4, {LDS_TAG}")
        a("v_mov_b32 v60, s68")
        a("v_mov_b32 v61, s69")
        a("ds_write_b64 v4, v[60:61]")
        a("ds_write_b32 v4, v9 offset:8")
        a("ds_write_b32 v4, v9 offset:12")
        a("ds_write_b32 v4, v9 offset:16")
        a("s_waitcnt lgkmcnt(0)")
    def flag_a():
        lab = a.newlabel("FA")
        a("s_cmp_lg_u32 s23, 1")
        a(f"s_cbranch_scc1 {lab}")
        a("s_lshl_b32 s37, s22, 4")
        a("s_add_u32 s37, s37, s21")
        a("s_lshl_b32 s37, s37, 7")
        a(f"s_add_u32 s37, s37, {FL_A}")
        flag_store(a, "s37", 16)
        a.label(lab)
    def kv_setup():
        a("v_and_b32 v5, 15, v2")
        a("v_lshlrev_b32 v5, 7, v5")
        a("v_bfe_u32 v6, v2, 4, 1")
        a("v_lshl_add_u32 v5, v6, 14, v5")
        a("s_and_b32 s56, s2, 7")
        a("s_lshr_b32 s57, s56, 1")
        a("s_add_u32 s57, s57, 12")
        a("s_sub_u32 s57, s57, s56")
        a("s_lshl_b32 s57, s57, 11")
        a("s_lshl_b32 s58, s71, 8")
        a("s_add_u32 s57, s57, s58")
        a("v_and_b32 v6, 1, v2")
        a("v_lshlrev_b32 v6, 7, v6")
        a("v_add_u32 v6, s57, v6")
        a("v_cmp_gt_u32 vcc, 32, v2")
        a("s_lshl_b32 s56, s56, 11")
        a(f"s_add_u32 s56, s56, {FL_A}")
        a("v_cndmask_b32 v5, v6, v5, vcc")
        a("s_lshl_b32 s57, s70, 16")
        a("s_lshl_b32 s58, s23, 10")
        a("s_add_u32 s57, s57, s58                ; head*64K + L*1K")
        a(f"s_add_u32 s57, s57, {WS_K}")
        a(f"s_mul_i32 s58, s23, {TP}")
    def kv_loads(lo, hi):
        n = hi - lo
        a(f"s_mul_i32 s44, s71, {n}")
        a("s_lshr_b32 s44, s44, 3")
        for i in range(n):
            a(f"s_mul_i32 s45, s44, {4*TP}")
            a("s_add_u32 s45, s45, s58")
            a(f"s_add_u32 m0, s45, {lo*4*TP}")
            a("s_lshl_b32 s37, s44, 12")
            a("s_add_u32 s37, s37, s57")
            a(f"s_add_u32 s38, s37, {lo*4096}")
            a(f"buffer_load_dwordx4 v3, s[28:31], s38 offen{SC} lds")
            a(f"s_add_u32 m0, s45, {lo*4*TP + 1024}")
            a(f"s_add_u32 s38, s37, {lo*4096 + WS_V - WS_K}")
            a(f"buffer_load_dwordx4 v3, s[28:31], s38 offen{SC} lds")
            if i < n - 1:
                a("s_add_u32 s44, s44, 1")
                a(f"s_cmp_eq_u32 s44, {n}")
                a("s_cselect_b32 s44, 0, s44")
        queue.extend(["kv"] * (2 * n))
    def q_loads():
        a("s_lshl_b32 s37, s70, 6")
        a("s_lshl_b32 s38, s71, 3")
        a("s_add_u32 s37, s37, s38")
        a("s_lshl_b32 s38, s23, 1")
        a("s_add_u32 s37, s37, s38")
        a("s_lshl_b32 s37, s37, 10")
        a("s_lshl_b32 s38, s23, 11")
        a(f"s_add_u32 m0, s38, {LDS_Q}")
        a("s_nop 0")
        a(f"buffer_load_dwordx4 v3, s[28:31], s37 offen{SC} lds")
        a(f"buffer_load_dwordx4 v3, s[28:31], s37 offen offset:1024{SC} lds")
    def fa_load():
        a("buffer_load_dwordx2 v[20:21], v5, s[28:31], s56 offen sc1")
    def fa_test():
        a("v_xor_b32 v20, s68, v20")
        a("v_xor_b32 v21, s69, v21")
        a("v_or_b32 v20, v20, v21")
        a("v_cmp_ne_u32 vcc, 0, v20")
        a("s_nop 1")
        a("s_cmp_eq_u64 vcc, 0")
    for c in range(14):
        waitq(c)
        if c == 6:
            get_tag()
        if c < 6:
            stamp(a, c + 1, 2)
        if 6 <= c < 12:
            stamp(a, c - 5, 3)
        if c >= 10:
            stamp(a, c - 9, 4)
        a(f"s_barrier                              ; b({c})")
        if c == 8:
            stamp(a, 2)
        if c == 4:
            a("global_load_dwordx2 v[60:61], v9, s[66:67] sc1")
        if c == AFLAG:
            flag_a()
        if c == 12:
            kv_setup()
        if c == 0 and PRE == 1:
            issue(1)
        if c + 2 < 16:
            issue(c + 2)
        if c == PFC:
            a("s_cmp_ge_u32 s23, 2")
            a("s_cbranch_scc1 K1_NOPF2")
            a("s_cmp_eq_u32 s23, 0")
            a("s_cselect_b64 s[56:57], s[12:13], s[14:15]")
            a("s_mov_b32 s58, 0x1c0000")
            a("s_mov_b32 s59, 0x20000")
            a("v_mul_u32_u24 v16, 3584, v2")
            a("s_mul_i32 s37, s23, 57344")
            a("s_sub_u32 s37, s61, s37")
            a("s_and_b32 s38, s21, 7")
            a("s_mul_i32 s38, s38, 229376")
            a("s_add_u32 s37, s37, s38")
            a("buffer_load_dword v17, v16, s[56:59], s37 offen")
            a.label("K1_NOPF2")
    fa_load()
    a("s_waitcnt vmcnt(1)")
    a("s_barrier                              ; b(14)")
    a("s_waitcnt vmcnt(0)")
    fa_test()
    a("s_cbranch_scc1 KV_GO")
    poll(a, "s56", 5, 8, 1)
    a.label("KV_GO")
    q_loads()
    kv_loads(0, 5)
    kv_loads(5, 9)
    a("s_branch K2_GEMM")

    a.label("K1_COMPUTE")
    AF = 96
    AK = 224
    def accF(sw, i, t):
        return AF + ((sw * 2 + i) * 2 + t) * 16
    XA = [4, 5, 6, 7]
    WA = [8, 9]
    KA = 10
    a("s_and_b32 s23, s20, 1                  ; tp")
    a("s_lshr_b32 s24, s20, 1                 ; grp")
    a("v_bfe_u32 v16, v2, 4, 1                ; gsel")
    a("v_lshrrev_b32 v17, 5, v2               ; h")
    a("v_bfe_u32 v18, v2, 2, 2                ; r")
    a("v_and_b32 v19, 3, v2                   ; c")
    a("v_lshl_add_u32 v20, v17, 3, v18        ; 8h+r")
    a("v_and_b32 v21, 31, v2")
    a("v_lshlrev_b32 v21, 7, v21")
    a("v_bfe_u32 v22, v2, 1, 3")
    a("v_xor_b32 v22, v22, v17")
    a("v_lshl_add_u32 v21, v22, 4, v21")
    a("s_lshl_b32 s25, s23, 13")
    a(f"s_add_u32 s25, s25, {slot_of(0)}")
    for s_ in range(4):
        a(f"v_xor_b32 v{XA[s_]}, {32*s_}, v21")
        a(f"v_add_u32 v{XA[s_]}, s25, v{XA[s_]}")
    a("v_lshlrev_b32 v20, 7, v20")
    a("v_lshl_add_u32 v20, v19, 3, v20        ; row*128 + c*8")
    a("v_lshrrev_b32 v21, 1, v18")
    a("v_xor_b32 v21, s24, v21                ; grp ^ (r>>1)")
    a("v_lshl_add_u32 v20, v21, 6, v20")
    a("v_lshl_add_u32 v20, v16, 5, v20")
    a(f"v_add_u32 v{KA}, {slot_of(0) + 32768}, v20")
    a("v_lshl_add_u32 v20, v16, 13, v20")
    a("v_xor_b32 v21, 32, v20")
    a(f"v_add_u32 v{WA[0]}, {slot_of(0) + 16384}, v20")
    a(f"v_add_u32 v{WA[1]}, {slot_of(0) + 16384}, v21")
    a("v_and_b32 v11, 0x33, v2")
    a("v_bfe_u32 v17, v2, 2, 1")
    a("v_lshl_or_b32 v11, v17, 3, v11")
    a("v_bfe_u32 v17, v2, 3, 1")
    a("v_lshl_or_b32 v11, v17, 2, v11")
    a("v_lshlrev_b32 v11, 4, v11              ; K voffset")
    a("s_cmp_lt_u32 s22, 8")
    a("s_cbranch_scc1 K1_KOFF")
    a("v_lshlrev_b32 v11, 16, v16")
    a("v_lshrrev_b32 v18, 5, v2")
    a("v_lshl_or_b32 v11, v18, 8, v11")
    a("v_and_b32 v18, 15, v2")
    a("v_lshl_or_b32 v11, v18, 4, v11         ; V voffset")
    a.label("K1_KOFF")
    for i in range(160):
        a(f"v_mov_b32 v{AF+i}, 0")
    a("s_waitcnt lgkmcnt(0)")
    srd(a, 28, 10, WS_SIZE)
    if CODEPF:
        a("s_getpc_b64 s[50:51]")
        a.label("PC_HERE")
        a(f"s_sub_u32 s50, s50, PC_HERE-{KNAME}")
        a("s_subb_u32 s51, s51, 0")
        a("s_lshr_b32 s49, s2, 3")
        a("s_lshl_b32 s49, s49, 2")
        a("s_add_u32 s49, s49, s20")
        a("s_lshl_b32 s49, s49, 9")
        a("v_lshlrev_b32 v21, 3, v2")
        a("v_add_u32 v21, s49, v21")
        a(f"v_min_u32 v21, K_END-{KNAME}-4, v21")
        a("global_load_dword v21, v21, s[50:51]")
    a("s_lshl_b32 s32, s21, 2")
    a("s_lshl_b32 s33, s23, 1")
    a("s_add_u32 s32, s32, s33                ; tt0")
    a("s_and_b32 s36, s22, 7")
    a("s_lshl_b32 s36, s36, 2")
    a("s_lshl_b32 s37, s24, 1")
    a("s_add_u32 s36, s36, s37")
    a("s_lshl_b32 s36, s36, 6")
    a("s_add_u32 s36, s36, s32")
    a("s_lshl_b32 s36, s36, 10")
    a("s_cmp_lt_u32 s22, 8")
    a(f"s_mov_b32 s38, {WS_V}")
    a(f"s_cselect_b32 s38, {WS_K}, s38")
    a("s_movk_i32 s37, 512")
    a("s_cselect_b32 s37, 0x10000, s37")
    a("s_add_u32 s36, s36, s38")
    a("s_add_u32 s37, s37, s36")
    a("s_mov_b32 s25, 2")
    a("s_mov_b32 s26, 8")
    BB = [24, 44]
    def reads(s_, buf, kv):
        L = [f"ds_read_b128 {v(buf,4)}, v{XA[s_]}"]
        for t in range(2):
            for u in range(2):
                L.append(f"ds_read_b64_tr_b16 {v(buf+8+4*t+2*u,2)}, v{WA[t]} offset:{(16*s_+4*u)*128}")
            if t == 0:
                L.append(f"ds_read_b128 {v(buf+4,4)}, v{XA[s_]} offset:4096")
        if kv:
            for u in range(2):
                L.append(f"ds_read_b64_tr_b16 {v(buf+16+2*u,2)}, v{KA} offset:{(16*s_+4*u)*128}")
        return L
    def mfs(buf, sw, vtype):
        L = []
        for t in range(2):
            for i in range(2):
                acc = accF(sw, i, t)
                L.append(f"{MF} {v(acc,16)}, {v(buf+8+4*t,4)}, {v(buf+4*i,4)}, {v(acc,16)}")
        if sw == 0:
            for i in range(2):
                acc = AK + 16 * i
                A_, B_ = v(buf + 16, 4), v(buf + 4 * i, 4)
                if vtype:
                    A_, B_ = B_, A_
                L.append(f"{MF} {v(acc,16)}, {A_}, {B_}, {v(acc,16)}")
        return L
    def sweep(name, sw, vtype):
        a.raw(".p2align 6")
        a.label(name)
        kv = sw == 0
        nr = 8 if kv else 6
        for s_ in range(4):
            upd = []
            if s_ == 2:
                upd = ["s_add_u32 s25, s25, 1", "s_cmp_eq_u32 s25, 3", f"s_mov_b32 s27, {SL}",
                       f"s_cselect_b32 s27, {(-2*SL) & 0xffffffff:#x}, s27", "s_cselect_b32 s25, 0, s25"]
                upd += [f"v_add_u32 v{r}, s27, v{r}" for r in XA + WA + ([KA] if kv else [])]
            if s_ == 1 and sw == 1:
                upd = [f"s_cmp_lg_u32 s26, {17 - AFLAG}", f"s_cbranch_scc1 {name}_ND", "s_waitcnt vmcnt(0)", f"{name}_ND:"]
            M = mfs(BB[s_ & 1], sw, vtype)
            if s_ < 3:
                R = reads(s_ + 1, BB[(s_ + 1) & 1], kv)
                seq = [f"s_waitcnt lgkmcnt({nr-4})", M[0], R[0], R[1], M[1], R[2], R[3], "s_waitcnt lgkmcnt(4)", M[2], R[4], R[5]]
                if kv:
                    seq += [M[3], R[6], R[7], M[4]] + upd[:7] + [M[5]] + upd[7:]
                elif s_ == 1:
                    seq += [M[3]] + upd
                else:
                    seq += upd[:5] + [M[3]] + upd[5:]
            else:
                R = reads(0, BB[0], kv)
                tail = ["s_sub_u32 s26, s26, 1", "s_cmp_lg_u32 s26, 0"]
                seq = [f"s_waitcnt lgkmcnt({nr-4})", M[0], "s_waitcnt lgkmcnt(0)", "s_barrier", R[0], M[1], R[1], R[2], R[3], M[2], R[4], R[5]]
                if kv:
                    seq += [M[3], R[6], R[7], M[4]] + tail + [M[5]]
                else:
                    seq += tail + [M[3]]
            for l in seq:
                a(l)
        a(f"s_cbranch_scc1 {name}")
    a("s_barrier                              ; b(0)")
    stamp(a, 1)
    for l in reads(0, BB[0], True):
        a(l)
    a("s_cmp_lt_u32 s22, 8")
    a("s_cbranch_scc0 SW1V")
    sweep("SW1K", 0, False)
    a("s_branch K1_KVEPI")
    sweep("SW1V", 0, True)
    a.label("K1_KVEPI")
    stamp(a, 2)
    c0 = -2.0 * 0.7978845608028654 * LOG2E
    c1 = c0 * 0.044715
    T = 64
    TB = 16
    def gelu_tile(acc, out, pk):
        L = []
        if pk:
            for j in range(0, 8, 2):
                L.append(f"v_pk_mul_f32 {v(TB+j,2)}, {v(acc+j,2)}, {v(acc+j,2)}")
            for j in range(0, 8, 2):
                L.append(f"v_pk_fma_f32 {v(TB+j,2)}, {v(TB+j,2)}, s[34:35], v[12:13]")
            for j in range(0, 8, 2):
                L.append(f"v_pk_mul_f32 {v(TB+j,2)}, {v(TB+j,2)}, {v(acc+j,2)}")
            for j in range(8):
                L.append(f"v_exp_f32 v{TB+j}, v{TB+j}")
            for j in range(0, 4, 2):
                L.append(f"v_pk_mul_f32 {v(acc+8+j,2)}, {v(acc+8+j,2)}, {v(acc+j,2)}")
            for j in range(0, 8, 2):
                L.append(f"v_pk_add_f32 {v(TB+j,2)}, {v(TB+j,2)}, v[14:15]")
            for j in range(8):
                L.append(f"v_rcp_f32 v{TB+j}, v{TB+j}")
            for j in range(4, 8, 2):
                L.append(f"v_pk_mul_f32 {v(acc+8+j,2)}, {v(acc+8+j,2)}, {v(acc+j,2)}")
            for j in range(0, 8, 2):
                L.append(f"v_pk_mul_f32 {v(acc+8+j,2)}, {v(acc+8+j,2)}, {v(TB+j,2)}")
        else:
            for j in range(8):
                L.append(f"v_mul_f32 v{TB+j}, v{acc+j}, v{acc+j}")
            for j in range(8):
                L.append(f"v_fma_f32 v{TB+j}, v{TB+j}, s34, v12")
            for j in range(8):
                L.append(f"v_mul_f32 v{TB+j}, v{TB+j}, v{acc+j}")
            for j in range(8):
                L.append(f"v_exp_f32 v{TB+j}, v{TB+j}")
                L.append(f"v_mul_f32 v{acc+8+j}, v{acc+8+j}, v{acc+j}")
            for j in range(8):
                L.append(f"v_add_f32 v{TB+j}, 1.0, v{TB+j}")
            for j in range(8):
                L.append(f"v_rcp_f32 v{TB+j}, v{TB+j}")
                if j >= 2:
                    L.append(f"v_mul_f32 v{acc+8+j-2}, v{acc+8+j-2}, v{TB+j-2}")
            L.append(f"v_mul_f32 v{acc+14}, v{acc+14}, v{TB+6}")
            L.append(f"v_mul_f32 v{acc+15}, v{acc+15}, v{TB+7}")
        for j in range(0, 8, 2):
            L.append(f"v_cvt_pk_bf16_f32 v{out + j//2}, v{acc+8+j}, v{acc+8+j+1}")
        return L
    def kv_fill():
        L = []
        for i in range(2):
            for j in range(0, 16, 2):
                L.append(f"v_cvt_pk_bf16_f32 v{T + 8*i + j//2}, v{AK+16*i+j}, v{AK+16*i+j+1}")
                if j == 6:
                    L.append(f"buffer_store_dwordx4 {v(T+8*i,4)}, v11, s[28:31], s36 offen offset:{i*1024}{SC}")
            L.append(f"buffer_store_dwordx4 {v(T+8*i+4,4)}, v11, s[28:31], s37 offen offset:{i*1024}{SC}")
        return L
    def q_fill():
        L = []
        for t in range(2):
            for i in range(2):
                acc = accF(0, i, t)
                for hf in range(2):
                    for j in range(8):
                        L.append(f"v_mul_f32 v{acc+8*hf+j}, s34, v{acc+8*hf+j}")
                    for j in range(0, 8, 2):
                        L.append(f"v_cvt_pk_bf16_f32 v{acc+8*hf+j//2}, v{acc+8*hf+j}, v{acc+8*hf+j+1}")
                    L.append(f"s_add_u32 s39, s38, {WS_Q + (t + 4*hf) * 65536}\nbuffer_store_dwordx4 {v(acc+8*hf,4)}, v3, s[28:31], s39 offen offset:{i*1024}{SC}")
        return L
    def cost(l):
        return 8 if l.startswith(("v_exp", "v_rcp")) else 4
    def sweep2(fill, early):
        nsteps = 32
        esteps = 4 * (AFLAG - 9) - 1
        parts = [[] for _ in range(nsteps)]
        E, Rr = fill[:early], fill[early:]
        def spread(L, lo, hi):
            tot = sum(cost(l) for l in L)
            acc_ = 0
            for l in L:
                st = lo + min(hi - lo - 1, int(acc_ * (hi - lo) / max(tot, 1)))
                parts[st].append(l)
                acc_ += cost(l)
        ecost = sum(cost(l) for l in E)
        ehi = min(esteps + 1, 1 + max(1, -(-ecost // 48)))
        spread(E, 1, ehi)
        spread(Rr, ehi, nsteps)
        for c in range(8, 16):
            for s_ in range(4):
                st = (c - 8) * 4 + s_
                F = list(parts[st])
                M = mfs(BB[s_ & 1], 1, False)
                d = slot_of(c + 1) - slot_of(c)
                upd = [f"v_add_u32 v{r}, {d & 0xffffffff:#x}, v{r}" for r in XA + WA] if (s_ == 2 and c < 15) else []
                q = [F[0::3], F[1::3], F[2::3]]
                n1 = (len(F) + 2) // 3
                q = [F[:n1 // 2], F[n1 // 2:n1], F[n1:n1 + (len(F) - n1) // 3], F[n1 + (len(F) - n1) // 3:]]
                if s_ < 3:
                    R = reads(s_ + 1, BB[(s_ + 1) & 1], False)
                    seq = ["s_waitcnt lgkmcnt(2)", M[0], R[0], R[1]] + q[0] + [M[1], R[2], R[3]] + q[1] + ["s_waitcnt lgkmcnt(4)", M[2], R[4], R[5]] + q[2] + [M[3]] + q[3] + upd
                else:
                    R = reads(0, BB[0], False) if c < 15 else []
                    dr = ["s_waitcnt vmcnt(0)"] if c + 1 == AFLAG else []
                    seq = ["s_waitcnt lgkmcnt(2)", M[0]] + q[0] + dr + ["s_waitcnt lgkmcnt(0)"] + (["s_barrier"] if c < 14 else []) + R[:1] + [M[1]] + R[1:4] + q[1] + [M[2]] + R[4:] + q[2] + [M[3]] + q[3]
                for l in seq:
                    if l == "s_barrier" and PROF in (10, 11, 12) and 0 <= c - (8 if PROF != 11 else 10) < 6:
                        if PROF == 12:
                            stamp(a, c - 8 + 1, 12)
                        a(l)
                        stamp(a, c - 8 + 1, 10)
                        stamp(a, c - 10 + 1, 11) if c >= 10 else None
                    else:
                        a(l)
    a(f"v_mov_b32 v16, {LDS_TAG}")
    a("ds_read_b64 v[18:19], v16")
    a(f"v_mov_b32 v12, {fh(c0)}")
    a("v_mov_b32 v13, v12")
    a("v_mov_b32 v14, 1.0")
    a("v_mov_b32 v15, 1.0")
    a("s_waitcnt lgkmcnt(0)")
    a("v_readfirstlane_b32 s68, v18")
    a("v_readfirstlane_b32 s69, v19")
    a("s_cmp_lt_u32 s22, 12")
    a("s_cbranch_scc1 SW2R")
    a(f"s_mov_b32 s34, {fh(LOG2E*0.25)}")
    a("s_sub_u32 s38, s22, 12")
    a("s_lshl_b32 s38, s38, 3")
    a("s_lshl_b32 s39, s24, 1")
    a("s_add_u32 s38, s38, s39")
    a("s_lshl_b32 s38, s38, 6")
    a("s_add_u32 s38, s38, s32")
    a("s_lshl_b32 s38, s38, 10")
    F = kv_fill() + q_fill()
    sweep2(F, len(F))
    a("s_branch K1_GE2")
    a.label("SW2R")
    a(f"s_mov_b32 s34, {fh(c1)}")
    a("s_mov_b32 s35, s34")
    F = kv_fill()
    ne = len(F)
    F2 = []
    for i in range(2):
        for t in range(2):
            if i * 2 + t < NFILL:
                F += gelu_tile(accF(0, i, t), 80 + 4 * (i * 2 + t), GPK)
            else:
                F2 += gelu_tile(accF(0, i, t), 80 + 4 * (i * 2 + t), True)
    sweep2(F, ne)
    for l in F2:
        a(l)
    a.label("K1_GE2")
    stamp(a, 3)
    a(f"s_mov_b32 s34, {fh(c1)}")
    a("s_mov_b32 s35, s34")
    a("s_mul_i32 s36, s32, 144")
    a("s_lshl_b32 s37, s22, 3")
    a("s_lshl_b32 s38, s22, 2")
    a("s_add_u32 s38, s38, 44")
    a("s_cmp_lt_u32 s22, 12")
    a("s_cselect_b32 s37, s37, s38")
    a("s_add_u32 s36, s36, s37")
    a("s_lshl_b32 s37, s24, 1")
    a("s_add_u32 s36, s36, s37")
    a("s_lshl_b32 s36, s36, 10")
    a(f"s_add_u32 s36, s36, {WS_ACT}")
    a(f"s_add_u32 s37, s36, {144*1024}")
    a("s_add_u32 s38, s36, 4096")
    a("s_add_u32 s39, s37, 4096")
    a("s_cmp_lt_u32 s22, 12")
    a("s_cbranch_scc0 K1_GE3")
    for i in range(2):
        for t in range(2):
            a(f"buffer_store_dwordx4 {v(80 + 4*(i*2+t),4)}, v3, s[28:31], s{36+i} offen offset:{t*1024}{SC}")
    a.label("K1_GE3")
    for t in range(2):
        for i in range(2):
            out = 64 + 4 * (i * 2 + t)
            for l in gelu_tile(accF(1, i, t), out, True):
                a(l)
            a(f"buffer_store_dwordx4 {v(out,4)}, v3, s[28:31], s{38+i} offen offset:{t*1024}{SC}")

    a.label("K2_ATTN")
    Q = [8, 12]
    G = [4, 5]
    KB = [16, 20]
    VB = [[24, 28], [32, 36]]
    IDX = 6
    VK, VV0, VV1 = 40, 41, 42
    C = [96, 112]
    S = [128, 144]
    P = [160, 176]
    O = [192, 208]
    a(f"v_mov_b32 v{IDX}, 0xdddd")
    def vaddr_init():
        a(f"v_mov_b32 v{VK}, v3")
        a("v_lshrrev_b32 v43, 5, v2")
        a("v_and_b32 v44, 15, v2")
        a("v_lshlrev_b32 v44, 4, v44")
        a("v_lshl_or_b32 v44, v43, 8, v44")
        a(f"v_add_u32 v44, {LDS_V}, v44")
        a("v_add_u32 v45, 512, v44")
        a("v_and_b32 v43, 31, v2")
        a("v_subrev_u32 v47, 20, v43")
        a("v_cmp_gt_u32 vcc, 8, v47")
        a(f"v_mov_b32 v46, {LDS_V + 1040}")
        a(f"v_mov_b32 v47, {LDS_V + 1040 + 2*VP}")
        a("v_cndmask_b32 v46, v46, v47, vcc")
        a("v_and_b32 v47, 27, v43")
        a("v_cmp_eq_u32 vcc, 16, v47")
        a("v_subrev_u32 v47, 16, v46")
        a("s_nop 0")
        a("v_cndmask_b32 v46, v46, v47, vcc")
        a("v_cmp_gt_u32 vcc, 16, v43")
        a("s_nop 1")
        a(f"v_cndmask_b32 v{VV0}, v46, v44, vcc")
        a(f"v_cndmask_b32 v{VV1}, v46, v45, vcc")
    vaddr_init()
    a("s_lshl_b32 s24, s20, 8")
    a(f"s_add_u32 s24, s24, {LDS_GQ}")
    a("v_and_b32 v7, 31, v2")
    a("v_lshlrev_b32 v7, 2, v7")
    a("v_add_u32 v7, s24, v7                  ; g address")
    for q in range(2):
        for i in range(16):
            a(f"v_mov_b32 v{O[q]+i}, 0")
    a("s_mov_b32 s26, 0")
    a("s_lshl_b32 s24, s20, 11")
    a(f"s_add_u32 s24, s24, {LDS_Q}")
    a("v_add_u32 v43, s24, v3")
    a("s_barrier                              ; X1")
    a("s_setprio 2")
    stamp(a, 4)
    stamp(a, 1, 9)
    a(f"ds_read_b128 {v(Q[0],4)}, v43")
    a(f"ds_read_b128 {v(KB[0],4)}, v{VK}")
    a(f"ds_read_b128 {v(Q[1],4)}, v43 offset:1024")
    a("s_waitcnt lgkmcnt(0)")
    for q in range(2):
        a(f"{MF} {v(S[q],16)}, {v(KB[0],4)}, {v(Q[q],4)}, 0")
    a("s_nop 7")
    a("s_nop 3")
    def maxtree(src, dst, acc=False):
        if acc:
            for i in range(0, 16, 2):
                a(f"v_max3_f32 v{dst}, v{src+i}, v{src+i+1}, v{dst}")
        else:
            a(f"v_max_f32 v{dst}, v{src}, v{src+1}")
            for i in range(2, 16, 2):
                a(f"v_max3_f32 v{dst}, v{src+i}, v{src+i+1}, v{dst}")
    for q in range(2):
        maxtree(S[q], 44 + q)
    a.label("K2_SETMAX")
    a(f"ds_read_b128 {v(KB[0],4)}, v{VK}")
    a(f"ds_read_b128 {v(VB[0][0],4)}, v{VV0}")
    a(f"ds_read_b128 {v(VB[0][1],4)}, v{VV1}")
    a(f"ds_read_b128 {v(KB[1],4)}, v{VK} offset:{TP}")
    for q in range(2):
        a(f"v_mov_b32 v{46+q}, v{44+q}")
    a("s_nop 1")
    for q in range(2):
        a(f"v_permlane32_swap_b32 v{44+q}, v{46+q}")
    for q in range(2):
        a(f"v_max_f32 v{44+q}, v{44+q}, v{46+q}")
    for i in range(16):
        a(f"v_sub_f32 v{C[0]+i}, 0, v44")
    a("s_waitcnt lgkmcnt(0)")
    a("s_nop 0")
    a(f"{MF} {v(S[0],16)}, {v(KB[0],4)}, {v(Q[0],4)}, {v(C[0],16)}")
    for i in range(16):
        a(f"v_sub_f32 v{C[1]+i}, 0, v45")
    for i in range(8):
        a(f"v_mov_b32 v{P[1]+8+i}, 0")
    for i in range(4):
        a(f"v_mov_b32 v{VB[1][1]+i}, 0")
    stamp(a, 2, 9)
    a("s_cmp_lg_u32 s26, 0")
    a("s_cbranch_scc1 K2_NOBAR")
    a("s_waitcnt vmcnt(0)")
    a("s_barrier")
    a.label("K2_NOBAR")
    stamp(a, 3, 9)
    if PADATT:
        pad_until(a, PADATT)
    U = UA
    a(f"s_mov_b32 s27, {64 // U - 1}")
    a(f"v_mov_b32 v46, {LDS_SYNC + 4}")
    a.raw(".p2align 6")
    a.label("K2_LOOP")
    def exps(q, lo, hi):
        for i in range(lo, hi):
            a(f"v_exp_f32 v{P[q]+i}, v{S[q]+i}")
    def smf(q, vb, half):
        a(f"v_smfmac_f32_32x32x32_bf16 {v(O[q],16)}, {v(vb,4)}, {v(P[q]+8*half,8)}, v{IDX}")
    for u in range(U):
        b = u & 1
        a(f"{MF} {v(S[1],16)}, {v(KB[b],4)}, {v(Q[1],4)}, {v(C[1],16)}")
        exps(0, 0, 5)
        smf(1, VB[b ^ 1][1], 1)
        a(f"ds_read_b128 {v(VB[b^1][0],4)}, v{VV0} offset:{(u+1)*VP}")
        exps(0, 5, 11)
        smf(0, VB[b][0], 0)
        a(f"ds_read_b128 {v(VB[b^1][1],4)}, v{VV1} offset:{(u+1)*VP}")
        exps(0, 11, 16)
        a(f"{MF} {v(S[0],16)}, {v(KB[b^1],4)}, {v(Q[0],4)}, {v(C[0],16)}")
        a(f"ds_read_b128 {v(KB[b],4)}, v{VK} offset:{(u+2)*TP}")
        exps(1, 0, 5)
        smf(0, VB[b][1], 1)
        if u == U - 1:
            a("ds_read_b32 v47, v46")
        exps(1, 5, 11)
        smf(1, VB[b][0], 0)
        a("s_waitcnt lgkmcnt(0)")
        if u == U - 1:
            a(f"v_add_u32 v{VK}, {U*TP}, v{VK}")
            a(f"v_add_u32 v{VV0}, {U*VP}, v{VV0}")
            a(f"v_add_u32 v{VV1}, {U*VP}, v{VV1}")
            a("v_readfirstlane_b32 s75, v47")
        exps(1, 11, 16)
    a("s_bitcmp1_b32 s75, 2")
    a("s_cbranch_scc0 K2_KVW")
    a.label("K2_NEXT")
    if PROF == 9:
        a("s_memrealtime s[96:97]")
        a("s_memtime s[98:99]")
        a("s_waitcnt lgkmcnt(0)")
        for it, sl in ((3, 4), (2, 5), (1, 6)):
            a(f"s_cmp_eq_u32 s27, {it}")
            a(f"s_cselect_b32 s{80+sl}, s96, s{80+sl}")
            a(f"s_cselect_b32 s{88+sl}, s98, s{88+sl}")
    a("s_sub_u32 s27, s27, 1")
    a("s_cbranch_scc0 K2_LOOP")
    a("s_nop 1")
    smf(1, VB[(U - 1) & 1][1], 1)
    stamp(a, 5)
    stamp(a, 1, 8)
    a(f"v_mov_b32 v46, {LDS_SYNC + 4}")
    a("ds_read_b32 v47, v46")
    a(f"ds_read_b32 v{G[0]}, v7")
    a(f"ds_read_b32 v{G[1]}, v7 offset:128")
    a("s_lshl_b32 s24, s71, 2")
    a("s_add_u32 s24, s24, s20")
    a("s_lshl_b32 s24, s24, 5")
    a("s_add_u32 s24, s24, s70")
    a("s_lshl_b32 s25, s24, 11")
    a(f"s_add_u32 s25, s25, {WS_O}")
    a("v_mov_b32 v44, 0")
    for i in range(9):
        a(f"v_fma_f32 v44, v{O[0]+i}, 0, v44")
    a("s_nop 1")
    for i in range(9):
        a(f"v_fma_f32 v44, v{O[1]+i}, 0, v44")
    a("v_cmp_u_f32 vcc, v44, v44")
    a("s_nop 1")
    a("s_cmp_eq_u64 vcc, 0")
    a("s_cbranch_scc0 K2_FB")
    a.label("K2_FIN")
    for q in range(2):
        a(f"v_rcp_f32 v{48+q}, v{O[q]+8}")
    a(f"s_mov_b32 s74, {SPIN*8}")
    a.label("K2_GW")
    a("s_waitcnt lgkmcnt(0)")
    a("v_readfirstlane_b32 s75, v47")
    a("s_sub_u32 s74, s74, 1")
    a("s_cmp_eq_u32 s74, 0")
    a("s_cbranch_scc1 K2_GOK")
    a("s_cmp_ge_u32 s75, 64")
    a("s_cbranch_scc1 K2_GOK")
    a("s_sleep 1")
    a("ds_read_b32 v47, v46")
    a(f"ds_read_b32 v{G[0]}, v7")
    a(f"ds_read_b32 v{G[1]}, v7 offset:128")
    a("s_branch K2_GW")
    a.label("K2_GOK")
    for q in range(2):
        a(f"v_mul_f32 v{44+2*q}, v{48+q}, v{G[q]}")
    GR = S[0]
    a(f"v_mov_b32 v{GR+8}, s68")
    a(f"v_mov_b32 v{GR+9}, s69")
    for q in range(2):
        for i in range(0, 8, 2):
            a(f"v_pk_mul_f32 {v(O[q]+i,2)}, {v(O[q]+i,2)}, {v(44+2*q,2)} op_sel_hi:[1,0]")
        for i in range(0, 8, 2):
            a(f"v_cvt_pk_bf16_f32 v{GR + 4*q + i//2}, v{O[q]+i}, v{O[q]+i+1}")
        a(f"buffer_store_dwordx4 {v(GR+4*q,4)}, v3, s[28:31], s25 offen offset:{q*1024}{SC}")
    a("s_lshl_b32 s24, s24, 7")
    a(f"s_add_u32 s24, s24, {FL_C}")
    a(f"v_mov_b32 v46, {LDS_SYNC + 8}")
    a("v_mov_b32 v47, 1")
    a("s_mov_b64 exec, 1")
    a("ds_add_u32 v46, v47")
    a("s_mov_b64 exec, -1")
    NSD = min(NDEF, 11)
    if NDEF:
        srd(a, 44, 16, 0x1c0000)
        a(f"s_mul_i32 s53, s20, {DSTG}")
        a("s_add_u32 s53, s53, 0x10000")
        frag_addrs(a, "s53")
        part_addrs(a, "s53", 240)
        a(f"s_mul_i32 s32, s20, {NDEF}")
        a(f"s_add_u32 s32, s32, {4*(28-NDEF)}")
        a(f"s_mul_i32 s33, s72, {2*144*1024}")
        a("s_lshl_b32 s34, s32, 10")
        a("s_add_u32 s33, s33, s34")
        a(f"s_add_u32 s33, s33, {WS_ACT}")
        a(f"s_add_u32 s34, s33, {144*1024}")
        a("s_lshl_b32 s35, s32, 14")
        a("s_lshl_b32 s36, s73, 7")
        a("s_add_u32 s35, s35, s36")
        a("v_and_b32 v4, 31, v2")
        a("v_lshlrev_b32 v4, 2, v4")
        a(f"v_add_u32 v4, {LDS_OG}, v4")
        a("ds_read_b32 v244, v4")
        a("ds_read_b32 v246, v4 offset:128")
        a("ds_read_b32 v47, v46")
    a("s_waitcnt vmcnt(0)")
    a("s_mov_b64 exec, 1")
    a(f"buffer_store_dwordx2 {v(GR+8,2)}, v3, s[28:31], s24 offen sc1")
    a("s_mov_b64 exec, -1")
    a("s_setprio 0")
    stamp(a, 6)
    stamp(a, 2, 8)
    if NDEF:
        lds_wait(a, 46, 47, ["s_and_b32 s75, s75, 255", "s_cmp_ge_u32 s75, 68"], first_read=False)
        a("v_mov_b32 v248, v46")
        a("v_mov_b32 v249, 256")
        DA_, DW_, DC_ = 144, 80, 16
        dq = []
        def dw(k):
            a(f"s_add_u32 m0, s53, {(k % NSD) * 2048}")
            a("s_nop 0")
            a("buffer_load_dwordx4 v10, s[44:47], s35 offen lds")
            a("buffer_load_dwordx4 v11, s[44:47], s35 offen offset:1024 lds")
            a("s_add_u32 s35, s35, 16384")
            dq.extend([k] * 2)
        def da(k):
            for t in range(2):
                a(f"buffer_load_dwordx4 {v(DA_+8*k+4*t,4)}, v3, s[28:31], s{33+t} offen offset:{(k%4)*1024}{SC}")
            if k % 4 == 3:
                a("s_add_u32 s33, s33, 4096")
                a("s_add_u32 s34, s34, 4096")
            dq.extend([k] * 2)
        def dwait(k):
            a(f"s_waitcnt vmcnt({len(dq) - 1 - max(i for i, t in enumerate(dq) if t == k)})")
        def drd(k):
            b = DW_ + 8 * (k & 1)
            for n in range(2):
                for u in range(2):
                    a(f"ds_read_b64_tr_b16 {v(b+4*n+2*u,2)}, v{12+n} offset:{(k % NSD) * 2048 + u*1024}")
        AH = min(AHD, NDEF)
        for k in range(AH):
            dw(k); da(k)
        dwait(0)
        stamp(a, 3, 8)
        drd(0)
        for k in range(NDEF):
            if k + AH < NDEF:
                dw(k + AH); da(k + AH)
            if k + 1 < NDEF:
                dwait(k + 1)
                if k + 3 == NDEF:
                    a("s_mov_b64 exec, 1")
                    a("ds_add_u32 v248, v249")
                    a("s_mov_b64 exec, -1")
                drd(k + 1)
                a("s_waitcnt lgkmcnt(4)")
            else:
                a("s_waitcnt lgkmcnt(0)")
            b = DW_ + 8 * (k & 1)
            for n in range(2):
                for t in range(2):
                    acc = DC_ + (n * 2 + t) * 16
                    cin = "0" if k == 0 else v(acc, 16)
                    a(f"{MF} {v(acc,16)}, {v(b+4*n,4)}, {v(DA_+8*k+4*t,4)}, {cin}")
        stamp(a, 4, 8)
        a("s_nop 7")
        for n in range(2):
            for t in range(2):
                acc = DC_ + (n * 2 + t) * 16
                if n + t == 0:
                    a("s_nop 1")
                for j in range(0, 16, 2):
                    a(f"v_pk_mul_f32 {v(acc+j,2)}, {v(acc+j,2)}, {v(244+2*t,2)} op_sel_hi:[1,0]")
                for g in range(4):
                    a(f"ds_write_b128 v{240+g}, {v(acc+4*g,4)} offset:{t*8192 + n*128}")
        stamp(a, 5, 8)
    a("s_branch K3_REDUCE")
    a.label("K2_FB")
    a("s_cmp_lg_u32 s26, 0")
    a("s_cbranch_scc1 K2_FIN")
    a("s_waitcnt lgkmcnt(0)")
    a("s_mov_b32 s26, 100")
    vaddr_init()
    for q in range(2):
        for i in range(16):
            a(f"v_mov_b32 v{O[q]+i}, 0")
    a("v_mov_b32 v44, 0xff800000")
    a("v_mov_b32 v45, 0xff800000")
    a("v_mov_b32 v43, v3")
    a("s_mov_b32 s27, 64")
    a.label("K2_MAXLOOP")
    a(f"ds_read_b128 {v(KB[0],4)}, v43")
    a(f"v_add_u32 v43, {TP}, v43")
    a("s_waitcnt lgkmcnt(0)")
    for q in range(2):
        a(f"{MF} {v(S[q],16)}, {v(KB[0],4)}, {v(Q[q],4)}, 0")
    a("s_nop 7")
    a("s_nop 7")
    for q in range(2):
        maxtree(S[q], 44 + q, acc=True)
    a("s_sub_u32 s27, s27, 1")
    a("s_cmp_lg_u32 s27, 0")
    a("s_cbranch_scc1 K2_MAXLOOP")
    a("s_branch K2_SETMAX")
    a.label("K2_KVW")
    a(f"s_mov_b32 s74, {SPIN*8}")
    a.label("K2_KVW1")
    a("ds_read_b32 v47, v46")
    a("s_waitcnt lgkmcnt(0)")
    a("v_readfirstlane_b32 s75, v47")
    a("s_sub_u32 s74, s74, 1")
    a("s_cbranch_scc1 K2_NEXT")
    a("s_bitcmp1_b32 s75, 2")
    a("s_cbranch_scc1 K2_NEXT")
    a("s_sleep 1")
    a("s_branch K2_KVW1")

    a.label("K2_GEMM")
    a("v_min_u32 v4, 37, v2")
    a(f"v_mul_u32_u24 v4, {VP}, v4")
    a(f"v_add_u32 v4, {LDS_V + 1024}, v4")
    a("v_min_u32 v36, 27, v2")
    a(f"v_mul_u32_u24 v36, {VP}, v36")
    a(f"v_add_u32 v36, {LDS_V + 1024 + 38*VP}, v36")
    for i in range(4):
        a(f"v_mov_b32 v{40+i}, 0x3f803f80")
        a(f"v_mov_b32 v{44+i}, 0")
    a("ds_write_b128 v4, v[40:43]")
    a("ds_write_b128 v4, v[44:47] offset:16")
    ND, NW = 28 - NDEF, 8
    NG = ND // 4
    NS = 3
    srd(a, 44, 16, 0x1c0000)
    srd(a, 48, 8, 0x80000)
    if FMAP:
        a("s_and_b32 s42, s72, 3")
        a("s_lshl_b32 s42, s42, 1")
        a("s_add_u32 s42, s42, s73")
    else:
        a("s_lshr_b32 s42, s2, 3")
        a("s_and_b32 s43, s42, 7")
        a("s_lshr_b32 s42, s42, 3")
        a("s_lshl_b32 s42, s42, 1")
        a("s_add_u32 s42, s42, s43")
    for _ in range(-(-14 // NG) - 1):
        a(f"s_cmp_ge_u32 s42, {NG}")
        a(f"s_cselect_b32 s43, {NG}, 0")
        a("s_sub_u32 s42, s42, s43")
    if not ROT:
        a("s_mov_b32 s42, 0")
    a("s_mov_b32 s52, s42")
    a(f"s_mul_i32 s32, s23, {ND}")
    a("s_lshl_b32 s43, s42, 2")
    a("s_add_u32 s32, s32, s43")
    a(f"s_mul_i32 s33, s72, {2*144*1024}")
    a(f"s_add_u32 s33, s33, {WS_ACT}")
    a("s_lshl_b32 s43, s32, 10")
    a("s_add_u32 s33, s33, s43")
    a(f"s_add_u32 s34, s33, {144*1024}")
    a("s_lshl_b32 s43, s73, 7")
    a("s_lshl_b32 s35, s32, 14")
    a("s_add_u32 s35, s35, s43")
    a("s_lshl_b32 s39, s23, 17")
    a("s_add_u32 s39, s39, s43")
    a(f"s_mul_i32 s53, s23, {NS*2048}")
    a(f"s_add_u32 s53, s53, {LDS_WS}")
    frag_addrs(a, "s53")
    GA = 16
    FR = 80
    D = 8
    queue = []
    def ld(dst, sr, k, tag):
        a(f"buffer_load_dwordx4 {v(dst,4)}, v3, s[28:31], s{sr} offen offset:{(k%4)*1024}{SC}")
        queue.append(tag)
    def aloads(k):
        b = FR + (k % D) * 16
        ld(b + 4, 33, k, ("a", k)); ld(b + 12, 34, k, ("a", k))
        if k % 4 == 3:
            a("s_add_u32 s42, s42, 1")
            a(f"s_cmp_eq_u32 s42, {NG}")
            a("s_movk_i32 s43, 4096")
            a(f"s_cselect_b32 s43, {(-(NG-1)*4096) & 0xffffffff:#x}, s43")
            a("s_cselect_b32 s42, 0, s42")
            for sr in (33, 34):
                a(f"s_add_u32 s{sr}, s{sr}, s43")
    def wloads(k):
        a(f"s_add_u32 m0, s53, {(k % NS) * 2048}")
        sr, rs = (35, 44) if k < ND else (39, 48)
        a("s_nop 0")
        a(f"buffer_load_dwordx4 v10, s[{rs}:{rs+3}], s{sr} offen lds")
        a(f"buffer_load_dwordx4 v11, s[{rs}:{rs+3}], s{sr} offen offset:1024 lds")
        queue.extend([("w", k)] * 2)
        a(f"s_add_u32 s{sr}, s{sr}, 16384")
        if k < ND and k % 4 == 3:
            a("s_add_u32 s52, s52, 1")
            a(f"s_cmp_eq_u32 s52, {NG}")
            a(f"s_cselect_b32 s43, {(-ND*16384) & 0xffffffff:#x}, 0")
            a("s_cselect_b32 s52, 0, s52")
            a("s_add_u32 s35, s35, s43")
    def waitfor(*tags):
        n = len(queue) - 1 - max(i for i, t in enumerate(queue) if t in tags)
        a(f"s_waitcnt vmcnt({n})")
    def wreads(k):
        b = FR + (k % D) * 16
        for n in range(2):
            for u in range(2):
                a(f"ds_read_b64_tr_b16 {v(b+8*n+2*u,2)}, v{12+n} offset:{(k % NS) * 2048 + u*1024}")
    def mm(k):
        b = FR + (k % D) * 16
        for n in range(2):
            for t in range(2):
                acc = GA + (n * 2 + t) * 16
                cin = "0" if k == 0 else v(acc, 16)
                a(f"{MF} {v(acc,16)}, {v(b+8*n,4)}, {v(b+4+8*t,4)}, {cin}")
    stamp(a, 3)
    a("s_waitcnt vmcnt(8) lgkmcnt(0)")
    a("s_barrier                              ; X1")
    a("s_setprio 3")
    a("s_barrier                              ; X2")
    a("s_cmp_lg_u32 s23, 1")
    a("s_cbranch_scc1 K2_NOB1")
    a("s_lshl_b32 s37, s21, 4")
    a("s_add_u32 s37, s37, s22")
    a("s_lshl_b32 s37, s37, 7")
    a(f"s_add_u32 s37, s37, {FL_B1}")
    flag_store(a, "s37", 16)
    a.label("K2_NOB1")
    a("ds_write_b128 v36, v[40:43]")
    a("ds_write_b128 v36, v[44:47] offset:16")
    kv_loads(9, 16)
    srd(a, 44, 16, 0x1c0000)
    srd(a, 24, 4, 0x200000)
    srd(a, 56, 18, 1024)
    a("s_lshl_b32 s54, s2, 2")
    a("s_add_u32 s54, s54, s23")
    a("s_lshl_b32 s55, s54, 11")
    a("buffer_load_dwordx4 v[20:23], v3, s[56:59], 0 offen")
    a("buffer_load_dwordx4 v[24:27], v3, s[24:27], s55 offen")
    a("buffer_load_dwordx4 v[28:31], v3, s[24:27], s55 offen offset:1024")
    a("v_mov_b32 v32, 0")
    a("v_mov_b32 v33, 0")
    a(f"v_mov_b32 v34, {LDS_SYNC + 4}")
    a("v_mov_b32 v35, 1")
    a("s_waitcnt vmcnt(0)")
    a("s_mov_b64 exec, 1")
    a("ds_add_u32 v34, v35")
    a("s_mov_b64 exec, -1")
    for q in range(4):
        a(f"v_dot2_f32_bf16 v32, v{24+q}, v{20+q}, v32")
        a(f"v_dot2_f32_bf16 v33, v{28+q}, v{20+q}, v33")
    a("s_nop 2")
    a("v_permlane32_swap_b32 v32, v33")
    a("s_nop 1")
    a("v_add_f32 v32, v32, v33")
    for ctl in ("quad_perm:[1,0,3,2]", "quad_perm:[2,3,0,1]", "row_half_mirror", "row_mirror"):
        a("s_nop 1")
        a(f"v_add_f32_dpp v32, v32, v32 {ctl} row_mask:0xf bank_mask:0xf")
    a("v_mov_b32 v33, v32")
    a("s_nop 1")
    a("v_permlane16_swap_b32 v32, v33")
    a("s_nop 1")
    a("v_add_f32 v32, v32, v33")
    a(f"v_mul_f32 v32, {fh(-LOG2E)}, v32")
    a("v_exp_f32 v32, v32")
    a("v_lshrrev_b32 v34, 5, v2")
    a("v_add_f32 v32, 1.0, v32")
    a("v_rcp_f32 v32, v32")
    a("v_lshlrev_b32 v34, 3, v34")
    a("v_mov_b32 v33, s68")
    a("s_lshl_b32 s55, s54, 4")
    a(f"s_add_u32 s55, s55, {WS_G}")
    a("s_mov_b64 exec, 0x100000001".replace("s_mov_b64 exec, 0x100000001", "s_mov_b32 exec_lo, 1\ns_mov_b32 exec_hi, 1"))
    a(f"buffer_store_dwordx2 v[32:33], v34, s[28:31], s55 offen{SC}")
    a("s_mov_b64 exec, -1")
    if WARMW and FMAP:
        a("s_lshr_b32 s54, s2, 3")
        a("s_lshl_b32 s54, s54, 2")
        a("s_add_u32 s54, s54, s23")
        a("s_mul_i32 s55, s54, 14336")
        a("v_min_u32 v14, 55, v2")
        a("v_lshlrev_b32 v14, 7, v14")
        a("buffer_load_dword v15, v14, s[44:47], s55 offen")
        a("s_add_u32 s55, s55, 7168")
        a("buffer_load_dword v15, v14, s[44:47], s55 offen")
        a("s_lshl_b32 s55, s54, 12")
        a("v_and_b32 v14, 31, v2")
        a("v_lshlrev_b32 v14, 7, v14")
        a("buffer_load_dword v15, v14, s[48:51], s55 offen")
    elif WARMW:
        a("s_lshr_b32 s54, s2, 3")
        a("s_and_b32 s54, s54, 7")
        a("s_lshl_b32 s55, s54, 2")
        a("s_add_u32 s55, s55, s23")
        a("s_mul_i32 s55, s55, 57344")
        a("s_add_u32 s55, s55, s43")
        a("v_min_u32 v14, 55, v2")
        a("v_lshlrev_b32 v14, 10, v14")
        a("buffer_load_dword v15, v14, s[44:47], s55 offen")
        a("s_lshl_b32 s55, s54, 2")
        a("s_add_u32 s55, s55, s23")
        a("s_lshl_b32 s55, s55, 14")
        a("s_add_u32 s55, s55, s43")
        a("v_and_b32 v14, 15, v2")
        a("v_lshlrev_b32 v14, 10, v14")
        a("buffer_load_dword v15, v14, s[48:51], s55 offen")
    for k in range(NS):
        wloads(k)
    a("s_setprio 3")
    a("v_and_b32 v6, 15, v2")
    a("v_lshlrev_b32 v6, 7, v6")
    a("s_lshr_b32 s24, s72, 1")
    a("s_lshl_b32 s24, s24, 11")
    a(f"s_add_u32 s24, s24, {FL_B1}")
    poll_shared(a, 1, [("s24", 6, 8, 4)], 20, lslp=4)
    a("v_and_b32 v6, 31, v2")
    a("v_lshlrev_b32 v6, 3, v6")
    a("v_lshlrev_b32 v7, 3, v2")
    a("s_lshl_b32 s54, s72, 9")
    a(f"s_add_u32 s54, s54, {WS_G}")
    a("s_lshl_b32 s55, s71, 2")
    a("s_add_u32 s55, s55, s23")
    a("s_lshl_b32 s55, s55, 9")
    a(f"s_add_u32 s55, s55, {WS_G}")
    a(f"s_mov_b32 s74, {SPIN}")
    a.label("K2_GL")
    a(f"buffer_load_dwordx2 v[240:241], v6, s[28:31], s54 offen{SC}")
    a(f"buffer_load_dwordx2 v[242:243], v6, s[28:31], s54 offen offset:256{SC}")
    a(f"buffer_load_dwordx2 v[244:245], v7, s[28:31], s55 offen{SC}")
    a("s_waitcnt vmcnt(0)")
    a("v_xor_b32 v8, s68, v241")
    a("v_xor_b32 v9, s68, v243")
    a("v_xor_b32 v14, s68, v245")
    a("v_or3_b32 v8, v8, v9, v14")
    a("v_cmp_ne_u32 vcc, 0, v8")
    a("s_sub_u32 s74, s74, 1")
    a("s_cbranch_scc1 K2_GD")
    a("s_cmp_eq_u64 vcc, 0")
    a("s_cbranch_scc1 K2_GD")
    a("s_sleep 4")
    a("s_branch K2_GL")
    a.label("K2_GD")
    a("s_lshl_b32 s55, s23, 8")
    a(f"s_add_u32 s55, s55, {LDS_GQ}")
    a("v_lshrrev_b32 v7, 1, v7")
    a("v_add_u32 v7, s55, v7")
    a("ds_write_b32 v7, v244")
    a("v_sub_f32 v240, 1.0, v240")
    a("v_sub_f32 v242, 1.0, v242")
    a("v_lshrrev_b32 v6, 1, v6")
    a(f"v_add_u32 v6, {LDS_OG}, v6")
    a("ds_write_b32 v6, v240")
    a("ds_write_b32 v6, v242 offset:128")
    a(f"v_mov_b32 v8, {LDS_SYNC + 4}")
    a("v_mov_b32 v9, 16")
    a("s_waitcnt lgkmcnt(0)")
    a("s_mov_b64 exec, 1")
    a("ds_add_u32 v8, v9")
    a("s_mov_b64 exec, -1")
    stamp(a, 4)
    DA = 4
    a("s_setprio 0")
    for k in range(DA):
        aloads(k)
    for k in range(ND + NW):
        waitfor(("w", k), ("a", k))
        wreads(k)
        a("s_waitcnt lgkmcnt(0)")
        if k + NS < ND + NW:
            wloads(k + NS)
        if k + DA < ND:
            aloads(k + DA)
        if k < ND:
            mm(k)
    a("s_setprio 3")
    if NDEF and WARMD:
        assert FMAP
        a(f"s_mul_i32 s33, s72, {2*144*1024}")
        a("s_lshr_b32 s34, s23, 1")
        a(f"s_mul_i32 s34, s34, {144*1024}")
        a("s_add_u32 s33, s33, s34")
        a("s_lshl_b32 s34, s73, 1")
        a("s_and_b32 s35, s23, 1")
        a("s_add_u32 s34, s34, s35")
        a(f"s_mul_i32 s34, s34, {NDEF*256}")
        a("s_add_u32 s33, s33, s34")
        a(f"s_add_u32 s33, s33, {WS_ACT + 4*ND*1024}")
        a(f"v_min_u32 v14, {2*NDEF-1}, v2")
        a("v_lshlrev_b32 v14, 7, v14")
        a(f"buffer_load_dword v15, v14, s[28:31], s33 offen{SC}")
        a("s_and_b32 s34, s72, 3")
        a("s_lshl_b32 s34, s34, 2")
        a("s_add_u32 s34, s34, s23")
        a(f"s_mul_i32 s34, s34, {NDEF*4096}")
        a("s_lshl_b32 s35, s73, 7")
        a("s_add_u32 s34, s34, s35")
        a(f"s_add_u32 s34, s34, {4*ND*16384}")
        a(f"v_min_u32 v14, {4*NDEF-1}, v2")
        a("v_lshlrev_b32 v14, 10, v14")
        a("buffer_load_dword v15, v14, s[44:47], s34 offen")
    a("s_nop 7")
    a("s_nop 7")
    for n in range(2):
        for t in range(2):
            acc = GA + (n * 2 + t) * 16
            for j in range(0, 16, 2):
                a(f"v_pk_mul_f32 {v(acc+j,2)}, {v(acc+j,2)}, {v(240+2*t,2)} op_sel_hi:[1,0]")
    a("s_lshl_b32 s32, s23, 14")
    part_addrs(a, "s32", 212)
    a("s_lshl_b32 s24, s72, 2")
    a("s_add_u32 s24, s24, s23")
    a("s_lshl_b32 s24, s24, 14")
    a(f"s_add_u32 s24, s24, {WS_O}")
    a("v_and_b32 v6, 7, v2")
    a("v_lshlrev_b32 v6, 7, v6")
    a("s_lshl_b32 s26, s72, 12")
    a("s_lshl_b32 s25, s23, 10")
    a("s_add_u32 s26, s26, s25")
    a(f"s_add_u32 s26, s26, {FL_C}")
    a(f"v_mov_b32 v11, {LDS_SYNC + 8}")
    a("v_mov_b32 v10, 16")
    a("s_mov_b64 exec, 1")
    a("ds_add_u32 v11, v10")
    a("s_mov_b64 exec, -1")
    a("s_mov_b32 s54, 0")
    a(f"s_mov_b32 s74, {SPIN}")
    stamp(a, 5)
    stamp(a, 1, 8)
    def c_poll():
        a("v_mov_b32 v8, 0")
        a("v_mov_b32 v9, 0")
        a("s_mov_b64 exec, 0xff")
        a("buffer_atomic_or_x2 v[8:9], v6, s[28:31], s26 offen sc0 sc1")
        a("s_mov_b64 exec, -1")
    def pause():
        if NDEF and PAUSE:
            lab, done = a.newlabel("PZ"), a.newlabel("PZD")
            a(f"s_mov_b32 s76, {SPIN}")
            a.label(lab)
            a("ds_read_b32 v10, v11")
            a("s_waitcnt lgkmcnt(0)")
            a("v_readfirstlane_b32 s75, v10")
            a("s_sub_u32 s76, s76, 1")
            a(f"s_cbranch_scc1 {done}")
            a("s_cmp_ge_u32 s75, 1024")
            a(f"s_cbranch_scc1 {done}")
            a("s_and_b32 s75, s75, 15")
            a(f"s_cbranch_scc0 {done}")
            a("s_sleep 1")
            a(f"s_branch {lab}")
            a.label(done)
    a.label("K3_POLL")
    pause()
    c_poll()
    a.label("K3_ROUND")
    a("s_waitcnt vmcnt(0)")
    a("v_cmp_eq_u64 vcc, s[68:69], v[8:9]")
    a("s_sub_u32 s74, s74, 1")
    a("s_cselect_b32 s55, 0xff, vcc_lo")
    a("s_andn2_b32 s55, s55, s54")
    a("s_cbranch_scc1 K3_SOME")
    a("ds_read_b32 v10, v11")
    a(f"s_sleep {TSLP}")
    a("s_waitcnt lgkmcnt(0)")
    a("v_readfirstlane_b32 s75, v10")
    a("s_and_b32 s75, s75, 15")
    a("s_cbranch_scc1 K3_POLL")
    a(f"s_sleep {PSLOW}")
    a("s_branch K3_POLL")
    a.label("K3_SOME")
    pause()
    a("s_or_b32 s54, s54, s55")
    for kk in range(NW):
        b = FR + ((ND + kk) % D) * 16
        a(f"s_bitcmp1_b32 s55, {kk}")
        a(f"s_cbranch_scc0 K3_L{kk}")
        a(f"s_add_u32 s25, s24, {kk*2048}")
        a(f"buffer_load_dwordx4 {v(b+4,4)}, v3, s[28:31], s25 offen{SC}")
        a(f"buffer_load_dwordx4 {v(b+12,4)}, v3, s[28:31], s25 offen offset:1024{SC}")
        a.label(f"K3_L{kk}")
    a("s_cmp_eq_u32 s54, 0xff")
    a("s_cbranch_scc1 K3_LAST")
    c_poll()
    a.label("K3_LAST")
    a("ds_read_b32 v10, v11")
    a("s_waitcnt vmcnt(0)")
    for kk in range(NW):
        a(f"s_bitcmp1_b32 s55, {kk}")
        a(f"s_cbranch_scc0 K3_C{kk}")
        mm(ND + kk)
        a.label(f"K3_C{kk}")
    a("s_cmp_lg_u32 s54, 0xff")
    a("s_cbranch_scc1 K3_ROUND")
    stamp(a, 6)
    stamp(a, 2, 8)
    lds_wait(a, 11, 10, ["s_bitcmp1_b32 s75, 2"], first_read=False)
    for i in range(3, 6):
        stamp(a, i, 8)
    a("s_nop 7")
    part_write(a, GA, 212)
    a.label("K3_REDUCE")
    srd(a, 24, 64, 0x200000)
    a("s_lshl_b32 s32, s20, 6")
    a("v_add_u32 v0, s32, v2                  ; tid")
    a("v_lshrrev_b32 v7, 3, v0                ; token")
    a("v_and_b32 v5, 7, v0")
    a("v_lshlrev_b32 v6, 1, v5")
    a("v_and_b32 v8, 7, v7")
    a("v_xor_b32 v6, v6, v8")
    a("v_lshlrev_b32 v6, 4, v6")
    a("v_lshl_add_u32 v6, v7, 8, v6")
    a("v_xor_b32 v8, 16, v6")
    a("v_add_u32 v9, 0x10000, v6")
    a("v_add_u32 v10, 0x10000, v8")
    a("v_lshlrev_b32 v7, 10, v7")
    a("v_lshl_add_u32 v7, v5, 4, v7")
    a("s_lshl_b32 s32, s72, 16")
    a("s_lshl_b32 s33, s73, 7")
    a("s_add_u32 s32, s32, s33")
    a("s_waitcnt lgkmcnt(0)")
    a("s_barrier                              ; Y1")
    stamp(a, 6, 8)
    NP = 8 if NDEF else 4
    RB = 96
    for w in range(NP):
        off = w * 16384 if w < 4 else (w - 4) * DSTG
        r0, r1 = (6, 8) if w < 4 else (9, 10)
        if off > 65535:
            a("v_add_u32 v9, 0x8000, v9")
            a("v_add_u32 v10, 0x8000, v10")
            off -= 0x8000
        a(f"ds_read_b128 {v(RB+8*w,4)}, v{r0} offset:{off}")
        a(f"ds_read_b128 {v(RB+4+8*w,4)}, v{r1} offset:{off}")
    for w in range(1, NP):
        a(f"s_waitcnt lgkmcnt({2*(NP-1-w)})")
        for j in range(0, 8, 2):
            a(f"v_pk_add_f32 {v(RB+j,2)}, {v(RB+j,2)}, {v(RB+8*w+j,2)}")
    for j in range(0, 8, 2):
        a(f"v_cvt_pk_bf16_f32 v{16+j//2}, v{RB+j}, v{RB+j+1}")
    a("buffer_store_dwordx4 v[16:19], v7, s[24:27], s32 offen" + (" " + OUTSC if OUTSC else ""))
    if PADEND:
        pad_until(a, PADEND)
    stamp_flush(a, 8)
    a.label("K_EXIT")
    a("s_endpgm")
    a.label("K_END")

def main():
    hdr = open("cdna_kernels/" + NAME + ".s.ref").read().split("\n")
    top = [l for l in hdr if l.startswith(";") and "@launch" not in l]
    out = "\n".join(top) + "\n"
    out += f"; @launch grid=(256,1,1) block=(512,1,1) lds={LDS_TOTAL}\n"
    out += '.amdgcn_target "amdgcn-amd-amdhsa--gfx950"\n.text\n'
    a = Asm()
    gen(a)
    out += a.text()
    out += '.section .rodata,"a"\n'
    out += kernel_desc(KNAME, 256, 102)
    path = sys.argv[1] if len(sys.argv) > 1 else "cdna_kernels/" + NAME + ".s"
    open(path, "w").write(out)

main()
```

```python
import sys, math, os
from asmlib import *

NAME = "gated_mix__softmax_full_mha__geglu_ffn__prompt"
KNAME = NAME + "_kernel"
LOG2E = 1.4426950408889634
def env(n, d): return int(os.environ.get(n, str(d)))
PROF = env("PROF", 0)
ROT = env("ROT", 1)
TAGPOS = env("TAGPOS", 0)
PADEND = env("PADEND", 0)
PADATT = env("PADATT", 0)
DBGWG = env("DBGWG", -1)
TLBW = env("TLBW", 0)
PFW = env("PFW", 0)
PFI = env("PFI", 1)
PFX = env("PFX", 0)
KVROT = env("KVROT", 1)
AFLAG = env("AFLAG", 10)
PFC = env("PFC", -1)
ONEP = env("ONEP", 0)
FMAP = env("FMAP", 0)
NOTAG = env("NOTAG", 0)
ROT1 = env("ROT1", 2)
OUTSC = os.environ.get("OUTSC", "sc1")
GPK = env("GPK", 1)
UA = env("UA", 16)
PRE = env("PRE", 2)
QLD = env("QLD", 4)
WARMW = env("WARMW", 0)
ROT2 = env("ROT2", 1)
NDEF = env("NDEF", 0)
WARMD = env("WARMD", 1)
PSLOW = env("PSLOW", 16)
PAUSE = env("PAUSE", 1)
KVV = env("KVV", 2)
FASTX = env("FASTX", 1)
NFILL = env("NFILL", 4)
AHD = env("AHD", 6)
ATPOLL = env("ATPOLL", 1)
HINTW = env("HINTW", 0)
TSLP = env("TSLP", 2)
SPF = env("SPF", 0)
CODEPF = env("CODEPF", 1)
SLP = env("SLP", 4)

WS_Q = 0x0
WS_K = 0x200000
WS_V = 0x400000
WS_ACT = 0x600000
WS_O = 0xF00000
WS_G = 0x1240000
WS_FL = 0x1280000
FL_A = WS_FL
FL_B1 = WS_FL + 0x8000
FL_B2 = WS_FL + 0x10000
FL_C = WS_FL + 0x20000
WS_STAMP = 0x1800000
WS_SIZE = 0x2000000

SL = 40960
RING = 38912
LDS_GQ = 162176
LDS_OG = 163200
LDS_TAG = 163584
LDS_SYNC = LDS_TAG + 8
LDS_TOTAL = 163840
TP = 2080
LDS_V = 1024
VP = TP
LDS_WS = 137472
DSTG = 22528
LDS_Q = RING + 2 * SL + 32768
def slot_of(c):
    return RING + ((c + 2) % 3) * SL

SC = " sc1"
SPIN = 200000
MF = "v_mfma_f32_32x32x16_bf16"

def srd(a, d, base, nbytes):
    a(f"s_mov_b32 s{d}, s{base}")
    a(f"s_mov_b32 s{d+1}, s{base+1}")
    a(f"s_mov_b32 s{d+2}, {nbytes:#x}")
    a(f"s_mov_b32 s{d+3}, 0x20000")

def stamp(a, i, lvl=1):
    if PROF and (PROF == lvl or i in (0, 7)):
        a("s_memrealtime s[96:97]")
        a("s_memtime s[98:99]")
        a("s_waitcnt lgkmcnt(0)")
        a(f"s_mov_b32 s{80+i}, s96")
        a(f"s_mov_b32 s{88+i}, s98")

def stamp_flush(a, n):
    if PROF:
        a("s_waitcnt vmcnt(0)")
        stamp(a, n - 1)
        a("s_lshl_b32 s78, s2, 4")
        a("s_add_u32 s78, s78, s20")
        a("s_lshl_b32 s78, s78, 6")
        a(f"s_add_u32 s78, s78, {WS_STAMP}")
        a("v_mov_b32 v1, 0")
        for i in range(n):
            a(f"v_mov_b32 v0, s{80+i}")
            a(f"buffer_store_dword v0, v1, s[28:31], s78 offen offset:{4*i}")
            a("s_nop 1")
            a(f"v_mov_b32 v0, s{88+i}")
            a(f"buffer_store_dword v0, v1, s[28:31], s78 offen offset:{32+4*i}")
            a("s_nop 1")
        a("s_waitcnt vmcnt(0)")
        if DBGWG >= 0:
            a(f"s_cmp_lg_u32 s2, {DBGWG}")
            a("s_cbranch_scc1 DBG_SKIP")
            a("s_and_b32 s78, s20, 3")
            a("s_cmp_lg_u32 s78, 0")
            a("s_cbranch_scc1 DBG_SKIP")
            a("s_mul_i32 s78, s20, 7")
            a("v_mov_b32 v1, s78")
            for i in range(1, n):
                a(f"s_sub_u32 s79, s{80+i}, s80")
                a("v_mov_b32 v0, s79")
                a(f"global_store_dword v1, v0, s[66:67] offset:{4+4*i}")
                a("s_nop 1")
            a("s_waitcnt vmcnt(0)")
            a.label("DBG_SKIP")

def pad_until(a, ticks):
    lab = a.newlabel("PAD")
    a.label(lab)
    a("s_memrealtime s[96:97]")
    a("s_waitcnt lgkmcnt(0)")
    a("s_sub_u32 s96, s96, s68")
    a(f"s_cmp_lt_u32 s96, {ticks}")
    a(f"s_cbranch_scc1 {lab}")

def flag_store(a, soff, vtmp):
    a(f"v_mov_b32 v{vtmp}, s68")
    a(f"v_mov_b32 v{vtmp+1}, s69")
    a(f"v_mov_b32 v{vtmp+2}, 0")
    a("s_mov_b64 exec, 1")
    a(f"buffer_store_dwordx2 {v(vtmp,2)}, v{vtmp+2}, s[28:31], {soff} offen sc1")
    a("s_mov_b64 exec, -1")

def poll(a, soff, voff, vtmp, slp=None):
    lab = a.newlabel("POLL")
    done = a.newlabel("POLLD")
    a(f"s_mov_b32 s74, {SPIN}")
    a.label(lab)
    a(f"buffer_load_dwordx2 {v(vtmp,2)}, v{voff}, s[28:31], {soff} offen sc1")
    a("s_waitcnt vmcnt(0)")
    a(f"v_xor_b32 v{vtmp}, s68, v{vtmp}")
    a(f"v_xor_b32 v{vtmp+1}, s69, v{vtmp+1}")
    a(f"v_or_b32 v{vtmp}, v{vtmp}, v{vtmp+1}")
    a(f"v_cmp_ne_u32 vcc, 0, v{vtmp}")
    a("s_sub_u32 s74, s74, 1")
    a("s_cmp_eq_u32 s74, 0")
    a(f"s_cbranch_scc1 {done}")
    a("s_cmp_eq_u64 vcc, 0")
    a(f"s_cbranch_scc1 {done}")
    a(f"s_sleep {SLP if slp is None else slp}")
    a(f"s_branch {lab}")
    a.label(done)

def poll_shared(a, stage, polls, vtmp, lslp=1, extra=None):
    other = a.newlabel("PSO")
    done = a.newlabel("PSD")
    a(f"v_mov_b32 v{vtmp+3}, {LDS_SYNC}")
    a("s_cmp_lg_u32 s23, 0")
    a(f"s_cbranch_scc1 {other}")
    for p in polls:
        poll(a, *p)
    if extra:
        extra()
    a(f"v_mov_b32 v{vtmp}, {stage}")
    a(f"ds_write_b32 v{vtmp+3}, v{vtmp}")
    a(f"s_branch {done}")
    a.label(other)
    a(f"s_mov_b32 s74, {SPIN*8}")
    lab = a.newlabel("PSL")
    a.label(lab)
    a(f"ds_read_b32 v{vtmp}, v{vtmp+3}")
    a("s_waitcnt lgkmcnt(0)")
    a(f"v_readfirstlane_b32 s75, v{vtmp}")
    a("s_sub_u32 s74, s74, 1")
    a("s_cmp_eq_u32 s74, 0")
    a(f"s_cbranch_scc1 {done}")
    a(f"s_cmp_ge_u32 s75, {stage}")
    a(f"s_cbranch_scc1 {done}")
    a(f"s_sleep {lslp}")
    a(f"s_branch {lab}")
    a.label(done)

def cvt_tile(a, acc, dst, lo=0, hi=16):
    for i in range(lo, hi, 2):
        a(f"v_cvt_pk_bf16_f32 v{dst + (i - lo)//2}, v{acc+i}, v{acc+i+1}")

def frag_addrs(a, sbase):
    a("v_lshrrev_b32 v4, 3, v2")
    a("v_and_b32 v5, 7, v2")
    a("v_bfe_u32 v7, v2, 4, 1")
    a("v_lshlrev_b32 v7, 2, v7")
    a("v_xor_b32 v5, v5, v7")
    a("v_lshlrev_b32 v5, 4, v5")
    a("v_lshl_add_u32 v10, v4, 10, v5")
    a("v_add_u32 v11, 7168, v10")
    a("v_bfe_u32 v4, v2, 2, 2")
    a("v_lshrrev_b32 v5, 5, v2")
    a("v_lshl_add_u32 v5, v5, 2, v4")
    a("v_lshlrev_b32 v5, 7, v5")
    a("v_lshrrev_b32 v4, 1, v4")
    a("v_lshl_add_u32 v5, v4, 6, v5")
    a("v_bfe_u32 v4, v2, 4, 1")
    a("v_lshl_add_u32 v5, v4, 5, v5")
    a("v_and_b32 v4, 3, v2")
    a("v_lshl_add_u32 v5, v4, 3, v5")
    a("v_xor_b32 v13, 64, v5")
    a(f"v_add_u32 v12, {sbase}, v5")
    a(f"v_add_u32 v13, {sbase}, v13")

def part_addrs(a, sbase, r):
    a(f"v_lshrrev_b32 v{r}, 5, v2")
    a(f"v_and_b32 v{r+1}, 7, v2")
    a(f"v_xor_b32 v{r}, v{r}, v{r+1}")
    a(f"v_and_b32 v{r+1}, 31, v2")
    a(f"v_lshlrev_b32 v{r+1}, 8, v{r+1}")
    a(f"v_lshl_add_u32 v{r}, v{r}, 4, v{r+1}")
    for g in range(1, 4):
        a(f"v_xor_b32 v{r+g}, {32*g}, v{r}")
    for g in range(4):
        a(f"v_add_u32 v{r+g}, {sbase}, v{r+g}")

def part_write(a, GA, r):
    for n in range(2):
        for t in range(2):
            acc = GA + (n * 2 + t) * 16
            for g in range(4):
                a(f"ds_write_b128 v{r+g}, {v(acc+4*g,4)} offset:{t*8192 + n*128}")

def lds_wait(a, vaddr, vdst, cmp_lines, first_read=True):
    lab, done = a.newlabel("LW"), a.newlabel("LWD")
    a(f"s_mov_b32 s74, {SPIN*8}")
    if first_read:
        a(f"ds_read_b32 v{vdst}, v{vaddr}")
    a.label(lab)
    a("s_waitcnt lgkmcnt(0)")
    a(f"v_readfirstlane_b32 s75, v{vdst}")
    a("s_sub_u32 s74, s74, 1")
    a(f"s_cbranch_scc1 {done}")
    for l in cmp_lines:
        a(l)
    a(f"s_cbranch_scc1 {done}")
    a("s_sleep 1")
    a(f"ds_read_b32 v{vdst}, v{vaddr}")
    a(f"s_branch {lab}")
    a.label(done)

def gen(a):
    kernel_header(a, KNAME)
    if PROF == 7:
        a("s_memrealtime s[100:101]")
    a("s_cmp_ge_u32 s2, 256")
    a("s_cbranch_scc1 K_EXIT")
    a("s_load_dwordx4 s[4:7], s[0:1], 0       ; x, wqkv")
    a("v_lshrrev_b32 v1, 6, v0")
    a("v_and_b32 v2, 63, v0                   ; lane")
    a("v_readfirstlane_b32 s20, v1")
    VX0, VX1, VR0, VR1, VKV = 10, 11, 12, 13, 14
    if FASTX:
        assert ROT1 == 2 and PRE == 2
        a("v_lshrrev_b32 v4, 3, v2")
        a("v_and_b32 v5, 7, v2")
        a("v_lshrrev_b32 v6, 4, v2")
        a("v_xor_b32 v7, v5, v6")
        a("v_lshlrev_b32 v7, 4, v7")
        a(f"v_lshl_add_u32 v{VX0}, v4, 10, v7")
        a(f"v_xor_b32 v{VX1}, 64, v{VX0}")
        a("s_bfe_u32 s63, s2, 0x30003")
        a("s_and_b32 s40, s2, 1")
        a("s_lshl_b32 s40, s40, 3")
        a("s_add_u32 s40, s40, s63                ; rb")
        a("s_lshl_b32 s40, s40, 2")
        a("s_and_b32 s42, s20, 3")
        a("s_add_u32 s40, s40, s42")
        a("s_lshl_b32 s40, s40, 15")
        a("s_lshl_b32 s42, s42, 12")
        a("s_lshr_b32 s37, s2, 6")
        a("s_add_u32 s37, s37, s63")
        a("s_lshl_b32 s37, s37, 1")
        a("s_lshr_b32 s38, s20, 2")
        a("s_add_u32 s37, s37, s38")
        a("s_and_b32 s37, s37, 7")
        a("s_lshl_b32 s37, s37, 7")
        a("s_add_u32 s37, s37, s40")
        a("s_cmp_lt_u32 s20, 4")
        a(f"s_mov_b32 s38, {slot_of(1)}")
        a(f"s_cselect_b32 s38, {slot_of(0)}, s38")
        a("s_add_u32 s38, s38, s42")
        a("s_mov_b32 s46, 0x200000")
        a("s_mov_b32 s47, 0x20000")
        a("s_waitcnt lgkmcnt(0)")
        a("s_mov_b64 s[44:45], s[4:5]")
        for i in range(4):
            a(f"s_add_u32 m0, s38, {i*1024}")
            a(f"s_add_u32 s39, s37, {i*8192}")
            a(f"buffer_load_dwordx4 v{VX1 if i & 1 else VX0}, s[44:47], s39 offen lds")
    a("s_load_dwordx4 s[12:15], s[0:1], 32")
    a("s_load_dwordx2 s[8:9], s[0:1], 16      ; wo")
    a("s_load_dwordx2 s[10:11], s[0:1], 80    ; ws")
    a("s_load_dwordx4 s[16:19], s[0:1], 48")
    a("s_load_dwordx4 s[64:67], s[0:1], 64")
    a("v_lshlrev_b32 v3, 4, v2                ; lane*16")
    stamp(a, 0)
    a("s_and_b32 s24, s2, 1                   ; xh")
    a("s_bfe_u32 s25, s2, 0x20001             ; xq")
    a("s_lshr_b32 s26, s2, 3                  ; j")
    a("s_and_b32 s63, s26, 7")
    a("s_lshl_b32 s21, s24, 3")
    a("s_add_u32 s21, s21, s63                ; rb")
    a("s_lshr_b32 s27, s26, 3")
    a("s_mul_i32 s22, s25, 3")
    a("s_add_u32 s22, s22, s27")
    a("s_add_u32 s23, s25, 12")
    a("s_cmp_eq_u32 s27, 3")
    a("s_cselect_b32 s22, s23, s22            ; cb2")
    if FMAP:
        a("s_and_b32 s72, s2, 7")
        a("s_lshl_b32 s72, s72, 2")
        a("s_and_b32 s73, s26, 3")
        a("s_add_u32 s72, s72, s73                ; rb64")
        a("s_lshr_b32 s73, s26, 2                 ; cb64")
    else:
        a("s_lshl_b32 s72, s25, 3")
        a("s_add_u32 s72, s72, s63                ; rb64")
        a("s_lshl_b32 s73, s24, 2")
        a("s_add_u32 s73, s73, s27                ; cb64")
    if ROT1 == 1:
        a("s_lshl_b32 s27, s27, 1")
        a("s_add_u32 s63, s63, s27")
    elif ROT1 == 2:
        a("s_add_u32 s63, s63, s27")
        a("s_lshl_b32 s63, s63, 1")
    elif ROT1 == 3:
        a("s_add_u32 s63, s63, s27")
        a("s_lshl_b32 s63, s63, 2")
    a(f"s_and_b32 s63, s63, {7 if ROT1 else 0}")
    a("s_and_b32 s70, s2, 7")
    a("s_lshl_b32 s70, s70, 2")
    a("s_and_b32 s27, s26, 3")
    a("s_add_u32 s70, s70, s27                ; head")
    a("s_lshr_b32 s71, s26, 2                 ; qb")
    a("s_cmp_lt_u32 s20, 4")
    a("s_cbranch_scc1 K1_COMPUTE")

    a("s_sub_u32 s23, s20, 4                  ; L")
    if not FASTX:
        a("v_lshrrev_b32 v4, 3, v2")
        a("v_and_b32 v5, 7, v2")
        a("v_lshrrev_b32 v6, 4, v2")
        a("v_xor_b32 v7, v5, v6")
        a("v_lshlrev_b32 v7, 4, v7")
        a(f"v_lshl_add_u32 v{VX0}, v4, 10, v7")
        a(f"v_xor_b32 v{VX1}, 64, v{VX0}")
    a("v_and_b32 v7, 1, v6")
    a("v_lshlrev_b32 v7, 2, v7")
    a("v_xor_b32 v7, v7, v5")
    a("v_lshlrev_b32 v7, 4, v7")
    a("v_mul_u32_u24 v8, 3072, v4")
    a(f"v_add_u32 v{VKV}, v8, v7")
    a("v_mul_u32_u24 v8, 3584, v4")
    a("v_add_u32 v15, v8, v7")
    a("s_cmp_lt_u32 s22, 12")
    a("s_cselect_b64 vcc, -1, 0")
    a("s_movk_i32 s60, 3072")
    a("s_cselect_b32 s60, 3584, s60")
    a(f"v_cndmask_b32 v{VR0}, v{VKV}, v15, vcc")
    a(f"v_xor_b32 v{VR1}, 32, v{VR0}")
    a("s_cselect_b32 s32, 0, 12")
    a("s_sub_u32 s32, s22, s32")
    a("s_lshl_b32 s32, s32, 8")
    a("s_lshl_b32 s61, s22, 1")
    a("s_add_u32 s61, s61, 1")
    a("s_add_u32 s34, s22, 12")
    a("s_cmp_lt_u32 s22, 12")
    a("s_cselect_b32 s33, 0, 128              ; R1 - R0")
    a("s_cselect_b32 s61, s61, s34")
    a("s_lshl_b32 s61, s61, 7")
    a("s_mul_i32 s34, s23, 57344")
    a("s_add_u32 s61, s61, s34")
    a("s_lshl_b32 s34, s23, 4")
    a("s_mul_i32 s34, s34, s60")
    a("s_add_u32 s32, s32, s34")
    a("s_lshl_b32 s62, s60, 6")
    a("s_lshl_b32 s36, s60, 3                 ; 8 rows")
    a("s_mul_i32 s34, s23, 49152")
    a("s_lshl_b32 s35, s22, 7")
    a("s_add_u32 s34, s34, s35")
    a("s_add_u32 s34, s34, 1024")
    if not FASTX:
        a("s_lshl_b32 s40, s21, 17")
        a("s_lshl_b32 s41, s23, 15")
        a("s_add_u32 s40, s40, s41                ; x base")
        a("s_lshl_b32 s42, s23, 12")
    a("s_lshl_b32 s35, s23, 11")
    a("s_mov_b32 s43, s63                     ; kc")
    a("s_waitcnt lgkmcnt(0)")
    srd(a, 24, 4, 0x200000)
    srd(a, 44, 6, 0x180000)
    a("s_cmp_lt_u32 s22, 12")
    a("s_cselect_b64 s[48:49], s[12:13], s[6:7]")
    a("s_cselect_b64 s[52:53], s[14:15], s[6:7]")
    a("s_cselect_b32 s50, 0x1c0000, s46")
    a("s_mov_b32 s54, s50")
    a("s_mov_b32 s51, 0x20000")
    a("s_mov_b32 s55, 0x20000")
    queue = []
    def issue(c):
        slot = slot_of(c)
        a("s_lshl_b32 s37, s43, 7")
        a("s_add_u32 s37, s37, s40")
        a("s_mul_i32 s38, s43, s62")
        a("s_add_u32 s38, s38, s32")
        for i in range(2):
            a(f"s_add_u32 m0, s35, {slot + 16384 + i*1024}")
            a("s_add_u32 s39, s38, s33")
            a(f"buffer_load_dwordx4 v{VR0}, s[48:51], s38 offen lds")
            a(f"s_add_u32 m0, s35, {slot + 24576 + i*1024}")
            a("s_add_u32 s38, s38, s36")
            a(f"buffer_load_dwordx4 v{VR1}, s[52:55], s39 offen lds")
        if c < 8:
            a("s_mul_i32 s38, s43, 196608")
            a("s_add_u32 s38, s38, s34")
            for i in range(2):
                a(f"s_add_u32 m0, s35, {slot + 32768 + i*1024}")
                a(f"s_add_u32 s39, s38, {i*24576}")
                a(f"buffer_load_dwordx4 v{VKV}, s[44:47], s39 offen lds")
        nox = FASTX and c < 2
        for i in range(0 if nox else 4):
            a(f"s_add_u32 m0, s42, {slot + i*1024}")
            a(f"s_add_u32 s39, s37, {i*8192}")
            a(f"buffer_load_dwordx4 v{VX1 if i & 1 else VX0}, s[24:27], s39 offen lds")
        a("s_add_u32 s43, s43, 1")
        a("s_and_b32 s43, s43, 7")
        if c == 7:
            if ROT2:
                a("s_and_b32 s43, s21, 7")
            a("s_mov_b32 s32, s61")
            a("s_mov_b32 s33, 0")
            a("s_mov_b32 s62, 229376")
            a("s_mov_b32 s36, 28672")
            a("s_mov_b64 s[48:49], s[12:13]")
            a("s_mov_b64 s[52:53], s[14:15]")
            a("s_mov_b32 s50, 0x1c0000")
            a("s_mov_b32 s54, 0x1c0000")
            a(f"v_mov_b32 v{VR0}, v15")
            a(f"v_xor_b32 v{VR1}, 32, v15")
        queue.extend([c] * ((10 if c < 8 else 8) - (4 if nox else 0)))
    def waitq(tag):
        n = len(queue) - 1 - max(i for i, t in enumerate(queue) if t == tag)
        a(f"s_waitcnt vmcnt({n})")
    stamp(a, 2, 7)
    if PROF == 7:
        a("s_mov_b32 s81, s80")
        a("s_mov_b32 s80, s100")
    issue(0)
    stamp(a, 3, 7)
    if PRE == 2:
        issue(1)
    stamp(a, 4, 7)
    stamp(a, 1)
    srd(a, 28, 10, WS_SIZE)
    a("v_mov_b32 v9, 0")
    a("s_add_u32 s37, s2, s20")
    a("s_cmp_eq_u32 s37, 4")
    a("s_cbranch_scc0 K1_NOTAG")
    a("s_memrealtime s[56:57]")
    a("s_waitcnt lgkmcnt(0)")
    a("s_or_b32 s56, s56, 1")
    a("s_or_b32 s57, s57, 0x80000000")
    a("v_mov_b32 v4, s56")
    a("v_mov_b32 v5, s57")
    a("s_mov_b64 exec, 1")
    a("global_store_dwordx2 v9, v[4:5], s[66:67] sc1")
    a("s_mov_b64 exec, -1")
    a.label("K1_NOTAG")
    def get_tag():
        lab, done = a.newlabel("TAG"), a.newlabel("TAGD")
        a(f"s_mov_b32 s74, {SPIN}")
        a("v_readfirstlane_b32 s68, v60")
        a("v_readfirstlane_b32 s69, v61")
        a.label(lab)
        a("s_sub_u32 s74, s74, 1")
        a(f"s_cbranch_scc1 {done}")
        a("s_min_u32 s75, s68, s69")
        a("s_cmp_lg_u32 s75, 0")
        a(f"s_cbranch_scc1 {done}")
        a("global_load_dwordx2 v[60:61], v9, s[66:67] sc1")
        a("s_waitcnt vmcnt(0)")
        a("v_readfirstlane_b32 s68, v60")
        a("v_readfirstlane_b32 s69, v61")
        a("s_sleep 2")
        a(f"s_branch {lab}")
        a.label(done)
        a(f"v_mov_b32 v4, {LDS_TAG}")
        a("v_mov_b32 v60, s68")
        a("v_mov_b32 v61, s69")
        a("ds_write_b64 v4, v[60:61]")
        a("ds_write_b32 v4, v9 offset:8")
        a("ds_write_b32 v4, v9 offset:12")
        a("ds_write_b32 v4, v9 offset:16")
        a("ds_write_b32 v4, v9 offset:20")
        a("s_waitcnt lgkmcnt(0)")
    def flag_a():
        lab = a.newlabel("FA")
        a("s_cmp_lg_u32 s23, 1")
        a(f"s_cbranch_scc1 {lab}")
        a("s_lshl_b32 s37, s22, 4")
        a("s_add_u32 s37, s37, s21")
        a("s_lshl_b32 s37, s37, 7")
        a(f"s_add_u32 s37, s37, {FL_A}")
        flag_store(a, "s37", 16)
        a.label(lab)
    def kv_setup():
        a("v_and_b32 v5, 15, v2")
        a("v_lshlrev_b32 v5, 7, v5")
        a("v_bfe_u32 v6, v2, 4, 1")
        a("v_lshl_add_u32 v5, v6, 14, v5")
        a("s_and_b32 s56, s2, 7")
        a("s_lshr_b32 s57, s56, 1")
        a("s_add_u32 s57, s57, 12")
        a("s_sub_u32 s57, s57, s56")
        a("s_lshl_b32 s57, s57, 11")
        a("s_lshl_b32 s58, s71, 8")
        a("s_add_u32 s57, s57, s58")
        a("v_and_b32 v6, 1, v2")
        a("v_lshlrev_b32 v6, 7, v6")
        a("v_add_u32 v6, s57, v6")
        a("v_cmp_gt_u32 vcc, 32, v2")
        a("s_lshl_b32 s56, s56, 11")
        a(f"s_add_u32 s56, s56, {FL_A}")
        a("v_cndmask_b32 v5, v6, v5, vcc")
        a("s_lshl_b32 s57, s70, 16")
        a("s_lshl_b32 s58, s23, 10")
        a("s_add_u32 s57, s57, s58                ; head*64K + L*1K")
        a(f"s_add_u32 s57, s57, {WS_K}")
        a(f"s_mul_i32 s58, s23, {TP}")
    def kv_loads(lo, hi):
        n = hi - lo
        a(f"s_mul_i32 s44, s71, {n}")
        a("s_lshr_b32 s44, s44, 3")
        for i in range(n):
            a(f"s_mul_i32 s45, s44, {4*TP}")
            a("s_add_u32 s45, s45, s58")
            a(f"s_add_u32 m0, s45, {lo*4*TP}")
            a("s_lshl_b32 s37, s44, 12")
            a("s_add_u32 s37, s37, s57")
            a(f"s_add_u32 s38, s37, {lo*4096}")
            a(f"buffer_load_dwordx4 v3, s[28:31], s38 offen{SC} lds")
            a(f"s_add_u32 m0, s45, {lo*4*TP + 1024}")
            a(f"s_add_u32 s38, s37, {lo*4096 + WS_V - WS_K}")
            a(f"buffer_load_dwordx4 v3, s[28:31], s38 offen{SC} lds")
            if i < n - 1:
                a("s_add_u32 s44, s44, 1")
                a(f"s_cmp_eq_u32 s44, {n}")
                a("s_cselect_b32 s44, 0, s44")
        queue.extend(["kv"] * (2 * n))
    def q_loads():
        a("s_lshl_b32 s37, s70, 6")
        a("s_lshl_b32 s38, s71, 3")
        a("s_add_u32 s37, s37, s38")
        a("s_lshl_b32 s38, s23, 1")
        a("s_add_u32 s37, s37, s38")
        a("s_lshl_b32 s37, s37, 10")
        a("s_lshl_b32 s38, s23, 11")
        a(f"s_add_u32 m0, s38, {LDS_Q}")
        a("s_nop 0")
        a(f"buffer_load_dwordx4 v3, s[28:31], s37 offen{SC} lds")
        a(f"buffer_load_dwordx4 v3, s[28:31], s37 offen offset:1024{SC} lds")
    def fa_load():
        a("buffer_load_dwordx2 v[20:21], v5, s[28:31], s56 offen sc1")
    def fa_test():
        a("v_xor_b32 v20, s68, v20")
        a("v_xor_b32 v21, s69, v21")
        a("v_or_b32 v20, v20, v21")
        a("v_cmp_ne_u32 vcc, 0, v20")
        a("s_nop 1")
        a("s_cmp_eq_u64 vcc, 0")
    for c in range(14):
        waitq(c)
        if c == 6:
            get_tag()
        if c < 2:
            stamp(a, c + 5, 7)
        if c < 6:
            stamp(a, c + 1, 2)
        if 6 <= c < 12:
            stamp(a, c - 5, 3)
        if c >= 10:
            stamp(a, c - 9, 4)
        a(f"s_barrier                              ; b({c})")
        if c == 8:
            stamp(a, 2)
        if c == 4:
            a("global_load_dwordx2 v[60:61], v9, s[66:67] sc1")
        if c == AFLAG:
            flag_a()
        if c == 12:
            kv_setup()
        if c == 0 and PRE == 1:
            issue(1)
        if c + 2 < 16:
            issue(c + 2)
        if c == PFC:
            a("s_cmp_ge_u32 s23, 2")
            a("s_cbranch_scc1 K1_NOPF2")
            a("s_cmp_eq_u32 s23, 0")
            a("s_cselect_b64 s[56:57], s[12:13], s[14:15]")
            a("s_mov_b32 s58, 0x1c0000")
            a("s_mov_b32 s59, 0x20000")
            a("v_mul_u32_u24 v16, 3584, v2")
            a("s_mul_i32 s37, s23, 57344")
            a("s_sub_u32 s37, s61, s37")
            a("s_and_b32 s38, s21, 7")
            a("s_mul_i32 s38, s38, 229376")
            a("s_add_u32 s37, s37, s38")
            a("buffer_load_dword v17, v16, s[56:59], s37 offen")
            a.label("K1_NOPF2")
    srd(a, 48, 18, 1024)
    a("s_lshl_b32 s76, s2, 2")
    a("s_add_u32 s76, s76, s23")
    a("s_lshl_b32 s55, s76, 11")
    a("buffer_load_dwordx4 v[64:67], v3, s[48:51], 0 offen")
    a("buffer_load_dwordx4 v[24:27], v3, s[24:27], s55 offen")
    a("buffer_load_dwordx4 v[28:31], v3, s[24:27], s55 offen offset:1024")
    fa_load()
    a("s_waitcnt vmcnt(4)")
    a("s_barrier                              ; b(14)")
    a("s_waitcnt vmcnt(0)")
    fa_test()
    a("s_cbranch_scc1 KV_GO")
    poll(a, "s56", 5, 8, 1)
    a.label("KV_GO")
    q_loads()
    kv_loads(0, 3)
    a("v_mov_b32 v32, 0")
    a("v_mov_b32 v33, 0")
    for q in range(4):
        a(f"v_dot2_f32_bf16 v32, v{24+q}, v{64+q}, v32")
        a(f"v_dot2_f32_bf16 v33, v{28+q}, v{64+q}, v33")
    a("s_nop 2")
    a("v_permlane32_swap_b32 v32, v33")
    a("s_nop 1")
    a("v_add_f32 v32, v32, v33")
    for ctl in ("quad_perm:[1,0,3,2]", "quad_perm:[2,3,0,1]", "row_half_mirror", "row_mirror"):
        a("s_nop 1")
        a(f"v_add_f32_dpp v32, v32, v32 {ctl} row_mask:0xf bank_mask:0xf")
    a("v_mov_b32 v33, v32")
    a("s_nop 1")
    a("v_permlane16_swap_b32 v32, v33")
    a("s_nop 1")
    a("v_add_f32 v32, v32, v33")
    a(f"v_mul_f32 v32, {fh(-LOG2E)}, v32")
    a("v_exp_f32 v32, v32")
    a("v_lshrrev_b32 v70, 5, v2")
    a("v_add_f32 v32, 1.0, v32")
    a("v_rcp_f32 v68, v32")
    a("v_lshlrev_b32 v70, 3, v70")
    a("v_mov_b32 v69, s68")
    a("s_branch K2_GEMM")

    a.label("K1_COMPUTE")
    AF = 96
    AK = 224
    def accF(sw, i, t):
        return AF + ((sw * 2 + i) * 2 + t) * 16
    XA = [4, 5, 6, 7]
    WA = [8, 9]
    KA = 10
    a("s_and_b32 s23, s20, 1                  ; tp")
    a("s_lshr_b32 s24, s20, 1                 ; grp")
    a("v_bfe_u32 v16, v2, 4, 1                ; gsel")
    a("v_lshrrev_b32 v17, 5, v2               ; h")
    a("v_bfe_u32 v18, v2, 2, 2                ; r")
    a("v_and_b32 v19, 3, v2                   ; c")
    a("v_lshl_add_u32 v20, v17, 3, v18        ; 8h+r")
    a("v_and_b32 v21, 31, v2")
    a("v_lshlrev_b32 v21, 7, v21")
    a("v_bfe_u32 v22, v2, 1, 3")
    a("v_xor_b32 v22, v22, v17")
    a("v_lshl_add_u32 v21, v22, 4, v21")
    a("s_lshl_b32 s25, s23, 13")
    a(f"s_add_u32 s25, s25, {slot_of(0)}")
    for s_ in range(4):
        a(f"v_xor_b32 v{XA[s_]}, {32*s_}, v21")
        a(f"v_add_u32 v{XA[s_]}, s25, v{XA[s_]}")
    a("v_lshlrev_b32 v20, 7, v20")
    a("v_lshl_add_u32 v20, v19, 3, v20        ; row*128 + c*8")
    a("v_lshrrev_b32 v21, 1, v18")
    a("v_xor_b32 v21, s24, v21                ; grp ^ (r>>1)")
    a("v_lshl_add_u32 v20, v21, 6, v20")
    a("v_lshl_add_u32 v20, v16, 5, v20")
    a(f"v_add_u32 v{KA}, {slot_of(0) + 32768}, v20")
    a("v_lshl_add_u32 v20, v16, 13, v20")
    a("v_xor_b32 v21, 32, v20")
    a(f"v_add_u32 v{WA[0]}, {slot_of(0) + 16384}, v20")
    a(f"v_add_u32 v{WA[1]}, {slot_of(0) + 16384}, v21")
    a("v_and_b32 v11, 0x33, v2")
    a("v_bfe_u32 v17, v2, 2, 1")
    a("v_lshl_or_b32 v11, v17, 3, v11")
    a("v_bfe_u32 v17, v2, 3, 1")
    a("v_lshl_or_b32 v11, v17, 2, v11")
    a("v_lshlrev_b32 v11, 4, v11              ; K voffset")
    a("s_cmp_lt_u32 s22, 8")
    a("s_cbranch_scc1 K1_KOFF")
    a("v_lshlrev_b32 v11, 16, v16")
    a("v_lshrrev_b32 v18, 5, v2")
    a("v_lshl_or_b32 v11, v18, 8, v11")
    a("v_and_b32 v18, 15, v2")
    a("v_lshl_or_b32 v11, v18, 4, v11         ; V voffset")
    a.label("K1_KOFF")
    for i in range(160):
        a(f"v_mov_b32 v{AF+i}, 0")
    a("s_waitcnt lgkmcnt(0)")
    srd(a, 28, 10, WS_SIZE)
    if CODEPF:
        a("s_getpc_b64 s[50:51]")
        a.label("PC_HERE")
        a(f"s_sub_u32 s50, s50, PC_HERE-{KNAME}")
        a("s_subb_u32 s51, s51, 0")
        a("s_lshr_b32 s49, s2, 3")
        a("s_lshl_b32 s49, s49, 2")
        a("s_add_u32 s49, s49, s20")
        a("s_lshl_b32 s49, s49, 9")
        a("v_lshlrev_b32 v21, 3, v2")
        a("v_add_u32 v21, s49, v21")
        a(f"v_min_u32 v21, K_END-{KNAME}-4, v21")
        a("global_load_dword v21, v21, s[50:51]")
    a("s_lshl_b32 s32, s21, 2")
    a("s_lshl_b32 s33, s23, 1")
    a("s_add_u32 s32, s32, s33                ; tt0")
    a("s_and_b32 s36, s22, 7")
    a("s_lshl_b32 s36, s36, 2")
    a("s_lshl_b32 s37, s24, 1")
    a("s_add_u32 s36, s36, s37")
    a("s_lshl_b32 s36, s36, 6")
    a("s_add_u32 s36, s36, s32")
    a("s_lshl_b32 s36, s36, 10")
    a("s_cmp_lt_u32 s22, 8")
    a(f"s_mov_b32 s38, {WS_V}")
    a(f"s_cselect_b32 s38, {WS_K}, s38")
    a("s_movk_i32 s37, 512")
    a("s_cselect_b32 s37, 0x10000, s37")
    a("s_add_u32 s36, s36, s38")
    a("s_add_u32 s37, s37, s36")
    a("s_mov_b32 s25, 2")
    a("s_mov_b32 s26, 8")
    BB = [24, 44]
    def reads(s_, buf, kv):
        L = [f"ds_read_b128 {v(buf,4)}, v{XA[s_]}"]
        for t in range(2):
            for u in range(2):
                L.append(f"ds_read_b64_tr_b16 {v(buf+8+4*t+2*u,2)}, v{WA[t]} offset:{(16*s_+4*u)*128}")
            if t == 0:
                L.append(f"ds_read_b128 {v(buf+4,4)}, v{XA[s_]} offset:4096")
        if kv:
            for u in range(2):
                L.append(f"ds_read_b64_tr_b16 {v(buf+16+2*u,2)}, v{KA} offset:{(16*s_+4*u)*128}")
        return L
    def mfs(buf, sw, vtype):
        L = []
        for t in range(2):
            for i in range(2):
                acc = accF(sw, i, t)
                L.append(f"{MF} {v(acc,16)}, {v(buf+8+4*t,4)}, {v(buf+4*i,4)}, {v(acc,16)}")
        if sw == 0:
            for i in range(2):
                acc = AK + 16 * i
                A_, B_ = v(buf + 16, 4), v(buf + 4 * i, 4)
                if vtype:
                    A_, B_ = B_, A_
                L.append(f"{MF} {v(acc,16)}, {A_}, {B_}, {v(acc,16)}")
        return L
    def sweep(name, sw, vtype):
        a.raw(".p2align 6")
        a.label(name)
        kv = sw == 0
        nr = 8 if kv else 6
        for s_ in range(4):
            upd = []
            if s_ == 2:
                upd = ["s_add_u32 s25, s25, 1", "s_cmp_eq_u32 s25, 3", f"s_mov_b32 s27, {SL}",
                       f"s_cselect_b32 s27, {(-2*SL) & 0xffffffff:#x}, s27", "s_cselect_b32 s25, 0, s25"]
                upd += [f"v_add_u32 v{r}, s27, v{r}" for r in XA + WA + ([KA] if kv else [])]
            if s_ == 1 and sw == 1:
                upd = [f"s_cmp_lg_u32 s26, {17 - AFLAG}", f"s_cbranch_scc1 {name}_ND", "s_waitcnt vmcnt(0)", f"{name}_ND:"]
            M = mfs(BB[s_ & 1], sw, vtype)
            if s_ < 3:
                R = reads(s_ + 1, BB[(s_ + 1) & 1], kv)
                seq = [f"s_waitcnt lgkmcnt({nr-4})", M[0], R[0], R[1], M[1], R[2], R[3], "s_waitcnt lgkmcnt(4)", M[2], R[4], R[5]]
                if kv:
                    seq += [M[3], R[6], R[7], M[4]] + upd[:7] + [M[5]] + upd[7:]
                elif s_ == 1:
                    seq += [M[3]] + upd
                else:
                    seq += upd[:5] + [M[3]] + upd[5:]
            else:
                R = reads(0, BB[0], kv)
                tail = ["s_sub_u32 s26, s26, 1", "s_cmp_lg_u32 s26, 0"]
                seq = [f"s_waitcnt lgkmcnt({nr-4})", M[0], "s_waitcnt lgkmcnt(0)", "s_barrier", R[0], M[1], R[1], R[2], R[3], M[2], R[4], R[5]]
                if kv:
                    seq += [M[3], R[6], R[7], M[4]] + tail + [M[5]]
                else:
                    seq += tail + [M[3]]
            for l in seq:
                a(l)
        a(f"s_cbranch_scc1 {name}")
    if FASTX:
        a(f"s_waitcnt vmcnt({1 if CODEPF else 0})")
    a("s_barrier                              ; b(0)")
    stamp(a, 1)
    for l in reads(0, BB[0], True):
        a(l)
    a("s_cmp_lt_u32 s22, 8")
    a("s_cbranch_scc0 SW1V")
    sweep("SW1K", 0, False)
    a("s_branch K1_KVEPI")
    sweep("SW1V", 0, True)
    a.label("K1_KVEPI")
    stamp(a, 2)
    c0 = -2.0 * 0.7978845608028654 * LOG2E
    c1 = c0 * 0.044715
    T = 64
    TB = 16
    def gelu_tile(acc, out, pk):
        L = []
        if pk:
            for j in range(0, 8, 2):
                L.append(f"v_pk_mul_f32 {v(TB+j,2)}, {v(acc+j,2)}, {v(acc+j,2)}")
            for j in range(0, 8, 2):
                L.append(f"v_pk_fma_f32 {v(TB+j,2)}, {v(TB+j,2)}, s[34:35], v[12:13]")
            for j in range(0, 8, 2):
                L.append(f"v_pk_mul_f32 {v(TB+j,2)}, {v(TB+j,2)}, {v(acc+j,2)}")
            for j in range(8):
                L.append(f"v_exp_f32 v{TB+j}, v{TB+j}")
            for j in range(0, 4, 2):
                L.append(f"v_pk_mul_f32 {v(acc+8+j,2)}, {v(acc+8+j,2)}, {v(acc+j,2)}")
            for j in range(0, 8, 2):
                L.append(f"v_pk_add_f32 {v(TB+j,2)}, {v(TB+j,2)}, v[14:15]")
            for j in range(8):
                L.append(f"v_rcp_f32 v{TB+j}, v{TB+j}")
            for j in range(4, 8, 2):
                L.append(f"v_pk_mul_f32 {v(acc+8+j,2)}, {v(acc+8+j,2)}, {v(acc+j,2)}")
            for j in range(0, 8, 2):
                L.append(f"v_pk_mul_f32 {v(acc+8+j,2)}, {v(acc+8+j,2)}, {v(TB+j,2)}")
        else:
            for j in range(8):
                L.append(f"v_mul_f32 v{TB+j}, v{acc+j}, v{acc+j}")
            for j in range(8):
                L.append(f"v_fma_f32 v{TB+j}, v{TB+j}, s34, v12")
            for j in range(8):
                L.append(f"v_mul_f32 v{TB+j}, v{TB+j}, v{acc+j}")
            for j in range(8):
                L.append(f"v_exp_f32 v{TB+j}, v{TB+j}")
                L.append(f"v_mul_f32 v{acc+8+j}, v{acc+8+j}, v{acc+j}")
            for j in range(8):
                L.append(f"v_add_f32 v{TB+j}, 1.0, v{TB+j}")
            for j in range(8):
                L.append(f"v_rcp_f32 v{TB+j}, v{TB+j}")
                if j >= 2:
                    L.append(f"v_mul_f32 v{acc+8+j-2}, v{acc+8+j-2}, v{TB+j-2}")
            L.append(f"v_mul_f32 v{acc+14}, v{acc+14}, v{TB+6}")
            L.append(f"v_mul_f32 v{acc+15}, v{acc+15}, v{TB+7}")
        for j in range(0, 8, 2):
            L.append(f"v_cvt_pk_bf16_f32 v{out + j//2}, v{acc+8+j}, v{acc+8+j+1}")
        return L
    def kv_fill():
        L = []
        for i in range(2):
            for j in range(0, 16, 2):
                L.append(f"v_cvt_pk_bf16_f32 v{T + 8*i + j//2}, v{AK+16*i+j}, v{AK+16*i+j+1}")
                if j == 6:
                    L.append(f"buffer_store_dwordx4 {v(T+8*i,4)}, v11, s[28:31], s36 offen offset:{i*1024}{SC}")
            L.append(f"buffer_store_dwordx4 {v(T+8*i+4,4)}, v11, s[28:31], s37 offen offset:{i*1024}{SC}")
        return L
    def q_fill():
        L = []
        for t in range(2):
            for i in range(2):
                acc = accF(0, i, t)
                for hf in range(2):
                    for j in range(8):
                        L.append(f"v_mul_f32 v{acc+8*hf+j}, s34, v{acc+8*hf+j}")
                    for j in range(0, 8, 2):
                        L.append(f"v_cvt_pk_bf16_f32 v{acc+8*hf+j//2}, v{acc+8*hf+j}, v{acc+8*hf+j+1}")
                    L.append(f"s_add_u32 s39, s38, {WS_Q + (t + 4*hf) * 65536}\nbuffer_store_dwordx4 {v(acc+8*hf,4)}, v3, s[28:31], s39 offen offset:{i*1024}{SC}")
        return L
    def cost(l):
        return 8 if l.startswith(("v_exp", "v_rcp")) else 4
    def sweep2(fill, early):
        nsteps = 32
        esteps = 4 * (AFLAG - 9) - 1
        parts = [[] for _ in range(nsteps)]
        E, Rr = fill[:early], fill[early:]
        def spread(L, lo, hi):
            tot = sum(cost(l) for l in L)
            acc_ = 0
            for l in L:
                st = lo + min(hi - lo - 1, int(acc_ * (hi - lo) / max(tot, 1)))
                parts[st].append(l)
                acc_ += cost(l)
        ecost = sum(cost(l) for l in E)
        ehi = min(esteps + 1, 1 + max(1, -(-ecost // 48)))
        spread(E, 1, ehi)
        spread(Rr, ehi, nsteps)
        for c in range(8, 16):
            for s_ in range(4):
                st = (c - 8) * 4 + s_
                F = list(parts[st])
                M = mfs(BB[s_ & 1], 1, False)
                d = slot_of(c + 1) - slot_of(c)
                upd = [f"v_add_u32 v{r}, {d & 0xffffffff:#x}, v{r}" for r in XA + WA] if (s_ == 2 and c < 15) else []
                q = [F[0::3], F[1::3], F[2::3]]
                n1 = (len(F) + 2) // 3
                q = [F[:n1 // 2], F[n1 // 2:n1], F[n1:n1 + (len(F) - n1) // 3], F[n1 + (len(F) - n1) // 3:]]
                if s_ < 3:
                    R = reads(s_ + 1, BB[(s_ + 1) & 1], False)
                    seq = ["s_waitcnt lgkmcnt(2)", M[0], R[0], R[1]] + q[0] + [M[1], R[2], R[3]] + q[1] + ["s_waitcnt lgkmcnt(4)", M[2], R[4], R[5]] + q[2] + [M[3]] + q[3] + upd
                else:
                    R = reads(0, BB[0], False) if c < 15 else []
                    dr = ["s_waitcnt vmcnt(0)"] if c + 1 == AFLAG else []
                    seq = ["s_waitcnt lgkmcnt(2)", M[0]] + q[0] + dr + ["s_waitcnt lgkmcnt(0)"] + (["s_barrier"] if c < 14 else []) + R[:1] + [M[1]] + R[1:4] + q[1] + [M[2]] + R[4:] + q[2] + [M[3]] + q[3]
                for l in seq:
                    if l == "s_barrier" and PROF in (10, 11, 12) and 0 <= c - (8 if PROF != 11 else 10) < 6:
                        if PROF == 12:
                            stamp(a, c - 8 + 1, 12)
                        a(l)
                        stamp(a, c - 8 + 1, 10)
                        stamp(a, c - 10 + 1, 11) if c >= 10 else None
                    else:
                        a(l)
    a(f"v_mov_b32 v16, {LDS_TAG}")
    a("ds_read_b64 v[18:19], v16")
    a(f"v_mov_b32 v12, {fh(c0)}")
    a("v_mov_b32 v13, v12")
    a("v_mov_b32 v14, 1.0")
    a("v_mov_b32 v15, 1.0")
    a("s_waitcnt lgkmcnt(0)")
    a("v_readfirstlane_b32 s68, v18")
    a("v_readfirstlane_b32 s69, v19")
    a("s_cmp_lt_u32 s22, 12")
    a("s_cbranch_scc1 SW2R")
    a(f"s_mov_b32 s34, {fh(LOG2E*0.25)}")
    a("s_sub_u32 s38, s22, 12")
    a("s_lshl_b32 s38, s38, 3")
    a("s_lshl_b32 s39, s24, 1")
    a("s_add_u32 s38, s38, s39")
    a("s_lshl_b32 s38, s38, 6")
    a("s_add_u32 s38, s38, s32")
    a("s_lshl_b32 s38, s38, 10")
    F = kv_fill() + q_fill()
    sweep2(F, len(F))
    a("s_branch K1_GE2")
    a.label("SW2R")
    a(f"s_mov_b32 s34, {fh(c1)}")
    a("s_mov_b32 s35, s34")
    F = kv_fill()
    ne = len(F)
    F2 = []
    for i in range(2):
        for t in range(2):
            if i * 2 + t < NFILL:
                F += gelu_tile(accF(0, i, t), 80 + 4 * (i * 2 + t), GPK)
            else:
                F2 += gelu_tile(accF(0, i, t), 80 + 4 * (i * 2 + t), True)
    sweep2(F, ne)
    for l in F2:
        a(l)
    a.label("K1_GE2")
    stamp(a, 3)
    a(f"s_mov_b32 s34, {fh(c1)}")
    a("s_mov_b32 s35, s34")
    a("s_mul_i32 s36, s32, 144")
    a("s_lshl_b32 s37, s22, 3")
    a("s_lshl_b32 s38, s22, 2")
    a("s_add_u32 s38, s38, 44")
    a("s_cmp_lt_u32 s22, 12")
    a("s_cselect_b32 s37, s37, s38")
    a("s_add_u32 s36, s36, s37")
    a("s_lshl_b32 s37, s24, 1")
    a("s_add_u32 s36, s36, s37")
    a("s_lshl_b32 s36, s36, 10")
    a(f"s_add_u32 s36, s36, {WS_ACT}")
    a(f"s_add_u32 s37, s36, {144*1024}")
    a("s_add_u32 s38, s36, 4096")
    a("s_add_u32 s39, s37, 4096")
    a("s_cmp_lt_u32 s22, 12")
    a("s_cbranch_scc0 K1_GE3")
    for i in range(2):
        for t in range(2):
            a(f"buffer_store_dwordx4 {v(80 + 4*(i*2+t),4)}, v3, s[28:31], s{36+i} offen offset:{t*1024}{SC}")
    a.label("K1_GE3")
    for t in range(2):
        for i in range(2):
            out = 64 + 4 * (i * 2 + t)
            for l in gelu_tile(accF(1, i, t), out, True):
                a(l)
            a(f"buffer_store_dwordx4 {v(out,4)}, v3, s[28:31], s{38+i} offen offset:{t*1024}{SC}")

    a.label("K2_ATTN")
    Q = [8, 12]
    G = [4, 5]
    KB = [16, 20]
    VB = [[24, 28], [32, 36]]
    IDX = 6
    VK, VV0, VV1 = 40, 41, 42
    C = [96, 112]
    S = [128, 144]
    P = [160, 176]
    O = [192, 208]
    a(f"v_mov_b32 v{IDX}, 0xdddd")
    def vaddr_init():
        a(f"v_mov_b32 v{VK}, v3")
        a("v_lshrrev_b32 v43, 5, v2")
        a("v_and_b32 v44, 15, v2")
        a("v_lshlrev_b32 v44, 4, v44")
        a("v_lshl_or_b32 v44, v43, 8, v44")
        a(f"v_add_u32 v44, {LDS_V}, v44")
        a("v_add_u32 v45, 512, v44")
        a("v_and_b32 v43, 31, v2")
        a("v_subrev_u32 v47, 20, v43")
        a("v_cmp_gt_u32 vcc, 8, v47")
        a(f"v_mov_b32 v46, {LDS_V + 1040}")
        a(f"v_mov_b32 v47, {LDS_V + 1040 + 2*VP}")
        a("v_cndmask_b32 v46, v46, v47, vcc")
        a("v_and_b32 v47, 27, v43")
        a("v_cmp_eq_u32 vcc, 16, v47")
        a("v_subrev_u32 v47, 16, v46")
        a("s_nop 0")
        a("v_cndmask_b32 v46, v46, v47, vcc")
        a("v_cmp_gt_u32 vcc, 16, v43")
        a("s_nop 1")
        a(f"v_cndmask_b32 v{VV0}, v46, v44, vcc")
        a(f"v_cndmask_b32 v{VV1}, v46, v45, vcc")
    vaddr_init()
    a("s_lshl_b32 s24, s20, 8")
    a(f"s_add_u32 s24, s24, {LDS_GQ}")
    a("v_and_b32 v7, 31, v2")
    a("v_lshlrev_b32 v7, 2, v7")
    a("v_add_u32 v7, s24, v7                  ; g address")
    def zero_state():
        a("v_mov_b32 v44, 0")
        a("v_mov_b32 v45, 0")
        for r in [O[0] + i for i in range(0, 32, 2)] + [P[1] + 8 + i for i in range(0, 8, 2)] + [VB[1][1], VB[1][1] + 2]:
            a(f"v_pk_mov_b32 {v(r,2)}, v[44:45], v[44:45]")
    zero_state()
    a("s_mov_b32 s26, 0")
    a("s_lshl_b32 s24, s20, 11")
    a(f"s_add_u32 s24, s24, {LDS_Q}")
    a("v_add_u32 v43, s24, v3")
    a("s_barrier                              ; X1")
    a("s_setprio 2")
    stamp(a, 4)
    stamp(a, 1, 9)
    a(f"ds_read_b128 {v(Q[0],4)}, v43")
    a(f"ds_read_b128 {v(KB[0],4)}, v{VK}")
    a(f"ds_read_b128 {v(Q[1],4)}, v43 offset:1024")
    a("s_waitcnt lgkmcnt(0)")
    for q in range(2):
        a(f"{MF} {v(S[q],16)}, {v(KB[0],4)}, {v(Q[q],4)}, 0")
    a("s_nop 7")
    a("s_nop 3")
    def maxtree(src, dst, acc=False):
        if acc:
            for i in range(0, 16, 2):
                a(f"v_max3_f32 v{dst}, v{src+i}, v{src+i+1}, v{dst}")
        else:
            a(f"v_max_f32 v{dst}, v{src}, v{src+1}")
            for i in range(2, 16, 2):
                a(f"v_max3_f32 v{dst}, v{src+i}, v{src+i+1}, v{dst}")
    for q in range(2):
        maxtree(S[q], 44 + q)
    a.label("K2_SETMAX")
    a(f"ds_read_b128 {v(KB[0],4)}, v{VK}")
    a(f"ds_read_b128 {v(VB[0][0],4)}, v{VV0}")
    a(f"ds_read_b128 {v(VB[0][1],4)}, v{VV1}")
    a(f"ds_read_b128 {v(KB[1],4)}, v{VK} offset:{TP}")
    for q in range(2):
        a(f"v_mov_b32 v{46+q}, v{44+q}")
    a("s_nop 1")
    for q in range(2):
        a(f"v_permlane32_swap_b32 v{44+q}, v{46+q}")
    for q in range(2):
        a(f"v_min_f32 v{44+q}, -v{44+q}, -v{46+q}     ; -max")
    for i in range(0, 16, 2):
        a(f"v_pk_mov_b32 {v(C[0]+i,2)}, v[44:45], v[44:45] op_sel:[0,0]")
    a("s_waitcnt lgkmcnt(0)")
    a("s_nop 0")
    a(f"{MF} {v(S[0],16)}, {v(KB[0],4)}, {v(Q[0],4)}, {v(C[0],16)}")
    for i in range(0, 16, 2):
        a(f"v_pk_mov_b32 {v(C[1]+i,2)}, v[44:45], v[44:45] op_sel:[1,1]")
    a("s_nop 3")
    stamp(a, 2, 9)
    a("s_cmp_lg_u32 s26, 0")
    a("s_cbranch_scc1 K2_NOBAR")
    a("s_waitcnt vmcnt(0)")
    a("s_barrier")
    a.label("K2_NOBAR")
    stamp(a, 3, 9)
    if PADATT:
        pad_until(a, PADATT)
    U = UA
    assert U == 16
    a(f"s_mov_b32 s27, {64 // U - 1}")
    a("s_mov_b32 s77, 2")
    a(f"v_mov_b32 v46, {LDS_SYNC + 12}")
    a.raw(".p2align 6")
    a.label("K2_LOOP")
    def exps(q, lo, hi):
        for i in range(lo, hi):
            a(f"v_exp_f32 v{P[q]+i}, v{S[q]+i}")
    def smf(q, vb, half):
        a(f"v_smfmac_f32_32x32x32_bf16 {v(O[q],16)}, {v(vb,4)}, {v(P[q]+8*half,8)}, v{IDX}")
    for u in range(U):
        b = u & 1
        a(f"{MF} {v(S[1],16)}, {v(KB[b],4)}, {v(Q[1],4)}, {v(C[1],16)}")
        if u == 8:
            a("s_bitcmp1_b32 s75, s77")
            a("s_cbranch_scc0 K2_KVM")
            a.label("K2_MID")
        exps(0, 0, 5)
        smf(1, VB[b ^ 1][1], 1)
        if u == 8:
            a("s_add_u32 s77, s77, 4")
            a("s_min_u32 s77, s77, 14")
        a(f"ds_read_b128 {v(VB[b^1][0],4)}, v{VV0} offset:{(u+1)*VP}")
        exps(0, 5, 11)
        smf(0, VB[b][0], 0)
        a(f"ds_read_b128 {v(VB[b^1][1],4)}, v{VV1} offset:{(u+1)*VP}")
        exps(0, 11, 16)
        a(f"{MF} {v(S[0],16)}, {v(KB[b^1],4)}, {v(Q[0],4)}, {v(C[0],16)}")
        a(f"ds_read_b128 {v(KB[b],4)}, v{VK} offset:{(u+2)*TP}")
        exps(1, 0, 5)
        smf(0, VB[b][1], 1)
        if u % 8 == 7:
            a("ds_read_b32 v47, v46")
        exps(1, 5, 11)
        smf(1, VB[b][0], 0)
        a("s_waitcnt lgkmcnt(0)")
        if u == U - 1:
            a(f"v_add_u32 v{VK}, {U*TP}, v{VK}")
            a(f"v_add_u32 v{VV0}, {U*VP}, v{VV0}")
            a(f"v_add_u32 v{VV1}, {U*VP}, v{VV1}")
        if u % 8 == 7:
            a("v_readfirstlane_b32 s75, v47")
        exps(1, 11, 16)
        if u == 7:
            mid_check = True
    a("s_bitcmp1_b32 s75, s77")
    a("s_cbranch_scc0 K2_KVW")
    a.label("K2_NEXT")
    a("s_add_u32 s77, s77, 4")
    a("s_min_u32 s77, s77, 14")
    if PROF == 9:
        a("s_memrealtime s[96:97]")
        a("s_memtime s[98:99]")
        a("s_waitcnt lgkmcnt(0)")
        for it, sl in ((3, 4), (2, 5), (1, 6)):
            a(f"s_cmp_eq_u32 s27, {it}")
            a(f"s_cselect_b32 s{80+sl}, s96, s{80+sl}")
            a(f"s_cselect_b32 s{88+sl}, s98, s{88+sl}")
    a("s_sub_u32 s27, s27, 1")
    a("s_cbranch_scc0 K2_LOOP")
    a("s_nop 1")
    smf(1, VB[(U - 1) & 1][1], 1)
    stamp(a, 5)
    stamp(a, 1, 8)
    a(f"v_mov_b32 v46, {LDS_SYNC + 4}")
    a("ds_read_b32 v47, v46")
    a(f"ds_read_b32 v{G[0]}, v7")
    a(f"ds_read_b32 v{G[1]}, v7 offset:128")
    a("s_lshl_b32 s24, s71, 2")
    a("s_add_u32 s24, s24, s20")
    a("s_lshl_b32 s24, s24, 5")
    a("s_add_u32 s24, s24, s70")
    a("s_lshl_b32 s25, s24, 11")
    a(f"s_add_u32 s25, s25, {WS_O}")
    a("v_mov_b32 v48, 0")
    a("v_mov_b32 v49, 0")
    a(f"v_pk_mul_f32 v[44:45], {v(O[0],2)}, v[48:49]")
    for i in range(2, 10, 2):
        a(f"v_pk_fma_f32 v[44:45], {v(O[0]+i,2)}, v[48:49], v[44:45]")
    for i in range(0, 10, 2):
        a(f"v_pk_fma_f32 v[44:45], {v(O[1]+i,2)}, v[48:49], v[44:45]")
    a("v_cmp_u_f32 vcc, v44, v45")
    a("s_nop 1")
    a("s_cmp_eq_u64 vcc, 0")
    a("s_cbranch_scc0 K2_FB")
    a.label("K2_FIN")
    for q in range(2):
        a(f"v_rcp_f32 v{48+q}, v{O[q]+8}")
    a(f"s_mov_b32 s74, {SPIN*8}")
    a.label("K2_GW")
    a("s_waitcnt lgkmcnt(0)")
    a("v_readfirstlane_b32 s75, v47")
    a("s_sub_u32 s74, s74, 1")
    a("s_cmp_eq_u32 s74, 0")
    a("s_cbranch_scc1 K2_GOK")
    a("s_cmp_ge_u32 s75, 64")
    a("s_cbranch_scc1 K2_GOK")
    a("s_sleep 1")
    a("ds_read_b32 v47, v46")
    a(f"ds_read_b32 v{G[0]}, v7")
    a(f"ds_read_b32 v{G[1]}, v7 offset:128")
    a("s_branch K2_GW")
    a.label("K2_GOK")
    for q in range(2):
        a(f"v_mul_f32 v{44+2*q}, v{48+q}, v{G[q]}")
    GR = S[0]
    a(f"v_mov_b32 v{GR+8}, s68")
    a(f"v_mov_b32 v{GR+9}, s69")
    for q in range(2):
        for i in range(0, 8, 2):
            a(f"v_pk_mul_f32 {v(O[q]+i,2)}, {v(O[q]+i,2)}, {v(44+2*q,2)} op_sel_hi:[1,0]")
        for i in range(0, 8, 2):
            a(f"v_cvt_pk_bf16_f32 v{GR + 4*q + i//2}, v{O[q]+i}, v{O[q]+i+1}")
        a(f"buffer_store_dwordx4 {v(GR+4*q,4)}, v3, s[28:31], s25 offen offset:{q*1024}{SC}")
    a("s_lshl_b32 s24, s24, 7")
    a(f"s_add_u32 s24, s24, {FL_C}")
    a(f"v_mov_b32 v46, {LDS_SYNC + 8}")
    a("v_mov_b32 v47, 1")
    a("s_mov_b64 exec, 1")
    a("ds_add_u32 v46, v47")
    a("s_mov_b64 exec, -1")
    NSD = min(NDEF, 11)
    if NDEF:
        srd(a, 44, 16, 0x1c0000)
        a(f"s_mul_i32 s53, s20, {DSTG}")
        a("s_add_u32 s53, s53, 0x10000")
        frag_addrs(a, "s53")
        part_addrs(a, "s53", 240)
        a(f"s_mul_i32 s32, s20, {NDEF}")
        a(f"s_add_u32 s32, s32, {4*(28-NDEF)}")
        a(f"s_mul_i32 s33, s72, {2*144*1024}")
        a("s_lshl_b32 s34, s32, 10")
        a("s_add_u32 s33, s33, s34")
        a(f"s_add_u32 s33, s33, {WS_ACT}")
        a(f"s_add_u32 s34, s33, {144*1024}")
        a("s_lshl_b32 s35, s32, 14")
        a("s_lshl_b32 s36, s73, 7")
        a("s_add_u32 s35, s35, s36")
        a("v_and_b32 v4, 31, v2")
        a("v_lshlrev_b32 v4, 2, v4")
        a(f"v_add_u32 v4, {LDS_OG}, v4")
        a("ds_read_b32 v244, v4")
        a("ds_read_b32 v246, v4 offset:128")
        a("ds_read_b32 v47, v46")
    a("s_waitcnt vmcnt(0)")
    a("s_mov_b64 exec, 1")
    a(f"buffer_store_dwordx2 {v(GR+8,2)}, v3, s[28:31], s24 offen sc1")
    a("s_mov_b64 exec, -1")
    a("s_setprio 0")
    stamp(a, 6)
    stamp(a, 2, 8)
    if NDEF:
        lds_wait(a, 46, 47, ["s_and_b32 s75, s75, 255", "s_cmp_ge_u32 s75, 68"], first_read=False)
        a("v_mov_b32 v248, v46")
        a("v_mov_b32 v249, 256")
        DA_, DW_, DC_ = 144, 80, 16
        dq = []
        def dw(k):
            a(f"s_add_u32 m0, s53, {(k % NSD) * 2048}")
            a("s_nop 0")
            a("buffer_load_dwordx4 v10, s[44:47], s35 offen lds")
            a("buffer_load_dwordx4 v11, s[44:47], s35 offen offset:1024 lds")
            a("s_add_u32 s35, s35, 16384")
            dq.extend([k] * 2)
        def da(k):
            for t in range(2):
                a(f"buffer_load_dwordx4 {v(DA_+8*k+4*t,4)}, v3, s[28:31], s{33+t} offen offset:{(k%4)*1024}{SC}")
            if k % 4 == 3:
                a("s_add_u32 s33, s33, 4096")
                a("s_add_u32 s34, s34, 4096")
            dq.extend([k] * 2)
        def dwait(k):
            a(f"s_waitcnt vmcnt({len(dq) - 1 - max(i for i, t in enumerate(dq) if t == k)})")
        def drd(k):
            b = DW_ + 8 * (k & 1)
            for n in range(2):
                for u in range(2):
                    a(f"ds_read_b64_tr_b16 {v(b+4*n+2*u,2)}, v{12+n} offset:{(k % NSD) * 2048 + u*1024}")
        AH = min(AHD, NDEF)
        for k in range(AH):
            dw(k); da(k)
        dwait(0)
        stamp(a, 3, 8)
        drd(0)
        for k in range(NDEF):
            if k + AH < NDEF:
                dw(k + AH); da(k + AH)
            if k + 1 < NDEF:
                dwait(k + 1)
                if k + 3 == NDEF:
                    a("s_mov_b64 exec, 1")
                    a("ds_add_u32 v248, v249")
                    a("s_mov_b64 exec, -1")
                drd(k + 1)
                a("s_waitcnt lgkmcnt(4)")
            else:
                a("s_waitcnt lgkmcnt(0)")
            b = DW_ + 8 * (k & 1)
            for n in range(2):
                for t in range(2):
                    acc = DC_ + (n * 2 + t) * 16
                    cin = "0" if k == 0 else v(acc, 16)
                    a(f"{MF} {v(acc,16)}, {v(b+4*n,4)}, {v(DA_+8*k+4*t,4)}, {cin}")
        stamp(a, 4, 8)
        a("s_nop 7")
        for n in range(2):
            for t in range(2):
                acc = DC_ + (n * 2 + t) * 16
                if n + t == 0:
                    a("s_nop 1")
                for j in range(0, 16, 2):
                    a(f"v_pk_mul_f32 {v(acc+j,2)}, {v(acc+j,2)}, {v(244+2*t,2)} op_sel_hi:[1,0]")
                for g in range(4):
                    a(f"ds_write_b128 v{240+g}, {v(acc+4*g,4)} offset:{t*8192 + n*128}")
        stamp(a, 5, 8)
    a("s_branch K3_REDUCE")
    a.label("K2_FB")
    a("s_cmp_lg_u32 s26, 0")
    a("s_cbranch_scc1 K2_FIN")
    a("s_waitcnt lgkmcnt(0)")
    a("s_mov_b32 s26, 100")
    vaddr_init()
    zero_state()
    a("v_mov_b32 v44, 0xff800000")
    a("v_mov_b32 v45, 0xff800000")
    a("v_mov_b32 v43, v3")
    a("s_mov_b32 s27, 64")
    a.label("K2_MAXLOOP")
    a(f"ds_read_b128 {v(KB[0],4)}, v43")
    a(f"v_add_u32 v43, {TP}, v43")
    a("s_waitcnt lgkmcnt(0)")
    for q in range(2):
        a(f"{MF} {v(S[q],16)}, {v(KB[0],4)}, {v(Q[q],4)}, 0")
    a("s_nop 7")
    a("s_nop 7")
    for q in range(2):
        maxtree(S[q], 44 + q, acc=True)
    a("s_sub_u32 s27, s27, 1")
    a("s_cmp_lg_u32 s27, 0")
    a("s_cbranch_scc1 K2_MAXLOOP")
    a("s_branch K2_SETMAX")
    for lab, back in (("K2_KVW", "K2_NEXT"), ("K2_KVM", "K2_MID")):
        a.label(lab)
        lds_wait(a, 46, 47, ["s_bitcmp1_b32 s75, s77"])
        a(f"s_branch {back}")

    a.label("K2_GEMM")
    a("v_min_u32 v4, 37, v2")
    a(f"v_mul_u32_u24 v4, {VP}, v4")
    a(f"v_add_u32 v4, {LDS_V + 1024}, v4")
    a("v_min_u32 v36, 27, v2")
    a(f"v_mul_u32_u24 v36, {VP}, v36")
    a(f"v_add_u32 v36, {LDS_V + 1024 + 38*VP}, v36")
    for i in range(4):
        a(f"v_mov_b32 v{40+i}, 0x3f803f80")
        a(f"v_mov_b32 v{44+i}, 0")
    a("ds_write_b128 v4, v[40:43]")
    a("ds_write_b128 v4, v[44:47] offset:16")
    ND, NW = 28 - NDEF, 8
    NG = ND // 4
    NS = 3
    srd(a, 44, 16, 0x1c0000)
    srd(a, 48, 8, 0x80000)
    if FMAP:
        a("s_and_b32 s42, s72, 3")
        a("s_lshl_b32 s42, s42, 1")
        a("s_add_u32 s42, s42, s73")
    else:
        a("s_lshr_b32 s42, s2, 3")
        a("s_and_b32 s43, s42, 7")
        a("s_lshr_b32 s42, s42, 3")
        a("s_lshl_b32 s42, s42, 1")
        a("s_add_u32 s42, s42, s43")
    for _ in range(-(-14 // NG) - 1):
        a(f"s_cmp_ge_u32 s42, {NG}")
        a(f"s_cselect_b32 s43, {NG}, 0")
        a("s_sub_u32 s42, s42, s43")
    if not ROT:
        a("s_mov_b32 s42, 0")
    a("s_mov_b32 s52, s42")
    a(f"s_mul_i32 s32, s23, {ND}")
    a("s_lshl_b32 s43, s42, 2")
    a("s_add_u32 s32, s32, s43")
    a(f"s_mul_i32 s33, s72, {2*144*1024}")
    a(f"s_add_u32 s33, s33, {WS_ACT}")
    a("s_lshl_b32 s43, s32, 10")
    a("s_add_u32 s33, s33, s43")
    a(f"s_add_u32 s34, s33, {144*1024}")
    a("s_lshl_b32 s43, s73, 7")
    a("s_lshl_b32 s35, s32, 14")
    a("s_add_u32 s35, s35, s43")
    a("s_lshl_b32 s39, s23, 17")
    a("s_add_u32 s39, s39, s43")
    a(f"s_mul_i32 s53, s23, {NS*2048}")
    a(f"s_add_u32 s53, s53, {LDS_WS}")
    frag_addrs(a, "s53")
    GA = 16
    FR = 80
    D = 8
    queue = []
    def ld(dst, sr, k, tag):
        a(f"buffer_load_dwordx4 {v(dst,4)}, v3, s[28:31], s{sr} offen offset:{(k%4)*1024}{SC}")
        queue.append(tag)
    def aloads(k):
        b = FR + (k % D) * 16
        ld(b + 4, 33, k, ("a", k)); ld(b + 12, 34, k, ("a", k))
        if k % 4 == 3:
            a("s_add_u32 s42, s42, 1")
            a(f"s_cmp_eq_u32 s42, {NG}")
            a("s_movk_i32 s43, 4096")
            a(f"s_cselect_b32 s43, {(-(NG-1)*4096) & 0xffffffff:#x}, s43")
            a("s_cselect_b32 s42, 0, s42")
            for sr in (33, 34):
                a(f"s_add_u32 s{sr}, s{sr}, s43")
    def wloads(k):
        a(f"s_add_u32 m0, s53, {(k % NS) * 2048}")
        sr, rs = (35, 44) if k < ND else (39, 48)
        a("s_nop 0")
        a(f"buffer_load_dwordx4 v10, s[{rs}:{rs+3}], s{sr} offen lds")
        a(f"buffer_load_dwordx4 v11, s[{rs}:{rs+3}], s{sr} offen offset:1024 lds")
        queue.extend([("w", k)] * 2)
        a(f"s_add_u32 s{sr}, s{sr}, 16384")
        if k < ND and k % 4 == 3:
            a("s_add_u32 s52, s52, 1")
            a(f"s_cmp_eq_u32 s52, {NG}")
            a(f"s_cselect_b32 s43, {(-ND*16384) & 0xffffffff:#x}, 0")
            a("s_cselect_b32 s52, 0, s52")
            a("s_add_u32 s35, s35, s43")
    def waitfor(*tags):
        n = len(queue) - 1 - max(i for i, t in enumerate(queue) if t in tags)
        a(f"s_waitcnt vmcnt({n})")
    def wreads(k):
        b = FR + (k % D) * 16
        for n in range(2):
            for u in range(2):
                a(f"ds_read_b64_tr_b16 {v(b+8*n+2*u,2)}, v{12+n} offset:{(k % NS) * 2048 + u*1024}")
    def mm(k):
        b = FR + (k % D) * 16
        for n in range(2):
            for t in range(2):
                acc = GA + (n * 2 + t) * 16
                cin = "0" if k == 0 else v(acc, 16)
                a(f"{MF} {v(acc,16)}, {v(b+8*n,4)}, {v(b+4+8*t,4)}, {cin}")
    stamp(a, 3)
    a("s_waitcnt vmcnt(0) lgkmcnt(0)")
    kv_loads(3, 5)
    kv_loads(5, 7)
    if KVV == 1:
        kv_loads(7, 9)
    a("s_barrier                              ; X1")
    a("s_setprio 3")
    if KVV == 2:
        kv_loads(7, 9)
    a("s_barrier                              ; X2")
    a("s_cmp_lg_u32 s23, 1")
    a("s_cbranch_scc1 K2_NOB1")
    a("s_lshl_b32 s37, s21, 4")
    a("s_add_u32 s37, s37, s22")
    a("s_lshl_b32 s37, s37, 7")
    a(f"s_add_u32 s37, s37, {FL_B1}")
    flag_store(a, "s37", 16)
    a.label("K2_NOB1")
    a("ds_write_b128 v36, v[40:43]")
    a("ds_write_b128 v36, v[44:47] offset:16")
    a(f"v_mov_b32 v34, {LDS_SYNC + 12}")
    def arrived(stage, n):
        a(f"v_mov_b32 v35, {1 << (4 * stage)}")
        a(f"s_waitcnt vmcnt({n})")
        a("s_mov_b64 exec, 1")
        a("ds_add_u32 v34, v35")
        a("s_mov_b64 exec, -1")
    arrived(0, 8)
    arrived(1, 4)
    kv_loads(9, 12)
    arrived(2, 6)
    kv_loads(12, 16)
    srd(a, 44, 16, 0x1c0000)
    arrived(3, 0)
    a("s_lshl_b32 s55, s76, 4")
    a(f"s_add_u32 s55, s55, {WS_G}")
    a("s_mov_b32 exec_lo, 1")
    a("s_mov_b32 exec_hi, 1")
    a(f"buffer_store_dwordx2 v[68:69], v70, s[28:31], s55 offen{SC}")
    a("s_mov_b64 exec, -1")
    if WARMW and FMAP:
        a("s_lshr_b32 s54, s2, 3")
        a("s_lshl_b32 s54, s54, 2")
        a("s_add_u32 s54, s54, s23")
        a("s_mul_i32 s55, s54, 14336")
        a("v_min_u32 v14, 55, v2")
        a("v_lshlrev_b32 v14, 7, v14")
        a("buffer_load_dword v15, v14, s[44:47], s55 offen")
        a("s_add_u32 s55, s55, 7168")
        a("buffer_load_dword v15, v14, s[44:47], s55 offen")
        a("s_lshl_b32 s55, s54, 12")
        a("v_and_b32 v14, 31, v2")
        a("v_lshlrev_b32 v14, 7, v14")
        a("buffer_load_dword v15, v14, s[48:51], s55 offen")
    elif WARMW:
        a("s_lshr_b32 s54, s2, 3")
        a("s_and_b32 s54, s54, 7")
        a("s_lshl_b32 s55, s54, 2")
        a("s_add_u32 s55, s55, s23")
        a("s_mul_i32 s55, s55, 57344")
        a("s_add_u32 s55, s55, s43")
        a("v_min_u32 v14, 55, v2")
        a("v_lshlrev_b32 v14, 10, v14")
        a("buffer_load_dword v15, v14, s[44:47], s55 offen")
        a("s_lshl_b32 s55, s54, 2")
        a("s_add_u32 s55, s55, s23")
        a("s_lshl_b32 s55, s55, 14")
        a("s_add_u32 s55, s55, s43")
        a("v_and_b32 v14, 15, v2")
        a("v_lshlrev_b32 v14, 10, v14")
        a("buffer_load_dword v15, v14, s[48:51], s55 offen")
    for k in range(NS):
        wloads(k)
    a("s_setprio 3")
    a("v_and_b32 v6, 15, v2")
    a("v_lshlrev_b32 v6, 7, v6")
    a("s_lshr_b32 s24, s72, 1")
    a("s_lshl_b32 s24, s24, 11")
    a(f"s_add_u32 s24, s24, {FL_B1}")
    poll_shared(a, 1, [("s24", 6, 8, 4)], 20, lslp=4)
    a("v_and_b32 v6, 31, v2")
    a("v_lshlrev_b32 v6, 3, v6")
    a("v_lshlrev_b32 v7, 3, v2")
    a("s_lshl_b32 s54, s72, 9")
    a(f"s_add_u32 s54, s54, {WS_G}")
    a("s_lshl_b32 s55, s71, 2")
    a("s_add_u32 s55, s55, s23")
    a("s_lshl_b32 s55, s55, 9")
    a(f"s_add_u32 s55, s55, {WS_G}")
    a(f"s_mov_b32 s74, {SPIN}")
    a.label("K2_GL")
    a(f"buffer_load_dwordx2 v[240:241], v6, s[28:31], s54 offen{SC}")
    a(f"buffer_load_dwordx2 v[242:243], v6, s[28:31], s54 offen offset:256{SC}")
    a(f"buffer_load_dwordx2 v[244:245], v7, s[28:31], s55 offen{SC}")
    a("s_waitcnt vmcnt(0)")
    a("v_xor_b32 v8, s68, v241")
    a("v_xor_b32 v9, s68, v243")
    a("v_xor_b32 v14, s68, v245")
    a("v_or3_b32 v8, v8, v9, v14")
    a("v_cmp_ne_u32 vcc, 0, v8")
    a("s_sub_u32 s74, s74, 1")
    a("s_cbranch_scc1 K2_GD")
    a("s_cmp_eq_u64 vcc, 0")
    a("s_cbranch_scc1 K2_GD")
    a("s_sleep 4")
    a("s_branch K2_GL")
    a.label("K2_GD")
    a("s_lshl_b32 s55, s23, 8")
    a(f"s_add_u32 s55, s55, {LDS_GQ}")
    a("v_lshrrev_b32 v7, 1, v7")
    a("v_add_u32 v7, s55, v7")
    a("ds_write_b32 v7, v244")
    a("v_sub_f32 v240, 1.0, v240")
    a("v_sub_f32 v242, 1.0, v242")
    a("v_lshrrev_b32 v6, 1, v6")
    a(f"v_add_u32 v6, {LDS_OG}, v6")
    a("ds_write_b32 v6, v240")
    a("ds_write_b32 v6, v242 offset:128")
    a(f"v_mov_b32 v8, {LDS_SYNC + 4}")
    a("v_mov_b32 v9, 16")
    a("s_waitcnt lgkmcnt(0)")
    a("s_mov_b64 exec, 1")
    a("ds_add_u32 v8, v9")
    a("s_mov_b64 exec, -1")
    stamp(a, 4)
    DA = 4
    a("s_setprio 0")
    for k in range(DA):
        aloads(k)
    for k in range(ND + NW):
        waitfor(("w", k), ("a", k))
        wreads(k)
        a("s_waitcnt lgkmcnt(0)")
        if k + NS < ND + NW:
            wloads(k + NS)
        if k + DA < ND:
            aloads(k + DA)
        if k < ND:
            mm(k)
    a("s_setprio 3")
    if NDEF and WARMD:
        assert FMAP
        a(f"s_mul_i32 s33, s72, {2*144*1024}")
        a("s_lshr_b32 s34, s23, 1")
        a(f"s_mul_i32 s34, s34, {144*1024}")
        a("s_add_u32 s33, s33, s34")
        a("s_lshl_b32 s34, s73, 1")
        a("s_and_b32 s35, s23, 1")
        a("s_add_u32 s34, s34, s35")
        a(f"s_mul_i32 s34, s34, {NDEF*256}")
        a("s_add_u32 s33, s33, s34")
        a(f"s_add_u32 s33, s33, {WS_ACT + 4*ND*1024}")
        a(f"v_min_u32 v14, {2*NDEF-1}, v2")
        a("v_lshlrev_b32 v14, 7, v14")
        a(f"buffer_load_dword v15, v14, s[28:31], s33 offen{SC}")
        a("s_and_b32 s34, s72, 3")
        a("s_lshl_b32 s34, s34, 2")
        a("s_add_u32 s34, s34, s23")
        a(f"s_mul_i32 s34, s34, {NDEF*4096}")
        a("s_lshl_b32 s35, s73, 7")
        a("s_add_u32 s34, s34, s35")
        a(f"s_add_u32 s34, s34, {4*ND*16384}")
        a(f"v_min_u32 v14, {4*NDEF-1}, v2")
        a("v_lshlrev_b32 v14, 10, v14")
        a("buffer_load_dword v15, v14, s[44:47], s34 offen")
    a("s_nop 7")
    a("s_nop 7")
    for n in range(2):
        for t in range(2):
            acc = GA + (n * 2 + t) * 16
            for j in range(0, 16, 2):
                a(f"v_pk_mul_f32 {v(acc+j,2)}, {v(acc+j,2)}, {v(240+2*t,2)} op_sel_hi:[1,0]")
    a("s_lshl_b32 s32, s23, 14")
    part_addrs(a, "s32", 212)
    a("s_lshl_b32 s24, s72, 2")
    a("s_add_u32 s24, s24, s23")
    a("s_lshl_b32 s24, s24, 14")
    a(f"s_add_u32 s24, s24, {WS_O}")
    a("v_and_b32 v6, 7, v2")
    a("v_lshlrev_b32 v6, 7, v6")
    a("s_lshl_b32 s26, s72, 12")
    a("s_lshl_b32 s25, s23, 10")
    a("s_add_u32 s26, s26, s25")
    a(f"s_add_u32 s26, s26, {FL_C}")
    a(f"v_mov_b32 v11, {LDS_SYNC + 8}")
    a("v_mov_b32 v10, 16")
    a("s_mov_b64 exec, 1")
    a("ds_add_u32 v11, v10")
    a("s_mov_b64 exec, -1")
    a("s_mov_b32 s54, 0")
    a(f"s_mov_b32 s74, {SPIN}")
    stamp(a, 5)
    stamp(a, 1, 8)
    def c_poll():
        a("v_mov_b32 v8, 0")
        a("v_mov_b32 v9, 0")
        a("s_mov_b64 exec, 0xff")
        a("buffer_atomic_or_x2 v[8:9], v6, s[28:31], s26 offen sc0 sc1")
        a("s_mov_b64 exec, -1")
    def pause():
        if NDEF and PAUSE:
            lab, done = a.newlabel("PZ"), a.newlabel("PZD")
            a(f"s_mov_b32 s76, {SPIN}")
            a.label(lab)
            a("ds_read_b32 v10, v11")
            a("s_waitcnt lgkmcnt(0)")
            a("v_readfirstlane_b32 s75, v10")
            a("s_sub_u32 s76, s76, 1")
            a(f"s_cbranch_scc1 {done}")
            a("s_cmp_ge_u32 s75, 1024")
            a(f"s_cbranch_scc1 {done}")
            a("s_and_b32 s75, s75, 15")
            a(f"s_cbranch_scc0 {done}")
            a("s_sleep 1")
            a(f"s_branch {lab}")
            a.label(done)
    a.label("K3_POLL")
    pause()
    c_poll()
    a.label("K3_ROUND")
    a("s_waitcnt vmcnt(0)")
    a("v_cmp_eq_u64 vcc, s[68:69], v[8:9]")
    a("s_sub_u32 s74, s74, 1")
    a("s_cselect_b32 s55, 0xff, vcc_lo")
    a("s_andn2_b32 s55, s55, s54")
    a("s_cbranch_scc1 K3_SOME")
    a("ds_read_b32 v10, v11")
    a(f"s_sleep {TSLP}")
    a("s_waitcnt lgkmcnt(0)")
    a("v_readfirstlane_b32 s75, v10")
    a("s_and_b32 s75, s75, 15")
    a("s_cbranch_scc1 K3_POLL")
    a(f"s_sleep {PSLOW}")
    a("s_branch K3_POLL")
    a.label("K3_SOME")
    pause()
    a("s_or_b32 s54, s54, s55")
    for kk in range(NW):
        b = FR + ((ND + kk) % D) * 16
        a(f"s_bitcmp1_b32 s55, {kk}")
        a(f"s_cbranch_scc0 K3_L{kk}")
        a(f"s_add_u32 s25, s24, {kk*2048}")
        a(f"buffer_load_dwordx4 {v(b+4,4)}, v3, s[28:31], s25 offen{SC}")
        a(f"buffer_load_dwordx4 {v(b+12,4)}, v3, s[28:31], s25 offen offset:1024{SC}")
        a.label(f"K3_L{kk}")
    a("s_cmp_eq_u32 s54, 0xff")
    a("s_cbranch_scc1 K3_LAST")
    c_poll()
    a.label("K3_LAST")
    a("ds_read_b32 v10, v11")
    a("s_waitcnt vmcnt(0)")
    for kk in range(NW):
        a(f"s_bitcmp1_b32 s55, {kk}")
        a(f"s_cbranch_scc0 K3_C{kk}")
        mm(ND + kk)
        a.label(f"K3_C{kk}")
    a("s_cmp_lg_u32 s54, 0xff")
    a("s_cbranch_scc1 K3_ROUND")
    stamp(a, 6)
    stamp(a, 2, 8)
    lds_wait(a, 11, 10, ["s_bitcmp1_b32 s75, 2"], first_read=False)
    for i in range(3, 6):
        stamp(a, i, 8)
    a("s_nop 7")
    part_write(a, GA, 212)
    a.label("K3_REDUCE")
    srd(a, 24, 64, 0x200000)
    a("s_lshl_b32 s32, s20, 6")
    a("v_add_u32 v0, s32, v2                  ; tid")
    a("v_lshrrev_b32 v7, 3, v0                ; token")
    a("v_and_b32 v5, 7, v0")
    a("v_lshlrev_b32 v6, 1, v5")
    a("v_and_b32 v8, 7, v7")
    a("v_xor_b32 v6, v6, v8")
    a("v_lshlrev_b32 v6, 4, v6")
    a("v_lshl_add_u32 v6, v7, 8, v6")
    a("v_xor_b32 v8, 16, v6")
    a("v_add_u32 v9, 0x10000, v6")
    a("v_add_u32 v10, 0x10000, v8")
    a("v_lshlrev_b32 v7, 10, v7")
    a("v_lshl_add_u32 v7, v5, 4, v7")
    a("s_lshl_b32 s32, s72, 16")
    a("s_lshl_b32 s33, s73, 7")
    a("s_add_u32 s32, s32, s33")
    a("s_waitcnt lgkmcnt(0)")
    a("s_barrier                              ; Y1")
    stamp(a, 6, 8)
    NP = 8 if NDEF else 4
    RB = 96
    for w in range(NP):
        off = w * 16384 if w < 4 else (w - 4) * DSTG
        r0, r1 = (6, 8) if w < 4 else (9, 10)
        if off > 65535:
            a("v_add_u32 v9, 0x8000, v9")
            a("v_add_u32 v10, 0x8000, v10")
            off -= 0x8000
        a(f"ds_read_b128 {v(RB+8*w,4)}, v{r0} offset:{off}")
        a(f"ds_read_b128 {v(RB+4+8*w,4)}, v{r1} offset:{off}")
    for w in range(1, NP):
        a(f"s_waitcnt lgkmcnt({2*(NP-1-w)})")
        for j in range(0, 8, 2):
            a(f"v_pk_add_f32 {v(RB+j,2)}, {v(RB+j,2)}, {v(RB+8*w+j,2)}")
    for j in range(0, 8, 2):
        a(f"v_cvt_pk_bf16_f32 v{16+j//2}, v{RB+j}, v{RB+j+1}")
    a("buffer_store_dwordx4 v[16:19], v7, s[24:27], s32 offen" + (" " + OUTSC if OUTSC else ""))
    if PADEND:
        pad_until(a, PADEND)
    stamp_flush(a, 8)
    a.label("K_EXIT")
    a("s_endpgm")
    a.label("K_END")

def main():
    hdr = open("cdna_kernels/" + NAME + ".s.ref").read().split("\n")
    top = [l for l in hdr if l.startswith(";") and "@launch" not in l]
    out = "\n".join(top) + "\n"
    out += f"; @launch grid=(256,1,1) block=(512,1,1) lds={LDS_TOTAL}\n"
    out += '.amdgcn_target "amdgcn-amd-amdhsa--gfx950"\n.text\n'
    a = Asm()
    gen(a)
    out += a.text()
    out += '.section .rodata,"a"\n'
    out += kernel_desc(KNAME, 256, 102)
    path = sys.argv[1] if len(sys.argv) > 1 else "cdna_kernels/" + NAME + ".s"
    open(path, "w").write(out)

main()
```

```python
import sys, math, os
from asmlib import *

NAME = "gated_mix__softmax_full_mha__geglu_ffn__prompt"
KNAME = NAME + "_kernel"
LOG2E = 1.4426950408889634
def env(n, d): return int(os.environ.get(n, str(d)))
PROF = env("PROF", 0)
ROT = env("ROT", 1)
TAGPOS = env("TAGPOS", 0)
PADEND = env("PADEND", 0)
PADATT = env("PADATT", 0)
DBGWG = env("DBGWG", -1)
TLBW = env("TLBW", 0)
PFW = env("PFW", 0)
PFI = env("PFI", 1)
PFX = env("PFX", 0)
KVROT = env("KVROT", 1)
AFLAG = env("AFLAG", 10)
PFC = env("PFC", -1)
ONEP = env("ONEP", 0)
FMAP = env("FMAP", 0)
NOTAG = env("NOTAG", 0)
ROT1 = env("ROT1", 2)
OUTSC = os.environ.get("OUTSC", "sc1")
GPK = env("GPK", 1)
UA = env("UA", 16)
PRE = env("PRE", 2)
QLD = env("QLD", 4)
WARMW = env("WARMW", 0)
ROT2 = env("ROT2", 1)
NDEF = env("NDEF", 0)
WARMD = env("WARMD", 1)
PSLOW = env("PSLOW", 16)
PAUSE = env("PAUSE", 1)
KVV = env("KVV", 2)
FASTX = env("FASTX", 0)
FULLF = env("FULLF", 0)
PIPE = env("PIPE", 1)
ATFLAG = env("ATFLAG", 1)
FRESH = env("FRESH", 0)
WS_FR = 0x2000000
PDEL = env("PDEL", 4)
MASKP = env("MASKP", 1)
SPAT = env("SPAT", 3)
LPRIO = env("LPRIO", 3)
NFILL = env("NFILL", 4)
AHD = env("AHD", 6)
ATPOLL = env("ATPOLL", 1)
HINTW = env("HINTW", 0)
TSLP = env("TSLP", 2)
SPF = env("SPF", 0)
CODEPF = env("CODEPF", 1)
SLP = env("SLP", 4)

WS_Q = 0x0
WS_K = 0x200000
WS_V = 0x400000
WS_ACT = 0x600000
WS_O = 0xF00000
WS_G = 0x1240000
WS_FL = 0x1280000
FL_A = WS_FL
FL_B1 = WS_FL + 0x8000
FL_B2 = WS_FL + 0x10000
FL_C = WS_FL + 0x20000
WS_STAMP = 0x1800000
WS_SIZE = 0x2800000

SL = 40960
RING = 38912
LDS_GQ = 162176
LDS_OG = 163200
LDS_TAG = 163584
LDS_SYNC = LDS_TAG + 8
LDS_TOTAL = 163840
TP = 2080
LDS_V = 1024
VP = TP
LDS_WS = 137472
DSTG = 22528
LDS_Q = RING + 2 * SL + 32768
def slot_of(c):
    return RING + ((c + 2) % 3) * SL

SC = " sc1"
SPIN = 200000
MF = "v_mfma_f32_32x32x16_bf16"

def srd(a, d, base, nbytes):
    a(f"s_mov_b32 s{d}, s{base}")
    a(f"s_mov_b32 s{d+1}, s{base+1}")
    a(f"s_mov_b32 s{d+2}, {nbytes:#x}")
    a(f"s_mov_b32 s{d+3}, 0x20000")

def stamp(a, i, lvl=1):
    if PROF and (PROF == lvl or i in (0, 7)):
        a("s_memrealtime s[96:97]")
        a("s_memtime s[98:99]")
        a("s_waitcnt lgkmcnt(0)")
        a(f"s_mov_b32 s{80+i}, s96")
        a(f"s_mov_b32 s{88+i}, s98")

def stamp_flush(a, n):
    if PROF:
        a("s_waitcnt vmcnt(0)")
        stamp(a, n - 1)
        a("s_lshl_b32 s78, s2, 4")
        a("s_add_u32 s78, s78, s20")
        a("s_lshl_b32 s78, s78, 6")
        a(f"s_add_u32 s78, s78, {WS_STAMP}")
        a("v_mov_b32 v1, 0")
        for i in range(n):
            a(f"v_mov_b32 v0, s{80+i}")
            a(f"buffer_store_dword v0, v1, s[28:31], s78 offen offset:{4*i}")
            a("s_nop 1")
            a(f"v_mov_b32 v0, s{88+i}")
            a(f"buffer_store_dword v0, v1, s[28:31], s78 offen offset:{32+4*i}")
            a("s_nop 1")
        a("s_waitcnt vmcnt(0)")
        if DBGWG >= 0:
            a(f"s_cmp_lg_u32 s2, {DBGWG}")
            a("s_cbranch_scc1 DBG_SKIP")
            a("s_and_b32 s78, s20, 3")
            a("s_cmp_lg_u32 s78, 0")
            a("s_cbranch_scc1 DBG_SKIP")
            a("s_mul_i32 s78, s20, 7")
            a("v_mov_b32 v1, s78")
            for i in range(1, n):
                a(f"s_sub_u32 s79, s{80+i}, s80")
                a("v_mov_b32 v0, s79")
                a(f"global_store_dword v1, v0, s[66:67] offset:{4+4*i}")
                a("s_nop 1")
            a("s_waitcnt vmcnt(0)")
            a.label("DBG_SKIP")

def pad_until(a, ticks):
    lab = a.newlabel("PAD")
    a.label(lab)
    a("s_memrealtime s[96:97]")
    a("s_waitcnt lgkmcnt(0)")
    a("s_sub_u32 s96, s96, s68")
    a(f"s_cmp_lt_u32 s96, {ticks}")
    a(f"s_cbranch_scc1 {lab}")

def flag_store(a, soff, vtmp):
    a(f"v_mov_b32 v{vtmp}, s68")
    a(f"v_mov_b32 v{vtmp+1}, s69")
    a(f"v_mov_b32 v{vtmp+2}, 0")
    a("s_mov_b64 exec, 1")
    a(f"buffer_store_dwordx2 {v(vtmp,2)}, v{vtmp+2}, s[28:31], {soff} offen sc1")
    a("s_mov_b64 exec, -1")

def poll(a, soff, voff, vtmp, slp=None):
    lab = a.newlabel("POLL")
    done = a.newlabel("POLLD")
    a(f"s_mov_b32 s74, {SPIN}")
    a.label(lab)
    a(f"buffer_load_dwordx2 {v(vtmp,2)}, v{voff}, s[28:31], {soff} offen sc1")
    a("s_waitcnt vmcnt(0)")
    a(f"v_xor_b32 v{vtmp}, s68, v{vtmp}")
    a(f"v_xor_b32 v{vtmp+1}, s69, v{vtmp+1}")
    a(f"v_or_b32 v{vtmp}, v{vtmp}, v{vtmp+1}")
    a(f"v_cmp_ne_u32 vcc, 0, v{vtmp}")
    a("s_sub_u32 s74, s74, 1")
    a("s_cmp_eq_u32 s74, 0")
    a(f"s_cbranch_scc1 {done}")
    a("s_cmp_eq_u64 vcc, 0")
    a(f"s_cbranch_scc1 {done}")
    a(f"s_sleep {SLP if slp is None else slp}")
    a(f"s_branch {lab}")
    a.label(done)

def poll_shared(a, stage, polls, vtmp, lslp=1, extra=None):
    other = a.newlabel("PSO")
    done = a.newlabel("PSD")
    a(f"v_mov_b32 v{vtmp+3}, {LDS_SYNC}")
    a("s_cmp_lg_u32 s23, 0")
    a(f"s_cbranch_scc1 {other}")
    for p in polls:
        poll(a, *p)
    if extra:
        extra()
    a(f"v_mov_b32 v{vtmp}, {stage}")
    a(f"ds_write_b32 v{vtmp+3}, v{vtmp}")
    a(f"s_branch {done}")
    a.label(other)
    a(f"s_mov_b32 s74, {SPIN*8}")
    lab = a.newlabel("PSL")
    a.label(lab)
    a(f"ds_read_b32 v{vtmp}, v{vtmp+3}")
    a("s_waitcnt lgkmcnt(0)")
    a(f"v_readfirstlane_b32 s75, v{vtmp}")
    a("s_sub_u32 s74, s74, 1")
    a("s_cmp_eq_u32 s74, 0")
    a(f"s_cbranch_scc1 {done}")
    a(f"s_cmp_ge_u32 s75, {stage}")
    a(f"s_cbranch_scc1 {done}")
    a(f"s_sleep {lslp}")
    a(f"s_branch {lab}")
    a.label(done)

def cvt_tile(a, acc, dst, lo=0, hi=16):
    for i in range(lo, hi, 2):
        a(f"v_cvt_pk_bf16_f32 v{dst + (i - lo)//2}, v{acc+i}, v{acc+i+1}")

def frag_addrs(a, sbase):
    a("v_lshrrev_b32 v4, 3, v2")
    a("v_and_b32 v5, 7, v2")
    a("v_bfe_u32 v7, v2, 4, 1")
    a("v_lshlrev_b32 v7, 2, v7")
    a("v_xor_b32 v5, v5, v7")
    a("v_lshlrev_b32 v5, 4, v5")
    a("v_lshl_add_u32 v10, v4, 10, v5")
    a("v_add_u32 v11, 7168, v10")
    a("v_bfe_u32 v4, v2, 2, 2")
    a("v_lshrrev_b32 v5, 5, v2")
    a("v_lshl_add_u32 v5, v5, 2, v4")
    a("v_lshlrev_b32 v5, 7, v5")
    a("v_lshrrev_b32 v4, 1, v4")
    a("v_lshl_add_u32 v5, v4, 6, v5")
    a("v_bfe_u32 v4, v2, 4, 1")
    a("v_lshl_add_u32 v5, v4, 5, v5")
    a("v_and_b32 v4, 3, v2")
    a("v_lshl_add_u32 v5, v4, 3, v5")
    a("v_xor_b32 v13, 64, v5")
    a(f"v_add_u32 v12, {sbase}, v5")
    a(f"v_add_u32 v13, {sbase}, v13")

def part_addrs(a, sbase, r):
    a(f"v_lshrrev_b32 v{r}, 5, v2")
    a(f"v_and_b32 v{r+1}, 7, v2")
    a(f"v_xor_b32 v{r}, v{r}, v{r+1}")
    a(f"v_and_b32 v{r+1}, 31, v2")
    a(f"v_lshlrev_b32 v{r+1}, 8, v{r+1}")
    a(f"v_lshl_add_u32 v{r}, v{r}, 4, v{r+1}")
    for g in range(1, 4):
        a(f"v_xor_b32 v{r+g}, {32*g}, v{r}")
    for g in range(4):
        a(f"v_add_u32 v{r+g}, {sbase}, v{r+g}")

def part_write(a, GA, r):
    for n in range(2):
        for t in range(2):
            acc = GA + (n * 2 + t) * 16
            for g in range(4):
                a(f"ds_write_b128 v{r+g}, {v(acc+4*g,4)} offset:{t*8192 + n*128}")

def lds_wait(a, vaddr, vdst, cmp_lines, first_read=True):
    lab, done = a.newlabel("LW"), a.newlabel("LWD")
    a(f"s_mov_b32 s74, {SPIN*8}")
    if first_read:
        a(f"ds_read_b32 v{vdst}, v{vaddr}")
    a.label(lab)
    a("s_waitcnt lgkmcnt(0)")
    a(f"v_readfirstlane_b32 s75, v{vdst}")
    a("s_sub_u32 s74, s74, 1")
    a(f"s_cbranch_scc1 {done}")
    for l in cmp_lines:
        a(l)
    a(f"s_cbranch_scc1 {done}")
    a("s_sleep 1")
    a(f"ds_read_b32 v{vdst}, v{vaddr}")
    a(f"s_branch {lab}")
    a.label(done)

def gen(a):
    kernel_header(a, KNAME)
    if PROF == 7:
        a("s_memrealtime s[100:101]")
    a("s_cmp_ge_u32 s2, 256")
    a("s_cbranch_scc1 K_EXIT")
    if env("SHUF", 0) == 1:
        a("s_lshr_b32 s3, s2, 3")
        a("s_lshl_b32 s2, s2, 5")
        a("s_or_b32 s2, s2, s3")
        a("s_and_b32 s2, s2, 255")
    if env("SHUF", 0) == 2:
        a("s_mul_i32 s2, s2, 37")
        a("s_add_u32 s2, s2, 11")
        a("s_and_b32 s2, s2, 255")
    if env("JIT", 0):
        a("s_mul_i32 s3, s2, 2654435761")
        a("s_lshr_b32 s3, s3, 27")
        a.label("JIT_L")
        a("s_sleep 8")
        a("s_sub_u32 s3, s3, 1")
        a("s_cbranch_scc0 JIT_L")
    a("s_load_dwordx4 s[4:7], s[0:1], 0       ; x, wqkv")
    a("v_lshrrev_b32 v1, 6, v0")
    a("v_and_b32 v2, 63, v0                   ; lane")
    a("v_readfirstlane_b32 s20, v1")
    VX0, VX1, VR0, VR1, VKV = 10, 11, 12, 13, 14
    if FASTX:
        assert ROT1 == 2 and PRE == 2
        a("v_lshrrev_b32 v4, 3, v2")
        a("v_and_b32 v5, 7, v2")
        a("v_lshrrev_b32 v6, 4, v2")
        a("v_xor_b32 v7, v5, v6")
        a("v_lshlrev_b32 v7, 4, v7")
        a(f"v_lshl_add_u32 v{VX0}, v4, 10, v7")
        a(f"v_xor_b32 v{VX1}, 64, v{VX0}")
        a("s_bfe_u32 s63, s2, 0x30003")
        a("s_and_b32 s40, s2, 1")
        a("s_lshl_b32 s40, s40, 3")
        a("s_add_u32 s40, s40, s63                ; rb")
        a("s_lshl_b32 s40, s40, 2")
        a("s_and_b32 s42, s20, 3")
        a("s_add_u32 s40, s40, s42")
        a("s_lshl_b32 s40, s40, 15")
        a("s_lshl_b32 s42, s42, 12")
        a("s_lshr_b32 s37, s2, 6")
        a("s_add_u32 s37, s37, s63")
        a("s_lshl_b32 s37, s37, 1")
        a("s_lshr_b32 s38, s20, 2")
        a("s_add_u32 s37, s37, s38")
        a("s_and_b32 s37, s37, 7")
        a("s_lshl_b32 s37, s37, 7")
        a("s_add_u32 s37, s37, s40")
        a("s_cmp_lt_u32 s20, 4")
        a(f"s_mov_b32 s38, {slot_of(1)}")
        a(f"s_cselect_b32 s38, {slot_of(0)}, s38")
        a("s_add_u32 s38, s38, s42")
        a("s_mov_b32 s46, 0x200000")
        a("s_mov_b32 s47, 0x20000")
        a("s_waitcnt lgkmcnt(0)")
        a("s_mov_b64 s[44:45], s[4:5]")
        for i in range(4):
            a(f"s_add_u32 m0, s38, {i*1024}")
            a(f"s_add_u32 s39, s37, {i*8192}")
            a(f"buffer_load_dwordx4 v{VX1 if i & 1 else VX0}, s[44:47], s39 offen lds")
    a("s_load_dwordx4 s[12:15], s[0:1], 32")
    a("s_load_dwordx2 s[8:9], s[0:1], 16      ; wo")
    a("s_load_dwordx2 s[10:11], s[0:1], 80    ; ws")
    a("s_load_dwordx4 s[16:19], s[0:1], 48")
    a("s_load_dwordx4 s[64:67], s[0:1], 64")
    a("v_lshlrev_b32 v3, 4, v2                ; lane*16")
    stamp(a, 0)
    a("s_and_b32 s24, s2, 1                   ; xh")
    a("s_bfe_u32 s25, s2, 0x20001             ; xq")
    a("s_lshr_b32 s26, s2, 3                  ; j")
    a("s_and_b32 s63, s26, 7")
    a("s_lshl_b32 s21, s24, 3")
    a("s_add_u32 s21, s21, s63                ; rb")
    a("s_lshr_b32 s27, s26, 3")
    a("s_mul_i32 s22, s25, 3")
    a("s_add_u32 s22, s22, s27")
    a("s_add_u32 s23, s25, 12")
    a("s_cmp_eq_u32 s27, 3")
    a("s_cselect_b32 s22, s23, s22            ; cb2")
    if FMAP:
        a("s_and_b32 s72, s2, 7")
        a("s_lshl_b32 s72, s72, 2")
        a("s_and_b32 s73, s26, 3")
        a("s_add_u32 s72, s72, s73                ; rb64")
        a("s_lshr_b32 s73, s26, 2                 ; cb64")
    else:
        a("s_lshl_b32 s72, s25, 3")
        a("s_add_u32 s72, s72, s63                ; rb64")
        a("s_lshl_b32 s73, s24, 2")
        a("s_add_u32 s73, s73, s27                ; cb64")
    if ROT1 == 1:
        a("s_lshl_b32 s27, s27, 1")
        a("s_add_u32 s63, s63, s27")
    elif ROT1 == 2:
        a("s_add_u32 s63, s63, s27")
        a("s_lshl_b32 s63, s63, 1")
    elif ROT1 == 3:
        a("s_add_u32 s63, s63, s27")
        a("s_lshl_b32 s63, s63, 2")
    a(f"s_and_b32 s63, s63, {7 if ROT1 else 0}")
    a("s_and_b32 s70, s2, 7")
    a("s_lshl_b32 s70, s70, 2")
    a("s_and_b32 s27, s26, 3")
    a("s_add_u32 s70, s70, s27                ; head")
    a("s_lshr_b32 s71, s26, 2                 ; qb")
    a("s_cmp_lt_u32 s20, 4")
    a("s_cbranch_scc1 K1_COMPUTE")

    a("s_sub_u32 s23, s20, 4                  ; L")
    if LPRIO:
        a(f"s_setprio {LPRIO}")
    if not FASTX:
        a("v_lshrrev_b32 v4, 3, v2")
        a("v_and_b32 v5, 7, v2")
        a("v_lshrrev_b32 v6, 4, v2")
        a("v_xor_b32 v7, v5, v6")
        a("v_lshlrev_b32 v7, 4, v7")
        a(f"v_lshl_add_u32 v{VX0}, v4, 10, v7")
        a(f"v_xor_b32 v{VX1}, 64, v{VX0}")
    a("v_and_b32 v7, 1, v6")
    a("v_lshlrev_b32 v7, 2, v7")
    a("v_xor_b32 v7, v7, v5")
    a("v_lshlrev_b32 v7, 4, v7")
    a("v_mul_u32_u24 v8, 3072, v4")
    a(f"v_add_u32 v{VKV}, v8, v7")
    a("v_mul_u32_u24 v8, 3584, v4")
    a("v_add_u32 v15, v8, v7")
    a("s_cmp_lt_u32 s22, 12")
    a("s_cselect_b64 vcc, -1, 0")
    a("s_movk_i32 s60, 3072")
    a("s_cselect_b32 s60, 3584, s60")
    a(f"v_cndmask_b32 v{VR0}, v{VKV}, v15, vcc")
    a(f"v_xor_b32 v{VR1}, 32, v{VR0}")
    a("s_cselect_b32 s32, 0, 12")
    a("s_sub_u32 s32, s22, s32")
    a("s_lshl_b32 s32, s32, 8")
    a("s_lshl_b32 s61, s22, 1")
    a("s_add_u32 s61, s61, 1")
    a("s_add_u32 s34, s22, 12")
    a("s_cmp_lt_u32 s22, 12")
    a("s_cselect_b32 s33, 0, 128              ; R1 - R0")
    a("s_cselect_b32 s61, s61, s34")
    a("s_lshl_b32 s61, s61, 7")
    a("s_mul_i32 s34, s23, 57344")
    a("s_add_u32 s61, s61, s34")
    a("s_lshl_b32 s34, s23, 4")
    a("s_mul_i32 s34, s34, s60")
    a("s_add_u32 s32, s32, s34")
    a("s_lshl_b32 s62, s60, 6")
    a("s_lshl_b32 s36, s60, 3                 ; 8 rows")
    a("s_mul_i32 s34, s23, 49152")
    a("s_lshl_b32 s35, s22, 7")
    a("s_add_u32 s34, s34, s35")
    a("s_add_u32 s34, s34, 1024")
    if not FASTX:
        a("s_lshl_b32 s40, s21, 17")
        a("s_lshl_b32 s41, s23, 15")
        a("s_add_u32 s40, s40, s41                ; x base")
        a("s_lshl_b32 s42, s23, 12")
    a("s_lshl_b32 s35, s23, 11")
    a("s_mov_b32 s43, s63                     ; kc")
    a("s_waitcnt lgkmcnt(0)")
    srd(a, 24, 4, 0x200000)
    srd(a, 44, 6, 0x180000)
    a("s_cmp_lt_u32 s22, 12")
    a("s_cselect_b64 s[48:49], s[12:13], s[6:7]")
    a("s_cselect_b64 s[52:53], s[14:15], s[6:7]")
    a("s_cselect_b32 s50, 0x1c0000, s46")
    a("s_mov_b32 s54, s50")
    a("s_mov_b32 s51, 0x20000")
    a("s_mov_b32 s55, 0x20000")
    queue = []
    def issue(c):
        slot = slot_of(c)
        a("s_lshl_b32 s37, s43, 7")
        a("s_add_u32 s37, s37, s40")
        a("s_mul_i32 s38, s43, s62")
        a("s_add_u32 s38, s38, s32")
        for i in range(2):
            a(f"s_add_u32 m0, s35, {slot + 16384 + i*1024}")
            a("s_add_u32 s39, s38, s33")
            a(f"buffer_load_dwordx4 v{VR0}, s[48:51], s38 offen lds")
            a(f"s_add_u32 m0, s35, {slot + 24576 + i*1024}")
            a("s_add_u32 s38, s38, s36")
            a(f"buffer_load_dwordx4 v{VR1}, s[52:55], s39 offen lds")
        if c < 8:
            a("s_mul_i32 s38, s43, 196608")
            a("s_add_u32 s38, s38, s34")
            for i in range(2):
                a(f"s_add_u32 m0, s35, {slot + 32768 + i*1024}")
                a(f"s_add_u32 s39, s38, {i*24576}")
                a(f"buffer_load_dwordx4 v{VKV}, s[44:47], s39 offen lds")
        nox = FASTX and c < 2
        for i in range(0 if nox else 4):
            a(f"s_add_u32 m0, s42, {slot + i*1024}")
            a(f"s_add_u32 s39, s37, {i*8192}")
            a(f"buffer_load_dwordx4 v{VX1 if i & 1 else VX0}, s[24:27], s39 offen lds")
        a("s_add_u32 s43, s43, 1")
        a("s_and_b32 s43, s43, 7")
        if c == 7:
            if ROT2:
                a("s_and_b32 s43, s21, 7")
            a("s_mov_b32 s32, s61")
            a("s_mov_b32 s33, 0")
            a("s_mov_b32 s62, 229376")
            a("s_mov_b32 s36, 28672")
            a("s_mov_b64 s[48:49], s[12:13]")
            a("s_mov_b64 s[52:53], s[14:15]")
            a("s_mov_b32 s50, 0x1c0000")
            a("s_mov_b32 s54, 0x1c0000")
            a(f"v_mov_b32 v{VR0}, v15")
            a(f"v_xor_b32 v{VR1}, 32, v15")
        queue.extend([c] * ((10 if c < 8 else 8) - (4 if nox else 0)))
    def waitq(tag):
        n = len(queue) - 1 - max(i for i, t in enumerate(queue) if t == tag)
        a(f"s_waitcnt vmcnt({n})")
    stamp(a, 2, 7)
    if PROF == 7:
        a("s_mov_b32 s81, s80")
        a("s_mov_b32 s80, s100")
    issue(0)
    stamp(a, 3, 7)
    if PRE == 2:
        issue(1)
    stamp(a, 4, 7)
    stamp(a, 1)
    srd(a, 28, 10, WS_SIZE)
    a("v_mov_b32 v9, 0")
    a("s_add_u32 s37, s2, s20")
    a("s_cmp_eq_u32 s37, 4")
    a("s_cbranch_scc0 K1_NOTAG")
    a("s_memrealtime s[56:57]")
    a("s_waitcnt lgkmcnt(0)")
    a("s_or_b32 s56, s56, 1")
    a("s_or_b32 s57, s57, 0x80000000")
    a("v_mov_b32 v4, s56")
    a("v_mov_b32 v5, s57")
    a("s_mov_b64 exec, 1")
    a("global_store_dwordx2 v9, v[4:5], s[66:67] sc1")
    a("s_mov_b64 exec, -1")
    a.label("K1_NOTAG")
    def get_tag():
        lab, done = a.newlabel("TAG"), a.newlabel("TAGD")
        a(f"s_mov_b32 s74, {SPIN}")
        a("v_readfirstlane_b32 s68, v60")
        a("v_readfirstlane_b32 s69, v61")
        a.label(lab)
        a("s_sub_u32 s74, s74, 1")
        a(f"s_cbranch_scc1 {done}")
        a("s_min_u32 s75, s68, s69")
        a("s_cmp_lg_u32 s75, 0")
        a(f"s_cbranch_scc1 {done}")
        a("global_load_dwordx2 v[60:61], v9, s[66:67] sc1")
        a("s_waitcnt vmcnt(0)")
        a("v_readfirstlane_b32 s68, v60")
        a("v_readfirstlane_b32 s69, v61")
        a("s_sleep 2")
        a(f"s_branch {lab}")
        a.label(done)
        a(f"v_mov_b32 v4, {LDS_TAG}")
        a("v_mov_b32 v60, s68")
        a("v_mov_b32 v61, s69")
        a("ds_write_b64 v4, v[60:61]")
        a("ds_write_b32 v4, v9 offset:8")
        a("ds_write_b32 v4, v9 offset:12")
        a("ds_write_b32 v4, v9 offset:16")
        a("ds_write_b32 v4, v9 offset:20")
        a("s_waitcnt lgkmcnt(0)")
    def flag_a():
        lab = a.newlabel("FA")
        a("s_cmp_lg_u32 s23, 1")
        a(f"s_cbranch_scc1 {lab}")
        a("s_lshl_b32 s37, s22, 4")
        a("s_add_u32 s37, s37, s21")
        a("s_lshl_b32 s37, s37, 7")
        a(f"s_add_u32 s37, s37, {FL_A}")
        flag_store(a, "s37", 16)
        a.label(lab)
    def kv_setup():
        a("v_and_b32 v5, 15, v2")
        a("v_lshlrev_b32 v5, 7, v5")
        a("v_bfe_u32 v6, v2, 4, 1")
        a("v_lshl_add_u32 v5, v6, 14, v5")
        a("s_and_b32 s56, s2, 7")
        a("s_lshr_b32 s57, s56, 1")
        a("s_add_u32 s57, s57, 12")
        a("s_sub_u32 s57, s57, s56")
        a("s_lshl_b32 s57, s57, 11")
        a("s_lshl_b32 s58, s71, 8")
        a("s_add_u32 s57, s57, s58")
        a("v_and_b32 v6, 1, v2")
        a("v_lshlrev_b32 v6, 7, v6")
        a("v_add_u32 v6, s57, v6")
        a("v_cmp_gt_u32 vcc, 32, v2")
        a("s_lshl_b32 s56, s56, 11")
        a(f"s_add_u32 s56, s56, {FL_A}")
        a("v_cndmask_b32 v5, v6, v5, vcc")
        a("s_lshl_b32 s57, s70, 16")
        a("s_lshl_b32 s58, s23, 10")
        a("s_add_u32 s57, s57, s58                ; head*64K + L*1K")
        a(f"s_add_u32 s57, s57, {WS_K}")
        a(f"s_mul_i32 s58, s23, {TP}")
    def kv_loads(lo, hi):
        n = hi - lo
        a(f"s_mul_i32 s44, s71, {n}")
        a("s_lshr_b32 s44, s44, 3")
        for i in range(n):
            a(f"s_mul_i32 s45, s44, {4*TP}")
            a("s_add_u32 s45, s45, s58")
            a(f"s_add_u32 m0, s45, {lo*4*TP}")
            a("s_lshl_b32 s37, s44, 12")
            a("s_add_u32 s37, s37, s57")
            a(f"s_add_u32 s38, s37, {lo*4096}")
            a(f"buffer_load_dwordx4 v3, s[28:31], s38 offen{SC} lds")
            a(f"s_add_u32 m0, s45, {lo*4*TP + 1024}")
            a(f"s_add_u32 s38, s37, {lo*4096 + WS_V - WS_K}")
            a(f"buffer_load_dwordx4 v3, s[28:31], s38 offen{SC} lds")
            if i < n - 1:
                a("s_add_u32 s44, s44, 1")
                a(f"s_cmp_eq_u32 s44, {n}")
                a("s_cselect_b32 s44, 0, s44")
        queue.extend(["kv"] * (2 * n))
    def q_loads():
        a("s_lshl_b32 s37, s70, 6")
        a("s_lshl_b32 s38, s71, 3")
        a("s_add_u32 s37, s37, s38")
        a("s_lshl_b32 s38, s23, 1")
        a("s_add_u32 s37, s37, s38")
        a("s_lshl_b32 s37, s37, 10")
        a("s_lshl_b32 s38, s23, 11")
        a(f"s_add_u32 m0, s38, {LDS_Q}")
        a("s_nop 0")
        a(f"buffer_load_dwordx4 v3, s[28:31], s37 offen{SC} lds")
        a(f"buffer_load_dwordx4 v3, s[28:31], s37 offen offset:1024{SC} lds")
    def fa_load():
        a("buffer_load_dwordx2 v[20:21], v5, s[28:31], s56 offen sc1")
    def fa_test():
        a("v_xor_b32 v20, s68, v20")
        a("v_xor_b32 v21, s69, v21")
        a("v_or_b32 v20, v20, v21")
        a("v_cmp_ne_u32 vcc, 0, v20")
        a("s_nop 1")
        a("s_cmp_eq_u64 vcc, 0")
    for c in range(14):
        waitq(c)
        if c == 6:
            get_tag()
        if c < 2:
            stamp(a, c + 5, 7)
        if c < 6:
            stamp(a, c + 1, 2)
        if 6 <= c < 12:
            stamp(a, c - 5, 3)
        if c >= 10:
            stamp(a, c - 9, 4)
        a(f"s_barrier                              ; b({c})")
        if c == 8:
            stamp(a, 2)
        if c == 4:
            a("global_load_dwordx2 v[60:61], v9, s[66:67] sc1")
        if c == AFLAG:
            flag_a()
        if c == 12:
            kv_setup()
        if c == 0 and PRE == 1:
            issue(1)
        if c + 2 < 16:
            issue(c + 2)
        if c == PFC:
            a("s_cmp_ge_u32 s23, 2")
            a("s_cbranch_scc1 K1_NOPF2")
            a("s_cmp_eq_u32 s23, 0")
            a("s_cselect_b64 s[56:57], s[12:13], s[14:15]")
            a("s_mov_b32 s58, 0x1c0000")
            a("s_mov_b32 s59, 0x20000")
            a("v_mul_u32_u24 v16, 3584, v2")
            a("s_mul_i32 s37, s23, 57344")
            a("s_sub_u32 s37, s61, s37")
            a("s_and_b32 s38, s21, 7")
            a("s_mul_i32 s38, s38, 229376")
            a("s_add_u32 s37, s37, s38")
            a("buffer_load_dword v17, v16, s[56:59], s37 offen")
            a.label("K1_NOPF2")
    srd(a, 48, 18, 1024)
    a("s_lshl_b32 s76, s2, 2")
    a("s_add_u32 s76, s76, s23")
    a("s_lshl_b32 s55, s76, 11")
    a("buffer_load_dwordx4 v[64:67], v3, s[48:51], 0 offen")
    a("buffer_load_dwordx4 v[24:27], v3, s[24:27], s55 offen")
    a("buffer_load_dwordx4 v[28:31], v3, s[24:27], s55 offen offset:1024")
    fa_load()
    a("s_waitcnt vmcnt(4)")
    a("s_barrier                              ; b(14)")
    a("s_waitcnt vmcnt(0)")
    fa_test()
    a("s_cbranch_scc1 KV_GO")
    poll(a, "s56", 5, 8, 1)
    a.label("KV_GO")
    q_loads()
    kv_loads(0, 3)
    a("v_mov_b32 v32, 0")
    a("v_mov_b32 v33, 0")
    for q in range(4):
        a(f"v_dot2_f32_bf16 v32, v{24+q}, v{64+q}, v32")
        a(f"v_dot2_f32_bf16 v33, v{28+q}, v{64+q}, v33")
    a("s_nop 2")
    a("v_permlane32_swap_b32 v32, v33")
    a("s_nop 1")
    a("v_add_f32 v32, v32, v33")
    for ctl in ("quad_perm:[1,0,3,2]", "quad_perm:[2,3,0,1]", "row_half_mirror", "row_mirror"):
        a("s_nop 1")
        a(f"v_add_f32_dpp v32, v32, v32 {ctl} row_mask:0xf bank_mask:0xf")
    a("v_mov_b32 v33, v32")
    a("s_nop 1")
    a("v_permlane16_swap_b32 v32, v33")
    a("s_nop 1")
    a("v_add_f32 v32, v32, v33")
    a(f"v_mul_f32 v32, {fh(-LOG2E)}, v32")
    a("v_exp_f32 v32, v32")
    a("v_lshrrev_b32 v70, 5, v2")
    a("v_add_f32 v32, 1.0, v32")
    a("v_rcp_f32 v68, v32")
    a("v_lshlrev_b32 v70, 3, v70")
    a("v_mov_b32 v69, s68")
    a("s_branch K2_GEMM")

    a.label("K1_COMPUTE")
    AF = 96
    AK = 224
    def accF(sw, i, t):
        return AF + ((sw * 2 + i) * 2 + t) * 16
    XA = [4, 5, 6, 7]
    WA = [8, 9]
    KA = 10
    a("s_and_b32 s23, s20, 1                  ; tp")
    a("s_lshr_b32 s24, s20, 1                 ; grp")
    a("v_bfe_u32 v16, v2, 4, 1                ; gsel")
    a("v_lshrrev_b32 v17, 5, v2               ; h")
    a("v_bfe_u32 v18, v2, 2, 2                ; r")
    a("v_and_b32 v19, 3, v2                   ; c")
    a("v_lshl_add_u32 v20, v17, 3, v18        ; 8h+r")
    a("v_and_b32 v21, 31, v2")
    a("v_lshlrev_b32 v21, 7, v21")
    a("v_bfe_u32 v22, v2, 1, 3")
    a("v_xor_b32 v22, v22, v17")
    a("v_lshl_add_u32 v21, v22, 4, v21")
    a("s_lshl_b32 s25, s23, 13")
    a(f"s_add_u32 s25, s25, {slot_of(0)}")
    for s_ in range(4):
        a(f"v_xor_b32 v{XA[s_]}, {32*s_}, v21")
        a(f"v_add_u32 v{XA[s_]}, s25, v{XA[s_]}")
    a("v_lshlrev_b32 v20, 7, v20")
    a("v_lshl_add_u32 v20, v19, 3, v20        ; row*128 + c*8")
    a("v_lshrrev_b32 v21, 1, v18")
    a("v_xor_b32 v21, s24, v21                ; grp ^ (r>>1)")
    a("v_lshl_add_u32 v20, v21, 6, v20")
    a("v_lshl_add_u32 v20, v16, 5, v20")
    a(f"v_add_u32 v{KA}, {slot_of(0) + 32768}, v20")
    a("v_lshl_add_u32 v20, v16, 13, v20")
    a("v_xor_b32 v21, 32, v20")
    a(f"v_add_u32 v{WA[0]}, {slot_of(0) + 16384}, v20")
    a(f"v_add_u32 v{WA[1]}, {slot_of(0) + 16384}, v21")
    a("v_and_b32 v11, 0x33, v2")
    a("v_bfe_u32 v17, v2, 2, 1")
    a("v_lshl_or_b32 v11, v17, 3, v11")
    a("v_bfe_u32 v17, v2, 3, 1")
    a("v_lshl_or_b32 v11, v17, 2, v11")
    a("v_lshlrev_b32 v11, 4, v11              ; K voffset")
    a("s_cmp_lt_u32 s22, 8")
    a("s_cbranch_scc1 K1_KOFF")
    a("v_lshlrev_b32 v11, 16, v16")
    a("v_lshrrev_b32 v18, 5, v2")
    a("v_lshl_or_b32 v11, v18, 8, v11")
    a("v_and_b32 v18, 15, v2")
    a("v_lshl_or_b32 v11, v18, 4, v11         ; V voffset")
    a.label("K1_KOFF")
    for i in range(160):
        a(f"v_mov_b32 v{AF+i}, 0")
    a("s_waitcnt lgkmcnt(0)")
    srd(a, 28, 10, WS_SIZE)
    if CODEPF:
        a("s_getpc_b64 s[50:51]")
        a.label("PC_HERE")
        a(f"s_sub_u32 s50, s50, PC_HERE-{KNAME}")
        a("s_subb_u32 s51, s51, 0")
        a("s_lshr_b32 s49, s2, 3")
        a("s_lshl_b32 s49, s49, 2")
        a("s_add_u32 s49, s49, s20")
        a("s_lshl_b32 s49, s49, 9")
        a("v_lshlrev_b32 v21, 3, v2")
        a("v_add_u32 v21, s49, v21")
        a(f"v_min_u32 v21, K_END-{KNAME}-4, v21")
        a("global_load_dword v21, v21, s[50:51]")
    a("s_lshl_b32 s32, s21, 2")
    a("s_lshl_b32 s33, s23, 1")
    a("s_add_u32 s32, s32, s33                ; tt0")
    a("s_and_b32 s36, s22, 7")
    a("s_lshl_b32 s36, s36, 2")
    a("s_lshl_b32 s37, s24, 1")
    a("s_add_u32 s36, s36, s37")
    a("s_lshl_b32 s36, s36, 6")
    a("s_add_u32 s36, s36, s32")
    a("s_lshl_b32 s36, s36, 10")
    a("s_cmp_lt_u32 s22, 8")
    a(f"s_mov_b32 s38, {WS_V}")
    a(f"s_cselect_b32 s38, {WS_K}, s38")
    a("s_movk_i32 s37, 512")
    a("s_cselect_b32 s37, 0x10000, s37")
    a("s_add_u32 s36, s36, s38")
    a("s_add_u32 s37, s37, s36")
    a("s_mov_b32 s25, 2")
    a("s_mov_b32 s26, 8")
    BB = [24, 44]
    def reads(s_, buf, kv):
        L = [f"ds_read_b128 {v(buf,4)}, v{XA[s_]}"]
        for t in range(2):
            for u in range(2):
                L.append(f"ds_read_b64_tr_b16 {v(buf+8+4*t+2*u,2)}, v{WA[t]} offset:{(16*s_+4*u)*128}")
            if t == 0:
                L.append(f"ds_read_b128 {v(buf+4,4)}, v{XA[s_]} offset:4096")
        if kv:
            for u in range(2):
                L.append(f"ds_read_b64_tr_b16 {v(buf+16+2*u,2)}, v{KA} offset:{(16*s_+4*u)*128}")
        return L
    def mfs(buf, sw, vtype):
        L = []
        for t in range(2):
            for i in range(2):
                acc = accF(sw, i, t)
                L.append(f"{MF} {v(acc,16)}, {v(buf+8+4*t,4)}, {v(buf+4*i,4)}, {v(acc,16)}")
        if sw == 0:
            for i in range(2):
                acc = AK + 16 * i
                A_, B_ = v(buf + 16, 4), v(buf + 4 * i, 4)
                if vtype:
                    A_, B_ = B_, A_
                L.append(f"{MF} {v(acc,16)}, {A_}, {B_}, {v(acc,16)}")
        return L
    def sweep(name, sw, vtype):
        a.raw(".p2align 6")
        a.label(name)
        kv = sw == 0
        nr = 8 if kv else 6
        for s_ in range(4):
            upd = []
            if s_ == 2:
                upd = ["s_add_u32 s25, s25, 1", "s_cmp_eq_u32 s25, 3", f"s_mov_b32 s27, {SL}",
                       f"s_cselect_b32 s27, {(-2*SL) & 0xffffffff:#x}, s27", "s_cselect_b32 s25, 0, s25"]
                upd += [f"v_add_u32 v{r}, s27, v{r}" for r in XA + WA + ([KA] if kv else [])]
            if s_ == 1 and sw == 1:
                upd = [f"s_cmp_lg_u32 s26, {17 - AFLAG}", f"s_cbranch_scc1 {name}_ND", "s_waitcnt vmcnt(0)", f"{name}_ND:"]
            M = mfs(BB[s_ & 1], sw, vtype)
            if s_ < 3:
                R = reads(s_ + 1, BB[(s_ + 1) & 1], kv)
                seq = [f"s_waitcnt lgkmcnt({nr-4})", M[0], R[0], R[1], M[1], R[2], R[3], "s_waitcnt lgkmcnt(4)", M[2], R[4], R[5]]
                if kv:
                    seq += [M[3], R[6], R[7], M[4]] + upd[:7] + [M[5]] + upd[7:]
                elif s_ == 1:
                    seq += [M[3]] + upd
                else:
                    seq += upd[:5] + [M[3]] + upd[5:]
            else:
                R = reads(0, BB[0], kv)
                tail = ["s_sub_u32 s26, s26, 1", "s_cmp_lg_u32 s26, 0"]
                seq = [f"s_waitcnt lgkmcnt({nr-4})", M[0], "s_waitcnt lgkmcnt(0)", "s_barrier", R[0], M[1], R[1], R[2], R[3], M[2], R[4], R[5]]
                if kv:
                    seq += [M[3], R[6], R[7], M[4]] + tail + [M[5]]
                else:
                    seq += tail + [M[3]]
            for l in seq:
                a(l)
        a(f"s_cbranch_scc1 {name}")
    if FASTX:
        a(f"s_waitcnt vmcnt({1 if CODEPF else 0})")
    a("s_barrier                              ; b(0)")
    stamp(a, 1)
    for l in reads(0, BB[0], True):
        a(l)
    a("s_cmp_lt_u32 s22, 8")
    a("s_cbranch_scc0 SW1V")
    sweep("SW1K", 0, False)
    a("s_branch K1_KVEPI")
    sweep("SW1V", 0, True)
    a.label("K1_KVEPI")
    stamp(a, 2)
    c0 = -2.0 * 0.7978845608028654 * LOG2E
    c1 = c0 * 0.044715
    T = 64
    TB = 16
    def gelu_tile(acc, out, pk):
        L = []
        if pk:
            for j in range(0, 8, 2):
                L.append(f"v_pk_mul_f32 {v(TB+j,2)}, {v(acc+j,2)}, {v(acc+j,2)}")
            for j in range(0, 8, 2):
                L.append(f"v_pk_fma_f32 {v(TB+j,2)}, {v(TB+j,2)}, s[34:35], v[12:13]")
            for j in range(0, 8, 2):
                L.append(f"v_pk_mul_f32 {v(TB+j,2)}, {v(TB+j,2)}, {v(acc+j,2)}")
            for j in range(8):
                L.append(f"v_exp_f32 v{TB+j}, v{TB+j}")
            for j in range(0, 4, 2):
                L.append(f"v_pk_mul_f32 {v(acc+8+j,2)}, {v(acc+8+j,2)}, {v(acc+j,2)}")
            for j in range(0, 8, 2):
                L.append(f"v_pk_add_f32 {v(TB+j,2)}, {v(TB+j,2)}, v[14:15]")
            for j in range(8):
                L.append(f"v_rcp_f32 v{TB+j}, v{TB+j}")
            for j in range(4, 8, 2):
                L.append(f"v_pk_mul_f32 {v(acc+8+j,2)}, {v(acc+8+j,2)}, {v(acc+j,2)}")
            for j in range(0, 8, 2):
                L.append(f"v_pk_mul_f32 {v(acc+8+j,2)}, {v(acc+8+j,2)}, {v(TB+j,2)}")
        else:
            for j in range(8):
                L.append(f"v_mul_f32 v{TB+j}, v{acc+j}, v{acc+j}")
            for j in range(8):
                L.append(f"v_fma_f32 v{TB+j}, v{TB+j}, s34, v12")
            for j in range(8):
                L.append(f"v_mul_f32 v{TB+j}, v{TB+j}, v{acc+j}")
            for j in range(8):
                L.append(f"v_exp_f32 v{TB+j}, v{TB+j}")
                L.append(f"v_mul_f32 v{acc+8+j}, v{acc+8+j}, v{acc+j}")
            for j in range(8):
                L.append(f"v_add_f32 v{TB+j}, 1.0, v{TB+j}")
            for j in range(8):
                L.append(f"v_rcp_f32 v{TB+j}, v{TB+j}")
                if j >= 2:
                    L.append(f"v_mul_f32 v{acc+8+j-2}, v{acc+8+j-2}, v{TB+j-2}")
            L.append(f"v_mul_f32 v{acc+14}, v{acc+14}, v{TB+6}")
            L.append(f"v_mul_f32 v{acc+15}, v{acc+15}, v{TB+7}")
        for j in range(0, 8, 2):
            L.append(f"v_cvt_pk_bf16_f32 v{out + j//2}, v{acc+8+j}, v{acc+8+j+1}")
        return L
    def kv_fill():
        L = []
        for i in range(2):
            for j in range(0, 16, 2):
                L.append(f"v_cvt_pk_bf16_f32 v{T + 8*i + j//2}, v{AK+16*i+j}, v{AK+16*i+j+1}")
                if j == 6:
                    L.append(f"buffer_store_dwordx4 {v(T+8*i,4)}, v11, s[28:31], s36 offen offset:{i*1024}{SC}")
            L.append(f"buffer_store_dwordx4 {v(T+8*i+4,4)}, v11, s[28:31], s37 offen offset:{i*1024}{SC}")
        return L
    def q_fill():
        L = []
        for t in range(2):
            for i in range(2):
                acc = accF(0, i, t)
                for hf in range(2):
                    for j in range(8):
                        L.append(f"v_mul_f32 v{acc+8*hf+j}, s34, v{acc+8*hf+j}")
                    for j in range(0, 8, 2):
                        L.append(f"v_cvt_pk_bf16_f32 v{acc+8*hf+j//2}, v{acc+8*hf+j}, v{acc+8*hf+j+1}")
                    L.append(f"s_add_u32 s39, s38, {WS_Q + (t + 4*hf) * 65536}\nbuffer_store_dwordx4 {v(acc+8*hf,4)}, v3, s[28:31], s39 offen offset:{i*1024}{SC}")
        return L
    def cost(l):
        return 8 if l.startswith(("v_exp", "v_rcp")) else 4
    def sweep2(fill, early):
        nsteps = 32
        esteps = 4 * (AFLAG - 9) - 1
        parts = [[] for _ in range(nsteps)]
        E, Rr = fill[:early], fill[early:]
        def spread(L, lo, hi):
            tot = sum(cost(l) for l in L)
            acc_ = 0
            for l in L:
                st = lo + min(hi - lo - 1, int(acc_ * (hi - lo) / max(tot, 1)))
                parts[st].append(l)
                acc_ += cost(l)
        ecost = sum(cost(l) for l in E)
        ehi = min(esteps + 1, 1 + max(1, -(-ecost // 48)))
        spread(E, 1, ehi)
        spread(Rr, ehi, nsteps)
        for c in range(8, 16):
            for s_ in range(4):
                st = (c - 8) * 4 + s_
                F = list(parts[st])
                M = mfs(BB[s_ & 1], 1, False)
                d = slot_of(c + 1) - slot_of(c)
                upd = [f"v_add_u32 v{r}, {d & 0xffffffff:#x}, v{r}" for r in XA + WA] if (s_ == 2 and c < 15) else []
                def split(F, wts):
                    tot = sum(cost(l) for l in F); out = [[] for _ in wts]; acc_ = 0; W = sum(wts)
                    cum = [sum(wts[:i+1]) / W for i in range(len(wts))]
                    for l in F:
                        g_ = next(i for i, cc in enumerate(cum) if (acc_ + cost(l) / 2) <= cc * tot + 1e-9 or i == len(wts) - 1)
                        out[g_].append(l); acc_ += cost(l)
                    return out
                wts = {0: [1, 1, 1.3, 2.7], 1: [0, 0, 1, 2], 2: [0, 0, 1, 1], 3: [1, 1, 1, 1], 4: [1, 1, 1, 2], 5: [0.5, 0.5, 2, 2]}[SPAT]
                q = split(F + upd, wts) if not upd else split(F, wts)
                if s_ < 3:
                    R = reads(s_ + 1, BB[(s_ + 1) & 1], False)
                    if SPAT in (2, 5):
                        seq = ["s_waitcnt lgkmcnt(2)", M[0], R[0], R[1], R[2]] + q[0] + [M[1], "s_waitcnt lgkmcnt(3)", R[3], R[4], R[5]] + q[1] + [M[2]] + q[2] + [M[3]] + q[3] + upd
                    else:
                        seq = ["s_waitcnt lgkmcnt(2)", M[0], R[0], R[1]] + q[0] + [M[1], R[2], R[3]] + q[1] + ["s_waitcnt lgkmcnt(4)", M[2], R[4], R[5]] + q[2] + [M[3]] + q[3] + upd
                else:
                    R = reads(0, BB[0], False) if c < 15 else []
                    dr = ["s_waitcnt vmcnt(0)"] if c + 1 == AFLAG else []
                    seq = ["s_waitcnt lgkmcnt(2)", M[0]] + q[0] + dr + ["s_waitcnt lgkmcnt(0)"] + (["s_barrier"] if c < 14 else []) + R[:1] + [M[1]] + R[1:4] + q[1] + [M[2]] + R[4:] + q[2] + [M[3]] + q[3]
                for l in seq:
                    if l == "s_barrier" and PROF in (10, 11, 12) and 0 <= c - (8 if PROF != 11 else 10) < 6:
                        if PROF == 12:
                            stamp(a, c - 8 + 1, 12)
                        a(l)
                        stamp(a, c - 8 + 1, 10)
                        stamp(a, c - 10 + 1, 11) if c >= 10 else None
                    else:
                        a(l)
    a(f"v_mov_b32 v16, {LDS_TAG}")
    a("ds_read_b64 v[18:19], v16")
    a(f"v_mov_b32 v12, {fh(c0)}")
    a("v_mov_b32 v13, v12")
    a("v_mov_b32 v14, 1.0")
    a("v_mov_b32 v15, 1.0")
    a("s_waitcnt lgkmcnt(0)")
    a("v_readfirstlane_b32 s68, v18")
    a("v_readfirstlane_b32 s69, v19")
    a("s_cmp_lt_u32 s22, 12")
    a("s_cbranch_scc1 SW2R")
    a(f"s_mov_b32 s34, {fh(LOG2E*0.25)}")
    a("s_sub_u32 s38, s22, 12")
    a("s_lshl_b32 s38, s38, 3")
    a("s_lshl_b32 s39, s24, 1")
    a("s_add_u32 s38, s38, s39")
    a("s_lshl_b32 s38, s38, 6")
    a("s_add_u32 s38, s38, s32")
    a("s_lshl_b32 s38, s38, 10")
    F = kv_fill() + q_fill()
    sweep2(F, len(F))
    a("s_branch K1_GE2")
    a.label("SW2R")
    a(f"s_mov_b32 s34, {fh(c1)}")
    a("s_mov_b32 s35, s34")
    F = kv_fill()
    ne = len(F)
    F2 = []
    for i in range(2):
        for t in range(2):
            if i * 2 + t < NFILL:
                F += gelu_tile(accF(0, i, t), 80 + 4 * (i * 2 + t), GPK)
            else:
                F2 += gelu_tile(accF(0, i, t), 80 + 4 * (i * 2 + t), True)
    sweep2(F, ne)
    for l in F2:
        a(l)
    a.label("K1_GE2")
    stamp(a, 3)
    a(f"s_mov_b32 s34, {fh(c1)}")
    a("s_mov_b32 s35, s34")
    a("s_mul_i32 s36, s32, 144")
    a("s_lshl_b32 s37, s22, 3")
    a("s_lshl_b32 s38, s22, 2")
    a("s_add_u32 s38, s38, 44")
    a("s_cmp_lt_u32 s22, 12")
    a("s_cselect_b32 s37, s37, s38")
    a("s_add_u32 s36, s36, s37")
    a("s_lshl_b32 s37, s24, 1")
    a("s_add_u32 s36, s36, s37")
    a("s_lshl_b32 s36, s36, 10")
    a(f"s_add_u32 s36, s36, {WS_ACT}")
    a(f"s_add_u32 s37, s36, {144*1024}")
    a("s_add_u32 s38, s36, 4096")
    a("s_add_u32 s39, s37, 4096")
    a("s_cmp_lt_u32 s22, 12")
    a("s_cbranch_scc0 K1_GE3")
    for i in range(2):
        for t in range(2):
            a(f"buffer_store_dwordx4 {v(80 + 4*(i*2+t),4)}, v3, s[28:31], s{36+i} offen offset:{t*1024}{SC}")
    a.label("K1_GE3")
    for t in range(2):
        for i in range(2):
            out = 64 + 4 * (i * 2 + t)
            for l in gelu_tile(accF(1, i, t), out, True):
                a(l)
            a(f"buffer_store_dwordx4 {v(out,4)}, v3, s[28:31], s{38+i} offen offset:{t*1024}{SC}")

    a.label("K2_ATTN")
    Q = [8, 12]
    G = [4, 5]
    KB = [16, 20]
    VB = [[24, 28], [32, 36]]
    IDX = 6
    VK, VV0, VV1 = 40, 41, 42
    C = [96, 112]
    S = [128, 144]
    P = [160, 176]
    O = [192, 208]
    a(f"v_mov_b32 v{IDX}, 0xdddd")
    def vaddr_init():
        a(f"v_mov_b32 v{VK}, v3")
        a("v_lshrrev_b32 v43, 5, v2")
        a("v_and_b32 v44, 15, v2")
        a("v_lshlrev_b32 v44, 4, v44")
        a("v_lshl_or_b32 v44, v43, 8, v44")
        a(f"v_add_u32 v44, {LDS_V}, v44")
        a("v_add_u32 v45, 512, v44")
        a("v_and_b32 v43, 31, v2")
        a("v_subrev_u32 v47, 20, v43")
        a("v_cmp_gt_u32 vcc, 8, v47")
        a(f"v_mov_b32 v46, {LDS_V + 1040}")
        a(f"v_mov_b32 v47, {LDS_V + 1040 + 2*VP}")
        a("v_cndmask_b32 v46, v46, v47, vcc")
        a("v_and_b32 v47, 27, v43")
        a("v_cmp_eq_u32 vcc, 16, v47")
        a("v_subrev_u32 v47, 16, v46")
        a("s_nop 0")
        a("v_cndmask_b32 v46, v46, v47, vcc")
        a("v_cmp_gt_u32 vcc, 16, v43")
        a("s_nop 1")
        a(f"v_cndmask_b32 v{VV0}, v46, v44, vcc")
        a(f"v_cndmask_b32 v{VV1}, v46, v45, vcc")
    vaddr_init()
    a("s_lshl_b32 s24, s20, 8")
    a(f"s_add_u32 s24, s24, {LDS_GQ}")
    a("v_and_b32 v7, 31, v2")
    a("v_lshlrev_b32 v7, 2, v7")
    a("v_add_u32 v7, s24, v7                  ; g address")
    def zero_state():
        a("v_mov_b32 v44, 0")
        a("v_mov_b32 v45, 0")
        for r in [O[0] + i for i in range(0, 32, 2)] + [P[1] + 8 + i for i in range(0, 8, 2)] + [VB[1][1], VB[1][1] + 2]:
            a(f"v_pk_mov_b32 {v(r,2)}, v[44:45], v[44:45]")
    zero_state()
    a("s_mov_b32 s26, 0")
    a("s_lshl_b32 s24, s20, 11")
    a(f"s_add_u32 s24, s24, {LDS_Q}")
    a("v_add_u32 v43, s24, v3")
    a("s_barrier                              ; X1")
    a("s_setprio 2")
    stamp(a, 4)
    stamp(a, 1, 9)
    a(f"ds_read_b128 {v(Q[0],4)}, v43")
    a(f"ds_read_b128 {v(KB[0],4)}, v{VK}")
    a(f"ds_read_b128 {v(Q[1],4)}, v43 offset:1024")
    a("s_waitcnt lgkmcnt(0)")
    for q in range(2):
        a(f"{MF} {v(S[q],16)}, {v(KB[0],4)}, {v(Q[q],4)}, 0")
    a("s_nop 7")
    a("s_nop 3")
    def maxtree(src, dst, acc=False):
        if acc:
            for i in range(0, 16, 2):
                a(f"v_max3_f32 v{dst}, v{src+i}, v{src+i+1}, v{dst}")
        else:
            a(f"v_max_f32 v{dst}, v{src}, v{src+1}")
            for i in range(2, 16, 2):
                a(f"v_max3_f32 v{dst}, v{src+i}, v{src+i+1}, v{dst}")
    for q in range(2):
        maxtree(S[q], 44 + q)
    a.label("K2_SETMAX")
    a(f"ds_read_b128 {v(KB[0],4)}, v{VK}")
    a(f"ds_read_b128 {v(VB[0][0],4)}, v{VV0}")
    a(f"ds_read_b128 {v(VB[0][1],4)}, v{VV1}")
    a(f"ds_read_b128 {v(KB[1],4)}, v{VK} offset:{TP}")
    for q in range(2):
        a(f"v_mov_b32 v{46+q}, v{44+q}")
    a("s_nop 1")
    for q in range(2):
        a(f"v_permlane32_swap_b32 v{44+q}, v{46+q}")
    for q in range(2):
        a(f"v_min_f32 v{44+q}, -v{44+q}, -v{46+q}     ; -max")
    for i in range(0, 16, 2):
        a(f"v_pk_mov_b32 {v(C[0]+i,2)}, v[44:45], v[44:45] op_sel:[0,0]")
    a("s_waitcnt lgkmcnt(0)")
    a("s_nop 0")
    a(f"{MF} {v(S[0],16)}, {v(KB[0],4)}, {v(Q[0],4)}, {v(C[0],16)}")
    for i in range(0, 16, 2):
        a(f"v_pk_mov_b32 {v(C[1]+i,2)}, v[44:45], v[44:45] op_sel:[1,1]")
    a("s_nop 3")
    stamp(a, 2, 9)
    a("s_cmp_lg_u32 s26, 0")
    a("s_cbranch_scc1 K2_NOBAR")
    a("s_waitcnt vmcnt(0)")
    a("s_barrier")
    a.label("K2_NOBAR")
    stamp(a, 3, 9)
    if PADATT:
        pad_until(a, PADATT)
    U = UA
    assert U == 16
    a(f"s_mov_b32 s27, {64 // U - 1}")
    a("s_mov_b32 s77, 2")
    a(f"v_mov_b32 v46, {LDS_SYNC + 12}")
    a.raw(".p2align 6")
    a.label("K2_LOOP")
    def exps(q, lo, hi):
        for i in range(lo, hi):
            a(f"v_exp_f32 v{P[q]+i}, v{S[q]+i}")
    def smf(q, vb, half):
        a(f"v_smfmac_f32_32x32x32_bf16 {v(O[q],16)}, {v(vb,4)}, {v(P[q]+8*half,8)}, v{IDX}")
    for u in range(U):
        b = u & 1
        a(f"{MF} {v(S[1],16)}, {v(KB[b],4)}, {v(Q[1],4)}, {v(C[1],16)}")
        if u == 8:
            a("s_bitcmp1_b32 s75, s77")
            a("s_cbranch_scc0 K2_KVM")
            a.label("K2_MID")
        exps(0, 0, 5)
        smf(1, VB[b ^ 1][1], 1)
        if u == 8:
            a("s_add_u32 s77, s77, 4")
            a("s_min_u32 s77, s77, 14")
        a(f"ds_read_b128 {v(VB[b^1][0],4)}, v{VV0} offset:{(u+1)*VP}")
        exps(0, 5, 11)
        smf(0, VB[b][0], 0)
        a(f"ds_read_b128 {v(VB[b^1][1],4)}, v{VV1} offset:{(u+1)*VP}")
        exps(0, 11, 16)
        a(f"{MF} {v(S[0],16)}, {v(KB[b^1],4)}, {v(Q[0],4)}, {v(C[0],16)}")
        a(f"ds_read_b128 {v(KB[b],4)}, v{VK} offset:{(u+2)*TP}")
        exps(1, 0, 5)
        smf(0, VB[b][1], 1)
        if u % 8 == 7:
            a("ds_read_b32 v47, v46")
        exps(1, 5, 11)
        smf(1, VB[b][0], 0)
        a("s_waitcnt lgkmcnt(0)")
        if u == U - 1:
            a(f"v_add_u32 v{VK}, {U*TP}, v{VK}")
            a(f"v_add_u32 v{VV0}, {U*VP}, v{VV0}")
            a(f"v_add_u32 v{VV1}, {U*VP}, v{VV1}")
        if u % 8 == 7:
            a("v_readfirstlane_b32 s75, v47")
        exps(1, 11, 16)
        if u == 7:
            mid_check = True
    a("s_bitcmp1_b32 s75, s77")
    a("s_cbranch_scc0 K2_KVW")
    a.label("K2_NEXT")
    a("s_add_u32 s77, s77, 4")
    a("s_min_u32 s77, s77, 14")
    if PROF == 9:
        a("s_memrealtime s[96:97]")
        a("s_memtime s[98:99]")
        a("s_waitcnt lgkmcnt(0)")
        for it, sl in ((3, 4), (2, 5), (1, 6)):
            a(f"s_cmp_eq_u32 s27, {it}")
            a(f"s_cselect_b32 s{80+sl}, s96, s{80+sl}")
            a(f"s_cselect_b32 s{88+sl}, s98, s{88+sl}")
    a("s_sub_u32 s27, s27, 1")
    a("s_cbranch_scc0 K2_LOOP")
    a("s_nop 1")
    smf(1, VB[(U - 1) & 1][1], 1)
    stamp(a, 5)
    stamp(a, 1, 8)
    stamp(a, 1, 13)
    a(f"v_mov_b32 v46, {LDS_SYNC + 4}")
    a("ds_read_b32 v47, v46")
    a(f"ds_read_b32 v{G[0]}, v7")
    a(f"ds_read_b32 v{G[1]}, v7 offset:128")
    a("s_lshl_b32 s24, s71, 2")
    a("s_add_u32 s24, s24, s20")
    a("s_lshl_b32 s24, s24, 5")
    a("s_add_u32 s24, s24, s70")
    a("s_lshl_b32 s25, s24, 11")
    a(f"s_add_u32 s25, s25, {WS_O}")
    a("v_mov_b32 v48, 0")
    a("v_mov_b32 v49, 0")
    a(f"v_pk_mul_f32 v[44:45], {v(O[0],2)}, v[48:49]")
    for i in range(2, 10, 2):
        a(f"v_pk_fma_f32 v[44:45], {v(O[0]+i,2)}, v[48:49], v[44:45]")
    for i in range(0, 10, 2):
        a(f"v_pk_fma_f32 v[44:45], {v(O[1]+i,2)}, v[48:49], v[44:45]")
    a("v_cmp_u_f32 vcc, v44, v45")
    a("s_nop 1")
    a("s_cmp_eq_u64 vcc, 0")
    a("s_cbranch_scc0 K2_FB")
    a.label("K2_FIN")
    for q in range(2):
        a(f"v_rcp_f32 v{48+q}, v{O[q]+8}")
    a(f"s_mov_b32 s74, {SPIN*8}")
    a.label("K2_GW")
    a("s_waitcnt lgkmcnt(0)")
    a("v_readfirstlane_b32 s75, v47")
    a("s_sub_u32 s74, s74, 1")
    a("s_cmp_eq_u32 s74, 0")
    a("s_cbranch_scc1 K2_GOK")
    a("s_cmp_ge_u32 s75, 64")
    a("s_cbranch_scc1 K2_GOK")
    a("s_sleep 1")
    a("ds_read_b32 v47, v46")
    a(f"ds_read_b32 v{G[0]}, v7")
    a(f"ds_read_b32 v{G[1]}, v7 offset:128")
    a("s_branch K2_GW")
    a.label("K2_GOK")
    for q in range(2):
        a(f"v_mul_f32 v{44+2*q}, v{48+q}, v{G[q]}")
    GR = S[0]
    a(f"v_mov_b32 v{GR+8}, s68")
    a(f"v_mov_b32 v{GR+9}, s69")
    a(f"v_mov_b32 v{GR+10}, s68")
    a(f"v_mov_b32 v{GR+11}, s69")
    for q in range(2):
        for i in range(0, 8, 2):
            a(f"v_pk_mul_f32 {v(O[q]+i,2)}, {v(O[q]+i,2)}, {v(44+2*q,2)} op_sel_hi:[1,0]")
        for i in range(0, 8, 2):
            a(f"v_cvt_pk_bf16_f32 v{GR + 4*q + i//2}, v{O[q]+i}, v{O[q]+i+1}")
        a(f"buffer_store_dwordx4 {v(GR+4*q,4)}, v3, s[28:31], s25 offen offset:{q*1024}{SC}")
    if FRESH:
        a("s_lshl_b32 s24, s24, 12")
        a(f"s_add_u32 s24, s24, {WS_FR}")
        a("v_lshlrev_b32 v45, 7, v2")
    else:
        a("s_lshl_b32 s24, s24, 7")
        a(f"s_add_u32 s24, s24, {FL_C}")
    a(f"v_mov_b32 v46, {LDS_SYNC + 8}")
    a("v_mov_b32 v47, 1")
    a("s_mov_b64 exec, 1")
    a("ds_add_u32 v46, v47")
    a("s_mov_b64 exec, -1")
    NSD = min(NDEF, 11)
    if NDEF:
        srd(a, 44, 16, 0x1c0000)
        a(f"s_mul_i32 s53, s20, {DSTG}")
        a("s_add_u32 s53, s53, 0x10000")
        frag_addrs(a, "s53")
        part_addrs(a, "s53", 240)
        a(f"s_mul_i32 s32, s20, {NDEF}")
        a(f"s_add_u32 s32, s32, {4*(28-NDEF)}")
        a(f"s_mul_i32 s33, s72, {2*144*1024}")
        a("s_lshl_b32 s34, s32, 10")
        a("s_add_u32 s33, s33, s34")
        a(f"s_add_u32 s33, s33, {WS_ACT}")
        a(f"s_add_u32 s34, s33, {144*1024}")
        a("s_lshl_b32 s35, s32, 14")
        a("s_lshl_b32 s36, s73, 7")
        a("s_add_u32 s35, s35, s36")
        a("v_and_b32 v4, 31, v2")
        a("v_lshlrev_b32 v4, 2, v4")
        a(f"v_add_u32 v4, {LDS_OG}, v4")
        a("ds_read_b32 v244, v4")
        a("ds_read_b32 v246, v4 offset:128")
        a("ds_read_b32 v47, v46")
    stamp(a, 2, 13)
    a("s_waitcnt vmcnt(0)")
    stamp(a, 3, 13)
    if FULLF:
        a("s_mov_b64 exec, 0xff")
        a(f"buffer_store_dwordx4 {v(GR+8,4)}, v3, s[28:31], s24 offen sc1")
    elif FRESH:
        a("s_mov_b32 exec_hi, 0")
        a(f"buffer_store_dwordx2 {v(GR+8,2)}, v45, s[28:31], s24 offen sc1")
    elif ATFLAG:
        a("s_mov_b64 exec, 1")
        a(f"buffer_atomic_swap_x2 {v(GR+8,2)}, v3, s[28:31], s24 offen sc1")
    else:
        a("s_mov_b64 exec, 1")
        a(f"buffer_store_dwordx2 {v(GR+8,2)}, v3, s[28:31], s24 offen sc1")
    a("s_mov_b64 exec, -1")
    a("s_setprio 0")
    stamp(a, 6)
    stamp(a, 2, 8)
    if NDEF:
        lds_wait(a, 46, 47, ["s_and_b32 s75, s75, 255", "s_cmp_ge_u32 s75, 68"], first_read=False)
        a("v_mov_b32 v248, v46")
        a("v_mov_b32 v249, 256")
        DA_, DW_, DC_ = 144, 80, 16
        dq = []
        def dw(k):
            a(f"s_add_u32 m0, s53, {(k % NSD) * 2048}")
            a("s_nop 0")
            a("buffer_load_dwordx4 v10, s[44:47], s35 offen lds")
            a("buffer_load_dwordx4 v11, s[44:47], s35 offen offset:1024 lds")
            a("s_add_u32 s35, s35, 16384")
            dq.extend([k] * 2)
        def da(k):
            for t in range(2):
                a(f"buffer_load_dwordx4 {v(DA_+8*k+4*t,4)}, v3, s[28:31], s{33+t} offen offset:{(k%4)*1024}{SC}")
            if k % 4 == 3:
                a("s_add_u32 s33, s33, 4096")
                a("s_add_u32 s34, s34, 4096")
            dq.extend([k] * 2)
        def dwait(k):
            a(f"s_waitcnt vmcnt({len(dq) - 1 - max(i for i, t in enumerate(dq) if t == k)})")
        def drd(k):
            b = DW_ + 8 * (k & 1)
            for n in range(2):
                for u in range(2):
                    a(f"ds_read_b64_tr_b16 {v(b+4*n+2*u,2)}, v{12+n} offset:{(k % NSD) * 2048 + u*1024}")
        AH = min(AHD, NDEF)
        for k in range(AH):
            dw(k); da(k)
        dwait(0)
        stamp(a, 3, 8)
        drd(0)
        for k in range(NDEF):
            if k + AH < NDEF:
                dw(k + AH); da(k + AH)
            if k + 1 < NDEF:
                dwait(k + 1)
                if k + 3 == NDEF:
                    a("s_mov_b64 exec, 1")
                    a("ds_add_u32 v248, v249")
                    a("s_mov_b64 exec, -1")
                drd(k + 1)
                a("s_waitcnt lgkmcnt(4)")
            else:
                a("s_waitcnt lgkmcnt(0)")
            b = DW_ + 8 * (k & 1)
            for n in range(2):
                for t in range(2):
                    acc = DC_ + (n * 2 + t) * 16
                    cin = "0" if k == 0 else v(acc, 16)
                    a(f"{MF} {v(acc,16)}, {v(b+4*n,4)}, {v(DA_+8*k+4*t,4)}, {cin}")
        stamp(a, 4, 8)
        a("s_nop 7")
        for n in range(2):
            for t in range(2):
                acc = DC_ + (n * 2 + t) * 16
                if n + t == 0:
                    a("s_nop 1")
                for j in range(0, 16, 2):
                    a(f"v_pk_mul_f32 {v(acc+j,2)}, {v(acc+j,2)}, {v(244+2*t,2)} op_sel_hi:[1,0]")
                for g in range(4):
                    a(f"ds_write_b128 v{240+g}, {v(acc+4*g,4)} offset:{t*8192 + n*128}")
        stamp(a, 5, 8)
    a("s_branch K3_REDUCE")
    a.label("K2_FB")
    a("s_cmp_lg_u32 s26, 0")
    a("s_cbranch_scc1 K2_FIN")
    a("s_waitcnt lgkmcnt(0)")
    a("s_mov_b32 s26, 100")
    vaddr_init()
    zero_state()
    a("v_mov_b32 v44, 0xff800000")
    a("v_mov_b32 v45, 0xff800000")
    a("v_mov_b32 v43, v3")
    a("s_mov_b32 s27, 64")
    a.label("K2_MAXLOOP")
    a(f"ds_read_b128 {v(KB[0],4)}, v43")
    a(f"v_add_u32 v43, {TP}, v43")
    a("s_waitcnt lgkmcnt(0)")
    for q in range(2):
        a(f"{MF} {v(S[q],16)}, {v(KB[0],4)}, {v(Q[q],4)}, 0")
    a("s_nop 7")
    a("s_nop 7")
    for q in range(2):
        maxtree(S[q], 44 + q, acc=True)
    a("s_sub_u32 s27, s27, 1")
    a("s_cmp_lg_u32 s27, 0")
    a("s_cbranch_scc1 K2_MAXLOOP")
    a("s_branch K2_SETMAX")
    for lab, back in (("K2_KVW", "K2_NEXT"), ("K2_KVM", "K2_MID")):
        a.label(lab)
        lds_wait(a, 46, 47, ["s_bitcmp1_b32 s75, s77"])
        a(f"s_branch {back}")

    a.label("K2_GEMM")
    a("v_min_u32 v4, 37, v2")
    a(f"v_mul_u32_u24 v4, {VP}, v4")
    a(f"v_add_u32 v4, {LDS_V + 1024}, v4")
    a("v_min_u32 v36, 27, v2")
    a(f"v_mul_u32_u24 v36, {VP}, v36")
    a(f"v_add_u32 v36, {LDS_V + 1024 + 38*VP}, v36")
    for i in range(4):
        a(f"v_mov_b32 v{40+i}, 0x3f803f80")
        a(f"v_mov_b32 v{44+i}, 0")
    a("ds_write_b128 v4, v[40:43]")
    a("ds_write_b128 v4, v[44:47] offset:16")
    ND, NW = 28 - NDEF, 8
    NG = ND // 4
    NS = 3
    srd(a, 44, 16, 0x1c0000)
    srd(a, 48, 8, 0x80000)
    if FMAP:
        a("s_and_b32 s42, s72, 3")
        a("s_lshl_b32 s42, s42, 1")
        a("s_add_u32 s42, s42, s73")
    else:
        a("s_lshr_b32 s42, s2, 3")
        a("s_and_b32 s43, s42, 7")
        a("s_lshr_b32 s42, s42, 3")
        a("s_lshl_b32 s42, s42, 1")
        a("s_add_u32 s42, s42, s43")
    for _ in range(-(-14 // NG) - 1):
        a(f"s_cmp_ge_u32 s42, {NG}")
        a(f"s_cselect_b32 s43, {NG}, 0")
        a("s_sub_u32 s42, s42, s43")
    if not ROT:
        a("s_mov_b32 s42, 0")
    a("s_mov_b32 s52, s42")
    a(f"s_mul_i32 s32, s23, {ND}")
    a("s_lshl_b32 s43, s42, 2")
    a("s_add_u32 s32, s32, s43")
    a(f"s_mul_i32 s33, s72, {2*144*1024}")
    a(f"s_add_u32 s33, s33, {WS_ACT}")
    a("s_lshl_b32 s43, s32, 10")
    a("s_add_u32 s33, s33, s43")
    a(f"s_add_u32 s34, s33, {144*1024}")
    a("s_lshl_b32 s43, s73, 7")
    a("s_lshl_b32 s35, s32, 14")
    a("s_add_u32 s35, s35, s43")
    a("s_lshl_b32 s39, s23, 17")
    a("s_add_u32 s39, s39, s43")
    a(f"s_mul_i32 s53, s23, {NS*2048}")
    a(f"s_add_u32 s53, s53, {LDS_WS}")
    frag_addrs(a, "s53")
    GA = 16
    FR = 80
    D = 8
    queue = []
    def ld(dst, sr, k, tag):
        a(f"buffer_load_dwordx4 {v(dst,4)}, v3, s[28:31], s{sr} offen offset:{(k%4)*1024}{SC}")
        queue.append(tag)
    def aloads(k):
        b = FR + (k % D) * 16
        ld(b + 4, 33, k, ("a", k)); ld(b + 12, 34, k, ("a", k))
        if k % 4 == 3:
            a("s_add_u32 s42, s42, 1")
            a(f"s_cmp_eq_u32 s42, {NG}")
            a("s_movk_i32 s43, 4096")
            a(f"s_cselect_b32 s43, {(-(NG-1)*4096) & 0xffffffff:#x}, s43")
            a("s_cselect_b32 s42, 0, s42")
            for sr in (33, 34):
                a(f"s_add_u32 s{sr}, s{sr}, s43")
    def wloads(k):
        a(f"s_add_u32 m0, s53, {(k % NS) * 2048}")
        sr, rs = (35, 44) if k < ND else (39, 48)
        a("s_nop 0")
        a(f"buffer_load_dwordx4 v10, s[{rs}:{rs+3}], s{sr} offen lds")
        a(f"buffer_load_dwordx4 v11, s[{rs}:{rs+3}], s{sr} offen offset:1024 lds")
        queue.extend([("w", k)] * 2)
        a(f"s_add_u32 s{sr}, s{sr}, 16384")
        if k < ND and k % 4 == 3:
            a("s_add_u32 s52, s52, 1")
            a(f"s_cmp_eq_u32 s52, {NG}")
            a(f"s_cselect_b32 s43, {(-ND*16384) & 0xffffffff:#x}, 0")
            a("s_cselect_b32 s52, 0, s52")
            a("s_add_u32 s35, s35, s43")
    def waitfor(*tags):
        n = len(queue) - 1 - max(i for i, t in enumerate(queue) if t in tags)
        a(f"s_waitcnt vmcnt({n})")
    def wreads(k):
        b = FR + (k % D) * 16
        for n in range(2):
            for u in range(2):
                a(f"ds_read_b64_tr_b16 {v(b+8*n+2*u,2)}, v{12+n} offset:{(k % NS) * 2048 + u*1024}")
    def mm(k):
        b = FR + (k % D) * 16
        for n in range(2):
            for t in range(2):
                acc = GA + (n * 2 + t) * 16
                cin = "0" if k == 0 else v(acc, 16)
                a(f"{MF} {v(acc,16)}, {v(b+8*n,4)}, {v(b+4+8*t,4)}, {cin}")
    stamp(a, 3)
    a("s_waitcnt vmcnt(0) lgkmcnt(0)")
    kv_loads(3, 5)
    kv_loads(5, 7)
    if KVV == 1:
        kv_loads(7, 9)
    a("s_barrier                              ; X1")
    a("s_setprio 3")
    if KVV == 2:
        kv_loads(7, 9)
    a("s_barrier                              ; X2")
    a("s_cmp_lg_u32 s23, 1")
    a("s_cbranch_scc1 K2_NOB1")
    a("s_lshl_b32 s37, s21, 4")
    a("s_add_u32 s37, s37, s22")
    a("s_lshl_b32 s37, s37, 7")
    a(f"s_add_u32 s37, s37, {FL_B1}")
    flag_store(a, "s37", 16)
    a.label("K2_NOB1")
    a("ds_write_b128 v36, v[40:43]")
    a("ds_write_b128 v36, v[44:47] offset:16")
    a(f"v_mov_b32 v34, {LDS_SYNC + 12}")
    def arrived(stage, n):
        a(f"v_mov_b32 v35, {1 << (4 * stage)}")
        a(f"s_waitcnt vmcnt({n})")
        a("s_mov_b64 exec, 1")
        a("ds_add_u32 v34, v35")
        a("s_mov_b64 exec, -1")
    arrived(0, 8)
    arrived(1, 4)
    kv_loads(9, 12)
    arrived(2, 6)
    kv_loads(12, 16)
    srd(a, 44, 16, 0x1c0000)
    arrived(3, 0)
    a("s_lshl_b32 s55, s76, 4")
    a(f"s_add_u32 s55, s55, {WS_G}")
    a("s_mov_b32 exec_lo, 1")
    a("s_mov_b32 exec_hi, 1")
    a(f"buffer_store_dwordx2 v[68:69], v70, s[28:31], s55 offen{SC}")
    a("s_mov_b64 exec, -1")
    if WARMW and FMAP:
        a("s_lshr_b32 s54, s2, 3")
        a("s_lshl_b32 s54, s54, 2")
        a("s_add_u32 s54, s54, s23")
        a("s_mul_i32 s55, s54, 14336")
        a("v_min_u32 v14, 55, v2")
        a("v_lshlrev_b32 v14, 7, v14")
        a("buffer_load_dword v15, v14, s[44:47], s55 offen")
        a("s_add_u32 s55, s55, 7168")
        a("buffer_load_dword v15, v14, s[44:47], s55 offen")
        a("s_lshl_b32 s55, s54, 12")
        a("v_and_b32 v14, 31, v2")
        a("v_lshlrev_b32 v14, 7, v14")
        a("buffer_load_dword v15, v14, s[48:51], s55 offen")
    elif WARMW:
        a("s_lshr_b32 s54, s2, 3")
        a("s_and_b32 s54, s54, 7")
        a("s_lshl_b32 s55, s54, 2")
        a("s_add_u32 s55, s55, s23")
        a("s_mul_i32 s55, s55, 57344")
        a("s_add_u32 s55, s55, s43")
        a("v_min_u32 v14, 55, v2")
        a("v_lshlrev_b32 v14, 10, v14")
        a("buffer_load_dword v15, v14, s[44:47], s55 offen")
        a("s_lshl_b32 s55, s54, 2")
        a("s_add_u32 s55, s55, s23")
        a("s_lshl_b32 s55, s55, 14")
        a("s_add_u32 s55, s55, s43")
        a("v_and_b32 v14, 15, v2")
        a("v_lshlrev_b32 v14, 10, v14")
        a("buffer_load_dword v15, v14, s[48:51], s55 offen")
    for k in range(NS):
        wloads(k)
    a("s_setprio 3")
    a("v_and_b32 v6, 15, v2")
    a("v_lshlrev_b32 v6, 7, v6")
    a("s_lshr_b32 s24, s72, 1")
    a("s_lshl_b32 s24, s24, 11")
    a(f"s_add_u32 s24, s24, {FL_B1}")
    poll_shared(a, 1, [("s24", 6, 8, 4)], 20, lslp=4)
    a("v_and_b32 v6, 31, v2")
    a("v_lshlrev_b32 v6, 3, v6")
    a("v_lshlrev_b32 v7, 3, v2")
    a("s_lshl_b32 s54, s72, 9")
    a(f"s_add_u32 s54, s54, {WS_G}")
    a("s_lshl_b32 s55, s71, 2")
    a("s_add_u32 s55, s55, s23")
    a("s_lshl_b32 s55, s55, 9")
    a(f"s_add_u32 s55, s55, {WS_G}")
    a(f"s_mov_b32 s74, {SPIN}")
    a.label("K2_GL")
    a(f"buffer_load_dwordx2 v[240:241], v6, s[28:31], s54 offen{SC}")
    a(f"buffer_load_dwordx2 v[242:243], v6, s[28:31], s54 offen offset:256{SC}")
    a(f"buffer_load_dwordx2 v[244:245], v7, s[28:31], s55 offen{SC}")
    a("s_waitcnt vmcnt(0)")
    a("v_xor_b32 v8, s68, v241")
    a("v_xor_b32 v9, s68, v243")
    a("v_xor_b32 v14, s68, v245")
    a("v_or3_b32 v8, v8, v9, v14")
    a("v_cmp_ne_u32 vcc, 0, v8")
    a("s_sub_u32 s74, s74, 1")
    a("s_cbranch_scc1 K2_GD")
    a("s_cmp_eq_u64 vcc, 0")
    a("s_cbranch_scc1 K2_GD")
    a("s_sleep 4")
    a("s_branch K2_GL")
    a.label("K2_GD")
    a("s_lshl_b32 s55, s23, 8")
    a(f"s_add_u32 s55, s55, {LDS_GQ}")
    a("v_lshrrev_b32 v7, 1, v7")
    a("v_add_u32 v7, s55, v7")
    a("ds_write_b32 v7, v244")
    a("v_sub_f32 v240, 1.0, v240")
    a("v_sub_f32 v242, 1.0, v242")
    a("v_lshrrev_b32 v6, 1, v6")
    a(f"v_add_u32 v6, {LDS_OG}, v6")
    a("ds_write_b32 v6, v240")
    a("ds_write_b32 v6, v242 offset:128")
    a(f"v_mov_b32 v8, {LDS_SYNC + 4}")
    a("v_mov_b32 v9, 16")
    a("s_waitcnt lgkmcnt(0)")
    a("s_mov_b64 exec, 1")
    a("ds_add_u32 v8, v9")
    a("s_mov_b64 exec, -1")
    stamp(a, 4)
    DA = 4
    a("s_setprio 0")
    for k in range(DA):
        aloads(k)
    for k in range(ND + NW):
        waitfor(("w", k), ("a", k))
        wreads(k)
        a("s_waitcnt lgkmcnt(0)")
        if k + NS < ND + NW:
            wloads(k + NS)
        if k + DA < ND:
            aloads(k + DA)
        if k < ND:
            mm(k)
    a("s_setprio 3")
    if NDEF and WARMD:
        assert FMAP
        a(f"s_mul_i32 s33, s72, {2*144*1024}")
        a("s_lshr_b32 s34, s23, 1")
        a(f"s_mul_i32 s34, s34, {144*1024}")
        a("s_add_u32 s33, s33, s34")
        a("s_lshl_b32 s34, s73, 1")
        a("s_and_b32 s35, s23, 1")
        a("s_add_u32 s34, s34, s35")
        a(f"s_mul_i32 s34, s34, {NDEF*256}")
        a("s_add_u32 s33, s33, s34")
        a(f"s_add_u32 s33, s33, {WS_ACT + 4*ND*1024}")
        a(f"v_min_u32 v14, {2*NDEF-1}, v2")
        a("v_lshlrev_b32 v14, 7, v14")
        a(f"buffer_load_dword v15, v14, s[28:31], s33 offen{SC}")
        a("s_and_b32 s34, s72, 3")
        a("s_lshl_b32 s34, s34, 2")
        a("s_add_u32 s34, s34, s23")
        a(f"s_mul_i32 s34, s34, {NDEF*4096}")
        a("s_lshl_b32 s35, s73, 7")
        a("s_add_u32 s34, s34, s35")
        a(f"s_add_u32 s34, s34, {4*ND*16384}")
        a(f"v_min_u32 v14, {4*NDEF-1}, v2")
        a("v_lshlrev_b32 v14, 10, v14")
        a("buffer_load_dword v15, v14, s[44:47], s34 offen")
    a("s_nop 7")
    a("s_nop 7")
    for n in range(2):
        for t in range(2):
            acc = GA + (n * 2 + t) * 16
            for j in range(0, 16, 2):
                a(f"v_pk_mul_f32 {v(acc+j,2)}, {v(acc+j,2)}, {v(240+2*t,2)} op_sel_hi:[1,0]")
    a("s_lshl_b32 s32, s23, 14")
    part_addrs(a, "s32", 212)
    a("s_lshl_b32 s24, s72, 2")
    a("s_add_u32 s24, s24, s23")
    a("s_lshl_b32 s24, s24, 14")
    a(f"s_add_u32 s24, s24, {WS_O}")
    a("v_and_b32 v6, 7, v2")
    a("v_lshlrev_b32 v6, 7, v6")
    a("s_lshl_b32 s26, s72, 12")
    a("s_lshl_b32 s25, s23, 10")
    a("s_add_u32 s26, s26, s25")
    if FRESH:
        a("v_lshlrev_b32 v6, 5, v6")
        a("s_lshl_b32 s27, s26, 5")
        a(f"s_add_u32 s27, s27, {WS_FR}")
    a(f"s_add_u32 s26, s26, {FL_C}")
    a(f"v_mov_b32 v11, {LDS_SYNC + 8}")
    a("v_mov_b32 v10, 16")
    a("s_mov_b64 exec, 1")
    a("ds_add_u32 v11, v10")
    a("s_mov_b64 exec, -1")
    a("s_mov_b32 s54, 0")
    a(f"s_mov_b32 s74, {SPIN}")
    stamp(a, 5)
    stamp(a, 1, 8)
    def c_poll(r=8):
        if FRESH:
            a("s_memrealtime s[58:59]")
        a(f"v_mov_b32 v{r}, 0")
        a(f"v_mov_b32 v{r+1}, 0")
        if FRESH:
            a("s_waitcnt lgkmcnt(0)")
            a(f"s_bfe_u32 s58, s58, {(5 << 16) | FRESH:#x}")
            a("s_lshl_b32 s58, s58, 7")
            a("s_add_u32 s26, s27, s58")
        if MASKP:
            a("s_xor_b32 exec_lo, s54, 0xff")
            a("s_mov_b32 exec_hi, 0")
        else:
            a("s_mov_b64 exec, 0xff")
        if ATPOLL:
            a(f"buffer_atomic_or_x2 {v(r,2)}, v6, s[28:31], s26 offen sc0 sc1")
        else:
            a(f"buffer_load_dwordx2 {v(r,2)}, v6, s[28:31], s26 offen sc1")
        a("s_mov_b64 exec, -1")
    def pause():
        if NDEF and PAUSE:
            lab, done = a.newlabel("PZ"), a.newlabel("PZD")
            a(f"s_mov_b32 s76, {SPIN}")
            a.label(lab)
            a("ds_read_b32 v10, v11")
            a("s_waitcnt lgkmcnt(0)")
            a("v_readfirstlane_b32 s75, v10")
            a("s_sub_u32 s76, s76, 1")
            a(f"s_cbranch_scc1 {done}")
            a("s_cmp_ge_u32 s75, 1024")
            a(f"s_cbranch_scc1 {done}")
            a("s_and_b32 s75, s75, 15")
            a(f"s_cbranch_scc0 {done}")
            a("s_sleep 1")
            a(f"s_branch {lab}")
            a.label(done)
    a.label("K3_POLL")
    pause()
    c_poll()
    a.label("K3_ROUND")
    a("s_waitcnt vmcnt(0)")
    a("v_cmp_eq_u64 vcc, s[68:69], v[8:9]")
    a("s_sub_u32 s74, s74, 1")
    a("s_cselect_b32 s55, 0xff, vcc_lo")
    a("s_andn2_b32 s55, s55, s54")
    a("s_cbranch_scc1 K3_SOME")
    a("ds_read_b32 v10, v11")
    a(f"s_sleep {TSLP}")
    a("s_waitcnt lgkmcnt(0)")
    a("v_readfirstlane_b32 s75, v10")
    a("s_and_b32 s75, s75, 15")
    a("s_cbranch_scc1 " + ("K3_FAST" if PIPE > 1 else "K3_POLL"))
    a(f"s_sleep {PSLOW}")
    a("s_branch K3_POLL")
    if PIPE > 1:
        PR = [216 + 2 * i for i in range(PIPE)]
        a.label("K3_FAST")
        for i in range(PIPE - 1):
            c_poll(PR[i])
            a(f"s_sleep {PDEL}")
        a.label("K3_FL")
        for i in range(PIPE):
            c_poll(PR[(i + PIPE - 1) % PIPE])
            a(f"s_waitcnt vmcnt({PIPE - 1})")
            a(f"v_cmp_eq_u64 vcc, s[68:69], {v(PR[i],2)}")
            a("s_sub_u32 s74, s74, 1")
            a("s_cselect_b32 s55, 0xff, vcc_lo")
            a("s_andn2_b32 s55, s55, s54")
            a("s_cbranch_scc1 K3_SOME")
        a("s_branch K3_FL")
    a.label("K3_SOME")
    stamp(a, 1, 13)
    if PROF == 13:
        a("s_mov_b32 s89, s55")
    pause()
    a("s_or_b32 s54, s54, s55")
    for kk in range(NW):
        b = FR + ((ND + kk) % D) * 16
        a(f"s_bitcmp1_b32 s55, {kk}")
        a(f"s_cbranch_scc0 K3_L{kk}")
        a(f"s_add_u32 s25, s24, {kk*2048}")
        a(f"buffer_load_dwordx4 {v(b+4,4)}, v3, s[28:31], s25 offen{SC}")
        a(f"buffer_load_dwordx4 {v(b+12,4)}, v3, s[28:31], s25 offen offset:1024{SC}")
        a.label(f"K3_L{kk}")
    a("s_cmp_eq_u32 s54, 0xff")
    a("s_cbranch_scc1 K3_LAST")
    c_poll()
    a.label("K3_LAST")
    a("ds_read_b32 v10, v11")
    a("s_waitcnt vmcnt(0)")
    stamp(a, 2, 13)
    for kk in range(NW):
        a(f"s_bitcmp1_b32 s55, {kk}")
        a(f"s_cbranch_scc0 K3_C{kk}")
        mm(ND + kk)
        a.label(f"K3_C{kk}")
    a("s_cmp_lg_u32 s54, 0xff")
    a("s_cbranch_scc1 K3_ROUND")
    stamp(a, 6)
    stamp(a, 2, 8)
    stamp(a, 3, 13)
    lds_wait(a, 11, 10, ["s_bitcmp1_b32 s75, 2"], first_read=False)
    for i in range(3, 6):
        stamp(a, i, 8)
    stamp(a, 4, 13)
    a("s_nop 7")
    part_write(a, GA, 212)
    stamp(a, 5, 13)
    a.label("K3_REDUCE")
    srd(a, 24, 64, 0x200000)
    a("s_lshl_b32 s32, s20, 6")
    a("v_add_u32 v0, s32, v2                  ; tid")
    a("v_lshrrev_b32 v7, 3, v0                ; token")
    a("v_and_b32 v5, 7, v0")
    a("v_lshlrev_b32 v6, 1, v5")
    a("v_and_b32 v8, 7, v7")
    a("v_xor_b32 v6, v6, v8")
    a("v_lshlrev_b32 v6, 4, v6")
    a("v_lshl_add_u32 v6, v7, 8, v6")
    a("v_xor_b32 v8, 16, v6")
    a("v_add_u32 v9, 0x10000, v6")
    a("v_add_u32 v10, 0x10000, v8")
    a("v_lshlrev_b32 v7, 10, v7")
    a("v_lshl_add_u32 v7, v5, 4, v7")
    a("s_lshl_b32 s32, s72, 16")
    a("s_lshl_b32 s33, s73, 7")
    a("s_add_u32 s32, s32, s33")
    a("s_waitcnt lgkmcnt(0)")
    a("s_barrier                              ; Y1")
    stamp(a, 6, 8)
    stamp(a, 6, 13)
    NP = 8 if NDEF else 4
    RB = 96
    for w in range(NP):
        off = w * 16384 if w < 4 else (w - 4) * DSTG
        r0, r1 = (6, 8) if w < 4 else (9, 10)
        if off > 65535:
            a("v_add_u32 v9, 0x8000, v9")
            a("v_add_u32 v10, 0x8000, v10")
            off -= 0x8000
        a(f"ds_read_b128 {v(RB+8*w,4)}, v{r0} offset:{off}")
        a(f"ds_read_b128 {v(RB+4+8*w,4)}, v{r1} offset:{off}")
    for w in range(1, NP):
        a(f"s_waitcnt lgkmcnt({2*(NP-1-w)})")
        for j in range(0, 8, 2):
            a(f"v_pk_add_f32 {v(RB+j,2)}, {v(RB+j,2)}, {v(RB+8*w+j,2)}")
    for j in range(0, 8, 2):
        a(f"v_cvt_pk_bf16_f32 v{16+j//2}, v{RB+j}, v{RB+j+1}")
    a("buffer_store_dwordx4 v[16:19], v7, s[24:27], s32 offen" + (" " + OUTSC if OUTSC else ""))
    if PADEND:
        pad_until(a, PADEND)
    stamp_flush(a, 8)
    a.label("K_EXIT")
    a("s_endpgm")
    a.label("K_END")

def main():
    hdr = open("cdna_kernels/" + NAME + ".s.ref").read().split("\n")
    top = [l for l in hdr if l.startswith(";") and "@launch" not in l]
    out = "\n".join(top) + "\n"
    out += f"; @launch grid=(256,1,1) block=(512,1,1) lds={LDS_TOTAL}\n"
    out += '.amdgcn_target "amdgcn-amd-amdhsa--gfx950"\n.text\n'
    a = Asm()
    gen(a)
    out += a.text()
    out += '.section .rodata,"a"\n'
    out += kernel_desc(KNAME, 256, 102)
    path = sys.argv[1] if len(sys.argv) > 1 else "cdna_kernels/" + NAME + ".s"
    open(path, "w").write(out)

main()
```

```python
import sys, math, os
from asmlib import *

NAME = "gated_mix__softmax_full_mha__geglu_ffn__prompt"
KNAME = NAME + "_kernel"
LOG2E = 1.4426950408889634
def env(n, d): return int(os.environ.get(n, str(d)))
PROF = env("PROF", 0)
ROT = env("ROT", 1)
TAGPOS = env("TAGPOS", 0)
PADEND = env("PADEND", 0)
PADATT = env("PADATT", 0)
DBGWG = env("DBGWG", -1)
TLBW = env("TLBW", 0)
PFW = env("PFW", 0)
PFI = env("PFI", 1)
PFX = env("PFX", 0)
KVROT = env("KVROT", 1)
AFLAG = env("AFLAG", 10)
PFC = env("PFC", -1)
ONEP = env("ONEP", 0)
FMAP = env("FMAP", 0)
NOTAG = env("NOTAG", 0)
ROT1 = env("ROT1", 2)
OUTSC = os.environ.get("OUTSC", "sc1")
GPK = env("GPK", 0)
UA = env("UA", 16)
PRE = env("PRE", 2)
QLD = env("QLD", 4)
WARMW = env("WARMW", 0)
ROT2 = env("ROT2", 1)
NDEF = env("NDEF", 0)
WARMD = env("WARMD", 1)
PSLOW = env("PSLOW", 16)
PAUSE = env("PAUSE", 1)
KVV = env("KVV", 2)
FASTX = env("FASTX", 0)
FULLF = env("FULLF", 0)
PIPE = env("PIPE", 1)
ATFLAG = env("ATFLAG", 1)
FRESH = env("FRESH", 0)
WS_FR = 0x2000000
PDEL = env("PDEL", 4)
MASKP = env("MASKP", 1)
SPAT = env("SPAT", 3)
LPRIO = env("LPRIO", 3)
FA0 = env("FA0", 13)
AFLAGQ = env("AFLAGQ", 11)
CAP = env("CAP", 20)
QCAP = env("QCAP", 40)
KVA = env("KVA", 0)
NFILL = env("NFILL", 4)
AHD = env("AHD", 6)
ATPOLL = env("ATPOLL", 1)
HINTW = env("HINTW", 0)
TSLP = env("TSLP", 2)
SPF = env("SPF", 0)
CODEPF = env("CODEPF", 1)
SLP = env("SLP", 4)

WS_Q = 0x0
WS_K = 0x200000
WS_V = 0x400000
WS_ACT = 0x600000
WS_O = 0xF00000
WS_G = 0x1240000
WS_FL = 0x1280000
FL_A = WS_FL
FL_B1 = WS_FL + 0x8000
FL_B2 = WS_FL + 0x10000
FL_C = WS_FL + 0x20000
WS_STAMP = 0x1800000
WS_SIZE = 0x2800000

XS = 16384
WB = 5 * XS
WSL = 24576
LDS_GQ = 162176
LDS_OG = 163200
LDS_TAG = 163584
LDS_SYNC = LDS_TAG + 8
LDS_TOTAL = 163840
TP = 2080
LDS_V = 1024
VP = TP
LDS_WS = 137472
DSTG = 22528
LDS_Q = WB + 2 * WSL + 16384
def xslot(c):
    return ((7 - c) % 5 if c < 8 else (c - 8 if c < 13 else c - 11)) * XS
def wslot(c):
    return WB + (c % 3) * WSL

SC = " sc1"
SPIN = 200000
MF = "v_mfma_f32_32x32x16_bf16"

def srd(a, d, base, nbytes):
    a(f"s_mov_b32 s{d}, s{base}")
    a(f"s_mov_b32 s{d+1}, s{base+1}")
    a(f"s_mov_b32 s{d+2}, {nbytes:#x}")
    a(f"s_mov_b32 s{d+3}, 0x20000")

def stamp(a, i, lvl=1):
    if PROF and (PROF == lvl or i in (0, 7)):
        a("s_memrealtime s[96:97]")
        a("s_memtime s[98:99]")
        a("s_waitcnt lgkmcnt(0)")
        a(f"s_mov_b32 s{80+i}, s96")
        a(f"s_mov_b32 s{88+i}, s98")

def stamp_flush(a, n):
    if PROF:
        a("s_waitcnt vmcnt(0)")
        stamp(a, n - 1)
        a("s_lshl_b32 s78, s2, 4")
        a("s_add_u32 s78, s78, s20")
        a("s_lshl_b32 s78, s78, 6")
        a(f"s_add_u32 s78, s78, {WS_STAMP}")
        a("v_mov_b32 v1, 0")
        for i in range(n):
            a(f"v_mov_b32 v0, s{80+i}")
            a(f"buffer_store_dword v0, v1, s[28:31], s78 offen offset:{4*i}")
            a("s_nop 1")
            a(f"v_mov_b32 v0, s{88+i}")
            a(f"buffer_store_dword v0, v1, s[28:31], s78 offen offset:{32+4*i}")
            a("s_nop 1")
        a("s_waitcnt vmcnt(0)")
        if DBGWG >= 0:
            a(f"s_cmp_lg_u32 s2, {DBGWG}")
            a("s_cbranch_scc1 DBG_SKIP")
            a("s_and_b32 s78, s20, 3")
            a("s_cmp_lg_u32 s78, 0")
            a("s_cbranch_scc1 DBG_SKIP")
            a("s_mul_i32 s78, s20, 7")
            a("v_mov_b32 v1, s78")
            for i in range(1, n):
                a(f"s_sub_u32 s79, s{80+i}, s80")
                a("v_mov_b32 v0, s79")
                a(f"global_store_dword v1, v0, s[66:67] offset:{4+4*i}")
                a("s_nop 1")
            a("s_waitcnt vmcnt(0)")
            a.label("DBG_SKIP")

def pad_until(a, ticks):
    lab = a.newlabel("PAD")
    a.label(lab)
    a("s_memrealtime s[96:97]")
    a("s_waitcnt lgkmcnt(0)")
    a("s_sub_u32 s96, s96, s68")
    a(f"s_cmp_lt_u32 s96, {ticks}")
    a(f"s_cbranch_scc1 {lab}")

def flag_store(a, soff, vtmp):
    a(f"v_mov_b32 v{vtmp}, s68")
    a(f"v_mov_b32 v{vtmp+1}, s69")
    a(f"v_mov_b32 v{vtmp+2}, 0")
    a("s_mov_b64 exec, 1")
    a(f"buffer_store_dwordx2 {v(vtmp,2)}, v{vtmp+2}, s[28:31], {soff} offen sc1")
    a("s_mov_b64 exec, -1")

def poll(a, soff, voff, vtmp, slp=None):
    lab = a.newlabel("POLL")
    done = a.newlabel("POLLD")
    a(f"s_mov_b32 s74, {SPIN}")
    a.label(lab)
    a(f"buffer_load_dwordx2 {v(vtmp,2)}, v{voff}, s[28:31], {soff} offen sc1")
    a("s_waitcnt vmcnt(0)")
    a(f"v_xor_b32 v{vtmp}, s68, v{vtmp}")
    a(f"v_xor_b32 v{vtmp+1}, s69, v{vtmp+1}")
    a(f"v_or_b32 v{vtmp}, v{vtmp}, v{vtmp+1}")
    a(f"v_cmp_ne_u32 vcc, 0, v{vtmp}")
    a("s_sub_u32 s74, s74, 1")
    a("s_cmp_eq_u32 s74, 0")
    a(f"s_cbranch_scc1 {done}")
    a("s_cmp_eq_u64 vcc, 0")
    a(f"s_cbranch_scc1 {done}")
    a(f"s_sleep {SLP if slp is None else slp}")
    a(f"s_branch {lab}")
    a.label(done)

def poll_shared(a, stage, polls, vtmp, lslp=1, extra=None):
    other = a.newlabel("PSO")
    done = a.newlabel("PSD")
    a(f"v_mov_b32 v{vtmp+3}, {LDS_SYNC}")
    a("s_cmp_lg_u32 s23, 0")
    a(f"s_cbranch_scc1 {other}")
    for p in polls:
        poll(a, *p)
    if extra:
        extra()
    a(f"v_mov_b32 v{vtmp}, {stage}")
    a(f"ds_write_b32 v{vtmp+3}, v{vtmp}")
    a(f"s_branch {done}")
    a.label(other)
    a(f"s_mov_b32 s74, {SPIN*8}")
    lab = a.newlabel("PSL")
    a.label(lab)
    a(f"ds_read_b32 v{vtmp}, v{vtmp+3}")
    a("s_waitcnt lgkmcnt(0)")
    a(f"v_readfirstlane_b32 s75, v{vtmp}")
    a("s_sub_u32 s74, s74, 1")
    a("s_cmp_eq_u32 s74, 0")
    a(f"s_cbranch_scc1 {done}")
    a(f"s_cmp_ge_u32 s75, {stage}")
    a(f"s_cbranch_scc1 {done}")
    a(f"s_sleep {lslp}")
    a(f"s_branch {lab}")
    a.label(done)

def cvt_tile(a, acc, dst, lo=0, hi=16):
    for i in range(lo, hi, 2):
        a(f"v_cvt_pk_bf16_f32 v{dst + (i - lo)//2}, v{acc+i}, v{acc+i+1}")

def frag_addrs(a, sbase):
    a("v_lshrrev_b32 v4, 3, v2")
    a("v_and_b32 v5, 7, v2")
    a("v_bfe_u32 v7, v2, 4, 1")
    a("v_lshlrev_b32 v7, 2, v7")
    a("v_xor_b32 v5, v5, v7")
    a("v_lshlrev_b32 v5, 4, v5")
    a("v_lshl_add_u32 v10, v4, 10, v5")
    a("v_add_u32 v11, 7168, v10")
    a("v_bfe_u32 v4, v2, 2, 2")
    a("v_lshrrev_b32 v5, 5, v2")
    a("v_lshl_add_u32 v5, v5, 2, v4")
    a("v_lshlrev_b32 v5, 7, v5")
    a("v_lshrrev_b32 v4, 1, v4")
    a("v_lshl_add_u32 v5, v4, 6, v5")
    a("v_bfe_u32 v4, v2, 4, 1")
    a("v_lshl_add_u32 v5, v4, 5, v5")
    a("v_and_b32 v4, 3, v2")
    a("v_lshl_add_u32 v5, v4, 3, v5")
    a("v_xor_b32 v13, 64, v5")
    a(f"v_add_u32 v12, {sbase}, v5")
    a(f"v_add_u32 v13, {sbase}, v13")

def part_addrs(a, sbase, r):
    a(f"v_lshrrev_b32 v{r}, 5, v2")
    a(f"v_and_b32 v{r+1}, 7, v2")
    a(f"v_xor_b32 v{r}, v{r}, v{r+1}")
    a(f"v_and_b32 v{r+1}, 31, v2")
    a(f"v_lshlrev_b32 v{r+1}, 8, v{r+1}")
    a(f"v_lshl_add_u32 v{r}, v{r}, 4, v{r+1}")
    for g in range(1, 4):
        a(f"v_xor_b32 v{r+g}, {32*g}, v{r}")
    for g in range(4):
        a(f"v_add_u32 v{r+g}, {sbase}, v{r+g}")

def part_write(a, GA, r):
    for n in range(2):
        for t in range(2):
            acc = GA + (n * 2 + t) * 16
            for g in range(4):
                a(f"ds_write_b128 v{r+g}, {v(acc+4*g,4)} offset:{t*8192 + n*128}")

def lds_wait(a, vaddr, vdst, cmp_lines, first_read=True):
    lab, done = a.newlabel("LW"), a.newlabel("LWD")
    a(f"s_mov_b32 s74, {SPIN*8}")
    if first_read:
        a(f"ds_read_b32 v{vdst}, v{vaddr}")
    a.label(lab)
    a("s_waitcnt lgkmcnt(0)")
    a(f"v_readfirstlane_b32 s75, v{vdst}")
    a("s_sub_u32 s74, s74, 1")
    a(f"s_cbranch_scc1 {done}")
    for l in cmp_lines:
        a(l)
    a(f"s_cbranch_scc1 {done}")
    a("s_sleep 1")
    a(f"ds_read_b32 v{vdst}, v{vaddr}")
    a(f"s_branch {lab}")
    a.label(done)

def gen(a):
    kernel_header(a, KNAME)
    if PROF == 7:
        a("s_memrealtime s[100:101]")
    a("s_cmp_ge_u32 s2, 256")
    a("s_cbranch_scc1 K_EXIT")
    if env("SHUF", 0) == 1:
        a("s_lshr_b32 s3, s2, 3")
        a("s_lshl_b32 s2, s2, 5")
        a("s_or_b32 s2, s2, s3")
        a("s_and_b32 s2, s2, 255")
    if env("SHUF", 0) == 2:
        a("s_mul_i32 s2, s2, 37")
        a("s_add_u32 s2, s2, 11")
        a("s_and_b32 s2, s2, 255")
    if env("JIT", 0):
        a("s_mul_i32 s3, s2, 2654435761")
        a("s_lshr_b32 s3, s3, 27")
        a.label("JIT_L")
        a("s_sleep 8")
        a("s_sub_u32 s3, s3, 1")
        a("s_cbranch_scc0 JIT_L")
    a("s_load_dwordx4 s[4:7], s[0:1], 0       ; x, wqkv")
    a("v_lshrrev_b32 v1, 6, v0")
    a("v_and_b32 v2, 63, v0                   ; lane")
    a("v_readfirstlane_b32 s20, v1")
    VX0, VX1, VR0, VR1, VKV = 10, 11, 12, 13, 14
    if FASTX:
        assert ROT1 == 2 and PRE == 2
        a("v_lshrrev_b32 v4, 3, v2")
        a("v_and_b32 v5, 7, v2")
        a("v_lshrrev_b32 v6, 4, v2")
        a("v_xor_b32 v7, v5, v6")
        a("v_lshlrev_b32 v7, 4, v7")
        a(f"v_lshl_add_u32 v{VX0}, v4, 10, v7")
        a(f"v_xor_b32 v{VX1}, 64, v{VX0}")
        a("s_bfe_u32 s63, s2, 0x30003")
        a("s_and_b32 s40, s2, 1")
        a("s_lshl_b32 s40, s40, 3")
        a("s_add_u32 s40, s40, s63                ; rb")
        a("s_lshl_b32 s40, s40, 2")
        a("s_and_b32 s42, s20, 3")
        a("s_add_u32 s40, s40, s42")
        a("s_lshl_b32 s40, s40, 15")
        a("s_lshl_b32 s42, s42, 12")
        a("s_lshr_b32 s37, s2, 6")
        a("s_add_u32 s37, s37, s63")
        a("s_lshl_b32 s37, s37, 1")
        a("s_lshr_b32 s38, s20, 2")
        a("s_add_u32 s37, s37, s38")
        a("s_and_b32 s37, s37, 7")
        a("s_lshl_b32 s37, s37, 7")
        a("s_add_u32 s37, s37, s40")
        a("s_cmp_lt_u32 s20, 4")
        a(f"s_mov_b32 s38, {slot_of(1)}")
        a(f"s_cselect_b32 s38, {slot_of(0)}, s38")
        a("s_add_u32 s38, s38, s42")
        a("s_mov_b32 s46, 0x200000")
        a("s_mov_b32 s47, 0x20000")
        a("s_waitcnt lgkmcnt(0)")
        a("s_mov_b64 s[44:45], s[4:5]")
        for i in range(4):
            a(f"s_add_u32 m0, s38, {i*1024}")
            a(f"s_add_u32 s39, s37, {i*8192}")
            a(f"buffer_load_dwordx4 v{VX1 if i & 1 else VX0}, s[44:47], s39 offen lds")
    a("s_load_dwordx4 s[12:15], s[0:1], 32")
    a("s_load_dwordx2 s[8:9], s[0:1], 16      ; wo")
    a("s_load_dwordx2 s[10:11], s[0:1], 80    ; ws")
    a("s_load_dwordx4 s[16:19], s[0:1], 48")
    a("s_load_dwordx4 s[64:67], s[0:1], 64")
    a("v_lshlrev_b32 v3, 4, v2                ; lane*16")
    stamp(a, 0)
    a("s_and_b32 s24, s2, 1                   ; xh")
    a("s_bfe_u32 s25, s2, 0x20001             ; xq")
    a("s_lshr_b32 s26, s2, 3                  ; j")
    a("s_and_b32 s63, s26, 7")
    a("s_lshl_b32 s21, s24, 3")
    a("s_add_u32 s21, s21, s63                ; rb")
    a("s_lshr_b32 s27, s26, 3")
    a("s_mul_i32 s22, s25, 3")
    a("s_add_u32 s22, s22, s27")
    a("s_add_u32 s23, s25, 12")
    a("s_cmp_eq_u32 s27, 3")
    a("s_cselect_b32 s22, s23, s22            ; cb2")
    if FMAP:
        a("s_and_b32 s72, s2, 7")
        a("s_lshl_b32 s72, s72, 2")
        a("s_and_b32 s73, s26, 3")
        a("s_add_u32 s72, s72, s73                ; rb64")
        a("s_lshr_b32 s73, s26, 2                 ; cb64")
    else:
        a("s_lshl_b32 s72, s25, 3")
        a("s_add_u32 s72, s72, s63                ; rb64")
        a("s_lshl_b32 s73, s24, 2")
        a("s_add_u32 s73, s73, s27                ; cb64")
    if ROT1 == 1:
        a("s_lshl_b32 s27, s27, 1")
        a("s_add_u32 s63, s63, s27")
    elif ROT1 == 2:
        a("s_add_u32 s63, s63, s27")
        a("s_lshl_b32 s63, s63, 1")
    elif ROT1 == 3:
        a("s_add_u32 s63, s63, s27")
        a("s_lshl_b32 s63, s63, 2")
    a(f"s_and_b32 s63, s63, {7 if ROT1 else 0}")
    a("s_and_b32 s70, s2, 7")
    a("s_lshl_b32 s70, s70, 2")
    a("s_and_b32 s27, s26, 3")
    a("s_add_u32 s70, s70, s27                ; head")
    a("s_lshr_b32 s71, s26, 2                 ; qb")
    a("s_cmp_lt_u32 s20, 4")
    a("s_cbranch_scc1 K1_COMPUTE")

    a("s_sub_u32 s23, s20, 4                  ; L")
    if LPRIO:
        a(f"s_setprio {LPRIO}")
    if not FASTX:
        a("v_lshrrev_b32 v4, 3, v2")
        a("v_and_b32 v5, 7, v2")
        a("v_lshrrev_b32 v6, 4, v2")
        a("v_xor_b32 v7, v5, v6")
        a("v_lshlrev_b32 v7, 4, v7")
        a(f"v_lshl_add_u32 v{VX0}, v4, 10, v7")
        a(f"v_xor_b32 v{VX1}, 64, v{VX0}")
    a("v_and_b32 v7, 1, v6")
    a("v_lshlrev_b32 v7, 2, v7")
    a("v_xor_b32 v7, v7, v5")
    a("v_lshlrev_b32 v7, 4, v7")
    a("v_mul_u32_u24 v8, 3072, v4")
    a(f"v_add_u32 v{VKV}, v8, v7")
    a("v_mul_u32_u24 v8, 3584, v4")
    a("v_add_u32 v15, v8, v7")
    a("s_cmp_lt_u32 s22, 12")
    a("s_cselect_b64 vcc, -1, 0")
    a("s_movk_i32 s60, 3072")
    a("s_cselect_b32 s60, 3584, s60")
    a(f"v_cndmask_b32 v{VR0}, v{VKV}, v15, vcc")
    a(f"v_xor_b32 v{VR1}, 32, v{VR0}")
    a("s_cselect_b32 s32, 0, 12")
    a("s_sub_u32 s32, s22, s32")
    a("s_lshl_b32 s32, s32, 8")
    a("s_lshl_b32 s61, s22, 1")
    a("s_add_u32 s61, s61, 1")
    a("s_add_u32 s34, s22, 12")
    a("s_cmp_lt_u32 s22, 12")
    a("s_cselect_b32 s33, 0, 128              ; R1 - R0")
    a("s_cselect_b32 s61, s61, s34")
    a("s_lshl_b32 s61, s61, 7")
    a("s_mul_i32 s34, s23, 57344")
    a("s_add_u32 s61, s61, s34")
    a("s_lshl_b32 s34, s23, 4")
    a("s_mul_i32 s34, s34, s60")
    a("s_add_u32 s32, s32, s34")
    a("s_lshl_b32 s62, s60, 6")
    a("s_lshl_b32 s36, s60, 3                 ; 8 rows")
    a("s_mul_i32 s34, s23, 49152")
    a("s_lshl_b32 s35, s22, 7")
    a("s_add_u32 s34, s34, s35")
    a("s_add_u32 s34, s34, 1024")
    if not FASTX:
        a("s_lshl_b32 s40, s21, 17")
        a("s_lshl_b32 s41, s23, 15")
        a("s_add_u32 s40, s40, s41                ; x base")
        a("s_lshl_b32 s42, s23, 12")
    a("s_lshl_b32 s35, s23, 11")
    a("s_mov_b32 s43, s63                     ; kc")
    a("s_waitcnt lgkmcnt(0)")
    srd(a, 24, 4, 0x200000)
    srd(a, 44, 6, 0x180000)
    a("s_cmp_lt_u32 s22, 12")
    a("s_cselect_b64 s[48:49], s[12:13], s[6:7]")
    a("s_cselect_b64 s[52:53], s[14:15], s[6:7]")
    a("s_cselect_b32 s50, 0x1c0000, s46")
    a("s_mov_b32 s54, s50")
    a("s_mov_b32 s51, 0x20000")
    a("s_mov_b32 s55, 0x20000")
    queue = []
    def issue(c):
        ws_, xs_ = wslot(c), xslot(c)
        a("s_mul_i32 s38, s43, s62")
        a("s_add_u32 s38, s38, s32")
        for i in range(2):
            a(f"s_add_u32 m0, s35, {ws_ + i*1024}")
            a("s_add_u32 s39, s38, s33")
            a(f"buffer_load_dwordx4 v{VR0}, s[48:51], s38 offen lds")
            a(f"s_add_u32 m0, s35, {ws_ + 8192 + i*1024}")
            a("s_add_u32 s38, s38, s36")
            a(f"buffer_load_dwordx4 v{VR1}, s[52:55], s39 offen lds")
        n = 4
        if c < 8:
            a("s_mul_i32 s38, s43, 196608")
            a("s_add_u32 s38, s38, s34")
            for i in range(2):
                a(f"s_add_u32 m0, s35, {ws_ + 16384 + i*1024}")
                a(f"s_add_u32 s39, s38, {i*24576}")
                a(f"buffer_load_dwordx4 v{VKV}, s[44:47], s39 offen lds")
            n += 2
        if c < 8 or c >= 13:
            a("s_lshl_b32 s37, s43, 7")
            a("s_add_u32 s37, s37, s40")
            for i in range(4):
                a(f"s_add_u32 m0, s42, {xs_ + i*1024}")
                a(f"s_add_u32 s39, s37, {i*8192}")
                a(f"buffer_load_dwordx4 v{VX1 if i & 1 else VX0}, s[24:27], s39 offen lds")
            n += 4
        if c != 7:
            a("s_add_u32 s43, s43, " + ("1" if c < 7 else "7"))
            a("s_and_b32 s43, s43, 7")
        else:
            a("s_mov_b32 s32, s61")
            a("s_mov_b32 s33, 0")
            a("s_mov_b32 s62, 229376")
            a("s_mov_b32 s36, 28672")
            a("s_mov_b64 s[48:49], s[12:13]")
            a("s_mov_b64 s[52:53], s[14:15]")
            a("s_mov_b32 s50, 0x1c0000")
            a("s_mov_b32 s54, 0x1c0000")
            a(f"v_mov_b32 v{VR0}, v15")
            a(f"v_xor_b32 v{VR1}, 32, v15")
        queue.extend([c] * n)
    def waitq(tag):
        n = len(queue) - 1 - max(i for i, t in enumerate(queue) if t == tag)
        a(f"s_waitcnt vmcnt({n})")
    stamp(a, 2, 7)
    if PROF == 7:
        a("s_mov_b32 s81, s80")
        a("s_mov_b32 s80, s100")
    issue(0)
    stamp(a, 3, 7)
    if PRE == 2:
        issue(1)
    stamp(a, 4, 7)
    stamp(a, 1)
    srd(a, 28, 10, WS_SIZE)
    a("v_mov_b32 v9, 0")
    a("s_add_u32 s37, s2, s20")
    a("s_cmp_eq_u32 s37, 4")
    a("s_cbranch_scc0 K1_NOTAG")
    a("s_memrealtime s[56:57]")
    a("s_waitcnt lgkmcnt(0)")
    a("s_or_b32 s56, s56, 1")
    a("s_or_b32 s57, s57, 0x80000000")
    a("v_mov_b32 v4, s56")
    a("v_mov_b32 v5, s57")
    a("s_mov_b64 exec, 1")
    a("global_store_dwordx2 v9, v[4:5], s[66:67] sc1")
    a("s_mov_b64 exec, -1")
    a.label("K1_NOTAG")
    def get_tag():
        lab, done = a.newlabel("TAG"), a.newlabel("TAGD")
        a(f"s_mov_b32 s74, {SPIN}")
        a("v_readfirstlane_b32 s68, v60")
        a("v_readfirstlane_b32 s69, v61")
        a.label(lab)
        a("s_sub_u32 s74, s74, 1")
        a(f"s_cbranch_scc1 {done}")
        a("s_min_u32 s75, s68, s69")
        a("s_cmp_lg_u32 s75, 0")
        a(f"s_cbranch_scc1 {done}")
        a("global_load_dwordx2 v[60:61], v9, s[66:67] sc1")
        a("s_waitcnt vmcnt(0)")
        a("v_readfirstlane_b32 s68, v60")
        a("v_readfirstlane_b32 s69, v61")
        a("s_sleep 2")
        a(f"s_branch {lab}")
        a.label(done)
        a(f"v_mov_b32 v4, {LDS_TAG}")
        a("v_mov_b32 v60, s68")
        a("v_mov_b32 v61, s69")
        a("ds_write_b64 v4, v[60:61]")
        a("ds_write_b32 v4, v9 offset:8")
        a("ds_write_b32 v4, v9 offset:12")
        a("ds_write_b32 v4, v9 offset:16")
        a("ds_write_b32 v4, v9 offset:20")
        a("ds_write_b32 v4, v9 offset:24")
        a("s_waitcnt lgkmcnt(0)")
    def flag_a(c):
        lab = a.newlabel("FA")
        a("s_cmp_lg_u32 s23, 1")
        a(f"s_cbranch_scc1 {lab}")
        if AFLAG != AFLAGQ:
            a("s_cmp_lt_u32 s22, 12")
            a(f"s_cbranch_scc{0 if c == AFLAG else 1} {lab}")
        a("s_lshl_b32 s37, s22, 4")
        a("s_add_u32 s37, s37, s21")
        a("s_lshl_b32 s37, s37, 7")
        a(f"s_add_u32 s37, s37, {FL_A}")
        flag_store(a, "s37", 16)
        a.label(lab)
    def kv_setup():
        a("v_and_b32 v5, 15, v2")
        a("v_lshlrev_b32 v5, 7, v5")
        a("v_bfe_u32 v6, v2, 4, 1")
        a("v_lshl_add_u32 v5, v6, 14, v5")
        a("s_and_b32 s56, s2, 7")
        a("s_lshr_b32 s57, s56, 1")
        a("s_add_u32 s57, s57, 12")
        a("s_sub_u32 s57, s57, s56")
        a("s_lshl_b32 s57, s57, 11")
        a("s_lshl_b32 s58, s71, 8")
        a("s_add_u32 s57, s57, s58")
        a("v_and_b32 v6, 1, v2")
        a("v_lshlrev_b32 v6, 7, v6")
        a("v_add_u32 v6, s57, v6")
        a("v_cmp_gt_u32 vcc, 32, v2")
        a("s_lshl_b32 s56, s56, 11")
        a(f"s_add_u32 s56, s56, {FL_A}")
        a("v_cndmask_b32 v5, v6, v5, vcc")
        a("s_lshl_b32 s57, s70, 16")
        a("s_lshl_b32 s58, s23, 10")
        a("s_add_u32 s57, s57, s58                ; head*64K + L*1K")
        a(f"s_add_u32 s57, s57, {WS_K}")
        a(f"s_mul_i32 s58, s23, {TP}")
    def kv_loads(lo, hi):
        n = hi - lo
        a(f"s_mul_i32 s44, s71, {n}")
        a("s_lshr_b32 s44, s44, 3")
        for i in range(n):
            a(f"s_mul_i32 s45, s44, {4*TP}")
            a("s_add_u32 s45, s45, s58")
            a(f"s_add_u32 m0, s45, {lo*4*TP}")
            a("s_lshl_b32 s37, s44, 12")
            a("s_add_u32 s37, s37, s57")
            a(f"s_add_u32 s38, s37, {lo*4096}")
            a(f"buffer_load_dwordx4 v3, s[28:31], s38 offen{SC} lds")
            a(f"s_add_u32 m0, s45, {lo*4*TP + 1024}")
            a(f"s_add_u32 s38, s37, {lo*4096 + WS_V - WS_K}")
            a(f"buffer_load_dwordx4 v3, s[28:31], s38 offen{SC} lds")
            if i < n - 1:
                a("s_add_u32 s44, s44, 1")
                a(f"s_cmp_eq_u32 s44, {n}")
                a("s_cselect_b32 s44, 0, s44")
        queue.extend(["kv"] * (2 * n))
    def q_loads():
        a("s_lshl_b32 s37, s70, 6")
        a("s_lshl_b32 s38, s71, 3")
        a("s_add_u32 s37, s37, s38")
        a("s_lshl_b32 s38, s23, 1")
        a("s_add_u32 s37, s37, s38")
        a("s_lshl_b32 s37, s37, 10")
        a("s_lshl_b32 s38, s23, 11")
        a(f"s_add_u32 m0, s38, {LDS_Q}")
        a("s_nop 0")
        a(f"buffer_load_dwordx4 v3, s[28:31], s37 offen{SC} lds")
        a(f"buffer_load_dwordx4 v3, s[28:31], s37 offen offset:1024{SC} lds")
    def fa_load():
        a("buffer_load_dwordx2 v[20:21], v5, s[28:31], s56 offen sc1")
    def fa_test():
        a("v_xor_b32 v20, s68, v20")
        a("v_xor_b32 v21, s69, v21")
        a("v_or_b32 v20, v20, v21")
        a("v_cmp_ne_u32 vcc, 0, v20")
        a("s_nop 1")
        a("s_cmp_eq_u64 vcc, 0")
    def kv_first():
        n = len(queue)
        q_loads()
        kv_loads(0, 3)
        del queue[n:]
        a("s_mov_b32 s77, 1")
    def kv_try():
        lab = a.newlabel("KVT")
        a("s_cmp_lg_u32 s77, 0")
        a(f"s_cbranch_scc1 {lab}")
        fa_test()
        a(f"s_cbranch_scc0 {lab}")
        kv_first()
        a.label(lab)
    for c in range(14):
        if c <= FA0:
            waitq(c)
        if c == 6:
            get_tag()
        if c < 2:
            stamp(a, c + 5, 7)
        if c < 6:
            stamp(a, c + 1, 2)
        if 6 <= c < 12:
            stamp(a, c - 5, 3)
        if c >= 10:
            stamp(a, c - 9, 4)
        a(f"s_barrier                              ; b({c})")
        if c == 8:
            stamp(a, 2)
        if c == 4:
            a("global_load_dwordx2 v[60:61], v9, s[66:67] sc1")
        if c in (AFLAG, AFLAGQ):
            flag_a(c)
        if c == 9:
            kv_setup()
            a("s_mov_b32 s77, 0")
        if c == 0 and PRE == 1:
            issue(1)
        if c + 2 < 16:
            issue(c + 2)
        if c >= FA0:
            nn = queue.count(c + 2)
            keep = nn if c < 13 else 0
            lA, lB, lE = a.newlabel("KVA"), a.newlabel("KVB"), a.newlabel("KVE")
            if c > FA0:
                a("s_cmp_lg_u32 s77, 0")
                a(f"s_cbranch_scc1 {lA}")
                a(f"s_waitcnt vmcnt({nn})")
                fa_test()
                a(f"s_cbranch_scc0 {lB}")
                kv_first()
                a(f"s_waitcnt vmcnt({keep + 8})")
                a(f"s_branch {lE}")
                a.label(lA)
                a(f"s_waitcnt vmcnt({keep})")
                a(f"s_branch {lE}")
                a.label(lB)
            fa_load()
            a(f"s_waitcnt vmcnt({keep + 1})")
            a.label(lE)
        if c == PFC:
            a("s_cmp_ge_u32 s23, 2")
            a("s_cbranch_scc1 K1_NOPF2")
            a("s_cmp_eq_u32 s23, 0")
            a("s_cselect_b64 s[56:57], s[12:13], s[14:15]")
            a("s_mov_b32 s58, 0x1c0000")
            a("s_mov_b32 s59, 0x20000")
            a("v_mul_u32_u24 v16, 3584, v2")
            a("s_mul_i32 s37, s23, 57344")
            a("s_sub_u32 s37, s61, s37")
            a("s_and_b32 s38, s21, 7")
            a("s_mul_i32 s38, s38, 229376")
            a("s_add_u32 s37, s37, s38")
            a("buffer_load_dword v17, v16, s[56:59], s37 offen")
            a.label("K1_NOPF2")
    a("s_barrier                              ; b(14)")
    a("s_cmp_lg_u32 s77, 0")
    a("s_cbranch_scc1 KV_GO")
    a("s_waitcnt vmcnt(0)")
    fa_test()
    a("s_cbranch_scc1 KV_GO1")
    poll(a, "s56", 5, 8, 1)
    a.label("KV_GO1")
    kv_first()
    a.label("KV_GO")
    srd(a, 48, 18, 1024)
    a("s_lshl_b32 s76, s2, 2")
    a("s_add_u32 s76, s76, s23")
    a("s_lshl_b32 s55, s76, 11")
    a("buffer_load_dwordx4 v[64:67], v3, s[48:51], 0 offen")
    a("buffer_load_dwordx4 v[24:27], v3, s[24:27], s55 offen")
    a("buffer_load_dwordx4 v[28:31], v3, s[24:27], s55 offen offset:1024")
    kv_loads(3, 5)
    a("s_waitcnt vmcnt(4)")
    a("v_mov_b32 v32, 0")
    a("v_mov_b32 v33, 0")
    for q in range(4):
        a(f"v_dot2_f32_bf16 v32, v{24+q}, v{64+q}, v32")
        a(f"v_dot2_f32_bf16 v33, v{28+q}, v{64+q}, v33")
    a("s_nop 2")
    a("v_permlane32_swap_b32 v32, v33")
    a("s_nop 1")
    a("v_add_f32 v32, v32, v33")
    for ctl in ("quad_perm:[1,0,3,2]", "quad_perm:[2,3,0,1]", "row_half_mirror", "row_mirror"):
        a("s_nop 1")
        a(f"v_add_f32_dpp v32, v32, v32 {ctl} row_mask:0xf bank_mask:0xf")
    a("v_mov_b32 v33, v32")
    a("s_nop 1")
    a("v_permlane16_swap_b32 v32, v33")
    a("s_nop 1")
    a("v_add_f32 v32, v32, v33")
    a(f"v_mul_f32 v32, {fh(-LOG2E)}, v32")
    a("v_exp_f32 v32, v32")
    a("v_lshrrev_b32 v70, 5, v2")
    a("v_add_f32 v32, 1.0, v32")
    a("v_rcp_f32 v68, v32")
    a("v_lshlrev_b32 v70, 3, v70")
    a("v_mov_b32 v69, s68")
    a("s_branch K2_GEMM")

    a.label("K1_COMPUTE")
    AF = 96
    AK = 224
    def accF(sw, i, t):
        return AF + ((sw * 2 + i) * 2 + t) * 16
    XA = [4, 5, 6, 7]
    WA = [8, 9]
    KA = 10
    a("s_and_b32 s23, s20, 1                  ; tp")
    a("s_lshr_b32 s24, s20, 1                 ; grp")
    a("v_bfe_u32 v16, v2, 4, 1                ; gsel")
    a("v_lshrrev_b32 v17, 5, v2               ; h")
    a("v_bfe_u32 v18, v2, 2, 2                ; r")
    a("v_and_b32 v19, 3, v2                   ; c")
    a("v_lshl_add_u32 v20, v17, 3, v18        ; 8h+r")
    a("v_and_b32 v21, 31, v2")
    a("v_lshlrev_b32 v21, 7, v21")
    a("v_bfe_u32 v22, v2, 1, 3")
    a("v_xor_b32 v22, v22, v17")
    a("v_lshl_add_u32 v21, v22, 4, v21")
    a("s_lshl_b32 s25, s23, 13")
    a(f"s_add_u32 s25, s25, {xslot(0)}")
    for s_ in range(4):
        a(f"v_xor_b32 v{XA[s_]}, {32*s_}, v21")
        a(f"v_add_u32 v{XA[s_]}, s25, v{XA[s_]}")
    a("v_lshlrev_b32 v20, 7, v20")
    a("v_lshl_add_u32 v20, v19, 3, v20        ; row*128 + c*8")
    a("v_lshrrev_b32 v21, 1, v18")
    a("v_xor_b32 v21, s24, v21                ; grp ^ (r>>1)")
    a("v_lshl_add_u32 v20, v21, 6, v20")
    a("v_lshl_add_u32 v20, v16, 5, v20")
    a(f"v_add_u32 v{KA}, {wslot(0) + 16384}, v20")
    a("v_lshl_add_u32 v20, v16, 13, v20")
    a("v_xor_b32 v21, 32, v20")
    a(f"v_add_u32 v{WA[0]}, {wslot(0)}, v20")
    a(f"v_add_u32 v{WA[1]}, {wslot(0)}, v21")
    a("v_and_b32 v11, 0x33, v2")
    a("v_bfe_u32 v17, v2, 2, 1")
    a("v_lshl_or_b32 v11, v17, 3, v11")
    a("v_bfe_u32 v17, v2, 3, 1")
    a("v_lshl_or_b32 v11, v17, 2, v11")
    a("v_lshlrev_b32 v11, 4, v11              ; K voffset")
    a("s_cmp_lt_u32 s22, 8")
    a("s_cbranch_scc1 K1_KOFF")
    a("v_lshlrev_b32 v11, 16, v16")
    a("v_lshrrev_b32 v18, 5, v2")
    a("v_lshl_or_b32 v11, v18, 8, v11")
    a("v_and_b32 v18, 15, v2")
    a("v_lshl_or_b32 v11, v18, 4, v11         ; V voffset")
    a.label("K1_KOFF")
    for i in range(160):
        a(f"v_mov_b32 v{AF+i}, 0")
    a("s_waitcnt lgkmcnt(0)")
    srd(a, 28, 10, WS_SIZE)
    if CODEPF:
        a("s_getpc_b64 s[50:51]")
        a.label("PC_HERE")
        a(f"s_sub_u32 s50, s50, PC_HERE-{KNAME}")
        a("s_subb_u32 s51, s51, 0")
        a("s_lshr_b32 s49, s2, 3")
        a("s_lshl_b32 s49, s49, 2")
        a("s_add_u32 s49, s49, s20")
        a("s_lshl_b32 s49, s49, 9")
        a("v_lshlrev_b32 v21, 3, v2")
        a("v_add_u32 v21, s49, v21")
        a(f"v_min_u32 v21, K_END-{KNAME}-4, v21")
        a("global_load_dword v21, v21, s[50:51]")
    a("s_lshl_b32 s32, s21, 2")
    a("s_lshl_b32 s33, s23, 1")
    a("s_add_u32 s32, s32, s33                ; tt0")
    a("s_and_b32 s36, s22, 7")
    a("s_lshl_b32 s36, s36, 2")
    a("s_lshl_b32 s37, s24, 1")
    a("s_add_u32 s36, s36, s37")
    a("s_lshl_b32 s36, s36, 6")
    a("s_add_u32 s36, s36, s32")
    a("s_lshl_b32 s36, s36, 10")
    a("s_cmp_lt_u32 s22, 8")
    a(f"s_mov_b32 s38, {WS_V}")
    a(f"s_cselect_b32 s38, {WS_K}, s38")
    a("s_movk_i32 s37, 512")
    a("s_cselect_b32 s37, 0x10000, s37")
    a("s_add_u32 s36, s36, s38")
    a("s_add_u32 s37, s37, s36")
    a("s_mov_b32 s25, 0")
    a("s_mov_b32 s26, 8")
    BB = [24, 44]
    def reads(s_, buf, kv):
        L = [f"ds_read_b128 {v(buf,4)}, v{XA[s_]}"]
        for t in range(2):
            for u in range(2):
                L.append(f"ds_read_b64_tr_b16 {v(buf+8+4*t+2*u,2)}, v{WA[t]} offset:{(16*s_+4*u)*128}")
            if t == 0:
                L.append(f"ds_read_b128 {v(buf+4,4)}, v{XA[s_]} offset:4096")
        if kv:
            for u in range(2):
                L.append(f"ds_read_b64_tr_b16 {v(buf+16+2*u,2)}, v{KA} offset:{(16*s_+4*u)*128}")
        return L
    def mfs(buf, sw, vtype):
        L = []
        for t in range(2):
            for i in range(2):
                acc = accF(sw, i, t)
                L.append(f"{MF} {v(acc,16)}, {v(buf+8+4*t,4)}, {v(buf+4*i,4)}, {v(acc,16)}")
        if sw == 0:
            for i in range(2):
                acc = AK + 16 * i
                A_, B_ = v(buf + 16, 4), v(buf + 4 * i, 4)
                if vtype:
                    A_, B_ = B_, A_
                L.append(f"{MF} {v(acc,16)}, {A_}, {B_}, {v(acc,16)}")
        return L
    def sweep(name, sw, vtype):
        a.raw(".p2align 6")
        a.label(name)
        kv = sw == 0
        nr = 8 if kv else 6
        for s_ in range(4):
            upd = []
            if s_ == 2:
                upd = ["s_add_u32 s25, s25, 1", "s_cmp_eq_u32 s25, 3", f"s_mov_b32 s27, {WSL}",
                       f"s_cselect_b32 s27, {(-2*WSL) & 0xffffffff:#x}, s27", "s_cselect_b32 s25, 0, s25",
                       "s_cmp_eq_u32 s26, 6", f"s_mov_b32 s33, {(-XS) & 0xffffffff:#x}", f"s_cselect_b32 s33, {4*XS}, s33",
                       "s_cmp_eq_u32 s26, 1", "s_cselect_b32 s33, 0, s33"]
                upd += [f"v_add_u32 v{r}, s27, v{r}" for r in WA + [KA]] + [f"v_add_u32 v{r}, s33, v{r}" for r in XA]
            if s_ == 1 and sw == 1:
                upd = [f"s_cmp_lg_u32 s26, {17 - AFLAG}", f"s_cbranch_scc1 {name}_ND", "s_waitcnt vmcnt(0)", f"{name}_ND:"]
            M = mfs(BB[s_ & 1], sw, vtype)
            if s_ < 3:
                R = reads(s_ + 1, BB[(s_ + 1) & 1], kv)
                seq = [f"s_waitcnt lgkmcnt({nr-4})", M[0], R[0], R[1], M[1], R[2], R[3], "s_waitcnt lgkmcnt(4)", M[2], R[4], R[5]]
                if kv:
                    seq += [M[3], R[6], R[7], M[4]] + upd[:12] + [M[5]] + upd[12:]
                elif s_ == 1:
                    seq += [M[3]] + upd
                else:
                    seq += upd[:5] + [M[3]] + upd[5:]
            else:
                R = reads(0, BB[0], kv)
                tail = ["s_sub_u32 s26, s26, 1", "s_cmp_lg_u32 s26, 0"]
                seq = [f"s_waitcnt lgkmcnt({nr-4})", M[0], "s_waitcnt lgkmcnt(0)", "s_barrier", R[0], M[1], R[1], R[2], R[3], M[2], R[4], R[5]]
                if kv:
                    seq += [M[3], R[6], R[7], M[4]] + tail + [M[5]]
                else:
                    seq += tail + [M[3]]
            for l in seq:
                a(l)
        a(f"s_cbranch_scc1 {name}")
    if FASTX:
        a(f"s_waitcnt vmcnt({1 if CODEPF else 0})")
    a("s_barrier                              ; b(0)")
    stamp(a, 1)
    for l in reads(0, BB[0], True):
        a(l)
    a("s_cmp_lt_u32 s22, 8")
    a("s_cbranch_scc0 SW1V")
    sweep("SW1K", 0, False)
    a("s_branch K1_KVEPI")
    sweep("SW1V", 0, True)
    a.label("K1_KVEPI")
    stamp(a, 2)
    c0 = -2.0 * 0.7978845608028654 * LOG2E
    c1 = c0 * 0.044715
    T = 64
    TB = 16
    def gelu_tile(acc, out, pk):
        L = []
        if pk:
            for j in range(0, 8, 2):
                L.append(f"v_pk_mul_f32 {v(TB+j,2)}, {v(acc+j,2)}, {v(acc+j,2)}")
            for j in range(0, 8, 2):
                L.append(f"v_pk_fma_f32 {v(TB+j,2)}, {v(TB+j,2)}, s[34:35], v[12:13]")
            for j in range(0, 8, 2):
                L.append(f"v_pk_mul_f32 {v(TB+j,2)}, {v(TB+j,2)}, {v(acc+j,2)}")
            for j in range(8):
                L.append(f"v_exp_f32 v{TB+j}, v{TB+j}")
            for j in range(0, 4, 2):
                L.append(f"v_pk_mul_f32 {v(acc+8+j,2)}, {v(acc+8+j,2)}, {v(acc+j,2)}")
            for j in range(0, 8, 2):
                L.append(f"v_pk_add_f32 {v(TB+j,2)}, {v(TB+j,2)}, v[14:15]")
            for j in range(8):
                L.append(f"v_rcp_f32 v{TB+j}, v{TB+j}")
            for j in range(4, 8, 2):
                L.append(f"v_pk_mul_f32 {v(acc+8+j,2)}, {v(acc+8+j,2)}, {v(acc+j,2)}")
            for j in range(0, 8, 2):
                L.append(f"v_pk_mul_f32 {v(acc+8+j,2)}, {v(acc+8+j,2)}, {v(TB+j,2)}")
        else:
            for j in range(8):
                L.append(f"v_mul_f32 v{TB+j}, v{acc+j}, v{acc+j}")
            for j in range(8):
                L.append(f"v_fma_f32 v{TB+j}, v{TB+j}, s34, v12")
            for j in range(8):
                L.append(f"v_mul_f32 v{TB+j}, v{TB+j}, v{acc+j}")
            for j in range(8):
                L.append(f"v_exp_f32 v{TB+j}, v{TB+j}")
                L.append(f"v_mul_f32 v{acc+8+j}, v{acc+8+j}, v{acc+j}")
            for j in range(8):
                L.append(f"v_add_f32 v{TB+j}, 1.0, v{TB+j}")
            for j in range(8):
                L.append(f"v_rcp_f32 v{TB+j}, v{TB+j}")
                if j >= 2:
                    L.append(f"v_mul_f32 v{acc+8+j-2}, v{acc+8+j-2}, v{TB+j-2}")
            L.append(f"v_mul_f32 v{acc+14}, v{acc+14}, v{TB+6}")
            L.append(f"v_mul_f32 v{acc+15}, v{acc+15}, v{TB+7}")
        for j in range(0, 8, 2):
            L.append(f"v_cvt_pk_bf16_f32 v{out + j//2}, v{acc+8+j}, v{acc+8+j+1}")
        return L
    def kv_fill():
        L = []
        for i in range(2):
            for j in range(0, 16, 2):
                L.append(f"v_cvt_pk_bf16_f32 v{T + 8*i + j//2}, v{AK+16*i+j}, v{AK+16*i+j+1}")
                if j == 6:
                    L.append(f"buffer_store_dwordx4 {v(T+8*i,4)}, v11, s[28:31], s36 offen offset:{i*1024}{SC}")
            L.append(f"buffer_store_dwordx4 {v(T+8*i+4,4)}, v11, s[28:31], s37 offen offset:{i*1024}{SC}")
        return L
    def q_fill():
        L = []
        for t in range(2):
            for i in range(2):
                acc = accF(0, i, t)
                for hf in range(2):
                    for j in range(8):
                        L.append(f"v_mul_f32 v{acc+8*hf+j}, s34, v{acc+8*hf+j}")
                    for j in range(0, 8, 2):
                        L.append(f"v_cvt_pk_bf16_f32 v{acc+8*hf+j//2}, v{acc+8*hf+j}, v{acc+8*hf+j+1}")
                    L.append(f"s_add_u32 s39, s38, {WS_Q + (t + 4*hf) * 65536}\nbuffer_store_dwordx4 {v(acc+8*hf,4)}, v3, s[28:31], s39 offen offset:{i*1024}{SC}")
        return L
    def cost(l):
        return 8 if l.startswith(("v_exp", "v_rcp")) else 4
    def sweep2(fill, early, aflag, ecap):
        F = list(fill)
        pos = [0]
        def take(fixed, st):
            used = sum(4 for l in fixed if l.startswith(("ds_", "v_")))
            out = []
            while pos[0] < len(F) and st >= 1:
                cap = ecap if pos[0] < early else CAP
                if used + cost(F[pos[0]]) > cap:
                    break
                used += cost(F[pos[0]])
                out.append(F[pos[0]])
                pos[0] += 1
            return fixed + out
        for c in range(8, 16):
            dx = (xslot(c + 1) - xslot(c)) & 0xffffffff if c < 15 else 0
            dw = (wslot(c + 1) - wslot(c)) & 0xffffffff if c < 15 else 0
            for s_ in range(4):
                st = (c - 8) * 4 + s_
                M = mfs(BB[s_ & 1], 1, False)
                ux = lambda k: [f"v_add_u32 v{XA[k]}, {dx:#x}, v{XA[k]}"] if c < 15 else []
                if s_ < 3:
                    R = reads(s_ + 1, BB[(s_ + 1) & 1], False)
                    last = ux(s_ + 1) + (ux(0) if s_ == 0 else [])
                    if s_ == 2 and c < 15:
                        last += [f"v_add_u32 v{r}, {dw:#x}, v{r}" for r in WA]
                    seq = (["s_waitcnt lgkmcnt(2)", M[0]] + take(R[0:2], st) + [M[1]] + take(R[2:4], st) +
                           ["s_waitcnt lgkmcnt(4)", M[2]] + take(R[4:6], st) + [M[3]] + take(last, st))
                else:
                    R = reads(0, BB[0], False) if c < 15 else []
                    dr = ["s_waitcnt vmcnt(0)"] if c + 1 == aflag else []
                    if dr:
                        assert pos[0] >= early
                    sync = ["s_barrier"] if c < 14 else (["s_mov_b64 exec, 1", "ds_add_u32 v0, v1", "s_mov_b64 exec, -1"] if c == 15 else [])
                    g0 = take(R[:1], st)
                    seq = (["s_waitcnt lgkmcnt(2)", M[0]] + g0[len(R[:1]):] + dr + ["s_waitcnt lgkmcnt(0)"] + sync + R[:1] + [M[1]] +
                           take(R[1:4], st) + [M[2]] + take(R[4:], st) + [M[3]] + take([], st))
                for l in seq:
                    if l == "s_barrier" and PROF in (10, 11, 12) and 0 <= c - (8 if PROF != 11 else 10) < 6:
                        if PROF == 12:
                            stamp(a, c - 8 + 1, 12)
                        a(l)
                        stamp(a, c - 8 + 1, 10)
                        stamp(a, c - 10 + 1, 11) if c >= 10 else None
                    else:
                        a(l)
        for l in F[pos[0]:]:
            a(l)
        sys.stderr.write(f"sweep2: {len(F) - pos[0]} of {len(F)} fillers left over\n")
    a(f"v_mov_b32 v0, {LDS_SYNC + 16}")
    a("v_mov_b32 v1, 1")
    a(f"v_mov_b32 v16, {LDS_TAG}")
    a("ds_read_b64 v[18:19], v16")
    a(f"v_mov_b32 v12, {fh(c0)}")
    a("v_mov_b32 v13, v12")
    a("v_mov_b32 v14, 1.0")
    a("v_mov_b32 v15, 1.0")
    a("s_waitcnt lgkmcnt(0)")
    a("v_readfirstlane_b32 s68, v18")
    a("v_readfirstlane_b32 s69, v19")
    a("s_cmp_lt_u32 s22, 12")
    a("s_cbranch_scc1 SW2R")
    a(f"s_mov_b32 s34, {fh(LOG2E*0.25)}")
    a("s_sub_u32 s38, s22, 12")
    a("s_lshl_b32 s38, s38, 3")
    a("s_lshl_b32 s39, s24, 1")
    a("s_add_u32 s38, s38, s39")
    a("s_lshl_b32 s38, s38, 6")
    a("s_add_u32 s38, s38, s32")
    a("s_lshl_b32 s38, s38, 10")
    F = kv_fill() + q_fill()
    sweep2(F, len(F), AFLAGQ, QCAP)
    a("s_branch K1_GE2")
    a.label("SW2R")
    a(f"s_mov_b32 s34, {fh(c1)}")
    a("s_mov_b32 s35, s34")
    F = kv_fill()
    ne = len(F)
    F2 = []
    for i in range(2):
        for t in range(2):
            if i * 2 + t < NFILL:
                F += gelu_tile(accF(0, i, t), 80 + 4 * (i * 2 + t), GPK)
            else:
                F2 += gelu_tile(accF(0, i, t), 80 + 4 * (i * 2 + t), True)
    sweep2(F, ne, AFLAG, CAP)
    for l in F2:
        a(l)
    a.label("K1_GE2")
    stamp(a, 3)
    a(f"s_mov_b32 s34, {fh(c1)}")
    a("s_mov_b32 s35, s34")
    a("s_mul_i32 s36, s32, 144")
    a("s_lshl_b32 s37, s22, 3")
    a("s_lshl_b32 s38, s22, 2")
    a("s_add_u32 s38, s38, 44")
    a("s_cmp_lt_u32 s22, 12")
    a("s_cselect_b32 s37, s37, s38")
    a("s_add_u32 s36, s36, s37")
    a("s_lshl_b32 s37, s24, 1")
    a("s_add_u32 s36, s36, s37")
    a("s_lshl_b32 s36, s36, 10")
    a(f"s_add_u32 s36, s36, {WS_ACT}")
    a(f"s_add_u32 s37, s36, {144*1024}")
    a("s_add_u32 s38, s36, 4096")
    a("s_add_u32 s39, s37, 4096")
    a("s_cmp_lt_u32 s22, 12")
    a("s_cbranch_scc0 K1_GE3")
    for i in range(2):
        for t in range(2):
            a(f"buffer_store_dwordx4 {v(80 + 4*(i*2+t),4)}, v3, s[28:31], s{36+i} offen offset:{t*1024}{SC}")
    a.label("K1_GE3")
    for t in range(2):
        for i in range(2):
            out = 64 + 4 * (i * 2 + t)
            for l in gelu_tile(accF(1, i, t), out, True):
                a(l)
            a(f"buffer_store_dwordx4 {v(out,4)}, v3, s[28:31], s{38+i} offen offset:{t*1024}{SC}")

    a.label("K2_ATTN")
    Q = [8, 12]
    G = [4, 5]
    KB = [16, 20]
    VB = [[24, 28], [32, 36]]
    IDX = 6
    VK, VV0, VV1 = 40, 41, 42
    C = [96, 112]
    S = [128, 144]
    P = [160, 176]
    O = [192, 208]
    a(f"v_mov_b32 v{IDX}, 0xdddd")
    def vaddr_init():
        a(f"v_mov_b32 v{VK}, v3")
        a("v_lshrrev_b32 v43, 5, v2")
        a("v_and_b32 v44, 15, v2")
        a("v_lshlrev_b32 v44, 4, v44")
        a("v_lshl_or_b32 v44, v43, 8, v44")
        a(f"v_add_u32 v44, {LDS_V}, v44")
        a("v_add_u32 v45, 512, v44")
        a("v_and_b32 v43, 31, v2")
        a("v_subrev_u32 v47, 20, v43")
        a("v_cmp_gt_u32 vcc, 8, v47")
        a(f"v_mov_b32 v46, {LDS_V + 1040}")
        a(f"v_mov_b32 v47, {LDS_V + 1040 + 2*VP}")
        a("v_cndmask_b32 v46, v46, v47, vcc")
        a("v_and_b32 v47, 27, v43")
        a("v_cmp_eq_u32 vcc, 16, v47")
        a("v_subrev_u32 v47, 16, v46")
        a("s_nop 0")
        a("v_cndmask_b32 v46, v46, v47, vcc")
        a("v_cmp_gt_u32 vcc, 16, v43")
        a("s_nop 1")
        a(f"v_cndmask_b32 v{VV0}, v46, v44, vcc")
        a(f"v_cndmask_b32 v{VV1}, v46, v45, vcc")
    vaddr_init()
    a("s_lshl_b32 s24, s20, 8")
    a(f"s_add_u32 s24, s24, {LDS_GQ}")
    a("v_and_b32 v7, 31, v2")
    a("v_lshlrev_b32 v7, 2, v7")
    a("v_add_u32 v7, s24, v7                  ; g address")
    def zero_state():
        a("v_mov_b32 v44, 0")
        a("v_mov_b32 v45, 0")
        for r in [O[0] + i for i in range(0, 32, 2)] + [P[1] + 8 + i for i in range(0, 8, 2)] + [VB[1][1], VB[1][1] + 2]:
            a(f"v_pk_mov_b32 {v(r,2)}, v[44:45], v[44:45]")
    zero_state()
    a("s_mov_b32 s26, 0")
    a("s_lshl_b32 s24, s20, 11")
    a(f"s_add_u32 s24, s24, {LDS_Q}")
    a("v_add_u32 v43, s24, v3")
    a("s_barrier                              ; X1")
    a("s_setprio 2")
    stamp(a, 4)
    stamp(a, 1, 9)
    a(f"ds_read_b128 {v(Q[0],4)}, v43")
    a(f"ds_read_b128 {v(KB[0],4)}, v{VK}")
    a(f"ds_read_b128 {v(Q[1],4)}, v43 offset:1024")
    a("s_waitcnt lgkmcnt(0)")
    for q in range(2):
        a(f"{MF} {v(S[q],16)}, {v(KB[0],4)}, {v(Q[q],4)}, 0")
    a("s_nop 7")
    a("s_nop 3")
    def maxtree(src, dst, acc=False):
        if acc:
            for i in range(0, 16, 2):
                a(f"v_max3_f32 v{dst}, v{src+i}, v{src+i+1}, v{dst}")
        else:
            a(f"v_max_f32 v{dst}, v{src}, v{src+1}")
            for i in range(2, 16, 2):
                a(f"v_max3_f32 v{dst}, v{src+i}, v{src+i+1}, v{dst}")
    for q in range(2):
        maxtree(S[q], 44 + q)
    a.label("K2_SETMAX")
    a(f"ds_read_b128 {v(KB[0],4)}, v{VK}")
    a(f"ds_read_b128 {v(VB[0][0],4)}, v{VV0}")
    a(f"ds_read_b128 {v(VB[0][1],4)}, v{VV1}")
    a(f"ds_read_b128 {v(KB[1],4)}, v{VK} offset:{TP}")
    for q in range(2):
        a(f"v_mov_b32 v{46+q}, v{44+q}")
    a("s_nop 1")
    for q in range(2):
        a(f"v_permlane32_swap_b32 v{44+q}, v{46+q}")
    for q in range(2):
        a(f"v_min_f32 v{44+q}, -v{44+q}, -v{46+q}     ; -max")
    for i in range(0, 16, 2):
        a(f"v_pk_mov_b32 {v(C[0]+i,2)}, v[44:45], v[44:45] op_sel:[0,0]")
    a("s_waitcnt lgkmcnt(0)")
    a("s_nop 0")
    a(f"{MF} {v(S[0],16)}, {v(KB[0],4)}, {v(Q[0],4)}, {v(C[0],16)}")
    for i in range(0, 16, 2):
        a(f"v_pk_mov_b32 {v(C[1]+i,2)}, v[44:45], v[44:45] op_sel:[1,1]")
    a("s_nop 3")
    stamp(a, 2, 9)
    a("s_cmp_lg_u32 s26, 0")
    a("s_cbranch_scc1 K2_NOBAR")
    a("s_waitcnt vmcnt(0)")
    a("s_barrier")
    a.label("K2_NOBAR")
    stamp(a, 3, 9)
    if PADATT:
        pad_until(a, PADATT)
    U = UA
    assert U == 16
    a(f"s_mov_b32 s27, {64 // U - 1}")
    a("s_mov_b32 s77, 2")
    a(f"v_mov_b32 v46, {LDS_SYNC + 12}")
    a.raw(".p2align 6")
    a.label("K2_LOOP")
    def exps(q, lo, hi):
        for i in range(lo, hi):
            a(f"v_exp_f32 v{P[q]+i}, v{S[q]+i}")
    def smf(q, vb, half):
        a(f"v_smfmac_f32_32x32x32_bf16 {v(O[q],16)}, {v(vb,4)}, {v(P[q]+8*half,8)}, v{IDX}")
    for u in range(U):
        b = u & 1
        a(f"{MF} {v(S[1],16)}, {v(KB[b],4)}, {v(Q[1],4)}, {v(C[1],16)}")
        if u == 8:
            a("s_bitcmp1_b32 s75, s77")
            a("s_cbranch_scc0 K2_KVM")
            a.label("K2_MID")
        exps(0, 0, 5)
        smf(1, VB[b ^ 1][1], 1)
        if u == 8:
            a("s_add_u32 s77, s77, 4")
            a("s_min_u32 s77, s77, 14")
        a(f"ds_read_b128 {v(VB[b^1][0],4)}, v{VV0} offset:{(u+1)*VP}")
        exps(0, 5, 11)
        smf(0, VB[b][0], 0)
        a(f"ds_read_b128 {v(VB[b^1][1],4)}, v{VV1} offset:{(u+1)*VP}")
        exps(0, 11, 16)
        a(f"{MF} {v(S[0],16)}, {v(KB[b^1],4)}, {v(Q[0],4)}, {v(C[0],16)}")
        a(f"ds_read_b128 {v(KB[b],4)}, v{VK} offset:{(u+2)*TP}")
        exps(1, 0, 5)
        smf(0, VB[b][1], 1)
        if u % 8 == 7:
            a("ds_read_b32 v47, v46")
        exps(1, 5, 11)
        smf(1, VB[b][0], 0)
        a("s_waitcnt lgkmcnt(0)")
        if u == U - 1:
            a(f"v_add_u32 v{VK}, {U*TP}, v{VK}")
            a(f"v_add_u32 v{VV0}, {U*VP}, v{VV0}")
            a(f"v_add_u32 v{VV1}, {U*VP}, v{VV1}")
        if u % 8 == 7:
            a("v_readfirstlane_b32 s75, v47")
        exps(1, 11, 16)
        if u == 7:
            mid_check = True
    a("s_bitcmp1_b32 s75, s77")
    a("s_cbranch_scc0 K2_KVW")
    a.label("K2_NEXT")
    a("s_add_u32 s77, s77, 4")
    a("s_min_u32 s77, s77, 14")
    if PROF == 9:
        a("s_memrealtime s[96:97]")
        a("s_memtime s[98:99]")
        a("s_waitcnt lgkmcnt(0)")
        for it, sl in ((3, 4), (2, 5), (1, 6)):
            a(f"s_cmp_eq_u32 s27, {it}")
            a(f"s_cselect_b32 s{80+sl}, s96, s{80+sl}")
            a(f"s_cselect_b32 s{88+sl}, s98, s{88+sl}")
    a("s_sub_u32 s27, s27, 1")
    a("s_cbranch_scc0 K2_LOOP")
    a("s_nop 1")
    smf(1, VB[(U - 1) & 1][1], 1)
    stamp(a, 5)
    stamp(a, 1, 8)
    stamp(a, 1, 13)
    a(f"v_mov_b32 v46, {LDS_SYNC + 4}")
    a("ds_read_b32 v47, v46")
    a(f"ds_read_b32 v{G[0]}, v7")
    a(f"ds_read_b32 v{G[1]}, v7 offset:128")
    a("s_lshl_b32 s24, s71, 2")
    a("s_add_u32 s24, s24, s20")
    a("s_lshl_b32 s24, s24, 5")
    a("s_add_u32 s24, s24, s70")
    a("s_lshl_b32 s25, s24, 11")
    a(f"s_add_u32 s25, s25, {WS_O}")
    a("v_mov_b32 v48, 0")
    a("v_mov_b32 v49, 0")
    a(f"v_pk_mul_f32 v[44:45], {v(O[0],2)}, v[48:49]")
    for i in range(2, 10, 2):
        a(f"v_pk_fma_f32 v[44:45], {v(O[0]+i,2)}, v[48:49], v[44:45]")
    for i in range(0, 10, 2):
        a(f"v_pk_fma_f32 v[44:45], {v(O[1]+i,2)}, v[48:49], v[44:45]")
    a("v_cmp_u_f32 vcc, v44, v45")
    a("s_nop 1")
    a("s_cmp_eq_u64 vcc, 0")
    a("s_cbranch_scc0 K2_FB")
    a.label("K2_FIN")
    for q in range(2):
        a(f"v_rcp_f32 v{48+q}, v{O[q]+8}")
    a(f"s_mov_b32 s74, {SPIN*8}")
    a.label("K2_GW")
    a("s_waitcnt lgkmcnt(0)")
    a("v_readfirstlane_b32 s75, v47")
    a("s_sub_u32 s74, s74, 1")
    a("s_cmp_eq_u32 s74, 0")
    a("s_cbranch_scc1 K2_GOK")
    a("s_cmp_ge_u32 s75, 64")
    a("s_cbranch_scc1 K2_GOK")
    a("s_sleep 1")
    a("ds_read_b32 v47, v46")
    a(f"ds_read_b32 v{G[0]}, v7")
    a(f"ds_read_b32 v{G[1]}, v7 offset:128")
    a("s_branch K2_GW")
    a.label("K2_GOK")
    for q in range(2):
        a(f"v_mul_f32 v{44+2*q}, v{48+q}, v{G[q]}")
    GR = S[0]
    a(f"v_mov_b32 v{GR+8}, s68")
    a(f"v_mov_b32 v{GR+9}, s69")
    a(f"v_mov_b32 v{GR+10}, s68")
    a(f"v_mov_b32 v{GR+11}, s69")
    for q in range(2):
        for i in range(0, 8, 2):
            a(f"v_pk_mul_f32 {v(O[q]+i,2)}, {v(O[q]+i,2)}, {v(44+2*q,2)} op_sel_hi:[1,0]")
        for i in range(0, 8, 2):
            a(f"v_cvt_pk_bf16_f32 v{GR + 4*q + i//2}, v{O[q]+i}, v{O[q]+i+1}")
        a(f"buffer_store_dwordx4 {v(GR+4*q,4)}, v3, s[28:31], s25 offen offset:{q*1024}{SC}")
    if FRESH:
        a("s_lshl_b32 s24, s24, 12")
        a(f"s_add_u32 s24, s24, {WS_FR}")
        a("v_lshlrev_b32 v45, 7, v2")
    else:
        a("s_lshl_b32 s24, s24, 7")
        a(f"s_add_u32 s24, s24, {FL_C}")
    a(f"v_mov_b32 v46, {LDS_SYNC + 8}")
    a("v_mov_b32 v47, 1")
    a("s_mov_b64 exec, 1")
    a("ds_add_u32 v46, v47")
    a("s_mov_b64 exec, -1")
    NSD = min(NDEF, 11)
    if NDEF:
        srd(a, 44, 16, 0x1c0000)
        a(f"s_mul_i32 s53, s20, {DSTG}")
        a("s_add_u32 s53, s53, 0x10000")
        frag_addrs(a, "s53")
        part_addrs(a, "s53", 240)
        a(f"s_mul_i32 s32, s20, {NDEF}")
        a(f"s_add_u32 s32, s32, {4*(28-NDEF)}")
        a(f"s_mul_i32 s33, s72, {2*144*1024}")
        a("s_lshl_b32 s34, s32, 10")
        a("s_add_u32 s33, s33, s34")
        a(f"s_add_u32 s33, s33, {WS_ACT}")
        a(f"s_add_u32 s34, s33, {144*1024}")
        a("s_lshl_b32 s35, s32, 14")
        a("s_lshl_b32 s36, s73, 7")
        a("s_add_u32 s35, s35, s36")
        a("v_and_b32 v4, 31, v2")
        a("v_lshlrev_b32 v4, 2, v4")
        a(f"v_add_u32 v4, {LDS_OG}, v4")
        a("ds_read_b32 v244, v4")
        a("ds_read_b32 v246, v4 offset:128")
        a("ds_read_b32 v47, v46")
    stamp(a, 2, 13)
    a("s_waitcnt vmcnt(0)")
    stamp(a, 3, 13)
    if FULLF:
        a("s_mov_b64 exec, 0xff")
        a(f"buffer_store_dwordx4 {v(GR+8,4)}, v3, s[28:31], s24 offen sc1")
    elif FRESH:
        a("s_mov_b32 exec_hi, 0")
        a(f"buffer_store_dwordx2 {v(GR+8,2)}, v45, s[28:31], s24 offen sc1")
    elif ATFLAG:
        a("s_mov_b64 exec, 1")
        a(f"buffer_atomic_swap_x2 {v(GR+8,2)}, v3, s[28:31], s24 offen sc1")
    else:
        a("s_mov_b64 exec, 1")
        a(f"buffer_store_dwordx2 {v(GR+8,2)}, v3, s[28:31], s24 offen sc1")
    a("s_mov_b64 exec, -1")
    a("s_setprio 0")
    stamp(a, 6)
    stamp(a, 2, 8)
    if NDEF:
        lds_wait(a, 46, 47, ["s_and_b32 s75, s75, 255", "s_cmp_ge_u32 s75, 68"], first_read=False)
        a("v_mov_b32 v248, v46")
        a("v_mov_b32 v249, 256")
        DA_, DW_, DC_ = 144, 80, 16
        dq = []
        def dw(k):
            a(f"s_add_u32 m0, s53, {(k % NSD) * 2048}")
            a("s_nop 0")
            a("buffer_load_dwordx4 v10, s[44:47], s35 offen lds")
            a("buffer_load_dwordx4 v11, s[44:47], s35 offen offset:1024 lds")
            a("s_add_u32 s35, s35, 16384")
            dq.extend([k] * 2)
        def da(k):
            for t in range(2):
                a(f"buffer_load_dwordx4 {v(DA_+8*k+4*t,4)}, v3, s[28:31], s{33+t} offen offset:{(k%4)*1024}{SC}")
            if k % 4 == 3:
                a("s_add_u32 s33, s33, 4096")
                a("s_add_u32 s34, s34, 4096")
            dq.extend([k] * 2)
        def dwait(k):
            a(f"s_waitcnt vmcnt({len(dq) - 1 - max(i for i, t in enumerate(dq) if t == k)})")
        def drd(k):
            b = DW_ + 8 * (k & 1)
            for n in range(2):
                for u in range(2):
                    a(f"ds_read_b64_tr_b16 {v(b+4*n+2*u,2)}, v{12+n} offset:{(k % NSD) * 2048 + u*1024}")
        AH = min(AHD, NDEF)
        for k in range(AH):
            dw(k); da(k)
        dwait(0)
        stamp(a, 3, 8)
        drd(0)
        for k in range(NDEF):
            if k + AH < NDEF:
                dw(k + AH); da(k + AH)
            if k + 1 < NDEF:
                dwait(k + 1)
                if k + 3 == NDEF:
                    a("s_mov_b64 exec, 1")
                    a("ds_add_u32 v248, v249")
                    a("s_mov_b64 exec, -1")
                drd(k + 1)
                a("s_waitcnt lgkmcnt(4)")
            else:
                a("s_waitcnt lgkmcnt(0)")
            b = DW_ + 8 * (k & 1)
            for n in range(2):
                for t in range(2):
                    acc = DC_ + (n * 2 + t) * 16
                    cin = "0" if k == 0 else v(acc, 16)
                    a(f"{MF} {v(acc,16)}, {v(b+4*n,4)}, {v(DA_+8*k+4*t,4)}, {cin}")
        stamp(a, 4, 8)
        a("s_nop 7")
        for n in range(2):
            for t in range(2):
                acc = DC_ + (n * 2 + t) * 16
                if n + t == 0:
                    a("s_nop 1")
                for j in range(0, 16, 2):
                    a(f"v_pk_mul_f32 {v(acc+j,2)}, {v(acc+j,2)}, {v(244+2*t,2)} op_sel_hi:[1,0]")
                for g in range(4):
                    a(f"ds_write_b128 v{240+g}, {v(acc+4*g,4)} offset:{t*8192 + n*128}")
        stamp(a, 5, 8)
    a("s_branch K3_REDUCE")
    a.label("K2_FB")
    a("s_cmp_lg_u32 s26, 0")
    a("s_cbranch_scc1 K2_FIN")
    a("s_waitcnt lgkmcnt(0)")
    a("s_mov_b32 s26, 100")
    vaddr_init()
    zero_state()
    a("v_mov_b32 v44, 0xff800000")
    a("v_mov_b32 v45, 0xff800000")
    a("v_mov_b32 v43, v3")
    a("s_mov_b32 s27, 64")
    a.label("K2_MAXLOOP")
    a(f"ds_read_b128 {v(KB[0],4)}, v43")
    a(f"v_add_u32 v43, {TP}, v43")
    a("s_waitcnt lgkmcnt(0)")
    for q in range(2):
        a(f"{MF} {v(S[q],16)}, {v(KB[0],4)}, {v(Q[q],4)}, 0")
    a("s_nop 7")
    a("s_nop 7")
    for q in range(2):
        maxtree(S[q], 44 + q, acc=True)
    a("s_sub_u32 s27, s27, 1")
    a("s_cmp_lg_u32 s27, 0")
    a("s_cbranch_scc1 K2_MAXLOOP")
    a("s_branch K2_SETMAX")
    for lab, back in (("K2_KVW", "K2_NEXT"), ("K2_KVM", "K2_MID")):
        a.label(lab)
        lds_wait(a, 46, 47, ["s_bitcmp1_b32 s75, s77"])
        a(f"s_branch {back}")

    a.label("K2_GEMM")
    a(f"v_mul_u32_u24 v36, {VP}, v2")
    a(f"v_add_u32 v36, {LDS_V + 1024}, v36")
    for i in range(4):
        a(f"v_mov_b32 v{40+i}, 0x3f803f80")
        a(f"v_mov_b32 v{44+i}, 0")
    ND, NW = 28 - NDEF, 8
    NG = ND // 4
    NS = 3
    srd(a, 44, 16, 0x1c0000)
    srd(a, 48, 8, 0x80000)
    if FMAP:
        a("s_and_b32 s42, s72, 3")
        a("s_lshl_b32 s42, s42, 1")
        a("s_add_u32 s42, s42, s73")
    else:
        a("s_lshr_b32 s42, s2, 3")
        a("s_and_b32 s43, s42, 7")
        a("s_lshr_b32 s42, s42, 3")
        a("s_lshl_b32 s42, s42, 1")
        a("s_add_u32 s42, s42, s43")
    for _ in range(-(-14 // NG) - 1):
        a(f"s_cmp_ge_u32 s42, {NG}")
        a(f"s_cselect_b32 s43, {NG}, 0")
        a("s_sub_u32 s42, s42, s43")
    if not ROT:
        a("s_mov_b32 s42, 0")
    a("s_mov_b32 s52, s42")
    a(f"s_mul_i32 s32, s23, {ND}")
    a("s_lshl_b32 s43, s42, 2")
    a("s_add_u32 s32, s32, s43")
    a(f"s_mul_i32 s33, s72, {2*144*1024}")
    a(f"s_add_u32 s33, s33, {WS_ACT}")
    a("s_lshl_b32 s43, s32, 10")
    a("s_add_u32 s33, s33, s43")
    a(f"s_add_u32 s34, s33, {144*1024}")
    a("s_lshl_b32 s43, s73, 7")
    a("s_lshl_b32 s35, s32, 14")
    a("s_add_u32 s35, s35, s43")
    a("s_lshl_b32 s39, s23, 17")
    a("s_add_u32 s39, s39, s43")
    a(f"s_mul_i32 s53, s23, {NS*2048}")
    a(f"s_add_u32 s53, s53, {LDS_WS}")
    frag_addrs(a, "s53")
    GA = 16
    FR = 80
    D = 8
    queue = []
    def ld(dst, sr, k, tag):
        a(f"buffer_load_dwordx4 {v(dst,4)}, v3, s[28:31], s{sr} offen offset:{(k%4)*1024}{SC}")
        queue.append(tag)
    def aloads(k):
        b = FR + (k % D) * 16
        ld(b + 4, 33, k, ("a", k)); ld(b + 12, 34, k, ("a", k))
        if k % 4 == 3:
            a("s_add_u32 s42, s42, 1")
            a(f"s_cmp_eq_u32 s42, {NG}")
            a("s_movk_i32 s43, 4096")
            a(f"s_cselect_b32 s43, {(-(NG-1)*4096) & 0xffffffff:#x}, s43")
            a("s_cselect_b32 s42, 0, s42")
            for sr in (33, 34):
                a(f"s_add_u32 s{sr}, s{sr}, s43")
    def wloads(k):
        a(f"s_add_u32 m0, s53, {(k % NS) * 2048}")
        sr, rs = (35, 44) if k < ND else (39, 48)
        a("s_nop 0")
        a(f"buffer_load_dwordx4 v10, s[{rs}:{rs+3}], s{sr} offen lds")
        a(f"buffer_load_dwordx4 v11, s[{rs}:{rs+3}], s{sr} offen offset:1024 lds")
        queue.extend([("w", k)] * 2)
        a(f"s_add_u32 s{sr}, s{sr}, 16384")
        if k < ND and k % 4 == 3:
            a("s_add_u32 s52, s52, 1")
            a(f"s_cmp_eq_u32 s52, {NG}")
            a(f"s_cselect_b32 s43, {(-ND*16384) & 0xffffffff:#x}, 0")
            a("s_cselect_b32 s52, 0, s52")
            a("s_add_u32 s35, s35, s43")
    def waitfor(*tags):
        n = len(queue) - 1 - max(i for i, t in enumerate(queue) if t in tags)
        a(f"s_waitcnt vmcnt({n})")
    def wreads(k):
        b = FR + (k % D) * 16
        for n in range(2):
            for u in range(2):
                a(f"ds_read_b64_tr_b16 {v(b+8*n+2*u,2)}, v{12+n} offset:{(k % NS) * 2048 + u*1024}")
    def mm(k):
        b = FR + (k % D) * 16
        for n in range(2):
            for t in range(2):
                acc = GA + (n * 2 + t) * 16
                cin = "0" if k == 0 else v(acc, 16)
                a(f"{MF} {v(acc,16)}, {v(b+8*n,4)}, {v(b+4+8*t,4)}, {cin}")
    stamp(a, 3)
    a(f"v_mov_b32 v22, {LDS_SYNC + 16}")
    lds_wait(a, 22, 23, ["s_bitcmp1_b32 s75, 2"])
    a("ds_write_b128 v36, v[40:43]")
    a("ds_write_b128 v36, v[44:47] offset:16")
    a(f"ds_write_b128 v36, v[40:43] offset:{2*VP}")
    a(f"ds_write_b128 v36, v[44:47] offset:{2*VP+16}")
    kv_loads(5, 7)
    kv_loads(7, 9)
    if KVA:
        kv_loads(9, 9 + KVA)
    a("s_waitcnt lgkmcnt(0)")
    a("s_barrier                              ; X1")
    a("s_setprio 3")
    a("s_barrier                              ; X2")
    a("s_cmp_lg_u32 s23, 1")
    a("s_cbranch_scc1 K2_NOB1")
    a("s_lshl_b32 s37, s21, 4")
    a("s_add_u32 s37, s37, s22")
    a("s_lshl_b32 s37, s37, 7")
    a(f"s_add_u32 s37, s37, {FL_B1}")
    flag_store(a, "s37", 16)
    a.label("K2_NOB1")
    a(f"v_mov_b32 v34, {LDS_SYNC + 12}")
    def arrived(stage, n):
        a(f"v_mov_b32 v35, {1 << (4 * stage)}")
        a(f"s_waitcnt vmcnt({n})")
        a("s_mov_b64 exec, 1")
        a("ds_add_u32 v34, v35")
        a("s_mov_b64 exec, -1")
    arrived(0, 8 + 2 * KVA)
    arrived(1, 4 + 2 * KVA)
    arrived(2, 2 * KVA)
    kv_loads(9 + KVA, 16)
    srd(a, 44, 16, 0x1c0000)
    arrived(3, 0)
    a("s_lshl_b32 s55, s76, 4")
    a(f"s_add_u32 s55, s55, {WS_G}")
    a("s_mov_b32 exec_lo, 1")
    a("s_mov_b32 exec_hi, 1")
    a(f"buffer_store_dwordx2 v[68:69], v70, s[28:31], s55 offen{SC}")
    a("s_mov_b64 exec, -1")
    if WARMW and FMAP:
        a("s_lshr_b32 s54, s2, 3")
        a("s_lshl_b32 s54, s54, 2")
        a("s_add_u32 s54, s54, s23")
        a("s_mul_i32 s55, s54, 14336")
        a("v_min_u32 v14, 55, v2")
        a("v_lshlrev_b32 v14, 7, v14")
        a("buffer_load_dword v15, v14, s[44:47], s55 offen")
        a("s_add_u32 s55, s55, 7168")
        a("buffer_load_dword v15, v14, s[44:47], s55 offen")
        a("s_lshl_b32 s55, s54, 12")
        a("v_and_b32 v14, 31, v2")
        a("v_lshlrev_b32 v14, 7, v14")
        a("buffer_load_dword v15, v14, s[48:51], s55 offen")
    elif WARMW:
        a("s_lshr_b32 s54, s2, 3")
        a("s_and_b32 s54, s54, 7")
        a("s_lshl_b32 s55, s54, 2")
        a("s_add_u32 s55, s55, s23")
        a("s_mul_i32 s55, s55, 57344")
        a("s_add_u32 s55, s55, s43")
        a("v_min_u32 v14, 55, v2")
        a("v_lshlrev_b32 v14, 10, v14")
        a("buffer_load_dword v15, v14, s[44:47], s55 offen")
        a("s_lshl_b32 s55, s54, 2")
        a("s_add_u32 s55, s55, s23")
        a("s_lshl_b32 s55, s55, 14")
        a("s_add_u32 s55, s55, s43")
        a("v_and_b32 v14, 15, v2")
        a("v_lshlrev_b32 v14, 10, v14")
        a("buffer_load_dword v15, v14, s[48:51], s55 offen")
    for k in range(NS):
        wloads(k)
    a("s_setprio 3")
    a("v_and_b32 v6, 15, v2")
    a("v_lshlrev_b32 v6, 7, v6")
    a("s_lshr_b32 s24, s72, 1")
    a("s_lshl_b32 s24, s24, 11")
    a(f"s_add_u32 s24, s24, {FL_B1}")
    poll_shared(a, 1, [("s24", 6, 8, 4)], 20, lslp=4)
    a("v_and_b32 v6, 31, v2")
    a("v_lshlrev_b32 v6, 3, v6")
    a("v_lshlrev_b32 v7, 3, v2")
    a("s_lshl_b32 s54, s72, 9")
    a(f"s_add_u32 s54, s54, {WS_G}")
    a("s_lshl_b32 s55, s71, 2")
    a("s_add_u32 s55, s55, s23")
    a("s_lshl_b32 s55, s55, 9")
    a(f"s_add_u32 s55, s55, {WS_G}")
    a(f"s_mov_b32 s74, {SPIN}")
    a.label("K2_GL")
    a(f"buffer_load_dwordx2 v[240:241], v6, s[28:31], s54 offen{SC}")
    a(f"buffer_load_dwordx2 v[242:243], v6, s[28:31], s54 offen offset:256{SC}")
    a(f"buffer_load_dwordx2 v[244:245], v7, s[28:31], s55 offen{SC}")
    a("s_waitcnt vmcnt(0)")
    a("v_xor_b32 v8, s68, v241")
    a("v_xor_b32 v9, s68, v243")
    a("v_xor_b32 v14, s68, v245")
    a("v_or3_b32 v8, v8, v9, v14")
    a("v_cmp_ne_u32 vcc, 0, v8")
    a("s_sub_u32 s74, s74, 1")
    a("s_cbranch_scc1 K2_GD")
    a("s_cmp_eq_u64 vcc, 0")
    a("s_cbranch_scc1 K2_GD")
    a("s_sleep 4")
    a("s_branch K2_GL")
    a.label("K2_GD")
    a("s_lshl_b32 s55, s23, 8")
    a(f"s_add_u32 s55, s55, {LDS_GQ}")
    a("v_lshrrev_b32 v7, 1, v7")
    a("v_add_u32 v7, s55, v7")
    a("ds_write_b32 v7, v244")
    a("v_sub_f32 v240, 1.0, v240")
    a("v_sub_f32 v242, 1.0, v242")
    a("v_lshrrev_b32 v6, 1, v6")
    a(f"v_add_u32 v6, {LDS_OG}, v6")
    a("ds_write_b32 v6, v240")
    a("ds_write_b32 v6, v242 offset:128")
    a(f"v_mov_b32 v8, {LDS_SYNC + 4}")
    a("v_mov_b32 v9, 16")
    a("s_waitcnt lgkmcnt(0)")
    a("s_mov_b64 exec, 1")
    a("ds_add_u32 v8, v9")
    a("s_mov_b64 exec, -1")
    stamp(a, 4)
    DA = 4
    a("s_setprio 0")
    for k in range(DA):
        aloads(k)
    for k in range(ND + NW):
        waitfor(("w", k), ("a", k))
        wreads(k)
        a("s_waitcnt lgkmcnt(0)")
        if k + NS < ND + NW:
            wloads(k + NS)
        if k + DA < ND:
            aloads(k + DA)
        if k < ND:
            mm(k)
    a("s_setprio 3")
    if NDEF and WARMD:
        assert FMAP
        a(f"s_mul_i32 s33, s72, {2*144*1024}")
        a("s_lshr_b32 s34, s23, 1")
        a(f"s_mul_i32 s34, s34, {144*1024}")
        a("s_add_u32 s33, s33, s34")
        a("s_lshl_b32 s34, s73, 1")
        a("s_and_b32 s35, s23, 1")
        a("s_add_u32 s34, s34, s35")
        a(f"s_mul_i32 s34, s34, {NDEF*256}")
        a("s_add_u32 s33, s33, s34")
        a(f"s_add_u32 s33, s33, {WS_ACT + 4*ND*1024}")
        a(f"v_min_u32 v14, {2*NDEF-1}, v2")
        a("v_lshlrev_b32 v14, 7, v14")
        a(f"buffer_load_dword v15, v14, s[28:31], s33 offen{SC}")
        a("s_and_b32 s34, s72, 3")
        a("s_lshl_b32 s34, s34, 2")
        a("s_add_u32 s34, s34, s23")
        a(f"s_mul_i32 s34, s34, {NDEF*4096}")
        a("s_lshl_b32 s35, s73, 7")
        a("s_add_u32 s34, s34, s35")
        a(f"s_add_u32 s34, s34, {4*ND*16384}")
        a(f"v_min_u32 v14, {4*NDEF-1}, v2")
        a("v_lshlrev_b32 v14, 10, v14")
        a("buffer_load_dword v15, v14, s[44:47], s34 offen")
    a("s_nop 7")
    a("s_nop 7")
    for n in range(2):
        for t in range(2):
            acc = GA + (n * 2 + t) * 16
            for j in range(0, 16, 2):
                a(f"v_pk_mul_f32 {v(acc+j,2)}, {v(acc+j,2)}, {v(240+2*t,2)} op_sel_hi:[1,0]")
    a("s_lshl_b32 s32, s23, 14")
    part_addrs(a, "s32", 212)
    a("s_lshl_b32 s24, s72, 2")
    a("s_add_u32 s24, s24, s23")
    a("s_lshl_b32 s24, s24, 14")
    a(f"s_add_u32 s24, s24, {WS_O}")
    a("v_and_b32 v6, 7, v2")
    a("v_lshlrev_b32 v6, 7, v6")
    a("s_lshl_b32 s26, s72, 12")
    a("s_lshl_b32 s25, s23, 10")
    a("s_add_u32 s26, s26, s25")
    if FRESH:
        a("v_lshlrev_b32 v6, 5, v6")
        a("s_lshl_b32 s27, s26, 5")
        a(f"s_add_u32 s27, s27, {WS_FR}")
    a(f"s_add_u32 s26, s26, {FL_C}")
    a(f"v_mov_b32 v11, {LDS_SYNC + 8}")
    a("v_mov_b32 v10, 16")
    a("s_mov_b64 exec, 1")
    a("ds_add_u32 v11, v10")
    a("s_mov_b64 exec, -1")
    a("s_mov_b32 s54, 0")
    a(f"s_mov_b32 s74, {SPIN}")
    stamp(a, 5)
    stamp(a, 1, 8)
    def c_poll(r=8):
        if FRESH:
            a("s_memrealtime s[58:59]")
        a(f"v_mov_b32 v{r}, 0")
        a(f"v_mov_b32 v{r+1}, 0")
        if FRESH:
            a("s_waitcnt lgkmcnt(0)")
            a(f"s_bfe_u32 s58, s58, {(5 << 16) | FRESH:#x}")
            a("s_lshl_b32 s58, s58, 7")
            a("s_add_u32 s26, s27, s58")
        if MASKP:
            a("s_xor_b32 exec_lo, s54, 0xff")
            a("s_mov_b32 exec_hi, 0")
        else:
            a("s_mov_b64 exec, 0xff")
        if ATPOLL:
            a(f"buffer_atomic_or_x2 {v(r,2)}, v6, s[28:31], s26 offen sc0 sc1")
        else:
            a(f"buffer_load_dwordx2 {v(r,2)}, v6, s[28:31], s26 offen sc1")
        a("s_mov_b64 exec, -1")
    def pause():
        if NDEF and PAUSE:
            lab, done = a.newlabel("PZ"), a.newlabel("PZD")
            a(f"s_mov_b32 s76, {SPIN}")
            a.label(lab)
            a("ds_read_b32 v10, v11")
            a("s_waitcnt lgkmcnt(0)")
            a("v_readfirstlane_b32 s75, v10")
            a("s_sub_u32 s76, s76, 1")
            a(f"s_cbranch_scc1 {done}")
            a("s_cmp_ge_u32 s75, 1024")
            a(f"s_cbranch_scc1 {done}")
            a("s_and_b32 s75, s75, 15")
            a(f"s_cbranch_scc0 {done}")
            a("s_sleep 1")
            a(f"s_branch {lab}")
            a.label(done)
    a.label("K3_POLL")
    pause()
    c_poll()
    a.label("K3_ROUND")
    a("s_waitcnt vmcnt(0)")
    a("v_cmp_eq_u64 vcc, s[68:69], v[8:9]")
    a("s_sub_u32 s74, s74, 1")
    a("s_cselect_b32 s55, 0xff, vcc_lo")
    a("s_andn2_b32 s55, s55, s54")
    a("s_cbranch_scc1 K3_SOME")
    a("ds_read_b32 v10, v11")
    a(f"s_sleep {TSLP}")
    a("s_waitcnt lgkmcnt(0)")
    a("v_readfirstlane_b32 s75, v10")
    a("s_and_b32 s75, s75, 15")
    a("s_cbranch_scc1 " + ("K3_FAST" if PIPE > 1 else "K3_POLL"))
    a(f"s_sleep {PSLOW}")
    a("s_branch K3_POLL")
    if PIPE > 1:
        PR = [216 + 2 * i for i in range(PIPE)]
        a.label("K3_FAST")
        for i in range(PIPE - 1):
            c_poll(PR[i])
            a(f"s_sleep {PDEL}")
        a.label("K3_FL")
        for i in range(PIPE):
            c_poll(PR[(i + PIPE - 1) % PIPE])
            a(f"s_waitcnt vmcnt({PIPE - 1})")
            a(f"v_cmp_eq_u64 vcc, s[68:69], {v(PR[i],2)}")
            a("s_sub_u32 s74, s74, 1")
            a("s_cselect_b32 s55, 0xff, vcc_lo")
            a("s_andn2_b32 s55, s55, s54")
            a("s_cbranch_scc1 K3_SOME")
        a("s_branch K3_FL")
    a.label("K3_SOME")
    stamp(a, 1, 13)
    if PROF == 13:
        a("s_mov_b32 s89, s55")
    pause()
    a("s_or_b32 s54, s54, s55")
    for kk in range(NW):
        b = FR + ((ND + kk) % D) * 16
        a(f"s_bitcmp1_b32 s55, {kk}")
        a(f"s_cbranch_scc0 K3_L{kk}")
        a(f"s_add_u32 s25, s24, {kk*2048}")
        a(f"buffer_load_dwordx4 {v(b+4,4)}, v3, s[28:31], s25 offen{SC}")
        a(f"buffer_load_dwordx4 {v(b+12,4)}, v3, s[28:31], s25 offen offset:1024{SC}")
        a.label(f"K3_L{kk}")
    a("s_cmp_eq_u32 s54, 0xff")
    a("s_cbranch_scc1 K3_LAST")
    c_poll()
    a.label("K3_LAST")
    a("ds_read_b32 v10, v11")
    a("s_waitcnt vmcnt(0)")
    stamp(a, 2, 13)
    for kk in range(NW):
        a(f"s_bitcmp1_b32 s55, {kk}")
        a(f"s_cbranch_scc0 K3_C{kk}")
        mm(ND + kk)
        a.label(f"K3_C{kk}")
    a("s_cmp_lg_u32 s54, 0xff")
    a("s_cbranch_scc1 K3_ROUND")
    stamp(a, 6)
    stamp(a, 2, 8)
    stamp(a, 3, 13)
    lds_wait(a, 11, 10, ["s_bitcmp1_b32 s75, 2"], first_read=False)
    for i in range(3, 6):
        stamp(a, i, 8)
    stamp(a, 4, 13)
    a("s_nop 7")
    part_write(a, GA, 212)
    stamp(a, 5, 13)
    a.label("K3_REDUCE")
    srd(a, 24, 64, 0x200000)
    a("s_lshl_b32 s32, s20, 6")
    a("v_add_u32 v0, s32, v2                  ; tid")
    a("v_lshrrev_b32 v7, 3, v0                ; token")
    a("v_and_b32 v5, 7, v0")
    a("v_lshlrev_b32 v6, 1, v5")
    a("v_and_b32 v8, 7, v7")
    a("v_xor_b32 v6, v6, v8")
    a("v_lshlrev_b32 v6, 4, v6")
    a("v_lshl_add_u32 v6, v7, 8, v6")
    a("v_xor_b32 v8, 16, v6")
    a("v_add_u32 v9, 0x10000, v6")
    a("v_add_u32 v10, 0x10000, v8")
    a("v_lshlrev_b32 v7, 10, v7")
    a("v_lshl_add_u32 v7, v5, 4, v7")
    a("s_lshl_b32 s32, s72, 16")
    a("s_lshl_b32 s33, s73, 7")
    a("s_add_u32 s32, s32, s33")
    a("s_waitcnt lgkmcnt(0)")
    a("s_barrier                              ; Y1")
    stamp(a, 6, 8)
    stamp(a, 6, 13)
    NP = 8 if NDEF else 4
    RB = 96
    for w in range(NP):
        off = w * 16384 if w < 4 else (w - 4) * DSTG
        r0, r1 = (6, 8) if w < 4 else (9, 10)
        if off > 65535:
            a("v_add_u32 v9, 0x8000, v9")
            a("v_add_u32 v10, 0x8000, v10")
            off -= 0x8000
        a(f"ds_read_b128 {v(RB+8*w,4)}, v{r0} offset:{off}")
        a(f"ds_read_b128 {v(RB+4+8*w,4)}, v{r1} offset:{off}")
    for w in range(1, NP):
        a(f"s_waitcnt lgkmcnt({2*(NP-1-w)})")
        for j in range(0, 8, 2):
            a(f"v_pk_add_f32 {v(RB+j,2)}, {v(RB+j,2)}, {v(RB+8*w+j,2)}")
    for j in range(0, 8, 2):
        a(f"v_cvt_pk_bf16_f32 v{16+j//2}, v{RB+j}, v{RB+j+1}")
    a("buffer_store_dwordx4 v[16:19], v7, s[24:27], s32 offen" + (" " + OUTSC if OUTSC else ""))
    if PADEND:
        pad_until(a, PADEND)
    stamp_flush(a, 8)
    a.label("K_EXIT")
    a("s_endpgm")
    a.label("K_END")

def main():
    hdr = open("cdna_kernels/" + NAME + ".s.ref").read().split("\n")
    top = [l for l in hdr if l.startswith(";") and "@launch" not in l]
    out = "\n".join(top) + "\n"
    out += f"; @launch grid=(256,1,1) block=(512,1,1) lds={LDS_TOTAL}\n"
    out += '.amdgcn_target "amdgcn-amd-amdhsa--gfx950"\n.text\n'
    a = Asm()
    gen(a)
    out += a.text()
    out += '.section .rodata,"a"\n'
    out += kernel_desc(KNAME, 256, 102)
    path = sys.argv[1] if len(sys.argv) > 1 else "cdna_kernels/" + NAME + ".s"
    open(path, "w").write(out)

main()
```

```python
import sys, math, os
from asmlib import *

NAME = "gated_mix__softmax_full_mha__geglu_ffn__prompt"
KNAME = NAME + "_kernel"
LOG2E = 1.4426950408889634
def env(n, d): return int(os.environ.get(n, str(d)))
PROF = env("PROF", 0)
ROT = env("ROT", 1)
TAGPOS = env("TAGPOS", 0)
PADEND = env("PADEND", 0)
PADATT = env("PADATT", 0)
DBGWG = env("DBGWG", -1)
TLBW = env("TLBW", 0)
PFW = env("PFW", 0)
PFI = env("PFI", 1)
PFX = env("PFX", 0)
KVROT = env("KVROT", 1)
AFLAG = env("AFLAG", 10)
PFC = env("PFC", -1)
ONEP = env("ONEP", 0)
FMAP = env("FMAP", 0)
NOTAG = env("NOTAG", 0)
ROT1 = env("ROT1", 2)
OUTSC = os.environ.get("OUTSC", "sc1")
GPK = env("GPK", 0)
UA = env("UA", 16)
PRE = env("PRE", 2)
QLD = env("QLD", 4)
WARMW = env("WARMW", 0)
ROT2 = env("ROT2", 1)
NDEF = env("NDEF", 0)
WARMD = env("WARMD", 1)
PSLOW = env("PSLOW", 16)
PAUSE = env("PAUSE", 1)
KVV = env("KVV", 2)
FASTX = env("FASTX", 0)
FULLF = env("FULLF", 0)
PIPE = env("PIPE", 1)
ATFLAG = env("ATFLAG", 1)
FRESH = env("FRESH", 0)
WS_FR = 0x2000000
PDEL = env("PDEL", 4)
MASKP = env("MASKP", 1)
SPAT = env("SPAT", 3)
LPRIO = env("LPRIO", 3)
FA0 = env("FA0", 13)
AFLAGQ = env("AFLAGQ", 11)
CAP = env("CAP", 20)
FDEL = env("FDEL", 0)
FSLP = env("FSLP", 1)
QCAP = env("QCAP", 40)
KVA = env("KVA", 0)
NFILL = env("NFILL", 4)
AHD = env("AHD", 6)
ATPOLL = env("ATPOLL", 1)
HINTW = env("HINTW", 0)
TSLP = env("TSLP", 2)
SPF = env("SPF", 0)
CODEPF = env("CODEPF", 1)
SLP = env("SLP", 4)

WS_Q = 0x0
WS_K = 0x200000
WS_V = 0x400000
WS_ACT = 0x600000
WS_O = 0xF00000
WS_G = 0x1240000
WS_FL = 0x1280000
FL_A = WS_FL
FL_B1 = WS_FL + 0x8000
FL_B2 = WS_FL + 0x10000
FL_C = WS_FL + 0x20000
WS_STAMP = 0x1800000
WS_SIZE = 0x2800000

XS = 16384
WB = 5 * XS
WSL = 24576
LDS_GQ = 162176
LDS_OG = 163200
LDS_TAG = 163584
LDS_SYNC = LDS_TAG + 8
LDS_TOTAL = 163840
TP = 2080
LDS_V = 1024
VP = TP
LDS_WS = 137472
DSTG = 22528
LDS_Q = WB + 2 * WSL + 16384
def xslot(c):
    return ((7 - c) % 5 if c < 8 else (c - 8 if c < 13 else c - 12)) * XS
def wslot(c):
    return WB + ((c % 3) * WSL if c < 8 else ((c + 3) % 4) * 16384)

SC = " sc1"
SPIN = 200000
MF = "v_mfma_f32_32x32x16_bf16"

def srd(a, d, base, nbytes):
    a(f"s_mov_b32 s{d}, s{base}")
    a(f"s_mov_b32 s{d+1}, s{base+1}")
    a(f"s_mov_b32 s{d+2}, {nbytes:#x}")
    a(f"s_mov_b32 s{d+3}, 0x20000")

def stamp(a, i, lvl=1):
    if PROF and (PROF == lvl or i in (0, 7)):
        a("s_memrealtime s[96:97]")
        a("s_memtime s[98:99]")
        a("s_waitcnt lgkmcnt(0)")
        a(f"s_mov_b32 s{80+i}, s96")
        a(f"s_mov_b32 s{88+i}, s98")

def stamp_flush(a, n):
    if PROF:
        a("s_waitcnt vmcnt(0)")
        stamp(a, n - 1)
        a("s_lshl_b32 s78, s2, 4")
        a("s_add_u32 s78, s78, s20")
        a("s_lshl_b32 s78, s78, 6")
        a(f"s_add_u32 s78, s78, {WS_STAMP}")
        a("v_mov_b32 v1, 0")
        for i in range(n):
            a(f"v_mov_b32 v0, s{80+i}")
            a(f"buffer_store_dword v0, v1, s[28:31], s78 offen offset:{4*i}")
            a("s_nop 1")
            a(f"v_mov_b32 v0, s{88+i}")
            a(f"buffer_store_dword v0, v1, s[28:31], s78 offen offset:{32+4*i}")
            a("s_nop 1")
        a("s_waitcnt vmcnt(0)")
        if DBGWG >= 0:
            a(f"s_cmp_lg_u32 s2, {DBGWG}")
            a("s_cbranch_scc1 DBG_SKIP")
            a("s_and_b32 s78, s20, 3")
            a("s_cmp_lg_u32 s78, 0")
            a("s_cbranch_scc1 DBG_SKIP")
            a("s_mul_i32 s78, s20, 7")
            a("v_mov_b32 v1, s78")
            for i in range(1, n):
                a(f"s_sub_u32 s79, s{80+i}, s80")
                a("v_mov_b32 v0, s79")
                a(f"global_store_dword v1, v0, s[66:67] offset:{4+4*i}")
                a("s_nop 1")
            a("s_waitcnt vmcnt(0)")
            a.label("DBG_SKIP")

def pad_until(a, ticks):
    lab = a.newlabel("PAD")
    a.label(lab)
    a("s_memrealtime s[96:97]")
    a("s_waitcnt lgkmcnt(0)")
    a("s_sub_u32 s96, s96, s68")
    a(f"s_cmp_lt_u32 s96, {ticks}")
    a(f"s_cbranch_scc1 {lab}")

def flag_store(a, soff, vtmp):
    a(f"v_mov_b32 v{vtmp}, s68")
    a(f"v_mov_b32 v{vtmp+1}, s69")
    a(f"v_mov_b32 v{vtmp+2}, 0")
    a("s_mov_b64 exec, 1")
    a(f"buffer_store_dwordx2 {v(vtmp,2)}, v{vtmp+2}, s[28:31], {soff} offen sc1")
    a("s_mov_b64 exec, -1")

def poll(a, soff, voff, vtmp, slp=None):
    lab = a.newlabel("POLL")
    done = a.newlabel("POLLD")
    a(f"s_mov_b32 s74, {SPIN}")
    a.label(lab)
    a(f"buffer_load_dwordx2 {v(vtmp,2)}, v{voff}, s[28:31], {soff} offen sc1")
    a("s_waitcnt vmcnt(0)")
    a(f"v_xor_b32 v{vtmp}, s68, v{vtmp}")
    a(f"v_xor_b32 v{vtmp+1}, s69, v{vtmp+1}")
    a(f"v_or_b32 v{vtmp}, v{vtmp}, v{vtmp+1}")
    a(f"v_cmp_ne_u32 vcc, 0, v{vtmp}")
    a("s_sub_u32 s74, s74, 1")
    a("s_cmp_eq_u32 s74, 0")
    a(f"s_cbranch_scc1 {done}")
    a("s_cmp_eq_u64 vcc, 0")
    a(f"s_cbranch_scc1 {done}")
    a(f"s_sleep {SLP if slp is None else slp}")
    a(f"s_branch {lab}")
    a.label(done)

def poll_shared(a, stage, polls, vtmp, lslp=1, extra=None):
    other = a.newlabel("PSO")
    done = a.newlabel("PSD")
    a(f"v_mov_b32 v{vtmp+3}, {LDS_SYNC}")
    a("s_cmp_lg_u32 s23, 0")
    a(f"s_cbranch_scc1 {other}")
    for p in polls:
        poll(a, *p)
    if extra:
        extra()
    a(f"v_mov_b32 v{vtmp}, {stage}")
    a(f"ds_write_b32 v{vtmp+3}, v{vtmp}")
    a(f"s_branch {done}")
    a.label(other)
    a(f"s_mov_b32 s74, {SPIN*8}")
    lab = a.newlabel("PSL")
    a.label(lab)
    a(f"ds_read_b32 v{vtmp}, v{vtmp+3}")
    a("s_waitcnt lgkmcnt(0)")
    a(f"v_readfirstlane_b32 s75, v{vtmp}")
    a("s_sub_u32 s74, s74, 1")
    a("s_cmp_eq_u32 s74, 0")
    a(f"s_cbranch_scc1 {done}")
    a(f"s_cmp_ge_u32 s75, {stage}")
    a(f"s_cbranch_scc1 {done}")
    a(f"s_sleep {lslp}")
    a(f"s_branch {lab}")
    a.label(done)

def cvt_tile(a, acc, dst, lo=0, hi=16):
    for i in range(lo, hi, 2):
        a(f"v_cvt_pk_bf16_f32 v{dst + (i - lo)//2}, v{acc+i}, v{acc+i+1}")

def frag_addrs(a, sbase):
    a("v_lshrrev_b32 v4, 3, v2")
    a("v_and_b32 v5, 7, v2")
    a("v_bfe_u32 v7, v2, 4, 1")
    a("v_lshlrev_b32 v7, 2, v7")
    a("v_xor_b32 v5, v5, v7")
    a("v_lshlrev_b32 v5, 4, v5")
    a("v_lshl_add_u32 v10, v4, 10, v5")
    a("v_add_u32 v11, 7168, v10")
    a("v_bfe_u32 v4, v2, 2, 2")
    a("v_lshrrev_b32 v5, 5, v2")
    a("v_lshl_add_u32 v5, v5, 2, v4")
    a("v_lshlrev_b32 v5, 7, v5")
    a("v_lshrrev_b32 v4, 1, v4")
    a("v_lshl_add_u32 v5, v4, 6, v5")
    a("v_bfe_u32 v4, v2, 4, 1")
    a("v_lshl_add_u32 v5, v4, 5, v5")
    a("v_and_b32 v4, 3, v2")
    a("v_lshl_add_u32 v5, v4, 3, v5")
    a("v_xor_b32 v13, 64, v5")
    a(f"v_add_u32 v12, {sbase}, v5")
    a(f"v_add_u32 v13, {sbase}, v13")

def part_addrs(a, sbase, r):
    a(f"v_lshrrev_b32 v{r}, 5, v2")
    a(f"v_and_b32 v{r+1}, 7, v2")
    a(f"v_xor_b32 v{r}, v{r}, v{r+1}")
    a(f"v_and_b32 v{r+1}, 31, v2")
    a(f"v_lshlrev_b32 v{r+1}, 8, v{r+1}")
    a(f"v_lshl_add_u32 v{r}, v{r}, 4, v{r+1}")
    for g in range(1, 4):
        a(f"v_xor_b32 v{r+g}, {32*g}, v{r}")
    for g in range(4):
        a(f"v_add_u32 v{r+g}, {sbase}, v{r+g}")

def part_write(a, GA, r):
    for n in range(2):
        for t in range(2):
            acc = GA + (n * 2 + t) * 16
            for g in range(4):
                a(f"ds_write_b128 v{r+g}, {v(acc+4*g,4)} offset:{t*8192 + n*128}")

def lds_wait(a, vaddr, vdst, cmp_lines, first_read=True):
    lab, done = a.newlabel("LW"), a.newlabel("LWD")
    a(f"s_mov_b32 s74, {SPIN*8}")
    if first_read:
        a(f"ds_read_b32 v{vdst}, v{vaddr}")
    a.label(lab)
    a("s_waitcnt lgkmcnt(0)")
    a(f"v_readfirstlane_b32 s75, v{vdst}")
    a("s_sub_u32 s74, s74, 1")
    a(f"s_cbranch_scc1 {done}")
    for l in cmp_lines:
        a(l)
    a(f"s_cbranch_scc1 {done}")
    a("s_sleep 1")
    a(f"ds_read_b32 v{vdst}, v{vaddr}")
    a(f"s_branch {lab}")
    a.label(done)

def gen(a):
    kernel_header(a, KNAME)
    if PROF == 7:
        a("s_memrealtime s[100:101]")
    a("s_cmp_ge_u32 s2, 256")
    a("s_cbranch_scc1 K_EXIT")
    if env("SHUF", 0) == 1:
        a("s_lshr_b32 s3, s2, 3")
        a("s_lshl_b32 s2, s2, 5")
        a("s_or_b32 s2, s2, s3")
        a("s_and_b32 s2, s2, 255")
    if env("SHUF", 0) == 2:
        a("s_mul_i32 s2, s2, 37")
        a("s_add_u32 s2, s2, 11")
        a("s_and_b32 s2, s2, 255")
    if env("JIT", 0):
        a("s_mul_i32 s3, s2, 2654435761")
        a("s_lshr_b32 s3, s3, 27")
        a.label("JIT_L")
        a("s_sleep 8")
        a("s_sub_u32 s3, s3, 1")
        a("s_cbranch_scc0 JIT_L")
    a("s_load_dwordx4 s[4:7], s[0:1], 0       ; x, wqkv")
    a("v_lshrrev_b32 v1, 6, v0")
    a("v_and_b32 v2, 63, v0                   ; lane")
    a("v_readfirstlane_b32 s20, v1")
    VX0, VX1, VR0, VR1, VKV = 10, 11, 12, 13, 14
    if FASTX:
        assert ROT1 == 2 and PRE == 2
        a("v_lshrrev_b32 v4, 3, v2")
        a("v_and_b32 v5, 7, v2")
        a("v_lshrrev_b32 v6, 4, v2")
        a("v_xor_b32 v7, v5, v6")
        a("v_lshlrev_b32 v7, 4, v7")
        a(f"v_lshl_add_u32 v{VX0}, v4, 10, v7")
        a(f"v_xor_b32 v{VX1}, 64, v{VX0}")
        a("s_bfe_u32 s63, s2, 0x30003")
        a("s_and_b32 s40, s2, 1")
        a("s_lshl_b32 s40, s40, 3")
        a("s_add_u32 s40, s40, s63                ; rb")
        a("s_lshl_b32 s40, s40, 2")
        a("s_and_b32 s42, s20, 3")
        a("s_add_u32 s40, s40, s42")
        a("s_lshl_b32 s40, s40, 15")
        a("s_lshl_b32 s42, s42, 12")
        a("s_lshr_b32 s37, s2, 6")
        a("s_add_u32 s37, s37, s63")
        a("s_lshl_b32 s37, s37, 1")
        a("s_lshr_b32 s38, s20, 2")
        a("s_add_u32 s37, s37, s38")
        a("s_and_b32 s37, s37, 7")
        a("s_lshl_b32 s37, s37, 7")
        a("s_add_u32 s37, s37, s40")
        a("s_cmp_lt_u32 s20, 4")
        a(f"s_mov_b32 s38, {slot_of(1)}")
        a(f"s_cselect_b32 s38, {slot_of(0)}, s38")
        a("s_add_u32 s38, s38, s42")
        a("s_mov_b32 s46, 0x200000")
        a("s_mov_b32 s47, 0x20000")
        a("s_waitcnt lgkmcnt(0)")
        a("s_mov_b64 s[44:45], s[4:5]")
        for i in range(4):
            a(f"s_add_u32 m0, s38, {i*1024}")
            a(f"s_add_u32 s39, s37, {i*8192}")
            a(f"buffer_load_dwordx4 v{VX1 if i & 1 else VX0}, s[44:47], s39 offen lds")
    a("s_load_dwordx4 s[12:15], s[0:1], 32")
    a("s_load_dwordx2 s[8:9], s[0:1], 16      ; wo")
    a("s_load_dwordx2 s[10:11], s[0:1], 80    ; ws")
    a("s_load_dwordx4 s[16:19], s[0:1], 48")
    a("s_load_dwordx4 s[64:67], s[0:1], 64")
    a("v_lshlrev_b32 v3, 4, v2                ; lane*16")
    stamp(a, 0)
    a("s_and_b32 s24, s2, 1                   ; xh")
    a("s_bfe_u32 s25, s2, 0x20001             ; xq")
    a("s_lshr_b32 s26, s2, 3                  ; j")
    a("s_and_b32 s63, s26, 7")
    a("s_lshl_b32 s21, s24, 3")
    a("s_add_u32 s21, s21, s63                ; rb")
    a("s_lshr_b32 s27, s26, 3")
    a("s_mul_i32 s22, s25, 3")
    a("s_add_u32 s22, s22, s27")
    a("s_add_u32 s23, s25, 12")
    a("s_cmp_eq_u32 s27, 3")
    a("s_cselect_b32 s22, s23, s22            ; cb2")
    if FMAP:
        a("s_and_b32 s72, s2, 7")
        a("s_lshl_b32 s72, s72, 2")
        a("s_and_b32 s73, s26, 3")
        a("s_add_u32 s72, s72, s73                ; rb64")
        a("s_lshr_b32 s73, s26, 2                 ; cb64")
    else:
        a("s_lshl_b32 s72, s25, 3")
        a("s_add_u32 s72, s72, s63                ; rb64")
        a("s_lshl_b32 s73, s24, 2")
        a("s_add_u32 s73, s73, s27                ; cb64")
    if ROT1 == 1:
        a("s_lshl_b32 s27, s27, 1")
        a("s_add_u32 s63, s63, s27")
    elif ROT1 == 2:
        a("s_add_u32 s63, s63, s27")
        a("s_lshl_b32 s63, s63, 1")
    elif ROT1 == 3:
        a("s_add_u32 s63, s63, s27")
        a("s_lshl_b32 s63, s63, 2")
    a(f"s_and_b32 s63, s63, {7 if ROT1 else 0}")
    a("s_and_b32 s70, s2, 7")
    a("s_lshl_b32 s70, s70, 2")
    a("s_and_b32 s27, s26, 3")
    a("s_add_u32 s70, s70, s27                ; head")
    a("s_lshr_b32 s71, s26, 2                 ; qb")
    a("s_cmp_lt_u32 s20, 4")
    a("s_cbranch_scc1 K1_COMPUTE")

    a("s_sub_u32 s23, s20, 4                  ; L")
    if LPRIO:
        a(f"s_setprio {LPRIO}")
    if not FASTX:
        a("v_lshrrev_b32 v4, 3, v2")
        a("v_and_b32 v5, 7, v2")
        a("v_lshrrev_b32 v6, 4, v2")
        a("v_xor_b32 v7, v5, v6")
        a("v_lshlrev_b32 v7, 4, v7")
        a(f"v_lshl_add_u32 v{VX0}, v4, 10, v7")
        a(f"v_xor_b32 v{VX1}, 64, v{VX0}")
    a("v_and_b32 v7, 1, v6")
    a("v_lshlrev_b32 v7, 2, v7")
    a("v_xor_b32 v7, v7, v5")
    a("v_lshlrev_b32 v7, 4, v7")
    a("v_mul_u32_u24 v8, 3072, v4")
    a(f"v_add_u32 v{VKV}, v8, v7")
    a("v_mul_u32_u24 v8, 3584, v4")
    a("v_add_u32 v15, v8, v7")
    a("s_cmp_lt_u32 s22, 12")
    a("s_cselect_b64 vcc, -1, 0")
    a("s_movk_i32 s60, 3072")
    a("s_cselect_b32 s60, 3584, s60")
    a(f"v_cndmask_b32 v{VR0}, v{VKV}, v15, vcc")
    a(f"v_xor_b32 v{VR1}, 32, v{VR0}")
    a("s_cselect_b32 s32, 0, 12")
    a("s_sub_u32 s32, s22, s32")
    a("s_lshl_b32 s32, s32, 8")
    a("s_lshl_b32 s61, s22, 1")
    a("s_add_u32 s61, s61, 1")
    a("s_add_u32 s34, s22, 12")
    a("s_cmp_lt_u32 s22, 12")
    a("s_cselect_b32 s33, 0, 128              ; R1 - R0")
    a("s_cselect_b32 s61, s61, s34")
    a("s_lshl_b32 s61, s61, 7")
    a("s_mul_i32 s34, s23, 57344")
    a("s_add_u32 s61, s61, s34")
    a("s_lshl_b32 s34, s23, 4")
    a("s_mul_i32 s34, s34, s60")
    a("s_add_u32 s32, s32, s34")
    a("s_lshl_b32 s62, s60, 6")
    a("s_lshl_b32 s36, s60, 3                 ; 8 rows")
    a("s_mul_i32 s34, s23, 49152")
    a("s_lshl_b32 s35, s22, 7")
    a("s_add_u32 s34, s34, s35")
    a("s_add_u32 s34, s34, 1024")
    if not FASTX:
        a("s_lshl_b32 s40, s21, 17")
        a("s_lshl_b32 s41, s23, 15")
        a("s_add_u32 s40, s40, s41                ; x base")
        a("s_lshl_b32 s42, s23, 12")
    a("s_lshl_b32 s35, s23, 11")
    a("s_mov_b32 s43, s63                     ; kc")
    a("s_waitcnt lgkmcnt(0)")
    srd(a, 24, 4, 0x200000)
    srd(a, 44, 6, 0x180000)
    a("s_cmp_lt_u32 s22, 12")
    a("s_cselect_b64 s[48:49], s[12:13], s[6:7]")
    a("s_cselect_b64 s[52:53], s[14:15], s[6:7]")
    a("s_cselect_b32 s50, 0x1c0000, s46")
    a("s_mov_b32 s54, s50")
    a("s_mov_b32 s51, 0x20000")
    a("s_mov_b32 s55, 0x20000")
    queue = []
    def issue(c):
        ws_, xs_ = wslot(c), xslot(c)
        a("s_mul_i32 s38, s43, s62")
        a("s_add_u32 s38, s38, s32")
        for i in range(2):
            a(f"s_add_u32 m0, s35, {ws_ + i*1024}")
            a("s_add_u32 s39, s38, s33")
            a(f"buffer_load_dwordx4 v{VR0}, s[48:51], s38 offen lds")
            a(f"s_add_u32 m0, s35, {ws_ + 8192 + i*1024}")
            a("s_add_u32 s38, s38, s36")
            a(f"buffer_load_dwordx4 v{VR1}, s[52:55], s39 offen lds")
        n = 4
        if c < 8:
            a("s_mul_i32 s38, s43, 196608")
            a("s_add_u32 s38, s38, s34")
            for i in range(2):
                a(f"s_add_u32 m0, s35, {ws_ + 16384 + i*1024}")
                a(f"s_add_u32 s39, s38, {i*24576}")
                a(f"buffer_load_dwordx4 v{VKV}, s[44:47], s39 offen lds")
            n += 2
        if c < 8 or c >= 13:
            a("s_lshl_b32 s37, s43, 7")
            a("s_add_u32 s37, s37, s40")
            for i in range(4):
                a(f"s_add_u32 m0, s42, {xs_ + i*1024}")
                a(f"s_add_u32 s39, s37, {i*8192}")
                a(f"buffer_load_dwordx4 v{VX1 if i & 1 else VX0}, s[24:27], s39 offen lds")
            n += 4
        if c != 7:
            a("s_add_u32 s43, s43, " + ("1" if c < 7 else "7"))
            a("s_and_b32 s43, s43, 7")
        else:
            a("s_mov_b32 s32, s61")
            a("s_mov_b32 s33, 0")
            a("s_mov_b32 s62, 229376")
            a("s_mov_b32 s36, 28672")
            a("s_mov_b64 s[48:49], s[12:13]")
            a("s_mov_b64 s[52:53], s[14:15]")
            a("s_mov_b32 s50, 0x1c0000")
            a("s_mov_b32 s54, 0x1c0000")
            a(f"v_mov_b32 v{VR0}, v15")
            a(f"v_xor_b32 v{VR1}, 32, v15")
        queue.extend([c] * n)
    def waitq(tag):
        n = len(queue) - 1 - max(i for i, t in enumerate(queue) if t == tag)
        a(f"s_waitcnt vmcnt({n})")
    stamp(a, 2, 7)
    if PROF == 7:
        a("s_mov_b32 s81, s80")
        a("s_mov_b32 s80, s100")
    issue(0)
    stamp(a, 3, 7)
    if PRE == 2:
        issue(1)
    stamp(a, 4, 7)
    stamp(a, 1)
    srd(a, 28, 10, WS_SIZE)
    a("v_mov_b32 v9, 0")
    a("s_add_u32 s37, s2, s20")
    a("s_cmp_eq_u32 s37, 4")
    a("s_cbranch_scc0 K1_NOTAG")
    a("s_memrealtime s[56:57]")
    a("s_waitcnt lgkmcnt(0)")
    a("s_or_b32 s56, s56, 1")
    a("s_or_b32 s57, s57, 0x80000000")
    a("v_mov_b32 v4, s56")
    a("v_mov_b32 v5, s57")
    a("s_mov_b64 exec, 1")
    a("global_store_dwordx2 v9, v[4:5], s[66:67] sc1")
    a("s_mov_b64 exec, -1")
    a.label("K1_NOTAG")
    def get_tag():
        lab, done = a.newlabel("TAG"), a.newlabel("TAGD")
        a(f"s_mov_b32 s74, {SPIN}")
        a("v_readfirstlane_b32 s68, v60")
        a("v_readfirstlane_b32 s69, v61")
        a.label(lab)
        a("s_sub_u32 s74, s74, 1")
        a(f"s_cbranch_scc1 {done}")
        a("s_min_u32 s75, s68, s69")
        a("s_cmp_lg_u32 s75, 0")
        a(f"s_cbranch_scc1 {done}")
        a("global_load_dwordx2 v[60:61], v9, s[66:67] sc1")
        a("s_waitcnt vmcnt(0)")
        a("v_readfirstlane_b32 s68, v60")
        a("v_readfirstlane_b32 s69, v61")
        a("s_sleep 2")
        a(f"s_branch {lab}")
        a.label(done)
        a(f"v_mov_b32 v4, {LDS_TAG}")
        a("v_mov_b32 v60, s68")
        a("v_mov_b32 v61, s69")
        a("ds_write_b64 v4, v[60:61]")
        a("ds_write_b32 v4, v9 offset:8")
        a("ds_write_b32 v4, v9 offset:12")
        a("ds_write_b32 v4, v9 offset:16")
        a("ds_write_b32 v4, v9 offset:20")
        a("ds_write_b32 v4, v9 offset:24")
        a("s_waitcnt lgkmcnt(0)")
    def flag_a(c):
        lab = a.newlabel("FA")
        a("s_cmp_lg_u32 s23, 1")
        a(f"s_cbranch_scc1 {lab}")
        if AFLAG != AFLAGQ:
            a("s_cmp_lt_u32 s22, 12")
            a(f"s_cbranch_scc{0 if c == AFLAG else 1} {lab}")
        a("s_lshl_b32 s37, s22, 4")
        a("s_add_u32 s37, s37, s21")
        a("s_lshl_b32 s37, s37, 7")
        a(f"s_add_u32 s37, s37, {FL_A}")
        stamp(a, 1, 14)
        flag_store(a, "s37", 16)
        a.label(lab)
    def kv_setup():
        a("v_and_b32 v5, 15, v2")
        a("v_lshlrev_b32 v5, 7, v5")
        a("v_bfe_u32 v6, v2, 4, 1")
        a("v_lshl_add_u32 v5, v6, 14, v5")
        a("s_and_b32 s56, s2, 7")
        a("s_lshr_b32 s57, s56, 1")
        a("s_add_u32 s57, s57, 12")
        a("s_sub_u32 s57, s57, s56")
        a("s_lshl_b32 s57, s57, 11")
        a("s_lshl_b32 s58, s71, 8")
        a("s_add_u32 s57, s57, s58")
        a("v_and_b32 v6, 1, v2")
        a("v_lshlrev_b32 v6, 7, v6")
        a("v_add_u32 v6, s57, v6")
        a("v_cmp_gt_u32 vcc, 32, v2")
        a("s_lshl_b32 s56, s56, 11")
        a(f"s_add_u32 s56, s56, {FL_A}")
        a("v_cndmask_b32 v5, v6, v5, vcc")
        a("s_lshl_b32 s57, s70, 16")
        a("s_lshl_b32 s58, s23, 10")
        a("s_add_u32 s57, s57, s58                ; head*64K + L*1K")
        a(f"s_add_u32 s57, s57, {WS_K}")
        a(f"s_mul_i32 s58, s23, {TP}")
    def kv_loads(lo, hi):
        n = hi - lo
        a(f"s_mul_i32 s44, s71, {n}")
        a("s_lshr_b32 s44, s44, 3")
        for i in range(n):
            a(f"s_mul_i32 s45, s44, {4*TP}")
            a("s_add_u32 s45, s45, s58")
            a(f"s_add_u32 m0, s45, {lo*4*TP}")
            a("s_lshl_b32 s37, s44, 12")
            a("s_add_u32 s37, s37, s57")
            a(f"s_add_u32 s38, s37, {lo*4096}")
            a(f"buffer_load_dwordx4 v3, s[28:31], s38 offen{SC} lds")
            a(f"s_add_u32 m0, s45, {lo*4*TP + 1024}")
            a(f"s_add_u32 s38, s37, {lo*4096 + WS_V - WS_K}")
            a(f"buffer_load_dwordx4 v3, s[28:31], s38 offen{SC} lds")
            if i < n - 1:
                a("s_add_u32 s44, s44, 1")
                a(f"s_cmp_eq_u32 s44, {n}")
                a("s_cselect_b32 s44, 0, s44")
        queue.extend(["kv"] * (2 * n))
    def q_loads():
        a("s_lshl_b32 s37, s70, 6")
        a("s_lshl_b32 s38, s71, 3")
        a("s_add_u32 s37, s37, s38")
        a("s_lshl_b32 s38, s23, 1")
        a("s_add_u32 s37, s37, s38")
        a("s_lshl_b32 s37, s37, 10")
        a("s_lshl_b32 s38, s23, 11")
        a(f"s_add_u32 m0, s38, {LDS_Q}")
        a("s_nop 0")
        a(f"buffer_load_dwordx4 v3, s[28:31], s37 offen{SC} lds")
        a(f"buffer_load_dwordx4 v3, s[28:31], s37 offen offset:1024{SC} lds")
    def fa_load():
        a("buffer_load_dwordx2 v[20:21], v5, s[28:31], s56 offen sc1")
    def fa_test():
        a("v_xor_b32 v20, s68, v20")
        a("v_xor_b32 v21, s69, v21")
        a("v_or_b32 v20, v20, v21")
        a("v_cmp_ne_u32 vcc, 0, v20")
        a("s_nop 1")
        a("s_cmp_eq_u64 vcc, 0")
    def kv_first():
        n = len(queue)
        q_loads()
        kv_loads(0, 3)
        del queue[n:]
        a("s_mov_b32 s77, 1")
    def kv_try():
        lab = a.newlabel("KVT")
        a("s_cmp_lg_u32 s77, 0")
        a(f"s_cbranch_scc1 {lab}")
        fa_test()
        a(f"s_cbranch_scc0 {lab}")
        kv_first()
        a.label(lab)
    for c in range(14):
        waitq(c)
        if c == 6:
            get_tag()
        if c < 2:
            stamp(a, c + 5, 7)
        if c < 6:
            stamp(a, c + 1, 2)
        if 6 <= c < 12:
            stamp(a, c - 5, 3)
        if c >= 10:
            stamp(a, c - 9, 4)
        a(f"s_barrier                              ; b({c})")
        if c == 8:
            stamp(a, 2)
        if c == 4:
            a("global_load_dwordx2 v[60:61], v9, s[66:67] sc1")
        if c in (AFLAG, AFLAGQ):
            flag_a(c)
        if c == 9:
            kv_setup()
            a("s_mov_b32 s77, 0")
        if c == 0 and PRE == 1:
            issue(1)
        if c <= 8:
            issue(c + 2)
        if 8 <= c <= 12:
            issue(c + 3)
        if c == 13:
            srd(a, 48, 18, 1024)
            a("s_lshl_b32 s76, s2, 2")
            a("s_add_u32 s76, s76, s23")
            a("s_lshl_b32 s55, s76, 11")
            a("buffer_load_dwordx4 v[64:67], v3, s[48:51], 0 offen")
            a("buffer_load_dwordx4 v[24:27], v3, s[24:27], s55 offen")
            a("buffer_load_dwordx4 v[28:31], v3, s[24:27], s55 offen offset:1024")
            a("s_waitcnt vmcnt(3)")
        if False:
            nn = queue.count(c + 2)
            keep = nn if c < 13 else 0
            lA, lB, lE = a.newlabel("KVA"), a.newlabel("KVB"), a.newlabel("KVE")
            if c > FA0:
                a("s_cmp_lg_u32 s77, 0")
                a(f"s_cbranch_scc1 {lA}")
                a(f"s_waitcnt vmcnt({nn})")
                fa_test()
                a(f"s_cbranch_scc0 {lB}")
                kv_first()
                a(f"s_waitcnt vmcnt({keep + 8})")
                a(f"s_branch {lE}")
                a.label(lA)
                a(f"s_waitcnt vmcnt({keep})")
                a(f"s_branch {lE}")
                a.label(lB)
            fa_load()
            a(f"s_waitcnt vmcnt({keep + 1})")
            a.label(lE)
        if c == PFC:
            a("s_cmp_ge_u32 s23, 2")
            a("s_cbranch_scc1 K1_NOPF2")
            a("s_cmp_eq_u32 s23, 0")
            a("s_cselect_b64 s[56:57], s[12:13], s[14:15]")
            a("s_mov_b32 s58, 0x1c0000")
            a("s_mov_b32 s59, 0x20000")
            a("v_mul_u32_u24 v16, 3584, v2")
            a("s_mul_i32 s37, s23, 57344")
            a("s_sub_u32 s37, s61, s37")
            a("s_and_b32 s38, s21, 7")
            a("s_mul_i32 s38, s38, 229376")
            a("s_add_u32 s37, s37, s38")
            a("buffer_load_dword v17, v16, s[56:59], s37 offen")
            a.label("K1_NOPF2")
    a("s_barrier                              ; b(14)")
    if FDEL:
        a(f"s_sleep {FDEL}")
    stamp(a, 2, 14)
    poll_shared(a, 1, [("s56", 5, 8, FSLP)], 16, lslp=1)
    stamp(a, 3, 14)
    kv_first()
    a.label("KV_GO")
    a("s_waitcnt vmcnt(8)")
    a("v_mov_b32 v32, 0")
    a("v_mov_b32 v33, 0")
    for q in range(4):
        a(f"v_dot2_f32_bf16 v32, v{24+q}, v{64+q}, v32")
        a(f"v_dot2_f32_bf16 v33, v{28+q}, v{64+q}, v33")
    a("s_nop 2")
    a("v_permlane32_swap_b32 v32, v33")
    a("s_nop 1")
    a("v_add_f32 v32, v32, v33")
    for ctl in ("quad_perm:[1,0,3,2]", "quad_perm:[2,3,0,1]", "row_half_mirror", "row_mirror"):
        a("s_nop 1")
        a(f"v_add_f32_dpp v32, v32, v32 {ctl} row_mask:0xf bank_mask:0xf")
    a("v_mov_b32 v33, v32")
    a("s_nop 1")
    a("v_permlane16_swap_b32 v32, v33")
    a("s_nop 1")
    a("v_add_f32 v32, v32, v33")
    a(f"v_mul_f32 v32, {fh(-LOG2E)}, v32")
    a("v_exp_f32 v32, v32")
    a("v_lshrrev_b32 v70, 5, v2")
    a("v_add_f32 v32, 1.0, v32")
    a("v_rcp_f32 v68, v32")
    a("v_lshlrev_b32 v70, 3, v70")
    a("v_mov_b32 v69, s68")
    a("s_branch K2_GEMM")

    a.label("K1_COMPUTE")
    AF = 96
    AK = 224
    def accF(sw, i, t):
        return AF + ((sw * 2 + i) * 2 + t) * 16
    XA = [4, 5, 6, 7]
    WA = [8, 9]
    KA = 10
    a("s_and_b32 s23, s20, 1                  ; tp")
    a("s_lshr_b32 s24, s20, 1                 ; grp")
    a("v_bfe_u32 v16, v2, 4, 1                ; gsel")
    a("v_lshrrev_b32 v17, 5, v2               ; h")
    a("v_bfe_u32 v18, v2, 2, 2                ; r")
    a("v_and_b32 v19, 3, v2                   ; c")
    a("v_lshl_add_u32 v20, v17, 3, v18        ; 8h+r")
    a("v_and_b32 v21, 31, v2")
    a("v_lshlrev_b32 v21, 7, v21")
    a("v_bfe_u32 v22, v2, 1, 3")
    a("v_xor_b32 v22, v22, v17")
    a("v_lshl_add_u32 v21, v22, 4, v21")
    a("s_lshl_b32 s25, s23, 13")
    a(f"s_add_u32 s25, s25, {xslot(0)}")
    for s_ in range(4):
        a(f"v_xor_b32 v{XA[s_]}, {32*s_}, v21")
        a(f"v_add_u32 v{XA[s_]}, s25, v{XA[s_]}")
    a("v_lshlrev_b32 v20, 7, v20")
    a("v_lshl_add_u32 v20, v19, 3, v20        ; row*128 + c*8")
    a("v_lshrrev_b32 v21, 1, v18")
    a("v_xor_b32 v21, s24, v21                ; grp ^ (r>>1)")
    a("v_lshl_add_u32 v20, v21, 6, v20")
    a("v_lshl_add_u32 v20, v16, 5, v20")
    a(f"v_add_u32 v{KA}, {wslot(0) + 16384}, v20")
    a("v_lshl_add_u32 v20, v16, 13, v20")
    a("v_xor_b32 v21, 32, v20")
    a(f"v_add_u32 v{WA[0]}, {wslot(0)}, v20")
    a(f"v_add_u32 v{WA[1]}, {wslot(0)}, v21")
    a("v_and_b32 v11, 0x33, v2")
    a("v_bfe_u32 v17, v2, 2, 1")
    a("v_lshl_or_b32 v11, v17, 3, v11")
    a("v_bfe_u32 v17, v2, 3, 1")
    a("v_lshl_or_b32 v11, v17, 2, v11")
    a("v_lshlrev_b32 v11, 4, v11              ; K voffset")
    a("s_cmp_lt_u32 s22, 8")
    a("s_cbranch_scc1 K1_KOFF")
    a("v_lshlrev_b32 v11, 16, v16")
    a("v_lshrrev_b32 v18, 5, v2")
    a("v_lshl_or_b32 v11, v18, 8, v11")
    a("v_and_b32 v18, 15, v2")
    a("v_lshl_or_b32 v11, v18, 4, v11         ; V voffset")
    a.label("K1_KOFF")
    for i in range(160):
        a(f"v_mov_b32 v{AF+i}, 0")
    a("s_waitcnt lgkmcnt(0)")
    srd(a, 28, 10, WS_SIZE)
    if CODEPF:
        a("s_getpc_b64 s[50:51]")
        a.label("PC_HERE")
        a(f"s_sub_u32 s50, s50, PC_HERE-{KNAME}")
        a("s_subb_u32 s51, s51, 0")
        a("s_lshr_b32 s49, s2, 3")
        a("s_lshl_b32 s49, s49, 2")
        a("s_add_u32 s49, s49, s20")
        a("s_lshl_b32 s49, s49, 9")
        a("v_lshlrev_b32 v21, 3, v2")
        a("v_add_u32 v21, s49, v21")
        a(f"v_min_u32 v21, K_END-{KNAME}-4, v21")
        a("global_load_dword v21, v21, s[50:51]")
    a("s_lshl_b32 s32, s21, 2")
    a("s_lshl_b32 s33, s23, 1")
    a("s_add_u32 s32, s32, s33                ; tt0")
    a("s_and_b32 s36, s22, 7")
    a("s_lshl_b32 s36, s36, 2")
    a("s_lshl_b32 s37, s24, 1")
    a("s_add_u32 s36, s36, s37")
    a("s_lshl_b32 s36, s36, 6")
    a("s_add_u32 s36, s36, s32")
    a("s_lshl_b32 s36, s36, 10")
    a("s_cmp_lt_u32 s22, 8")
    a(f"s_mov_b32 s38, {WS_V}")
    a(f"s_cselect_b32 s38, {WS_K}, s38")
    a("s_movk_i32 s37, 512")
    a("s_cselect_b32 s37, 0x10000, s37")
    a("s_add_u32 s36, s36, s38")
    a("s_add_u32 s37, s37, s36")
    a("s_mov_b32 s25, 0")
    a("s_mov_b32 s26, 8")
    BB = [24, 44]
    def reads(s_, buf, kv):
        L = [f"ds_read_b128 {v(buf,4)}, v{XA[s_]}"]
        for t in range(2):
            for u in range(2):
                L.append(f"ds_read_b64_tr_b16 {v(buf+8+4*t+2*u,2)}, v{WA[t]} offset:{(16*s_+4*u)*128}")
            if t == 0:
                L.append(f"ds_read_b128 {v(buf+4,4)}, v{XA[s_]} offset:4096")
        if kv:
            for u in range(2):
                L.append(f"ds_read_b64_tr_b16 {v(buf+16+2*u,2)}, v{KA} offset:{(16*s_+4*u)*128}")
        return L
    def mfs(buf, sw, vtype):
        L = []
        for t in range(2):
            for i in range(2):
                acc = accF(sw, i, t)
                L.append(f"{MF} {v(acc,16)}, {v(buf+8+4*t,4)}, {v(buf+4*i,4)}, {v(acc,16)}")
        if sw == 0:
            for i in range(2):
                acc = AK + 16 * i
                A_, B_ = v(buf + 16, 4), v(buf + 4 * i, 4)
                if vtype:
                    A_, B_ = B_, A_
                L.append(f"{MF} {v(acc,16)}, {A_}, {B_}, {v(acc,16)}")
        return L
    def sweep(name, sw, vtype):
        a.raw(".p2align 6")
        a.label(name)
        kv = sw == 0
        nr = 8 if kv else 6
        for s_ in range(4):
            upd = []
            if s_ == 2:
                upd = ["s_add_u32 s25, s25, 1", "s_cmp_eq_u32 s25, 3", f"s_mov_b32 s27, {WSL}",
                       f"s_cselect_b32 s27, {(-2*WSL) & 0xffffffff:#x}, s27", "s_cselect_b32 s25, 0, s25",
                       "s_cmp_eq_u32 s26, 6", f"s_mov_b32 s33, {(-XS) & 0xffffffff:#x}", f"s_cselect_b32 s33, {4*XS}, s33",
                       "s_cmp_eq_u32 s26, 1", "s_cselect_b32 s33, 0, s33"]
                upd += [f"v_add_u32 v{r}, s27, v{r}" for r in WA + [KA]] + [f"v_add_u32 v{r}, s33, v{r}" for r in XA]
            if s_ == 1 and sw == 1:
                upd = [f"s_cmp_lg_u32 s26, {17 - AFLAG}", f"s_cbranch_scc1 {name}_ND", "s_waitcnt vmcnt(0)", f"{name}_ND:"]
            M = mfs(BB[s_ & 1], sw, vtype)
            if s_ < 3:
                R = reads(s_ + 1, BB[(s_ + 1) & 1], kv)
                seq = [f"s_waitcnt lgkmcnt({nr-4})", M[0], R[0], R[1], M[1], R[2], R[3], "s_waitcnt lgkmcnt(4)", M[2], R[4], R[5]]
                if kv:
                    seq += [M[3], R[6], R[7], M[4]] + upd[:12] + [M[5]] + upd[12:]
                elif s_ == 1:
                    seq += [M[3]] + upd
                else:
                    seq += upd[:5] + [M[3]] + upd[5:]
            else:
                R = reads(0, BB[0], kv)
                tail = ["s_sub_u32 s26, s26, 1", "s_cmp_lg_u32 s26, 0"]
                seq = [f"s_waitcnt lgkmcnt({nr-4})", M[0], "s_waitcnt lgkmcnt(0)", "s_barrier", R[0], M[1], R[1], R[2], R[3], M[2], R[4], R[5]]
                if kv:
                    seq += [M[3], R[6], R[7], M[4]] + tail + [M[5]]
                else:
                    seq += tail + [M[3]]
            for l in seq:
                a(l)
        a(f"s_cbranch_scc1 {name}")
    if FASTX:
        a(f"s_waitcnt vmcnt({1 if CODEPF else 0})")
    a("s_barrier                              ; b(0)")
    stamp(a, 1)
    for l in reads(0, BB[0], True):
        a(l)
    a("s_cmp_lt_u32 s22, 8")
    a("s_cbranch_scc0 SW1V")
    sweep("SW1K", 0, False)
    a("s_branch K1_KVEPI")
    sweep("SW1V", 0, True)
    a.label("K1_KVEPI")
    stamp(a, 2)
    stamp(a, 1, 14)
    c0 = -2.0 * 0.7978845608028654 * LOG2E
    c1 = c0 * 0.044715
    T = 64
    TB = 16
    def gelu_tile(acc, out, pk):
        L = []
        if pk:
            for j in range(0, 8, 2):
                L.append(f"v_pk_mul_f32 {v(TB+j,2)}, {v(acc+j,2)}, {v(acc+j,2)}")
            for j in range(0, 8, 2):
                L.append(f"v_pk_fma_f32 {v(TB+j,2)}, {v(TB+j,2)}, s[34:35], v[12:13]")
            for j in range(0, 8, 2):
                L.append(f"v_pk_mul_f32 {v(TB+j,2)}, {v(TB+j,2)}, {v(acc+j,2)}")
            for j in range(8):
                L.append(f"v_exp_f32 v{TB+j}, v{TB+j}")
            for j in range(0, 4, 2):
                L.append(f"v_pk_mul_f32 {v(acc+8+j,2)}, {v(acc+8+j,2)}, {v(acc+j,2)}")
            for j in range(0, 8, 2):
                L.append(f"v_pk_add_f32 {v(TB+j,2)}, {v(TB+j,2)}, v[14:15]")
            for j in range(8):
                L.append(f"v_rcp_f32 v{TB+j}, v{TB+j}")
            for j in range(4, 8, 2):
                L.append(f"v_pk_mul_f32 {v(acc+8+j,2)}, {v(acc+8+j,2)}, {v(acc+j,2)}")
            for j in range(0, 8, 2):
                L.append(f"v_pk_mul_f32 {v(acc+8+j,2)}, {v(acc+8+j,2)}, {v(TB+j,2)}")
        else:
            for j in range(8):
                L.append(f"v_mul_f32 v{TB+j}, v{acc+j}, v{acc+j}")
            for j in range(8):
                L.append(f"v_fma_f32 v{TB+j}, v{TB+j}, s34, v12")
            for j in range(8):
                L.append(f"v_mul_f32 v{TB+j}, v{TB+j}, v{acc+j}")
            for j in range(8):
                L.append(f"v_exp_f32 v{TB+j}, v{TB+j}")
                L.append(f"v_mul_f32 v{acc+8+j}, v{acc+8+j}, v{acc+j}")
            for j in range(8):
                L.append(f"v_add_f32 v{TB+j}, 1.0, v{TB+j}")
            for j in range(8):
                L.append(f"v_rcp_f32 v{TB+j}, v{TB+j}")
                if j >= 2:
                    L.append(f"v_mul_f32 v{acc+8+j-2}, v{acc+8+j-2}, v{TB+j-2}")
            L.append(f"v_mul_f32 v{acc+14}, v{acc+14}, v{TB+6}")
            L.append(f"v_mul_f32 v{acc+15}, v{acc+15}, v{TB+7}")
        for j in range(0, 8, 2):
            L.append(f"v_cvt_pk_bf16_f32 v{out + j//2}, v{acc+8+j}, v{acc+8+j+1}")
        return L
    def kv_fill():
        L = []
        for i in range(2):
            for j in range(0, 16, 2):
                L.append(f"v_cvt_pk_bf16_f32 v{T + 8*i + j//2}, v{AK+16*i+j}, v{AK+16*i+j+1}")
                if j == 6:
                    L.append(f"buffer_store_dwordx4 {v(T+8*i,4)}, v11, s[28:31], s36 offen offset:{i*1024}{SC}")
            L.append(f"buffer_store_dwordx4 {v(T+8*i+4,4)}, v11, s[28:31], s37 offen offset:{i*1024}{SC}")
        return L
    def q_fill():
        L = []
        for t in range(2):
            for i in range(2):
                acc = accF(0, i, t)
                for hf in range(2):
                    for j in range(8):
                        L.append(f"v_mul_f32 v{acc+8*hf+j}, s34, v{acc+8*hf+j}")
                    for j in range(0, 8, 2):
                        L.append(f"v_cvt_pk_bf16_f32 v{acc+8*hf+j//2}, v{acc+8*hf+j}, v{acc+8*hf+j+1}")
                    L.append(f"s_add_u32 s39, s38, {WS_Q + (t + 4*hf) * 65536}\nbuffer_store_dwordx4 {v(acc+8*hf,4)}, v3, s[28:31], s39 offen offset:{i*1024}{SC}")
        return L
    def cost(l):
        return 8 if l.startswith(("v_exp", "v_rcp")) else 4
    def sweep2(fill, early, aflag, ecap):
        F = list(fill)
        pos = [0]
        def take(fixed, st):
            used = sum(4 for l in fixed if l.startswith(("ds_", "v_")))
            out = []
            while pos[0] < len(F) and st >= 1:
                cap = ecap if pos[0] < early else CAP
                if used + cost(F[pos[0]]) > cap:
                    break
                used += cost(F[pos[0]])
                out.append(F[pos[0]])
                pos[0] += 1
            return fixed + out
        for c in range(8, 16):
            dx = (xslot(c + 1) - xslot(c)) & 0xffffffff if c < 15 else 0
            dw = (wslot(c + 1) - wslot(c)) & 0xffffffff if c < 15 else 0
            for s_ in range(4):
                st = (c - 8) * 4 + s_
                M = mfs(BB[s_ & 1], 1, False)
                ux = lambda k: [f"v_add_u32 v{XA[k]}, {dx:#x}, v{XA[k]}"] if c < 15 else []
                if s_ < 3:
                    R = reads(s_ + 1, BB[(s_ + 1) & 1], False)
                    last = ux(s_ + 1) + (ux(0) if s_ == 0 else [])
                    if s_ == 2 and c < 15:
                        last += [f"v_add_u32 v{r}, {dw:#x}, v{r}" for r in WA]
                    seq = (["s_waitcnt lgkmcnt(2)", M[0]] + take(R[0:2], st) + [M[1]] + take(R[2:4], st) +
                           ["s_waitcnt lgkmcnt(4)", M[2]] + take(R[4:6], st) + [M[3]] + take(last, st))
                else:
                    R = reads(0, BB[0], False) if c < 15 else []
                    dr = ["s_waitcnt vmcnt(0)"] if c + 1 == aflag else []
                    if dr:
                        assert pos[0] >= early
                    sync = ["s_barrier"] if c < 14 else (["s_mov_b64 exec, 1", "ds_add_u32 v0, v1", "s_mov_b64 exec, -1"] if c == 15 else [])
                    g0 = take(R[:1], st)
                    seq = (["s_waitcnt lgkmcnt(2)", M[0]] + g0[len(R[:1]):] + dr + ["s_waitcnt lgkmcnt(0)"] + sync + R[:1] + [M[1]] +
                           take(R[1:4], st) + [M[2]] + take(R[4:], st) + [M[3]] + take([], st))
                for l in seq:
                    if l == "s_barrier" and PROF in (10, 11, 12) and 0 <= c - (8 if PROF != 11 else 10) < 6:
                        if PROF == 12:
                            stamp(a, c - 8 + 1, 12)
                        a(l)
                        stamp(a, c - 8 + 1, 10)
                        stamp(a, c - 10 + 1, 11) if c >= 10 else None
                    else:
                        a(l)
        for l in F[pos[0]:]:
            a(l)
        sys.stderr.write(f"sweep2: {len(F) - pos[0]} of {len(F)} fillers left over\n")
    a(f"v_mov_b32 v0, {LDS_SYNC + 16}")
    a("v_mov_b32 v1, 1")
    a(f"v_mov_b32 v16, {LDS_TAG}")
    a("ds_read_b64 v[18:19], v16")
    a(f"v_mov_b32 v12, {fh(c0)}")
    a("v_mov_b32 v13, v12")
    a("v_mov_b32 v14, 1.0")
    a("v_mov_b32 v15, 1.0")
    a("s_waitcnt lgkmcnt(0)")
    a("v_readfirstlane_b32 s68, v18")
    a("v_readfirstlane_b32 s69, v19")
    a("s_cmp_lt_u32 s22, 12")
    a("s_cbranch_scc1 SW2R")
    a(f"s_mov_b32 s34, {fh(LOG2E*0.25)}")
    a("s_sub_u32 s38, s22, 12")
    a("s_lshl_b32 s38, s38, 3")
    a("s_lshl_b32 s39, s24, 1")
    a("s_add_u32 s38, s38, s39")
    a("s_lshl_b32 s38, s38, 6")
    a("s_add_u32 s38, s38, s32")
    a("s_lshl_b32 s38, s38, 10")
    F = kv_fill() + q_fill()
    sweep2(F, len(F), AFLAGQ, QCAP)
    a("s_branch K1_GE2")
    a.label("SW2R")
    a(f"s_mov_b32 s34, {fh(c1)}")
    a("s_mov_b32 s35, s34")
    F = kv_fill()
    ne = len(F)
    F2 = []
    for i in range(2):
        for t in range(2):
            if i * 2 + t < NFILL:
                F += gelu_tile(accF(0, i, t), 80 + 4 * (i * 2 + t), GPK)
            else:
                F2 += gelu_tile(accF(0, i, t), 80 + 4 * (i * 2 + t), True)
    sweep2(F, ne, AFLAG, CAP)
    for l in F2:
        a(l)
    a.label("K1_GE2")
    stamp(a, 3)
    a(f"s_mov_b32 s34, {fh(c1)}")
    a("s_mov_b32 s35, s34")
    a("s_mul_i32 s36, s32, 144")
    a("s_lshl_b32 s37, s22, 3")
    a("s_lshl_b32 s38, s22, 2")
    a("s_add_u32 s38, s38, 44")
    a("s_cmp_lt_u32 s22, 12")
    a("s_cselect_b32 s37, s37, s38")
    a("s_add_u32 s36, s36, s37")
    a("s_lshl_b32 s37, s24, 1")
    a("s_add_u32 s36, s36, s37")
    a("s_lshl_b32 s36, s36, 10")
    a(f"s_add_u32 s36, s36, {WS_ACT}")
    a(f"s_add_u32 s37, s36, {144*1024}")
    a("s_add_u32 s38, s36, 4096")
    a("s_add_u32 s39, s37, 4096")
    a("s_cmp_lt_u32 s22, 12")
    a("s_cbranch_scc0 K1_GE3")
    for i in range(2):
        for t in range(2):
            a(f"buffer_store_dwordx4 {v(80 + 4*(i*2+t),4)}, v3, s[28:31], s{36+i} offen offset:{t*1024}{SC}")
    a.label("K1_GE3")
    for t in range(2):
        for i in range(2):
            out = 64 + 4 * (i * 2 + t)
            for l in gelu_tile(accF(1, i, t), out, True):
                a(l)
            a(f"buffer_store_dwordx4 {v(out,4)}, v3, s[28:31], s{38+i} offen offset:{t*1024}{SC}")

    a.label("K2_ATTN")
    Q = [8, 12]
    G = [4, 5]
    KB = [16, 20]
    VB = [[24, 28], [32, 36]]
    IDX = 6
    VK, VV0, VV1 = 40, 41, 42
    C = [96, 112]
    S = [128, 144]
    P = [160, 176]
    O = [192, 208]
    a(f"v_mov_b32 v{IDX}, 0xdddd")
    def vaddr_init():
        a(f"v_mov_b32 v{VK}, v3")
        a("v_lshrrev_b32 v43, 5, v2")
        a("v_and_b32 v44, 15, v2")
        a("v_lshlrev_b32 v44, 4, v44")
        a("v_lshl_or_b32 v44, v43, 8, v44")
        a(f"v_add_u32 v44, {LDS_V}, v44")
        a("v_add_u32 v45, 512, v44")
        a("v_and_b32 v43, 31, v2")
        a("v_subrev_u32 v47, 20, v43")
        a("v_cmp_gt_u32 vcc, 8, v47")
        a(f"v_mov_b32 v46, {LDS_V + 1040}")
        a(f"v_mov_b32 v47, {LDS_V + 1040 + 2*VP}")
        a("v_cndmask_b32 v46, v46, v47, vcc")
        a("v_and_b32 v47, 27, v43")
        a("v_cmp_eq_u32 vcc, 16, v47")
        a("v_subrev_u32 v47, 16, v46")
        a("s_nop 0")
        a("v_cndmask_b32 v46, v46, v47, vcc")
        a("v_cmp_gt_u32 vcc, 16, v43")
        a("s_nop 1")
        a(f"v_cndmask_b32 v{VV0}, v46, v44, vcc")
        a(f"v_cndmask_b32 v{VV1}, v46, v45, vcc")
    vaddr_init()
    a("s_lshl_b32 s24, s20, 8")
    a(f"s_add_u32 s24, s24, {LDS_GQ}")
    a("v_and_b32 v7, 31, v2")
    a("v_lshlrev_b32 v7, 2, v7")
    a("v_add_u32 v7, s24, v7                  ; g address")
    def zero_state():
        a("v_mov_b32 v44, 0")
        a("v_mov_b32 v45, 0")
        for r in [O[0] + i for i in range(0, 32, 2)] + [P[1] + 8 + i for i in range(0, 8, 2)] + [VB[1][1], VB[1][1] + 2]:
            a(f"v_pk_mov_b32 {v(r,2)}, v[44:45], v[44:45]")
    zero_state()
    a("s_mov_b32 s26, 0")
    a("s_lshl_b32 s24, s20, 11")
    a(f"s_add_u32 s24, s24, {LDS_Q}")
    a("v_add_u32 v43, s24, v3")
    stamp(a, 2, 14)
    a("s_barrier                              ; X1")
    a("s_setprio 2")
    stamp(a, 4)
    stamp(a, 1, 9)
    a(f"ds_read_b128 {v(Q[0],4)}, v43")
    a(f"ds_read_b128 {v(KB[0],4)}, v{VK}")
    a(f"ds_read_b128 {v(Q[1],4)}, v43 offset:1024")
    a("s_waitcnt lgkmcnt(0)")
    for q in range(2):
        a(f"{MF} {v(S[q],16)}, {v(KB[0],4)}, {v(Q[q],4)}, 0")
    a("s_nop 7")
    a("s_nop 3")
    def maxtree(src, dst, acc=False):
        if acc:
            for i in range(0, 16, 2):
                a(f"v_max3_f32 v{dst}, v{src+i}, v{src+i+1}, v{dst}")
        else:
            a(f"v_max_f32 v{dst}, v{src}, v{src+1}")
            for i in range(2, 16, 2):
                a(f"v_max3_f32 v{dst}, v{src+i}, v{src+i+1}, v{dst}")
    for q in range(2):
        maxtree(S[q], 44 + q)
    a.label("K2_SETMAX")
    a(f"ds_read_b128 {v(KB[0],4)}, v{VK}")
    a(f"ds_read_b128 {v(VB[0][0],4)}, v{VV0}")
    a(f"ds_read_b128 {v(VB[0][1],4)}, v{VV1}")
    a(f"ds_read_b128 {v(KB[1],4)}, v{VK} offset:{TP}")
    for q in range(2):
        a(f"v_mov_b32 v{46+q}, v{44+q}")
    a("s_nop 1")
    for q in range(2):
        a(f"v_permlane32_swap_b32 v{44+q}, v{46+q}")
    for q in range(2):
        a(f"v_min_f32 v{44+q}, -v{44+q}, -v{46+q}     ; -max")
    for i in range(0, 16, 2):
        a(f"v_pk_mov_b32 {v(C[0]+i,2)}, v[44:45], v[44:45] op_sel:[0,0]")
    a("s_waitcnt lgkmcnt(0)")
    a("s_nop 0")
    a(f"{MF} {v(S[0],16)}, {v(KB[0],4)}, {v(Q[0],4)}, {v(C[0],16)}")
    for i in range(0, 16, 2):
        a(f"v_pk_mov_b32 {v(C[1]+i,2)}, v[44:45], v[44:45] op_sel:[1,1]")
    a("s_nop 3")
    stamp(a, 2, 9)
    a("s_cmp_lg_u32 s26, 0")
    a("s_cbranch_scc1 K2_NOBAR")
    a("s_waitcnt vmcnt(0)")
    a("s_barrier")
    a.label("K2_NOBAR")
    stamp(a, 3, 9)
    if PADATT:
        pad_until(a, PADATT)
    U = UA
    assert U == 16
    a(f"s_mov_b32 s27, {64 // U - 1}")
    a("s_mov_b32 s77, 2")
    a(f"v_mov_b32 v46, {LDS_SYNC + 12}")
    a.raw(".p2align 6")
    a.label("K2_LOOP")
    def exps(q, lo, hi):
        for i in range(lo, hi):
            a(f"v_exp_f32 v{P[q]+i}, v{S[q]+i}")
    def smf(q, vb, half):
        a(f"v_smfmac_f32_32x32x32_bf16 {v(O[q],16)}, {v(vb,4)}, {v(P[q]+8*half,8)}, v{IDX}")
    for u in range(U):
        b = u & 1
        a(f"{MF} {v(S[1],16)}, {v(KB[b],4)}, {v(Q[1],4)}, {v(C[1],16)}")
        if u == 8:
            a("s_bitcmp1_b32 s75, s77")
            a("s_cbranch_scc0 K2_KVM")
            a.label("K2_MID")
        exps(0, 0, 5)
        smf(1, VB[b ^ 1][1], 1)
        if u == 8:
            a("s_add_u32 s77, s77, 4")
            a("s_min_u32 s77, s77, 14")
        a(f"ds_read_b128 {v(VB[b^1][0],4)}, v{VV0} offset:{(u+1)*VP}")
        exps(0, 5, 11)
        smf(0, VB[b][0], 0)
        a(f"ds_read_b128 {v(VB[b^1][1],4)}, v{VV1} offset:{(u+1)*VP}")
        exps(0, 11, 16)
        a(f"{MF} {v(S[0],16)}, {v(KB[b^1],4)}, {v(Q[0],4)}, {v(C[0],16)}")
        a(f"ds_read_b128 {v(KB[b],4)}, v{VK} offset:{(u+2)*TP}")
        exps(1, 0, 5)
        smf(0, VB[b][1], 1)
        if u % 8 == 7:
            a("ds_read_b32 v47, v46")
        exps(1, 5, 11)
        smf(1, VB[b][0], 0)
        a("s_waitcnt lgkmcnt(0)")
        if u == U - 1:
            a(f"v_add_u32 v{VK}, {U*TP}, v{VK}")
            a(f"v_add_u32 v{VV0}, {U*VP}, v{VV0}")
            a(f"v_add_u32 v{VV1}, {U*VP}, v{VV1}")
        if u % 8 == 7:
            a("v_readfirstlane_b32 s75, v47")
        exps(1, 11, 16)
        if u == 7:
            mid_check = True
    a("s_bitcmp1_b32 s75, s77")
    a("s_cbranch_scc0 K2_KVW")
    a.label("K2_NEXT")
    a("s_add_u32 s77, s77, 4")
    a("s_min_u32 s77, s77, 14")
    if PROF == 9:
        a("s_memrealtime s[96:97]")
        a("s_memtime s[98:99]")
        a("s_waitcnt lgkmcnt(0)")
        for it, sl in ((3, 4), (2, 5), (1, 6)):
            a(f"s_cmp_eq_u32 s27, {it}")
            a(f"s_cselect_b32 s{80+sl}, s96, s{80+sl}")
            a(f"s_cselect_b32 s{88+sl}, s98, s{88+sl}")
    a("s_sub_u32 s27, s27, 1")
    a("s_cbranch_scc0 K2_LOOP")
    a("s_nop 1")
    smf(1, VB[(U - 1) & 1][1], 1)
    stamp(a, 5)
    stamp(a, 1, 8)
    stamp(a, 1, 13)
    a(f"v_mov_b32 v46, {LDS_SYNC + 4}")
    a("ds_read_b32 v47, v46")
    a(f"ds_read_b32 v{G[0]}, v7")
    a(f"ds_read_b32 v{G[1]}, v7 offset:128")
    a("s_lshl_b32 s24, s71, 2")
    a("s_add_u32 s24, s24, s20")
    a("s_lshl_b32 s24, s24, 5")
    a("s_add_u32 s24, s24, s70")
    a("s_lshl_b32 s25, s24, 11")
    a(f"s_add_u32 s25, s25, {WS_O}")
    a("v_mov_b32 v48, 0")
    a("v_mov_b32 v49, 0")
    a(f"v_pk_mul_f32 v[44:45], {v(O[0],2)}, v[48:49]")
    for i in range(2, 10, 2):
        a(f"v_pk_fma_f32 v[44:45], {v(O[0]+i,2)}, v[48:49], v[44:45]")
    for i in range(0, 10, 2):
        a(f"v_pk_fma_f32 v[44:45], {v(O[1]+i,2)}, v[48:49], v[44:45]")
    a("v_cmp_u_f32 vcc, v44, v45")
    a("s_nop 1")
    a("s_cmp_eq_u64 vcc, 0")
    a("s_cbranch_scc0 K2_FB")
    a.label("K2_FIN")
    for q in range(2):
        a(f"v_rcp_f32 v{48+q}, v{O[q]+8}")
    a(f"s_mov_b32 s74, {SPIN*8}")
    a.label("K2_GW")
    a("s_waitcnt lgkmcnt(0)")
    a("v_readfirstlane_b32 s75, v47")
    a("s_sub_u32 s74, s74, 1")
    a("s_cmp_eq_u32 s74, 0")
    a("s_cbranch_scc1 K2_GOK")
    a("s_cmp_ge_u32 s75, 64")
    a("s_cbranch_scc1 K2_GOK")
    a("s_sleep 1")
    a("ds_read_b32 v47, v46")
    a(f"ds_read_b32 v{G[0]}, v7")
    a(f"ds_read_b32 v{G[1]}, v7 offset:128")
    a("s_branch K2_GW")
    a.label("K2_GOK")
    for q in range(2):
        a(f"v_mul_f32 v{44+2*q}, v{48+q}, v{G[q]}")
    GR = S[0]
    a(f"v_mov_b32 v{GR+8}, s68")
    a(f"v_mov_b32 v{GR+9}, s69")
    a(f"v_mov_b32 v{GR+10}, s68")
    a(f"v_mov_b32 v{GR+11}, s69")
    for q in range(2):
        for i in range(0, 8, 2):
            a(f"v_pk_mul_f32 {v(O[q]+i,2)}, {v(O[q]+i,2)}, {v(44+2*q,2)} op_sel_hi:[1,0]")
        for i in range(0, 8, 2):
            a(f"v_cvt_pk_bf16_f32 v{GR + 4*q + i//2}, v{O[q]+i}, v{O[q]+i+1}")
        a(f"buffer_store_dwordx4 {v(GR+4*q,4)}, v3, s[28:31], s25 offen offset:{q*1024}{SC}")
    if FRESH:
        a("s_lshl_b32 s24, s24, 12")
        a(f"s_add_u32 s24, s24, {WS_FR}")
        a("v_lshlrev_b32 v45, 7, v2")
    else:
        a("s_lshl_b32 s24, s24, 7")
        a(f"s_add_u32 s24, s24, {FL_C}")
    a(f"v_mov_b32 v46, {LDS_SYNC + 8}")
    a("v_mov_b32 v47, 1")
    a("s_mov_b64 exec, 1")
    a("ds_add_u32 v46, v47")
    a("s_mov_b64 exec, -1")
    NSD = min(NDEF, 11)
    if NDEF:
        srd(a, 44, 16, 0x1c0000)
        a(f"s_mul_i32 s53, s20, {DSTG}")
        a("s_add_u32 s53, s53, 0x10000")
        frag_addrs(a, "s53")
        part_addrs(a, "s53", 240)
        a(f"s_mul_i32 s32, s20, {NDEF}")
        a(f"s_add_u32 s32, s32, {4*(28-NDEF)}")
        a(f"s_mul_i32 s33, s72, {2*144*1024}")
        a("s_lshl_b32 s34, s32, 10")
        a("s_add_u32 s33, s33, s34")
        a(f"s_add_u32 s33, s33, {WS_ACT}")
        a(f"s_add_u32 s34, s33, {144*1024}")
        a("s_lshl_b32 s35, s32, 14")
        a("s_lshl_b32 s36, s73, 7")
        a("s_add_u32 s35, s35, s36")
        a("v_and_b32 v4, 31, v2")
        a("v_lshlrev_b32 v4, 2, v4")
        a(f"v_add_u32 v4, {LDS_OG}, v4")
        a("ds_read_b32 v244, v4")
        a("ds_read_b32 v246, v4 offset:128")
        a("ds_read_b32 v47, v46")
    stamp(a, 2, 13)
    a("s_waitcnt vmcnt(0)")
    stamp(a, 3, 13)
    if FULLF:
        a("s_mov_b64 exec, 0xff")
        a(f"buffer_store_dwordx4 {v(GR+8,4)}, v3, s[28:31], s24 offen sc1")
    elif FRESH:
        a("s_mov_b32 exec_hi, 0")
        a(f"buffer_store_dwordx2 {v(GR+8,2)}, v45, s[28:31], s24 offen sc1")
    elif ATFLAG:
        a("s_mov_b64 exec, 1")
        a(f"buffer_atomic_swap_x2 {v(GR+8,2)}, v3, s[28:31], s24 offen sc1")
    else:
        a("s_mov_b64 exec, 1")
        a(f"buffer_store_dwordx2 {v(GR+8,2)}, v3, s[28:31], s24 offen sc1")
    a("s_mov_b64 exec, -1")
    a("s_setprio 0")
    stamp(a, 6)
    stamp(a, 2, 8)
    if NDEF:
        lds_wait(a, 46, 47, ["s_and_b32 s75, s75, 255", "s_cmp_ge_u32 s75, 68"], first_read=False)
        a("v_mov_b32 v248, v46")
        a("v_mov_b32 v249, 256")
        DA_, DW_, DC_ = 144, 80, 16
        dq = []
        def dw(k):
            a(f"s_add_u32 m0, s53, {(k % NSD) * 2048}")
            a("s_nop 0")
            a("buffer_load_dwordx4 v10, s[44:47], s35 offen lds")
            a("buffer_load_dwordx4 v11, s[44:47], s35 offen offset:1024 lds")
            a("s_add_u32 s35, s35, 16384")
            dq.extend([k] * 2)
        def da(k):
            for t in range(2):
                a(f"buffer_load_dwordx4 {v(DA_+8*k+4*t,4)}, v3, s[28:31], s{33+t} offen offset:{(k%4)*1024}{SC}")
            if k % 4 == 3:
                a("s_add_u32 s33, s33, 4096")
                a("s_add_u32 s34, s34, 4096")
            dq.extend([k] * 2)
        def dwait(k):
            a(f"s_waitcnt vmcnt({len(dq) - 1 - max(i for i, t in enumerate(dq) if t == k)})")
        def drd(k):
            b = DW_ + 8 * (k & 1)
            for n in range(2):
                for u in range(2):
                    a(f"ds_read_b64_tr_b16 {v(b+4*n+2*u,2)}, v{12+n} offset:{(k % NSD) * 2048 + u*1024}")
        AH = min(AHD, NDEF)
        for k in range(AH):
            dw(k); da(k)
        dwait(0)
        stamp(a, 3, 8)
        drd(0)
        for k in range(NDEF):
            if k + AH < NDEF:
                dw(k + AH); da(k + AH)
            if k + 1 < NDEF:
                dwait(k + 1)
                if k + 3 == NDEF:
                    a("s_mov_b64 exec, 1")
                    a("ds_add_u32 v248, v249")
                    a("s_mov_b64 exec, -1")
                drd(k + 1)
                a("s_waitcnt lgkmcnt(4)")
            else:
                a("s_waitcnt lgkmcnt(0)")
            b = DW_ + 8 * (k & 1)
            for n in range(2):
                for t in range(2):
                    acc = DC_ + (n * 2 + t) * 16
                    cin = "0" if k == 0 else v(acc, 16)
                    a(f"{MF} {v(acc,16)}, {v(b+4*n,4)}, {v(DA_+8*k+4*t,4)}, {cin}")
        stamp(a, 4, 8)
        a("s_nop 7")
        for n in range(2):
            for t in range(2):
                acc = DC_ + (n * 2 + t) * 16
                if n + t == 0:
                    a("s_nop 1")
                for j in range(0, 16, 2):
                    a(f"v_pk_mul_f32 {v(acc+j,2)}, {v(acc+j,2)}, {v(244+2*t,2)} op_sel_hi:[1,0]")
                for g in range(4):
                    a(f"ds_write_b128 v{240+g}, {v(acc+4*g,4)} offset:{t*8192 + n*128}")
        stamp(a, 5, 8)
    a("s_branch K3_REDUCE")
    a.label("K2_FB")
    a("s_cmp_lg_u32 s26, 0")
    a("s_cbranch_scc1 K2_FIN")
    a("s_waitcnt lgkmcnt(0)")
    a("s_mov_b32 s26, 100")
    vaddr_init()
    zero_state()
    a("v_mov_b32 v44, 0xff800000")
    a("v_mov_b32 v45, 0xff800000")
    a("v_mov_b32 v43, v3")
    a("s_mov_b32 s27, 64")
    a.label("K2_MAXLOOP")
    a(f"ds_read_b128 {v(KB[0],4)}, v43")
    a(f"v_add_u32 v43, {TP}, v43")
    a("s_waitcnt lgkmcnt(0)")
    for q in range(2):
        a(f"{MF} {v(S[q],16)}, {v(KB[0],4)}, {v(Q[q],4)}, 0")
    a("s_nop 7")
    a("s_nop 7")
    for q in range(2):
        maxtree(S[q], 44 + q, acc=True)
    a("s_sub_u32 s27, s27, 1")
    a("s_cmp_lg_u32 s27, 0")
    a("s_cbranch_scc1 K2_MAXLOOP")
    a("s_branch K2_SETMAX")
    for lab, back in (("K2_KVW", "K2_NEXT"), ("K2_KVM", "K2_MID")):
        a.label(lab)
        lds_wait(a, 46, 47, ["s_bitcmp1_b32 s75, s77"])
        a(f"s_branch {back}")

    a.label("K2_GEMM")
    a(f"v_mul_u32_u24 v36, {VP}, v2")
    a(f"v_add_u32 v36, {LDS_V + 1024}, v36")
    for i in range(4):
        a(f"v_mov_b32 v{40+i}, 0x3f803f80")
        a(f"v_mov_b32 v{44+i}, 0")
    ND, NW = 28 - NDEF, 8
    NG = ND // 4
    NS = 3
    srd(a, 44, 16, 0x1c0000)
    srd(a, 48, 8, 0x80000)
    if FMAP:
        a("s_and_b32 s42, s72, 3")
        a("s_lshl_b32 s42, s42, 1")
        a("s_add_u32 s42, s42, s73")
    else:
        a("s_lshr_b32 s42, s2, 3")
        a("s_and_b32 s43, s42, 7")
        a("s_lshr_b32 s42, s42, 3")
        a("s_lshl_b32 s42, s42, 1")
        a("s_add_u32 s42, s42, s43")
    for _ in range(-(-14 // NG) - 1):
        a(f"s_cmp_ge_u32 s42, {NG}")
        a(f"s_cselect_b32 s43, {NG}, 0")
        a("s_sub_u32 s42, s42, s43")
    if not ROT:
        a("s_mov_b32 s42, 0")
    a("s_mov_b32 s52, s42")
    a(f"s_mul_i32 s32, s23, {ND}")
    a("s_lshl_b32 s43, s42, 2")
    a("s_add_u32 s32, s32, s43")
    a(f"s_mul_i32 s33, s72, {2*144*1024}")
    a(f"s_add_u32 s33, s33, {WS_ACT}")
    a("s_lshl_b32 s43, s32, 10")
    a("s_add_u32 s33, s33, s43")
    a(f"s_add_u32 s34, s33, {144*1024}")
    a("s_lshl_b32 s43, s73, 7")
    a("s_lshl_b32 s35, s32, 14")
    a("s_add_u32 s35, s35, s43")
    a("s_lshl_b32 s39, s23, 17")
    a("s_add_u32 s39, s39, s43")
    a(f"s_mul_i32 s53, s23, {NS*2048}")
    a(f"s_add_u32 s53, s53, {LDS_WS}")
    frag_addrs(a, "s53")
    GA = 16
    FR = 80
    D = 8
    queue = []
    def ld(dst, sr, k, tag):
        a(f"buffer_load_dwordx4 {v(dst,4)}, v3, s[28:31], s{sr} offen offset:{(k%4)*1024}{SC}")
        queue.append(tag)
    def aloads(k):
        b = FR + (k % D) * 16
        ld(b + 4, 33, k, ("a", k)); ld(b + 12, 34, k, ("a", k))
        if k % 4 == 3:
            a("s_add_u32 s42, s42, 1")
            a(f"s_cmp_eq_u32 s42, {NG}")
            a("s_movk_i32 s43, 4096")
            a(f"s_cselect_b32 s43, {(-(NG-1)*4096) & 0xffffffff:#x}, s43")
            a("s_cselect_b32 s42, 0, s42")
            for sr in (33, 34):
                a(f"s_add_u32 s{sr}, s{sr}, s43")
    def wloads(k):
        a(f"s_add_u32 m0, s53, {(k % NS) * 2048}")
        sr, rs = (35, 44) if k < ND else (39, 48)
        a("s_nop 0")
        a(f"buffer_load_dwordx4 v10, s[{rs}:{rs+3}], s{sr} offen lds")
        a(f"buffer_load_dwordx4 v11, s[{rs}:{rs+3}], s{sr} offen offset:1024 lds")
        queue.extend([("w", k)] * 2)
        a(f"s_add_u32 s{sr}, s{sr}, 16384")
        if k < ND and k % 4 == 3:
            a("s_add_u32 s52, s52, 1")
            a(f"s_cmp_eq_u32 s52, {NG}")
            a(f"s_cselect_b32 s43, {(-ND*16384) & 0xffffffff:#x}, 0")
            a("s_cselect_b32 s52, 0, s52")
            a("s_add_u32 s35, s35, s43")
    def waitfor(*tags):
        n = len(queue) - 1 - max(i for i, t in enumerate(queue) if t in tags)
        a(f"s_waitcnt vmcnt({n})")
    def wreads(k):
        b = FR + (k % D) * 16
        for n in range(2):
            for u in range(2):
                a(f"ds_read_b64_tr_b16 {v(b+8*n+2*u,2)}, v{12+n} offset:{(k % NS) * 2048 + u*1024}")
    def mm(k):
        b = FR + (k % D) * 16
        for n in range(2):
            for t in range(2):
                acc = GA + (n * 2 + t) * 16
                cin = "0" if k == 0 else v(acc, 16)
                a(f"{MF} {v(acc,16)}, {v(b+8*n,4)}, {v(b+4+8*t,4)}, {cin}")
    stamp(a, 3)
    a(f"v_mov_b32 v22, {LDS_SYNC + 16}")
    lds_wait(a, 22, 23, ["s_bitcmp1_b32 s75, 2"])
    a("ds_write_b128 v36, v[40:43]")
    a("ds_write_b128 v36, v[44:47] offset:16")
    a(f"ds_write_b128 v36, v[40:43] offset:{2*VP}")
    a(f"ds_write_b128 v36, v[44:47] offset:{2*VP+16}")
    if KVV == 1:
        kv_loads(3, 5)
    stamp(a, 4, 14)
    a(f"s_waitcnt vmcnt({4 if KVV == 1 else 0}) lgkmcnt(0)")
    stamp(a, 5, 14)
    if KVV == 3:
        kv_loads(3, 5)
    a("s_barrier                              ; X1")
    stamp(a, 6, 14)
    if KVV == 2:
        kv_loads(3, 5)
    kv_loads(5, 7)
    a("s_barrier                              ; X2")
    a("s_cmp_lg_u32 s23, 1")
    a("s_cbranch_scc1 K2_NOB1")
    a("s_lshl_b32 s37, s21, 4")
    a("s_add_u32 s37, s37, s22")
    a("s_lshl_b32 s37, s37, 7")
    a(f"s_add_u32 s37, s37, {FL_B1}")
    flag_store(a, "s37", 16)
    a.label("K2_NOB1")
    a(f"v_mov_b32 v34, {LDS_SYNC + 12}")
    def arrived(stage, n):
        a(f"v_mov_b32 v35, {1 << (4 * stage)}")
        a(f"s_waitcnt vmcnt({n})")
        a("s_mov_b64 exec, 1")
        a("ds_add_u32 v34, v35")
        a("s_mov_b64 exec, -1")
    kv_loads(7, 9)
    arrived(0, 8)
    arrived(1, 4)
    kv_loads(9, 12)
    arrived(2, 6)
    kv_loads(12, 16)
    srd(a, 44, 16, 0x1c0000)
    arrived(3, 0)
    a("s_lshl_b32 s55, s76, 4")
    a(f"s_add_u32 s55, s55, {WS_G}")
    a("s_mov_b32 exec_lo, 1")
    a("s_mov_b32 exec_hi, 1")
    a(f"buffer_store_dwordx2 v[68:69], v70, s[28:31], s55 offen{SC}")
    a("s_mov_b64 exec, -1")
    if WARMW and FMAP:
        a("s_lshr_b32 s54, s2, 3")
        a("s_lshl_b32 s54, s54, 2")
        a("s_add_u32 s54, s54, s23")
        a("s_mul_i32 s55, s54, 14336")
        a("v_min_u32 v14, 55, v2")
        a("v_lshlrev_b32 v14, 7, v14")
        a("buffer_load_dword v15, v14, s[44:47], s55 offen")
        a("s_add_u32 s55, s55, 7168")
        a("buffer_load_dword v15, v14, s[44:47], s55 offen")
        a("s_lshl_b32 s55, s54, 12")
        a("v_and_b32 v14, 31, v2")
        a("v_lshlrev_b32 v14, 7, v14")
        a("buffer_load_dword v15, v14, s[48:51], s55 offen")
    elif WARMW:
        a("s_lshr_b32 s54, s2, 3")
        a("s_and_b32 s54, s54, 7")
        a("s_lshl_b32 s55, s54, 2")
        a("s_add_u32 s55, s55, s23")
        a("s_mul_i32 s55, s55, 57344")
        a("s_add_u32 s55, s55, s43")
        a("v_min_u32 v14, 55, v2")
        a("v_lshlrev_b32 v14, 10, v14")
        a("buffer_load_dword v15, v14, s[44:47], s55 offen")
        a("s_lshl_b32 s55, s54, 2")
        a("s_add_u32 s55, s55, s23")
        a("s_lshl_b32 s55, s55, 14")
        a("s_add_u32 s55, s55, s43")
        a("v_and_b32 v14, 15, v2")
        a("v_lshlrev_b32 v14, 10, v14")
        a("buffer_load_dword v15, v14, s[48:51], s55 offen")
    for k in range(NS):
        wloads(k)
    a("s_setprio 3")
    a("v_and_b32 v6, 15, v2")
    a("v_lshlrev_b32 v6, 7, v6")
    a("s_lshr_b32 s24, s72, 1")
    a("s_lshl_b32 s24, s24, 11")
    a(f"s_add_u32 s24, s24, {FL_B1}")
    poll_shared(a, 2, [("s24", 6, 8, 4)], 20, lslp=4)
    a("v_and_b32 v6, 31, v2")
    a("v_lshlrev_b32 v6, 3, v6")
    a("v_lshlrev_b32 v7, 3, v2")
    a("s_lshl_b32 s54, s72, 9")
    a(f"s_add_u32 s54, s54, {WS_G}")
    a("s_lshl_b32 s55, s71, 2")
    a("s_add_u32 s55, s55, s23")
    a("s_lshl_b32 s55, s55, 9")
    a(f"s_add_u32 s55, s55, {WS_G}")
    a(f"s_mov_b32 s74, {SPIN}")
    a.label("K2_GL")
    a(f"buffer_load_dwordx2 v[240:241], v6, s[28:31], s54 offen{SC}")
    a(f"buffer_load_dwordx2 v[242:243], v6, s[28:31], s54 offen offset:256{SC}")
    a(f"buffer_load_dwordx2 v[244:245], v7, s[28:31], s55 offen{SC}")
    a("s_waitcnt vmcnt(0)")
    a("v_xor_b32 v8, s68, v241")
    a("v_xor_b32 v9, s68, v243")
    a("v_xor_b32 v14, s68, v245")
    a("v_or3_b32 v8, v8, v9, v14")
    a("v_cmp_ne_u32 vcc, 0, v8")
    a("s_sub_u32 s74, s74, 1")
    a("s_cbranch_scc1 K2_GD")
    a("s_cmp_eq_u64 vcc, 0")
    a("s_cbranch_scc1 K2_GD")
    a("s_sleep 4")
    a("s_branch K2_GL")
    a.label("K2_GD")
    a("s_lshl_b32 s55, s23, 8")
    a(f"s_add_u32 s55, s55, {LDS_GQ}")
    a("v_lshrrev_b32 v7, 1, v7")
    a("v_add_u32 v7, s55, v7")
    a("ds_write_b32 v7, v244")
    a("v_sub_f32 v240, 1.0, v240")
    a("v_sub_f32 v242, 1.0, v242")
    a("v_lshrrev_b32 v6, 1, v6")
    a(f"v_add_u32 v6, {LDS_OG}, v6")
    a("ds_write_b32 v6, v240")
    a("ds_write_b32 v6, v242 offset:128")
    a(f"v_mov_b32 v8, {LDS_SYNC + 4}")
    a("v_mov_b32 v9, 16")
    a("s_waitcnt lgkmcnt(0)")
    a("s_mov_b64 exec, 1")
    a("ds_add_u32 v8, v9")
    a("s_mov_b64 exec, -1")
    stamp(a, 4)
    DA = 4
    a("s_setprio 0")
    for k in range(DA):
        aloads(k)
    for k in range(ND + NW):
        waitfor(("w", k), ("a", k))
        wreads(k)
        a("s_waitcnt lgkmcnt(0)")
        if k + NS < ND + NW:
            wloads(k + NS)
        if k + DA < ND:
            aloads(k + DA)
        if k < ND:
            mm(k)
    a("s_setprio 3")
    if NDEF and WARMD:
        assert FMAP
        a(f"s_mul_i32 s33, s72, {2*144*1024}")
        a("s_lshr_b32 s34, s23, 1")
        a(f"s_mul_i32 s34, s34, {144*1024}")
        a("s_add_u32 s33, s33, s34")
        a("s_lshl_b32 s34, s73, 1")
        a("s_and_b32 s35, s23, 1")
        a("s_add_u32 s34, s34, s35")
        a(f"s_mul_i32 s34, s34, {NDEF*256}")
        a("s_add_u32 s33, s33, s34")
        a(f"s_add_u32 s33, s33, {WS_ACT + 4*ND*1024}")
        a(f"v_min_u32 v14, {2*NDEF-1}, v2")
        a("v_lshlrev_b32 v14, 7, v14")
        a(f"buffer_load_dword v15, v14, s[28:31], s33 offen{SC}")
        a("s_and_b32 s34, s72, 3")
        a("s_lshl_b32 s34, s34, 2")
        a("s_add_u32 s34, s34, s23")
        a(f"s_mul_i32 s34, s34, {NDEF*4096}")
        a("s_lshl_b32 s35, s73, 7")
        a("s_add_u32 s34, s34, s35")
        a(f"s_add_u32 s34, s34, {4*ND*16384}")
        a(f"v_min_u32 v14, {4*NDEF-1}, v2")
        a("v_lshlrev_b32 v14, 10, v14")
        a("buffer_load_dword v15, v14, s[44:47], s34 offen")
    a("s_nop 7")
    a("s_nop 7")
    for n in range(2):
        for t in range(2):
            acc = GA + (n * 2 + t) * 16
            for j in range(16):
                a(f"v_mul_f32 v{acc+j}, v{acc+j}, v{240+2*t}")
    a("s_lshl_b32 s32, s23, 14")
    part_addrs(a, "s32", 212)
    a("s_lshl_b32 s24, s72, 2")
    a("s_add_u32 s24, s24, s23")
    a("s_lshl_b32 s24, s24, 14")
    a(f"s_add_u32 s24, s24, {WS_O}")
    a("v_and_b32 v6, 7, v2")
    a("v_lshlrev_b32 v6, 7, v6")
    a("s_lshl_b32 s26, s72, 12")
    a("s_lshl_b32 s25, s23, 10")
    a("s_add_u32 s26, s26, s25")
    if FRESH:
        a("v_lshlrev_b32 v6, 5, v6")
        a("s_lshl_b32 s27, s26, 5")
        a(f"s_add_u32 s27, s27, {WS_FR}")
    a(f"s_add_u32 s26, s26, {FL_C}")
    a(f"v_mov_b32 v11, {LDS_SYNC + 8}")
    a("v_mov_b32 v10, 16")
    a("s_mov_b64 exec, 1")
    a("ds_add_u32 v11, v10")
    a("s_mov_b64 exec, -1")
    a("s_mov_b32 s54, 0")
    a(f"s_mov_b32 s74, {SPIN}")
    stamp(a, 5)
    stamp(a, 1, 8)
    def c_poll(r=8):
        if FRESH:
            a("s_memrealtime s[58:59]")
        a(f"v_mov_b32 v{r}, 0")
        a(f"v_mov_b32 v{r+1}, 0")
        if FRESH:
            a("s_waitcnt lgkmcnt(0)")
            a(f"s_bfe_u32 s58, s58, {(5 << 16) | FRESH:#x}")
            a("s_lshl_b32 s58, s58, 7")
            a("s_add_u32 s26, s27, s58")
        if MASKP:
            a("s_xor_b32 exec_lo, s54, 0xff")
            a("s_mov_b32 exec_hi, 0")
        else:
            a("s_mov_b64 exec, 0xff")
        if ATPOLL:
            a(f"buffer_atomic_or_x2 {v(r,2)}, v6, s[28:31], s26 offen sc0 sc1")
        else:
            a(f"buffer_load_dwordx2 {v(r,2)}, v6, s[28:31], s26 offen sc1")
        a("s_mov_b64 exec, -1")
    def pause():
        if NDEF and PAUSE:
            lab, done = a.newlabel("PZ"), a.newlabel("PZD")
            a(f"s_mov_b32 s76, {SPIN}")
            a.label(lab)
            a("ds_read_b32 v10, v11")
            a("s_waitcnt lgkmcnt(0)")
            a("v_readfirstlane_b32 s75, v10")
            a("s_sub_u32 s76, s76, 1")
            a(f"s_cbranch_scc1 {done}")
            a("s_cmp_ge_u32 s75, 1024")
            a(f"s_cbranch_scc1 {done}")
            a("s_and_b32 s75, s75, 15")
            a(f"s_cbranch_scc0 {done}")
            a("s_sleep 1")
            a(f"s_branch {lab}")
            a.label(done)
    a.label("K3_POLL")
    pause()
    c_poll()
    a.label("K3_ROUND")
    a("s_waitcnt vmcnt(0)")
    a("v_cmp_eq_u64 vcc, s[68:69], v[8:9]")
    a("s_sub_u32 s74, s74, 1")
    a("s_cselect_b32 s55, 0xff, vcc_lo")
    a("s_andn2_b32 s55, s55, s54")
    a("s_cbranch_scc1 K3_SOME")
    a("ds_read_b32 v10, v11")
    a(f"s_sleep {TSLP}")
    a("s_waitcnt lgkmcnt(0)")
    a("v_readfirstlane_b32 s75, v10")
    a("s_and_b32 s75, s75, 15")
    a("s_cbranch_scc1 " + ("K3_FAST" if PIPE > 1 else "K3_POLL"))
    a(f"s_sleep {PSLOW}")
    a("s_branch K3_POLL")
    if PIPE > 1:
        PR = [216 + 2 * i for i in range(PIPE)]
        a.label("K3_FAST")
        for i in range(PIPE - 1):
            c_poll(PR[i])
            a(f"s_sleep {PDEL}")
        a.label("K3_FL")
        for i in range(PIPE):
            c_poll(PR[(i + PIPE - 1) % PIPE])
            a(f"s_waitcnt vmcnt({PIPE - 1})")
            a(f"v_cmp_eq_u64 vcc, s[68:69], {v(PR[i],2)}")
            a("s_sub_u32 s74, s74, 1")
            a("s_cselect_b32 s55, 0xff, vcc_lo")
            a("s_andn2_b32 s55, s55, s54")
            a("s_cbranch_scc1 K3_SOME")
        a("s_branch K3_FL")
    a.label("K3_SOME")
    stamp(a, 1, 13)
    if PROF == 13:
        a("s_mov_b32 s89, s55")
    pause()
    a("s_or_b32 s54, s54, s55")
    for kk in range(NW):
        b = FR + ((ND + kk) % D) * 16
        a(f"s_bitcmp1_b32 s55, {kk}")
        a(f"s_cbranch_scc0 K3_L{kk}")
        a(f"s_add_u32 s25, s24, {kk*2048}")
        a(f"buffer_load_dwordx4 {v(b+4,4)}, v3, s[28:31], s25 offen{SC}")
        a(f"buffer_load_dwordx4 {v(b+12,4)}, v3, s[28:31], s25 offen offset:1024{SC}")
        a.label(f"K3_L{kk}")
    a("s_cmp_eq_u32 s54, 0xff")
    a("s_cbranch_scc1 K3_LAST")
    c_poll()
    a.label("K3_LAST")
    a("ds_read_b32 v10, v11")
    a("s_waitcnt vmcnt(0)")
    stamp(a, 2, 13)
    for kk in range(NW):
        a(f"s_bitcmp1_b32 s55, {kk}")
        a(f"s_cbranch_scc0 K3_C{kk}")
        mm(ND + kk)
        a.label(f"K3_C{kk}")
    a("s_cmp_lg_u32 s54, 0xff")
    a("s_cbranch_scc1 K3_ROUND")
    stamp(a, 6)
    stamp(a, 2, 8)
    stamp(a, 3, 13)
    lds_wait(a, 11, 10, ["s_bitcmp1_b32 s75, 2"], first_read=False)
    for i in range(3, 6):
        stamp(a, i, 8)
    stamp(a, 4, 13)
    a("s_nop 7")
    part_write(a, GA, 212)
    stamp(a, 5, 13)
    a.label("K3_REDUCE")
    srd(a, 24, 64, 0x200000)
    a("s_lshl_b32 s32, s20, 6")
    a("v_add_u32 v0, s32, v2                  ; tid")
    a("v_lshrrev_b32 v7, 3, v0                ; token")
    a("v_and_b32 v5, 7, v0")
    a("v_lshlrev_b32 v6, 1, v5")
    a("v_and_b32 v8, 7, v7")
    a("v_xor_b32 v6, v6, v8")
    a("v_lshlrev_b32 v6, 4, v6")
    a("v_lshl_add_u32 v6, v7, 8, v6")
    a("v_xor_b32 v8, 16, v6")
    a("v_add_u32 v9, 0x10000, v6")
    a("v_add_u32 v10, 0x10000, v8")
    a("v_lshlrev_b32 v7, 10, v7")
    a("v_lshl_add_u32 v7, v5, 4, v7")
    a("s_lshl_b32 s32, s72, 16")
    a("s_lshl_b32 s33, s73, 7")
    a("s_add_u32 s32, s32, s33")
    a("s_waitcnt lgkmcnt(0)")
    a("s_barrier                              ; Y1")
    stamp(a, 6, 8)
    stamp(a, 6, 13)
    NP = 8 if NDEF else 4
    RB = 96
    for w in range(NP):
        off = w * 16384 if w < 4 else (w - 4) * DSTG
        r0, r1 = (6, 8) if w < 4 else (9, 10)
        if off > 65535:
            a("v_add_u32 v9, 0x8000, v9")
            a("v_add_u32 v10, 0x8000, v10")
            off -= 0x8000
        a(f"ds_read_b128 {v(RB+8*w,4)}, v{r0} offset:{off}")
        a(f"ds_read_b128 {v(RB+4+8*w,4)}, v{r1} offset:{off}")
    for w in range(1, NP):
        a(f"s_waitcnt lgkmcnt({2*(NP-1-w)})")
        for j in range(0, 8, 2):
            a(f"v_pk_add_f32 {v(RB+j,2)}, {v(RB+j,2)}, {v(RB+8*w+j,2)}")
    for j in range(0, 8, 2):
        a(f"v_cvt_pk_bf16_f32 v{16+j//2}, v{RB+j}, v{RB+j+1}")
    a("buffer_store_dwordx4 v[16:19], v7, s[24:27], s32 offen" + (" " + OUTSC if OUTSC else ""))
    if PADEND:
        pad_until(a, PADEND)
    stamp_flush(a, 8)
    a.label("K_EXIT")
    a("s_endpgm")
    a.label("K_END")

def main():
    hdr = open("cdna_kernels/" + NAME + ".s.ref").read().split("\n")
    top = [l for l in hdr if l.startswith(";") and "@launch" not in l]
    out = "\n".join(top) + "\n"
    out += f"; @launch grid=(256,1,1) block=(512,1,1) lds={LDS_TOTAL}\n"
    out += '.amdgcn_target "amdgcn-amd-amdhsa--gfx950"\n.text\n'
    a = Asm()
    gen(a)
    out += a.text()
    out += '.section .rodata,"a"\n'
    out += kernel_desc(KNAME, 256, 102)
    path = sys.argv[1] if len(sys.argv) > 1 else "cdna_kernels/" + NAME + ".s"
    open(path, "w").write(out)

main()
```

```python
import sys, math, os
from asmlib import *

NAME = "gated_mix__softmax_full_mha__geglu_ffn__prompt"
KNAME = NAME + "_kernel"
LOG2E = 1.4426950408889634
def env(n, d): return int(os.environ.get(n, str(d)))
PROF = env("PROF", 0)
ROT = env("ROT", 1)
TAGPOS = env("TAGPOS", 0)
PADEND = env("PADEND", 0)
PADATT = env("PADATT", 0)
DBGWG = env("DBGWG", -1)
TLBW = env("TLBW", 0)
PFW = env("PFW", 0)
PFI = env("PFI", 1)
PFX = env("PFX", 0)
KVROT = env("KVROT", 1)
AFLAG = env("AFLAG", 10)
PFC = env("PFC", -1)
ONEP = env("ONEP", 0)
FMAP = env("FMAP", 0)
NOTAG = env("NOTAG", 0)
ROT1 = env("ROT1", 2)
OUTSC = os.environ.get("OUTSC", "sc1")
GPK = env("GPK", 0)
UA = env("UA", 16)
PRE = env("PRE", 2)
QLD = env("QLD", 4)
WARMW = env("WARMW", 0)
ROT2 = env("ROT2", 1)
NDEF = env("NDEF", 0)
WARMD = env("WARMD", 1)
PSLOW = env("PSLOW", 16)
PAUSE = env("PAUSE", 1)
KVV = env("KVV", 2)
FASTX = env("FASTX", 0)
FULLF = env("FULLF", 0)
PIPE = env("PIPE", 1)
ATFLAG = env("ATFLAG", 1)
FRESH = env("FRESH", 0)
WS_FR = 0x2000000
PDEL = env("PDEL", 4)
MASKP = env("MASKP", 1)
SPAT = env("SPAT", 3)
LPRIO = env("LPRIO", 0)
FA0 = env("FA0", 13)
AFLAGQ = env("AFLAGQ", 11)
CAP = env("CAP", 20)
QS0 = env("QS0", 6)
QSD = env("QSD", 0)
TMODE = env("TMODE", 1)
GPRIO = env("GPRIO", 3)
DAH = env("DAH", 4)
GLD = env("GLD", 7)
GMA = env("GMA", 9)
FDEL = env("FDEL", 0)
FSLP = env("FSLP", 1)
QCAP = env("QCAP", 40)
KVA = env("KVA", 0)
NFILL = env("NFILL", 4)
AHD = env("AHD", 6)
ATPOLL = env("ATPOLL", 1)
HINTW = env("HINTW", 0)
TSLP = env("TSLP", 2)
SPF = env("SPF", 0)
CODEPF = env("CODEPF", 1)
SLP = env("SLP", 4)

WS_Q = 0x0
WS_K = 0x200000
WS_V = 0x400000
WS_ACT = 0x600000
WS_O = 0xF00000
WS_G = 0x1240000
WS_FL = 0x1280000
FL_A = WS_FL
FL_B1 = WS_FL + 0x8000
FL_Q = WS_FL + 0x10000 - 12 * 2048
FL_B2 = WS_FL + 0x10000
FL_C = WS_FL + 0x20000
WS_STAMP = 0x1800000
WS_SIZE = 0x2800000

XS = 16384
WB = 5 * XS
WSL = 24576
LDS_GQ = 162176
LDS_OG = 163200
LDS_TAG = 163584
LDS_SYNC = LDS_TAG + 8
LDS_TOTAL = 163840
TP = 2080
LDS_V = 1024
VP = TP
LDS_WS = 137472
DSTG = 22528
LDS_Q = WB + 2 * WSL + 16384
LDS_PARK = WB + 3 * WSL
XPOS = [3, 2, 0, 1, 4, 3, 2, 0,  0, 2, 3, 4, 1, 2, 3, 4]
def xslot(c):
    return XPOS[c] * XS
def wslot(c):
    return WB + ((c % 3) * WSL if c < 8 else ((c + 3) % 4) * 16384)

SC = " sc1"
SPIN = 200000
MF = "v_mfma_f32_32x32x16_bf16"

def srd(a, d, base, nbytes):
    a(f"s_mov_b32 s{d}, s{base}")
    a(f"s_mov_b32 s{d+1}, s{base+1}")
    a(f"s_mov_b32 s{d+2}, {nbytes:#x}")
    a(f"s_mov_b32 s{d+3}, 0x20000")

def stamp(a, i, lvl=1):
    if PROF and (PROF == lvl or i in (0, 7)):
        a("s_memrealtime s[96:97]")
        a("s_memtime s[98:99]")
        a("s_waitcnt lgkmcnt(0)")
        a(f"s_mov_b32 s{80+i}, s96")
        a(f"s_mov_b32 s{88+i}, s98")

def stamp_flush(a, n):
    if PROF:
        a("s_waitcnt vmcnt(0)")
        stamp(a, n - 1)
        a("s_lshl_b32 s78, s2, 4")
        a("s_add_u32 s78, s78, s20")
        a("s_lshl_b32 s78, s78, 6")
        a(f"s_add_u32 s78, s78, {WS_STAMP}")
        a("v_mov_b32 v1, 0")
        for i in range(n):
            a(f"v_mov_b32 v0, s{80+i}")
            a(f"buffer_store_dword v0, v1, s[28:31], s78 offen offset:{4*i}")
            a("s_nop 1")
            a(f"v_mov_b32 v0, s{88+i}")
            a(f"buffer_store_dword v0, v1, s[28:31], s78 offen offset:{32+4*i}")
            a("s_nop 1")
        a("s_waitcnt vmcnt(0)")
        if DBGWG >= 0:
            a(f"s_cmp_lg_u32 s2, {DBGWG}")
            a("s_cbranch_scc1 DBG_SKIP")
            a("s_and_b32 s78, s20, 3")
            a("s_cmp_lg_u32 s78, 0")
            a("s_cbranch_scc1 DBG_SKIP")
            a("s_mul_i32 s78, s20, 7")
            a("v_mov_b32 v1, s78")
            for i in range(1, n):
                a(f"s_sub_u32 s79, s{80+i}, s80")
                a("v_mov_b32 v0, s79")
                a(f"global_store_dword v1, v0, s[66:67] offset:{4+4*i}")
                a("s_nop 1")
            a("s_waitcnt vmcnt(0)")
            a.label("DBG_SKIP")

def pad_until(a, ticks):
    lab = a.newlabel("PAD")
    a.label(lab)
    a("s_memrealtime s[96:97]")
    a("s_waitcnt lgkmcnt(0)")
    a("s_sub_u32 s96, s96, s68")
    a(f"s_cmp_lt_u32 s96, {ticks}")
    a(f"s_cbranch_scc1 {lab}")

def flag_store(a, soff, vtmp):
    a(f"v_mov_b32 v{vtmp}, s68")
    a(f"v_mov_b32 v{vtmp+1}, s69")
    a(f"v_mov_b32 v{vtmp+2}, 0")
    a("s_mov_b64 exec, 1")
    a(f"buffer_store_dwordx2 {v(vtmp,2)}, v{vtmp+2}, s[28:31], {soff} offen sc1")
    a("s_mov_b64 exec, -1")

def poll(a, soff, voff, vtmp, slp=None):
    lab = a.newlabel("POLL")
    done = a.newlabel("POLLD")
    a(f"s_mov_b32 s74, {SPIN}")
    a.label(lab)
    a(f"buffer_load_dwordx2 {v(vtmp,2)}, v{voff}, s[28:31], {soff} offen sc1")
    a("s_waitcnt vmcnt(0)")
    a(f"v_xor_b32 v{vtmp}, s68, v{vtmp}")
    a(f"v_xor_b32 v{vtmp+1}, s69, v{vtmp+1}")
    a(f"v_or_b32 v{vtmp}, v{vtmp}, v{vtmp+1}")
    a(f"v_cmp_ne_u32 vcc, 0, v{vtmp}")
    a("s_sub_u32 s74, s74, 1")
    a("s_cmp_eq_u32 s74, 0")
    a(f"s_cbranch_scc1 {done}")
    a("s_cmp_eq_u64 vcc, 0")
    a(f"s_cbranch_scc1 {done}")
    a(f"s_sleep {SLP if slp is None else slp}")
    a(f"s_branch {lab}")
    a.label(done)

def poll_shared(a, stage, polls, vtmp, lslp=1, extra=None):
    other = a.newlabel("PSO")
    done = a.newlabel("PSD")
    a(f"v_mov_b32 v{vtmp+3}, {LDS_SYNC}")
    a("s_cmp_lg_u32 s23, 0")
    a(f"s_cbranch_scc1 {other}")
    for p in polls:
        poll(a, *p)
    if extra:
        extra()
    a(f"v_mov_b32 v{vtmp}, {stage}")
    a(f"ds_write_b32 v{vtmp+3}, v{vtmp}")
    a(f"s_branch {done}")
    a.label(other)
    a(f"s_mov_b32 s74, {SPIN*8}")
    lab = a.newlabel("PSL")
    a.label(lab)
    a(f"ds_read_b32 v{vtmp}, v{vtmp+3}")
    a("s_waitcnt lgkmcnt(0)")
    a(f"v_readfirstlane_b32 s75, v{vtmp}")
    a("s_sub_u32 s74, s74, 1")
    a("s_cmp_eq_u32 s74, 0")
    a(f"s_cbranch_scc1 {done}")
    a(f"s_cmp_ge_u32 s75, {stage}")
    a(f"s_cbranch_scc1 {done}")
    a(f"s_sleep {lslp}")
    a(f"s_branch {lab}")
    a.label(done)

def cvt_tile(a, acc, dst, lo=0, hi=16):
    for i in range(lo, hi, 2):
        a(f"v_cvt_pk_bf16_f32 v{dst + (i - lo)//2}, v{acc+i}, v{acc+i+1}")

def frag_addrs(a, sbase, R=10):
    a("v_lshrrev_b32 v4, 3, v2")
    a("v_and_b32 v5, 7, v2")
    a("v_bfe_u32 v7, v2, 4, 1")
    a("v_lshlrev_b32 v7, 2, v7")
    a("v_xor_b32 v5, v5, v7")
    a("v_lshlrev_b32 v5, 4, v5")
    a(f"v_lshl_add_u32 v{R}, v4, 10, v5")
    a(f"v_add_u32 v{R+1}, 7168, v{R}")
    a("v_bfe_u32 v4, v2, 2, 2")
    a("v_lshrrev_b32 v5, 5, v2")
    a("v_lshl_add_u32 v5, v5, 2, v4")
    a("v_lshlrev_b32 v5, 7, v5")
    a("v_lshrrev_b32 v4, 1, v4")
    a("v_lshl_add_u32 v5, v4, 6, v5")
    a("v_bfe_u32 v4, v2, 4, 1")
    a("v_lshl_add_u32 v5, v4, 5, v5")
    a("v_and_b32 v4, 3, v2")
    a("v_lshl_add_u32 v5, v4, 3, v5")
    a(f"v_xor_b32 v{R+3}, 64, v5")
    a(f"v_add_u32 v{R+2}, {sbase}, v5")
    a(f"v_add_u32 v{R+3}, {sbase}, v{R+3}")

def part_addrs(a, sbase, r):
    a(f"v_lshrrev_b32 v{r}, 5, v2")
    a(f"v_and_b32 v{r+1}, 7, v2")
    a(f"v_xor_b32 v{r}, v{r}, v{r+1}")
    a(f"v_and_b32 v{r+1}, 31, v2")
    a(f"v_lshlrev_b32 v{r+1}, 8, v{r+1}")
    a(f"v_lshl_add_u32 v{r}, v{r}, 4, v{r+1}")
    for g in range(1, 4):
        a(f"v_xor_b32 v{r+g}, {32*g}, v{r}")
    for g in range(4):
        a(f"v_add_u32 v{r+g}, {sbase}, v{r+g}")

def part_write(a, GA, r):
    for n in range(2):
        for t in range(2):
            acc = GA + (n * 2 + t) * 16
            for g in range(4):
                a(f"ds_write_b128 v{r+g}, {v(acc+4*g,4)} offset:{t*8192 + n*128}")

def lds_wait(a, vaddr, vdst, cmp_lines, first_read=True):
    lab, done = a.newlabel("LW"), a.newlabel("LWD")
    a(f"s_mov_b32 s74, {SPIN*8}")
    if first_read:
        a(f"ds_read_b32 v{vdst}, v{vaddr}")
    a.label(lab)
    a("s_waitcnt lgkmcnt(0)")
    a(f"v_readfirstlane_b32 s75, v{vdst}")
    a("s_sub_u32 s74, s74, 1")
    a(f"s_cbranch_scc1 {done}")
    for l in cmp_lines:
        a(l)
    a(f"s_cbranch_scc1 {done}")
    a("s_sleep 1")
    a(f"ds_read_b32 v{vdst}, v{vaddr}")
    a(f"s_branch {lab}")
    a.label(done)

def vaddr_init(a, VK=40, VV0=41, VV1=42):
    a(f"v_mov_b32 v{VK}, v3")
    a("v_lshrrev_b32 v43, 5, v2")
    a("v_and_b32 v44, 15, v2")
    a("v_lshlrev_b32 v44, 4, v44")
    a("v_lshl_or_b32 v44, v43, 8, v44")
    a(f"v_add_u32 v44, {LDS_V}, v44")
    a("v_add_u32 v45, 512, v44")
    a("v_and_b32 v43, 31, v2")
    a("v_subrev_u32 v47, 20, v43")
    a("v_cmp_gt_u32 vcc, 8, v47")
    a(f"v_mov_b32 v46, {LDS_V + 1040}")
    a(f"v_mov_b32 v47, {LDS_V + 1040 + 2*VP}")
    a("v_cndmask_b32 v46, v46, v47, vcc")
    a("v_and_b32 v47, 27, v43")
    a("v_cmp_eq_u32 vcc, 16, v47")
    a("v_subrev_u32 v47, 16, v46")
    a("s_nop 0")
    a("v_cndmask_b32 v46, v46, v47, vcc")
    a("v_cmp_gt_u32 vcc, 16, v43")
    a("s_nop 1")
    a(f"v_cndmask_b32 v{VV0}, v46, v44, vcc")
    a(f"v_cndmask_b32 v{VV1}, v46, v45, vcc")

def gen(a):
    kernel_header(a, KNAME)
    if PROF == 7:
        a("s_memrealtime s[100:101]")
    a("s_cmp_ge_u32 s2, 256")
    a("s_cbranch_scc1 K_EXIT")
    if env("SHUF", 0) == 1:
        a("s_lshr_b32 s3, s2, 3")
        a("s_lshl_b32 s2, s2, 5")
        a("s_or_b32 s2, s2, s3")
        a("s_and_b32 s2, s2, 255")
    if env("SHUF", 0) == 2:
        a("s_mul_i32 s2, s2, 37")
        a("s_add_u32 s2, s2, 11")
        a("s_and_b32 s2, s2, 255")
    if env("JIT", 0):
        a("s_mul_i32 s3, s2, 2654435761")
        a("s_lshr_b32 s3, s3, 27")
        a.label("JIT_L")
        a("s_sleep 8")
        a("s_sub_u32 s3, s3, 1")
        a("s_cbranch_scc0 JIT_L")
    a("s_load_dwordx4 s[4:7], s[0:1], 0       ; x, wqkv")
    a("v_lshrrev_b32 v1, 6, v0")
    a("v_and_b32 v2, 63, v0                   ; lane")
    a("v_readfirstlane_b32 s20, v1")
    VX0, VX1, VR0, VR1, VKV = 10, 11, 12, 13, 14
    if FASTX:
        assert ROT1 == 2 and PRE == 2
        a("v_lshrrev_b32 v4, 3, v2")
        a("v_and_b32 v5, 7, v2")
        a("v_lshrrev_b32 v6, 4, v2")
        a("v_xor_b32 v7, v5, v6")
        a("v_lshlrev_b32 v7, 4, v7")
        a(f"v_lshl_add_u32 v{VX0}, v4, 10, v7")
        a(f"v_xor_b32 v{VX1}, 64, v{VX0}")
        a("s_bfe_u32 s63, s2, 0x30003")
        a("s_and_b32 s40, s2, 1")
        a("s_lshl_b32 s40, s40, 3")
        a("s_add_u32 s40, s40, s63                ; rb")
        a("s_lshl_b32 s40, s40, 2")
        a("s_and_b32 s42, s20, 3")
        a("s_add_u32 s40, s40, s42")
        a("s_lshl_b32 s40, s40, 15")
        a("s_lshl_b32 s42, s42, 12")
        a("s_lshr_b32 s37, s2, 6")
        a("s_add_u32 s37, s37, s63")
        a("s_lshl_b32 s37, s37, 1")
        a("s_lshr_b32 s38, s20, 2")
        a("s_add_u32 s37, s37, s38")
        a("s_and_b32 s37, s37, 7")
        a("s_lshl_b32 s37, s37, 7")
        a("s_add_u32 s37, s37, s40")
        a("s_cmp_lt_u32 s20, 4")
        a(f"s_mov_b32 s38, {slot_of(1)}")
        a(f"s_cselect_b32 s38, {slot_of(0)}, s38")
        a("s_add_u32 s38, s38, s42")
        a("s_mov_b32 s46, 0x200000")
        a("s_mov_b32 s47, 0x20000")
        a("s_waitcnt lgkmcnt(0)")
        a("s_mov_b64 s[44:45], s[4:5]")
        for i in range(4):
            a(f"s_add_u32 m0, s38, {i*1024}")
            a(f"s_add_u32 s39, s37, {i*8192}")
            a(f"buffer_load_dwordx4 v{VX1 if i & 1 else VX0}, s[44:47], s39 offen lds")
    a("s_load_dwordx4 s[12:15], s[0:1], 32")
    a("s_load_dwordx2 s[8:9], s[0:1], 16      ; wo")
    a("s_load_dwordx2 s[10:11], s[0:1], 80    ; ws")
    a("s_load_dwordx4 s[16:19], s[0:1], 48")
    a("s_load_dwordx4 s[64:67], s[0:1], 64")
    a("v_lshlrev_b32 v3, 4, v2                ; lane*16")
    stamp(a, 0)
    a("s_and_b32 s24, s2, 1                   ; xh")
    a("s_bfe_u32 s25, s2, 0x20001             ; xq")
    a("s_lshr_b32 s26, s2, 3                  ; j")
    a("s_and_b32 s63, s26, 7")
    a("s_lshl_b32 s21, s24, 3")
    a("s_add_u32 s21, s21, s63                ; rb")
    a("s_lshr_b32 s27, s26, 3")
    a("s_mul_i32 s22, s25, 3")
    a("s_add_u32 s22, s22, s27")
    a("s_add_u32 s23, s25, 12")
    a("s_cmp_eq_u32 s27, 3")
    a("s_cselect_b32 s22, s23, s22            ; cb2")
    if FMAP:
        a("s_and_b32 s72, s2, 7")
        a("s_lshl_b32 s72, s72, 2")
        a("s_and_b32 s73, s26, 3")
        a("s_add_u32 s72, s72, s73                ; rb64")
        a("s_lshr_b32 s73, s26, 2                 ; cb64")
    else:
        a("s_lshl_b32 s72, s25, 3")
        a("s_add_u32 s72, s72, s63                ; rb64")
        a("s_lshl_b32 s73, s24, 2")
        a("s_add_u32 s73, s73, s27                ; cb64")
    if ROT1 == 1:
        a("s_lshl_b32 s27, s27, 1")
        a("s_add_u32 s63, s63, s27")
    elif ROT1 == 2:
        a("s_add_u32 s63, s63, s27")
        a("s_lshl_b32 s63, s63, 1")
    elif ROT1 == 3:
        a("s_add_u32 s63, s63, s27")
        a("s_lshl_b32 s63, s63, 2")
    a(f"s_and_b32 s63, s63, {7 if ROT1 else 0}")
    a("s_and_b32 s70, s2, 7")
    a("s_lshl_b32 s70, s70, 2")
    a("s_and_b32 s27, s26, 3")
    a("s_add_u32 s70, s70, s27                ; head")
    a("s_lshr_b32 s71, s26, 2                 ; qb")
    a("s_cmp_lt_u32 s20, 4")
    a("s_cbranch_scc1 K1_COMPUTE")

    a("s_sub_u32 s23, s20, 4                  ; L")
    if LPRIO:
        a(f"s_setprio {LPRIO}")
    if not FASTX:
        a("v_lshrrev_b32 v4, 3, v2")
        a("v_and_b32 v5, 7, v2")
        a("v_lshrrev_b32 v6, 4, v2")
        a("v_xor_b32 v7, v5, v6")
        a("v_lshlrev_b32 v7, 4, v7")
        a(f"v_lshl_add_u32 v{VX0}, v4, 10, v7")
        a(f"v_xor_b32 v{VX1}, 64, v{VX0}")
    a("v_and_b32 v7, 1, v6")
    a("v_lshlrev_b32 v7, 2, v7")
    a("v_xor_b32 v7, v7, v5")
    a("v_lshlrev_b32 v7, 4, v7")
    a("v_mul_u32_u24 v8, 3072, v4")
    a(f"v_add_u32 v{VKV}, v8, v7")
    a("v_mul_u32_u24 v8, 3584, v4")
    a("v_add_u32 v15, v8, v7")
    a("s_cmp_lt_u32 s22, 12")
    a("s_cselect_b64 vcc, -1, 0")
    a("s_movk_i32 s60, 3072")
    a("s_cselect_b32 s60, 3584, s60")
    a(f"v_cndmask_b32 v{VR0}, v{VKV}, v15, vcc")
    a(f"v_xor_b32 v{VR1}, 32, v{VR0}")
    a("s_cselect_b32 s32, 0, 12")
    a("s_sub_u32 s32, s22, s32")
    a("s_lshl_b32 s32, s32, 8")
    a("s_lshl_b32 s61, s22, 1")
    a("s_add_u32 s61, s61, 1")
    a("s_add_u32 s34, s22, 12")
    a("s_cmp_lt_u32 s22, 12")
    a("s_cselect_b32 s33, 0, 128              ; R1 - R0")
    a("s_cselect_b32 s61, s61, s34")
    a("s_lshl_b32 s61, s61, 7")
    a("s_mul_i32 s34, s23, 57344")
    a("s_add_u32 s61, s61, s34")
    a("s_lshl_b32 s34, s23, 4")
    a("s_mul_i32 s34, s34, s60")
    a("s_add_u32 s32, s32, s34")
    a("s_lshl_b32 s62, s60, 6")
    a("s_lshl_b32 s36, s60, 3                 ; 8 rows")
    a("s_mul_i32 s34, s23, 49152")
    a("s_lshl_b32 s35, s22, 7")
    a("s_add_u32 s34, s34, s35")
    a("s_add_u32 s34, s34, 1024")
    if not FASTX:
        a("s_lshl_b32 s40, s21, 17")
        a("s_lshl_b32 s41, s23, 15")
        a("s_add_u32 s40, s40, s41                ; x base")
        a("s_lshl_b32 s42, s23, 12")
    a("s_lshl_b32 s35, s23, 11")
    a("s_mov_b32 s43, s63                     ; kc")
    a("s_waitcnt lgkmcnt(0)")
    srd(a, 24, 4, 0x200000)
    srd(a, 44, 6, 0x180000)
    a("s_cmp_lt_u32 s22, 12")
    a("s_cselect_b64 s[48:49], s[12:13], s[6:7]")
    a("s_cselect_b64 s[52:53], s[14:15], s[6:7]")
    a("s_cselect_b32 s50, 0x1c0000, s46")
    a("s_mov_b32 s54, s50")
    a("s_mov_b32 s51, 0x20000")
    a("s_mov_b32 s55, 0x20000")
    queue = []
    def issue(c):
        ws_, xs_ = wslot(c), xslot(c)
        a("s_mul_i32 s38, s43, s62")
        a("s_add_u32 s38, s38, s32")
        for i in range(2):
            a(f"s_add_u32 m0, s35, {ws_ + i*1024}")
            a("s_add_u32 s39, s38, s33")
            a(f"buffer_load_dwordx4 v{VR0}, s[48:51], s38 offen lds")
            a(f"s_add_u32 m0, s35, {ws_ + 8192 + i*1024}")
            a("s_add_u32 s38, s38, s36")
            a(f"buffer_load_dwordx4 v{VR1}, s[52:55], s39 offen lds")
        n = 4
        if c < 8:
            a("s_mul_i32 s38, s43, 196608")
            a("s_add_u32 s38, s38, s34")
            for i in range(2):
                a(f"s_add_u32 m0, s35, {ws_ + 16384 + i*1024}")
                a(f"s_add_u32 s39, s38, {i*24576}")
                a(f"buffer_load_dwordx4 v{VKV}, s[44:47], s39 offen lds")
            n += 2
        if c < 8 or c >= 13:
            a("s_lshl_b32 s37, s43, 7")
            a("s_add_u32 s37, s37, s40")
            for i in range(4):
                a(f"s_add_u32 m0, s42, {xs_ + i*1024}")
                a(f"s_add_u32 s39, s37, {i*8192}")
                a(f"buffer_load_dwordx4 v{VX1 if i & 1 else VX0}, s[24:27], s39 offen lds")
            n += 4
        if c != 7:
            a("s_add_u32 s43, s43, " + ("1" if c < 7 else "7"))
            a("s_and_b32 s43, s43, 7")
        else:
            a("s_mov_b32 s32, s61")
            a("s_mov_b32 s33, 0")
            a("s_mov_b32 s62, 229376")
            a("s_mov_b32 s36, 28672")
            a("s_mov_b64 s[48:49], s[12:13]")
            a("s_mov_b64 s[52:53], s[14:15]")
            a("s_mov_b32 s50, 0x1c0000")
            a("s_mov_b32 s54, 0x1c0000")
            a(f"v_mov_b32 v{VR0}, v15")
            a(f"v_xor_b32 v{VR1}, 32, v15")
        queue.extend([c] * n)
    def waitq(tag):
        n = len(queue) - 1 - max(i for i, t in enumerate(queue) if t == tag)
        a(f"s_waitcnt vmcnt({n})")
    stamp(a, 2, 7)
    if PROF == 7:
        a("s_mov_b32 s81, s80")
        a("s_mov_b32 s80, s100")
    issue(0)
    stamp(a, 3, 7)
    if PRE == 2:
        issue(1)
    stamp(a, 4, 7)
    stamp(a, 1)
    srd(a, 28, 10, WS_SIZE)
    a("v_mov_b32 v9, 0")
    a("s_add_u32 s37, s2, s20")
    a("s_cmp_eq_u32 s37, 4")
    a("s_cbranch_scc0 K1_NOTAG")
    a("s_memrealtime s[56:57]")
    a("s_waitcnt lgkmcnt(0)")
    a("s_or_b32 s56, s56, 1")
    a("s_or_b32 s57, s57, 0x80000000")
    a("v_mov_b32 v4, s56")
    a("v_mov_b32 v5, s57")
    a("s_mov_b64 exec, 1")
    a("global_store_dwordx2 v9, v[4:5], s[66:67] sc1")
    a("s_mov_b64 exec, -1")
    a.label("K1_NOTAG")
    def get_tag():
        lab, done = a.newlabel("TAG"), a.newlabel("TAGD")
        a(f"s_mov_b32 s74, {SPIN}")
        a("v_readfirstlane_b32 s68, v60")
        a("v_readfirstlane_b32 s69, v61")
        a.label(lab)
        a("s_sub_u32 s74, s74, 1")
        a(f"s_cbranch_scc1 {done}")
        a("s_min_u32 s75, s68, s69")
        a("s_cmp_lg_u32 s75, 0")
        a(f"s_cbranch_scc1 {done}")
        a("global_load_dwordx2 v[60:61], v9, s[66:67] sc1")
        a("s_waitcnt vmcnt(0)")
        a("v_readfirstlane_b32 s68, v60")
        a("v_readfirstlane_b32 s69, v61")
        a("s_sleep 2")
        a(f"s_branch {lab}")
        a.label(done)
        a(f"v_mov_b32 v4, {LDS_TAG}")
        a("v_mov_b32 v60, s68")
        a("v_mov_b32 v61, s69")
        a("ds_write_b64 v4, v[60:61]")
        a("ds_write_b32 v4, v9 offset:8")
        a("ds_write_b32 v4, v9 offset:12")
        a("ds_write_b32 v4, v9 offset:16")
        a("ds_write_b32 v4, v9 offset:20")
        a("ds_write_b32 v4, v9 offset:24")
        a("s_waitcnt lgkmcnt(0)")
    def flag_a(q):
        lab = a.newlabel("FA")
        a("s_cmp_lg_u32 s23, 1")
        a(f"s_cbranch_scc1 {lab}")
        if q:
            a("s_cmp_lt_u32 s22, 12")
            a(f"s_cbranch_scc1 {lab}")
        a("s_lshl_b32 s37, s22, 4")
        a("s_add_u32 s37, s37, s21")
        a("s_lshl_b32 s37, s37, 7")
        a(f"s_add_u32 s37, s37, {FL_Q if q else FL_A}")
        stamp(a, 2 if q else 1, 14)
        flag_store(a, "s37", 16)
        a.label(lab)
    def kv_setup():
        a("v_and_b32 v5, 15, v2")
        a("v_lshlrev_b32 v5, 7, v5")
        a("v_bfe_u32 v6, v2, 4, 1")
        a("v_lshl_add_u32 v5, v6, 14, v5")
        a("s_and_b32 s56, s2, 7")
        a("s_lshr_b32 s57, s56, 1")
        a("s_add_u32 s57, s57, 12")
        a("s_sub_u32 s57, s57, s56")
        a("s_lshl_b32 s57, s57, 11")
        a("s_lshl_b32 s58, s71, 8")
        a("s_add_u32 s57, s57, s58")
        a(f"s_add_u32 s57, s57, {FL_Q - FL_A}")
        a("v_and_b32 v6, 1, v2")
        a("v_lshlrev_b32 v6, 7, v6")
        a("v_add_u32 v6, s57, v6")
        a("v_cmp_gt_u32 vcc, 32, v2")
        a("s_lshl_b32 s56, s56, 11")
        a(f"s_add_u32 s56, s56, {FL_A}")
        a("v_cndmask_b32 v5, v6, v5, vcc")
        a("s_lshl_b32 s57, s70, 16")
        a("s_lshl_b32 s58, s23, 10")
        a("s_add_u32 s57, s57, s58                ; head*64K + L*1K")
        a(f"s_add_u32 s57, s57, {WS_K}")
        a(f"s_mul_i32 s58, s23, {TP}")
    def kv_loads(lo, hi):
        n = hi - lo
        a(f"s_mul_i32 s44, s71, {n}")
        a("s_lshr_b32 s44, s44, 3")
        for i in range(n):
            a(f"s_mul_i32 s45, s44, {4*TP}")
            a("s_add_u32 s45, s45, s58")
            a(f"s_add_u32 m0, s45, {lo*4*TP}")
            a("s_lshl_b32 s37, s44, 12")
            a("s_add_u32 s37, s37, s57")
            a(f"s_add_u32 s38, s37, {lo*4096}")
            a(f"buffer_load_dwordx4 v3, s[28:31], s38 offen{SC} lds")
            a(f"s_add_u32 m0, s45, {lo*4*TP + 1024}")
            a(f"s_add_u32 s38, s37, {lo*4096 + WS_V - WS_K}")
            a(f"buffer_load_dwordx4 v3, s[28:31], s38 offen{SC} lds")
            if i < n - 1:
                a("s_add_u32 s44, s44, 1")
                a(f"s_cmp_eq_u32 s44, {n}")
                a("s_cselect_b32 s44, 0, s44")
        queue.extend(["kv"] * (2 * n))
    def q_loads():
        a("s_lshl_b32 s37, s70, 6")
        a("s_lshl_b32 s38, s71, 3")
        a("s_add_u32 s37, s37, s38")
        a("s_lshl_b32 s38, s23, 1")
        a("s_add_u32 s37, s37, s38")
        a("s_lshl_b32 s37, s37, 10")
        a("s_lshl_b32 s38, s23, 11")
        a(f"s_add_u32 m0, s38, {LDS_Q}")
        a("s_nop 0")
        a(f"buffer_load_dwordx4 v3, s[28:31], s37 offen{SC} lds")
        a(f"buffer_load_dwordx4 v3, s[28:31], s37 offen offset:1024{SC} lds")
    a(f"v_mul_u32_u24 v36, {VP}, v2")
    a(f"v_add_u32 v36, {LDS_V + 1024}, v36")
    for i in range(4):
        a(f"v_mov_b32 v{40+i}, 0x3f803f80")
        a(f"v_mov_b32 v{44+i}, 0")
    a(f"s_mul_i32 s37, s23, {3*2048}")
    a(f"s_add_u32 s37, s37, {LDS_WS}")
    frag_addrs(a, "s37", 248)
    a("s_lshl_b32 s37, s23, 14")
    part_addrs(a, "s37", 212)
    kv_setup()
    for c in range(13):
        waitq(c)
        if c == 6:
            get_tag()
        if c < 2:
            stamp(a, c + 5, 7)
        if c < 6:
            stamp(a, c + 1, 2)
        if 6 <= c < 12:
            stamp(a, c - 5, 3)
        a(f"s_barrier                              ; b({c})")
        if c == 8:
            stamp(a, 2)
            stamp(a, 1, 15)
        if c == 4:
            a("global_load_dwordx2 v[60:61], v9, s[66:67] sc1")
        if c == AFLAG:
            flag_a(False)
        if c == AFLAGQ:
            flag_a(True)
        if c <= 8:
            issue(c + 2)
        if 8 <= c <= 12:
            issue(c + 3)
        if c == GLD:
            srd(a, 44, 18, 1024)
            a("s_lshl_b32 s76, s21, 4")
            a("s_add_u32 s76, s76, s22")
            a("s_lshl_b32 s76, s76, 2")
            a("s_add_u32 s76, s76, s23")
            a("s_lshl_b32 s37, s76, 11")
            a("buffer_load_dwordx4 v[64:67], v3, s[44:47], 0 offen")
            a("buffer_load_dwordx4 v[24:27], v3, s[24:27], s37 offen")
            a("buffer_load_dwordx4 v[28:31], v3, s[24:27], s37 offen offset:1024")
            queue.extend(["g"] * 3)
        if c == GMA:
            waitq("g")
            a("v_mov_b32 v32, 0")
            a("v_mov_b32 v33, 0")
            for q in range(4):
                a(f"v_dot2_f32_bf16 v32, v{24+q}, v{64+q}, v32")
                a(f"v_dot2_f32_bf16 v33, v{28+q}, v{64+q}, v33")
            a("s_nop 2")
            a("v_permlane32_swap_b32 v32, v33")
            a("s_nop 1")
            a("v_add_f32 v32, v32, v33")
            for ctl in ("quad_perm:[1,0,3,2]", "quad_perm:[2,3,0,1]", "row_half_mirror", "row_mirror"):
                a("s_nop 1")
                a(f"v_add_f32_dpp v32, v32, v32 {ctl} row_mask:0xf bank_mask:0xf")
            a("v_mov_b32 v33, v32")
            a("s_nop 1")
            a("v_permlane16_swap_b32 v32, v33")
            a("s_nop 1")
            a("v_add_f32 v32, v32, v33")
            a(f"v_mul_f32 v32, {fh(-LOG2E)}, v32")
            a("v_exp_f32 v32, v32")
            a("v_lshrrev_b32 v70, 5, v2")
            a("v_add_f32 v32, 1.0, v32")
            a("v_rcp_f32 v68, v32")
            a("v_lshlrev_b32 v70, 3, v70")
    a(f"v_mov_b32 v22, {LDS_SYNC + 16}")
    a("v_mov_b32 v23, 16")
    waitq(14)
    a("s_barrier                              ; b(13)")
    if AFLAGQ == 13:
        flag_a(True)
    a("s_waitcnt vmcnt(0)")
    a("s_mov_b64 exec, 1")
    a("ds_add_u32 v22, v23")
    a("s_mov_b64 exec, -1")
    stamp(a, 2, 15)
    a(f"v_mov_b32 v19, {LDS_SYNC}")
    a("s_cmp_lg_u32 s23, 0")
    a("s_cbranch_scc1 KV_OTHER")
    if FDEL:
        a(f"s_sleep {FDEL}")
    a(f"s_mov_b32 s74, {SPIN}")
    a("s_mov_b32 s77, 0")
    a.label("KV_POLL")
    a("buffer_load_dwordx2 v[8:9], v5, s[28:31], s56 offen sc1")
    a("s_waitcnt vmcnt(0)")
    a("v_cmp_ne_u64 vcc, s[68:69], v[8:9]")
    a("s_sub_u32 s74, s74, 1")
    a("s_cselect_b64 vcc, 0, vcc")
    a("s_cmp_lg_u32 vcc_lo, 0")
    a("s_cbranch_scc1 KV_AGAIN")
    a("s_cmp_eq_u32 vcc_hi, 0")
    a("s_cselect_b32 s75, 2, 1")
    a("v_mov_b32 v16, s75")
    a("ds_write_b32 v19, v16")
    a("s_cmp_lg_u32 s77, 0")
    a("s_mov_b32 s77, s75")
    a("s_cbranch_scc1 KV_HAVE")
    stamp(a, 3, 15)
    kv_loads(0, 3)
    a.label("KV_HAVE")
    a("s_cmp_eq_u32 s77, 2")
    a("s_cbranch_scc1 KV_Q")
    a.label("KV_AGAIN")
    a(f"s_sleep {FSLP}")
    a("s_branch KV_POLL")
    a.label("KV_OTHER")
    lds_wait(a, 19, 16, ["s_cmp_ge_u32 s75, 1"])
    kv_loads(0, 3)
    lds_wait(a, 19, 16, ["s_cmp_ge_u32 s75, 2"])
    a.label("KV_Q")
    stamp(a, 4, 15)
    q_loads()
    a("s_branch K2_GEMM")

    a.label("K1_COMPUTE")
    AF = 96
    AK = 224
    def accF(sw, i, t):
        return AF + ((sw * 2 + i) * 2 + t) * 16
    XA = [4, 5, 6, 7]
    WA = [8, 9]
    KA = 10
    a("s_and_b32 s23, s20, 1                  ; tp")
    a("s_lshr_b32 s24, s20, 1                 ; grp")
    a("v_bfe_u32 v16, v2, 4, 1                ; gsel")
    a("v_lshrrev_b32 v17, 5, v2               ; h")
    a("v_bfe_u32 v18, v2, 2, 2                ; r")
    a("v_and_b32 v19, 3, v2                   ; c")
    a("v_lshl_add_u32 v20, v17, 3, v18        ; 8h+r")
    a("v_and_b32 v21, 31, v2")
    a("v_lshlrev_b32 v21, 7, v21")
    a("v_bfe_u32 v22, v2, 1, 3")
    a("v_xor_b32 v22, v22, v17")
    a("v_lshl_add_u32 v21, v22, 4, v21")
    a("s_lshl_b32 s25, s23, 13")
    a(f"s_add_u32 s25, s25, {xslot(0)}")
    for s_ in range(4):
        a(f"v_xor_b32 v{XA[s_]}, {32*s_}, v21")
        a(f"v_add_u32 v{XA[s_]}, s25, v{XA[s_]}")
    a("v_lshlrev_b32 v20, 7, v20")
    a("v_lshl_add_u32 v20, v19, 3, v20        ; row*128 + c*8")
    a("v_lshrrev_b32 v21, 1, v18")
    a("v_xor_b32 v21, s24, v21                ; grp ^ (r>>1)")
    a("v_lshl_add_u32 v20, v21, 6, v20")
    a("v_lshl_add_u32 v20, v16, 5, v20")
    a(f"v_add_u32 v{KA}, {wslot(0) + 16384}, v20")
    a("v_lshl_add_u32 v20, v16, 13, v20")
    a("v_xor_b32 v21, 32, v20")
    a(f"v_add_u32 v{WA[0]}, {wslot(0)}, v20")
    a(f"v_add_u32 v{WA[1]}, {wslot(0)}, v21")
    a("v_and_b32 v11, 0x33, v2")
    a("v_bfe_u32 v17, v2, 2, 1")
    a("v_lshl_or_b32 v11, v17, 3, v11")
    a("v_bfe_u32 v17, v2, 3, 1")
    a("v_lshl_or_b32 v11, v17, 2, v11")
    a("v_lshlrev_b32 v11, 4, v11              ; K voffset")
    a("s_cmp_lt_u32 s22, 8")
    a("s_cbranch_scc1 K1_KOFF")
    a("v_lshlrev_b32 v11, 16, v16")
    a("v_lshrrev_b32 v18, 5, v2")
    a("v_lshl_or_b32 v11, v18, 8, v11")
    a("v_and_b32 v18, 15, v2")
    a("v_lshl_or_b32 v11, v18, 4, v11         ; V voffset")
    a.label("K1_KOFF")
    vaddr_init(a)
    a("s_lshl_b32 s33, s20, 8")
    a(f"s_add_u32 s33, s33, {LDS_GQ}")
    a("v_and_b32 v40, 31, v2")
    a("v_lshlrev_b32 v40, 2, v40")
    a("v_add_u32 v40, s33, v40")
    a("s_lshl_b32 s33, s20, 11")
    a(f"s_add_u32 s33, s33, {LDS_Q}")
    a("v_add_u32 v43, s33, v3")
    a("s_lshl_b32 s60, s20, 10")
    a(f"s_add_u32 s60, s60, {LDS_PARK}")
    a("v_add_u32 v44, s60, v3")
    a("ds_write_b128 v44, v[40:43]")
    for i in range(160):
        a(f"v_mov_b32 v{AF+i}, 0")
    a("s_waitcnt lgkmcnt(0)")
    srd(a, 28, 10, WS_SIZE)
    if CODEPF:
        a("s_getpc_b64 s[50:51]")
        a.label("PC_HERE")
        a(f"s_sub_u32 s50, s50, PC_HERE-{KNAME}")
        a("s_subb_u32 s51, s51, 0")
        a("s_lshr_b32 s49, s2, 3")
        a("s_lshl_b32 s49, s49, 2")
        a("s_add_u32 s49, s49, s20")
        a("s_lshl_b32 s49, s49, 9")
        a("v_lshlrev_b32 v21, 3, v2")
        a("v_add_u32 v21, s49, v21")
        a(f"v_min_u32 v21, K_END-{KNAME}-4, v21")
        a("global_load_dword v21, v21, s[50:51]")
    a("s_lshl_b32 s32, s21, 2")
    a("s_lshl_b32 s33, s23, 1")
    a("s_add_u32 s32, s32, s33                ; tt0")
    a("s_and_b32 s36, s22, 7")
    a("s_lshl_b32 s36, s36, 2")
    a("s_lshl_b32 s37, s24, 1")
    a("s_add_u32 s36, s36, s37")
    a("s_lshl_b32 s36, s36, 6")
    a("s_add_u32 s36, s36, s32")
    a("s_lshl_b32 s36, s36, 10")
    a("s_cmp_lt_u32 s22, 8")
    a(f"s_mov_b32 s38, {WS_V}")
    a(f"s_cselect_b32 s38, {WS_K}, s38")
    a("s_movk_i32 s37, 512")
    a("s_cselect_b32 s37, 0x10000, s37")
    a("s_add_u32 s36, s36, s38")
    a("s_add_u32 s37, s37, s36")
    a("s_mov_b32 s25, 0")
    tab = sum(((XPOS[c + 1] - XPOS[c]) & 15) << (4 * c) for c in range(8))
    a(f"s_mov_b32 s61, {tab:#x}")
    a("s_mov_b32 s26, 8")
    BB = [24, 44]
    def reads(s_, buf, kv):
        L = [f"ds_read_b128 {v(buf,4)}, v{XA[s_]}"]
        for t in range(2):
            for u in range(2):
                L.append(f"ds_read_b64_tr_b16 {v(buf+8+4*t+2*u,2)}, v{WA[t]} offset:{(16*s_+4*u)*128}")
            if t == 0:
                L.append(f"ds_read_b128 {v(buf+4,4)}, v{XA[s_]} offset:4096")
        if kv:
            for u in range(2):
                L.append(f"ds_read_b64_tr_b16 {v(buf+16+2*u,2)}, v{KA} offset:{(16*s_+4*u)*128}")
        return L
    def mfs(buf, sw, vtype):
        L = []
        for t in range(2):
            for i in range(2):
                acc = accF(sw, i, t)
                L.append(f"{MF} {v(acc,16)}, {v(buf+8+4*t,4)}, {v(buf+4*i,4)}, {v(acc,16)}")
        if sw == 0:
            for i in range(2):
                acc = AK + 16 * i
                A_, B_ = v(buf + 16, 4), v(buf + 4 * i, 4)
                if vtype:
                    A_, B_ = B_, A_
                L.append(f"{MF} {v(acc,16)}, {A_}, {B_}, {v(acc,16)}")
        return L
    def sweep(name, sw, vtype):
        a.raw(".p2align 6")
        a.label(name)
        kv = sw == 0
        nr = 8 if kv else 6
        for s_ in range(4):
            upd = []
            if s_ == 2:
                upd = ["s_add_u32 s25, s25, 1", "s_cmp_eq_u32 s25, 3", f"s_mov_b32 s27, {WSL}",
                       f"s_cselect_b32 s27, {(-2*WSL) & 0xffffffff:#x}, s27", "s_cselect_b32 s25, 0, s25",
                       "s_bfe_i32 s33, s61, 0x40000", "s_lshr_b32 s61, s61, 4", "s_lshl_b32 s33, s33, 14"]
                upd += [f"v_add_u32 v{r}, s27, v{r}" for r in WA + [KA]] + [f"v_add_u32 v{r}, s33, v{r}" for r in XA]
            if s_ == 1 and sw == 1:
                upd = [f"s_cmp_lg_u32 s26, {17 - AFLAG}", f"s_cbranch_scc1 {name}_ND", "s_waitcnt vmcnt(0)", f"{name}_ND:"]
            M = mfs(BB[s_ & 1], sw, vtype)
            if s_ < 3:
                R = reads(s_ + 1, BB[(s_ + 1) & 1], kv)
                seq = [f"s_waitcnt lgkmcnt({nr-4})", M[0], R[0], R[1], M[1], R[2], R[3], "s_waitcnt lgkmcnt(4)", M[2], R[4], R[5]]
                if kv:
                    seq += [M[3], R[6], R[7], M[4]] + upd[:10] + [M[5]] + upd[10:]
                elif s_ == 1:
                    seq += [M[3]] + upd
                else:
                    seq += upd[:5] + [M[3]] + upd[5:]
            else:
                R = reads(0, BB[0], kv)
                tail = ["s_sub_u32 s26, s26, 1", "s_cmp_lg_u32 s26, 0"]
                seq = [f"s_waitcnt lgkmcnt({nr-4})", M[0], "s_waitcnt lgkmcnt(0)", "s_barrier", R[0], M[1], R[1], R[2], R[3], M[2], R[4], R[5]]
                if kv:
                    seq += [M[3], R[6], R[7], M[4]] + tail + [M[5]]
                else:
                    seq += tail + [M[3]]
            for l in seq:
                a(l)
        a(f"s_cbranch_scc1 {name}")
    if FASTX:
        a(f"s_waitcnt vmcnt({1 if CODEPF else 0})")
    a("s_barrier                              ; b(0)")
    stamp(a, 1)
    for l in reads(0, BB[0], True):
        a(l)
    a("s_cmp_lt_u32 s22, 8")
    a("s_cbranch_scc0 SW1V")
    sweep("SW1K", 0, False)
    a("s_branch K1_KVEPI")
    sweep("SW1V", 0, True)
    a.label("K1_KVEPI")
    stamp(a, 2)
    c0 = -2.0 * 0.7978845608028654 * LOG2E
    c1 = c0 * 0.044715
    T = 64
    TB = 16
    def gelu_tile(acc, out, pk):
        L = []
        if pk:
            for j in range(0, 8, 2):
                L.append(f"v_pk_mul_f32 {v(TB+j,2)}, {v(acc+j,2)}, {v(acc+j,2)}")
            for j in range(0, 8, 2):
                L.append(f"v_pk_fma_f32 {v(TB+j,2)}, {v(TB+j,2)}, s[34:35], v[12:13]")
            for j in range(0, 8, 2):
                L.append(f"v_pk_mul_f32 {v(TB+j,2)}, {v(TB+j,2)}, {v(acc+j,2)}")
            for j in range(8):
                L.append(f"v_exp_f32 v{TB+j}, v{TB+j}")
            for j in range(0, 4, 2):
                L.append(f"v_pk_mul_f32 {v(acc+8+j,2)}, {v(acc+8+j,2)}, {v(acc+j,2)}")
            for j in range(0, 8, 2):
                L.append(f"v_pk_add_f32 {v(TB+j,2)}, {v(TB+j,2)}, v[14:15]")
            for j in range(8):
                L.append(f"v_rcp_f32 v{TB+j}, v{TB+j}")
            for j in range(4, 8, 2):
                L.append(f"v_pk_mul_f32 {v(acc+8+j,2)}, {v(acc+8+j,2)}, {v(acc+j,2)}")
            for j in range(0, 8, 2):
                L.append(f"v_pk_mul_f32 {v(acc+8+j,2)}, {v(acc+8+j,2)}, {v(TB+j,2)}")
        else:
            for j in range(8):
                L.append(f"v_mul_f32 v{TB+j}, v{acc+j}, v{acc+j}")
            for j in range(8):
                L.append(f"v_fma_f32 v{TB+j}, v{TB+j}, s34, v12")
            for j in range(8):
                L.append(f"v_mul_f32 v{TB+j}, v{TB+j}, v{acc+j}")
            for j in range(8):
                L.append(f"v_exp_f32 v{TB+j}, v{TB+j}")
                L.append(f"v_mul_f32 v{acc+8+j}, v{acc+8+j}, v{acc+j}")
            for j in range(8):
                L.append(f"v_add_f32 v{TB+j}, 1.0, v{TB+j}")
            for j in range(8):
                L.append(f"v_rcp_f32 v{TB+j}, v{TB+j}")
                if j >= 2:
                    L.append(f"v_mul_f32 v{acc+8+j-2}, v{acc+8+j-2}, v{TB+j-2}")
            L.append(f"v_mul_f32 v{acc+14}, v{acc+14}, v{TB+6}")
            L.append(f"v_mul_f32 v{acc+15}, v{acc+15}, v{TB+7}")
        for j in range(0, 8, 2):
            L.append(f"v_cvt_pk_bf16_f32 v{out + j//2}, v{acc+8+j}, v{acc+8+j+1}")
        return L
    def kv_fill():
        L = []
        for i in range(2):
            for j in range(0, 16, 2):
                L.append(f"v_cvt_pk_bf16_f32 v{T + 8*i + j//2}, v{AK+16*i+j}, v{AK+16*i+j+1}")
                if j == 6:
                    L.append(f"buffer_store_dwordx4 {v(T+8*i,4)}, v11, s[28:31], s36 offen offset:{i*1024}{SC}")
            L.append(f"buffer_store_dwordx4 {v(T+8*i+4,4)}, v11, s[28:31], s37 offen offset:{i*1024}{SC}")
        return L
    def q_fill():
        L = []
        for t in range(2):
            for i in range(2):
                acc = accF(0, i, t)
                for hf in range(2):
                    for j in range(8):
                        L.append(f"v_mul_f32 v{acc+8*hf+j}, s34, v{acc+8*hf+j}")
                    for j in range(0, 8, 2):
                        L.append(f"v_cvt_pk_bf16_f32 v{acc+8*hf+j//2}, v{acc+8*hf+j}, v{acc+8*hf+j+1}")
                    L.append(f"s_add_u32 s39, s38, {WS_Q + (t + 4*hf) * 65536}\nbuffer_store_dwordx4 {v(acc+8*hf,4)}, v3, s[28:31], s39 offen offset:{i*1024}{SC}")
        return L
    def cost(l):
        return 8 if l.startswith(("v_exp", "v_rcp")) else 4
    def sweep2(fill, early, qtype, ecap):
        nm = "SQ" if qtype else "SR"
        F = list(fill)
        late = {}
        if qtype and QSD:
            qs = [l for l in F[20:] if "buffer_store" in l]
            F = F[:20] + [l for l in F[20:] if "buffer_store" not in l]
            early = len(F)
            late = {QS0 + (i * QSD) // 2: [] for i in range(8)}
            for i, l in enumerate(qs):
                late[QS0 + (i * QSD) // 2].append((i, l))
        nlate = [0]
        pos = [0]
        def take(fixed, st):
            used = sum(4 for l in fixed if l.startswith(("ds_", "v_")))
            out = []
            while pos[0] < len(F) and st >= 1:
                cap = ecap if pos[0] < early else CAP
                if used + cost(F[pos[0]]) > cap:
                    break
                used += cost(F[pos[0]])
                out.append(F[pos[0]])
                pos[0] += 1
            return fixed + out
        for c in range(8, 16):
            dx = (xslot(c + 1) - xslot(c)) & 0xffffffff if c < 15 else 0
            dw = (wslot(c + 1) - wslot(c)) & 0xffffffff if c < 15 else 0
            for s_ in range(4):
                st = (c - 8) * 4 + s_
                M = mfs(BB[s_ & 1], 1, False)
                ux = lambda k: [f"v_add_u32 v{XA[k]}, {dx:#x}, v{XA[k]}"] if c < 15 else []
                if s_ < 3:
                    R = reads(s_ + 1, BB[(s_ + 1) & 1], False)
                    last = ux(s_ + 1) + (ux(0) if s_ == 0 else [])
                    if s_ == 2 and c < 15:
                        last += [f"v_add_u32 v{r}, {dw:#x}, v{r}" for r in WA]
                    if s_ == 2 and c == 14:
                        last += ["ds_read_b32 v10, v0"]
                    seq = (["s_waitcnt lgkmcnt(2)", M[0]] + take(R[0:2], st) + [M[1]] + take(R[2:4], st) +
                           ["s_waitcnt lgkmcnt(4)", M[2]] + take(R[4:6], st) + [M[3]] + take(last, st))
                else:
                    R = reads(0, BB[0], False) if c < 15 else []
                    g0 = take(R[:1], st)
                    dr = []
                    nst = sum("buffer_store" in l for l in F[:pos[0]]) + nlate[0]
                    if c + 1 == AFLAG:
                        assert nst >= 4
                        dr = [f"s_waitcnt vmcnt({nst - 4})"]
                    if c + 1 == AFLAGQ and qtype:
                        assert pos[0] >= early and nst == 12
                        dr = ["s_waitcnt vmcnt(0)"]
                    sync = ["s_barrier"] if c < 13 else (["s_mov_b64 exec, 1", "ds_add_u32 v0, v1", "s_mov_b64 exec, -1"] if c == 15 else [])
                    if c == 14:
                        sync = ["v_readfirstlane_b32 s75, v10", "s_bitcmp1_b32 s75, 6", f"s_cbranch_scc0 {nm}_W", f"{nm}_B:"]
                    seq = (["s_waitcnt lgkmcnt(2)", M[0]] + g0[len(R[:1]):] + dr + ["s_waitcnt lgkmcnt(0)"] + sync + R[:1] + [M[1]] +
                           take(R[1:4], st) + [M[2]] + take(R[4:], st) + [M[3]] + take([], st))
                for i_, l in late.get(st, []):
                    assert pos[0] >= 20 + 12 * (i_ + 1), (st, i_, pos[0])
                    seq.append(l)
                    nlate[0] += 1
                for l in seq:
                    if l == "s_barrier" and PROF in (10, 11, 12) and 0 <= c - (8 if PROF != 11 else 10) < 6:
                        if PROF == 12:
                            stamp(a, c - 8 + 1, 12)
                        a(l)
                        stamp(a, c - 8 + 1, 10)
                        stamp(a, c - 10 + 1, 11) if c >= 10 else None
                    else:
                        a(l)
        for l in F[pos[0]:]:
            a(l)
        sys.stderr.write(f"sweep2: {len(F) - pos[0]} of {len(F)} fillers left over\n")
    a(f"v_mov_b32 v0, {LDS_SYNC + 16}")
    a("v_mov_b32 v1, 1")
    a(f"v_mov_b32 v16, {LDS_TAG}")
    a("ds_read_b64 v[18:19], v16")
    a(f"v_mov_b32 v12, {fh(c0)}")
    a("v_mov_b32 v13, v12")
    a("v_mov_b32 v14, 1.0")
    a("v_mov_b32 v15, 1.0")
    a("s_waitcnt lgkmcnt(0)")
    a("v_readfirstlane_b32 s68, v18")
    a("v_readfirstlane_b32 s69, v19")
    a("s_cmp_lt_u32 s22, 12")
    a("s_cbranch_scc1 SW2R")
    a(f"s_mov_b32 s34, {fh(LOG2E*0.25)}")
    a("s_sub_u32 s38, s22, 12")
    a("s_lshl_b32 s38, s38, 3")
    a("s_lshl_b32 s39, s24, 1")
    a("s_add_u32 s38, s38, s39")
    a("s_lshl_b32 s38, s38, 6")
    a("s_add_u32 s38, s38, s32")
    a("s_lshl_b32 s38, s38, 10")
    F = kv_fill() + q_fill()
    sweep2(F, len(F), True, QCAP)
    a("s_branch K1_GE2")
    a.label("SW2R")
    a(f"s_mov_b32 s34, {fh(c1)}")
    a("s_mov_b32 s35, s34")
    F = kv_fill()
    ne = len(F)
    F2 = []
    for i in range(2):
        for t in range(2):
            if i * 2 + t < NFILL:
                F += gelu_tile(accF(0, i, t), 80 + 4 * (i * 2 + t), GPK)
            else:
                F2 += gelu_tile(accF(0, i, t), 80 + 4 * (i * 2 + t), True)
    sweep2(F, ne, False, CAP)
    for l in F2:
        a(l)
    a.label("K1_GE2")
    stamp(a, 3)
    a("v_add_u32 v44, s60, v3")
    a("ds_read_b128 v[40:43], v44")
    a(f"s_mov_b32 s34, {fh(c1)}")
    a("s_mov_b32 s35, s34")
    a("s_mul_i32 s36, s32, 144")
    a("s_lshl_b32 s37, s22, 3")
    a("s_lshl_b32 s38, s22, 2")
    a("s_add_u32 s38, s38, 44")
    a("s_cmp_lt_u32 s22, 12")
    a("s_cselect_b32 s37, s37, s38")
    a("s_add_u32 s36, s36, s37")
    a("s_lshl_b32 s37, s24, 1")
    a("s_add_u32 s36, s36, s37")
    a("s_lshl_b32 s36, s36, 10")
    a(f"s_add_u32 s36, s36, {WS_ACT}")
    a(f"s_add_u32 s37, s36, {144*1024}")
    a("s_add_u32 s38, s36, 4096")
    a("s_add_u32 s39, s37, 4096")
    a("s_cmp_lt_u32 s22, 12")
    a("s_cbranch_scc0 K1_GE3")
    for i in range(2):
        for t in range(2):
            a(f"buffer_store_dwordx4 {v(80 + 4*(i*2+t),4)}, v3, s[28:31], s{36+i} offen offset:{t*1024}{SC}")
    a.label("K1_GE3")
    for t in range(2):
        for i in range(2):
            out = 64 + 4 * (i * 2 + t)
            for l in gelu_tile(accF(1, i, t), out, True):
                a(l)
            a(f"buffer_store_dwordx4 {v(out,4)}, v3, s[28:31], s{38+i} offen offset:{t*1024}{SC}")

    a.label("K2_ATTN")
    Q = [8, 12]
    G = [4, 5]
    KB = [16, 20]
    VB = [[24, 28], [32, 36]]
    IDX = 6
    VK, VV0, VV1 = 40, 41, 42
    C = [96, 112]
    S = [128, 144]
    P = [160, 176]
    O = [192, 208]
    a(f"v_mov_b32 v{IDX}, 0xdddd")
    def zero_state():
        for i in range(4):
            a(f"v_mov_b32 v{VB[1][1]+i}, 0")
        a("s_nop 1")
        for r in (O[0], O[1], P[1]):
            a(f"{MF} {v(r,16)}, {v(VB[1][1],4)}, {v(VB[1][1],4)}, 0")
    zero_state()
    a("s_mov_b32 s26, 0")
    a("s_waitcnt lgkmcnt(0)")
    a(f"v_mov_b32 v7, v{VK}                    ; g address")
    a(f"v_mov_b32 v{VK}, v3")
    a("s_barrier                              ; X1")
    a("s_setprio 2")
    stamp(a, 4)
    stamp(a, 1, 9)
    a(f"ds_read_b128 {v(Q[0],4)}, v43")
    a(f"ds_read_b128 {v(KB[0],4)}, v{VK}")
    a(f"ds_read_b128 {v(Q[1],4)}, v43 offset:1024")
    a("s_waitcnt lgkmcnt(0)")
    for q in range(2):
        a(f"{MF} {v(S[q],16)}, {v(KB[0],4)}, {v(Q[q],4)}, 0")
    a("s_nop 7")
    a("s_nop 3")
    def maxtree(src, dst, acc=False):
        if acc:
            for i in range(0, 16, 2):
                a(f"v_max3_f32 v{dst}, v{src+i}, v{src+i+1}, v{dst}")
        else:
            a(f"v_max_f32 v{dst}, v{src}, v{src+1}")
            for i in range(2, 16, 2):
                a(f"v_max3_f32 v{dst}, v{src+i}, v{src+i+1}, v{dst}")
    for q in range(2):
        maxtree(S[q], 44 + q)
    a.label("K2_SETMAX")
    a(f"ds_read_b128 {v(KB[0],4)}, v{VK}")
    a(f"ds_read_b128 {v(VB[0][0],4)}, v{VV0}")
    a(f"ds_read_b128 {v(VB[0][1],4)}, v{VV1}")
    a(f"ds_read_b128 {v(KB[1],4)}, v{VK} offset:{TP}")
    for q in range(2):
        a(f"v_mov_b32 v{46+q}, v{44+q}")
    a("s_nop 1")
    for q in range(2):
        a(f"v_permlane32_swap_b32 v{44+q}, v{46+q}")
    for q in range(2):
        a(f"v_min_f32 v{44+q}, -v{44+q}, -v{46+q}     ; -max")
    for i in range(0, 16, 2):
        a(f"v_pk_mov_b32 {v(C[0]+i,2)}, v[44:45], v[44:45] op_sel:[0,0]")
    a("s_waitcnt lgkmcnt(0)")
    a("s_nop 0")
    a(f"{MF} {v(S[0],16)}, {v(KB[0],4)}, {v(Q[0],4)}, {v(C[0],16)}")
    for i in range(0, 16, 2):
        a(f"v_pk_mov_b32 {v(C[1]+i,2)}, v[44:45], v[44:45] op_sel:[1,1]")
    a("s_nop 3")
    stamp(a, 2, 9)
    a("s_cmp_lg_u32 s26, 0")
    a("s_cbranch_scc1 K2_NOBAR")
    a("s_waitcnt vmcnt(0)")
    a("s_barrier")
    a.label("K2_NOBAR")
    stamp(a, 3, 9)
    if PADATT:
        pad_until(a, PADATT)
    U = UA
    assert U == 16
    a(f"s_mov_b32 s27, {64 // U - 1}")
    a("s_mov_b32 s77, 2")
    a(f"v_mov_b32 v46, {LDS_SYNC + 12}")
    a.raw(".p2align 6")
    a.label("K2_LOOP")
    def exps(q, lo, hi):
        for i in range(lo, hi):
            a(f"v_exp_f32 v{P[q]+i}, v{S[q]+i}")
    def smf(q, vb, half):
        a(f"v_smfmac_f32_32x32x32_bf16 {v(O[q],16)}, {v(vb,4)}, {v(P[q]+8*half,8)}, v{IDX}")
    for u in range(U):
        b = u & 1
        a(f"{MF} {v(S[1],16)}, {v(KB[b],4)}, {v(Q[1],4)}, {v(C[1],16)}")
        if u == 8:
            a("s_bitcmp1_b32 s75, s77")
            a("s_cbranch_scc0 K2_KVM")
            a.label("K2_MID")
        exps(0, 0, 5)
        smf(1, VB[b ^ 1][1], 1)
        if u == 8:
            a("s_add_u32 s77, s77, 4")
            a("s_min_u32 s77, s77, 14")
        a(f"ds_read_b128 {v(VB[b^1][0],4)}, v{VV0} offset:{(u+1)*VP}")
        exps(0, 5, 11)
        smf(0, VB[b][0], 0)
        a(f"ds_read_b128 {v(VB[b^1][1],4)}, v{VV1} offset:{(u+1)*VP}")
        exps(0, 11, 16)
        a(f"{MF} {v(S[0],16)}, {v(KB[b^1],4)}, {v(Q[0],4)}, {v(C[0],16)}")
        a(f"ds_read_b128 {v(KB[b],4)}, v{VK} offset:{(u+2)*TP}")
        exps(1, 0, 5)
        smf(0, VB[b][1], 1)
        if u % 8 == 7:
            a("ds_read_b32 v47, v46")
        exps(1, 5, 11)
        smf(1, VB[b][0], 0)
        a("s_waitcnt lgkmcnt(0)")
        if u == U - 1:
            a(f"v_add_u32 v{VK}, {U*TP}, v{VK}")
            a(f"v_add_u32 v{VV0}, {U*VP}, v{VV0}")
            a(f"v_add_u32 v{VV1}, {U*VP}, v{VV1}")
        if u % 8 == 7:
            a("v_readfirstlane_b32 s75, v47")
        exps(1, 11, 16)
        if u == 7:
            mid_check = True
    a("s_bitcmp1_b32 s75, s77")
    a("s_cbranch_scc0 K2_KVW")
    a.label("K2_NEXT")
    a("s_add_u32 s77, s77, 4")
    a("s_min_u32 s77, s77, 14")
    if PROF == 9:
        a("s_memrealtime s[96:97]")
        a("s_memtime s[98:99]")
        a("s_waitcnt lgkmcnt(0)")
        for it, sl in ((3, 4), (2, 5), (1, 6)):
            a(f"s_cmp_eq_u32 s27, {it}")
            a(f"s_cselect_b32 s{80+sl}, s96, s{80+sl}")
            a(f"s_cselect_b32 s{88+sl}, s98, s{88+sl}")
    a("s_sub_u32 s27, s27, 1")
    a("s_cbranch_scc0 K2_LOOP")
    a("s_nop 1")
    smf(1, VB[(U - 1) & 1][1], 1)
    stamp(a, 5)
    stamp(a, 1, 8)
    stamp(a, 1, 13)
    a(f"v_mov_b32 v46, {LDS_SYNC + 4}")
    a("ds_read_b32 v47, v46")
    a(f"ds_read_b32 v{G[0]}, v7")
    a(f"ds_read_b32 v{G[1]}, v7 offset:128")
    a("s_lshl_b32 s24, s71, 2")
    a("s_add_u32 s24, s24, s20")
    a("s_lshl_b32 s24, s24, 5")
    a("s_add_u32 s24, s24, s70")
    a("s_lshl_b32 s25, s24, 11")
    a(f"s_add_u32 s25, s25, {WS_O}")
    a("v_mov_b32 v48, 0")
    a("v_mov_b32 v49, 0")
    a(f"v_pk_mul_f32 v[44:45], {v(O[0],2)}, v[48:49]")
    for i in range(2, 10, 2):
        a(f"v_pk_fma_f32 v[44:45], {v(O[0]+i,2)}, v[48:49], v[44:45]")
    for i in range(0, 10, 2):
        a(f"v_pk_fma_f32 v[44:45], {v(O[1]+i,2)}, v[48:49], v[44:45]")
    a("v_cmp_u_f32 vcc, v44, v45")
    a("s_nop 1")
    a("s_cmp_eq_u64 vcc, 0")
    a("s_cbranch_scc0 K2_FB")
    a.label("K2_FIN")
    for q in range(2):
        a(f"v_rcp_f32 v{48+q}, v{O[q]+8}")
    a(f"s_mov_b32 s74, {SPIN*8}")
    a.label("K2_GW")
    a("s_waitcnt lgkmcnt(0)")
    a("v_readfirstlane_b32 s75, v47")
    a("s_sub_u32 s74, s74, 1")
    a("s_cmp_eq_u32 s74, 0")
    a("s_cbranch_scc1 K2_GOK")
    a("s_cmp_ge_u32 s75, 64")
    a("s_cbranch_scc1 K2_GOK")
    a("s_sleep 1")
    a("ds_read_b32 v47, v46")
    a(f"ds_read_b32 v{G[0]}, v7")
    a(f"ds_read_b32 v{G[1]}, v7 offset:128")
    a("s_branch K2_GW")
    a.label("K2_GOK")
    for q in range(2):
        a(f"v_mul_f32 v{44+2*q}, v{48+q}, v{G[q]}")
    GR = S[0]
    a(f"v_mov_b32 v{GR+8}, s68")
    a(f"v_mov_b32 v{GR+9}, s69")
    a(f"v_mov_b32 v{GR+10}, s68")
    a(f"v_mov_b32 v{GR+11}, s69")
    for q in range(2):
        for i in range(0, 8, 2):
            a(f"v_pk_mul_f32 {v(O[q]+i,2)}, {v(O[q]+i,2)}, {v(44+2*q,2)} op_sel_hi:[1,0]")
        for i in range(0, 8, 2):
            a(f"v_cvt_pk_bf16_f32 v{GR + 4*q + i//2}, v{O[q]+i}, v{O[q]+i+1}")
        a(f"buffer_store_dwordx4 {v(GR+4*q,4)}, v3, s[28:31], s25 offen offset:{q*1024}{SC}")
    if FRESH:
        a("s_lshl_b32 s24, s24, 12")
        a(f"s_add_u32 s24, s24, {WS_FR}")
        a("v_lshlrev_b32 v45, 7, v2")
    else:
        a("s_lshl_b32 s24, s24, 7")
        a(f"s_add_u32 s24, s24, {FL_C}")
    a(f"v_mov_b32 v46, {LDS_SYNC + 8}")
    a("v_mov_b32 v47, 1")
    a("s_mov_b64 exec, 1")
    a("ds_add_u32 v46, v47")
    a("s_mov_b64 exec, -1")
    NSD = min(NDEF, 11)
    if NDEF:
        srd(a, 44, 16, 0x1c0000)
        a(f"s_mul_i32 s53, s20, {DSTG}")
        a("s_add_u32 s53, s53, 0x10000")
        frag_addrs(a, "s53")
        part_addrs(a, "s53", 240)
        a(f"s_mul_i32 s32, s20, {NDEF}")
        a(f"s_add_u32 s32, s32, {4*(28-NDEF)}")
        a(f"s_mul_i32 s33, s72, {2*144*1024}")
        a("s_lshl_b32 s34, s32, 10")
        a("s_add_u32 s33, s33, s34")
        a(f"s_add_u32 s33, s33, {WS_ACT}")
        a(f"s_add_u32 s34, s33, {144*1024}")
        a("s_lshl_b32 s35, s32, 14")
        a("s_lshl_b32 s36, s73, 7")
        a("s_add_u32 s35, s35, s36")
        a("v_and_b32 v4, 31, v2")
        a("v_lshlrev_b32 v4, 2, v4")
        a(f"v_add_u32 v4, {LDS_OG}, v4")
        a("ds_read_b32 v244, v4")
        a("ds_read_b32 v246, v4 offset:128")
        a("ds_read_b32 v47, v46")
    stamp(a, 2, 13)
    a("s_waitcnt vmcnt(0)")
    stamp(a, 3, 13)
    if FULLF:
        a("s_mov_b64 exec, 0xff")
        a(f"buffer_store_dwordx4 {v(GR+8,4)}, v3, s[28:31], s24 offen sc1")
    elif FRESH:
        a("s_mov_b32 exec_hi, 0")
        a(f"buffer_store_dwordx2 {v(GR+8,2)}, v45, s[28:31], s24 offen sc1")
    elif ATFLAG:
        a("s_mov_b64 exec, 1")
        a(f"buffer_atomic_swap_x2 {v(GR+8,2)}, v3, s[28:31], s24 offen sc1")
    else:
        a("s_mov_b64 exec, 1")
        a(f"buffer_store_dwordx2 {v(GR+8,2)}, v3, s[28:31], s24 offen sc1")
    a("s_mov_b64 exec, -1")
    a("s_setprio 0")
    stamp(a, 6)
    stamp(a, 2, 8)
    if NDEF:
        lds_wait(a, 46, 47, ["s_and_b32 s75, s75, 255", "s_cmp_ge_u32 s75, 68"], first_read=False)
        a("v_mov_b32 v248, v46")
        a("v_mov_b32 v249, 256")
        DA_, DW_, DC_ = 144, 80, 16
        dq = []
        def dw(k):
            a(f"s_add_u32 m0, s53, {(k % NSD) * 2048}")
            a("s_nop 0")
            a("buffer_load_dwordx4 v10, s[44:47], s35 offen lds")
            a("buffer_load_dwordx4 v11, s[44:47], s35 offen offset:1024 lds")
            a("s_add_u32 s35, s35, 16384")
            dq.extend([k] * 2)
        def da(k):
            for t in range(2):
                a(f"buffer_load_dwordx4 {v(DA_+8*k+4*t,4)}, v3, s[28:31], s{33+t} offen offset:{(k%4)*1024}{SC}")
            if k % 4 == 3:
                a("s_add_u32 s33, s33, 4096")
                a("s_add_u32 s34, s34, 4096")
            dq.extend([k] * 2)
        def dwait(k):
            a(f"s_waitcnt vmcnt({len(dq) - 1 - max(i for i, t in enumerate(dq) if t == k)})")
        def drd(k):
            b = DW_ + 8 * (k & 1)
            for n in range(2):
                for u in range(2):
                    a(f"ds_read_b64_tr_b16 {v(b+4*n+2*u,2)}, v{12+n} offset:{(k % NSD) * 2048 + u*1024}")
        AH = min(AHD, NDEF)
        for k in range(AH):
            dw(k); da(k)
        dwait(0)
        stamp(a, 3, 8)
        drd(0)
        for k in range(NDEF):
            if k + AH < NDEF:
                dw(k + AH); da(k + AH)
            if k + 1 < NDEF:
                dwait(k + 1)
                if k + 3 == NDEF:
                    a("s_mov_b64 exec, 1")
                    a("ds_add_u32 v248, v249")
                    a("s_mov_b64 exec, -1")
                drd(k + 1)
                a("s_waitcnt lgkmcnt(4)")
            else:
                a("s_waitcnt lgkmcnt(0)")
            b = DW_ + 8 * (k & 1)
            for n in range(2):
                for t in range(2):
                    acc = DC_ + (n * 2 + t) * 16
                    cin = "0" if k == 0 else v(acc, 16)
                    a(f"{MF} {v(acc,16)}, {v(b+4*n,4)}, {v(DA_+8*k+4*t,4)}, {cin}")
        stamp(a, 4, 8)
        a("s_nop 7")
        for n in range(2):
            for t in range(2):
                acc = DC_ + (n * 2 + t) * 16
                if n + t == 0:
                    a("s_nop 1")
                for j in range(0, 16, 2):
                    a(f"v_pk_mul_f32 {v(acc+j,2)}, {v(acc+j,2)}, {v(244+2*t,2)} op_sel_hi:[1,0]")
                for g in range(4):
                    a(f"ds_write_b128 v{240+g}, {v(acc+4*g,4)} offset:{t*8192 + n*128}")
        stamp(a, 5, 8)
    a("s_branch K3_REDUCE")
    a.label("K2_FB")
    a("s_cmp_lg_u32 s26, 0")
    a("s_cbranch_scc1 K2_FIN")
    a("s_waitcnt lgkmcnt(0)")
    a("s_mov_b32 s26, 100")
    vaddr_init(a)
    zero_state()
    a("v_mov_b32 v44, 0xff800000")
    a("v_mov_b32 v45, 0xff800000")
    a("v_mov_b32 v43, v3")
    a("s_mov_b32 s27, 64")
    a.label("K2_MAXLOOP")
    a(f"ds_read_b128 {v(KB[0],4)}, v43")
    a(f"v_add_u32 v43, {TP}, v43")
    a("s_waitcnt lgkmcnt(0)")
    for q in range(2):
        a(f"{MF} {v(S[q],16)}, {v(KB[0],4)}, {v(Q[q],4)}, 0")
    a("s_nop 7")
    a("s_nop 7")
    for q in range(2):
        maxtree(S[q], 44 + q, acc=True)
    a("s_sub_u32 s27, s27, 1")
    a("s_cmp_lg_u32 s27, 0")
    a("s_cbranch_scc1 K2_MAXLOOP")
    a("s_branch K2_SETMAX")
    for nm in ("SQ", "SR"):
        a.label(nm + "_W")
        lds_wait(a, 0, 10, ["s_bitcmp1_b32 s75, 6"])
        a(f"s_branch {nm}_B")
    for lab, back in (("K2_KVW", "K2_NEXT"), ("K2_KVM", "K2_MID")):
        a.label(lab)
        lds_wait(a, 46, 47, ["s_bitcmp1_b32 s75, s77"])
        a(f"s_branch {back}")

    a.label("K2_GEMM")
    ND, NW = 28 - NDEF, 8
    NG = ND // 4
    NS = 3
    srd(a, 44, 16, 0x1c0000)
    srd(a, 48, 8, 0x80000)
    if FMAP:
        a("s_and_b32 s42, s72, 3")
        a("s_lshl_b32 s42, s42, 1")
        a("s_add_u32 s42, s42, s73")
    else:
        a("s_lshr_b32 s42, s2, 3")
        a("s_and_b32 s43, s42, 7")
        a("s_lshr_b32 s42, s42, 3")
        a("s_lshl_b32 s42, s42, 1")
        a("s_add_u32 s42, s42, s43")
    for _ in range(-(-14 // NG) - 1):
        a(f"s_cmp_ge_u32 s42, {NG}")
        a(f"s_cselect_b32 s43, {NG}, 0")
        a("s_sub_u32 s42, s42, s43")
    if not ROT:
        a("s_mov_b32 s42, 0")
    a("s_mov_b32 s52, s42")
    a(f"s_mul_i32 s32, s23, {ND}")
    a("s_lshl_b32 s43, s42, 2")
    a("s_add_u32 s32, s32, s43")
    a(f"s_mul_i32 s33, s72, {2*144*1024}")
    a(f"s_add_u32 s33, s33, {WS_ACT}")
    a("s_lshl_b32 s43, s32, 10")
    a("s_add_u32 s33, s33, s43")
    a(f"s_add_u32 s34, s33, {144*1024}")
    a("s_lshl_b32 s43, s73, 7")
    a("s_lshl_b32 s35, s32, 14")
    a("s_add_u32 s35, s35, s43")
    a("s_lshl_b32 s39, s23, 17")
    a("s_add_u32 s39, s39, s43")
    a(f"s_mul_i32 s53, s23, {NS*2048}")
    a(f"s_add_u32 s53, s53, {LDS_WS}")
    GA = 16
    FR = 80
    D = 8
    queue = []
    def ld(dst, sr, k, tag):
        a(f"buffer_load_dwordx4 {v(dst,4)}, v3, s[28:31], s{sr} offen offset:{(k%4)*1024}{SC}")
        queue.append(tag)
    def aloads(k):
        b = FR + (k % D) * 16
        ld(b + 4, 33, k, ("a", k)); ld(b + 12, 34, k, ("a", k))
        if k % 4 == 3:
            a("s_add_u32 s42, s42, 1")
            a(f"s_cmp_eq_u32 s42, {NG}")
            a("s_movk_i32 s43, 4096")
            a(f"s_cselect_b32 s43, {(-(NG-1)*4096) & 0xffffffff:#x}, s43")
            a("s_cselect_b32 s42, 0, s42")
            for sr in (33, 34):
                a(f"s_add_u32 s{sr}, s{sr}, s43")
    def wloads(k):
        a(f"s_add_u32 m0, s53, {(k % NS) * 2048}")
        sr, rs = (35, 44) if k < ND else (39, 48)
        a("s_nop 0")
        a(f"buffer_load_dwordx4 v248, s[{rs}:{rs+3}], s{sr} offen lds")
        a(f"buffer_load_dwordx4 v249, s[{rs}:{rs+3}], s{sr} offen offset:1024 lds")
        queue.extend([("w", k)] * 2)
        a(f"s_add_u32 s{sr}, s{sr}, 16384")
        if k < ND and k % 4 == 3:
            a("s_add_u32 s52, s52, 1")
            a(f"s_cmp_eq_u32 s52, {NG}")
            a(f"s_cselect_b32 s43, {(-ND*16384) & 0xffffffff:#x}, 0")
            a("s_cselect_b32 s52, 0, s52")
            a("s_add_u32 s35, s35, s43")
    def waitfor(*tags):
        n = len(queue) - 1 - max(i for i, t in enumerate(queue) if t in tags)
        a(f"s_waitcnt vmcnt({n})")
    def wreads(k):
        b = FR + (k % D) * 16
        for n in range(2):
            for u in range(2):
                a(f"ds_read_b64_tr_b16 {v(b+8*n+2*u,2)}, v{250+n} offset:{(k % NS) * 2048 + u*1024}")
    def mm(k):
        b = FR + (k % D) * 16
        for n in range(2):
            for t in range(2):
                acc = GA + (n * 2 + t) * 16
                cin = "0" if k == 0 else v(acc, 16)
                a(f"{MF} {v(acc,16)}, {v(b+8*n,4)}, {v(b+4+8*t,4)}, {cin}")
    stamp(a, 3)
    a(f"v_mov_b32 v22, {LDS_SYNC + 16}")
    lds_wait(a, 22, 23, ["s_bitcmp1_b32 s75, 2"])
    a("ds_write_b128 v36, v[40:43]")
    a("ds_write_b128 v36, v[44:47] offset:16")
    a(f"ds_write_b128 v36, v[40:43] offset:{2*VP}")
    a(f"ds_write_b128 v36, v[44:47] offset:{2*VP+16}")
    if KVV == 1:
        kv_loads(3, 5)
    a(f"s_waitcnt vmcnt({4 if KVV == 1 else 0}) lgkmcnt(0)")
    stamp(a, 5, 15)
    if KVV == 3:
        kv_loads(3, 5)
    a("s_barrier                              ; X1")
    a(f"s_setprio {GPRIO}")
    stamp(a, 6, 15)
    if KVV == 2:
        kv_loads(3, 5)
    kv_loads(5, 7)
    a("s_barrier                              ; X2")
    a("s_cmp_lg_u32 s23, 1")
    a("s_cbranch_scc1 K2_NOB1")
    a("s_lshl_b32 s37, s21, 4")
    a("s_add_u32 s37, s37, s22")
    a("s_lshl_b32 s37, s37, 7")
    a(f"s_add_u32 s37, s37, {FL_B1}")
    flag_store(a, "s37", 16)
    a.label("K2_NOB1")
    a(f"v_mov_b32 v34, {LDS_SYNC + 12}")
    def arrived(stage, n):
        a(f"v_mov_b32 v35, {1 << (4 * stage)}")
        a(f"s_waitcnt vmcnt({n})")
        a("s_mov_b64 exec, 1")
        a("ds_add_u32 v34, v35")
        a("s_mov_b64 exec, -1")
    kv_loads(7, 9)
    arrived(0, 8)
    arrived(1, 4)
    kv_loads(9, 12)
    arrived(2, 6)
    kv_loads(12, 16)
    srd(a, 44, 16, 0x1c0000)
    arrived(3, 0)
    a("v_mov_b32 v69, s68")
    a("s_lshl_b32 s55, s76, 4")
    a(f"s_add_u32 s55, s55, {WS_G}")
    a("s_mov_b32 exec_lo, 1")
    a("s_mov_b32 exec_hi, 1")
    a(f"buffer_store_dwordx2 v[68:69], v70, s[28:31], s55 offen{SC}")
    a("s_mov_b64 exec, -1")
    if WARMW and FMAP:
        a("s_lshr_b32 s54, s2, 3")
        a("s_lshl_b32 s54, s54, 2")
        a("s_add_u32 s54, s54, s23")
        a("s_mul_i32 s55, s54, 14336")
        a("v_min_u32 v14, 55, v2")
        a("v_lshlrev_b32 v14, 7, v14")
        a("buffer_load_dword v15, v14, s[44:47], s55 offen")
        a("s_add_u32 s55, s55, 7168")
        a("buffer_load_dword v15, v14, s[44:47], s55 offen")
        a("s_lshl_b32 s55, s54, 12")
        a("v_and_b32 v14, 31, v2")
        a("v_lshlrev_b32 v14, 7, v14")
        a("buffer_load_dword v15, v14, s[48:51], s55 offen")
    elif WARMW:
        a("s_lshr_b32 s54, s2, 3")
        a("s_and_b32 s54, s54, 7")
        a("s_lshl_b32 s55, s54, 2")
        a("s_add_u32 s55, s55, s23")
        a("s_mul_i32 s55, s55, 57344")
        a("s_add_u32 s55, s55, s43")
        a("v_min_u32 v14, 55, v2")
        a("v_lshlrev_b32 v14, 10, v14")
        a("buffer_load_dword v15, v14, s[44:47], s55 offen")
        a("s_lshl_b32 s55, s54, 2")
        a("s_add_u32 s55, s55, s23")
        a("s_lshl_b32 s55, s55, 14")
        a("s_add_u32 s55, s55, s43")
        a("v_and_b32 v14, 15, v2")
        a("v_lshlrev_b32 v14, 10, v14")
        a("buffer_load_dword v15, v14, s[48:51], s55 offen")
    for k in range(NS):
        wloads(k)
    a("s_setprio 3")
    a("v_and_b32 v6, 15, v2")
    a("v_lshlrev_b32 v6, 7, v6")
    a("s_lshr_b32 s24, s72, 1")
    a("s_lshl_b32 s24, s24, 11")
    a(f"s_add_u32 s24, s24, {FL_B1}")
    poll_shared(a, 3, [("s24", 6, 8, 4)], 20, lslp=4)
    a("v_and_b32 v6, 31, v2")
    a("v_lshlrev_b32 v6, 3, v6")
    a("v_lshlrev_b32 v7, 3, v2")
    a("s_lshl_b32 s54, s72, 9")
    a(f"s_add_u32 s54, s54, {WS_G}")
    a("s_lshl_b32 s55, s71, 2")
    a("s_add_u32 s55, s55, s23")
    a("s_lshl_b32 s55, s55, 9")
    a(f"s_add_u32 s55, s55, {WS_G}")
    a(f"s_mov_b32 s74, {SPIN}")
    a.label("K2_GL")
    a(f"buffer_load_dwordx2 v[240:241], v6, s[28:31], s54 offen{SC}")
    a(f"buffer_load_dwordx2 v[242:243], v6, s[28:31], s54 offen offset:256{SC}")
    a(f"buffer_load_dwordx2 v[244:245], v7, s[28:31], s55 offen{SC}")
    a("s_waitcnt vmcnt(0)")
    a("v_xor_b32 v8, s68, v241")
    a("v_xor_b32 v9, s68, v243")
    a("v_xor_b32 v14, s68, v245")
    a("v_or3_b32 v8, v8, v9, v14")
    a("v_cmp_ne_u32 vcc, 0, v8")
    a("s_sub_u32 s74, s74, 1")
    a("s_cbranch_scc1 K2_GD")
    a("s_cmp_eq_u64 vcc, 0")
    a("s_cbranch_scc1 K2_GD")
    a("s_sleep 4")
    a("s_branch K2_GL")
    a.label("K2_GD")
    a("s_lshl_b32 s55, s23, 8")
    a(f"s_add_u32 s55, s55, {LDS_GQ}")
    a("v_lshrrev_b32 v7, 1, v7")
    a("v_add_u32 v7, s55, v7")
    a("ds_write_b32 v7, v244")
    a("v_sub_f32 v240, 1.0, v240")
    a("v_sub_f32 v242, 1.0, v242")
    a("v_lshrrev_b32 v6, 1, v6")
    a(f"v_add_u32 v6, {LDS_OG}, v6")
    a("ds_write_b32 v6, v240")
    a("ds_write_b32 v6, v242 offset:128")
    a(f"v_mov_b32 v8, {LDS_SYNC + 4}")
    a("v_mov_b32 v9, 16")
    a("s_waitcnt lgkmcnt(0)")
    a("s_mov_b64 exec, 1")
    a("ds_add_u32 v8, v9")
    a("s_mov_b64 exec, -1")
    stamp(a, 4)
    DA = DAH
    a("s_setprio 0")
    for k in range(DA):
        aloads(k)
    for k in range(ND + NW):
        waitfor(("w", k), ("a", k))
        wreads(k)
        a("s_waitcnt lgkmcnt(0)")
        if k + NS < ND + NW:
            wloads(k + NS)
        if k + DA < ND:
            aloads(k + DA)
        if k < ND:
            mm(k)
    a("s_setprio 3")
    if NDEF and WARMD:
        assert FMAP
        a(f"s_mul_i32 s33, s72, {2*144*1024}")
        a("s_lshr_b32 s34, s23, 1")
        a(f"s_mul_i32 s34, s34, {144*1024}")
        a("s_add_u32 s33, s33, s34")
        a("s_lshl_b32 s34, s73, 1")
        a("s_and_b32 s35, s23, 1")
        a("s_add_u32 s34, s34, s35")
        a(f"s_mul_i32 s34, s34, {NDEF*256}")
        a("s_add_u32 s33, s33, s34")
        a(f"s_add_u32 s33, s33, {WS_ACT + 4*ND*1024}")
        a(f"v_min_u32 v14, {2*NDEF-1}, v2")
        a("v_lshlrev_b32 v14, 7, v14")
        a(f"buffer_load_dword v15, v14, s[28:31], s33 offen{SC}")
        a("s_and_b32 s34, s72, 3")
        a("s_lshl_b32 s34, s34, 2")
        a("s_add_u32 s34, s34, s23")
        a(f"s_mul_i32 s34, s34, {NDEF*4096}")
        a("s_lshl_b32 s35, s73, 7")
        a("s_add_u32 s34, s34, s35")
        a(f"s_add_u32 s34, s34, {4*ND*16384}")
        a(f"v_min_u32 v14, {4*NDEF-1}, v2")
        a("v_lshlrev_b32 v14, 10, v14")
        a("buffer_load_dword v15, v14, s[44:47], s34 offen")
    a("s_nop 7")
    a("s_nop 7")
    for n in range(2):
        for t in range(2):
            acc = GA + (n * 2 + t) * 16
            for j in range(16):
                a(f"v_mul_f32 v{acc+j}, v{acc+j}, v{240+2*t}")
    a("s_lshl_b32 s24, s72, 2")
    a("s_add_u32 s24, s24, s23")
    a("s_lshl_b32 s24, s24, 14")
    a(f"s_add_u32 s24, s24, {WS_O}")
    a("v_and_b32 v6, 7, v2")
    a("v_lshlrev_b32 v6, 7, v6")
    a("s_lshl_b32 s26, s72, 12")
    a("s_lshl_b32 s25, s23, 10")
    a("s_add_u32 s26, s26, s25")
    if FRESH:
        a("v_lshlrev_b32 v6, 5, v6")
        a("s_lshl_b32 s27, s26, 5")
        a(f"s_add_u32 s27, s27, {WS_FR}")
    a(f"s_add_u32 s26, s26, {FL_C}")
    a(f"v_mov_b32 v11, {LDS_SYNC + 8}")
    a("v_mov_b32 v10, 16")
    a("s_mov_b64 exec, 1")
    a("ds_add_u32 v11, v10")
    a("s_mov_b64 exec, -1")
    a("s_mov_b32 s54, 0")
    a(f"s_mov_b32 s74, {SPIN}")
    stamp(a, 5)
    stamp(a, 1, 8)
    def c_poll(r=8):
        if FRESH:
            a("s_memrealtime s[58:59]")
        a(f"v_mov_b32 v{r}, 0")
        a(f"v_mov_b32 v{r+1}, 0")
        if FRESH:
            a("s_waitcnt lgkmcnt(0)")
            a(f"s_bfe_u32 s58, s58, {(5 << 16) | FRESH:#x}")
            a("s_lshl_b32 s58, s58, 7")
            a("s_add_u32 s26, s27, s58")
        if MASKP:
            a("s_xor_b32 exec_lo, s54, 0xff")
            a("s_mov_b32 exec_hi, 0")
        else:
            a("s_mov_b64 exec, 0xff")
        if ATPOLL:
            a(f"buffer_atomic_or_x2 {v(r,2)}, v6, s[28:31], s26 offen sc0 sc1")
        else:
            a(f"buffer_load_dwordx2 {v(r,2)}, v6, s[28:31], s26 offen sc1")
        a("s_mov_b64 exec, -1")
    def pause():
        if NDEF and PAUSE:
            lab, done = a.newlabel("PZ"), a.newlabel("PZD")
            a(f"s_mov_b32 s76, {SPIN}")
            a.label(lab)
            a("ds_read_b32 v10, v11")
            a("s_waitcnt lgkmcnt(0)")
            a("v_readfirstlane_b32 s75, v10")
            a("s_sub_u32 s76, s76, 1")
            a(f"s_cbranch_scc1 {done}")
            a("s_cmp_ge_u32 s75, 1024")
            a(f"s_cbranch_scc1 {done}")
            a("s_and_b32 s75, s75, 15")
            a(f"s_cbranch_scc0 {done}")
            a("s_sleep 1")
            a(f"s_branch {lab}")
            a.label(done)
    def o_loads(tag):
        for kk in range(NW):
            b = FR + ((ND + kk) % D) * 16
            a(f"s_bitcmp1_b32 s55, {kk}")
            a(f"s_cbranch_scc0 K3_L{tag}{kk}")
            a(f"s_add_u32 s25, s24, {kk*2048}")
            a(f"buffer_load_dwordx4 {v(b+4,4)}, v3, s[28:31], s25 offen{SC}")
            a(f"buffer_load_dwordx4 {v(b+12,4)}, v3, s[28:31], s25 offen offset:1024{SC}")
            a.label(f"K3_L{tag}{kk}")
    if TMODE:
        a.label("K3_PRE")
        if TMODE == 2:
            a("s_cmp_eq_u32 s54, 0xff")
            a("s_cbranch_scc1 K3_PRE1")
            c_poll()
            a("s_waitcnt vmcnt(0)")
            a("v_cmp_eq_u64 vcc, s[68:69], v[8:9]")
            a("s_nop 0")
            a("s_andn2_b32 s55, vcc_lo, s54")
            a("s_or_b32 s54, s54, s55")
            o_loads("P")
            a.label("K3_PRE1")
        for rep in range(4):
            a("ds_read_b32 v10, v11")
            a("s_waitcnt lgkmcnt(0)")
            a("v_readfirstlane_b32 s75, v10")
            a("s_and_b32 s75, s75, 15")
            a("s_cbranch_scc1 K3_GO")
            a(f"s_sleep {PSLOW // 4}")
        a("s_sub_u32 s74, s74, 1")
        a("s_cbranch_scc0 K3_PRE")
        a.label("K3_GO")
        a(f"s_mov_b32 s74, {SPIN}")
        a("s_mov_b32 s55, s54")
        a("s_branch K3_NEXTP")
    a.label("K3_POLL")
    c_poll()
    a.label("K3_ROUND")
    a("s_waitcnt vmcnt(0)")
    a("v_cmp_eq_u64 vcc, s[68:69], v[8:9]")
    a("s_sub_u32 s74, s74, 1")
    a("s_cselect_b32 s55, 0xff, vcc_lo")
    a("s_andn2_b32 s55, s55, s54")
    a("s_cbranch_scc1 K3_SOME")
    if TMODE:
        a(f"s_sleep {TSLP}")
    else:
        a("ds_read_b32 v10, v11")
        a(f"s_sleep {TSLP}")
        a("s_waitcnt lgkmcnt(0)")
        a("v_readfirstlane_b32 s75, v10")
        a("s_and_b32 s75, s75, 15")
        a("s_cbranch_scc1 K3_POLL")
        a(f"s_sleep {PSLOW}")
    a("s_branch K3_POLL")
    a.label("K3_SOME")
    stamp(a, 1, 13)
    if PROF == 13:
        a("s_mov_b32 s89, s55")
    a("s_or_b32 s54, s54, s55")
    o_loads("")
    a.label("K3_NEXTP")
    a("s_waitcnt vmcnt(0)")
    a("s_cmp_eq_u32 s54, 0xff")
    a("s_cbranch_scc1 K3_LAST")
    c_poll()
    a.label("K3_LAST")
    a("ds_read_b32 v10, v11")
    stamp(a, 2, 13)
    for kk in range(NW):
        a(f"s_bitcmp1_b32 s55, {kk}")
        a(f"s_cbranch_scc0 K3_C{kk}")
        mm(ND + kk)
        a.label(f"K3_C{kk}")
    a("s_cmp_lg_u32 s54, 0xff")
    a("s_cbranch_scc1 K3_ROUND")
    stamp(a, 6)
    stamp(a, 2, 8)
    stamp(a, 3, 13)
    lds_wait(a, 11, 10, ["s_bitcmp1_b32 s75, 2"], first_read=False)
    for i in range(3, 6):
        stamp(a, i, 8)
    stamp(a, 4, 13)
    a("s_nop 7")
    part_write(a, GA, 212)
    stamp(a, 5, 13)
    a.label("K3_REDUCE")
    srd(a, 24, 64, 0x200000)
    a("s_lshl_b32 s32, s20, 6")
    a("v_add_u32 v0, s32, v2                  ; tid")
    a("v_lshrrev_b32 v7, 3, v0                ; token")
    a("v_and_b32 v5, 7, v0")
    a("v_lshlrev_b32 v6, 1, v5")
    a("v_and_b32 v8, 7, v7")
    a("v_xor_b32 v6, v6, v8")
    a("v_lshlrev_b32 v6, 4, v6")
    a("v_lshl_add_u32 v6, v7, 8, v6")
    a("v_xor_b32 v8, 16, v6")
    a("v_add_u32 v9, 0x10000, v6")
    a("v_add_u32 v10, 0x10000, v8")
    a("v_lshlrev_b32 v7, 10, v7")
    a("v_lshl_add_u32 v7, v5, 4, v7")
    a("s_lshl_b32 s32, s72, 16")
    a("s_lshl_b32 s33, s73, 7")
    a("s_add_u32 s32, s32, s33")
    a("s_waitcnt lgkmcnt(0)")
    a("s_barrier                              ; Y1")
    stamp(a, 6, 8)
    stamp(a, 6, 13)
    NP = 8 if NDEF else 4
    RB = 96
    for w in range(NP):
        off = w * 16384 if w < 4 else (w - 4) * DSTG
        r0, r1 = (6, 8) if w < 4 else (9, 10)
        if off > 65535:
            a("v_add_u32 v9, 0x8000, v9")
            a("v_add_u32 v10, 0x8000, v10")
            off -= 0x8000
        a(f"ds_read_b128 {v(RB+8*w,4)}, v{r0} offset:{off}")
        a(f"ds_read_b128 {v(RB+4+8*w,4)}, v{r1} offset:{off}")
    for w in range(1, NP):
        a(f"s_waitcnt lgkmcnt({2*(NP-1-w)})")
        for j in range(0, 8, 2):
            a(f"v_pk_add_f32 {v(RB+j,2)}, {v(RB+j,2)}, {v(RB+8*w+j,2)}")
    for j in range(0, 8, 2):
        a(f"v_cvt_pk_bf16_f32 v{16+j//2}, v{RB+j}, v{RB+j+1}")
    a("buffer_store_dwordx4 v[16:19], v7, s[24:27], s32 offen" + (" " + OUTSC if OUTSC else ""))
    if PADEND:
        pad_until(a, PADEND)
    stamp_flush(a, 8)
    a.label("K_EXIT")
    a("s_endpgm")
    a.label("K_END")

def main():
    hdr = open("cdna_kernels/" + NAME + ".s.ref").read().split("\n")
    top = [l for l in hdr if l.startswith(";") and "@launch" not in l]
    out = "\n".join(top) + "\n"
    out += f"; @launch grid=(256,1,1) block=(512,1,1) lds={LDS_TOTAL}\n"
    out += '.amdgcn_target "amdgcn-amd-amdhsa--gfx950"\n.text\n'
    a = Asm()
    gen(a)
    out += a.text()
    out += '.section .rodata,"a"\n'
    out += kernel_desc(KNAME, 256, 102)
    path = sys.argv[1] if len(sys.argv) > 1 else "cdna_kernels/" + NAME + ".s"
    open(path, "w").write(out)

main()
```

```python
import sys, math, os
from asmlib import *

NAME = "gated_mix__softmax_full_mha__geglu_ffn__prompt"
KNAME = NAME + "_kernel"
LOG2E = 1.4426950408889634
def env(n, d): return int(os.environ.get(n, str(d)))
PROF = env("PROF", 0)
ROT = env("ROT", 1)
TAGPOS = env("TAGPOS", 0)
PADEND = env("PADEND", 0)
PADATT = env("PADATT", 0)
DBGWG = env("DBGWG", -1)
TLBW = env("TLBW", 0)
PFW = env("PFW", 0)
PFI = env("PFI", 1)
PFX = env("PFX", 0)
KVROT = env("KVROT", 1)
AFLAG = env("AFLAG", 10)
PFC = env("PFC", -1)
ONEP = env("ONEP", 0)
FMAP = env("FMAP", 0)
NOTAG = env("NOTAG", 0)
ROT1 = env("ROT1", 2)
OUTSC = os.environ.get("OUTSC", "sc1")
GPK = env("GPK", 0)
UA = env("UA", 16)
PRE = env("PRE", 2)
QLD = env("QLD", 4)
WARMW = env("WARMW", 0)
ROT2 = env("ROT2", 1)
NDEF = env("NDEF", 0)
WARMD = env("WARMD", 1)
PSLOW = env("PSLOW", 16)
PAUSE = env("PAUSE", 1)
KVV = env("KVV", 2)
FASTX = env("FASTX", 0)
FULLF = env("FULLF", 0)
PIPE = env("PIPE", 1)
ATFLAG = env("ATFLAG", 1)
FRESH = env("FRESH", 0)
WS_FR = 0x2000000
PDEL = env("PDEL", 4)
MASKP = env("MASKP", 1)
SPAT = env("SPAT", 3)
LPRIO = env("LPRIO", 0)
FA0 = env("FA0", 13)
AFLAGQ = env("AFLAGQ", 11)
CAP = env("CAP", 20)
QS0 = env("QS0", 6)
QSD = env("QSD", 0)
TMODE = env("TMODE", 1)
GPRIO = env("GPRIO", 3)
ATFA = env("ATFA", 0)
QFIRST = env("QFIRST", 1)
HU = env("HU", -1)
KVW = env("KVW", 0)
HEARLY = env("HEARLY", 0)
FULLA = env("FULLA", 0)
ATFS = env("ATFS", 0)
TNEAR = env("TNEAR", 10)
DAH = env("DAH", 4)
GLD = env("GLD", 7)
GMA = env("GMA", 9)
FDEL = env("FDEL", 0)
FSLP = env("FSLP", 1)
QCAP = env("QCAP", 40)
KVA = env("KVA", 0)
NFILL = env("NFILL", 4)
AHD = env("AHD", 6)
ATPOLL = env("ATPOLL", 1)
HINTW = env("HINTW", 0)
TSLP = env("TSLP", 2)
SPF = env("SPF", 0)
CODEPF = env("CODEPF", 1)
SLP = env("SLP", 4)

HK = env("HK", 64)
WS_Q = 0x0 if HK == 64 else 0x1400000
WS_K = 0x200000 if HK == 64 else 0
WS_V = 0x400000 if HK == 64 else 0x300000 + 1024 * env("VOFF", 1)
WS_ACT = 0x600000
WS_O = 0xF00000
WS_G = 0x1240000
WS_FL = 0x1280000
FL_A = WS_FL
FL_B1 = WS_FL + 0x8000
FL_Q = WS_FL + 0x10000 - 12 * 2048
FL_B2 = WS_FL + 0x10000
FL_C = WS_FL + 0x20000
WS_STAMP = 0x1800000
WS_SIZE = 0x2800000

XS = 16384
WB = 5 * XS
WSL = 24576
LDS_GQ = 162176
LDS_OG = 163200
LDS_TAG = 163584
LDS_SYNC = LDS_TAG + 8
LDS_TOTAL = 163840
TP = 2080
LDS_V = 1024
VP = TP
LDS_WS = 137472
DSTG = 22528
LDS_Q = WB + 2 * WSL + 16384
LDS_PARK = WB + 3 * WSL
XPOS = [3, 2, 0, 1, 4, 3, 2, 0,  0, 2, 3, 4, 1, 2, 3, 4]
def xslot(c):
    return XPOS[c] * XS
def wslot(c):
    return WB + ((c % 3) * WSL if c < 8 else ((c + 3) % 4) * 16384)

SC = " sc1"
SPIN = 200000
MF = "v_mfma_f32_32x32x16_bf16"

def srd(a, d, base, nbytes):
    a(f"s_mov_b32 s{d}, s{base}")
    a(f"s_mov_b32 s{d+1}, s{base+1}")
    a(f"s_mov_b32 s{d+2}, {nbytes:#x}")
    a(f"s_mov_b32 s{d+3}, 0x20000")

def stamp(a, i, lvl=1):
    if PROF and (PROF == lvl or i in (0, 7) or (PROF == 16 and lvl == 15)):
        a("s_memrealtime s[96:97]")
        a("s_memtime s[98:99]")
        a("s_waitcnt lgkmcnt(0)")
        a(f"s_mov_b32 s{80+i}, s96")
        a(f"s_mov_b32 s{88+i}, s98")

def stamp_flush(a, n):
    if PROF:
        a("s_waitcnt vmcnt(0)")
        stamp(a, n - 1)
        a("s_lshl_b32 s78, s2, 4")
        a("s_add_u32 s78, s78, s20")
        a("s_lshl_b32 s78, s78, 6")
        a(f"s_add_u32 s78, s78, {WS_STAMP}")
        a("v_mov_b32 v1, 0")
        for i in range(n):
            a(f"v_mov_b32 v0, s{80+i}")
            a(f"buffer_store_dword v0, v1, s[28:31], s78 offen offset:{4*i}")
            a("s_nop 1")
            a(f"v_mov_b32 v0, s{88+i}")
            a(f"buffer_store_dword v0, v1, s[28:31], s78 offen offset:{32+4*i}")
            a("s_nop 1")
        a("s_waitcnt vmcnt(0)")
        if DBGWG >= 0:
            a(f"s_cmp_lg_u32 s2, {DBGWG}")
            a("s_cbranch_scc1 DBG_SKIP")
            a("s_and_b32 s78, s20, 3")
            a("s_cmp_lg_u32 s78, 0")
            a("s_cbranch_scc1 DBG_SKIP")
            a("s_mul_i32 s78, s20, 7")
            a("v_mov_b32 v1, s78")
            for i in range(1, n):
                a(f"s_sub_u32 s79, s{80+i}, s80")
                a("v_mov_b32 v0, s79")
                a(f"global_store_dword v1, v0, s[66:67] offset:{4+4*i}")
                a("s_nop 1")
            a("s_waitcnt vmcnt(0)")
            a.label("DBG_SKIP")

def pad_until(a, ticks):
    lab = a.newlabel("PAD")
    a.label(lab)
    a("s_memrealtime s[96:97]")
    a("s_waitcnt lgkmcnt(0)")
    a("s_sub_u32 s96, s96, s68")
    a(f"s_cmp_lt_u32 s96, {ticks}")
    a(f"s_cbranch_scc1 {lab}")

def flag_store(a, soff, vtmp):
    a(f"v_mov_b32 v{vtmp}, s68")
    a(f"v_mov_b32 v{vtmp+1}, s69")
    if FULLA:
        a("v_lshlrev_b32 v%d, 3, v2" % (vtmp + 2))
        a("s_mov_b64 exec, 0xffff")
    else:
        a(f"v_mov_b32 v{vtmp+2}, 0")
        a("s_mov_b64 exec, 1")
    a(f"buffer_store_dwordx2 {v(vtmp,2)}, v{vtmp+2}, s[28:31], {soff} offen sc1")
    a("s_mov_b64 exec, -1")

def poll(a, soff, voff, vtmp, slp=None):
    lab = a.newlabel("POLL")
    done = a.newlabel("POLLD")
    a(f"s_mov_b32 s74, {SPIN}")
    a.label(lab)
    a(f"buffer_load_dwordx2 {v(vtmp,2)}, v{voff}, s[28:31], {soff} offen sc1")
    a("s_waitcnt vmcnt(0)")
    a(f"v_xor_b32 v{vtmp}, s68, v{vtmp}")
    a(f"v_xor_b32 v{vtmp+1}, s69, v{vtmp+1}")
    a(f"v_or_b32 v{vtmp}, v{vtmp}, v{vtmp+1}")
    a(f"v_cmp_ne_u32 vcc, 0, v{vtmp}")
    a("s_sub_u32 s74, s74, 1")
    a("s_cmp_eq_u32 s74, 0")
    a(f"s_cbranch_scc1 {done}")
    a("s_cmp_eq_u64 vcc, 0")
    a(f"s_cbranch_scc1 {done}")
    a(f"s_sleep {SLP if slp is None else slp}")
    a(f"s_branch {lab}")
    a.label(done)

def poll_shared(a, stage, polls, vtmp, lslp=1, extra=None):
    other = a.newlabel("PSO")
    done = a.newlabel("PSD")
    a(f"v_mov_b32 v{vtmp+3}, {LDS_SYNC}")
    a("s_cmp_lg_u32 s23, 0")
    a(f"s_cbranch_scc1 {other}")
    for p in polls:
        poll(a, *p)
    if extra:
        extra()
    a(f"v_mov_b32 v{vtmp}, {stage}")
    a(f"ds_write_b32 v{vtmp+3}, v{vtmp}")
    a(f"s_branch {done}")
    a.label(other)
    a(f"s_mov_b32 s74, {SPIN*8}")
    lab = a.newlabel("PSL")
    a.label(lab)
    a(f"ds_read_b32 v{vtmp}, v{vtmp+3}")
    a("s_waitcnt lgkmcnt(0)")
    a(f"v_readfirstlane_b32 s75, v{vtmp}")
    a("s_sub_u32 s74, s74, 1")
    a("s_cmp_eq_u32 s74, 0")
    a(f"s_cbranch_scc1 {done}")
    a(f"s_cmp_ge_u32 s75, {stage}")
    a(f"s_cbranch_scc1 {done}")
    a(f"s_sleep {lslp}")
    a(f"s_branch {lab}")
    a.label(done)

def cvt_tile(a, acc, dst, lo=0, hi=16):
    for i in range(lo, hi, 2):
        a(f"v_cvt_pk_bf16_f32 v{dst + (i - lo)//2}, v{acc+i}, v{acc+i+1}")

def frag_addrs(a, sbase, R=10):
    a("v_lshrrev_b32 v4, 3, v2")
    a("v_and_b32 v5, 7, v2")
    a("v_bfe_u32 v7, v2, 4, 1")
    a("v_lshlrev_b32 v7, 2, v7")
    a("v_xor_b32 v5, v5, v7")
    a("v_lshlrev_b32 v5, 4, v5")
    a(f"v_lshl_add_u32 v{R}, v4, 10, v5")
    a(f"v_add_u32 v{R+1}, 7168, v{R}")
    a("v_bfe_u32 v4, v2, 2, 2")
    a("v_lshrrev_b32 v5, 5, v2")
    a("v_lshl_add_u32 v5, v5, 2, v4")
    a("v_lshlrev_b32 v5, 7, v5")
    a("v_lshrrev_b32 v4, 1, v4")
    a("v_lshl_add_u32 v5, v4, 6, v5")
    a("v_bfe_u32 v4, v2, 4, 1")
    a("v_lshl_add_u32 v5, v4, 5, v5")
    a("v_and_b32 v4, 3, v2")
    a("v_lshl_add_u32 v5, v4, 3, v5")
    a(f"v_xor_b32 v{R+3}, 64, v5")
    a(f"v_add_u32 v{R+2}, {sbase}, v5")
    a(f"v_add_u32 v{R+3}, {sbase}, v{R+3}")

def part_addrs(a, sbase, r):
    a(f"v_lshrrev_b32 v{r}, 5, v2")
    a(f"v_and_b32 v{r+1}, 7, v2")
    a(f"v_xor_b32 v{r}, v{r}, v{r+1}")
    a(f"v_and_b32 v{r+1}, 31, v2")
    a(f"v_lshlrev_b32 v{r+1}, 8, v{r+1}")
    a(f"v_lshl_add_u32 v{r}, v{r}, 4, v{r+1}")
    for g in range(1, 4):
        a(f"v_xor_b32 v{r+g}, {32*g}, v{r}")
    for g in range(4):
        a(f"v_add_u32 v{r+g}, {sbase}, v{r+g}")

def part_write(a, GA, r):
    for n in range(2):
        for t in range(2):
            acc = GA + (n * 2 + t) * 16
            for g in range(4):
                a(f"ds_write_b128 v{r+g}, {v(acc+4*g,4)} offset:{t*8192 + n*128}")

def lds_wait(a, vaddr, vdst, cmp_lines, first_read=True):
    lab, done = a.newlabel("LW"), a.newlabel("LWD")
    a(f"s_mov_b32 s74, {SPIN*8}")
    if first_read:
        a(f"ds_read_b32 v{vdst}, v{vaddr}")
    a.label(lab)
    a("s_waitcnt lgkmcnt(0)")
    a(f"v_readfirstlane_b32 s75, v{vdst}")
    a("s_sub_u32 s74, s74, 1")
    a(f"s_cbranch_scc1 {done}")
    for l in cmp_lines:
        a(l)
    a(f"s_cbranch_scc1 {done}")
    a("s_sleep 1")
    a(f"ds_read_b32 v{vdst}, v{vaddr}")
    a(f"s_branch {lab}")
    a.label(done)

def vaddr_init(a, VK=40, VV0=41, VV1=42):
    a(f"v_mov_b32 v{VK}, v3")
    a("v_lshrrev_b32 v43, 5, v2")
    a("v_and_b32 v44, 15, v2")
    a("v_lshlrev_b32 v44, 4, v44")
    a("v_lshl_or_b32 v44, v43, 8, v44")
    a(f"v_add_u32 v44, {LDS_V}, v44")
    a("v_add_u32 v45, 512, v44")
    a("v_and_b32 v43, 31, v2")
    a("v_subrev_u32 v47, 20, v43")
    a("v_cmp_gt_u32 vcc, 8, v47")
    a(f"v_mov_b32 v46, {LDS_V + 1040}")
    a(f"v_mov_b32 v47, {LDS_V + 1040 + 2*VP}")
    a("v_cndmask_b32 v46, v46, v47, vcc")
    a("v_and_b32 v47, 27, v43")
    a("v_cmp_eq_u32 vcc, 16, v47")
    a("v_subrev_u32 v47, 16, v46")
    a("s_nop 0")
    a("v_cndmask_b32 v46, v46, v47, vcc")
    a("v_cmp_gt_u32 vcc, 16, v43")
    a("s_nop 1")
    a(f"v_cndmask_b32 v{VV0}, v46, v44, vcc")
    a(f"v_cndmask_b32 v{VV1}, v46, v45, vcc")

def place(a, key):
    m = env("PL_" + key, -1)
    if m >= 0:
        a.raw(".p2align 6")
        for _ in range(m):
            a("s_nop 0")

def gen(a):
    kernel_header(a, KNAME)
    if PROF == 7:
        a("s_memrealtime s[100:101]")
    a("s_cmp_ge_u32 s2, 256")
    a("s_cbranch_scc1 K_EXIT")
    if env("SHUF", 0) == 1:
        a("s_lshr_b32 s3, s2, 3")
        a("s_lshl_b32 s2, s2, 5")
        a("s_or_b32 s2, s2, s3")
        a("s_and_b32 s2, s2, 255")
    if env("SHUF", 0) == 2:
        a("s_mul_i32 s2, s2, 37")
        a("s_add_u32 s2, s2, 11")
        a("s_and_b32 s2, s2, 255")
    if env("JIT", 0):
        a("s_mul_i32 s3, s2, 2654435761")
        a("s_lshr_b32 s3, s3, 27")
        a.label("JIT_L")
        a("s_sleep 8")
        a("s_sub_u32 s3, s3, 1")
        a("s_cbranch_scc0 JIT_L")
    a("s_load_dwordx4 s[4:7], s[0:1], 0       ; x, wqkv")
    a("v_lshrrev_b32 v1, 6, v0")
    a("v_and_b32 v2, 63, v0                   ; lane")
    a("v_readfirstlane_b32 s20, v1")
    VX0, VX1, VR0, VR1, VKV = 10, 11, 12, 13, 14
    if FASTX:
        assert ROT1 == 2 and PRE == 2
        a("v_lshrrev_b32 v4, 3, v2")
        a("v_and_b32 v5, 7, v2")
        a("v_lshrrev_b32 v6, 4, v2")
        a("v_xor_b32 v7, v5, v6")
        a("v_lshlrev_b32 v7, 4, v7")
        a(f"v_lshl_add_u32 v{VX0}, v4, 10, v7")
        a(f"v_xor_b32 v{VX1}, 64, v{VX0}")
        a("s_bfe_u32 s63, s2, 0x30003")
        a("s_and_b32 s40, s2, 1")
        a("s_lshl_b32 s40, s40, 3")
        a("s_add_u32 s40, s40, s63                ; rb")
        a("s_lshl_b32 s40, s40, 2")
        a("s_and_b32 s42, s20, 3")
        a("s_add_u32 s40, s40, s42")
        a("s_lshl_b32 s40, s40, 15")
        a("s_lshl_b32 s42, s42, 12")
        a("s_lshr_b32 s37, s2, 6")
        a("s_add_u32 s37, s37, s63")
        a("s_lshl_b32 s37, s37, 1")
        a("s_lshr_b32 s38, s20, 2")
        a("s_add_u32 s37, s37, s38")
        a("s_and_b32 s37, s37, 7")
        a("s_lshl_b32 s37, s37, 7")
        a("s_add_u32 s37, s37, s40")
        a("s_cmp_lt_u32 s20, 4")
        a(f"s_mov_b32 s38, {slot_of(1)}")
        a(f"s_cselect_b32 s38, {slot_of(0)}, s38")
        a("s_add_u32 s38, s38, s42")
        a("s_mov_b32 s46, 0x200000")
        a("s_mov_b32 s47, 0x20000")
        a("s_waitcnt lgkmcnt(0)")
        a("s_mov_b64 s[44:45], s[4:5]")
        for i in range(4):
            a(f"s_add_u32 m0, s38, {i*1024}")
            a(f"s_add_u32 s39, s37, {i*8192}")
            a(f"buffer_load_dwordx4 v{VX1 if i & 1 else VX0}, s[44:47], s39 offen lds")
    a("s_load_dwordx4 s[12:15], s[0:1], 32")
    a("s_load_dwordx2 s[8:9], s[0:1], 16      ; wo")
    a("s_load_dwordx2 s[10:11], s[0:1], 80    ; ws")
    a("s_load_dwordx4 s[16:19], s[0:1], 48")
    a("s_load_dwordx4 s[64:67], s[0:1], 64")
    a("v_lshlrev_b32 v3, 4, v2                ; lane*16")
    stamp(a, 0)
    a("s_and_b32 s24, s2, 1                   ; xh")
    a("s_bfe_u32 s25, s2, 0x20001             ; xq")
    a("s_lshr_b32 s26, s2, 3                  ; j")
    a("s_and_b32 s63, s26, 7")
    a("s_lshl_b32 s21, s24, 3")
    a("s_add_u32 s21, s21, s63                ; rb")
    a("s_lshr_b32 s27, s26, 3")
    a("s_mul_i32 s22, s25, 3")
    a("s_add_u32 s22, s22, s27")
    if QFIRST:
        a("s_sub_u32 s22, s22, 1")
    a("s_add_u32 s23, s25, 12")
    a(f"s_cmp_eq_u32 s27, {0 if QFIRST else 3}")
    a("s_cselect_b32 s22, s23, s22            ; cb2")
    if FMAP:
        a("s_and_b32 s72, s2, 7")
        a("s_lshl_b32 s72, s72, 2")
        a("s_and_b32 s73, s26, 3")
        a("s_add_u32 s72, s72, s73                ; rb64")
        a("s_lshr_b32 s73, s26, 2                 ; cb64")
    else:
        a("s_lshl_b32 s72, s25, 3")
        a("s_add_u32 s72, s72, s63                ; rb64")
        a("s_lshl_b32 s73, s24, 2")
        a("s_add_u32 s73, s73, s27                ; cb64")
    if ROT1 == 1:
        a("s_lshl_b32 s27, s27, 1")
        a("s_add_u32 s63, s63, s27")
    elif ROT1 == 2:
        a("s_add_u32 s63, s63, s27")
        a("s_lshl_b32 s63, s63, 1")
    elif ROT1 == 3:
        a("s_add_u32 s63, s63, s27")
        a("s_lshl_b32 s63, s63, 2")
    a(f"s_and_b32 s63, s63, {7 if ROT1 else 0}")
    a("s_and_b32 s70, s2, 7")
    a("s_lshl_b32 s70, s70, 2")
    a("s_and_b32 s27, s26, 3")
    a("s_add_u32 s70, s70, s27                ; head")
    a("s_lshr_b32 s71, s26, 2                 ; qb")
    a("s_cmp_lt_u32 s20, 4")
    a("s_cbranch_scc1 K1_COMPUTE")

    a("s_sub_u32 s23, s20, 4                  ; L")
    if LPRIO:
        a(f"s_setprio {LPRIO}")
    if not FASTX:
        a("v_lshrrev_b32 v4, 3, v2")
        a("v_and_b32 v5, 7, v2")
        a("v_lshrrev_b32 v6, 4, v2")
        a("v_xor_b32 v7, v5, v6")
        a("v_lshlrev_b32 v7, 4, v7")
        a(f"v_lshl_add_u32 v{VX0}, v4, 10, v7")
        a(f"v_xor_b32 v{VX1}, 64, v{VX0}")
    a("v_and_b32 v7, 1, v6")
    a("v_lshlrev_b32 v7, 2, v7")
    a("v_xor_b32 v7, v7, v5")
    a("v_lshlrev_b32 v7, 4, v7")
    a("v_mul_u32_u24 v8, 3072, v4")
    a(f"v_add_u32 v{VKV}, v8, v7")
    a("v_mul_u32_u24 v8, 3584, v4")
    a("v_add_u32 v15, v8, v7")
    a("s_cmp_lt_u32 s22, 12")
    a("s_cselect_b64 vcc, -1, 0")
    a("s_movk_i32 s60, 3072")
    a("s_cselect_b32 s60, 3584, s60")
    a(f"v_cndmask_b32 v{VR0}, v{VKV}, v15, vcc")
    a(f"v_xor_b32 v{VR1}, 32, v{VR0}")
    a("s_cselect_b32 s32, 0, 12")
    a("s_sub_u32 s32, s22, s32")
    a("s_lshl_b32 s32, s32, 8")
    a("s_lshl_b32 s61, s22, 1")
    a("s_add_u32 s61, s61, 1")
    a("s_add_u32 s34, s22, 12")
    a("s_cmp_lt_u32 s22, 12")
    a("s_cselect_b32 s33, 0, 128              ; R1 - R0")
    a("s_cselect_b32 s61, s61, s34")
    a("s_lshl_b32 s61, s61, 7")
    a("s_mul_i32 s34, s23, 57344")
    a("s_add_u32 s61, s61, s34")
    a("s_lshl_b32 s34, s23, 4")
    a("s_mul_i32 s34, s34, s60")
    a("s_add_u32 s32, s32, s34")
    a("s_lshl_b32 s62, s60, 6")
    a("s_lshl_b32 s36, s60, 3                 ; 8 rows")
    a("s_mul_i32 s34, s23, 49152")
    a("s_lshl_b32 s35, s22, 7")
    a("s_add_u32 s34, s34, s35")
    a("s_add_u32 s34, s34, 1024")
    if not FASTX:
        a("s_lshl_b32 s40, s21, 17")
        a("s_lshl_b32 s41, s23, 15")
        a("s_add_u32 s40, s40, s41                ; x base")
        a("s_lshl_b32 s42, s23, 12")
    a("s_lshl_b32 s35, s23, 11")
    a("s_mov_b32 s43, s63                     ; kc")
    a("s_waitcnt lgkmcnt(0)")
    srd(a, 24, 4, 0x200000)
    srd(a, 44, 6, 0x180000)
    a("s_cmp_lt_u32 s22, 12")
    a("s_cselect_b64 s[48:49], s[12:13], s[6:7]")
    a("s_cselect_b64 s[52:53], s[14:15], s[6:7]")
    a("s_cselect_b32 s50, 0x1c0000, s46")
    a("s_mov_b32 s54, s50")
    a("s_mov_b32 s51, 0x20000")
    a("s_mov_b32 s55, 0x20000")
    queue = []
    def issue(c):
        ws_, xs_ = wslot(c), xslot(c)
        a("s_mul_i32 s38, s43, s62")
        a("s_add_u32 s38, s38, s32")
        for i in range(2):
            a(f"s_add_u32 m0, s35, {ws_ + i*1024}")
            a("s_add_u32 s39, s38, s33")
            a(f"buffer_load_dwordx4 v{VR0}, s[48:51], s38 offen lds")
            a(f"s_add_u32 m0, s35, {ws_ + 8192 + i*1024}")
            a("s_add_u32 s38, s38, s36")
            a(f"buffer_load_dwordx4 v{VR1}, s[52:55], s39 offen lds")
        n = 4
        if c < 8:
            a("s_mul_i32 s38, s43, 196608")
            a("s_add_u32 s38, s38, s34")
            for i in range(2):
                a(f"s_add_u32 m0, s35, {ws_ + 16384 + i*1024}")
                a(f"s_add_u32 s39, s38, {i*24576}")
                a(f"buffer_load_dwordx4 v{VKV}, s[44:47], s39 offen lds")
            n += 2
        if c < 8 or c >= 13:
            a("s_lshl_b32 s37, s43, 7")
            a("s_add_u32 s37, s37, s40")
            for i in range(4):
                a(f"s_add_u32 m0, s42, {xs_ + i*1024}")
                a(f"s_add_u32 s39, s37, {i*8192}")
                a(f"buffer_load_dwordx4 v{VX1 if i & 1 else VX0}, s[24:27], s39 offen lds")
            n += 4
        if c != 7:
            a("s_add_u32 s43, s43, " + ("1" if c < 7 else "7"))
            a("s_and_b32 s43, s43, 7")
        else:
            a("s_mov_b32 s32, s61")
            a("s_mov_b32 s33, 0")
            a("s_mov_b32 s62, 229376")
            a("s_mov_b32 s36, 28672")
            a("s_mov_b64 s[48:49], s[12:13]")
            a("s_mov_b64 s[52:53], s[14:15]")
            a("s_mov_b32 s50, 0x1c0000")
            a("s_mov_b32 s54, 0x1c0000")
            a(f"v_mov_b32 v{VR0}, v15")
            a(f"v_xor_b32 v{VR1}, 32, v15")
        queue.extend([c] * n)
    def waitq(tag):
        n = len(queue) - 1 - max(i for i, t in enumerate(queue) if t == tag)
        a(f"s_waitcnt vmcnt({n})")
    stamp(a, 2, 7)
    if PROF == 7:
        a("s_mov_b32 s81, s80")
        a("s_mov_b32 s80, s100")
    issue(0)
    stamp(a, 3, 7)
    if PRE == 2:
        issue(1)
    stamp(a, 4, 7)
    stamp(a, 1)
    srd(a, 28, 10, WS_SIZE)
    a("v_mov_b32 v9, 0")
    a("s_add_u32 s37, s2, s20")
    a("s_cmp_eq_u32 s37, 4")
    a("s_cbranch_scc0 K1_NOTAG")
    a("s_memrealtime s[56:57]")
    a("s_waitcnt lgkmcnt(0)")
    a("s_or_b32 s56, s56, 1")
    a("s_or_b32 s57, s57, 0x80000000")
    a("v_mov_b32 v4, s56")
    a("v_mov_b32 v5, s57")
    a("s_mov_b64 exec, 1")
    a("global_store_dwordx2 v9, v[4:5], s[66:67] sc1")
    a("s_mov_b64 exec, -1")
    a.label("K1_NOTAG")
    def get_tag():
        lab, done = a.newlabel("TAG"), a.newlabel("TAGD")
        a(f"s_mov_b32 s74, {SPIN}")
        a("v_readfirstlane_b32 s68, v60")
        a("v_readfirstlane_b32 s69, v61")
        a.label(lab)
        a("s_sub_u32 s74, s74, 1")
        a(f"s_cbranch_scc1 {done}")
        a("s_min_u32 s75, s68, s69")
        a("s_cmp_lg_u32 s75, 0")
        a(f"s_cbranch_scc1 {done}")
        a("global_load_dwordx2 v[60:61], v9, s[66:67] sc1")
        a("s_waitcnt vmcnt(0)")
        a("v_readfirstlane_b32 s68, v60")
        a("v_readfirstlane_b32 s69, v61")
        a("s_sleep 2")
        a(f"s_branch {lab}")
        a.label(done)
        a(f"v_mov_b32 v4, {LDS_TAG}")
        a("v_mov_b32 v60, s68")
        a("v_mov_b32 v61, s69")
        a("ds_write_b64 v4, v[60:61]")
        a("ds_write_b32 v4, v9 offset:8")
        a("ds_write_b32 v4, v9 offset:12")
        a("ds_write_b32 v4, v9 offset:16")
        a("ds_write_b32 v4, v9 offset:20")
        a("ds_write_b32 v4, v9 offset:24")
        a("ds_write_b32 v4, v9 offset:28")
        a("s_waitcnt lgkmcnt(0)")
    def flag_a(q):
        lab = a.newlabel("FA")
        a("s_cmp_lg_u32 s23, 1")
        a(f"s_cbranch_scc1 {lab}")
        if q:
            a("s_cmp_lt_u32 s22, 12")
            a(f"s_cbranch_scc1 {lab}")
        a("s_lshl_b32 s37, s22, 4")
        a("s_add_u32 s37, s37, s21")
        a("s_lshl_b32 s37, s37, 7")
        a(f"s_add_u32 s37, s37, {FL_Q if q else FL_A}")
        stamp(a, 2 if q else 1, 14)
        flag_store(a, "s37", 16)
        a.label(lab)
    def kv_setup():
        a("v_and_b32 v5, 15, v2")
        a("v_lshlrev_b32 v5, 7, v5")
        a("v_bfe_u32 v6, v2, 4, 1")
        a("v_lshl_add_u32 v5, v6, 14, v5")
        a("s_and_b32 s56, s2, 7")
        a("s_lshr_b32 s57, s56, 1")
        a("s_add_u32 s57, s57, 12")
        a("s_sub_u32 s57, s57, s56")
        a("s_lshl_b32 s57, s57, 11")
        a("s_lshl_b32 s58, s71, 8")
        a("s_add_u32 s57, s57, s58")
        a(f"s_add_u32 s57, s57, {FL_Q - FL_A}")
        a("v_and_b32 v6, 1, v2")
        a("v_lshlrev_b32 v6, 7, v6")
        a("v_add_u32 v6, s57, v6")
        a("v_cmp_gt_u32 vcc, 32, v2")
        a("s_lshl_b32 s56, s56, 11")
        a(f"s_add_u32 s56, s56, {FL_A}")
        a("v_cndmask_b32 v5, v6, v5, vcc")
        a(f"s_mul_i32 s57, s70, {HK*1024}")
        a("s_lshl_b32 s58, s23, 10")
        a("s_add_u32 s57, s57, s58                ; head*64K + L*1K")
        a(f"s_add_u32 s57, s57, {WS_K}")
        a(f"s_mul_i32 s58, s23, {TP}")
    def kv_loads(lo, hi):
        n = hi - lo
        a(f"s_mul_i32 s44, s71, {n}")
        a("s_lshr_b32 s44, s44, 3")
        for i in range(n):
            a(f"s_mul_i32 s45, s44, {4*TP}")
            a("s_add_u32 s45, s45, s58")
            a(f"s_add_u32 m0, s45, {lo*4*TP}")
            a("s_lshl_b32 s37, s44, 12")
            a("s_add_u32 s37, s37, s57")
            a(f"s_add_u32 s38, s37, {lo*4096}")
            a(f"buffer_load_dwordx4 v3, s[28:31], s38 offen{SC} lds")
            a(f"s_add_u32 m0, s45, {lo*4*TP + 1024}")
            a(f"s_add_u32 s38, s37, {lo*4096 + WS_V - WS_K}")
            a(f"buffer_load_dwordx4 v3, s[28:31], s38 offen{SC} lds")
            if i < n - 1:
                a("s_add_u32 s44, s44, 1")
                a(f"s_cmp_eq_u32 s44, {n}")
                a("s_cselect_b32 s44, 0, s44")
        queue.extend(["kv"] * (2 * n))
    def q_loads():
        a(f"s_mul_i32 s37, s70, {HK}")
        a("s_lshl_b32 s38, s71, 3")
        a("s_add_u32 s37, s37, s38")
        a("s_lshl_b32 s38, s23, 1")
        a("s_add_u32 s37, s37, s38")
        a("s_lshl_b32 s37, s37, 10")
        a("s_lshl_b32 s38, s23, 11")
        a(f"s_add_u32 m0, s38, {LDS_Q}")
        a(f"s_add_u32 s37, s37, {WS_Q}")
        a(f"buffer_load_dwordx4 v3, s[28:31], s37 offen{SC} lds")
        a(f"buffer_load_dwordx4 v3, s[28:31], s37 offen offset:1024{SC} lds")
    a(f"v_mul_u32_u24 v36, {VP}, v2")
    a(f"v_add_u32 v36, {LDS_V + 1024}, v36")
    for i in range(4):
        a(f"v_mov_b32 v{40+i}, 0x3f803f80")
        a(f"v_mov_b32 v{44+i}, 0")
    a(f"s_mul_i32 s37, s23, {3*2048}")
    a(f"s_add_u32 s37, s37, {LDS_WS}")
    frag_addrs(a, "s37", 248)
    a("s_lshl_b32 s37, s23, 14")
    part_addrs(a, "s37", 212)
    kv_setup()
    for c in range(13):
        waitq(c)
        if c == 6:
            get_tag()
        if c < 2:
            stamp(a, c + 5, 7)
        if c < 6:
            stamp(a, c + 1, 2)
        if 6 <= c < 12:
            stamp(a, c - 5, 3)
        a(f"s_barrier                              ; b({c})")
        if c == 8:
            stamp(a, 2)
            stamp(a, 1, 15)
        if c == 4:
            a("global_load_dwordx2 v[60:61], v9, s[66:67] sc1")
        if c == AFLAG:
            flag_a(False)
        if c == AFLAGQ:
            flag_a(True)
        if c <= 8:
            issue(c + 2)
        if 8 <= c <= 12:
            issue(c + 3)
        if c == GLD:
            srd(a, 44, 18, 1024)
            a("s_lshl_b32 s76, s21, 4")
            a("s_add_u32 s76, s76, s22")
            a("s_lshl_b32 s76, s76, 2")
            a("s_add_u32 s76, s76, s23")
            a("s_lshl_b32 s37, s76, 11")
            a("buffer_load_dwordx4 v[64:67], v3, s[44:47], 0 offen")
            a("buffer_load_dwordx4 v[24:27], v3, s[24:27], s37 offen")
            a("buffer_load_dwordx4 v[28:31], v3, s[24:27], s37 offen offset:1024")
            queue.extend(["g"] * 3)
        if c == GMA:
            waitq("g")
            a("v_mov_b32 v32, 0")
            a("v_mov_b32 v33, 0")
            for q in range(4):
                a(f"v_dot2_f32_bf16 v32, v{24+q}, v{64+q}, v32")
                a(f"v_dot2_f32_bf16 v33, v{28+q}, v{64+q}, v33")
            a("s_nop 2")
            a("v_permlane32_swap_b32 v32, v33")
            a("s_nop 1")
            a("v_add_f32 v32, v32, v33")
            for ctl in ("quad_perm:[1,0,3,2]", "quad_perm:[2,3,0,1]", "row_half_mirror", "row_mirror"):
                a("s_nop 1")
                a(f"v_add_f32_dpp v32, v32, v32 {ctl} row_mask:0xf bank_mask:0xf")
            a("v_mov_b32 v33, v32")
            a("s_nop 1")
            a("v_permlane16_swap_b32 v32, v33")
            a("s_nop 1")
            a("v_add_f32 v32, v32, v33")
            a(f"v_mul_f32 v32, {fh(-LOG2E)}, v32")
            a("v_exp_f32 v32, v32")
            a("v_lshrrev_b32 v70, 5, v2")
            a("v_add_f32 v32, 1.0, v32")
            a("v_rcp_f32 v68, v32")
            a("v_lshlrev_b32 v70, 3, v70")
    a(f"v_mov_b32 v22, {LDS_SYNC + 16}")
    a("v_mov_b32 v23, 16")
    waitq(14)
    a("s_barrier                              ; b(13)")
    if AFLAGQ == 13:
        flag_a(True)
    a("s_waitcnt vmcnt(0)")
    a("s_mov_b64 exec, 1")
    a("ds_add_u32 v22, v23")
    a("s_mov_b64 exec, -1")
    stamp(a, 2, 15)
    a(f"v_mov_b32 v19, {LDS_SYNC}")
    a("s_cmp_lg_u32 s23, 0")
    a("s_cbranch_scc1 KV_OTHER")
    if FDEL:
        a(f"s_sleep {FDEL}")
    a(f"s_mov_b32 s74, {SPIN}")
    a("s_mov_b32 s77, 0")
    if ATFA:
        a("s_mov_b32 vcc_lo, -1")
        a("s_mov_b32 vcc_hi, 3")
    a.label("KV_POLL")
    if ATFA:
        a("v_mov_b32 v8, 0")
        a("v_mov_b32 v9, 0")
        a("s_mov_b64 exec, vcc")
        a("buffer_atomic_or_x2 v[8:9], v5, s[28:31], s56 offen sc0 sc1")
    else:
        a("buffer_load_dwordx2 v[8:9], v5, s[28:31], s56 offen sc1")
    a("s_waitcnt vmcnt(0)")
    a("v_cmp_ne_u64 vcc, s[68:69], v[8:9]")
    if ATFA:
        a("s_mov_b64 exec, -1")
    a("s_sub_u32 s74, s74, 1")
    a("s_cselect_b64 vcc, 0, vcc")
    a("s_cmp_lg_u32 vcc_lo, 0")
    a("s_cbranch_scc1 KV_AGAIN")
    a("s_cmp_eq_u32 vcc_hi, 0")
    a("s_cselect_b32 s75, 2, 1")
    a("v_mov_b32 v16, s75")
    a("ds_write_b32 v19, v16")
    a("s_cmp_lg_u32 s77, 0")
    a("s_mov_b32 s77, s75")
    a("s_cbranch_scc1 KV_HAVE")
    stamp(a, 3, 15)
    kv_loads(0, 3)
    a.label("KV_HAVE")
    a("s_cmp_eq_u32 s77, 2")
    a("s_cbranch_scc1 KV_Q")
    a.label("KV_AGAIN")
    a(f"s_sleep {FSLP}")
    a("s_branch KV_POLL")
    a.label("KV_OTHER")
    lds_wait(a, 19, 16, ["s_cmp_ge_u32 s75, 1"])
    kv_loads(0, 3)
    lds_wait(a, 19, 16, ["s_cmp_ge_u32 s75, 2"])
    a.label("KV_Q")
    if KVW:
        a("s_cmp_lt_u32 s23, 2")
        a("s_cbranch_scc1 KV_NW")
        a(f"s_mul_i32 s37, s70, {HK*1024}")
        a(f"s_mul_i32 s38, s71, {52*128}")
        a("s_add_u32 s37, s37, s38")
        a("s_and_b32 s38, s23, 1")
        a(f"s_mul_i32 s38, s38, {WS_V - WS_K}")
        a("s_add_u32 s37, s37, s38")
        a(f"s_add_u32 s37, s37, {WS_K + 12*1024}")
        a("v_min_u32 v16, 51, v2")
        a("v_lshlrev_b32 v16, 7, v16")
        a(f"buffer_load_dword v17, v16, s[28:31], s37 offen{SC}")
        a.label("KV_NW")
    stamp(a, 4, 15)
    q_loads()
    a("s_branch K2_GEMM")

    a.label("K1_COMPUTE")
    AF = 96
    AK = 224
    def accF(sw, i, t):
        return AF + ((sw * 2 + i) * 2 + t) * 16
    XA = [4, 5, 6, 7]
    WA = [8, 9]
    KA = 10
    a("s_and_b32 s23, s20, 1                  ; tp")
    a("s_lshr_b32 s24, s20, 1                 ; grp")
    a("v_bfe_u32 v16, v2, 4, 1                ; gsel")
    a("v_lshrrev_b32 v17, 5, v2               ; h")
    a("v_bfe_u32 v18, v2, 2, 2                ; r")
    a("v_and_b32 v19, 3, v2                   ; c")
    a("v_lshl_add_u32 v20, v17, 3, v18        ; 8h+r")
    a("v_and_b32 v21, 31, v2")
    a("v_lshlrev_b32 v21, 7, v21")
    a("v_bfe_u32 v22, v2, 1, 3")
    a("v_xor_b32 v22, v22, v17")
    a("v_lshl_add_u32 v21, v22, 4, v21")
    a("s_lshl_b32 s25, s23, 13")
    a(f"s_add_u32 s25, s25, {xslot(0)}")
    for s_ in range(4):
        a(f"v_xor_b32 v{XA[s_]}, {32*s_}, v21")
        a(f"v_add_u32 v{XA[s_]}, s25, v{XA[s_]}")
    a("v_lshlrev_b32 v20, 7, v20")
    a("v_lshl_add_u32 v20, v19, 3, v20        ; row*128 + c*8")
    a("v_lshrrev_b32 v21, 1, v18")
    a("v_xor_b32 v21, s24, v21                ; grp ^ (r>>1)")
    a("v_lshl_add_u32 v20, v21, 6, v20")
    a("v_lshl_add_u32 v20, v16, 5, v20")
    a(f"v_add_u32 v{KA}, {wslot(0) + 16384}, v20")
    a("v_lshl_add_u32 v20, v16, 13, v20")
    a("v_xor_b32 v21, 32, v20")
    a(f"v_add_u32 v{WA[0]}, {wslot(0)}, v20")
    a(f"v_add_u32 v{WA[1]}, {wslot(0)}, v21")
    a("v_and_b32 v11, 0x33, v2")
    a("v_bfe_u32 v17, v2, 2, 1")
    a("v_lshl_or_b32 v11, v17, 3, v11")
    a("v_bfe_u32 v17, v2, 3, 1")
    a("v_lshl_or_b32 v11, v17, 2, v11")
    a("v_lshlrev_b32 v11, 4, v11              ; K voffset")
    a("s_cmp_lt_u32 s22, 8")
    a("s_cbranch_scc1 K1_KOFF")
    a(f"v_mul_u32_u24 v11, {HK*1024}, v16")
    a("v_lshrrev_b32 v18, 5, v2")
    a("v_lshl_or_b32 v11, v18, 8, v11")
    a("v_and_b32 v18, 15, v2")
    a("v_lshl_or_b32 v11, v18, 4, v11         ; V voffset")
    a.label("K1_KOFF")
    vaddr_init(a)
    a("s_lshl_b32 s33, s20, 8")
    a(f"s_add_u32 s33, s33, {LDS_GQ}")
    a("v_and_b32 v40, 31, v2")
    a("v_lshlrev_b32 v40, 2, v40")
    a("v_add_u32 v40, s33, v40")
    a("s_lshl_b32 s33, s20, 11")
    a(f"s_add_u32 s33, s33, {LDS_Q}")
    a("v_add_u32 v43, s33, v3")
    a("s_lshl_b32 s60, s20, 10")
    a(f"s_add_u32 s60, s60, {LDS_PARK}")
    a("v_add_u32 v44, s60, v3")
    a("ds_write_b128 v44, v[40:43]")
    for i in range(160):
        a(f"v_mov_b32 v{AF+i}, 0")
    a("s_waitcnt lgkmcnt(0)")
    srd(a, 28, 10, WS_SIZE)
    if CODEPF:
        a("s_getpc_b64 s[50:51]")
        a.label("PC_HERE")
        a(f"s_sub_u32 s50, s50, PC_HERE-{KNAME}")
        a("s_subb_u32 s51, s51, 0")
        a("s_lshr_b32 s49, s2, 3")
        a("s_lshl_b32 s49, s49, 2")
        a("s_add_u32 s49, s49, s20")
        a("s_lshl_b32 s49, s49, 9")
        a("v_lshlrev_b32 v21, 3, v2")
        a("v_add_u32 v21, s49, v21")
        a(f"v_min_u32 v21, K_END-{KNAME}-4, v21")
        a("global_load_dword v21, v21, s[50:51]")
    a("s_lshl_b32 s32, s21, 2")
    a("s_lshl_b32 s33, s23, 1")
    a("s_add_u32 s32, s32, s33                ; tt0")
    a("s_and_b32 s36, s22, 7")
    a("s_lshl_b32 s36, s36, 2")
    a("s_lshl_b32 s37, s24, 1")
    a("s_add_u32 s36, s36, s37")
    a(f"s_mul_i32 s36, s36, {HK}")
    a("s_add_u32 s36, s36, s32")
    a("s_lshl_b32 s36, s36, 10")
    a("s_cmp_lt_u32 s22, 8")
    a(f"s_mov_b32 s38, {WS_V}")
    a(f"s_cselect_b32 s38, {WS_K}, s38")
    a("s_movk_i32 s37, 512")
    a(f"s_cselect_b32 s37, {HK*1024}, s37")
    a("s_add_u32 s36, s36, s38")
    a("s_add_u32 s37, s37, s36")
    a("s_mov_b32 s25, 0")
    tab = sum(((XPOS[c + 1] - XPOS[c]) & 15) << (4 * c) for c in range(8))
    a(f"s_mov_b32 s61, {tab:#x}")
    a("s_mov_b32 s26, 8")
    BB = [24, 44]
    def reads(s_, buf, kv):
        L = [f"ds_read_b128 {v(buf,4)}, v{XA[s_]}"]
        for t in range(2):
            for u in range(2):
                L.append(f"ds_read_b64_tr_b16 {v(buf+8+4*t+2*u,2)}, v{WA[t]} offset:{(16*s_+4*u)*128}")
            if t == 0:
                L.append(f"ds_read_b128 {v(buf+4,4)}, v{XA[s_]} offset:4096")
        if kv:
            for u in range(2):
                L.append(f"ds_read_b64_tr_b16 {v(buf+16+2*u,2)}, v{KA} offset:{(16*s_+4*u)*128}")
        return L
    def mfs(buf, sw, vtype):
        L = []
        for t in range(2):
            for i in range(2):
                acc = accF(sw, i, t)
                L.append(f"{MF} {v(acc,16)}, {v(buf+8+4*t,4)}, {v(buf+4*i,4)}, {v(acc,16)}")
        if sw == 0:
            for i in range(2):
                acc = AK + 16 * i
                A_, B_ = v(buf + 16, 4), v(buf + 4 * i, 4)
                if vtype:
                    A_, B_ = B_, A_
                L.append(f"{MF} {v(acc,16)}, {A_}, {B_}, {v(acc,16)}")
        return L
    def sweep(name, sw, vtype):
        a.raw(".p2align 6")
        place(a, "S1")
        a.label(name)
        kv = sw == 0
        nr = 8 if kv else 6
        for s_ in range(4):
            upd = []
            if s_ == 2:
                upd = ["s_add_u32 s25, s25, 1", "s_cmp_eq_u32 s25, 3", f"s_mov_b32 s27, {WSL}",
                       f"s_cselect_b32 s27, {(-2*WSL) & 0xffffffff:#x}, s27", "s_cselect_b32 s25, 0, s25",
                       "s_bfe_i32 s33, s61, 0x40000", "s_lshr_b32 s61, s61, 4", "s_lshl_b32 s33, s33, 14"]
                upd += [f"v_add_u32 v{r}, s27, v{r}" for r in WA + [KA]] + [f"v_add_u32 v{r}, s33, v{r}" for r in XA]
            if s_ == 1 and sw == 1:
                upd = [f"s_cmp_lg_u32 s26, {17 - AFLAG}", f"s_cbranch_scc1 {name}_ND", "s_waitcnt vmcnt(0)", f"{name}_ND:"]
            M = mfs(BB[s_ & 1], sw, vtype)
            if s_ < 3:
                R = reads(s_ + 1, BB[(s_ + 1) & 1], kv)
                seq = [f"s_waitcnt lgkmcnt({nr-4})", M[0], R[0], R[1], M[1], R[2], R[3], "s_waitcnt lgkmcnt(4)", M[2], R[4], R[5]]
                if kv:
                    seq += [M[3], R[6], R[7], M[4]] + upd[:10] + [M[5]] + upd[10:]
                elif s_ == 1:
                    seq += [M[3]] + upd
                else:
                    seq += upd[:5] + [M[3]] + upd[5:]
            else:
                R = reads(0, BB[0], kv)
                tail = ["s_sub_u32 s26, s26, 1", "s_cmp_lg_u32 s26, 0"]
                seq = [f"s_waitcnt lgkmcnt({nr-4})", M[0], "s_waitcnt lgkmcnt(0)", "s_barrier", R[0], M[1], R[1], R[2], R[3], M[2], R[4], R[5]]
                if kv:
                    seq += [M[3], R[6], R[7], M[4]] + tail + [M[5]]
                else:
                    seq += tail + [M[3]]
            for l in seq:
                a(l)
        a(f"s_cbranch_scc1 {name}")
    if FASTX:
        a(f"s_waitcnt vmcnt({1 if CODEPF else 0})")
    a("s_barrier                              ; b(0)")
    stamp(a, 1)
    for l in reads(0, BB[0], True):
        a(l)
    a("s_cmp_lt_u32 s22, 8")
    a("s_cbranch_scc0 SW1V")
    sweep("SW1K", 0, False)
    a("s_branch K1_KVEPI")
    sweep("SW1V", 0, True)
    a.label("K1_KVEPI")
    stamp(a, 2)
    c0 = -2.0 * 0.7978845608028654 * LOG2E
    c1 = c0 * 0.044715
    T = 64
    TB = 16
    def gelu_tile(acc, out, pk):
        L = []
        if pk:
            for j in range(0, 8, 2):
                L.append(f"v_pk_mul_f32 {v(TB+j,2)}, {v(acc+j,2)}, {v(acc+j,2)}")
            for j in range(0, 8, 2):
                L.append(f"v_pk_fma_f32 {v(TB+j,2)}, {v(TB+j,2)}, s[34:35], v[12:13]")
            for j in range(0, 8, 2):
                L.append(f"v_pk_mul_f32 {v(TB+j,2)}, {v(TB+j,2)}, {v(acc+j,2)}")
            for j in range(8):
                L.append(f"v_exp_f32 v{TB+j}, v{TB+j}")
            for j in range(0, 4, 2):
                L.append(f"v_pk_mul_f32 {v(acc+8+j,2)}, {v(acc+8+j,2)}, {v(acc+j,2)}")
            for j in range(0, 8, 2):
                L.append(f"v_pk_add_f32 {v(TB+j,2)}, {v(TB+j,2)}, v[14:15]")
            for j in range(8):
                L.append(f"v_rcp_f32 v{TB+j}, v{TB+j}")
            for j in range(4, 8, 2):
                L.append(f"v_pk_mul_f32 {v(acc+8+j,2)}, {v(acc+8+j,2)}, {v(acc+j,2)}")
            for j in range(0, 8, 2):
                L.append(f"v_pk_mul_f32 {v(acc+8+j,2)}, {v(acc+8+j,2)}, {v(TB+j,2)}")
        else:
            for j in range(8):
                L.append(f"v_mul_f32 v{TB+j}, v{acc+j}, v{acc+j}")
            for j in range(8):
                L.append(f"v_fma_f32 v{TB+j}, v{TB+j}, s34, v12")
            for j in range(8):
                L.append(f"v_mul_f32 v{TB+j}, v{TB+j}, v{acc+j}")
            for j in range(8):
                L.append(f"v_exp_f32 v{TB+j}, v{TB+j}")
                L.append(f"v_mul_f32 v{acc+8+j}, v{acc+8+j}, v{acc+j}")
            for j in range(8):
                L.append(f"v_add_f32 v{TB+j}, 1.0, v{TB+j}")
            for j in range(8):
                L.append(f"v_rcp_f32 v{TB+j}, v{TB+j}")
                if j >= 2:
                    L.append(f"v_mul_f32 v{acc+8+j-2}, v{acc+8+j-2}, v{TB+j-2}")
            L.append(f"v_mul_f32 v{acc+14}, v{acc+14}, v{TB+6}")
            L.append(f"v_mul_f32 v{acc+15}, v{acc+15}, v{TB+7}")
        for j in range(0, 8, 2):
            L.append(f"v_cvt_pk_bf16_f32 v{out + j//2}, v{acc+8+j}, v{acc+8+j+1}")
        return L
    def kv_fill():
        L = []
        for i in range(2):
            for j in range(0, 16, 2):
                L.append(f"v_cvt_pk_bf16_f32 v{T + 8*i + j//2}, v{AK+16*i+j}, v{AK+16*i+j+1}")
                if j == 6:
                    L.append(f"buffer_store_dwordx4 {v(T+8*i,4)}, v11, s[28:31], s36 offen offset:{i*1024}{SC}")
            L.append(f"buffer_store_dwordx4 {v(T+8*i+4,4)}, v11, s[28:31], s37 offen offset:{i*1024}{SC}")
        return L
    def q_fill():
        L = []
        for t in range(2):
            for i in range(2):
                acc = accF(0, i, t)
                for hf in range(2):
                    for j in range(8):
                        L.append(f"v_mul_f32 v{acc+8*hf+j}, s34, v{acc+8*hf+j}")
                    for j in range(0, 8, 2):
                        L.append(f"v_cvt_pk_bf16_f32 v{acc+8*hf+j//2}, v{acc+8*hf+j}, v{acc+8*hf+j+1}")
                    L.append(f"s_add_u32 s39, s38, {WS_Q + (t + 4*hf) * HK * 1024}\nbuffer_store_dwordx4 {v(acc+8*hf,4)}, v3, s[28:31], s39 offen offset:{i*1024}{SC}")
        return L
    def cost(l):
        return 8 if l.startswith(("v_exp", "v_rcp")) else 4
    def sweep2(fill, early, qtype, ecap):
        nm = "SQ" if qtype else "SR"
        place(a, "S2")
        F = list(fill)
        late = {}
        if qtype and QSD:
            qs = [l for l in F[20:] if "buffer_store" in l]
            F = F[:20] + [l for l in F[20:] if "buffer_store" not in l]
            early = len(F)
            late = {QS0 + (i * QSD) // 2: [] for i in range(8)}
            for i, l in enumerate(qs):
                late[QS0 + (i * QSD) // 2].append((i, l))
        nlate = [0]
        pos = [0]
        def take(fixed, st):
            used = sum(4 for l in fixed if l.startswith(("ds_", "v_")))
            out = []
            while pos[0] < len(F) and st >= 1:
                cap = ecap if pos[0] < early else CAP
                if used + cost(F[pos[0]]) > cap:
                    break
                used += cost(F[pos[0]])
                out.append(F[pos[0]])
                pos[0] += 1
            return fixed + out
        for c in range(8, 16):
            dx = (xslot(c + 1) - xslot(c)) & 0xffffffff if c < 15 else 0
            dw = (wslot(c + 1) - wslot(c)) & 0xffffffff if c < 15 else 0
            for s_ in range(4):
                st = (c - 8) * 4 + s_
                M = mfs(BB[s_ & 1], 1, False)
                ux = lambda k: [f"v_add_u32 v{XA[k]}, {dx:#x}, v{XA[k]}"] if c < 15 else []
                if s_ < 3:
                    R = reads(s_ + 1, BB[(s_ + 1) & 1], False)
                    last = ux(s_ + 1) + (ux(0) if s_ == 0 else [])
                    if s_ == 2 and c < 15:
                        last += [f"v_add_u32 v{r}, {dw:#x}, v{r}" for r in WA]
                    if s_ == 2 and c == 14:
                        last += ["ds_read_b32 v10, v0"]
                    seq = (["s_waitcnt lgkmcnt(2)", M[0]] + take(R[0:2], st) + [M[1]] + take(R[2:4], st) +
                           ["s_waitcnt lgkmcnt(4)", M[2]] + take(R[4:6], st) + [M[3]] + take(last, st))
                else:
                    R = reads(0, BB[0], False) if c < 15 else []
                    g0 = take(R[:1], st)
                    dr = []
                    nst = sum("buffer_store" in l for l in F[:pos[0]]) + nlate[0]
                    if c + 1 == AFLAG:
                        assert nst >= 4
                        dr = [f"s_waitcnt vmcnt({nst - 4})"]
                    if c + 1 == AFLAGQ and qtype:
                        assert pos[0] >= early and nst == 12
                        dr = ["s_waitcnt vmcnt(0)"]
                    sync = ["s_barrier"] if c < 13 else (["s_mov_b64 exec, 1", "ds_add_u32 v0, v1", "s_mov_b64 exec, -1"] if c == 15 else [])
                    if c == 14:
                        sync = ["v_readfirstlane_b32 s75, v10", "s_bitcmp1_b32 s75, 6", f"s_cbranch_scc0 {nm}_W", f"{nm}_B:"]
                    seq = (["s_waitcnt lgkmcnt(2)", M[0]] + g0[len(R[:1]):] + dr + ["s_waitcnt lgkmcnt(0)"] + sync + R[:1] + [M[1]] +
                           take(R[1:4], st) + [M[2]] + take(R[4:], st) + [M[3]] + take([], st))
                for i_, l in late.get(st, []):
                    assert pos[0] >= 20 + 12 * (i_ + 1), (st, i_, pos[0])
                    seq.append(l)
                    nlate[0] += 1
                for l in seq:
                    if l == "s_barrier" and PROF in (10, 11, 12) and 0 <= c - (8 if PROF != 11 else 10) < 6:
                        if PROF == 12:
                            stamp(a, c - 8 + 1, 12)
                        a(l)
                        stamp(a, c - 8 + 1, 10)
                        stamp(a, c - 10 + 1, 11) if c >= 10 else None
                    else:
                        a(l)
        for l in F[pos[0]:]:
            a(l)
        sys.stderr.write(f"sweep2: {len(F) - pos[0]} of {len(F)} fillers left over\n")
    a(f"v_mov_b32 v0, {LDS_SYNC + 16}")
    a("v_mov_b32 v1, 1")
    a(f"v_mov_b32 v16, {LDS_TAG}")
    a("ds_read_b64 v[18:19], v16")
    a(f"v_mov_b32 v12, {fh(c0)}")
    a("v_mov_b32 v13, v12")
    a("v_mov_b32 v14, 1.0")
    a("v_mov_b32 v15, 1.0")
    a("s_waitcnt lgkmcnt(0)")
    a("v_readfirstlane_b32 s68, v18")
    a("v_readfirstlane_b32 s69, v19")
    a("s_cmp_lt_u32 s22, 12")
    a("s_cbranch_scc1 SW2R")
    a(f"s_mov_b32 s34, {fh(LOG2E*0.25)}")
    a("s_sub_u32 s38, s22, 12")
    a("s_lshl_b32 s38, s38, 3")
    a("s_lshl_b32 s39, s24, 1")
    a("s_add_u32 s38, s38, s39")
    a(f"s_mul_i32 s38, s38, {HK}")
    a("s_add_u32 s38, s38, s32")
    a("s_lshl_b32 s38, s38, 10")
    F = kv_fill() + q_fill()
    sweep2(F, len(F), True, QCAP)
    a("s_branch K1_GE2")
    a.label("SW2R")
    a(f"s_mov_b32 s34, {fh(c1)}")
    a("s_mov_b32 s35, s34")
    if HEARLY:
        a("s_mul_i32 s40, s32, 144")
        a("s_lshl_b32 s41, s22, 3")
        a("s_add_u32 s40, s40, s41")
        a("s_lshl_b32 s41, s24, 1")
        a("s_add_u32 s40, s40, s41")
        a("s_lshl_b32 s40, s40, 10")
        a(f"s_add_u32 s40, s40, {WS_ACT}")
        a(f"s_add_u32 s41, s40, {144*1024}")
    F = kv_fill()
    ne = len(F)
    F2 = []
    for i in range(2):
        for t in range(2):
            if i * 2 + t < NFILL:
                F += gelu_tile(accF(0, i, t), 80 + 4 * (i * 2 + t), GPK)
                if HEARLY:
                    F.append(f"buffer_store_dwordx4 {v(80 + 4*(i*2+t),4)}, v3, s[28:31], s{40+i} offen offset:{t*1024}{SC}")
            else:
                F2 += gelu_tile(accF(0, i, t), 80 + 4 * (i * 2 + t), True)
    sweep2(F, ne, False, CAP)
    for l in F2:
        a(l)
    a.label("K1_GE2")
    stamp(a, 3)
    a("v_add_u32 v44, s60, v3")
    a("ds_read_b128 v[40:43], v44")
    a(f"s_mov_b32 s34, {fh(c1)}")
    a("s_mov_b32 s35, s34")
    a("s_mul_i32 s36, s32, 144")
    a("s_lshl_b32 s37, s22, 3")
    a("s_lshl_b32 s38, s22, 2")
    a("s_add_u32 s38, s38, 44")
    a("s_cmp_lt_u32 s22, 12")
    a("s_cselect_b32 s37, s37, s38")
    a("s_add_u32 s36, s36, s37")
    a("s_lshl_b32 s37, s24, 1")
    a("s_add_u32 s36, s36, s37")
    a("s_lshl_b32 s36, s36, 10")
    a(f"s_add_u32 s36, s36, {WS_ACT}")
    a(f"s_add_u32 s37, s36, {144*1024}")
    a("s_add_u32 s38, s36, 4096")
    a("s_add_u32 s39, s37, 4096")
    a("s_cmp_lt_u32 s22, 12")
    a("s_cbranch_scc0 K1_GE3")
    for i in range(2):
        for t in range(2):
            if not (HEARLY and i * 2 + t < NFILL):
                a(f"buffer_store_dwordx4 {v(80 + 4*(i*2+t),4)}, v3, s[28:31], s{36+i} offen offset:{t*1024}{SC}")
    place(a, "GE")
    a.label("K1_GE3")
    for t in range(2):
        for i in range(2):
            out = 64 + 4 * (i * 2 + t)
            for l in gelu_tile(accF(1, i, t), out, True)[(-4 if (env("X_NOGE2", 0) and t == 0) else 0):]:
                a(l)
            a(f"buffer_store_dwordx4 {v(out,4)}, v3, s[28:31], s{38+i} offen offset:{t*1024}{SC}")

    a.label("K2_ATTN")
    Q = [8, 12]
    G = [4, 5]
    KB = [16, 20]
    VB = [[24, 28], [32, 36]]
    IDX = 6
    VK, VV0, VV1 = 40, 41, 42
    C = [96, 112]
    S = [128, 144]
    P = [160, 176]
    O = [192, 208]
    a(f"v_mov_b32 v{IDX}, 0xdddd")
    def zero_state():
        for i in range(4):
            a(f"v_mov_b32 v{VB[1][1]+i}, 0")
        a("s_nop 1")
        for r in (O[0], O[1], P[1]):
            a(f"{MF} {v(r,16)}, {v(VB[1][1],4)}, {v(VB[1][1],4)}, 0")
    zero_state()
    a("s_mov_b32 s26, 0")
    a("s_waitcnt lgkmcnt(0)")
    a(f"v_mov_b32 v7, v{VK}                    ; g address")
    a(f"v_mov_b32 v{VK}, v3")
    stamp(a, 1, 16)
    a("s_barrier                              ; X1")
    stamp(a, 2, 16)
    a("s_setprio 2")
    stamp(a, 4)
    stamp(a, 1, 9)
    a(f"ds_read_b128 {v(Q[0],4)}, v43")
    a(f"ds_read_b128 {v(KB[0],4)}, v{VK}")
    a(f"ds_read_b128 {v(Q[1],4)}, v43 offset:1024")
    a("s_waitcnt lgkmcnt(0)")
    for q in range(2):
        a(f"{MF} {v(S[q],16)}, {v(KB[0],4)}, {v(Q[q],4)}, 0")
    a("s_nop 7")
    a("s_nop 3")
    def maxtree(src, dst, acc=False):
        if acc:
            for i in range(0, 16, 2):
                a(f"v_max3_f32 v{dst}, v{src+i}, v{src+i+1}, v{dst}")
        else:
            a(f"v_max_f32 v{dst}, v{src}, v{src+1}")
            for i in range(2, 16, 2):
                a(f"v_max3_f32 v{dst}, v{src+i}, v{src+i+1}, v{dst}")
    for q in range(2):
        maxtree(S[q], 44 + q)
    a.label("K2_SETMAX")
    a(f"ds_read_b128 {v(KB[0],4)}, v{VK}")
    a(f"ds_read_b128 {v(VB[0][0],4)}, v{VV0}")
    a(f"ds_read_b128 {v(VB[0][1],4)}, v{VV1}")
    a(f"ds_read_b128 {v(KB[1],4)}, v{VK} offset:{TP}")
    for q in range(2):
        a(f"v_mov_b32 v{46+q}, v{44+q}")
    a("s_nop 1")
    for q in range(2):
        a(f"v_permlane32_swap_b32 v{44+q}, v{46+q}")
    for q in range(2):
        a(f"v_min_f32 v{44+q}, -v{44+q}, -v{46+q}     ; -max")
    for i in range(0, 16, 2):
        a(f"v_pk_mov_b32 {v(C[0]+i,2)}, v[44:45], v[44:45] op_sel:[0,0]")
    a("s_waitcnt lgkmcnt(0)")
    a("s_nop 0")
    a(f"{MF} {v(S[0],16)}, {v(KB[0],4)}, {v(Q[0],4)}, {v(C[0],16)}")
    for i in range(0, 16, 2):
        a(f"v_pk_mov_b32 {v(C[1]+i,2)}, v[44:45], v[44:45] op_sel:[1,1]")
    a("s_nop 3")
    stamp(a, 2, 9)
    if HU < 0:
        a("s_cmp_lg_u32 s26, 0")
        a("s_cbranch_scc1 K2_NOBAR")
        a("s_waitcnt vmcnt(0)")
        a("s_barrier")
        a.label("K2_NOBAR")
    else:
        a("s_lshl_b32 s27, 1, s20")
        a("v_mov_b32 v48, s27")
    stamp(a, 3, 9)
    stamp(a, 3, 16)
    if PROF == 16:
        a("s_mov_b32 s89, 0")
        a("s_mov_b32 s90, 0")
    if PADATT:
        pad_until(a, PADATT)
    U = UA
    assert U in (8, 16)
    a(f"s_mov_b32 s27, {64 // U - 1}")
    a("s_mov_b32 s77, 2")
    a(f"v_mov_b32 v46, {LDS_SYNC + 12}")
    a.raw(".p2align 6")
    place(a, "A")
    a.label("K2_LOOP")
    def exps(q, lo, hi):
        for i in range(lo, hi):
            a(f"v_exp_f32 v{P[q]+i}, v{S[q]+i}")
    def smf(q, vb, half):
        a(f"v_smfmac_f32_32x32x32_bf16 {v(O[q],16)}, {v(vb,4)}, {v(P[q]+8*half,8)}, v{IDX}")
    for u in range(U):
        b = u & 1
        a(f"{MF} {v(S[1],16)}, {v(KB[b],4)}, {v(Q[1],4)}, {v(C[1],16)}")
        if u == 8:
            a("s_bitcmp1_b32 s75, s77")
            a("s_cbranch_scc0 K2_KVM")
            a.label("K2_MID")
        exps(0, 0, 5)
        smf(1, VB[b ^ 1][1], 1)
        if u == 8:
            a("s_add_u32 s77, s77, 4")
            a("s_min_u32 s77, s77, 14")
        if u == TNEAR and TMODE == 3:
            a("ds_add_u32 v46, v6 offset:8")
        a(f"ds_read_b128 {v(VB[b^1][0],4)}, v{VV0} offset:{(u+1)*VP}")
        exps(0, 5, 11)
        smf(0, VB[b][0], 0)
        if u == HU:
            a("s_waitcnt vmcnt(0)")
            a("s_mov_b64 exec, 1")
            a("ds_or_b32 v46, v48 offset:8")
            a("s_mov_b64 exec, -1")
        a(f"ds_read_b128 {v(VB[b^1][1],4)}, v{VV1} offset:{(u+1)*VP}")
        exps(0, 11, 16)
        a(f"{MF} {v(S[0],16)}, {v(KB[b^1],4)}, {v(Q[0],4)}, {v(C[0],16)}")
        a(f"ds_read_b128 {v(KB[b],4)}, v{VK} offset:{(u+2)*TP}")
        exps(1, 0, 5)
        smf(0, VB[b][1], 1)
        if u % 8 == 7:
            a("ds_read_b32 v47, v46")
        exps(1, 5, 11)
        smf(1, VB[b][0], 0)
        a("s_waitcnt lgkmcnt(0)")
        if u == U - 1:
            a(f"v_add_u32 v{VK}, {U*TP}, v{VK}")
            a(f"v_add_u32 v{VV0}, {U*VP}, v{VV0}")
            a(f"v_add_u32 v{VV1}, {U*VP}, v{VV1}")
        if u % 8 == 7:
            a("v_readfirstlane_b32 s75, v47")
        exps(1, 11, 16)
        if u == 7:
            mid_check = True
    a("s_bitcmp1_b32 s75, s77")
    a("s_cbranch_scc0 K2_KVW")
    a.label("K2_NEXT")
    a("s_add_u32 s77, s77, 4")
    a("s_min_u32 s77, s77, 14")
    if PROF in (9, 16):
        a("s_memrealtime s[96:97]")
        a("s_memtime s[98:99]")
        a("s_waitcnt lgkmcnt(0)")
        for it, sl in (((3, 4), (2, 5), (1, 6)) if PROF == 9 else ((3, 4), (1, 5), (0, 6))):
            a(f"s_cmp_eq_u32 s27, {it}")
            a(f"s_cselect_b32 s{80+sl}, s96, s{80+sl}")
            a(f"s_cselect_b32 s{88+sl}, s98, s{88+sl}")
    a("s_sub_u32 s27, s27, 1")
    a("s_cbranch_scc0 K2_LOOP")
    a("s_nop 1")
    smf(1, VB[(U - 1) & 1][1], 1)
    stamp(a, 5)
    stamp(a, 1, 8)
    stamp(a, 1, 13)
    a(f"v_mov_b32 v46, {LDS_SYNC + 4}")
    a("ds_read_b32 v47, v46")
    a(f"ds_read_b32 v{G[0]}, v7")
    a(f"ds_read_b32 v{G[1]}, v7 offset:128")
    a("s_lshl_b32 s24, s71, 2")
    a("s_add_u32 s24, s24, s20")
    a("s_lshl_b32 s24, s24, 5")
    a("s_add_u32 s24, s24, s70")
    a("s_lshl_b32 s25, s24, 11")
    a(f"s_add_u32 s25, s25, {WS_O}")
    a("v_mov_b32 v48, 0")
    a("v_mov_b32 v49, 0")
    a(f"v_pk_mul_f32 v[44:45], {v(O[0],2)}, v[48:49]")
    for i in range(2, 10, 2):
        a(f"v_pk_fma_f32 v[44:45], {v(O[0]+i,2)}, v[48:49], v[44:45]")
    for i in range(0, 10, 2):
        a(f"v_pk_fma_f32 v[44:45], {v(O[1]+i,2)}, v[48:49], v[44:45]")
    a(f"v_mul_f32 v50, {fh(2.0**68)}, v{O[0]+8}")
    a(f"v_mul_f32 v51, {fh(2.0**68)}, v{O[1]+8}")
    a("v_pk_fma_f32 v[44:45], v[50:51], v[48:49], v[44:45]")
    a("v_cmp_u_f32 vcc, v44, v45")
    a("s_nop 1")
    a("s_cmp_eq_u64 vcc, 0")
    a("s_cbranch_scc0 K2_FB")
    a.label("K2_FIN")
    for q in range(2):
        a(f"v_rcp_f32 v{48+q}, v{O[q]+8}")
    a(f"s_mov_b32 s74, {SPIN*8}")
    a.label("K2_GW")
    a("s_waitcnt lgkmcnt(0)")
    a("v_readfirstlane_b32 s75, v47")
    a("s_sub_u32 s74, s74, 1")
    a("s_cmp_eq_u32 s74, 0")
    a("s_cbranch_scc1 K2_GOK")
    a("s_cmp_ge_u32 s75, 64")
    a("s_cbranch_scc1 K2_GOK")
    a("s_sleep 1")
    a("ds_read_b32 v47, v46")
    a(f"ds_read_b32 v{G[0]}, v7")
    a(f"ds_read_b32 v{G[1]}, v7 offset:128")
    a("s_branch K2_GW")
    a.label("K2_GOK")
    for q in range(2):
        a(f"v_mul_f32 v{44+2*q}, v{48+q}, v{G[q]}")
    GR = S[0]
    a(f"v_mov_b32 v{GR+8}, s68")
    a(f"v_mov_b32 v{GR+9}, s69")
    a(f"v_mov_b32 v{GR+10}, s68")
    a(f"v_mov_b32 v{GR+11}, s69")
    for q in range(2):
        for i in range(0, 8, 2):
            a(f"v_pk_mul_f32 {v(O[q]+i,2)}, {v(O[q]+i,2)}, {v(44+2*q,2)} op_sel_hi:[1,0]")
        for i in range(0, 8, 2):
            a(f"v_cvt_pk_bf16_f32 v{GR + 4*q + i//2}, v{O[q]+i}, v{O[q]+i+1}")
        a(f"buffer_store_dwordx4 {v(GR+4*q,4)}, v3, s[28:31], s25 offen offset:{q*1024}{SC}")
    if FRESH:
        a("s_lshl_b32 s24, s24, 12")
        a(f"s_add_u32 s24, s24, {WS_FR}")
        a("v_lshlrev_b32 v45, 7, v2")
    else:
        a("s_lshl_b32 s24, s24, 7")
        a(f"s_add_u32 s24, s24, {FL_C}")
    a(f"v_mov_b32 v46, {LDS_SYNC + 8}")
    a("v_mov_b32 v47, 1")
    a("s_mov_b64 exec, 1")
    a("ds_add_u32 v46, v47")
    a("s_mov_b64 exec, -1")
    NSD = min(NDEF, 11)
    if NDEF:
        srd(a, 44, 16, 0x1c0000)
        a(f"s_mul_i32 s53, s20, {DSTG}")
        a("s_add_u32 s53, s53, 0x10000")
        frag_addrs(a, "s53")
        part_addrs(a, "s53", 240)
        a(f"s_mul_i32 s32, s20, {NDEF}")
        a(f"s_add_u32 s32, s32, {4*(28-NDEF)}")
        a(f"s_mul_i32 s33, s72, {2*144*1024}")
        a("s_lshl_b32 s34, s32, 10")
        a("s_add_u32 s33, s33, s34")
        a(f"s_add_u32 s33, s33, {WS_ACT}")
        a(f"s_add_u32 s34, s33, {144*1024}")
        a("s_lshl_b32 s35, s32, 14")
        a("s_lshl_b32 s36, s73, 7")
        a("s_add_u32 s35, s35, s36")
        a("v_and_b32 v4, 31, v2")
        a("v_lshlrev_b32 v4, 2, v4")
        a(f"v_add_u32 v4, {LDS_OG}, v4")
        a("ds_read_b32 v244, v4")
        a("ds_read_b32 v246, v4 offset:128")
        a("ds_read_b32 v47, v46")
    stamp(a, 2, 13)
    a("s_waitcnt vmcnt(0)")
    stamp(a, 3, 13)
    if FULLF:
        a("s_mov_b64 exec, 0xff")
        a(f"buffer_store_dwordx4 {v(GR+8,4)}, v3, s[28:31], s24 offen sc1")
    elif FRESH:
        a("s_mov_b32 exec_hi, 0")
        a(f"buffer_store_dwordx2 {v(GR+8,2)}, v45, s[28:31], s24 offen sc1")
    elif ATFLAG:
        a("s_mov_b64 exec, 1")
        a(f"buffer_atomic_swap_x2 {v(GR+8,2)}, v3, s[28:31], s24 offen sc1")
    else:
        a("s_mov_b64 exec, 1")
        a(f"buffer_store_dwordx2 {v(GR+8,2)}, v3, s[28:31], s24 offen sc1")
    a("s_mov_b64 exec, -1")
    a("s_setprio 0")
    stamp(a, 6)
    stamp(a, 2, 8)
    if NDEF:
        lds_wait(a, 46, 47, ["s_and_b32 s75, s75, 255", "s_cmp_ge_u32 s75, 68"], first_read=False)
        a("v_mov_b32 v248, v46")
        a("v_mov_b32 v249, 256")
        DA_, DW_, DC_ = 144, 80, 16
        dq = []
        def dw(k):
            a(f"s_add_u32 m0, s53, {(k % NSD) * 2048}")
            a("s_nop 0")
            a("buffer_load_dwordx4 v10, s[44:47], s35 offen lds")
            a("buffer_load_dwordx4 v11, s[44:47], s35 offen offset:1024 lds")
            a("s_add_u32 s35, s35, 16384")
            dq.extend([k] * 2)
        def da(k):
            for t in range(2):
                a(f"buffer_load_dwordx4 {v(DA_+8*k+4*t,4)}, v3, s[28:31], s{33+t} offen offset:{(k%4)*1024}{SC}")
            if k % 4 == 3:
                a("s_add_u32 s33, s33, 4096")
                a("s_add_u32 s34, s34, 4096")
            dq.extend([k] * 2)
        def dwait(k):
            a(f"s_waitcnt vmcnt({len(dq) - 1 - max(i for i, t in enumerate(dq) if t == k)})")
        def drd(k):
            b = DW_ + 8 * (k & 1)
            for n in range(2):
                for u in range(2):
                    a(f"ds_read_b64_tr_b16 {v(b+4*n+2*u,2)}, v{12+n} offset:{(k % NSD) * 2048 + u*1024}")
        AH = min(AHD, NDEF)
        for k in range(AH):
            dw(k); da(k)
        dwait(0)
        stamp(a, 3, 8)
        drd(0)
        for k in range(NDEF):
            if k + AH < NDEF:
                dw(k + AH); da(k + AH)
            if k + 1 < NDEF:
                dwait(k + 1)
                if k + 3 == NDEF:
                    a("s_mov_b64 exec, 1")
                    a("ds_add_u32 v248, v249")
                    a("s_mov_b64 exec, -1")
                drd(k + 1)
                a("s_waitcnt lgkmcnt(4)")
            else:
                a("s_waitcnt lgkmcnt(0)")
            b = DW_ + 8 * (k & 1)
            for n in range(2):
                for t in range(2):
                    acc = DC_ + (n * 2 + t) * 16
                    cin = "0" if k == 0 else v(acc, 16)
                    a(f"{MF} {v(acc,16)}, {v(b+4*n,4)}, {v(DA_+8*k+4*t,4)}, {cin}")
        stamp(a, 4, 8)
        a("s_nop 7")
        for n in range(2):
            for t in range(2):
                acc = DC_ + (n * 2 + t) * 16
                if n + t == 0:
                    a("s_nop 1")
                for j in range(0, 16, 2):
                    a(f"v_pk_mul_f32 {v(acc+j,2)}, {v(acc+j,2)}, {v(244+2*t,2)} op_sel_hi:[1,0]")
                for g in range(4):
                    a(f"ds_write_b128 v{240+g}, {v(acc+4*g,4)} offset:{t*8192 + n*128}")
        stamp(a, 5, 8)
    a("s_branch K3_REDUCE")
    a.label("K2_FB")
    a("s_cmp_lg_u32 s26, 0")
    a("s_cbranch_scc1 K2_FIN")
    a("s_waitcnt lgkmcnt(0)")
    a("s_mov_b32 s26, 100")
    vaddr_init(a)
    zero_state()
    a("v_mov_b32 v44, 0xff800000")
    a("v_mov_b32 v45, 0xff800000")
    a("v_mov_b32 v43, v3")
    a("s_mov_b32 s27, 64")
    a.label("K2_MAXLOOP")
    a(f"ds_read_b128 {v(KB[0],4)}, v43")
    a(f"v_add_u32 v43, {TP}, v43")
    a("s_waitcnt lgkmcnt(0)")
    for q in range(2):
        a(f"{MF} {v(S[q],16)}, {v(KB[0],4)}, {v(Q[q],4)}, 0")
    a("s_nop 7")
    a("s_nop 7")
    for q in range(2):
        maxtree(S[q], 44 + q, acc=True)
    a("s_sub_u32 s27, s27, 1")
    a("s_cmp_lg_u32 s27, 0")
    a("s_cbranch_scc1 K2_MAXLOOP")
    a("s_branch K2_SETMAX")
    for nm in ("SQ", "SR"):
        a.label(nm + "_W")
        lds_wait(a, 0, 10, ["s_bitcmp1_b32 s75, 6"])
        a(f"s_branch {nm}_B")
    for lab, back in (("K2_KVW", "K2_NEXT"), ("K2_KVM", "K2_MID"))[:U // 8]:
        a.label(lab)
        if PROF == 16:
            a("s_memtime s[100:101]")
        lds_wait(a, 46, 47, ["s_bitcmp1_b32 s75, s77"])
        if PROF == 16:
            a("s_memtime s[98:99]")
            a("s_waitcnt lgkmcnt(0)")
            a("s_sub_u32 s98, s98, s100")
            a("s_add_u32 s89, s89, s98")
            a("s_lshl_b32 s98, 1, s77")
            a("s_or_b32 s90, s90, s98")
        a(f"s_branch {back}")

    a.label("K2_GEMM")
    ND, NW = 28 - NDEF, 8
    NG = ND // 4
    NS = env('NSW', 3)
    srd(a, 44, 16, 0x1c0000)
    srd(a, 48, 8, 0x80000)
    if FMAP:
        a("s_and_b32 s42, s72, 3")
        a("s_lshl_b32 s42, s42, 1")
        a("s_add_u32 s42, s42, s73")
    else:
        a("s_lshr_b32 s42, s2, 3")
        a("s_and_b32 s43, s42, 7")
        a("s_lshr_b32 s42, s42, 3")
        a("s_lshl_b32 s42, s42, 1")
        a("s_add_u32 s42, s42, s43")
    for _ in range(-(-14 // NG) - 1):
        a(f"s_cmp_ge_u32 s42, {NG}")
        a(f"s_cselect_b32 s43, {NG}, 0")
        a("s_sub_u32 s42, s42, s43")
    if not ROT:
        a("s_mov_b32 s42, 0")
    a("s_mov_b32 s52, s42")
    a(f"s_mul_i32 s32, s23, {ND}")
    a("s_lshl_b32 s43, s42, 2")
    a("s_add_u32 s32, s32, s43")
    a(f"s_mul_i32 s33, s72, {2*144*1024}")
    a(f"s_add_u32 s33, s33, {WS_ACT}")
    a("s_lshl_b32 s43, s32, 10")
    a("s_add_u32 s33, s33, s43")
    a(f"s_add_u32 s34, s33, {144*1024}")
    a("s_lshl_b32 s43, s73, 7")
    a("s_lshl_b32 s35, s32, 14")
    a("s_add_u32 s35, s35, s43")
    a("s_lshl_b32 s39, s23, 17")
    a("s_add_u32 s39, s39, s43")
    a(f"s_mul_i32 s53, s23, {3*2048}")
    a(f"s_add_u32 s53, s53, {LDS_WS}")
    GA = 16
    FR = 80
    D = 8
    queue = []
    def ld(dst, sr, k, tag):
        a(f"buffer_load_dwordx4 {v(dst,4)}, v3, s[28:31], s{sr} offen offset:{(k%4)*1024}{SC}")
        queue.append(tag)
    def aloads(k):
        b = FR + (k % D) * 16
        ld(b + 4, 33, k, ("a", k)); ld(b + 12, 34, k, ("a", k))
        if k % 4 == 3:
            a("s_add_u32 s42, s42, 1")
            a(f"s_cmp_eq_u32 s42, {NG}")
            a("s_movk_i32 s43, 4096")
            a(f"s_cselect_b32 s43, {(-(NG-1)*4096) & 0xffffffff:#x}, s43")
            a("s_cselect_b32 s42, 0, s42")
            for sr in (33, 34):
                a(f"s_add_u32 s{sr}, s{sr}, s43")
    def wloads(k):
        a(f"s_add_u32 m0, s53, {(k % NS) * 2048}")
        sr, rs = (35, 44) if k < ND else (39, 48)
        a("s_nop 0")
        a(f"buffer_load_dwordx4 v248, s[{rs}:{rs+3}], s{sr} offen lds")
        a(f"buffer_load_dwordx4 v249, s[{rs}:{rs+3}], s{sr} offen offset:1024 lds")
        queue.extend([("w", k)] * 2)
        a(f"s_add_u32 s{sr}, s{sr}, 16384")
        if k < ND and k % 4 == 3:
            a("s_add_u32 s52, s52, 1")
            a(f"s_cmp_eq_u32 s52, {NG}")
            a(f"s_cselect_b32 s43, {(-ND*16384) & 0xffffffff:#x}, 0")
            a("s_cselect_b32 s52, 0, s52")
            a("s_add_u32 s35, s35, s43")
    def waitfor(*tags):
        n = len(queue) - 1 - max(i for i, t in enumerate(queue) if t in tags)
        a(f"s_waitcnt vmcnt({n})")
    def wreads(k):
        b = FR + (k % D) * 16
        for n in range(2):
            for u in range(2):
                a(f"ds_read_b64_tr_b16 {v(b+8*n+2*u,2)}, v{250+n} offset:{(k % NS) * 2048 + u*1024}")
    def mm(k):
        b = FR + (k % D) * 16
        for n in range(2):
            for t in range(2):
                acc = GA + (n * 2 + t) * 16
                cin = "0" if k == 0 else v(acc, 16)
                a(f"{MF} {v(acc,16)}, {v(b+8*n,4)}, {v(b+4+8*t,4)}, {cin}")
    stamp(a, 3)
    a(f"v_mov_b32 v22, {LDS_SYNC + 16}")
    lds_wait(a, 22, 23, ["s_bitcmp1_b32 s75, 2"])
    a("ds_write_b128 v36, v[40:43]")
    a("ds_write_b128 v36, v[44:47] offset:16")
    a(f"ds_write_b128 v36, v[40:43] offset:{2*VP}")
    a(f"ds_write_b128 v36, v[44:47] offset:{2*VP+16}")
    if KVV == 1:
        kv_loads(3, 5)
    a(f"s_waitcnt vmcnt({4 if KVV == 1 else 0}) lgkmcnt(0)")
    stamp(a, 5, 15)
    if KVV >= 3:
        kv_loads(3, 5)
    if KVV >= 4:
        kv_loads(5, 7)
    a("s_barrier                              ; X1")
    a(f"s_setprio {GPRIO}")
    stamp(a, 6, 15)
    if KVV == 2:
        kv_loads(3, 5)
    if KVV < 4:
        kv_loads(5, 7)
    else:
        kv_loads(7, 9)
    def b1_flag():
        a("s_cmp_lg_u32 s23, 1")
        a("s_cbranch_scc1 K2_NOB1")
        a("s_lshl_b32 s37, s21, 4")
        a("s_add_u32 s37, s37, s22")
        a("s_lshl_b32 s37, s37, 7")
        a(f"s_add_u32 s37, s37, {FL_B1}")
        flag_store(a, "s37", 16)
        a.label("K2_NOB1")
    if HU < 0:
        a("s_barrier                              ; X2")
        b1_flag()
    a(f"v_mov_b32 v34, {LDS_SYNC + 12}")
    def arrived(stage, n):
        a(f"v_mov_b32 v35, {1 << (4 * stage)}")
        a(f"s_waitcnt vmcnt({n})")
        a("s_mov_b64 exec, 1")
        a("ds_add_u32 v34, v35")
        a("s_mov_b64 exec, -1")
    if KVV < 4:
        kv_loads(7, 9)
    arrived(0, 8)
    arrived(1, 4)
    if HU >= 0:
        a(f"v_mov_b32 v22, {LDS_SYNC + 20}")
        lds_wait(a, 22, 23, ["s_cmp_eq_u32 s75, 15"])
        b1_flag()
    kv_loads(9, 12)
    arrived(2, 6)
    kv_loads(12, 16)
    srd(a, 44, 16, 0x1c0000)
    arrived(3, 0)
    a("v_mov_b32 v69, s68")
    a("s_lshl_b32 s55, s76, 4")
    a(f"s_add_u32 s55, s55, {WS_G}")
    a("s_mov_b32 exec_lo, 1")
    a("s_mov_b32 exec_hi, 1")
    a(f"buffer_store_dwordx2 v[68:69], v70, s[28:31], s55 offen{SC}")
    a("s_mov_b64 exec, -1")
    if WARMW and FMAP:
        a("s_lshr_b32 s54, s2, 3")
        a("s_lshl_b32 s54, s54, 2")
        a("s_add_u32 s54, s54, s23")
        a("s_mul_i32 s55, s54, 14336")
        a("v_min_u32 v14, 55, v2")
        a("v_lshlrev_b32 v14, 7, v14")
        a("buffer_load_dword v15, v14, s[44:47], s55 offen")
        a("s_add_u32 s55, s55, 7168")
        a("buffer_load_dword v15, v14, s[44:47], s55 offen")
        a("s_lshl_b32 s55, s54, 12")
        a("v_and_b32 v14, 31, v2")
        a("v_lshlrev_b32 v14, 7, v14")
        a("buffer_load_dword v15, v14, s[48:51], s55 offen")
    elif WARMW:
        a("s_lshr_b32 s54, s2, 3")
        a("s_and_b32 s54, s54, 7")
        a("s_lshl_b32 s55, s54, 2")
        a("s_add_u32 s55, s55, s23")
        a("s_mul_i32 s55, s55, 57344")
        a("s_add_u32 s55, s55, s43")
        a("v_min_u32 v14, 55, v2")
        a("v_lshlrev_b32 v14, 10, v14")
        a("buffer_load_dword v15, v14, s[44:47], s55 offen")
        a("s_lshl_b32 s55, s54, 2")
        a("s_add_u32 s55, s55, s23")
        a("s_lshl_b32 s55, s55, 14")
        a("s_add_u32 s55, s55, s43")
        a("v_and_b32 v14, 15, v2")
        a("v_lshlrev_b32 v14, 10, v14")
        a("buffer_load_dword v15, v14, s[48:51], s55 offen")
    for k in range(NS):
        wloads(k)
    a("s_setprio 3")
    a("v_and_b32 v6, 15, v2")
    a("v_lshlrev_b32 v6, 7, v6")
    a("s_lshr_b32 s24, s72, 1")
    a("s_lshl_b32 s24, s24, 11")
    a(f"s_add_u32 s24, s24, {FL_B1}")
    poll_shared(a, 3, [("s24", 6, 8, 4)], 20, lslp=4)
    a("v_and_b32 v6, 31, v2")
    a("v_lshlrev_b32 v6, 3, v6")
    a("v_lshlrev_b32 v7, 3, v2")
    a("s_lshl_b32 s54, s72, 9")
    a(f"s_add_u32 s54, s54, {WS_G}")
    a("s_lshl_b32 s55, s71, 2")
    a("s_add_u32 s55, s55, s23")
    a("s_lshl_b32 s55, s55, 9")
    a(f"s_add_u32 s55, s55, {WS_G}")
    a(f"s_mov_b32 s74, {SPIN}")
    a.label("K2_GL")
    a(f"buffer_load_dwordx2 v[240:241], v6, s[28:31], s54 offen{SC}")
    a(f"buffer_load_dwordx2 v[242:243], v6, s[28:31], s54 offen offset:256{SC}")
    a(f"buffer_load_dwordx2 v[244:245], v7, s[28:31], s55 offen{SC}")
    a("s_waitcnt vmcnt(0)")
    a("v_xor_b32 v8, s68, v241")
    a("v_xor_b32 v9, s68, v243")
    a("v_xor_b32 v14, s68, v245")
    a("v_or3_b32 v8, v8, v9, v14")
    a("v_cmp_ne_u32 vcc, 0, v8")
    a("s_sub_u32 s74, s74, 1")
    a("s_cbranch_scc1 K2_GD")
    a("s_cmp_eq_u64 vcc, 0")
    a("s_cbranch_scc1 K2_GD")
    a("s_sleep 4")
    a("s_branch K2_GL")
    a.label("K2_GD")
    a("s_lshl_b32 s55, s23, 8")
    a(f"s_add_u32 s55, s55, {LDS_GQ}")
    a("v_lshrrev_b32 v7, 1, v7")
    a("v_add_u32 v7, s55, v7")
    a("ds_write_b32 v7, v244")
    a("v_sub_f32 v240, 1.0, v240")
    a("v_sub_f32 v242, 1.0, v242")
    a("v_lshrrev_b32 v6, 1, v6")
    a(f"v_add_u32 v6, {LDS_OG}, v6")
    a("ds_write_b32 v6, v240")
    a("ds_write_b32 v6, v242 offset:128")
    a(f"v_mov_b32 v8, {LDS_SYNC + 4}")
    a("v_mov_b32 v9, 16")
    a("s_waitcnt lgkmcnt(0)")
    a("s_mov_b64 exec, 1")
    a("ds_add_u32 v8, v9")
    a("s_mov_b64 exec, -1")
    stamp(a, 4)
    stamp(a, 6, 16)
    DA = DAH
    a("s_setprio 0")
    place(a, "D")
    for k in range(DA):
        aloads(k)
    for k in range(ND + NW):
        waitfor(("w", k), ("a", k))
        wreads(k)
        a("s_waitcnt lgkmcnt(0)")
        if k + NS < ND + NW:
            wloads(k + NS)
        if k + DA < ND:
            aloads(k + DA)
        if k < ND:
            mm(k)
    a("s_setprio 3")
    if NDEF and WARMD:
        assert FMAP
        a(f"s_mul_i32 s33, s72, {2*144*1024}")
        a("s_lshr_b32 s34, s23, 1")
        a(f"s_mul_i32 s34, s34, {144*1024}")
        a("s_add_u32 s33, s33, s34")
        a("s_lshl_b32 s34, s73, 1")
        a("s_and_b32 s35, s23, 1")
        a("s_add_u32 s34, s34, s35")
        a(f"s_mul_i32 s34, s34, {NDEF*256}")
        a("s_add_u32 s33, s33, s34")
        a(f"s_add_u32 s33, s33, {WS_ACT + 4*ND*1024}")
        a(f"v_min_u32 v14, {2*NDEF-1}, v2")
        a("v_lshlrev_b32 v14, 7, v14")
        a(f"buffer_load_dword v15, v14, s[28:31], s33 offen{SC}")
        a("s_and_b32 s34, s72, 3")
        a("s_lshl_b32 s34, s34, 2")
        a("s_add_u32 s34, s34, s23")
        a(f"s_mul_i32 s34, s34, {NDEF*4096}")
        a("s_lshl_b32 s35, s73, 7")
        a("s_add_u32 s34, s34, s35")
        a(f"s_add_u32 s34, s34, {4*ND*16384}")
        a(f"v_min_u32 v14, {4*NDEF-1}, v2")
        a("v_lshlrev_b32 v14, 10, v14")
        a("buffer_load_dword v15, v14, s[44:47], s34 offen")
    a("s_nop 7")
    a("s_nop 7")
    for n in range(2):
        for t in range(2):
            acc = GA + (n * 2 + t) * 16
            for j in range(16):
                a(f"v_mul_f32 v{acc+j}, v{acc+j}, v{240+2*t}")
    a("s_lshl_b32 s24, s72, 2")
    a("s_add_u32 s24, s24, s23")
    a("s_lshl_b32 s24, s24, 14")
    a(f"s_add_u32 s24, s24, {WS_O}")
    a("v_and_b32 v6, 7, v2")
    a("v_lshlrev_b32 v6, 7, v6")
    a("s_lshl_b32 s26, s72, 12")
    a("s_lshl_b32 s25, s23, 10")
    a("s_add_u32 s26, s26, s25")
    if FRESH:
        a("v_lshlrev_b32 v6, 5, v6")
        a("s_lshl_b32 s27, s26, 5")
        a(f"s_add_u32 s27, s27, {WS_FR}")
    a(f"s_add_u32 s26, s26, {FL_C}")
    a(f"v_mov_b32 v11, {LDS_SYNC + 8}")
    a("v_mov_b32 v10, 16")
    a("s_mov_b64 exec, 1")
    a("ds_add_u32 v11, v10")
    a("s_mov_b64 exec, -1")
    a("s_mov_b32 s54, 0")
    a(f"s_mov_b32 s74, {SPIN}")
    stamp(a, 5)
    stamp(a, 1, 8)
    def c_poll(r=8):
        if FRESH:
            a("s_memrealtime s[58:59]")
        a(f"v_mov_b32 v{r}, 0")
        a(f"v_mov_b32 v{r+1}, 0")
        if FRESH:
            a("s_waitcnt lgkmcnt(0)")
            a(f"s_bfe_u32 s58, s58, {(5 << 16) | FRESH:#x}")
            a("s_lshl_b32 s58, s58, 7")
            a("s_add_u32 s26, s27, s58")
        if MASKP:
            a("s_xor_b32 exec_lo, s54, 0xff")
            a("s_mov_b32 exec_hi, 0")
        else:
            a("s_mov_b64 exec, 0xff")
        if ATPOLL:
            a(f"buffer_atomic_or_x2 {v(r,2)}, v6, s[28:31], s26 offen sc0 sc1")
        else:
            a(f"buffer_load_dwordx2 {v(r,2)}, v6, s[28:31], s26 offen sc1")
        a("s_mov_b64 exec, -1")
    def pause():
        if NDEF and PAUSE:
            lab, done = a.newlabel("PZ"), a.newlabel("PZD")
            a(f"s_mov_b32 s76, {SPIN}")
            a.label(lab)
            a("ds_read_b32 v10, v11")
            a("s_waitcnt lgkmcnt(0)")
            a("v_readfirstlane_b32 s75, v10")
            a("s_sub_u32 s76, s76, 1")
            a(f"s_cbranch_scc1 {done}")
            a("s_cmp_ge_u32 s75, 1024")
            a(f"s_cbranch_scc1 {done}")
            a("s_and_b32 s75, s75, 15")
            a(f"s_cbranch_scc0 {done}")
            a("s_sleep 1")
            a(f"s_branch {lab}")
            a.label(done)
    def o_loads(tag):
        for kk in range(NW):
            b = FR + ((ND + kk) % D) * 16
            a(f"s_bitcmp1_b32 s55, {kk}")
            a(f"s_cbranch_scc0 K3_L{tag}{kk}")
            a(f"s_add_u32 s25, s24, {kk*2048}")
            a(f"buffer_load_dwordx4 {v(b+4,4)}, v3, s[28:31], s25 offen{SC}")
            a(f"buffer_load_dwordx4 {v(b+12,4)}, v3, s[28:31], s25 offen offset:1024{SC}")
            a.label(f"K3_L{tag}{kk}")
    if TMODE:
        if TMODE == 3:
            a(f"v_mov_b32 v12, {LDS_SYNC + 20}")
            a.label("K3_NEAR")
            a("ds_read_b32 v10, v12")
            a("s_waitcnt lgkmcnt(0)")
            a("v_readfirstlane_b32 s75, v10")
            a(f"s_cmp_gt_u32 s75, {12 * 64 * 0xdddd}")
            a("s_cbranch_scc1 K3_NEAR1")
            a(f"s_sleep {PSLOW // 2}")
            a("s_sub_u32 s74, s74, 1")
            a("s_cbranch_scc0 K3_NEAR")
            a.label("K3_NEAR1")
            c_poll()
            a("s_waitcnt vmcnt(0)")
            a("v_cmp_eq_u64 vcc, s[68:69], v[8:9]")
            a(f"s_mov_b32 s74, {SPIN}")
            a("s_mov_b32 s55, vcc_lo")
            a("s_mov_b32 s54, s55")
            o_loads("P")
        a.label("K3_PRE")
        if TMODE == 2:
            a("s_cmp_eq_u32 s54, 0xff")
            a("s_cbranch_scc1 K3_PRE1")
            c_poll()
            a("s_waitcnt vmcnt(0)")
            a("v_cmp_eq_u64 vcc, s[68:69], v[8:9]")
            a("s_nop 0")
            a("s_andn2_b32 s55, vcc_lo, s54")
            a("s_or_b32 s54, s54, s55")
            o_loads("P")
            a.label("K3_PRE1")
        for rep in range(4):
            a("ds_read_b32 v10, v11")
            a("s_waitcnt lgkmcnt(0)")
            a("v_readfirstlane_b32 s75, v10")
            a("s_and_b32 s75, s75, 15")
            a("s_cbranch_scc1 K3_GO")
            a(f"s_sleep {PSLOW // 4}")
        a("s_sub_u32 s74, s74, 1")
        a("s_cbranch_scc0 K3_PRE")
        a.label("K3_GO")
        a(f"s_mov_b32 s74, {SPIN}")
        a("s_mov_b32 s55, s54")
        a("s_branch K3_NEXTP")
    a.label("K3_POLL")
    c_poll()
    a.label("K3_ROUND")
    a("s_waitcnt vmcnt(0)")
    a("v_cmp_eq_u64 vcc, s[68:69], v[8:9]")
    a("s_sub_u32 s74, s74, 1")
    a("s_cselect_b32 s55, 0xff, vcc_lo")
    a("s_andn2_b32 s55, s55, s54")
    a("s_cbranch_scc1 K3_SOME")
    if TMODE:
        a(f"s_sleep {TSLP}")
    else:
        a("ds_read_b32 v10, v11")
        a(f"s_sleep {TSLP}")
        a("s_waitcnt lgkmcnt(0)")
        a("v_readfirstlane_b32 s75, v10")
        a("s_and_b32 s75, s75, 15")
        a("s_cbranch_scc1 K3_POLL")
        a(f"s_sleep {PSLOW}")
    a("s_branch K3_POLL")
    a.label("K3_SOME")
    stamp(a, 1, 13)
    if PROF == 13:
        a("s_mov_b32 s89, s55")
    a("s_or_b32 s54, s54, s55")
    o_loads("")
    a.label("K3_NEXTP")
    a("s_waitcnt vmcnt(0)")
    a("s_cmp_eq_u32 s54, 0xff")
    a("s_cbranch_scc1 K3_LAST")
    c_poll()
    a.label("K3_LAST")
    a("ds_read_b32 v10, v11")
    stamp(a, 2, 13)
    for kk in range(NW):
        a(f"s_bitcmp1_b32 s55, {kk}")
        a(f"s_cbranch_scc0 K3_C{kk}")
        mm(ND + kk)
        a.label(f"K3_C{kk}")
    a("s_cmp_lg_u32 s54, 0xff")
    a("s_cbranch_scc1 K3_ROUND")
    stamp(a, 6)
    stamp(a, 2, 8)
    stamp(a, 3, 13)
    lds_wait(a, 11, 10, ["s_bitcmp1_b32 s75, 2"], first_read=False)
    for i in range(3, 6):
        stamp(a, i, 8)
    stamp(a, 4, 13)
    a("s_nop 7")
    part_write(a, GA, 212)
    stamp(a, 5, 13)
    a.label("K3_REDUCE")
    srd(a, 24, 64, 0x200000)
    a("s_lshl_b32 s32, s20, 6")
    a("v_add_u32 v0, s32, v2                  ; tid")
    a("v_lshrrev_b32 v7, 3, v0                ; token")
    a("v_and_b32 v5, 7, v0")
    a("v_lshlrev_b32 v6, 1, v5")
    a("v_and_b32 v8, 7, v7")
    a("v_xor_b32 v6, v6, v8")
    a("v_lshlrev_b32 v6, 4, v6")
    a("v_lshl_add_u32 v6, v7, 8, v6")
    a("v_xor_b32 v8, 16, v6")
    a("v_add_u32 v9, 0x10000, v6")
    a("v_add_u32 v10, 0x10000, v8")
    a("v_lshlrev_b32 v7, 10, v7")
    a("v_lshl_add_u32 v7, v5, 4, v7")
    a("s_lshl_b32 s32, s72, 16")
    a("s_lshl_b32 s33, s73, 7")
    a("s_add_u32 s32, s32, s33")
    a("s_waitcnt lgkmcnt(0)")
    a("s_barrier                              ; Y1")
    stamp(a, 6, 8)
    stamp(a, 6, 13)
    NP = 8 if NDEF else 4
    RB = 96
    for w in range(NP):
        off = w * 16384 if w < 4 else (w - 4) * DSTG
        r0, r1 = (6, 8) if w < 4 else (9, 10)
        if off > 65535:
            a("v_add_u32 v9, 0x8000, v9")
            a("v_add_u32 v10, 0x8000, v10")
            off -= 0x8000
        a(f"ds_read_b128 {v(RB+8*w,4)}, v{r0} offset:{off}")
        a(f"ds_read_b128 {v(RB+4+8*w,4)}, v{r1} offset:{off}")
    for w in range(1, NP):
        a(f"s_waitcnt lgkmcnt({2*(NP-1-w)})")
        for j in range(0, 8, 2):
            a(f"v_pk_add_f32 {v(RB+j,2)}, {v(RB+j,2)}, {v(RB+8*w+j,2)}")
    for j in range(0, 8, 2):
        a(f"v_cvt_pk_bf16_f32 v{16+j//2}, v{RB+j}, v{RB+j+1}")
    a("buffer_store_dwordx4 v[16:19], v7, s[24:27], s32 offen" + (" " + OUTSC if OUTSC else ""))
    if PADEND:
        pad_until(a, PADEND)
    stamp_flush(a, 8)
    a.label("K_EXIT")
    a("s_endpgm")
    a.label("K_END")

DOC = """;
"""

def main():
    hdr = open("cdna_kernels/" + NAME + ".s.ref").read().split("\n")
    top = [l for l in hdr if l.startswith(";") and "@launch" not in l]
    out = "\n".join(top) + "\n"
    out += f"; @launch grid=(256,1,1) block=(512,1,1) lds={LDS_TOTAL}\n"
    out += DOC
    out += '.amdgcn_target "amdgcn-amd-amdhsa--gfx950"\n.text\n'
    a = Asm()
    gen(a)
    out += a.text()
    out += '.section .rodata,"a"\n'
    out += kernel_desc(KNAME, 256, 102)
    path = sys.argv[1] if len(sys.argv) > 1 else "cdna_kernels/" + NAME + ".s"
    open(path, "w").write(out)

main()
```

```python
import sys, math, os
from asmlib import *

NAME = "gated_mix__softmax_full_mha__geglu_ffn__prompt"
KNAME = NAME + "_kernel"
LOG2E = 1.4426950408889634
def env(n, d): return int(os.environ.get(n, str(d)))
PROF = env("PROF", 0)
ROT = env("ROT", 1)
TAGPOS = env("TAGPOS", 0)
PADEND = env("PADEND", 0)
PADATT = env("PADATT", 0)
DBGWG = env("DBGWG", -1)
TLBW = env("TLBW", 0)
PFW = env("PFW", 0)
PFI = env("PFI", 1)
PFX = env("PFX", 0)
KVROT = env("KVROT", 1)
AFLAG = env("AFLAG", 10)
PFC = env("PFC", 5)
ONEP = env("ONEP", 0)
FMAP = env("FMAP", 0)
NOTAG = env("NOTAG", 0)
ROT1 = env("ROT1", 2)
OUTSC = os.environ.get("OUTSC", "sc1")
GPK = env("GPK", 0)
UA = env("UA", 16)
PRE = env("PRE", 2)
QLD = env("QLD", 4)
WARMW = env("WARMW", 0)
ROT2 = env("ROT2", 1)
NDEF = env("NDEF", 0)
WARMD = env("WARMD", 1)
PSLOW = env("PSLOW", 16)
PAUSE = env("PAUSE", 1)
KVV = env("KVV", 2)
FASTX = env("FASTX", 0)
FULLF = env("FULLF", 0)
PIPE = env("PIPE", 1)
ATFLAG = env("ATFLAG", 1)
FRESH = env("FRESH", 0)
WS_FR = 0x2000000
PDEL = env("PDEL", 4)
MASKP = env("MASKP", 1)
SPAT = env("SPAT", 3)
LPRIO = env("LPRIO", 0)
FA0 = env("FA0", 13)
AFLAGQ = env("AFLAGQ", 11)
CAP = env("CAP", 20)
QS0 = env("QS0", 6)
QSD = env("QSD", 0)
TMODE = env("TMODE", 1)
GPRIO = env("GPRIO", 3)
ATFA = env("ATFA", 0)
QFIRST = env("QFIRST", 1)
HU = env("HU", -1)
KVW = env("KVW", 0)
HEARLY = env("HEARLY", 0)
HLATE = env("HLATE", -1)
HSTEP = env("HSTEP", 1)
AMIX = env("AMIX", 1)
FULLA = env("FULLA", 0)
ATFS = env("ATFS", 0)
TNEAR = env("TNEAR", 10)
DAH = env("DAH", 4)
GLD = env("GLD", 7)
GMA = env("GMA", 9)
FDEL = env("FDEL", 0)
FSLP = env("FSLP", 1)
QCAP = env("QCAP", 40)
KVA = env("KVA", 0)
NFILL = env("NFILL", 4)
AHD = env("AHD", 6)
ATPOLL = env("ATPOLL", 1)
HINTW = env("HINTW", 0)
TSLP = env("TSLP", 2)
SPF = env("SPF", 0)
CODEPF = env("CODEPF", 1)
SLP = env("SLP", 4)

HK = env("HK", 64)
WS_Q = 0x0 if HK == 64 else 0x1400000
WS_K = 0x200000 if HK == 64 else 0
WS_V = 0x400000 if HK == 64 else 0x300000 + 1024 * env("VOFF", 1)
WS_ACT = 0x600000
WS_O = 0xF00000
WS_G = 0x1240000
WS_FL = 0x1280000
FL_A = WS_FL
FL_B1 = WS_FL + 0x8000
FL_Q = WS_FL + 0x10000 - 12 * 2048
FL_B2 = WS_FL + 0x10000
FL_C = WS_FL + 0x20000
WS_STAMP = 0x1800000
WS_SIZE = 0x2800000

XS = 16384
WB = 5 * XS
WSL = 24576
LDS_GQ = 162176
LDS_OG = 163200
LDS_TAG = 163584
LDS_SYNC = LDS_TAG + 8
LDS_TOTAL = 163840
TP = 2080
LDS_V = 1024
VP = TP
LDS_WS = 137472
DSTG = 22528
LDS_Q = WB + 2 * WSL + 16384
LDS_PARK = WB + 3 * WSL
XPOS = [3, 2, 0, 1, 4, 3, 2, 0,  0, 2, 3, 4, 1, 2, 3, 4]
def xslot(c):
    return XPOS[c] * XS
def wslot(c):
    return WB + ((c % 3) * WSL if c < 8 else ((c + 3) % 4) * 16384)

SC = " sc1"
SPIN = 200000
MF = "v_mfma_f32_32x32x16_bf16"

def srd(a, d, base, nbytes):
    a(f"s_mov_b32 s{d}, s{base}")
    a(f"s_mov_b32 s{d+1}, s{base+1}")
    a(f"s_mov_b32 s{d+2}, {nbytes:#x}")
    a(f"s_mov_b32 s{d+3}, 0x20000")

def stamp(a, i, lvl=1):
    if PROF and (PROF == lvl or i in (0, 7) or (PROF == 16 and lvl == 15)):
        a("s_memrealtime s[96:97]")
        a("s_memtime s[98:99]")
        a("s_waitcnt lgkmcnt(0)")
        a(f"s_mov_b32 s{80+i}, s96")
        a(f"s_mov_b32 s{88+i}, s98")

def stamp_flush(a, n):
    if PROF:
        a("s_waitcnt vmcnt(0)")
        stamp(a, n - 1)
        a("s_lshl_b32 s78, s2, 4")
        a("s_add_u32 s78, s78, s20")
        a("s_lshl_b32 s78, s78, 6")
        a(f"s_add_u32 s78, s78, {WS_STAMP}")
        a("v_mov_b32 v1, 0")
        for i in range(n):
            a(f"v_mov_b32 v0, s{80+i}")
            a(f"buffer_store_dword v0, v1, s[28:31], s78 offen offset:{4*i}")
            a("s_nop 1")
            a(f"v_mov_b32 v0, s{88+i}")
            a(f"buffer_store_dword v0, v1, s[28:31], s78 offen offset:{32+4*i}")
            a("s_nop 1")
        a("s_waitcnt vmcnt(0)")
        if DBGWG >= 0:
            a(f"s_cmp_lg_u32 s2, {DBGWG}")
            a("s_cbranch_scc1 DBG_SKIP")
            a("s_and_b32 s78, s20, 3")
            a("s_cmp_lg_u32 s78, 0")
            a("s_cbranch_scc1 DBG_SKIP")
            a("s_mul_i32 s78, s20, 7")
            a("v_mov_b32 v1, s78")
            for i in range(1, n):
                a(f"s_sub_u32 s79, s{80+i}, s80")
                a("v_mov_b32 v0, s79")
                a(f"global_store_dword v1, v0, s[66:67] offset:{4+4*i}")
                a("s_nop 1")
            a("s_waitcnt vmcnt(0)")
            a.label("DBG_SKIP")

def pad_until(a, ticks):
    lab = a.newlabel("PAD")
    a.label(lab)
    a("s_memrealtime s[96:97]")
    a("s_waitcnt lgkmcnt(0)")
    a("s_sub_u32 s96, s96, s68")
    a(f"s_cmp_lt_u32 s96, {ticks}")
    a(f"s_cbranch_scc1 {lab}")

def flag_store(a, soff, vtmp):
    a(f"v_mov_b32 v{vtmp}, s68")
    a(f"v_mov_b32 v{vtmp+1}, s69")
    if FULLA:
        a("v_lshlrev_b32 v%d, 3, v2" % (vtmp + 2))
        a("s_mov_b64 exec, 0xffff")
    else:
        a(f"v_mov_b32 v{vtmp+2}, 0")
        a("s_mov_b64 exec, 1")
    a(f"buffer_store_dwordx2 {v(vtmp,2)}, v{vtmp+2}, s[28:31], {soff} offen sc1")
    a("s_mov_b64 exec, -1")

def poll(a, soff, voff, vtmp, slp=None):
    lab = a.newlabel("POLL")
    done = a.newlabel("POLLD")
    a(f"s_mov_b32 s74, {SPIN}")
    a.label(lab)
    a(f"buffer_load_dwordx2 {v(vtmp,2)}, v{voff}, s[28:31], {soff} offen sc1")
    a("s_waitcnt vmcnt(0)")
    a(f"v_xor_b32 v{vtmp}, s68, v{vtmp}")
    a(f"v_xor_b32 v{vtmp+1}, s69, v{vtmp+1}")
    a(f"v_or_b32 v{vtmp}, v{vtmp}, v{vtmp+1}")
    a(f"v_cmp_ne_u32 vcc, 0, v{vtmp}")
    a("s_sub_u32 s74, s74, 1")
    a("s_cmp_eq_u32 s74, 0")
    a(f"s_cbranch_scc1 {done}")
    a("s_cmp_eq_u64 vcc, 0")
    a(f"s_cbranch_scc1 {done}")
    a(f"s_sleep {SLP if slp is None else slp}")
    a(f"s_branch {lab}")
    a.label(done)

def poll_shared(a, stage, polls, vtmp, lslp=1, extra=None):
    other = a.newlabel("PSO")
    done = a.newlabel("PSD")
    a(f"v_mov_b32 v{vtmp+3}, {LDS_SYNC}")
    a("s_cmp_lg_u32 s23, 0")
    a(f"s_cbranch_scc1 {other}")
    for p in polls:
        poll(a, *p)
    if extra:
        extra()
    a(f"v_mov_b32 v{vtmp}, {stage}")
    a(f"ds_write_b32 v{vtmp+3}, v{vtmp}")
    a(f"s_branch {done}")
    a.label(other)
    a(f"s_mov_b32 s74, {SPIN*8}")
    lab = a.newlabel("PSL")
    a.label(lab)
    a(f"ds_read_b32 v{vtmp}, v{vtmp+3}")
    a("s_waitcnt lgkmcnt(0)")
    a(f"v_readfirstlane_b32 s75, v{vtmp}")
    a("s_sub_u32 s74, s74, 1")
    a("s_cmp_eq_u32 s74, 0")
    a(f"s_cbranch_scc1 {done}")
    a(f"s_cmp_ge_u32 s75, {stage}")
    a(f"s_cbranch_scc1 {done}")
    a(f"s_sleep {lslp}")
    a(f"s_branch {lab}")
    a.label(done)

def cvt_tile(a, acc, dst, lo=0, hi=16):
    for i in range(lo, hi, 2):
        a(f"v_cvt_pk_bf16_f32 v{dst + (i - lo)//2}, v{acc+i}, v{acc+i+1}")

def frag_addrs(a, sbase, R=10):
    a("v_lshrrev_b32 v4, 3, v2")
    a("v_and_b32 v5, 7, v2")
    a("v_bfe_u32 v7, v2, 4, 1")
    a("v_lshlrev_b32 v7, 2, v7")
    a("v_xor_b32 v5, v5, v7")
    a("v_lshlrev_b32 v5, 4, v5")
    a(f"v_lshl_add_u32 v{R}, v4, 10, v5")
    a(f"v_add_u32 v{R+1}, 7168, v{R}")
    a("v_bfe_u32 v4, v2, 2, 2")
    a("v_lshrrev_b32 v5, 5, v2")
    a("v_lshl_add_u32 v5, v5, 2, v4")
    a("v_lshlrev_b32 v5, 7, v5")
    a("v_lshrrev_b32 v4, 1, v4")
    a("v_lshl_add_u32 v5, v4, 6, v5")
    a("v_bfe_u32 v4, v2, 4, 1")
    a("v_lshl_add_u32 v5, v4, 5, v5")
    a("v_and_b32 v4, 3, v2")
    a("v_lshl_add_u32 v5, v4, 3, v5")
    a(f"v_xor_b32 v{R+3}, 64, v5")
    a(f"v_add_u32 v{R+2}, {sbase}, v5")
    a(f"v_add_u32 v{R+3}, {sbase}, v{R+3}")

def part_addrs(a, sbase, r):
    a(f"v_lshrrev_b32 v{r}, 5, v2")
    a(f"v_and_b32 v{r+1}, 7, v2")
    a(f"v_xor_b32 v{r}, v{r}, v{r+1}")
    a(f"v_and_b32 v{r+1}, 31, v2")
    a(f"v_lshlrev_b32 v{r+1}, 8, v{r+1}")
    a(f"v_lshl_add_u32 v{r}, v{r}, 4, v{r+1}")
    for g in range(1, 4):
        a(f"v_xor_b32 v{r+g}, {32*g}, v{r}")
    for g in range(4):
        a(f"v_add_u32 v{r+g}, {sbase}, v{r+g}")

def part_write(a, GA, r):
    for n in range(2):
        for t in range(2):
            acc = GA + (n * 2 + t) * 16
            for g in range(4):
                a(f"ds_write_b128 v{r+g}, {v(acc+4*g,4)} offset:{t*8192 + n*128}")

def lds_wait(a, vaddr, vdst, cmp_lines, first_read=True, slp=1):
    lab, done = a.newlabel("LW"), a.newlabel("LWD")
    a(f"s_mov_b32 s74, {SPIN*8}")
    if first_read:
        a(f"ds_read_b32 v{vdst}, v{vaddr}")
    a.label(lab)
    a("s_waitcnt lgkmcnt(0)")
    a(f"v_readfirstlane_b32 s75, v{vdst}")
    a("s_sub_u32 s74, s74, 1")
    a(f"s_cbranch_scc1 {done}")
    for l in cmp_lines:
        a(l)
    a(f"s_cbranch_scc1 {done}")
    a(f"s_sleep {slp}")
    a(f"ds_read_b32 v{vdst}, v{vaddr}")
    a(f"s_branch {lab}")
    a.label(done)

def vaddr_init(a, VK=40, VV0=41, VV1=42):
    a(f"v_mov_b32 v{VK}, v3")
    a("v_lshrrev_b32 v43, 5, v2")
    a("v_and_b32 v44, 15, v2")
    a("v_lshlrev_b32 v44, 4, v44")
    a("v_lshl_or_b32 v44, v43, 8, v44")
    a(f"v_add_u32 v44, {LDS_V}, v44")
    a("v_add_u32 v45, 512, v44")
    a("v_and_b32 v43, 31, v2")
    a("v_subrev_u32 v47, 20, v43")
    a("v_cmp_gt_u32 vcc, 8, v47")
    a(f"v_mov_b32 v46, {LDS_V + 1040}")
    a(f"v_mov_b32 v47, {LDS_V + 1040 + 2*VP}")
    a("v_cndmask_b32 v46, v46, v47, vcc")
    a("v_and_b32 v47, 27, v43")
    a("v_cmp_eq_u32 vcc, 16, v47")
    a("v_subrev_u32 v47, 16, v46")
    a("s_nop 0")
    a("v_cndmask_b32 v46, v46, v47, vcc")
    a("v_cmp_gt_u32 vcc, 16, v43")
    a("s_nop 1")
    a(f"v_cndmask_b32 v{VV0}, v46, v44, vcc")
    a(f"v_cndmask_b32 v{VV1}, v46, v45, vcc")

def place(a, key):
    m = env("PL_" + key, -1)
    if m >= 0:
        a.raw(".p2align 6")
        for _ in range(m):
            a("s_nop 0")

def gen(a):
    kernel_header(a, KNAME)
    if PROF == 7:
        a("s_memrealtime s[100:101]")
    a("s_cmp_ge_u32 s2, 256")
    a("s_cbranch_scc1 K_EXIT")
    if env("SHUF", 0) == 1:
        a("s_lshr_b32 s3, s2, 3")
        a("s_lshl_b32 s2, s2, 5")
        a("s_or_b32 s2, s2, s3")
        a("s_and_b32 s2, s2, 255")
    if env("SHUF", 0) == 2:
        a("s_mul_i32 s2, s2, 37")
        a("s_add_u32 s2, s2, 11")
        a("s_and_b32 s2, s2, 255")
    if env("JIT", 0):
        a("s_mul_i32 s3, s2, 2654435761")
        a("s_lshr_b32 s3, s3, 27")
        a.label("JIT_L")
        a("s_sleep 8")
        a("s_sub_u32 s3, s3, 1")
        a("s_cbranch_scc0 JIT_L")
    a("s_load_dwordx4 s[4:7], s[0:1], 0       ; x, wqkv")
    a("v_lshrrev_b32 v1, 6, v0")
    a("v_and_b32 v2, 63, v0                   ; lane")
    a("v_readfirstlane_b32 s20, v1")
    VX0, VX1, VR0, VR1, VKV = 10, 11, 12, 13, 14
    if FASTX:
        assert ROT1 == 2 and PRE == 2
        a("v_lshrrev_b32 v4, 3, v2")
        a("v_and_b32 v5, 7, v2")
        a("v_lshrrev_b32 v6, 4, v2")
        a("v_xor_b32 v7, v5, v6")
        a("v_lshlrev_b32 v7, 4, v7")
        a(f"v_lshl_add_u32 v{VX0}, v4, 10, v7")
        a(f"v_xor_b32 v{VX1}, 64, v{VX0}")
        a("s_bfe_u32 s63, s2, 0x30003")
        a("s_and_b32 s40, s2, 1")
        a("s_lshl_b32 s40, s40, 3")
        a("s_add_u32 s40, s40, s63                ; rb")
        a("s_lshl_b32 s40, s40, 2")
        a("s_and_b32 s42, s20, 3")
        a("s_add_u32 s40, s40, s42")
        a("s_lshl_b32 s40, s40, 15")
        a("s_lshl_b32 s42, s42, 12")
        a("s_lshr_b32 s37, s2, 6")
        a("s_add_u32 s37, s37, s63")
        a("s_lshl_b32 s37, s37, 1")
        a("s_lshr_b32 s38, s20, 2")
        a("s_add_u32 s37, s37, s38")
        a("s_and_b32 s37, s37, 7")
        a("s_lshl_b32 s37, s37, 7")
        a("s_add_u32 s37, s37, s40")
        a("s_cmp_lt_u32 s20, 4")
        a(f"s_mov_b32 s38, {slot_of(1)}")
        a(f"s_cselect_b32 s38, {slot_of(0)}, s38")
        a("s_add_u32 s38, s38, s42")
        a("s_mov_b32 s46, 0x200000")
        a("s_mov_b32 s47, 0x20000")
        a("s_waitcnt lgkmcnt(0)")
        a("s_mov_b64 s[44:45], s[4:5]")
        for i in range(4):
            a(f"s_add_u32 m0, s38, {i*1024}")
            a(f"s_add_u32 s39, s37, {i*8192}")
            a(f"buffer_load_dwordx4 v{VX1 if i & 1 else VX0}, s[44:47], s39 offen lds")
    a("s_load_dwordx4 s[12:15], s[0:1], 32")
    a("s_load_dwordx2 s[8:9], s[0:1], 16      ; wo")
    a("s_load_dwordx2 s[10:11], s[0:1], 80    ; ws")
    a("s_load_dwordx4 s[16:19], s[0:1], 48")
    a("s_load_dwordx4 s[64:67], s[0:1], 64")
    a("v_lshlrev_b32 v3, 4, v2                ; lane*16")
    stamp(a, 0)
    a("s_and_b32 s24, s2, 1                   ; xh")
    a("s_bfe_u32 s25, s2, 0x20001             ; xq")
    a("s_lshr_b32 s26, s2, 3                  ; j")
    a("s_and_b32 s63, s26, 7")
    a("s_lshl_b32 s21, s24, 3")
    a("s_add_u32 s21, s21, s63                ; rb")
    a("s_lshr_b32 s27, s26, 3")
    a("s_mul_i32 s22, s25, 3")
    a("s_add_u32 s22, s22, s27")
    if QFIRST:
        a("s_sub_u32 s22, s22, 1")
    a("s_add_u32 s23, s25, 12")
    a(f"s_cmp_eq_u32 s27, {0 if QFIRST else 3}")
    a("s_cselect_b32 s22, s23, s22            ; cb2")
    if FMAP:
        a("s_and_b32 s72, s2, 7")
        a("s_lshl_b32 s72, s72, 2")
        a("s_and_b32 s73, s26, 3")
        a("s_add_u32 s72, s72, s73                ; rb64")
        a("s_lshr_b32 s73, s26, 2                 ; cb64")
    else:
        a("s_lshl_b32 s72, s25, 3")
        a("s_add_u32 s72, s72, s63                ; rb64")
        a("s_lshl_b32 s73, s24, 2")
        a("s_add_u32 s73, s73, s27                ; cb64")
    if ROT1 == 1:
        a("s_lshl_b32 s27, s27, 1")
        a("s_add_u32 s63, s63, s27")
    elif ROT1 == 2:
        a("s_add_u32 s63, s63, s27")
        a("s_lshl_b32 s63, s63, 1")
    elif ROT1 == 3:
        a("s_add_u32 s63, s63, s27")
        a("s_lshl_b32 s63, s63, 2")
    a(f"s_and_b32 s63, s63, {7 if ROT1 else 0}")
    a("s_and_b32 s70, s2, 7")
    a("s_lshl_b32 s70, s70, 2")
    if AMIX:
        a("s_lshr_b32 s27, s26, 3")
        a("s_add_u32 s27, s27, s26")
        a("s_and_b32 s27, s27, 3")
        a("s_add_u32 s70, s70, s27                ; head")
        a("s_and_b32 s71, s26, 7                  ; qb")
    else:
        a("s_and_b32 s27, s26, 3")
        a("s_add_u32 s70, s70, s27                ; head")
        a("s_lshr_b32 s71, s26, 2                 ; qb")
    a("s_cmp_lt_u32 s20, 4")
    a("s_cbranch_scc1 K1_COMPUTE")

    a("s_sub_u32 s23, s20, 4                  ; L")
    if LPRIO:
        a(f"s_setprio {LPRIO}")
    if not FASTX:
        a("v_lshrrev_b32 v4, 3, v2")
        a("v_and_b32 v5, 7, v2")
        a("v_lshrrev_b32 v6, 4, v2")
        a("v_xor_b32 v7, v5, v6")
        a("v_lshlrev_b32 v7, 4, v7")
        a(f"v_lshl_add_u32 v{VX0}, v4, 10, v7")
        a(f"v_xor_b32 v{VX1}, 64, v{VX0}")
    a("v_and_b32 v7, 1, v6")
    a("v_lshlrev_b32 v7, 2, v7")
    a("v_xor_b32 v7, v7, v5")
    a("v_lshlrev_b32 v7, 4, v7")
    a("v_mul_u32_u24 v8, 3072, v4")
    a(f"v_add_u32 v{VKV}, v8, v7")
    a("v_mul_u32_u24 v8, 3584, v4")
    a("v_add_u32 v15, v8, v7")
    a("s_cmp_lt_u32 s22, 12")
    a("s_cselect_b64 vcc, -1, 0")
    a("s_movk_i32 s60, 3072")
    a("s_cselect_b32 s60, 3584, s60")
    a(f"v_cndmask_b32 v{VR0}, v{VKV}, v15, vcc")
    a(f"v_xor_b32 v{VR1}, 32, v{VR0}")
    a("s_cselect_b32 s32, 0, 12")
    a("s_sub_u32 s32, s22, s32")
    a("s_lshl_b32 s32, s32, 8")
    a("s_lshl_b32 s61, s22, 1")
    a("s_add_u32 s61, s61, 1")
    a("s_add_u32 s34, s22, 12")
    a("s_cmp_lt_u32 s22, 12")
    a("s_cselect_b32 s33, 0, 128              ; R1 - R0")
    a("s_cselect_b32 s61, s61, s34")
    a("s_lshl_b32 s61, s61, 7")
    a("s_mul_i32 s34, s23, 57344")
    a("s_add_u32 s61, s61, s34")
    a("s_lshl_b32 s34, s23, 4")
    a("s_mul_i32 s34, s34, s60")
    a("s_add_u32 s32, s32, s34")
    a("s_lshl_b32 s62, s60, 6")
    a("s_lshl_b32 s36, s60, 3                 ; 8 rows")
    a("s_mul_i32 s34, s23, 49152")
    a("s_lshl_b32 s35, s22, 7")
    a("s_add_u32 s34, s34, s35")
    a("s_add_u32 s34, s34, 1024")
    if not FASTX:
        a("s_lshl_b32 s40, s21, 17")
        a("s_lshl_b32 s41, s23, 15")
        a("s_add_u32 s40, s40, s41                ; x base")
        a("s_lshl_b32 s42, s23, 12")
    a("s_lshl_b32 s35, s23, 11")
    a("s_mov_b32 s43, s63                     ; kc")
    a("s_waitcnt lgkmcnt(0)")
    srd(a, 24, 4, 0x200000)
    srd(a, 44, 6, 0x180000)
    a("s_cmp_lt_u32 s22, 12")
    a("s_cselect_b64 s[48:49], s[12:13], s[6:7]")
    a("s_cselect_b64 s[52:53], s[14:15], s[6:7]")
    a("s_cselect_b32 s50, 0x1c0000, s46")
    a("s_mov_b32 s54, s50")
    a("s_mov_b32 s51, 0x20000")
    a("s_mov_b32 s55, 0x20000")
    queue = []
    def issue(c):
        ws_, xs_ = wslot(c), xslot(c)
        a("s_mul_i32 s38, s43, s62")
        a("s_add_u32 s38, s38, s32")
        for i in range(2):
            a(f"s_add_u32 m0, s35, {ws_ + i*1024}")
            a("s_add_u32 s39, s38, s33")
            a(f"buffer_load_dwordx4 v{VR0}, s[48:51], s38 offen lds")
            a(f"s_add_u32 m0, s35, {ws_ + 8192 + i*1024}")
            a("s_add_u32 s38, s38, s36")
            a(f"buffer_load_dwordx4 v{VR1}, s[52:55], s39 offen lds")
        n = 4
        if c < 8:
            a("s_mul_i32 s38, s43, 196608")
            a("s_add_u32 s38, s38, s34")
            for i in range(2):
                a(f"s_add_u32 m0, s35, {ws_ + 16384 + i*1024}")
                a(f"s_add_u32 s39, s38, {i*24576}")
                a(f"buffer_load_dwordx4 v{VKV}, s[44:47], s39 offen lds")
            n += 2
        if c < 8 or c >= 13:
            a("s_lshl_b32 s37, s43, 7")
            a("s_add_u32 s37, s37, s40")
            for i in range(4):
                a(f"s_add_u32 m0, s42, {xs_ + i*1024}")
                a(f"s_add_u32 s39, s37, {i*8192}")
                a(f"buffer_load_dwordx4 v{VX1 if i & 1 else VX0}, s[24:27], s39 offen lds")
            n += 4
        if c != 7:
            a("s_add_u32 s43, s43, " + ("1" if c < 7 else "7"))
            a("s_and_b32 s43, s43, 7")
        else:
            a("s_mov_b32 s32, s61")
            a("s_mov_b32 s33, 0")
            a("s_mov_b32 s62, 229376")
            a("s_mov_b32 s36, 28672")
            a("s_mov_b64 s[48:49], s[12:13]")
            a("s_mov_b64 s[52:53], s[14:15]")
            a("s_mov_b32 s50, 0x1c0000")
            a("s_mov_b32 s54, 0x1c0000")
            a(f"v_mov_b32 v{VR0}, v15")
            a(f"v_xor_b32 v{VR1}, 32, v15")
        queue.extend([c] * n)
    def waitq(tag):
        n = len(queue) - 1 - max(i for i, t in enumerate(queue) if t == tag)
        a(f"s_waitcnt vmcnt({n})")
    stamp(a, 2, 7)
    if PROF == 7:
        a("s_mov_b32 s81, s80")
        a("s_mov_b32 s80, s100")
    issue(0)
    stamp(a, 3, 7)
    if PRE == 2:
        issue(1)
    stamp(a, 4, 7)
    stamp(a, 1)
    srd(a, 28, 10, WS_SIZE)
    a("v_mov_b32 v9, 0")
    a("s_add_u32 s37, s2, s20")
    a("s_cmp_eq_u32 s37, 4")
    a("s_cbranch_scc0 K1_NOTAG")
    a("s_memrealtime s[56:57]")
    a("s_waitcnt lgkmcnt(0)")
    a("s_or_b32 s56, s56, 1")
    a("s_or_b32 s57, s57, 0x80000000")
    a("v_mov_b32 v4, s56")
    a("v_mov_b32 v5, s57")
    a("s_mov_b64 exec, 1")
    a("global_store_dwordx2 v9, v[4:5], s[66:67] sc1")
    a("s_mov_b64 exec, -1")
    a.label("K1_NOTAG")
    def get_tag():
        lab, done = a.newlabel("TAG"), a.newlabel("TAGD")
        a(f"s_mov_b32 s74, {SPIN}")
        a("v_readfirstlane_b32 s68, v60")
        a("v_readfirstlane_b32 s69, v61")
        a.label(lab)
        a("s_sub_u32 s74, s74, 1")
        a(f"s_cbranch_scc1 {done}")
        a("s_min_u32 s75, s68, s69")
        a("s_cmp_lg_u32 s75, 0")
        a(f"s_cbranch_scc1 {done}")
        a("global_load_dwordx2 v[60:61], v9, s[66:67] sc1")
        a("s_waitcnt vmcnt(0)")
        a("v_readfirstlane_b32 s68, v60")
        a("v_readfirstlane_b32 s69, v61")
        a("s_sleep 2")
        a(f"s_branch {lab}")
        a.label(done)
        a(f"v_mov_b32 v4, {LDS_TAG}")
        a("v_mov_b32 v60, s68")
        a("v_mov_b32 v61, s69")
        a("ds_write_b64 v4, v[60:61]")
        a("ds_write_b32 v4, v9 offset:8")
        a("ds_write_b32 v4, v9 offset:12")
        a("ds_write_b32 v4, v9 offset:16")
        a("ds_write_b32 v4, v9 offset:20")
        a("ds_write_b32 v4, v9 offset:24")
        a("ds_write_b32 v4, v9 offset:28")
        a("s_waitcnt lgkmcnt(0)")
    def flag_a(q):
        lab = a.newlabel("FA")
        a("s_cmp_lg_u32 s23, 1")
        a(f"s_cbranch_scc1 {lab}")
        if q:
            a("s_cmp_lt_u32 s22, 12")
            a(f"s_cbranch_scc1 {lab}")
        a("s_lshl_b32 s37, s22, 4")
        a("s_add_u32 s37, s37, s21")
        a("s_lshl_b32 s37, s37, 7")
        a(f"s_add_u32 s37, s37, {FL_Q if q else FL_A}")
        stamp(a, 2 if q else 1, 14)
        flag_store(a, "s37", 16)
        a.label(lab)
    def kv_setup():
        a("v_and_b32 v5, 15, v2")
        a("v_lshlrev_b32 v5, 7, v5")
        a("v_bfe_u32 v6, v2, 4, 1")
        a("v_lshl_add_u32 v5, v6, 14, v5")
        a("s_and_b32 s56, s2, 7")
        a("s_lshr_b32 s57, s56, 1")
        a("s_add_u32 s57, s57, 12")
        a("s_sub_u32 s57, s57, s56")
        a("s_lshl_b32 s57, s57, 11")
        a("s_lshl_b32 s58, s71, 8")
        a("s_add_u32 s57, s57, s58")
        a(f"s_add_u32 s57, s57, {FL_Q - FL_A}")
        a("v_and_b32 v6, 1, v2")
        a("v_lshlrev_b32 v6, 7, v6")
        a("v_add_u32 v6, s57, v6")
        a("v_cmp_gt_u32 vcc, 32, v2")
        a("s_lshl_b32 s56, s56, 11")
        a(f"s_add_u32 s56, s56, {FL_A}")
        a("v_cndmask_b32 v5, v6, v5, vcc")
        a(f"s_mul_i32 s57, s70, {HK*1024}")
        a("s_lshl_b32 s58, s23, 10")
        a("s_add_u32 s57, s57, s58                ; head*64K + L*1K")
        a(f"s_add_u32 s57, s57, {WS_K}")
        a(f"s_mul_i32 s58, s23, {TP}")
    def kv_loads(lo, hi):
        n = hi - lo
        a(f"s_mul_i32 s44, s71, {n}")
        a("s_lshr_b32 s44, s44, 3")
        for i in range(n):
            a(f"s_mul_i32 s45, s44, {4*TP}")
            a("s_add_u32 s45, s45, s58")
            a(f"s_add_u32 m0, s45, {lo*4*TP}")
            a("s_lshl_b32 s37, s44, 12")
            a("s_add_u32 s37, s37, s57")
            a(f"s_add_u32 s38, s37, {lo*4096}")
            a(f"buffer_load_dwordx4 v3, s[28:31], s38 offen{SC} lds")
            a(f"s_add_u32 m0, s45, {lo*4*TP + 1024}")
            a(f"s_add_u32 s38, s37, {lo*4096 + WS_V - WS_K}")
            a(f"buffer_load_dwordx4 v3, s[28:31], s38 offen{SC} lds")
            if i < n - 1:
                a("s_add_u32 s44, s44, 1")
                a(f"s_cmp_eq_u32 s44, {n}")
                a("s_cselect_b32 s44, 0, s44")
        queue.extend(["kv"] * (2 * n))
    def q_loads():
        a(f"s_mul_i32 s37, s70, {HK}")
        a("s_lshl_b32 s38, s71, 3")
        a("s_add_u32 s37, s37, s38")
        a("s_lshl_b32 s38, s23, 1")
        a("s_add_u32 s37, s37, s38")
        a("s_lshl_b32 s37, s37, 10")
        a("s_lshl_b32 s38, s23, 11")
        a(f"s_add_u32 m0, s38, {LDS_Q}")
        a(f"s_add_u32 s37, s37, {WS_Q}")
        a(f"buffer_load_dwordx4 v3, s[28:31], s37 offen{SC} lds")
        a(f"buffer_load_dwordx4 v3, s[28:31], s37 offen offset:1024{SC} lds")
    a(f"v_mul_u32_u24 v36, {VP}, v2")
    a(f"v_add_u32 v36, {LDS_V + 1024}, v36")
    for i in range(4):
        a(f"v_mov_b32 v{40+i}, 0x3f803f80")
        a(f"v_mov_b32 v{44+i}, 0")
    a(f"s_mul_i32 s37, s23, {3*2048}")
    a(f"s_add_u32 s37, s37, {LDS_WS}")
    frag_addrs(a, "s37", 248)
    a("s_lshl_b32 s37, s23, 14")
    part_addrs(a, "s37", 212)
    kv_setup()
    for c in range(13):
        waitq(c)
        if c == 6:
            get_tag()
        if c < 2:
            stamp(a, c + 5, 7)
        if c < 6:
            stamp(a, c + 1, 2)
        if 6 <= c < 12:
            stamp(a, c - 5, 3)
        a(f"s_barrier                              ; b({c})")
        if c == 8:
            stamp(a, 2)
            stamp(a, 1, 15)
        if c == 4:
            a("global_load_dwordx2 v[60:61], v9, s[66:67] sc1")
        if c == AFLAG:
            flag_a(False)
        if c == AFLAGQ:
            flag_a(True)
        if c <= 8:
            issue(c + 2)
        if 8 <= c <= 12:
            issue(c + 3)
        if c == PFC:
            a("s_bitcmp1_b32 s23, 0")
            a("s_cselect_b64 s[40+36:41+36], s[14:15], s[12:13]".replace("s[40+36:41+36]", "s[92:93]"))
            a("s_mov_b32 s94, 0x1c0000")
            a("s_mov_b32 s95, 0x20000")
            a("v_and_b32 v16, 31, v2")
            a("v_mul_u32_u24 v16, 3584, v16")
            a("s_mul_i32 s37, s23, 57344")
            a("s_sub_u32 s37, s61, s37")
            a("s_and_b32 s38, s21, 7")
            a("s_lshl_b32 s38, s38, 1")
            a("s_lshr_b32 s39, s23, 1")
            a("s_add_u32 s38, s38, s39")
            a("s_mul_i32 s38, s38, 114688")
            a("s_add_u32 s37, s37, s38")
            a("buffer_load_dword v17, v16, s[92:95], s37 offen")
            queue.append("pf")
        if c == GLD:
            srd(a, 44, 18, 1024)
            a("s_lshl_b32 s76, s21, 4")
            a("s_add_u32 s76, s76, s22")
            a("s_lshl_b32 s76, s76, 2")
            a("s_add_u32 s76, s76, s23")
            a("s_lshl_b32 s37, s76, 11")
            a("buffer_load_dwordx4 v[64:67], v3, s[44:47], 0 offen")
            a("buffer_load_dwordx4 v[24:27], v3, s[24:27], s37 offen")
            a("buffer_load_dwordx4 v[28:31], v3, s[24:27], s37 offen offset:1024")
            queue.extend(["g"] * 3)
        if c == GMA:
            waitq("g")
            a("v_mov_b32 v32, 0")
            a("v_mov_b32 v33, 0")
            for q in range(4):
                a(f"v_dot2_f32_bf16 v32, v{24+q}, v{64+q}, v32")
                a(f"v_dot2_f32_bf16 v33, v{28+q}, v{64+q}, v33")
            a("s_nop 2")
            a("v_permlane32_swap_b32 v32, v33")
            a("s_nop 1")
            a("v_add_f32 v32, v32, v33")
            for ctl in ("quad_perm:[1,0,3,2]", "quad_perm:[2,3,0,1]", "row_half_mirror", "row_mirror"):
                a("s_nop 1")
                a(f"v_add_f32_dpp v32, v32, v32 {ctl} row_mask:0xf bank_mask:0xf")
            a("v_mov_b32 v33, v32")
            a("s_nop 1")
            a("v_permlane16_swap_b32 v32, v33")
            a("s_nop 1")
            a("v_add_f32 v32, v32, v33")
            a(f"v_mul_f32 v32, {fh(-LOG2E)}, v32")
            a("v_exp_f32 v32, v32")
            a("v_lshrrev_b32 v70, 5, v2")
            a("v_add_f32 v32, 1.0, v32")
            a("v_rcp_f32 v68, v32")
            a("v_lshlrev_b32 v70, 3, v70")
    a(f"v_mov_b32 v22, {LDS_SYNC + 16}")
    a("v_mov_b32 v23, 16")
    waitq(14)
    a("s_barrier                              ; b(13)")
    if AFLAGQ == 13:
        flag_a(True)
    a("s_waitcnt vmcnt(0)")
    a("s_mov_b64 exec, 1")
    a("ds_add_u32 v22, v23")
    a("s_mov_b64 exec, -1")
    stamp(a, 2, 15)
    a(f"v_mov_b32 v19, {LDS_SYNC}")
    a("s_cmp_lg_u32 s23, 0")
    a("s_cbranch_scc1 KV_OTHER")
    if FDEL:
        a(f"s_sleep {FDEL}")
    a(f"s_mov_b32 s74, {SPIN}")
    a("s_mov_b32 s77, 0")
    if ATFA:
        a("s_mov_b32 vcc_lo, -1")
        a("s_mov_b32 vcc_hi, 3")
    a.label("KV_POLL")
    if ATFA:
        a("v_mov_b32 v8, 0")
        a("v_mov_b32 v9, 0")
        a("s_mov_b64 exec, vcc")
        a("buffer_atomic_or_x2 v[8:9], v5, s[28:31], s56 offen sc0 sc1")
    else:
        a("buffer_load_dwordx2 v[8:9], v5, s[28:31], s56 offen sc1")
    a("s_waitcnt vmcnt(0)")
    a("v_cmp_ne_u64 vcc, s[68:69], v[8:9]")
    if ATFA:
        a("s_mov_b64 exec, -1")
    a("s_sub_u32 s74, s74, 1")
    a("s_cselect_b64 vcc, 0, vcc")
    a("s_cmp_lg_u32 vcc_lo, 0")
    a("s_cbranch_scc1 KV_AGAIN")
    a("s_cmp_eq_u32 vcc_hi, 0")
    a("s_cselect_b32 s75, 2, 1")
    a("v_mov_b32 v16, s75")
    a("ds_write_b32 v19, v16")
    a("s_cmp_lg_u32 s77, 0")
    a("s_mov_b32 s77, s75")
    a("s_cbranch_scc1 KV_HAVE")
    stamp(a, 3, 15)
    kv_loads(0, 3)
    a.label("KV_HAVE")
    a("s_cmp_eq_u32 s77, 2")
    a("s_cbranch_scc1 KV_Q")
    a.label("KV_AGAIN")
    a(f"s_sleep {FSLP}")
    a("s_branch KV_POLL")
    a.label("KV_OTHER")
    lds_wait(a, 19, 16, ["s_cmp_ge_u32 s75, 1"])
    kv_loads(0, 3)
    lds_wait(a, 19, 16, ["s_cmp_ge_u32 s75, 2"])
    a.label("KV_Q")
    if KVW:
        a("s_cmp_lt_u32 s23, 2")
        a("s_cbranch_scc1 KV_NW")
        a(f"s_mul_i32 s37, s70, {HK*1024}")
        a(f"s_mul_i32 s38, s71, {52*128}")
        a("s_add_u32 s37, s37, s38")
        a("s_and_b32 s38, s23, 1")
        a(f"s_mul_i32 s38, s38, {WS_V - WS_K}")
        a("s_add_u32 s37, s37, s38")
        a(f"s_add_u32 s37, s37, {WS_K + 12*1024}")
        a("v_min_u32 v16, 51, v2")
        a("v_lshlrev_b32 v16, 7, v16")
        a(f"buffer_load_dword v17, v16, s[28:31], s37 offen{SC}")
        a.label("KV_NW")
    stamp(a, 4, 15)
    q_loads()
    a("s_branch K2_GEMM")

    a.label("K1_COMPUTE")
    AF = 96
    AK = 224
    def accF(sw, i, t):
        return AF + ((sw * 2 + i) * 2 + t) * 16
    XA = [4, 5, 6, 7]
    WA = [8, 9]
    KA = 10
    a("s_and_b32 s23, s20, 1                  ; tp")
    a("s_lshr_b32 s24, s20, 1                 ; grp")
    a("v_bfe_u32 v16, v2, 4, 1                ; gsel")
    a("v_lshrrev_b32 v17, 5, v2               ; h")
    a("v_bfe_u32 v18, v2, 2, 2                ; r")
    a("v_and_b32 v19, 3, v2                   ; c")
    a("v_lshl_add_u32 v20, v17, 3, v18        ; 8h+r")
    a("v_and_b32 v21, 31, v2")
    a("v_lshlrev_b32 v21, 7, v21")
    a("v_bfe_u32 v22, v2, 1, 3")
    a("v_xor_b32 v22, v22, v17")
    a("v_lshl_add_u32 v21, v22, 4, v21")
    a("s_lshl_b32 s25, s23, 13")
    a(f"s_add_u32 s25, s25, {xslot(0)}")
    for s_ in range(4):
        a(f"v_xor_b32 v{XA[s_]}, {32*s_}, v21")
        a(f"v_add_u32 v{XA[s_]}, s25, v{XA[s_]}")
    a("v_lshlrev_b32 v20, 7, v20")
    a("v_lshl_add_u32 v20, v19, 3, v20        ; row*128 + c*8")
    a("v_lshrrev_b32 v21, 1, v18")
    a("v_xor_b32 v21, s24, v21                ; grp ^ (r>>1)")
    a("v_lshl_add_u32 v20, v21, 6, v20")
    a("v_lshl_add_u32 v20, v16, 5, v20")
    a(f"v_add_u32 v{KA}, {wslot(0) + 16384}, v20")
    a("v_lshl_add_u32 v20, v16, 13, v20")
    a("v_xor_b32 v21, 32, v20")
    a(f"v_add_u32 v{WA[0]}, {wslot(0)}, v20")
    a(f"v_add_u32 v{WA[1]}, {wslot(0)}, v21")
    a("v_and_b32 v11, 0x33, v2")
    a("v_bfe_u32 v17, v2, 2, 1")
    a("v_lshl_or_b32 v11, v17, 3, v11")
    a("v_bfe_u32 v17, v2, 3, 1")
    a("v_lshl_or_b32 v11, v17, 2, v11")
    a("v_lshlrev_b32 v11, 4, v11              ; K voffset")
    a("s_cmp_lt_u32 s22, 8")
    a("s_cbranch_scc1 K1_KOFF")
    a(f"v_mul_u32_u24 v11, {HK*1024}, v16")
    a("v_lshrrev_b32 v18, 5, v2")
    a("v_lshl_or_b32 v11, v18, 8, v11")
    a("v_and_b32 v18, 15, v2")
    a("v_lshl_or_b32 v11, v18, 4, v11         ; V voffset")
    a.label("K1_KOFF")
    vaddr_init(a)
    a("s_lshl_b32 s33, s20, 8")
    a(f"s_add_u32 s33, s33, {LDS_GQ}")
    a("v_and_b32 v40, 31, v2")
    a("v_lshlrev_b32 v40, 2, v40")
    a("v_add_u32 v40, s33, v40")
    a("s_lshl_b32 s33, s20, 11")
    a(f"s_add_u32 s33, s33, {LDS_Q}")
    a("v_add_u32 v43, s33, v3")
    a("s_lshl_b32 s60, s20, 10")
    a(f"s_add_u32 s60, s60, {LDS_PARK}")
    a("v_add_u32 v44, s60, v3")
    a("ds_write_b128 v44, v[40:43]")
    for i in range(160):
        a(f"v_mov_b32 v{AF+i}, 0")
    a("s_waitcnt lgkmcnt(0)")
    srd(a, 28, 10, WS_SIZE)
    if CODEPF:
        a("s_getpc_b64 s[50:51]")
        a.label("PC_HERE")
        a(f"s_sub_u32 s50, s50, PC_HERE-{KNAME}")
        a("s_subb_u32 s51, s51, 0")
        a("s_lshr_b32 s49, s2, 3")
        a("s_lshl_b32 s49, s49, 2")
        a("s_add_u32 s49, s49, s20")
        a("s_lshl_b32 s49, s49, 9")
        a("v_lshlrev_b32 v21, 3, v2")
        a("v_add_u32 v21, s49, v21")
        a(f"v_min_u32 v21, K_END-{KNAME}-4, v21")
        a("global_load_dword v21, v21, s[50:51]")
    a("s_lshl_b32 s32, s21, 2")
    a("s_lshl_b32 s33, s23, 1")
    a("s_add_u32 s32, s32, s33                ; tt0")
    a("s_and_b32 s36, s22, 7")
    a("s_lshl_b32 s36, s36, 2")
    a("s_lshl_b32 s37, s24, 1")
    a("s_add_u32 s36, s36, s37")
    a(f"s_mul_i32 s36, s36, {HK}")
    a("s_add_u32 s36, s36, s32")
    a("s_lshl_b32 s36, s36, 10")
    a("s_cmp_lt_u32 s22, 8")
    a(f"s_mov_b32 s38, {WS_V}")
    a(f"s_cselect_b32 s38, {WS_K}, s38")
    a("s_movk_i32 s37, 512")
    a(f"s_cselect_b32 s37, {HK*1024}, s37")
    a("s_add_u32 s36, s36, s38")
    a("s_add_u32 s37, s37, s36")
    a("s_mov_b32 s25, 0")
    tab = sum(((XPOS[c + 1] - XPOS[c]) & 15) << (4 * c) for c in range(8))
    a(f"s_mov_b32 s61, {tab:#x}")
    a("s_mov_b32 s26, 8")
    BB = [24, 44]
    def reads(s_, buf, kv):
        L = [f"ds_read_b128 {v(buf,4)}, v{XA[s_]}"]
        for t in range(2):
            for u in range(2):
                L.append(f"ds_read_b64_tr_b16 {v(buf+8+4*t+2*u,2)}, v{WA[t]} offset:{(16*s_+4*u)*128}")
            if t == 0:
                L.append(f"ds_read_b128 {v(buf+4,4)}, v{XA[s_]} offset:4096")
        if kv:
            for u in range(2):
                L.append(f"ds_read_b64_tr_b16 {v(buf+16+2*u,2)}, v{KA} offset:{(16*s_+4*u)*128}")
        return L
    def mfs(buf, sw, vtype):
        L = []
        for t in range(2):
            for i in range(2):
                acc = accF(sw, i, t)
                L.append(f"{MF} {v(acc,16)}, {v(buf+8+4*t,4)}, {v(buf+4*i,4)}, {v(acc,16)}")
        if sw == 0:
            for i in range(2):
                acc = AK + 16 * i
                A_, B_ = v(buf + 16, 4), v(buf + 4 * i, 4)
                if vtype:
                    A_, B_ = B_, A_
                L.append(f"{MF} {v(acc,16)}, {A_}, {B_}, {v(acc,16)}")
        return L
    def sweep(name, sw, vtype):
        a.raw(".p2align 6")
        place(a, "S1")
        a.label(name)
        kv = sw == 0
        nr = 8 if kv else 6
        for s_ in range(4):
            upd = []
            if s_ == 2:
                upd = ["s_add_u32 s25, s25, 1", "s_cmp_eq_u32 s25, 3", f"s_mov_b32 s27, {WSL}",
                       f"s_cselect_b32 s27, {(-2*WSL) & 0xffffffff:#x}, s27", "s_cselect_b32 s25, 0, s25",
                       "s_bfe_i32 s33, s61, 0x40000", "s_lshr_b32 s61, s61, 4", "s_lshl_b32 s33, s33, 14"]
                upd += [f"v_add_u32 v{r}, s27, v{r}" for r in WA + [KA]] + [f"v_add_u32 v{r}, s33, v{r}" for r in XA]
            if s_ == 1 and sw == 1:
                upd = [f"s_cmp_lg_u32 s26, {17 - AFLAG}", f"s_cbranch_scc1 {name}_ND", "s_waitcnt vmcnt(0)", f"{name}_ND:"]
            M = mfs(BB[s_ & 1], sw, vtype)
            if s_ < 3:
                R = reads(s_ + 1, BB[(s_ + 1) & 1], kv)
                seq = [f"s_waitcnt lgkmcnt({nr-4})", M[0], R[0], R[1], M[1], R[2], R[3], "s_waitcnt lgkmcnt(4)", M[2], R[4], R[5]]
                if kv:
                    seq += [M[3], R[6], R[7], M[4]] + upd[:10] + [M[5]] + upd[10:]
                elif s_ == 1:
                    seq += [M[3]] + upd
                else:
                    seq += upd[:5] + [M[3]] + upd[5:]
            else:
                R = reads(0, BB[0], kv)
                tail = ["s_sub_u32 s26, s26, 1", "s_cmp_lg_u32 s26, 0"]
                seq = [f"s_waitcnt lgkmcnt({nr-4})", M[0], "s_waitcnt lgkmcnt(0)", "s_barrier", R[0], M[1], R[1], R[2], R[3], M[2], R[4], R[5]]
                if kv:
                    seq += [M[3], R[6], R[7], M[4]] + tail + [M[5]]
                else:
                    seq += tail + [M[3]]
            for l in seq:
                a(l)
        a(f"s_cbranch_scc1 {name}")
    if FASTX:
        a(f"s_waitcnt vmcnt({1 if CODEPF else 0})")
    a("s_barrier                              ; b(0)")
    stamp(a, 1)
    for l in reads(0, BB[0], True):
        a(l)
    a("s_cmp_lt_u32 s22, 8")
    a("s_cbranch_scc0 SW1V")
    sweep("SW1K", 0, False)
    a("s_branch K1_KVEPI")
    sweep("SW1V", 0, True)
    a.label("K1_KVEPI")
    stamp(a, 2)
    c0 = -2.0 * 0.7978845608028654 * LOG2E
    c1 = c0 * 0.044715
    T = 64
    TB = 16
    def gelu_tile(acc, out, pk):
        L = []
        if pk:
            for j in range(0, 8, 2):
                L.append(f"v_pk_mul_f32 {v(TB+j,2)}, {v(acc+j,2)}, {v(acc+j,2)}")
            for j in range(0, 8, 2):
                L.append(f"v_pk_fma_f32 {v(TB+j,2)}, {v(TB+j,2)}, s[34:35], v[12:13]")
            for j in range(0, 8, 2):
                L.append(f"v_pk_mul_f32 {v(TB+j,2)}, {v(TB+j,2)}, {v(acc+j,2)}")
            for j in range(8):
                L.append(f"v_exp_f32 v{TB+j}, v{TB+j}")
            for j in range(0, 4, 2):
                L.append(f"v_pk_mul_f32 {v(acc+8+j,2)}, {v(acc+8+j,2)}, {v(acc+j,2)}")
            for j in range(0, 8, 2):
                L.append(f"v_pk_add_f32 {v(TB+j,2)}, {v(TB+j,2)}, v[14:15]")
            for j in range(8):
                L.append(f"v_rcp_f32 v{TB+j}, v{TB+j}")
            for j in range(4, 8, 2):
                L.append(f"v_pk_mul_f32 {v(acc+8+j,2)}, {v(acc+8+j,2)}, {v(acc+j,2)}")
            for j in range(0, 8, 2):
                L.append(f"v_pk_mul_f32 {v(acc+8+j,2)}, {v(acc+8+j,2)}, {v(TB+j,2)}")
        else:
            for j in range(8):
                L.append(f"v_mul_f32 v{TB+j}, v{acc+j}, v{acc+j}")
            for j in range(8):
                L.append(f"v_fma_f32 v{TB+j}, v{TB+j}, s34, v12")
            for j in range(8):
                L.append(f"v_mul_f32 v{TB+j}, v{TB+j}, v{acc+j}")
            for j in range(8):
                L.append(f"v_exp_f32 v{TB+j}, v{TB+j}")
                L.append(f"v_mul_f32 v{acc+8+j}, v{acc+8+j}, v{acc+j}")
            for j in range(8):
                L.append(f"v_add_f32 v{TB+j}, 1.0, v{TB+j}")
            for j in range(8):
                L.append(f"v_rcp_f32 v{TB+j}, v{TB+j}")
                if j >= 2:
                    L.append(f"v_mul_f32 v{acc+8+j-2}, v{acc+8+j-2}, v{TB+j-2}")
            L.append(f"v_mul_f32 v{acc+14}, v{acc+14}, v{TB+6}")
            L.append(f"v_mul_f32 v{acc+15}, v{acc+15}, v{TB+7}")
        for j in range(0, 8, 2):
            L.append(f"v_cvt_pk_bf16_f32 v{out + j//2}, v{acc+8+j}, v{acc+8+j+1}")
        return L
    def kv_fill():
        L = []
        for i in range(2):
            for j in range(0, 16, 2):
                L.append(f"v_cvt_pk_bf16_f32 v{T + 8*i + j//2}, v{AK+16*i+j}, v{AK+16*i+j+1}")
                if j == 6:
                    L.append(f"buffer_store_dwordx4 {v(T+8*i,4)}, v11, s[28:31], s36 offen offset:{i*1024}{SC}")
            L.append(f"buffer_store_dwordx4 {v(T+8*i+4,4)}, v11, s[28:31], s37 offen offset:{i*1024}{SC}")
        return L
    def q_fill():
        L = []
        for t in range(2):
            for i in range(2):
                acc = accF(0, i, t)
                for hf in range(2):
                    for j in range(8):
                        L.append(f"v_mul_f32 v{acc+8*hf+j}, s34, v{acc+8*hf+j}")
                    for j in range(0, 8, 2):
                        L.append(f"v_cvt_pk_bf16_f32 v{acc+8*hf+j//2}, v{acc+8*hf+j}, v{acc+8*hf+j+1}")
                    L.append(f"s_add_u32 s39, s38, {WS_Q + (t + 4*hf) * HK * 1024}\nbuffer_store_dwordx4 {v(acc+8*hf,4)}, v3, s[28:31], s39 offen offset:{i*1024}{SC}")
        return L
    def cost(l):
        return 8 if l.startswith(("v_exp", "v_rcp")) else 4
    def sweep2(fill, early, qtype, ecap):
        nm = "SQ" if qtype else "SR"
        place(a, "S2")
        F = list(fill)
        late = {}
        if qtype and QSD:
            qs = [l for l in F[20:] if "buffer_store" in l]
            F = F[:20] + [l for l in F[20:] if "buffer_store" not in l]
            early = len(F)
            late = {QS0 + (i * QSD) // 2: [] for i in range(8)}
            for i, l in enumerate(qs):
                late[QS0 + (i * QSD) // 2].append((i, l))
        nlate = [0]
        pos = [0]
        def take(fixed, st):
            used = sum(4 for l in fixed if l.startswith(("ds_", "v_")))
            out = []
            while pos[0] < len(F) and st >= 1:
                cap = ecap if pos[0] < early else CAP
                if used + cost(F[pos[0]]) > cap:
                    break
                used += cost(F[pos[0]])
                out.append(F[pos[0]])
                pos[0] += 1
            return fixed + out
        for c in range(8, 16):
            dx = (xslot(c + 1) - xslot(c)) & 0xffffffff if c < 15 else 0
            dw = (wslot(c + 1) - wslot(c)) & 0xffffffff if c < 15 else 0
            for s_ in range(4):
                st = (c - 8) * 4 + s_
                M = mfs(BB[s_ & 1], 1, False)
                ux = lambda k: [f"v_add_u32 v{XA[k]}, {dx:#x}, v{XA[k]}"] if c < 15 else []
                if s_ < 3:
                    R = reads(s_ + 1, BB[(s_ + 1) & 1], False)
                    last = ux(s_ + 1) + (ux(0) if s_ == 0 else [])
                    if s_ == 2 and c < 15:
                        last += [f"v_add_u32 v{r}, {dw:#x}, v{r}" for r in WA]
                    if s_ == 2 and c == 14:
                        last += ["ds_read_b32 v10, v0"]
                    seq = (["s_waitcnt lgkmcnt(2)", M[0]] + take(R[0:2], st) + [M[1]] + take(R[2:4], st) +
                           ["s_waitcnt lgkmcnt(4)", M[2]] + take(R[4:6], st) + [M[3]] + take(last, st))
                else:
                    R = reads(0, BB[0], False) if c < 15 else []
                    g0 = take(R[:1], st)
                    dr = []
                    nst = sum("buffer_store" in l for l in F[:pos[0]]) + nlate[0]
                    if c + 1 == AFLAG:
                        assert nst >= 4
                        dr = [f"s_waitcnt vmcnt({nst - 4})"]
                    if c + 1 == AFLAGQ and qtype:
                        assert pos[0] >= early and nst == 12
                        dr = ["s_waitcnt vmcnt(0)"]
                    sync = ["s_barrier"] if c < 13 else (["s_mov_b64 exec, 1", "ds_add_u32 v0, v1", "s_mov_b64 exec, -1"] if c == 15 else [])
                    if c == 14:
                        sync = ["v_readfirstlane_b32 s75, v10", "s_bitcmp1_b32 s75, 6", f"s_cbranch_scc0 {nm}_W", f"{nm}_B:"]
                    seq = (["s_waitcnt lgkmcnt(2)", M[0]] + g0[len(R[:1]):] + dr + ["s_waitcnt lgkmcnt(0)"] + sync + R[:1] + [M[1]] +
                           take(R[1:4], st) + [M[2]] + take(R[4:], st) + [M[3]] + take([], st))
                for i_, l in late.get(st, []):
                    assert pos[0] >= 20 + 12 * (i_ + 1), (st, i_, pos[0])
                    seq.append(l)
                    nlate[0] += 1
                for l in seq:
                    if l == "s_barrier" and PROF in (10, 11, 12) and 0 <= c - (8 if PROF != 11 else 10) < 6:
                        if PROF == 12:
                            stamp(a, c - 8 + 1, 12)
                        a(l)
                        stamp(a, c - 8 + 1, 10)
                        stamp(a, c - 10 + 1, 11) if c >= 10 else None
                    else:
                        a(l)
        for l in F[pos[0]:]:
            a(l)
        sys.stderr.write(f"sweep2: {len(F) - pos[0]} of {len(F)} fillers left over\n")
    a(f"v_mov_b32 v0, {LDS_SYNC + 16}")
    a("v_mov_b32 v1, 1")
    a(f"v_mov_b32 v16, {LDS_TAG}")
    a("ds_read_b64 v[18:19], v16")
    a(f"v_mov_b32 v12, {fh(c0)}")
    a("v_mov_b32 v13, v12")
    a("v_mov_b32 v14, 1.0")
    a("v_mov_b32 v15, 1.0")
    a("s_waitcnt lgkmcnt(0)")
    a("v_readfirstlane_b32 s68, v18")
    a("v_readfirstlane_b32 s69, v19")
    a("s_cmp_lt_u32 s22, 12")
    a("s_cbranch_scc1 SW2R")
    a(f"s_mov_b32 s34, {fh(LOG2E*0.25)}")
    a("s_sub_u32 s38, s22, 12")
    a("s_lshl_b32 s38, s38, 3")
    a("s_lshl_b32 s39, s24, 1")
    a("s_add_u32 s38, s38, s39")
    a(f"s_mul_i32 s38, s38, {HK}")
    a("s_add_u32 s38, s38, s32")
    a("s_lshl_b32 s38, s38, 10")
    F = kv_fill() + q_fill()
    sweep2(F, len(F), True, QCAP)
    a("s_branch K1_GE2")
    a.label("SW2R")
    a(f"s_mov_b32 s34, {fh(c1)}")
    a("s_mov_b32 s35, s34")
    if HEARLY:
        a("s_mul_i32 s40, s32, 144")
        a("s_lshl_b32 s41, s22, 3")
        a("s_add_u32 s40, s40, s41")
        a("s_lshl_b32 s41, s24, 1")
        a("s_add_u32 s40, s40, s41")
        a("s_lshl_b32 s40, s40, 10")
        a(f"s_add_u32 s40, s40, {WS_ACT}")
        a(f"s_add_u32 s41, s40, {144*1024}")
    F = kv_fill()
    ne = len(F)
    F2 = []
    for i in range(2):
        for t in range(2):
            if i * 2 + t < NFILL:
                F += gelu_tile(accF(0, i, t), 80 + 4 * (i * 2 + t), GPK)
                if HEARLY:
                    F.append(f"buffer_store_dwordx4 {v(80 + 4*(i*2+t),4)}, v3, s[28:31], s{40+i} offen offset:{t*1024}{SC}")
            else:
                F2 += gelu_tile(accF(0, i, t), 80 + 4 * (i * 2 + t), True)
    sweep2(F, ne, False, CAP)
    for l in F2:
        a(l)
    a.label("K1_GE2")
    stamp(a, 3)
    a("v_add_u32 v44, s60, v3")
    a("ds_read_b128 v[40:43], v44")
    a(f"s_mov_b32 s34, {fh(c1)}")
    a("s_mov_b32 s35, s34")
    a("s_mul_i32 s36, s32, 144")
    a("s_lshl_b32 s37, s22, 3")
    a("s_lshl_b32 s38, s22, 2")
    a("s_add_u32 s38, s38, 44")
    a("s_cmp_lt_u32 s22, 12")
    a("s_cselect_b32 s37, s37, s38")
    a("s_add_u32 s36, s36, s37")
    a("s_lshl_b32 s37, s24, 1")
    a("s_add_u32 s36, s36, s37")
    a("s_lshl_b32 s36, s36, 10")
    a(f"s_add_u32 s36, s36, {WS_ACT}")
    a(f"s_add_u32 s37, s36, {144*1024}")
    a("s_add_u32 s38, s36, 4096")
    a("s_add_u32 s39, s37, 4096")
    hst = []
    if HLATE >= 0:
        srd(a, 40, 10, WS_SIZE)
        a("s_cmp_lt_u32 s22, 12")
        a(f"s_cselect_b32 s36, s36, {WS_SIZE}")
        a(f"s_cselect_b32 s37, s37, {WS_SIZE}")
    a("s_cmp_lt_u32 s22, 12")
    a("s_cbranch_scc0 K1_GE3")
    for i in range(2):
        for t in range(2):
            if not (HEARLY and i * 2 + t < NFILL):
                if HLATE >= 0:
                    hst.append(f"buffer_store_dwordx4 {v(80 + 4*(i*2+t),4)}, v3, s[40:43], s{36+i} offen offset:{t*1024}{SC}")
                else:
                    a(f"buffer_store_dwordx4 {v(80 + 4*(i*2+t),4)}, v3, s[28:31], s{36+i} offen offset:{t*1024}{SC}")
    place(a, "GE")
    a.label("K1_GE3")
    for t in range(2):
        for i in range(2):
            out = 64 + 4 * (i * 2 + t)
            for l in gelu_tile(accF(1, i, t), out, True)[(-4 if (env("X_NOGE2", 0) and t == 0) else 0):]:
                a(l)
            if HLATE >= 0:
                hst.append(f"buffer_store_dwordx4 {v(out,4)}, v3, s[40:43], s{38+i} offen offset:{t*1024}{SC}")
            else:
                a(f"buffer_store_dwordx4 {v(out,4)}, v3, s[28:31], s{38+i} offen offset:{t*1024}{SC}")

    a.label("K2_ATTN")
    Q = [8, 12]
    G = [4, 5]
    KB = [16, 20]
    VB = [[24, 28], [32, 36]]
    IDX = 6
    VK, VV0, VV1 = 40, 41, 42
    C = [96, 112]
    S = [128, 144]
    P = [160, 176]
    O = [192, 208]
    a(f"v_mov_b32 v{IDX}, 0xdddd")
    def zero_state():
        for i in range(4):
            a(f"v_mov_b32 v{VB[1][1]+i}, 0")
        a("s_nop 1")
        for r in (O[0], O[1], P[1]):
            a(f"{MF} {v(r,16)}, {v(VB[1][1],4)}, {v(VB[1][1],4)}, 0")
    zero_state()
    a("s_mov_b32 s26, 0")
    a("s_waitcnt lgkmcnt(0)")
    a(f"v_mov_b32 v7, v{VK}                    ; g address")
    a(f"v_mov_b32 v{VK}, v3")
    stamp(a, 1, 16)
    a("s_barrier                              ; X1")
    stamp(a, 2, 16)
    a("s_setprio 2")
    stamp(a, 4)
    stamp(a, 1, 9)
    a(f"ds_read_b128 {v(Q[0],4)}, v43")
    a(f"ds_read_b128 {v(KB[0],4)}, v{VK}")
    a(f"ds_read_b128 {v(Q[1],4)}, v43 offset:1024")
    a("s_waitcnt lgkmcnt(0)")
    for q in range(2):
        a(f"{MF} {v(S[q],16)}, {v(KB[0],4)}, {v(Q[q],4)}, 0")
    a("s_nop 7")
    a("s_nop 3")
    def maxtree(src, dst, acc=False):
        if acc:
            for i in range(0, 16, 2):
                a(f"v_max3_f32 v{dst}, v{src+i}, v{src+i+1}, v{dst}")
        else:
            a(f"v_max_f32 v{dst}, v{src}, v{src+1}")
            for i in range(2, 16, 2):
                a(f"v_max3_f32 v{dst}, v{src+i}, v{src+i+1}, v{dst}")
    for q in range(2):
        maxtree(S[q], 44 + q)
    a.label("K2_SETMAX")
    a(f"ds_read_b128 {v(KB[0],4)}, v{VK}")
    a(f"ds_read_b128 {v(VB[0][0],4)}, v{VV0}")
    a(f"ds_read_b128 {v(VB[0][1],4)}, v{VV1}")
    a(f"ds_read_b128 {v(KB[1],4)}, v{VK} offset:{TP}")
    for q in range(2):
        a(f"v_mov_b32 v{46+q}, v{44+q}")
    a("s_nop 1")
    for q in range(2):
        a(f"v_permlane32_swap_b32 v{44+q}, v{46+q}")
    for q in range(2):
        a(f"v_min_f32 v{44+q}, -v{44+q}, -v{46+q}     ; -max")
    for i in range(0, 16, 2):
        a(f"v_pk_mov_b32 {v(C[0]+i,2)}, v[44:45], v[44:45] op_sel:[0,0]")
    a("s_waitcnt lgkmcnt(0)")
    a("s_nop 0")
    a(f"{MF} {v(S[0],16)}, {v(KB[0],4)}, {v(Q[0],4)}, {v(C[0],16)}")
    for i in range(0, 16, 2):
        a(f"v_pk_mov_b32 {v(C[1]+i,2)}, v[44:45], v[44:45] op_sel:[1,1]")
    a("s_nop 3")
    stamp(a, 2, 9)
    if HU < 0:
        a("s_cmp_lg_u32 s26, 0")
        a("s_cbranch_scc1 K2_NOBAR")
        a("s_waitcnt vmcnt(0)")
        a("s_barrier")
        a.label("K2_NOBAR")
    else:
        a("s_lshl_b32 s27, 1, s20")
        a("v_mov_b32 v48, s27")
    stamp(a, 3, 9)
    stamp(a, 3, 16)
    if PROF == 16:
        a("s_mov_b32 s89, 0")
        a("s_mov_b32 s90, 0")
    if PADATT:
        pad_until(a, PADATT)
    U = UA
    assert U in (8, 16)
    a(f"s_mov_b32 s27, {64 // U - 1}")
    a("s_mov_b32 s77, 2")
    a(f"v_mov_b32 v46, {LDS_SYNC + 12}")
    a.raw(".p2align 6")
    place(a, "A")
    a.label("K2_LOOP")
    def exps(q, lo, hi):
        for i in range(lo, hi):
            a(f"v_exp_f32 v{P[q]+i}, v{S[q]+i}")
    def smf(q, vb, half):
        a(f"v_smfmac_f32_32x32x32_bf16 {v(O[q],16)}, {v(vb,4)}, {v(P[q]+8*half,8)}, v{IDX}")
    for u in range(U):
        b = u & 1
        a(f"{MF} {v(S[1],16)}, {v(KB[b],4)}, {v(Q[1],4)}, {v(C[1],16)}")
        if u == 8:
            a("s_bitcmp1_b32 s75, s77")
            a("s_cbranch_scc0 K2_KVM")
            a.label("K2_MID")
        if HLATE >= 0 and u >= HLATE and (u - HLATE) % HSTEP == 0 and (u - HLATE) // HSTEP < len(hst):
            assert u + 2 < HU
            a(hst[(u - HLATE) // HSTEP])
        exps(0, 0, 5)
        smf(1, VB[b ^ 1][1], 1)
        if u == 8:
            a("s_add_u32 s77, s77, 4")
            a("s_min_u32 s77, s77, 14")
        if u == TNEAR and TMODE == 3:
            a("ds_add_u32 v46, v6 offset:8")
        a(f"ds_read_b128 {v(VB[b^1][0],4)}, v{VV0} offset:{(u+1)*VP}")
        exps(0, 5, 11)
        smf(0, VB[b][0], 0)
        if u == HU:
            a("s_waitcnt vmcnt(0)")
            a("s_mov_b64 exec, 1")
            a("ds_or_b32 v46, v48 offset:8")
            a("s_mov_b64 exec, -1")
        a(f"ds_read_b128 {v(VB[b^1][1],4)}, v{VV1} offset:{(u+1)*VP}")
        exps(0, 11, 16)
        a(f"{MF} {v(S[0],16)}, {v(KB[b^1],4)}, {v(Q[0],4)}, {v(C[0],16)}")
        a(f"ds_read_b128 {v(KB[b],4)}, v{VK} offset:{(u+2)*TP}")
        exps(1, 0, 5)
        smf(0, VB[b][1], 1)
        if u % 8 == 7:
            a("ds_read_b32 v47, v46")
        exps(1, 5, 11)
        smf(1, VB[b][0], 0)
        a("s_waitcnt lgkmcnt(0)")
        if u == U - 1:
            a(f"v_add_u32 v{VK}, {U*TP}, v{VK}")
            a(f"v_add_u32 v{VV0}, {U*VP}, v{VV0}")
            a(f"v_add_u32 v{VV1}, {U*VP}, v{VV1}")
        if u % 8 == 7:
            a("v_readfirstlane_b32 s75, v47")
        exps(1, 11, 16)
        if u == 7:
            mid_check = True
    a("s_bitcmp1_b32 s75, s77")
    a("s_cbranch_scc0 K2_KVW")
    a.label("K2_NEXT")
    if HLATE >= 0:
        a("s_mov_b32 s42, 0")
    a("s_add_u32 s77, s77, 4")
    a("s_min_u32 s77, s77, 14")
    if PROF in (9, 16):
        a("s_memrealtime s[96:97]")
        a("s_memtime s[98:99]")
        a("s_waitcnt lgkmcnt(0)")
        for it, sl in (((3, 4), (2, 5), (1, 6)) if PROF == 9 else ((3, 4), (1, 5), (0, 6))):
            a(f"s_cmp_eq_u32 s27, {it}")
            a(f"s_cselect_b32 s{80+sl}, s96, s{80+sl}")
            a(f"s_cselect_b32 s{88+sl}, s98, s{88+sl}")
    a("s_sub_u32 s27, s27, 1")
    a("s_cbranch_scc0 K2_LOOP")
    a("s_nop 1")
    smf(1, VB[(U - 1) & 1][1], 1)
    stamp(a, 5)
    stamp(a, 1, 8)
    stamp(a, 1, 13)
    a(f"v_mov_b32 v46, {LDS_SYNC + 4}")
    a("ds_read_b32 v47, v46")
    a(f"ds_read_b32 v{G[0]}, v7")
    a(f"ds_read_b32 v{G[1]}, v7 offset:128")
    a("s_lshl_b32 s24, s71, 2")
    a("s_add_u32 s24, s24, s20")
    a("s_lshl_b32 s24, s24, 5")
    a("s_add_u32 s24, s24, s70")
    a("s_lshl_b32 s25, s24, 11")
    a(f"s_add_u32 s25, s25, {WS_O}")
    a("v_mov_b32 v48, 0")
    a("v_mov_b32 v49, 0")
    a(f"v_pk_mul_f32 v[44:45], {v(O[0],2)}, v[48:49]")
    for i in range(2, 10, 2):
        a(f"v_pk_fma_f32 v[44:45], {v(O[0]+i,2)}, v[48:49], v[44:45]")
    for i in range(0, 10, 2):
        a(f"v_pk_fma_f32 v[44:45], {v(O[1]+i,2)}, v[48:49], v[44:45]")
    a(f"v_mul_f32 v50, {fh(2.0**68)}, v{O[0]+8}")
    a(f"v_mul_f32 v51, {fh(2.0**68)}, v{O[1]+8}")
    a("v_pk_fma_f32 v[44:45], v[50:51], v[48:49], v[44:45]")
    a("v_cmp_u_f32 vcc, v44, v45")
    a("s_nop 1")
    a("s_cmp_eq_u64 vcc, 0")
    a("s_cbranch_scc0 K2_FB")
    a.label("K2_FIN")
    for q in range(2):
        a(f"v_rcp_f32 v{48+q}, v{O[q]+8}")
    a(f"s_mov_b32 s74, {SPIN*8}")
    a.label("K2_GW")
    a("s_waitcnt lgkmcnt(0)")
    a("v_readfirstlane_b32 s75, v47")
    a("s_sub_u32 s74, s74, 1")
    a("s_cmp_eq_u32 s74, 0")
    a("s_cbranch_scc1 K2_GOK")
    a("s_cmp_ge_u32 s75, 64")
    a("s_cbranch_scc1 K2_GOK")
    a("s_sleep 1")
    a("ds_read_b32 v47, v46")
    a(f"ds_read_b32 v{G[0]}, v7")
    a(f"ds_read_b32 v{G[1]}, v7 offset:128")
    a("s_branch K2_GW")
    a.label("K2_GOK")
    for q in range(2):
        a(f"v_mul_f32 v{44+2*q}, v{48+q}, v{G[q]}")
    GR = S[0]
    a(f"v_mov_b32 v{GR+8}, s68")
    a(f"v_mov_b32 v{GR+9}, s69")
    a(f"v_mov_b32 v{GR+10}, s68")
    a(f"v_mov_b32 v{GR+11}, s69")
    for q in range(2):
        for i in range(0, 8, 2):
            a(f"v_pk_mul_f32 {v(O[q]+i,2)}, {v(O[q]+i,2)}, {v(44+2*q,2)} op_sel_hi:[1,0]")
        for i in range(0, 8, 2):
            a(f"v_cvt_pk_bf16_f32 v{GR + 4*q + i//2}, v{O[q]+i}, v{O[q]+i+1}")
        a(f"buffer_store_dwordx4 {v(GR+4*q,4)}, v3, s[28:31], s25 offen offset:{q*1024}{SC}")
    if FRESH:
        a("s_lshl_b32 s24, s24, 12")
        a(f"s_add_u32 s24, s24, {WS_FR}")
        a("v_lshlrev_b32 v45, 7, v2")
    else:
        a("s_lshl_b32 s24, s24, 7")
        a(f"s_add_u32 s24, s24, {FL_C}")
    a(f"v_mov_b32 v46, {LDS_SYNC + 8}")
    a("v_mov_b32 v47, 1")
    a("s_mov_b64 exec, 1")
    a("ds_add_u32 v46, v47")
    a("s_mov_b64 exec, -1")
    NSD = min(NDEF, 11)
    if NDEF:
        srd(a, 44, 16, 0x1c0000)
        a(f"s_mul_i32 s53, s20, {DSTG}")
        a("s_add_u32 s53, s53, 0x10000")
        frag_addrs(a, "s53")
        part_addrs(a, "s53", 240)
        a(f"s_mul_i32 s32, s20, {NDEF}")
        a(f"s_add_u32 s32, s32, {4*(28-NDEF)}")
        a(f"s_mul_i32 s33, s72, {2*144*1024}")
        a("s_lshl_b32 s34, s32, 10")
        a("s_add_u32 s33, s33, s34")
        a(f"s_add_u32 s33, s33, {WS_ACT}")
        a(f"s_add_u32 s34, s33, {144*1024}")
        a("s_lshl_b32 s35, s32, 14")
        a("s_lshl_b32 s36, s73, 7")
        a("s_add_u32 s35, s35, s36")
        a("v_and_b32 v4, 31, v2")
        a("v_lshlrev_b32 v4, 2, v4")
        a(f"v_add_u32 v4, {LDS_OG}, v4")
        a("ds_read_b32 v244, v4")
        a("ds_read_b32 v246, v4 offset:128")
        a("ds_read_b32 v47, v46")
    stamp(a, 2, 13)
    a("s_waitcnt vmcnt(0)")
    stamp(a, 3, 13)
    if FULLF:
        a("s_mov_b64 exec, 0xff")
        a(f"buffer_store_dwordx4 {v(GR+8,4)}, v3, s[28:31], s24 offen sc1")
    elif FRESH:
        a("s_mov_b32 exec_hi, 0")
        a(f"buffer_store_dwordx2 {v(GR+8,2)}, v45, s[28:31], s24 offen sc1")
    elif ATFLAG:
        a("s_mov_b64 exec, 1")
        a(f"buffer_atomic_swap_x2 {v(GR+8,2)}, v3, s[28:31], s24 offen sc1")
    else:
        a("s_mov_b64 exec, 1")
        a(f"buffer_store_dwordx2 {v(GR+8,2)}, v3, s[28:31], s24 offen sc1")
    a("s_mov_b64 exec, -1")
    a("s_setprio 0")
    stamp(a, 6)
    stamp(a, 2, 8)
    if NDEF:
        lds_wait(a, 46, 47, ["s_and_b32 s75, s75, 255", "s_cmp_ge_u32 s75, 68"], first_read=False)
        a("v_mov_b32 v248, v46")
        a("v_mov_b32 v249, 256")
        DA_, DW_, DC_ = 144, 80, 16
        dq = []
        def dw(k):
            a(f"s_add_u32 m0, s53, {(k % NSD) * 2048}")
            a("s_nop 0")
            a("buffer_load_dwordx4 v10, s[44:47], s35 offen lds")
            a("buffer_load_dwordx4 v11, s[44:47], s35 offen offset:1024 lds")
            a("s_add_u32 s35, s35, 16384")
            dq.extend([k] * 2)
        def da(k):
            for t in range(2):
                a(f"buffer_load_dwordx4 {v(DA_+8*k+4*t,4)}, v3, s[28:31], s{33+t} offen offset:{(k%4)*1024}{SC}")
            if k % 4 == 3:
                a("s_add_u32 s33, s33, 4096")
                a("s_add_u32 s34, s34, 4096")
            dq.extend([k] * 2)
        def dwait(k):
            a(f"s_waitcnt vmcnt({len(dq) - 1 - max(i for i, t in enumerate(dq) if t == k)})")
        def drd(k):
            b = DW_ + 8 * (k & 1)
            for n in range(2):
                for u in range(2):
                    a(f"ds_read_b64_tr_b16 {v(b+4*n+2*u,2)}, v{12+n} offset:{(k % NSD) * 2048 + u*1024}")
        AH = min(AHD, NDEF)
        for k in range(AH):
            dw(k); da(k)
        dwait(0)
        stamp(a, 3, 8)
        drd(0)
        for k in range(NDEF):
            if k + AH < NDEF:
                dw(k + AH); da(k + AH)
            if k + 1 < NDEF:
                dwait(k + 1)
                if k + 3 == NDEF:
                    a("s_mov_b64 exec, 1")
                    a("ds_add_u32 v248, v249")
                    a("s_mov_b64 exec, -1")
                drd(k + 1)
                a("s_waitcnt lgkmcnt(4)")
            else:
                a("s_waitcnt lgkmcnt(0)")
            b = DW_ + 8 * (k & 1)
            for n in range(2):
                for t in range(2):
                    acc = DC_ + (n * 2 + t) * 16
                    cin = "0" if k == 0 else v(acc, 16)
                    a(f"{MF} {v(acc,16)}, {v(b+4*n,4)}, {v(DA_+8*k+4*t,4)}, {cin}")
        stamp(a, 4, 8)
        a("s_nop 7")
        for n in range(2):
            for t in range(2):
                acc = DC_ + (n * 2 + t) * 16
                if n + t == 0:
                    a("s_nop 1")
                for j in range(0, 16, 2):
                    a(f"v_pk_mul_f32 {v(acc+j,2)}, {v(acc+j,2)}, {v(244+2*t,2)} op_sel_hi:[1,0]")
                for g in range(4):
                    a(f"ds_write_b128 v{240+g}, {v(acc+4*g,4)} offset:{t*8192 + n*128}")
        stamp(a, 5, 8)
    a("s_branch K3_REDUCE")
    a.label("K2_FB")
    a("s_cmp_lg_u32 s26, 0")
    a("s_cbranch_scc1 K2_FIN")
    a("s_waitcnt lgkmcnt(0)")
    a("s_mov_b32 s26, 100")
    vaddr_init(a)
    zero_state()
    a("v_mov_b32 v44, 0xff800000")
    a("v_mov_b32 v45, 0xff800000")
    a("v_mov_b32 v43, v3")
    a("s_mov_b32 s27, 64")
    a.label("K2_MAXLOOP")
    a(f"ds_read_b128 {v(KB[0],4)}, v43")
    a(f"v_add_u32 v43, {TP}, v43")
    a("s_waitcnt lgkmcnt(0)")
    for q in range(2):
        a(f"{MF} {v(S[q],16)}, {v(KB[0],4)}, {v(Q[q],4)}, 0")
    a("s_nop 7")
    a("s_nop 7")
    for q in range(2):
        maxtree(S[q], 44 + q, acc=True)
    a("s_sub_u32 s27, s27, 1")
    a("s_cmp_lg_u32 s27, 0")
    a("s_cbranch_scc1 K2_MAXLOOP")
    a("s_branch K2_SETMAX")
    for nm in ("SQ", "SR"):
        a.label(nm + "_W")
        lds_wait(a, 0, 10, ["s_bitcmp1_b32 s75, 6"])
        a(f"s_branch {nm}_B")
    for lab, back in (("K2_KVW", "K2_NEXT"), ("K2_KVM", "K2_MID"))[:U // 8]:
        a.label(lab)
        if PROF == 16:
            a("s_memtime s[100:101]")
        lds_wait(a, 46, 47, ["s_bitcmp1_b32 s75, s77"])
        if PROF == 16:
            a("s_memtime s[98:99]")
            a("s_waitcnt lgkmcnt(0)")
            a("s_sub_u32 s98, s98, s100")
            a("s_add_u32 s89, s89, s98")
            a("s_lshl_b32 s98, 1, s77")
            a("s_or_b32 s90, s90, s98")
        a(f"s_branch {back}")

    a.label("K2_GEMM")
    ND, NW = 28 - NDEF, 8
    NG = ND // 4
    NS = env('NSW', 3)
    srd(a, 44, 16, 0x1c0000)
    srd(a, 48, 8, 0x80000)
    if FMAP:
        a("s_and_b32 s42, s72, 3")
        a("s_lshl_b32 s42, s42, 1")
        a("s_add_u32 s42, s42, s73")
    else:
        a("s_lshr_b32 s42, s2, 3")
        a("s_and_b32 s43, s42, 7")
        a("s_lshr_b32 s42, s42, 3")
        a("s_lshl_b32 s42, s42, 1")
        a("s_add_u32 s42, s42, s43")
    for _ in range(-(-14 // NG) - 1):
        a(f"s_cmp_ge_u32 s42, {NG}")
        a(f"s_cselect_b32 s43, {NG}, 0")
        a("s_sub_u32 s42, s42, s43")
    if not ROT:
        a("s_mov_b32 s42, 0")
    a("s_mov_b32 s52, s42")
    a(f"s_mul_i32 s32, s23, {ND}")
    a("s_lshl_b32 s43, s42, 2")
    a("s_add_u32 s32, s32, s43")
    a(f"s_mul_i32 s33, s72, {2*144*1024}")
    a(f"s_add_u32 s33, s33, {WS_ACT}")
    a("s_lshl_b32 s43, s32, 10")
    a("s_add_u32 s33, s33, s43")
    a(f"s_add_u32 s34, s33, {144*1024}")
    a("s_lshl_b32 s43, s73, 7")
    a("s_lshl_b32 s35, s32, 14")
    a("s_add_u32 s35, s35, s43")
    a("s_lshl_b32 s39, s23, 17")
    a("s_add_u32 s39, s39, s43")
    a(f"s_mul_i32 s53, s23, {3*2048}")
    a(f"s_add_u32 s53, s53, {LDS_WS}")
    GA = 16
    FR = 80
    D = 8
    queue = []
    def ld(dst, sr, k, tag):
        a(f"buffer_load_dwordx4 {v(dst,4)}, v3, s[28:31], s{sr} offen offset:{(k%4)*1024}{SC}")
        queue.append(tag)
    def aloads(k):
        b = FR + (k % D) * 16
        ld(b + 4, 33, k, ("a", k)); ld(b + 12, 34, k, ("a", k))
        if k % 4 == 3:
            a("s_add_u32 s42, s42, 1")
            a(f"s_cmp_eq_u32 s42, {NG}")
            a("s_movk_i32 s43, 4096")
            a(f"s_cselect_b32 s43, {(-(NG-1)*4096) & 0xffffffff:#x}, s43")
            a("s_cselect_b32 s42, 0, s42")
            for sr in (33, 34):
                a(f"s_add_u32 s{sr}, s{sr}, s43")
    def wloads(k):
        a(f"s_add_u32 m0, s53, {(k % NS) * 2048}")
        sr, rs = (35, 44) if k < ND else (39, 48)
        a("s_nop 0")
        a(f"buffer_load_dwordx4 v248, s[{rs}:{rs+3}], s{sr} offen lds")
        a(f"buffer_load_dwordx4 v249, s[{rs}:{rs+3}], s{sr} offen offset:1024 lds")
        queue.extend([("w", k)] * 2)
        a(f"s_add_u32 s{sr}, s{sr}, 16384")
        if k < ND and k % 4 == 3:
            a("s_add_u32 s52, s52, 1")
            a(f"s_cmp_eq_u32 s52, {NG}")
            a(f"s_cselect_b32 s43, {(-ND*16384) & 0xffffffff:#x}, 0")
            a("s_cselect_b32 s52, 0, s52")
            a("s_add_u32 s35, s35, s43")
    def waitfor(*tags):
        n = len(queue) - 1 - max(i for i, t in enumerate(queue) if t in tags)
        a(f"s_waitcnt vmcnt({n})")
    def wreads(k):
        b = FR + (k % D) * 16
        for n in range(2):
            for u in range(2):
                a(f"ds_read_b64_tr_b16 {v(b+8*n+2*u,2)}, v{250+n} offset:{(k % NS) * 2048 + u*1024}")
    def mm(k):
        b = FR + (k % D) * 16
        for n in range(2):
            for t in range(2):
                acc = GA + (n * 2 + t) * 16
                cin = "0" if k == 0 else v(acc, 16)
                a(f"{MF} {v(acc,16)}, {v(b+8*n,4)}, {v(b+4+8*t,4)}, {cin}")
    stamp(a, 3)
    a(f"v_mov_b32 v22, {LDS_SYNC + 16}")
    lds_wait(a, 22, 23, ["s_bitcmp1_b32 s75, 2"])
    a("ds_write_b128 v36, v[40:43]")
    a("ds_write_b128 v36, v[44:47] offset:16")
    a(f"ds_write_b128 v36, v[40:43] offset:{2*VP}")
    a(f"ds_write_b128 v36, v[44:47] offset:{2*VP+16}")
    if KVV == 1:
        kv_loads(3, 5)
    a(f"s_waitcnt vmcnt({4 if KVV == 1 else 0}) lgkmcnt(0)")
    stamp(a, 5, 15)
    if KVV >= 3:
        kv_loads(3, 5)
    if KVV >= 4:
        kv_loads(5, 7)
    a("s_barrier                              ; X1")
    a(f"s_setprio {GPRIO}")
    stamp(a, 6, 15)
    if KVV == 2:
        kv_loads(3, 5)
    if KVV < 4:
        kv_loads(5, 7)
    else:
        kv_loads(7, 9)
    def b1_flag():
        a("s_cmp_lg_u32 s23, 1")
        a("s_cbranch_scc1 K2_NOB1")
        a("s_lshl_b32 s37, s21, 4")
        a("s_add_u32 s37, s37, s22")
        a("s_lshl_b32 s37, s37, 7")
        a(f"s_add_u32 s37, s37, {FL_B1}")
        flag_store(a, "s37", 16)
        a.label("K2_NOB1")
    if HU < 0:
        a("s_barrier                              ; X2")
        b1_flag()
    a(f"v_mov_b32 v34, {LDS_SYNC + 12}")
    def arrived(stage, n):
        a(f"v_mov_b32 v35, {1 << (4 * stage)}")
        a(f"s_waitcnt vmcnt({n})")
        a("s_mov_b64 exec, 1")
        a("ds_add_u32 v34, v35")
        a("s_mov_b64 exec, -1")
    if KVV < 4:
        kv_loads(7, 9)
    arrived(0, 8)
    arrived(1, 4)
    if HU >= 0 and HLATE < 0:
        a(f"v_mov_b32 v22, {LDS_SYNC + 20}")
        lds_wait(a, 22, 23, ["s_cmp_eq_u32 s75, 15"])
        b1_flag()
    kv_loads(9, 12)
    arrived(2, 6)
    kv_loads(12, 16)
    srd(a, 44, 16, 0x1c0000)
    arrived(3, 0)
    a("v_mov_b32 v69, s68")
    a("s_lshl_b32 s55, s76, 4")
    a(f"s_add_u32 s55, s55, {WS_G}")
    a("s_mov_b32 exec_lo, 1")
    a("s_mov_b32 exec_hi, 1")
    a(f"buffer_store_dwordx2 v[68:69], v70, s[28:31], s55 offen{SC}")
    a("s_mov_b64 exec, -1")
    if HLATE >= 0:
        a(f"v_mov_b32 v22, {LDS_SYNC + 20}")
        lds_wait(a, 22, 23, ["s_cmp_eq_u32 s75, 15"], slp=4)
        b1_flag()
    if WARMW and FMAP:
        a("s_lshr_b32 s54, s2, 3")
        a("s_lshl_b32 s54, s54, 2")
        a("s_add_u32 s54, s54, s23")
        a("s_mul_i32 s55, s54, 14336")
        a("v_min_u32 v14, 55, v2")
        a("v_lshlrev_b32 v14, 7, v14")
        a("buffer_load_dword v15, v14, s[44:47], s55 offen")
        a("s_add_u32 s55, s55, 7168")
        a("buffer_load_dword v15, v14, s[44:47], s55 offen")
        a("s_lshl_b32 s55, s54, 12")
        a("v_and_b32 v14, 31, v2")
        a("v_lshlrev_b32 v14, 7, v14")
        a("buffer_load_dword v15, v14, s[48:51], s55 offen")
    elif WARMW:
        a("s_lshr_b32 s54, s2, 3")
        a("s_and_b32 s54, s54, 7")
        a("s_lshl_b32 s55, s54, 2")
        a("s_add_u32 s55, s55, s23")
        a("s_mul_i32 s55, s55, 57344")
        a("s_add_u32 s55, s55, s43")
        a("v_min_u32 v14, 55, v2")
        a("v_lshlrev_b32 v14, 10, v14")
        a("buffer_load_dword v15, v14, s[44:47], s55 offen")
        a("s_lshl_b32 s55, s54, 2")
        a("s_add_u32 s55, s55, s23")
        a("s_lshl_b32 s55, s55, 14")
        a("s_add_u32 s55, s55, s43")
        a("v_and_b32 v14, 15, v2")
        a("v_lshlrev_b32 v14, 10, v14")
        a("buffer_load_dword v15, v14, s[48:51], s55 offen")
    for k in range(NS):
        wloads(k)
    a("s_setprio 3")
    a("v_and_b32 v6, 15, v2")
    a("v_lshlrev_b32 v6, 7, v6")
    a("s_lshr_b32 s24, s72, 1")
    a("s_lshl_b32 s24, s24, 11")
    a(f"s_add_u32 s24, s24, {FL_B1}")
    poll_shared(a, 3, [("s24", 6, 8, 4)], 20, lslp=4)
    a("v_and_b32 v6, 31, v2")
    a("v_lshlrev_b32 v6, 3, v6")
    a("v_lshlrev_b32 v7, 3, v2")
    a("s_lshl_b32 s54, s72, 9")
    a(f"s_add_u32 s54, s54, {WS_G}")
    a("s_lshl_b32 s55, s71, 2")
    a("s_add_u32 s55, s55, s23")
    a("s_lshl_b32 s55, s55, 9")
    a(f"s_add_u32 s55, s55, {WS_G}")
    a(f"s_mov_b32 s74, {SPIN}")
    a.label("K2_GL")
    a(f"buffer_load_dwordx2 v[240:241], v6, s[28:31], s54 offen{SC}")
    a(f"buffer_load_dwordx2 v[242:243], v6, s[28:31], s54 offen offset:256{SC}")
    a(f"buffer_load_dwordx2 v[244:245], v7, s[28:31], s55 offen{SC}")
    a("s_waitcnt vmcnt(0)")
    a("v_xor_b32 v8, s68, v241")
    a("v_xor_b32 v9, s68, v243")
    a("v_xor_b32 v14, s68, v245")
    a("v_or3_b32 v8, v8, v9, v14")
    a("v_cmp_ne_u32 vcc, 0, v8")
    a("s_sub_u32 s74, s74, 1")
    a("s_cbranch_scc1 K2_GD")
    a("s_cmp_eq_u64 vcc, 0")
    a("s_cbranch_scc1 K2_GD")
    a("s_sleep 4")
    a("s_branch K2_GL")
    a.label("K2_GD")
    a("s_lshl_b32 s55, s23, 8")
    a(f"s_add_u32 s55, s55, {LDS_GQ}")
    a("v_lshrrev_b32 v7, 1, v7")
    a("v_add_u32 v7, s55, v7")
    a("ds_write_b32 v7, v244")
    a("v_sub_f32 v240, 1.0, v240")
    a("v_sub_f32 v242, 1.0, v242")
    a("v_lshrrev_b32 v6, 1, v6")
    a(f"v_add_u32 v6, {LDS_OG}, v6")
    a("ds_write_b32 v6, v240")
    a("ds_write_b32 v6, v242 offset:128")
    a(f"v_mov_b32 v8, {LDS_SYNC + 4}")
    a("v_mov_b32 v9, 16")
    a("s_waitcnt lgkmcnt(0)")
    a("s_mov_b64 exec, 1")
    a("ds_add_u32 v8, v9")
    a("s_mov_b64 exec, -1")
    stamp(a, 4)
    stamp(a, 6, 16)
    DA = DAH
    a("s_setprio 0")
    place(a, "D")
    for k in range(DA):
        aloads(k)
    for k in range(ND + NW):
        waitfor(("w", k), ("a", k))
        wreads(k)
        a("s_waitcnt lgkmcnt(0)")
        if k + NS < ND + NW:
            wloads(k + NS)
        if k + DA < ND:
            aloads(k + DA)
        if k < ND:
            mm(k)
    a("s_setprio 3")
    if NDEF and WARMD:
        assert FMAP
        a(f"s_mul_i32 s33, s72, {2*144*1024}")
        a("s_lshr_b32 s34, s23, 1")
        a(f"s_mul_i32 s34, s34, {144*1024}")
        a("s_add_u32 s33, s33, s34")
        a("s_lshl_b32 s34, s73, 1")
        a("s_and_b32 s35, s23, 1")
        a("s_add_u32 s34, s34, s35")
        a(f"s_mul_i32 s34, s34, {NDEF*256}")
        a("s_add_u32 s33, s33, s34")
        a(f"s_add_u32 s33, s33, {WS_ACT + 4*ND*1024}")
        a(f"v_min_u32 v14, {2*NDEF-1}, v2")
        a("v_lshlrev_b32 v14, 7, v14")
        a(f"buffer_load_dword v15, v14, s[28:31], s33 offen{SC}")
        a("s_and_b32 s34, s72, 3")
        a("s_lshl_b32 s34, s34, 2")
        a("s_add_u32 s34, s34, s23")
        a(f"s_mul_i32 s34, s34, {NDEF*4096}")
        a("s_lshl_b32 s35, s73, 7")
        a("s_add_u32 s34, s34, s35")
        a(f"s_add_u32 s34, s34, {4*ND*16384}")
        a(f"v_min_u32 v14, {4*NDEF-1}, v2")
        a("v_lshlrev_b32 v14, 10, v14")
        a("buffer_load_dword v15, v14, s[44:47], s34 offen")
    a("s_nop 7")
    a("s_nop 7")
    for n in range(2):
        for t in range(2):
            acc = GA + (n * 2 + t) * 16
            for j in range(16):
                a(f"v_mul_f32 v{acc+j}, v{acc+j}, v{240+2*t}")
    a("s_lshl_b32 s24, s72, 2")
    a("s_add_u32 s24, s24, s23")
    a("s_lshl_b32 s24, s24, 14")
    a(f"s_add_u32 s24, s24, {WS_O}")
    a("v_and_b32 v6, 7, v2")
    a("v_lshlrev_b32 v6, 7, v6")
    a("s_lshl_b32 s26, s72, 12")
    a("s_lshl_b32 s25, s23, 10")
    a("s_add_u32 s26, s26, s25")
    if FRESH:
        a("v_lshlrev_b32 v6, 5, v6")
        a("s_lshl_b32 s27, s26, 5")
        a(f"s_add_u32 s27, s27, {WS_FR}")
    a(f"s_add_u32 s26, s26, {FL_C}")
    a(f"v_mov_b32 v11, {LDS_SYNC + 8}")
    a("v_mov_b32 v10, 16")
    a("s_mov_b64 exec, 1")
    a("ds_add_u32 v11, v10")
    a("s_mov_b64 exec, -1")
    a("s_mov_b32 s54, 0")
    a(f"s_mov_b32 s74, {SPIN}")
    stamp(a, 5)
    stamp(a, 1, 8)
    def c_poll(r=8):
        if FRESH:
            a("s_memrealtime s[58:59]")
        a(f"v_mov_b32 v{r}, 0")
        a(f"v_mov_b32 v{r+1}, 0")
        if FRESH:
            a("s_waitcnt lgkmcnt(0)")
            a(f"s_bfe_u32 s58, s58, {(5 << 16) | FRESH:#x}")
            a("s_lshl_b32 s58, s58, 7")
            a("s_add_u32 s26, s27, s58")
        if MASKP:
            a("s_xor_b32 exec_lo, s54, 0xff")
            a("s_mov_b32 exec_hi, 0")
        else:
            a("s_mov_b64 exec, 0xff")
        if ATPOLL:
            a(f"buffer_atomic_or_x2 {v(r,2)}, v6, s[28:31], s26 offen sc0 sc1")
        else:
            a(f"buffer_load_dwordx2 {v(r,2)}, v6, s[28:31], s26 offen sc1")
        a("s_mov_b64 exec, -1")
    def pause():
        if NDEF and PAUSE:
            lab, done = a.newlabel("PZ"), a.newlabel("PZD")
            a(f"s_mov_b32 s76, {SPIN}")
            a.label(lab)
            a("ds_read_b32 v10, v11")
            a("s_waitcnt lgkmcnt(0)")
            a("v_readfirstlane_b32 s75, v10")
            a("s_sub_u32 s76, s76, 1")
            a(f"s_cbranch_scc1 {done}")
            a("s_cmp_ge_u32 s75, 1024")
            a(f"s_cbranch_scc1 {done}")
            a("s_and_b32 s75, s75, 15")
            a(f"s_cbranch_scc0 {done}")
            a("s_sleep 1")
            a(f"s_branch {lab}")
            a.label(done)
    def o_loads(tag):
        for kk in range(NW):
            b = FR + ((ND + kk) % D) * 16
            a(f"s_bitcmp1_b32 s55, {kk}")
            a(f"s_cbranch_scc0 K3_L{tag}{kk}")
            a(f"s_add_u32 s25, s24, {kk*2048}")
            a(f"buffer_load_dwordx4 {v(b+4,4)}, v3, s[28:31], s25 offen{SC}")
            a(f"buffer_load_dwordx4 {v(b+12,4)}, v3, s[28:31], s25 offen offset:1024{SC}")
            a.label(f"K3_L{tag}{kk}")
    if TMODE:
        if TMODE == 3:
            a(f"v_mov_b32 v12, {LDS_SYNC + 20}")
            a.label("K3_NEAR")
            a("ds_read_b32 v10, v12")
            a("s_waitcnt lgkmcnt(0)")
            a("v_readfirstlane_b32 s75, v10")
            a(f"s_cmp_gt_u32 s75, {12 * 64 * 0xdddd}")
            a("s_cbranch_scc1 K3_NEAR1")
            a(f"s_sleep {PSLOW // 2}")
            a("s_sub_u32 s74, s74, 1")
            a("s_cbranch_scc0 K3_NEAR")
            a.label("K3_NEAR1")
            c_poll()
            a("s_waitcnt vmcnt(0)")
            a("v_cmp_eq_u64 vcc, s[68:69], v[8:9]")
            a(f"s_mov_b32 s74, {SPIN}")
            a("s_mov_b32 s55, vcc_lo")
            a("s_mov_b32 s54, s55")
            o_loads("P")
        a.label("K3_PRE")
        if TMODE == 2:
            a("s_cmp_eq_u32 s54, 0xff")
            a("s_cbranch_scc1 K3_PRE1")
            c_poll()
            a("s_waitcnt vmcnt(0)")
            a("v_cmp_eq_u64 vcc, s[68:69], v[8:9]")
            a("s_nop 0")
            a("s_andn2_b32 s55, vcc_lo, s54")
            a("s_or_b32 s54, s54, s55")
            o_loads("P")
            a.label("K3_PRE1")
        for rep in range(4):
            a("ds_read_b32 v10, v11")
            a("s_waitcnt lgkmcnt(0)")
            a("v_readfirstlane_b32 s75, v10")
            a("s_and_b32 s75, s75, 15")
            a("s_cbranch_scc1 K3_GO")
            a(f"s_sleep {PSLOW // 4}")
        a("s_sub_u32 s74, s74, 1")
        a("s_cbranch_scc0 K3_PRE")
        a.label("K3_GO")
        a(f"s_mov_b32 s74, {SPIN}")
        a("s_mov_b32 s55, s54")
        a("s_branch K3_NEXTP")
    a.label("K3_POLL")
    c_poll()
    a.label("K3_ROUND")
    a("s_waitcnt vmcnt(0)")
    a("v_cmp_eq_u64 vcc, s[68:69], v[8:9]")
    a("s_sub_u32 s74, s74, 1")
    a("s_cselect_b32 s55, 0xff, vcc_lo")
    a("s_andn2_b32 s55, s55, s54")
    a("s_cbranch_scc1 K3_SOME")
    if TMODE:
        a(f"s_sleep {TSLP}")
    else:
        a("ds_read_b32 v10, v11")
        a(f"s_sleep {TSLP}")
        a("s_waitcnt lgkmcnt(0)")
        a("v_readfirstlane_b32 s75, v10")
        a("s_and_b32 s75, s75, 15")
        a("s_cbranch_scc1 K3_POLL")
        a(f"s_sleep {PSLOW}")
    a("s_branch K3_POLL")
    a.label("K3_SOME")
    stamp(a, 1, 13)
    if PROF == 13:
        a("s_mov_b32 s89, s55")
    a("s_or_b32 s54, s54, s55")
    o_loads("")
    a.label("K3_NEXTP")
    a("s_waitcnt vmcnt(0)")
    a("s_cmp_eq_u32 s54, 0xff")
    a("s_cbranch_scc1 K3_LAST")
    c_poll()
    a.label("K3_LAST")
    a("ds_read_b32 v10, v11")
    stamp(a, 2, 13)
    for kk in range(NW):
        a(f"s_bitcmp1_b32 s55, {kk}")
        a(f"s_cbranch_scc0 K3_C{kk}")
        mm(ND + kk)
        a.label(f"K3_C{kk}")
    a("s_cmp_lg_u32 s54, 0xff")
    a("s_cbranch_scc1 K3_ROUND")
    stamp(a, 6)
    stamp(a, 2, 8)
    stamp(a, 3, 13)
    lds_wait(a, 11, 10, ["s_bitcmp1_b32 s75, 2"], first_read=False)
    for i in range(3, 6):
        stamp(a, i, 8)
    stamp(a, 4, 13)
    a("s_nop 7")
    part_write(a, GA, 212)
    stamp(a, 5, 13)
    a.label("K3_REDUCE")
    srd(a, 24, 64, 0x200000)
    a("s_lshl_b32 s32, s20, 6")
    a("v_add_u32 v0, s32, v2                  ; tid")
    a("v_lshrrev_b32 v7, 3, v0                ; token")
    a("v_and_b32 v5, 7, v0")
    a("v_lshlrev_b32 v6, 1, v5")
    a("v_and_b32 v8, 7, v7")
    a("v_xor_b32 v6, v6, v8")
    a("v_lshlrev_b32 v6, 4, v6")
    a("v_lshl_add_u32 v6, v7, 8, v6")
    a("v_xor_b32 v8, 16, v6")
    a("v_add_u32 v9, 0x10000, v6")
    a("v_add_u32 v10, 0x10000, v8")
    a("v_lshlrev_b32 v7, 10, v7")
    a("v_lshl_add_u32 v7, v5, 4, v7")
    a("s_lshl_b32 s32, s72, 16")
    a("s_lshl_b32 s33, s73, 7")
    a("s_add_u32 s32, s32, s33")
    a("s_waitcnt lgkmcnt(0)")
    a("s_barrier                              ; Y1")
    stamp(a, 6, 8)
    stamp(a, 6, 13)
    NP = 8 if NDEF else 4
    RB = 96
    for w in range(NP):
        off = w * 16384 if w < 4 else (w - 4) * DSTG
        r0, r1 = (6, 8) if w < 4 else (9, 10)
        if off > 65535:
            a("v_add_u32 v9, 0x8000, v9")
            a("v_add_u32 v10, 0x8000, v10")
            off -= 0x8000
        a(f"ds_read_b128 {v(RB+8*w,4)}, v{r0} offset:{off}")
        a(f"ds_read_b128 {v(RB+4+8*w,4)}, v{r1} offset:{off}")
    for w in range(1, NP):
        a(f"s_waitcnt lgkmcnt({2*(NP-1-w)})")
        for j in range(0, 8, 2):
            a(f"v_pk_add_f32 {v(RB+j,2)}, {v(RB+j,2)}, {v(RB+8*w+j,2)}")
    for j in range(0, 8, 2):
        a(f"v_cvt_pk_bf16_f32 v{16+j//2}, v{RB+j}, v{RB+j+1}")
    a("buffer_store_dwordx4 v[16:19], v7, s[24:27], s32 offen" + (" " + OUTSC if OUTSC else ""))
    if PADEND:
        pad_until(a, PADEND)
    stamp_flush(a, 8)
    a.label("K_EXIT")
    a("s_endpgm")
    a.label("K_END")

DOC = """;
"""

def main():
    hdr = open("cdna_kernels/" + NAME + ".s.ref").read().split("\n")
    top = [l for l in hdr if l.startswith(";") and "@launch" not in l]
    out = "\n".join(top) + "\n"
    out += f"; @launch grid=(256,1,1) block=(512,1,1) lds={LDS_TOTAL}\n"
    out += DOC
    out += '.amdgcn_target "amdgcn-amd-amdhsa--gfx950"\n.text\n'
    a = Asm()
    gen(a)
    out += a.text()
    out += '.section .rodata,"a"\n'
    out += kernel_desc(KNAME, 256, 102)
    path = sys.argv[1] if len(sys.argv) > 1 else "cdna_kernels/" + NAME + ".s"
    open(path, "w").write(out)

main()
```

```python
import sys, math, os
from asmlib import *

NAME = "gated_mix__softmax_full_mha__geglu_ffn__prompt"
KNAME = NAME + "_kernel"
LOG2E = 1.4426950408889634
def env(n, d): return int(os.environ.get(n, str(d)))
PROF = env("PROF", 0)
ROT = env("ROT", 1)
TAGPOS = env("TAGPOS", 0)
PADEND = env("PADEND", 0)
PADATT = env("PADATT", 0)
DBGWG = env("DBGWG", -1)
TLBW = env("TLBW", 0)
PFW = env("PFW", 0)
PFI = env("PFI", 1)
PFX = env("PFX", 0)
KVROT = env("KVROT", 1)
AFLAG = env("AFLAG", 10)
PFC = env("PFC", 5)
ONEP = env("ONEP", 0)
FMAP = env("FMAP", 0)
NOTAG = env("NOTAG", 0)
ROT1 = env("ROT1", 2)
OUTSC = os.environ.get("OUTSC", "sc1")
GPK = env("GPK", 0)
UA = env("UA", 16)
PRE = env("PRE", 2)
QLD = env("QLD", 4)
WARMW = env("WARMW", 0)
ROT2 = env("ROT2", 1)
NDEF = env("NDEF", 0)
WARMD = env("WARMD", 1)
PSLOW = env("PSLOW", 16)
PAUSE = env("PAUSE", 1)
KVV = env("KVV", 2)
FASTX = env("FASTX", 0)
FULLF = env("FULLF", 0)
PIPE = env("PIPE", 1)
ATFLAG = env("ATFLAG", 1)
FRESH = env("FRESH", 0)
WS_FR = 0x2000000
PDEL = env("PDEL", 4)
MASKP = env("MASKP", 1)
SPAT = env("SPAT", 3)
LPRIO = env("LPRIO", 0)
FA0 = env("FA0", 13)
AFLAGQ = env("AFLAGQ", 11)
CAP = env("CAP", 20)
QS0 = env("QS0", 6)
QSD = env("QSD", 0)
TMODE = env("TMODE", 1)
GPRIO = env("GPRIO", 3)
ATFA = env("ATFA", 0)
QFIRST = env("QFIRST", 1)
HU = env("HU", -1)
KVW = env("KVW", 0)
HEARLY = env("HEARLY", 0)
HLATE = env("HLATE", -1)
HSTEP = env("HSTEP", 1)
AMIX = env("AMIX", 1)
TPIPE = env("TPIPE", 0)
TRIM = env("TRIM", 0)
TAGO = env("TAGO", 0)
OS = 3072 if TAGO else 2048
EARLYT = env("EARLYT", 0)
FAST8 = env("FAST8", 1)
FULLA = env("FULLA", 0)
ATFS = env("ATFS", 0)
TNEAR = env("TNEAR", 13)
DAH = env("DAH", 4)
GLD = env("GLD", 7)
GMA = env("GMA", 9)
FDEL = env("FDEL", 0)
FSLP = env("FSLP", 1)
QCAP = env("QCAP", 40)
KVA = env("KVA", 0)
NFILL = env("NFILL", 4)
AHD = env("AHD", 6)
ATPOLL = env("ATPOLL", 1)
HINTW = env("HINTW", 0)
TSLP = env("TSLP", 2)
SPF = env("SPF", 0)
CODEPF = env("CODEPF", 1)
SLP = env("SLP", 4)

HK = env("HK", 64)
WS_Q = 0x0 if HK == 64 else 0x1400000
WS_K = 0x200000 if HK == 64 else 0
WS_V = 0x400000 if HK == 64 else 0x300000 + 1024 * env("VOFF", 1)
WS_ACT = 0x600000
WS_O = 0xF00000
WS_G = 0x1240000
WS_FL = 0x1280000
FL_A = WS_FL
FL_B1 = WS_FL + 0x8000
FL_Q = WS_FL + 0x10000 - 12 * 2048
FL_B2 = WS_FL + 0x10000
FL_C = WS_FL + 0x20000
WS_STAMP = 0x1800000
WS_SIZE = 0x2800000

XS = 16384
WB = 5 * XS
WSL = 24576
LDS_GQ = 162176
LDS_OG = 163200
LDS_TAG = 163584
LDS_SYNC = LDS_TAG + 8
LDS_TOTAL = 163840
TP = 2080
LDS_V = 1024
VP = TP
LDS_WS = 137472
DSTG = 22528
LDS_Q = WB + 2 * WSL + 16384
LDS_PARK = WB + 3 * WSL
XPOS = [3, 2, 0, 1, 4, 3, 2, 0,  0, 2, 3, 4, 1, 2, 3, 4]
def xslot(c):
    return XPOS[c] * XS
def wslot(c):
    return WB + ((c % 3) * WSL if c < 8 else ((c + 3) % 4) * 16384)

SC = " sc1"
SPIN = 200000
MF = "v_mfma_f32_32x32x16_bf16"

def srd(a, d, base, nbytes):
    a(f"s_mov_b32 s{d}, s{base}")
    a(f"s_mov_b32 s{d+1}, s{base+1}")
    a(f"s_mov_b32 s{d+2}, {nbytes:#x}")
    a(f"s_mov_b32 s{d+3}, 0x20000")

def stamp(a, i, lvl=1):
    if PROF and (PROF == lvl or i in (0, 7) or (PROF == 16 and lvl == 15)):
        a("s_memrealtime s[96:97]")
        a("s_memtime s[98:99]")
        a("s_waitcnt lgkmcnt(0)")
        a(f"s_mov_b32 s{80+i}, s96")
        a(f"s_mov_b32 s{88+i}, s98")

def stamp_flush(a, n):
    if PROF:
        a("s_waitcnt vmcnt(0)")
        stamp(a, n - 1)
        a("s_lshl_b32 s78, s2, 4")
        a("s_add_u32 s78, s78, s20")
        a("s_lshl_b32 s78, s78, 6")
        a(f"s_add_u32 s78, s78, {WS_STAMP}")
        a("v_mov_b32 v1, 0")
        for i in range(n):
            a(f"v_mov_b32 v0, s{80+i}")
            a(f"buffer_store_dword v0, v1, s[28:31], s78 offen offset:{4*i}")
            a("s_nop 1")
            a(f"v_mov_b32 v0, s{88+i}")
            a(f"buffer_store_dword v0, v1, s[28:31], s78 offen offset:{32+4*i}")
            a("s_nop 1")
        a("s_waitcnt vmcnt(0)")
        if DBGWG >= 0:
            a(f"s_cmp_lg_u32 s2, {DBGWG}")
            a("s_cbranch_scc1 DBG_SKIP")
            a("s_and_b32 s78, s20, 3")
            a("s_cmp_lg_u32 s78, 0")
            a("s_cbranch_scc1 DBG_SKIP")
            a("s_mul_i32 s78, s20, 7")
            a("v_mov_b32 v1, s78")
            for i in range(1, n):
                a(f"s_sub_u32 s79, s{80+i}, s80")
                a("v_mov_b32 v0, s79")
                a(f"global_store_dword v1, v0, s[66:67] offset:{4+4*i}")
                a("s_nop 1")
            a("s_waitcnt vmcnt(0)")
            a.label("DBG_SKIP")

def pad_until(a, ticks):
    lab = a.newlabel("PAD")
    a.label(lab)
    a("s_memrealtime s[96:97]")
    a("s_waitcnt lgkmcnt(0)")
    a("s_sub_u32 s96, s96, s68")
    a(f"s_cmp_lt_u32 s96, {ticks}")
    a(f"s_cbranch_scc1 {lab}")

def flag_store(a, soff, vtmp):
    a(f"v_mov_b32 v{vtmp}, s68")
    a(f"v_mov_b32 v{vtmp+1}, s69")
    if FULLA:
        a("v_lshlrev_b32 v%d, 3, v2" % (vtmp + 2))
        a("s_mov_b64 exec, 0xffff")
    else:
        a(f"v_mov_b32 v{vtmp+2}, 0")
        a("s_mov_b64 exec, 1")
    a(f"buffer_store_dwordx2 {v(vtmp,2)}, v{vtmp+2}, s[28:31], {soff} offen sc1")
    a("s_mov_b64 exec, -1")

def poll(a, soff, voff, vtmp, slp=None):
    lab = a.newlabel("POLL")
    done = a.newlabel("POLLD")
    a(f"s_mov_b32 s74, {SPIN}")
    a.label(lab)
    a(f"buffer_load_dwordx2 {v(vtmp,2)}, v{voff}, s[28:31], {soff} offen sc1")
    a("s_waitcnt vmcnt(0)")
    a(f"v_xor_b32 v{vtmp}, s68, v{vtmp}")
    a(f"v_xor_b32 v{vtmp+1}, s69, v{vtmp+1}")
    a(f"v_or_b32 v{vtmp}, v{vtmp}, v{vtmp+1}")
    a(f"v_cmp_ne_u32 vcc, 0, v{vtmp}")
    a("s_sub_u32 s74, s74, 1")
    a("s_cmp_eq_u32 s74, 0")
    a(f"s_cbranch_scc1 {done}")
    a("s_cmp_eq_u64 vcc, 0")
    a(f"s_cbranch_scc1 {done}")
    a(f"s_sleep {SLP if slp is None else slp}")
    a(f"s_branch {lab}")
    a.label(done)

def poll_shared(a, stage, polls, vtmp, lslp=1, extra=None):
    other = a.newlabel("PSO")
    done = a.newlabel("PSD")
    a(f"v_mov_b32 v{vtmp+3}, {LDS_SYNC}")
    a("s_cmp_lg_u32 s23, 0")
    a(f"s_cbranch_scc1 {other}")
    for p in polls:
        poll(a, *p)
    if extra:
        extra()
    a(f"v_mov_b32 v{vtmp}, {stage}")
    a(f"ds_write_b32 v{vtmp+3}, v{vtmp}")
    a(f"s_branch {done}")
    a.label(other)
    a(f"s_mov_b32 s74, {SPIN*8}")
    lab = a.newlabel("PSL")
    a.label(lab)
    a(f"ds_read_b32 v{vtmp}, v{vtmp+3}")
    a("s_waitcnt lgkmcnt(0)")
    a(f"v_readfirstlane_b32 s75, v{vtmp}")
    a("s_sub_u32 s74, s74, 1")
    a("s_cmp_eq_u32 s74, 0")
    a(f"s_cbranch_scc1 {done}")
    a(f"s_cmp_ge_u32 s75, {stage}")
    a(f"s_cbranch_scc1 {done}")
    a(f"s_sleep {lslp}")
    a(f"s_branch {lab}")
    a.label(done)

def cvt_tile(a, acc, dst, lo=0, hi=16):
    for i in range(lo, hi, 2):
        a(f"v_cvt_pk_bf16_f32 v{dst + (i - lo)//2}, v{acc+i}, v{acc+i+1}")

def frag_addrs(a, sbase, R=10):
    a("v_lshrrev_b32 v4, 3, v2")
    a("v_and_b32 v5, 7, v2")
    a("v_bfe_u32 v7, v2, 4, 1")
    a("v_lshlrev_b32 v7, 2, v7")
    a("v_xor_b32 v5, v5, v7")
    a("v_lshlrev_b32 v5, 4, v5")
    a(f"v_lshl_add_u32 v{R}, v4, 10, v5")
    a(f"v_add_u32 v{R+1}, 7168, v{R}")
    a("v_bfe_u32 v4, v2, 2, 2")
    a("v_lshrrev_b32 v5, 5, v2")
    a("v_lshl_add_u32 v5, v5, 2, v4")
    a("v_lshlrev_b32 v5, 7, v5")
    a("v_lshrrev_b32 v4, 1, v4")
    a("v_lshl_add_u32 v5, v4, 6, v5")
    a("v_bfe_u32 v4, v2, 4, 1")
    a("v_lshl_add_u32 v5, v4, 5, v5")
    a("v_and_b32 v4, 3, v2")
    a("v_lshl_add_u32 v5, v4, 3, v5")
    a(f"v_xor_b32 v{R+3}, 64, v5")
    a(f"v_add_u32 v{R+2}, {sbase}, v5")
    a(f"v_add_u32 v{R+3}, {sbase}, v{R+3}")

def part_addrs(a, sbase, r):
    a(f"v_lshrrev_b32 v{r}, 5, v2")
    a(f"v_and_b32 v{r+1}, 7, v2")
    a(f"v_xor_b32 v{r}, v{r}, v{r+1}")
    a(f"v_and_b32 v{r+1}, 31, v2")
    a(f"v_lshlrev_b32 v{r+1}, 8, v{r+1}")
    a(f"v_lshl_add_u32 v{r}, v{r}, 4, v{r+1}")
    for g in range(1, 4):
        a(f"v_xor_b32 v{r+g}, {32*g}, v{r}")
    for g in range(4):
        a(f"v_add_u32 v{r+g}, {sbase}, v{r+g}")

def part_write(a, GA, r):
    for n in range(2):
        for t in range(2):
            acc = GA + (n * 2 + t) * 16
            for g in range(4):
                a(f"ds_write_b128 v{r+g}, {v(acc+4*g,4)} offset:{t*8192 + n*128}")

def lds_wait(a, vaddr, vdst, cmp_lines, first_read=True, slp=1):
    lab, done = a.newlabel("LW"), a.newlabel("LWD")
    a(f"s_mov_b32 s74, {SPIN*8}")
    if first_read:
        a(f"ds_read_b32 v{vdst}, v{vaddr}")
    a.label(lab)
    a("s_waitcnt lgkmcnt(0)")
    a(f"v_readfirstlane_b32 s75, v{vdst}")
    a("s_sub_u32 s74, s74, 1")
    a(f"s_cbranch_scc1 {done}")
    for l in cmp_lines:
        a(l)
    a(f"s_cbranch_scc1 {done}")
    a(f"s_sleep {slp}")
    a(f"ds_read_b32 v{vdst}, v{vaddr}")
    a(f"s_branch {lab}")
    a.label(done)

def vaddr_init(a, VK=40, VV0=41, VV1=42):
    a(f"v_mov_b32 v{VK}, v3")
    a("v_lshrrev_b32 v43, 5, v2")
    a("v_and_b32 v44, 15, v2")
    a("v_lshlrev_b32 v44, 4, v44")
    a("v_lshl_or_b32 v44, v43, 8, v44")
    a(f"v_add_u32 v44, {LDS_V}, v44")
    a("v_add_u32 v45, 512, v44")
    a("v_and_b32 v43, 31, v2")
    a("v_subrev_u32 v47, 20, v43")
    a("v_cmp_gt_u32 vcc, 8, v47")
    a(f"v_mov_b32 v46, {LDS_V + 1040}")
    a(f"v_mov_b32 v47, {LDS_V + 1040 + 2*VP}")
    a("v_cndmask_b32 v46, v46, v47, vcc")
    a("v_and_b32 v47, 27, v43")
    a("v_cmp_eq_u32 vcc, 16, v47")
    a("v_subrev_u32 v47, 16, v46")
    a("s_nop 0")
    a("v_cndmask_b32 v46, v46, v47, vcc")
    a("v_cmp_gt_u32 vcc, 16, v43")
    a("s_nop 1")
    a(f"v_cndmask_b32 v{VV0}, v46, v44, vcc")
    a(f"v_cndmask_b32 v{VV1}, v46, v45, vcc")

def place(a, key):
    m = env("PL_" + key, -1)
    if m >= 0:
        a.raw(".p2align 6")
        for _ in range(m):
            a("s_nop 0")

def gen(a):
    kernel_header(a, KNAME)
    if PROF == 7:
        a("s_memrealtime s[100:101]")
    a("s_cmp_ge_u32 s2, 256")
    a("s_cbranch_scc1 K_EXIT")
    if env("SHUF", 0) == 1:
        a("s_lshr_b32 s3, s2, 3")
        a("s_lshl_b32 s2, s2, 5")
        a("s_or_b32 s2, s2, s3")
        a("s_and_b32 s2, s2, 255")
    if env("SHUF", 0) == 2:
        a("s_mul_i32 s2, s2, 37")
        a("s_add_u32 s2, s2, 11")
        a("s_and_b32 s2, s2, 255")
    if env("JIT", 0):
        a("s_mul_i32 s3, s2, 2654435761")
        a("s_lshr_b32 s3, s3, 27")
        a.label("JIT_L")
        a("s_sleep 8")
        a("s_sub_u32 s3, s3, 1")
        a("s_cbranch_scc0 JIT_L")
    a("s_load_dwordx4 s[4:7], s[0:1], 0       ; x, wqkv")
    a("v_lshrrev_b32 v1, 6, v0")
    a("v_and_b32 v2, 63, v0                   ; lane")
    a("v_readfirstlane_b32 s20, v1")
    VX0, VX1, VR0, VR1, VKV = 10, 11, 12, 13, 14
    if FASTX:
        assert ROT1 == 2 and PRE == 2
        a("v_lshrrev_b32 v4, 3, v2")
        a("v_and_b32 v5, 7, v2")
        a("v_lshrrev_b32 v6, 4, v2")
        a("v_xor_b32 v7, v5, v6")
        a("v_lshlrev_b32 v7, 4, v7")
        a(f"v_lshl_add_u32 v{VX0}, v4, 10, v7")
        a(f"v_xor_b32 v{VX1}, 64, v{VX0}")
        a("s_bfe_u32 s63, s2, 0x30003")
        a("s_and_b32 s40, s2, 1")
        a("s_lshl_b32 s40, s40, 3")
        a("s_add_u32 s40, s40, s63                ; rb")
        a("s_lshl_b32 s40, s40, 2")
        a("s_and_b32 s42, s20, 3")
        a("s_add_u32 s40, s40, s42")
        a("s_lshl_b32 s40, s40, 15")
        a("s_lshl_b32 s42, s42, 12")
        a("s_lshr_b32 s37, s2, 6")
        a("s_add_u32 s37, s37, s63")
        a("s_lshl_b32 s37, s37, 1")
        a("s_lshr_b32 s38, s20, 2")
        a("s_add_u32 s37, s37, s38")
        a("s_and_b32 s37, s37, 7")
        a("s_lshl_b32 s37, s37, 7")
        a("s_add_u32 s37, s37, s40")
        a("s_cmp_lt_u32 s20, 4")
        a(f"s_mov_b32 s38, {slot_of(1)}")
        a(f"s_cselect_b32 s38, {slot_of(0)}, s38")
        a("s_add_u32 s38, s38, s42")
        a("s_mov_b32 s46, 0x200000")
        a("s_mov_b32 s47, 0x20000")
        a("s_waitcnt lgkmcnt(0)")
        a("s_mov_b64 s[44:45], s[4:5]")
        for i in range(4):
            a(f"s_add_u32 m0, s38, {i*1024}")
            a(f"s_add_u32 s39, s37, {i*8192}")
            a(f"buffer_load_dwordx4 v{VX1 if i & 1 else VX0}, s[44:47], s39 offen lds")
    a("s_load_dwordx4 s[12:15], s[0:1], 32")
    a("s_load_dwordx2 s[8:9], s[0:1], 16      ; wo")
    a("s_load_dwordx2 s[10:11], s[0:1], 80    ; ws")
    a("s_load_dwordx4 s[16:19], s[0:1], 48")
    a("s_load_dwordx4 s[64:67], s[0:1], 64")
    a("v_lshlrev_b32 v3, 4, v2                ; lane*16")
    stamp(a, 0)
    a("s_and_b32 s24, s2, 1                   ; xh")
    a("s_bfe_u32 s25, s2, 0x20001             ; xq")
    a("s_lshr_b32 s26, s2, 3                  ; j")
    a("s_and_b32 s63, s26, 7")
    a("s_lshl_b32 s21, s24, 3")
    a("s_add_u32 s21, s21, s63                ; rb")
    a("s_lshr_b32 s27, s26, 3")
    a("s_mul_i32 s22, s25, 3")
    a("s_add_u32 s22, s22, s27")
    if QFIRST:
        a("s_sub_u32 s22, s22, 1")
    a("s_add_u32 s23, s25, 12")
    a(f"s_cmp_eq_u32 s27, {0 if QFIRST else 3}")
    a("s_cselect_b32 s22, s23, s22            ; cb2")
    if FMAP:
        a("s_and_b32 s72, s2, 7")
        a("s_lshl_b32 s72, s72, 2")
        a("s_and_b32 s73, s26, 3")
        a("s_add_u32 s72, s72, s73                ; rb64")
        a("s_lshr_b32 s73, s26, 2                 ; cb64")
    else:
        a("s_lshl_b32 s72, s25, 3")
        a("s_add_u32 s72, s72, s63                ; rb64")
        a("s_lshl_b32 s73, s24, 2")
        a("s_add_u32 s73, s73, s27                ; cb64")
    if ROT1 == 1:
        a("s_lshl_b32 s27, s27, 1")
        a("s_add_u32 s63, s63, s27")
    elif ROT1 == 2:
        a("s_add_u32 s63, s63, s27")
        a("s_lshl_b32 s63, s63, 1")
    elif ROT1 == 3:
        a("s_add_u32 s63, s63, s27")
        a("s_lshl_b32 s63, s63, 2")
    a(f"s_and_b32 s63, s63, {7 if ROT1 else 0}")
    a("s_and_b32 s70, s2, 7")
    a("s_lshl_b32 s70, s70, 2")
    if AMIX:
        a("s_lshr_b32 s27, s26, 3")
        a("s_add_u32 s27, s27, s26")
        a("s_and_b32 s27, s27, 3")
        a("s_add_u32 s70, s70, s27                ; head")
        a("s_and_b32 s71, s26, 7                  ; qb")
    else:
        a("s_and_b32 s27, s26, 3")
        a("s_add_u32 s70, s70, s27                ; head")
        a("s_lshr_b32 s71, s26, 2                 ; qb")
    a("s_cmp_lt_u32 s20, 4")
    a("s_cbranch_scc1 K1_COMPUTE")

    a("s_sub_u32 s23, s20, 4                  ; L")
    if LPRIO:
        a(f"s_setprio {LPRIO}")
    if not FASTX:
        a("v_lshrrev_b32 v4, 3, v2")
        a("v_and_b32 v5, 7, v2")
        a("v_lshrrev_b32 v6, 4, v2")
        a("v_xor_b32 v7, v5, v6")
        a("v_lshlrev_b32 v7, 4, v7")
        a(f"v_lshl_add_u32 v{VX0}, v4, 10, v7")
        a(f"v_xor_b32 v{VX1}, 64, v{VX0}")
    a("v_and_b32 v7, 1, v6")
    a("v_lshlrev_b32 v7, 2, v7")
    a("v_xor_b32 v7, v7, v5")
    a("v_lshlrev_b32 v7, 4, v7")
    a("v_mul_u32_u24 v8, 3072, v4")
    a(f"v_add_u32 v{VKV}, v8, v7")
    a("v_mul_u32_u24 v8, 3584, v4")
    a("v_add_u32 v15, v8, v7")
    a("s_cmp_lt_u32 s22, 12")
    a("s_cselect_b64 vcc, -1, 0")
    a("s_movk_i32 s60, 3072")
    a("s_cselect_b32 s60, 3584, s60")
    a(f"v_cndmask_b32 v{VR0}, v{VKV}, v15, vcc")
    a(f"v_xor_b32 v{VR1}, 32, v{VR0}")
    a("s_cselect_b32 s32, 0, 12")
    a("s_sub_u32 s32, s22, s32")
    a("s_lshl_b32 s32, s32, 8")
    a("s_lshl_b32 s61, s22, 1")
    a("s_add_u32 s61, s61, 1")
    a("s_add_u32 s34, s22, 12")
    a("s_cmp_lt_u32 s22, 12")
    a("s_cselect_b32 s33, 0, 128              ; R1 - R0")
    a("s_cselect_b32 s61, s61, s34")
    a("s_lshl_b32 s61, s61, 7")
    a("s_mul_i32 s34, s23, 57344")
    a("s_add_u32 s61, s61, s34")
    a("s_lshl_b32 s34, s23, 4")
    a("s_mul_i32 s34, s34, s60")
    a("s_add_u32 s32, s32, s34")
    a("s_lshl_b32 s62, s60, 6")
    a("s_lshl_b32 s36, s60, 3                 ; 8 rows")
    a("s_mul_i32 s34, s23, 49152")
    a("s_lshl_b32 s35, s22, 7")
    a("s_add_u32 s34, s34, s35")
    a("s_add_u32 s34, s34, 1024")
    if not FASTX:
        a("s_lshl_b32 s40, s21, 17")
        a("s_lshl_b32 s41, s23, 15")
        a("s_add_u32 s40, s40, s41                ; x base")
        a("s_lshl_b32 s42, s23, 12")
    a("s_lshl_b32 s35, s23, 11")
    a("s_mov_b32 s43, s63                     ; kc")
    a("s_waitcnt lgkmcnt(0)")
    srd(a, 24, 4, 0x200000)
    srd(a, 44, 6, 0x180000)
    a("s_cmp_lt_u32 s22, 12")
    a("s_cselect_b64 s[48:49], s[12:13], s[6:7]")
    a("s_cselect_b64 s[52:53], s[14:15], s[6:7]")
    a("s_cselect_b32 s50, 0x1c0000, s46")
    a("s_mov_b32 s54, s50")
    a("s_mov_b32 s51, 0x20000")
    a("s_mov_b32 s55, 0x20000")
    queue = []
    def issue(c):
        ws_, xs_ = wslot(c), xslot(c)
        a("s_mul_i32 s38, s43, s62")
        a("s_add_u32 s38, s38, s32")
        for i in range(2):
            a(f"s_add_u32 m0, s35, {ws_ + i*1024}")
            a("s_add_u32 s39, s38, s33")
            a(f"buffer_load_dwordx4 v{VR0}, s[48:51], s38 offen lds")
            a(f"s_add_u32 m0, s35, {ws_ + 8192 + i*1024}")
            a("s_add_u32 s38, s38, s36")
            a(f"buffer_load_dwordx4 v{VR1}, s[52:55], s39 offen lds")
        n = 4
        if c < 8:
            a("s_mul_i32 s38, s43, 196608")
            a("s_add_u32 s38, s38, s34")
            for i in range(2):
                a(f"s_add_u32 m0, s35, {ws_ + 16384 + i*1024}")
                a(f"s_add_u32 s39, s38, {i*24576}")
                a(f"buffer_load_dwordx4 v{VKV}, s[44:47], s39 offen lds")
            n += 2
        if c < 8 or c >= 13:
            a("s_lshl_b32 s37, s43, 7")
            a("s_add_u32 s37, s37, s40")
            for i in range(4):
                a(f"s_add_u32 m0, s42, {xs_ + i*1024}")
                a(f"s_add_u32 s39, s37, {i*8192}")
                a(f"buffer_load_dwordx4 v{VX1 if i & 1 else VX0}, s[24:27], s39 offen lds")
            n += 4
        if c != 7:
            a("s_add_u32 s43, s43, " + ("1" if c < 7 else "7"))
            a("s_and_b32 s43, s43, 7")
        else:
            a("s_mov_b32 s32, s61")
            a("s_mov_b32 s33, 0")
            a("s_mov_b32 s62, 229376")
            a("s_mov_b32 s36, 28672")
            a("s_mov_b64 s[48:49], s[12:13]")
            a("s_mov_b64 s[52:53], s[14:15]")
            a("s_mov_b32 s50, 0x1c0000")
            a("s_mov_b32 s54, 0x1c0000")
            a(f"v_mov_b32 v{VR0}, v15")
            a(f"v_xor_b32 v{VR1}, 32, v15")
        queue.extend([c] * n)
    def waitq(tag):
        n = len(queue) - 1 - max(i for i, t in enumerate(queue) if t == tag)
        a(f"s_waitcnt vmcnt({n})")
    stamp(a, 2, 7)
    if PROF == 7:
        a("s_mov_b32 s81, s80")
        a("s_mov_b32 s80, s100")
    issue(0)
    stamp(a, 3, 7)
    if PRE == 2:
        issue(1)
    stamp(a, 4, 7)
    stamp(a, 1)
    srd(a, 28, 10, WS_SIZE)
    a("v_mov_b32 v9, 0")
    a("s_add_u32 s37, s2, s20")
    a("s_cmp_eq_u32 s37, 4")
    a("s_cbranch_scc0 K1_NOTAG")
    a("s_memrealtime s[56:57]")
    a("s_waitcnt lgkmcnt(0)")
    a("s_or_b32 s56, s56, 1")
    a("s_or_b32 s57, s57, 0x80000000")
    a("v_mov_b32 v4, s56")
    a("v_mov_b32 v5, s57")
    a("s_mov_b64 exec, 1")
    a("global_store_dwordx2 v9, v[4:5], s[66:67] sc1")
    a("s_mov_b64 exec, -1")
    a.label("K1_NOTAG")
    def get_tag():
        lab, done = a.newlabel("TAG"), a.newlabel("TAGD")
        a(f"s_mov_b32 s74, {SPIN}")
        a("v_readfirstlane_b32 s68, v60")
        a("v_readfirstlane_b32 s69, v61")
        a.label(lab)
        a("s_sub_u32 s74, s74, 1")
        a(f"s_cbranch_scc1 {done}")
        a("s_min_u32 s75, s68, s69")
        a("s_cmp_lg_u32 s75, 0")
        a(f"s_cbranch_scc1 {done}")
        a("global_load_dwordx2 v[60:61], v9, s[66:67] sc1")
        a("s_waitcnt vmcnt(0)")
        a("v_readfirstlane_b32 s68, v60")
        a("v_readfirstlane_b32 s69, v61")
        a("s_sleep 2")
        a(f"s_branch {lab}")
        a.label(done)
        a(f"v_mov_b32 v4, {LDS_TAG}")
        a("v_mov_b32 v60, s68")
        a("v_mov_b32 v61, s69")
        a("ds_write_b64 v4, v[60:61]")
        a("ds_write_b32 v4, v9 offset:8")
        a("ds_write_b32 v4, v9 offset:12")
        a("ds_write_b32 v4, v9 offset:16")
        a("ds_write_b32 v4, v9 offset:20")
        a("ds_write_b32 v4, v9 offset:24")
        a("ds_write_b32 v4, v9 offset:28")
        a("s_waitcnt lgkmcnt(0)")
    def flag_a(q):
        lab = a.newlabel("FA")
        a("s_cmp_lg_u32 s23, 1")
        a(f"s_cbranch_scc1 {lab}")
        if q:
            a("s_cmp_lt_u32 s22, 12")
            a(f"s_cbranch_scc1 {lab}")
        a("s_lshl_b32 s37, s22, 4")
        a("s_add_u32 s37, s37, s21")
        a("s_lshl_b32 s37, s37, 7")
        a(f"s_add_u32 s37, s37, {FL_Q if q else FL_A}")
        stamp(a, 2 if q else 1, 14)
        flag_store(a, "s37", 16)
        a.label(lab)
    def kv_setup():
        a("v_and_b32 v5, 15, v2")
        a("v_lshlrev_b32 v5, 7, v5")
        a("v_bfe_u32 v6, v2, 4, 1")
        a("v_lshl_add_u32 v5, v6, 14, v5")
        a("s_and_b32 s56, s2, 7")
        a("s_lshr_b32 s57, s56, 1")
        a("s_add_u32 s57, s57, 12")
        a("s_sub_u32 s57, s57, s56")
        a("s_lshl_b32 s57, s57, 11")
        a("s_lshl_b32 s58, s71, 8")
        a("s_add_u32 s57, s57, s58")
        a(f"s_add_u32 s57, s57, {FL_Q - FL_A}")
        a("v_and_b32 v6, 1, v2")
        a("v_lshlrev_b32 v6, 7, v6")
        a("v_add_u32 v6, s57, v6")
        a("v_cmp_gt_u32 vcc, 32, v2")
        a("s_lshl_b32 s56, s56, 11")
        a(f"s_add_u32 s56, s56, {FL_A}")
        a("v_cndmask_b32 v5, v6, v5, vcc")
        a(f"s_mul_i32 s57, s70, {HK*1024}")
        a("s_lshl_b32 s58, s23, 10")
        a("s_add_u32 s57, s57, s58                ; head*64K + L*1K")
        a(f"s_add_u32 s57, s57, {WS_K}")
        a(f"s_mul_i32 s58, s23, {TP}")
    def kv_loads(lo, hi):
        n = hi - lo
        a(f"s_mul_i32 s44, s71, {n}")
        a("s_lshr_b32 s44, s44, 3")
        for i in range(n):
            a(f"s_mul_i32 s45, s44, {4*TP}")
            a("s_add_u32 s45, s45, s58")
            a(f"s_add_u32 m0, s45, {lo*4*TP}")
            a("s_lshl_b32 s37, s44, 12")
            a("s_add_u32 s37, s37, s57")
            a(f"s_add_u32 s38, s37, {lo*4096}")
            a(f"buffer_load_dwordx4 v3, s[28:31], s38 offen{SC} lds")
            a(f"s_add_u32 m0, s45, {lo*4*TP + 1024}")
            a(f"s_add_u32 s38, s37, {lo*4096 + WS_V - WS_K}")
            a(f"buffer_load_dwordx4 v3, s[28:31], s38 offen{SC} lds")
            if i < n - 1:
                a("s_add_u32 s44, s44, 1")
                a(f"s_cmp_eq_u32 s44, {n}")
                a("s_cselect_b32 s44, 0, s44")
        queue.extend(["kv"] * (2 * n))
    def q_loads():
        a(f"s_mul_i32 s37, s70, {HK}")
        a("s_lshl_b32 s38, s71, 3")
        a("s_add_u32 s37, s37, s38")
        a("s_lshl_b32 s38, s23, 1")
        a("s_add_u32 s37, s37, s38")
        a("s_lshl_b32 s37, s37, 10")
        a("s_lshl_b32 s38, s23, 11")
        a(f"s_add_u32 m0, s38, {LDS_Q}")
        a(f"s_add_u32 s37, s37, {WS_Q}")
        a(f"buffer_load_dwordx4 v3, s[28:31], s37 offen{SC} lds")
        a(f"buffer_load_dwordx4 v3, s[28:31], s37 offen offset:1024{SC} lds")
    a(f"v_mul_u32_u24 v36, {VP}, v2")
    a(f"v_add_u32 v36, {LDS_V + 1024}, v36")
    for i in range(4):
        a(f"v_mov_b32 v{40+i}, 0x3f803f80")
        a(f"v_mov_b32 v{44+i}, 0")
    a(f"s_mul_i32 s37, s23, {3*2048}")
    a(f"s_add_u32 s37, s37, {LDS_WS}")
    frag_addrs(a, "s37", 248)
    a("s_lshl_b32 s37, s23, 14")
    part_addrs(a, "s37", 212)
    kv_setup()
    for c in range(13):
        waitq(c)
        if c == 6:
            get_tag()
        if c < 2:
            stamp(a, c + 5, 7)
        if c < 6:
            stamp(a, c + 1, 2)
        if 6 <= c < 12:
            stamp(a, c - 5, 3)
        a(f"s_barrier                              ; b({c})")
        if c == 8:
            stamp(a, 2)
            stamp(a, 1, 15)
        if c == 4:
            a("global_load_dwordx2 v[60:61], v9, s[66:67] sc1")
        if c == AFLAG:
            flag_a(False)
        if c == AFLAGQ:
            flag_a(True)
        if c <= 8:
            issue(c + 2)
        if 8 <= c <= 12:
            issue(c + 3)
        if c == PFC:
            a("s_bitcmp1_b32 s23, 0")
            a("s_cselect_b64 s[40+36:41+36], s[14:15], s[12:13]".replace("s[40+36:41+36]", "s[92:93]"))
            a("s_mov_b32 s94, 0x1c0000")
            a("s_mov_b32 s95, 0x20000")
            a("v_and_b32 v16, 31, v2")
            a("v_mul_u32_u24 v16, 3584, v16")
            a("s_mul_i32 s37, s23, 57344")
            a("s_sub_u32 s37, s61, s37")
            a("s_and_b32 s38, s21, 7")
            a("s_lshl_b32 s38, s38, 1")
            a("s_lshr_b32 s39, s23, 1")
            a("s_add_u32 s38, s38, s39")
            a("s_mul_i32 s38, s38, 114688")
            a("s_add_u32 s37, s37, s38")
            a("buffer_load_dword v17, v16, s[92:95], s37 offen")
            queue.append("pf")
        if c == GLD:
            srd(a, 44, 18, 1024)
            a("s_lshl_b32 s76, s21, 4")
            a("s_add_u32 s76, s76, s22")
            a("s_lshl_b32 s76, s76, 2")
            a("s_add_u32 s76, s76, s23")
            a("s_lshl_b32 s37, s76, 11")
            a("buffer_load_dwordx4 v[64:67], v3, s[44:47], 0 offen")
            a("buffer_load_dwordx4 v[24:27], v3, s[24:27], s37 offen")
            a("buffer_load_dwordx4 v[28:31], v3, s[24:27], s37 offen offset:1024")
            queue.extend(["g"] * 3)
        if c == GMA:
            waitq("g")
            a("v_mov_b32 v32, 0")
            a("v_mov_b32 v33, 0")
            for q in range(4):
                a(f"v_dot2_f32_bf16 v32, v{24+q}, v{64+q}, v32")
                a(f"v_dot2_f32_bf16 v33, v{28+q}, v{64+q}, v33")
            a("s_nop 2")
            a("v_permlane32_swap_b32 v32, v33")
            a("s_nop 1")
            a("v_add_f32 v32, v32, v33")
            for ctl in ("quad_perm:[1,0,3,2]", "quad_perm:[2,3,0,1]", "row_half_mirror", "row_mirror"):
                a("s_nop 1")
                a(f"v_add_f32_dpp v32, v32, v32 {ctl} row_mask:0xf bank_mask:0xf")
            a("v_mov_b32 v33, v32")
            a("s_nop 1")
            a("v_permlane16_swap_b32 v32, v33")
            a("s_nop 1")
            a("v_add_f32 v32, v32, v33")
            a(f"v_mul_f32 v32, {fh(-LOG2E)}, v32")
            a("v_exp_f32 v32, v32")
            a("v_lshrrev_b32 v70, 5, v2")
            a("v_add_f32 v32, 1.0, v32")
            a("v_rcp_f32 v68, v32")
            a("v_lshlrev_b32 v70, 3, v70")
    a(f"v_mov_b32 v22, {LDS_SYNC + 16}")
    a("v_mov_b32 v23, 16")
    waitq(14)
    a("s_barrier                              ; b(13)")
    if AFLAGQ == 13:
        flag_a(True)
    a("s_waitcnt vmcnt(0)")
    a("s_mov_b64 exec, 1")
    a("ds_add_u32 v22, v23")
    a("s_mov_b64 exec, -1")
    stamp(a, 2, 15)
    a(f"v_mov_b32 v19, {LDS_SYNC}")
    a("s_cmp_lg_u32 s23, 0")
    a("s_cbranch_scc1 KV_OTHER")
    if FDEL:
        a(f"s_sleep {FDEL}")
    a(f"s_mov_b32 s74, {SPIN}")
    a("s_mov_b32 s77, 0")
    if ATFA:
        a("s_mov_b32 vcc_lo, -1")
        a("s_mov_b32 vcc_hi, 3")
    a.label("KV_POLL")
    if ATFA:
        a("v_mov_b32 v8, 0")
        a("v_mov_b32 v9, 0")
        a("s_mov_b64 exec, vcc")
        a("buffer_atomic_or_x2 v[8:9], v5, s[28:31], s56 offen sc0 sc1")
    else:
        a("buffer_load_dwordx2 v[8:9], v5, s[28:31], s56 offen sc1")
    a("s_waitcnt vmcnt(0)")
    a("v_cmp_ne_u64 vcc, s[68:69], v[8:9]")
    if ATFA:
        a("s_mov_b64 exec, -1")
    a("s_sub_u32 s74, s74, 1")
    a("s_cselect_b64 vcc, 0, vcc")
    a("s_cmp_lg_u32 vcc_lo, 0")
    a("s_cbranch_scc1 KV_AGAIN")
    a("s_cmp_eq_u32 vcc_hi, 0")
    a("s_cselect_b32 s75, 2, 1")
    a("v_mov_b32 v16, s75")
    a("ds_write_b32 v19, v16")
    a("s_cmp_lg_u32 s77, 0")
    a("s_mov_b32 s77, s75")
    a("s_cbranch_scc1 KV_HAVE")
    stamp(a, 3, 15)
    kv_loads(0, 3)
    a.label("KV_HAVE")
    a("s_cmp_eq_u32 s77, 2")
    a("s_cbranch_scc1 KV_Q")
    a.label("KV_AGAIN")
    a(f"s_sleep {FSLP}")
    a("s_branch KV_POLL")
    a.label("KV_OTHER")
    lds_wait(a, 19, 16, ["s_cmp_ge_u32 s75, 1"])
    kv_loads(0, 3)
    lds_wait(a, 19, 16, ["s_cmp_ge_u32 s75, 2"])
    a.label("KV_Q")
    if KVW:
        a("s_cmp_lt_u32 s23, 2")
        a("s_cbranch_scc1 KV_NW")
        a(f"s_mul_i32 s37, s70, {HK*1024}")
        a(f"s_mul_i32 s38, s71, {52*128}")
        a("s_add_u32 s37, s37, s38")
        a("s_and_b32 s38, s23, 1")
        a(f"s_mul_i32 s38, s38, {WS_V - WS_K}")
        a("s_add_u32 s37, s37, s38")
        a(f"s_add_u32 s37, s37, {WS_K + 12*1024}")
        a("v_min_u32 v16, 51, v2")
        a("v_lshlrev_b32 v16, 7, v16")
        a(f"buffer_load_dword v17, v16, s[28:31], s37 offen{SC}")
        a.label("KV_NW")
    stamp(a, 4, 15)
    q_loads()
    a("s_branch K2_GEMM")

    a.label("K1_COMPUTE")
    AF = 96
    AK = 224
    def accF(sw, i, t):
        return AF + ((sw * 2 + i) * 2 + t) * 16
    XA = [4, 5, 6, 7]
    WA = [8, 9]
    KA = 10
    a("s_and_b32 s23, s20, 1                  ; tp")
    a("s_lshr_b32 s24, s20, 1                 ; grp")
    a("v_bfe_u32 v16, v2, 4, 1                ; gsel")
    a("v_lshrrev_b32 v17, 5, v2               ; h")
    a("v_bfe_u32 v18, v2, 2, 2                ; r")
    a("v_and_b32 v19, 3, v2                   ; c")
    a("v_lshl_add_u32 v20, v17, 3, v18        ; 8h+r")
    a("v_and_b32 v21, 31, v2")
    a("v_lshlrev_b32 v21, 7, v21")
    a("v_bfe_u32 v22, v2, 1, 3")
    a("v_xor_b32 v22, v22, v17")
    a("v_lshl_add_u32 v21, v22, 4, v21")
    a("s_lshl_b32 s25, s23, 13")
    a(f"s_add_u32 s25, s25, {xslot(0)}")
    for s_ in range(4):
        a(f"v_xor_b32 v{XA[s_]}, {32*s_}, v21")
        a(f"v_add_u32 v{XA[s_]}, s25, v{XA[s_]}")
    a("v_lshlrev_b32 v20, 7, v20")
    a("v_lshl_add_u32 v20, v19, 3, v20        ; row*128 + c*8")
    a("v_lshrrev_b32 v21, 1, v18")
    a("v_xor_b32 v21, s24, v21                ; grp ^ (r>>1)")
    a("v_lshl_add_u32 v20, v21, 6, v20")
    a("v_lshl_add_u32 v20, v16, 5, v20")
    a(f"v_add_u32 v{KA}, {wslot(0) + 16384}, v20")
    a("v_lshl_add_u32 v20, v16, 13, v20")
    a("v_xor_b32 v21, 32, v20")
    a(f"v_add_u32 v{WA[0]}, {wslot(0)}, v20")
    a(f"v_add_u32 v{WA[1]}, {wslot(0)}, v21")
    a("v_and_b32 v11, 0x33, v2")
    a("v_bfe_u32 v17, v2, 2, 1")
    a("v_lshl_or_b32 v11, v17, 3, v11")
    a("v_bfe_u32 v17, v2, 3, 1")
    a("v_lshl_or_b32 v11, v17, 2, v11")
    a("v_lshlrev_b32 v11, 4, v11              ; K voffset")
    a("s_cmp_lt_u32 s22, 8")
    a("s_cbranch_scc1 K1_KOFF")
    a(f"v_mul_u32_u24 v11, {HK*1024}, v16")
    a("v_lshrrev_b32 v18, 5, v2")
    a("v_lshl_or_b32 v11, v18, 8, v11")
    a("v_and_b32 v18, 15, v2")
    a("v_lshl_or_b32 v11, v18, 4, v11         ; V voffset")
    a.label("K1_KOFF")
    vaddr_init(a)
    a("s_lshl_b32 s33, s20, 8")
    a(f"s_add_u32 s33, s33, {LDS_GQ}")
    a("v_and_b32 v40, 31, v2")
    a("v_lshlrev_b32 v40, 2, v40")
    a("v_add_u32 v40, s33, v40")
    a("s_lshl_b32 s33, s20, 11")
    a(f"s_add_u32 s33, s33, {LDS_Q}")
    a("v_add_u32 v43, s33, v3")
    a("s_lshl_b32 s60, s20, 10")
    a(f"s_add_u32 s60, s60, {LDS_PARK}")
    a("v_add_u32 v44, s60, v3")
    a("ds_write_b128 v44, v[40:43]")
    for i in range(160):
        a(f"v_mov_b32 v{AF+i}, 0")
    a("s_waitcnt lgkmcnt(0)")
    srd(a, 28, 10, WS_SIZE)
    if TLBW:
        a("s_cmp_lg_u32 s20, 0")
        a("s_cbranch_scc1 K1_NOTLB")
        a("v_min_u32 v21, 9, v2")
        a("v_lshlrev_b32 v21, 21, v21")
        a("buffer_load_dword v22, v21, s[28:31], 0 offen sc1")
        a("v_mov_b32 v21, 0")
        a("global_load_dword v22, v21, s[64:65]")
        a("global_load_dword v22, v21, s[16:17]")
        a("global_load_dword v22, v21, s[8:9]")
        a("global_load_dword v22, v21, s[18:19]")
        a.label("K1_NOTLB")
    if CODEPF:
        a("s_getpc_b64 s[50:51]")
        a.label("PC_HERE")
        a(f"s_sub_u32 s50, s50, PC_HERE-{KNAME}")
        a("s_subb_u32 s51, s51, 0")
        a("s_lshr_b32 s49, s2, 3")
        a("s_lshl_b32 s49, s49, 2")
        a("s_add_u32 s49, s49, s20")
        a("s_lshl_b32 s49, s49, 9")
        a("v_lshlrev_b32 v21, 3, v2")
        a("v_add_u32 v21, s49, v21")
        a(f"v_min_u32 v21, K_END-{KNAME}-4, v21")
        a("global_load_dword v21, v21, s[50:51]")
    a("s_lshl_b32 s32, s21, 2")
    a("s_lshl_b32 s33, s23, 1")
    a("s_add_u32 s32, s32, s33                ; tt0")
    a("s_and_b32 s36, s22, 7")
    a("s_lshl_b32 s36, s36, 2")
    a("s_lshl_b32 s37, s24, 1")
    a("s_add_u32 s36, s36, s37")
    a(f"s_mul_i32 s36, s36, {HK}")
    a("s_add_u32 s36, s36, s32")
    a("s_lshl_b32 s36, s36, 10")
    a("s_cmp_lt_u32 s22, 8")
    a(f"s_mov_b32 s38, {WS_V}")
    a(f"s_cselect_b32 s38, {WS_K}, s38")
    a("s_movk_i32 s37, 512")
    a(f"s_cselect_b32 s37, {HK*1024}, s37")
    a("s_add_u32 s36, s36, s38")
    a("s_add_u32 s37, s37, s36")
    a("s_mov_b32 s25, 0")
    tab = sum(((XPOS[c + 1] - XPOS[c]) & 15) << (4 * c) for c in range(8))
    a(f"s_mov_b32 s61, {tab:#x}")
    a("s_mov_b32 s26, 8")
    BB = [24, 44]
    def reads(s_, buf, kv):
        L = [f"ds_read_b128 {v(buf,4)}, v{XA[s_]}"]
        for t in range(2):
            for u in range(2):
                L.append(f"ds_read_b64_tr_b16 {v(buf+8+4*t+2*u,2)}, v{WA[t]} offset:{(16*s_+4*u)*128}")
            if t == 0:
                L.append(f"ds_read_b128 {v(buf+4,4)}, v{XA[s_]} offset:4096")
        if kv:
            for u in range(2):
                L.append(f"ds_read_b64_tr_b16 {v(buf+16+2*u,2)}, v{KA} offset:{(16*s_+4*u)*128}")
        return L
    def mfs(buf, sw, vtype):
        L = []
        for t in range(2):
            for i in range(2):
                acc = accF(sw, i, t)
                L.append(f"{MF} {v(acc,16)}, {v(buf+8+4*t,4)}, {v(buf+4*i,4)}, {v(acc,16)}")
        if sw == 0:
            for i in range(2):
                acc = AK + 16 * i
                A_, B_ = v(buf + 16, 4), v(buf + 4 * i, 4)
                if vtype:
                    A_, B_ = B_, A_
                L.append(f"{MF} {v(acc,16)}, {A_}, {B_}, {v(acc,16)}")
        return L
    def sweep(name, sw, vtype):
        a.raw(".p2align 6")
        place(a, "S1")
        a.label(name)
        kv = sw == 0
        nr = 8 if kv else 6
        for s_ in range(4):
            upd = []
            if s_ == 2:
                upd = ["s_add_u32 s25, s25, 1", "s_cmp_eq_u32 s25, 3", f"s_mov_b32 s27, {WSL}",
                       f"s_cselect_b32 s27, {(-2*WSL) & 0xffffffff:#x}, s27", "s_cselect_b32 s25, 0, s25",
                       "s_bfe_i32 s33, s61, 0x40000", "s_lshr_b32 s61, s61, 4", "s_lshl_b32 s33, s33, 14"]
                upd += [f"v_add_u32 v{r}, s27, v{r}" for r in WA + [KA]] + [f"v_add_u32 v{r}, s33, v{r}" for r in XA]
            if s_ == 1 and sw == 1:
                upd = [f"s_cmp_lg_u32 s26, {17 - AFLAG}", f"s_cbranch_scc1 {name}_ND", "s_waitcnt vmcnt(0)", f"{name}_ND:"]
            M = mfs(BB[s_ & 1], sw, vtype)
            if s_ < 3:
                R = reads(s_ + 1, BB[(s_ + 1) & 1], kv)
                seq = [f"s_waitcnt lgkmcnt({nr-4})", M[0], R[0], R[1], M[1], R[2], R[3], "s_waitcnt lgkmcnt(4)", M[2], R[4], R[5]]
                if kv:
                    seq += [M[3], R[6], R[7], M[4]] + upd[:10] + [M[5]] + upd[10:]
                elif s_ == 1:
                    seq += [M[3]] + upd
                else:
                    seq += upd[:5] + [M[3]] + upd[5:]
            else:
                R = reads(0, BB[0], kv)
                tail = ["s_sub_u32 s26, s26, 1", "s_cmp_lg_u32 s26, 0"]
                seq = [f"s_waitcnt lgkmcnt({nr-4})", M[0], "s_waitcnt lgkmcnt(0)", "s_barrier", R[0], M[1], R[1], R[2], R[3], M[2], R[4], R[5]]
                if kv:
                    seq += [M[3], R[6], R[7], M[4]] + tail + [M[5]]
                else:
                    seq += tail + [M[3]]
            for l in seq:
                a(l)
        a(f"s_cbranch_scc1 {name}")
    if FASTX:
        a(f"s_waitcnt vmcnt({1 if CODEPF else 0})")
    a("s_barrier                              ; b(0)")
    stamp(a, 1)
    for l in reads(0, BB[0], True):
        a(l)
    a("s_cmp_lt_u32 s22, 8")
    a("s_cbranch_scc0 SW1V")
    sweep("SW1K", 0, False)
    a("s_branch K1_KVEPI")
    sweep("SW1V", 0, True)
    a.label("K1_KVEPI")
    stamp(a, 2)
    c0 = -2.0 * 0.7978845608028654 * LOG2E
    c1 = c0 * 0.044715
    T = 64
    TB = 16
    def gelu_tile(acc, out, pk):
        L = []
        if pk:
            for j in range(0, 8, 2):
                L.append(f"v_pk_mul_f32 {v(TB+j,2)}, {v(acc+j,2)}, {v(acc+j,2)}")
            for j in range(0, 8, 2):
                L.append(f"v_pk_fma_f32 {v(TB+j,2)}, {v(TB+j,2)}, s[34:35], v[12:13]")
            for j in range(0, 8, 2):
                L.append(f"v_pk_mul_f32 {v(TB+j,2)}, {v(TB+j,2)}, {v(acc+j,2)}")
            for j in range(8):
                L.append(f"v_exp_f32 v{TB+j}, v{TB+j}")
            for j in range(0, 4, 2):
                L.append(f"v_pk_mul_f32 {v(acc+8+j,2)}, {v(acc+8+j,2)}, {v(acc+j,2)}")
            for j in range(0, 8, 2):
                L.append(f"v_pk_add_f32 {v(TB+j,2)}, {v(TB+j,2)}, v[14:15]")
            for j in range(8):
                L.append(f"v_rcp_f32 v{TB+j}, v{TB+j}")
            for j in range(4, 8, 2):
                L.append(f"v_pk_mul_f32 {v(acc+8+j,2)}, {v(acc+8+j,2)}, {v(acc+j,2)}")
            for j in range(0, 8, 2):
                L.append(f"v_pk_mul_f32 {v(acc+8+j,2)}, {v(acc+8+j,2)}, {v(TB+j,2)}")
        else:
            for j in range(8):
                L.append(f"v_mul_f32 v{TB+j}, v{acc+j}, v{acc+j}")
            for j in range(8):
                L.append(f"v_fma_f32 v{TB+j}, v{TB+j}, s34, v12")
            for j in range(8):
                L.append(f"v_mul_f32 v{TB+j}, v{TB+j}, v{acc+j}")
            for j in range(8):
                L.append(f"v_exp_f32 v{TB+j}, v{TB+j}")
                L.append(f"v_mul_f32 v{acc+8+j}, v{acc+8+j}, v{acc+j}")
            for j in range(8):
                L.append(f"v_add_f32 v{TB+j}, 1.0, v{TB+j}")
            for j in range(8):
                L.append(f"v_rcp_f32 v{TB+j}, v{TB+j}")
                if j >= 2:
                    L.append(f"v_mul_f32 v{acc+8+j-2}, v{acc+8+j-2}, v{TB+j-2}")
            L.append(f"v_mul_f32 v{acc+14}, v{acc+14}, v{TB+6}")
            L.append(f"v_mul_f32 v{acc+15}, v{acc+15}, v{TB+7}")
        for j in range(0, 8, 2):
            L.append(f"v_cvt_pk_bf16_f32 v{out + j//2}, v{acc+8+j}, v{acc+8+j+1}")
        return L
    def kv_fill():
        L = []
        for i in range(2):
            for j in range(0, 16, 2):
                L.append(f"v_cvt_pk_bf16_f32 v{T + 8*i + j//2}, v{AK+16*i+j}, v{AK+16*i+j+1}")
                if j == 6:
                    L.append(f"buffer_store_dwordx4 {v(T+8*i,4)}, v11, s[28:31], s36 offen offset:{i*1024}{SC}")
            L.append(f"buffer_store_dwordx4 {v(T+8*i+4,4)}, v11, s[28:31], s37 offen offset:{i*1024}{SC}")
        return L
    def q_fill():
        L = []
        for t in range(2):
            for i in range(2):
                acc = accF(0, i, t)
                for hf in range(2):
                    for j in range(8):
                        L.append(f"v_mul_f32 v{acc+8*hf+j}, s34, v{acc+8*hf+j}")
                    for j in range(0, 8, 2):
                        L.append(f"v_cvt_pk_bf16_f32 v{acc+8*hf+j//2}, v{acc+8*hf+j}, v{acc+8*hf+j+1}")
                    L.append(f"s_add_u32 s39, s38, {WS_Q + (t + 4*hf) * HK * 1024}\nbuffer_store_dwordx4 {v(acc+8*hf,4)}, v3, s[28:31], s39 offen offset:{i*1024}{SC}")
        return L
    def cost(l):
        return 8 if l.startswith(("v_exp", "v_rcp")) else 4
    def sweep2(fill, early, qtype, ecap):
        nm = "SQ" if qtype else "SR"
        place(a, "S2")
        F = list(fill)
        late = {}
        if qtype and QSD:
            qs = [l for l in F[20:] if "buffer_store" in l]
            F = F[:20] + [l for l in F[20:] if "buffer_store" not in l]
            early = len(F)
            late = {QS0 + (i * QSD) // 2: [] for i in range(8)}
            for i, l in enumerate(qs):
                late[QS0 + (i * QSD) // 2].append((i, l))
        nlate = [0]
        pos = [0]
        def take(fixed, st):
            used = sum(4 for l in fixed if l.startswith(("ds_", "v_")))
            out = []
            while pos[0] < len(F) and st >= 1:
                cap = ecap if pos[0] < early else CAP
                if used + cost(F[pos[0]]) > cap:
                    break
                used += cost(F[pos[0]])
                out.append(F[pos[0]])
                pos[0] += 1
            return fixed + out
        for c in range(8, 16):
            dx = (xslot(c + 1) - xslot(c)) & 0xffffffff if c < 15 else 0
            dw = (wslot(c + 1) - wslot(c)) & 0xffffffff if c < 15 else 0
            for s_ in range(4):
                st = (c - 8) * 4 + s_
                M = mfs(BB[s_ & 1], 1, False)
                ux = lambda k: [f"v_add_u32 v{XA[k]}, {dx:#x}, v{XA[k]}"] if c < 15 else []
                if s_ < 3:
                    R = reads(s_ + 1, BB[(s_ + 1) & 1], False)
                    last = ux(s_ + 1) + (ux(0) if s_ == 0 else [])
                    if s_ == 2 and c < 15:
                        last += [f"v_add_u32 v{r}, {dw:#x}, v{r}" for r in WA]
                    if s_ == 2 and c == 14:
                        last += ["ds_read_b32 v10, v0"]
                    seq = (["s_waitcnt lgkmcnt(2)", M[0]] + take(R[0:2], st) + [M[1]] + take(R[2:4], st) +
                           ["s_waitcnt lgkmcnt(4)", M[2]] + take(R[4:6], st) + [M[3]] + take(last, st))
                else:
                    R = reads(0, BB[0], False) if c < 15 else []
                    g0 = take(R[:1], st)
                    dr = []
                    nst = sum("buffer_store" in l for l in F[:pos[0]]) + nlate[0]
                    if c + 1 == AFLAG:
                        assert nst >= 4
                        dr = [f"s_waitcnt vmcnt({nst - 4})"]
                    if c + 1 == AFLAGQ and qtype:
                        assert pos[0] >= early and nst == 12
                        dr = ["s_waitcnt vmcnt(0)"]
                    sync = ["s_barrier"] if c < 13 else (["s_mov_b64 exec, 1", "ds_add_u32 v0, v1", "s_mov_b64 exec, -1"] if c == 15 else [])
                    if c == 14:
                        sync = ["v_readfirstlane_b32 s75, v10", "s_bitcmp1_b32 s75, 6", f"s_cbranch_scc0 {nm}_W", f"{nm}_B:"]
                    seq = (["s_waitcnt lgkmcnt(2)", M[0]] + g0[len(R[:1]):] + dr + ["s_waitcnt lgkmcnt(0)"] + sync + R[:1] + [M[1]] +
                           take(R[1:4], st) + [M[2]] + take(R[4:], st) + [M[3]] + take([], st))
                for i_, l in late.get(st, []):
                    assert pos[0] >= 20 + 12 * (i_ + 1), (st, i_, pos[0])
                    seq.append(l)
                    nlate[0] += 1
                for l in seq:
                    if l == "s_barrier" and PROF in (10, 11, 12) and 0 <= c - (8 if PROF != 11 else 10) < 6:
                        if PROF == 12:
                            stamp(a, c - 8 + 1, 12)
                        a(l)
                        stamp(a, c - 8 + 1, 10)
                        stamp(a, c - 10 + 1, 11) if c >= 10 else None
                    else:
                        a(l)
        for l in F[pos[0]:]:
            a(l)
        sys.stderr.write(f"sweep2: {len(F) - pos[0]} of {len(F)} fillers left over\n")
    a(f"v_mov_b32 v0, {LDS_SYNC + 16}")
    a("v_mov_b32 v1, 1")
    a(f"v_mov_b32 v16, {LDS_TAG}")
    a("ds_read_b64 v[18:19], v16")
    a(f"v_mov_b32 v12, {fh(c0)}")
    a("v_mov_b32 v13, v12")
    a("v_mov_b32 v14, 1.0")
    a("v_mov_b32 v15, 1.0")
    a("s_waitcnt lgkmcnt(0)")
    a("v_readfirstlane_b32 s68, v18")
    a("v_readfirstlane_b32 s69, v19")
    a("s_cmp_lt_u32 s22, 12")
    a("s_cbranch_scc1 SW2R")
    a(f"s_mov_b32 s34, {fh(LOG2E*0.25)}")
    a("s_sub_u32 s38, s22, 12")
    a("s_lshl_b32 s38, s38, 3")
    a("s_lshl_b32 s39, s24, 1")
    a("s_add_u32 s38, s38, s39")
    a(f"s_mul_i32 s38, s38, {HK}")
    a("s_add_u32 s38, s38, s32")
    a("s_lshl_b32 s38, s38, 10")
    F = kv_fill() + q_fill()
    sweep2(F, len(F), True, QCAP)
    a("s_branch K1_GE2")
    a.label("SW2R")
    a(f"s_mov_b32 s34, {fh(c1)}")
    a("s_mov_b32 s35, s34")
    if HEARLY:
        a("s_mul_i32 s40, s32, 144")
        a("s_lshl_b32 s41, s22, 3")
        a("s_add_u32 s40, s40, s41")
        a("s_lshl_b32 s41, s24, 1")
        a("s_add_u32 s40, s40, s41")
        a("s_lshl_b32 s40, s40, 10")
        a(f"s_add_u32 s40, s40, {WS_ACT}")
        a(f"s_add_u32 s41, s40, {144*1024}")
    F = kv_fill()
    ne = len(F)
    F2 = []
    for i in range(2):
        for t in range(2):
            if i * 2 + t < NFILL:
                F += gelu_tile(accF(0, i, t), 80 + 4 * (i * 2 + t), GPK)
                if HEARLY:
                    F.append(f"buffer_store_dwordx4 {v(80 + 4*(i*2+t),4)}, v3, s[28:31], s{40+i} offen offset:{t*1024}{SC}")
            else:
                F2 += gelu_tile(accF(0, i, t), 80 + 4 * (i * 2 + t), True)
    sweep2(F, ne, False, CAP)
    for l in F2:
        a(l)
    a.label("K1_GE2")
    stamp(a, 3)
    a("v_add_u32 v44, s60, v3")
    a("ds_read_b128 v[40:43], v44")
    a(f"s_mov_b32 s34, {fh(c1)}")
    a("s_mov_b32 s35, s34")
    a("s_mul_i32 s36, s32, 144")
    a("s_lshl_b32 s37, s22, 3")
    a("s_lshl_b32 s38, s22, 2")
    a("s_add_u32 s38, s38, 44")
    a("s_cmp_lt_u32 s22, 12")
    a("s_cselect_b32 s37, s37, s38")
    a("s_add_u32 s36, s36, s37")
    a("s_lshl_b32 s37, s24, 1")
    a("s_add_u32 s36, s36, s37")
    a("s_lshl_b32 s36, s36, 10")
    a(f"s_add_u32 s36, s36, {WS_ACT}")
    a(f"s_add_u32 s37, s36, {144*1024}")
    a("s_add_u32 s38, s36, 4096")
    a("s_add_u32 s39, s37, 4096")
    hst = []
    if HLATE >= 0:
        srd(a, 40, 10, WS_SIZE)
        a("s_cmp_lt_u32 s22, 12")
        a(f"s_cselect_b32 s36, s36, {WS_SIZE}")
        a(f"s_cselect_b32 s37, s37, {WS_SIZE}")
    a("s_cmp_lt_u32 s22, 12")
    a("s_cbranch_scc0 K1_GE3")
    for i in range(2):
        for t in range(2):
            if not (HEARLY and i * 2 + t < NFILL):
                if HLATE >= 0:
                    hst.append(f"buffer_store_dwordx4 {v(80 + 4*(i*2+t),4)}, v3, s[40:43], s{36+i} offen offset:{t*1024}{SC}")
                else:
                    a(f"buffer_store_dwordx4 {v(80 + 4*(i*2+t),4)}, v3, s[28:31], s{36+i} offen offset:{t*1024}{SC}")
    place(a, "GE")
    a.label("K1_GE3")
    for t in range(2):
        for i in range(2):
            out = 64 + 4 * (i * 2 + t)
            for l in gelu_tile(accF(1, i, t), out, True)[(-4 if (env("X_NOGE2", 0) and t == 0) else 0):]:
                a(l)
            if HLATE >= 0:
                hst.append(f"buffer_store_dwordx4 {v(out,4)}, v3, s[40:43], s{38+i} offen offset:{t*1024}{SC}")
            else:
                a(f"buffer_store_dwordx4 {v(out,4)}, v3, s[28:31], s{38+i} offen offset:{t*1024}{SC}")

    a.label("K2_ATTN")
    Q = [8, 12]
    G = [4, 5]
    KB = [16, 20]
    VB = [[24, 28], [32, 36]]
    IDX = 6
    VK, VV0, VV1 = 40, 41, 42
    C = [96, 112]
    S = [128, 144]
    P = [160, 176]
    O = [192, 208]
    a(f"v_mov_b32 v{IDX}, 0xdddd")
    def zero_state():
        for i in range(4):
            a(f"v_mov_b32 v{VB[1][1]+i}, 0")
        a("s_nop 1")
        for r in (O[0], O[1], P[1]):
            a(f"{MF} {v(r,16)}, {v(VB[1][1],4)}, {v(VB[1][1],4)}, 0")
    zero_state()
    a("s_mov_b32 s26, 0")
    a("s_waitcnt lgkmcnt(0)")
    a(f"v_mov_b32 v7, v{VK}                    ; g address")
    a(f"v_mov_b32 v{VK}, v3")
    stamp(a, 1, 16)
    a("s_barrier                              ; X1")
    stamp(a, 2, 16)
    a("s_setprio 2")
    stamp(a, 4)
    stamp(a, 1, 9)
    a(f"ds_read_b128 {v(Q[0],4)}, v43")
    a(f"ds_read_b128 {v(KB[0],4)}, v{VK}")
    a(f"ds_read_b128 {v(Q[1],4)}, v43 offset:1024")
    a("s_waitcnt lgkmcnt(0)")
    for q in range(2):
        a(f"{MF} {v(S[q],16)}, {v(KB[0],4)}, {v(Q[q],4)}, 0")
    a("s_nop 7")
    a("s_nop 3")
    def maxtree(src, dst, acc=False):
        if acc:
            for i in range(0, 16, 2):
                a(f"v_max3_f32 v{dst}, v{src+i}, v{src+i+1}, v{dst}")
        else:
            a(f"v_max_f32 v{dst}, v{src}, v{src+1}")
            for i in range(2, 16, 2):
                a(f"v_max3_f32 v{dst}, v{src+i}, v{src+i+1}, v{dst}")
    for q in range(2):
        maxtree(S[q], 44 + q)
    a.label("K2_SETMAX")
    a(f"ds_read_b128 {v(KB[0],4)}, v{VK}")
    a(f"ds_read_b128 {v(VB[0][0],4)}, v{VV0}")
    a(f"ds_read_b128 {v(VB[0][1],4)}, v{VV1}")
    a(f"ds_read_b128 {v(KB[1],4)}, v{VK} offset:{TP}")
    for q in range(2):
        a(f"v_mov_b32 v{46+q}, v{44+q}")
    a("s_nop 1")
    for q in range(2):
        a(f"v_permlane32_swap_b32 v{44+q}, v{46+q}")
    for q in range(2):
        a(f"v_min_f32 v{44+q}, -v{44+q}, -v{46+q}     ; -max")
    for i in range(0, 16, 2):
        a(f"v_pk_mov_b32 {v(C[0]+i,2)}, v[44:45], v[44:45] op_sel:[0,0]")
    a("s_waitcnt lgkmcnt(0)")
    a("s_nop 0")
    a(f"{MF} {v(S[0],16)}, {v(KB[0],4)}, {v(Q[0],4)}, {v(C[0],16)}")
    for i in range(0, 16, 2):
        a(f"v_pk_mov_b32 {v(C[1]+i,2)}, v[44:45], v[44:45] op_sel:[1,1]")
    a("s_nop 3")
    stamp(a, 2, 9)
    if HU < 0:
        a("s_cmp_lg_u32 s26, 0")
        a("s_cbranch_scc1 K2_NOBAR")
        a("s_waitcnt vmcnt(0)")
        a("s_barrier")
        a.label("K2_NOBAR")
    else:
        a("s_lshl_b32 s27, 1, s20")
        a("v_mov_b32 v48, s27")
    stamp(a, 3, 9)
    stamp(a, 3, 16)
    if PROF == 16:
        a("s_mov_b32 s89, 0")
        a("s_mov_b32 s90, 0")
    if PADATT:
        pad_until(a, PADATT)
    U = UA
    assert U in (8, 16)
    a(f"s_mov_b32 s27, {64 // U - 1}")
    a("s_mov_b32 s77, 2")
    a(f"v_mov_b32 v46, {LDS_SYNC + 12}")
    a.raw(".p2align 6")
    place(a, "A")
    a.label("K2_LOOP")
    def exps(q, lo, hi):
        for i in range(lo, hi):
            a(f"v_exp_f32 v{P[q]+i}, v{S[q]+i}")
    def smf(q, vb, half):
        a(f"v_smfmac_f32_32x32x32_bf16 {v(O[q],16)}, {v(vb,4)}, {v(P[q]+8*half,8)}, v{IDX}")
    for u in range(U):
        b = u & 1
        a(f"{MF} {v(S[1],16)}, {v(KB[b],4)}, {v(Q[1],4)}, {v(C[1],16)}")
        if u == 8:
            a("s_bitcmp1_b32 s75, s77")
            a("s_cbranch_scc0 K2_KVM")
            a.label("K2_MID")
        if HLATE >= 0 and u >= HLATE and (u - HLATE) % HSTEP == 0 and (u - HLATE) // HSTEP < len(hst):
            assert u + 2 < HU
            a(hst[(u - HLATE) // HSTEP])
        exps(0, 0, 5)
        smf(1, VB[b ^ 1][1], 1)
        if u == 8:
            a("s_add_u32 s77, s77, 4")
            a("s_min_u32 s77, s77, 14")
        if u == TNEAR and EARLYT:
            a("s_mov_b64 exec, 1")
            a(f"ds_write_b32 v46, v{VK} offset:8")
            a("s_mov_b64 exec, -1")
        a(f"ds_read_b128 {v(VB[b^1][0],4)}, v{VV0} offset:{(u+1)*VP}")
        exps(0, 5, 11)
        smf(0, VB[b][0], 0)
        if u == HU:
            a("s_waitcnt vmcnt(0)")
            a("s_mov_b64 exec, 1")
            a("ds_or_b32 v46, v48 offset:8")
            a("s_mov_b64 exec, -1")
        a(f"ds_read_b128 {v(VB[b^1][1],4)}, v{VV1} offset:{(u+1)*VP}")
        exps(0, 11, 16)
        a(f"{MF} {v(S[0],16)}, {v(KB[b^1],4)}, {v(Q[0],4)}, {v(C[0],16)}")
        a(f"ds_read_b128 {v(KB[b],4)}, v{VK} offset:{(u+2)*TP}")
        exps(1, 0, 5)
        smf(0, VB[b][1], 1)
        if u % 8 == 7:
            a("ds_read_b32 v47, v46")
        exps(1, 5, 11)
        smf(1, VB[b][0], 0)
        a("s_waitcnt lgkmcnt(0)")
        if u == U - 1:
            a(f"v_add_u32 v{VK}, {U*TP}, v{VK}")
            a(f"v_add_u32 v{VV0}, {U*VP}, v{VV0}")
            a(f"v_add_u32 v{VV1}, {U*VP}, v{VV1}")
        if u % 8 == 7:
            a("v_readfirstlane_b32 s75, v47")
        exps(1, 11, 16)
        if u == 7:
            mid_check = True
    a("s_bitcmp1_b32 s75, s77")
    a("s_cbranch_scc0 K2_KVW")
    a.label("K2_NEXT")
    if HLATE >= 0:
        a("s_mov_b32 s42, 0")
    a("s_add_u32 s77, s77, 4")
    a("s_min_u32 s77, s77, 14")
    if PROF in (9, 16):
        a("s_memrealtime s[96:97]")
        a("s_memtime s[98:99]")
        a("s_waitcnt lgkmcnt(0)")
        for it, sl in (((3, 4), (2, 5), (1, 6)) if PROF == 9 else ((3, 4), (1, 5), (0, 6))):
            a(f"s_cmp_eq_u32 s27, {it}")
            a(f"s_cselect_b32 s{80+sl}, s96, s{80+sl}")
            a(f"s_cselect_b32 s{88+sl}, s98, s{88+sl}")
    a("s_sub_u32 s27, s27, 1")
    a("s_cbranch_scc0 K2_LOOP")
    a("s_nop 1")
    smf(1, VB[(U - 1) & 1][1], 1)
    stamp(a, 5)
    stamp(a, 1, 8)
    stamp(a, 1, 13)
    a(f"v_mov_b32 v46, {LDS_SYNC + 4}")
    a("ds_read_b32 v47, v46")
    a(f"ds_read_b32 v{G[0]}, v7")
    a(f"ds_read_b32 v{G[1]}, v7 offset:128")
    a("s_lshl_b32 s24, s71, 2")
    a("s_add_u32 s24, s24, s20")
    a("s_lshl_b32 s24, s24, 5")
    a("s_add_u32 s24, s24, s70")
    a(f"s_mul_i32 s25, s24, {OS}" if TAGO else "s_lshl_b32 s25, s24, 11")
    a(f"s_add_u32 s25, s25, {WS_O}")
    a("v_mov_b32 v48, 0")
    a("v_mov_b32 v49, 0")
    a(f"v_pk_mul_f32 v[44:45], {v(O[0],2)}, v[48:49]")
    for i in range(2, 10, 2):
        a(f"v_pk_fma_f32 v[44:45], {v(O[0]+i,2)}, v[48:49], v[44:45]")
    for i in range(0, 10, 2):
        a(f"v_pk_fma_f32 v[44:45], {v(O[1]+i,2)}, v[48:49], v[44:45]")
    a(f"v_mul_f32 v50, {fh(2.0**68)}, v{O[0]+8}")
    a(f"v_mul_f32 v51, {fh(2.0**68)}, v{O[1]+8}")
    a("v_pk_fma_f32 v[44:45], v[50:51], v[48:49], v[44:45]")
    a("v_cmp_u_f32 vcc, v44, v45")
    a("s_nop 1")
    a("s_cmp_eq_u64 vcc, 0")
    a("s_cbranch_scc0 K2_FB")
    a.label("K2_FIN")
    for q in range(2):
        a(f"v_rcp_f32 v{48+q}, v{O[q]+8}")
    a(f"s_mov_b32 s74, {SPIN*8}")
    a.label("K2_GW")
    a("s_waitcnt lgkmcnt(0)")
    a("v_readfirstlane_b32 s75, v47")
    a("s_sub_u32 s74, s74, 1")
    a("s_cmp_eq_u32 s74, 0")
    a("s_cbranch_scc1 K2_GOK")
    a("s_cmp_ge_u32 s75, 64")
    a("s_cbranch_scc1 K2_GOK")
    a("s_sleep 1")
    a("ds_read_b32 v47, v46")
    a(f"ds_read_b32 v{G[0]}, v7")
    a(f"ds_read_b32 v{G[1]}, v7 offset:128")
    a("s_branch K2_GW")
    a.label("K2_GOK")
    for q in range(2):
        a(f"v_mul_f32 v{44+2*q}, v{48+q}, v{G[q]}")
    GR = S[0]
    a(f"v_mov_b32 v{GR+8}, s68")
    a(f"v_mov_b32 v{GR+9}, s69")
    a(f"v_mov_b32 v{GR+10}, s68")
    a(f"v_mov_b32 v{GR+11}, s69")
    if TAGO:
        for r in (3, 7, 14, 15):
            a(f"v_mov_b32 v{GR+r}, s68")
    for q in range(2):
        for i in range(0, 8, 2):
            a(f"v_pk_mul_f32 {v(O[q]+i,2)}, {v(O[q]+i,2)}, {v(44+2*q,2)} op_sel_hi:[1,0]")
        for i in range(0, 8, 2):
            a(f"v_cvt_pk_bf16_f32 v{GR + 12 + q if (TAGO and i == 6) else GR + 4*q + i//2}, v{O[q]+i}, v{O[q]+i+1}")
        a(f"buffer_store_dwordx4 {v(GR+4*q,4)}, v3, s[28:31], s25 offen offset:{q*1024}{SC}")
    if TAGO:
        a(f"buffer_store_dwordx4 {v(GR+12,4)}, v3, s[28:31], s25 offen offset:2048{SC}")
    if FRESH:
        a("s_lshl_b32 s24, s24, 12")
        a(f"s_add_u32 s24, s24, {WS_FR}")
        a("v_lshlrev_b32 v45, 7, v2")
    else:
        a("s_lshl_b32 s24, s24, 7")
        a(f"s_add_u32 s24, s24, {FL_C}")
    a(f"v_mov_b32 v46, {LDS_SYNC + 8}")
    a("v_mov_b32 v47, 1")
    a("s_mov_b64 exec, 1")
    a("ds_add_u32 v46, v47")
    a("s_mov_b64 exec, -1")
    NSD = min(NDEF, 11)
    if NDEF:
        srd(a, 44, 16, 0x1c0000)
        a(f"s_mul_i32 s53, s20, {DSTG}")
        a("s_add_u32 s53, s53, 0x10000")
        frag_addrs(a, "s53")
        part_addrs(a, "s53", 240)
        a(f"s_mul_i32 s32, s20, {NDEF}")
        a(f"s_add_u32 s32, s32, {4*(28-NDEF)}")
        a(f"s_mul_i32 s33, s72, {2*144*1024}")
        a("s_lshl_b32 s34, s32, 10")
        a("s_add_u32 s33, s33, s34")
        a(f"s_add_u32 s33, s33, {WS_ACT}")
        a(f"s_add_u32 s34, s33, {144*1024}")
        a("s_lshl_b32 s35, s32, 14")
        a("s_lshl_b32 s36, s73, 7")
        a("s_add_u32 s35, s35, s36")
        a("v_and_b32 v4, 31, v2")
        a("v_lshlrev_b32 v4, 2, v4")
        a(f"v_add_u32 v4, {LDS_OG}, v4")
        a("ds_read_b32 v244, v4")
        a("ds_read_b32 v246, v4 offset:128")
        a("ds_read_b32 v47, v46")
    stamp(a, 2, 13)
    if not TAGO:
        a("s_waitcnt vmcnt(0)")
    stamp(a, 3, 13)
    if FULLF:
        a("s_mov_b64 exec, 0xff")
        a(f"buffer_store_dwordx4 {v(GR+8,4)}, v3, s[28:31], s24 offen sc1")
    elif FRESH:
        a("s_mov_b32 exec_hi, 0")
        a(f"buffer_store_dwordx2 {v(GR+8,2)}, v45, s[28:31], s24 offen sc1")
    elif ATFLAG:
        a("s_mov_b64 exec, 1")
        a(f"buffer_atomic_swap_x2 {v(GR+8,2)}, v3, s[28:31], s24 offen sc1")
    else:
        a("s_mov_b64 exec, 1")
        a(f"buffer_store_dwordx2 {v(GR+8,2)}, v3, s[28:31], s24 offen sc1")
    a("s_mov_b64 exec, -1")
    a("s_setprio 0")
    stamp(a, 6)
    stamp(a, 2, 8)
    if NDEF:
        lds_wait(a, 46, 47, ["s_and_b32 s75, s75, 255", "s_cmp_ge_u32 s75, 68"], first_read=False)
        a("v_mov_b32 v248, v46")
        a("v_mov_b32 v249, 256")
        DA_, DW_, DC_ = 144, 80, 16
        dq = []
        def dw(k):
            a(f"s_add_u32 m0, s53, {(k % NSD) * 2048}")
            a("s_nop 0")
            a("buffer_load_dwordx4 v10, s[44:47], s35 offen lds")
            a("buffer_load_dwordx4 v11, s[44:47], s35 offen offset:1024 lds")
            a("s_add_u32 s35, s35, 16384")
            dq.extend([k] * 2)
        def da(k):
            for t in range(2):
                a(f"buffer_load_dwordx4 {v(DA_+8*k+4*t,4)}, v3, s[28:31], s{33+t} offen offset:{(k%4)*1024}{SC}")
            if k % 4 == 3:
                a("s_add_u32 s33, s33, 4096")
                a("s_add_u32 s34, s34, 4096")
            dq.extend([k] * 2)
        def dwait(k):
            a(f"s_waitcnt vmcnt({len(dq) - 1 - max(i for i, t in enumerate(dq) if t == k)})")
        def drd(k):
            b = DW_ + 8 * (k & 1)
            for n in range(2):
                for u in range(2):
                    a(f"ds_read_b64_tr_b16 {v(b+4*n+2*u,2)}, v{12+n} offset:{(k % NSD) * 2048 + u*1024}")
        AH = min(AHD, NDEF)
        for k in range(AH):
            dw(k); da(k)
        dwait(0)
        stamp(a, 3, 8)
        drd(0)
        for k in range(NDEF):
            if k + AH < NDEF:
                dw(k + AH); da(k + AH)
            if k + 1 < NDEF:
                dwait(k + 1)
                if k + 3 == NDEF:
                    a("s_mov_b64 exec, 1")
                    a("ds_add_u32 v248, v249")
                    a("s_mov_b64 exec, -1")
                drd(k + 1)
                a("s_waitcnt lgkmcnt(4)")
            else:
                a("s_waitcnt lgkmcnt(0)")
            b = DW_ + 8 * (k & 1)
            for n in range(2):
                for t in range(2):
                    acc = DC_ + (n * 2 + t) * 16
                    cin = "0" if k == 0 else v(acc, 16)
                    a(f"{MF} {v(acc,16)}, {v(b+4*n,4)}, {v(DA_+8*k+4*t,4)}, {cin}")
        stamp(a, 4, 8)
        a("s_nop 7")
        for n in range(2):
            for t in range(2):
                acc = DC_ + (n * 2 + t) * 16
                if n + t == 0:
                    a("s_nop 1")
                for j in range(0, 16, 2):
                    a(f"v_pk_mul_f32 {v(acc+j,2)}, {v(acc+j,2)}, {v(244+2*t,2)} op_sel_hi:[1,0]")
                for g in range(4):
                    a(f"ds_write_b128 v{240+g}, {v(acc+4*g,4)} offset:{t*8192 + n*128}")
        stamp(a, 5, 8)
    a("s_branch K3_REDUCE")
    a.label("K2_FB")
    a("s_cmp_lg_u32 s26, 0")
    a("s_cbranch_scc1 K2_FIN")
    a("s_waitcnt lgkmcnt(0)")
    a("s_mov_b32 s26, 100")
    vaddr_init(a)
    zero_state()
    a("v_mov_b32 v44, 0xff800000")
    a("v_mov_b32 v45, 0xff800000")
    a("v_mov_b32 v43, v3")
    a("s_mov_b32 s27, 64")
    a.label("K2_MAXLOOP")
    a(f"ds_read_b128 {v(KB[0],4)}, v43")
    a(f"v_add_u32 v43, {TP}, v43")
    a("s_waitcnt lgkmcnt(0)")
    for q in range(2):
        a(f"{MF} {v(S[q],16)}, {v(KB[0],4)}, {v(Q[q],4)}, 0")
    a("s_nop 7")
    a("s_nop 7")
    for q in range(2):
        maxtree(S[q], 44 + q, acc=True)
    a("s_sub_u32 s27, s27, 1")
    a("s_cmp_lg_u32 s27, 0")
    a("s_cbranch_scc1 K2_MAXLOOP")
    a("s_branch K2_SETMAX")
    for nm in ("SQ", "SR"):
        a.label(nm + "_W")
        lds_wait(a, 0, 10, ["s_bitcmp1_b32 s75, 6"])
        a(f"s_branch {nm}_B")
    for lab, back in (("K2_KVW", "K2_NEXT"), ("K2_KVM", "K2_MID"))[:U // 8]:
        a.label(lab)
        if PROF == 16:
            a("s_memtime s[100:101]")
        lds_wait(a, 46, 47, ["s_bitcmp1_b32 s75, s77"])
        if PROF == 16:
            a("s_memtime s[98:99]")
            a("s_waitcnt lgkmcnt(0)")
            a("s_sub_u32 s98, s98, s100")
            a("s_add_u32 s89, s89, s98")
            a("s_lshl_b32 s98, 1, s77")
            a("s_or_b32 s90, s90, s98")
        a(f"s_branch {back}")

    a.label("K2_GEMM")
    ND, NW = 28 - NDEF, 8
    NG = ND // 4
    NS = env('NSW', 3)
    srd(a, 44, 16, 0x1c0000)
    srd(a, 48, 8, 0x80000)
    if FMAP:
        a("s_and_b32 s42, s72, 3")
        a("s_lshl_b32 s42, s42, 1")
        a("s_add_u32 s42, s42, s73")
    else:
        a("s_lshr_b32 s42, s2, 3")
        a("s_and_b32 s43, s42, 7")
        a("s_lshr_b32 s42, s42, 3")
        a("s_lshl_b32 s42, s42, 1")
        a("s_add_u32 s42, s42, s43")
    for _ in range(-(-14 // NG) - 1):
        a(f"s_cmp_ge_u32 s42, {NG}")
        a(f"s_cselect_b32 s43, {NG}, 0")
        a("s_sub_u32 s42, s42, s43")
    if not ROT:
        a("s_mov_b32 s42, 0")
    a("s_mov_b32 s52, s42")
    a(f"s_mul_i32 s32, s23, {ND}")
    a("s_lshl_b32 s43, s42, 2")
    a("s_add_u32 s32, s32, s43")
    a(f"s_mul_i32 s33, s72, {2*144*1024}")
    a(f"s_add_u32 s33, s33, {WS_ACT}")
    a("s_lshl_b32 s43, s32, 10")
    a("s_add_u32 s33, s33, s43")
    a(f"s_add_u32 s34, s33, {144*1024}")
    a("s_lshl_b32 s43, s73, 7")
    a("s_lshl_b32 s35, s32, 14")
    a("s_add_u32 s35, s35, s43")
    a("s_lshl_b32 s39, s23, 17")
    a("s_add_u32 s39, s39, s43")
    a(f"s_mul_i32 s53, s23, {3*2048}")
    a(f"s_add_u32 s53, s53, {LDS_WS}")
    GA = 16
    FR = 80
    D = 8
    queue = []
    def ld(dst, sr, k, tag):
        a(f"buffer_load_dwordx4 {v(dst,4)}, v3, s[28:31], s{sr} offen offset:{(k%4)*1024}{SC}")
        queue.append(tag)
    def aloads(k):
        b = FR + (k % D) * 16
        ld(b + 4, 33, k, ("a", k)); ld(b + 12, 34, k, ("a", k))
        if k % 4 == 3:
            a("s_add_u32 s42, s42, 1")
            a(f"s_cmp_eq_u32 s42, {NG}")
            a("s_movk_i32 s43, 4096")
            a(f"s_cselect_b32 s43, {(-(NG-1)*4096) & 0xffffffff:#x}, s43")
            a("s_cselect_b32 s42, 0, s42")
            for sr in (33, 34):
                a(f"s_add_u32 s{sr}, s{sr}, s43")
    def wloads(k):
        a(f"s_add_u32 m0, s53, {(k % NS) * 2048}")
        sr, rs = (35, 44) if k < ND else (39, 48)
        a("s_nop 0")
        a(f"buffer_load_dwordx4 v248, s[{rs}:{rs+3}], s{sr} offen lds")
        a(f"buffer_load_dwordx4 v249, s[{rs}:{rs+3}], s{sr} offen offset:1024 lds")
        queue.extend([("w", k)] * 2)
        a(f"s_add_u32 s{sr}, s{sr}, 16384")
        if k < ND and k % 4 == 3:
            a("s_add_u32 s52, s52, 1")
            a(f"s_cmp_eq_u32 s52, {NG}")
            a(f"s_cselect_b32 s43, {(-ND*16384) & 0xffffffff:#x}, 0")
            a("s_cselect_b32 s52, 0, s52")
            a("s_add_u32 s35, s35, s43")
    def waitfor(*tags):
        n = len(queue) - 1 - max(i for i, t in enumerate(queue) if t in tags)
        a(f"s_waitcnt vmcnt({n})")
    def wreads(k):
        b = FR + (k % D) * 16
        for n in range(2):
            for u in range(2):
                a(f"ds_read_b64_tr_b16 {v(b+8*n+2*u,2)}, v{250+n} offset:{(k % NS) * 2048 + u*1024}")
    def mm(k):
        b = FR + (k % D) * 16
        for n in range(2):
            for t in range(2):
                acc = GA + (n * 2 + t) * 16
                cin = "0" if k == 0 else v(acc, 16)
                a(f"{MF} {v(acc,16)}, {v(b+8*n,4)}, {v(b+4+8*t,4)}, {cin}")
    stamp(a, 3)
    a(f"v_mov_b32 v22, {LDS_SYNC + 16}")
    lds_wait(a, 22, 23, ["s_bitcmp1_b32 s75, 2"])
    a("ds_write_b128 v36, v[40:43]")
    a("ds_write_b128 v36, v[44:47] offset:16")
    a(f"ds_write_b128 v36, v[40:43] offset:{2*VP}")
    a(f"ds_write_b128 v36, v[44:47] offset:{2*VP+16}")
    if KVV == 1:
        kv_loads(3, 5)
    a(f"s_waitcnt vmcnt({4 if KVV == 1 else 0}) lgkmcnt(0)")
    stamp(a, 5, 15)
    if KVV >= 3:
        kv_loads(3, 5)
    if KVV >= 4:
        kv_loads(5, 7)
    a("s_barrier                              ; X1")
    a(f"s_setprio {GPRIO}")
    stamp(a, 6, 15)
    if KVV == 2:
        kv_loads(3, 5)
    if KVV < 4:
        kv_loads(5, 7)
    else:
        kv_loads(7, 9)
    def b1_flag():
        a("s_cmp_lg_u32 s23, 1")
        a("s_cbranch_scc1 K2_NOB1")
        a("s_lshl_b32 s37, s21, 4")
        a("s_add_u32 s37, s37, s22")
        a("s_lshl_b32 s37, s37, 7")
        a(f"s_add_u32 s37, s37, {FL_B1}")
        flag_store(a, "s37", 16)
        a.label("K2_NOB1")
    if HU < 0:
        a("s_barrier                              ; X2")
        b1_flag()
    a(f"v_mov_b32 v34, {LDS_SYNC + 12}")
    def arrived(stage, n):
        a(f"v_mov_b32 v35, {1 << (4 * stage)}")
        a(f"s_waitcnt vmcnt({n})")
        a("s_mov_b64 exec, 1")
        a("ds_add_u32 v34, v35")
        a("s_mov_b64 exec, -1")
    if KVV < 4:
        kv_loads(7, 9)
    arrived(0, 8)
    arrived(1, 4)
    if HU >= 0 and HLATE < 0:
        a(f"v_mov_b32 v22, {LDS_SYNC + 20}")
        lds_wait(a, 22, 23, ["s_cmp_eq_u32 s75, 15"])
        b1_flag()
    kv_loads(9, 12)
    arrived(2, 6)
    kv_loads(12, 16)
    srd(a, 44, 16, 0x1c0000)
    arrived(3, 0)
    a("v_mov_b32 v69, s68")
    a("s_lshl_b32 s55, s76, 4")
    a(f"s_add_u32 s55, s55, {WS_G}")
    a("s_mov_b32 exec_lo, 1")
    a("s_mov_b32 exec_hi, 1")
    a(f"buffer_store_dwordx2 v[68:69], v70, s[28:31], s55 offen{SC}")
    a("s_mov_b64 exec, -1")
    if HLATE >= 0:
        a(f"v_mov_b32 v22, {LDS_SYNC + 20}")
        lds_wait(a, 22, 23, ["s_cmp_eq_u32 s75, 15"], slp=4)
        b1_flag()
    if WARMW and FMAP:
        a("s_lshr_b32 s54, s2, 3")
        a("s_lshl_b32 s54, s54, 2")
        a("s_add_u32 s54, s54, s23")
        a("s_mul_i32 s55, s54, 14336")
        a("v_min_u32 v14, 55, v2")
        a("v_lshlrev_b32 v14, 7, v14")
        a("buffer_load_dword v15, v14, s[44:47], s55 offen")
        a("s_add_u32 s55, s55, 7168")
        a("buffer_load_dword v15, v14, s[44:47], s55 offen")
        a("s_lshl_b32 s55, s54, 12")
        a("v_and_b32 v14, 31, v2")
        a("v_lshlrev_b32 v14, 7, v14")
        a("buffer_load_dword v15, v14, s[48:51], s55 offen")
    elif WARMW:
        a("s_lshr_b32 s54, s2, 3")
        a("s_and_b32 s54, s54, 7")
        a("s_lshl_b32 s55, s54, 2")
        a("s_add_u32 s55, s55, s23")
        a("s_mul_i32 s55, s55, 57344")
        a("s_add_u32 s55, s55, s43")
        a("v_min_u32 v14, 55, v2")
        a("v_lshlrev_b32 v14, 10, v14")
        a("buffer_load_dword v15, v14, s[44:47], s55 offen")
        a("s_lshl_b32 s55, s54, 2")
        a("s_add_u32 s55, s55, s23")
        a("s_lshl_b32 s55, s55, 14")
        a("s_add_u32 s55, s55, s43")
        a("v_and_b32 v14, 15, v2")
        a("v_lshlrev_b32 v14, 10, v14")
        a("buffer_load_dword v15, v14, s[48:51], s55 offen")
    for k in range(NS):
        wloads(k)
    a("s_setprio 3")
    a("v_and_b32 v6, 15, v2")
    a("v_lshlrev_b32 v6, 7, v6")
    a("s_lshr_b32 s24, s72, 1")
    a("s_lshl_b32 s24, s24, 11")
    a(f"s_add_u32 s24, s24, {FL_B1}")
    poll_shared(a, 3, [("s24", 6, 8, 4)], 20, lslp=4)
    a("v_and_b32 v6, 31, v2")
    a("v_lshlrev_b32 v6, 3, v6")
    a("v_lshlrev_b32 v7, 3, v2")
    a("s_lshl_b32 s54, s72, 9")
    a(f"s_add_u32 s54, s54, {WS_G}")
    a("s_lshl_b32 s55, s71, 2")
    a("s_add_u32 s55, s55, s23")
    a("s_lshl_b32 s55, s55, 9")
    a(f"s_add_u32 s55, s55, {WS_G}")
    a(f"s_mov_b32 s74, {SPIN}")
    a.label("K2_GL")
    a(f"buffer_load_dwordx2 v[240:241], v6, s[28:31], s54 offen{SC}")
    a(f"buffer_load_dwordx2 v[242:243], v6, s[28:31], s54 offen offset:256{SC}")
    a(f"buffer_load_dwordx2 v[244:245], v7, s[28:31], s55 offen{SC}")
    a("s_waitcnt vmcnt(0)")
    a("v_xor_b32 v8, s68, v241")
    a("v_xor_b32 v9, s68, v243")
    a("v_xor_b32 v14, s68, v245")
    a("v_or3_b32 v8, v8, v9, v14")
    a("v_cmp_ne_u32 vcc, 0, v8")
    a("s_sub_u32 s74, s74, 1")
    a("s_cbranch_scc1 K2_GD")
    a("s_cmp_eq_u64 vcc, 0")
    a("s_cbranch_scc1 K2_GD")
    a("s_sleep 4")
    a("s_branch K2_GL")
    a.label("K2_GD")
    a("s_lshl_b32 s55, s23, 8")
    a(f"s_add_u32 s55, s55, {LDS_GQ}")
    a("v_lshrrev_b32 v7, 1, v7")
    a("v_add_u32 v7, s55, v7")
    a("ds_write_b32 v7, v244")
    a("v_sub_f32 v240, 1.0, v240")
    a("v_sub_f32 v242, 1.0, v242")
    a("v_lshrrev_b32 v6, 1, v6")
    a(f"v_add_u32 v6, {LDS_OG}, v6")
    a("ds_write_b32 v6, v240")
    a("ds_write_b32 v6, v242 offset:128")
    a(f"v_mov_b32 v8, {LDS_SYNC + 4}")
    a("v_mov_b32 v9, 16")
    a("s_waitcnt lgkmcnt(0)")
    a("s_mov_b64 exec, 1")
    a("ds_add_u32 v8, v9")
    a("s_mov_b64 exec, -1")
    stamp(a, 4)
    stamp(a, 6, 16)
    DA = DAH
    a("s_setprio 0")
    place(a, "D")
    for k in range(DA):
        aloads(k)
    for k in range(ND + NW):
        waitfor(("w", k), ("a", k))
        wreads(k)
        a("s_waitcnt lgkmcnt(0)")
        if k + NS < ND + NW:
            wloads(k + NS)
        if k + DA < ND:
            aloads(k + DA)
        if k < ND:
            mm(k)
    a("s_setprio 3")
    if NDEF and WARMD:
        assert FMAP
        a(f"s_mul_i32 s33, s72, {2*144*1024}")
        a("s_lshr_b32 s34, s23, 1")
        a(f"s_mul_i32 s34, s34, {144*1024}")
        a("s_add_u32 s33, s33, s34")
        a("s_lshl_b32 s34, s73, 1")
        a("s_and_b32 s35, s23, 1")
        a("s_add_u32 s34, s34, s35")
        a(f"s_mul_i32 s34, s34, {NDEF*256}")
        a("s_add_u32 s33, s33, s34")
        a(f"s_add_u32 s33, s33, {WS_ACT + 4*ND*1024}")
        a(f"v_min_u32 v14, {2*NDEF-1}, v2")
        a("v_lshlrev_b32 v14, 7, v14")
        a(f"buffer_load_dword v15, v14, s[28:31], s33 offen{SC}")
        a("s_and_b32 s34, s72, 3")
        a("s_lshl_b32 s34, s34, 2")
        a("s_add_u32 s34, s34, s23")
        a(f"s_mul_i32 s34, s34, {NDEF*4096}")
        a("s_lshl_b32 s35, s73, 7")
        a("s_add_u32 s34, s34, s35")
        a(f"s_add_u32 s34, s34, {4*ND*16384}")
        a(f"v_min_u32 v14, {4*NDEF-1}, v2")
        a("v_lshlrev_b32 v14, 10, v14")
        a("buffer_load_dword v15, v14, s[44:47], s34 offen")
    a("s_nop 7")
    a("s_nop 7")
    for n in range(2):
        for t in range(2):
            acc = GA + (n * 2 + t) * 16
            for j in range(16):
                a(f"v_mul_f32 v{acc+j}, v{acc+j}, v{240+2*t}")
    a("s_lshl_b32 s24, s72, 2")
    a("s_add_u32 s24, s24, s23")
    a(f"s_mul_i32 s24, s24, {8*OS}" if TAGO else "s_lshl_b32 s24, s24, 14")
    a(f"s_add_u32 s24, s24, {WS_O}")
    a("v_and_b32 v6, 7, v2")
    a("v_lshlrev_b32 v6, 7, v6")
    a("s_lshl_b32 s26, s72, 12")
    a("s_lshl_b32 s25, s23, 10")
    a("s_add_u32 s26, s26, s25")
    if FRESH:
        a("v_lshlrev_b32 v6, 5, v6")
        a("s_lshl_b32 s27, s26, 5")
        a(f"s_add_u32 s27, s27, {WS_FR}")
    a(f"s_add_u32 s26, s26, {FL_C}")
    a(f"v_mov_b32 v11, {LDS_SYNC + 8}")
    a("v_mov_b32 v10, 16")
    a("s_mov_b64 exec, 1")
    a("ds_add_u32 v11, v10")
    a("s_mov_b64 exec, -1")
    a("s_mov_b32 s54, 0")
    a(f"s_mov_b32 s74, {SPIN}")
    stamp(a, 5)
    stamp(a, 1, 8)
    def c_poll(r=8):
        if FRESH:
            a("s_memrealtime s[58:59]")
        a(f"v_mov_b32 v{r}, 0")
        a(f"v_mov_b32 v{r+1}, 0")
        if FRESH:
            a("s_waitcnt lgkmcnt(0)")
            a(f"s_bfe_u32 s58, s58, {(5 << 16) | FRESH:#x}")
            a("s_lshl_b32 s58, s58, 7")
            a("s_add_u32 s26, s27, s58")
        if MASKP:
            a("s_xor_b32 exec_lo, s54, 0xff")
            a("s_mov_b32 exec_hi, 0")
        else:
            a("s_mov_b64 exec, 0xff")
        if ATPOLL:
            a(f"buffer_atomic_or_x2 {v(r,2)}, v6, s[28:31], s26 offen sc0 sc1")
        else:
            a(f"buffer_load_dwordx2 {v(r,2)}, v6, s[28:31], s26 offen sc1")
        a("s_mov_b64 exec, -1")
    def pause():
        if NDEF and PAUSE:
            lab, done = a.newlabel("PZ"), a.newlabel("PZD")
            a(f"s_mov_b32 s76, {SPIN}")
            a.label(lab)
            a("ds_read_b32 v10, v11")
            a("s_waitcnt lgkmcnt(0)")
            a("v_readfirstlane_b32 s75, v10")
            a("s_sub_u32 s76, s76, 1")
            a(f"s_cbranch_scc1 {done}")
            a("s_cmp_ge_u32 s75, 1024")
            a(f"s_cbranch_scc1 {done}")
            a("s_and_b32 s75, s75, 15")
            a(f"s_cbranch_scc0 {done}")
            a("s_sleep 1")
            a(f"s_branch {lab}")
            a.label(done)
    def guard(reg, kk, tag, end=False):
        if not TRIM:
            return
        for w_ in ((2, 4) if end else (4, 2)):
            if not end and kk % w_ == 0:
                a(f"s_and_b32 s58, {reg}, {((1 << w_) - 1) << kk:#x}")
                a(f"s_cbranch_scc0 K3_G{tag}{w_}_{kk}")
            if end and kk % w_ == w_ - 1:
                a.label(f"K3_G{tag}{w_}_{kk - w_ + 1}")
    def o_loads(tag):
        for kk in range(NW):
            b = FR + ((ND + kk) % D) * 16
            guard("s55", kk, "L" + tag)
            a(f"s_bitcmp1_b32 s55, {kk}")
            a(f"s_cbranch_scc0 K3_L{tag}{kk}")
            a(f"s_add_u32 s25, s24, {kk*OS}")
            a(f"buffer_load_dwordx4 {v(b+4,4)}, v3, s[28:31], s25 offen{SC}")
            a(f"buffer_load_dwordx4 {v(b+12,4)}, v3, s[28:31], s25 offen offset:1024{SC}")
            if TAGO:
                a(f"buffer_load_dwordx4 {v(216+4*kk,4)}, v3, s[28:31], s25 offen offset:2048{SC}")
            a.label(f"K3_L{tag}{kk}")
            guard("s55", kk, "L" + tag, True)
    if TMODE:
        if TMODE == 3:
            a(f"v_mov_b32 v12, {LDS_SYNC + 20}")
            a.label("K3_NEAR")
            a("ds_read_b32 v10, v12")
            a("s_waitcnt lgkmcnt(0)")
            a("v_readfirstlane_b32 s75, v10")
            a(f"s_cmp_gt_u32 s75, {12 * 64 * 0xdddd}")
            a("s_cbranch_scc1 K3_NEAR1")
            a(f"s_sleep {PSLOW // 2}")
            a("s_sub_u32 s74, s74, 1")
            a("s_cbranch_scc0 K3_NEAR")
            a.label("K3_NEAR1")
            c_poll()
            a("s_waitcnt vmcnt(0)")
            a("v_cmp_eq_u64 vcc, s[68:69], v[8:9]")
            a(f"s_mov_b32 s74, {SPIN}")
            a("s_mov_b32 s55, vcc_lo")
            a("s_mov_b32 s54, s55")
            o_loads("P")
        a.label("K3_PRE")
        if TMODE == 2:
            a("s_cmp_eq_u32 s54, 0xff")
            a("s_cbranch_scc1 K3_PRE1")
            c_poll()
            a("s_waitcnt vmcnt(0)")
            a("v_cmp_eq_u64 vcc, s[68:69], v[8:9]")
            a("s_nop 0")
            a("s_andn2_b32 s55, vcc_lo, s54")
            a("s_or_b32 s54, s54, s55")
            o_loads("P")
            a.label("K3_PRE1")
        for rep in range(4):
            a("ds_read_b32 v10, v11" + (" offset:12" if EARLYT else ""))
            a("s_waitcnt lgkmcnt(0)")
            a("v_readfirstlane_b32 s75, v10")
            a(f"s_cmp_ge_u32 s75, {(64 - UA) * TP}" if EARLYT else ("s_bitcmp1_b32 s75, 2" if TRIM else "s_and_b32 s75, s75, 15"))
            a("s_cbranch_scc1 K3_GO")
            a(f"s_sleep {PSLOW // 4}")
        a("s_sub_u32 s74, s74, 1")
        a("s_cbranch_scc0 K3_PRE")
        a.label("K3_GO")
    if TPIPE:
        assert TMODE == 1
        a(f"s_mov_b32 s74, {SPIN}")
        a("s_mov_b32 s59, 0")
        c_poll()
        a.label("K3_ROUND")
        a("s_waitcnt vmcnt(0)")
        a("v_cmp_eq_u64 vcc, s[68:69], v[8:9]")
        a("s_sub_u32 s74, s74, 1")
        a("s_cselect_b32 s55, 0xff, vcc_lo")
        a("s_andn2_b32 s55, s55, s54")
        a("s_cbranch_scc0 K3_NONEW")
        stamp(a, 1, 13)
        if PROF == 13:
            a("s_mov_b32 s89, s55")
        if FAST8:
            a("s_cmp_eq_u32 s55, 0xff")
            a("s_cbranch_scc1 K3_ALL8")
        a("s_or_b32 s54, s54, s55")
        o_loads("")
        a.label("K3_NONEW")
        a("s_cmp_eq_u32 s54, 0xff")
        a("s_cbranch_scc1 K3_LAST")
        a("s_or_b32 s58, s55, s59")
        a("s_cbranch_scc1 K3_BUSY")
        a(f"s_sleep {TSLP}")
        a.label("K3_BUSY")
        c_poll()
        a.label("K3_LAST")
        a("s_cmp_eq_u32 s59, 0")
        a("s_cbranch_scc1 K3_NOMM")
        stamp(a, 2, 13)
        a("ds_read_b32 v10, v11")
        a("s_setprio 0")
        for kk in range(NW):
            guard("s59", kk, "M")
            a(f"s_bitcmp1_b32 s59, {kk}")
            a(f"s_cbranch_scc0 K3_C{kk}")
            mm(ND + kk)
            a.label(f"K3_C{kk}")
            guard("s59", kk, "M", True)
        a("s_setprio 3")
        a.label("K3_NOMM")
        a("s_mov_b32 s59, s55")
        a("s_xor_b32 s58, s54, 0xff")
        a("s_or_b32 s58, s58, s59")
        a("s_cbranch_scc1 K3_ROUND")
        if FAST8:
            a("s_branch K3_DONE")
            a.label("K3_ALL8")
            for kk in range(NW):
                b = FR + ((ND + kk) % D) * 16
                if kk % 2 == 0:
                    a(f"s_add_u32 s25, s24, {kk*2048}")
                a(f"buffer_load_dwordx4 {v(b+4,4)}, v3, s[28:31], s25 offen offset:{(kk%2)*2048}{SC}")
                a(f"buffer_load_dwordx4 {v(b+12,4)}, v3, s[28:31], s25 offen offset:{(kk%2)*2048+1024}{SC}")
            a("s_setprio 0")
            for kk in range(NW):
                a(f"s_waitcnt vmcnt({2*(NW-1-kk)})")
                if kk == NW - 1:
                    a("ds_read_b32 v10, v11")
                mm(ND + kk)
            a("s_setprio 3")
            a.label("K3_DONE")
    else:
        a(f"s_mov_b32 s74, {SPIN}")
        a("s_mov_b32 s55, s54")
        if TAGO:
            a("s_mov_b32 s59, 0")
            a("s_mov_b64 s[60:61], -1")
        a("s_branch K3_NEXTP")
        a.label("K3_POLL")
        c_poll()
        a.label("K3_ROUND")
        a("s_waitcnt vmcnt(0)")
        a("v_cmp_eq_u64 vcc, s[68:69], v[8:9]")
        a("s_sub_u32 s74, s74, 1")
        a("s_cselect_b32 s55, 0xff, vcc_lo")
        if TAGO:
            a("s_cselect_b64 s[60:61], 0, -1")
        a("s_andn2_b32 s55, s55, s54")
        a("s_cbranch_scc1 K3_SOME")
        if TMODE:
            a(f"s_sleep {TSLP}")
        else:
            a("ds_read_b32 v10, v11")
            a(f"s_sleep {TSLP}")
            a("s_waitcnt lgkmcnt(0)")
            a("v_readfirstlane_b32 s75, v10")
            a("s_and_b32 s75, s75, 15")
            a("s_cbranch_scc1 K3_POLL")
            a(f"s_sleep {PSLOW}")
        a("s_branch K3_POLL")
        a.label("K3_SOME")
        stamp(a, 1, 13)
        if PROF == 13:
            a("s_mov_b32 s89, s55")
        a("s_or_b32 s54, s54, s55")
        o_loads("")
        a.label("K3_NEXTP")
        a("s_waitcnt vmcnt(0)")
        a("s_cmp_eq_u32 s54, 0xff")
        a("s_cbranch_scc1 K3_LAST")
        c_poll()
        a.label("K3_LAST")
        if not TRIM:
            a("ds_read_b32 v10, v11")
        stamp(a, 2, 13)
        for kk in range(NW):
            guard("s55", kk, "M")
            a(f"s_bitcmp1_b32 s55, {kk}")
            a(f"s_cbranch_scc0 K3_C{kk}")
            if TAGO:
                b = FR + ((ND + kk) % D) * 16
                a(f"v_xor_b32 v12, s68, v{b+7}")
                a(f"v_xor_b32 v13, s68, v{b+15}")
                a(f"v_xor_b32 v14, s68, v{216+4*kk+3}")
                a("v_or3_b32 v12, v12, v13, v14")
                a("v_cmp_ne_u32 s[56:57], 0, v12")
                a(f"v_mov_b32 v{b+7}, v{216+4*kk}")
                a(f"v_mov_b32 v{b+15}, v{216+4*kk+1}")
                a("s_and_b64 s[56:57], s[56:57], s[60:61]")
                a(f"s_cbranch_scc1 K3_X{kk}")
            mm(ND + kk)
            a.label(f"K3_C{kk}")
            guard("s55", kk, "M", True)
        a("s_cmp_lg_u32 s54, 0xff")
        if TAGO:
            a("s_cbranch_scc0 K3_FIN")
            a("s_waitcnt vmcnt(0)")
            a("s_cmp_eq_u32 s59, 0")
            a("s_cbranch_scc1 K3_ROUND")
            a("s_mov_b32 s59, 0")
            a("s_branch K3_POLL")
            for kk in range(NW):
                a.label(f"K3_X{kk}")
                a(f"s_bitset0_b32 s54, {kk}")
                a("s_mov_b32 s59, 1")
                a(f"s_branch K3_C{kk}")
            a.label("K3_FIN")
        else:
            a("s_cbranch_scc1 K3_ROUND")
    stamp(a, 6)
    stamp(a, 2, 8)
    stamp(a, 3, 13)
    if not (TRIM and TMODE == 1 and not EARLYT):
        lds_wait(a, 11, 10, ["s_bitcmp1_b32 s75, 2"], first_read=False)
    for i in range(3, 6):
        stamp(a, i, 8)
    stamp(a, 4, 13)
    a("s_nop 7")
    part_write(a, GA, 212)
    stamp(a, 5, 13)
    a.label("K3_REDUCE")
    srd(a, 24, 64, 0x200000)
    a("s_lshl_b32 s32, s20, 6")
    a("v_add_u32 v0, s32, v2                  ; tid")
    a("v_lshrrev_b32 v7, 3, v0                ; token")
    a("v_and_b32 v5, 7, v0")
    a("v_lshlrev_b32 v6, 1, v5")
    a("v_and_b32 v8, 7, v7")
    a("v_xor_b32 v6, v6, v8")
    a("v_lshlrev_b32 v6, 4, v6")
    a("v_lshl_add_u32 v6, v7, 8, v6")
    a("v_xor_b32 v8, 16, v6")
    a("v_add_u32 v9, 0x10000, v6")
    a("v_add_u32 v10, 0x10000, v8")
    a("v_lshlrev_b32 v7, 10, v7")
    a("v_lshl_add_u32 v7, v5, 4, v7")
    a("s_lshl_b32 s32, s72, 16")
    a("s_lshl_b32 s33, s73, 7")
    a("s_add_u32 s32, s32, s33")
    a("s_waitcnt lgkmcnt(0)")
    a("s_barrier                              ; Y1")
    stamp(a, 6, 8)
    stamp(a, 6, 13)
    NP = 8 if NDEF else 4
    RB = 96
    for w in range(NP):
        off = w * 16384 if w < 4 else (w - 4) * DSTG
        r0, r1 = (6, 8) if w < 4 else (9, 10)
        if off > 65535:
            a("v_add_u32 v9, 0x8000, v9")
            a("v_add_u32 v10, 0x8000, v10")
            off -= 0x8000
        a(f"ds_read_b128 {v(RB+8*w,4)}, v{r0} offset:{off}")
        a(f"ds_read_b128 {v(RB+4+8*w,4)}, v{r1} offset:{off}")
    for w in range(1, NP):
        a(f"s_waitcnt lgkmcnt({2*(NP-1-w)})")
        for j in range(0, 8, 2):
            a(f"v_pk_add_f32 {v(RB+j,2)}, {v(RB+j,2)}, {v(RB+8*w+j,2)}")
    for j in range(0, 8, 2):
        a(f"v_cvt_pk_bf16_f32 v{16+j//2}, v{RB+j}, v{RB+j+1}")
    a("buffer_store_dwordx4 v[16:19], v7, s[24:27], s32 offen" + (" " + OUTSC if OUTSC else ""))
    if PADEND:
        pad_until(a, PADEND)
    stamp_flush(a, 8)
    a.label("K_EXIT")
    a("s_endpgm")
    a.label("K_END")

DOC = """;
"""

def main():
    hdr = open("cdna_kernels/" + NAME + ".s.ref").read().split("\n")
    top = [l for l in hdr if l.startswith(";") and "@launch" not in l]
    out = "\n".join(top) + "\n"
    out += f"; @launch grid=(256,1,1) block=(512,1,1) lds={LDS_TOTAL}\n"
    out += DOC
    out += '.amdgcn_target "amdgcn-amd-amdhsa--gfx950"\n.text\n'
    a = Asm()
    gen(a)
    out += a.text()
    out += '.section .rodata,"a"\n'
    out += kernel_desc(KNAME, 256, 102)
    path = sys.argv[1] if len(sys.argv) > 1 else "cdna_kernels/" + NAME + ".s"
    open(path, "w").write(out)

main()
```

```python
import sys, math, os
from asmlib import *

NAME = "gated_mix__softmax_full_mha__geglu_ffn__prompt"
KNAME = NAME + "_kernel"
LOG2E = 1.4426950408889634
def env(n, d): return int(os.environ.get(n, str(d)))
PROF = env("PROF", 0)
ROT = env("ROT", 1)
TAGPOS = env("TAGPOS", 0)
PADEND = env("PADEND", 0)
PADATT = env("PADATT", 0)
DBGWG = env("DBGWG", -1)
TLBW = env("TLBW", 1)
TLB0 = env("TLB0", 1)
PFW = env("PFW", 0)
PFI = env("PFI", 1)
PFX = env("PFX", 0)
KVROT = env("KVROT", 1)
AFLAG = env("AFLAG", 10)
PFC = env("PFC", 5)
ONEP = env("ONEP", 0)
FMAP = env("FMAP", 0)
NOTAG = env("NOTAG", 0)
ROT1 = env("ROT1", 2)
OUTSC = os.environ.get("OUTSC", "sc1")
GPK = env("GPK", 0)
UA = env("UA", 16)
PRE = env("PRE", 2)
QLD = env("QLD", 4)
WARMW = env("WARMW", 0)
ROT2 = env("ROT2", 1)
NDEF = env("NDEF", 0)
WARMD = env("WARMD", 1)
PSLOW = env("PSLOW", 16)
PAUSE = env("PAUSE", 1)
KVV = env("KVV", 2)
FASTX = env("FASTX", 0)
FULLF = env("FULLF", 0)
PIPE = env("PIPE", 1)
ATFLAG = env("ATFLAG", 1)
FRESH = env("FRESH", 0)
WS_FR = 0x2000000
PDEL = env("PDEL", 4)
MASKP = env("MASKP", 1)
SPAT = env("SPAT", 3)
LPRIO = env("LPRIO", 0)
FA0 = env("FA0", 13)
AFLAGQ = env("AFLAGQ", 11)
CAP = env("CAP", 20)
QS0 = env("QS0", 6)
QSD = env("QSD", 0)
TMODE = env("TMODE", 1)
GPRIO = env("GPRIO", 3)
ATFA = env("ATFA", 0)
QFIRST = env("QFIRST", 1)
HU = env("HU", -1)
KVW = env("KVW", 0)
HEARLY = env("HEARLY", 0)
HLATE = env("HLATE", -1)
HSTEP = env("HSTEP", 1)
AMIX = env("AMIX", 1)
TPIPE = env("TPIPE", 0)
TRIM = env("TRIM", 0)
TAGO = env("TAGO", 0)
OS = 3072 if TAGO else 2048
EARLYT = env("EARLYT", 0)
FAST8 = env("FAST8", 1)
FULLA = env("FULLA", 0)
ATFS = env("ATFS", 0)
TNEAR = env("TNEAR", 13)
DAH = env("DAH", 4)
GLD = env("GLD", 7)
GMA = env("GMA", 9)
FDEL = env("FDEL", 0)
FSLP = env("FSLP", 1)
QCAP = env("QCAP", 40)
KVA = env("KVA", 0)
NFILL = env("NFILL", 4)
AHD = env("AHD", 6)
ATPOLL = env("ATPOLL", 1)
HINTW = env("HINTW", 0)
TSLP = env("TSLP", 2)
SPF = env("SPF", 0)
CODEPF = env("CODEPF", 1)
SLP = env("SLP", 4)

HK = 65
AS = 113
WS_K = 0x0
WS_V = 0x210000
WS_Q = 0x420000
WS_ACT = 0x640000
WS_O = 0xD60000
WS_G = 0xF70000
WS_FL = 0xF80000
def spare(page):
    c = [b + h * HK * 1024 + 65536 for b in (WS_K, WS_V, WS_Q) for h in range(32)] + [WS_ACT + t * AS * 1024 + 112 * 1024 for t in range(64)] + [0xF60000]
    return next(x for x in c if x >> 21 == page)
FL_A = WS_FL
FL_B1 = WS_FL + 0x8000
FL_Q = WS_FL + 0x10000 - 12 * 2048
FL_B2 = WS_FL + 0x10000
FL_C = WS_FL + 0x20000
WS_STAMP = 0x1800000
WS_SIZE = 0x2800000

XS = 16384
WB = 5 * XS
WSL = 24576
LDS_GQ = 162176
LDS_OG = 163200
LDS_TAG = 163584
LDS_SYNC = LDS_TAG + 8
LDS_TOTAL = 163840
TP = 2080
LDS_V = 1024
VP = TP
LDS_WS = 137472
DSTG = 22528
LDS_Q = WB + 2 * WSL + 16384
LDS_PARK = WB + 3 * WSL
XPOS = [3, 2, 0, 1, 4, 3, 2, 0,  0, 2, 3, 4, 1, 2, 3, 4]
def xslot(c):
    return XPOS[c] * XS
def wslot(c):
    return WB + ((c % 3) * WSL if c < 8 else ((c + 3) % 4) * 16384)

SC = " sc1"
SPIN = 200000
MF = "v_mfma_f32_32x32x16_bf16"

def srd(a, d, base, nbytes):
    a(f"s_mov_b32 s{d}, s{base}")
    a(f"s_mov_b32 s{d+1}, s{base+1}")
    a(f"s_mov_b32 s{d+2}, {nbytes:#x}")
    a(f"s_mov_b32 s{d+3}, 0x20000")

def stamp(a, i, lvl=1):
    if PROF and (PROF == lvl or i in (0, 7) or (PROF == 16 and lvl == 15)):
        a("s_memrealtime s[96:97]")
        a("s_memtime s[98:99]")
        a("s_waitcnt lgkmcnt(0)")
        a(f"s_mov_b32 s{80+i}, s96")
        a(f"s_mov_b32 s{88+i}, s98")

def stamp_flush(a, n):
    if PROF:
        a("s_waitcnt vmcnt(0)")
        stamp(a, n - 1)
        a("s_lshl_b32 s78, s2, 4")
        a("s_add_u32 s78, s78, s20")
        a("s_lshl_b32 s78, s78, 6")
        a(f"s_add_u32 s78, s78, {WS_STAMP}")
        a("v_mov_b32 v1, 0")
        for i in range(n):
            a(f"v_mov_b32 v0, s{80+i}")
            a(f"buffer_store_dword v0, v1, s[28:31], s78 offen offset:{4*i}")
            a("s_nop 1")
            a(f"v_mov_b32 v0, s{88+i}")
            a(f"buffer_store_dword v0, v1, s[28:31], s78 offen offset:{32+4*i}")
            a("s_nop 1")
        a("s_waitcnt vmcnt(0)")
        if DBGWG >= 0:
            a(f"s_cmp_lg_u32 s2, {DBGWG}")
            a("s_cbranch_scc1 DBG_SKIP")
            a("s_and_b32 s78, s20, 3")
            a("s_cmp_lg_u32 s78, 0")
            a("s_cbranch_scc1 DBG_SKIP")
            a("s_mul_i32 s78, s20, 7")
            a("v_mov_b32 v1, s78")
            for i in range(1, n):
                a(f"s_sub_u32 s79, s{80+i}, s80")
                a("v_mov_b32 v0, s79")
                a(f"global_store_dword v1, v0, s[66:67] offset:{4+4*i}")
                a("s_nop 1")
            a("s_waitcnt vmcnt(0)")
            a.label("DBG_SKIP")

def pad_until(a, ticks):
    lab = a.newlabel("PAD")
    a.label(lab)
    a("s_memrealtime s[96:97]")
    a("s_waitcnt lgkmcnt(0)")
    a("s_sub_u32 s96, s96, s68")
    a(f"s_cmp_lt_u32 s96, {ticks}")
    a(f"s_cbranch_scc1 {lab}")

def flag_store(a, soff, vtmp):
    a(f"v_mov_b32 v{vtmp}, s68")
    a(f"v_mov_b32 v{vtmp+1}, s69")
    if FULLA:
        a("v_lshlrev_b32 v%d, 3, v2" % (vtmp + 2))
        a("s_mov_b64 exec, 0xffff")
    else:
        a(f"v_mov_b32 v{vtmp+2}, 0")
        a("s_mov_b64 exec, 1")
    a(f"buffer_store_dwordx2 {v(vtmp,2)}, v{vtmp+2}, s[28:31], {soff} offen sc1")
    a("s_mov_b64 exec, -1")

def poll(a, soff, voff, vtmp, slp=None):
    lab = a.newlabel("POLL")
    done = a.newlabel("POLLD")
    a(f"s_mov_b32 s74, {SPIN}")
    a.label(lab)
    a(f"buffer_load_dwordx2 {v(vtmp,2)}, v{voff}, s[28:31], {soff} offen sc1")
    a("s_waitcnt vmcnt(0)")
    a(f"v_xor_b32 v{vtmp}, s68, v{vtmp}")
    a(f"v_xor_b32 v{vtmp+1}, s69, v{vtmp+1}")
    a(f"v_or_b32 v{vtmp}, v{vtmp}, v{vtmp+1}")
    a(f"v_cmp_ne_u32 vcc, 0, v{vtmp}")
    a("s_sub_u32 s74, s74, 1")
    a("s_cmp_eq_u32 s74, 0")
    a(f"s_cbranch_scc1 {done}")
    a("s_cmp_eq_u64 vcc, 0")
    a(f"s_cbranch_scc1 {done}")
    a(f"s_sleep {SLP if slp is None else slp}")
    a(f"s_branch {lab}")
    a.label(done)

def poll_shared(a, stage, polls, vtmp, lslp=1, extra=None):
    other = a.newlabel("PSO")
    done = a.newlabel("PSD")
    a(f"v_mov_b32 v{vtmp+3}, {LDS_SYNC}")
    a("s_cmp_lg_u32 s23, 0")
    a(f"s_cbranch_scc1 {other}")
    for p in polls:
        poll(a, *p)
    if extra:
        extra()
    a(f"v_mov_b32 v{vtmp}, {stage}")
    a(f"ds_write_b32 v{vtmp+3}, v{vtmp}")
    a(f"s_branch {done}")
    a.label(other)
    a(f"s_mov_b32 s74, {SPIN*8}")
    lab = a.newlabel("PSL")
    a.label(lab)
    a(f"ds_read_b32 v{vtmp}, v{vtmp+3}")
    a("s_waitcnt lgkmcnt(0)")
    a(f"v_readfirstlane_b32 s75, v{vtmp}")
    a("s_sub_u32 s74, s74, 1")
    a("s_cmp_eq_u32 s74, 0")
    a(f"s_cbranch_scc1 {done}")
    a(f"s_cmp_ge_u32 s75, {stage}")
    a(f"s_cbranch_scc1 {done}")
    a(f"s_sleep {lslp}")
    a(f"s_branch {lab}")
    a.label(done)

def cvt_tile(a, acc, dst, lo=0, hi=16):
    for i in range(lo, hi, 2):
        a(f"v_cvt_pk_bf16_f32 v{dst + (i - lo)//2}, v{acc+i}, v{acc+i+1}")

def frag_addrs(a, sbase, R=10):
    a("v_lshrrev_b32 v4, 3, v2")
    a("v_and_b32 v5, 7, v2")
    a("v_bfe_u32 v7, v2, 4, 1")
    a("v_lshlrev_b32 v7, 2, v7")
    a("v_xor_b32 v5, v5, v7")
    a("v_lshlrev_b32 v5, 4, v5")
    a(f"v_lshl_add_u32 v{R}, v4, 10, v5")
    a(f"v_add_u32 v{R+1}, 7168, v{R}")
    a("v_bfe_u32 v4, v2, 2, 2")
    a("v_lshrrev_b32 v5, 5, v2")
    a("v_lshl_add_u32 v5, v5, 2, v4")
    a("v_lshlrev_b32 v5, 7, v5")
    a("v_lshrrev_b32 v4, 1, v4")
    a("v_lshl_add_u32 v5, v4, 6, v5")
    a("v_bfe_u32 v4, v2, 4, 1")
    a("v_lshl_add_u32 v5, v4, 5, v5")
    a("v_and_b32 v4, 3, v2")
    a("v_lshl_add_u32 v5, v4, 3, v5")
    a(f"v_xor_b32 v{R+3}, 64, v5")
    a(f"v_add_u32 v{R+2}, {sbase}, v5")
    a(f"v_add_u32 v{R+3}, {sbase}, v{R+3}")

def part_addrs(a, sbase, r):
    a(f"v_lshrrev_b32 v{r}, 5, v2")
    a(f"v_and_b32 v{r+1}, 7, v2")
    a(f"v_xor_b32 v{r}, v{r}, v{r+1}")
    a(f"v_and_b32 v{r+1}, 31, v2")
    a(f"v_lshlrev_b32 v{r+1}, 8, v{r+1}")
    a(f"v_lshl_add_u32 v{r}, v{r}, 4, v{r+1}")
    for g in range(1, 4):
        a(f"v_xor_b32 v{r+g}, {32*g}, v{r}")
    for g in range(4):
        a(f"v_add_u32 v{r+g}, {sbase}, v{r+g}")

def part_write(a, GA, r):
    for n in range(2):
        for t in range(2):
            acc = GA + (n * 2 + t) * 16
            for g in range(4):
                a(f"ds_write_b128 v{r+g}, {v(acc+4*g,4)} offset:{t*8192 + n*128}")

def lds_wait(a, vaddr, vdst, cmp_lines, first_read=True, slp=1):
    lab, done = a.newlabel("LW"), a.newlabel("LWD")
    a(f"s_mov_b32 s74, {SPIN*8}")
    if first_read:
        a(f"ds_read_b32 v{vdst}, v{vaddr}")
    a.label(lab)
    a("s_waitcnt lgkmcnt(0)")
    a(f"v_readfirstlane_b32 s75, v{vdst}")
    a("s_sub_u32 s74, s74, 1")
    a(f"s_cbranch_scc1 {done}")
    for l in cmp_lines:
        a(l)
    a(f"s_cbranch_scc1 {done}")
    a(f"s_sleep {slp}")
    a(f"ds_read_b32 v{vdst}, v{vaddr}")
    a(f"s_branch {lab}")
    a.label(done)

def vaddr_init(a, VK=40, VV0=41, VV1=42):
    a(f"v_mov_b32 v{VK}, v3")
    a("v_lshrrev_b32 v43, 5, v2")
    a("v_and_b32 v44, 15, v2")
    a("v_lshlrev_b32 v44, 4, v44")
    a("v_lshl_or_b32 v44, v43, 8, v44")
    a(f"v_add_u32 v44, {LDS_V}, v44")
    a("v_add_u32 v45, 512, v44")
    a("v_and_b32 v43, 31, v2")
    a("v_subrev_u32 v47, 20, v43")
    a("v_cmp_gt_u32 vcc, 8, v47")
    a(f"v_mov_b32 v46, {LDS_V + 1040}")
    a(f"v_mov_b32 v47, {LDS_V + 1040 + 2*VP}")
    a("v_cndmask_b32 v46, v46, v47, vcc")
    a("v_and_b32 v47, 27, v43")
    a("v_cmp_eq_u32 vcc, 16, v47")
    a("v_subrev_u32 v47, 16, v46")
    a("s_nop 0")
    a("v_cndmask_b32 v46, v46, v47, vcc")
    a("v_cmp_gt_u32 vcc, 16, v43")
    a("s_nop 1")
    a(f"v_cndmask_b32 v{VV0}, v46, v44, vcc")
    a(f"v_cndmask_b32 v{VV1}, v46, v45, vcc")

def place(a, key):
    m = env("PL_" + key, -1)
    if m >= 0:
        a.raw(".p2align 6")
        for _ in range(m):
            a("s_nop 0")

def gen(a):
    kernel_header(a, KNAME)
    if PROF == 7:
        a("s_memrealtime s[100:101]")
    a("s_cmp_ge_u32 s2, 256")
    a("s_cbranch_scc1 K_EXIT")
    if env("SHUF", 0) == 1:
        a("s_lshr_b32 s3, s2, 3")
        a("s_lshl_b32 s2, s2, 5")
        a("s_or_b32 s2, s2, s3")
        a("s_and_b32 s2, s2, 255")
    if env("SHUF", 0) == 2:
        a("s_mul_i32 s2, s2, 37")
        a("s_add_u32 s2, s2, 11")
        a("s_and_b32 s2, s2, 255")
    if env("JIT", 0):
        a("s_mul_i32 s3, s2, 2654435761")
        a("s_lshr_b32 s3, s3, 27")
        a.label("JIT_L")
        a("s_sleep 8")
        a("s_sub_u32 s3, s3, 1")
        a("s_cbranch_scc0 JIT_L")
    a("s_load_dwordx4 s[4:7], s[0:1], 0       ; x, wqkv")
    a("v_lshrrev_b32 v1, 6, v0")
    a("v_and_b32 v2, 63, v0                   ; lane")
    a("v_readfirstlane_b32 s20, v1")
    VX0, VX1, VR0, VR1, VKV = 10, 11, 12, 13, 14
    if FASTX:
        assert ROT1 == 2 and PRE == 2
        a("v_lshrrev_b32 v4, 3, v2")
        a("v_and_b32 v5, 7, v2")
        a("v_lshrrev_b32 v6, 4, v2")
        a("v_xor_b32 v7, v5, v6")
        a("v_lshlrev_b32 v7, 4, v7")
        a(f"v_lshl_add_u32 v{VX0}, v4, 10, v7")
        a(f"v_xor_b32 v{VX1}, 64, v{VX0}")
        a("s_bfe_u32 s63, s2, 0x30003")
        a("s_and_b32 s40, s2, 1")
        a("s_lshl_b32 s40, s40, 3")
        a("s_add_u32 s40, s40, s63                ; rb")
        a("s_lshl_b32 s40, s40, 2")
        a("s_and_b32 s42, s20, 3")
        a("s_add_u32 s40, s40, s42")
        a("s_lshl_b32 s40, s40, 15")
        a("s_lshl_b32 s42, s42, 12")
        a("s_lshr_b32 s37, s2, 6")
        a("s_add_u32 s37, s37, s63")
        a("s_lshl_b32 s37, s37, 1")
        a("s_lshr_b32 s38, s20, 2")
        a("s_add_u32 s37, s37, s38")
        a("s_and_b32 s37, s37, 7")
        a("s_lshl_b32 s37, s37, 7")
        a("s_add_u32 s37, s37, s40")
        a("s_cmp_lt_u32 s20, 4")
        a(f"s_mov_b32 s38, {slot_of(1)}")
        a(f"s_cselect_b32 s38, {slot_of(0)}, s38")
        a("s_add_u32 s38, s38, s42")
        a("s_mov_b32 s46, 0x200000")
        a("s_mov_b32 s47, 0x20000")
        a("s_waitcnt lgkmcnt(0)")
        a("s_mov_b64 s[44:45], s[4:5]")
        for i in range(4):
            a(f"s_add_u32 m0, s38, {i*1024}")
            a(f"s_add_u32 s39, s37, {i*8192}")
            a(f"buffer_load_dwordx4 v{VX1 if i & 1 else VX0}, s[44:47], s39 offen lds")
    a("s_load_dwordx4 s[12:15], s[0:1], 32")
    a("s_load_dwordx2 s[8:9], s[0:1], 16      ; wo")
    a("s_load_dwordx2 s[10:11], s[0:1], 80    ; ws")
    a("s_load_dwordx4 s[16:19], s[0:1], 48")
    a("s_load_dwordx4 s[64:67], s[0:1], 64")
    a("v_lshlrev_b32 v3, 4, v2                ; lane*16")
    if TLB0:
        a("s_cmp_ge_u32 s20, 4")
        a("s_cbranch_scc1 K0_NOT")
        a("s_lshr_b32 s26, s2, 3")
        a("s_add_u32 s26, s26, s20")
        a("v_mov_b32 v21, 0")
        a("s_bitcmp1_b32 s26, 0")
        a("s_waitcnt lgkmcnt(0)")
        a("s_cselect_b64 s[24:25], s[4:5], s[6:7]")
        a("s_cselect_b64 s[22:23], s[12:13], s[14:15]")
        a("s_bitcmp1_b32 s26, 1")
        a("s_cselect_b64 s[24:25], s[24:25], s[22:23]")
        a("global_load_dword v23, v21, s[24:25]")
        a.label("K0_NOT")
    stamp(a, 0)
    a("s_and_b32 s24, s2, 1                   ; xh")
    a("s_bfe_u32 s25, s2, 0x20001             ; xq")
    a("s_lshr_b32 s26, s2, 3                  ; j")
    a("s_and_b32 s63, s26, 7")
    a("s_lshl_b32 s21, s24, 3")
    a("s_add_u32 s21, s21, s63                ; rb")
    a("s_lshr_b32 s27, s26, 3")
    a("s_mul_i32 s22, s25, 3")
    a("s_add_u32 s22, s22, s27")
    if QFIRST:
        a("s_sub_u32 s22, s22, 1")
    a("s_add_u32 s23, s25, 12")
    a(f"s_cmp_eq_u32 s27, {0 if QFIRST else 3}")
    a("s_cselect_b32 s22, s23, s22            ; cb2")
    if FMAP:
        a("s_and_b32 s72, s2, 7")
        a("s_lshl_b32 s72, s72, 2")
        a("s_and_b32 s73, s26, 3")
        a("s_add_u32 s72, s72, s73                ; rb64")
        a("s_lshr_b32 s73, s26, 2                 ; cb64")
    else:
        a("s_lshl_b32 s72, s25, 3")
        a("s_add_u32 s72, s72, s63                ; rb64")
        a("s_lshl_b32 s73, s24, 2")
        a("s_add_u32 s73, s73, s27                ; cb64")
    if ROT1 == 1:
        a("s_lshl_b32 s27, s27, 1")
        a("s_add_u32 s63, s63, s27")
    elif ROT1 == 2:
        a("s_add_u32 s63, s63, s27")
        a("s_lshl_b32 s63, s63, 1")
    elif ROT1 == 3:
        a("s_add_u32 s63, s63, s27")
        a("s_lshl_b32 s63, s63, 2")
    a(f"s_and_b32 s63, s63, {7 if ROT1 else 0}")
    a("s_and_b32 s70, s2, 7")
    a("s_lshl_b32 s70, s70, 2")
    if AMIX:
        a("s_lshr_b32 s27, s26, 3")
        a("s_add_u32 s27, s27, s26")
        a("s_and_b32 s27, s27, 3")
        a("s_add_u32 s70, s70, s27                ; head")
        a("s_and_b32 s71, s26, 7                  ; qb")
    else:
        a("s_and_b32 s27, s26, 3")
        a("s_add_u32 s70, s70, s27                ; head")
        a("s_lshr_b32 s71, s26, 2                 ; qb")
    a("s_cmp_lt_u32 s20, 4")
    a("s_cbranch_scc1 K1_COMPUTE")

    a("s_sub_u32 s23, s20, 4                  ; L")
    if LPRIO:
        a(f"s_setprio {LPRIO}")
    if not FASTX:
        a("v_lshrrev_b32 v4, 3, v2")
        a("v_and_b32 v5, 7, v2")
        a("v_lshrrev_b32 v6, 4, v2")
        a("v_xor_b32 v7, v5, v6")
        a("v_lshlrev_b32 v7, 4, v7")
        a(f"v_lshl_add_u32 v{VX0}, v4, 10, v7")
        a(f"v_xor_b32 v{VX1}, 64, v{VX0}")
    a("v_and_b32 v7, 1, v6")
    a("v_lshlrev_b32 v7, 2, v7")
    a("v_xor_b32 v7, v7, v5")
    a("v_lshlrev_b32 v7, 4, v7")
    a("v_mul_u32_u24 v8, 3072, v4")
    a(f"v_add_u32 v{VKV}, v8, v7")
    a("v_mul_u32_u24 v8, 3584, v4")
    a("v_add_u32 v15, v8, v7")
    a("s_cmp_lt_u32 s22, 12")
    a("s_cselect_b64 vcc, -1, 0")
    a("s_movk_i32 s60, 3072")
    a("s_cselect_b32 s60, 3584, s60")
    a(f"v_cndmask_b32 v{VR0}, v{VKV}, v15, vcc")
    a(f"v_xor_b32 v{VR1}, 32, v{VR0}")
    a("s_cselect_b32 s32, 0, 12")
    a("s_sub_u32 s32, s22, s32")
    a("s_lshl_b32 s32, s32, 8")
    a("s_lshl_b32 s61, s22, 1")
    a("s_add_u32 s61, s61, 1")
    a("s_add_u32 s34, s22, 12")
    a("s_cmp_lt_u32 s22, 12")
    a("s_cselect_b32 s33, 0, 128              ; R1 - R0")
    a("s_cselect_b32 s61, s61, s34")
    a("s_lshl_b32 s61, s61, 7")
    a("s_mul_i32 s34, s23, 57344")
    a("s_add_u32 s61, s61, s34")
    a("s_lshl_b32 s34, s23, 4")
    a("s_mul_i32 s34, s34, s60")
    a("s_add_u32 s32, s32, s34")
    a("s_lshl_b32 s62, s60, 6")
    a("s_lshl_b32 s36, s60, 3                 ; 8 rows")
    a("s_mul_i32 s34, s23, 49152")
    a("s_lshl_b32 s35, s22, 7")
    a("s_add_u32 s34, s34, s35")
    a("s_add_u32 s34, s34, 1024")
    if not FASTX:
        a("s_lshl_b32 s40, s21, 17")
        a("s_lshl_b32 s41, s23, 15")
        a("s_add_u32 s40, s40, s41                ; x base")
        a("s_lshl_b32 s42, s23, 12")
    a("s_lshl_b32 s35, s23, 11")
    a("s_mov_b32 s43, s63                     ; kc")
    a("s_waitcnt lgkmcnt(0)")
    srd(a, 24, 4, 0x200000)
    srd(a, 44, 6, 0x180000)
    a("s_cmp_lt_u32 s22, 12")
    a("s_cselect_b64 s[48:49], s[12:13], s[6:7]")
    a("s_cselect_b64 s[52:53], s[14:15], s[6:7]")
    a("s_cselect_b32 s50, 0x1c0000, s46")
    a("s_mov_b32 s54, s50")
    a("s_mov_b32 s51, 0x20000")
    a("s_mov_b32 s55, 0x20000")
    queue = []
    def issue(c):
        ws_, xs_ = wslot(c), xslot(c)
        a("s_mul_i32 s38, s43, s62")
        a("s_add_u32 s38, s38, s32")
        for i in range(2):
            a(f"s_add_u32 m0, s35, {ws_ + i*1024}")
            a("s_add_u32 s39, s38, s33")
            a(f"buffer_load_dwordx4 v{VR0}, s[48:51], s38 offen lds")
            a(f"s_add_u32 m0, s35, {ws_ + 8192 + i*1024}")
            a("s_add_u32 s38, s38, s36")
            a(f"buffer_load_dwordx4 v{VR1}, s[52:55], s39 offen lds")
        n = 4
        if c < 8:
            a("s_mul_i32 s38, s43, 196608")
            a("s_add_u32 s38, s38, s34")
            for i in range(2):
                a(f"s_add_u32 m0, s35, {ws_ + 16384 + i*1024}")
                a(f"s_add_u32 s39, s38, {i*24576}")
                a(f"buffer_load_dwordx4 v{VKV}, s[44:47], s39 offen lds")
            n += 2
        if c < 8 or c >= 13:
            a("s_lshl_b32 s37, s43, 7")
            a("s_add_u32 s37, s37, s40")
            for i in range(4):
                a(f"s_add_u32 m0, s42, {xs_ + i*1024}")
                a(f"s_add_u32 s39, s37, {i*8192}")
                a(f"buffer_load_dwordx4 v{VX1 if i & 1 else VX0}, s[24:27], s39 offen lds")
            n += 4
        if c != 7:
            a("s_add_u32 s43, s43, " + ("1" if c < 7 else "7"))
            a("s_and_b32 s43, s43, 7")
        else:
            a("s_mov_b32 s32, s61")
            a("s_mov_b32 s33, 0")
            a("s_mov_b32 s62, 229376")
            a("s_mov_b32 s36, 28672")
            a("s_mov_b64 s[48:49], s[12:13]")
            a("s_mov_b64 s[52:53], s[14:15]")
            a("s_mov_b32 s50, 0x1c0000")
            a("s_mov_b32 s54, 0x1c0000")
            a(f"v_mov_b32 v{VR0}, v15")
            a(f"v_xor_b32 v{VR1}, 32, v15")
        queue.extend([c] * n)
    def waitq(tag):
        n = len(queue) - 1 - max(i for i, t in enumerate(queue) if t == tag)
        a(f"s_waitcnt vmcnt({n})")
    stamp(a, 2, 7)
    if PROF == 7:
        a("s_mov_b32 s81, s80")
        a("s_mov_b32 s80, s100")
    issue(0)
    stamp(a, 3, 7)
    if PRE == 2:
        issue(1)
    stamp(a, 4, 7)
    stamp(a, 1)
    srd(a, 28, 10, WS_SIZE)
    a("v_mov_b32 v9, 0")
    a("s_add_u32 s37, s2, s20")
    a("s_cmp_eq_u32 s37, 4")
    a("s_cbranch_scc0 K1_NOTAG")
    a("s_memrealtime s[56:57]")
    a("s_waitcnt lgkmcnt(0)")
    a("s_or_b32 s56, s56, 1")
    a("s_or_b32 s57, s57, 0x80000000")
    a("v_mov_b32 v4, s56")
    a("v_mov_b32 v5, s57")
    a("s_mov_b64 exec, 1")
    a("global_store_dwordx2 v9, v[4:5], s[66:67] sc1")
    a("s_mov_b64 exec, -1")
    a.label("K1_NOTAG")
    def get_tag():
        lab, done = a.newlabel("TAG"), a.newlabel("TAGD")
        a(f"s_mov_b32 s74, {SPIN}")
        a("v_readfirstlane_b32 s68, v60")
        a("v_readfirstlane_b32 s69, v61")
        a.label(lab)
        a("s_sub_u32 s74, s74, 1")
        a(f"s_cbranch_scc1 {done}")
        a("s_min_u32 s75, s68, s69")
        a("s_cmp_lg_u32 s75, 0")
        a(f"s_cbranch_scc1 {done}")
        a("global_load_dwordx2 v[60:61], v9, s[66:67] sc1")
        a("s_waitcnt vmcnt(0)")
        a("v_readfirstlane_b32 s68, v60")
        a("v_readfirstlane_b32 s69, v61")
        a("s_sleep 2")
        a(f"s_branch {lab}")
        a.label(done)
        a(f"v_mov_b32 v4, {LDS_TAG}")
        a("v_mov_b32 v60, s68")
        a("v_mov_b32 v61, s69")
        a("ds_write_b64 v4, v[60:61]")
        a("ds_write_b32 v4, v9 offset:8")
        a("ds_write_b32 v4, v9 offset:12")
        a("ds_write_b32 v4, v9 offset:16")
        a("ds_write_b32 v4, v9 offset:20")
        a("ds_write_b32 v4, v9 offset:24")
        a("ds_write_b32 v4, v9 offset:28")
        a("s_waitcnt lgkmcnt(0)")
    def flag_a(q):
        lab = a.newlabel("FA")
        a("s_cmp_lg_u32 s23, 1")
        a(f"s_cbranch_scc1 {lab}")
        if q:
            a("s_cmp_lt_u32 s22, 12")
            a(f"s_cbranch_scc1 {lab}")
        a("s_lshl_b32 s37, s22, 4")
        a("s_add_u32 s37, s37, s21")
        a("s_lshl_b32 s37, s37, 7")
        a(f"s_add_u32 s37, s37, {FL_Q if q else FL_A}")
        stamp(a, 2 if q else 1, 14)
        flag_store(a, "s37", 16)
        a.label(lab)
    def kv_setup():
        a("v_and_b32 v5, 15, v2")
        a("v_lshlrev_b32 v5, 7, v5")
        a("v_bfe_u32 v6, v2, 4, 1")
        a("v_lshl_add_u32 v5, v6, 14, v5")
        a("s_and_b32 s56, s2, 7")
        a("s_lshr_b32 s57, s56, 1")
        a("s_add_u32 s57, s57, 12")
        a("s_sub_u32 s57, s57, s56")
        a("s_lshl_b32 s57, s57, 11")
        a("s_lshl_b32 s58, s71, 8")
        a("s_add_u32 s57, s57, s58")
        a(f"s_add_u32 s57, s57, {FL_Q - FL_A}")
        a("v_and_b32 v6, 1, v2")
        a("v_lshlrev_b32 v6, 7, v6")
        a("v_add_u32 v6, s57, v6")
        a("v_cmp_gt_u32 vcc, 32, v2")
        a("s_lshl_b32 s56, s56, 11")
        a(f"s_add_u32 s56, s56, {FL_A}")
        a("v_cndmask_b32 v5, v6, v5, vcc")
        a(f"s_mul_i32 s57, s70, {HK*1024}")
        a("s_lshl_b32 s58, s23, 10")
        a("s_add_u32 s57, s57, s58                ; head*64K + L*1K")
        a(f"s_add_u32 s57, s57, {WS_K}")
        a(f"s_mul_i32 s58, s23, {TP}")
    def kv_loads(lo, hi):
        n = hi - lo
        a(f"s_mul_i32 s44, s71, {n}")
        a("s_lshr_b32 s44, s44, 3")
        for i in range(n):
            a(f"s_mul_i32 s45, s44, {4*TP}")
            a("s_add_u32 s45, s45, s58")
            a(f"s_add_u32 m0, s45, {lo*4*TP}")
            a("s_lshl_b32 s37, s44, 12")
            a("s_add_u32 s37, s37, s57")
            a(f"s_add_u32 s38, s37, {lo*4096}")
            a(f"buffer_load_dwordx4 v3, s[28:31], s38 offen{SC} lds")
            a(f"s_add_u32 m0, s45, {lo*4*TP + 1024}")
            a(f"s_add_u32 s38, s37, {lo*4096 + WS_V - WS_K}")
            a(f"buffer_load_dwordx4 v3, s[28:31], s38 offen{SC} lds")
            if i < n - 1:
                a("s_add_u32 s44, s44, 1")
                a(f"s_cmp_eq_u32 s44, {n}")
                a("s_cselect_b32 s44, 0, s44")
        queue.extend(["kv"] * (2 * n))
    def q_loads():
        a(f"s_mul_i32 s37, s70, {HK}")
        a("s_lshl_b32 s38, s71, 3")
        a("s_add_u32 s37, s37, s38")
        a("s_lshl_b32 s38, s23, 1")
        a("s_add_u32 s37, s37, s38")
        a("s_lshl_b32 s37, s37, 10")
        a("s_lshl_b32 s38, s23, 11")
        a(f"s_add_u32 m0, s38, {LDS_Q}")
        a(f"s_add_u32 s37, s37, {WS_Q}")
        a(f"buffer_load_dwordx4 v3, s[28:31], s37 offen{SC} lds")
        a(f"buffer_load_dwordx4 v3, s[28:31], s37 offen offset:1024{SC} lds")
    a(f"v_mul_u32_u24 v36, {VP}, v2")
    a(f"v_add_u32 v36, {LDS_V + 1024}, v36")
    for i in range(4):
        a(f"v_mov_b32 v{40+i}, 0x3f803f80")
        a(f"v_mov_b32 v{44+i}, 0")
    a(f"s_mul_i32 s37, s23, {3*2048}")
    a(f"s_add_u32 s37, s37, {LDS_WS}")
    frag_addrs(a, "s37", 248)
    a("s_lshl_b32 s37, s23, 14")
    part_addrs(a, "s37", 212)
    kv_setup()
    for c in range(13):
        waitq(c)
        if c == 6:
            get_tag()
        if c < 2:
            stamp(a, c + 5, 7)
        if c < 6:
            stamp(a, c + 1, 2)
        if 6 <= c < 12:
            stamp(a, c - 5, 3)
        a(f"s_barrier                              ; b({c})")
        if c == 8:
            stamp(a, 2)
            stamp(a, 1, 15)
        if c == 4:
            a("global_load_dwordx2 v[60:61], v9, s[66:67] sc1")
        if c == AFLAG:
            flag_a(False)
        if c == AFLAGQ:
            flag_a(True)
        if c <= 8:
            issue(c + 2)
        if 8 <= c <= 12:
            issue(c + 3)
        if c == PFC:
            a("s_bitcmp1_b32 s23, 0")
            a("s_cselect_b64 s[40+36:41+36], s[14:15], s[12:13]".replace("s[40+36:41+36]", "s[92:93]"))
            a("s_mov_b32 s94, 0x1c0000")
            a("s_mov_b32 s95, 0x20000")
            a("v_and_b32 v16, 31, v2")
            a("v_mul_u32_u24 v16, 3584, v16")
            a("s_mul_i32 s37, s23, 57344")
            a("s_sub_u32 s37, s61, s37")
            a("s_and_b32 s38, s21, 7")
            a("s_lshl_b32 s38, s38, 1")
            a("s_lshr_b32 s39, s23, 1")
            a("s_add_u32 s38, s38, s39")
            a("s_mul_i32 s38, s38, 114688")
            a("s_add_u32 s37, s37, s38")
            a("buffer_load_dword v17, v16, s[92:95], s37 offen")
            queue.append("pf")
        if c == GLD:
            srd(a, 44, 18, 1024)
            a("s_lshl_b32 s76, s21, 4")
            a("s_add_u32 s76, s76, s22")
            a("s_lshl_b32 s76, s76, 2")
            a("s_add_u32 s76, s76, s23")
            a("s_lshl_b32 s37, s76, 11")
            a("buffer_load_dwordx4 v[64:67], v3, s[44:47], 0 offen")
            a("buffer_load_dwordx4 v[24:27], v3, s[24:27], s37 offen")
            a("buffer_load_dwordx4 v[28:31], v3, s[24:27], s37 offen offset:1024")
            queue.extend(["g"] * 3)
        if c == GMA:
            waitq("g")
            a("v_mov_b32 v32, 0")
            a("v_mov_b32 v33, 0")
            for q in range(4):
                a(f"v_dot2_f32_bf16 v32, v{24+q}, v{64+q}, v32")
                a(f"v_dot2_f32_bf16 v33, v{28+q}, v{64+q}, v33")
            a("s_nop 2")
            a("v_permlane32_swap_b32 v32, v33")
            a("s_nop 1")
            a("v_add_f32 v32, v32, v33")
            for ctl in ("quad_perm:[1,0,3,2]", "quad_perm:[2,3,0,1]", "row_half_mirror", "row_mirror"):
                a("s_nop 1")
                a(f"v_add_f32_dpp v32, v32, v32 {ctl} row_mask:0xf bank_mask:0xf")
            a("v_mov_b32 v33, v32")
            a("s_nop 1")
            a("v_permlane16_swap_b32 v32, v33")
            a("s_nop 1")
            a("v_add_f32 v32, v32, v33")
            a(f"v_mul_f32 v32, {fh(-LOG2E)}, v32")
            a("v_exp_f32 v32, v32")
            a("v_lshrrev_b32 v70, 5, v2")
            a("v_add_f32 v32, 1.0, v32")
            a("v_rcp_f32 v68, v32")
            a("v_lshlrev_b32 v70, 3, v70")
    a(f"v_mov_b32 v22, {LDS_SYNC + 16}")
    a("v_mov_b32 v23, 16")
    waitq(14)
    a("s_barrier                              ; b(13)")
    if AFLAGQ == 13:
        flag_a(True)
    a("s_waitcnt vmcnt(0)")
    a("s_mov_b64 exec, 1")
    a("ds_add_u32 v22, v23")
    a("s_mov_b64 exec, -1")
    stamp(a, 2, 15)
    a(f"v_mov_b32 v19, {LDS_SYNC}")
    a("s_cmp_lg_u32 s23, 0")
    a("s_cbranch_scc1 KV_OTHER")
    if FDEL:
        a(f"s_sleep {FDEL}")
    a(f"s_mov_b32 s74, {SPIN}")
    a("s_mov_b32 s77, 0")
    if ATFA:
        a("s_mov_b32 vcc_lo, -1")
        a("s_mov_b32 vcc_hi, 3")
    a.label("KV_POLL")
    if ATFA:
        a("v_mov_b32 v8, 0")
        a("v_mov_b32 v9, 0")
        a("s_mov_b64 exec, vcc")
        a("buffer_atomic_or_x2 v[8:9], v5, s[28:31], s56 offen sc0 sc1")
    else:
        a("buffer_load_dwordx2 v[8:9], v5, s[28:31], s56 offen sc1")
    a("s_waitcnt vmcnt(0)")
    a("v_cmp_ne_u64 vcc, s[68:69], v[8:9]")
    if ATFA:
        a("s_mov_b64 exec, -1")
    a("s_sub_u32 s74, s74, 1")
    a("s_cselect_b64 vcc, 0, vcc")
    a("s_cmp_lg_u32 vcc_lo, 0")
    a("s_cbranch_scc1 KV_AGAIN")
    a("s_cmp_eq_u32 vcc_hi, 0")
    a("s_cselect_b32 s75, 2, 1")
    a("v_mov_b32 v16, s75")
    a("ds_write_b32 v19, v16")
    a("s_cmp_lg_u32 s77, 0")
    a("s_mov_b32 s77, s75")
    a("s_cbranch_scc1 KV_HAVE")
    stamp(a, 3, 15)
    kv_loads(0, 3)
    a.label("KV_HAVE")
    a("s_cmp_eq_u32 s77, 2")
    a("s_cbranch_scc1 KV_Q")
    a.label("KV_AGAIN")
    a(f"s_sleep {FSLP}")
    a("s_branch KV_POLL")
    a.label("KV_OTHER")
    lds_wait(a, 19, 16, ["s_cmp_ge_u32 s75, 1"])
    kv_loads(0, 3)
    lds_wait(a, 19, 16, ["s_cmp_ge_u32 s75, 2"])
    a.label("KV_Q")
    if KVW:
        a("s_cmp_lt_u32 s23, 2")
        a("s_cbranch_scc1 KV_NW")
        a(f"s_mul_i32 s37, s70, {HK*1024}")
        a(f"s_mul_i32 s38, s71, {52*128}")
        a("s_add_u32 s37, s37, s38")
        a("s_and_b32 s38, s23, 1")
        a(f"s_mul_i32 s38, s38, {WS_V - WS_K}")
        a("s_add_u32 s37, s37, s38")
        a(f"s_add_u32 s37, s37, {WS_K + 12*1024}")
        a("v_min_u32 v16, 51, v2")
        a("v_lshlrev_b32 v16, 7, v16")
        a(f"buffer_load_dword v17, v16, s[28:31], s37 offen{SC}")
        a.label("KV_NW")
    stamp(a, 4, 15)
    q_loads()
    a("s_branch K2_GEMM")

    a.label("K1_COMPUTE")
    AF = 96
    AK = 224
    def accF(sw, i, t):
        return AF + ((sw * 2 + i) * 2 + t) * 16
    XA = [4, 5, 6, 7]
    WA = [8, 9]
    KA = 10
    a("s_and_b32 s23, s20, 1                  ; tp")
    a("s_lshr_b32 s24, s20, 1                 ; grp")
    a("v_bfe_u32 v16, v2, 4, 1                ; gsel")
    a("v_lshrrev_b32 v17, 5, v2               ; h")
    a("v_bfe_u32 v18, v2, 2, 2                ; r")
    a("v_and_b32 v19, 3, v2                   ; c")
    a("v_lshl_add_u32 v20, v17, 3, v18        ; 8h+r")
    a("v_and_b32 v21, 31, v2")
    a("v_lshlrev_b32 v21, 7, v21")
    a("v_bfe_u32 v22, v2, 1, 3")
    a("v_xor_b32 v22, v22, v17")
    a("v_lshl_add_u32 v21, v22, 4, v21")
    a("s_lshl_b32 s25, s23, 13")
    a(f"s_add_u32 s25, s25, {xslot(0)}")
    for s_ in range(4):
        a(f"v_xor_b32 v{XA[s_]}, {32*s_}, v21")
        a(f"v_add_u32 v{XA[s_]}, s25, v{XA[s_]}")
    a("v_lshlrev_b32 v20, 7, v20")
    a("v_lshl_add_u32 v20, v19, 3, v20        ; row*128 + c*8")
    a("v_lshrrev_b32 v21, 1, v18")
    a("v_xor_b32 v21, s24, v21                ; grp ^ (r>>1)")
    a("v_lshl_add_u32 v20, v21, 6, v20")
    a("v_lshl_add_u32 v20, v16, 5, v20")
    a(f"v_add_u32 v{KA}, {wslot(0) + 16384}, v20")
    a("v_lshl_add_u32 v20, v16, 13, v20")
    a("v_xor_b32 v21, 32, v20")
    a(f"v_add_u32 v{WA[0]}, {wslot(0)}, v20")
    a(f"v_add_u32 v{WA[1]}, {wslot(0)}, v21")
    a("v_and_b32 v11, 0x33, v2")
    a("v_bfe_u32 v17, v2, 2, 1")
    a("v_lshl_or_b32 v11, v17, 3, v11")
    a("v_bfe_u32 v17, v2, 3, 1")
    a("v_lshl_or_b32 v11, v17, 2, v11")
    a("v_lshlrev_b32 v11, 4, v11              ; K voffset")
    a("s_cmp_lt_u32 s22, 8")
    a("s_cbranch_scc1 K1_KOFF")
    a(f"v_mul_u32_u24 v11, {HK*1024}, v16")
    a("v_lshrrev_b32 v18, 5, v2")
    a("v_lshl_or_b32 v11, v18, 8, v11")
    a("v_and_b32 v18, 15, v2")
    a("v_lshl_or_b32 v11, v18, 4, v11         ; V voffset")
    a.label("K1_KOFF")
    vaddr_init(a)
    a("s_lshl_b32 s33, s20, 8")
    a(f"s_add_u32 s33, s33, {LDS_GQ}")
    a("v_and_b32 v40, 31, v2")
    a("v_lshlrev_b32 v40, 2, v40")
    a("v_add_u32 v40, s33, v40")
    a("s_lshl_b32 s33, s20, 11")
    a(f"s_add_u32 s33, s33, {LDS_Q}")
    a("v_add_u32 v43, s33, v3")
    a("s_lshl_b32 s60, s20, 10")
    a(f"s_add_u32 s60, s60, {LDS_PARK}")
    a("v_add_u32 v44, s60, v3")
    a("ds_write_b128 v44, v[40:43]")
    for i in range(160):
        a(f"v_mov_b32 v{AF+i}, 0")
    a("s_waitcnt lgkmcnt(0)")
    srd(a, 28, 10, WS_SIZE)
    if TLBW:
        a("v_mov_b32 v21, 0")
        for w in range(4):
            lab = a.newlabel("TLB")
            a(f"s_cmp_lg_u32 s20, {w}")
            a(f"s_cbranch_scc1 {lab}")
            for pg in (2 * w, 2 * w + 1):
                a(f"s_mov_b32 s33, {spare(pg):#x}")
                a("buffer_load_dword v22, v21, s[28:31], s33 offen sc1")
            if w == 0:
                a("s_lshl_b32 s33, s72, 16")
                a("s_lshl_b32 s34, s73, 7")
                a("s_add_u32 s33, s33, s34")
                a("v_mov_b32 v20, s33")
                a("global_load_dword v22, v20, s[64:65] sc1")
            else:
                a(f"global_load_dword v22, v21, s[{(16, 8, 18)[w-1]}:{(17, 9, 19)[w-1]}]")
            a.label(lab)
    if CODEPF:
        a("s_getpc_b64 s[50:51]")
        a.label("PC_HERE")
        a(f"s_sub_u32 s50, s50, PC_HERE-{KNAME}")
        a("s_subb_u32 s51, s51, 0")
        a("s_lshr_b32 s49, s2, 3")
        a("s_lshl_b32 s49, s49, 2")
        a("s_add_u32 s49, s49, s20")
        a("s_lshl_b32 s49, s49, 9")
        a("v_lshlrev_b32 v21, 3, v2")
        a("v_add_u32 v21, s49, v21")
        a(f"v_min_u32 v21, K_END-{KNAME}-4, v21")
        a("global_load_dword v21, v21, s[50:51]")
    a("s_lshl_b32 s32, s21, 2")
    a("s_lshl_b32 s33, s23, 1")
    a("s_add_u32 s32, s32, s33                ; tt0")
    a("s_and_b32 s36, s22, 7")
    a("s_lshl_b32 s36, s36, 2")
    a("s_lshl_b32 s37, s24, 1")
    a("s_add_u32 s36, s36, s37")
    a(f"s_mul_i32 s36, s36, {HK}")
    a("s_add_u32 s36, s36, s32")
    a("s_lshl_b32 s36, s36, 10")
    a("s_cmp_lt_u32 s22, 8")
    a(f"s_mov_b32 s38, {WS_V}")
    a(f"s_cselect_b32 s38, {WS_K}, s38")
    a("s_movk_i32 s37, 512")
    a(f"s_cselect_b32 s37, {HK*1024}, s37")
    a("s_add_u32 s36, s36, s38")
    a("s_add_u32 s37, s37, s36")
    a("s_mov_b32 s25, 0")
    tab = sum(((XPOS[c + 1] - XPOS[c]) & 15) << (4 * c) for c in range(8))
    a(f"s_mov_b32 s61, {tab:#x}")
    a("s_mov_b32 s26, 8")
    BB = [24, 44]
    def reads(s_, buf, kv):
        L = [f"ds_read_b128 {v(buf,4)}, v{XA[s_]}"]
        for t in range(2):
            for u in range(2):
                L.append(f"ds_read_b64_tr_b16 {v(buf+8+4*t+2*u,2)}, v{WA[t]} offset:{(16*s_+4*u)*128}")
            if t == 0:
                L.append(f"ds_read_b128 {v(buf+4,4)}, v{XA[s_]} offset:4096")
        if kv:
            for u in range(2):
                L.append(f"ds_read_b64_tr_b16 {v(buf+16+2*u,2)}, v{KA} offset:{(16*s_+4*u)*128}")
        return L
    def mfs(buf, sw, vtype):
        L = []
        for t in range(2):
            for i in range(2):
                acc = accF(sw, i, t)
                L.append(f"{MF} {v(acc,16)}, {v(buf+8+4*t,4)}, {v(buf+4*i,4)}, {v(acc,16)}")
        if sw == 0:
            for i in range(2):
                acc = AK + 16 * i
                A_, B_ = v(buf + 16, 4), v(buf + 4 * i, 4)
                if vtype:
                    A_, B_ = B_, A_
                L.append(f"{MF} {v(acc,16)}, {A_}, {B_}, {v(acc,16)}")
        return L
    def sweep(name, sw, vtype):
        a.raw(".p2align 6")
        place(a, "S1")
        a.label(name)
        kv = sw == 0
        nr = 8 if kv else 6
        for s_ in range(4):
            upd = []
            if s_ == 2:
                upd = ["s_add_u32 s25, s25, 1", "s_cmp_eq_u32 s25, 3", f"s_mov_b32 s27, {WSL}",
                       f"s_cselect_b32 s27, {(-2*WSL) & 0xffffffff:#x}, s27", "s_cselect_b32 s25, 0, s25",
                       "s_bfe_i32 s33, s61, 0x40000", "s_lshr_b32 s61, s61, 4", "s_lshl_b32 s33, s33, 14"]
                upd += [f"v_add_u32 v{r}, s27, v{r}" for r in WA + [KA]] + [f"v_add_u32 v{r}, s33, v{r}" for r in XA]
            if s_ == 1 and sw == 1:
                upd = [f"s_cmp_lg_u32 s26, {17 - AFLAG}", f"s_cbranch_scc1 {name}_ND", "s_waitcnt vmcnt(0)", f"{name}_ND:"]
            M = mfs(BB[s_ & 1], sw, vtype)
            if s_ < 3:
                R = reads(s_ + 1, BB[(s_ + 1) & 1], kv)
                seq = [f"s_waitcnt lgkmcnt({nr-4})", M[0], R[0], R[1], M[1], R[2], R[3], "s_waitcnt lgkmcnt(4)", M[2], R[4], R[5]]
                if kv:
                    seq += [M[3], R[6], R[7], M[4]] + upd[:10] + [M[5]] + upd[10:]
                elif s_ == 1:
                    seq += [M[3]] + upd
                else:
                    seq += upd[:5] + [M[3]] + upd[5:]
            else:
                R = reads(0, BB[0], kv)
                tail = ["s_sub_u32 s26, s26, 1", "s_cmp_lg_u32 s26, 0"]
                seq = [f"s_waitcnt lgkmcnt({nr-4})", M[0], "s_waitcnt lgkmcnt(0)", "s_barrier", R[0], M[1], R[1], R[2], R[3], M[2], R[4], R[5]]
                if kv:
                    seq += [M[3], R[6], R[7], M[4]] + tail + [M[5]]
                else:
                    seq += tail + [M[3]]
            for l in seq:
                a(l)
        a(f"s_cbranch_scc1 {name}")
    if FASTX:
        a(f"s_waitcnt vmcnt({1 if CODEPF else 0})")
    a("s_barrier                              ; b(0)")
    stamp(a, 1)
    for l in reads(0, BB[0], True):
        a(l)
    a("s_cmp_lt_u32 s22, 8")
    a("s_cbranch_scc0 SW1V")
    sweep("SW1K", 0, False)
    a("s_branch K1_KVEPI")
    sweep("SW1V", 0, True)
    a.label("K1_KVEPI")
    a("s_waitcnt vmcnt(0)")
    stamp(a, 2)
    c0 = -2.0 * 0.7978845608028654 * LOG2E
    c1 = c0 * 0.044715
    T = 64
    TB = 16
    def gelu_tile(acc, out, pk):
        L = []
        if pk:
            for j in range(0, 8, 2):
                L.append(f"v_pk_mul_f32 {v(TB+j,2)}, {v(acc+j,2)}, {v(acc+j,2)}")
            for j in range(0, 8, 2):
                L.append(f"v_pk_fma_f32 {v(TB+j,2)}, {v(TB+j,2)}, s[34:35], v[12:13]")
            for j in range(0, 8, 2):
                L.append(f"v_pk_mul_f32 {v(TB+j,2)}, {v(TB+j,2)}, {v(acc+j,2)}")
            for j in range(8):
                L.append(f"v_exp_f32 v{TB+j}, v{TB+j}")
            for j in range(0, 4, 2):
                L.append(f"v_pk_mul_f32 {v(acc+8+j,2)}, {v(acc+8+j,2)}, {v(acc+j,2)}")
            for j in range(0, 8, 2):
                L.append(f"v_pk_add_f32 {v(TB+j,2)}, {v(TB+j,2)}, v[14:15]")
            for j in range(8):
                L.append(f"v_rcp_f32 v{TB+j}, v{TB+j}")
            for j in range(4, 8, 2):
                L.append(f"v_pk_mul_f32 {v(acc+8+j,2)}, {v(acc+8+j,2)}, {v(acc+j,2)}")
            for j in range(0, 8, 2):
                L.append(f"v_pk_mul_f32 {v(acc+8+j,2)}, {v(acc+8+j,2)}, {v(TB+j,2)}")
        else:
            for j in range(8):
                L.append(f"v_mul_f32 v{TB+j}, v{acc+j}, v{acc+j}")
            for j in range(8):
                L.append(f"v_fma_f32 v{TB+j}, v{TB+j}, s34, v12")
            for j in range(8):
                L.append(f"v_mul_f32 v{TB+j}, v{TB+j}, v{acc+j}")
            for j in range(8):
                L.append(f"v_exp_f32 v{TB+j}, v{TB+j}")
                L.append(f"v_mul_f32 v{acc+8+j}, v{acc+8+j}, v{acc+j}")
            for j in range(8):
                L.append(f"v_add_f32 v{TB+j}, 1.0, v{TB+j}")
            for j in range(8):
                L.append(f"v_rcp_f32 v{TB+j}, v{TB+j}")
                if j >= 2:
                    L.append(f"v_mul_f32 v{acc+8+j-2}, v{acc+8+j-2}, v{TB+j-2}")
            L.append(f"v_mul_f32 v{acc+14}, v{acc+14}, v{TB+6}")
            L.append(f"v_mul_f32 v{acc+15}, v{acc+15}, v{TB+7}")
        for j in range(0, 8, 2):
            L.append(f"v_cvt_pk_bf16_f32 v{out + j//2}, v{acc+8+j}, v{acc+8+j+1}")
        return L
    def kv_fill():
        L = []
        for i in range(2):
            for j in range(0, 16, 2):
                L.append(f"v_cvt_pk_bf16_f32 v{T + 8*i + j//2}, v{AK+16*i+j}, v{AK+16*i+j+1}")
                if j == 6:
                    L.append(f"buffer_store_dwordx4 {v(T+8*i,4)}, v11, s[28:31], s36 offen offset:{i*1024}{SC}")
            L.append(f"buffer_store_dwordx4 {v(T+8*i+4,4)}, v11, s[28:31], s37 offen offset:{i*1024}{SC}")
        return L
    def q_fill():
        L = []
        for t in range(2):
            for i in range(2):
                acc = accF(0, i, t)
                for hf in range(2):
                    for j in range(8):
                        L.append(f"v_mul_f32 v{acc+8*hf+j}, s34, v{acc+8*hf+j}")
                    for j in range(0, 8, 2):
                        L.append(f"v_cvt_pk_bf16_f32 v{acc+8*hf+j//2}, v{acc+8*hf+j}, v{acc+8*hf+j+1}")
                    L.append(f"s_add_u32 s39, s38, {WS_Q + (t + 4*hf) * HK * 1024}\nbuffer_store_dwordx4 {v(acc+8*hf,4)}, v3, s[28:31], s39 offen offset:{i*1024}{SC}")
        return L
    def cost(l):
        return 8 if l.startswith(("v_exp", "v_rcp")) else 4
    def sweep2(fill, early, qtype, ecap):
        nm = "SQ" if qtype else "SR"
        place(a, "S2")
        F = list(fill)
        late = {}
        if qtype and QSD:
            qs = [l for l in F[20:] if "buffer_store" in l]
            F = F[:20] + [l for l in F[20:] if "buffer_store" not in l]
            early = len(F)
            late = {QS0 + (i * QSD) // 2: [] for i in range(8)}
            for i, l in enumerate(qs):
                late[QS0 + (i * QSD) // 2].append((i, l))
        nlate = [0]
        pos = [0]
        def take(fixed, st):
            used = sum(4 for l in fixed if l.startswith(("ds_", "v_")))
            out = []
            while pos[0] < len(F) and st >= 1:
                cap = ecap if pos[0] < early else CAP
                if used + cost(F[pos[0]]) > cap:
                    break
                used += cost(F[pos[0]])
                out.append(F[pos[0]])
                pos[0] += 1
            return fixed + out
        for c in range(8, 16):
            dx = (xslot(c + 1) - xslot(c)) & 0xffffffff if c < 15 else 0
            dw = (wslot(c + 1) - wslot(c)) & 0xffffffff if c < 15 else 0
            for s_ in range(4):
                st = (c - 8) * 4 + s_
                M = mfs(BB[s_ & 1], 1, False)
                ux = lambda k: [f"v_add_u32 v{XA[k]}, {dx:#x}, v{XA[k]}"] if c < 15 else []
                if s_ < 3:
                    R = reads(s_ + 1, BB[(s_ + 1) & 1], False)
                    last = ux(s_ + 1) + (ux(0) if s_ == 0 else [])
                    if s_ == 2 and c < 15:
                        last += [f"v_add_u32 v{r}, {dw:#x}, v{r}" for r in WA]
                    if s_ == 2 and c == 14:
                        last += ["ds_read_b32 v10, v0"]
                    seq = (["s_waitcnt lgkmcnt(2)", M[0]] + take(R[0:2], st) + [M[1]] + take(R[2:4], st) +
                           ["s_waitcnt lgkmcnt(4)", M[2]] + take(R[4:6], st) + [M[3]] + take(last, st))
                else:
                    R = reads(0, BB[0], False) if c < 15 else []
                    g0 = take(R[:1], st)
                    dr = []
                    nst = sum("buffer_store" in l for l in F[:pos[0]]) + nlate[0]
                    if c + 1 == AFLAG:
                        assert nst >= 4
                        dr = [f"s_waitcnt vmcnt({nst - 4})"]
                    if c + 1 == AFLAGQ and qtype:
                        assert pos[0] >= early and nst == 12
                        dr = ["s_waitcnt vmcnt(0)"]
                    sync = ["s_barrier"] if c < 13 else (["s_mov_b64 exec, 1", "ds_add_u32 v0, v1", "s_mov_b64 exec, -1"] if c == 15 else [])
                    if c == 14:
                        sync = ["v_readfirstlane_b32 s75, v10", "s_bitcmp1_b32 s75, 6", f"s_cbranch_scc0 {nm}_W", f"{nm}_B:"]
                    seq = (["s_waitcnt lgkmcnt(2)", M[0]] + g0[len(R[:1]):] + dr + ["s_waitcnt lgkmcnt(0)"] + sync + R[:1] + [M[1]] +
                           take(R[1:4], st) + [M[2]] + take(R[4:], st) + [M[3]] + take([], st))
                for i_, l in late.get(st, []):
                    assert pos[0] >= 20 + 12 * (i_ + 1), (st, i_, pos[0])
                    seq.append(l)
                    nlate[0] += 1
                for l in seq:
                    if l == "s_barrier" and PROF in (10, 11, 12) and 0 <= c - (8 if PROF != 11 else 10) < 6:
                        if PROF == 12:
                            stamp(a, c - 8 + 1, 12)
                        a(l)
                        stamp(a, c - 8 + 1, 10)
                        stamp(a, c - 10 + 1, 11) if c >= 10 else None
                    else:
                        a(l)
        for l in F[pos[0]:]:
            a(l)
        sys.stderr.write(f"sweep2: {len(F) - pos[0]} of {len(F)} fillers left over\n")
    a(f"v_mov_b32 v0, {LDS_SYNC + 16}")
    a("v_mov_b32 v1, 1")
    a(f"v_mov_b32 v16, {LDS_TAG}")
    a("ds_read_b64 v[18:19], v16")
    a(f"v_mov_b32 v12, {fh(c0)}")
    a("v_mov_b32 v13, v12")
    a("v_mov_b32 v14, 1.0")
    a("v_mov_b32 v15, 1.0")
    a("s_waitcnt lgkmcnt(0)")
    a("v_readfirstlane_b32 s68, v18")
    a("v_readfirstlane_b32 s69, v19")
    a("s_cmp_lt_u32 s22, 12")
    a("s_cbranch_scc1 SW2R")
    a(f"s_mov_b32 s34, {fh(LOG2E*0.25)}")
    a("s_sub_u32 s38, s22, 12")
    a("s_lshl_b32 s38, s38, 3")
    a("s_lshl_b32 s39, s24, 1")
    a("s_add_u32 s38, s38, s39")
    a(f"s_mul_i32 s38, s38, {HK}")
    a("s_add_u32 s38, s38, s32")
    a("s_lshl_b32 s38, s38, 10")
    F = kv_fill() + q_fill()
    sweep2(F, len(F), True, QCAP)
    a("s_branch K1_GE2")
    a.label("SW2R")
    a(f"s_mov_b32 s34, {fh(c1)}")
    a("s_mov_b32 s35, s34")
    if HEARLY:
        a(f"s_mul_i32 s40, s32, {AS}")
        a("s_lshl_b32 s41, s22, 3")
        a("s_add_u32 s40, s40, s41")
        a("s_lshl_b32 s41, s24, 1")
        a("s_add_u32 s40, s40, s41")
        a("s_lshl_b32 s40, s40, 10")
        a(f"s_add_u32 s40, s40, {WS_ACT}")
        a(f"s_add_u32 s41, s40, {AS*1024}")
    F = kv_fill()
    ne = len(F)
    F2 = []
    for i in range(2):
        for t in range(2):
            if i * 2 + t < NFILL:
                F += gelu_tile(accF(0, i, t), 80 + 4 * (i * 2 + t), GPK)
                if HEARLY:
                    F.append(f"buffer_store_dwordx4 {v(80 + 4*(i*2+t),4)}, v3, s[28:31], s{40+i} offen offset:{t*1024}{SC}")
            else:
                F2 += gelu_tile(accF(0, i, t), 80 + 4 * (i * 2 + t), True)
    sweep2(F, ne, False, CAP)
    for l in F2:
        a(l)
    a.label("K1_GE2")
    stamp(a, 3)
    a("v_add_u32 v44, s60, v3")
    a("ds_read_b128 v[40:43], v44")
    a(f"s_mov_b32 s34, {fh(c1)}")
    a("s_mov_b32 s35, s34")
    a(f"s_mul_i32 s36, s32, {AS}")
    a("s_lshl_b32 s37, s22, 3")
    a("s_lshl_b32 s38, s22, 2")
    a("s_add_u32 s38, s38, 44")
    a("s_cmp_lt_u32 s22, 12")
    a("s_cselect_b32 s37, s37, s38")
    a("s_add_u32 s36, s36, s37")
    a("s_lshl_b32 s37, s24, 1")
    a("s_add_u32 s36, s36, s37")
    a("s_lshl_b32 s36, s36, 10")
    a(f"s_add_u32 s36, s36, {WS_ACT}")
    a(f"s_add_u32 s37, s36, {AS*1024}")
    a("s_add_u32 s38, s36, 4096")
    a("s_add_u32 s39, s37, 4096")
    hst = []
    if HLATE >= 0:
        srd(a, 40, 10, WS_SIZE)
        a("s_cmp_lt_u32 s22, 12")
        a(f"s_cselect_b32 s36, s36, {WS_SIZE}")
        a(f"s_cselect_b32 s37, s37, {WS_SIZE}")
    a("s_cmp_lt_u32 s22, 12")
    a("s_cbranch_scc0 K1_GE3")
    for i in range(2):
        for t in range(2):
            if not (HEARLY and i * 2 + t < NFILL):
                if HLATE >= 0:
                    hst.append(f"buffer_store_dwordx4 {v(80 + 4*(i*2+t),4)}, v3, s[40:43], s{36+i} offen offset:{t*1024}{SC}")
                else:
                    a(f"buffer_store_dwordx4 {v(80 + 4*(i*2+t),4)}, v3, s[28:31], s{36+i} offen offset:{t*1024}{SC}")
    place(a, "GE")
    a.label("K1_GE3")
    for t in range(2):
        for i in range(2):
            out = 64 + 4 * (i * 2 + t)
            for l in gelu_tile(accF(1, i, t), out, True)[(-4 if (env("X_NOGE2", 0) and t == 0) else 0):]:
                a(l)
            if HLATE >= 0:
                hst.append(f"buffer_store_dwordx4 {v(out,4)}, v3, s[40:43], s{38+i} offen offset:{t*1024}{SC}")
            else:
                a(f"buffer_store_dwordx4 {v(out,4)}, v3, s[28:31], s{38+i} offen offset:{t*1024}{SC}")

    a.label("K2_ATTN")
    Q = [8, 12]
    G = [4, 5]
    KB = [16, 20]
    VB = [[24, 28], [32, 36]]
    IDX = 6
    VK, VV0, VV1 = 40, 41, 42
    C = [96, 112]
    S = [128, 144]
    P = [160, 176]
    O = [192, 208]
    a(f"v_mov_b32 v{IDX}, 0xdddd")
    def zero_state():
        for i in range(4):
            a(f"v_mov_b32 v{VB[1][1]+i}, 0")
        a("s_nop 1")
        for r in (O[0], O[1], P[1]):
            a(f"{MF} {v(r,16)}, {v(VB[1][1],4)}, {v(VB[1][1],4)}, 0")
    zero_state()
    a("s_mov_b32 s26, 0")
    a("s_waitcnt lgkmcnt(0)")
    a(f"v_mov_b32 v7, v{VK}                    ; g address")
    a(f"v_mov_b32 v{VK}, v3")
    stamp(a, 1, 16)
    a("s_barrier                              ; X1")
    stamp(a, 2, 16)
    a("s_setprio 2")
    stamp(a, 4)
    stamp(a, 1, 9)
    a(f"ds_read_b128 {v(Q[0],4)}, v43")
    a(f"ds_read_b128 {v(KB[0],4)}, v{VK}")
    a(f"ds_read_b128 {v(Q[1],4)}, v43 offset:1024")
    a("s_waitcnt lgkmcnt(0)")
    for q in range(2):
        a(f"{MF} {v(S[q],16)}, {v(KB[0],4)}, {v(Q[q],4)}, 0")
    a("s_nop 7")
    a("s_nop 3")
    def maxtree(src, dst, acc=False):
        if acc:
            for i in range(0, 16, 2):
                a(f"v_max3_f32 v{dst}, v{src+i}, v{src+i+1}, v{dst}")
        else:
            a(f"v_max_f32 v{dst}, v{src}, v{src+1}")
            for i in range(2, 16, 2):
                a(f"v_max3_f32 v{dst}, v{src+i}, v{src+i+1}, v{dst}")
    for q in range(2):
        maxtree(S[q], 44 + q)
    a.label("K2_SETMAX")
    a(f"ds_read_b128 {v(KB[0],4)}, v{VK}")
    a(f"ds_read_b128 {v(VB[0][0],4)}, v{VV0}")
    a(f"ds_read_b128 {v(VB[0][1],4)}, v{VV1}")
    a(f"ds_read_b128 {v(KB[1],4)}, v{VK} offset:{TP}")
    for q in range(2):
        a(f"v_mov_b32 v{46+q}, v{44+q}")
    a("s_nop 1")
    for q in range(2):
        a(f"v_permlane32_swap_b32 v{44+q}, v{46+q}")
    for q in range(2):
        a(f"v_min_f32 v{44+q}, -v{44+q}, -v{46+q}     ; -max")
    for i in range(0, 16, 2):
        a(f"v_pk_mov_b32 {v(C[0]+i,2)}, v[44:45], v[44:45] op_sel:[0,0]")
    a("s_waitcnt lgkmcnt(0)")
    a("s_nop 0")
    a(f"{MF} {v(S[0],16)}, {v(KB[0],4)}, {v(Q[0],4)}, {v(C[0],16)}")
    for i in range(0, 16, 2):
        a(f"v_pk_mov_b32 {v(C[1]+i,2)}, v[44:45], v[44:45] op_sel:[1,1]")
    a("s_nop 3")
    stamp(a, 2, 9)
    if HU < 0:
        a("s_cmp_lg_u32 s26, 0")
        a("s_cbranch_scc1 K2_NOBAR")
        a("s_waitcnt vmcnt(0)")
        a("s_barrier")
        a.label("K2_NOBAR")
    else:
        a("s_lshl_b32 s27, 1, s20")
        a("v_mov_b32 v48, s27")
    stamp(a, 3, 9)
    stamp(a, 3, 16)
    if PROF == 16:
        a("s_mov_b32 s89, 0")
        a("s_mov_b32 s90, 0")
    if PADATT:
        pad_until(a, PADATT)
    U = UA
    assert U in (8, 16)
    a(f"s_mov_b32 s27, {64 // U - 1}")
    a("s_mov_b32 s77, 2")
    a(f"v_mov_b32 v46, {LDS_SYNC + 12}")
    a.raw(".p2align 6")
    place(a, "A")
    a.label("K2_LOOP")
    def exps(q, lo, hi):
        for i in range(lo, hi):
            a(f"v_exp_f32 v{P[q]+i}, v{S[q]+i}")
    def smf(q, vb, half):
        a(f"v_smfmac_f32_32x32x32_bf16 {v(O[q],16)}, {v(vb,4)}, {v(P[q]+8*half,8)}, v{IDX}")
    for u in range(U):
        b = u & 1
        a(f"{MF} {v(S[1],16)}, {v(KB[b],4)}, {v(Q[1],4)}, {v(C[1],16)}")
        if u == 8:
            a("s_bitcmp1_b32 s75, s77")
            a("s_cbranch_scc0 K2_KVM")
            a.label("K2_MID")
        if HLATE >= 0 and u >= HLATE and (u - HLATE) % HSTEP == 0 and (u - HLATE) // HSTEP < len(hst):
            assert u + 2 < HU
            a(hst[(u - HLATE) // HSTEP])
        exps(0, 0, 5)
        smf(1, VB[b ^ 1][1], 1)
        if u == 8:
            a("s_add_u32 s77, s77, 4")
            a("s_min_u32 s77, s77, 14")
        if u == TNEAR and EARLYT:
            a("s_mov_b64 exec, 1")
            a(f"ds_write_b32 v46, v{VK} offset:8")
            a("s_mov_b64 exec, -1")
        a(f"ds_read_b128 {v(VB[b^1][0],4)}, v{VV0} offset:{(u+1)*VP}")
        exps(0, 5, 11)
        smf(0, VB[b][0], 0)
        if u == HU:
            a("s_waitcnt vmcnt(0)")
            a("s_mov_b64 exec, 1")
            a("ds_or_b32 v46, v48 offset:8")
            a("s_mov_b64 exec, -1")
        a(f"ds_read_b128 {v(VB[b^1][1],4)}, v{VV1} offset:{(u+1)*VP}")
        exps(0, 11, 16)
        a(f"{MF} {v(S[0],16)}, {v(KB[b^1],4)}, {v(Q[0],4)}, {v(C[0],16)}")
        a(f"ds_read_b128 {v(KB[b],4)}, v{VK} offset:{(u+2)*TP}")
        exps(1, 0, 5)
        smf(0, VB[b][1], 1)
        if u % 8 == 7:
            a("ds_read_b32 v47, v46")
        exps(1, 5, 11)
        smf(1, VB[b][0], 0)
        a("s_waitcnt lgkmcnt(0)")
        if u == U - 1:
            a(f"v_add_u32 v{VK}, {U*TP}, v{VK}")
            a(f"v_add_u32 v{VV0}, {U*VP}, v{VV0}")
            a(f"v_add_u32 v{VV1}, {U*VP}, v{VV1}")
        if u % 8 == 7:
            a("v_readfirstlane_b32 s75, v47")
        exps(1, 11, 16)
        if u == 7:
            mid_check = True
    a("s_bitcmp1_b32 s75, s77")
    a("s_cbranch_scc0 K2_KVW")
    a.label("K2_NEXT")
    if HLATE >= 0:
        a("s_mov_b32 s42, 0")
    a("s_add_u32 s77, s77, 4")
    a("s_min_u32 s77, s77, 14")
    if PROF in (9, 16):
        a("s_memrealtime s[96:97]")
        a("s_memtime s[98:99]")
        a("s_waitcnt lgkmcnt(0)")
        for it, sl in (((3, 4), (2, 5), (1, 6)) if PROF == 9 else ((3, 4), (1, 5), (0, 6))):
            a(f"s_cmp_eq_u32 s27, {it}")
            a(f"s_cselect_b32 s{80+sl}, s96, s{80+sl}")
            a(f"s_cselect_b32 s{88+sl}, s98, s{88+sl}")
    a("s_sub_u32 s27, s27, 1")
    a("s_cbranch_scc0 K2_LOOP")
    a("s_nop 1")
    smf(1, VB[(U - 1) & 1][1], 1)
    stamp(a, 5)
    stamp(a, 1, 8)
    stamp(a, 1, 13)
    a(f"v_mov_b32 v46, {LDS_SYNC + 4}")
    a("ds_read_b32 v47, v46")
    a(f"ds_read_b32 v{G[0]}, v7")
    a(f"ds_read_b32 v{G[1]}, v7 offset:128")
    a("s_lshl_b32 s24, s71, 2")
    a("s_add_u32 s24, s24, s20")
    a("s_lshl_b32 s24, s24, 5")
    a("s_add_u32 s24, s24, s70")
    a(f"s_mul_i32 s25, s24, {OS}" if TAGO else "s_lshl_b32 s25, s24, 11")
    a(f"s_add_u32 s25, s25, {WS_O}")
    a("v_mov_b32 v48, 0")
    a("v_mov_b32 v49, 0")
    a(f"v_pk_mul_f32 v[44:45], {v(O[0],2)}, v[48:49]")
    for i in range(2, 10, 2):
        a(f"v_pk_fma_f32 v[44:45], {v(O[0]+i,2)}, v[48:49], v[44:45]")
    for i in range(0, 10, 2):
        a(f"v_pk_fma_f32 v[44:45], {v(O[1]+i,2)}, v[48:49], v[44:45]")
    a(f"v_mul_f32 v50, {fh(2.0**68)}, v{O[0]+8}")
    a(f"v_mul_f32 v51, {fh(2.0**68)}, v{O[1]+8}")
    a("v_pk_fma_f32 v[44:45], v[50:51], v[48:49], v[44:45]")
    a("v_cmp_u_f32 vcc, v44, v45")
    a("s_nop 1")
    a("s_cmp_eq_u64 vcc, 0")
    a("s_cbranch_scc0 K2_FB")
    a.label("K2_FIN")
    for q in range(2):
        a(f"v_rcp_f32 v{48+q}, v{O[q]+8}")
    a(f"s_mov_b32 s74, {SPIN*8}")
    a.label("K2_GW")
    a("s_waitcnt lgkmcnt(0)")
    a("v_readfirstlane_b32 s75, v47")
    a("s_sub_u32 s74, s74, 1")
    a("s_cmp_eq_u32 s74, 0")
    a("s_cbranch_scc1 K2_GOK")
    a("s_cmp_ge_u32 s75, 64")
    a("s_cbranch_scc1 K2_GOK")
    a("s_sleep 1")
    a("ds_read_b32 v47, v46")
    a(f"ds_read_b32 v{G[0]}, v7")
    a(f"ds_read_b32 v{G[1]}, v7 offset:128")
    a("s_branch K2_GW")
    a.label("K2_GOK")
    for q in range(2):
        a(f"v_mul_f32 v{44+2*q}, v{48+q}, v{G[q]}")
    GR = S[0]
    a(f"v_mov_b32 v{GR+8}, s68")
    a(f"v_mov_b32 v{GR+9}, s69")
    a(f"v_mov_b32 v{GR+10}, s68")
    a(f"v_mov_b32 v{GR+11}, s69")
    if TAGO:
        for r in (3, 7, 14, 15):
            a(f"v_mov_b32 v{GR+r}, s68")
    for q in range(2):
        for i in range(0, 8, 2):
            a(f"v_pk_mul_f32 {v(O[q]+i,2)}, {v(O[q]+i,2)}, {v(44+2*q,2)} op_sel_hi:[1,0]")
        for i in range(0, 8, 2):
            a(f"v_cvt_pk_bf16_f32 v{GR + 12 + q if (TAGO and i == 6) else GR + 4*q + i//2}, v{O[q]+i}, v{O[q]+i+1}")
        a(f"buffer_store_dwordx4 {v(GR+4*q,4)}, v3, s[28:31], s25 offen offset:{q*1024}{SC}")
    if TAGO:
        a(f"buffer_store_dwordx4 {v(GR+12,4)}, v3, s[28:31], s25 offen offset:2048{SC}")
    if FRESH:
        a("s_lshl_b32 s24, s24, 12")
        a(f"s_add_u32 s24, s24, {WS_FR}")
        a("v_lshlrev_b32 v45, 7, v2")
    else:
        a("s_lshl_b32 s24, s24, 7")
        a(f"s_add_u32 s24, s24, {FL_C}")
    a(f"v_mov_b32 v46, {LDS_SYNC + 8}")
    a("v_mov_b32 v47, 1")
    a("s_mov_b64 exec, 1")
    a("ds_add_u32 v46, v47")
    a("s_mov_b64 exec, -1")
    NSD = min(NDEF, 11)
    if NDEF:
        srd(a, 44, 16, 0x1c0000)
        a(f"s_mul_i32 s53, s20, {DSTG}")
        a("s_add_u32 s53, s53, 0x10000")
        frag_addrs(a, "s53")
        part_addrs(a, "s53", 240)
        a(f"s_mul_i32 s32, s20, {NDEF}")
        a(f"s_add_u32 s32, s32, {4*(28-NDEF)}")
        a(f"s_mul_i32 s33, s72, {2*AS*1024}")
        a("s_lshl_b32 s34, s32, 10")
        a("s_add_u32 s33, s33, s34")
        a(f"s_add_u32 s33, s33, {WS_ACT}")
        a(f"s_add_u32 s34, s33, {AS*1024}")
        a("s_lshl_b32 s35, s32, 14")
        a("s_lshl_b32 s36, s73, 7")
        a("s_add_u32 s35, s35, s36")
        a("v_and_b32 v4, 31, v2")
        a("v_lshlrev_b32 v4, 2, v4")
        a(f"v_add_u32 v4, {LDS_OG}, v4")
        a("ds_read_b32 v244, v4")
        a("ds_read_b32 v246, v4 offset:128")
        a("ds_read_b32 v47, v46")
    stamp(a, 2, 13)
    if not TAGO:
        a("s_waitcnt vmcnt(0)")
    stamp(a, 3, 13)
    if FULLF:
        a("s_mov_b64 exec, 0xff")
        a(f"buffer_store_dwordx4 {v(GR+8,4)}, v3, s[28:31], s24 offen sc1")
    elif FRESH:
        a("s_mov_b32 exec_hi, 0")
        a(f"buffer_store_dwordx2 {v(GR+8,2)}, v45, s[28:31], s24 offen sc1")
    elif ATFLAG:
        a("s_mov_b64 exec, 1")
        a(f"buffer_atomic_swap_x2 {v(GR+8,2)}, v3, s[28:31], s24 offen sc1")
    else:
        a("s_mov_b64 exec, 1")
        a(f"buffer_store_dwordx2 {v(GR+8,2)}, v3, s[28:31], s24 offen sc1")
    a("s_mov_b64 exec, -1")
    a("s_setprio 0")
    stamp(a, 6)
    stamp(a, 2, 8)
    if NDEF:
        lds_wait(a, 46, 47, ["s_and_b32 s75, s75, 255", "s_cmp_ge_u32 s75, 68"], first_read=False)
        a("v_mov_b32 v248, v46")
        a("v_mov_b32 v249, 256")
        DA_, DW_, DC_ = 144, 80, 16
        dq = []
        def dw(k):
            a(f"s_add_u32 m0, s53, {(k % NSD) * 2048}")
            a("s_nop 0")
            a("buffer_load_dwordx4 v10, s[44:47], s35 offen lds")
            a("buffer_load_dwordx4 v11, s[44:47], s35 offen offset:1024 lds")
            a("s_add_u32 s35, s35, 16384")
            dq.extend([k] * 2)
        def da(k):
            for t in range(2):
                a(f"buffer_load_dwordx4 {v(DA_+8*k+4*t,4)}, v3, s[28:31], s{33+t} offen offset:{(k%4)*1024}{SC}")
            if k % 4 == 3:
                a("s_add_u32 s33, s33, 4096")
                a("s_add_u32 s34, s34, 4096")
            dq.extend([k] * 2)
        def dwait(k):
            a(f"s_waitcnt vmcnt({len(dq) - 1 - max(i for i, t in enumerate(dq) if t == k)})")
        def drd(k):
            b = DW_ + 8 * (k & 1)
            for n in range(2):
                for u in range(2):
                    a(f"ds_read_b64_tr_b16 {v(b+4*n+2*u,2)}, v{12+n} offset:{(k % NSD) * 2048 + u*1024}")
        AH = min(AHD, NDEF)
        for k in range(AH):
            dw(k); da(k)
        dwait(0)
        stamp(a, 3, 8)
        drd(0)
        for k in range(NDEF):
            if k + AH < NDEF:
                dw(k + AH); da(k + AH)
            if k + 1 < NDEF:
                dwait(k + 1)
                if k + 3 == NDEF:
                    a("s_mov_b64 exec, 1")
                    a("ds_add_u32 v248, v249")
                    a("s_mov_b64 exec, -1")
                drd(k + 1)
                a("s_waitcnt lgkmcnt(4)")
            else:
                a("s_waitcnt lgkmcnt(0)")
            b = DW_ + 8 * (k & 1)
            for n in range(2):
                for t in range(2):
                    acc = DC_ + (n * 2 + t) * 16
                    cin = "0" if k == 0 else v(acc, 16)
                    a(f"{MF} {v(acc,16)}, {v(b+4*n,4)}, {v(DA_+8*k+4*t,4)}, {cin}")
        stamp(a, 4, 8)
        a("s_nop 7")
        for n in range(2):
            for t in range(2):
                acc = DC_ + (n * 2 + t) * 16
                if n + t == 0:
                    a("s_nop 1")
                for j in range(0, 16, 2):
                    a(f"v_pk_mul_f32 {v(acc+j,2)}, {v(acc+j,2)}, {v(244+2*t,2)} op_sel_hi:[1,0]")
                for g in range(4):
                    a(f"ds_write_b128 v{240+g}, {v(acc+4*g,4)} offset:{t*8192 + n*128}")
        stamp(a, 5, 8)
    a("s_branch K3_REDUCE")
    a.label("K2_FB")
    a("s_cmp_lg_u32 s26, 0")
    a("s_cbranch_scc1 K2_FIN")
    a("s_waitcnt lgkmcnt(0)")
    a("s_mov_b32 s26, 100")
    vaddr_init(a)
    zero_state()
    a("v_mov_b32 v44, 0xff800000")
    a("v_mov_b32 v45, 0xff800000")
    a("v_mov_b32 v43, v3")
    a("s_mov_b32 s27, 64")
    a.label("K2_MAXLOOP")
    a(f"ds_read_b128 {v(KB[0],4)}, v43")
    a(f"v_add_u32 v43, {TP}, v43")
    a("s_waitcnt lgkmcnt(0)")
    for q in range(2):
        a(f"{MF} {v(S[q],16)}, {v(KB[0],4)}, {v(Q[q],4)}, 0")
    a("s_nop 7")
    a("s_nop 7")
    for q in range(2):
        maxtree(S[q], 44 + q, acc=True)
    a("s_sub_u32 s27, s27, 1")
    a("s_cmp_lg_u32 s27, 0")
    a("s_cbranch_scc1 K2_MAXLOOP")
    a("s_branch K2_SETMAX")
    for nm in ("SQ", "SR"):
        a.label(nm + "_W")
        lds_wait(a, 0, 10, ["s_bitcmp1_b32 s75, 6"])
        a(f"s_branch {nm}_B")
    for lab, back in (("K2_KVW", "K2_NEXT"), ("K2_KVM", "K2_MID"))[:U // 8]:
        a.label(lab)
        if PROF == 16:
            a("s_memtime s[100:101]")
        lds_wait(a, 46, 47, ["s_bitcmp1_b32 s75, s77"])
        if PROF == 16:
            a("s_memtime s[98:99]")
            a("s_waitcnt lgkmcnt(0)")
            a("s_sub_u32 s98, s98, s100")
            a("s_add_u32 s89, s89, s98")
            a("s_lshl_b32 s98, 1, s77")
            a("s_or_b32 s90, s90, s98")
        a(f"s_branch {back}")

    a.label("K2_GEMM")
    ND, NW = 28 - NDEF, 8
    NG = ND // 4
    NS = env('NSW', 3)
    srd(a, 44, 16, 0x1c0000)
    srd(a, 48, 8, 0x80000)
    if FMAP:
        a("s_and_b32 s42, s72, 3")
        a("s_lshl_b32 s42, s42, 1")
        a("s_add_u32 s42, s42, s73")
    else:
        a("s_lshr_b32 s42, s2, 3")
        a("s_and_b32 s43, s42, 7")
        a("s_lshr_b32 s42, s42, 3")
        a("s_lshl_b32 s42, s42, 1")
        a("s_add_u32 s42, s42, s43")
    for _ in range(-(-14 // NG) - 1):
        a(f"s_cmp_ge_u32 s42, {NG}")
        a(f"s_cselect_b32 s43, {NG}, 0")
        a("s_sub_u32 s42, s42, s43")
    if not ROT:
        a("s_mov_b32 s42, 0")
    a("s_mov_b32 s52, s42")
    a(f"s_mul_i32 s32, s23, {ND}")
    a("s_lshl_b32 s43, s42, 2")
    a("s_add_u32 s32, s32, s43")
    a(f"s_mul_i32 s33, s72, {2*AS*1024}")
    a(f"s_add_u32 s33, s33, {WS_ACT}")
    a("s_lshl_b32 s43, s32, 10")
    a("s_add_u32 s33, s33, s43")
    a(f"s_add_u32 s34, s33, {AS*1024}")
    a("s_lshl_b32 s43, s73, 7")
    a("s_lshl_b32 s35, s32, 14")
    a("s_add_u32 s35, s35, s43")
    a("s_lshl_b32 s39, s23, 17")
    a("s_add_u32 s39, s39, s43")
    a(f"s_mul_i32 s53, s23, {3*2048}")
    a(f"s_add_u32 s53, s53, {LDS_WS}")
    GA = 16
    FR = 80
    D = 8
    queue = []
    def ld(dst, sr, k, tag):
        a(f"buffer_load_dwordx4 {v(dst,4)}, v3, s[28:31], s{sr} offen offset:{(k%4)*1024}{SC}")
        queue.append(tag)
    def aloads(k):
        b = FR + (k % D) * 16
        ld(b + 4, 33, k, ("a", k)); ld(b + 12, 34, k, ("a", k))
        if k % 4 == 3:
            a("s_add_u32 s42, s42, 1")
            a(f"s_cmp_eq_u32 s42, {NG}")
            a("s_movk_i32 s43, 4096")
            a(f"s_cselect_b32 s43, {(-(NG-1)*4096) & 0xffffffff:#x}, s43")
            a("s_cselect_b32 s42, 0, s42")
            for sr in (33, 34):
                a(f"s_add_u32 s{sr}, s{sr}, s43")
    def wloads(k):
        a(f"s_add_u32 m0, s53, {(k % NS) * 2048}")
        sr, rs = (35, 44) if k < ND else (39, 48)
        a("s_nop 0")
        a(f"buffer_load_dwordx4 v248, s[{rs}:{rs+3}], s{sr} offen lds")
        a(f"buffer_load_dwordx4 v249, s[{rs}:{rs+3}], s{sr} offen offset:1024 lds")
        queue.extend([("w", k)] * 2)
        a(f"s_add_u32 s{sr}, s{sr}, 16384")
        if k < ND and k % 4 == 3:
            a("s_add_u32 s52, s52, 1")
            a(f"s_cmp_eq_u32 s52, {NG}")
            a(f"s_cselect_b32 s43, {(-ND*16384) & 0xffffffff:#x}, 0")
            a("s_cselect_b32 s52, 0, s52")
            a("s_add_u32 s35, s35, s43")
    def waitfor(*tags):
        n = len(queue) - 1 - max(i for i, t in enumerate(queue) if t in tags)
        a(f"s_waitcnt vmcnt({n})")
    def wreads(k):
        b = FR + (k % D) * 16
        for n in range(2):
            for u in range(2):
                a(f"ds_read_b64_tr_b16 {v(b+8*n+2*u,2)}, v{250+n} offset:{(k % NS) * 2048 + u*1024}")
    def mm(k):
        b = FR + (k % D) * 16
        for n in range(2):
            for t in range(2):
                acc = GA + (n * 2 + t) * 16
                cin = "0" if k == 0 else v(acc, 16)
                a(f"{MF} {v(acc,16)}, {v(b+8*n,4)}, {v(b+4+8*t,4)}, {cin}")
    stamp(a, 3)
    a(f"v_mov_b32 v22, {LDS_SYNC + 16}")
    lds_wait(a, 22, 23, ["s_bitcmp1_b32 s75, 2"])
    a("ds_write_b128 v36, v[40:43]")
    a("ds_write_b128 v36, v[44:47] offset:16")
    a(f"ds_write_b128 v36, v[40:43] offset:{2*VP}")
    a(f"ds_write_b128 v36, v[44:47] offset:{2*VP+16}")
    if KVV == 1:
        kv_loads(3, 5)
    a(f"s_waitcnt vmcnt({4 if KVV == 1 else 0}) lgkmcnt(0)")
    stamp(a, 5, 15)
    if KVV >= 3:
        kv_loads(3, 5)
    if KVV >= 4:
        kv_loads(5, 7)
    a("s_barrier                              ; X1")
    a(f"s_setprio {GPRIO}")
    stamp(a, 6, 15)
    if KVV == 2:
        kv_loads(3, 5)
    if KVV < 4:
        kv_loads(5, 7)
    else:
        kv_loads(7, 9)
    def b1_flag():
        a("s_cmp_lg_u32 s23, 1")
        a("s_cbranch_scc1 K2_NOB1")
        a("s_lshl_b32 s37, s21, 4")
        a("s_add_u32 s37, s37, s22")
        a("s_lshl_b32 s37, s37, 7")
        a(f"s_add_u32 s37, s37, {FL_B1}")
        flag_store(a, "s37", 16)
        a.label("K2_NOB1")
    if HU < 0:
        a("s_barrier                              ; X2")
        b1_flag()
    a(f"v_mov_b32 v34, {LDS_SYNC + 12}")
    def arrived(stage, n):
        a(f"v_mov_b32 v35, {1 << (4 * stage)}")
        a(f"s_waitcnt vmcnt({n})")
        a("s_mov_b64 exec, 1")
        a("ds_add_u32 v34, v35")
        a("s_mov_b64 exec, -1")
    if KVV < 4:
        kv_loads(7, 9)
    arrived(0, 8)
    arrived(1, 4)
    if HU >= 0 and HLATE < 0:
        a(f"v_mov_b32 v22, {LDS_SYNC + 20}")
        lds_wait(a, 22, 23, ["s_cmp_eq_u32 s75, 15"])
        b1_flag()
    kv_loads(9, 12)
    arrived(2, 6)
    kv_loads(12, 16)
    srd(a, 44, 16, 0x1c0000)
    arrived(3, 0)
    a("v_mov_b32 v69, s68")
    a("s_lshl_b32 s55, s76, 4")
    a(f"s_add_u32 s55, s55, {WS_G}")
    a("s_mov_b32 exec_lo, 1")
    a("s_mov_b32 exec_hi, 1")
    a(f"buffer_store_dwordx2 v[68:69], v70, s[28:31], s55 offen{SC}")
    a("s_mov_b64 exec, -1")
    if HLATE >= 0:
        a(f"v_mov_b32 v22, {LDS_SYNC + 20}")
        lds_wait(a, 22, 23, ["s_cmp_eq_u32 s75, 15"], slp=4)
        b1_flag()
    if WARMW and FMAP:
        a("s_lshr_b32 s54, s2, 3")
        a("s_lshl_b32 s54, s54, 2")
        a("s_add_u32 s54, s54, s23")
        a("s_mul_i32 s55, s54, 14336")
        a("v_min_u32 v14, 55, v2")
        a("v_lshlrev_b32 v14, 7, v14")
        a("buffer_load_dword v15, v14, s[44:47], s55 offen")
        a("s_add_u32 s55, s55, 7168")
        a("buffer_load_dword v15, v14, s[44:47], s55 offen")
        a("s_lshl_b32 s55, s54, 12")
        a("v_and_b32 v14, 31, v2")
        a("v_lshlrev_b32 v14, 7, v14")
        a("buffer_load_dword v15, v14, s[48:51], s55 offen")
    elif WARMW:
        a("s_lshr_b32 s54, s2, 3")
        a("s_and_b32 s54, s54, 7")
        a("s_lshl_b32 s55, s54, 2")
        a("s_add_u32 s55, s55, s23")
        a("s_mul_i32 s55, s55, 57344")
        a("s_add_u32 s55, s55, s43")
        a("v_min_u32 v14, 55, v2")
        a("v_lshlrev_b32 v14, 10, v14")
        a("buffer_load_dword v15, v14, s[44:47], s55 offen")
        a("s_lshl_b32 s55, s54, 2")
        a("s_add_u32 s55, s55, s23")
        a("s_lshl_b32 s55, s55, 14")
        a("s_add_u32 s55, s55, s43")
        a("v_and_b32 v14, 15, v2")
        a("v_lshlrev_b32 v14, 10, v14")
        a("buffer_load_dword v15, v14, s[48:51], s55 offen")
    for k in range(NS):
        wloads(k)
    a("s_setprio 3")
    a("v_and_b32 v6, 15, v2")
    a("v_lshlrev_b32 v6, 7, v6")
    a("s_lshr_b32 s24, s72, 1")
    a("s_lshl_b32 s24, s24, 11")
    a(f"s_add_u32 s24, s24, {FL_B1}")
    poll_shared(a, 3, [("s24", 6, 8, 4)], 20, lslp=4)
    a("v_and_b32 v6, 31, v2")
    a("v_lshlrev_b32 v6, 3, v6")
    a("v_lshlrev_b32 v7, 3, v2")
    a("s_lshl_b32 s54, s72, 9")
    a(f"s_add_u32 s54, s54, {WS_G}")
    a("s_lshl_b32 s55, s71, 2")
    a("s_add_u32 s55, s55, s23")
    a("s_lshl_b32 s55, s55, 9")
    a(f"s_add_u32 s55, s55, {WS_G}")
    a(f"s_mov_b32 s74, {SPIN}")
    a.label("K2_GL")
    a(f"buffer_load_dwordx2 v[240:241], v6, s[28:31], s54 offen{SC}")
    a(f"buffer_load_dwordx2 v[242:243], v6, s[28:31], s54 offen offset:256{SC}")
    a(f"buffer_load_dwordx2 v[244:245], v7, s[28:31], s55 offen{SC}")
    a("s_waitcnt vmcnt(0)")
    a("v_xor_b32 v8, s68, v241")
    a("v_xor_b32 v9, s68, v243")
    a("v_xor_b32 v14, s68, v245")
    a("v_or3_b32 v8, v8, v9, v14")
    a("v_cmp_ne_u32 vcc, 0, v8")
    a("s_sub_u32 s74, s74, 1")
    a("s_cbranch_scc1 K2_GD")
    a("s_cmp_eq_u64 vcc, 0")
    a("s_cbranch_scc1 K2_GD")
    a("s_sleep 4")
    a("s_branch K2_GL")
    a.label("K2_GD")
    a("s_lshl_b32 s55, s23, 8")
    a(f"s_add_u32 s55, s55, {LDS_GQ}")
    a("v_lshrrev_b32 v7, 1, v7")
    a("v_add_u32 v7, s55, v7")
    a("ds_write_b32 v7, v244")
    a("v_sub_f32 v240, 1.0, v240")
    a("v_sub_f32 v242, 1.0, v242")
    a("v_lshrrev_b32 v6, 1, v6")
    a(f"v_add_u32 v6, {LDS_OG}, v6")
    a("ds_write_b32 v6, v240")
    a("ds_write_b32 v6, v242 offset:128")
    a(f"v_mov_b32 v8, {LDS_SYNC + 4}")
    a("v_mov_b32 v9, 16")
    a("s_waitcnt lgkmcnt(0)")
    a("s_mov_b64 exec, 1")
    a("ds_add_u32 v8, v9")
    a("s_mov_b64 exec, -1")
    stamp(a, 4)
    stamp(a, 6, 16)
    DA = DAH
    a("s_setprio 0")
    place(a, "D")
    for k in range(DA):
        aloads(k)
    for k in range(ND + NW):
        waitfor(("w", k), ("a", k))
        wreads(k)
        a("s_waitcnt lgkmcnt(0)")
        if k + NS < ND + NW:
            wloads(k + NS)
        if k + DA < ND:
            aloads(k + DA)
        if k < ND:
            mm(k)
    a("s_setprio 3")
    if NDEF and WARMD:
        assert FMAP
        a(f"s_mul_i32 s33, s72, {2*AS*1024}")
        a("s_lshr_b32 s34, s23, 1")
        a(f"s_mul_i32 s34, s34, {AS*1024}")
        a("s_add_u32 s33, s33, s34")
        a("s_lshl_b32 s34, s73, 1")
        a("s_and_b32 s35, s23, 1")
        a("s_add_u32 s34, s34, s35")
        a(f"s_mul_i32 s34, s34, {NDEF*256}")
        a("s_add_u32 s33, s33, s34")
        a(f"s_add_u32 s33, s33, {WS_ACT + 4*ND*1024}")
        a(f"v_min_u32 v14, {2*NDEF-1}, v2")
        a("v_lshlrev_b32 v14, 7, v14")
        a(f"buffer_load_dword v15, v14, s[28:31], s33 offen{SC}")
        a("s_and_b32 s34, s72, 3")
        a("s_lshl_b32 s34, s34, 2")
        a("s_add_u32 s34, s34, s23")
        a(f"s_mul_i32 s34, s34, {NDEF*4096}")
        a("s_lshl_b32 s35, s73, 7")
        a("s_add_u32 s34, s34, s35")
        a(f"s_add_u32 s34, s34, {4*ND*16384}")
        a(f"v_min_u32 v14, {4*NDEF-1}, v2")
        a("v_lshlrev_b32 v14, 10, v14")
        a("buffer_load_dword v15, v14, s[44:47], s34 offen")
    a("s_nop 7")
    a("s_nop 7")
    for n in range(2):
        for t in range(2):
            acc = GA + (n * 2 + t) * 16
            for j in range(16):
                a(f"v_mul_f32 v{acc+j}, v{acc+j}, v{240+2*t}")
    a("s_lshl_b32 s24, s72, 2")
    a("s_add_u32 s24, s24, s23")
    a(f"s_mul_i32 s24, s24, {8*OS}" if TAGO else "s_lshl_b32 s24, s24, 14")
    a(f"s_add_u32 s24, s24, {WS_O}")
    a("v_and_b32 v6, 7, v2")
    a("v_lshlrev_b32 v6, 7, v6")
    a("s_lshl_b32 s26, s72, 12")
    a("s_lshl_b32 s25, s23, 10")
    a("s_add_u32 s26, s26, s25")
    if FRESH:
        a("v_lshlrev_b32 v6, 5, v6")
        a("s_lshl_b32 s27, s26, 5")
        a(f"s_add_u32 s27, s27, {WS_FR}")
    a(f"s_add_u32 s26, s26, {FL_C}")
    a(f"v_mov_b32 v11, {LDS_SYNC + 8}")
    a("v_mov_b32 v10, 16")
    a("s_mov_b64 exec, 1")
    a("ds_add_u32 v11, v10")
    a("s_mov_b64 exec, -1")
    a("s_mov_b32 s54, 0")
    a(f"s_mov_b32 s74, {SPIN}")
    if TLBW > 1:
        lab = a.newlabel("TLB")
        a("s_cmp_lg_u32 s23, 2")
        a(f"s_cbranch_scc1 {lab}")
        a("v_mov_b32 v12, 0")
        for pg in (6, 7):
            a(f"s_mov_b32 s33, {spare(pg):#x}")
            a("buffer_load_dword v13, v12, s[28:31], s33 offen sc1")
        a("s_lshl_b32 s33, s72, 16")
        a("s_lshl_b32 s34, s73, 7")
        a("s_add_u32 s33, s33, s34")
        a("v_mov_b32 v12, s33")
        a("global_load_dword v13, v12, s[64:65] sc1")
        a.label(lab)
    stamp(a, 5)
    stamp(a, 1, 8)
    def c_poll(r=8):
        if FRESH:
            a("s_memrealtime s[58:59]")
        a(f"v_mov_b32 v{r}, 0")
        a(f"v_mov_b32 v{r+1}, 0")
        if FRESH:
            a("s_waitcnt lgkmcnt(0)")
            a(f"s_bfe_u32 s58, s58, {(5 << 16) | FRESH:#x}")
            a("s_lshl_b32 s58, s58, 7")
            a("s_add_u32 s26, s27, s58")
        if MASKP:
            a("s_xor_b32 exec_lo, s54, 0xff")
            a("s_mov_b32 exec_hi, 0")
        else:
            a("s_mov_b64 exec, 0xff")
        if ATPOLL:
            a(f"buffer_atomic_or_x2 {v(r,2)}, v6, s[28:31], s26 offen sc0 sc1")
        else:
            a(f"buffer_load_dwordx2 {v(r,2)}, v6, s[28:31], s26 offen sc1")
        a("s_mov_b64 exec, -1")
    def pause():
        if NDEF and PAUSE:
            lab, done = a.newlabel("PZ"), a.newlabel("PZD")
            a(f"s_mov_b32 s76, {SPIN}")
            a.label(lab)
            a("ds_read_b32 v10, v11")
            a("s_waitcnt lgkmcnt(0)")
            a("v_readfirstlane_b32 s75, v10")
            a("s_sub_u32 s76, s76, 1")
            a(f"s_cbranch_scc1 {done}")
            a("s_cmp_ge_u32 s75, 1024")
            a(f"s_cbranch_scc1 {done}")
            a("s_and_b32 s75, s75, 15")
            a(f"s_cbranch_scc0 {done}")
            a("s_sleep 1")
            a(f"s_branch {lab}")
            a.label(done)
    def guard(reg, kk, tag, end=False):
        if not TRIM:
            return
        for w_ in ((2, 4) if end else (4, 2)):
            if not end and kk % w_ == 0:
                a(f"s_and_b32 s58, {reg}, {((1 << w_) - 1) << kk:#x}")
                a(f"s_cbranch_scc0 K3_G{tag}{w_}_{kk}")
            if end and kk % w_ == w_ - 1:
                a.label(f"K3_G{tag}{w_}_{kk - w_ + 1}")
    def o_loads(tag):
        for kk in range(NW):
            b = FR + ((ND + kk) % D) * 16
            guard("s55", kk, "L" + tag)
            a(f"s_bitcmp1_b32 s55, {kk}")
            a(f"s_cbranch_scc0 K3_L{tag}{kk}")
            a(f"s_add_u32 s25, s24, {kk*OS}")
            a(f"buffer_load_dwordx4 {v(b+4,4)}, v3, s[28:31], s25 offen{SC}")
            a(f"buffer_load_dwordx4 {v(b+12,4)}, v3, s[28:31], s25 offen offset:1024{SC}")
            if TAGO:
                a(f"buffer_load_dwordx4 {v(216+4*kk,4)}, v3, s[28:31], s25 offen offset:2048{SC}")
            a.label(f"K3_L{tag}{kk}")
            guard("s55", kk, "L" + tag, True)
    if TMODE:
        if TMODE == 3:
            a(f"v_mov_b32 v12, {LDS_SYNC + 20}")
            a.label("K3_NEAR")
            a("ds_read_b32 v10, v12")
            a("s_waitcnt lgkmcnt(0)")
            a("v_readfirstlane_b32 s75, v10")
            a(f"s_cmp_gt_u32 s75, {12 * 64 * 0xdddd}")
            a("s_cbranch_scc1 K3_NEAR1")
            a(f"s_sleep {PSLOW // 2}")
            a("s_sub_u32 s74, s74, 1")
            a("s_cbranch_scc0 K3_NEAR")
            a.label("K3_NEAR1")
            c_poll()
            a("s_waitcnt vmcnt(0)")
            a("v_cmp_eq_u64 vcc, s[68:69], v[8:9]")
            a(f"s_mov_b32 s74, {SPIN}")
            a("s_mov_b32 s55, vcc_lo")
            a("s_mov_b32 s54, s55")
            o_loads("P")
        a.label("K3_PRE")
        if TMODE == 2:
            a("s_cmp_eq_u32 s54, 0xff")
            a("s_cbranch_scc1 K3_PRE1")
            c_poll()
            a("s_waitcnt vmcnt(0)")
            a("v_cmp_eq_u64 vcc, s[68:69], v[8:9]")
            a("s_nop 0")
            a("s_andn2_b32 s55, vcc_lo, s54")
            a("s_or_b32 s54, s54, s55")
            o_loads("P")
            a.label("K3_PRE1")
        for rep in range(4):
            a("ds_read_b32 v10, v11" + (" offset:12" if EARLYT else ""))
            a("s_waitcnt lgkmcnt(0)")
            a("v_readfirstlane_b32 s75, v10")
            a(f"s_cmp_ge_u32 s75, {(64 - UA) * TP}" if EARLYT else ("s_bitcmp1_b32 s75, 2" if TRIM else "s_and_b32 s75, s75, 15"))
            a("s_cbranch_scc1 K3_GO")
            a(f"s_sleep {PSLOW // 4}")
        a("s_sub_u32 s74, s74, 1")
        a("s_cbranch_scc0 K3_PRE")
        a.label("K3_GO")
    if TPIPE:
        assert TMODE == 1
        a(f"s_mov_b32 s74, {SPIN}")
        a("s_mov_b32 s59, 0")
        c_poll()
        a.label("K3_ROUND")
        a("s_waitcnt vmcnt(0)")
        a("v_cmp_eq_u64 vcc, s[68:69], v[8:9]")
        a("s_sub_u32 s74, s74, 1")
        a("s_cselect_b32 s55, 0xff, vcc_lo")
        a("s_andn2_b32 s55, s55, s54")
        a("s_cbranch_scc0 K3_NONEW")
        stamp(a, 1, 13)
        if PROF == 13:
            a("s_mov_b32 s89, s55")
        if FAST8:
            a("s_cmp_eq_u32 s55, 0xff")
            a("s_cbranch_scc1 K3_ALL8")
        a("s_or_b32 s54, s54, s55")
        o_loads("")
        a.label("K3_NONEW")
        a("s_cmp_eq_u32 s54, 0xff")
        a("s_cbranch_scc1 K3_LAST")
        a("s_or_b32 s58, s55, s59")
        a("s_cbranch_scc1 K3_BUSY")
        a(f"s_sleep {TSLP}")
        a.label("K3_BUSY")
        c_poll()
        a.label("K3_LAST")
        a("s_cmp_eq_u32 s59, 0")
        a("s_cbranch_scc1 K3_NOMM")
        stamp(a, 2, 13)
        a("ds_read_b32 v10, v11")
        a("s_setprio 0")
        for kk in range(NW):
            guard("s59", kk, "M")
            a(f"s_bitcmp1_b32 s59, {kk}")
            a(f"s_cbranch_scc0 K3_C{kk}")
            mm(ND + kk)
            a.label(f"K3_C{kk}")
            guard("s59", kk, "M", True)
        a("s_setprio 3")
        a.label("K3_NOMM")
        a("s_mov_b32 s59, s55")
        a("s_xor_b32 s58, s54, 0xff")
        a("s_or_b32 s58, s58, s59")
        a("s_cbranch_scc1 K3_ROUND")
        if FAST8:
            a("s_branch K3_DONE")
            a.label("K3_ALL8")
            for kk in range(NW):
                b = FR + ((ND + kk) % D) * 16
                if kk % 2 == 0:
                    a(f"s_add_u32 s25, s24, {kk*2048}")
                a(f"buffer_load_dwordx4 {v(b+4,4)}, v3, s[28:31], s25 offen offset:{(kk%2)*2048}{SC}")
                a(f"buffer_load_dwordx4 {v(b+12,4)}, v3, s[28:31], s25 offen offset:{(kk%2)*2048+1024}{SC}")
            a("s_setprio 0")
            for kk in range(NW):
                a(f"s_waitcnt vmcnt({2*(NW-1-kk)})")
                if kk == NW - 1:
                    a("ds_read_b32 v10, v11")
                mm(ND + kk)
            a("s_setprio 3")
            a.label("K3_DONE")
    else:
        a(f"s_mov_b32 s74, {SPIN}")
        a("s_mov_b32 s55, s54")
        if TAGO:
            a("s_mov_b32 s59, 0")
            a("s_mov_b64 s[60:61], -1")
        a("s_branch K3_NEXTP")
        a.label("K3_POLL")
        c_poll()
        a.label("K3_ROUND")
        a("s_waitcnt vmcnt(0)")
        a("v_cmp_eq_u64 vcc, s[68:69], v[8:9]")
        a("s_sub_u32 s74, s74, 1")
        a("s_cselect_b32 s55, 0xff, vcc_lo")
        if TAGO:
            a("s_cselect_b64 s[60:61], 0, -1")
        a("s_andn2_b32 s55, s55, s54")
        a("s_cbranch_scc1 K3_SOME")
        if TMODE:
            a(f"s_sleep {TSLP}")
        else:
            a("ds_read_b32 v10, v11")
            a(f"s_sleep {TSLP}")
            a("s_waitcnt lgkmcnt(0)")
            a("v_readfirstlane_b32 s75, v10")
            a("s_and_b32 s75, s75, 15")
            a("s_cbranch_scc1 K3_POLL")
            a(f"s_sleep {PSLOW}")
        a("s_branch K3_POLL")
        a.label("K3_SOME")
        stamp(a, 1, 13)
        if PROF == 13:
            a("s_mov_b32 s89, s55")
        a("s_or_b32 s54, s54, s55")
        o_loads("")
        a.label("K3_NEXTP")
        a("s_waitcnt vmcnt(0)")
        a("s_cmp_eq_u32 s54, 0xff")
        a("s_cbranch_scc1 K3_LAST")
        c_poll()
        a.label("K3_LAST")
        if not TRIM:
            a("ds_read_b32 v10, v11")
        stamp(a, 2, 13)
        for kk in range(NW):
            guard("s55", kk, "M")
            a(f"s_bitcmp1_b32 s55, {kk}")
            a(f"s_cbranch_scc0 K3_C{kk}")
            if TAGO:
                b = FR + ((ND + kk) % D) * 16
                a(f"v_xor_b32 v12, s68, v{b+7}")
                a(f"v_xor_b32 v13, s68, v{b+15}")
                a(f"v_xor_b32 v14, s68, v{216+4*kk+3}")
                a("v_or3_b32 v12, v12, v13, v14")
                a("v_cmp_ne_u32 s[56:57], 0, v12")
                a(f"v_mov_b32 v{b+7}, v{216+4*kk}")
                a(f"v_mov_b32 v{b+15}, v{216+4*kk+1}")
                a("s_and_b64 s[56:57], s[56:57], s[60:61]")
                a(f"s_cbranch_scc1 K3_X{kk}")
            mm(ND + kk)
            a.label(f"K3_C{kk}")
            guard("s55", kk, "M", True)
        a("s_cmp_lg_u32 s54, 0xff")
        if TAGO:
            a("s_cbranch_scc0 K3_FIN")
            a("s_waitcnt vmcnt(0)")
            a("s_cmp_eq_u32 s59, 0")
            a("s_cbranch_scc1 K3_ROUND")
            a("s_mov_b32 s59, 0")
            a("s_branch K3_POLL")
            for kk in range(NW):
                a.label(f"K3_X{kk}")
                a(f"s_bitset0_b32 s54, {kk}")
                a("s_mov_b32 s59, 1")
                a(f"s_branch K3_C{kk}")
            a.label("K3_FIN")
        else:
            a("s_cbranch_scc1 K3_ROUND")
    stamp(a, 6)
    stamp(a, 2, 8)
    stamp(a, 3, 13)
    if not (TRIM and TMODE == 1 and not EARLYT):
        lds_wait(a, 11, 10, ["s_bitcmp1_b32 s75, 2"], first_read=False)
    for i in range(3, 6):
        stamp(a, i, 8)
    stamp(a, 4, 13)
    a("s_nop 7")
    part_write(a, GA, 212)
    stamp(a, 5, 13)
    a.label("K3_REDUCE")
    srd(a, 24, 64, 0x200000)
    a("s_lshl_b32 s32, s20, 6")
    a("v_add_u32 v0, s32, v2                  ; tid")
    a("v_lshrrev_b32 v7, 3, v0                ; token")
    a("v_and_b32 v5, 7, v0")
    a("v_lshlrev_b32 v6, 1, v5")
    a("v_and_b32 v8, 7, v7")
    a("v_xor_b32 v6, v6, v8")
    a("v_lshlrev_b32 v6, 4, v6")
    a("v_lshl_add_u32 v6, v7, 8, v6")
    a("v_xor_b32 v8, 16, v6")
    a("v_add_u32 v9, 0x10000, v6")
    a("v_add_u32 v10, 0x10000, v8")
    a("v_lshlrev_b32 v7, 10, v7")
    a("v_lshl_add_u32 v7, v5, 4, v7")
    a("s_lshl_b32 s32, s72, 16")
    a("s_lshl_b32 s33, s73, 7")
    a("s_add_u32 s32, s32, s33")
    a("s_waitcnt lgkmcnt(0)")
    a("s_barrier                              ; Y1")
    stamp(a, 6, 8)
    stamp(a, 6, 13)
    NP = 8 if NDEF else 4
    RB = 96
    for w in range(NP):
        off = w * 16384 if w < 4 else (w - 4) * DSTG
        r0, r1 = (6, 8) if w < 4 else (9, 10)
        if off > 65535:
            a("v_add_u32 v9, 0x8000, v9")
            a("v_add_u32 v10, 0x8000, v10")
            off -= 0x8000
        a(f"ds_read_b128 {v(RB+8*w,4)}, v{r0} offset:{off}")
        a(f"ds_read_b128 {v(RB+4+8*w,4)}, v{r1} offset:{off}")
    for w in range(1, NP):
        a(f"s_waitcnt lgkmcnt({2*(NP-1-w)})")
        for j in range(0, 8, 2):
            a(f"v_pk_add_f32 {v(RB+j,2)}, {v(RB+j,2)}, {v(RB+8*w+j,2)}")
    for j in range(0, 8, 2):
        a(f"v_cvt_pk_bf16_f32 v{16+j//2}, v{RB+j}, v{RB+j+1}")
    a("buffer_store_dwordx4 v[16:19], v7, s[24:27], s32 offen" + (" " + OUTSC if OUTSC else ""))
    if PADEND:
        pad_until(a, PADEND)
    stamp_flush(a, 8)
    a.label("K_EXIT")
    a("s_endpgm")
    a.label("K_END")

DOC = """;
"""

def main():
    hdr = open("cdna_kernels/" + NAME + ".s.ref").read().split("\n")
    top = [l for l in hdr if l.startswith(";") and "@launch" not in l]
    out = "\n".join(top) + "\n"
    out += f"; @launch grid=(256,1,1) block=(512,1,1) lds={LDS_TOTAL}\n"
    out += DOC
    out += '.amdgcn_target "amdgcn-amd-amdhsa--gfx950"\n.text\n'
    a = Asm()
    gen(a)
    out += a.text()
    out += '.section .rodata,"a"\n'
    out += kernel_desc(KNAME, 256, 102)
    path = sys.argv[1] if len(sys.argv) > 1 else "cdna_kernels/" + NAME + ".s"
    open(path, "w").write(out)

main()
```

```python
import sys, math, os
from asmlib import *

NAME = "gated_mix__softmax_full_mha__geglu_ffn__prompt"
KNAME = NAME + "_kernel"
LOG2E = 1.4426950408889634
def env(n, d): return int(os.environ.get(n, str(d)))
PROF = env("PROF", 0)
ROT = env("ROT", 1)
TAGPOS = env("TAGPOS", 0)
PADEND = env("PADEND", 0)
PADATT = env("PADATT", 0)
DBGWG = env("DBGWG", -1)
TLBW = env("TLBW", 1)
TLB0 = env("TLB0", 0)
PFW = env("PFW", 0)
PFI = env("PFI", 1)
PFX = env("PFX", 0)
KVROT = env("KVROT", 1)
AFLAG = env("AFLAG", 10)
PFC = env("PFC", 5)
ONEP = env("ONEP", 0)
FMAP = env("FMAP", 0)
NOTAG = env("NOTAG", 0)
ROT1 = env("ROT1", 2)
OUTSC = os.environ.get("OUTSC", "sc1")
GPK = env("GPK", 0)
UA = env("UA", 16)
PRE = env("PRE", 2)
QLD = env("QLD", 4)
WARMW = env("WARMW", 0)
ROT2 = env("ROT2", 1)
NDEF = env("NDEF", 0)
WARMD = env("WARMD", 1)
PSLOW = env("PSLOW", 16)
PAUSE = env("PAUSE", 1)
KVV = env("KVV", 2)
FASTX = env("FASTX", 0)
FULLF = env("FULLF", 0)
PIPE = env("PIPE", 1)
ATFLAG = env("ATFLAG", 1)
FRESH = env("FRESH", 0)
WS_FR = 0x2000000
PDEL = env("PDEL", 4)
MASKP = env("MASKP", 1)
SPAT = env("SPAT", 3)
LPRIO = env("LPRIO", 0)
FA0 = env("FA0", 13)
AFLAGQ = env("AFLAGQ", 11)
CAP = env("CAP", 20)
QS0 = env("QS0", 6)
QSD = env("QSD", 0)
TMODE = env("TMODE", 1)
GPRIO = env("GPRIO", 3)
ATFA = env("ATFA", 0)
QFIRST = env("QFIRST", 1)
HU = env("HU", -1)
KVW = env("KVW", 0)
HEARLY = env("HEARLY", 0)
HLATE = env("HLATE", -1)
HSTEP = env("HSTEP", 1)
AMIX = env("AMIX", 1)
TPIPE = env("TPIPE", 0)
TRIM = env("TRIM", 0)
TAGO = env("TAGO", 0)
OS = 3072 if TAGO else 2048
EARLYT = env("EARLYT", 0)
FAST8 = env("FAST8", 1)
FULLA = env("FULLA", 0)
ATFS = env("ATFS", 0)
TNEAR = env("TNEAR", 13)
DAH = env("DAH", 4)
GLD = env("GLD", 7)
GMA = env("GMA", 9)
FDEL = env("FDEL", 0)
FSLP = env("FSLP", 1)
QCAP = env("QCAP", 40)
KVA = env("KVA", 0)
NFILL = env("NFILL", 4)
AHD = env("AHD", 6)
ATPOLL = env("ATPOLL", 1)
HINTW = env("HINTW", 0)
TSLP = env("TSLP", 2)
SPF = env("SPF", 0)
CODEPF = env("CODEPF", 1)
SLP = env("SLP", 4)

HK = 65
AS = 113
WS_K = 0x0
WS_V = 0x210000
WS_Q = 0x420000
WS_ACT = 0x640000
WS_O = 0xD60000
WS_G = 0xF70000
WS_FL = 0xF80000
def spare(page):
    c = [b + h * HK * 1024 + 65536 for b in (WS_K, WS_V, WS_Q) for h in range(32)] + [WS_ACT + t * AS * 1024 + 112 * 1024 for t in range(64)] + [0xF60000]
    return next(x for x in c if x >> 21 == page)
FL_A = WS_FL
FL_B1 = WS_FL + 0x8000
FL_Q = WS_FL + 0x10000 - 12 * 2048
FL_B2 = WS_FL + 0x10000
FL_C = WS_FL + 0x20000
WS_STAMP = 0x1800000
WS_SIZE = 0x2800000

XS = 16384
WB = 5 * XS
WSL = 24576
LDS_GQ = 162176
LDS_OG = 163200
LDS_TAG = 163584
LDS_SYNC = LDS_TAG + 8
LDS_TOTAL = 163840
TP = 2080
LDS_V = 1024
VP = TP
LDS_WS = 137472
DSTG = 22528
LDS_Q = WB + 2 * WSL + 16384
LDS_PARK = WB + 3 * WSL
XPOS = [3, 2, 0, 1, 4, 3, 2, 0,  0, 2, 3, 4, 1, 2, 3, 4]
def xslot(c):
    return XPOS[c] * XS
def wslot(c):
    return WB + ((c % 3) * WSL if c < 8 else ((c + 3) % 4) * 16384)

SC = " sc1"
SPIN = 200000
MF = "v_mfma_f32_32x32x16_bf16"

def srd(a, d, base, nbytes):
    a(f"s_mov_b32 s{d}, s{base}")
    a(f"s_mov_b32 s{d+1}, s{base+1}")
    a(f"s_mov_b32 s{d+2}, {nbytes:#x}")
    a(f"s_mov_b32 s{d+3}, 0x20000")

def stamp(a, i, lvl=1):
    if PROF and (PROF == lvl or i in (0, 7) or (PROF == 16 and lvl == 15)):
        a("s_memrealtime s[96:97]")
        a("s_memtime s[98:99]")
        a("s_waitcnt lgkmcnt(0)")
        a(f"s_mov_b32 s{80+i}, s96")
        a(f"s_mov_b32 s{88+i}, s98")

def stamp_flush(a, n):
    if PROF:
        a("s_waitcnt vmcnt(0)")
        stamp(a, n - 1)
        a("s_lshl_b32 s78, s2, 4")
        a("s_add_u32 s78, s78, s20")
        a("s_lshl_b32 s78, s78, 6")
        a(f"s_add_u32 s78, s78, {WS_STAMP}")
        a("v_mov_b32 v1, 0")
        for i in range(n):
            a(f"v_mov_b32 v0, s{80+i}")
            a(f"buffer_store_dword v0, v1, s[28:31], s78 offen offset:{4*i}")
            a("s_nop 1")
            a(f"v_mov_b32 v0, s{88+i}")
            a(f"buffer_store_dword v0, v1, s[28:31], s78 offen offset:{32+4*i}")
            a("s_nop 1")
        a("s_waitcnt vmcnt(0)")
        if DBGWG >= 0:
            a(f"s_cmp_lg_u32 s2, {DBGWG}")
            a("s_cbranch_scc1 DBG_SKIP")
            a("s_and_b32 s78, s20, 3")
            a("s_cmp_lg_u32 s78, 0")
            a("s_cbranch_scc1 DBG_SKIP")
            a("s_mul_i32 s78, s20, 7")
            a("v_mov_b32 v1, s78")
            for i in range(1, n):
                a(f"s_sub_u32 s79, s{80+i}, s80")
                a("v_mov_b32 v0, s79")
                a(f"global_store_dword v1, v0, s[66:67] offset:{4+4*i}")
                a("s_nop 1")
            a("s_waitcnt vmcnt(0)")
            a.label("DBG_SKIP")

def pad_until(a, ticks):
    lab = a.newlabel("PAD")
    a.label(lab)
    a("s_memrealtime s[96:97]")
    a("s_waitcnt lgkmcnt(0)")
    a("s_sub_u32 s96, s96, s68")
    a(f"s_cmp_lt_u32 s96, {ticks}")
    a(f"s_cbranch_scc1 {lab}")

def flag_store(a, soff, vtmp):
    a(f"v_mov_b32 v{vtmp}, s68")
    a(f"v_mov_b32 v{vtmp+1}, s69")
    if FULLA:
        a("v_lshlrev_b32 v%d, 3, v2" % (vtmp + 2))
        a("s_mov_b64 exec, 0xffff")
    else:
        a(f"v_mov_b32 v{vtmp+2}, 0")
        a("s_mov_b64 exec, 1")
    a(f"buffer_store_dwordx2 {v(vtmp,2)}, v{vtmp+2}, s[28:31], {soff} offen sc1")
    a("s_mov_b64 exec, -1")

def poll(a, soff, voff, vtmp, slp=None):
    lab = a.newlabel("POLL")
    done = a.newlabel("POLLD")
    a(f"s_mov_b32 s74, {SPIN}")
    a.label(lab)
    a(f"buffer_load_dwordx2 {v(vtmp,2)}, v{voff}, s[28:31], {soff} offen sc1")
    a("s_waitcnt vmcnt(0)")
    a(f"v_xor_b32 v{vtmp}, s68, v{vtmp}")
    a(f"v_xor_b32 v{vtmp+1}, s69, v{vtmp+1}")
    a(f"v_or_b32 v{vtmp}, v{vtmp}, v{vtmp+1}")
    a(f"v_cmp_ne_u32 vcc, 0, v{vtmp}")
    a("s_sub_u32 s74, s74, 1")
    a("s_cmp_eq_u32 s74, 0")
    a(f"s_cbranch_scc1 {done}")
    a("s_cmp_eq_u64 vcc, 0")
    a(f"s_cbranch_scc1 {done}")
    a(f"s_sleep {SLP if slp is None else slp}")
    a(f"s_branch {lab}")
    a.label(done)

def poll_shared(a, stage, polls, vtmp, lslp=1, extra=None):
    other = a.newlabel("PSO")
    done = a.newlabel("PSD")
    a(f"v_mov_b32 v{vtmp+3}, {LDS_SYNC}")
    a("s_cmp_lg_u32 s23, 0")
    a(f"s_cbranch_scc1 {other}")
    for p in polls:
        poll(a, *p)
    if extra:
        extra()
    a(f"v_mov_b32 v{vtmp}, {stage}")
    a(f"ds_write_b32 v{vtmp+3}, v{vtmp}")
    a(f"s_branch {done}")
    a.label(other)
    a(f"s_mov_b32 s74, {SPIN*8}")
    lab = a.newlabel("PSL")
    a.label(lab)
    a(f"ds_read_b32 v{vtmp}, v{vtmp+3}")
    a("s_waitcnt lgkmcnt(0)")
    a(f"v_readfirstlane_b32 s75, v{vtmp}")
    a("s_sub_u32 s74, s74, 1")
    a("s_cmp_eq_u32 s74, 0")
    a(f"s_cbranch_scc1 {done}")
    a(f"s_cmp_ge_u32 s75, {stage}")
    a(f"s_cbranch_scc1 {done}")
    a(f"s_sleep {lslp}")
    a(f"s_branch {lab}")
    a.label(done)

def cvt_tile(a, acc, dst, lo=0, hi=16):
    for i in range(lo, hi, 2):
        a(f"v_cvt_pk_bf16_f32 v{dst + (i - lo)//2}, v{acc+i}, v{acc+i+1}")

def frag_addrs(a, sbase, R=10):
    a("v_lshrrev_b32 v4, 3, v2")
    a("v_and_b32 v5, 7, v2")
    a("v_bfe_u32 v7, v2, 4, 1")
    a("v_lshlrev_b32 v7, 2, v7")
    a("v_xor_b32 v5, v5, v7")
    a("v_lshlrev_b32 v5, 4, v5")
    a(f"v_lshl_add_u32 v{R}, v4, 10, v5")
    a(f"v_add_u32 v{R+1}, 7168, v{R}")
    a("v_bfe_u32 v4, v2, 2, 2")
    a("v_lshrrev_b32 v5, 5, v2")
    a("v_lshl_add_u32 v5, v5, 2, v4")
    a("v_lshlrev_b32 v5, 7, v5")
    a("v_lshrrev_b32 v4, 1, v4")
    a("v_lshl_add_u32 v5, v4, 6, v5")
    a("v_bfe_u32 v4, v2, 4, 1")
    a("v_lshl_add_u32 v5, v4, 5, v5")
    a("v_and_b32 v4, 3, v2")
    a("v_lshl_add_u32 v5, v4, 3, v5")
    a(f"v_xor_b32 v{R+3}, 64, v5")
    a(f"v_add_u32 v{R+2}, {sbase}, v5")
    a(f"v_add_u32 v{R+3}, {sbase}, v{R+3}")

def part_addrs(a, sbase, r):
    a(f"v_lshrrev_b32 v{r}, 5, v2")
    a(f"v_and_b32 v{r+1}, 7, v2")
    a(f"v_xor_b32 v{r}, v{r}, v{r+1}")
    a(f"v_and_b32 v{r+1}, 31, v2")
    a(f"v_lshlrev_b32 v{r+1}, 8, v{r+1}")
    a(f"v_lshl_add_u32 v{r}, v{r}, 4, v{r+1}")
    for g in range(1, 4):
        a(f"v_xor_b32 v{r+g}, {32*g}, v{r}")
    for g in range(4):
        a(f"v_add_u32 v{r+g}, {sbase}, v{r+g}")

def part_write(a, GA, r):
    for n in range(2):
        for t in range(2):
            acc = GA + (n * 2 + t) * 16
            for g in range(4):
                a(f"ds_write_b128 v{r+g}, {v(acc+4*g,4)} offset:{t*8192 + n*128}")

def lds_wait(a, vaddr, vdst, cmp_lines, first_read=True, slp=1):
    lab, done = a.newlabel("LW"), a.newlabel("LWD")
    a(f"s_mov_b32 s74, {SPIN*8}")
    if first_read:
        a(f"ds_read_b32 v{vdst}, v{vaddr}")
    a.label(lab)
    a("s_waitcnt lgkmcnt(0)")
    a(f"v_readfirstlane_b32 s75, v{vdst}")
    a("s_sub_u32 s74, s74, 1")
    a(f"s_cbranch_scc1 {done}")
    for l in cmp_lines:
        a(l)
    a(f"s_cbranch_scc1 {done}")
    a(f"s_sleep {slp}")
    a(f"ds_read_b32 v{vdst}, v{vaddr}")
    a(f"s_branch {lab}")
    a.label(done)

def vaddr_init(a, VK=40, VV0=41, VV1=42):
    a(f"v_mov_b32 v{VK}, v3")
    a("v_lshrrev_b32 v43, 5, v2")
    a("v_and_b32 v44, 15, v2")
    a("v_lshlrev_b32 v44, 4, v44")
    a("v_lshl_or_b32 v44, v43, 8, v44")
    a(f"v_add_u32 v44, {LDS_V}, v44")
    a("v_add_u32 v45, 512, v44")
    a("v_and_b32 v43, 31, v2")
    a("v_subrev_u32 v47, 20, v43")
    a("v_cmp_gt_u32 vcc, 8, v47")
    a(f"v_mov_b32 v46, {LDS_V + 1040}")
    a(f"v_mov_b32 v47, {LDS_V + 1040 + 2*VP}")
    a("v_cndmask_b32 v46, v46, v47, vcc")
    a("v_and_b32 v47, 27, v43")
    a("v_cmp_eq_u32 vcc, 16, v47")
    a("v_subrev_u32 v47, 16, v46")
    a("s_nop 0")
    a("v_cndmask_b32 v46, v46, v47, vcc")
    a("v_cmp_gt_u32 vcc, 16, v43")
    a("s_nop 1")
    a(f"v_cndmask_b32 v{VV0}, v46, v44, vcc")
    a(f"v_cndmask_b32 v{VV1}, v46, v45, vcc")

def place(a, key):
    m = env("PL_" + key, -1)
    if m >= 0:
        a.raw(".p2align 6")
        for _ in range(m):
            a("s_nop 0")

def gen(a):
    kernel_header(a, KNAME)
    a("s_memrealtime s[100:101]")
    if PROF == 7:
        a("s_memrealtime s[100:101]")
    a("s_cmp_ge_u32 s2, 256")
    a("s_cbranch_scc1 K_EXIT")
    if env("SHUF", 0) == 1:
        a("s_lshr_b32 s3, s2, 3")
        a("s_lshl_b32 s2, s2, 5")
        a("s_or_b32 s2, s2, s3")
        a("s_and_b32 s2, s2, 255")
    if env("SHUF", 0) == 2:
        a("s_mul_i32 s2, s2, 37")
        a("s_add_u32 s2, s2, 11")
        a("s_and_b32 s2, s2, 255")
    if env("JIT", 0):
        a("s_mul_i32 s3, s2, 2654435761")
        a("s_lshr_b32 s3, s3, 27")
        a.label("JIT_L")
        a("s_sleep 8")
        a("s_sub_u32 s3, s3, 1")
        a("s_cbranch_scc0 JIT_L")
    a("s_load_dwordx4 s[4:7], s[0:1], 0       ; x, wqkv")
    a("v_lshrrev_b32 v1, 6, v0")
    a("v_and_b32 v2, 63, v0                   ; lane")
    a("v_readfirstlane_b32 s20, v1")
    VX0, VX1, VR0, VR1, VKV = 10, 11, 12, 13, 14
    if FASTX:
        assert ROT1 == 2 and PRE == 2
        a("v_lshrrev_b32 v4, 3, v2")
        a("v_and_b32 v5, 7, v2")
        a("v_lshrrev_b32 v6, 4, v2")
        a("v_xor_b32 v7, v5, v6")
        a("v_lshlrev_b32 v7, 4, v7")
        a(f"v_lshl_add_u32 v{VX0}, v4, 10, v7")
        a(f"v_xor_b32 v{VX1}, 64, v{VX0}")
        a("s_bfe_u32 s63, s2, 0x30003")
        a("s_and_b32 s40, s2, 1")
        a("s_lshl_b32 s40, s40, 3")
        a("s_add_u32 s40, s40, s63                ; rb")
        a("s_lshl_b32 s40, s40, 2")
        a("s_and_b32 s42, s20, 3")
        a("s_add_u32 s40, s40, s42")
        a("s_lshl_b32 s40, s40, 15")
        a("s_lshl_b32 s42, s42, 12")
        a("s_lshr_b32 s37, s2, 6")
        a("s_add_u32 s37, s37, s63")
        a("s_lshl_b32 s37, s37, 1")
        a("s_lshr_b32 s38, s20, 2")
        a("s_add_u32 s37, s37, s38")
        a("s_and_b32 s37, s37, 7")
        a("s_lshl_b32 s37, s37, 7")
        a("s_add_u32 s37, s37, s40")
        a("s_cmp_lt_u32 s20, 4")
        a(f"s_mov_b32 s38, {slot_of(1)}")
        a(f"s_cselect_b32 s38, {slot_of(0)}, s38")
        a("s_add_u32 s38, s38, s42")
        a("s_mov_b32 s46, 0x200000")
        a("s_mov_b32 s47, 0x20000")
        a("s_waitcnt lgkmcnt(0)")
        a("s_mov_b64 s[44:45], s[4:5]")
        for i in range(4):
            a(f"s_add_u32 m0, s38, {i*1024}")
            a(f"s_add_u32 s39, s37, {i*8192}")
            a(f"buffer_load_dwordx4 v{VX1 if i & 1 else VX0}, s[44:47], s39 offen lds")
    a("s_load_dwordx4 s[12:15], s[0:1], 32")
    a("s_load_dwordx2 s[8:9], s[0:1], 16      ; wo")
    a("s_load_dwordx2 s[10:11], s[0:1], 80    ; ws")
    a("s_load_dwordx4 s[16:19], s[0:1], 48")
    a("s_load_dwordx4 s[64:67], s[0:1], 64")
    a("v_lshlrev_b32 v3, 4, v2                ; lane*16")
    if TLB0:
        a("s_cmp_ge_u32 s20, 4")
        a("s_cbranch_scc1 K0_NOT")
        a("s_lshr_b32 s26, s2, 3")
        a("s_add_u32 s26, s26, s20")
        a("v_mov_b32 v21, 0")
        a("s_bitcmp1_b32 s26, 0")
        a("s_waitcnt lgkmcnt(0)")
        a("s_cselect_b64 s[24:25], s[4:5], s[6:7]")
        a("s_cselect_b64 s[22:23], s[12:13], s[14:15]")
        a("s_bitcmp1_b32 s26, 1")
        a("s_cselect_b64 s[24:25], s[24:25], s[22:23]")
        a("global_load_dword v23, v21, s[24:25]")
        a.label("K0_NOT")
    stamp(a, 0)
    a("s_and_b32 s24, s2, 1                   ; xh")
    a("s_bfe_u32 s25, s2, 0x20001             ; xq")
    a("s_lshr_b32 s26, s2, 3                  ; j")
    a("s_and_b32 s63, s26, 7")
    a("s_lshl_b32 s21, s24, 3")
    a("s_add_u32 s21, s21, s63                ; rb")
    a("s_lshr_b32 s27, s26, 3")
    a("s_mul_i32 s22, s25, 3")
    a("s_add_u32 s22, s22, s27")
    if QFIRST:
        a("s_sub_u32 s22, s22, 1")
    a("s_add_u32 s23, s25, 12")
    a(f"s_cmp_eq_u32 s27, {0 if QFIRST else 3}")
    a("s_cselect_b32 s22, s23, s22            ; cb2")
    if FMAP:
        a("s_and_b32 s72, s2, 7")
        a("s_lshl_b32 s72, s72, 2")
        a("s_and_b32 s73, s26, 3")
        a("s_add_u32 s72, s72, s73                ; rb64")
        a("s_lshr_b32 s73, s26, 2                 ; cb64")
    else:
        a("s_lshl_b32 s72, s25, 3")
        a("s_add_u32 s72, s72, s63                ; rb64")
        a("s_lshl_b32 s73, s24, 2")
        a("s_add_u32 s73, s73, s27                ; cb64")
    if ROT1 == 1:
        a("s_lshl_b32 s27, s27, 1")
        a("s_add_u32 s63, s63, s27")
    elif ROT1 == 2:
        a("s_add_u32 s63, s63, s27")
        a("s_lshl_b32 s63, s63, 1")
    elif ROT1 == 3:
        a("s_add_u32 s63, s63, s27")
        a("s_lshl_b32 s63, s63, 2")
    a(f"s_and_b32 s63, s63, {7 if ROT1 else 0}")
    a("s_and_b32 s70, s2, 7")
    a("s_lshl_b32 s70, s70, 2")
    if AMIX:
        a("s_lshr_b32 s27, s26, 3")
        a("s_add_u32 s27, s27, s26")
        a("s_and_b32 s27, s27, 3")
        a("s_add_u32 s70, s70, s27                ; head")
        a("s_and_b32 s71, s26, 7                  ; qb")
    else:
        a("s_and_b32 s27, s26, 3")
        a("s_add_u32 s70, s70, s27                ; head")
        a("s_lshr_b32 s71, s26, 2                 ; qb")
    a("s_cmp_lt_u32 s20, 4")
    a("s_cbranch_scc1 K1_COMPUTE")

    a("s_sub_u32 s23, s20, 4                  ; L")
    if LPRIO:
        a(f"s_setprio {LPRIO}")
    if not FASTX:
        a("v_lshrrev_b32 v4, 3, v2")
        a("v_and_b32 v5, 7, v2")
        a("v_lshrrev_b32 v6, 4, v2")
        a("v_xor_b32 v7, v5, v6")
        a("v_lshlrev_b32 v7, 4, v7")
        a(f"v_lshl_add_u32 v{VX0}, v4, 10, v7")
        a(f"v_xor_b32 v{VX1}, 64, v{VX0}")
    a("v_and_b32 v7, 1, v6")
    a("v_lshlrev_b32 v7, 2, v7")
    a("v_xor_b32 v7, v7, v5")
    a("v_lshlrev_b32 v7, 4, v7")
    a("v_mul_u32_u24 v8, 3072, v4")
    a(f"v_add_u32 v{VKV}, v8, v7")
    a("v_mul_u32_u24 v8, 3584, v4")
    a("v_add_u32 v15, v8, v7")
    a("s_cmp_lt_u32 s22, 12")
    a("s_cselect_b64 vcc, -1, 0")
    a("s_movk_i32 s60, 3072")
    a("s_cselect_b32 s60, 3584, s60")
    a(f"v_cndmask_b32 v{VR0}, v{VKV}, v15, vcc")
    a(f"v_xor_b32 v{VR1}, 32, v{VR0}")
    a("s_cselect_b32 s32, 0, 12")
    a("s_sub_u32 s32, s22, s32")
    a("s_lshl_b32 s32, s32, 8")
    a("s_lshl_b32 s61, s22, 1")
    a("s_add_u32 s61, s61, 1")
    a("s_add_u32 s34, s22, 12")
    a("s_cmp_lt_u32 s22, 12")
    a("s_cselect_b32 s33, 0, 128              ; R1 - R0")
    a("s_cselect_b32 s61, s61, s34")
    a("s_lshl_b32 s61, s61, 7")
    a("s_mul_i32 s34, s23, 57344")
    a("s_add_u32 s61, s61, s34")
    a("s_lshl_b32 s34, s23, 4")
    a("s_mul_i32 s34, s34, s60")
    a("s_add_u32 s32, s32, s34")
    a("s_lshl_b32 s62, s60, 6")
    a("s_lshl_b32 s36, s60, 3                 ; 8 rows")
    a("s_mul_i32 s34, s23, 49152")
    a("s_lshl_b32 s35, s22, 7")
    a("s_add_u32 s34, s34, s35")
    a("s_add_u32 s34, s34, 1024")
    if not FASTX:
        a("s_lshl_b32 s40, s21, 17")
        a("s_lshl_b32 s41, s23, 15")
        a("s_add_u32 s40, s40, s41                ; x base")
        a("s_lshl_b32 s42, s23, 12")
    a("s_lshl_b32 s35, s23, 11")
    a("s_mov_b32 s43, s63                     ; kc")
    a("s_waitcnt lgkmcnt(0)")
    srd(a, 24, 4, 0x200000)
    srd(a, 44, 6, 0x180000)
    a("s_cmp_lt_u32 s22, 12")
    a("s_cselect_b64 s[48:49], s[12:13], s[6:7]")
    a("s_cselect_b64 s[52:53], s[14:15], s[6:7]")
    a("s_cselect_b32 s50, 0x1c0000, s46")
    a("s_mov_b32 s54, s50")
    a("s_mov_b32 s51, 0x20000")
    a("s_mov_b32 s55, 0x20000")
    queue = []
    def issue(c):
        ws_, xs_ = wslot(c), xslot(c)
        a("s_mul_i32 s38, s43, s62")
        a("s_add_u32 s38, s38, s32")
        for i in range(2):
            a(f"s_add_u32 m0, s35, {ws_ + i*1024}")
            a("s_add_u32 s39, s38, s33")
            a(f"buffer_load_dwordx4 v{VR0}, s[48:51], s38 offen lds")
            a(f"s_add_u32 m0, s35, {ws_ + 8192 + i*1024}")
            a("s_add_u32 s38, s38, s36")
            a(f"buffer_load_dwordx4 v{VR1}, s[52:55], s39 offen lds")
        n = 4
        if c < 8:
            a("s_mul_i32 s38, s43, 196608")
            a("s_add_u32 s38, s38, s34")
            for i in range(2):
                a(f"s_add_u32 m0, s35, {ws_ + 16384 + i*1024}")
                a(f"s_add_u32 s39, s38, {i*24576}")
                a(f"buffer_load_dwordx4 v{VKV}, s[44:47], s39 offen lds")
            n += 2
        if c < 8 or c >= 13:
            a("s_lshl_b32 s37, s43, 7")
            a("s_add_u32 s37, s37, s40")
            for i in range(4):
                a(f"s_add_u32 m0, s42, {xs_ + i*1024}")
                a(f"s_add_u32 s39, s37, {i*8192}")
                a(f"buffer_load_dwordx4 v{VX1 if i & 1 else VX0}, s[24:27], s39 offen lds")
            n += 4
        if c != 7:
            a("s_add_u32 s43, s43, " + ("1" if c < 7 else "7"))
            a("s_and_b32 s43, s43, 7")
        else:
            a("s_mov_b32 s32, s61")
            a("s_mov_b32 s33, 0")
            a("s_mov_b32 s62, 229376")
            a("s_mov_b32 s36, 28672")
            a("s_mov_b64 s[48:49], s[12:13]")
            a("s_mov_b64 s[52:53], s[14:15]")
            a("s_mov_b32 s50, 0x1c0000")
            a("s_mov_b32 s54, 0x1c0000")
            a(f"v_mov_b32 v{VR0}, v15")
            a(f"v_xor_b32 v{VR1}, 32, v15")
        queue.extend([c] * n)
    def waitq(tag):
        n = len(queue) - 1 - max(i for i, t in enumerate(queue) if t == tag)
        a(f"s_waitcnt vmcnt({n})")
    stamp(a, 2, 7)
    if PROF == 7:
        a("s_mov_b32 s81, s80")
        a("s_mov_b32 s80, s100")
    issue(0)
    stamp(a, 3, 7)
    if PRE == 2:
        issue(1)
    stamp(a, 4, 7)
    stamp(a, 1)
    srd(a, 28, 10, WS_SIZE)
    a("v_mov_b32 v9, 0")
    a("s_add_u32 s37, s2, s20")
    a("s_cmp_eq_u32 s37, 4")
    a("s_cbranch_scc0 K1_NOTAG")
    a("s_memrealtime s[56:57]")
    a("s_waitcnt lgkmcnt(0)")
    a("s_or_b32 s56, s56, 1")
    a("s_or_b32 s57, s57, 0x80000000")
    a("v_mov_b32 v4, s56")
    a("v_mov_b32 v5, s57")
    a("s_mov_b64 exec, 1")
    a("global_store_dwordx2 v9, v[4:5], s[66:67] sc1")
    a("s_mov_b64 exec, -1")
    a.label("K1_NOTAG")
    def get_tag():
        lab, done = a.newlabel("TAG"), a.newlabel("TAGD")
        a(f"s_mov_b32 s74, {SPIN}")
        a("v_readfirstlane_b32 s68, v60")
        a("v_readfirstlane_b32 s69, v61")
        a.label(lab)
        a("s_sub_u32 s74, s74, 1")
        a(f"s_cbranch_scc1 {done}")
        a("s_min_u32 s75, s68, s69")
        a("s_cmp_lg_u32 s75, 0")
        a(f"s_cbranch_scc1 {done}")
        a("global_load_dwordx2 v[60:61], v9, s[66:67] sc1")
        a("s_waitcnt vmcnt(0)")
        a("v_readfirstlane_b32 s68, v60")
        a("v_readfirstlane_b32 s69, v61")
        a("s_sleep 2")
        a(f"s_branch {lab}")
        a.label(done)
        a(f"v_mov_b32 v4, {LDS_TAG}")
        a("v_mov_b32 v60, s68")
        a("v_mov_b32 v61, s69")
        a("ds_write_b64 v4, v[60:61]")
        a("ds_write_b32 v4, v9 offset:8")
        a("ds_write_b32 v4, v9 offset:12")
        a("ds_write_b32 v4, v9 offset:16")
        a("ds_write_b32 v4, v9 offset:20")
        a("ds_write_b32 v4, v9 offset:24")
        a("ds_write_b32 v4, v9 offset:28")
        a("s_waitcnt lgkmcnt(0)")
    def flag_a(q):
        lab = a.newlabel("FA")
        a("s_cmp_lg_u32 s23, 1")
        a(f"s_cbranch_scc1 {lab}")
        if q:
            a("s_cmp_lt_u32 s22, 12")
            a(f"s_cbranch_scc1 {lab}")
        a("s_lshl_b32 s37, s22, 4")
        a("s_add_u32 s37, s37, s21")
        a("s_lshl_b32 s37, s37, 7")
        a(f"s_add_u32 s37, s37, {FL_Q if q else FL_A}")
        stamp(a, 2 if q else 1, 14)
        flag_store(a, "s37", 16)
        a.label(lab)
    def kv_setup():
        a("v_and_b32 v5, 15, v2")
        a("v_lshlrev_b32 v5, 7, v5")
        a("v_bfe_u32 v6, v2, 4, 1")
        a("v_lshl_add_u32 v5, v6, 14, v5")
        a("s_and_b32 s56, s2, 7")
        a("s_lshr_b32 s57, s56, 1")
        a("s_add_u32 s57, s57, 12")
        a("s_sub_u32 s57, s57, s56")
        a("s_lshl_b32 s57, s57, 11")
        a("s_lshl_b32 s58, s71, 8")
        a("s_add_u32 s57, s57, s58")
        a(f"s_add_u32 s57, s57, {FL_Q - FL_A}")
        a("v_and_b32 v6, 1, v2")
        a("v_lshlrev_b32 v6, 7, v6")
        a("v_add_u32 v6, s57, v6")
        a("v_cmp_gt_u32 vcc, 32, v2")
        a("s_lshl_b32 s56, s56, 11")
        a(f"s_add_u32 s56, s56, {FL_A}")
        a("v_cndmask_b32 v5, v6, v5, vcc")
        a(f"s_mul_i32 s57, s70, {HK*1024}")
        a("s_lshl_b32 s58, s23, 10")
        a("s_add_u32 s57, s57, s58                ; head*64K + L*1K")
        a(f"s_add_u32 s57, s57, {WS_K}")
        a(f"s_mul_i32 s58, s23, {TP}")
    def kv_loads(lo, hi):
        n = hi - lo
        a(f"s_mul_i32 s44, s71, {n}")
        a("s_lshr_b32 s44, s44, 3")
        for i in range(n):
            a(f"s_mul_i32 s45, s44, {4*TP}")
            a("s_add_u32 s45, s45, s58")
            a(f"s_add_u32 m0, s45, {lo*4*TP}")
            a("s_lshl_b32 s37, s44, 12")
            a("s_add_u32 s37, s37, s57")
            a(f"s_add_u32 s38, s37, {lo*4096}")
            a(f"buffer_load_dwordx4 v3, s[28:31], s38 offen{SC} lds")
            a(f"s_add_u32 m0, s45, {lo*4*TP + 1024}")
            a(f"s_add_u32 s38, s37, {lo*4096 + WS_V - WS_K}")
            a(f"buffer_load_dwordx4 v3, s[28:31], s38 offen{SC} lds")
            if i < n - 1:
                a("s_add_u32 s44, s44, 1")
                a(f"s_cmp_eq_u32 s44, {n}")
                a("s_cselect_b32 s44, 0, s44")
        queue.extend(["kv"] * (2 * n))
    def q_loads():
        a(f"s_mul_i32 s37, s70, {HK}")
        a("s_lshl_b32 s38, s71, 3")
        a("s_add_u32 s37, s37, s38")
        a("s_lshl_b32 s38, s23, 1")
        a("s_add_u32 s37, s37, s38")
        a("s_lshl_b32 s37, s37, 10")
        a("s_lshl_b32 s38, s23, 11")
        a(f"s_add_u32 m0, s38, {LDS_Q}")
        a(f"s_add_u32 s37, s37, {WS_Q}")
        a(f"buffer_load_dwordx4 v3, s[28:31], s37 offen{SC} lds")
        a(f"buffer_load_dwordx4 v3, s[28:31], s37 offen offset:1024{SC} lds")
    a(f"v_mul_u32_u24 v36, {VP}, v2")
    a(f"v_add_u32 v36, {LDS_V + 1024}, v36")
    for i in range(4):
        a(f"v_mov_b32 v{40+i}, 0x3f803f80")
        a(f"v_mov_b32 v{44+i}, 0")
    a(f"s_mul_i32 s37, s23, {3*2048}")
    a(f"s_add_u32 s37, s37, {LDS_WS}")
    frag_addrs(a, "s37", 248)
    a("s_lshl_b32 s37, s23, 14")
    part_addrs(a, "s37", 212)
    kv_setup()
    for c in range(13):
        waitq(c)
        if c == 6:
            get_tag()
        if c < 2:
            stamp(a, c + 5, 7)
        if c < 6:
            stamp(a, c + 1, 2)
        if 6 <= c < 12:
            stamp(a, c - 5, 3)
        if c == env("PADC", -1):
            lab = a.newlabel("PADX")
            a.label(lab)
            a("s_memrealtime s[96:97]")
            a("s_waitcnt lgkmcnt(0)")
            a("s_sub_u32 s96, s96, s100")
            a(f"s_cmp_lt_u32 s96, {env('PADT', 0)}")
            a(f"s_cbranch_scc1 {lab}")
        a(f"s_barrier                              ; b({c})")
        if c == 8:
            stamp(a, 2)
            stamp(a, 1, 15)
        if c == 4:
            a("global_load_dwordx2 v[60:61], v9, s[66:67] sc1")
        if c == AFLAG:
            flag_a(False)
        if c == AFLAGQ:
            flag_a(True)
        if c <= 8:
            issue(c + 2)
        if 8 <= c <= 12:
            issue(c + 3)
        if c == PFC:
            a("s_bitcmp1_b32 s23, 0")
            a("s_cselect_b64 s[40+36:41+36], s[14:15], s[12:13]".replace("s[40+36:41+36]", "s[92:93]"))
            a("s_mov_b32 s94, 0x1c0000")
            a("s_mov_b32 s95, 0x20000")
            a("v_and_b32 v16, 31, v2")
            a("v_mul_u32_u24 v16, 3584, v16")
            a("s_mul_i32 s37, s23, 57344")
            a("s_sub_u32 s37, s61, s37")
            a("s_and_b32 s38, s21, 7")
            a("s_lshl_b32 s38, s38, 1")
            a("s_lshr_b32 s39, s23, 1")
            a("s_add_u32 s38, s38, s39")
            a("s_mul_i32 s38, s38, 114688")
            a("s_add_u32 s37, s37, s38")
            a("buffer_load_dword v17, v16, s[92:95], s37 offen")
            queue.append("pf")
        if c == GLD:
            srd(a, 44, 18, 1024)
            a("s_lshl_b32 s76, s21, 4")
            a("s_add_u32 s76, s76, s22")
            a("s_lshl_b32 s76, s76, 2")
            a("s_add_u32 s76, s76, s23")
            a("s_lshl_b32 s37, s76, 11")
            a("buffer_load_dwordx4 v[64:67], v3, s[44:47], 0 offen")
            a("buffer_load_dwordx4 v[24:27], v3, s[24:27], s37 offen")
            a("buffer_load_dwordx4 v[28:31], v3, s[24:27], s37 offen offset:1024")
            queue.extend(["g"] * 3)
        if c == GMA:
            waitq("g")
            a("v_mov_b32 v32, 0")
            a("v_mov_b32 v33, 0")
            for q in range(4):
                a(f"v_dot2_f32_bf16 v32, v{24+q}, v{64+q}, v32")
                a(f"v_dot2_f32_bf16 v33, v{28+q}, v{64+q}, v33")
            a("s_nop 2")
            a("v_permlane32_swap_b32 v32, v33")
            a("s_nop 1")
            a("v_add_f32 v32, v32, v33")
            for ctl in ("quad_perm:[1,0,3,2]", "quad_perm:[2,3,0,1]", "row_half_mirror", "row_mirror"):
                a("s_nop 1")
                a(f"v_add_f32_dpp v32, v32, v32 {ctl} row_mask:0xf bank_mask:0xf")
            a("v_mov_b32 v33, v32")
            a("s_nop 1")
            a("v_permlane16_swap_b32 v32, v33")
            a("s_nop 1")
            a("v_add_f32 v32, v32, v33")
            a(f"v_mul_f32 v32, {fh(-LOG2E)}, v32")
            a("v_exp_f32 v32, v32")
            a("v_lshrrev_b32 v70, 5, v2")
            a("v_add_f32 v32, 1.0, v32")
            a("v_rcp_f32 v68, v32")
            a("v_lshlrev_b32 v70, 3, v70")
    a(f"v_mov_b32 v22, {LDS_SYNC + 16}")
    a("v_mov_b32 v23, 16")
    waitq(14)
    a("s_barrier                              ; b(13)")
    if AFLAGQ == 13:
        flag_a(True)
    a("s_waitcnt vmcnt(0)")
    a("s_mov_b64 exec, 1")
    a("ds_add_u32 v22, v23")
    a("s_mov_b64 exec, -1")
    stamp(a, 2, 15)
    a(f"v_mov_b32 v19, {LDS_SYNC}")
    a("s_cmp_lg_u32 s23, 0")
    a("s_cbranch_scc1 KV_OTHER")
    if FDEL:
        a(f"s_sleep {FDEL}")
    a(f"s_mov_b32 s74, {SPIN}")
    a("s_mov_b32 s77, 0")
    if ATFA:
        a("s_mov_b32 vcc_lo, -1")
        a("s_mov_b32 vcc_hi, 3")
    a.label("KV_POLL")
    if ATFA:
        a("v_mov_b32 v8, 0")
        a("v_mov_b32 v9, 0")
        a("s_mov_b64 exec, vcc")
        a("buffer_atomic_or_x2 v[8:9], v5, s[28:31], s56 offen sc0 sc1")
    else:
        a("buffer_load_dwordx2 v[8:9], v5, s[28:31], s56 offen sc1")
    a("s_waitcnt vmcnt(0)")
    a("v_cmp_ne_u64 vcc, s[68:69], v[8:9]")
    if ATFA:
        a("s_mov_b64 exec, -1")
    a("s_sub_u32 s74, s74, 1")
    a("s_cselect_b64 vcc, 0, vcc")
    a("s_cmp_lg_u32 vcc_lo, 0")
    a("s_cbranch_scc1 KV_AGAIN")
    a("s_cmp_eq_u32 vcc_hi, 0")
    a("s_cselect_b32 s75, 2, 1")
    a("v_mov_b32 v16, s75")
    a("ds_write_b32 v19, v16")
    a("s_cmp_lg_u32 s77, 0")
    a("s_mov_b32 s77, s75")
    a("s_cbranch_scc1 KV_HAVE")
    stamp(a, 3, 15)
    kv_loads(0, 3)
    a.label("KV_HAVE")
    a("s_cmp_eq_u32 s77, 2")
    a("s_cbranch_scc1 KV_Q")
    a.label("KV_AGAIN")
    a(f"s_sleep {FSLP}")
    a("s_branch KV_POLL")
    a.label("KV_OTHER")
    lds_wait(a, 19, 16, ["s_cmp_ge_u32 s75, 1"])
    kv_loads(0, 3)
    lds_wait(a, 19, 16, ["s_cmp_ge_u32 s75, 2"])
    a.label("KV_Q")
    if KVW:
        a("s_cmp_lt_u32 s23, 2")
        a("s_cbranch_scc1 KV_NW")
        a(f"s_mul_i32 s37, s70, {HK*1024}")
        a(f"s_mul_i32 s38, s71, {52*128}")
        a("s_add_u32 s37, s37, s38")
        a("s_and_b32 s38, s23, 1")
        a(f"s_mul_i32 s38, s38, {WS_V - WS_K}")
        a("s_add_u32 s37, s37, s38")
        a(f"s_add_u32 s37, s37, {WS_K + 12*1024}")
        a("v_min_u32 v16, 51, v2")
        a("v_lshlrev_b32 v16, 7, v16")
        a(f"buffer_load_dword v17, v16, s[28:31], s37 offen{SC}")
        a.label("KV_NW")
    stamp(a, 4, 15)
    q_loads()
    a("s_branch K2_GEMM")

    a.label("K1_COMPUTE")
    AF = 96
    AK = 224
    def accF(sw, i, t):
        return AF + ((sw * 2 + i) * 2 + t) * 16
    XA = [4, 5, 6, 7]
    WA = [8, 9]
    KA = 10
    a("s_and_b32 s23, s20, 1                  ; tp")
    a("s_lshr_b32 s24, s20, 1                 ; grp")
    a("v_bfe_u32 v16, v2, 4, 1                ; gsel")
    a("v_lshrrev_b32 v17, 5, v2               ; h")
    a("v_bfe_u32 v18, v2, 2, 2                ; r")
    a("v_and_b32 v19, 3, v2                   ; c")
    a("v_lshl_add_u32 v20, v17, 3, v18        ; 8h+r")
    a("v_and_b32 v21, 31, v2")
    a("v_lshlrev_b32 v21, 7, v21")
    a("v_bfe_u32 v22, v2, 1, 3")
    a("v_xor_b32 v22, v22, v17")
    a("v_lshl_add_u32 v21, v22, 4, v21")
    a("s_lshl_b32 s25, s23, 13")
    a(f"s_add_u32 s25, s25, {xslot(0)}")
    for s_ in range(4):
        a(f"v_xor_b32 v{XA[s_]}, {32*s_}, v21")
        a(f"v_add_u32 v{XA[s_]}, s25, v{XA[s_]}")
    a("v_lshlrev_b32 v20, 7, v20")
    a("v_lshl_add_u32 v20, v19, 3, v20        ; row*128 + c*8")
    a("v_lshrrev_b32 v21, 1, v18")
    a("v_xor_b32 v21, s24, v21                ; grp ^ (r>>1)")
    a("v_lshl_add_u32 v20, v21, 6, v20")
    a("v_lshl_add_u32 v20, v16, 5, v20")
    a(f"v_add_u32 v{KA}, {wslot(0) + 16384}, v20")
    a("v_lshl_add_u32 v20, v16, 13, v20")
    a("v_xor_b32 v21, 32, v20")
    a(f"v_add_u32 v{WA[0]}, {wslot(0)}, v20")
    a(f"v_add_u32 v{WA[1]}, {wslot(0)}, v21")
    a("v_and_b32 v11, 0x33, v2")
    a("v_bfe_u32 v17, v2, 2, 1")
    a("v_lshl_or_b32 v11, v17, 3, v11")
    a("v_bfe_u32 v17, v2, 3, 1")
    a("v_lshl_or_b32 v11, v17, 2, v11")
    a("v_lshlrev_b32 v11, 4, v11              ; K voffset")
    a("s_cmp_lt_u32 s22, 8")
    a("s_cbranch_scc1 K1_KOFF")
    a(f"v_mul_u32_u24 v11, {HK*1024}, v16")
    a("v_lshrrev_b32 v18, 5, v2")
    a("v_lshl_or_b32 v11, v18, 8, v11")
    a("v_and_b32 v18, 15, v2")
    a("v_lshl_or_b32 v11, v18, 4, v11         ; V voffset")
    a.label("K1_KOFF")
    vaddr_init(a)
    a("s_lshl_b32 s33, s20, 8")
    a(f"s_add_u32 s33, s33, {LDS_GQ}")
    a("v_and_b32 v40, 31, v2")
    a("v_lshlrev_b32 v40, 2, v40")
    a("v_add_u32 v40, s33, v40")
    a("s_lshl_b32 s33, s20, 11")
    a(f"s_add_u32 s33, s33, {LDS_Q}")
    a("v_add_u32 v43, s33, v3")
    a("s_lshl_b32 s60, s20, 10")
    a(f"s_add_u32 s60, s60, {LDS_PARK}")
    a("v_add_u32 v44, s60, v3")
    a("ds_write_b128 v44, v[40:43]")
    for i in range(160):
        a(f"v_mov_b32 v{AF+i}, 0")
    a("s_waitcnt lgkmcnt(0)")
    srd(a, 28, 10, WS_SIZE)
    if TLBW:
        a("v_mov_b32 v21, 0")
        for w in range(4):
            lab = a.newlabel("TLB")
            a(f"s_cmp_lg_u32 s20, {w}")
            a(f"s_cbranch_scc1 {lab}")
            for pg in (2 * w, 2 * w + 1):
                a(f"s_mov_b32 s33, {spare(pg):#x}")
                a("buffer_load_dword v22, v21, s[28:31], s33 offen sc1")
            if w == 0:
                a("s_lshl_b32 s33, s72, 16")
                a("s_lshl_b32 s34, s73, 7")
                a("s_add_u32 s33, s33, s34")
                a("v_mov_b32 v20, s33")
                a("global_load_dword v22, v20, s[64:65] sc1")
            else:
                a(f"global_load_dword v22, v21, s[{(16, 8, 18)[w-1]}:{(17, 9, 19)[w-1]}]")
            a.label(lab)
    if CODEPF:
        a("s_getpc_b64 s[50:51]")
        a.label("PC_HERE")
        a(f"s_sub_u32 s50, s50, PC_HERE-{KNAME}")
        a("s_subb_u32 s51, s51, 0")
        a("s_lshr_b32 s49, s2, 3")
        a("s_lshl_b32 s49, s49, 2")
        a("s_add_u32 s49, s49, s20")
        a("s_lshl_b32 s49, s49, 9")
        a("v_lshlrev_b32 v21, 3, v2")
        a("v_add_u32 v21, s49, v21")
        a(f"v_min_u32 v21, K_END-{KNAME}-4, v21")
        a("global_load_dword v21, v21, s[50:51]")
    a("s_lshl_b32 s32, s21, 2")
    a("s_lshl_b32 s33, s23, 1")
    a("s_add_u32 s32, s32, s33                ; tt0")
    a("s_and_b32 s36, s22, 7")
    a("s_lshl_b32 s36, s36, 2")
    a("s_lshl_b32 s37, s24, 1")
    a("s_add_u32 s36, s36, s37")
    a(f"s_mul_i32 s36, s36, {HK}")
    a("s_add_u32 s36, s36, s32")
    a("s_lshl_b32 s36, s36, 10")
    a("s_cmp_lt_u32 s22, 8")
    a(f"s_mov_b32 s38, {WS_V}")
    a(f"s_cselect_b32 s38, {WS_K}, s38")
    a("s_movk_i32 s37, 512")
    a(f"s_cselect_b32 s37, {HK*1024}, s37")
    a("s_add_u32 s36, s36, s38")
    a("s_add_u32 s37, s37, s36")
    a("s_mov_b32 s25, 0")
    tab = sum(((XPOS[c + 1] - XPOS[c]) & 15) << (4 * c) for c in range(8))
    a(f"s_mov_b32 s61, {tab:#x}")
    a("s_mov_b32 s26, 8")
    BB = [24, 44]
    def reads(s_, buf, kv):
        L = [f"ds_read_b128 {v(buf,4)}, v{XA[s_]}"]
        for t in range(2):
            for u in range(2):
                L.append(f"ds_read_b64_tr_b16 {v(buf+8+4*t+2*u,2)}, v{WA[t]} offset:{(16*s_+4*u)*128}")
            if t == 0:
                L.append(f"ds_read_b128 {v(buf+4,4)}, v{XA[s_]} offset:4096")
        if kv:
            for u in range(2):
                L.append(f"ds_read_b64_tr_b16 {v(buf+16+2*u,2)}, v{KA} offset:{(16*s_+4*u)*128}")
        return L
    def mfs(buf, sw, vtype):
        L = []
        for t in range(2):
            for i in range(2):
                acc = accF(sw, i, t)
                L.append(f"{MF} {v(acc,16)}, {v(buf+8+4*t,4)}, {v(buf+4*i,4)}, {v(acc,16)}")
        if sw == 0:
            for i in range(2):
                acc = AK + 16 * i
                A_, B_ = v(buf + 16, 4), v(buf + 4 * i, 4)
                if vtype:
                    A_, B_ = B_, A_
                L.append(f"{MF} {v(acc,16)}, {A_}, {B_}, {v(acc,16)}")
        return L
    def sweep(name, sw, vtype):
        a.raw(".p2align 6")
        place(a, "S1")
        a.label(name)
        kv = sw == 0
        nr = 8 if kv else 6
        for s_ in range(4):
            upd = []
            if s_ == 2:
                upd = ["s_add_u32 s25, s25, 1", "s_cmp_eq_u32 s25, 3", f"s_mov_b32 s27, {WSL}",
                       f"s_cselect_b32 s27, {(-2*WSL) & 0xffffffff:#x}, s27", "s_cselect_b32 s25, 0, s25",
                       "s_bfe_i32 s33, s61, 0x40000", "s_lshr_b32 s61, s61, 4", "s_lshl_b32 s33, s33, 14"]
                upd += [f"v_add_u32 v{r}, s27, v{r}" for r in WA + [KA]] + [f"v_add_u32 v{r}, s33, v{r}" for r in XA]
            if s_ == 1 and sw == 1:
                upd = [f"s_cmp_lg_u32 s26, {17 - AFLAG}", f"s_cbranch_scc1 {name}_ND", "s_waitcnt vmcnt(0)", f"{name}_ND:"]
            M = mfs(BB[s_ & 1], sw, vtype)
            if s_ < 3:
                R = reads(s_ + 1, BB[(s_ + 1) & 1], kv)
                seq = [f"s_waitcnt lgkmcnt({nr-4})", M[0], R[0], R[1], M[1], R[2], R[3], "s_waitcnt lgkmcnt(4)", M[2], R[4], R[5]]
                if kv:
                    seq += [M[3], R[6], R[7], M[4]] + upd[:10] + [M[5]] + upd[10:]
                elif s_ == 1:
                    seq += [M[3]] + upd
                else:
                    seq += upd[:5] + [M[3]] + upd[5:]
            else:
                R = reads(0, BB[0], kv)
                tail = ["s_sub_u32 s26, s26, 1", "s_cmp_lg_u32 s26, 0"]
                seq = [f"s_waitcnt lgkmcnt({nr-4})", M[0], "s_waitcnt lgkmcnt(0)", "s_barrier", R[0], M[1], R[1], R[2], R[3], M[2], R[4], R[5]]
                if kv:
                    seq += [M[3], R[6], R[7], M[4]] + tail + [M[5]]
                else:
                    seq += tail + [M[3]]
            for l in seq:
                a(l)
        a(f"s_cbranch_scc1 {name}")
    if FASTX:
        a(f"s_waitcnt vmcnt({1 if CODEPF else 0})")
    a("s_barrier                              ; b(0)")
    stamp(a, 1)
    for l in reads(0, BB[0], True):
        a(l)
    a("s_cmp_lt_u32 s22, 8")
    a("s_cbranch_scc0 SW1V")
    sweep("SW1K", 0, False)
    a("s_branch K1_KVEPI")
    sweep("SW1V", 0, True)
    a.label("K1_KVEPI")
    a("s_waitcnt vmcnt(0)")
    stamp(a, 2)
    c0 = -2.0 * 0.7978845608028654 * LOG2E
    c1 = c0 * 0.044715
    T = 64
    TB = 16
    def gelu_tile(acc, out, pk):
        L = []
        if pk:
            for j in range(0, 8, 2):
                L.append(f"v_pk_mul_f32 {v(TB+j,2)}, {v(acc+j,2)}, {v(acc+j,2)}")
            for j in range(0, 8, 2):
                L.append(f"v_pk_fma_f32 {v(TB+j,2)}, {v(TB+j,2)}, s[34:35], v[12:13]")
            for j in range(0, 8, 2):
                L.append(f"v_pk_mul_f32 {v(TB+j,2)}, {v(TB+j,2)}, {v(acc+j,2)}")
            for j in range(8):
                L.append(f"v_exp_f32 v{TB+j}, v{TB+j}")
            for j in range(0, 4, 2):
                L.append(f"v_pk_mul_f32 {v(acc+8+j,2)}, {v(acc+8+j,2)}, {v(acc+j,2)}")
            for j in range(0, 8, 2):
                L.append(f"v_pk_add_f32 {v(TB+j,2)}, {v(TB+j,2)}, v[14:15]")
            for j in range(8):
                L.append(f"v_rcp_f32 v{TB+j}, v{TB+j}")
            for j in range(4, 8, 2):
                L.append(f"v_pk_mul_f32 {v(acc+8+j,2)}, {v(acc+8+j,2)}, {v(acc+j,2)}")
            for j in range(0, 8, 2):
                L.append(f"v_pk_mul_f32 {v(acc+8+j,2)}, {v(acc+8+j,2)}, {v(TB+j,2)}")
        else:
            for j in range(8):
                L.append(f"v_mul_f32 v{TB+j}, v{acc+j}, v{acc+j}")
            for j in range(8):
                L.append(f"v_fma_f32 v{TB+j}, v{TB+j}, s34, v12")
            for j in range(8):
                L.append(f"v_mul_f32 v{TB+j}, v{TB+j}, v{acc+j}")
            for j in range(8):
                L.append(f"v_exp_f32 v{TB+j}, v{TB+j}")
                L.append(f"v_mul_f32 v{acc+8+j}, v{acc+8+j}, v{acc+j}")
            for j in range(8):
                L.append(f"v_add_f32 v{TB+j}, 1.0, v{TB+j}")
            for j in range(8):
                L.append(f"v_rcp_f32 v{TB+j}, v{TB+j}")
                if j >= 2:
                    L.append(f"v_mul_f32 v{acc+8+j-2}, v{acc+8+j-2}, v{TB+j-2}")
            L.append(f"v_mul_f32 v{acc+14}, v{acc+14}, v{TB+6}")
            L.append(f"v_mul_f32 v{acc+15}, v{acc+15}, v{TB+7}")
        for j in range(0, 8, 2):
            L.append(f"v_cvt_pk_bf16_f32 v{out + j//2}, v{acc+8+j}, v{acc+8+j+1}")
        return L
    def kv_fill():
        L = []
        for i in range(2):
            for j in range(0, 16, 2):
                L.append(f"v_cvt_pk_bf16_f32 v{T + 8*i + j//2}, v{AK+16*i+j}, v{AK+16*i+j+1}")
                if j == 6:
                    L.append(f"buffer_store_dwordx4 {v(T+8*i,4)}, v11, s[28:31], s36 offen offset:{i*1024}{SC}")
            L.append(f"buffer_store_dwordx4 {v(T+8*i+4,4)}, v11, s[28:31], s37 offen offset:{i*1024}{SC}")
        return L
    def q_fill():
        L = []
        for t in range(2):
            for i in range(2):
                acc = accF(0, i, t)
                for hf in range(2):
                    for j in range(8):
                        L.append(f"v_mul_f32 v{acc+8*hf+j}, s34, v{acc+8*hf+j}")
                    for j in range(0, 8, 2):
                        L.append(f"v_cvt_pk_bf16_f32 v{acc+8*hf+j//2}, v{acc+8*hf+j}, v{acc+8*hf+j+1}")
                    L.append(f"s_add_u32 s39, s38, {WS_Q + (t + 4*hf) * HK * 1024}\nbuffer_store_dwordx4 {v(acc+8*hf,4)}, v3, s[28:31], s39 offen offset:{i*1024}{SC}")
        return L
    def cost(l):
        return 8 if l.startswith(("v_exp", "v_rcp")) else 4
    def sweep2(fill, early, qtype, ecap):
        nm = "SQ" if qtype else "SR"
        place(a, "S2")
        F = list(fill)
        late = {}
        if qtype and QSD:
            qs = [l for l in F[20:] if "buffer_store" in l]
            F = F[:20] + [l for l in F[20:] if "buffer_store" not in l]
            early = len(F)
            late = {QS0 + (i * QSD) // 2: [] for i in range(8)}
            for i, l in enumerate(qs):
                late[QS0 + (i * QSD) // 2].append((i, l))
        nlate = [0]
        pos = [0]
        def take(fixed, st):
            used = sum(4 for l in fixed if l.startswith(("ds_", "v_")))
            out = []
            while pos[0] < len(F) and st >= 1:
                cap = ecap if pos[0] < early else CAP
                if used + cost(F[pos[0]]) > cap:
                    break
                used += cost(F[pos[0]])
                out.append(F[pos[0]])
                pos[0] += 1
            return fixed + out
        for c in range(8, 16):
            dx = (xslot(c + 1) - xslot(c)) & 0xffffffff if c < 15 else 0
            dw = (wslot(c + 1) - wslot(c)) & 0xffffffff if c < 15 else 0
            for s_ in range(4):
                st = (c - 8) * 4 + s_
                M = mfs(BB[s_ & 1], 1, False)
                ux = lambda k: [f"v_add_u32 v{XA[k]}, {dx:#x}, v{XA[k]}"] if c < 15 else []
                if s_ < 3:
                    R = reads(s_ + 1, BB[(s_ + 1) & 1], False)
                    last = ux(s_ + 1) + (ux(0) if s_ == 0 else [])
                    if s_ == 2 and c < 15:
                        last += [f"v_add_u32 v{r}, {dw:#x}, v{r}" for r in WA]
                    if s_ == 2 and c == 14:
                        last += ["ds_read_b32 v10, v0"]
                    seq = (["s_waitcnt lgkmcnt(2)", M[0]] + take(R[0:2], st) + [M[1]] + take(R[2:4], st) +
                           ["s_waitcnt lgkmcnt(4)", M[2]] + take(R[4:6], st) + [M[3]] + take(last, st))
                else:
                    R = reads(0, BB[0], False) if c < 15 else []
                    g0 = take(R[:1], st)
                    dr = []
                    nst = sum("buffer_store" in l for l in F[:pos[0]]) + nlate[0]
                    if c + 1 == AFLAG:
                        assert nst >= 4
                        dr = [f"s_waitcnt vmcnt({nst - 4})"]
                    if c + 1 == AFLAGQ and qtype:
                        assert pos[0] >= early and nst == 12
                        dr = ["s_waitcnt vmcnt(0)"]
                    sync = ["s_barrier"] if c < 13 else (["s_mov_b64 exec, 1", "ds_add_u32 v0, v1", "s_mov_b64 exec, -1"] if c == 15 else [])
                    if c == 14:
                        sync = ["v_readfirstlane_b32 s75, v10", "s_bitcmp1_b32 s75, 6", f"s_cbranch_scc0 {nm}_W", f"{nm}_B:"]
                    seq = (["s_waitcnt lgkmcnt(2)", M[0]] + g0[len(R[:1]):] + dr + ["s_waitcnt lgkmcnt(0)"] + sync + R[:1] + [M[1]] +
                           take(R[1:4], st) + [M[2]] + take(R[4:], st) + [M[3]] + take([], st))
                for i_, l in late.get(st, []):
                    assert pos[0] >= 20 + 12 * (i_ + 1), (st, i_, pos[0])
                    seq.append(l)
                    nlate[0] += 1
                for l in seq:
                    if l == "s_barrier" and PROF in (10, 11, 12) and 0 <= c - (8 if PROF != 11 else 10) < 6:
                        if PROF == 12:
                            stamp(a, c - 8 + 1, 12)
                        a(l)
                        stamp(a, c - 8 + 1, 10)
                        stamp(a, c - 10 + 1, 11) if c >= 10 else None
                    else:
                        a(l)
        for l in F[pos[0]:]:
            a(l)
        sys.stderr.write(f"sweep2: {len(F) - pos[0]} of {len(F)} fillers left over\n")
    a(f"v_mov_b32 v0, {LDS_SYNC + 16}")
    a("v_mov_b32 v1, 1")
    a(f"v_mov_b32 v16, {LDS_TAG}")
    a("ds_read_b64 v[18:19], v16")
    a(f"v_mov_b32 v12, {fh(c0)}")
    a("v_mov_b32 v13, v12")
    a("v_mov_b32 v14, 1.0")
    a("v_mov_b32 v15, 1.0")
    a("s_waitcnt lgkmcnt(0)")
    a("v_readfirstlane_b32 s68, v18")
    a("v_readfirstlane_b32 s69, v19")
    a("s_cmp_lt_u32 s22, 12")
    a("s_cbranch_scc1 SW2R")
    a(f"s_mov_b32 s34, {fh(LOG2E*0.25)}")
    a("s_sub_u32 s38, s22, 12")
    a("s_lshl_b32 s38, s38, 3")
    a("s_lshl_b32 s39, s24, 1")
    a("s_add_u32 s38, s38, s39")
    a(f"s_mul_i32 s38, s38, {HK}")
    a("s_add_u32 s38, s38, s32")
    a("s_lshl_b32 s38, s38, 10")
    F = kv_fill() + q_fill()
    sweep2(F, len(F), True, QCAP)
    a("s_branch K1_GE2")
    a.label("SW2R")
    a(f"s_mov_b32 s34, {fh(c1)}")
    a("s_mov_b32 s35, s34")
    if HEARLY:
        a(f"s_mul_i32 s40, s32, {AS}")
        a("s_lshl_b32 s41, s22, 3")
        a("s_add_u32 s40, s40, s41")
        a("s_lshl_b32 s41, s24, 1")
        a("s_add_u32 s40, s40, s41")
        a("s_lshl_b32 s40, s40, 10")
        a(f"s_add_u32 s40, s40, {WS_ACT}")
        a(f"s_add_u32 s41, s40, {AS*1024}")
    F = kv_fill()
    ne = len(F)
    F2 = []
    for i in range(2):
        for t in range(2):
            if i * 2 + t < NFILL:
                F += gelu_tile(accF(0, i, t), 80 + 4 * (i * 2 + t), GPK)
                if HEARLY:
                    F.append(f"buffer_store_dwordx4 {v(80 + 4*(i*2+t),4)}, v3, s[28:31], s{40+i} offen offset:{t*1024}{SC}")
            else:
                F2 += gelu_tile(accF(0, i, t), 80 + 4 * (i * 2 + t), True)
    sweep2(F, ne, False, CAP)
    for l in F2:
        a(l)
    a.label("K1_GE2")
    stamp(a, 3)
    a("v_add_u32 v44, s60, v3")
    a("ds_read_b128 v[40:43], v44")
    a(f"s_mov_b32 s34, {fh(c1)}")
    a("s_mov_b32 s35, s34")
    a(f"s_mul_i32 s36, s32, {AS}")
    a("s_lshl_b32 s37, s22, 3")
    a("s_lshl_b32 s38, s22, 2")
    a("s_add_u32 s38, s38, 44")
    a("s_cmp_lt_u32 s22, 12")
    a("s_cselect_b32 s37, s37, s38")
    a("s_add_u32 s36, s36, s37")
    a("s_lshl_b32 s37, s24, 1")
    a("s_add_u32 s36, s36, s37")
    a("s_lshl_b32 s36, s36, 10")
    a(f"s_add_u32 s36, s36, {WS_ACT}")
    a(f"s_add_u32 s37, s36, {AS*1024}")
    a("s_add_u32 s38, s36, 4096")
    a("s_add_u32 s39, s37, 4096")
    hst = []
    if HLATE >= 0:
        srd(a, 40, 10, WS_SIZE)
        a("s_cmp_lt_u32 s22, 12")
        a(f"s_cselect_b32 s36, s36, {WS_SIZE}")
        a(f"s_cselect_b32 s37, s37, {WS_SIZE}")
    a("s_cmp_lt_u32 s22, 12")
    a("s_cbranch_scc0 K1_GE3")
    for i in range(2):
        for t in range(2):
            if not (HEARLY and i * 2 + t < NFILL):
                if HLATE >= 0:
                    hst.append(f"buffer_store_dwordx4 {v(80 + 4*(i*2+t),4)}, v3, s[40:43], s{36+i} offen offset:{t*1024}{SC}")
                else:
                    a(f"buffer_store_dwordx4 {v(80 + 4*(i*2+t),4)}, v3, s[28:31], s{36+i} offen offset:{t*1024}{SC}")
    place(a, "GE")
    a.label("K1_GE3")
    for t in range(2):
        for i in range(2):
            out = 64 + 4 * (i * 2 + t)
            for l in gelu_tile(accF(1, i, t), out, True)[(-4 if (env("X_NOGE2", 0) and t == 0) else 0):]:
                a(l)
            if HLATE >= 0:
                hst.append(f"buffer_store_dwordx4 {v(out,4)}, v3, s[40:43], s{38+i} offen offset:{t*1024}{SC}")
            else:
                a(f"buffer_store_dwordx4 {v(out,4)}, v3, s[28:31], s{38+i} offen offset:{t*1024}{SC}")

    a.label("K2_ATTN")
    Q = [8, 12]
    G = [4, 5]
    KB = [16, 20]
    VB = [[24, 28], [32, 36]]
    IDX = 6
    VK, VV0, VV1 = 40, 41, 42
    C = [96, 112]
    S = [128, 144]
    P = [160, 176]
    O = [192, 208]
    a(f"v_mov_b32 v{IDX}, 0xdddd")
    def zero_state():
        for i in range(4):
            a(f"v_mov_b32 v{VB[1][1]+i}, 0")
        a("s_nop 1")
        for r in (O[0], O[1], P[1]):
            a(f"{MF} {v(r,16)}, {v(VB[1][1],4)}, {v(VB[1][1],4)}, 0")
    zero_state()
    a("s_mov_b32 s26, 0")
    a("s_waitcnt lgkmcnt(0)")
    a(f"v_mov_b32 v7, v{VK}                    ; g address")
    a(f"v_mov_b32 v{VK}, v3")
    stamp(a, 1, 16)
    a("s_barrier                              ; X1")
    stamp(a, 2, 16)
    a("s_setprio 2")
    stamp(a, 4)
    stamp(a, 1, 9)
    a(f"ds_read_b128 {v(Q[0],4)}, v43")
    a(f"ds_read_b128 {v(KB[0],4)}, v{VK}")
    a(f"ds_read_b128 {v(Q[1],4)}, v43 offset:1024")
    a("s_waitcnt lgkmcnt(0)")
    for q in range(2):
        a(f"{MF} {v(S[q],16)}, {v(KB[0],4)}, {v(Q[q],4)}, 0")
    a("s_nop 7")
    a("s_nop 3")
    def maxtree(src, dst, acc=False):
        if acc:
            for i in range(0, 16, 2):
                a(f"v_max3_f32 v{dst}, v{src+i}, v{src+i+1}, v{dst}")
        else:
            a(f"v_max_f32 v{dst}, v{src}, v{src+1}")
            for i in range(2, 16, 2):
                a(f"v_max3_f32 v{dst}, v{src+i}, v{src+i+1}, v{dst}")
    for q in range(2):
        maxtree(S[q], 44 + q)
    a.label("K2_SETMAX")
    a(f"ds_read_b128 {v(KB[0],4)}, v{VK}")
    a(f"ds_read_b128 {v(VB[0][0],4)}, v{VV0}")
    a(f"ds_read_b128 {v(VB[0][1],4)}, v{VV1}")
    a(f"ds_read_b128 {v(KB[1],4)}, v{VK} offset:{TP}")
    for q in range(2):
        a(f"v_mov_b32 v{46+q}, v{44+q}")
    a("s_nop 1")
    for q in range(2):
        a(f"v_permlane32_swap_b32 v{44+q}, v{46+q}")
    for q in range(2):
        a(f"v_min_f32 v{44+q}, -v{44+q}, -v{46+q}     ; -max")
    for i in range(0, 16, 2):
        a(f"v_pk_mov_b32 {v(C[0]+i,2)}, v[44:45], v[44:45] op_sel:[0,0]")
    a("s_waitcnt lgkmcnt(0)")
    a("s_nop 0")
    a(f"{MF} {v(S[0],16)}, {v(KB[0],4)}, {v(Q[0],4)}, {v(C[0],16)}")
    for i in range(0, 16, 2):
        a(f"v_pk_mov_b32 {v(C[1]+i,2)}, v[44:45], v[44:45] op_sel:[1,1]")
    a("s_nop 3")
    stamp(a, 2, 9)
    if HU < 0:
        a("s_cmp_lg_u32 s26, 0")
        a("s_cbranch_scc1 K2_NOBAR")
        a("s_waitcnt vmcnt(0)")
        a("s_barrier")
        a.label("K2_NOBAR")
    else:
        a("s_lshl_b32 s27, 1, s20")
        a("v_mov_b32 v48, s27")
    stamp(a, 3, 9)
    stamp(a, 3, 16)
    if PROF == 16:
        a("s_mov_b32 s89, 0")
        a("s_mov_b32 s90, 0")
    if PADATT:
        pad_until(a, PADATT)
    U = UA
    assert U in (8, 16)
    a(f"s_mov_b32 s27, {64 // U - 1}")
    a("s_mov_b32 s77, 2")
    a(f"v_mov_b32 v46, {LDS_SYNC + 12}")
    a.raw(".p2align 6")
    place(a, "A")
    a.label("K2_LOOP")
    def exps(q, lo, hi):
        for i in range(lo, hi):
            a(f"v_exp_f32 v{P[q]+i}, v{S[q]+i}")
    def smf(q, vb, half):
        a(f"v_smfmac_f32_32x32x32_bf16 {v(O[q],16)}, {v(vb,4)}, {v(P[q]+8*half,8)}, v{IDX}")
    for u in range(U):
        b = u & 1
        a(f"{MF} {v(S[1],16)}, {v(KB[b],4)}, {v(Q[1],4)}, {v(C[1],16)}")
        if u == 8:
            a("s_bitcmp1_b32 s75, s77")
            a("s_cbranch_scc0 K2_KVM")
            a.label("K2_MID")
        if HLATE >= 0 and u >= HLATE and (u - HLATE) % HSTEP == 0 and (u - HLATE) // HSTEP < len(hst):
            assert u + 2 < HU
            a(hst[(u - HLATE) // HSTEP])
        exps(0, 0, 5)
        smf(1, VB[b ^ 1][1], 1)
        if u == 8:
            a("s_add_u32 s77, s77, 4")
            a("s_min_u32 s77, s77, 14")
        if u == TNEAR and EARLYT:
            a("s_mov_b64 exec, 1")
            a(f"ds_write_b32 v46, v{VK} offset:8")
            a("s_mov_b64 exec, -1")
        a(f"ds_read_b128 {v(VB[b^1][0],4)}, v{VV0} offset:{(u+1)*VP}")
        exps(0, 5, 11)
        smf(0, VB[b][0], 0)
        if u == HU:
            a("s_waitcnt vmcnt(0)")
            a("s_mov_b64 exec, 1")
            a("ds_or_b32 v46, v48 offset:8")
            a("s_mov_b64 exec, -1")
        a(f"ds_read_b128 {v(VB[b^1][1],4)}, v{VV1} offset:{(u+1)*VP}")
        exps(0, 11, 16)
        a(f"{MF} {v(S[0],16)}, {v(KB[b^1],4)}, {v(Q[0],4)}, {v(C[0],16)}")
        a(f"ds_read_b128 {v(KB[b],4)}, v{VK} offset:{(u+2)*TP}")
        exps(1, 0, 5)
        smf(0, VB[b][1], 1)
        if u % 8 == 7:
            a("ds_read_b32 v47, v46")
        exps(1, 5, 11)
        smf(1, VB[b][0], 0)
        a("s_waitcnt lgkmcnt(0)")
        if u == U - 1:
            a(f"v_add_u32 v{VK}, {U*TP}, v{VK}")
            a(f"v_add_u32 v{VV0}, {U*VP}, v{VV0}")
            a(f"v_add_u32 v{VV1}, {U*VP}, v{VV1}")
        if u % 8 == 7:
            a("v_readfirstlane_b32 s75, v47")
        exps(1, 11, 16)
        if u == 7:
            mid_check = True
    a("s_bitcmp1_b32 s75, s77")
    a("s_cbranch_scc0 K2_KVW")
    a.label("K2_NEXT")
    if HLATE >= 0:
        a("s_mov_b32 s42, 0")
    a("s_add_u32 s77, s77, 4")
    a("s_min_u32 s77, s77, 14")
    if PROF in (9, 16):
        a("s_memrealtime s[96:97]")
        a("s_memtime s[98:99]")
        a("s_waitcnt lgkmcnt(0)")
        for it, sl in (((3, 4), (2, 5), (1, 6)) if PROF == 9 else ((3, 4), (1, 5), (0, 6))):
            a(f"s_cmp_eq_u32 s27, {it}")
            a(f"s_cselect_b32 s{80+sl}, s96, s{80+sl}")
            a(f"s_cselect_b32 s{88+sl}, s98, s{88+sl}")
    a("s_sub_u32 s27, s27, 1")
    a("s_cbranch_scc0 K2_LOOP")
    a("s_nop 1")
    smf(1, VB[(U - 1) & 1][1], 1)
    stamp(a, 5)
    stamp(a, 1, 8)
    stamp(a, 1, 13)
    a(f"v_mov_b32 v46, {LDS_SYNC + 4}")
    a("ds_read_b32 v47, v46")
    a(f"ds_read_b32 v{G[0]}, v7")
    a(f"ds_read_b32 v{G[1]}, v7 offset:128")
    a("s_lshl_b32 s24, s71, 2")
    a("s_add_u32 s24, s24, s20")
    a("s_lshl_b32 s24, s24, 5")
    a("s_add_u32 s24, s24, s70")
    a(f"s_mul_i32 s25, s24, {OS}" if TAGO else "s_lshl_b32 s25, s24, 11")
    a(f"s_add_u32 s25, s25, {WS_O}")
    a("v_mov_b32 v48, 0")
    a("v_mov_b32 v49, 0")
    a(f"v_pk_mul_f32 v[44:45], {v(O[0],2)}, v[48:49]")
    for i in range(2, 10, 2):
        a(f"v_pk_fma_f32 v[44:45], {v(O[0]+i,2)}, v[48:49], v[44:45]")
    for i in range(0, 10, 2):
        a(f"v_pk_fma_f32 v[44:45], {v(O[1]+i,2)}, v[48:49], v[44:45]")
    a(f"v_mul_f32 v50, {fh(2.0**68)}, v{O[0]+8}")
    a(f"v_mul_f32 v51, {fh(2.0**68)}, v{O[1]+8}")
    a("v_pk_fma_f32 v[44:45], v[50:51], v[48:49], v[44:45]")
    a("v_cmp_u_f32 vcc, v44, v45")
    a("s_nop 1")
    a("s_cmp_eq_u64 vcc, 0")
    a("s_cbranch_scc0 K2_FB")
    a.label("K2_FIN")
    for q in range(2):
        a(f"v_rcp_f32 v{48+q}, v{O[q]+8}")
    a(f"s_mov_b32 s74, {SPIN*8}")
    a.label("K2_GW")
    a("s_waitcnt lgkmcnt(0)")
    a("v_readfirstlane_b32 s75, v47")
    a("s_sub_u32 s74, s74, 1")
    a("s_cmp_eq_u32 s74, 0")
    a("s_cbranch_scc1 K2_GOK")
    a("s_cmp_ge_u32 s75, 64")
    a("s_cbranch_scc1 K2_GOK")
    a("s_sleep 1")
    a("ds_read_b32 v47, v46")
    a(f"ds_read_b32 v{G[0]}, v7")
    a(f"ds_read_b32 v{G[1]}, v7 offset:128")
    a("s_branch K2_GW")
    a.label("K2_GOK")
    for q in range(2):
        a(f"v_mul_f32 v{44+2*q}, v{48+q}, v{G[q]}")
    GR = S[0]
    a(f"v_mov_b32 v{GR+8}, s68")
    a(f"v_mov_b32 v{GR+9}, s69")
    a(f"v_mov_b32 v{GR+10}, s68")
    a(f"v_mov_b32 v{GR+11}, s69")
    if TAGO:
        for r in (3, 7, 14, 15):
            a(f"v_mov_b32 v{GR+r}, s68")
    for q in range(2):
        for i in range(0, 8, 2):
            a(f"v_pk_mul_f32 {v(O[q]+i,2)}, {v(O[q]+i,2)}, {v(44+2*q,2)} op_sel_hi:[1,0]")
        for i in range(0, 8, 2):
            a(f"v_cvt_pk_bf16_f32 v{GR + 12 + q if (TAGO and i == 6) else GR + 4*q + i//2}, v{O[q]+i}, v{O[q]+i+1}")
        a(f"buffer_store_dwordx4 {v(GR+4*q,4)}, v3, s[28:31], s25 offen offset:{q*1024}{SC}")
    if TAGO:
        a(f"buffer_store_dwordx4 {v(GR+12,4)}, v3, s[28:31], s25 offen offset:2048{SC}")
    if FRESH:
        a("s_lshl_b32 s24, s24, 12")
        a(f"s_add_u32 s24, s24, {WS_FR}")
        a("v_lshlrev_b32 v45, 7, v2")
    else:
        a("s_lshl_b32 s24, s24, 7")
        a(f"s_add_u32 s24, s24, {FL_C}")
    a(f"v_mov_b32 v46, {LDS_SYNC + 8}")
    a("v_mov_b32 v47, 1")
    a("s_mov_b64 exec, 1")
    a("ds_add_u32 v46, v47")
    a("s_mov_b64 exec, -1")
    NSD = min(NDEF, 11)
    if NDEF:
        srd(a, 44, 16, 0x1c0000)
        a(f"s_mul_i32 s53, s20, {DSTG}")
        a("s_add_u32 s53, s53, 0x10000")
        frag_addrs(a, "s53")
        part_addrs(a, "s53", 240)
        a(f"s_mul_i32 s32, s20, {NDEF}")
        a(f"s_add_u32 s32, s32, {4*(28-NDEF)}")
        a(f"s_mul_i32 s33, s72, {2*AS*1024}")
        a("s_lshl_b32 s34, s32, 10")
        a("s_add_u32 s33, s33, s34")
        a(f"s_add_u32 s33, s33, {WS_ACT}")
        a(f"s_add_u32 s34, s33, {AS*1024}")
        a("s_lshl_b32 s35, s32, 14")
        a("s_lshl_b32 s36, s73, 7")
        a("s_add_u32 s35, s35, s36")
        a("v_and_b32 v4, 31, v2")
        a("v_lshlrev_b32 v4, 2, v4")
        a(f"v_add_u32 v4, {LDS_OG}, v4")
        a("ds_read_b32 v244, v4")
        a("ds_read_b32 v246, v4 offset:128")
        a("ds_read_b32 v47, v46")
    stamp(a, 2, 13)
    if not TAGO:
        a("s_waitcnt vmcnt(0)")
    stamp(a, 3, 13)
    if FULLF:
        a("s_mov_b64 exec, 0xff")
        a(f"buffer_store_dwordx4 {v(GR+8,4)}, v3, s[28:31], s24 offen sc1")
    elif FRESH:
        a("s_mov_b32 exec_hi, 0")
        a(f"buffer_store_dwordx2 {v(GR+8,2)}, v45, s[28:31], s24 offen sc1")
    elif ATFLAG:
        a("s_mov_b64 exec, 1")
        a(f"buffer_atomic_swap_x2 {v(GR+8,2)}, v3, s[28:31], s24 offen sc1")
    else:
        a("s_mov_b64 exec, 1")
        a(f"buffer_store_dwordx2 {v(GR+8,2)}, v3, s[28:31], s24 offen sc1")
    a("s_mov_b64 exec, -1")
    a("s_setprio 0")
    stamp(a, 6)
    stamp(a, 2, 8)
    if NDEF:
        lds_wait(a, 46, 47, ["s_and_b32 s75, s75, 255", "s_cmp_ge_u32 s75, 68"], first_read=False)
        a("v_mov_b32 v248, v46")
        a("v_mov_b32 v249, 256")
        DA_, DW_, DC_ = 144, 80, 16
        dq = []
        def dw(k):
            a(f"s_add_u32 m0, s53, {(k % NSD) * 2048}")
            a("s_nop 0")
            a("buffer_load_dwordx4 v10, s[44:47], s35 offen lds")
            a("buffer_load_dwordx4 v11, s[44:47], s35 offen offset:1024 lds")
            a("s_add_u32 s35, s35, 16384")
            dq.extend([k] * 2)
        def da(k):
            for t in range(2):
                a(f"buffer_load_dwordx4 {v(DA_+8*k+4*t,4)}, v3, s[28:31], s{33+t} offen offset:{(k%4)*1024}{SC}")
            if k % 4 == 3:
                a("s_add_u32 s33, s33, 4096")
                a("s_add_u32 s34, s34, 4096")
            dq.extend([k] * 2)
        def dwait(k):
            a(f"s_waitcnt vmcnt({len(dq) - 1 - max(i for i, t in enumerate(dq) if t == k)})")
        def drd(k):
            b = DW_ + 8 * (k & 1)
            for n in range(2):
                for u in range(2):
                    a(f"ds_read_b64_tr_b16 {v(b+4*n+2*u,2)}, v{12+n} offset:{(k % NSD) * 2048 + u*1024}")
        AH = min(AHD, NDEF)
        for k in range(AH):
            dw(k); da(k)
        dwait(0)
        stamp(a, 3, 8)
        drd(0)
        for k in range(NDEF):
            if k + AH < NDEF:
                dw(k + AH); da(k + AH)
            if k + 1 < NDEF:
                dwait(k + 1)
                if k + 3 == NDEF:
                    a("s_mov_b64 exec, 1")
                    a("ds_add_u32 v248, v249")
                    a("s_mov_b64 exec, -1")
                drd(k + 1)
                a("s_waitcnt lgkmcnt(4)")
            else:
                a("s_waitcnt lgkmcnt(0)")
            b = DW_ + 8 * (k & 1)
            for n in range(2):
                for t in range(2):
                    acc = DC_ + (n * 2 + t) * 16
                    cin = "0" if k == 0 else v(acc, 16)
                    a(f"{MF} {v(acc,16)}, {v(b+4*n,4)}, {v(DA_+8*k+4*t,4)}, {cin}")
        stamp(a, 4, 8)
        a("s_nop 7")
        for n in range(2):
            for t in range(2):
                acc = DC_ + (n * 2 + t) * 16
                if n + t == 0:
                    a("s_nop 1")
                for j in range(0, 16, 2):
                    a(f"v_pk_mul_f32 {v(acc+j,2)}, {v(acc+j,2)}, {v(244+2*t,2)} op_sel_hi:[1,0]")
                for g in range(4):
                    a(f"ds_write_b128 v{240+g}, {v(acc+4*g,4)} offset:{t*8192 + n*128}")
        stamp(a, 5, 8)
    a("s_branch K3_REDUCE")
    a.label("K2_FB")
    a("s_cmp_lg_u32 s26, 0")
    a("s_cbranch_scc1 K2_FIN")
    a("s_waitcnt lgkmcnt(0)")
    a("s_mov_b32 s26, 100")
    vaddr_init(a)
    zero_state()
    a("v_mov_b32 v44, 0xff800000")
    a("v_mov_b32 v45, 0xff800000")
    a("v_mov_b32 v43, v3")
    a("s_mov_b32 s27, 64")
    a.label("K2_MAXLOOP")
    a(f"ds_read_b128 {v(KB[0],4)}, v43")
    a(f"v_add_u32 v43, {TP}, v43")
    a("s_waitcnt lgkmcnt(0)")
    for q in range(2):
        a(f"{MF} {v(S[q],16)}, {v(KB[0],4)}, {v(Q[q],4)}, 0")
    a("s_nop 7")
    a("s_nop 7")
    for q in range(2):
        maxtree(S[q], 44 + q, acc=True)
    a("s_sub_u32 s27, s27, 1")
    a("s_cmp_lg_u32 s27, 0")
    a("s_cbranch_scc1 K2_MAXLOOP")
    a("s_branch K2_SETMAX")
    for nm in ("SQ", "SR"):
        a.label(nm + "_W")
        lds_wait(a, 0, 10, ["s_bitcmp1_b32 s75, 6"])
        a(f"s_branch {nm}_B")
    for lab, back in (("K2_KVW", "K2_NEXT"), ("K2_KVM", "K2_MID"))[:U // 8]:
        a.label(lab)
        if PROF == 16:
            a("s_memtime s[100:101]")
        lds_wait(a, 46, 47, ["s_bitcmp1_b32 s75, s77"])
        if PROF == 16:
            a("s_memtime s[98:99]")
            a("s_waitcnt lgkmcnt(0)")
            a("s_sub_u32 s98, s98, s100")
            a("s_add_u32 s89, s89, s98")
            a("s_lshl_b32 s98, 1, s77")
            a("s_or_b32 s90, s90, s98")
        a(f"s_branch {back}")

    a.label("K2_GEMM")
    ND, NW = 28 - NDEF, 8
    NG = ND // 4
    NS = env('NSW', 3)
    srd(a, 44, 16, 0x1c0000)
    srd(a, 48, 8, 0x80000)
    if FMAP:
        a("s_and_b32 s42, s72, 3")
        a("s_lshl_b32 s42, s42, 1")
        a("s_add_u32 s42, s42, s73")
    else:
        a("s_lshr_b32 s42, s2, 3")
        a("s_and_b32 s43, s42, 7")
        a("s_lshr_b32 s42, s42, 3")
        a("s_lshl_b32 s42, s42, 1")
        a("s_add_u32 s42, s42, s43")
    for _ in range(-(-14 // NG) - 1):
        a(f"s_cmp_ge_u32 s42, {NG}")
        a(f"s_cselect_b32 s43, {NG}, 0")
        a("s_sub_u32 s42, s42, s43")
    if not ROT:
        a("s_mov_b32 s42, 0")
    a("s_mov_b32 s52, s42")
    a(f"s_mul_i32 s32, s23, {ND}")
    a("s_lshl_b32 s43, s42, 2")
    a("s_add_u32 s32, s32, s43")
    a(f"s_mul_i32 s33, s72, {2*AS*1024}")
    a(f"s_add_u32 s33, s33, {WS_ACT}")
    a("s_lshl_b32 s43, s32, 10")
    a("s_add_u32 s33, s33, s43")
    a(f"s_add_u32 s34, s33, {AS*1024}")
    a("s_lshl_b32 s43, s73, 7")
    a("s_lshl_b32 s35, s32, 14")
    a("s_add_u32 s35, s35, s43")
    a("s_lshl_b32 s39, s23, 17")
    a("s_add_u32 s39, s39, s43")
    a(f"s_mul_i32 s53, s23, {3*2048}")
    a(f"s_add_u32 s53, s53, {LDS_WS}")
    GA = 16
    FR = 80
    D = 8
    queue = []
    def ld(dst, sr, k, tag):
        a(f"buffer_load_dwordx4 {v(dst,4)}, v3, s[28:31], s{sr} offen offset:{(k%4)*1024}{SC}")
        queue.append(tag)
    def aloads(k):
        b = FR + (k % D) * 16
        ld(b + 4, 33, k, ("a", k)); ld(b + 12, 34, k, ("a", k))
        if k % 4 == 3:
            a("s_add_u32 s42, s42, 1")
            a(f"s_cmp_eq_u32 s42, {NG}")
            a("s_movk_i32 s43, 4096")
            a(f"s_cselect_b32 s43, {(-(NG-1)*4096) & 0xffffffff:#x}, s43")
            a("s_cselect_b32 s42, 0, s42")
            for sr in (33, 34):
                a(f"s_add_u32 s{sr}, s{sr}, s43")
    def wloads(k):
        a(f"s_add_u32 m0, s53, {(k % NS) * 2048}")
        sr, rs = (35, 44) if k < ND else (39, 48)
        a("s_nop 0")
        a(f"buffer_load_dwordx4 v248, s[{rs}:{rs+3}], s{sr} offen lds")
        a(f"buffer_load_dwordx4 v249, s[{rs}:{rs+3}], s{sr} offen offset:1024 lds")
        queue.extend([("w", k)] * 2)
        a(f"s_add_u32 s{sr}, s{sr}, 16384")
        if k < ND and k % 4 == 3:
            a("s_add_u32 s52, s52, 1")
            a(f"s_cmp_eq_u32 s52, {NG}")
            a(f"s_cselect_b32 s43, {(-ND*16384) & 0xffffffff:#x}, 0")
            a("s_cselect_b32 s52, 0, s52")
            a("s_add_u32 s35, s35, s43")
    def waitfor(*tags):
        n = len(queue) - 1 - max(i for i, t in enumerate(queue) if t in tags)
        a(f"s_waitcnt vmcnt({n})")
    def wreads(k):
        b = FR + (k % D) * 16
        for n in range(2):
            for u in range(2):
                a(f"ds_read_b64_tr_b16 {v(b+8*n+2*u,2)}, v{250+n} offset:{(k % NS) * 2048 + u*1024}")
    def mm(k):
        b = FR + (k % D) * 16
        for n in range(2):
            for t in range(2):
                acc = GA + (n * 2 + t) * 16
                cin = "0" if k == 0 else v(acc, 16)
                a(f"{MF} {v(acc,16)}, {v(b+8*n,4)}, {v(b+4+8*t,4)}, {cin}")
    stamp(a, 3)
    a(f"v_mov_b32 v22, {LDS_SYNC + 16}")
    lds_wait(a, 22, 23, ["s_bitcmp1_b32 s75, 2"])
    a("ds_write_b128 v36, v[40:43]")
    a("ds_write_b128 v36, v[44:47] offset:16")
    a(f"ds_write_b128 v36, v[40:43] offset:{2*VP}")
    a(f"ds_write_b128 v36, v[44:47] offset:{2*VP+16}")
    if KVV == 1:
        kv_loads(3, 5)
    a(f"s_waitcnt vmcnt({4 if KVV == 1 else 0}) lgkmcnt(0)")
    stamp(a, 5, 15)
    if KVV >= 3:
        kv_loads(3, 5)
    if KVV >= 4:
        kv_loads(5, 7)
    a("s_barrier                              ; X1")
    a(f"s_setprio {GPRIO}")
    stamp(a, 6, 15)
    if KVV == 2:
        kv_loads(3, 5)
    if KVV < 4:
        kv_loads(5, 7)
    else:
        kv_loads(7, 9)
    def b1_flag():
        a("s_cmp_lg_u32 s23, 1")
        a("s_cbranch_scc1 K2_NOB1")
        a("s_lshl_b32 s37, s21, 4")
        a("s_add_u32 s37, s37, s22")
        a("s_lshl_b32 s37, s37, 7")
        a(f"s_add_u32 s37, s37, {FL_B1}")
        flag_store(a, "s37", 16)
        a.label("K2_NOB1")
    if HU < 0:
        a("s_barrier                              ; X2")
        b1_flag()
    a(f"v_mov_b32 v34, {LDS_SYNC + 12}")
    def arrived(stage, n):
        a(f"v_mov_b32 v35, {1 << (4 * stage)}")
        a(f"s_waitcnt vmcnt({n})")
        a("s_mov_b64 exec, 1")
        a("ds_add_u32 v34, v35")
        a("s_mov_b64 exec, -1")
    if KVV < 4:
        kv_loads(7, 9)
    arrived(0, 8)
    arrived(1, 4)
    if HU >= 0 and HLATE < 0:
        a(f"v_mov_b32 v22, {LDS_SYNC + 20}")
        lds_wait(a, 22, 23, ["s_cmp_eq_u32 s75, 15"])
        b1_flag()
    kv_loads(9, 12)
    arrived(2, 6)
    kv_loads(12, 16)
    srd(a, 44, 16, 0x1c0000)
    arrived(3, 0)
    a("v_mov_b32 v69, s68")
    a("s_lshl_b32 s55, s76, 4")
    a(f"s_add_u32 s55, s55, {WS_G}")
    a("s_mov_b32 exec_lo, 1")
    a("s_mov_b32 exec_hi, 1")
    a(f"buffer_store_dwordx2 v[68:69], v70, s[28:31], s55 offen{SC}")
    a("s_mov_b64 exec, -1")
    if HLATE >= 0:
        a(f"v_mov_b32 v22, {LDS_SYNC + 20}")
        lds_wait(a, 22, 23, ["s_cmp_eq_u32 s75, 15"], slp=4)
        b1_flag()
    if WARMW and FMAP:
        a("s_lshr_b32 s54, s2, 3")
        a("s_lshl_b32 s54, s54, 2")
        a("s_add_u32 s54, s54, s23")
        a("s_mul_i32 s55, s54, 14336")
        a("v_min_u32 v14, 55, v2")
        a("v_lshlrev_b32 v14, 7, v14")
        a("buffer_load_dword v15, v14, s[44:47], s55 offen")
        a("s_add_u32 s55, s55, 7168")
        a("buffer_load_dword v15, v14, s[44:47], s55 offen")
        a("s_lshl_b32 s55, s54, 12")
        a("v_and_b32 v14, 31, v2")
        a("v_lshlrev_b32 v14, 7, v14")
        a("buffer_load_dword v15, v14, s[48:51], s55 offen")
    elif WARMW:
        a("s_lshr_b32 s54, s2, 3")
        a("s_and_b32 s54, s54, 7")
        a("s_lshl_b32 s55, s54, 2")
        a("s_add_u32 s55, s55, s23")
        a("s_mul_i32 s55, s55, 57344")
        a("s_add_u32 s55, s55, s43")
        a("v_min_u32 v14, 55, v2")
        a("v_lshlrev_b32 v14, 10, v14")
        a("buffer_load_dword v15, v14, s[44:47], s55 offen")
        a("s_lshl_b32 s55, s54, 2")
        a("s_add_u32 s55, s55, s23")
        a("s_lshl_b32 s55, s55, 14")
        a("s_add_u32 s55, s55, s43")
        a("v_and_b32 v14, 15, v2")
        a("v_lshlrev_b32 v14, 10, v14")
        a("buffer_load_dword v15, v14, s[48:51], s55 offen")
    for k in range(NS):
        wloads(k)
    a("s_setprio 3")
    a("v_and_b32 v6, 15, v2")
    a("v_lshlrev_b32 v6, 7, v6")
    a("s_lshr_b32 s24, s72, 1")
    a("s_lshl_b32 s24, s24, 11")
    a(f"s_add_u32 s24, s24, {FL_B1}")
    poll_shared(a, 3, [("s24", 6, 8, 4)], 20, lslp=4)
    a("v_and_b32 v6, 31, v2")
    a("v_lshlrev_b32 v6, 3, v6")
    a("v_lshlrev_b32 v7, 3, v2")
    a("s_lshl_b32 s54, s72, 9")
    a(f"s_add_u32 s54, s54, {WS_G}")
    a("s_lshl_b32 s55, s71, 2")
    a("s_add_u32 s55, s55, s23")
    a("s_lshl_b32 s55, s55, 9")
    a(f"s_add_u32 s55, s55, {WS_G}")
    a(f"s_mov_b32 s74, {SPIN}")
    a.label("K2_GL")
    a(f"buffer_load_dwordx2 v[240:241], v6, s[28:31], s54 offen{SC}")
    a(f"buffer_load_dwordx2 v[242:243], v6, s[28:31], s54 offen offset:256{SC}")
    a(f"buffer_load_dwordx2 v[244:245], v7, s[28:31], s55 offen{SC}")
    a("s_waitcnt vmcnt(0)")
    a("v_xor_b32 v8, s68, v241")
    a("v_xor_b32 v9, s68, v243")
    a("v_xor_b32 v14, s68, v245")
    a("v_or3_b32 v8, v8, v9, v14")
    a("v_cmp_ne_u32 vcc, 0, v8")
    a("s_sub_u32 s74, s74, 1")
    a("s_cbranch_scc1 K2_GD")
    a("s_cmp_eq_u64 vcc, 0")
    a("s_cbranch_scc1 K2_GD")
    a("s_sleep 4")
    a("s_branch K2_GL")
    a.label("K2_GD")
    a("s_lshl_b32 s55, s23, 8")
    a(f"s_add_u32 s55, s55, {LDS_GQ}")
    a("v_lshrrev_b32 v7, 1, v7")
    a("v_add_u32 v7, s55, v7")
    a("ds_write_b32 v7, v244")
    a("v_sub_f32 v240, 1.0, v240")
    a("v_sub_f32 v242, 1.0, v242")
    a("v_lshrrev_b32 v6, 1, v6")
    a(f"v_add_u32 v6, {LDS_OG}, v6")
    a("ds_write_b32 v6, v240")
    a("ds_write_b32 v6, v242 offset:128")
    a(f"v_mov_b32 v8, {LDS_SYNC + 4}")
    a("v_mov_b32 v9, 16")
    a("s_waitcnt lgkmcnt(0)")
    a("s_mov_b64 exec, 1")
    a("ds_add_u32 v8, v9")
    a("s_mov_b64 exec, -1")
    stamp(a, 4)
    stamp(a, 6, 16)
    DA = DAH
    a("s_setprio 0")
    place(a, "D")
    for k in range(DA):
        aloads(k)
    for k in range(ND + NW):
        waitfor(("w", k), ("a", k))
        wreads(k)
        a("s_waitcnt lgkmcnt(0)")
        if k + NS < ND + NW:
            wloads(k + NS)
        if k + DA < ND:
            aloads(k + DA)
        if k < ND:
            mm(k)
    a("s_setprio 3")
    if NDEF and WARMD:
        assert FMAP
        a(f"s_mul_i32 s33, s72, {2*AS*1024}")
        a("s_lshr_b32 s34, s23, 1")
        a(f"s_mul_i32 s34, s34, {AS*1024}")
        a("s_add_u32 s33, s33, s34")
        a("s_lshl_b32 s34, s73, 1")
        a("s_and_b32 s35, s23, 1")
        a("s_add_u32 s34, s34, s35")
        a(f"s_mul_i32 s34, s34, {NDEF*256}")
        a("s_add_u32 s33, s33, s34")
        a(f"s_add_u32 s33, s33, {WS_ACT + 4*ND*1024}")
        a(f"v_min_u32 v14, {2*NDEF-1}, v2")
        a("v_lshlrev_b32 v14, 7, v14")
        a(f"buffer_load_dword v15, v14, s[28:31], s33 offen{SC}")
        a("s_and_b32 s34, s72, 3")
        a("s_lshl_b32 s34, s34, 2")
        a("s_add_u32 s34, s34, s23")
        a(f"s_mul_i32 s34, s34, {NDEF*4096}")
        a("s_lshl_b32 s35, s73, 7")
        a("s_add_u32 s34, s34, s35")
        a(f"s_add_u32 s34, s34, {4*ND*16384}")
        a(f"v_min_u32 v14, {4*NDEF-1}, v2")
        a("v_lshlrev_b32 v14, 10, v14")
        a("buffer_load_dword v15, v14, s[44:47], s34 offen")
    a("s_nop 7")
    a("s_nop 7")
    for n in range(2):
        for t in range(2):
            acc = GA + (n * 2 + t) * 16
            for j in range(16):
                a(f"v_mul_f32 v{acc+j}, v{acc+j}, v{240+2*t}")
    a("s_lshl_b32 s24, s72, 2")
    a("s_add_u32 s24, s24, s23")
    a(f"s_mul_i32 s24, s24, {8*OS}" if TAGO else "s_lshl_b32 s24, s24, 14")
    a(f"s_add_u32 s24, s24, {WS_O}")
    a("v_and_b32 v6, 7, v2")
    a("v_lshlrev_b32 v6, 7, v6")
    a("s_lshl_b32 s26, s72, 12")
    a("s_lshl_b32 s25, s23, 10")
    a("s_add_u32 s26, s26, s25")
    if FRESH:
        a("v_lshlrev_b32 v6, 5, v6")
        a("s_lshl_b32 s27, s26, 5")
        a(f"s_add_u32 s27, s27, {WS_FR}")
    a(f"s_add_u32 s26, s26, {FL_C}")
    a(f"v_mov_b32 v11, {LDS_SYNC + 8}")
    a("v_mov_b32 v10, 16")
    a("s_mov_b64 exec, 1")
    a("ds_add_u32 v11, v10")
    a("s_mov_b64 exec, -1")
    a("s_mov_b32 s54, 0")
    a(f"s_mov_b32 s74, {SPIN}")
    if TLBW > 1:
        lab = a.newlabel("TLB")
        a("s_cmp_lg_u32 s23, 2")
        a(f"s_cbranch_scc1 {lab}")
        a("v_mov_b32 v12, 0")
        for pg in (6, 7):
            a(f"s_mov_b32 s33, {spare(pg):#x}")
            a("buffer_load_dword v13, v12, s[28:31], s33 offen sc1")
        a("s_lshl_b32 s33, s72, 16")
        a("s_lshl_b32 s34, s73, 7")
        a("s_add_u32 s33, s33, s34")
        a("v_mov_b32 v12, s33")
        a("global_load_dword v13, v12, s[64:65] sc1")
        a.label(lab)
    stamp(a, 5)
    stamp(a, 1, 8)
    def c_poll(r=8):
        if FRESH:
            a("s_memrealtime s[58:59]")
        a(f"v_mov_b32 v{r}, 0")
        a(f"v_mov_b32 v{r+1}, 0")
        if FRESH:
            a("s_waitcnt lgkmcnt(0)")
            a(f"s_bfe_u32 s58, s58, {(5 << 16) | FRESH:#x}")
            a("s_lshl_b32 s58, s58, 7")
            a("s_add_u32 s26, s27, s58")
        if MASKP:
            a("s_xor_b32 exec_lo, s54, 0xff")
            a("s_mov_b32 exec_hi, 0")
        else:
            a("s_mov_b64 exec, 0xff")
        if ATPOLL:
            a(f"buffer_atomic_or_x2 {v(r,2)}, v6, s[28:31], s26 offen sc0 sc1")
        else:
            a(f"buffer_load_dwordx2 {v(r,2)}, v6, s[28:31], s26 offen sc1")
        a("s_mov_b64 exec, -1")
    def pause():
        if NDEF and PAUSE:
            lab, done = a.newlabel("PZ"), a.newlabel("PZD")
            a(f"s_mov_b32 s76, {SPIN}")
            a.label(lab)
            a("ds_read_b32 v10, v11")
            a("s_waitcnt lgkmcnt(0)")
            a("v_readfirstlane_b32 s75, v10")
            a("s_sub_u32 s76, s76, 1")
            a(f"s_cbranch_scc1 {done}")
            a("s_cmp_ge_u32 s75, 1024")
            a(f"s_cbranch_scc1 {done}")
            a("s_and_b32 s75, s75, 15")
            a(f"s_cbranch_scc0 {done}")
            a("s_sleep 1")
            a(f"s_branch {lab}")
            a.label(done)
    def guard(reg, kk, tag, end=False):
        if not TRIM:
            return
        for w_ in ((2, 4) if end else (4, 2)):
            if not end and kk % w_ == 0:
                a(f"s_and_b32 s58, {reg}, {((1 << w_) - 1) << kk:#x}")
                a(f"s_cbranch_scc0 K3_G{tag}{w_}_{kk}")
            if end and kk % w_ == w_ - 1:
                a.label(f"K3_G{tag}{w_}_{kk - w_ + 1}")
    def o_loads(tag):
        for kk in range(NW):
            b = FR + ((ND + kk) % D) * 16
            guard("s55", kk, "L" + tag)
            a(f"s_bitcmp1_b32 s55, {kk}")
            a(f"s_cbranch_scc0 K3_L{tag}{kk}")
            a(f"s_add_u32 s25, s24, {kk*OS}")
            a(f"buffer_load_dwordx4 {v(b+4,4)}, v3, s[28:31], s25 offen{SC}")
            a(f"buffer_load_dwordx4 {v(b+12,4)}, v3, s[28:31], s25 offen offset:1024{SC}")
            if TAGO:
                a(f"buffer_load_dwordx4 {v(216+4*kk,4)}, v3, s[28:31], s25 offen offset:2048{SC}")
            a.label(f"K3_L{tag}{kk}")
            guard("s55", kk, "L" + tag, True)
    if TMODE:
        if TMODE == 3:
            a(f"v_mov_b32 v12, {LDS_SYNC + 20}")
            a.label("K3_NEAR")
            a("ds_read_b32 v10, v12")
            a("s_waitcnt lgkmcnt(0)")
            a("v_readfirstlane_b32 s75, v10")
            a(f"s_cmp_gt_u32 s75, {12 * 64 * 0xdddd}")
            a("s_cbranch_scc1 K3_NEAR1")
            a(f"s_sleep {PSLOW // 2}")
            a("s_sub_u32 s74, s74, 1")
            a("s_cbranch_scc0 K3_NEAR")
            a.label("K3_NEAR1")
            c_poll()
            a("s_waitcnt vmcnt(0)")
            a("v_cmp_eq_u64 vcc, s[68:69], v[8:9]")
            a(f"s_mov_b32 s74, {SPIN}")
            a("s_mov_b32 s55, vcc_lo")
            a("s_mov_b32 s54, s55")
            o_loads("P")
        a.label("K3_PRE")
        if TMODE == 2:
            a("s_cmp_eq_u32 s54, 0xff")
            a("s_cbranch_scc1 K3_PRE1")
            c_poll()
            a("s_waitcnt vmcnt(0)")
            a("v_cmp_eq_u64 vcc, s[68:69], v[8:9]")
            a("s_nop 0")
            a("s_andn2_b32 s55, vcc_lo, s54")
            a("s_or_b32 s54, s54, s55")
            o_loads("P")
            a.label("K3_PRE1")
        for rep in range(4):
            a("ds_read_b32 v10, v11" + (" offset:12" if EARLYT else ""))
            a("s_waitcnt lgkmcnt(0)")
            a("v_readfirstlane_b32 s75, v10")
            a(f"s_cmp_ge_u32 s75, {(64 - UA) * TP}" if EARLYT else ("s_bitcmp1_b32 s75, 2" if TRIM else "s_and_b32 s75, s75, 15"))
            a("s_cbranch_scc1 K3_GO")
            a(f"s_sleep {PSLOW // 4}")
        a("s_sub_u32 s74, s74, 1")
        a("s_cbranch_scc0 K3_PRE")
        a.label("K3_GO")
    if TPIPE:
        assert TMODE == 1
        a(f"s_mov_b32 s74, {SPIN}")
        a("s_mov_b32 s59, 0")
        c_poll()
        a.label("K3_ROUND")
        a("s_waitcnt vmcnt(0)")
        a("v_cmp_eq_u64 vcc, s[68:69], v[8:9]")
        a("s_sub_u32 s74, s74, 1")
        a("s_cselect_b32 s55, 0xff, vcc_lo")
        a("s_andn2_b32 s55, s55, s54")
        a("s_cbranch_scc0 K3_NONEW")
        stamp(a, 1, 13)
        if PROF == 13:
            a("s_mov_b32 s89, s55")
        if FAST8:
            a("s_cmp_eq_u32 s55, 0xff")
            a("s_cbranch_scc1 K3_ALL8")
        a("s_or_b32 s54, s54, s55")
        o_loads("")
        a.label("K3_NONEW")
        a("s_cmp_eq_u32 s54, 0xff")
        a("s_cbranch_scc1 K3_LAST")
        a("s_or_b32 s58, s55, s59")
        a("s_cbranch_scc1 K3_BUSY")
        a(f"s_sleep {TSLP}")
        a.label("K3_BUSY")
        c_poll()
        a.label("K3_LAST")
        a("s_cmp_eq_u32 s59, 0")
        a("s_cbranch_scc1 K3_NOMM")
        stamp(a, 2, 13)
        a("ds_read_b32 v10, v11")
        a("s_setprio 0")
        for kk in range(NW):
            guard("s59", kk, "M")
            a(f"s_bitcmp1_b32 s59, {kk}")
            a(f"s_cbranch_scc0 K3_C{kk}")
            mm(ND + kk)
            a.label(f"K3_C{kk}")
            guard("s59", kk, "M", True)
        a("s_setprio 3")
        a.label("K3_NOMM")
        a("s_mov_b32 s59, s55")
        a("s_xor_b32 s58, s54, 0xff")
        a("s_or_b32 s58, s58, s59")
        a("s_cbranch_scc1 K3_ROUND")
        if FAST8:
            a("s_branch K3_DONE")
            a.label("K3_ALL8")
            for kk in range(NW):
                b = FR + ((ND + kk) % D) * 16
                if kk % 2 == 0:
                    a(f"s_add_u32 s25, s24, {kk*2048}")
                a(f"buffer_load_dwordx4 {v(b+4,4)}, v3, s[28:31], s25 offen offset:{(kk%2)*2048}{SC}")
                a(f"buffer_load_dwordx4 {v(b+12,4)}, v3, s[28:31], s25 offen offset:{(kk%2)*2048+1024}{SC}")
            a("s_setprio 0")
            for kk in range(NW):
                a(f"s_waitcnt vmcnt({2*(NW-1-kk)})")
                if kk == NW - 1:
                    a("ds_read_b32 v10, v11")
                mm(ND + kk)
            a("s_setprio 3")
            a.label("K3_DONE")
    else:
        a(f"s_mov_b32 s74, {SPIN}")
        a("s_mov_b32 s55, s54")
        if TAGO:
            a("s_mov_b32 s59, 0")
            a("s_mov_b64 s[60:61], -1")
        a("s_branch K3_NEXTP")
        a.label("K3_POLL")
        c_poll()
        a.label("K3_ROUND")
        a("s_waitcnt vmcnt(0)")
        a("v_cmp_eq_u64 vcc, s[68:69], v[8:9]")
        a("s_sub_u32 s74, s74, 1")
        a("s_cselect_b32 s55, 0xff, vcc_lo")
        if TAGO:
            a("s_cselect_b64 s[60:61], 0, -1")
        a("s_andn2_b32 s55, s55, s54")
        a("s_cbranch_scc1 K3_SOME")
        if TMODE:
            a(f"s_sleep {TSLP}")
        else:
            a("ds_read_b32 v10, v11")
            a(f"s_sleep {TSLP}")
            a("s_waitcnt lgkmcnt(0)")
            a("v_readfirstlane_b32 s75, v10")
            a("s_and_b32 s75, s75, 15")
            a("s_cbranch_scc1 K3_POLL")
            a(f"s_sleep {PSLOW}")
        a("s_branch K3_POLL")
        a.label("K3_SOME")
        stamp(a, 1, 13)
        if PROF == 13:
            a("s_mov_b32 s89, s55")
        a("s_or_b32 s54, s54, s55")
        o_loads("")
        a.label("K3_NEXTP")
        a("s_waitcnt vmcnt(0)")
        a("s_cmp_eq_u32 s54, 0xff")
        a("s_cbranch_scc1 K3_LAST")
        c_poll()
        a.label("K3_LAST")
        if not TRIM:
            a("ds_read_b32 v10, v11")
        stamp(a, 2, 13)
        for kk in range(NW):
            guard("s55", kk, "M")
            a(f"s_bitcmp1_b32 s55, {kk}")
            a(f"s_cbranch_scc0 K3_C{kk}")
            if TAGO:
                b = FR + ((ND + kk) % D) * 16
                a(f"v_xor_b32 v12, s68, v{b+7}")
                a(f"v_xor_b32 v13, s68, v{b+15}")
                a(f"v_xor_b32 v14, s68, v{216+4*kk+3}")
                a("v_or3_b32 v12, v12, v13, v14")
                a("v_cmp_ne_u32 s[56:57], 0, v12")
                a(f"v_mov_b32 v{b+7}, v{216+4*kk}")
                a(f"v_mov_b32 v{b+15}, v{216+4*kk+1}")
                a("s_and_b64 s[56:57], s[56:57], s[60:61]")
                a(f"s_cbranch_scc1 K3_X{kk}")
            mm(ND + kk)
            a.label(f"K3_C{kk}")
            guard("s55", kk, "M", True)
        a("s_cmp_lg_u32 s54, 0xff")
        if TAGO:
            a("s_cbranch_scc0 K3_FIN")
            a("s_waitcnt vmcnt(0)")
            a("s_cmp_eq_u32 s59, 0")
            a("s_cbranch_scc1 K3_ROUND")
            a("s_mov_b32 s59, 0")
            a("s_branch K3_POLL")
            for kk in range(NW):
                a.label(f"K3_X{kk}")
                a(f"s_bitset0_b32 s54, {kk}")
                a("s_mov_b32 s59, 1")
                a(f"s_branch K3_C{kk}")
            a.label("K3_FIN")
        else:
            a("s_cbranch_scc1 K3_ROUND")
    stamp(a, 6)
    stamp(a, 2, 8)
    stamp(a, 3, 13)
    if not (TRIM and TMODE == 1 and not EARLYT):
        lds_wait(a, 11, 10, ["s_bitcmp1_b32 s75, 2"], first_read=False)
    for i in range(3, 6):
        stamp(a, i, 8)
    stamp(a, 4, 13)
    a("s_nop 7")
    part_write(a, GA, 212)
    stamp(a, 5, 13)
    a.label("K3_REDUCE")
    srd(a, 24, 64, 0x200000)
    a("s_lshl_b32 s32, s20, 6")
    a("v_add_u32 v0, s32, v2                  ; tid")
    a("v_lshrrev_b32 v7, 3, v0                ; token")
    a("v_and_b32 v5, 7, v0")
    a("v_lshlrev_b32 v6, 1, v5")
    a("v_and_b32 v8, 7, v7")
    a("v_xor_b32 v6, v6, v8")
    a("v_lshlrev_b32 v6, 4, v6")
    a("v_lshl_add_u32 v6, v7, 8, v6")
    a("v_xor_b32 v8, 16, v6")
    a("v_add_u32 v9, 0x10000, v6")
    a("v_add_u32 v10, 0x10000, v8")
    a("v_lshlrev_b32 v7, 10, v7")
    a("v_lshl_add_u32 v7, v5, 4, v7")
    a("s_lshl_b32 s32, s72, 16")
    a("s_lshl_b32 s33, s73, 7")
    a("s_add_u32 s32, s32, s33")
    a("s_waitcnt lgkmcnt(0)")
    a("s_barrier                              ; Y1")
    stamp(a, 6, 8)
    stamp(a, 6, 13)
    NP = 8 if NDEF else 4
    RB = 96
    for w in range(NP):
        off = w * 16384 if w < 4 else (w - 4) * DSTG
        r0, r1 = (6, 8) if w < 4 else (9, 10)
        if off > 65535:
            a("v_add_u32 v9, 0x8000, v9")
            a("v_add_u32 v10, 0x8000, v10")
            off -= 0x8000
        a(f"ds_read_b128 {v(RB+8*w,4)}, v{r0} offset:{off}")
        a(f"ds_read_b128 {v(RB+4+8*w,4)}, v{r1} offset:{off}")
    for w in range(1, NP):
        a(f"s_waitcnt lgkmcnt({2*(NP-1-w)})")
        for j in range(0, 8, 2):
            a(f"v_pk_add_f32 {v(RB+j,2)}, {v(RB+j,2)}, {v(RB+8*w+j,2)}")
    for j in range(0, 8, 2):
        a(f"v_cvt_pk_bf16_f32 v{16+j//2}, v{RB+j}, v{RB+j+1}")
    a("buffer_store_dwordx4 v[16:19], v7, s[24:27], s32 offen" + (" " + OUTSC if OUTSC else ""))
    if PADEND:
        pad_until(a, PADEND)
    stamp_flush(a, 8)
    a.label("K_EXIT")
    a("s_endpgm")
    a.label("K_END")

DOC = """;
"""

def main():
    hdr = open("cdna_kernels/" + NAME + ".s.ref").read().split("\n")
    top = [l for l in hdr if l.startswith(";") and "@launch" not in l]
    out = "\n".join(top) + "\n"
    out += f"; @launch grid=(256,1,1) block=(512,1,1) lds={LDS_TOTAL}\n"
    out += DOC
    out += '.amdgcn_target "amdgcn-amd-amdhsa--gfx950"\n.text\n'
    a = Asm()
    gen(a)
    out += a.text()
    out += '.section .rodata,"a"\n'
    out += kernel_desc(KNAME, 256, 102)
    path = sys.argv[1] if len(sys.argv) > 1 else "cdna_kernels/" + NAME + ".s"
    open(path, "w").write(out)

main()
```

```python
import sys, math, os
from asmlib import *

NAME = "gated_mix__softmax_full_mha__geglu_ffn__prompt"
KNAME = NAME + "_kernel"
LOG2E = 1.4426950408889634
def env(n, d): return int(os.environ.get(n, str(d)))
PROF = env("PROF", 0)
ROT = env("ROT", 1)
TAGPOS = env("TAGPOS", 0)
PADEND = env("PADEND", 0)
PADATT = env("PADATT", 0)
DBGWG = env("DBGWG", -1)
TLBW = env("TLBW", 1)
TLB0 = env("TLB0", 0)
E4 = env("E4", -1)
PFW = env("PFW", 0)
PFI = env("PFI", 1)
PFX = env("PFX", 0)
KVROT = env("KVROT", 1)
AFLAG = env("AFLAG", 10)
PFC = env("PFC", 5)
ONEP = env("ONEP", 0)
FMAP = env("FMAP", 0)
NOTAG = env("NOTAG", 0)
ROT1 = env("ROT1", 2)
OUTSC = os.environ.get("OUTSC", "sc1")
GPK = env("GPK", 0)
UA = env("UA", 16)
PRE = env("PRE", 2)
QLD = env("QLD", 4)
WARMW = env("WARMW", 0)
ROT2 = env("ROT2", 1)
NDEF = env("NDEF", 0)
WARMD = env("WARMD", 1)
PSLOW = env("PSLOW", 16)
PAUSE = env("PAUSE", 1)
KVV = env("KVV", 2)
FASTX = env("FASTX", 0)
FULLF = env("FULLF", 0)
PIPE = env("PIPE", 1)
ATFLAG = env("ATFLAG", 1)
FRESH = env("FRESH", 0)
WS_FR = 0x2000000
PDEL = env("PDEL", 4)
MASKP = env("MASKP", 1)
SPAT = env("SPAT", 3)
LPRIO = env("LPRIO", 0)
FA0 = env("FA0", 13)
AFLAGQ = env("AFLAGQ", 11)
CAP = env("CAP", 20)
QS0 = env("QS0", 6)
QSD = env("QSD", 0)
TMODE = env("TMODE", 1)
GPRIO = env("GPRIO", 3)
ATFA = env("ATFA", 0)
QFIRST = env("QFIRST", 1)
HU = env("HU", -1)
KVW = env("KVW", 0)
HEARLY = env("HEARLY", 0)
HLATE = env("HLATE", -1)
HSTEP = env("HSTEP", 1)
AMIX = env("AMIX", 1)
TPIPE = env("TPIPE", 0)
TRIM = env("TRIM", 0)
TAGO = env("TAGO", 0)
OS = 3072 if TAGO else 2048
EARLYT = env("EARLYT", 0)
FAST8 = env("FAST8", 1)
FULLA = env("FULLA", 0)
ATFS = env("ATFS", 0)
TNEAR = env("TNEAR", 13)
DAH = env("DAH", 4)
GLD = env("GLD", 7)
GMA = env("GMA", 9)
FDEL = env("FDEL", 0)
FSLP = env("FSLP", 1)
QCAP = env("QCAP", 40)
KVA = env("KVA", 0)
NFILL = env("NFILL", 4)
AHD = env("AHD", 6)
ATPOLL = env("ATPOLL", 1)
HINTW = env("HINTW", 0)
TSLP = env("TSLP", 2)
SPF = env("SPF", 0)
CODEPF = env("CODEPF", 1)
SLP = env("SLP", 4)

HK = 65
AS = 113
WS_K = 0x0
WS_V = 0x210000
WS_Q = 0x420000
WS_ACT = 0x640000
WS_O = 0xD60000
WS_G = 0xF70000
WS_FL = 0xF80000
def spare(page):
    c = [b + h * HK * 1024 + 65536 for b in (WS_K, WS_V, WS_Q) for h in range(32)] + [WS_ACT + t * AS * 1024 + 112 * 1024 for t in range(64)] + [0xF60000]
    return next(x for x in c if x >> 21 == page)
FL_A = WS_FL
FL_B1 = WS_FL + 0x8000
FL_Q = WS_FL + 0x10000 - 12 * 2048
FL_B2 = WS_FL + 0x10000
FL_C = WS_FL + 0x20000
WS_STAMP = 0x1800000
WS_SIZE = 0x2800000

XS = 16384
WB = 5 * XS
WSL = 24576
LDS_GQ = 162176
LDS_OG = 163200
LDS_TAG = 163584
LDS_SYNC = LDS_TAG + 8
LDS_TOTAL = 163840
TP = 2080
LDS_V = 1024
VP = TP
LDS_WS = 137472
DSTG = 22528
LDS_Q = WB + 2 * WSL + 16384
LDS_PARK = WB + 3 * WSL
XPOS = [3, 2, 0, 1, 4, 3, 2, 0,  0, 2, 3, 4, 1, 2, 3, 4]
def xslot(c):
    return XPOS[c] * XS
def wslot(c):
    return WB + ((c % 3) * WSL if c < 8 else ((c + 3) % 4) * 16384)

SC = " sc1"
SPIN = 200000
MF = "v_mfma_f32_32x32x16_bf16"

def srd(a, d, base, nbytes):
    a(f"s_mov_b32 s{d}, s{base}")
    a(f"s_mov_b32 s{d+1}, s{base+1}")
    a(f"s_mov_b32 s{d+2}, {nbytes:#x}")
    a(f"s_mov_b32 s{d+3}, 0x20000")

def stamp(a, i, lvl=1):
    if PROF and (PROF == lvl or i in (0, 7) or (PROF == 16 and lvl == 15)):
        a("s_memrealtime s[96:97]")
        a("s_memtime s[98:99]")
        a("s_waitcnt lgkmcnt(0)")
        a(f"s_mov_b32 s{80+i}, s96")
        a(f"s_mov_b32 s{88+i}, s98")

def stamp_flush(a, n):
    if PROF:
        a("s_waitcnt vmcnt(0)")
        stamp(a, n - 1)
        a("s_lshl_b32 s78, s2, 4")
        a("s_add_u32 s78, s78, s20")
        a("s_lshl_b32 s78, s78, 6")
        a(f"s_add_u32 s78, s78, {WS_STAMP}")
        a("v_mov_b32 v1, 0")
        for i in range(n):
            a(f"v_mov_b32 v0, s{80+i}")
            a(f"buffer_store_dword v0, v1, s[28:31], s78 offen offset:{4*i}")
            a("s_nop 1")
            a(f"v_mov_b32 v0, s{88+i}")
            a(f"buffer_store_dword v0, v1, s[28:31], s78 offen offset:{32+4*i}")
            a("s_nop 1")
        a("s_waitcnt vmcnt(0)")
        if DBGWG >= 0:
            a(f"s_cmp_lg_u32 s2, {DBGWG}")
            a("s_cbranch_scc1 DBG_SKIP")
            a("s_and_b32 s78, s20, 3")
            a("s_cmp_lg_u32 s78, 0")
            a("s_cbranch_scc1 DBG_SKIP")
            a("s_mul_i32 s78, s20, 7")
            a("v_mov_b32 v1, s78")
            for i in range(1, n):
                a(f"s_sub_u32 s79, s{80+i}, s80")
                a("v_mov_b32 v0, s79")
                a(f"global_store_dword v1, v0, s[66:67] offset:{4+4*i}")
                a("s_nop 1")
            a("s_waitcnt vmcnt(0)")
            a.label("DBG_SKIP")

def pad_until(a, ticks):
    lab = a.newlabel("PAD")
    a.label(lab)
    a("s_memrealtime s[96:97]")
    a("s_waitcnt lgkmcnt(0)")
    a("s_sub_u32 s96, s96, s68")
    a(f"s_cmp_lt_u32 s96, {ticks}")
    a(f"s_cbranch_scc1 {lab}")

def flag_store(a, soff, vtmp):
    a(f"v_mov_b32 v{vtmp}, s68")
    a(f"v_mov_b32 v{vtmp+1}, s69")
    if FULLA:
        a("v_lshlrev_b32 v%d, 3, v2" % (vtmp + 2))
        a("s_mov_b64 exec, 0xffff")
    else:
        a(f"v_mov_b32 v{vtmp+2}, 0")
        a("s_mov_b64 exec, 1")
    a(f"buffer_store_dwordx2 {v(vtmp,2)}, v{vtmp+2}, s[28:31], {soff} offen sc1")
    a("s_mov_b64 exec, -1")

def poll(a, soff, voff, vtmp, slp=None):
    lab = a.newlabel("POLL")
    done = a.newlabel("POLLD")
    a(f"s_mov_b32 s74, {SPIN}")
    a.label(lab)
    a(f"buffer_load_dwordx2 {v(vtmp,2)}, v{voff}, s[28:31], {soff} offen sc1")
    a("s_waitcnt vmcnt(0)")
    a(f"v_xor_b32 v{vtmp}, s68, v{vtmp}")
    a(f"v_xor_b32 v{vtmp+1}, s69, v{vtmp+1}")
    a(f"v_or_b32 v{vtmp}, v{vtmp}, v{vtmp+1}")
    a(f"v_cmp_ne_u32 vcc, 0, v{vtmp}")
    a("s_sub_u32 s74, s74, 1")
    a("s_cmp_eq_u32 s74, 0")
    a(f"s_cbranch_scc1 {done}")
    a("s_cmp_eq_u64 vcc, 0")
    a(f"s_cbranch_scc1 {done}")
    a(f"s_sleep {SLP if slp is None else slp}")
    a(f"s_branch {lab}")
    a.label(done)

def poll_shared(a, stage, polls, vtmp, lslp=1, extra=None):
    other = a.newlabel("PSO")
    done = a.newlabel("PSD")
    a(f"v_mov_b32 v{vtmp+3}, {LDS_SYNC}")
    a("s_cmp_lg_u32 s23, 0")
    a(f"s_cbranch_scc1 {other}")
    for p in polls:
        poll(a, *p)
    if extra:
        extra()
    a(f"v_mov_b32 v{vtmp}, {stage}")
    a(f"ds_write_b32 v{vtmp+3}, v{vtmp}")
    a(f"s_branch {done}")
    a.label(other)
    a(f"s_mov_b32 s74, {SPIN*8}")
    lab = a.newlabel("PSL")
    a.label(lab)
    a(f"ds_read_b32 v{vtmp}, v{vtmp+3}")
    a("s_waitcnt lgkmcnt(0)")
    a(f"v_readfirstlane_b32 s75, v{vtmp}")
    a("s_sub_u32 s74, s74, 1")
    a("s_cmp_eq_u32 s74, 0")
    a(f"s_cbranch_scc1 {done}")
    a(f"s_cmp_ge_u32 s75, {stage}")
    a(f"s_cbranch_scc1 {done}")
    a(f"s_sleep {lslp}")
    a(f"s_branch {lab}")
    a.label(done)

def cvt_tile(a, acc, dst, lo=0, hi=16):
    for i in range(lo, hi, 2):
        a(f"v_cvt_pk_bf16_f32 v{dst + (i - lo)//2}, v{acc+i}, v{acc+i+1}")

def frag_addrs(a, sbase, R=10):
    a("v_lshrrev_b32 v4, 3, v2")
    a("v_and_b32 v5, 7, v2")
    a("v_bfe_u32 v7, v2, 4, 1")
    a("v_lshlrev_b32 v7, 2, v7")
    a("v_xor_b32 v5, v5, v7")
    a("v_lshlrev_b32 v5, 4, v5")
    a(f"v_lshl_add_u32 v{R}, v4, 10, v5")
    a(f"v_add_u32 v{R+1}, 7168, v{R}")
    a("v_bfe_u32 v4, v2, 2, 2")
    a("v_lshrrev_b32 v5, 5, v2")
    a("v_lshl_add_u32 v5, v5, 2, v4")
    a("v_lshlrev_b32 v5, 7, v5")
    a("v_lshrrev_b32 v4, 1, v4")
    a("v_lshl_add_u32 v5, v4, 6, v5")
    a("v_bfe_u32 v4, v2, 4, 1")
    a("v_lshl_add_u32 v5, v4, 5, v5")
    a("v_and_b32 v4, 3, v2")
    a("v_lshl_add_u32 v5, v4, 3, v5")
    a(f"v_xor_b32 v{R+3}, 64, v5")
    a(f"v_add_u32 v{R+2}, {sbase}, v5")
    a(f"v_add_u32 v{R+3}, {sbase}, v{R+3}")

def part_addrs(a, sbase, r):
    a(f"v_lshrrev_b32 v{r}, 5, v2")
    a(f"v_and_b32 v{r+1}, 7, v2")
    a(f"v_xor_b32 v{r}, v{r}, v{r+1}")
    a(f"v_and_b32 v{r+1}, 31, v2")
    a(f"v_lshlrev_b32 v{r+1}, 8, v{r+1}")
    a(f"v_lshl_add_u32 v{r}, v{r}, 4, v{r+1}")
    for g in range(1, 4):
        a(f"v_xor_b32 v{r+g}, {32*g}, v{r}")
    for g in range(4):
        a(f"v_add_u32 v{r+g}, {sbase}, v{r+g}")

def part_write(a, GA, r):
    for n in range(2):
        for t in range(2):
            acc = GA + (n * 2 + t) * 16
            for g in range(4):
                a(f"ds_write_b128 v{r+g}, {v(acc+4*g,4)} offset:{t*8192 + n*128}")

def lds_wait(a, vaddr, vdst, cmp_lines, first_read=True, slp=1):
    lab, done = a.newlabel("LW"), a.newlabel("LWD")
    a(f"s_mov_b32 s74, {SPIN*8}")
    if first_read:
        a(f"ds_read_b32 v{vdst}, v{vaddr}")
    a.label(lab)
    a("s_waitcnt lgkmcnt(0)")
    a(f"v_readfirstlane_b32 s75, v{vdst}")
    a("s_sub_u32 s74, s74, 1")
    a(f"s_cbranch_scc1 {done}")
    for l in cmp_lines:
        a(l)
    a(f"s_cbranch_scc1 {done}")
    a(f"s_sleep {slp}")
    a(f"ds_read_b32 v{vdst}, v{vaddr}")
    a(f"s_branch {lab}")
    a.label(done)

def vaddr_init(a, VK=40, VV0=41, VV1=42):
    a(f"v_mov_b32 v{VK}, v3")
    a("v_lshrrev_b32 v43, 5, v2")
    a("v_and_b32 v44, 15, v2")
    a("v_lshlrev_b32 v44, 4, v44")
    a("v_lshl_or_b32 v44, v43, 8, v44")
    a(f"v_add_u32 v44, {LDS_V}, v44")
    a("v_add_u32 v45, 512, v44")
    a("v_and_b32 v43, 31, v2")
    a("v_subrev_u32 v47, 20, v43")
    a("v_cmp_gt_u32 vcc, 8, v47")
    a(f"v_mov_b32 v46, {LDS_V + 1040}")
    a(f"v_mov_b32 v47, {LDS_V + 1040 + 2*VP}")
    a("v_cndmask_b32 v46, v46, v47, vcc")
    a("v_and_b32 v47, 27, v43")
    a("v_cmp_eq_u32 vcc, 16, v47")
    a("v_subrev_u32 v47, 16, v46")
    a("s_nop 0")
    a("v_cndmask_b32 v46, v46, v47, vcc")
    a("v_cmp_gt_u32 vcc, 16, v43")
    a("s_nop 1")
    a(f"v_cndmask_b32 v{VV0}, v46, v44, vcc")
    a(f"v_cndmask_b32 v{VV1}, v46, v45, vcc")

def place(a, key):
    m = env("PL_" + key, -1)
    if m >= 0:
        a.raw(".p2align 6")
        for _ in range(m):
            a("s_nop 0")

def gen(a):
    kernel_header(a, KNAME)
    if PROF == 7:
        a("s_memrealtime s[100:101]")
    a("s_cmp_ge_u32 s2, 256")
    a("s_cbranch_scc1 K_EXIT")
    if env("SHUF", 0) == 1:
        a("s_lshr_b32 s3, s2, 3")
        a("s_lshl_b32 s2, s2, 5")
        a("s_or_b32 s2, s2, s3")
        a("s_and_b32 s2, s2, 255")
    if env("SHUF", 0) == 2:
        a("s_mul_i32 s2, s2, 37")
        a("s_add_u32 s2, s2, 11")
        a("s_and_b32 s2, s2, 255")
    if env("JIT", 0):
        a("s_mul_i32 s3, s2, 2654435761")
        a("s_lshr_b32 s3, s3, 27")
        a.label("JIT_L")
        a("s_sleep 8")
        a("s_sub_u32 s3, s3, 1")
        a("s_cbranch_scc0 JIT_L")
    a("s_load_dwordx4 s[4:7], s[0:1], 0       ; x, wqkv")
    a("v_lshrrev_b32 v1, 6, v0")
    a("v_and_b32 v2, 63, v0                   ; lane")
    a("v_readfirstlane_b32 s20, v1")
    VX0, VX1, VR0, VR1, VKV = 10, 11, 12, 13, 14
    if FASTX:
        assert ROT1 == 2 and PRE == 2
        a("v_lshrrev_b32 v4, 3, v2")
        a("v_and_b32 v5, 7, v2")
        a("v_lshrrev_b32 v6, 4, v2")
        a("v_xor_b32 v7, v5, v6")
        a("v_lshlrev_b32 v7, 4, v7")
        a(f"v_lshl_add_u32 v{VX0}, v4, 10, v7")
        a(f"v_xor_b32 v{VX1}, 64, v{VX0}")
        a("s_bfe_u32 s63, s2, 0x30003")
        a("s_and_b32 s40, s2, 1")
        a("s_lshl_b32 s40, s40, 3")
        a("s_add_u32 s40, s40, s63                ; rb")
        a("s_lshl_b32 s40, s40, 2")
        a("s_and_b32 s42, s20, 3")
        a("s_add_u32 s40, s40, s42")
        a("s_lshl_b32 s40, s40, 15")
        a("s_lshl_b32 s42, s42, 12")
        a("s_lshr_b32 s37, s2, 6")
        a("s_add_u32 s37, s37, s63")
        a("s_lshl_b32 s37, s37, 1")
        a("s_lshr_b32 s38, s20, 2")
        a("s_add_u32 s37, s37, s38")
        a("s_and_b32 s37, s37, 7")
        a("s_lshl_b32 s37, s37, 7")
        a("s_add_u32 s37, s37, s40")
        a("s_cmp_lt_u32 s20, 4")
        a(f"s_mov_b32 s38, {slot_of(1)}")
        a(f"s_cselect_b32 s38, {slot_of(0)}, s38")
        a("s_add_u32 s38, s38, s42")
        a("s_mov_b32 s46, 0x200000")
        a("s_mov_b32 s47, 0x20000")
        a("s_waitcnt lgkmcnt(0)")
        a("s_mov_b64 s[44:45], s[4:5]")
        for i in range(4):
            a(f"s_add_u32 m0, s38, {i*1024}")
            a(f"s_add_u32 s39, s37, {i*8192}")
            a(f"buffer_load_dwordx4 v{VX1 if i & 1 else VX0}, s[44:47], s39 offen lds")
    a("s_load_dwordx4 s[12:15], s[0:1], 32")
    a("s_load_dwordx2 s[8:9], s[0:1], 16      ; wo")
    a("s_load_dwordx2 s[10:11], s[0:1], 80    ; ws")
    a("s_load_dwordx4 s[16:19], s[0:1], 48")
    a("s_load_dwordx4 s[64:67], s[0:1], 64")
    a("v_lshlrev_b32 v3, 4, v2                ; lane*16")
    if TLB0:
        a("s_cmp_ge_u32 s20, 4")
        a("s_cbranch_scc1 K0_NOT")
        a("s_lshr_b32 s26, s2, 3")
        a("s_add_u32 s26, s26, s20")
        a("v_mov_b32 v21, 0")
        a("s_bitcmp1_b32 s26, 0")
        a("s_waitcnt lgkmcnt(0)")
        a("s_cselect_b64 s[24:25], s[4:5], s[6:7]")
        a("s_cselect_b64 s[22:23], s[12:13], s[14:15]")
        a("s_bitcmp1_b32 s26, 1")
        a("s_cselect_b64 s[24:25], s[24:25], s[22:23]")
        a("global_load_dword v23, v21, s[24:25]")
        a.label("K0_NOT")
    stamp(a, 0)
    a("s_and_b32 s24, s2, 1                   ; xh")
    a("s_bfe_u32 s25, s2, 0x20001             ; xq")
    a("s_lshr_b32 s26, s2, 3                  ; j")
    a("s_and_b32 s63, s26, 7")
    a("s_lshl_b32 s21, s24, 3")
    a("s_add_u32 s21, s21, s63                ; rb")
    a("s_lshr_b32 s27, s26, 3")
    a("s_mul_i32 s22, s25, 3")
    a("s_add_u32 s22, s22, s27")
    if QFIRST:
        a("s_sub_u32 s22, s22, 1")
    a("s_add_u32 s23, s25, 12")
    a(f"s_cmp_eq_u32 s27, {0 if QFIRST else 3}")
    a("s_cselect_b32 s22, s23, s22            ; cb2")
    if FMAP:
        a("s_and_b32 s72, s2, 7")
        a("s_lshl_b32 s72, s72, 2")
        a("s_and_b32 s73, s26, 3")
        a("s_add_u32 s72, s72, s73                ; rb64")
        a("s_lshr_b32 s73, s26, 2                 ; cb64")
    else:
        a("s_lshl_b32 s72, s25, 3")
        a("s_add_u32 s72, s72, s63                ; rb64")
        a("s_lshl_b32 s73, s24, 2")
        a("s_add_u32 s73, s73, s27                ; cb64")
    if ROT1 == 1:
        a("s_lshl_b32 s27, s27, 1")
        a("s_add_u32 s63, s63, s27")
    elif ROT1 == 2:
        a("s_add_u32 s63, s63, s27")
        a("s_lshl_b32 s63, s63, 1")
    elif ROT1 == 3:
        a("s_add_u32 s63, s63, s27")
        a("s_lshl_b32 s63, s63, 2")
    elif ROT1 == 4:
        a("s_add_u32 s63, s63, s27")
    a(f"s_and_b32 s63, s63, {7 if ROT1 else 0}")
    a("s_and_b32 s70, s2, 7")
    a("s_lshl_b32 s70, s70, 2")
    if AMIX:
        a("s_lshr_b32 s27, s26, 3")
        a("s_add_u32 s27, s27, s26")
        a("s_and_b32 s27, s27, 3")
        a("s_add_u32 s70, s70, s27                ; head")
        a("s_and_b32 s71, s26, 7                  ; qb")
    else:
        a("s_and_b32 s27, s26, 3")
        a("s_add_u32 s70, s70, s27                ; head")
        a("s_lshr_b32 s71, s26, 2                 ; qb")
    a("s_cmp_lt_u32 s20, 4")
    a("s_cbranch_scc1 K1_COMPUTE")

    a("s_sub_u32 s23, s20, 4                  ; L")
    if LPRIO:
        a(f"s_setprio {LPRIO}")
    if not FASTX:
        a("v_lshrrev_b32 v4, 3, v2")
        a("v_and_b32 v5, 7, v2")
        a("v_lshrrev_b32 v6, 4, v2")
        a("v_xor_b32 v7, v5, v6")
        a("v_lshlrev_b32 v7, 4, v7")
        a(f"v_lshl_add_u32 v{VX0}, v4, 10, v7")
        a(f"v_xor_b32 v{VX1}, 64, v{VX0}")
    a("v_and_b32 v7, 1, v6")
    a("v_lshlrev_b32 v7, 2, v7")
    a("v_xor_b32 v7, v7, v5")
    a("v_lshlrev_b32 v7, 4, v7")
    a("v_mul_u32_u24 v8, 3072, v4")
    a(f"v_add_u32 v{VKV}, v8, v7")
    a("v_mul_u32_u24 v8, 3584, v4")
    a("v_add_u32 v15, v8, v7")
    a("s_cmp_lt_u32 s22, 12")
    a("s_cselect_b64 vcc, -1, 0")
    a("s_movk_i32 s60, 3072")
    a("s_cselect_b32 s60, 3584, s60")
    a(f"v_cndmask_b32 v{VR0}, v{VKV}, v15, vcc")
    a(f"v_xor_b32 v{VR1}, 32, v{VR0}")
    a("s_cselect_b32 s32, 0, 12")
    a("s_sub_u32 s32, s22, s32")
    a("s_lshl_b32 s32, s32, 8")
    a("s_lshl_b32 s61, s22, 1")
    a("s_add_u32 s61, s61, 1")
    a("s_add_u32 s34, s22, 12")
    a("s_cmp_lt_u32 s22, 12")
    a("s_cselect_b32 s33, 0, 128              ; R1 - R0")
    a("s_cselect_b32 s61, s61, s34")
    a("s_lshl_b32 s61, s61, 7")
    a("s_mul_i32 s34, s23, 57344")
    a("s_add_u32 s61, s61, s34")
    a("s_lshl_b32 s34, s23, 4")
    a("s_mul_i32 s34, s34, s60")
    a("s_add_u32 s32, s32, s34")
    a("s_lshl_b32 s62, s60, 6")
    a("s_lshl_b32 s36, s60, 3                 ; 8 rows")
    a("s_mul_i32 s34, s23, 49152")
    a("s_lshl_b32 s35, s22, 7")
    a("s_add_u32 s34, s34, s35")
    a("s_add_u32 s34, s34, 1024")
    if not FASTX:
        a("s_lshl_b32 s40, s21, 17")
        a("s_lshl_b32 s41, s23, 15")
        a("s_add_u32 s40, s40, s41                ; x base")
        a("s_lshl_b32 s42, s23, 12")
    a("s_lshl_b32 s35, s23, 11")
    a("s_mov_b32 s43, s63                     ; kc")
    a("s_waitcnt lgkmcnt(0)")
    srd(a, 24, 4, 0x200000)
    srd(a, 44, 6, 0x180000)
    a("s_cmp_lt_u32 s22, 12")
    a("s_cselect_b64 s[48:49], s[12:13], s[6:7]")
    a("s_cselect_b64 s[52:53], s[14:15], s[6:7]")
    a("s_cselect_b32 s50, 0x1c0000, s46")
    a("s_mov_b32 s54, s50")
    a("s_mov_b32 s51, 0x20000")
    a("s_mov_b32 s55, 0x20000")
    queue = []
    def setkc(c):
        cc = c if c < 8 else 15 - c
        a(f"s_add_u32 s43, s63, {cc & 3}")
        a("s_and_b32 s43, s43, 3")
        if cc & 4:
            a("s_or_b32 s43, s43, 4")
    def xpart(c):
        a("s_lshl_b32 s37, s43, 7")
        a("s_add_u32 s37, s37, s40")
        for i in range(4):
            a(f"s_add_u32 m0, s42, {xslot(c) + i*1024}")
            a(f"s_add_u32 s39, s37, {i*8192}")
            a(f"buffer_load_dwordx4 v{VX1 if i & 1 else VX0}, s[24:27], s39 offen lds")
    def early4():
        setkc(4)
        xpart(4)
        a("s_mul_i32 s38, s43, s62")
        a("s_add_u32 s38, s38, s32")
        a("s_add_u32 s39, s38, s33")
        a("v_and_b32 v16, 15, v2")
        a("v_mul_u32_u24 v17, s60, v16")
        a("v_mul_u32_u24 v16, 3072, v16")
        a("buffer_load_dword v18, v17, s[48:51], s38 offen")
        a("buffer_load_dword v18, v17, s[52:55], s39 offen")
        a("s_mul_i32 s38, s43, 196608")
        a("s_add_u32 s38, s38, s34")
        a("buffer_load_dword v18, v16, s[44:47], s38 offen")
        queue.extend([4] * 7)
    def issue(c):
        ws_, xs_ = wslot(c), xslot(c)
        if ROT1 == 4:
            setkc(c)
        a("s_mul_i32 s38, s43, s62")
        a("s_add_u32 s38, s38, s32")
        for i in range(2):
            a(f"s_add_u32 m0, s35, {ws_ + i*1024}")
            a("s_add_u32 s39, s38, s33")
            a(f"buffer_load_dwordx4 v{VR0}, s[48:51], s38 offen lds")
            a(f"s_add_u32 m0, s35, {ws_ + 8192 + i*1024}")
            a("s_add_u32 s38, s38, s36")
            a(f"buffer_load_dwordx4 v{VR1}, s[52:55], s39 offen lds")
        n = 4
        if c < 8:
            a("s_mul_i32 s38, s43, 196608")
            a("s_add_u32 s38, s38, s34")
            for i in range(2):
                a(f"s_add_u32 m0, s35, {ws_ + 16384 + i*1024}")
                a(f"s_add_u32 s39, s38, {i*24576}")
                a(f"buffer_load_dwordx4 v{VKV}, s[44:47], s39 offen lds")
            n += 2
        if (c < 8 or c >= 13) and not (c == 4 and E4 >= 0):
            a("s_lshl_b32 s37, s43, 7")
            a("s_add_u32 s37, s37, s40")
            for i in range(4):
                a(f"s_add_u32 m0, s42, {xs_ + i*1024}")
                a(f"s_add_u32 s39, s37, {i*8192}")
                a(f"buffer_load_dwordx4 v{VX1 if i & 1 else VX0}, s[24:27], s39 offen lds")
            n += 4
        if c != 7:
            if ROT1 != 4:
                a("s_add_u32 s43, s43, " + ("1" if c < 7 else "7"))
                a("s_and_b32 s43, s43, 7")
        else:
            a("s_mov_b32 s32, s61")
            a("s_mov_b32 s33, 0")
            a("s_mov_b32 s62, 229376")
            a("s_mov_b32 s36, 28672")
            a("s_mov_b64 s[48:49], s[12:13]")
            a("s_mov_b64 s[52:53], s[14:15]")
            a("s_mov_b32 s50, 0x1c0000")
            a("s_mov_b32 s54, 0x1c0000")
            a(f"v_mov_b32 v{VR0}, v15")
            a(f"v_xor_b32 v{VR1}, 32, v15")
        queue.extend([c] * n)
    def waitq(tag):
        n = len(queue) - 1 - max(i for i, t in enumerate(queue) if t == tag)
        a(f"s_waitcnt vmcnt({n})")
    stamp(a, 2, 7)
    if PROF == 7:
        a("s_mov_b32 s81, s80")
        a("s_mov_b32 s80, s100")
    issue(0)
    stamp(a, 3, 7)
    if PRE == 2:
        issue(1)
    stamp(a, 4, 7)
    stamp(a, 1)
    srd(a, 28, 10, WS_SIZE)
    a("v_mov_b32 v9, 0")
    a("s_add_u32 s37, s2, s20")
    a("s_cmp_eq_u32 s37, 4")
    a("s_cbranch_scc0 K1_NOTAG")
    a("s_memrealtime s[56:57]")
    a("s_waitcnt lgkmcnt(0)")
    a("s_or_b32 s56, s56, 1")
    a("s_or_b32 s57, s57, 0x80000000")
    a("v_mov_b32 v4, s56")
    a("v_mov_b32 v5, s57")
    a("s_mov_b64 exec, 1")
    a("global_store_dwordx2 v9, v[4:5], s[66:67] sc1")
    a("s_mov_b64 exec, -1")
    a.label("K1_NOTAG")
    def get_tag():
        lab, done = a.newlabel("TAG"), a.newlabel("TAGD")
        a(f"s_mov_b32 s74, {SPIN}")
        a("v_readfirstlane_b32 s68, v60")
        a("v_readfirstlane_b32 s69, v61")
        a.label(lab)
        a("s_sub_u32 s74, s74, 1")
        a(f"s_cbranch_scc1 {done}")
        a("s_min_u32 s75, s68, s69")
        a("s_cmp_lg_u32 s75, 0")
        a(f"s_cbranch_scc1 {done}")
        a("global_load_dwordx2 v[60:61], v9, s[66:67] sc1")
        a("s_waitcnt vmcnt(0)")
        a("v_readfirstlane_b32 s68, v60")
        a("v_readfirstlane_b32 s69, v61")
        a("s_sleep 2")
        a(f"s_branch {lab}")
        a.label(done)
        a(f"v_mov_b32 v4, {LDS_TAG}")
        a("v_mov_b32 v60, s68")
        a("v_mov_b32 v61, s69")
        a("ds_write_b64 v4, v[60:61]")
        a("ds_write_b32 v4, v9 offset:8")
        a("ds_write_b32 v4, v9 offset:12")
        a("ds_write_b32 v4, v9 offset:16")
        a("ds_write_b32 v4, v9 offset:20")
        a("ds_write_b32 v4, v9 offset:24")
        a("ds_write_b32 v4, v9 offset:28")
        a("s_waitcnt lgkmcnt(0)")
    def flag_a(q):
        lab = a.newlabel("FA")
        a("s_cmp_lg_u32 s23, 1")
        a(f"s_cbranch_scc1 {lab}")
        if q:
            a("s_cmp_lt_u32 s22, 12")
            a(f"s_cbranch_scc1 {lab}")
        a("s_lshl_b32 s37, s22, 4")
        a("s_add_u32 s37, s37, s21")
        a("s_lshl_b32 s37, s37, 7")
        a(f"s_add_u32 s37, s37, {FL_Q if q else FL_A}")
        stamp(a, 2 if q else 1, 14)
        flag_store(a, "s37", 16)
        a.label(lab)
    def kv_setup():
        a("v_and_b32 v5, 15, v2")
        a("v_lshlrev_b32 v5, 7, v5")
        a("v_bfe_u32 v6, v2, 4, 1")
        a("v_lshl_add_u32 v5, v6, 14, v5")
        a("s_and_b32 s56, s2, 7")
        a("s_lshr_b32 s57, s56, 1")
        a("s_add_u32 s57, s57, 12")
        a("s_sub_u32 s57, s57, s56")
        a("s_lshl_b32 s57, s57, 11")
        a("s_lshl_b32 s58, s71, 8")
        a("s_add_u32 s57, s57, s58")
        a(f"s_add_u32 s57, s57, {FL_Q - FL_A}")
        a("v_and_b32 v6, 1, v2")
        a("v_lshlrev_b32 v6, 7, v6")
        a("v_add_u32 v6, s57, v6")
        a("v_cmp_gt_u32 vcc, 32, v2")
        a("s_lshl_b32 s56, s56, 11")
        a(f"s_add_u32 s56, s56, {FL_A}")
        a("v_cndmask_b32 v5, v6, v5, vcc")
        a(f"s_mul_i32 s57, s70, {HK*1024}")
        a("s_lshl_b32 s58, s23, 10")
        a("s_add_u32 s57, s57, s58                ; head*64K + L*1K")
        a(f"s_add_u32 s57, s57, {WS_K}")
        a(f"s_mul_i32 s58, s23, {TP}")
    def kv_loads(lo, hi):
        n = hi - lo
        a(f"s_mul_i32 s44, s71, {n}")
        a("s_lshr_b32 s44, s44, 3")
        for i in range(n):
            a(f"s_mul_i32 s45, s44, {4*TP}")
            a("s_add_u32 s45, s45, s58")
            a(f"s_add_u32 m0, s45, {lo*4*TP}")
            a("s_lshl_b32 s37, s44, 12")
            a("s_add_u32 s37, s37, s57")
            a(f"s_add_u32 s38, s37, {lo*4096}")
            a(f"buffer_load_dwordx4 v3, s[28:31], s38 offen{SC} lds")
            a(f"s_add_u32 m0, s45, {lo*4*TP + 1024}")
            a(f"s_add_u32 s38, s37, {lo*4096 + WS_V - WS_K}")
            a(f"buffer_load_dwordx4 v3, s[28:31], s38 offen{SC} lds")
            if i < n - 1:
                a("s_add_u32 s44, s44, 1")
                a(f"s_cmp_eq_u32 s44, {n}")
                a("s_cselect_b32 s44, 0, s44")
        queue.extend(["kv"] * (2 * n))
    def q_loads():
        a(f"s_mul_i32 s37, s70, {HK}")
        a("s_lshl_b32 s38, s71, 3")
        a("s_add_u32 s37, s37, s38")
        a("s_lshl_b32 s38, s23, 1")
        a("s_add_u32 s37, s37, s38")
        a("s_lshl_b32 s37, s37, 10")
        a("s_lshl_b32 s38, s23, 11")
        a(f"s_add_u32 m0, s38, {LDS_Q}")
        a(f"s_add_u32 s37, s37, {WS_Q}")
        a(f"buffer_load_dwordx4 v3, s[28:31], s37 offen{SC} lds")
        a(f"buffer_load_dwordx4 v3, s[28:31], s37 offen offset:1024{SC} lds")
    a(f"v_mul_u32_u24 v36, {VP}, v2")
    a(f"v_add_u32 v36, {LDS_V + 1024}, v36")
    for i in range(4):
        a(f"v_mov_b32 v{40+i}, 0x3f803f80")
        a(f"v_mov_b32 v{44+i}, 0")
    a(f"s_mul_i32 s37, s23, {3*2048}")
    a(f"s_add_u32 s37, s37, {LDS_WS}")
    frag_addrs(a, "s37", 248)
    a("s_lshl_b32 s37, s23, 14")
    part_addrs(a, "s37", 212)
    kv_setup()
    for c in range(13):
        waitq(c)
        if c == 6:
            get_tag()
        if c < 2:
            stamp(a, c + 5, 7)
        if c < 6:
            stamp(a, c + 1, 2)
        if 6 <= c < 12:
            stamp(a, c - 5, 3)
        a(f"s_barrier                              ; b({c})")
        if c == 8:
            stamp(a, 2)
            stamp(a, 1, 15)
        if c == 4:
            a("global_load_dwordx2 v[60:61], v9, s[66:67] sc1")
        if c == AFLAG:
            flag_a(False)
        if c == AFLAGQ:
            flag_a(True)
        if c <= 8:
            issue(c + 2)
        if 8 <= c <= 12:
            issue(c + 3)
        if c == E4:
            early4()
        if c == PFC:
            a("s_bitcmp1_b32 s23, 0")
            a("s_cselect_b64 s[40+36:41+36], s[14:15], s[12:13]".replace("s[40+36:41+36]", "s[92:93]"))
            a("s_mov_b32 s94, 0x1c0000")
            a("s_mov_b32 s95, 0x20000")
            a("v_and_b32 v16, 31, v2")
            a("v_mul_u32_u24 v16, 3584, v16")
            a("s_mul_i32 s37, s23, 57344")
            a("s_sub_u32 s37, s61, s37")
            a("s_and_b32 s38, s21, 7")
            a("s_lshl_b32 s38, s38, 1")
            a("s_lshr_b32 s39, s23, 1")
            a("s_add_u32 s38, s38, s39")
            a("s_mul_i32 s38, s38, 114688")
            a("s_add_u32 s37, s37, s38")
            a("buffer_load_dword v17, v16, s[92:95], s37 offen")
            queue.append("pf")
        if c == GLD:
            srd(a, 44, 18, 1024)
            a("s_lshl_b32 s76, s21, 4")
            a("s_add_u32 s76, s76, s22")
            a("s_lshl_b32 s76, s76, 2")
            a("s_add_u32 s76, s76, s23")
            a("s_lshl_b32 s37, s76, 11")
            a("buffer_load_dwordx4 v[64:67], v3, s[44:47], 0 offen")
            a("buffer_load_dwordx4 v[24:27], v3, s[24:27], s37 offen")
            a("buffer_load_dwordx4 v[28:31], v3, s[24:27], s37 offen offset:1024")
            queue.extend(["g"] * 3)
        if c == GMA:
            waitq("g")
            a("v_mov_b32 v32, 0")
            a("v_mov_b32 v33, 0")
            for q in range(4):
                a(f"v_dot2_f32_bf16 v32, v{24+q}, v{64+q}, v32")
                a(f"v_dot2_f32_bf16 v33, v{28+q}, v{64+q}, v33")
            a("s_nop 2")
            a("v_permlane32_swap_b32 v32, v33")
            a("s_nop 1")
            a("v_add_f32 v32, v32, v33")
            for ctl in ("quad_perm:[1,0,3,2]", "quad_perm:[2,3,0,1]", "row_half_mirror", "row_mirror"):
                a("s_nop 1")
                a(f"v_add_f32_dpp v32, v32, v32 {ctl} row_mask:0xf bank_mask:0xf")
            a("v_mov_b32 v33, v32")
            a("s_nop 1")
            a("v_permlane16_swap_b32 v32, v33")
            a("s_nop 1")
            a("v_add_f32 v32, v32, v33")
            a(f"v_mul_f32 v32, {fh(-LOG2E)}, v32")
            a("v_exp_f32 v32, v32")
            a("v_lshrrev_b32 v70, 5, v2")
            a("v_add_f32 v32, 1.0, v32")
            a("v_rcp_f32 v68, v32")
            a("v_lshlrev_b32 v70, 3, v70")
    a(f"v_mov_b32 v22, {LDS_SYNC + 16}")
    a("v_mov_b32 v23, 16")
    waitq(14)
    a("s_barrier                              ; b(13)")
    if AFLAGQ == 13:
        flag_a(True)
    a("s_waitcnt vmcnt(0)")
    a("s_mov_b64 exec, 1")
    a("ds_add_u32 v22, v23")
    a("s_mov_b64 exec, -1")
    stamp(a, 2, 15)
    a(f"v_mov_b32 v19, {LDS_SYNC}")
    a("s_cmp_lg_u32 s23, 0")
    a("s_cbranch_scc1 KV_OTHER")
    if FDEL:
        a(f"s_sleep {FDEL}")
    a(f"s_mov_b32 s74, {SPIN}")
    a("s_mov_b32 s77, 0")
    if ATFA:
        a("s_mov_b32 vcc_lo, -1")
        a("s_mov_b32 vcc_hi, 3")
    a.label("KV_POLL")
    if ATFA:
        a("v_mov_b32 v8, 0")
        a("v_mov_b32 v9, 0")
        a("s_mov_b64 exec, vcc")
        a("buffer_atomic_or_x2 v[8:9], v5, s[28:31], s56 offen sc0 sc1")
    else:
        a("buffer_load_dwordx2 v[8:9], v5, s[28:31], s56 offen sc1")
    a("s_waitcnt vmcnt(0)")
    a("v_cmp_ne_u64 vcc, s[68:69], v[8:9]")
    if ATFA:
        a("s_mov_b64 exec, -1")
    a("s_sub_u32 s74, s74, 1")
    a("s_cselect_b64 vcc, 0, vcc")
    a("s_cmp_lg_u32 vcc_lo, 0")
    a("s_cbranch_scc1 KV_AGAIN")
    a("s_cmp_eq_u32 vcc_hi, 0")
    a("s_cselect_b32 s75, 2, 1")
    a("v_mov_b32 v16, s75")
    a("ds_write_b32 v19, v16")
    a("s_cmp_lg_u32 s77, 0")
    a("s_mov_b32 s77, s75")
    a("s_cbranch_scc1 KV_HAVE")
    stamp(a, 3, 15)
    kv_loads(0, 3)
    a.label("KV_HAVE")
    a("s_cmp_eq_u32 s77, 2")
    a("s_cbranch_scc1 KV_Q")
    a.label("KV_AGAIN")
    a(f"s_sleep {FSLP}")
    a("s_branch KV_POLL")
    a.label("KV_OTHER")
    lds_wait(a, 19, 16, ["s_cmp_ge_u32 s75, 1"])
    kv_loads(0, 3)
    lds_wait(a, 19, 16, ["s_cmp_ge_u32 s75, 2"])
    a.label("KV_Q")
    if KVW:
        a("s_cmp_lt_u32 s23, 2")
        a("s_cbranch_scc1 KV_NW")
        a(f"s_mul_i32 s37, s70, {HK*1024}")
        a(f"s_mul_i32 s38, s71, {52*128}")
        a("s_add_u32 s37, s37, s38")
        a("s_and_b32 s38, s23, 1")
        a(f"s_mul_i32 s38, s38, {WS_V - WS_K}")
        a("s_add_u32 s37, s37, s38")
        a(f"s_add_u32 s37, s37, {WS_K + 12*1024}")
        a("v_min_u32 v16, 51, v2")
        a("v_lshlrev_b32 v16, 7, v16")
        a(f"buffer_load_dword v17, v16, s[28:31], s37 offen{SC}")
        a.label("KV_NW")
    stamp(a, 4, 15)
    q_loads()
    a("s_branch K2_GEMM")

    a.label("K1_COMPUTE")
    AF = 96
    AK = 224
    def accF(sw, i, t):
        return AF + ((sw * 2 + i) * 2 + t) * 16
    XA = [4, 5, 6, 7]
    WA = [8, 9]
    KA = 10
    a("s_and_b32 s23, s20, 1                  ; tp")
    a("s_lshr_b32 s24, s20, 1                 ; grp")
    a("v_bfe_u32 v16, v2, 4, 1                ; gsel")
    a("v_lshrrev_b32 v17, 5, v2               ; h")
    a("v_bfe_u32 v18, v2, 2, 2                ; r")
    a("v_and_b32 v19, 3, v2                   ; c")
    a("v_lshl_add_u32 v20, v17, 3, v18        ; 8h+r")
    a("v_and_b32 v21, 31, v2")
    a("v_lshlrev_b32 v21, 7, v21")
    a("v_bfe_u32 v22, v2, 1, 3")
    a("v_xor_b32 v22, v22, v17")
    a("v_lshl_add_u32 v21, v22, 4, v21")
    a("s_lshl_b32 s25, s23, 13")
    a(f"s_add_u32 s25, s25, {xslot(0)}")
    for s_ in range(4):
        a(f"v_xor_b32 v{XA[s_]}, {32*s_}, v21")
        a(f"v_add_u32 v{XA[s_]}, s25, v{XA[s_]}")
    a("v_lshlrev_b32 v20, 7, v20")
    a("v_lshl_add_u32 v20, v19, 3, v20        ; row*128 + c*8")
    a("v_lshrrev_b32 v21, 1, v18")
    a("v_xor_b32 v21, s24, v21                ; grp ^ (r>>1)")
    a("v_lshl_add_u32 v20, v21, 6, v20")
    a("v_lshl_add_u32 v20, v16, 5, v20")
    a(f"v_add_u32 v{KA}, {wslot(0) + 16384}, v20")
    a("v_lshl_add_u32 v20, v16, 13, v20")
    a("v_xor_b32 v21, 32, v20")
    a(f"v_add_u32 v{WA[0]}, {wslot(0)}, v20")
    a(f"v_add_u32 v{WA[1]}, {wslot(0)}, v21")
    a("v_and_b32 v11, 0x33, v2")
    a("v_bfe_u32 v17, v2, 2, 1")
    a("v_lshl_or_b32 v11, v17, 3, v11")
    a("v_bfe_u32 v17, v2, 3, 1")
    a("v_lshl_or_b32 v11, v17, 2, v11")
    a("v_lshlrev_b32 v11, 4, v11              ; K voffset")
    a("s_cmp_lt_u32 s22, 8")
    a("s_cbranch_scc1 K1_KOFF")
    a(f"v_mul_u32_u24 v11, {HK*1024}, v16")
    a("v_lshrrev_b32 v18, 5, v2")
    a("v_lshl_or_b32 v11, v18, 8, v11")
    a("v_and_b32 v18, 15, v2")
    a("v_lshl_or_b32 v11, v18, 4, v11         ; V voffset")
    a.label("K1_KOFF")
    vaddr_init(a)
    a("s_lshl_b32 s33, s20, 8")
    a(f"s_add_u32 s33, s33, {LDS_GQ}")
    a("v_and_b32 v40, 31, v2")
    a("v_lshlrev_b32 v40, 2, v40")
    a("v_add_u32 v40, s33, v40")
    a("s_lshl_b32 s33, s20, 11")
    a(f"s_add_u32 s33, s33, {LDS_Q}")
    a("v_add_u32 v43, s33, v3")
    a("s_lshl_b32 s60, s20, 10")
    a(f"s_add_u32 s60, s60, {LDS_PARK}")
    a("v_add_u32 v44, s60, v3")
    a("ds_write_b128 v44, v[40:43]")
    for i in range(160):
        a(f"v_mov_b32 v{AF+i}, 0")
    a("s_waitcnt lgkmcnt(0)")
    srd(a, 28, 10, WS_SIZE)
    if TLBW:
        a("v_mov_b32 v21, 0")
        for w in range(4):
            lab = a.newlabel("TLB")
            a(f"s_cmp_lg_u32 s20, {w}")
            a(f"s_cbranch_scc1 {lab}")
            for pg in (2 * w, 2 * w + 1):
                a(f"s_mov_b32 s33, {spare(pg):#x}")
                a("buffer_load_dword v22, v21, s[28:31], s33 offen sc1")
            if w == 0:
                a("s_lshl_b32 s33, s72, 16")
                a("s_lshl_b32 s34, s73, 7")
                a("s_add_u32 s33, s33, s34")
                a("v_mov_b32 v20, s33")
                a("global_load_dword v22, v20, s[64:65] sc1")
            else:
                a(f"global_load_dword v22, v21, s[{(16, 8, 18)[w-1]}:{(17, 9, 19)[w-1]}]")
            a.label(lab)
    if CODEPF:
        a("s_getpc_b64 s[50:51]")
        a.label("PC_HERE")
        a(f"s_sub_u32 s50, s50, PC_HERE-{KNAME}")
        a("s_subb_u32 s51, s51, 0")
        a("s_lshr_b32 s49, s2, 3")
        a("s_lshl_b32 s49, s49, 2")
        a("s_add_u32 s49, s49, s20")
        a("s_lshl_b32 s49, s49, 9")
        a("v_lshlrev_b32 v21, 3, v2")
        a("v_add_u32 v21, s49, v21")
        a(f"v_min_u32 v21, K_END-{KNAME}-4, v21")
        a("global_load_dword v21, v21, s[50:51]")
    a("s_lshl_b32 s32, s21, 2")
    a("s_lshl_b32 s33, s23, 1")
    a("s_add_u32 s32, s32, s33                ; tt0")
    a("s_and_b32 s36, s22, 7")
    a("s_lshl_b32 s36, s36, 2")
    a("s_lshl_b32 s37, s24, 1")
    a("s_add_u32 s36, s36, s37")
    a(f"s_mul_i32 s36, s36, {HK}")
    a("s_add_u32 s36, s36, s32")
    a("s_lshl_b32 s36, s36, 10")
    a("s_cmp_lt_u32 s22, 8")
    a(f"s_mov_b32 s38, {WS_V}")
    a(f"s_cselect_b32 s38, {WS_K}, s38")
    a("s_movk_i32 s37, 512")
    a(f"s_cselect_b32 s37, {HK*1024}, s37")
    a("s_add_u32 s36, s36, s38")
    a("s_add_u32 s37, s37, s36")
    a("s_mov_b32 s25, 0")
    tab = sum(((XPOS[c + 1] - XPOS[c]) & 15) << (4 * c) for c in range(8))
    a(f"s_mov_b32 s61, {tab:#x}")
    a("s_mov_b32 s26, 8")
    BB = [24, 44]
    def reads(s_, buf, kv):
        L = [f"ds_read_b128 {v(buf,4)}, v{XA[s_]}"]
        for t in range(2):
            for u in range(2):
                L.append(f"ds_read_b64_tr_b16 {v(buf+8+4*t+2*u,2)}, v{WA[t]} offset:{(16*s_+4*u)*128}")
            if t == 0:
                L.append(f"ds_read_b128 {v(buf+4,4)}, v{XA[s_]} offset:4096")
        if kv:
            for u in range(2):
                L.append(f"ds_read_b64_tr_b16 {v(buf+16+2*u,2)}, v{KA} offset:{(16*s_+4*u)*128}")
        return L
    def mfs(buf, sw, vtype):
        L = []
        for t in range(2):
            for i in range(2):
                acc = accF(sw, i, t)
                L.append(f"{MF} {v(acc,16)}, {v(buf+8+4*t,4)}, {v(buf+4*i,4)}, {v(acc,16)}")
        if sw == 0:
            for i in range(2):
                acc = AK + 16 * i
                A_, B_ = v(buf + 16, 4), v(buf + 4 * i, 4)
                if vtype:
                    A_, B_ = B_, A_
                L.append(f"{MF} {v(acc,16)}, {A_}, {B_}, {v(acc,16)}")
        return L
    def sweep(name, sw, vtype):
        a.raw(".p2align 6")
        place(a, "S1")
        a.label(name)
        kv = sw == 0
        nr = 8 if kv else 6
        for s_ in range(4):
            upd = []
            if s_ == 2:
                upd = ["s_add_u32 s25, s25, 1", "s_cmp_eq_u32 s25, 3", f"s_mov_b32 s27, {WSL}",
                       f"s_cselect_b32 s27, {(-2*WSL) & 0xffffffff:#x}, s27", "s_cselect_b32 s25, 0, s25",
                       "s_bfe_i32 s33, s61, 0x40000", "s_lshr_b32 s61, s61, 4", "s_lshl_b32 s33, s33, 14"]
                upd += [f"v_add_u32 v{r}, s27, v{r}" for r in WA + [KA]] + [f"v_add_u32 v{r}, s33, v{r}" for r in XA]
            if s_ == 1 and sw == 1:
                upd = [f"s_cmp_lg_u32 s26, {17 - AFLAG}", f"s_cbranch_scc1 {name}_ND", "s_waitcnt vmcnt(0)", f"{name}_ND:"]
            M = mfs(BB[s_ & 1], sw, vtype)
            if s_ < 3:
                R = reads(s_ + 1, BB[(s_ + 1) & 1], kv)
                seq = [f"s_waitcnt lgkmcnt({nr-4})", M[0], R[0], R[1], M[1], R[2], R[3], "s_waitcnt lgkmcnt(4)", M[2], R[4], R[5]]
                if kv:
                    seq += [M[3], R[6], R[7], M[4]] + upd[:10] + [M[5]] + upd[10:]
                elif s_ == 1:
                    seq += [M[3]] + upd
                else:
                    seq += upd[:5] + [M[3]] + upd[5:]
            else:
                R = reads(0, BB[0], kv)
                tail = ["s_sub_u32 s26, s26, 1", "s_cmp_lg_u32 s26, 0"]
                seq = [f"s_waitcnt lgkmcnt({nr-4})", M[0], "s_waitcnt lgkmcnt(0)", "s_barrier", R[0], M[1], R[1], R[2], R[3], M[2], R[4], R[5]]
                if kv:
                    seq += [M[3], R[6], R[7], M[4]] + tail + [M[5]]
                else:
                    seq += tail + [M[3]]
            for l in seq:
                a(l)
        a(f"s_cbranch_scc1 {name}")
    if FASTX:
        a(f"s_waitcnt vmcnt({1 if CODEPF else 0})")
    a("s_barrier                              ; b(0)")
    stamp(a, 1)
    for l in reads(0, BB[0], True):
        a(l)
    a("s_cmp_lt_u32 s22, 8")
    a("s_cbranch_scc0 SW1V")
    sweep("SW1K", 0, False)
    a("s_branch K1_KVEPI")
    sweep("SW1V", 0, True)
    a.label("K1_KVEPI")
    a("s_waitcnt vmcnt(0)")
    stamp(a, 2)
    c0 = -2.0 * 0.7978845608028654 * LOG2E
    c1 = c0 * 0.044715
    T = 64
    TB = 16
    def gelu_tile(acc, out, pk):
        L = []
        if pk:
            for j in range(0, 8, 2):
                L.append(f"v_pk_mul_f32 {v(TB+j,2)}, {v(acc+j,2)}, {v(acc+j,2)}")
            for j in range(0, 8, 2):
                L.append(f"v_pk_fma_f32 {v(TB+j,2)}, {v(TB+j,2)}, s[34:35], v[12:13]")
            for j in range(0, 8, 2):
                L.append(f"v_pk_mul_f32 {v(TB+j,2)}, {v(TB+j,2)}, {v(acc+j,2)}")
            for j in range(8):
                L.append(f"v_exp_f32 v{TB+j}, v{TB+j}")
            for j in range(0, 4, 2):
                L.append(f"v_pk_mul_f32 {v(acc+8+j,2)}, {v(acc+8+j,2)}, {v(acc+j,2)}")
            for j in range(0, 8, 2):
                L.append(f"v_pk_add_f32 {v(TB+j,2)}, {v(TB+j,2)}, v[14:15]")
            for j in range(8):
                L.append(f"v_rcp_f32 v{TB+j}, v{TB+j}")
            for j in range(4, 8, 2):
                L.append(f"v_pk_mul_f32 {v(acc+8+j,2)}, {v(acc+8+j,2)}, {v(acc+j,2)}")
            for j in range(0, 8, 2):
                L.append(f"v_pk_mul_f32 {v(acc+8+j,2)}, {v(acc+8+j,2)}, {v(TB+j,2)}")
        else:
            for j in range(8):
                L.append(f"v_mul_f32 v{TB+j}, v{acc+j}, v{acc+j}")
            for j in range(8):
                L.append(f"v_fma_f32 v{TB+j}, v{TB+j}, s34, v12")
            for j in range(8):
                L.append(f"v_mul_f32 v{TB+j}, v{TB+j}, v{acc+j}")
            for j in range(8):
                L.append(f"v_exp_f32 v{TB+j}, v{TB+j}")
                L.append(f"v_mul_f32 v{acc+8+j}, v{acc+8+j}, v{acc+j}")
            for j in range(8):
                L.append(f"v_add_f32 v{TB+j}, 1.0, v{TB+j}")
            for j in range(8):
                L.append(f"v_rcp_f32 v{TB+j}, v{TB+j}")
                if j >= 2:
                    L.append(f"v_mul_f32 v{acc+8+j-2}, v{acc+8+j-2}, v{TB+j-2}")
            L.append(f"v_mul_f32 v{acc+14}, v{acc+14}, v{TB+6}")
            L.append(f"v_mul_f32 v{acc+15}, v{acc+15}, v{TB+7}")
        for j in range(0, 8, 2):
            L.append(f"v_cvt_pk_bf16_f32 v{out + j//2}, v{acc+8+j}, v{acc+8+j+1}")
        return L
    def kv_fill():
        L = []
        for i in range(2):
            for j in range(0, 16, 2):
                L.append(f"v_cvt_pk_bf16_f32 v{T + 8*i + j//2}, v{AK+16*i+j}, v{AK+16*i+j+1}")
                if j == 6:
                    L.append(f"buffer_store_dwordx4 {v(T+8*i,4)}, v11, s[28:31], s36 offen offset:{i*1024}{SC}")
            L.append(f"buffer_store_dwordx4 {v(T+8*i+4,4)}, v11, s[28:31], s37 offen offset:{i*1024}{SC}")
        return L
    def q_fill():
        L = []
        for t in range(2):
            for i in range(2):
                acc = accF(0, i, t)
                for hf in range(2):
                    for j in range(8):
                        L.append(f"v_mul_f32 v{acc+8*hf+j}, s34, v{acc+8*hf+j}")
                    for j in range(0, 8, 2):
                        L.append(f"v_cvt_pk_bf16_f32 v{acc+8*hf+j//2}, v{acc+8*hf+j}, v{acc+8*hf+j+1}")
                    L.append(f"s_add_u32 s39, s38, {WS_Q + (t + 4*hf) * HK * 1024}\nbuffer_store_dwordx4 {v(acc+8*hf,4)}, v3, s[28:31], s39 offen offset:{i*1024}{SC}")
        return L
    def cost(l):
        return 8 if l.startswith(("v_exp", "v_rcp")) else 4
    def sweep2(fill, early, qtype, ecap):
        nm = "SQ" if qtype else "SR"
        place(a, "S2")
        F = list(fill)
        late = {}
        if qtype and QSD:
            qs = [l for l in F[20:] if "buffer_store" in l]
            F = F[:20] + [l for l in F[20:] if "buffer_store" not in l]
            early = len(F)
            late = {QS0 + (i * QSD) // 2: [] for i in range(8)}
            for i, l in enumerate(qs):
                late[QS0 + (i * QSD) // 2].append((i, l))
        nlate = [0]
        pos = [0]
        def take(fixed, st):
            used = sum(4 for l in fixed if l.startswith(("ds_", "v_")))
            out = []
            while pos[0] < len(F) and st >= 1:
                cap = ecap if pos[0] < early else CAP
                if used + cost(F[pos[0]]) > cap:
                    break
                used += cost(F[pos[0]])
                out.append(F[pos[0]])
                pos[0] += 1
            return fixed + out
        for c in range(8, 16):
            dx = (xslot(c + 1) - xslot(c)) & 0xffffffff if c < 15 else 0
            dw = (wslot(c + 1) - wslot(c)) & 0xffffffff if c < 15 else 0
            for s_ in range(4):
                st = (c - 8) * 4 + s_
                M = mfs(BB[s_ & 1], 1, False)
                ux = lambda k: [f"v_add_u32 v{XA[k]}, {dx:#x}, v{XA[k]}"] if c < 15 else []
                if s_ < 3:
                    R = reads(s_ + 1, BB[(s_ + 1) & 1], False)
                    last = ux(s_ + 1) + (ux(0) if s_ == 0 else [])
                    if s_ == 2 and c < 15:
                        last += [f"v_add_u32 v{r}, {dw:#x}, v{r}" for r in WA]
                    if s_ == 2 and c == 14:
                        last += ["ds_read_b32 v10, v0"]
                    seq = (["s_waitcnt lgkmcnt(2)", M[0]] + take(R[0:2], st) + [M[1]] + take(R[2:4], st) +
                           ["s_waitcnt lgkmcnt(4)", M[2]] + take(R[4:6], st) + [M[3]] + take(last, st))
                else:
                    R = reads(0, BB[0], False) if c < 15 else []
                    g0 = take(R[:1], st)
                    dr = []
                    nst = sum("buffer_store" in l for l in F[:pos[0]]) + nlate[0]
                    if c + 1 == AFLAG:
                        assert nst >= 4
                        dr = [f"s_waitcnt vmcnt({nst - 4})"]
                    if c + 1 == AFLAGQ and qtype:
                        assert pos[0] >= early and nst == 12
                        dr = ["s_waitcnt vmcnt(0)"]
                    sync = ["s_barrier"] if c < 13 else (["s_mov_b64 exec, 1", "ds_add_u32 v0, v1", "s_mov_b64 exec, -1"] if c == 15 else [])
                    if c == 14:
                        sync = ["v_readfirstlane_b32 s75, v10", "s_bitcmp1_b32 s75, 6", f"s_cbranch_scc0 {nm}_W", f"{nm}_B:"]
                    seq = (["s_waitcnt lgkmcnt(2)", M[0]] + g0[len(R[:1]):] + dr + ["s_waitcnt lgkmcnt(0)"] + sync + R[:1] + [M[1]] +
                           take(R[1:4], st) + [M[2]] + take(R[4:], st) + [M[3]] + take([], st))
                for i_, l in late.get(st, []):
                    assert pos[0] >= 20 + 12 * (i_ + 1), (st, i_, pos[0])
                    seq.append(l)
                    nlate[0] += 1
                for l in seq:
                    if l == "s_barrier" and PROF in (10, 11, 12) and 0 <= c - (8 if PROF != 11 else 10) < 6:
                        if PROF == 12:
                            stamp(a, c - 8 + 1, 12)
                        a(l)
                        stamp(a, c - 8 + 1, 10)
                        stamp(a, c - 10 + 1, 11) if c >= 10 else None
                    else:
                        a(l)
        for l in F[pos[0]:]:
            a(l)
        sys.stderr.write(f"sweep2: {len(F) - pos[0]} of {len(F)} fillers left over\n")
    a(f"v_mov_b32 v0, {LDS_SYNC + 16}")
    a("v_mov_b32 v1, 1")
    a(f"v_mov_b32 v16, {LDS_TAG}")
    a("ds_read_b64 v[18:19], v16")
    a(f"v_mov_b32 v12, {fh(c0)}")
    a("v_mov_b32 v13, v12")
    a("v_mov_b32 v14, 1.0")
    a("v_mov_b32 v15, 1.0")
    a("s_waitcnt lgkmcnt(0)")
    a("v_readfirstlane_b32 s68, v18")
    a("v_readfirstlane_b32 s69, v19")
    a("s_cmp_lt_u32 s22, 12")
    a("s_cbranch_scc1 SW2R")
    a(f"s_mov_b32 s34, {fh(LOG2E*0.25)}")
    a("s_sub_u32 s38, s22, 12")
    a("s_lshl_b32 s38, s38, 3")
    a("s_lshl_b32 s39, s24, 1")
    a("s_add_u32 s38, s38, s39")
    a(f"s_mul_i32 s38, s38, {HK}")
    a("s_add_u32 s38, s38, s32")
    a("s_lshl_b32 s38, s38, 10")
    F = kv_fill() + q_fill()
    sweep2(F, len(F), True, QCAP)
    a("s_branch K1_GE2")
    a.label("SW2R")
    a(f"s_mov_b32 s34, {fh(c1)}")
    a("s_mov_b32 s35, s34")
    if HEARLY:
        a(f"s_mul_i32 s40, s32, {AS}")
        a("s_lshl_b32 s41, s22, 3")
        a("s_add_u32 s40, s40, s41")
        a("s_lshl_b32 s41, s24, 1")
        a("s_add_u32 s40, s40, s41")
        a("s_lshl_b32 s40, s40, 10")
        a(f"s_add_u32 s40, s40, {WS_ACT}")
        a(f"s_add_u32 s41, s40, {AS*1024}")
    F = kv_fill()
    ne = len(F)
    F2 = []
    for i in range(2):
        for t in range(2):
            if i * 2 + t < NFILL:
                F += gelu_tile(accF(0, i, t), 80 + 4 * (i * 2 + t), GPK)
                if HEARLY:
                    F.append(f"buffer_store_dwordx4 {v(80 + 4*(i*2+t),4)}, v3, s[28:31], s{40+i} offen offset:{t*1024}{SC}")
            else:
                F2 += gelu_tile(accF(0, i, t), 80 + 4 * (i * 2 + t), True)
    sweep2(F, ne, False, CAP)
    for l in F2:
        a(l)
    a.label("K1_GE2")
    stamp(a, 3)
    a("v_add_u32 v44, s60, v3")
    a("ds_read_b128 v[40:43], v44")
    a(f"s_mov_b32 s34, {fh(c1)}")
    a("s_mov_b32 s35, s34")
    a(f"s_mul_i32 s36, s32, {AS}")
    a("s_lshl_b32 s37, s22, 3")
    a("s_lshl_b32 s38, s22, 2")
    a("s_add_u32 s38, s38, 44")
    a("s_cmp_lt_u32 s22, 12")
    a("s_cselect_b32 s37, s37, s38")
    a("s_add_u32 s36, s36, s37")
    a("s_lshl_b32 s37, s24, 1")
    a("s_add_u32 s36, s36, s37")
    a("s_lshl_b32 s36, s36, 10")
    a(f"s_add_u32 s36, s36, {WS_ACT}")
    a(f"s_add_u32 s37, s36, {AS*1024}")
    a("s_add_u32 s38, s36, 4096")
    a("s_add_u32 s39, s37, 4096")
    hst = []
    if HLATE >= 0:
        srd(a, 40, 10, WS_SIZE)
        a("s_cmp_lt_u32 s22, 12")
        a(f"s_cselect_b32 s36, s36, {WS_SIZE}")
        a(f"s_cselect_b32 s37, s37, {WS_SIZE}")
    a("s_cmp_lt_u32 s22, 12")
    a("s_cbranch_scc0 K1_GE3")
    for i in range(2):
        for t in range(2):
            if not (HEARLY and i * 2 + t < NFILL):
                if HLATE >= 0:
                    hst.append(f"buffer_store_dwordx4 {v(80 + 4*(i*2+t),4)}, v3, s[40:43], s{36+i} offen offset:{t*1024}{SC}")
                else:
                    a(f"buffer_store_dwordx4 {v(80 + 4*(i*2+t),4)}, v3, s[28:31], s{36+i} offen offset:{t*1024}{SC}")
    place(a, "GE")
    a.label("K1_GE3")
    for t in range(2):
        for i in range(2):
            out = 64 + 4 * (i * 2 + t)
            for l in gelu_tile(accF(1, i, t), out, True)[(-4 if (env("X_NOGE2", 0) and t == 0) else 0):]:
                a(l)
            if HLATE >= 0:
                hst.append(f"buffer_store_dwordx4 {v(out,4)}, v3, s[40:43], s{38+i} offen offset:{t*1024}{SC}")
            else:
                a(f"buffer_store_dwordx4 {v(out,4)}, v3, s[28:31], s{38+i} offen offset:{t*1024}{SC}")

    a.label("K2_ATTN")
    Q = [8, 12]
    G = [4, 5]
    KB = [16, 20]
    VB = [[24, 28], [32, 36]]
    IDX = 6
    VK, VV0, VV1 = 40, 41, 42
    C = [96, 112]
    S = [128, 144]
    P = [160, 176]
    O = [192, 208]
    a(f"v_mov_b32 v{IDX}, 0xdddd")
    def zero_state():
        for i in range(4):
            a(f"v_mov_b32 v{VB[1][1]+i}, 0")
        a("s_nop 1")
        for r in (O[0], O[1], P[1]):
            a(f"{MF} {v(r,16)}, {v(VB[1][1],4)}, {v(VB[1][1],4)}, 0")
    zero_state()
    a("s_mov_b32 s26, 0")
    a("s_waitcnt lgkmcnt(0)")
    a(f"v_mov_b32 v7, v{VK}                    ; g address")
    a(f"v_mov_b32 v{VK}, v3")
    stamp(a, 1, 16)
    a("s_barrier                              ; X1")
    stamp(a, 2, 16)
    a("s_setprio 2")
    stamp(a, 4)
    stamp(a, 1, 9)
    a(f"ds_read_b128 {v(Q[0],4)}, v43")
    a(f"ds_read_b128 {v(KB[0],4)}, v{VK}")
    a(f"ds_read_b128 {v(Q[1],4)}, v43 offset:1024")
    a("s_waitcnt lgkmcnt(0)")
    for q in range(2):
        a(f"{MF} {v(S[q],16)}, {v(KB[0],4)}, {v(Q[q],4)}, 0")
    a("s_nop 7")
    a("s_nop 3")
    def maxtree(src, dst, acc=False):
        if acc:
            for i in range(0, 16, 2):
                a(f"v_max3_f32 v{dst}, v{src+i}, v{src+i+1}, v{dst}")
        else:
            a(f"v_max_f32 v{dst}, v{src}, v{src+1}")
            for i in range(2, 16, 2):
                a(f"v_max3_f32 v{dst}, v{src+i}, v{src+i+1}, v{dst}")
    for q in range(2):
        maxtree(S[q], 44 + q)
    a.label("K2_SETMAX")
    a(f"ds_read_b128 {v(KB[0],4)}, v{VK}")
    a(f"ds_read_b128 {v(VB[0][0],4)}, v{VV0}")
    a(f"ds_read_b128 {v(VB[0][1],4)}, v{VV1}")
    a(f"ds_read_b128 {v(KB[1],4)}, v{VK} offset:{TP}")
    for q in range(2):
        a(f"v_mov_b32 v{46+q}, v{44+q}")
    a("s_nop 1")
    for q in range(2):
        a(f"v_permlane32_swap_b32 v{44+q}, v{46+q}")
    for q in range(2):
        a(f"v_min_f32 v{44+q}, -v{44+q}, -v{46+q}     ; -max")
    for i in range(0, 16, 2):
        a(f"v_pk_mov_b32 {v(C[0]+i,2)}, v[44:45], v[44:45] op_sel:[0,0]")
    a("s_waitcnt lgkmcnt(0)")
    a("s_nop 0")
    a(f"{MF} {v(S[0],16)}, {v(KB[0],4)}, {v(Q[0],4)}, {v(C[0],16)}")
    for i in range(0, 16, 2):
        a(f"v_pk_mov_b32 {v(C[1]+i,2)}, v[44:45], v[44:45] op_sel:[1,1]")
    a("s_nop 3")
    stamp(a, 2, 9)
    if HU < 0:
        a("s_cmp_lg_u32 s26, 0")
        a("s_cbranch_scc1 K2_NOBAR")
        a("s_waitcnt vmcnt(0)")
        a("s_barrier")
        a.label("K2_NOBAR")
    else:
        a("s_lshl_b32 s27, 1, s20")
        a("v_mov_b32 v48, s27")
    stamp(a, 3, 9)
    stamp(a, 3, 16)
    if PROF == 16:
        a("s_mov_b32 s89, 0")
        a("s_mov_b32 s90, 0")
    if PADATT:
        pad_until(a, PADATT)
    U = UA
    assert U in (8, 16)
    a(f"s_mov_b32 s27, {64 // U - 1}")
    a("s_mov_b32 s77, 2")
    a(f"v_mov_b32 v46, {LDS_SYNC + 12}")
    a.raw(".p2align 6")
    place(a, "A")
    a.label("K2_LOOP")
    def exps(q, lo, hi):
        for i in range(lo, hi):
            a(f"v_exp_f32 v{P[q]+i}, v{S[q]+i}")
    def smf(q, vb, half):
        a(f"v_smfmac_f32_32x32x32_bf16 {v(O[q],16)}, {v(vb,4)}, {v(P[q]+8*half,8)}, v{IDX}")
    for u in range(U):
        b = u & 1
        a(f"{MF} {v(S[1],16)}, {v(KB[b],4)}, {v(Q[1],4)}, {v(C[1],16)}")
        if u == 8:
            a("s_bitcmp1_b32 s75, s77")
            a("s_cbranch_scc0 K2_KVM")
            a.label("K2_MID")
        if HLATE >= 0 and u >= HLATE and (u - HLATE) % HSTEP == 0 and (u - HLATE) // HSTEP < len(hst):
            assert u + 2 < HU
            a(hst[(u - HLATE) // HSTEP])
        exps(0, 0, 5)
        smf(1, VB[b ^ 1][1], 1)
        if u == 8:
            a("s_add_u32 s77, s77, 4")
            a("s_min_u32 s77, s77, 14")
        if u == TNEAR and EARLYT:
            a("s_mov_b64 exec, 1")
            a(f"ds_write_b32 v46, v{VK} offset:8")
            a("s_mov_b64 exec, -1")
        a(f"ds_read_b128 {v(VB[b^1][0],4)}, v{VV0} offset:{(u+1)*VP}")
        exps(0, 5, 11)
        smf(0, VB[b][0], 0)
        if u == HU:
            a("s_waitcnt vmcnt(0)")
            a("s_mov_b64 exec, 1")
            a("ds_or_b32 v46, v48 offset:8")
            a("s_mov_b64 exec, -1")
        a(f"ds_read_b128 {v(VB[b^1][1],4)}, v{VV1} offset:{(u+1)*VP}")
        exps(0, 11, 16)
        a(f"{MF} {v(S[0],16)}, {v(KB[b^1],4)}, {v(Q[0],4)}, {v(C[0],16)}")
        a(f"ds_read_b128 {v(KB[b],4)}, v{VK} offset:{(u+2)*TP}")
        exps(1, 0, 5)
        smf(0, VB[b][1], 1)
        if u % 8 == 7:
            a("ds_read_b32 v47, v46")
        exps(1, 5, 11)
        smf(1, VB[b][0], 0)
        a("s_waitcnt lgkmcnt(0)")
        if u == U - 1:
            a(f"v_add_u32 v{VK}, {U*TP}, v{VK}")
            a(f"v_add_u32 v{VV0}, {U*VP}, v{VV0}")
            a(f"v_add_u32 v{VV1}, {U*VP}, v{VV1}")
        if u % 8 == 7:
            a("v_readfirstlane_b32 s75, v47")
        exps(1, 11, 16)
        if u == 7:
            mid_check = True
    a("s_bitcmp1_b32 s75, s77")
    a("s_cbranch_scc0 K2_KVW")
    a.label("K2_NEXT")
    if HLATE >= 0:
        a("s_mov_b32 s42, 0")
    a("s_add_u32 s77, s77, 4")
    a("s_min_u32 s77, s77, 14")
    if PROF in (9, 16):
        a("s_memrealtime s[96:97]")
        a("s_memtime s[98:99]")
        a("s_waitcnt lgkmcnt(0)")
        for it, sl in (((3, 4), (2, 5), (1, 6)) if PROF == 9 else ((3, 4), (1, 5), (0, 6))):
            a(f"s_cmp_eq_u32 s27, {it}")
            a(f"s_cselect_b32 s{80+sl}, s96, s{80+sl}")
            a(f"s_cselect_b32 s{88+sl}, s98, s{88+sl}")
    a("s_sub_u32 s27, s27, 1")
    a("s_cbranch_scc0 K2_LOOP")
    a("s_nop 1")
    smf(1, VB[(U - 1) & 1][1], 1)
    stamp(a, 5)
    stamp(a, 1, 8)
    stamp(a, 1, 13)
    a(f"v_mov_b32 v46, {LDS_SYNC + 4}")
    a("ds_read_b32 v47, v46")
    a(f"ds_read_b32 v{G[0]}, v7")
    a(f"ds_read_b32 v{G[1]}, v7 offset:128")
    a("s_lshl_b32 s24, s71, 2")
    a("s_add_u32 s24, s24, s20")
    a("s_lshl_b32 s24, s24, 5")
    a("s_add_u32 s24, s24, s70")
    a(f"s_mul_i32 s25, s24, {OS}" if TAGO else "s_lshl_b32 s25, s24, 11")
    a(f"s_add_u32 s25, s25, {WS_O}")
    a("v_mov_b32 v48, 0")
    a("v_mov_b32 v49, 0")
    a(f"v_pk_mul_f32 v[44:45], {v(O[0],2)}, v[48:49]")
    for i in range(2, 10, 2):
        a(f"v_pk_fma_f32 v[44:45], {v(O[0]+i,2)}, v[48:49], v[44:45]")
    for i in range(0, 10, 2):
        a(f"v_pk_fma_f32 v[44:45], {v(O[1]+i,2)}, v[48:49], v[44:45]")
    a(f"v_mul_f32 v50, {fh(2.0**68)}, v{O[0]+8}")
    a(f"v_mul_f32 v51, {fh(2.0**68)}, v{O[1]+8}")
    a("v_pk_fma_f32 v[44:45], v[50:51], v[48:49], v[44:45]")
    a("v_cmp_u_f32 vcc, v44, v45")
    a("s_nop 1")
    a("s_cmp_eq_u64 vcc, 0")
    a("s_cbranch_scc0 K2_FB")
    a.label("K2_FIN")
    for q in range(2):
        a(f"v_rcp_f32 v{48+q}, v{O[q]+8}")
    a(f"s_mov_b32 s74, {SPIN*8}")
    a.label("K2_GW")
    a("s_waitcnt lgkmcnt(0)")
    a("v_readfirstlane_b32 s75, v47")
    a("s_sub_u32 s74, s74, 1")
    a("s_cmp_eq_u32 s74, 0")
    a("s_cbranch_scc1 K2_GOK")
    a("s_cmp_ge_u32 s75, 64")
    a("s_cbranch_scc1 K2_GOK")
    a("s_sleep 1")
    a("ds_read_b32 v47, v46")
    a(f"ds_read_b32 v{G[0]}, v7")
    a(f"ds_read_b32 v{G[1]}, v7 offset:128")
    a("s_branch K2_GW")
    a.label("K2_GOK")
    for q in range(2):
        a(f"v_mul_f32 v{44+2*q}, v{48+q}, v{G[q]}")
    GR = S[0]
    a(f"v_mov_b32 v{GR+8}, s68")
    a(f"v_mov_b32 v{GR+9}, s69")
    a(f"v_mov_b32 v{GR+10}, s68")
    a(f"v_mov_b32 v{GR+11}, s69")
    if TAGO:
        for r in (3, 7, 14, 15):
            a(f"v_mov_b32 v{GR+r}, s68")
    for q in range(2):
        for i in range(0, 8, 2):
            a(f"v_pk_mul_f32 {v(O[q]+i,2)}, {v(O[q]+i,2)}, {v(44+2*q,2)} op_sel_hi:[1,0]")
        for i in range(0, 8, 2):
            a(f"v_cvt_pk_bf16_f32 v{GR + 12 + q if (TAGO and i == 6) else GR + 4*q + i//2}, v{O[q]+i}, v{O[q]+i+1}")
        a(f"buffer_store_dwordx4 {v(GR+4*q,4)}, v3, s[28:31], s25 offen offset:{q*1024}{SC}")
    if TAGO:
        a(f"buffer_store_dwordx4 {v(GR+12,4)}, v3, s[28:31], s25 offen offset:2048{SC}")
    if FRESH:
        a("s_lshl_b32 s24, s24, 12")
        a(f"s_add_u32 s24, s24, {WS_FR}")
        a("v_lshlrev_b32 v45, 7, v2")
    else:
        a("s_lshl_b32 s24, s24, 7")
        a(f"s_add_u32 s24, s24, {FL_C}")
    a(f"v_mov_b32 v46, {LDS_SYNC + 8}")
    a("v_mov_b32 v47, 1")
    a("s_mov_b64 exec, 1")
    a("ds_add_u32 v46, v47")
    a("s_mov_b64 exec, -1")
    NSD = min(NDEF, 11)
    if NDEF:
        srd(a, 44, 16, 0x1c0000)
        a(f"s_mul_i32 s53, s20, {DSTG}")
        a("s_add_u32 s53, s53, 0x10000")
        frag_addrs(a, "s53")
        part_addrs(a, "s53", 240)
        a(f"s_mul_i32 s32, s20, {NDEF}")
        a(f"s_add_u32 s32, s32, {4*(28-NDEF)}")
        a(f"s_mul_i32 s33, s72, {2*AS*1024}")
        a("s_lshl_b32 s34, s32, 10")
        a("s_add_u32 s33, s33, s34")
        a(f"s_add_u32 s33, s33, {WS_ACT}")
        a(f"s_add_u32 s34, s33, {AS*1024}")
        a("s_lshl_b32 s35, s32, 14")
        a("s_lshl_b32 s36, s73, 7")
        a("s_add_u32 s35, s35, s36")
        a("v_and_b32 v4, 31, v2")
        a("v_lshlrev_b32 v4, 2, v4")
        a(f"v_add_u32 v4, {LDS_OG}, v4")
        a("ds_read_b32 v244, v4")
        a("ds_read_b32 v246, v4 offset:128")
        a("ds_read_b32 v47, v46")
    stamp(a, 2, 13)
    if not TAGO:
        a("s_waitcnt vmcnt(0)")
    stamp(a, 3, 13)
    if FULLF:
        a("s_mov_b64 exec, 0xff")
        a(f"buffer_store_dwordx4 {v(GR+8,4)}, v3, s[28:31], s24 offen sc1")
    elif FRESH:
        a("s_mov_b32 exec_hi, 0")
        a(f"buffer_store_dwordx2 {v(GR+8,2)}, v45, s[28:31], s24 offen sc1")
    elif ATFLAG:
        a("s_mov_b64 exec, 1")
        a(f"buffer_atomic_swap_x2 {v(GR+8,2)}, v3, s[28:31], s24 offen sc1")
    else:
        a("s_mov_b64 exec, 1")
        a(f"buffer_store_dwordx2 {v(GR+8,2)}, v3, s[28:31], s24 offen sc1")
    a("s_mov_b64 exec, -1")
    a("s_setprio 0")
    stamp(a, 6)
    stamp(a, 2, 8)
    if NDEF:
        lds_wait(a, 46, 47, ["s_and_b32 s75, s75, 255", "s_cmp_ge_u32 s75, 68"], first_read=False)
        a("v_mov_b32 v248, v46")
        a("v_mov_b32 v249, 256")
        DA_, DW_, DC_ = 144, 80, 16
        dq = []
        def dw(k):
            a(f"s_add_u32 m0, s53, {(k % NSD) * 2048}")
            a("s_nop 0")
            a("buffer_load_dwordx4 v10, s[44:47], s35 offen lds")
            a("buffer_load_dwordx4 v11, s[44:47], s35 offen offset:1024 lds")
            a("s_add_u32 s35, s35, 16384")
            dq.extend([k] * 2)
        def da(k):
            for t in range(2):
                a(f"buffer_load_dwordx4 {v(DA_+8*k+4*t,4)}, v3, s[28:31], s{33+t} offen offset:{(k%4)*1024}{SC}")
            if k % 4 == 3:
                a("s_add_u32 s33, s33, 4096")
                a("s_add_u32 s34, s34, 4096")
            dq.extend([k] * 2)
        def dwait(k):
            a(f"s_waitcnt vmcnt({len(dq) - 1 - max(i for i, t in enumerate(dq) if t == k)})")
        def drd(k):
            b = DW_ + 8 * (k & 1)
            for n in range(2):
                for u in range(2):
                    a(f"ds_read_b64_tr_b16 {v(b+4*n+2*u,2)}, v{12+n} offset:{(k % NSD) * 2048 + u*1024}")
        AH = min(AHD, NDEF)
        for k in range(AH):
            dw(k); da(k)
        dwait(0)
        stamp(a, 3, 8)
        drd(0)
        for k in range(NDEF):
            if k + AH < NDEF:
                dw(k + AH); da(k + AH)
            if k + 1 < NDEF:
                dwait(k + 1)
                if k + 3 == NDEF:
                    a("s_mov_b64 exec, 1")
                    a("ds_add_u32 v248, v249")
                    a("s_mov_b64 exec, -1")
                drd(k + 1)
                a("s_waitcnt lgkmcnt(4)")
            else:
                a("s_waitcnt lgkmcnt(0)")
            b = DW_ + 8 * (k & 1)
            for n in range(2):
                for t in range(2):
                    acc = DC_ + (n * 2 + t) * 16
                    cin = "0" if k == 0 else v(acc, 16)
                    a(f"{MF} {v(acc,16)}, {v(b+4*n,4)}, {v(DA_+8*k+4*t,4)}, {cin}")
        stamp(a, 4, 8)
        a("s_nop 7")
        for n in range(2):
            for t in range(2):
                acc = DC_ + (n * 2 + t) * 16
                if n + t == 0:
                    a("s_nop 1")
                for j in range(0, 16, 2):
                    a(f"v_pk_mul_f32 {v(acc+j,2)}, {v(acc+j,2)}, {v(244+2*t,2)} op_sel_hi:[1,0]")
                for g in range(4):
                    a(f"ds_write_b128 v{240+g}, {v(acc+4*g,4)} offset:{t*8192 + n*128}")
        stamp(a, 5, 8)
    a("s_branch K3_REDUCE")
    a.label("K2_FB")
    a("s_cmp_lg_u32 s26, 0")
    a("s_cbranch_scc1 K2_FIN")
    a("s_waitcnt lgkmcnt(0)")
    a("s_mov_b32 s26, 100")
    vaddr_init(a)
    zero_state()
    a("v_mov_b32 v44, 0xff800000")
    a("v_mov_b32 v45, 0xff800000")
    a("v_mov_b32 v43, v3")
    a("s_mov_b32 s27, 64")
    a.label("K2_MAXLOOP")
    a(f"ds_read_b128 {v(KB[0],4)}, v43")
    a(f"v_add_u32 v43, {TP}, v43")
    a("s_waitcnt lgkmcnt(0)")
    for q in range(2):
        a(f"{MF} {v(S[q],16)}, {v(KB[0],4)}, {v(Q[q],4)}, 0")
    a("s_nop 7")
    a("s_nop 7")
    for q in range(2):
        maxtree(S[q], 44 + q, acc=True)
    a("s_sub_u32 s27, s27, 1")
    a("s_cmp_lg_u32 s27, 0")
    a("s_cbranch_scc1 K2_MAXLOOP")
    a("s_branch K2_SETMAX")
    for nm in ("SQ", "SR"):
        a.label(nm + "_W")
        lds_wait(a, 0, 10, ["s_bitcmp1_b32 s75, 6"])
        a(f"s_branch {nm}_B")
    for lab, back in (("K2_KVW", "K2_NEXT"), ("K2_KVM", "K2_MID"))[:U // 8]:
        a.label(lab)
        if PROF == 16:
            a("s_memtime s[100:101]")
        lds_wait(a, 46, 47, ["s_bitcmp1_b32 s75, s77"])
        if PROF == 16:
            a("s_memtime s[98:99]")
            a("s_waitcnt lgkmcnt(0)")
            a("s_sub_u32 s98, s98, s100")
            a("s_add_u32 s89, s89, s98")
            a("s_lshl_b32 s98, 1, s77")
            a("s_or_b32 s90, s90, s98")
        a(f"s_branch {back}")

    a.label("K2_GEMM")
    ND, NW = 28 - NDEF, 8
    NG = ND // 4
    NS = env('NSW', 3)
    srd(a, 44, 16, 0x1c0000)
    srd(a, 48, 8, 0x80000)
    if FMAP:
        a("s_and_b32 s42, s72, 3")
        a("s_lshl_b32 s42, s42, 1")
        a("s_add_u32 s42, s42, s73")
    else:
        a("s_lshr_b32 s42, s2, 3")
        a("s_and_b32 s43, s42, 7")
        a("s_lshr_b32 s42, s42, 3")
        a("s_lshl_b32 s42, s42, 1")
        a("s_add_u32 s42, s42, s43")
    for _ in range(-(-14 // NG) - 1):
        a(f"s_cmp_ge_u32 s42, {NG}")
        a(f"s_cselect_b32 s43, {NG}, 0")
        a("s_sub_u32 s42, s42, s43")
    if not ROT:
        a("s_mov_b32 s42, 0")
    a("s_mov_b32 s52, s42")
    a(f"s_mul_i32 s32, s23, {ND}")
    a("s_lshl_b32 s43, s42, 2")
    a("s_add_u32 s32, s32, s43")
    a(f"s_mul_i32 s33, s72, {2*AS*1024}")
    a(f"s_add_u32 s33, s33, {WS_ACT}")
    a("s_lshl_b32 s43, s32, 10")
    a("s_add_u32 s33, s33, s43")
    a(f"s_add_u32 s34, s33, {AS*1024}")
    a("s_lshl_b32 s43, s73, 7")
    a("s_lshl_b32 s35, s32, 14")
    a("s_add_u32 s35, s35, s43")
    a("s_lshl_b32 s39, s23, 17")
    a("s_add_u32 s39, s39, s43")
    a(f"s_mul_i32 s53, s23, {3*2048}")
    a(f"s_add_u32 s53, s53, {LDS_WS}")
    GA = 16
    FR = 80
    D = 8
    queue = []
    def ld(dst, sr, k, tag):
        a(f"buffer_load_dwordx4 {v(dst,4)}, v3, s[28:31], s{sr} offen offset:{(k%4)*1024}{SC}")
        queue.append(tag)
    def aloads(k):
        b = FR + (k % D) * 16
        ld(b + 4, 33, k, ("a", k)); ld(b + 12, 34, k, ("a", k))
        if k % 4 == 3:
            a("s_add_u32 s42, s42, 1")
            a(f"s_cmp_eq_u32 s42, {NG}")
            a("s_movk_i32 s43, 4096")
            a(f"s_cselect_b32 s43, {(-(NG-1)*4096) & 0xffffffff:#x}, s43")
            a("s_cselect_b32 s42, 0, s42")
            for sr in (33, 34):
                a(f"s_add_u32 s{sr}, s{sr}, s43")
    def wloads(k):
        a(f"s_add_u32 m0, s53, {(k % NS) * 2048}")
        sr, rs = (35, 44) if k < ND else (39, 48)
        a("s_nop 0")
        a(f"buffer_load_dwordx4 v248, s[{rs}:{rs+3}], s{sr} offen lds")
        a(f"buffer_load_dwordx4 v249, s[{rs}:{rs+3}], s{sr} offen offset:1024 lds")
        queue.extend([("w", k)] * 2)
        a(f"s_add_u32 s{sr}, s{sr}, 16384")
        if k < ND and k % 4 == 3:
            a("s_add_u32 s52, s52, 1")
            a(f"s_cmp_eq_u32 s52, {NG}")
            a(f"s_cselect_b32 s43, {(-ND*16384) & 0xffffffff:#x}, 0")
            a("s_cselect_b32 s52, 0, s52")
            a("s_add_u32 s35, s35, s43")
    def waitfor(*tags):
        n = len(queue) - 1 - max(i for i, t in enumerate(queue) if t in tags)
        a(f"s_waitcnt vmcnt({n})")
    def wreads(k):
        b = FR + (k % D) * 16
        for n in range(2):
            for u in range(2):
                a(f"ds_read_b64_tr_b16 {v(b+8*n+2*u,2)}, v{250+n} offset:{(k % NS) * 2048 + u*1024}")
    def mm(k):
        b = FR + (k % D) * 16
        for n in range(2):
            for t in range(2):
                acc = GA + (n * 2 + t) * 16
                cin = "0" if k == 0 else v(acc, 16)
                a(f"{MF} {v(acc,16)}, {v(b+8*n,4)}, {v(b+4+8*t,4)}, {cin}")
    stamp(a, 3)
    a(f"v_mov_b32 v22, {LDS_SYNC + 16}")
    lds_wait(a, 22, 23, ["s_bitcmp1_b32 s75, 2"])
    a("ds_write_b128 v36, v[40:43]")
    a("ds_write_b128 v36, v[44:47] offset:16")
    a(f"ds_write_b128 v36, v[40:43] offset:{2*VP}")
    a(f"ds_write_b128 v36, v[44:47] offset:{2*VP+16}")
    if KVV == 1:
        kv_loads(3, 5)
    a(f"s_waitcnt vmcnt({4 if KVV == 1 else 0}) lgkmcnt(0)")
    stamp(a, 5, 15)
    if KVV >= 3:
        kv_loads(3, 5)
    if KVV >= 4:
        kv_loads(5, 7)
    a("s_barrier                              ; X1")
    a(f"s_setprio {GPRIO}")
    stamp(a, 6, 15)
    if KVV == 2:
        kv_loads(3, 5)
    if KVV < 4:
        kv_loads(5, 7)
    else:
        kv_loads(7, 9)
    def b1_flag():
        a("s_cmp_lg_u32 s23, 1")
        a("s_cbranch_scc1 K2_NOB1")
        a("s_lshl_b32 s37, s21, 4")
        a("s_add_u32 s37, s37, s22")
        a("s_lshl_b32 s37, s37, 7")
        a(f"s_add_u32 s37, s37, {FL_B1}")
        flag_store(a, "s37", 16)
        a.label("K2_NOB1")
    if HU < 0:
        a("s_barrier                              ; X2")
        b1_flag()
    a(f"v_mov_b32 v34, {LDS_SYNC + 12}")
    def arrived(stage, n):
        a(f"v_mov_b32 v35, {1 << (4 * stage)}")
        a(f"s_waitcnt vmcnt({n})")
        a("s_mov_b64 exec, 1")
        a("ds_add_u32 v34, v35")
        a("s_mov_b64 exec, -1")
    if KVV < 4:
        kv_loads(7, 9)
    arrived(0, 8)
    arrived(1, 4)
    if HU >= 0 and HLATE < 0:
        a(f"v_mov_b32 v22, {LDS_SYNC + 20}")
        lds_wait(a, 22, 23, ["s_cmp_eq_u32 s75, 15"])
        b1_flag()
    kv_loads(9, 12)
    arrived(2, 6)
    kv_loads(12, 16)
    srd(a, 44, 16, 0x1c0000)
    arrived(3, 0)
    a("v_mov_b32 v69, s68")
    a("s_lshl_b32 s55, s76, 4")
    a(f"s_add_u32 s55, s55, {WS_G}")
    a("s_mov_b32 exec_lo, 1")
    a("s_mov_b32 exec_hi, 1")
    a(f"buffer_store_dwordx2 v[68:69], v70, s[28:31], s55 offen{SC}")
    a("s_mov_b64 exec, -1")
    if HLATE >= 0:
        a(f"v_mov_b32 v22, {LDS_SYNC + 20}")
        lds_wait(a, 22, 23, ["s_cmp_eq_u32 s75, 15"], slp=4)
        b1_flag()
    if WARMW and FMAP:
        a("s_lshr_b32 s54, s2, 3")
        a("s_lshl_b32 s54, s54, 2")
        a("s_add_u32 s54, s54, s23")
        a("s_mul_i32 s55, s54, 14336")
        a("v_min_u32 v14, 55, v2")
        a("v_lshlrev_b32 v14, 7, v14")
        a("buffer_load_dword v15, v14, s[44:47], s55 offen")
        a("s_add_u32 s55, s55, 7168")
        a("buffer_load_dword v15, v14, s[44:47], s55 offen")
        a("s_lshl_b32 s55, s54, 12")
        a("v_and_b32 v14, 31, v2")
        a("v_lshlrev_b32 v14, 7, v14")
        a("buffer_load_dword v15, v14, s[48:51], s55 offen")
    elif WARMW:
        a("s_lshr_b32 s54, s2, 3")
        a("s_and_b32 s54, s54, 7")
        a("s_lshl_b32 s55, s54, 2")
        a("s_add_u32 s55, s55, s23")
        a("s_mul_i32 s55, s55, 57344")
        a("s_add_u32 s55, s55, s43")
        a("v_min_u32 v14, 55, v2")
        a("v_lshlrev_b32 v14, 10, v14")
        a("buffer_load_dword v15, v14, s[44:47], s55 offen")
        a("s_lshl_b32 s55, s54, 2")
        a("s_add_u32 s55, s55, s23")
        a("s_lshl_b32 s55, s55, 14")
        a("s_add_u32 s55, s55, s43")
        a("v_and_b32 v14, 15, v2")
        a("v_lshlrev_b32 v14, 10, v14")
        a("buffer_load_dword v15, v14, s[48:51], s55 offen")
    for k in range(NS):
        wloads(k)
    a("s_setprio 3")
    a("v_and_b32 v6, 15, v2")
    a("v_lshlrev_b32 v6, 7, v6")
    a("s_lshr_b32 s24, s72, 1")
    a("s_lshl_b32 s24, s24, 11")
    a(f"s_add_u32 s24, s24, {FL_B1}")
    poll_shared(a, 3, [("s24", 6, 8, 4)], 20, lslp=4)
    a("v_and_b32 v6, 31, v2")
    a("v_lshlrev_b32 v6, 3, v6")
    a("v_lshlrev_b32 v7, 3, v2")
    a("s_lshl_b32 s54, s72, 9")
    a(f"s_add_u32 s54, s54, {WS_G}")
    a("s_lshl_b32 s55, s71, 2")
    a("s_add_u32 s55, s55, s23")
    a("s_lshl_b32 s55, s55, 9")
    a(f"s_add_u32 s55, s55, {WS_G}")
    a(f"s_mov_b32 s74, {SPIN}")
    a.label("K2_GL")
    a(f"buffer_load_dwordx2 v[240:241], v6, s[28:31], s54 offen{SC}")
    a(f"buffer_load_dwordx2 v[242:243], v6, s[28:31], s54 offen offset:256{SC}")
    a(f"buffer_load_dwordx2 v[244:245], v7, s[28:31], s55 offen{SC}")
    a("s_waitcnt vmcnt(0)")
    a("v_xor_b32 v8, s68, v241")
    a("v_xor_b32 v9, s68, v243")
    a("v_xor_b32 v14, s68, v245")
    a("v_or3_b32 v8, v8, v9, v14")
    a("v_cmp_ne_u32 vcc, 0, v8")
    a("s_sub_u32 s74, s74, 1")
    a("s_cbranch_scc1 K2_GD")
    a("s_cmp_eq_u64 vcc, 0")
    a("s_cbranch_scc1 K2_GD")
    a("s_sleep 4")
    a("s_branch K2_GL")
    a.label("K2_GD")
    a("s_lshl_b32 s55, s23, 8")
    a(f"s_add_u32 s55, s55, {LDS_GQ}")
    a("v_lshrrev_b32 v7, 1, v7")
    a("v_add_u32 v7, s55, v7")
    a("ds_write_b32 v7, v244")
    a("v_sub_f32 v240, 1.0, v240")
    a("v_sub_f32 v242, 1.0, v242")
    a("v_lshrrev_b32 v6, 1, v6")
    a(f"v_add_u32 v6, {LDS_OG}, v6")
    a("ds_write_b32 v6, v240")
    a("ds_write_b32 v6, v242 offset:128")
    a(f"v_mov_b32 v8, {LDS_SYNC + 4}")
    a("v_mov_b32 v9, 16")
    a("s_waitcnt lgkmcnt(0)")
    a("s_mov_b64 exec, 1")
    a("ds_add_u32 v8, v9")
    a("s_mov_b64 exec, -1")
    stamp(a, 4)
    stamp(a, 6, 16)
    DA = DAH
    a("s_setprio 0")
    place(a, "D")
    for k in range(DA):
        aloads(k)
    for k in range(ND + NW):
        waitfor(("w", k), ("a", k))
        wreads(k)
        a("s_waitcnt lgkmcnt(0)")
        if k + NS < ND + NW:
            wloads(k + NS)
        if k + DA < ND:
            aloads(k + DA)
        if k < ND:
            mm(k)
    a("s_setprio 3")
    if NDEF and WARMD:
        assert FMAP
        a(f"s_mul_i32 s33, s72, {2*AS*1024}")
        a("s_lshr_b32 s34, s23, 1")
        a(f"s_mul_i32 s34, s34, {AS*1024}")
        a("s_add_u32 s33, s33, s34")
        a("s_lshl_b32 s34, s73, 1")
        a("s_and_b32 s35, s23, 1")
        a("s_add_u32 s34, s34, s35")
        a(f"s_mul_i32 s34, s34, {NDEF*256}")
        a("s_add_u32 s33, s33, s34")
        a(f"s_add_u32 s33, s33, {WS_ACT + 4*ND*1024}")
        a(f"v_min_u32 v14, {2*NDEF-1}, v2")
        a("v_lshlrev_b32 v14, 7, v14")
        a(f"buffer_load_dword v15, v14, s[28:31], s33 offen{SC}")
        a("s_and_b32 s34, s72, 3")
        a("s_lshl_b32 s34, s34, 2")
        a("s_add_u32 s34, s34, s23")
        a(f"s_mul_i32 s34, s34, {NDEF*4096}")
        a("s_lshl_b32 s35, s73, 7")
        a("s_add_u32 s34, s34, s35")
        a(f"s_add_u32 s34, s34, {4*ND*16384}")
        a(f"v_min_u32 v14, {4*NDEF-1}, v2")
        a("v_lshlrev_b32 v14, 10, v14")
        a("buffer_load_dword v15, v14, s[44:47], s34 offen")
    a("s_nop 7")
    a("s_nop 7")
    for n in range(2):
        for t in range(2):
            acc = GA + (n * 2 + t) * 16
            for j in range(16):
                a(f"v_mul_f32 v{acc+j}, v{acc+j}, v{240+2*t}")
    a("s_lshl_b32 s24, s72, 2")
    a("s_add_u32 s24, s24, s23")
    a(f"s_mul_i32 s24, s24, {8*OS}" if TAGO else "s_lshl_b32 s24, s24, 14")
    a(f"s_add_u32 s24, s24, {WS_O}")
    a("v_and_b32 v6, 7, v2")
    a("v_lshlrev_b32 v6, 7, v6")
    a("s_lshl_b32 s26, s72, 12")
    a("s_lshl_b32 s25, s23, 10")
    a("s_add_u32 s26, s26, s25")
    if FRESH:
        a("v_lshlrev_b32 v6, 5, v6")
        a("s_lshl_b32 s27, s26, 5")
        a(f"s_add_u32 s27, s27, {WS_FR}")
    a(f"s_add_u32 s26, s26, {FL_C}")
    a(f"v_mov_b32 v11, {LDS_SYNC + 8}")
    a("v_mov_b32 v10, 16")
    a("s_mov_b64 exec, 1")
    a("ds_add_u32 v11, v10")
    a("s_mov_b64 exec, -1")
    a("s_mov_b32 s54, 0")
    a(f"s_mov_b32 s74, {SPIN}")
    if TLBW > 1:
        lab = a.newlabel("TLB")
        a("s_cmp_lg_u32 s23, 2")
        a(f"s_cbranch_scc1 {lab}")
        a("v_mov_b32 v12, 0")
        for pg in (6, 7):
            a(f"s_mov_b32 s33, {spare(pg):#x}")
            a("buffer_load_dword v13, v12, s[28:31], s33 offen sc1")
        a("s_lshl_b32 s33, s72, 16")
        a("s_lshl_b32 s34, s73, 7")
        a("s_add_u32 s33, s33, s34")
        a("v_mov_b32 v12, s33")
        a("global_load_dword v13, v12, s[64:65] sc1")
        a.label(lab)
    stamp(a, 5)
    stamp(a, 1, 8)
    def c_poll(r=8):
        if FRESH:
            a("s_memrealtime s[58:59]")
        a(f"v_mov_b32 v{r}, 0")
        a(f"v_mov_b32 v{r+1}, 0")
        if FRESH:
            a("s_waitcnt lgkmcnt(0)")
            a(f"s_bfe_u32 s58, s58, {(5 << 16) | FRESH:#x}")
            a("s_lshl_b32 s58, s58, 7")
            a("s_add_u32 s26, s27, s58")
        if MASKP:
            a("s_xor_b32 exec_lo, s54, 0xff")
            a("s_mov_b32 exec_hi, 0")
        else:
            a("s_mov_b64 exec, 0xff")
        if ATPOLL:
            a(f"buffer_atomic_or_x2 {v(r,2)}, v6, s[28:31], s26 offen sc0 sc1")
        else:
            a(f"buffer_load_dwordx2 {v(r,2)}, v6, s[28:31], s26 offen sc1")
        a("s_mov_b64 exec, -1")
    def pause():
        if NDEF and PAUSE:
            lab, done = a.newlabel("PZ"), a.newlabel("PZD")
            a(f"s_mov_b32 s76, {SPIN}")
            a.label(lab)
            a("ds_read_b32 v10, v11")
            a("s_waitcnt lgkmcnt(0)")
            a("v_readfirstlane_b32 s75, v10")
            a("s_sub_u32 s76, s76, 1")
            a(f"s_cbranch_scc1 {done}")
            a("s_cmp_ge_u32 s75, 1024")
            a(f"s_cbranch_scc1 {done}")
            a("s_and_b32 s75, s75, 15")
            a(f"s_cbranch_scc0 {done}")
            a("s_sleep 1")
            a(f"s_branch {lab}")
            a.label(done)
    def guard(reg, kk, tag, end=False):
        if not TRIM:
            return
        for w_ in ((2, 4) if end else (4, 2)):
            if not end and kk % w_ == 0:
                a(f"s_and_b32 s58, {reg}, {((1 << w_) - 1) << kk:#x}")
                a(f"s_cbranch_scc0 K3_G{tag}{w_}_{kk}")
            if end and kk % w_ == w_ - 1:
                a.label(f"K3_G{tag}{w_}_{kk - w_ + 1}")
    def o_loads(tag):
        for kk in range(NW):
            b = FR + ((ND + kk) % D) * 16
            guard("s55", kk, "L" + tag)
            a(f"s_bitcmp1_b32 s55, {kk}")
            a(f"s_cbranch_scc0 K3_L{tag}{kk}")
            a(f"s_add_u32 s25, s24, {kk*OS}")
            a(f"buffer_load_dwordx4 {v(b+4,4)}, v3, s[28:31], s25 offen{SC}")
            a(f"buffer_load_dwordx4 {v(b+12,4)}, v3, s[28:31], s25 offen offset:1024{SC}")
            if TAGO:
                a(f"buffer_load_dwordx4 {v(216+4*kk,4)}, v3, s[28:31], s25 offen offset:2048{SC}")
            a.label(f"K3_L{tag}{kk}")
            guard("s55", kk, "L" + tag, True)
    if TMODE:
        if TMODE == 3:
            a(f"v_mov_b32 v12, {LDS_SYNC + 20}")
            a.label("K3_NEAR")
            a("ds_read_b32 v10, v12")
            a("s_waitcnt lgkmcnt(0)")
            a("v_readfirstlane_b32 s75, v10")
            a(f"s_cmp_gt_u32 s75, {12 * 64 * 0xdddd}")
            a("s_cbranch_scc1 K3_NEAR1")
            a(f"s_sleep {PSLOW // 2}")
            a("s_sub_u32 s74, s74, 1")
            a("s_cbranch_scc0 K3_NEAR")
            a.label("K3_NEAR1")
            c_poll()
            a("s_waitcnt vmcnt(0)")
            a("v_cmp_eq_u64 vcc, s[68:69], v[8:9]")
            a(f"s_mov_b32 s74, {SPIN}")
            a("s_mov_b32 s55, vcc_lo")
            a("s_mov_b32 s54, s55")
            o_loads("P")
        a.label("K3_PRE")
        if TMODE == 2:
            a("s_cmp_eq_u32 s54, 0xff")
            a("s_cbranch_scc1 K3_PRE1")
            c_poll()
            a("s_waitcnt vmcnt(0)")
            a("v_cmp_eq_u64 vcc, s[68:69], v[8:9]")
            a("s_nop 0")
            a("s_andn2_b32 s55, vcc_lo, s54")
            a("s_or_b32 s54, s54, s55")
            o_loads("P")
            a.label("K3_PRE1")
        for rep in range(4):
            a("ds_read_b32 v10, v11" + (" offset:12" if EARLYT else ""))
            a("s_waitcnt lgkmcnt(0)")
            a("v_readfirstlane_b32 s75, v10")
            a(f"s_cmp_ge_u32 s75, {(64 - UA) * TP}" if EARLYT else ("s_bitcmp1_b32 s75, 2" if TRIM else "s_and_b32 s75, s75, 15"))
            a("s_cbranch_scc1 K3_GO")
            a(f"s_sleep {PSLOW // 4}")
        a("s_sub_u32 s74, s74, 1")
        a("s_cbranch_scc0 K3_PRE")
        a.label("K3_GO")
    if TPIPE:
        assert TMODE == 1
        a(f"s_mov_b32 s74, {SPIN}")
        a("s_mov_b32 s59, 0")
        c_poll()
        a.label("K3_ROUND")
        a("s_waitcnt vmcnt(0)")
        a("v_cmp_eq_u64 vcc, s[68:69], v[8:9]")
        a("s_sub_u32 s74, s74, 1")
        a("s_cselect_b32 s55, 0xff, vcc_lo")
        a("s_andn2_b32 s55, s55, s54")
        a("s_cbranch_scc0 K3_NONEW")
        stamp(a, 1, 13)
        if PROF == 13:
            a("s_mov_b32 s89, s55")
        if FAST8:
            a("s_cmp_eq_u32 s55, 0xff")
            a("s_cbranch_scc1 K3_ALL8")
        a("s_or_b32 s54, s54, s55")
        o_loads("")
        a.label("K3_NONEW")
        a("s_cmp_eq_u32 s54, 0xff")
        a("s_cbranch_scc1 K3_LAST")
        a("s_or_b32 s58, s55, s59")
        a("s_cbranch_scc1 K3_BUSY")
        a(f"s_sleep {TSLP}")
        a.label("K3_BUSY")
        c_poll()
        a.label("K3_LAST")
        a("s_cmp_eq_u32 s59, 0")
        a("s_cbranch_scc1 K3_NOMM")
        stamp(a, 2, 13)
        a("ds_read_b32 v10, v11")
        a("s_setprio 0")
        for kk in range(NW):
            guard("s59", kk, "M")
            a(f"s_bitcmp1_b32 s59, {kk}")
            a(f"s_cbranch_scc0 K3_C{kk}")
            mm(ND + kk)
            a.label(f"K3_C{kk}")
            guard("s59", kk, "M", True)
        a("s_setprio 3")
        a.label("K3_NOMM")
        a("s_mov_b32 s59, s55")
        a("s_xor_b32 s58, s54, 0xff")
        a("s_or_b32 s58, s58, s59")
        a("s_cbranch_scc1 K3_ROUND")
        if FAST8:
            a("s_branch K3_DONE")
            a.label("K3_ALL8")
            for kk in range(NW):
                b = FR + ((ND + kk) % D) * 16
                if kk % 2 == 0:
                    a(f"s_add_u32 s25, s24, {kk*2048}")
                a(f"buffer_load_dwordx4 {v(b+4,4)}, v3, s[28:31], s25 offen offset:{(kk%2)*2048}{SC}")
                a(f"buffer_load_dwordx4 {v(b+12,4)}, v3, s[28:31], s25 offen offset:{(kk%2)*2048+1024}{SC}")
            a("s_setprio 0")
            for kk in range(NW):
                a(f"s_waitcnt vmcnt({2*(NW-1-kk)})")
                if kk == NW - 1:
                    a("ds_read_b32 v10, v11")
                mm(ND + kk)
            a("s_setprio 3")
            a.label("K3_DONE")
    else:
        a(f"s_mov_b32 s74, {SPIN}")
        a("s_mov_b32 s55, s54")
        if TAGO:
            a("s_mov_b32 s59, 0")
            a("s_mov_b64 s[60:61], -1")
        a("s_branch K3_NEXTP")
        a.label("K3_POLL")
        c_poll()
        a.label("K3_ROUND")
        a("s_waitcnt vmcnt(0)")
        a("v_cmp_eq_u64 vcc, s[68:69], v[8:9]")
        a("s_sub_u32 s74, s74, 1")
        a("s_cselect_b32 s55, 0xff, vcc_lo")
        if TAGO:
            a("s_cselect_b64 s[60:61], 0, -1")
        a("s_andn2_b32 s55, s55, s54")
        a("s_cbranch_scc1 K3_SOME")
        if TMODE:
            a(f"s_sleep {TSLP}")
        else:
            a("ds_read_b32 v10, v11")
            a(f"s_sleep {TSLP}")
            a("s_waitcnt lgkmcnt(0)")
            a("v_readfirstlane_b32 s75, v10")
            a("s_and_b32 s75, s75, 15")
            a("s_cbranch_scc1 K3_POLL")
            a(f"s_sleep {PSLOW}")
        a("s_branch K3_POLL")
        a.label("K3_SOME")
        stamp(a, 1, 13)
        if PROF == 13:
            a("s_mov_b32 s89, s55")
        a("s_or_b32 s54, s54, s55")
        o_loads("")
        a.label("K3_NEXTP")
        a("s_waitcnt vmcnt(0)")
        a("s_cmp_eq_u32 s54, 0xff")
        a("s_cbranch_scc1 K3_LAST")
        c_poll()
        a.label("K3_LAST")
        if not TRIM:
            a("ds_read_b32 v10, v11")
        stamp(a, 2, 13)
        for kk in range(NW):
            guard("s55", kk, "M")
            a(f"s_bitcmp1_b32 s55, {kk}")
            a(f"s_cbranch_scc0 K3_C{kk}")
            if TAGO:
                b = FR + ((ND + kk) % D) * 16
                a(f"v_xor_b32 v12, s68, v{b+7}")
                a(f"v_xor_b32 v13, s68, v{b+15}")
                a(f"v_xor_b32 v14, s68, v{216+4*kk+3}")
                a("v_or3_b32 v12, v12, v13, v14")
                a("v_cmp_ne_u32 s[56:57], 0, v12")
                a(f"v_mov_b32 v{b+7}, v{216+4*kk}")
                a(f"v_mov_b32 v{b+15}, v{216+4*kk+1}")
                a("s_and_b64 s[56:57], s[56:57], s[60:61]")
                a(f"s_cbranch_scc1 K3_X{kk}")
            mm(ND + kk)
            a.label(f"K3_C{kk}")
            guard("s55", kk, "M", True)
        a("s_cmp_lg_u32 s54, 0xff")
        if TAGO:
            a("s_cbranch_scc0 K3_FIN")
            a("s_waitcnt vmcnt(0)")
            a("s_cmp_eq_u32 s59, 0")
            a("s_cbranch_scc1 K3_ROUND")
            a("s_mov_b32 s59, 0")
            a("s_branch K3_POLL")
            for kk in range(NW):
                a.label(f"K3_X{kk}")
                a(f"s_bitset0_b32 s54, {kk}")
                a("s_mov_b32 s59, 1")
                a(f"s_branch K3_C{kk}")
            a.label("K3_FIN")
        else:
            a("s_cbranch_scc1 K3_ROUND")
    stamp(a, 6)
    stamp(a, 2, 8)
    stamp(a, 3, 13)
    if not (TRIM and TMODE == 1 and not EARLYT):
        lds_wait(a, 11, 10, ["s_bitcmp1_b32 s75, 2"], first_read=False)
    for i in range(3, 6):
        stamp(a, i, 8)
    stamp(a, 4, 13)
    a("s_nop 7")
    part_write(a, GA, 212)
    stamp(a, 5, 13)
    a.label("K3_REDUCE")
    srd(a, 24, 64, 0x200000)
    a("s_lshl_b32 s32, s20, 6")
    a("v_add_u32 v0, s32, v2                  ; tid")
    a("v_lshrrev_b32 v7, 3, v0                ; token")
    a("v_and_b32 v5, 7, v0")
    a("v_lshlrev_b32 v6, 1, v5")
    a("v_and_b32 v8, 7, v7")
    a("v_xor_b32 v6, v6, v8")
    a("v_lshlrev_b32 v6, 4, v6")
    a("v_lshl_add_u32 v6, v7, 8, v6")
    a("v_xor_b32 v8, 16, v6")
    a("v_add_u32 v9, 0x10000, v6")
    a("v_add_u32 v10, 0x10000, v8")
    a("v_lshlrev_b32 v7, 10, v7")
    a("v_lshl_add_u32 v7, v5, 4, v7")
    a("s_lshl_b32 s32, s72, 16")
    a("s_lshl_b32 s33, s73, 7")
    a("s_add_u32 s32, s32, s33")
    a("s_waitcnt lgkmcnt(0)")
    a("s_barrier                              ; Y1")
    stamp(a, 6, 8)
    stamp(a, 6, 13)
    NP = 8 if NDEF else 4
    RB = 96
    for w in range(NP):
        off = w * 16384 if w < 4 else (w - 4) * DSTG
        r0, r1 = (6, 8) if w < 4 else (9, 10)
        if off > 65535:
            a("v_add_u32 v9, 0x8000, v9")
            a("v_add_u32 v10, 0x8000, v10")
            off -= 0x8000
        a(f"ds_read_b128 {v(RB+8*w,4)}, v{r0} offset:{off}")
        a(f"ds_read_b128 {v(RB+4+8*w,4)}, v{r1} offset:{off}")
    for w in range(1, NP):
        a(f"s_waitcnt lgkmcnt({2*(NP-1-w)})")
        for j in range(0, 8, 2):
            a(f"v_pk_add_f32 {v(RB+j,2)}, {v(RB+j,2)}, {v(RB+8*w+j,2)}")
    for j in range(0, 8, 2):
        a(f"v_cvt_pk_bf16_f32 v{16+j//2}, v{RB+j}, v{RB+j+1}")
    a("buffer_store_dwordx4 v[16:19], v7, s[24:27], s32 offen" + (" " + OUTSC if OUTSC else ""))
    if PADEND:
        pad_until(a, PADEND)
    stamp_flush(a, 8)
    a.label("K_EXIT")
    a("s_endpgm")
    a.label("K_END")

DOC = """;
"""

def main():
    hdr = open("cdna_kernels/" + NAME + ".s.ref").read().split("\n")
    top = [l for l in hdr if l.startswith(";") and "@launch" not in l]
    out = "\n".join(top) + "\n"
    out += f"; @launch grid=(256,1,1) block=(512,1,1) lds={LDS_TOTAL}\n"
    out += DOC
    out += '.amdgcn_target "amdgcn-amd-amdhsa--gfx950"\n.text\n'
    a = Asm()
    gen(a)
    out += a.text()
    out += '.section .rodata,"a"\n'
    out += kernel_desc(KNAME, 256, 102)
    path = sys.argv[1] if len(sys.argv) > 1 else "cdna_kernels/" + NAME + ".s"
    open(path, "w").write(out)

main()
```

```python
import sys, math, os
from asmlib import *

NAME = "gated_mix__softmax_full_mha__geglu_ffn__prompt"
KNAME = NAME + "_kernel"
LOG2E = 1.4426950408889634
def env(n, d): return int(os.environ.get(n, str(d)))
PROF = env("PROF", 0)
ROT = env("ROT", 1)
TAGPOS = env("TAGPOS", 0)
PADEND = env("PADEND", 0)
PADATT = env("PADATT", 0)
DBGWG = env("DBGWG", -1)
TLBW = env("TLBW", 1)
TLB0 = env("TLB0", 0)
E4 = env("E4", -1)
YBAR = env("YBAR", 1)
BSLP = env("BSLP", 8)
JW = env("JW", 1)
PFW = env("PFW", 0)
PFI = env("PFI", 1)
PFX = env("PFX", 0)
KVROT = env("KVROT", 1)
AFLAG = env("AFLAG", 10)
PFC = env("PFC", 5)
ONEP = env("ONEP", 0)
FMAP = env("FMAP", 0)
NOTAG = env("NOTAG", 0)
ROT1 = env("ROT1", 2)
OUTSC = os.environ.get("OUTSC", "sc1")
GPK = env("GPK", 0)
UA = env("UA", 16)
PRE = env("PRE", 2)
QLD = env("QLD", 4)
WARMW = env("WARMW", 0)
ROT2 = env("ROT2", 1)
NDEF = env("NDEF", 0)
WARMD = env("WARMD", 1)
PSLOW = env("PSLOW", 16)
PAUSE = env("PAUSE", 1)
KVV = env("KVV", 2)
FASTX = env("FASTX", 0)
FULLF = env("FULLF", 0)
PIPE = env("PIPE", 1)
ATFLAG = env("ATFLAG", 1)
FRESH = env("FRESH", 0)
WS_FR = 0x2000000
PDEL = env("PDEL", 4)
MASKP = env("MASKP", 1)
SPAT = env("SPAT", 3)
LPRIO = env("LPRIO", 0)
FA0 = env("FA0", 13)
AFLAGQ = env("AFLAGQ", 11)
CAP = env("CAP", 20)
QS0 = env("QS0", 6)
QSD = env("QSD", 0)
TMODE = env("TMODE", 1)
GPRIO = env("GPRIO", 3)
ATFA = env("ATFA", 0)
QFIRST = env("QFIRST", 1)
HU = env("HU", -1)
KVW = env("KVW", 0)
HEARLY = env("HEARLY", 0)
HLATE = env("HLATE", -1)
HSTEP = env("HSTEP", 1)
AMIX = env("AMIX", 1)
TPIPE = env("TPIPE", 0)
TRIM = env("TRIM", 0)
TAGO = env("TAGO", 0)
OS = 3072 if TAGO else 2048
EARLYT = env("EARLYT", 0)
FAST8 = env("FAST8", 1)
FULLA = env("FULLA", 0)
ATFS = env("ATFS", 0)
TNEAR = env("TNEAR", 13)
DAH = env("DAH", 4)
GLD = env("GLD", 7)
GMA = env("GMA", 9)
FDEL = env("FDEL", 0)
FSLP = env("FSLP", 1)
QCAP = env("QCAP", 40)
KVA = env("KVA", 0)
NFILL = env("NFILL", 4)
AHD = env("AHD", 6)
ATPOLL = env("ATPOLL", 1)
HINTW = env("HINTW", 0)
TSLP = env("TSLP", 2)
SPF = env("SPF", 0)
CODEPF = env("CODEPF", 1)
SLP = env("SLP", 4)

HK = 65
AS = 113
WS_K = 0x0
WS_V = 0x210000
WS_Q = 0x420000
WS_ACT = 0x640000
WS_O = 0xD60000
WS_G = 0xF70000
WS_FL = 0xF80000
def spare(page):
    c = [b + h * HK * 1024 + 65536 for b in (WS_K, WS_V, WS_Q) for h in range(32)] + [WS_ACT + t * AS * 1024 + 112 * 1024 for t in range(64)] + [0xF60000]
    return next(x for x in c if x >> 21 == page)
FL_A = WS_FL
FL_B1 = WS_FL + 0x8000
FL_Q = WS_FL + 0x10000 - 12 * 2048
FL_B2 = WS_FL + 0x10000
FL_C = WS_FL + 0x20000
WS_STAMP = 0x1800000
WS_SIZE = 0x2800000

XS = 16384
WB = 5 * XS
WSL = 24576
LDS_GQ = 162176
LDS_OG = 163200
LDS_TAG = 163584
LDS_SYNC = LDS_TAG + 8
LDS_TOTAL = 163840
TP = 2080
LDS_V = 1024
VP = TP
LDS_WS = 137472
DSTG = 22528
LDS_Q = WB + 2 * WSL + 16384
LDS_PARK = WB + 3 * WSL
XPOS = [3, 2, 0, 1, 4, 3, 2, 0,  0, 2, 3, 4, 1, 2, 3, 4]
def xslot(c):
    return XPOS[c] * XS
def wslot(c):
    return WB + ((c % 3) * WSL if c < 8 else ((c + 3) % 4) * 16384)

SC = " sc1"
SPIN = 200000
MF = "v_mfma_f32_32x32x16_bf16"

def srd(a, d, base, nbytes):
    a(f"s_mov_b32 s{d}, s{base}")
    a(f"s_mov_b32 s{d+1}, s{base+1}")
    a(f"s_mov_b32 s{d+2}, {nbytes:#x}")
    a(f"s_mov_b32 s{d+3}, 0x20000")

def stamp(a, i, lvl=1):
    if PROF and (PROF == lvl or i in (0, 7) or (PROF == 16 and lvl == 15)):
        a("s_memrealtime s[96:97]")
        a("s_memtime s[98:99]")
        a("s_waitcnt lgkmcnt(0)")
        a(f"s_mov_b32 s{80+i}, s96")
        a(f"s_mov_b32 s{88+i}, s98")

def stamp_flush(a, n):
    if PROF:
        a("s_waitcnt vmcnt(0)")
        stamp(a, n - 1)
        a("s_lshl_b32 s78, s2, 4")
        a("s_add_u32 s78, s78, s20")
        a("s_lshl_b32 s78, s78, 6")
        a(f"s_add_u32 s78, s78, {WS_STAMP}")
        a("v_mov_b32 v1, 0")
        for i in range(n):
            a(f"v_mov_b32 v0, s{80+i}")
            a(f"buffer_store_dword v0, v1, s[28:31], s78 offen offset:{4*i}")
            a("s_nop 1")
            a(f"v_mov_b32 v0, s{88+i}")
            a(f"buffer_store_dword v0, v1, s[28:31], s78 offen offset:{32+4*i}")
            a("s_nop 1")
        a("s_waitcnt vmcnt(0)")
        if DBGWG >= 0:
            a(f"s_cmp_lg_u32 s2, {DBGWG}")
            a("s_cbranch_scc1 DBG_SKIP")
            a("s_and_b32 s78, s20, 3")
            a("s_cmp_lg_u32 s78, 0")
            a("s_cbranch_scc1 DBG_SKIP")
            a("s_mul_i32 s78, s20, 7")
            a("v_mov_b32 v1, s78")
            for i in range(1, n):
                a(f"s_sub_u32 s79, s{80+i}, s80")
                a("v_mov_b32 v0, s79")
                a(f"global_store_dword v1, v0, s[66:67] offset:{4+4*i}")
                a("s_nop 1")
            a("s_waitcnt vmcnt(0)")
            a.label("DBG_SKIP")

def pad_until(a, ticks):
    lab = a.newlabel("PAD")
    a.label(lab)
    a("s_memrealtime s[96:97]")
    a("s_waitcnt lgkmcnt(0)")
    a("s_sub_u32 s96, s96, s68")
    a(f"s_cmp_lt_u32 s96, {ticks}")
    a(f"s_cbranch_scc1 {lab}")

def flag_store(a, soff, vtmp):
    a(f"v_mov_b32 v{vtmp}, s68")
    a(f"v_mov_b32 v{vtmp+1}, s69")
    if FULLA:
        a("v_lshlrev_b32 v%d, 3, v2" % (vtmp + 2))
        a("s_mov_b64 exec, 0xffff")
    else:
        a(f"v_mov_b32 v{vtmp+2}, 0")
        a("s_mov_b64 exec, 1")
    a(f"buffer_store_dwordx2 {v(vtmp,2)}, v{vtmp+2}, s[28:31], {soff} offen sc1")
    a("s_mov_b64 exec, -1")

def poll(a, soff, voff, vtmp, slp=None):
    lab = a.newlabel("POLL")
    done = a.newlabel("POLLD")
    a(f"s_mov_b32 s74, {SPIN}")
    a.label(lab)
    a(f"buffer_load_dwordx2 {v(vtmp,2)}, v{voff}, s[28:31], {soff} offen sc1")
    a("s_waitcnt vmcnt(0)")
    a(f"v_cmp_ne_u64 vcc, s[68:69], {v(vtmp,2)}")
    a("s_sub_u32 s74, s74, 1")
    a("s_cmp_eq_u32 s74, 0")
    a(f"s_cbranch_scc1 {done}")
    a("s_cmp_eq_u64 vcc, 0")
    a(f"s_cbranch_scc1 {done}")
    a(f"s_sleep {SLP if slp is None else slp}")
    a(f"s_branch {lab}")
    a.label(done)

def poll_shared(a, stage, polls, vtmp, lslp=1, extra=None):
    other = a.newlabel("PSO")
    done = a.newlabel("PSD")
    a(f"v_mov_b32 v{vtmp+3}, {LDS_SYNC}")
    a("s_cmp_lg_u32 s23, 0")
    a(f"s_cbranch_scc1 {other}")
    for p in polls:
        poll(a, *p)
    if extra:
        extra()
    a(f"v_mov_b32 v{vtmp}, {stage}")
    a(f"ds_write_b32 v{vtmp+3}, v{vtmp}")
    a(f"s_branch {done}")
    a.label(other)
    a(f"s_mov_b32 s74, {SPIN*8}")
    lab = a.newlabel("PSL")
    a.label(lab)
    a(f"ds_read_b32 v{vtmp}, v{vtmp+3}")
    a("s_waitcnt lgkmcnt(0)")
    a(f"v_readfirstlane_b32 s75, v{vtmp}")
    a("s_sub_u32 s74, s74, 1")
    a("s_cmp_eq_u32 s74, 0")
    a(f"s_cbranch_scc1 {done}")
    a(f"s_cmp_ge_u32 s75, {stage}")
    a(f"s_cbranch_scc1 {done}")
    a(f"s_sleep {lslp}")
    a(f"s_branch {lab}")
    a.label(done)

def cvt_tile(a, acc, dst, lo=0, hi=16):
    for i in range(lo, hi, 2):
        a(f"v_cvt_pk_bf16_f32 v{dst + (i - lo)//2}, v{acc+i}, v{acc+i+1}")

def frag_addrs(a, sbase, R=10):
    a("v_lshrrev_b32 v4, 3, v2")
    a("v_and_b32 v5, 7, v2")
    a("v_bfe_u32 v7, v2, 4, 1")
    a("v_lshlrev_b32 v7, 2, v7")
    a("v_xor_b32 v5, v5, v7")
    a("v_lshlrev_b32 v5, 4, v5")
    a(f"v_lshl_add_u32 v{R}, v4, 10, v5")
    a(f"v_add_u32 v{R+1}, 7168, v{R}")
    a("v_bfe_u32 v4, v2, 2, 2")
    a("v_lshrrev_b32 v5, 5, v2")
    a("v_lshl_add_u32 v5, v5, 2, v4")
    a("v_lshlrev_b32 v5, 7, v5")
    a("v_lshrrev_b32 v4, 1, v4")
    a("v_lshl_add_u32 v5, v4, 6, v5")
    a("v_bfe_u32 v4, v2, 4, 1")
    a("v_lshl_add_u32 v5, v4, 5, v5")
    a("v_and_b32 v4, 3, v2")
    a("v_lshl_add_u32 v5, v4, 3, v5")
    a(f"v_xor_b32 v{R+3}, 64, v5")
    a(f"v_add_u32 v{R+2}, {sbase}, v5")
    a(f"v_add_u32 v{R+3}, {sbase}, v{R+3}")

def part_addrs(a, sbase, r):
    a(f"v_lshrrev_b32 v{r}, 5, v2")
    a(f"v_and_b32 v{r+1}, 7, v2")
    a(f"v_xor_b32 v{r}, v{r}, v{r+1}")
    a(f"v_and_b32 v{r+1}, 31, v2")
    a(f"v_lshlrev_b32 v{r+1}, 8, v{r+1}")
    a(f"v_lshl_add_u32 v{r}, v{r}, 4, v{r+1}")
    for g in range(1, 4):
        a(f"v_xor_b32 v{r+g}, {32*g}, v{r}")
    for g in range(4):
        a(f"v_add_u32 v{r+g}, {sbase}, v{r+g}")

def part_write(a, GA, r):
    for n in range(2):
        for t in range(2):
            acc = GA + (n * 2 + t) * 16
            for g in range(4):
                a(f"ds_write_b128 v{r+g}, {v(acc+4*g,4)} offset:{t*8192 + n*128}")

def lds_wait(a, vaddr, vdst, cmp_lines, first_read=True, slp=1):
    lab, done = a.newlabel("LW"), a.newlabel("LWD")
    a(f"s_mov_b32 s74, {SPIN*8}")
    if first_read:
        a(f"ds_read_b32 v{vdst}, v{vaddr}")
    a.label(lab)
    a("s_waitcnt lgkmcnt(0)")
    a(f"v_readfirstlane_b32 s75, v{vdst}")
    a("s_sub_u32 s74, s74, 1")
    a(f"s_cbranch_scc1 {done}")
    for l in cmp_lines:
        a(l)
    a(f"s_cbranch_scc1 {done}")
    a(f"s_sleep {slp}")
    a(f"ds_read_b32 v{vdst}, v{vaddr}")
    a(f"s_branch {lab}")
    a.label(done)

def vaddr_init(a, VK=40, VV0=41, VV1=42):
    a(f"v_mov_b32 v{VK}, v3")
    a("v_lshrrev_b32 v43, 5, v2")
    a("v_and_b32 v44, 15, v2")
    a("v_lshlrev_b32 v44, 4, v44")
    a("v_lshl_or_b32 v44, v43, 8, v44")
    a(f"v_add_u32 v44, {LDS_V}, v44")
    a("v_add_u32 v45, 512, v44")
    a("v_and_b32 v43, 31, v2")
    a("v_subrev_u32 v47, 20, v43")
    a("v_cmp_gt_u32 vcc, 8, v47")
    a(f"v_mov_b32 v46, {LDS_V + 1040}")
    a(f"v_mov_b32 v47, {LDS_V + 1040 + 2*VP}")
    a("v_cndmask_b32 v46, v46, v47, vcc")
    a("v_and_b32 v47, 27, v43")
    a("v_cmp_eq_u32 vcc, 16, v47")
    a("v_subrev_u32 v47, 16, v46")
    a("s_nop 0")
    a("v_cndmask_b32 v46, v46, v47, vcc")
    a("v_cmp_gt_u32 vcc, 16, v43")
    a("s_nop 1")
    a(f"v_cndmask_b32 v{VV0}, v46, v44, vcc")
    a(f"v_cndmask_b32 v{VV1}, v46, v45, vcc")

def place(a, key):
    m = env("PL_" + key, -1)
    if m >= 0:
        a.raw(".p2align 6")
        for _ in range(m):
            a("s_nop 0")

def gen(a):
    kernel_header(a, KNAME)
    if PROF == 7:
        a("s_memrealtime s[100:101]")
    a("s_cmp_ge_u32 s2, 256")
    a("s_cbranch_scc1 K_EXIT")
    if env("SHUF", 0) == 1:
        a("s_lshr_b32 s3, s2, 3")
        a("s_lshl_b32 s2, s2, 5")
        a("s_or_b32 s2, s2, s3")
        a("s_and_b32 s2, s2, 255")
    if env("SHUF", 0) == 2:
        a("s_mul_i32 s2, s2, 37")
        a("s_add_u32 s2, s2, 11")
        a("s_and_b32 s2, s2, 255")
    if env("JIT", 0):
        a("s_mul_i32 s3, s2, 2654435761")
        a("s_lshr_b32 s3, s3, 27")
        a.label("JIT_L")
        a("s_sleep 8")
        a("s_sub_u32 s3, s3, 1")
        a("s_cbranch_scc0 JIT_L")
    a("s_load_dwordx4 s[4:7], s[0:1], 0       ; x, wqkv")
    a("v_lshrrev_b32 v1, 6, v0")
    a("v_and_b32 v2, 63, v0                   ; lane")
    a("v_readfirstlane_b32 s20, v1")
    VX0, VX1, VR0, VR1, VKV = 10, 11, 12, 13, 14
    if FASTX:
        assert ROT1 == 2 and PRE == 2
        a("v_lshrrev_b32 v4, 3, v2")
        a("v_and_b32 v5, 7, v2")
        a("v_lshrrev_b32 v6, 4, v2")
        a("v_xor_b32 v7, v5, v6")
        a("v_lshlrev_b32 v7, 4, v7")
        a(f"v_lshl_add_u32 v{VX0}, v4, 10, v7")
        a(f"v_xor_b32 v{VX1}, 64, v{VX0}")
        a("s_bfe_u32 s63, s2, 0x30003")
        a("s_and_b32 s40, s2, 1")
        a("s_lshl_b32 s40, s40, 3")
        a("s_add_u32 s40, s40, s63                ; rb")
        a("s_lshl_b32 s40, s40, 2")
        a("s_and_b32 s42, s20, 3")
        a("s_add_u32 s40, s40, s42")
        a("s_lshl_b32 s40, s40, 15")
        a("s_lshl_b32 s42, s42, 12")
        a("s_lshr_b32 s37, s2, 6")
        a("s_add_u32 s37, s37, s63")
        a("s_lshl_b32 s37, s37, 1")
        a("s_lshr_b32 s38, s20, 2")
        a("s_add_u32 s37, s37, s38")
        a("s_and_b32 s37, s37, 7")
        a("s_lshl_b32 s37, s37, 7")
        a("s_add_u32 s37, s37, s40")
        a("s_cmp_lt_u32 s20, 4")
        a(f"s_mov_b32 s38, {slot_of(1)}")
        a(f"s_cselect_b32 s38, {slot_of(0)}, s38")
        a("s_add_u32 s38, s38, s42")
        a("s_mov_b32 s46, 0x200000")
        a("s_mov_b32 s47, 0x20000")
        a("s_waitcnt lgkmcnt(0)")
        a("s_mov_b64 s[44:45], s[4:5]")
        for i in range(4):
            a(f"s_add_u32 m0, s38, {i*1024}")
            a(f"s_add_u32 s39, s37, {i*8192}")
            a(f"buffer_load_dwordx4 v{VX1 if i & 1 else VX0}, s[44:47], s39 offen lds")
    a("s_load_dwordx4 s[12:15], s[0:1], 32")
    a("s_load_dwordx2 s[8:9], s[0:1], 16      ; wo")
    a("s_load_dwordx2 s[10:11], s[0:1], 80    ; ws")
    a("s_load_dwordx4 s[16:19], s[0:1], 48")
    a("s_load_dwordx4 s[64:67], s[0:1], 64")
    a("v_lshlrev_b32 v3, 4, v2                ; lane*16")
    if TLB0:
        a("s_cmp_ge_u32 s20, 4")
        a("s_cbranch_scc1 K0_NOT")
        a("s_lshr_b32 s26, s2, 3")
        a("s_add_u32 s26, s26, s20")
        a("v_mov_b32 v21, 0")
        a("s_bitcmp1_b32 s26, 0")
        a("s_waitcnt lgkmcnt(0)")
        a("s_cselect_b64 s[24:25], s[4:5], s[6:7]")
        a("s_cselect_b64 s[22:23], s[12:13], s[14:15]")
        a("s_bitcmp1_b32 s26, 1")
        a("s_cselect_b64 s[24:25], s[24:25], s[22:23]")
        a("global_load_dword v23, v21, s[24:25]")
        a.label("K0_NOT")
    stamp(a, 0)
    a("s_and_b32 s24, s2, 1                   ; xh")
    a("s_bfe_u32 s25, s2, 0x20001             ; xq")
    a("s_lshr_b32 s26, s2, 3                  ; j")
    a("s_and_b32 s63, s26, 7")
    a("s_lshl_b32 s21, s24, 3")
    a("s_add_u32 s21, s21, s63                ; rb")
    a("s_lshr_b32 s27, s26, 3")
    a("s_mul_i32 s22, s25, 3")
    a("s_add_u32 s22, s22, s27")
    if QFIRST:
        a("s_sub_u32 s22, s22, 1")
    a("s_add_u32 s23, s25, 12")
    a(f"s_cmp_eq_u32 s27, {0 if QFIRST else 3}")
    a("s_cselect_b32 s22, s23, s22            ; cb2")
    if FMAP:
        a("s_and_b32 s72, s2, 7")
        a("s_lshl_b32 s72, s72, 2")
        a("s_and_b32 s73, s26, 3")
        a("s_add_u32 s72, s72, s73                ; rb64")
        a("s_lshr_b32 s73, s26, 2                 ; cb64")
    else:
        a("s_lshl_b32 s72, s25, 3")
        a("s_add_u32 s72, s72, s63                ; rb64")
        a("s_lshl_b32 s73, s24, 2")
        a("s_add_u32 s73, s73, s27                ; cb64")
    if ROT1 == 1:
        a("s_lshl_b32 s27, s27, 1")
        a("s_add_u32 s63, s63, s27")
    elif ROT1 == 2:
        a("s_add_u32 s63, s63, s27")
        a("s_lshl_b32 s63, s63, 1")
    elif ROT1 == 3:
        a("s_add_u32 s63, s63, s27")
        a("s_lshl_b32 s63, s63, 2")
    elif ROT1 == 4:
        a("s_add_u32 s63, s63, s27")
    a(f"s_and_b32 s63, s63, {7 if ROT1 else 0}")
    a("s_and_b32 s70, s2, 7")
    a("s_lshl_b32 s70, s70, 2")
    if AMIX:
        a("s_lshr_b32 s27, s26, 3")
        a("s_add_u32 s27, s27, s26")
        a("s_and_b32 s27, s27, 3")
        a("s_add_u32 s70, s70, s27                ; head")
        a("s_and_b32 s71, s26, 7                  ; qb")
    else:
        a("s_and_b32 s27, s26, 3")
        a("s_add_u32 s70, s70, s27                ; head")
        a("s_lshr_b32 s71, s26, 2                 ; qb")
    a("s_cmp_lt_u32 s20, 4")
    a("s_cbranch_scc1 K1_COMPUTE")

    a("s_sub_u32 s23, s20, 4                  ; L")
    if LPRIO:
        a(f"s_setprio {LPRIO}")
    if not FASTX:
        a("v_lshrrev_b32 v4, 3, v2")
        a("v_and_b32 v5, 7, v2")
        a("v_lshrrev_b32 v6, 4, v2")
        a("v_xor_b32 v7, v5, v6")
        a("v_lshlrev_b32 v7, 4, v7")
        a(f"v_lshl_add_u32 v{VX0}, v4, 10, v7")
        a(f"v_xor_b32 v{VX1}, 64, v{VX0}")
    a("v_and_b32 v7, 1, v6")
    a("v_lshlrev_b32 v7, 2, v7")
    a("v_xor_b32 v7, v7, v5")
    a("v_lshlrev_b32 v7, 4, v7")
    a("v_mul_u32_u24 v8, 3072, v4")
    a(f"v_add_u32 v{VKV}, v8, v7")
    a("v_mul_u32_u24 v8, 3584, v4")
    a("v_add_u32 v15, v8, v7")
    a("s_cmp_lt_u32 s22, 12")
    a("s_cselect_b64 vcc, -1, 0")
    a("s_movk_i32 s60, 3072")
    a("s_cselect_b32 s60, 3584, s60")
    a(f"v_cndmask_b32 v{VR0}, v{VKV}, v15, vcc")
    a(f"v_xor_b32 v{VR1}, 32, v{VR0}")
    a("s_cselect_b32 s32, 0, 12")
    a("s_sub_u32 s32, s22, s32")
    a("s_lshl_b32 s32, s32, 8")
    a("s_lshl_b32 s61, s22, 1")
    a("s_add_u32 s61, s61, 1")
    a("s_add_u32 s34, s22, 12")
    a("s_cmp_lt_u32 s22, 12")
    a("s_cselect_b32 s33, 0, 128              ; R1 - R0")
    a("s_cselect_b32 s61, s61, s34")
    a("s_lshl_b32 s61, s61, 7")
    a("s_mul_i32 s34, s23, 57344")
    a("s_add_u32 s61, s61, s34")
    a("s_lshl_b32 s34, s23, 4")
    a("s_mul_i32 s34, s34, s60")
    a("s_add_u32 s32, s32, s34")
    a("s_lshl_b32 s62, s60, 6")
    a("s_lshl_b32 s36, s60, 3                 ; 8 rows")
    a("s_mul_i32 s34, s23, 49152")
    a("s_lshl_b32 s35, s22, 7")
    a("s_add_u32 s34, s34, s35")
    a("s_add_u32 s34, s34, 1024")
    if not FASTX:
        a("s_lshl_b32 s40, s21, 17")
        a("s_lshl_b32 s41, s23, 15")
        a("s_add_u32 s40, s40, s41                ; x base")
        a("s_lshl_b32 s42, s23, 12")
    a("s_lshl_b32 s35, s23, 11")
    a("s_mov_b32 s43, s63                     ; kc")
    a("s_waitcnt lgkmcnt(0)")
    srd(a, 24, 4, 0x200000)
    srd(a, 44, 6, 0x180000)
    a("s_cmp_lt_u32 s22, 12")
    a("s_cselect_b64 s[48:49], s[12:13], s[6:7]")
    a("s_cselect_b64 s[52:53], s[14:15], s[6:7]")
    a("s_cselect_b32 s50, 0x1c0000, s46")
    a("s_mov_b32 s54, s50")
    a("s_mov_b32 s51, 0x20000")
    a("s_mov_b32 s55, 0x20000")
    queue = []
    def setkc(c):
        cc = c if c < 8 else 15 - c
        a(f"s_add_u32 s43, s63, {cc & 3}")
        a("s_and_b32 s43, s43, 3")
        if cc & 4:
            a("s_or_b32 s43, s43, 4")
    def xpart(c):
        a("s_lshl_b32 s37, s43, 7")
        a("s_add_u32 s37, s37, s40")
        for i in range(4):
            a(f"s_add_u32 m0, s42, {xslot(c) + i*1024}")
            a(f"s_add_u32 s39, s37, {i*8192}")
            a(f"buffer_load_dwordx4 v{VX1 if i & 1 else VX0}, s[24:27], s39 offen lds")
    def early4():
        setkc(4)
        xpart(4)
        a("s_mul_i32 s38, s43, s62")
        a("s_add_u32 s38, s38, s32")
        a("s_add_u32 s39, s38, s33")
        a("v_and_b32 v16, 15, v2")
        a("v_mul_u32_u24 v17, s60, v16")
        a("v_mul_u32_u24 v16, 3072, v16")
        a("buffer_load_dword v18, v17, s[48:51], s38 offen")
        a("buffer_load_dword v18, v17, s[52:55], s39 offen")
        a("s_mul_i32 s38, s43, 196608")
        a("s_add_u32 s38, s38, s34")
        a("buffer_load_dword v18, v16, s[44:47], s38 offen")
        queue.extend([4] * 7)
    def issue(c):
        ws_, xs_ = wslot(c), xslot(c)
        if ROT1 == 4:
            setkc(c)
        a("s_mul_i32 s38, s43, s62")
        a("s_add_u32 s38, s38, s32")
        for i in range(2):
            a(f"s_add_u32 m0, s35, {ws_ + i*1024}")
            a("s_add_u32 s39, s38, s33")
            a(f"buffer_load_dwordx4 v{VR0}, s[48:51], s38 offen lds")
            a(f"s_add_u32 m0, s35, {ws_ + 8192 + i*1024}")
            a("s_add_u32 s38, s38, s36")
            a(f"buffer_load_dwordx4 v{VR1}, s[52:55], s39 offen lds")
        n = 4
        if c < 8:
            a("s_mul_i32 s38, s43, 196608")
            a("s_add_u32 s38, s38, s34")
            for i in range(2):
                a(f"s_add_u32 m0, s35, {ws_ + 16384 + i*1024}")
                a(f"s_add_u32 s39, s38, {i*24576}")
                a(f"buffer_load_dwordx4 v{VKV}, s[44:47], s39 offen lds")
            n += 2
        if (c < 8 or c >= 13) and not (c == 4 and E4 >= 0):
            a("s_lshl_b32 s37, s43, 7")
            a("s_add_u32 s37, s37, s40")
            for i in range(4):
                a(f"s_add_u32 m0, s42, {xs_ + i*1024}")
                a(f"s_add_u32 s39, s37, {i*8192}")
                a(f"buffer_load_dwordx4 v{VX1 if i & 1 else VX0}, s[24:27], s39 offen lds")
            n += 4
        if c != 7:
            if ROT1 != 4:
                a("s_add_u32 s43, s43, " + ("1" if c < 7 else "7"))
                a("s_and_b32 s43, s43, 7")
        else:
            a("s_mov_b32 s32, s61")
            a("s_mov_b32 s33, 0")
            a("s_mov_b32 s62, 229376")
            a("s_mov_b32 s36, 28672")
            a("s_mov_b64 s[48:49], s[12:13]")
            a("s_mov_b64 s[52:53], s[14:15]")
            a("s_mov_b32 s50, 0x1c0000")
            a("s_mov_b32 s54, 0x1c0000")
            a(f"v_mov_b32 v{VR0}, v15")
            a(f"v_xor_b32 v{VR1}, 32, v15")
        queue.extend([c] * n)
    def waitq(tag):
        n = len(queue) - 1 - max(i for i, t in enumerate(queue) if t == tag)
        a(f"s_waitcnt vmcnt({n})")
    stamp(a, 2, 7)
    if PROF == 7:
        a("s_mov_b32 s81, s80")
        a("s_mov_b32 s80, s100")
    issue(0)
    stamp(a, 3, 7)
    if PRE == 2:
        issue(1)
    stamp(a, 4, 7)
    stamp(a, 1)
    srd(a, 28, 10, WS_SIZE)
    a("v_mov_b32 v9, 0")
    a("s_add_u32 s37, s2, s20")
    a("s_cmp_eq_u32 s37, 4")
    a("s_cbranch_scc0 K1_NOTAG")
    a("s_memrealtime s[56:57]")
    a("s_waitcnt lgkmcnt(0)")
    a("s_or_b32 s56, s56, 1")
    a("s_or_b32 s57, s57, 0x80000000")
    a("v_mov_b32 v4, s56")
    a("v_mov_b32 v5, s57")
    a("s_mov_b64 exec, 1")
    a("global_store_dwordx2 v9, v[4:5], s[66:67] sc1")
    a("s_mov_b64 exec, -1")
    a.label("K1_NOTAG")
    def get_tag():
        lab, done = a.newlabel("TAG"), a.newlabel("TAGD")
        a(f"s_mov_b32 s74, {SPIN}")
        a("v_readfirstlane_b32 s68, v60")
        a("v_readfirstlane_b32 s69, v61")
        a.label(lab)
        a("s_sub_u32 s74, s74, 1")
        a(f"s_cbranch_scc1 {done}")
        a("s_min_u32 s75, s68, s69")
        a("s_cmp_lg_u32 s75, 0")
        a(f"s_cbranch_scc1 {done}")
        a("global_load_dwordx2 v[60:61], v9, s[66:67] sc1")
        a("s_waitcnt vmcnt(0)")
        a("v_readfirstlane_b32 s68, v60")
        a("v_readfirstlane_b32 s69, v61")
        a("s_sleep 2")
        a(f"s_branch {lab}")
        a.label(done)
        a(f"v_mov_b32 v4, {LDS_TAG}")
        a("v_mov_b32 v60, s68")
        a("v_mov_b32 v61, s69")
        a("ds_write_b64 v4, v[60:61]")
        a("ds_write_b32 v4, v9 offset:8")
        a("ds_write_b32 v4, v9 offset:12")
        a("ds_write_b32 v4, v9 offset:16")
        a("ds_write_b32 v4, v9 offset:20")
        a("ds_write_b32 v4, v9 offset:24")
        a("ds_write_b32 v4, v9 offset:28")
        a("s_waitcnt lgkmcnt(0)")
    def flag_a(q):
        lab = a.newlabel("FA")
        a("s_cmp_lg_u32 s23, 1")
        a(f"s_cbranch_scc1 {lab}")
        if q:
            a("s_cmp_lt_u32 s22, 12")
            a(f"s_cbranch_scc1 {lab}")
        a("s_lshl_b32 s37, s22, 4")
        a("s_add_u32 s37, s37, s21")
        a("s_lshl_b32 s37, s37, 7")
        a(f"s_add_u32 s37, s37, {FL_Q if q else FL_A}")
        stamp(a, 2 if q else 1, 14)
        flag_store(a, "s37", 16)
        a.label(lab)
    def kv_setup():
        a("v_and_b32 v5, 15, v2")
        a("v_lshlrev_b32 v5, 7, v5")
        a("v_bfe_u32 v6, v2, 4, 1")
        a("v_lshl_add_u32 v5, v6, 14, v5")
        a("s_and_b32 s56, s2, 7")
        a("s_lshr_b32 s57, s56, 1")
        a("s_add_u32 s57, s57, 12")
        a("s_sub_u32 s57, s57, s56")
        a("s_lshl_b32 s57, s57, 11")
        a("s_lshl_b32 s58, s71, 8")
        a("s_add_u32 s57, s57, s58")
        a(f"s_add_u32 s57, s57, {FL_Q - FL_A}")
        a("v_and_b32 v6, 1, v2")
        a("v_lshlrev_b32 v6, 7, v6")
        a("v_add_u32 v6, s57, v6")
        a("v_cmp_gt_u32 vcc, 32, v2")
        a("s_lshl_b32 s56, s56, 11")
        a(f"s_add_u32 s56, s56, {FL_A}")
        a("v_cndmask_b32 v5, v6, v5, vcc")
        a(f"s_mul_i32 s57, s70, {HK*1024}")
        a("s_lshl_b32 s58, s23, 10")
        a("s_add_u32 s57, s57, s58                ; head*64K + L*1K")
        a(f"s_add_u32 s57, s57, {WS_K}")
        a(f"s_mul_i32 s58, s23, {TP}")
    def kv_loads(lo, hi):
        n = hi - lo
        a(f"s_mul_i32 s44, s71, {n}")
        a("s_lshr_b32 s44, s44, 3")
        for i in range(n):
            a(f"s_mul_i32 s45, s44, {4*TP}")
            a("s_add_u32 s45, s45, s58")
            a(f"s_add_u32 m0, s45, {lo*4*TP}")
            a("s_lshl_b32 s37, s44, 12")
            a("s_add_u32 s37, s37, s57")
            a(f"s_add_u32 s38, s37, {lo*4096}")
            a(f"buffer_load_dwordx4 v3, s[28:31], s38 offen{SC} lds")
            a(f"s_add_u32 m0, s45, {lo*4*TP + 1024}")
            a(f"s_add_u32 s38, s37, {lo*4096 + WS_V - WS_K}")
            a(f"buffer_load_dwordx4 v3, s[28:31], s38 offen{SC} lds")
            if i < n - 1:
                a("s_add_u32 s44, s44, 1")
                a(f"s_cmp_eq_u32 s44, {n}")
                a("s_cselect_b32 s44, 0, s44")
        queue.extend(["kv"] * (2 * n))
    def q_loads():
        a(f"s_mul_i32 s37, s70, {HK}")
        a("s_lshl_b32 s38, s71, 3")
        a("s_add_u32 s37, s37, s38")
        a("s_lshl_b32 s38, s23, 1")
        a("s_add_u32 s37, s37, s38")
        a("s_lshl_b32 s37, s37, 10")
        a("s_lshl_b32 s38, s23, 11")
        a(f"s_add_u32 m0, s38, {LDS_Q}")
        a(f"s_add_u32 s37, s37, {WS_Q}")
        a(f"buffer_load_dwordx4 v3, s[28:31], s37 offen{SC} lds")
        a(f"buffer_load_dwordx4 v3, s[28:31], s37 offen offset:1024{SC} lds")
    a(f"v_mul_u32_u24 v36, {VP}, v2")
    a(f"v_add_u32 v36, {LDS_V + 1024}, v36")
    for i in range(4):
        a(f"v_mov_b32 v{40+i}, 0x3f803f80")
        a(f"v_mov_b32 v{44+i}, 0")
    a(f"s_mul_i32 s37, s23, {3*2048}")
    a(f"s_add_u32 s37, s37, {LDS_WS}")
    frag_addrs(a, "s37", 248)
    a("s_lshl_b32 s37, s23, 14")
    part_addrs(a, "s37", 212)
    a("v_and_b32 v224, 15, v2")
    a("v_lshlrev_b32 v224, 7, v224            ; B flags")
    a("v_and_b32 v225, 31, v2")
    a("v_lshlrev_b32 v225, 3, v225")
    a("v_lshlrev_b32 v226, 3, v2")
    a("s_lshl_b32 s37, s23, 8")
    a(f"s_add_u32 s37, s37, {LDS_GQ}")
    a("v_lshlrev_b32 v227, 2, v2")
    a("v_add_u32 v227, s37, v227")
    a(f"v_mov_b32 v228, {LDS_SYNC}")
    for i in range(4):
        a(f"v_mov_b32 v{229+i}, {1 << (4*i)}")
    a("v_and_b32 v233, 7, v2")
    a("v_lshlrev_b32 v233, 7, v233            ; C flags")
    kv_setup()
    for c in range(13):
        waitq(c)
        if c == 6:
            get_tag()
        if c < 2:
            stamp(a, c + 5, 7)
        if c < 6:
            stamp(a, c + 1, 2)
        if 6 <= c < 12:
            stamp(a, c - 5, 3)
        a(f"s_barrier                              ; b({c})")
        if c == 8:
            stamp(a, 2)
            stamp(a, 1, 15)
        if c == 4:
            a("global_load_dwordx2 v[60:61], v9, s[66:67] sc1")
        if c == AFLAG:
            flag_a(False)
        if c == AFLAGQ:
            flag_a(True)
        if c <= 8:
            issue(c + 2)
        if 8 <= c <= 12:
            issue(c + 3)
        if c == E4:
            early4()
        if c == PFC:
            a("s_bitcmp1_b32 s23, 0")
            a("s_cselect_b64 s[40+36:41+36], s[14:15], s[12:13]".replace("s[40+36:41+36]", "s[92:93]"))
            a("s_mov_b32 s94, 0x1c0000")
            a("s_mov_b32 s95, 0x20000")
            a("v_and_b32 v16, 31, v2")
            a("v_mul_u32_u24 v16, 3584, v16")
            a("s_mul_i32 s37, s23, 57344")
            a("s_sub_u32 s37, s61, s37")
            a("s_and_b32 s38, s21, 7")
            a("s_lshl_b32 s38, s38, 1")
            a("s_lshr_b32 s39, s23, 1")
            a("s_add_u32 s38, s38, s39")
            a("s_mul_i32 s38, s38, 114688")
            a("s_add_u32 s37, s37, s38")
            a("buffer_load_dword v17, v16, s[92:95], s37 offen")
            queue.append("pf")
        if c == GLD:
            srd(a, 44, 18, 1024)
            a("s_lshl_b32 s76, s21, 4")
            a("s_add_u32 s76, s76, s22")
            a("s_lshl_b32 s76, s76, 2")
            a("s_add_u32 s76, s76, s23")
            a("s_lshl_b32 s37, s76, 11")
            a("buffer_load_dwordx4 v[64:67], v3, s[44:47], 0 offen")
            a("buffer_load_dwordx4 v[24:27], v3, s[24:27], s37 offen")
            a("buffer_load_dwordx4 v[28:31], v3, s[24:27], s37 offen offset:1024")
            queue.extend(["g"] * 3)
        if c == GMA:
            waitq("g")
            a("v_mov_b32 v32, 0")
            a("v_mov_b32 v33, 0")
            for q in range(4):
                a(f"v_dot2_f32_bf16 v32, v{24+q}, v{64+q}, v32")
                a(f"v_dot2_f32_bf16 v33, v{28+q}, v{64+q}, v33")
            a("s_nop 2")
            a("v_permlane32_swap_b32 v32, v33")
            a("s_nop 1")
            a("v_add_f32 v32, v32, v33")
            for ctl in ("quad_perm:[1,0,3,2]", "quad_perm:[2,3,0,1]", "row_half_mirror", "row_mirror"):
                a("s_nop 1")
                a(f"v_add_f32_dpp v32, v32, v32 {ctl} row_mask:0xf bank_mask:0xf")
            a("v_mov_b32 v33, v32")
            a("s_nop 1")
            a("v_permlane16_swap_b32 v32, v33")
            a("s_nop 1")
            a("v_add_f32 v32, v32, v33")
            a(f"v_mul_f32 v32, {fh(-LOG2E)}, v32")
            a("v_exp_f32 v32, v32")
            a("v_lshrrev_b32 v70, 5, v2")
            a("v_add_f32 v32, 1.0, v32")
            a("v_rcp_f32 v68, v32")
            a("v_lshlrev_b32 v70, 3, v70")
            a("v_mov_b32 v69, s68")
    a(f"v_mov_b32 v22, {LDS_SYNC + 16}")
    a("v_mov_b32 v23, 16")
    waitq(14)
    a("s_barrier                              ; b(13)")
    if AFLAGQ == 13:
        flag_a(True)
    a("s_waitcnt vmcnt(0)")
    a("s_mov_b64 exec, 1")
    a("ds_add_u32 v22, v23")
    a("s_mov_b64 exec, -1")
    stamp(a, 2, 15)
    a(f"v_mov_b32 v19, {LDS_SYNC}")
    a("s_cmp_lg_u32 s23, 0")
    a("s_cbranch_scc1 KV_OTHER")
    if FDEL:
        a(f"s_sleep {FDEL}")
    a(f"s_mov_b32 s74, {SPIN}")
    a("s_mov_b32 s77, 0")
    if ATFA:
        a("s_mov_b32 vcc_lo, -1")
        a("s_mov_b32 vcc_hi, 3")
    a.label("KV_POLL")
    if ATFA:
        a("v_mov_b32 v8, 0")
        a("v_mov_b32 v9, 0")
        a("s_mov_b64 exec, vcc")
        a("buffer_atomic_or_x2 v[8:9], v5, s[28:31], s56 offen sc0 sc1")
    else:
        a("buffer_load_dwordx2 v[8:9], v5, s[28:31], s56 offen sc1")
    a("s_waitcnt vmcnt(0)")
    a("v_cmp_ne_u64 vcc, s[68:69], v[8:9]")
    if ATFA:
        a("s_mov_b64 exec, -1")
    a("s_sub_u32 s74, s74, 1")
    a("s_cselect_b64 vcc, 0, vcc")
    a("s_cmp_lg_u32 vcc_lo, 0")
    a("s_cbranch_scc1 KV_AGAIN")
    a("s_cmp_eq_u32 vcc_hi, 0")
    a("s_cselect_b32 s75, 2, 1")
    a("v_mov_b32 v16, s75")
    a("ds_write_b32 v19, v16")
    a("s_cmp_lg_u32 s77, 0")
    a("s_mov_b32 s77, s75")
    a("s_cbranch_scc1 KV_HAVE")
    stamp(a, 3, 15)
    kv_loads(0, 3)
    a.label("KV_HAVE")
    a("s_cmp_eq_u32 s77, 2")
    a("s_cbranch_scc1 KV_Q")
    a.label("KV_AGAIN")
    a(f"s_sleep {FSLP}")
    a("s_branch KV_POLL")
    a.label("KV_OTHER")
    lds_wait(a, 19, 16, ["s_cmp_ge_u32 s75, 1"])
    kv_loads(0, 3)
    lds_wait(a, 19, 16, ["s_cmp_ge_u32 s75, 2"])
    a.label("KV_Q")
    if KVW:
        a("s_cmp_lt_u32 s23, 2")
        a("s_cbranch_scc1 KV_NW")
        a(f"s_mul_i32 s37, s70, {HK*1024}")
        a(f"s_mul_i32 s38, s71, {52*128}")
        a("s_add_u32 s37, s37, s38")
        a("s_and_b32 s38, s23, 1")
        a(f"s_mul_i32 s38, s38, {WS_V - WS_K}")
        a("s_add_u32 s37, s37, s38")
        a(f"s_add_u32 s37, s37, {WS_K + 12*1024}")
        a("v_min_u32 v16, 51, v2")
        a("v_lshlrev_b32 v16, 7, v16")
        a(f"buffer_load_dword v17, v16, s[28:31], s37 offen{SC}")
        a.label("KV_NW")
    stamp(a, 4, 15)
    q_loads()
    a("s_branch K2_GEMM")

    a.label("K1_COMPUTE")
    AF = 96
    AK = 224
    def accF(sw, i, t):
        return AF + ((sw * 2 + i) * 2 + t) * 16
    XA = [4, 5, 6, 7]
    WA = [8, 9]
    KA = 10
    a("s_and_b32 s23, s20, 1                  ; tp")
    a("s_lshr_b32 s24, s20, 1                 ; grp")
    a("v_bfe_u32 v16, v2, 4, 1                ; gsel")
    a("v_lshrrev_b32 v17, 5, v2               ; h")
    a("v_bfe_u32 v18, v2, 2, 2                ; r")
    a("v_and_b32 v19, 3, v2                   ; c")
    a("v_lshl_add_u32 v20, v17, 3, v18        ; 8h+r")
    a("v_and_b32 v21, 31, v2")
    a("v_lshlrev_b32 v21, 7, v21")
    a("v_bfe_u32 v22, v2, 1, 3")
    a("v_xor_b32 v22, v22, v17")
    a("v_lshl_add_u32 v21, v22, 4, v21")
    a("s_lshl_b32 s25, s23, 13")
    a(f"s_add_u32 s25, s25, {xslot(0)}")
    for s_ in range(4):
        a(f"v_xor_b32 v{XA[s_]}, {32*s_}, v21")
        a(f"v_add_u32 v{XA[s_]}, s25, v{XA[s_]}")
    a("v_lshlrev_b32 v20, 7, v20")
    a("v_lshl_add_u32 v20, v19, 3, v20        ; row*128 + c*8")
    a("v_lshrrev_b32 v21, 1, v18")
    a("v_xor_b32 v21, s24, v21                ; grp ^ (r>>1)")
    a("v_lshl_add_u32 v20, v21, 6, v20")
    a("v_lshl_add_u32 v20, v16, 5, v20")
    a(f"v_add_u32 v{KA}, {wslot(0) + 16384}, v20")
    a("v_lshl_add_u32 v20, v16, 13, v20")
    a("v_xor_b32 v21, 32, v20")
    a(f"v_add_u32 v{WA[0]}, {wslot(0)}, v20")
    a(f"v_add_u32 v{WA[1]}, {wslot(0)}, v21")
    a("v_and_b32 v11, 0x33, v2")
    a("v_bfe_u32 v17, v2, 2, 1")
    a("v_lshl_or_b32 v11, v17, 3, v11")
    a("v_bfe_u32 v17, v2, 3, 1")
    a("v_lshl_or_b32 v11, v17, 2, v11")
    a("v_lshlrev_b32 v11, 4, v11              ; K voffset")
    a("s_cmp_lt_u32 s22, 8")
    a("s_cbranch_scc1 K1_KOFF")
    a(f"v_mul_u32_u24 v11, {HK*1024}, v16")
    a("v_lshrrev_b32 v18, 5, v2")
    a("v_lshl_or_b32 v11, v18, 8, v11")
    a("v_and_b32 v18, 15, v2")
    a("v_lshl_or_b32 v11, v18, 4, v11         ; V voffset")
    a.label("K1_KOFF")
    vaddr_init(a)
    a("s_lshl_b32 s33, s20, 8")
    a(f"s_add_u32 s33, s33, {LDS_GQ}")
    a("v_and_b32 v40, 31, v2")
    a("v_lshlrev_b32 v40, 2, v40")
    a("v_add_u32 v40, s33, v40")
    a("s_lshl_b32 s33, s20, 11")
    a(f"s_add_u32 s33, s33, {LDS_Q}")
    a("v_add_u32 v43, s33, v3")
    a("s_lshl_b32 s60, s20, 10")
    a(f"s_add_u32 s60, s60, {LDS_PARK}")
    a("v_add_u32 v44, s60, v3")
    a("ds_write_b128 v44, v[40:43]")
    for i in range(160):
        a(f"v_mov_b32 v{AF+i}, 0")
    a("s_waitcnt lgkmcnt(0)")
    srd(a, 28, 10, WS_SIZE)
    if TLBW:
        a("v_mov_b32 v21, 0")
        for w in range(4):
            lab = a.newlabel("TLB")
            a(f"s_cmp_lg_u32 s20, {w}")
            a(f"s_cbranch_scc1 {lab}")
            for pg in (2 * w, 2 * w + 1):
                a(f"s_mov_b32 s33, {spare(pg):#x}")
                a("buffer_load_dword v22, v21, s[28:31], s33 offen sc1")
            if w == 0:
                a("s_lshl_b32 s33, s72, 16")
                a("s_lshl_b32 s34, s73, 7")
                a("s_add_u32 s33, s33, s34")
                a("v_mov_b32 v20, s33")
                a("global_load_dword v22, v20, s[64:65] sc1")
            else:
                a(f"global_load_dword v22, v21, s[{(16, 8, 18)[w-1]}:{(17, 9, 19)[w-1]}]")
            a.label(lab)
    if CODEPF:
        a("s_getpc_b64 s[50:51]")
        a.label("PC_HERE")
        a(f"s_sub_u32 s50, s50, PC_HERE-{KNAME}")
        a("s_subb_u32 s51, s51, 0")
        a("s_lshr_b32 s49, s2, 3")
        a("s_lshl_b32 s49, s49, 2")
        a("s_add_u32 s49, s49, s20")
        a("s_lshl_b32 s49, s49, 9")
        a("v_lshlrev_b32 v21, 3, v2")
        a("v_add_u32 v21, s49, v21")
        a(f"v_min_u32 v21, K_END-{KNAME}-4, v21")
        a("global_load_dword v21, v21, s[50:51]")
    a("s_lshl_b32 s32, s21, 2")
    a("s_lshl_b32 s33, s23, 1")
    a("s_add_u32 s32, s32, s33                ; tt0")
    a("s_and_b32 s36, s22, 7")
    a("s_lshl_b32 s36, s36, 2")
    a("s_lshl_b32 s37, s24, 1")
    a("s_add_u32 s36, s36, s37")
    a(f"s_mul_i32 s36, s36, {HK}")
    a("s_add_u32 s36, s36, s32")
    a("s_lshl_b32 s36, s36, 10")
    a("s_cmp_lt_u32 s22, 8")
    a(f"s_mov_b32 s38, {WS_V}")
    a(f"s_cselect_b32 s38, {WS_K}, s38")
    a("s_movk_i32 s37, 512")
    a(f"s_cselect_b32 s37, {HK*1024}, s37")
    a("s_add_u32 s36, s36, s38")
    a("s_add_u32 s37, s37, s36")
    a("s_mov_b32 s25, 0")
    tab = sum(((XPOS[c + 1] - XPOS[c]) & 15) << (4 * c) for c in range(8))
    a(f"s_mov_b32 s61, {tab:#x}")
    a("s_mov_b32 s26, 8")
    BB = [24, 44]
    def reads(s_, buf, kv):
        L = [f"ds_read_b128 {v(buf,4)}, v{XA[s_]}"]
        for t in range(2):
            for u in range(2):
                L.append(f"ds_read_b64_tr_b16 {v(buf+8+4*t+2*u,2)}, v{WA[t]} offset:{(16*s_+4*u)*128}")
            if t == 0:
                L.append(f"ds_read_b128 {v(buf+4,4)}, v{XA[s_]} offset:4096")
        if kv:
            for u in range(2):
                L.append(f"ds_read_b64_tr_b16 {v(buf+16+2*u,2)}, v{KA} offset:{(16*s_+4*u)*128}")
        return L
    def mfs(buf, sw, vtype):
        L = []
        for t in range(2):
            for i in range(2):
                acc = accF(sw, i, t)
                L.append(f"{MF} {v(acc,16)}, {v(buf+8+4*t,4)}, {v(buf+4*i,4)}, {v(acc,16)}")
        if sw == 0:
            for i in range(2):
                acc = AK + 16 * i
                A_, B_ = v(buf + 16, 4), v(buf + 4 * i, 4)
                if vtype:
                    A_, B_ = B_, A_
                L.append(f"{MF} {v(acc,16)}, {A_}, {B_}, {v(acc,16)}")
        return L
    def sweep(name, sw, vtype):
        a.raw(".p2align 6")
        place(a, "S1")
        a.label(name)
        kv = sw == 0
        nr = 8 if kv else 6
        for s_ in range(4):
            upd = []
            if s_ == 2:
                upd = ["s_add_u32 s25, s25, 1", "s_cmp_eq_u32 s25, 3", f"s_mov_b32 s27, {WSL}",
                       f"s_cselect_b32 s27, {(-2*WSL) & 0xffffffff:#x}, s27", "s_cselect_b32 s25, 0, s25",
                       "s_bfe_i32 s33, s61, 0x40000", "s_lshr_b32 s61, s61, 4", "s_lshl_b32 s33, s33, 14"]
                upd += [f"v_add_u32 v{r}, s27, v{r}" for r in WA + [KA]] + [f"v_add_u32 v{r}, s33, v{r}" for r in XA]
            if s_ == 1 and sw == 1:
                upd = [f"s_cmp_lg_u32 s26, {17 - AFLAG}", f"s_cbranch_scc1 {name}_ND", "s_waitcnt vmcnt(0)", f"{name}_ND:"]
            M = mfs(BB[s_ & 1], sw, vtype)
            if s_ < 3:
                R = reads(s_ + 1, BB[(s_ + 1) & 1], kv)
                seq = [f"s_waitcnt lgkmcnt({nr-4})", M[0], R[0], R[1], M[1], R[2], R[3], "s_waitcnt lgkmcnt(4)", M[2], R[4], R[5]]
                if kv:
                    seq += [M[3], R[6], R[7], M[4]] + upd[:10] + [M[5]] + upd[10:]
                elif s_ == 1:
                    seq += [M[3]] + upd
                else:
                    seq += upd[:5] + [M[3]] + upd[5:]
            else:
                R = reads(0, BB[0], kv)
                tail = ["s_sub_u32 s26, s26, 1", "s_cmp_lg_u32 s26, 0"]
                seq = [f"s_waitcnt lgkmcnt({nr-4})", M[0], "s_waitcnt lgkmcnt(0)", "s_barrier", R[0], M[1], R[1], R[2], R[3], M[2], R[4], R[5]]
                if kv:
                    seq += [M[3], R[6], R[7], M[4]] + tail + [M[5]]
                else:
                    seq += tail + [M[3]]
            for l in seq:
                a(l)
        a(f"s_cbranch_scc1 {name}")
    if FASTX:
        a(f"s_waitcnt vmcnt({1 if CODEPF else 0})")
    a("s_barrier                              ; b(0)")
    stamp(a, 1)
    for l in reads(0, BB[0], True):
        a(l)
    a("s_cmp_lt_u32 s22, 8")
    a("s_cbranch_scc0 SW1V")
    sweep("SW1K", 0, False)
    a("s_branch K1_KVEPI")
    sweep("SW1V", 0, True)
    a.label("K1_KVEPI")
    a("s_waitcnt vmcnt(0)")
    stamp(a, 2)
    c0 = -2.0 * 0.7978845608028654 * LOG2E
    c1 = c0 * 0.044715
    T = 64
    TB = 16
    def gelu_tile(acc, out, pk):
        L = []
        if pk:
            for j in range(0, 8, 2):
                L.append(f"v_pk_mul_f32 {v(TB+j,2)}, {v(acc+j,2)}, {v(acc+j,2)}")
            for j in range(0, 8, 2):
                L.append(f"v_pk_fma_f32 {v(TB+j,2)}, {v(TB+j,2)}, s[34:35], v[12:13]")
            for j in range(0, 8, 2):
                L.append(f"v_pk_mul_f32 {v(TB+j,2)}, {v(TB+j,2)}, {v(acc+j,2)}")
            for j in range(8):
                L.append(f"v_exp_f32 v{TB+j}, v{TB+j}")
            for j in range(0, 4, 2):
                L.append(f"v_pk_mul_f32 {v(acc+8+j,2)}, {v(acc+8+j,2)}, {v(acc+j,2)}")
            for j in range(0, 8, 2):
                L.append(f"v_pk_add_f32 {v(TB+j,2)}, {v(TB+j,2)}, v[14:15]")
            for j in range(8):
                L.append(f"v_rcp_f32 v{TB+j}, v{TB+j}")
            for j in range(4, 8, 2):
                L.append(f"v_pk_mul_f32 {v(acc+8+j,2)}, {v(acc+8+j,2)}, {v(acc+j,2)}")
            for j in range(0, 8, 2):
                L.append(f"v_pk_mul_f32 {v(acc+8+j,2)}, {v(acc+8+j,2)}, {v(TB+j,2)}")
        else:
            for j in range(8):
                L.append(f"v_mul_f32 v{TB+j}, v{acc+j}, v{acc+j}")
            for j in range(8):
                L.append(f"v_fma_f32 v{TB+j}, v{TB+j}, s34, v12")
            for j in range(8):
                L.append(f"v_mul_f32 v{TB+j}, v{TB+j}, v{acc+j}")
            for j in range(8):
                L.append(f"v_exp_f32 v{TB+j}, v{TB+j}")
                L.append(f"v_mul_f32 v{acc+8+j}, v{acc+8+j}, v{acc+j}")
            for j in range(8):
                L.append(f"v_add_f32 v{TB+j}, 1.0, v{TB+j}")
            for j in range(8):
                L.append(f"v_rcp_f32 v{TB+j}, v{TB+j}")
                if j >= 2:
                    L.append(f"v_mul_f32 v{acc+8+j-2}, v{acc+8+j-2}, v{TB+j-2}")
            L.append(f"v_mul_f32 v{acc+14}, v{acc+14}, v{TB+6}")
            L.append(f"v_mul_f32 v{acc+15}, v{acc+15}, v{TB+7}")
        for j in range(0, 8, 2):
            L.append(f"v_cvt_pk_bf16_f32 v{out + j//2}, v{acc+8+j}, v{acc+8+j+1}")
        return L
    def kv_fill():
        L = []
        for i in range(2):
            for j in range(0, 16, 2):
                L.append(f"v_cvt_pk_bf16_f32 v{T + 8*i + j//2}, v{AK+16*i+j}, v{AK+16*i+j+1}")
                if j == 6:
                    L.append(f"buffer_store_dwordx4 {v(T+8*i,4)}, v11, s[28:31], s36 offen offset:{i*1024}{SC}")
            L.append(f"buffer_store_dwordx4 {v(T+8*i+4,4)}, v11, s[28:31], s37 offen offset:{i*1024}{SC}")
        return L
    def q_fill():
        L = []
        for t in range(2):
            for i in range(2):
                acc = accF(0, i, t)
                for hf in range(2):
                    for j in range(8):
                        L.append(f"v_mul_f32 v{acc+8*hf+j}, s34, v{acc+8*hf+j}")
                    for j in range(0, 8, 2):
                        L.append(f"v_cvt_pk_bf16_f32 v{acc+8*hf+j//2}, v{acc+8*hf+j}, v{acc+8*hf+j+1}")
                    L.append(f"s_add_u32 s39, s38, {WS_Q + (t + 4*hf) * HK * 1024}\nbuffer_store_dwordx4 {v(acc+8*hf,4)}, v3, s[28:31], s39 offen offset:{i*1024}{SC}")
        return L
    def cost(l):
        return 8 if l.startswith(("v_exp", "v_rcp")) else 4
    def sweep2(fill, early, qtype, ecap):
        nm = "SQ" if qtype else "SR"
        place(a, "S2")
        F = list(fill)
        late = {}
        if qtype and QSD:
            qs = [l for l in F[20:] if "buffer_store" in l]
            F = F[:20] + [l for l in F[20:] if "buffer_store" not in l]
            early = len(F)
            late = {QS0 + (i * QSD) // 2: [] for i in range(8)}
            for i, l in enumerate(qs):
                late[QS0 + (i * QSD) // 2].append((i, l))
        nlate = [0]
        pos = [0]
        def take(fixed, st):
            used = sum(4 for l in fixed if l.startswith(("ds_", "v_")))
            out = []
            while pos[0] < len(F) and st >= 1:
                cap = ecap if pos[0] < early else CAP
                if used + cost(F[pos[0]]) > cap:
                    break
                used += cost(F[pos[0]])
                out.append(F[pos[0]])
                pos[0] += 1
            return fixed + out
        for c in range(8, 16):
            dx = (xslot(c + 1) - xslot(c)) & 0xffffffff if c < 15 else 0
            dw = (wslot(c + 1) - wslot(c)) & 0xffffffff if c < 15 else 0
            for s_ in range(4):
                st = (c - 8) * 4 + s_
                M = mfs(BB[s_ & 1], 1, False)
                ux = lambda k: [f"v_add_u32 v{XA[k]}, {dx:#x}, v{XA[k]}"] if c < 15 else []
                if s_ < 3:
                    R = reads(s_ + 1, BB[(s_ + 1) & 1], False)
                    last = ux(s_ + 1) + (ux(0) if s_ == 0 else [])
                    if s_ == 2 and c < 15:
                        last += [f"v_add_u32 v{r}, {dw:#x}, v{r}" for r in WA]
                    if s_ == 2 and c == 14:
                        last += ["ds_read_b32 v10, v0"]
                    seq = (["s_waitcnt lgkmcnt(2)", M[0]] + take(R[0:2], st) + [M[1]] + take(R[2:4], st) +
                           ["s_waitcnt lgkmcnt(4)", M[2]] + take(R[4:6], st) + [M[3]] + take(last, st))
                else:
                    R = reads(0, BB[0], False) if c < 15 else []
                    g0 = take(R[:1], st)
                    dr = []
                    nst = sum("buffer_store" in l for l in F[:pos[0]]) + nlate[0]
                    if c + 1 == AFLAG:
                        assert nst >= 4
                        dr = [f"s_waitcnt vmcnt({nst - 4})"]
                    if c + 1 == AFLAGQ and qtype:
                        assert pos[0] >= early and nst == 12
                        dr = ["s_waitcnt vmcnt(0)"]
                    sync = ["s_barrier"] if c < 13 else (["s_mov_b64 exec, 1", "ds_add_u32 v0, v1", "s_mov_b64 exec, -1"] if c == 15 else [])
                    if c == 14:
                        sync = ["v_readfirstlane_b32 s75, v10", "s_bitcmp1_b32 s75, 6", f"s_cbranch_scc0 {nm}_W", f"{nm}_B:"]
                    seq = (["s_waitcnt lgkmcnt(2)", M[0]] + g0[len(R[:1]):] + dr + ["s_waitcnt lgkmcnt(0)"] + sync + R[:1] + [M[1]] +
                           take(R[1:4], st) + [M[2]] + take(R[4:], st) + [M[3]] + take([], st))
                for i_, l in late.get(st, []):
                    assert pos[0] >= 20 + 12 * (i_ + 1), (st, i_, pos[0])
                    seq.append(l)
                    nlate[0] += 1
                for l in seq:
                    if l == "s_barrier" and PROF in (10, 11, 12) and 0 <= c - (8 if PROF != 11 else 10) < 6:
                        if PROF == 12:
                            stamp(a, c - 8 + 1, 12)
                        a(l)
                        stamp(a, c - 8 + 1, 10)
                        stamp(a, c - 10 + 1, 11) if c >= 10 else None
                    else:
                        a(l)
        for l in F[pos[0]:]:
            a(l)
        sys.stderr.write(f"sweep2: {len(F) - pos[0]} of {len(F)} fillers left over\n")
    a(f"v_mov_b32 v0, {LDS_SYNC + 16}")
    a("v_mov_b32 v1, 1")
    a(f"v_mov_b32 v16, {LDS_TAG}")
    a("ds_read_b64 v[18:19], v16")
    a(f"v_mov_b32 v12, {fh(c0)}")
    a("v_mov_b32 v13, v12")
    a("v_mov_b32 v14, 1.0")
    a("v_mov_b32 v15, 1.0")
    a("s_waitcnt lgkmcnt(0)")
    a("v_readfirstlane_b32 s68, v18")
    a("v_readfirstlane_b32 s69, v19")
    a("s_cmp_lt_u32 s22, 12")
    a("s_cbranch_scc1 SW2R")
    a(f"s_mov_b32 s34, {fh(LOG2E*0.25)}")
    a("s_sub_u32 s38, s22, 12")
    a("s_lshl_b32 s38, s38, 3")
    a("s_lshl_b32 s39, s24, 1")
    a("s_add_u32 s38, s38, s39")
    a(f"s_mul_i32 s38, s38, {HK}")
    a("s_add_u32 s38, s38, s32")
    a("s_lshl_b32 s38, s38, 10")
    F = kv_fill() + q_fill()
    sweep2(F, len(F), True, QCAP)
    a("s_branch K1_GE2")
    a.label("SW2R")
    a(f"s_mov_b32 s34, {fh(c1)}")
    a("s_mov_b32 s35, s34")
    if HEARLY:
        a(f"s_mul_i32 s40, s32, {AS}")
        a("s_lshl_b32 s41, s22, 3")
        a("s_add_u32 s40, s40, s41")
        a("s_lshl_b32 s41, s24, 1")
        a("s_add_u32 s40, s40, s41")
        a("s_lshl_b32 s40, s40, 10")
        a(f"s_add_u32 s40, s40, {WS_ACT}")
        a(f"s_add_u32 s41, s40, {AS*1024}")
    F = kv_fill()
    ne = len(F)
    F2 = []
    for i in range(2):
        for t in range(2):
            if i * 2 + t < NFILL:
                F += gelu_tile(accF(0, i, t), 80 + 4 * (i * 2 + t), GPK)
                if HEARLY:
                    F.append(f"buffer_store_dwordx4 {v(80 + 4*(i*2+t),4)}, v3, s[28:31], s{40+i} offen offset:{t*1024}{SC}")
            else:
                F2 += gelu_tile(accF(0, i, t), 80 + 4 * (i * 2 + t), True)
    sweep2(F, ne, False, CAP)
    for l in F2:
        a(l)
    a.label("K1_GE2")
    stamp(a, 3)
    a("v_add_u32 v44, s60, v3")
    a("ds_read_b128 v[40:43], v44")
    a(f"s_mov_b32 s34, {fh(c1)}")
    a("s_mov_b32 s35, s34")
    a(f"s_mul_i32 s36, s32, {AS}")
    a("s_lshl_b32 s37, s22, 3")
    a("s_lshl_b32 s38, s22, 2")
    a("s_add_u32 s38, s38, 44")
    a("s_cmp_lt_u32 s22, 12")
    a("s_cselect_b32 s37, s37, s38")
    a("s_add_u32 s36, s36, s37")
    a("s_lshl_b32 s37, s24, 1")
    a("s_add_u32 s36, s36, s37")
    a("s_lshl_b32 s36, s36, 10")
    a(f"s_add_u32 s36, s36, {WS_ACT}")
    a(f"s_add_u32 s37, s36, {AS*1024}")
    a("s_add_u32 s38, s36, 4096")
    a("s_add_u32 s39, s37, 4096")
    hst = []
    if HLATE >= 0:
        srd(a, 40, 10, WS_SIZE)
        a("s_cmp_lt_u32 s22, 12")
        a(f"s_cselect_b32 s36, s36, {WS_SIZE}")
        a(f"s_cselect_b32 s37, s37, {WS_SIZE}")
    a("s_cmp_lt_u32 s22, 12")
    a("s_cbranch_scc0 K1_GE3")
    for i in range(2):
        for t in range(2):
            if not (HEARLY and i * 2 + t < NFILL):
                if HLATE >= 0:
                    hst.append(f"buffer_store_dwordx4 {v(80 + 4*(i*2+t),4)}, v3, s[40:43], s{36+i} offen offset:{t*1024}{SC}")
                else:
                    a(f"buffer_store_dwordx4 {v(80 + 4*(i*2+t),4)}, v3, s[28:31], s{36+i} offen offset:{t*1024}{SC}")
    place(a, "GE")
    a.label("K1_GE3")
    for t in range(2):
        for i in range(2):
            out = 64 + 4 * (i * 2 + t)
            for l in gelu_tile(accF(1, i, t), out, True)[(-4 if (env("X_NOGE2", 0) and t == 0) else 0):]:
                a(l)
            if HLATE >= 0:
                hst.append(f"buffer_store_dwordx4 {v(out,4)}, v3, s[40:43], s{38+i} offen offset:{t*1024}{SC}")
            else:
                a(f"buffer_store_dwordx4 {v(out,4)}, v3, s[28:31], s{38+i} offen offset:{t*1024}{SC}")

    a.label("K2_ATTN")
    Q = [8, 12]
    G = [4, 5]
    KB = [16, 20]
    VB = [[24, 28], [32, 36]]
    IDX = 6
    VK, VV0, VV1 = 40, 41, 42
    C = [96, 112]
    S = [128, 144]
    P = [160, 176]
    O = [192, 208]
    a(f"v_mov_b32 v{IDX}, 0xdddd")
    def zero_state():
        for i in range(4):
            a(f"v_mov_b32 v{VB[1][1]+i}, 0")
        a("s_nop 1")
        for r in (O[0], O[1], P[1]):
            a(f"{MF} {v(r,16)}, {v(VB[1][1],4)}, {v(VB[1][1],4)}, 0")
    zero_state()
    a("s_mov_b32 s26, 0")
    a("s_waitcnt lgkmcnt(0)")
    a(f"v_mov_b32 v7, v{VK}                    ; g address")
    a(f"v_mov_b32 v{VK}, v3")
    stamp(a, 1, 16)
    a("s_barrier                              ; X1")
    stamp(a, 2, 16)
    a("s_setprio 2")
    stamp(a, 4)
    stamp(a, 1, 9)
    a(f"ds_read_b128 {v(Q[0],4)}, v43")
    a(f"ds_read_b128 {v(KB[0],4)}, v{VK}")
    a(f"ds_read_b128 {v(Q[1],4)}, v43 offset:1024")
    a("s_waitcnt lgkmcnt(0)")
    for q in range(2):
        a(f"{MF} {v(S[q],16)}, {v(KB[0],4)}, {v(Q[q],4)}, 0")
    a("s_nop 7")
    a("s_nop 3")
    def maxtree(src, dst, acc=False):
        if acc:
            for i in range(0, 16, 2):
                a(f"v_max3_f32 v{dst}, v{src+i}, v{src+i+1}, v{dst}")
        else:
            a(f"v_max_f32 v{dst}, v{src}, v{src+1}")
            for i in range(2, 16, 2):
                a(f"v_max3_f32 v{dst}, v{src+i}, v{src+i+1}, v{dst}")
    for q in range(2):
        maxtree(S[q], 44 + q)
    a.label("K2_SETMAX")
    a(f"ds_read_b128 {v(KB[0],4)}, v{VK}")
    a(f"ds_read_b128 {v(VB[0][0],4)}, v{VV0}")
    a(f"ds_read_b128 {v(VB[0][1],4)}, v{VV1}")
    a(f"ds_read_b128 {v(KB[1],4)}, v{VK} offset:{TP}")
    for q in range(2):
        a(f"v_mov_b32 v{46+q}, v{44+q}")
    a("s_nop 1")
    for q in range(2):
        a(f"v_permlane32_swap_b32 v{44+q}, v{46+q}")
    for q in range(2):
        a(f"v_min_f32 v{44+q}, -v{44+q}, -v{46+q}     ; -max")
    for i in range(0, 16, 2):
        a(f"v_pk_mov_b32 {v(C[0]+i,2)}, v[44:45], v[44:45] op_sel:[0,0]")
    a("s_waitcnt lgkmcnt(0)")
    a("s_nop 0")
    a(f"{MF} {v(S[0],16)}, {v(KB[0],4)}, {v(Q[0],4)}, {v(C[0],16)}")
    for i in range(0, 16, 2):
        a(f"v_pk_mov_b32 {v(C[1]+i,2)}, v[44:45], v[44:45] op_sel:[1,1]")
    a("s_nop 3")
    stamp(a, 2, 9)
    if HU < 0:
        a("s_cmp_lg_u32 s26, 0")
        a("s_cbranch_scc1 K2_NOBAR")
        a("s_waitcnt vmcnt(0)")
        a("s_barrier")
        a.label("K2_NOBAR")
    else:
        a("s_lshl_b32 s27, 1, s20")
        a("v_mov_b32 v48, s27")
    stamp(a, 3, 9)
    stamp(a, 3, 16)
    if PROF == 16:
        a("s_mov_b32 s89, 0")
        a("s_mov_b32 s90, 0")
    if PADATT:
        pad_until(a, PADATT)
    U = UA
    assert U in (8, 16)
    a(f"s_mov_b32 s27, {64 // U - 1}")
    a("s_mov_b32 s77, 2")
    a(f"v_mov_b32 v46, {LDS_SYNC + 12}")
    a.raw(".p2align 6")
    place(a, "A")
    a.label("K2_LOOP")
    def exps(q, lo, hi):
        for i in range(lo, hi):
            a(f"v_exp_f32 v{P[q]+i}, v{S[q]+i}")
    def smf(q, vb, half):
        a(f"v_smfmac_f32_32x32x32_bf16 {v(O[q],16)}, {v(vb,4)}, {v(P[q]+8*half,8)}, v{IDX}")
    for u in range(U):
        b = u & 1
        a(f"{MF} {v(S[1],16)}, {v(KB[b],4)}, {v(Q[1],4)}, {v(C[1],16)}")
        if u == 8:
            a("s_bitcmp1_b32 s75, s77")
            a("s_cbranch_scc0 K2_KVM")
            a.label("K2_MID")
        if HLATE >= 0 and u >= HLATE and (u - HLATE) % HSTEP == 0 and (u - HLATE) // HSTEP < len(hst):
            assert u + 2 < HU
            a(hst[(u - HLATE) // HSTEP])
        exps(0, 0, 5)
        smf(1, VB[b ^ 1][1], 1)
        if JW:
            a("s_waitcnt lgkmcnt(2)")
        if u == 8:
            a("s_add_u32 s77, s77, 4")
            a("s_min_u32 s77, s77, 14")
        if u == TNEAR and EARLYT:
            a("s_mov_b64 exec, 1")
            a(f"ds_write_b32 v46, v{VK} offset:8")
            a("s_mov_b64 exec, -1")
        a(f"ds_read_b128 {v(VB[b^1][0],4)}, v{VV0} offset:{(u+1)*VP}")
        exps(0, 5, 11)
        smf(0, VB[b][0], 0)
        if JW:
            a("s_waitcnt lgkmcnt(1)")
        if u == HU:
            a("s_waitcnt vmcnt(0)")
            a("s_mov_b64 exec, 1")
            a("ds_or_b32 v46, v48 offset:8")
            a("s_mov_b64 exec, -1")
        a(f"ds_read_b128 {v(VB[b^1][1],4)}, v{VV1} offset:{(u+1)*VP}")
        exps(0, 11, 16)
        a(f"{MF} {v(S[0],16)}, {v(KB[b^1],4)}, {v(Q[0],4)}, {v(C[0],16)}")
        a(f"ds_read_b128 {v(KB[b],4)}, v{VK} offset:{(u+2)*TP}")
        exps(1, 0, 5)
        smf(0, VB[b][1], 1)
        if u % 8 == (6 if JW else 7):
            a("ds_read_b32 v47, v46")
        exps(1, 5, 11)
        smf(1, VB[b][0], 0)
        if not JW:
            a("s_waitcnt lgkmcnt(0)")
        if u == U - 1:
            a(f"v_add_u32 v{VK}, {U*TP}, v{VK}")
            a(f"v_add_u32 v{VV0}, {U*VP}, v{VV0}")
            a(f"v_add_u32 v{VV1}, {U*VP}, v{VV1}")
        if u % 8 == 7:
            a("v_readfirstlane_b32 s75, v47")
        exps(1, 11, 16)
        if u == 7:
            mid_check = True
    a("s_bitcmp1_b32 s75, s77")
    a("s_cbranch_scc0 K2_KVW")
    a.label("K2_NEXT")
    if HLATE >= 0:
        a("s_mov_b32 s42, 0")
    a("s_add_u32 s77, s77, 4")
    a("s_min_u32 s77, s77, 14")
    if PROF in (9, 16):
        a("s_memrealtime s[96:97]")
        a("s_memtime s[98:99]")
        a("s_waitcnt lgkmcnt(0)")
        for it, sl in (((3, 4), (2, 5), (1, 6)) if PROF == 9 else ((3, 4), (1, 5), (0, 6))):
            a(f"s_cmp_eq_u32 s27, {it}")
            a(f"s_cselect_b32 s{80+sl}, s96, s{80+sl}")
            a(f"s_cselect_b32 s{88+sl}, s98, s{88+sl}")
    a("s_sub_u32 s27, s27, 1")
    a("s_cbranch_scc0 K2_LOOP")
    a("s_nop 1")
    smf(1, VB[(U - 1) & 1][1], 1)
    stamp(a, 5)
    stamp(a, 1, 8)
    stamp(a, 1, 13)
    a(f"v_mov_b32 v46, {LDS_SYNC + 4}")
    a("ds_read_b32 v47, v46")
    a(f"ds_read_b32 v{G[0]}, v7")
    a(f"ds_read_b32 v{G[1]}, v7 offset:128")
    a("s_lshl_b32 s24, s71, 2")
    a("s_add_u32 s24, s24, s20")
    a("s_lshl_b32 s24, s24, 5")
    a("s_add_u32 s24, s24, s70")
    a(f"s_mul_i32 s25, s24, {OS}" if TAGO else "s_lshl_b32 s25, s24, 11")
    a(f"s_add_u32 s25, s25, {WS_O}")
    a("v_mov_b32 v48, 0")
    a("v_mov_b32 v49, 0")
    a(f"v_pk_mul_f32 v[44:45], {v(O[0],2)}, v[48:49]")
    for i in range(2, 10, 2):
        a(f"v_pk_fma_f32 v[44:45], {v(O[0]+i,2)}, v[48:49], v[44:45]")
    for i in range(0, 10, 2):
        a(f"v_pk_fma_f32 v[44:45], {v(O[1]+i,2)}, v[48:49], v[44:45]")
    a(f"v_mul_f32 v50, {fh(2.0**68)}, v{O[0]+8}")
    a(f"v_mul_f32 v51, {fh(2.0**68)}, v{O[1]+8}")
    a("v_pk_fma_f32 v[44:45], v[50:51], v[48:49], v[44:45]")
    a("v_cmp_u_f32 vcc, v44, v45")
    a("s_nop 1")
    a("s_cmp_eq_u64 vcc, 0")
    a("s_cbranch_scc0 K2_FB")
    a.label("K2_FIN")
    for q in range(2):
        a(f"v_rcp_f32 v{48+q}, v{O[q]+8}")
    a(f"s_mov_b32 s74, {SPIN*8}")
    a.label("K2_GW")
    a("s_waitcnt lgkmcnt(0)")
    a("v_readfirstlane_b32 s75, v47")
    a("s_sub_u32 s74, s74, 1")
    a("s_cmp_eq_u32 s74, 0")
    a("s_cbranch_scc1 K2_GOK")
    a("s_cmp_ge_u32 s75, 64")
    a("s_cbranch_scc1 K2_GOK")
    a("s_sleep 1")
    a("ds_read_b32 v47, v46")
    a(f"ds_read_b32 v{G[0]}, v7")
    a(f"ds_read_b32 v{G[1]}, v7 offset:128")
    a("s_branch K2_GW")
    a.label("K2_GOK")
    for q in range(2):
        a(f"v_mul_f32 v{44+2*q}, v{48+q}, v{G[q]}")
    GR = S[0]
    a(f"v_mov_b32 v{GR+8}, s68")
    a(f"v_mov_b32 v{GR+9}, s69")
    a(f"v_mov_b32 v{GR+10}, s68")
    a(f"v_mov_b32 v{GR+11}, s69")
    if TAGO:
        for r in (3, 7, 14, 15):
            a(f"v_mov_b32 v{GR+r}, s68")
    for q in range(2):
        for i in range(0, 8, 2):
            a(f"v_pk_mul_f32 {v(O[q]+i,2)}, {v(O[q]+i,2)}, {v(44+2*q,2)} op_sel_hi:[1,0]")
        for i in range(0, 8, 2):
            a(f"v_cvt_pk_bf16_f32 v{GR + 12 + q if (TAGO and i == 6) else GR + 4*q + i//2}, v{O[q]+i}, v{O[q]+i+1}")
        a(f"buffer_store_dwordx4 {v(GR+4*q,4)}, v3, s[28:31], s25 offen offset:{q*1024}{SC}")
    if TAGO:
        a(f"buffer_store_dwordx4 {v(GR+12,4)}, v3, s[28:31], s25 offen offset:2048{SC}")
    if FRESH:
        a("s_lshl_b32 s24, s24, 12")
        a(f"s_add_u32 s24, s24, {WS_FR}")
        a("v_lshlrev_b32 v45, 7, v2")
    else:
        a("s_lshl_b32 s24, s24, 7")
        a(f"s_add_u32 s24, s24, {FL_C}")
    if YBAR:
        a("s_barrier")
    else:
        a(f"v_mov_b32 v46, {LDS_SYNC + 8}")
        a("v_mov_b32 v47, 1")
        a("s_mov_b64 exec, 1")
        a("ds_add_u32 v46, v47")
        a("s_mov_b64 exec, -1")
    NSD = min(NDEF, 11)
    if NDEF:
        srd(a, 44, 16, 0x1c0000)
        a(f"s_mul_i32 s53, s20, {DSTG}")
        a("s_add_u32 s53, s53, 0x10000")
        frag_addrs(a, "s53")
        part_addrs(a, "s53", 240)
        a(f"s_mul_i32 s32, s20, {NDEF}")
        a(f"s_add_u32 s32, s32, {4*(28-NDEF)}")
        a(f"s_mul_i32 s33, s72, {2*AS*1024}")
        a("s_lshl_b32 s34, s32, 10")
        a("s_add_u32 s33, s33, s34")
        a(f"s_add_u32 s33, s33, {WS_ACT}")
        a(f"s_add_u32 s34, s33, {AS*1024}")
        a("s_lshl_b32 s35, s32, 14")
        a("s_lshl_b32 s36, s73, 7")
        a("s_add_u32 s35, s35, s36")
        a("v_and_b32 v4, 31, v2")
        a("v_lshlrev_b32 v4, 2, v4")
        a(f"v_add_u32 v4, {LDS_OG}, v4")
        a("ds_read_b32 v244, v4")
        a("ds_read_b32 v246, v4 offset:128")
        a("ds_read_b32 v47, v46")
    stamp(a, 2, 13)
    if not TAGO:
        a("s_waitcnt vmcnt(0)")
    stamp(a, 3, 13)
    if FULLF:
        a("s_mov_b64 exec, 0xff")
        a(f"buffer_store_dwordx4 {v(GR+8,4)}, v3, s[28:31], s24 offen sc1")
    elif FRESH:
        a("s_mov_b32 exec_hi, 0")
        a(f"buffer_store_dwordx2 {v(GR+8,2)}, v45, s[28:31], s24 offen sc1")
    elif ATFLAG:
        a("s_mov_b64 exec, 1")
        a(f"buffer_atomic_swap_x2 {v(GR+8,2)}, v3, s[28:31], s24 offen sc1")
    else:
        a("s_mov_b64 exec, 1")
        a(f"buffer_store_dwordx2 {v(GR+8,2)}, v3, s[28:31], s24 offen sc1")
    a("s_mov_b64 exec, -1")
    a("s_setprio 0")
    stamp(a, 6)
    stamp(a, 2, 8)
    if NDEF:
        lds_wait(a, 46, 47, ["s_and_b32 s75, s75, 255", "s_cmp_ge_u32 s75, 68"], first_read=False)
        a("v_mov_b32 v248, v46")
        a("v_mov_b32 v249, 256")
        DA_, DW_, DC_ = 144, 80, 16
        dq = []
        def dw(k):
            a(f"s_add_u32 m0, s53, {(k % NSD) * 2048}")
            a("s_nop 0")
            a("buffer_load_dwordx4 v10, s[44:47], s35 offen lds")
            a("buffer_load_dwordx4 v11, s[44:47], s35 offen offset:1024 lds")
            a("s_add_u32 s35, s35, 16384")
            dq.extend([k] * 2)
        def da(k):
            for t in range(2):
                a(f"buffer_load_dwordx4 {v(DA_+8*k+4*t,4)}, v3, s[28:31], s{33+t} offen offset:{(k%4)*1024}{SC}")
            if k % 4 == 3:
                a("s_add_u32 s33, s33, 4096")
                a("s_add_u32 s34, s34, 4096")
            dq.extend([k] * 2)
        def dwait(k):
            a(f"s_waitcnt vmcnt({len(dq) - 1 - max(i for i, t in enumerate(dq) if t == k)})")
        def drd(k):
            b = DW_ + 8 * (k & 1)
            for n in range(2):
                for u in range(2):
                    a(f"ds_read_b64_tr_b16 {v(b+4*n+2*u,2)}, v{12+n} offset:{(k % NSD) * 2048 + u*1024}")
        AH = min(AHD, NDEF)
        for k in range(AH):
            dw(k); da(k)
        dwait(0)
        stamp(a, 3, 8)
        drd(0)
        for k in range(NDEF):
            if k + AH < NDEF:
                dw(k + AH); da(k + AH)
            if k + 1 < NDEF:
                dwait(k + 1)
                if k + 3 == NDEF:
                    a("s_mov_b64 exec, 1")
                    a("ds_add_u32 v248, v249")
                    a("s_mov_b64 exec, -1")
                drd(k + 1)
                a("s_waitcnt lgkmcnt(4)")
            else:
                a("s_waitcnt lgkmcnt(0)")
            b = DW_ + 8 * (k & 1)
            for n in range(2):
                for t in range(2):
                    acc = DC_ + (n * 2 + t) * 16
                    cin = "0" if k == 0 else v(acc, 16)
                    a(f"{MF} {v(acc,16)}, {v(b+4*n,4)}, {v(DA_+8*k+4*t,4)}, {cin}")
        stamp(a, 4, 8)
        a("s_nop 7")
        for n in range(2):
            for t in range(2):
                acc = DC_ + (n * 2 + t) * 16
                if n + t == 0:
                    a("s_nop 1")
                for j in range(0, 16, 2):
                    a(f"v_pk_mul_f32 {v(acc+j,2)}, {v(acc+j,2)}, {v(244+2*t,2)} op_sel_hi:[1,0]")
                for g in range(4):
                    a(f"ds_write_b128 v{240+g}, {v(acc+4*g,4)} offset:{t*8192 + n*128}")
        stamp(a, 5, 8)
    a("s_branch K3_REDUCE")
    a.label("K2_FB")
    a("s_cmp_lg_u32 s26, 0")
    a("s_cbranch_scc1 K2_FIN")
    a("s_waitcnt lgkmcnt(0)")
    a("s_mov_b32 s26, 100")
    vaddr_init(a)
    zero_state()
    a("v_mov_b32 v44, 0xff800000")
    a("v_mov_b32 v45, 0xff800000")
    a("v_mov_b32 v43, v3")
    a("s_mov_b32 s27, 64")
    a.label("K2_MAXLOOP")
    a(f"ds_read_b128 {v(KB[0],4)}, v43")
    a(f"v_add_u32 v43, {TP}, v43")
    a("s_waitcnt lgkmcnt(0)")
    for q in range(2):
        a(f"{MF} {v(S[q],16)}, {v(KB[0],4)}, {v(Q[q],4)}, 0")
    a("s_nop 7")
    a("s_nop 7")
    for q in range(2):
        maxtree(S[q], 44 + q, acc=True)
    a("s_sub_u32 s27, s27, 1")
    a("s_cmp_lg_u32 s27, 0")
    a("s_cbranch_scc1 K2_MAXLOOP")
    a("s_branch K2_SETMAX")
    for nm in ("SQ", "SR"):
        a.label(nm + "_W")
        lds_wait(a, 0, 10, ["s_bitcmp1_b32 s75, 6"])
        a(f"s_branch {nm}_B")
    for lab, back in (("K2_KVW", "K2_NEXT"), ("K2_KVM", "K2_MID"))[:U // 8]:
        a.label(lab)
        if PROF == 16:
            a("s_memtime s[100:101]")
        lds_wait(a, 46, 47, ["s_bitcmp1_b32 s75, s77"])
        if PROF == 16:
            a("s_memtime s[98:99]")
            a("s_waitcnt lgkmcnt(0)")
            a("s_sub_u32 s98, s98, s100")
            a("s_add_u32 s89, s89, s98")
            a("s_lshl_b32 s98, 1, s77")
            a("s_or_b32 s90, s90, s98")
        a(f"s_branch {back}")

    a.label("K2_GEMM")
    ND, NW = 28 - NDEF, 8
    NG = ND // 4
    NS = env('NSW', 3)
    srd(a, 44, 16, 0x1c0000)
    srd(a, 48, 8, 0x80000)
    if FMAP:
        a("s_and_b32 s42, s72, 3")
        a("s_lshl_b32 s42, s42, 1")
        a("s_add_u32 s42, s42, s73")
    else:
        a("s_lshr_b32 s42, s2, 3")
        a("s_and_b32 s43, s42, 7")
        a("s_lshr_b32 s42, s42, 3")
        a("s_lshl_b32 s42, s42, 1")
        a("s_add_u32 s42, s42, s43")
    for _ in range(-(-14 // NG) - 1):
        a(f"s_cmp_ge_u32 s42, {NG}")
        a(f"s_cselect_b32 s43, {NG}, 0")
        a("s_sub_u32 s42, s42, s43")
    if not ROT:
        a("s_mov_b32 s42, 0")
    a("s_mov_b32 s52, s42")
    a(f"s_mul_i32 s32, s23, {ND}")
    a("s_lshl_b32 s43, s42, 2")
    a("s_add_u32 s32, s32, s43")
    a(f"s_mul_i32 s33, s72, {2*AS*1024}")
    a(f"s_add_u32 s33, s33, {WS_ACT}")
    a("s_lshl_b32 s43, s32, 10")
    a("s_add_u32 s33, s33, s43")
    a(f"s_add_u32 s34, s33, {AS*1024}")
    a("s_lshl_b32 s43, s73, 7")
    a("s_lshl_b32 s35, s32, 14")
    a("s_add_u32 s35, s35, s43")
    a("s_lshl_b32 s39, s23, 17")
    a("s_add_u32 s39, s39, s43")
    a(f"s_mul_i32 s53, s23, {3*2048}")
    a(f"s_add_u32 s53, s53, {LDS_WS}")
    GA = 16
    FR = 80
    D = 8
    queue = []
    def ld(dst, sr, k, tag):
        a(f"buffer_load_dwordx4 {v(dst,4)}, v3, s[28:31], s{sr} offen offset:{(k%4)*1024}{SC}")
        queue.append(tag)
    def aloads(k):
        b = FR + (k % D) * 16
        ld(b + 4, 33, k, ("a", k)); ld(b + 12, 34, k, ("a", k))
        if k % 4 == 3:
            a("s_add_u32 s42, s42, 1")
            a(f"s_cmp_eq_u32 s42, {NG}")
            a("s_movk_i32 s43, 4096")
            a(f"s_cselect_b32 s43, {(-(NG-1)*4096) & 0xffffffff:#x}, s43")
            a("s_cselect_b32 s42, 0, s42")
            for sr in (33, 34):
                a(f"s_add_u32 s{sr}, s{sr}, s43")
    def wloads(k):
        a(f"s_add_u32 m0, s53, {(k % NS) * 2048}")
        sr, rs = (35, 44) if k < ND else (39, 48)
        a("s_nop 0")
        a(f"buffer_load_dwordx4 v248, s[{rs}:{rs+3}], s{sr} offen lds")
        a(f"buffer_load_dwordx4 v249, s[{rs}:{rs+3}], s{sr} offen offset:1024 lds")
        queue.extend([("w", k)] * 2)
        a(f"s_add_u32 s{sr}, s{sr}, 16384")
        if k < ND and k % 4 == 3:
            a("s_add_u32 s52, s52, 1")
            a(f"s_cmp_eq_u32 s52, {NG}")
            a(f"s_cselect_b32 s43, {(-ND*16384) & 0xffffffff:#x}, 0")
            a("s_cselect_b32 s52, 0, s52")
            a("s_add_u32 s35, s35, s43")
    def waitfor(*tags):
        n = len(queue) - 1 - max(i for i, t in enumerate(queue) if t in tags)
        a(f"s_waitcnt vmcnt({n})")
    def wreads(k):
        b = FR + (k % D) * 16
        for n in range(2):
            for u in range(2):
                a(f"ds_read_b64_tr_b16 {v(b+8*n+2*u,2)}, v{250+n} offset:{(k % NS) * 2048 + u*1024}")
    def mm(k):
        b = FR + (k % D) * 16
        for n in range(2):
            for t in range(2):
                acc = GA + (n * 2 + t) * 16
                cin = "0" if k == 0 else v(acc, 16)
                a(f"{MF} {v(acc,16)}, {v(b+8*n,4)}, {v(b+4+8*t,4)}, {cin}")
    stamp(a, 3)
    a(f"v_mov_b32 v22, {LDS_SYNC + 16}")
    lds_wait(a, 22, 23, ["s_bitcmp1_b32 s75, 2"])
    a("ds_write_b128 v36, v[40:43]")
    a("ds_write_b128 v36, v[44:47] offset:16")
    a(f"ds_write_b128 v36, v[40:43] offset:{2*VP}")
    a(f"ds_write_b128 v36, v[44:47] offset:{2*VP+16}")
    if KVV == 1:
        kv_loads(3, 5)
    a(f"s_waitcnt vmcnt({4 if KVV == 1 else 0}) lgkmcnt(0)")
    stamp(a, 5, 15)
    if KVV >= 3:
        kv_loads(3, 5)
    if KVV >= 4:
        kv_loads(5, 7)
    a("s_barrier                              ; X1")
    a(f"s_setprio {GPRIO}")
    stamp(a, 6, 15)
    if KVV == 2:
        kv_loads(3, 5)
    if KVV < 4:
        kv_loads(5, 7)
    else:
        kv_loads(7, 9)
    def b1_flag():
        a("s_cmp_lg_u32 s23, 1")
        a("s_cbranch_scc1 K2_NOB1")
        a("s_lshl_b32 s37, s21, 4")
        a("s_add_u32 s37, s37, s22")
        a("s_lshl_b32 s37, s37, 7")
        a(f"s_add_u32 s37, s37, {FL_B1}")
        flag_store(a, "s37", 16)
        a.label("K2_NOB1")
    if HU < 0:
        a("s_barrier                              ; X2")
        b1_flag()
    def arrived(stage, n):
        a(f"s_waitcnt vmcnt({n})")
        a("s_mov_b64 exec, 1")
        a(f"ds_add_u32 v228, v{229+stage} offset:12")
        a("s_mov_b64 exec, -1")
    if KVV < 4:
        kv_loads(7, 9)
    arrived(0, 8)
    arrived(1, 4)
    if HU >= 0 and HLATE < 0:
        a(f"v_mov_b32 v22, {LDS_SYNC + 20}")
        lds_wait(a, 22, 23, ["s_cmp_eq_u32 s75, 15"])
        b1_flag()
    kv_loads(9, 12)
    arrived(2, 6)
    kv_loads(12, 16)
    srd(a, 44, 16, 0x1c0000)
    arrived(3, 0)
    a("s_lshl_b32 s55, s76, 4")
    a(f"s_add_u32 s55, s55, {WS_G}")
    a("s_mov_b32 exec_lo, 1")
    a("s_mov_b32 exec_hi, 1")
    a(f"buffer_store_dwordx2 v[68:69], v70, s[28:31], s55 offen{SC}")
    a("s_mov_b64 exec, -1")
    if HLATE >= 0:
        a(f"v_mov_b32 v22, {LDS_SYNC + 20}")
        lds_wait(a, 22, 23, ["s_cmp_eq_u32 s75, 15"], slp=4)
        b1_flag()
    if WARMW and FMAP:
        a("s_lshr_b32 s54, s2, 3")
        a("s_lshl_b32 s54, s54, 2")
        a("s_add_u32 s54, s54, s23")
        a("s_mul_i32 s55, s54, 14336")
        a("v_min_u32 v14, 55, v2")
        a("v_lshlrev_b32 v14, 7, v14")
        a("buffer_load_dword v15, v14, s[44:47], s55 offen")
        a("s_add_u32 s55, s55, 7168")
        a("buffer_load_dword v15, v14, s[44:47], s55 offen")
        a("s_lshl_b32 s55, s54, 12")
        a("v_and_b32 v14, 31, v2")
        a("v_lshlrev_b32 v14, 7, v14")
        a("buffer_load_dword v15, v14, s[48:51], s55 offen")
    elif WARMW:
        a("s_lshr_b32 s54, s2, 3")
        a("s_and_b32 s54, s54, 7")
        a("s_lshl_b32 s55, s54, 2")
        a("s_add_u32 s55, s55, s23")
        a("s_mul_i32 s55, s55, 57344")
        a("s_add_u32 s55, s55, s43")
        a("v_min_u32 v14, 55, v2")
        a("v_lshlrev_b32 v14, 10, v14")
        a("buffer_load_dword v15, v14, s[44:47], s55 offen")
        a("s_lshl_b32 s55, s54, 2")
        a("s_add_u32 s55, s55, s23")
        a("s_lshl_b32 s55, s55, 14")
        a("s_add_u32 s55, s55, s43")
        a("v_and_b32 v14, 15, v2")
        a("v_lshlrev_b32 v14, 10, v14")
        a("buffer_load_dword v15, v14, s[48:51], s55 offen")
    for k in range(NS):
        wloads(k)
    a("s_setprio 3")
    a("s_lshr_b32 s24, s72, 1")
    a("s_lshl_b32 s24, s24, 11")
    a(f"s_add_u32 s24, s24, {FL_B1}")
    poll_shared(a, 3, [("s24", 224, 8, 4)], 20, lslp=BSLP)
    a("s_lshl_b32 s54, s72, 9")
    a(f"s_add_u32 s54, s54, {WS_G}")
    a("s_lshl_b32 s55, s71, 2")
    a("s_add_u32 s55, s55, s23")
    a("s_lshl_b32 s55, s55, 9")
    a(f"s_add_u32 s55, s55, {WS_G}")
    a(f"s_mov_b32 s74, {SPIN}")
    a.label("K2_GL")
    a(f"buffer_load_dwordx2 v[240:241], v225, s[28:31], s54 offen{SC}")
    a(f"buffer_load_dwordx2 v[242:243], v225, s[28:31], s54 offen offset:256{SC}")
    a(f"buffer_load_dwordx2 v[244:245], v226, s[28:31], s55 offen{SC}")
    a("s_waitcnt vmcnt(0)")
    a("v_cmp_ne_u32 vcc, s68, v241")
    a("v_cmp_ne_u32 s[56:57], s68, v243")
    a("v_cmp_ne_u32 s[58:59], s68, v245")
    a("s_sub_u32 s74, s74, 1")
    a("s_cbranch_scc1 K2_GD")
    a("s_or_b64 vcc, vcc, s[56:57]")
    a("s_or_b64 vcc, vcc, s[58:59]")
    a("s_cbranch_scc0 K2_GD")
    a("s_sleep 8")
    a("s_branch K2_GL")
    a.label("K2_GD")
    a("ds_write_b32 v227, v244")
    a("s_mov_b64 exec, 1")
    a("ds_add_u32 v228, v230 offset:4")
    a("s_mov_b64 exec, -1")
    stamp(a, 4)
    stamp(a, 6, 16)
    DA = DAH
    a("s_setprio 0")
    if env("X_DDEL", 0):
        a(f"s_sleep {env('X_DDEL', 0)}")
    place(a, "D")
    for k in range(DA):
        aloads(k)
    for k in range(ND + NW):
        waitfor(("w", k), ("a", k))
        wreads(k)
        a("s_waitcnt lgkmcnt(0)")
        if k + NS < ND + NW:
            wloads(k + NS)
        if k + DA < ND:
            aloads(k + DA)
        if k < ND:
            mm(k)
    a("s_lshl_b32 s24, s72, 2")
    a("s_add_u32 s24, s24, s23")
    a(f"s_mul_i32 s24, s24, {8*OS}" if TAGO else "s_lshl_b32 s24, s24, 14")
    a(f"s_add_u32 s24, s24, {WS_O}")
    a("s_lshl_b32 s26, s72, 12")
    a("s_lshl_b32 s25, s23, 10")
    a("s_add_u32 s26, s26, s25")
    a(f"s_add_u32 s26, s26, {FL_C}")
    a("s_mov_b32 s54, 0")
    a(f"s_mov_b32 s74, {SPIN}")
    if TLBW > 1:
        lab = a.newlabel("TLB")
        a("s_cmp_lg_u32 s23, 2")
        a(f"s_cbranch_scc1 {lab}")
        a("v_mov_b32 v12, 0")
        for pg in (6, 7):
            a(f"s_mov_b32 s33, {spare(pg):#x}")
            a("buffer_load_dword v13, v12, s[28:31], s33 offen sc1")
        a("s_lshl_b32 s33, s72, 16")
        a("s_lshl_b32 s34, s73, 7")
        a("s_add_u32 s33, s33, s34")
        a("v_mov_b32 v12, s33")
        a("global_load_dword v13, v12, s[64:65] sc1")
        a.label(lab)
    stamp(a, 5)
    stamp(a, 1, 8)
    def c_poll(r=8):
        if FRESH:
            a("s_memrealtime s[58:59]")
        a(f"v_mov_b32 v{r}, 0")
        a(f"v_mov_b32 v{r+1}, 0")
        if FRESH:
            a("s_waitcnt lgkmcnt(0)")
            a(f"s_bfe_u32 s58, s58, {(5 << 16) | FRESH:#x}")
            a("s_lshl_b32 s58, s58, 7")
            a("s_add_u32 s26, s27, s58")
        if MASKP:
            a("s_xor_b32 exec_lo, s54, 0xff")
            a("s_mov_b32 exec_hi, 0")
        else:
            a("s_mov_b64 exec, 0xff")
        if ATPOLL:
            a(f"buffer_atomic_or_x2 {v(r,2)}, v233, s[28:31], s26 offen sc0 sc1")
        else:
            a(f"buffer_load_dwordx2 {v(r,2)}, v233, s[28:31], s26 offen sc1")
        a("s_mov_b64 exec, -1")
    def pause():
        if NDEF and PAUSE:
            lab, done = a.newlabel("PZ"), a.newlabel("PZD")
            a(f"s_mov_b32 s76, {SPIN}")
            a.label(lab)
            a("ds_read_b32 v10, v11")
            a("s_waitcnt lgkmcnt(0)")
            a("v_readfirstlane_b32 s75, v10")
            a("s_sub_u32 s76, s76, 1")
            a(f"s_cbranch_scc1 {done}")
            a("s_cmp_ge_u32 s75, 1024")
            a(f"s_cbranch_scc1 {done}")
            a("s_and_b32 s75, s75, 15")
            a(f"s_cbranch_scc0 {done}")
            a("s_sleep 1")
            a(f"s_branch {lab}")
            a.label(done)
    def guard(reg, kk, tag, end=False):
        if not TRIM:
            return
        for w_ in ((2, 4) if end else (4, 2)):
            if not end and kk % w_ == 0:
                a(f"s_and_b32 s58, {reg}, {((1 << w_) - 1) << kk:#x}")
                a(f"s_cbranch_scc0 K3_G{tag}{w_}_{kk}")
            if end and kk % w_ == w_ - 1:
                a.label(f"K3_G{tag}{w_}_{kk - w_ + 1}")
    def o_loads(tag):
        for kk in range(NW):
            b = FR + ((ND + kk) % D) * 16
            guard("s55", kk, "L" + tag)
            a(f"s_bitcmp1_b32 s55, {kk}")
            a(f"s_cbranch_scc0 K3_L{tag}{kk}")
            a(f"s_add_u32 s25, s24, {kk*OS}")
            a(f"buffer_load_dwordx4 {v(b+4,4)}, v3, s[28:31], s25 offen{SC}")
            a(f"buffer_load_dwordx4 {v(b+12,4)}, v3, s[28:31], s25 offen offset:1024{SC}")
            if TAGO:
                a(f"buffer_load_dwordx4 {v(216+4*kk,4)}, v3, s[28:31], s25 offen offset:2048{SC}")
            a.label(f"K3_L{tag}{kk}")
            guard("s55", kk, "L" + tag, True)
    if TMODE:
        if TMODE == 3:
            a(f"v_mov_b32 v12, {LDS_SYNC + 20}")
            a.label("K3_NEAR")
            a("ds_read_b32 v10, v12")
            a("s_waitcnt lgkmcnt(0)")
            a("v_readfirstlane_b32 s75, v10")
            a(f"s_cmp_gt_u32 s75, {12 * 64 * 0xdddd}")
            a("s_cbranch_scc1 K3_NEAR1")
            a(f"s_sleep {PSLOW // 2}")
            a("s_sub_u32 s74, s74, 1")
            a("s_cbranch_scc0 K3_NEAR")
            a.label("K3_NEAR1")
            c_poll()
            a("s_waitcnt vmcnt(0)")
            a("v_cmp_eq_u64 vcc, s[68:69], v[8:9]")
            a(f"s_mov_b32 s74, {SPIN}")
            a("s_mov_b32 s55, vcc_lo")
            a("s_mov_b32 s54, s55")
            o_loads("P")
        a.label("K3_PRE")
        if TMODE == 2:
            a("s_cmp_eq_u32 s54, 0xff")
            a("s_cbranch_scc1 K3_PRE1")
            c_poll()
            a("s_waitcnt vmcnt(0)")
            a("v_cmp_eq_u64 vcc, s[68:69], v[8:9]")
            a("s_nop 0")
            a("s_andn2_b32 s55, vcc_lo, s54")
            a("s_or_b32 s54, s54, s55")
            o_loads("P")
            a.label("K3_PRE1")
        if YBAR:
            a("s_barrier                              ; Y0")
        else:
            for rep in range(4):
                a("ds_read_b32 v10, v11" + (" offset:12" if EARLYT else ""))
                a("s_waitcnt lgkmcnt(0)")
                a("v_readfirstlane_b32 s75, v10")
                a(f"s_cmp_ge_u32 s75, {(64 - UA) * TP}" if EARLYT else ("s_bitcmp1_b32 s75, 2" if TRIM else "s_and_b32 s75, s75, 15"))
                a("s_cbranch_scc1 K3_GO")
                a(f"s_sleep {PSLOW // 4}")
            a("s_sub_u32 s74, s74, 1")
            a("s_cbranch_scc0 K3_PRE")
        a.label("K3_GO")
    if TPIPE:
        assert TMODE == 1
        a(f"s_mov_b32 s74, {SPIN}")
        a("s_mov_b32 s59, 0")
        c_poll()
        a.label("K3_ROUND")
        a("s_waitcnt vmcnt(0)")
        a("v_cmp_eq_u64 vcc, s[68:69], v[8:9]")
        a("s_sub_u32 s74, s74, 1")
        a("s_cselect_b32 s55, 0xff, vcc_lo")
        a("s_andn2_b32 s55, s55, s54")
        a("s_cbranch_scc0 K3_NONEW")
        stamp(a, 1, 13)
        if PROF == 13:
            a("s_mov_b32 s89, s55")
        if FAST8:
            a("s_cmp_eq_u32 s55, 0xff")
            a("s_cbranch_scc1 K3_ALL8")
        a("s_or_b32 s54, s54, s55")
        o_loads("")
        a.label("K3_NONEW")
        a("s_cmp_eq_u32 s54, 0xff")
        a("s_cbranch_scc1 K3_LAST")
        a("s_or_b32 s58, s55, s59")
        a("s_cbranch_scc1 K3_BUSY")
        a(f"s_sleep {TSLP}")
        a.label("K3_BUSY")
        c_poll()
        a.label("K3_LAST")
        a("s_cmp_eq_u32 s59, 0")
        a("s_cbranch_scc1 K3_NOMM")
        stamp(a, 2, 13)
        a("ds_read_b32 v10, v11")
        a("s_setprio 0")
        for kk in range(NW):
            guard("s59", kk, "M")
            a(f"s_bitcmp1_b32 s59, {kk}")
            a(f"s_cbranch_scc0 K3_C{kk}")
            mm(ND + kk)
            a.label(f"K3_C{kk}")
            guard("s59", kk, "M", True)
        a("s_setprio 3")
        a.label("K3_NOMM")
        a("s_mov_b32 s59, s55")
        a("s_xor_b32 s58, s54, 0xff")
        a("s_or_b32 s58, s58, s59")
        a("s_cbranch_scc1 K3_ROUND")
        if FAST8:
            a("s_branch K3_DONE")
            a.label("K3_ALL8")
            for kk in range(NW):
                b = FR + ((ND + kk) % D) * 16
                if kk % 2 == 0:
                    a(f"s_add_u32 s25, s24, {kk*2048}")
                a(f"buffer_load_dwordx4 {v(b+4,4)}, v3, s[28:31], s25 offen offset:{(kk%2)*2048}{SC}")
                a(f"buffer_load_dwordx4 {v(b+12,4)}, v3, s[28:31], s25 offen offset:{(kk%2)*2048+1024}{SC}")
            a("s_setprio 0")
            for kk in range(NW):
                a(f"s_waitcnt vmcnt({2*(NW-1-kk)})")
                if kk == NW - 1:
                    a("ds_read_b32 v10, v11")
                mm(ND + kk)
            a("s_setprio 3")
            a.label("K3_DONE")
    else:
        a(f"s_mov_b32 s74, {SPIN}")
        assert YBAR and TMODE == 1 and not TAGO
        c_poll()
        a("v_sub_f32 v240, 1.0, v240")
        a("v_sub_f32 v242, 1.0, v242")
        for n in range(2):
            for t in range(2):
                acc = GA + (n * 2 + t) * 16
                for j in range(0, 16, 2):
                    a(f"v_pk_mul_f32 {v(acc+j,2)}, {v(acc+j,2)}, {v(240+2*t,2)} op_sel_hi:[1,0]")
        a("s_branch K3_ROUND")
        a.label("K3_POLL")
        c_poll()
        a.label("K3_ROUND")
        a("s_waitcnt vmcnt(0)")
        a("v_cmp_eq_u64 vcc, s[68:69], v[8:9]")
        a("s_sub_u32 s74, s74, 1")
        a("s_cselect_b32 s55, 0xff, vcc_lo")
        if TAGO:
            a("s_cselect_b64 s[60:61], 0, -1")
        a("s_andn2_b32 s55, s55, s54")
        a("s_cbranch_scc1 K3_SOME")
        if TMODE:
            a(f"s_sleep {TSLP}")
        else:
            a("ds_read_b32 v10, v11")
            a(f"s_sleep {TSLP}")
            a("s_waitcnt lgkmcnt(0)")
            a("v_readfirstlane_b32 s75, v10")
            a("s_and_b32 s75, s75, 15")
            a("s_cbranch_scc1 K3_POLL")
            a(f"s_sleep {PSLOW}")
        a("s_branch K3_POLL")
        a.label("K3_SOME")
        stamp(a, 1, 13)
        if PROF == 13:
            a("s_mov_b32 s89, s55")
        a("s_or_b32 s54, s54, s55")
        o_loads("")
        a.label("K3_NEXTP")
        a("s_waitcnt vmcnt(0)")
        a("s_cmp_eq_u32 s54, 0xff")
        a("s_cbranch_scc1 K3_LAST")
        c_poll()
        a.label("K3_LAST")
        if not (TRIM or YBAR):
            a("ds_read_b32 v10, v11")
        stamp(a, 2, 13)
        for kk in range(NW):
            guard("s55", kk, "M")
            a(f"s_bitcmp1_b32 s55, {kk}")
            a(f"s_cbranch_scc0 K3_C{kk}")
            if TAGO:
                b = FR + ((ND + kk) % D) * 16
                a(f"v_xor_b32 v12, s68, v{b+7}")
                a(f"v_xor_b32 v13, s68, v{b+15}")
                a(f"v_xor_b32 v14, s68, v{216+4*kk+3}")
                a("v_or3_b32 v12, v12, v13, v14")
                a("v_cmp_ne_u32 s[56:57], 0, v12")
                a(f"v_mov_b32 v{b+7}, v{216+4*kk}")
                a(f"v_mov_b32 v{b+15}, v{216+4*kk+1}")
                a("s_and_b64 s[56:57], s[56:57], s[60:61]")
                a(f"s_cbranch_scc1 K3_X{kk}")
            mm(ND + kk)
            a.label(f"K3_C{kk}")
            guard("s55", kk, "M", True)
        a("s_cmp_lg_u32 s54, 0xff")
        if TAGO:
            a("s_cbranch_scc0 K3_FIN")
            a("s_waitcnt vmcnt(0)")
            a("s_cmp_eq_u32 s59, 0")
            a("s_cbranch_scc1 K3_ROUND")
            a("s_mov_b32 s59, 0")
            a("s_branch K3_POLL")
            for kk in range(NW):
                a.label(f"K3_X{kk}")
                a(f"s_bitset0_b32 s54, {kk}")
                a("s_mov_b32 s59, 1")
                a(f"s_branch K3_C{kk}")
            a.label("K3_FIN")
        else:
            a("s_cbranch_scc1 K3_ROUND")
    stamp(a, 6)
    stamp(a, 2, 8)
    stamp(a, 3, 13)
    if not (YBAR or (TRIM and TMODE == 1 and not EARLYT)):
        lds_wait(a, 11, 10, ["s_bitcmp1_b32 s75, 2"], first_read=False)
    for i in range(3, 6):
        stamp(a, i, 8)
    stamp(a, 4, 13)
    a("s_nop 7")
    part_write(a, GA, 212)
    stamp(a, 5, 13)
    a.label("K3_REDUCE")
    srd(a, 24, 64, 0x200000)
    a("s_lshl_b32 s32, s20, 6")
    a("v_add_u32 v0, s32, v2                  ; tid")
    a("v_lshrrev_b32 v7, 3, v0                ; token")
    a("v_and_b32 v5, 7, v0")
    a("v_lshlrev_b32 v6, 1, v5")
    a("v_and_b32 v8, 7, v7")
    a("v_xor_b32 v6, v6, v8")
    a("v_lshlrev_b32 v6, 4, v6")
    a("v_lshl_add_u32 v6, v7, 8, v6")
    a("v_xor_b32 v8, 16, v6")
    a("v_add_u32 v9, 0x10000, v6")
    a("v_add_u32 v10, 0x10000, v8")
    a("v_lshlrev_b32 v7, 10, v7")
    a("v_lshl_add_u32 v7, v5, 4, v7")
    a("s_lshl_b32 s32, s72, 16")
    a("s_lshl_b32 s33, s73, 7")
    a("s_add_u32 s32, s32, s33")
    a("s_waitcnt lgkmcnt(0)")
    a("s_barrier                              ; Y1")
    stamp(a, 6, 8)
    stamp(a, 6, 13)
    NP = 8 if NDEF else 4
    RB = 96
    for w in range(NP):
        off = w * 16384 if w < 4 else (w - 4) * DSTG
        r0, r1 = (6, 8) if w < 4 else (9, 10)
        if off > 65535:
            a("v_add_u32 v9, 0x8000, v9")
            a("v_add_u32 v10, 0x8000, v10")
            off -= 0x8000
        a(f"ds_read_b128 {v(RB+8*w,4)}, v{r0} offset:{off}")
        a(f"ds_read_b128 {v(RB+4+8*w,4)}, v{r1} offset:{off}")
    for w in range(1, NP):
        a(f"s_waitcnt lgkmcnt({2*(NP-1-w)})")
        for j in range(0, 8, 2):
            a(f"v_pk_add_f32 {v(RB+j,2)}, {v(RB+j,2)}, {v(RB+8*w+j,2)}")
    for j in range(0, 8, 2):
        a(f"v_cvt_pk_bf16_f32 v{16+j//2}, v{RB+j}, v{RB+j+1}")
    a("buffer_store_dwordx4 v[16:19], v7, s[24:27], s32 offen" + (" " + OUTSC if OUTSC else ""))
    if PADEND:
        pad_until(a, PADEND)
    stamp_flush(a, 8)
    a.label("K_EXIT")
    a("s_endpgm")
    a.label("K_END")

DOC = """;
"""

def main():
    hdr = open("cdna_kernels/" + NAME + ".s.ref").read().split("\n")
    top = [l for l in hdr if l.startswith(";") and "@launch" not in l]
    out = "\n".join(top) + "\n"
    out += f"; @launch grid=(256,1,1) block=(512,1,1) lds={LDS_TOTAL}\n"
    out += DOC
    out += '.amdgcn_target "amdgcn-amd-amdhsa--gfx950"\n.text\n'
    a = Asm()
    gen(a)
    out += a.text()
    out += '.section .rodata,"a"\n'
    out += kernel_desc(KNAME, 256, 102)
    path = sys.argv[1] if len(sys.argv) > 1 else "cdna_kernels/" + NAME + ".s"
    open(path, "w").write(out)

main()
```
